```python
import torch

def _softmax(x, axis=-1):
    return torch.softmax(x, dim=axis)
def _gelu(x):
    return torch.nn.functional.gelu(x, approximate="tanh")
def _silu(x):
    return torch.nn.functional.silu(x)
def _sigmoid(x):
    return torch.sigmoid(x)
def _layernorm(x, axis=-1, eps=1e-5):
    m = x.mean(dim=axis, keepdim=True)
    v = x.var(dim=axis, keepdim=True, unbiased=False)
    return (x - m) / torch.sqrt(v + eps)
def _scatter_add(tgt, idx, src, axis=0):
    return tgt.clone().index_add_(axis, idx, src)
def _segment_sum(src, seg, n):
    out = torch.zeros((n,) + src.shape[1:], dtype=src.dtype)
    return out.index_add_(0, seg, src)
def _pad(x, pw):
    flat = tuple(v for pair in reversed(pw) for v in pair)
    return torch.nn.functional.pad(x, flat)

kernel_name = 'parallel_sum__ssm_conv_s5__geglu_ffn__prompt'

def setup_inputs():

    _w = (lambda a: (lambda t: t.to(torch.bfloat16) if t.is_floating_point() else t)(torch.as_tensor(a)))
    def _A_setup():
        B, S, D = 1, 2048, 640
        P = D
        Lambda_re = -0.5 * (lambda _x: torch.exp(torch.as_tensor(_x)))((lambda *s: torch.randn(*s, dtype=torch.bfloat16) * 0.8)(P))
        Lambda_im = (lambda *s: torch.randn(*s, dtype=torch.bfloat16) * 0.8)(P) * 1.0
        B_re = (lambda *s: torch.randn(*s, dtype=torch.bfloat16) * 0.8)(P, D) * (D ** -0.5)
        B_im = (lambda *s: torch.randn(*s, dtype=torch.bfloat16) * 0.8)(P, D) * (D ** -0.5)
        C_re = (lambda *s: torch.randn(*s, dtype=torch.bfloat16) * 0.8)(D, P) * (P ** -0.5)
        C_im = (lambda *s: torch.randn(*s, dtype=torch.bfloat16) * 0.8)(D, P) * (P ** -0.5)
        log_dt = (lambda *s: torch.randn(*s, dtype=torch.bfloat16) * 0.8)(P) * 0.3 - 2.0
        Dskip = (lambda *s: torch.randn(*s, dtype=torch.bfloat16) * 0.8)(D)
        return {
            "x": _w((lambda *s: torch.randn(*s, dtype=torch.bfloat16) * 0.05)(B, S, D)),
            "Lambda_re": _w(Lambda_re),
            "Lambda_im": _w(Lambda_im),
            "B_re": _w(B_re),
            "B_im": _w(B_im),
            "C_re": _w(C_re),
            "C_im": _w(C_im),
            "log_dt": _w(log_dt),
            "Dskip": _w(Dskip),
        }
    _A_in = _A_setup()

    def _B_setup():
        B, S, D, F = 1, 2048, 640, 1536
        return {
            "x": _w((lambda *s: torch.randn(*s, dtype=torch.bfloat16) * 0.05)(B, S, D)),
            "w_gate": _w((lambda *s: torch.randn(*s, dtype=torch.bfloat16) * 0.05)(D, F)),
            "w_up": _w((lambda *s: torch.randn(*s, dtype=torch.bfloat16) * 0.05)(D, F)),
            "w_down": _w((lambda *s: torch.randn(*s, dtype=torch.bfloat16) * 0.05)(F, D)),
        }
    _B_in = _B_setup()

    return {
        "A_x": _A_in["x"],
        "A_Lambda_re": _A_in["Lambda_re"],
        "A_Lambda_im": _A_in["Lambda_im"],
        "A_B_re": _A_in["B_re"],
        "A_B_im": _A_in["B_im"],
        "A_C_re": _A_in["C_re"],
        "A_C_im": _A_in["C_im"],
        "A_log_dt": _A_in["log_dt"],
        "A_Dskip": _A_in["Dskip"],
        "B_x": _B_in["x"],
        "B_w_gate": _B_in["w_gate"],
        "B_w_up": _B_in["w_up"],
        "B_w_down": _B_in["w_down"],
    }

def reference(A_x, A_Lambda_re, A_Lambda_im, A_B_re, A_B_im, A_C_re, A_C_im, A_log_dt, A_Dskip, B_x, B_w_gate, B_w_up, B_w_down):
    def _A_ref(x, Lambda_re, Lambda_im, B_re, B_im, C_re, C_im, log_dt, Dskip):
        Bsz, L, H = x.shape
        Lam = Lambda_re + 1j * Lambda_im
        Bmat = B_re + 1j * B_im
        Cmat = C_re + 1j * C_im
        dt = torch.exp(log_dt)
        Lam_bar = torch.exp(dt * Lam)
        B_bar = ((Lam_bar - 1.0) / Lam)[:, None] * Bmat
        Bu = torch.einsum("bld,pd->blp", x + 0j, B_bar)
        h = torch.zeros_like(Bu[:, 0, :])
        hs = []
        for t in range(L):
            h = Lam_bar[None, :] * h + Bu[:, t, :]
            hs.append(h)
        hseq = torch.stack(hs, 1)
        y = 2.0 * torch.einsum("blp,dp->bld", hseq, Cmat).real + x * Dskip[None, None, :]
        return y

    def _B_ref(x, w_gate, w_up, w_down):
        return (_gelu(x @ w_gate) * (x @ w_up)) @ w_down

    x = A_x
    xn = _layernorm(x, axis=-1)
    return x + _A_ref(xn, A_Lambda_re, A_Lambda_im, A_B_re, A_B_im, A_C_re, A_C_im, A_log_dt, A_Dskip) + _B_ref(xn, B_w_gate, B_w_up, B_w_down)
```

```python
import re

TRANS = ("v_exp_f32","v_log_f32","v_rcp_f32","v_rsq_f32","v_sqrt_f32","v_sin_f32","v_cos_f32","v_rcp_iflag_f32",
         "v_exp_f16","v_log_f16","v_rcp_f16","v_rsq_f16","v_sqrt_f16","v_sin_f16","v_cos_f16")

def _regs(tok):
    tok = tok.strip()
    neg = tok.lstrip("-")
    m = re.fullmatch(r"(?:abs\()?\|?([vas])(\d+)\|?\)?", neg)
    if m: return {(m.group(1), int(m.group(2)))}
    m = re.fullmatch(r"(?:abs\()?\|?([vas])\[(\d+):(\d+)\]\|?\)?", neg)
    if m: return {(m.group(1), i) for i in range(int(m.group(2)), int(m.group(3))+1)}
    if neg in ("vcc",): return {("s", "vcc_lo"), ("s", "vcc_hi")}
    if neg in ("vcc_lo","vcc_hi"): return {("s", neg)}
    if neg in ("exec",): return {("s","exec_lo"),("s","exec_hi")}
    if neg in ("exec_lo","exec_hi"): return {("s", neg)}
    if neg == "m0": return {("s","m0")}
    return set()

class Ins:
    def __init__(self, text):
        self.text = text
        t = text.split(";")[0].strip()
        self.label = None
        self.op = None
        if t.endswith(":"):
            self.label = t[:-1]; return
        if not t or t.startswith("."):
            self.op = ""; self.kind = "dir"; self.dst=set(); self.src=set(); return
        parts = t.split(None, 1)
        op = parts[0]
        self.op = op
        rest = parts[1] if len(parts) > 1 else ""
        ops = [o.strip() for o in rest.split(",")] if rest else []
        mods = ""
        if ops:
            last = ops[-1].split(None, 1)
            ops[-1] = last[0] if last else ""
            mods = last[1] if len(last) > 1 else ""
        m = re.search(r"\s(op_sel|op_sel_hi|neg_lo|neg_hi|quad_perm)\b", " " + rest)
        if m:
            cut = rest[:max(m.start()-1,0)] if m.start() > 0 else ""
            cut = (" " + rest)[:m.start()]
            mods2 = (" " + rest)[m.start():]
            ops = [o.strip() for o in cut.split(",")]
            last = ops[-1].split(None, 1)
            ops[-1] = last[0]
            mods = (last[1] if len(last) > 1 else "") + mods2
        self.ops = ops; self.mods = mods
        self.dst = set(); self.src = set()
        base = re.sub(r"_(e32|e64|dpp|sdwa)$", "", op)
        self.base = base
        self.dpp = ("_dpp" in op) or bool(re.search(r"\b(row_shr|row_shl|row_ror|quad_perm|row_mirror|row_half_mirror|row_bcast|wave_shr|wave_shl|wave_ror|wave_rol|row_newbcast)\b", mods))
        self.sdwa = "_sdwa" in op or "dst_sel" in mods
        R = [_regs(o) for o in ops]
        if base.startswith("v_mfma") or base.startswith("v_smfmac"):
            self.kind = "mfma"
            self.dst = R[0]; self.srcA = R[1]; self.srcB = R[2]; self.srcC = R[3]
            self.src = R[1] | R[2] | R[3]
            self.passes = 8 if "32x32" in base else 4
            if base in ("v_mfma_f32_32x32x2_f32",): self.passes = 16
            if base in ("v_mfma_f32_16x16x4_f32",): self.passes = 8
            self.sgemm = base.endswith("_f32") and base.count("f32") == 2
        elif base.startswith("v_"):
            self.kind = "valu"
            if base.startswith("v_cmpx"):
                self.dst = R[0] | _regs("exec"); self.src = set().union(*R[1:])
            elif base.startswith("v_cmp"):
                self.dst = R[0]; self.src = set().union(*R[1:])
            elif base in ("v_add_co_u32","v_sub_co_u32","v_subrev_co_u32","v_addc_co_u32","v_subb_co_u32","v_subbrev_co_u32","v_div_scale_f32","v_mad_u64_u32","v_mad_i64_i32"):
                self.dst = R[0] | R[1]; self.src = set().union(*R[2:])
            elif base.startswith("v_permlane") and "swap" in base:
                self.dst = R[0] | R[1]; self.src = R[0] | R[1]
            elif base == "v_nop":
                pass
            else:
                self.dst = R[0]; self.src = set().union(*R[1:]) if len(R) > 1 else set()
                if base.startswith("v_fmac") or base.startswith("v_mac") or base.startswith("v_dot2c") or base.startswith("v_pk_fmac") or base == "v_writelane_b32" or self.dpp or self.sdwa:
                    self.src |= R[0]
                if base == "v_div_fmas_f32": self.src |= _regs("vcc")
            self.trans = base in TRANS
            self.dot = base.startswith("v_dot")
        elif base.startswith("buffer_") or base.startswith("global_") or base.startswith("flat_") or base.startswith("scratch_"):
            self.kind = "vmem"
            self.lds = bool(re.search(r"\blds\b", mods)) or "load_lds" in base
            allm = set().union(*R) if R else set()
            if "load" in base and not self.lds:
                self.dst = R[0]; self.src = set().union(*R[1:])
            elif "atomic" in base and re.search(r"\bsc0\b", mods):
                self.dst = R[0]; self.src = allm
            else:
                self.src = allm
            if self.lds: self.src |= _regs("m0")
            self.widestore = ("store" in base) and bool(re.search(r"x3|x4", base))
            if self.widestore:
                self.data = R[0] if base.startswith("buffer_") else R[1]
        elif base.startswith("ds_"):
            self.kind = "ds"
            if "read" in base or "permute" in base or "swizzle" in base or "_rtn" in base:
                self.dst = R[0]; self.src = set().union(*R[1:])
            else:
                self.src = set().union(*R) if R else set()
            if "addtid" in base: self.src |= _regs("m0")
        elif base.startswith("s_load") or base.startswith("s_buffer_load") or base.startswith("s_memtime") or base.startswith("s_memrealtime") or base.startswith("s_atomic"):
            self.kind = "smem"
            self.dst = R[0]; self.src = set().union(*R[1:]) if len(R) > 1 else set()
        elif base.startswith("s_"):
            self.kind = "salu"
            if base.startswith("s_cmp") or base.startswith("s_cbranch") or base in ("s_branch","s_waitcnt","s_nop","s_barrier","s_endpgm","s_setprio","s_sleep","s_bitcmp0_b32","s_bitcmp1_b32","s_setreg_b32","s_setreg_imm32_b32","s_setpc_b64"):
                self.src = set().union(*R) if R else set()
            else:
                self.dst = R[0] if R else set(); self.src = set().union(*R[1:]) if len(R) > 1 else set()
                if "saveexec" in base: self.dst |= _regs("exec")
        else:
            raise ValueError("unknown instruction: " + text)

    def states(self):
        if self.label is not None or self.kind == "dir": return 0
        if self.op == "s_nop": return int(self.ops[0], 0) + 1
        return 1

def _isv(rs): return {r for r in rs if r[0] in "va"}
def _iss(rs): return {r for r in rs if r[0] == "s"}

def required(p, c):
    n = 0
    pk, ck = p.kind, c.kind
    if pk == "valu":
        vd = _isv(p.dst); sd = _iss(p.dst)
        if ck == "mfma" and vd & c.src: n = max(n, 2)
        if ck == "mfma" and (("s","exec_lo") in sd): n = max(n, 4)
        if ck == "valu":
            if p.trans and not c.trans and vd & c.src: n = max(n, 1)
            if p.trans and c.trans and vd & c.src: n = max(n, 1)
            if c.dpp and vd & c.src: n = max(n, 2)
            if c.dpp and (("s","exec_lo") in sd): n = max(n, 5)
            if sd & c.src:
                n = max(n, 2)
                if c.base in ("v_readlane_b32","v_writelane_b32"): n = max(n, 4)
                if c.base == "v_div_fmas_f32": n = max(n, 4)
            if (("s","exec_lo") in sd) and c.base in ("v_readlane_b32","v_readfirstlane_b32","v_writelane_b32"): n = max(n, 4)
            if (("s","exec_lo") in sd) and c.base.startswith("v_permlane"): n = max(n, 4)
            if c.base in ("v_readlane_b32","v_readfirstlane_b32") and vd & c.src: n = max(n, 1)
            if c.base.startswith("v_permlane") and vd & c.src: n = max(n, 2)
            if p.sdwa and vd & (c.src | c.dst): n = max(n, 1)
            if "op_sel" in p.mods and not p.base.startswith("v_pk") and vd & (c.src | c.dst): n = max(n, 1)
            if p.dot and vd & (c.src | c.dst):
                if not (c.base == p.base and vd & c.dst and not (vd & (c.src - c.dst))): n = max(n, 3)
        if p.dot and ck in ("vmem","ds","mfma") and vd & c.src: n = max(n, 3)
        if p.trans and ck in ("vmem","ds") and vd & c.src: n = max(n, 1)
        if ck == "vmem" and sd & c.src: n = max(n, 5)
        if ck == "salu" and sd & c.src: n = max(n, 1)
        if ck == "smem" and sd & c.src: n = max(n, 1)
    elif pk == "mfma":
        P = p.passes
        idx = {2:0,4:1,8:2,16:3}[P]
        d = p.dst
        if ck == "mfma":
            if d & (c.srcA | c.srcB): n = max(n, ([4,6,10,18] if p.sgemm else [5,8,12,20])[idx])
            if d & c.srcC:
                if d == c.srcC and c.passes == P and c.sgemm == p.sgemm: n = max(n, 2 if P == 2 else 0)
                else: n = max(n, ([2,4,8,16] if p.sgemm else [4,6,10,18])[idx])
            elif d & c.dst:
                n = max(n, [5,8,12,20][idx])
        elif ck in ("valu","vmem","ds"):
            if d & (c.src | c.dst): n = max(n, ([4,6,10,18] if p.sgemm else [5,8,12,20])[idx])
        if ck == "valu" and (p.srcC & c.dst) and not p.sgemm: n = max(n, [1,3,7,15][idx])
        if ck in ("vmem","ds") and (p.srcC & c.dst): n = max(n, [1,3,7,15][idx])
    elif pk == "salu":
        if ("s","m0") in p.dst and ("s","m0") in c.src and ck in ("vmem","ds"): n = max(n, 1)
        if ("s","m0") in p.dst and c.op and (c.op.startswith("s_movrel") or c.op.startswith("s_sendmsg")): n = max(n, 1)
    elif pk == "vmem":
        if getattr(p, "widestore", False) and p.data & c.dst:
            n = max(n, 2 if ck in ("valu","mfma") else 1)
    return n

MAXW = 21

def insert_hazards(lines):
    ins = [Ins(l) for l in lines]
    out = []
    labels = {}
    def run(ins):
        lab = {x.label: i for i, x in enumerate(ins) if x.label is not None}
        br = {}
        for i, x in enumerate(ins):
            if x.label is None and x.kind == "salu" and (x.op.startswith("s_cbranch") or x.op == "s_branch"):
                br.setdefault(x.ops[0], []).append(i)
        need = [0]*len(ins)
        extra = [0]*len(ins)
        for i, c in enumerate(ins):
            if c.label is not None or c.kind == "dir": continue
            if c.op in ("s_nop","s_waitcnt","s_barrier","s_endpgm"): continue
            worst = 0
            stack = [(i-1, 0)]
            seen = {}
            while stack:
                j, dist = stack.pop()
                while j >= 0 and dist < MAXW:
                    if seen.get(j, 99) <= dist: break
                    seen[j] = dist
                    p = ins[j]
                    if p.label is not None:
                        for b in br.get(p.label, []):
                            stack.append((b, dist))
                        k = j-1
                        while k >= 0 and (ins[k].label is None and ins[k].kind == "dir"): k -= 1
                        if k >= 0 and ins[k].label is None and ins[k].op in ("s_branch","s_endpgm","s_setpc_b64"): break
                        j -= 1; continue
                    if p.kind == "dir": j -= 1; continue
                    r = required(p, c)
                    if r > dist: worst = max(worst, r - dist)
                    dist += p.states() + extra[j]
                    j -= 1
            extra[i] = worst
        res = []
        cnt = 0
        for i, x in enumerate(ins):
            e = extra[i]
            while e > 0:
                k = min(e, 16)
                res.append(Ins("    s_nop %d" % (k-1))); e -= k; cnt += 1
            res.append(x)
        return res, cnt
    ins, c1 = run(ins)
    ins, c2 = run(ins)
    ins, c3 = run(ins)
    assert c3 == 0
    return [x.text for x in ins]

class Kern:
    def __init__(self, name):
        self.name = name; self.lines = []; self.uid = 0
    def __call__(self, s):
        for l in s.split("\n"):
            l = l.strip()
            if l: self.lines.append(("" if l.endswith(":") else "    ") + l)
    def label(self, base):
        self.uid += 1
        return "L_%s_%s_%d" % (self.name, base, self.uid)
    def body(self, hazards=True):
        return insert_hazards(self.lines) if hazards else self.lines

def emit_file(header_lines, kernels):
    o = list(header_lines)
    o.append('.amdgcn_target "amdgcn-amd-amdhsa--gfx950"')
    o.append(".text")
    for k, d in kernels:
        o += [".globl %s" % k.name, ".p2align 8", ".type %s,@function" % k.name, "%s:" % k.name]
        o += k.body()
    o.append('.section .rodata,"a"')
    for k, d in kernels:
        o += [".p2align 6", ".amdhsa_kernel %s" % k.name,
              "  .amdhsa_next_free_vgpr %d" % d["vgpr"], "  .amdhsa_next_free_sgpr %d" % d.get("sgpr", 102),
              "  .amdhsa_accum_offset %d" % d["accum"], "  .amdhsa_group_segment_fixed_size 0",
              "  .amdhsa_kernarg_size 128", "  .amdhsa_user_sgpr_count 2", "  .amdhsa_user_sgpr_kernarg_segment_ptr 1",
              "  .amdhsa_system_sgpr_workgroup_id_x 1"]
        if d.get("denorm32") is not None:
            o.append("  .amdhsa_float_denorm_mode_32 %d" % d["denorm32"])
        o.append(".end_amdhsa_kernel")
    return "\n".join(o) + "\n"
```

```python
import sys, struct, math
from asmgen import *

A2_OFF = 0
B2_OFF = 0xC00000
CAR_OFF = 0x1000000
ST_OFF = 0x1100000
STAMP_OFF = 0x1200000
SL = 53248
SPARE = 3*SL
STAT_M, STAT_RS, STAT_S = SPARE, SPARE+512, SPARE+1024
SX_FFN = SPARE + 1536
SX_SSM = SPARE + 2560
SEG = 2048
TRB = 8192
TRP = 144
STAMPS = "--stamps" in sys.argv

def f32(x): return "0x%08x" % struct.unpack("<I", struct.pack("<f", x))[0]
def vr(a, n=1): return "v%d" % a if n == 1 else "v[%d:%d]" % (a, a+n-1)
def sr(a, n=1): return "s%d" % a if n == 1 else "s[%d:%d]" % (a, a+n-1)
DPP = " row_ror:8 row_mask:0xf bank_mask:0xf"

class Alloc:
    def __init__(self, start): self.n = start
    def __call__(self, n=1, align=1):
        self.n = (self.n + align - 1)//align*align
        r = self.n; self.n += n; return r

def interleave(k, mf, fill, lead=0):
    for f in fill[:lead]: k(f)
    fill = fill[lead:]
    n = len(mf); done = 0
    for i, m in enumerate(mf):
        k(m)
        tgt = (len(fill)*(i+1) + n - 1)//n
        while done < min(tgt, len(fill)):
            k(fill[done]); done += 1

def srd(k, d, base, nrec, off=None):
    if off is None:
        k("s_mov_b32 s%d, s%d\ns_mov_b32 s%d, s%d" % (d, base, d+1, base+1))
    else:
        k("s_add_u32 s%d, s%d, %s\ns_addc_u32 s%d, s%d, 0" % (d, base, off, d+1, base+1))
    k("s_mov_b32 s%d, %s\ns_mov_b32 s%d, 0x20000" % (d+2, nrec, d+3))

def stamp(k, idx):
    if STAMPS: k("s_memrealtime s[%d:%d]" % (84+2*idx, 85+2*idx))
def stamp_out(k, kern, n, wsreg, vt):
    if not STAMPS: return
    k("s_waitcnt lgkmcnt(0)")
    for i in range(n): k("v_mov_b32 v%d, s%d" % (vt+i, 84+2*i))
    k("v_lshrrev_b32 v%d, 6, v0" % (vt+8))
    k("s_lshl_b32 s83, s2, 3")
    k("v_add_u32 v%d, s83, v%d" % (vt+8, vt+8))
    k("v_lshlrev_b32 v%d, 5, v%d" % (vt+8, vt+8))
    k("v_add_u32 v%d, 0x%x, v%d" % (vt+8, STAMP_OFF + kern*0x20000, vt+8))
    k("s_mov_b64 exec, 1")
    k("global_store_dwordx4 v%d, v[%d:%d], s[%d:%d]" % (vt+8, vt, vt+3, wsreg, wsreg+1))
    k("global_store_dwordx4 v%d, v[%d:%d], s[%d:%d] offset:16" % (vt+8, vt+4, vt+7, wsreg, wsreg+1))

pX, pLre, pLim, pBre, pBim, pCre, pCim, pLdt, pD, pBx, pG, pU, pDn, pOut, pDbg, pWs = [16+2*i for i in range(16)]

def gen_k1():
    k = Kern("k1_kernel")
    sW, sMH, sNQ, sI, sJJ, sTY = 3, 4, 5, 6, 7, 8
    sT0, sT1, sT2, sT3 = 9, 10, 11, 12
    sMASK = 13
    SX, SW0, SW1, SA2, SP0, SP1 = 48, 52, 56, 60, 64, 68
    sKx, sKw, sDst, sDelta, sIt, sRd = 72, 73, 74, 75, 76, 77
    sWl = 78
    sXl = 79
    sKS = 80
    sOffP, sOffQ = 81, 82
    k("s_cmp_ge_u32 s2, 256\ns_cbranch_scc1 L_k1_end")
    stamp(k, 0)
    k("s_load_dwordx16 s[16:31], s[0:1], 0\ns_load_dwordx16 s[32:47], s[0:1], 64")
    va = Alloc(1)
    vL = va(); vM = va(); vG = va(); vII = va(); vSL = va()
    vT = [va() for _ in range(6)]
    vXo = va(); vWo = va()
    aX = [va(), va()]; aS = [va(), va()]; aW = [va(), va(), va(), va()]
    vONE = va(4, 4)
    st_acc = [va() for _ in range(4)]
    st_t = [va() for _ in range(4)]
    FS = [va(40, 4), va(40, 4)]
    ACC = va(80, 4)
    SACC = va(12, 4)
    CONST = va(0)
    k("v_lshrrev_b32 v%d, 6, v0" % vT[0])
    k("v_and_b32 v%d, 63, v0" % vL)
    k("v_readfirstlane_b32 s%d, v%d" % (sW, vT[0]))
    k("v_and_b32 v%d, 15, v0\nv_lshrrev_b32 v%d, 4, v%d" % (vM, vG, vL))
    k("v_lshrrev_b32 v%d, 3, v%d\nv_and_b32 v%d, 7, v0" % (vII, vL, vSL))
    k("s_lshr_b32 s%d, s%d, 2" % (sMH, sW))
    k("s_lshl_b32 s%d, s%d, 1\ns_add_u32 s%d, s%d, s%d\ns_and_b32 s%d, s%d, 3" % (sT0, sMH, sNQ, sW, sT0, sNQ, sNQ))
    k("s_and_b32 s%d, s2, 7\ns_lshr_b32 s%d, s2, 3" % (sT0, sT1))
    k("s_lshr_b32 s%d, s%d, 2\ns_lshl_b32 s%d, s%d, 3\ns_and_b32 s%d, s%d, 7\ns_add_u32 s%d, s%d, s%d" % (sI, sT0, sI, sI, sT2, sT1, sI, sI, sT2))
    k("s_and_b32 s%d, s%d, 3\ns_lshl_b32 s%d, s%d, 2\ns_lshr_b32 s%d, s%d, 3\ns_add_u32 s%d, s%d, s%d" % (sJJ, sT0, sJJ, sJJ, sT2, sT1, sJJ, sJJ, sT2))
    k("s_and_b32 s%d, s%d, 1\ns_lshr_b32 s%d, s%d, 1" % (sTY, sJJ, sJJ, sJJ))
    k("s_mov_b32 s%d, 0xffff0000" % sMASK)
    k("s_and_b32 s%d, s%d, 1" % (sT0, sW))
    k("s_lshr_b32 s%d, s%d, 1\ns_and_b32 s%d, s%d, 3" % (sT1, sW, sT1, sT1))
    k("s_lshl_b32 s%d, s%d, 7\ns_lshl_b32 s%d, s%d, 5\ns_add_u32 s%d, s%d, s%d" % (sT2, sI, sT3, sT0, sT2, sT2, sT3))
    k("s_lshl_b32 s%d, s%d, 2\ns_add_u32 s%d, s%d, s%d" % (sT3, sT1, sT2, sT2, sT3))
    k("v_lshrrev_b32 v%d, 2, v%d\nv_lshlrev_b32 v%d, 4, v%d\nv_and_b32 v%d, 3, v%d" % (vT[0], vII, vT[0], vT[0], vT[1], vII))
    k("v_add3_u32 v%d, v%d, v%d, s%d" % (vT[0], vT[0], vT[1], sT2))
    k("v_mul_u32_u24 v%d, 1280, v%d" % (vT[0], vT[0]))
    k("s_lshl_b32 s%d, s%d, 2" % (sT3, sT0))
    k("v_lshrrev_b32 v%d, 1, v%d\nv_or_b32 v%d, s%d, v%d\nv_xor_b32 v%d, v%d, v%d" % (vT[1], vII, vT[1], sT3, vT[1], vT[1], vT[1], vSL))
    k("v_lshl_add_u32 v%d, v%d, 4, v%d" % (vXo, vT[1], vT[0]))
    k("s_lshl_b32 s%d, s%d, 10" % (sXl, sW))
    k("v_lshrrev_b32 v%d, 1, v%d\nv_xor_b32 v%d, v%d, v%d\nv_lshlrev_b32 v%d, 4, v%d" % (vT[0], vM, vT[0], vT[0], vG, vT[0], vT[0]))
    k("v_lshl_add_u32 v%d, v%d, 7, v%d" % (vT[5], vM, vT[0]))
    k("s_lshl_b32 s%d, s%d, 13" % (sT0, sMH))
    k("v_add_u32 v%d, s%d, v%d\nv_xor_b32 v%d, 64, v%d" % (aX[0], sT0, vT[5], aX[1], aX[0]))
    k("s_lshl_b32 s%d, s%d, 11" % (sT1, sNQ))
    k("v_add_u32 v%d, s%d, v%d\nv_xor_b32 v%d, 64, v%d" % (aS[0], sT1, aX[0], aS[1], aS[0]))
    for r in range(4): k("v_mov_b32 v%d, 0x3f803f80" % (vONE+r))
    for r in st_acc: k("v_mov_b32 v%d, 0" % r)
    for r in range(0, 40, 2): k("v_mov_b64 v[%d:%d], 0" % (FS[1]+r, FS[1]+r+1))
    for r in range(0, 92, 2): k("v_mov_b64 v[%d:%d], 0" % (ACC+r, ACC+r+1))
    k("s_mov_b32 s%d, 0\ns_mov_b32 s%d, 0\ns_mov_b32 s%d, 0\ns_mov_b32 s%d, 0\ns_mov_b32 s%d, 0" % (sKx, sKw, sDst, sIt, sRd))
    k("s_waitcnt lgkmcnt(0)")
    srd(k, SX, pX, 2048*1280)
    srd(k, SA2, pWs, 0x1000000)
    k("s_cmp_lt_u32 s%d, 2\ns_cselect_b32 s%d, s%d, 0\ns_cmp_eq_u32 s%d, 1\ns_cbranch_scc1 L_k1_ssm" % (sNQ, sT0, sTY, sT0))

    def dma_x():
        return ["s_add_u32 m0, s%d, s%d\nbuffer_load_dwordx4 v%d, s[%d:%d], s%d offen lds" % (sDst, sXl, vXo, SX, SX+3, sKx),
                "s_add_u32 s%d, s%d, 81920\ns_add_u32 m0, m0, 8192\nbuffer_load_dwordx4 v%d, s[%d:%d], s%d offen lds" % (sT0, sKx, vXo, SX, SX+3, sT0)]
    def dma_ffn():
        return dma_x() + [
            "s_add_u32 m0, s%d, s%d\nbuffer_load_dwordx4 v%d, s[%d:%d], s%d offen lds" % (sDst, sWl, vWo, SW0, SW0+3, sKw),
            "s_add_u32 m0, m0, 8192\nbuffer_load_dwordx4 v%d, s[%d:%d], s%d offen lds" % (vWo, SW1, SW1+3, sKw),
            "s_add_u32 s%d, s%d, 98304\ns_add_u32 m0, m0, 4096\nbuffer_load_dwordx4 v%d, s[%d:%d], s%d offen lds" % (sT1, sKw, vWo, SW1, SW1+3, sT1),
            "s_sub_u32 m0, m0, 8192\nbuffer_load_dwordx4 v%d, s[%d:%d], s%d offen lds" % (vWo, SW0, SW0+3, sT1)]
    def dma_ssm():
        o = dma_x()
        o.append("s_add_u32 m0, s%d, s%d\nbuffer_load_dwordx4 v%d, s[%d:%d], s%d offen lds" % (sDst, sWl, vWo, SW0, SW0+3, sKx))
        for q in range(1, 5):
            o.append("s_add_u32 s%d, s%d, %d\ns_add_u32 m0, m0, 2048\nbuffer_load_dwordx4 v%d, s[%d:%d], s%d offen lds" % (sT1, sKx, q*10240, vWo, SW0, SW0+3, sT1))
        return o
    def dma_adv():
        return ["s_add_u32 s%d, s%d, 128\ns_add_u32 s%d, s%d, 196608\ns_add_u32 s%d, s%d, %d\ns_cmp_eq_u32 s%d, %d\ns_cselect_b32 s%d, 0, s%d" %
                (sKx, sKx, sKw, sKw, sDst, sDst, SL, sDst, 3*SL, sDst, sDst)]
    def stats_ops(base):
        o = []
        for d in range(4):
            t0, t1 = st_t[(d&1)*2], st_t[(d&1)*2+1]
            o += ["v_lshlrev_b32 v%d, 16, v%d" % (t0, base+d), "v_and_b32 v%d, s%d, v%d" % (t1, sMASK, base+d),
                  "v_add_f32 v%d, v%d, v%d" % (st_acc[0], st_acc[0], t0), "v_add_f32 v%d, v%d, v%d" % (st_acc[1], st_acc[1], t1),
                  "v_fmac_f32 v%d, v%d, v%d" % (st_acc[2], t0, t0), "v_fmac_f32 v%d, v%d, v%d" % (st_acc[3], t1, t1)]
        return o

    def main_loop(tag, ssm):
        ndma = 7 if ssm else 6
        def reads(h):
            F = FS[h]; o = []
            if ssm:
                for b in range(2): o.append("ds_read_b128 %s, v%d offset:%d" % (vr(F+4*b, 4), aX[h], b*2048))
                for q in range(5):
                    o.append("ds_read_b128 %s, v%d offset:%d" % (vr(F+16+4*q, 4), aW[(0 if q < 3 else 2)+h], q*2048))
                for b in range(2, 4): o.append("ds_read_b128 %s, v%d offset:%d" % (vr(F+4*b, 4), aX[h], b*2048))
            else:
                for b in range(2): o.append("ds_read_b128 %s, v%d offset:%d" % (vr(F+4*b, 4), aX[h], b*2048))
                for cb in range(2):
                    for gu in range(2):
                        for jx in range(2):
                            o.append("ds_read_b64_tr_b16 %s, v%d offset:%d" % (vr(F+16+(cb*2+gu)*4+jx*2, 2), aW[cb], h*4096+jx*512+gu*8192))
                for b in range(2, 4): o.append("ds_read_b128 %s, v%d offset:%d" % (vr(F+4*b, 4), aX[h], b*2048))
            o.append("ds_read_b128 %s, v%d" % (vr(F+36, 4), aS[h]))
            return o
        def mfmas(h):
            F = FS[h]; o = []
            if ssm:
                for b in range(4):
                    for q in range(5):
                        c = ACC + (q*4+b)*4
                        o.append("v_mfma_f32_16x16x32_bf16 %s, %s, %s, %s" % (vr(c,4), vr(F+4*b,4), vr(F+16+4*q,4), vr(c,4)))
                    if b < 3:
                        c = SACC + b*4
                        o.append("v_mfma_f32_16x16x32_bf16 %s, %s, %s, %s" % (vr(c,4), vr(vONE,4), vr(F+16+4*b,4), vr(c,4)))
            else:
                for b in range(4):
                    for w4 in range(4):
                        c = ACC + (w4*4+b)*4
                        o.append("v_mfma_f32_16x16x32_bf16 %s, %s, %s, %s" % (vr(c,4), vr(F+16+4*w4,4), vr(F+4*b,4), vr(c,4)))
                    if b < 2:
                        c = SACC + b*4
                        o.append("v_mfma_f32_16x16x32_bf16 %s, %s, %s, %s" % (vr(c,4), vr(F+16+4*b,4), vr(vONE,4), vr(c,4)))
            return o
        dma = dma_ssm if ssm else dma_ffn
        L = "L_k1_loop_" + tag
        k("%s:" % L)
        k("s_waitcnt vmcnt(%d)" % ndma)
        k("s_barrier")
        k("s_cmp_lt_u32 s%d, 8\ns_cselect_b32 s%d, s%d, 0\ns_cselect_b32 s%d, s%d, 0" % (sIt, SX+2, SX+2, SW0+2, SW0+2))
        if not ssm: k("s_cselect_b32 s%d, s%d, 0" % (SW1+2, SW1+2))
        rd0 = reads(0)
        st1 = stats_ops(FS[1]+36)
        d = dma() + dma_adv()
        mix = []
        per = (len(st1) + len(d) - 1)//len(d)
        for i, x in enumerate(d):
            mix.append(x); mix += st1[i*per:(i+1)*per]
        interleave(k, mfmas(1), rd0 + mix, lead=4)
        k("s_waitcnt lgkmcnt(0)")
        rd1 = reads(1)
        adv = ["s_mov_b32 s%d, %d\ns_add_u32 s%d, s%d, 1\ns_cmp_eq_u32 s%d, 3\ns_cselect_b32 s%d, 0, s%d\ns_cselect_b32 s%d, %d, s%d" % (sDelta, SL, sRd, sRd, sRd, sRd, sRd, sDelta, (-2*SL) & 0xffffffff, sDelta)]
        regs = aX + aS + (aW if ssm else aW[:2])
        adv += ["v_add_u32 v%d, s%d, v%d" % (r, sDelta, r) for r in regs]
        interleave(k, mfmas(0), rd1 + stats_ops(FS[0]+36) + adv, lead=0)
        k("s_add_u32 s%d, s%d, 1\ns_cmp_lt_u32 s%d, 10" % (sIt, sIt, sIt))
        k("s_waitcnt lgkmcnt(0)")
        k("s_cbranch_scc1 %s" % L)
        interleave(k, mfmas(1), stats_ops(FS[1]+36))

    def bf16r(d, s):
        k("v_cvt_pk_bf16_f32 v%d, v%d, v%d\nv_lshlrev_b32 v%d, 16, v%d" % (d, s, s, d, d))

    def stats_finish():
        a, q = st_acc[0], st_acc[2]
        k("v_add_f32 v%d, v%d, v%d\nv_add_f32 v%d, v%d, v%d" % (a, a, st_acc[1], q, q, st_acc[3]))
        for sw in ("v_permlane16_swap_b32", "v_permlane32_swap_b32"):
            k("v_mov_b32 v%d, v%d\nv_mov_b32 v%d, v%d" % (st_acc[1], a, st_acc[3], q))
            k("%s v%d, v%d\n%s v%d, v%d" % (sw, a, st_acc[1], sw, q, st_acc[3]))
            k("v_add_f32 v%d, v%d, v%d\nv_add_f32 v%d, v%d, v%d" % (a, a, st_acc[1], q, q, st_acc[3]))
        k("v_mul_f32 v%d, %s, v%d" % (a, f32(1/640.), a))
        k("v_mul_f32 v%d, %s, v%d" % (q, f32(1/640.), q))
        k("v_fma_f32 v%d, -v%d, v%d, v%d" % (q, a, a, q))
        k("v_max_f32 v%d, 0, v%d" % (q, q))
        m, rs, s = st_t[0], st_t[1], st_t[2]
        bf16r(m, a)
        bf16r(q, q)
        k("v_add_f32 v%d, %s, v%d" % (q, f32(1e-5), q))
        bf16r(q, q)
        k("v_sqrt_f32 v%d, v%d" % (q, q))
        bf16r(s, q)
        k("v_rcp_f32 v%d, v%d" % (rs, s))
        k("s_lshl_b32 s%d, s%d, 2\ns_add_u32 s%d, s%d, s%d\ns_lshl_b32 s%d, s%d, 6\ns_add_u32 s%d, s%d, %d" % (sT0, sMH, sT0, sT0, sNQ, sT0, sT0, sT0, sT0, STAT_M))
        k("v_lshl_add_u32 v%d, v%d, 2, s%d" % (vT[0], vM, sT0))
        k("ds_write_b32 v%d, v%d\nds_write_b32 v%d, v%d offset:512\nds_write_b32 v%d, v%d offset:1024" % (vT[0], m, vT[0], rs, vT[0], s))
        return m, rs

    sE, sUN, sCOL = sT0, sT1, sT2
    srd(k, SW0, pG, 640*3072)
    srd(k, SW1, pU, 640*3072)
    k("s_and_b32 s%d, s%d, 1\ns_lshl_b32 s%d, s%d, 1\ns_add_u32 s%d, s%d, s%d" % (sT3, sNQ, sE, sMH, sE, sE, sT3))
    k("s_lshr_b32 s%d, s%d, 1\ns_cmp_eq_u32 s%d, 0\ns_cselect_b32 s%d, s%d, 0" % (sUN, sNQ, sTY, sUN, sUN))
    k("s_lshl_b32 s14, s%d, 7\ns_lshl_b32 s15, s%d, 6\ns_add_u32 s14, s14, s15" % (sJJ, sUN))
    k("s_lshl_b32 s15, s%d, 6\ns_add_u32 s15, s15, 1024" % sJJ)
    k("s_cmp_eq_u32 s%d, 0\ns_cselect_b32 s%d, s14, s15" % (sTY, sCOL))
    k("s_lshr_b32 s14, s%d, 5\ns_add_u32 s14, s14, s%d" % (sCOL, sT3))
    k("s_lshl_b32 s15, s%d, 1\ns_add_u32 s15, s15, s%d\ns_mul_i32 s15, s15, 88\ns_add_u32 s14, s14, s15\ns_lshl_b32 s%d, s14, 12" % (sI, sMH, sKS))
    k("s_lshl_b32 s14, s%d, 3" % sE)
    k("v_add_u32 v%d, s14, v%d\nv_mul_u32_u24 v%d, 3072, v%d" % (vT[0], vII, vT[0], vT[0]))
    k("s_lshl_b32 s14, s%d, 1" % sT3)
    k("v_bfe_u32 v%d, v%d, 1, 1\nv_or_b32 v%d, s14, v%d" % (vT[1], vII, vT[1], vT[1]))
    k("v_lshlrev_b32 v%d, 1, v%d\nv_xor_b32 v%d, v%d, v%d" % (vT[1], vT[1], vT[1], vT[1], vSL))
    k("v_lshl_add_u32 v%d, v%d, 4, v%d" % (vT[0], vT[1], vT[0]))
    k("s_lshl_b32 s14, s%d, 1" % sCOL)
    k("v_add_u32 v%d, s14, v%d" % (vWo, vT[0]))
    k("s_lshl_b32 s14, s%d, 14\ns_lshl_b32 s15, s%d, 10\ns_add_u32 s%d, s14, s15\ns_add_u32 s%d, s%d, 16384" % (sUN, sE, sWl, sWl, sWl))
    k("v_lshrrev_b32 v%d, 2, v%d\nv_lshl_add_u32 v%d, v%d, 3, v%d\nv_lshlrev_b32 v%d, 7, v%d" % (vT[0], vM, vT[0], vG, vT[0], vT[0], vT[0]))
    k("v_and_b32 v%d, 1, v%d\nv_lshlrev_b32 v%d, 1, v%d\nv_lshrrev_b32 v%d, 3, v%d\nv_or_b32 v%d, v%d, v%d" % (vT[1], vG, vT[1], vT[1], vT[2], vM, vT[1], vT[1], vT[2]))
    k("s_lshl_b32 s15, s%d, 1\ns_add_u32 s15, s15, s%d" % (sT3, sMH))
    k("v_xor_b32 v%d, s15, v%d\nv_lshl_add_u32 v%d, v%d, 5, v%d" % (vT[1], vT[1], vT[0], vT[1], vT[0]))
    k("v_and_b32 v%d, 3, v%d\nv_lshl_add_u32 v%d, v%d, 3, v%d" % (vT[1], vM, vT[0], vT[1], vT[0]))
    k("s_add_u32 s14, s14, 16384")
    k("v_add_u32 v%d, s14, v%d\nv_xor_b32 v%d, 32, v%d" % (aW[0], vT[0], aW[1], aW[0]))
    sTask, sQ, sR = 14, 15, 83
    k("s_lshl_b32 s%d, s%d, 3\ns_add_u32 s%d, s%d, s%d\ns_lshl_b32 s%d, s%d, 2" % (sTask, sI, sTask, sTask, sJJ, sTask, sTask))
    k("s_cmp_eq_u32 s%d, 1\ns_cbranch_scc1 L_k1_packC" % sTY)
    k("s_add_u32 s%d, s%d, s%d" % (sTask, sTask, sW))
    k("s_cmp_ge_u32 s%d, 4\ns_cbranch_scc1 L_k1_nopack" % sW)
    k("s_cmp_ge_u32 s%d, 480\ns_cbranch_scc1 L_k1_nopack" % sTask)
    k("s_mul_i32 s%d, s%d, 6554\ns_lshr_b32 s%d, s%d, 16\ns_mul_i32 s%d, s%d, 10\ns_sub_u32 s%d, s%d, s%d" % (sQ, sTask, sQ, sQ, sR, sQ, sR, sTask, sR))
    srd(k, SP0, pDn, 1536*1280)
    k("v_mul_u32_u24 v%d, 1280, v%d\nv_lshl_add_u32 v%d, v%d, 4, v%d" % (vT[0], vII, vT[0], vSL, vT[0]))
    k("s_mul_i32 s%d, s%d, 40960\ns_lshl_b32 s%d, s%d, 7\ns_add_u32 s%d, s%d, s%d" % (sT1, sQ, sT2, sR, sT1, sT1, sT2))
    k("s_mul_i32 s%d, s%d, %d\ns_add_u32 s%d, s%d, 49152\ns_cmp_eq_u32 s%d, 3\ns_cselect_b32 s%d, %d, s%d" % (sT2, sW, SL, sT2, sT2, sW, sT2, SPARE, sT2))
    k("s_mov_b32 m0, s%d" % sT2)
    for a in range(4):
        k("buffer_load_dwordx4 v%d, s[%d:%d], s%d offen lds" % (vT[0], SP0, SP0+3, sT1))
        if a < 3: k("s_add_u32 s%d, s%d, 10240\ns_add_u32 m0, m0, 1024" % (sT1, sT1))
    k("s_mov_b32 s%d, s%d" % (sT3, sT2))
    for s in range(2):
        for x in dma_ffn() + dma_adv(): k(x)
    k("v_lshrrev_b32 v%d, 2, v%d\nv_lshl_add_u32 v%d, v%d, 2, v%d\nv_lshlrev_b32 v%d, 7, v%d" % (vT[0], vM, vT[0], vG, vT[0], vT[0], vT[0]))
    k("v_and_b32 v%d, 3, v%d\nv_lshl_add_u32 v%d, v%d, 3, v%d\nv_add_u32 v%d, s%d, v%d" % (vT[1], vM, vT[0], vT[1], vT[0], vT[0], sT3, vT[0]))
    k("v_lshlrev_b32 v%d, 4, v%d" % (vT[1], vL))
    k("s_waitcnt vmcnt(12)")
    P = FS[0]
    for c4 in range(4):
        k("ds_read_b64_tr_b16 %s, v%d offset:%d" % (vr(P+c4*4, 2), vT[0], c4*32))
        k("ds_read_b64_tr_b16 %s, v%d offset:%d" % (vr(P+c4*4+2, 2), vT[0], c4*32+2048))
    for c4 in range(4):
        k("s_lshl_b32 s%d, s%d, 2\ns_add_u32 s%d, s%d, %d\ns_mul_i32 s%d, s%d, 52\ns_lshr_b32 s%d, s%d, 8" % (sT0, sR, sT0, sT0, c4, sT1, sT0, sT1, sT1))
        k("s_mul_i32 s%d, s%d, 435\ns_add_u32 s%d, s%d, s%d\ns_mul_i32 s%d, s%d, 5\ns_add_u32 s%d, s%d, s%d" % (sT1, sT1, sT1, sT1, sT0, sT0, sQ, sT1, sT1, sT0))
        k("s_lshl_b32 s%d, s%d, 10\ns_add_u32 s%d, s%d, %d" % (sT1, sT1, sT1, sT1, B2_OFF))
        k("s_waitcnt lgkmcnt(%d)" % (6-2*c4))
        k("buffer_store_dwordx4 %s, v%d, s[%d:%d], s%d offen" % (vr(P+c4*4, 4), vT[1], SA2, SA2+3, sT1))
    k("s_branch L_k1_loop_ffn")
    k("L_k1_packC:")
    k("s_add_u32 s%d, s%d, s%d" % (sTask, sTask, sE))
    k("s_cmp_ge_u32 s%d, 400\ns_cbranch_scc1 L_k1_nopack" % sTask)
    k("s_mul_i32 s%d, s%d, 6554\ns_lshr_b32 s%d, s%d, 16\ns_mul_i32 s%d, s%d, 10\ns_sub_u32 s%d, s%d, s%d" % (sQ, sTask, sQ, sQ, sR, sQ, sR, sTask, sR))
    srd(k, SP0, pCre, 640*1280)
    srd(k, SP1, pCim, 640*1280)
    k("v_mul_u32_u24 v%d, 1280, v%d\nv_lshl_add_u32 v%d, v%d, 4, v%d" % (vT[0], vM, vT[0], vG, vT[0]))
    k("s_mul_i32 s%d, s%d, 20480\ns_lshl_b32 s%d, s%d, 7\ns_add_u32 s%d, s%d, s%d" % (sT1, sQ, sT2, sR, sT1, sT1, sT2))
    for part in range(2):
        for hh in range(2):
            S = SP0 if part == 0 else SP1
            k("buffer_load_dwordx4 %s, v%d, s[%d:%d], s%d offen offset:%d" % (vr(P+(part*2+hh)*4, 4), vT[0], S, S+3, sT1, hh*64))
    for s in range(2):
        for x in dma_ffn() + dma_adv(): k(x)
    k("v_lshrrev_b32 v%d, 1, v%d\nv_mul_u32_u24 v%d, 5120, v%d" % (vT[1], vG, vT[1], vT[1]))
    k("v_and_b32 v%d, 1, v%d\nv_lshl_add_u32 v%d, v%d, 5, v%d\nv_lshl_add_u32 v%d, v%d, 4, v%d" % (vT[2], vG, vT[2], vT[2], vM, vT[1], vT[2], vT[1]))
    k("s_mul_i32 s%d, s%d, 52\ns_lshr_b32 s%d, s%d, 8\ns_mul_i32 s%d, s%d, 435\ns_add_u32 s%d, s%d, s%d" % (sT1, sQ, sT1, sT1, sT1, sT1, sT1, sT1, sQ))
    k("s_mul_i32 s%d, s%d, 20\ns_add_u32 s%d, s%d, s%d\ns_add_u32 s%d, s%d, 240\ns_lshl_b32 s%d, s%d, 10\ns_add_u32 s%d, s%d, %d" % (sT0, sR, sT1, sT1, sT0, sT1, sT1, sT1, sT1, sT1, sT1, B2_OFF))
    k("s_add_u32 s%d, s%d, 10240" % (sT0, sT1))
    k("s_waitcnt vmcnt(12)")
    for r in range(8, 16): k("v_xor_b32 v%d, 0x80008000, v%d" % (P+r, P+r))
    for part in range(2):
        for hh in range(2):
            k("buffer_store_dwordx4 %s, v%d, s[%d:%d], s%d offen offset:%d" % (vr(P+(part*2+hh)*4, 4), vT[1], SA2, SA2+3, sT0 if hh else sT1, part*256))
    k("s_branch L_k1_loop_ffn")
    k("L_k1_nopack:")
    for s in range(2):
        for x in dma_ffn() + dma_adv(): k(x)
    main_loop("ffn", False)
    stamp(k, 1)
    m, rs = stats_finish()
    k("s_or_b32 s%d, s%d, s%d\ns_cmp_lg_u32 s%d, 0\ns_cbranch_scc1 L_k1_nost" % (sT0, sTY, sJJ, sT0))
    k("s_lshl_b32 s%d, s%d, 7\ns_lshl_b32 s%d, s%d, 6\ns_add_u32 s%d, s%d, s%d\ns_lshl_b32 s%d, s%d, 2\ns_add_u32 s%d, s%d, s%d" % (sT0, sI, sT1, sMH, sT0, sT0, sT1, sT1, sNQ, sT0, sT0, sT1))
    k("v_lshrrev_b32 v%d, 2, v%d\nv_lshlrev_b32 v%d, 4, v%d\nv_and_b32 v%d, 3, v%d\nv_add3_u32 v%d, v%d, v%d, s%d" % (vT[1], vM, vT[1], vT[1], vT[2], vM, vT[1], vT[1], vT[2], sT0))
    k("v_lshlrev_b32 v%d, 3, v%d\nv_add_u32 v%d, 0x%x, v%d" % (vT[1], vT[1], vT[1], ST_OFF, vT[1]))
    assert rs == m+1 and m % 2 == 0
    k("global_store_dwordx2 v%d, v[%d:%d], s[%d:%d]" % (vT[1], m, m+1, pWs, pWs+1))
    k("L_k1_nost:")
    k("s_lshl_b32 s%d, s%d, 8\ns_add_u32 s%d, s%d, %d\ns_lshl_b32 s%d, s%d, 7\ns_add_u32 s%d, s%d, s%d" % (sT0, sNQ, sT0, sT0, SX_FFN, sT1, sMH, sT1, sT1, sT0))
    k("v_lshl_add_u32 v%d, v%d, 4, s%d" % (vT[1], vG, sT1))
    k("ds_write_b128 v%d, %s\nds_write_b128 v%d, %s offset:64" % (vT[1], vr(SACC, 4), vT[1], vr(SACC+4, 4)))
    k("v_xor_b32 v%d, 128, v%d" % (vT[1], vT[1]))
    k("s_lshl_b32 s%d, s%d, 8\ns_add_u32 s%d, s%d, %d" % (sT0, sMH, sT0, sT0, STAT_M))
    k("v_lshl_add_u32 v%d, v%d, 2, s%d" % (vT[2], vM, sT0))
    k("s_waitcnt vmcnt(0) lgkmcnt(0)\ns_barrier")
    E = FS[0]
    So = E
    Mb, RSb, Sb = E+8, E+12, E+16
    k("ds_read_b128 %s, v%d\nds_read_b128 %s, v%d offset:64" % (vr(So, 4), vT[1], vr(So+4, 4), vT[1]))
    for b in range(4):
        k("ds_read_b32 v%d, v%d offset:%d\nds_read_b32 v%d, v%d offset:%d\nds_read_b32 v%d, v%d offset:%d" % (Mb+b, vT[2], b*64, RSb+b, vT[2], 512+b*64, Sb+b, vT[2], 1024+b*64))
    k("v_lshlrev_b32 v%d, 4, v%d" % (vT[3], vL))
    c0 = -2*math.sqrt(2/math.pi)*math.log2(math.e)
    k("s_mov_b32 s%d, %s" % (sT0, f32(c0*0.044715)))
    k("v_mov_b32 v%d, %s" % (vT[4], f32(c0)))
    k("s_cmp_eq_u32 s%d, 1\ns_cselect_b64 s[14:15], -1, 0" % sMH)
    k("s_waitcnt lgkmcnt(0)")
    T = E+20
    O = FS[1]
    for b in range(4):
        if b == 1:
            k("s_barrier")
        for cb in range(2):
            Sg = SACC if cb == 0 else So
            Su = SACC+4 if cb == 0 else So+4
            G = ACC + ((cb*2+0)*4+b)*4; U = ACC + ((cb*2+1)*4+b)*4
            R4 = range(4)
            for r in R4: k("v_fma_f32 v%d, -v%d, v%d, v%d" % (G+r, Mb+b, Sg+r, G+r))
            for r in R4: k("v_mul_f32 v%d, v%d, v%d" % (G+r, RSb+b, G+r))
            for r in R4: k("v_mul_f32 v%d, v%d, v%d" % (T+r, G+r, G+r))
            for r in R4: k("v_fma_f32 v%d, v%d, s%d, v%d" % (T+r, T+r, sT0, vT[4]))
            for r in R4: k("v_mul_f32 v%d, v%d, v%d" % (T+r, T+r, G+r))
            for r in R4: k("v_exp_f32 v%d, v%d" % (T+r, T+r))
            for r in R4: k("v_fma_f32 v%d, -v%d, v%d, v%d" % (U+r, Mb+b, Su+r, U+r))
            for r in R4: k("v_fma_f32 v%d, v%d, v%d, v%d" % (T+r, T+r, Sb+b, Sb+b))
            for r in R4: k("v_rcp_f32 v%d, v%d" % (T+r, T+r))
            for r in R4: k("v_mul_f32 v%d, v%d, v%d" % (G+r, G+r, U+r))
            for r in R4: k("v_mul_f32 v%d, v%d, v%d" % (G+r, G+r, T+r))
            k("v_cvt_pk_bf16_f32 v%d, v%d, v%d\nv_cvt_pk_bf16_f32 v%d, v%d, v%d" % (T+4+cb*2, G, G+1, T+5+cb*2, G+2, G+3))
        Ob = O + b*4
        for r in range(2):
            k("v_cndmask_b32 v%d, v%d, v%d, s[14:15]" % (Ob+r, T+4+r, T+6+r))
            k("v_cndmask_b32 v%d, v%d, v%d, s[14:15]" % (Ob+2+r, T+6+r, T+4+r))
        k("buffer_store_dwordx4 %s, v%d, s[%d:%d], s%d offen offset:%d" % (vr(Ob, 4), vT[3], SA2, SA2+3, sKS, b*1024))
    stamp(k, 2)
    stamp_out(k, 0, 8, pWs, FS[0])
    k("s_endpgm")

    k("L_k1_ssm:")
    ca = Alloc(CONST)
    cLr = ca(5); cMu = ca(5); cKr = ca(5); cKk = ca(5); c16r = ca(5); c16k = ca(5)
    cA2 = ca(5); cBt = ca(5)
    assert ca.n <= 256, ca.n
    k("s_cmp_eq_u32 s%d, 0\ns_cselect_b32 s%d, s%d, s%d\ns_cselect_b32 s%d, s%d, s%d" % (sNQ, SW0, pBre, pBim, SW0+1, pBre+1, pBim+1))
    k("s_mov_b32 s%d, %d\ns_mov_b32 s%d, 0x20000" % (SW0+2, 640*1280, SW0+3))
    k("s_lshl_b32 s%d, s%d, 1\ns_mul_i32 s%d, s%d, -3" % (sOffP, sMH, sOffQ, sMH))
    k("s_mul_i32 s%d, s%d, 80\ns_mul_i32 s%d, s%d, 40\ns_add_u32 s%d, s%d, s%d" % (sT0, sJJ, sT1, sNQ, sT1, sT1, sT0))
    k("s_lshl_b32 s%d, s%d, 3\ns_add_u32 s%d, s%d, s%d\ns_lshl_b32 s%d, s%d, 3\ns_add_u32 s%d, s%d, s%d" % (sT2, sOffP, sT2, sT2, sT1, sT3, sOffQ, sT3, sT3, sT1))
    k("v_add_u32 v%d, s%d, v%d\nv_lshlrev_b32 v%d, 1, v%d\nv_add_u32 v%d, s%d, v%d\nv_lshlrev_b32 v%d, 1, v%d" % (vT[0], sT2, vSL, vT[0], vT[0], vT[1], sT3, vSL, vT[1], vT[1]))
    k("v_add_u32 v%d, 48, v%d" % (vT[1], vT[1]))
    P = FS[0]
    for q in range(5):
        va_, off = (vT[0], q*16) if q < 3 else (vT[1], (q-3)*16)
        for n, p in enumerate((pLre, pLim, pLdt)):
            k("global_load_ushort v%d, v%d, s[%d:%d] offset:%d" % (P+n*5+q, va_, p, p+1, off))
    k("s_mul_i32 s%d, s%d, 40\ns_add_u32 s%d, s%d, s%d" % (sT1, sMH, sT1, sT1, sT0))
    k("v_add_u32 v%d, s%d, v%d\nv_mul_u32_u24 v%d, 1280, v%d" % (vT[2], sT1, vII, vT[2], vT[2]))
    k("s_lshl_b32 s%d, s%d, 2" % (sT1, sNQ))
    k("v_lshrrev_b32 v%d, 1, v%d\nv_or_b32 v%d, s%d, v%d\nv_xor_b32 v%d, v%d, v%d" % (vT[3], vII, vT[3], sT1, vT[3], vT[3], vT[3], vSL))
    k("v_lshl_add_u32 v%d, v%d, 4, v%d" % (vWo, vT[3], vT[2]))
    k("s_mul_i32 s%d, s%d, 10240\ns_lshl_b32 s%d, s%d, 10\ns_add_u32 s%d, s%d, s%d\ns_add_u32 s%d, s%d, 32768" % (sWl, sMH, sT1, sNQ, sWl, sWl, sT1, sWl, sWl))
    for s in range(2):
        for x in dma_ssm() + dma_adv(): k(x)
    k("s_mul_i32 s%d, s%d, 5\ns_add_u32 s%d, s%d, s%d\ns_add_u32 s%d, s%d, s%d" % (sT0, sNQ, sOffP, sOffP, sT0, sOffQ, sOffQ, sT0))
    k("s_lshl_b32 s%d, s%d, 11\ns_add_u32 s%d, s%d, 32768\ns_lshl_b32 s%d, s%d, 11\ns_add_u32 s%d, s%d, 32768" % (sT0, sOffP, sT0, sT0, sT1, sOffQ, sT1, sT1))
    k("v_add_u32 v%d, s%d, v%d\nv_xor_b32 v%d, 64, v%d\nv_add_u32 v%d, s%d, v%d\nv_xor_b32 v%d, 64, v%d" % (aW[0], sT0, vT[5], aW[1], aW[0], aW[2], sT1, vT[5], aW[3], aW[2]))
    k("v_lshrrev_b32 v%d, 3, v%d\nv_xor_b32 v%d, 1, v%d\nv_lshlrev_b32 v%d, 31, v%d" % (vT[4], vM, vT[4], vT[4], vT[4], vT[4]))
    k("s_waitcnt vmcnt(14)")
    LOG2E = math.log2(math.e)
    def cpow(dr, dk, q, nreg_or_imm, t0, t1):
        n = nreg_or_imm
        k("v_mul_f32 v%d, %s, v%d\nv_mul_f32 v%d, %s, v%d" % (t0, n, cA2+q, t1, n, cBt+q))
        k("v_exp_f32 v%d, v%d\nv_rndne_f32 v%d, v%d\nv_sub_f32 v%d, v%d, v%d" % (t0, t0, dr, t1, t1, t1, dr))
        k("v_cos_f32 v%d, v%d\nv_sin_f32 v%d, v%d" % (dr, t1, dk, t1))
        k("v_mul_f32 v%d, v%d, v%d\nv_mul_f32 v%d, v%d, v%d" % (dr, dr, t0, dk, dk, t0))
    for q in range(5):
        lre, lim, ldt = P+q, P+5+q, P+10+q
        t0, t1, t2 = P+16, P+17, P+18
        k("v_lshlrev_b32 v%d, 16, v%d\nv_lshlrev_b32 v%d, 16, v%d\nv_lshlrev_b32 v%d, 16, v%d" % (lre, lre, lim, lim, ldt, ldt))
        k("v_xor_b32 v%d, v%d, v%d" % (lim, lim, vT[4]))
        k("v_mul_f32 v%d, %s, v%d\nv_exp_f32 v%d, v%d" % (ldt, f32(LOG2E), ldt, ldt, ldt))
        bf16r(ldt, ldt)
        k("v_mul_f32 v%d, v%d, v%d\nv_mul_f32 v%d, v%d, v%d" % (cA2+q, ldt, lre, cBt+q, ldt, lim))
        k("v_mul_f32 v%d, %s, v%d\nv_mul_f32 v%d, %s, v%d" % (cA2+q, f32(LOG2E), cA2+q, cBt+q, f32(1/(2*math.pi)), cBt+q))
        cpow(cLr+q, cMu+q, q, "1.0", t0, t1)
        cpow(c16r+q, c16k+q, q, f32(16.0), t0, t1)
        k("v_add_f32 v%d, -1.0, v%d" % (t0, cLr+q))
        k("v_mul_f32 v%d, v%d, v%d\nv_fmac_f32 v%d, v%d, v%d" % (t1, lre, lre, t1, lim, lim))
        k("v_rcp_f32 v%d, v%d" % (t1, t1))
        k("v_mul_f32 v%d, v%d, v%d\nv_fmac_f32 v%d, v%d, v%d" % (cKr+q, t0, lre, cKr+q, cMu+q, lim))
        k("v_mul_f32 v%d, v%d, v%d\nv_fma_f32 v%d, -v%d, v%d, v%d" % (cKk+q, cMu+q, lre, cKk+q, t0, lim, cKk+q))
        k("v_add_f32 v%d, v%d, v%d" % (t1, t1, t1))
        k("v_mul_f32 v%d, v%d, v%d\nv_mul_f32 v%d, v%d, v%d" % (cKr+q, cKr+q, t1, cKk+q, cKk+q, t1))
    main_loop("ssm", True)
    stamp(k, 1)
    k("s_setprio 2")
    stats_finish()
    k("s_lshl_b32 s%d, s%d, 6\ns_add_u32 s%d, s%d, %d\ns_lshl_b32 s%d, s%d, 6\ns_add_u32 s%d, s%d, %d" % (sT0, sOffP, sT0, sT0, SX_SSM, sT1, sOffQ, sT1, sT1, SX_SSM))
    k("v_lshl_add_u32 v%d, v%d, 2, s%d\nv_lshl_add_u32 v%d, v%d, 2, s%d" % (vT[1], vM, sT0, vT[2], vM, sT1))
    for q in range(3): k("ds_write_b32 v%d, v%d offset:%d" % (vT[1], SACC+4*q, q*64))
    k("s_lshl_b32 s%d, s%d, 8\ns_add_u32 s%d, s%d, %d" % (sT0, sMH, sT0, sT0, STAT_M))
    k("v_lshl_add_u32 v%d, v%d, 4, s%d" % (vT[3], vG, sT0))
    k("s_waitcnt vmcnt(0) lgkmcnt(0)\ns_barrier")
    E = FS[0]
    assert FS[1] == FS[0] + 40
    M4, RS4 = E, E+16
    Sq = [SACC, SACC+4, SACC+8, SACC+1, SACC+2]
    for q in (3, 4): k("ds_read_b32 v%d, v%d offset:%d" % (Sq[q], vT[2], q*64))
    for b in range(4):
        k("ds_read_b128 %s, v%d offset:%d\nds_read_b128 %s, v%d offset:%d" % (vr(M4+4*b, 4), vT[3], b*64, vr(RS4+4*b, 4), vT[3], 512+b*64))
    k("s_lshl_b32 s%d, s%d, 9\ns_lshl_b32 s%d, s%d, 9\ns_add_u32 s%d, s%d, %d\ns_add_u32 s%d, s%d, %d" % (sT0, sOffP, sT1, sOffQ, sT0, sT0, SEG, sT1, sT1, SEG))
    k("v_lshl_add_u32 v%d, v%d, 5, s%d\nv_lshl_add_u32 v%d, v%d, 5, s%d" % (vT[1], vM, sT0, vT[2], vM, sT1))
    k("s_lshl_b32 s%d, s%d, 2" % (sT0, sMH))
    k("v_add_u32 v%d, s%d, v%d" % (vT[0], sT0, vG))
    k("v_lshl_add_u32 v%d, v%d, 2, v%d\nv_lshl_add_u32 v%d, v%d, 2, v%d" % (vT[3], vT[0], vT[1], vT[4], vT[0], vT[2]))
    Z = [[ACC + (q*4 + (t >> 2))*4 + (t & 3) for t in range(16)] for q in range(5)]
    H = [[E+32+q, E+37+q] for q in range(5)]
    k("s_waitcnt lgkmcnt(0)")
    for t in range(16):
        for q in range(5): k("v_fma_f32 v%d, -v%d, v%d, v%d" % (Z[q][t], M4+t, Sq[q], Z[q][t]))
        for q in range(5): k("v_mul_f32 v%d, v%d, v%d" % (Z[q][t], RS4+t, Z[q][t]))
        if t >= 1:
            prev = [Z[q][0] if t == 1 else H[q][t & 1] for q in range(5)]
            cur = [H[q][(t+1) & 1] for q in range(5)]
            for q in range(5): k("v_fma_f32 v%d, v%d, v%d, v%d" % (cur[q], cLr+q, prev[q], Z[q][t]))
            for q in range(5): k("v_fmac_f32_dpp v%d, v%d, v%d%s" % (cur[q], prev[q], cMu+q, DPP))
    end = [H[q][0] for q in range(5)]
    for q in range(5): k("ds_write_b32 v%d, v%d offset:%d" % (vT[3] if q < 3 else vT[4], end[q], q*512))
    MK = lambda s: "s[%d:%d]" % (16+2*s, 17+2*s)
    for s in range(1, 8): k("v_cmp_eq_u32 %s, %d, v%d" % (MK(s), s, vT[0]))
    k("s_waitcnt lgkmcnt(0)\ns_barrier")
    EN = E
    for q in range(5):
        a_ = vT[1] if q < 3 else vT[2]
        k("ds_read_b128 %s, v%d offset:%d\nds_read_b128 %s, v%d offset:%d" % (vr(EN+8*q, 4), a_, q*512, vr(EN+8*q+4, 4), a_, q*512+16))
    MINE = E+40; TOT = E+48
    for q in range(5): k("v_mov_b32 v%d, 0" % (MINE+q))
    k("s_waitcnt lgkmcnt(0)")
    for s in range(1, 8):
        for q in range(5): k("v_cndmask_b32 v%d, v%d, v%d, %s" % (MINE+q, MINE+q, EN+8*q+s-1, MK(s)))
        for q in range(5): k("v_fmac_f32 v%d, v%d, v%d" % (EN+8*q+s, c16r+q, EN+8*q+s-1))
        for q in range(5): k("v_fmac_f32_dpp v%d, v%d, v%d%s" % (EN+8*q+s, EN+8*q+s-1, c16k+q, DPP))
    SC = SP0
    k("s_lshl_b32 s%d, s%d, 1\ns_add_u32 s%d, s%d, s%d" % (sT2, sJJ, sT2, sT2, sNQ))
    k("s_lshl_b32 s%d, s%d, 13\ns_add_u32 s%d, s%d, 0x%x" % (sT0, sT2, sT0, sT0, CAR_OFF))
    srd(k, SC, pWs, 8192, "s%d" % sT0)
    k("s_cmp_lg_u32 s%d, 0\ns_cbranch_scc1 L_k1_nopub" % sMH)
    for q in range(5): k("v_mov_b32 v%d, v%d" % (TOT+q, EN+8*q+7))
    k("s_lshl_b32 s%d, s%d, 9" % (sT0, sI))
    k("v_lshlrev_b32 v%d, 5, v%d" % (vT[1], vM))
    k("s_mov_b64 exec, 0xffff")
    k("buffer_store_dwordx4 %s, v%d, s[%d:%d], s%d offen sc0 sc1" % (vr(TOT, 4), vT[1], SC, SC+3, sT0))
    k("buffer_store_dword v%d, v%d, s[%d:%d], s%d offen offset:16 sc0 sc1" % (TOT+4, vT[1], SC, SC+3, sT0))
    k("s_lshl_b32 s%d, s%d, 4\ns_add_u32 s%d, s%d, s%d" % (sT0, sT2, sT0, sT0, sI))
    k("v_mov_b32 v%d, s%d\nv_mov_b32 v%d, 1" % (vT[1], sT0, vT[2]))
    k("s_mov_b64 exec, 1")
    k("s_waitcnt vmcnt(0)")
    k("global_store_byte v%d, v%d, s[%d:%d] sc0 sc1" % (vT[1], vT[2], pDbg, pDbg+1))
    k("s_mov_b64 exec, -1")
    k("L_k1_nopub:")
    stamp(k, 2)
    free = [E+i for i in range(5)]
    for t in range(16):
        nf = []
        for q in range(5): k("v_mul_f32 v%d, v%d, v%d" % (free[q], cKr+q, Z[q][t]))
        for q in range(5): k("v_fmac_f32_dpp v%d, v%d, v%d%s" % (free[q], Z[q][t], cKk+q, DPP))
        for q in range(5):
            nf.append(Z[q][t]); Z[q][t] = free[q]
        free = nf
    PW = E+8
    t0, t1 = E+60, E+61
    k("v_cvt_f32_u32 v%d, v%d\nv_mul_f32 v%d, %s, v%d" % (E+62, vG, E+62, f32(128.0), E+62))
    k("v_cvt_f32_u32 v%d, v%d\nv_mul_f32 v%d, %s, v%d" % (E+63, vT[0], E+63, f32(16.0), E+63))
    for q in range(5):
        cpow(PW+q, PW+5+q, q, f32(512.0), t0, t1)
        cpow(PW+10+q, PW+15+q, q, "v%d" % (E+62), t0, t1)
        cpow(PW+20+q, PW+25+q, q, "v%d" % (E+63), t0, t1)
    for d in range(4):
        k("s_sub_i32 s%d, s%d, %d\ns_max_i32 s%d, s%d, 0\ns_min_i32 s%d, s%d, 4\ns_lshl_b32 s%d, s%d, 3" % (sT0, sI, 4*d, sT0, sT0, sT0, sT0, sT0, sT0))
        k("s_lshl_b64 s[14:15], 1, s%d\ns_sub_u32 s14, s14, 1\ns_and_b32 s%d, s14, 0x01010101" % (sT0, 72+d))
    k("s_lshl_b32 s%d, s%d, 4" % (sT0, sT2))
    k("v_mov_b32 v%d, s%d" % (vT[1], sT0))
    FL = E+64
    k("s_mov_b32 s%d, 0" % sIt)
    k("L_k1_poll:")
    k("global_load_dwordx4 %s, v%d, s[%d:%d] sc0 sc1" % (vr(FL, 4), vT[1], pDbg, pDbg+1))
    k("s_add_u32 s%d, s%d, 1" % (sIt, sIt))
    k("s_waitcnt vmcnt(0)")
    for d in range(4): k("v_readfirstlane_b32 s%d, v%d" % (9+d, FL+d))
    for d in range(4): k("s_andn2_b32 s%d, s%d, s%d" % (9+d, 72+d, 9+d))
    k("s_or_b32 s9, s9, s10\ns_or_b32 s11, s11, s12\ns_or_b32 s9, s9, s11")
    k("s_cbranch_scc0 L_k1_polled")
    k("s_cmp_lt_u32 s%d, 0x40000\ns_cbranch_scc0 L_k1_polled" % sIt)
    k("s_sleep 1\ns_branch L_k1_poll")
    k("L_k1_polled:")
    stamp(k, 3)
    k("s_sub_u32 s%d, s%d, 1" % (sT0, sI))
    k("v_sub_u32 v%d, s%d, v%d\nv_lshlrev_b32 v%d, 9, v%d\nv_lshl_add_u32 v%d, v%d, 5, v%d" % (vT[1], sT0, vG, vT[1], vT[1], vT[1], vM, vT[1]))
    k("s_lshl_b32 s%d, s%d, 3\ns_mul_i32 s%d, s%d, -12\ns_add_u32 s%d, s%d, 12" % (sT0, sMH, sT1, sMH, sT1, sT1))
    PR = E+40+8
    PR = E+48
    for u in range(4):
        k("v_subrev_u32 v%d, %d, v%d" % (vT[2], u*2048, vT[1]))
        k("v_add_u32 v%d, s%d, v%d\nv_add_u32 v%d, s%d, v%d" % (vT[3], sT0, vT[2], vT[4], sT1, vT[2]))
        k("buffer_load_dwordx3 %s, v%d, s[%d:%d], 0 offen sc0 sc1" % (vr(PR+6*u, 3), vT[3], SC, SC+3))
        k("buffer_load_dwordx2 %s, v%d, s[%d:%d], 0 offen sc0 sc1" % (vr(PR+6*u+4, 2), vT[4], SC, SC+3))
    pr = lambda u, q: PR+6*u+(q if q < 3 else q+1)
    k("s_waitcnt vmcnt(0)")
    for u in (2, 1, 0):
        for q in range(5): k("v_fmac_f32 v%d, v%d, v%d" % (pr(u, q), PW+q, pr(u+1, q)))
        for q in range(5): k("v_fmac_f32_dpp v%d, v%d, v%d%s" % (pr(u, q), pr(u+1, q), PW+5+q, DPP))
    for q in range(5): k("v_mul_f32 v%d, v%d, v%d" % (pr(1, q), PW+10+q, pr(0, q)))
    for q in range(5): k("v_fmac_f32_dpp v%d, v%d, v%d%s" % (pr(1, q), pr(0, q), PW+15+q, DPP))
    for sw in ("v_permlane16_swap_b32", "v_permlane32_swap_b32"):
        for q in range(5): k("v_mov_b32 v%d, v%d" % (pr(2, q), pr(1, q)))
        for q in range(5): k("%s v%d, v%d" % (sw, pr(1, q), pr(2, q)))
        for q in range(5): k("v_add_f32 v%d, v%d, v%d" % (pr(1, q), pr(1, q), pr(2, q)))
    for q in range(5): k("v_fmac_f32 v%d, v%d, v%d" % (MINE+q, PW+20+q, pr(1, q)))
    for q in range(5): k("v_fmac_f32_dpp v%d, v%d, v%d%s" % (MINE+q, pr(1, q), PW+25+q, DPP))
    for q in range(5): k("v_mul_f32 v%d, v%d, v%d" % (pr(0, q), cKr+q, MINE+q))
    for q in range(5): k("v_fmac_f32_dpp v%d, v%d, v%d%s" % (pr(0, q), MINE+q, cKk+q, DPP))
    PK = E+8
    for t in range(16):
        prev = [pr(0, q) if t == 0 else Z[q][t-1] for q in range(5)]
        for q in range(5): k("v_fmac_f32 v%d, v%d, v%d" % (Z[q][t], cLr+q, prev[q]))
        for q in range(5): k("v_fmac_f32_dpp v%d, v%d, v%d%s" % (Z[q][t], prev[q], cMu+q, DPP))
        if t & 1:
            for q in range(5): k("v_cvt_pk_bf16_f32 v%d, v%d, v%d" % (PK+8*q+(t >> 1), Z[q][t-1], Z[q][t]))
    k("s_lshl_b32 s%d, s%d, 1\ns_add_u32 s%d, s%d, s%d\ns_mul_i32 s%d, s%d, %d\ns_add_u32 s%d, s%d, %d" % (sT0, sMH, sT0, sT0, sNQ, sT0, sT0, 80*TRP, sT0, sT0, TRB))
    k("v_mul_u32_u24 v%d, %d, v%d\nv_lshl_add_u32 v%d, v%d, 5, v%d\nv_add_u32 v%d, s%d, v%d" % (vT[1], TRP, vM, vT[1], vG, vT[1], vT[1], sT0, vT[1]))
    for q in range(5):
        k("ds_write_b128 v%d, %s offset:%d\nds_write_b128 v%d, %s offset:%d" % (vT[1], vr(PK+8*q, 4), q*16*TRP, vT[1], vr(PK+8*q+4, 4), q*16*TRP+16))
    k("v_and_b32 v%d, 1, v%d\nv_lshrrev_b32 v%d, 2, v%d\nv_lshl_add_u32 v%d, v%d, 3, v%d\nv_mul_u32_u24 v%d, %d, v%d" % (vT[2], vG, vT[3], vM, vT[2], vT[2], vT[3], vT[2], TRP, vT[2]))
    k("v_and_b32 v%d, 3, v%d\nv_lshl_add_u32 v%d, v%d, 5, v%d" % (vT[3], vM, vT[2], vT[3], vT[2]))
    k("v_lshrrev_b32 v%d, 1, v%d\nv_lshl_add_u32 v%d, v%d, 3, v%d\nv_add_u32 v%d, s%d, v%d" % (vT[3], vG, vT[2], vT[3], vT[2], vT[2], sT0, vT[2]))
    k("v_and_b32 v%d, 31, v%d\nv_lshlrev_b32 v%d, 4, v%d\nv_lshl_add_u32 v%d, v%d, 10, v%d" % (vT[4], vL, vT[4], vT[4], vT[4], vT[3], vT[4]))
    k("s_lshl_b32 s%d, s%d, 1\ns_add_u32 s%d, s%d, s%d\ns_mul_i32 s%d, s%d, 88\ns_add_u32 s%d, s%d, 48\ns_lshl_b32 s%d, s%d, 12" % (sKS, sI, sKS, sKS, sMH, sKS, sKS, sKS, sKS, sKS, sKS))
    k("s_mul_i32 s%d, s%d, 10\ns_add_u32 s%d, s%d, s%d\ns_add_u32 s%d, s%d, s%d" % (sT0, sJJ, sOffP, sOffP, sT0, sOffQ, sOffQ, sT0))
    k("s_waitcnt lgkmcnt(0)")
    OUT = ACC
    for q in range(5):
        for bp in range(2):
            o = OUT + (q*2+bp)*4
            k("ds_read_b64_tr_b16 %s, v%d offset:%d\nds_read_b64_tr_b16 %s, v%d offset:%d" % (vr(o, 2), vT[2], q*16*TRP+bp*16, vr(o+2, 2), vT[2], q*16*TRP+bp*16+4*TRP))
        if q == 2: k("s_waitcnt lgkmcnt(4)")
    for q in range(5):
        k("s_add_u32 s%d, s%d, %d\ns_lshr_b32 s%d, s%d, 1\ns_lshl_b32 s%d, s%d, 12\ns_and_b32 s%d, s%d, 1\ns_lshl_b32 s%d, s%d, 9" % (sT0, sOffP if q < 3 else sOffQ, q, sT1, sT0, sT1, sT1, sT0, sT0, sT0, sT0))
        k("s_add_u32 s%d, s%d, s%d\ns_add_u32 s%d, s%d, s%d" % (sT0, sT0, sT1, sT0, sT0, sKS))
        k("s_waitcnt lgkmcnt(%d)" % min(15, 16-4*q))
        for bp in range(2):
            o = OUT + (q*2+bp)*4
            k("buffer_store_dwordx4 %s, v%d, s[%d:%d], s%d offen offset:%d" % (vr(o, 4), vT[4], SA2, SA2+3, sT0, bp*2048))
    stamp(k, 4)
    stamp_out(k, 0, 8, pWs, FS[0])
    k("L_k1_end:")
    k("s_endpgm")
    return k

def gen_k2():
    k = Kern("k2_kernel")
    DEPTH = 6; NS = 22
    sW, sMI, sNI = 3, 4, 5
    SA, SB, SXr, SO = 48, 52, 56, 60
    k("s_cmp_ge_u32 s2, 256\ns_cbranch_scc1 L_k2_end")
    stamp(k, 0)
    k("s_load_dwordx16 s[16:31], s[0:1], 0\ns_load_dwordx16 s[32:47], s[0:1], 64")
    k("s_and_b32 s6, s2, 7\ns_lshr_b32 s7, s2, 3")
    k("s_lshr_b32 s%d, s6, 1\ns_lshl_b32 s%d, s%d, 3\ns_and_b32 s8, s7, 7\ns_add_u32 s%d, s%d, s8" % (sMI, sMI, sMI, sMI, sMI))
    k("s_and_b32 s%d, s6, 1\ns_lshl_b32 s%d, s%d, 2\ns_lshr_b32 s8, s7, 3\ns_add_u32 s%d, s%d, s8" % (sNI, sNI, sNI, sNI, sNI))
    k("v_lshrrev_b32 v2, 6, v0\nv_and_b32 v1, 63, v0")
    k("v_readfirstlane_b32 s%d, v2" % sW)
    k("v_lshlrev_b32 v2, 4, v1\nv_add_u32 v3, 4096, v2")
    k("s_mul_i32 s6, s%d, %d\ns_mul_i32 s7, s%d, %d\ns_add_u32 s6, s6, s7" % (sMI, 88*4096, sW, 22*4096))
    k("s_mul_i32 s8, s%d, %d\ns_mul_i32 s7, s%d, %d\ns_add_u32 s8, s8, s7\ns_add_u32 s8, s8, %d" % (sNI, 88*5120, sW, 22*5120, B2_OFF))
    k("s_waitcnt lgkmcnt(0)")
    srd(k, SA, pWs, 22*4096, "s6")
    srd(k, SB, pWs, 22*5120, "s8")
    VB = 48
    def reg(buf, f):
        idx = buf*36 + f*4
        if VB + idx + 4 <= 256: return "v[%d:%d]" % (VB+idx, VB+idx+3)
        idx = idx - (256-VB) + 80
        return "a[%d:%d]" % (idx, idx+3)
    def loads(step):
        b = step % DEPTH
        o = ["s_mov_b32 s9, %d\ns_mov_b32 s10, %d" % (step*4096, step*5120)]
        for f in range(4): o.append("buffer_load_dwordx4 %s, v2, s[%d:%d], s9 offen offset:%d" % (reg(b, f), SA, SA+3, f*1024))
        for f in range(4): o.append("buffer_load_dwordx4 %s, v2, s[%d:%d], s10 offen offset:%d" % (reg(b, 4+f), SB, SB+3, f*1024))
        o.append("buffer_load_dwordx4 %s, v3, s[%d:%d], s10 offen" % (reg(b, 8), SB, SB+3))
        return o
    for s in range(2):
        for x in loads(s): k(x)
    k("v_and_b32 v4, 15, v1\nv_lshrrev_b32 v5, 4, v1")
    k("v_lshrrev_b32 v6, 2, v4\nv_lshlrev_b32 v6, 4, v6\nv_and_b32 v7, 3, v4")
    k("s_lshl_b32 s6, s%d, 6\ns_lshl_b32 s7, s%d, 2\ns_add_u32 s6, s6, s7" % (sMI, sW))
    k("v_add3_u32 v6, v6, v7, s6")
    k("s_mul_i32 s7, s%d, 80" % sNI)
    k("v_lshl_add_u32 v7, v5, 2, s7")
    k("v_mul_u32_u24 v8, 640, v6\nv_add_u32 v8, v8, v7")
    k("v_lshlrev_b32 v9, 1, v8\nv_lshlrev_b32 v8, 2, v8\nv_lshlrev_b32 v7, 1, v7")
    k("v_lshlrev_b32 v6, 3, v6\nv_add_u32 v6, 0x%x, v6" % ST_OFF)
    XR, DR, ST = 10, 20, 30
    for cb in range(5):
        k("global_load_dwordx2 v[%d:%d], v9, s[%d:%d] offset:%d" % (XR+2*cb, XR+2*cb+1, pX, pX+1, cb*32))
        k("global_load_dwordx2 v[%d:%d], v7, s[%d:%d] offset:%d" % (DR+2*cb, DR+2*cb+1, pD, pD+1, cb*32))
    k("global_load_dwordx2 v[%d:%d], v6, s[%d:%d]" % (ST, ST+1, pWs, pWs+1))
    NX = 11
    for s in range(2, DEPTH-1):
        for x in loads(s): k(x)
    srd(k, SO, pOut, 2048*640*4)
    k("s_mov_b32 s13, 0xffff0000")
    ABASE = 130
    base_ops = []
    for cb in range(5):
        o = []
        X4, D4, T4 = 32, 36, 40
        for h in range(2):
            o += ["v_lshlrev_b32 v%d, 16, v%d" % (X4+2*h, XR+2*cb+h), "v_and_b32 v%d, s13, v%d" % (X4+2*h+1, XR+2*cb+h),
                  "v_lshlrev_b32 v%d, 16, v%d" % (D4+2*h, DR+2*cb+h), "v_and_b32 v%d, s13, v%d" % (D4+2*h+1, DR+2*cb+h)]
        def rnd():
            r = []
            for h in range(2): r.append("v_cvt_pk_bf16_f32 v%d, v%d, v%d" % (T4+4+h, T4+2*h, T4+2*h+1))
            for h in range(2): r += ["v_lshlrev_b32 v%d, 16, v%d" % (T4+2*h, T4+4+h), "v_and_b32 v%d, s13, v%d" % (T4+2*h+1, T4+4+h)]
            return r
        for r in range(4): o.append("v_sub_f32 v%d, v%d, v%d" % (T4+r, X4+r, ST))
        o += rnd()
        for r in range(4): o.append("v_mul_f32 v%d, v%d, v%d" % (T4+r, T4+r, ST+1))
        o += rnd()
        for r in range(4): o.append("v_mul_f32 v%d, v%d, v%d" % (T4+r, T4+r, D4+r))
        o += rnd()
        for r in range(4): o.append("v_add_f32 v%d, v%d, v%d" % (T4+r, T4+r, X4+r))
        for r in range(4): o.append("v_accvgpr_write_b32 a%d, v%d" % (ABASE+cb*4+r, T4+r))
        base_ops.append(o)
    D1 = DEPTH-1
    for s in range(NS):
        nxt = s + D1
        ld = loads(nxt) if nxt < NS else []
        later = min(nxt-1, NS-1) - s
        n = later*9 + (NX if s < 2 else 0)
        if s == 1: n = later*9 + NX
        if s == 0: n = later*9 + NX
        k("s_waitcnt vmcnt(%d)" % min(n, 63))
        b = s % DEPTH
        mf = []
        for i in range(4):
            for j in range(5):
                c = (i*5+j)*4
                mf.append("v_mfma_f32_16x16x32_bf16 a[%d:%d], %s, %s, %s" % (c, c+3, reg(b, 4+j), reg(b, i), ("a[%d:%d]" % (c, c+3)) if s else "0"))
        fill = list(ld)
        if 3 <= s < 8: fill += base_ops[s-3]
        interleave(k, mf, fill, lead=len(ld))
    stamp(k, 1)
    k("s_mul_i32 s6, s%d, 20480" % sW)
    k("v_add_u32 v4, s6, v2")
    for t in range(20):
        k("ds_write_b128 v4, a[%d:%d] offset:%d" % (t*4, t*4+3, t*1024))
    k("s_mul_i32 s6, s%d, 5120" % sW)
    k("v_add_u32 v4, s6, v2\nv_add_u32 v5, 40960, v4")
    k("s_waitcnt lgkmcnt(0)\ns_barrier")
    R = VB
    for cb in range(5):
        for p in range(4):
            k("ds_read_b128 v[%d:%d], v%d offset:%d" % (R+(cb*4+p)*4, R+(cb*4+p)*4+3, 4 if p < 2 else 5, (p & 1)*20480+cb*1024))
        if cb == 2: k("s_waitcnt lgkmcnt(4)")
    for cb in range(5):
        for r in range(4): k("v_accvgpr_read_b32 v%d, a%d" % (32+r, ABASE+cb*4+r))
        k("s_waitcnt lgkmcnt(%d)" % min(15, 16-4*cb))
        q = R+cb*16
        for r in range(4): k("v_add_f32 v%d, v%d, v%d" % (q+r, q+r, q+4+r))
        for r in range(4): k("v_add_f32 v%d, v%d, v%d" % (q+8+r, q+8+r, q+12+r))
        for r in range(4): k("v_add_f32 v%d, v%d, v%d" % (q+r, q+r, 32+r))
        for r in range(4): k("v_add_f32 v%d, v%d, v%d" % (q+r, q+r, q+8+r))
        k("buffer_store_dwordx4 v[%d:%d], v8, s[%d:%d], 0 offen offset:%d" % (q, q+3, SO, SO+3, cb*64))
    stamp(k, 2)
    stamp_out(k, 1, 8, pWs, 32)
    k("L_k2_end:")
    k("s_endpgm")
    return k

if __name__ == "__main__":
    ref = open("parallel_sum__ssm_conv_s5__geglu_ffn__prompt.s.ref").read().split("\n")
    hdr = [l for l in ref if l.startswith(";") and "@launch" not in l and "Override" not in l and "grid=ceil" not in l]
    hdr += ["; @launch kernel=k1_kernel grid=(256,1,1) block=(512,1,1) lds=163840",
            "; @launch kernel=k2_kernel grid=(256,1,1) block=(256,1,1) lds=81920"]
    out = [a for a in sys.argv[1:] if not a.startswith("--")][0]
    open(out, "w").write(emit_file(hdr, [(gen_k1(), dict(vgpr=256, accum=256)), (gen_k2(), dict(vgpr=512, accum=256))]))
```

```python
import sys, struct, math
from asmgen import *

A2_OFF = 0
B2_OFF = 0xC00000
CAR_OFF = 0x1000000
ST_OFF = 0x1100000
STAMP_OFF = 0x1200000
SL = 53248
SPARE = 3*SL
STAT_M, STAT_RS, STAT_S = SPARE, SPARE+512, SPARE+1024
SX_FFN = SPARE + 1536
SX_SSM = SPARE + 2560
SEG = 2048
TRB = 8192
TRP = 144
STAMPS = "--stamps" in sys.argv

def f32(x): return "0x%08x" % struct.unpack("<I", struct.pack("<f", x))[0]
def vr(a, n=1): return "v%d" % a if n == 1 else "v[%d:%d]" % (a, a+n-1)
def sr(a, n=1): return "s%d" % a if n == 1 else "s[%d:%d]" % (a, a+n-1)
DPP = " row_ror:8 row_mask:0xf bank_mask:0xf"

class Alloc:
    def __init__(self, start): self.n = start
    def __call__(self, n=1, align=1):
        self.n = (self.n + align - 1)//align*align
        r = self.n; self.n += n; return r

def interleave(k, mf, fill, lead=0):
    for f in fill[:lead]: k(f)
    fill = fill[lead:]
    n = len(mf); done = 0
    for i, m in enumerate(mf):
        k(m)
        tgt = (len(fill)*(i+1) + n - 1)//n
        while done < min(tgt, len(fill)):
            k(fill[done]); done += 1

def srd(k, d, base, nrec, off=None):
    if off is None:
        k("s_mov_b32 s%d, s%d\ns_mov_b32 s%d, s%d" % (d, base, d+1, base+1))
    else:
        k("s_add_u32 s%d, s%d, %s\ns_addc_u32 s%d, s%d, 0" % (d, base, off, d+1, base+1))
    k("s_mov_b32 s%d, %s\ns_mov_b32 s%d, 0x20000" % (d+2, nrec, d+3))

def stamp(k, idx):
    if STAMPS: k("s_memrealtime s[%d:%d]" % (84+2*idx, 85+2*idx))
def stamp_out(k, kern, n, wsreg, vt):
    if not STAMPS: return
    k("s_waitcnt lgkmcnt(0)")
    for i in range(n): k("v_mov_b32 v%d, s%d" % (vt+i, 84+2*i))
    k("v_lshrrev_b32 v%d, 6, v0" % (vt+8))
    k("s_lshl_b32 s83, s2, 3")
    k("v_add_u32 v%d, s83, v%d" % (vt+8, vt+8))
    k("v_lshlrev_b32 v%d, 5, v%d" % (vt+8, vt+8))
    k("v_add_u32 v%d, 0x%x, v%d" % (vt+8, STAMP_OFF + kern*0x20000, vt+8))
    k("s_mov_b64 exec, 1")
    k("global_store_dwordx4 v%d, v[%d:%d], s[%d:%d]" % (vt+8, vt, vt+3, wsreg, wsreg+1))
    k("global_store_dwordx4 v%d, v[%d:%d], s[%d:%d] offset:16" % (vt+8, vt+4, vt+7, wsreg, wsreg+1))

pX, pLre, pLim, pBre, pBim, pCre, pCim, pLdt, pD, pBx, pG, pU, pDn, pOut, pDbg, pWs = [16+2*i for i in range(16)]

def gen_k1():
    k = Kern("k1_kernel")
    sW, sMH, sNQ, sI, sJJ, sTY = 3, 4, 5, 6, 7, 8
    sT0, sT1, sT2, sT3 = 9, 10, 11, 12
    sMASK = 13
    SX, SW0, SW1, SA2, SP0, SP1 = 48, 52, 56, 60, 64, 68
    sKx, sKw, sDst, sDelta, sIt, sRd = 72, 73, 74, 75, 76, 77
    sWl = 78
    sXl = 79
    sKS = 80
    sOffP, sOffQ = 81, 82
    k("s_cmp_ge_u32 s2, 256\ns_cbranch_scc1 L_k1_end")
    stamp(k, 0)
    k("s_load_dwordx16 s[16:31], s[0:1], 0\ns_load_dwordx16 s[32:47], s[0:1], 64")
    va = Alloc(1)
    vL = va(); vM = va(); vG = va(); vII = va(); vSL = va()
    vT = [va() for _ in range(6)]
    vXo = va(); vWo = va()
    aX = [va(), va()]; aS = [va(), va()]; aW = [va(), va(), va(), va()]
    vONE = va(4, 4)
    st_acc = [va() for _ in range(4)]
    st_t = [va() for _ in range(4)]
    FS = [va(40, 4), va(40, 4)]
    ACC = va(80, 4)
    SACC = va(12, 4)
    CONST = va(0)
    k("v_lshrrev_b32 v%d, 6, v0" % vT[0])
    k("v_and_b32 v%d, 63, v0" % vL)
    k("v_readfirstlane_b32 s%d, v%d" % (sW, vT[0]))
    k("v_and_b32 v%d, 15, v0\nv_lshrrev_b32 v%d, 4, v%d" % (vM, vG, vL))
    k("v_lshrrev_b32 v%d, 3, v%d\nv_and_b32 v%d, 7, v0" % (vII, vL, vSL))
    k("s_lshr_b32 s%d, s%d, 2" % (sMH, sW))
    k("s_lshl_b32 s%d, s%d, 1\ns_add_u32 s%d, s%d, s%d\ns_and_b32 s%d, s%d, 3" % (sT0, sMH, sNQ, sW, sT0, sNQ, sNQ))
    k("s_and_b32 s%d, s2, 7\ns_lshr_b32 s%d, s2, 3" % (sT0, sT1))
    k("s_lshr_b32 s%d, s%d, 2\ns_lshl_b32 s%d, s%d, 3\ns_and_b32 s%d, s%d, 7\ns_add_u32 s%d, s%d, s%d" % (sI, sT0, sI, sI, sT2, sT1, sI, sI, sT2))
    k("s_and_b32 s%d, s%d, 3\ns_lshl_b32 s%d, s%d, 2\ns_lshr_b32 s%d, s%d, 3\ns_add_u32 s%d, s%d, s%d" % (sJJ, sT0, sJJ, sJJ, sT2, sT1, sJJ, sJJ, sT2))
    k("s_and_b32 s%d, s%d, 1\ns_lshr_b32 s%d, s%d, 1" % (sTY, sJJ, sJJ, sJJ))
    k("s_mov_b32 s%d, 0xffff0000" % sMASK)
    k("s_and_b32 s%d, s%d, 1" % (sT0, sW))
    k("s_lshr_b32 s%d, s%d, 1\ns_and_b32 s%d, s%d, 3" % (sT1, sW, sT1, sT1))
    k("s_lshl_b32 s%d, s%d, 7\ns_lshl_b32 s%d, s%d, 5\ns_add_u32 s%d, s%d, s%d" % (sT2, sI, sT3, sT0, sT2, sT2, sT3))
    k("s_lshl_b32 s%d, s%d, 2\ns_add_u32 s%d, s%d, s%d" % (sT3, sT1, sT2, sT2, sT3))
    k("v_lshrrev_b32 v%d, 2, v%d\nv_lshlrev_b32 v%d, 4, v%d\nv_and_b32 v%d, 3, v%d" % (vT[0], vII, vT[0], vT[0], vT[1], vII))
    k("v_add3_u32 v%d, v%d, v%d, s%d" % (vT[0], vT[0], vT[1], sT2))
    k("v_mul_u32_u24 v%d, 1280, v%d" % (vT[0], vT[0]))
    k("s_lshl_b32 s%d, s%d, 2" % (sT3, sT0))
    k("v_lshrrev_b32 v%d, 1, v%d\nv_or_b32 v%d, s%d, v%d\nv_xor_b32 v%d, v%d, v%d" % (vT[1], vII, vT[1], sT3, vT[1], vT[1], vT[1], vSL))
    k("v_lshl_add_u32 v%d, v%d, 4, v%d" % (vXo, vT[1], vT[0]))
    k("s_lshl_b32 s%d, s%d, 10" % (sXl, sW))
    k("v_lshrrev_b32 v%d, 1, v%d\nv_xor_b32 v%d, v%d, v%d\nv_lshlrev_b32 v%d, 4, v%d" % (vT[0], vM, vT[0], vT[0], vG, vT[0], vT[0]))
    k("v_lshl_add_u32 v%d, v%d, 7, v%d" % (vT[5], vM, vT[0]))
    k("s_lshl_b32 s%d, s%d, 13" % (sT0, sMH))
    k("v_add_u32 v%d, s%d, v%d\nv_xor_b32 v%d, 64, v%d" % (aX[0], sT0, vT[5], aX[1], aX[0]))
    k("s_lshl_b32 s%d, s%d, 11" % (sT1, sNQ))
    k("v_add_u32 v%d, s%d, v%d\nv_xor_b32 v%d, 64, v%d" % (aS[0], sT1, aX[0], aS[1], aS[0]))
    for r in range(4): k("v_mov_b32 v%d, 0x3f803f80" % (vONE+r))
    for r in st_acc: k("v_mov_b32 v%d, 0" % r)
    for r in range(0, 40, 2): k("v_mov_b64 v[%d:%d], 0" % (FS[1]+r, FS[1]+r+1))
    for r in range(0, 92, 2): k("v_mov_b64 v[%d:%d], 0" % (ACC+r, ACC+r+1))
    k("s_mov_b32 s%d, 0\ns_mov_b32 s%d, 0\ns_mov_b32 s%d, 0\ns_mov_b32 s%d, 0\ns_mov_b32 s%d, 0" % (sKx, sKw, sDst, sIt, sRd))
    k("s_waitcnt lgkmcnt(0)")
    srd(k, SX, pX, 2048*1280)
    srd(k, SA2, pWs, 0x1000000)
    k("s_cmp_lt_u32 s%d, 2\ns_cselect_b32 s%d, s%d, 0\ns_cmp_eq_u32 s%d, 1\ns_cbranch_scc1 L_k1_ssm" % (sNQ, sT0, sTY, sT0))

    def dma_x():
        return ["s_add_u32 m0, s%d, s%d\nbuffer_load_dwordx4 v%d, s[%d:%d], s%d offen lds" % (sDst, sXl, vXo, SX, SX+3, sKx),
                "s_add_u32 s%d, s%d, 81920\ns_add_u32 m0, m0, 8192\nbuffer_load_dwordx4 v%d, s[%d:%d], s%d offen lds" % (sT0, sKx, vXo, SX, SX+3, sT0)]
    def dma_ffn():
        return dma_x() + [
            "s_add_u32 m0, s%d, s%d\nbuffer_load_dwordx4 v%d, s[%d:%d], s%d offen lds" % (sDst, sWl, vWo, SW0, SW0+3, sKw),
            "s_add_u32 m0, m0, 8192\nbuffer_load_dwordx4 v%d, s[%d:%d], s%d offen lds" % (vWo, SW1, SW1+3, sKw),
            "s_add_u32 s%d, s%d, 98304\ns_add_u32 m0, m0, 4096\nbuffer_load_dwordx4 v%d, s[%d:%d], s%d offen lds" % (sT1, sKw, vWo, SW1, SW1+3, sT1),
            "s_sub_u32 m0, m0, 8192\nbuffer_load_dwordx4 v%d, s[%d:%d], s%d offen lds" % (vWo, SW0, SW0+3, sT1)]
    def dma_ssm():
        o = dma_x()
        o.append("s_add_u32 m0, s%d, s%d\nbuffer_load_dwordx4 v%d, s[%d:%d], s%d offen lds" % (sDst, sWl, vWo, SW0, SW0+3, sKx))
        for q in range(1, 5):
            o.append("s_add_u32 s%d, s%d, %d\ns_add_u32 m0, m0, 2048\nbuffer_load_dwordx4 v%d, s[%d:%d], s%d offen lds" % (sT1, sKx, q*10240, vWo, SW0, SW0+3, sT1))
        return o
    def dma_adv():
        return ["s_add_u32 s%d, s%d, 128\ns_add_u32 s%d, s%d, 196608\ns_add_u32 s%d, s%d, %d\ns_cmp_eq_u32 s%d, %d\ns_cselect_b32 s%d, 0, s%d" %
                (sKx, sKx, sKw, sKw, sDst, sDst, SL, sDst, 3*SL, sDst, sDst)]
    PF = "--pf" in sys.argv
    PFG = "--pfg" in sys.argv
    NPF = (2 if PF else 0) + (1 if PFG else 0)
    def prefetch():
        if not (PF or PFG): return
        k("s_lshr_b32 s%d, s2, 3\ns_lshl_b32 s%d, s%d, 3\ns_add_u32 s%d, s%d, s%d" % (sT0, sT0, sT0, sT0, sT0, sW))
        k("v_lshlrev_b32 v%d, 7, v%d" % (st_t[0], vL))
        if PF:
            k("s_bfe_u32 s%d, s2, 0x10002\ns_mul_i32 s%d, s%d, %d\ns_mul_i32 s%d, s%d, 5120\ns_add_u32 s%d, s%d, s%d" % (sT1, sT1, sT1, 1024*1280, sT2, sT0, sT1, sT1, sT2))
            k("s_mov_b32 exec_hi, 0xff")
            k("buffer_load_dword v%d, v%d, s[%d:%d], s%d offen" % (253, st_t[0], SX, SX+3, sT1))
            k("s_bitcmp0_b32 s%d, 0\ns_cselect_b32 s%d, s%d, s%d\ns_cselect_b32 s%d, s%d, s%d" % (sT0, 68, pBre, pBim, 69, pBre+1, pBim+1))
            k("s_mov_b32 s70, %d\ns_mov_b32 s71, 0x20000" % (640*1280))
            k("s_and_b32 s%d, s2, 3\ns_mul_i32 s%d, s%d, %d\ns_lshr_b32 s%d, s%d, 1\ns_mul_i32 s%d, s%d, %d\ns_add_u32 s%d, s%d, s%d" % (sT1, sT1, sT1, 160*1280, sT2, sT0, sT2, sT2, 13*128, sT1, sT1, sT2))
            k("s_mov_b64 exec, 0x1fff")
            k("buffer_load_dword v%d, v%d, s[68:71], s%d offen" % (254, st_t[0], sT1))
        if PFG:
            k("s_mov_b64 exec, -1")
            k("s_bitcmp0_b32 s%d, 0\ns_cselect_b32 s%d, s%d, s%d\ns_cselect_b32 s%d, s%d, s%d" % (sT0, 68, pG, pU, 69, pG+1, pU+1))
            k("s_mov_b32 s70, %d\ns_mov_b32 s71, 0x20000" % (640*3072))
            k("s_and_b32 s%d, s2, 3\ns_lshl_b32 s%d, s%d, 9\ns_lshl_b32 s%d, s%d, 8\ns_add_u32 s%d, s%d, 1536" % (sT1, sT2, sT1, sT1, sT1, sT1, sT1))
            k("v_mov_b32 v%d, s%d\nv_mov_b32 v%d, s%d\nv_cmp_gt_u32 vcc, 4, v%d\nv_cndmask_b32 v%d, v%d, v%d, vcc" % (st_t[0], sT1, st_t[3], sT2, vSL, st_t[0], st_t[0], st_t[3]))
            k("v_lshl_add_u32 v%d, v%d, 7, v%d\nv_mul_u32_u24 v%d, 3072, v%d\nv_add_u32 v%d, v%d, v%d" % (st_t[0], vSL, st_t[0], st_t[3], vII, st_t[0], st_t[0], st_t[3]))
            k("s_lshr_b32 s%d, s%d, 1\ns_mul_i32 s%d, s%d, %d" % (sT1, sT0, sT1, sT1, 5*3072))
            k("s_mov_b32 exec_lo, 0x3f3f3f3f\ns_mov_b32 exec_hi, 0x3f")
            k("buffer_load_dword v%d, v%d, s[68:71], s%d offen" % (255, st_t[0], sT1))
        k("s_mov_b64 exec, -1")
    def stats_ops(base):
        o = []
        if "--nostats" in sys.argv: return o
        for d in range(4):
            t0, t1 = st_t[(d&1)*2], st_t[(d&1)*2+1]
            o += ["v_lshlrev_b32 v%d, 16, v%d" % (t0, base+d), "v_and_b32 v%d, s%d, v%d" % (t1, sMASK, base+d),
                  "v_add_f32 v%d, v%d, v%d" % (st_acc[0], st_acc[0], t0), "v_add_f32 v%d, v%d, v%d" % (st_acc[1], st_acc[1], t1),
                  "v_fmac_f32 v%d, v%d, v%d" % (st_acc[2], t0, t0), "v_fmac_f32 v%d, v%d, v%d" % (st_acc[3], t1, t1)]
        return o

    def main_loop(tag, ssm):
        ndma = 7 if ssm else 6
        def reads(h):
            F = FS[h]; o = []
            if ssm:
                for b in range(2): o.append("ds_read_b128 %s, v%d offset:%d" % (vr(F+4*b, 4), aX[h], b*2048))
                for q in range(5):
                    o.append("ds_read_b128 %s, v%d offset:%d" % (vr(F+16+4*q, 4), aW[(0 if q < 3 else 2)+h], q*2048))
                for b in range(2, 4): o.append("ds_read_b128 %s, v%d offset:%d" % (vr(F+4*b, 4), aX[h], b*2048))
            else:
                for b in range(2): o.append("ds_read_b128 %s, v%d offset:%d" % (vr(F+4*b, 4), aX[h], b*2048))
                for cb in range(2):
                    for gu in range(2):
                        for jx in range(2):
                            o.append("ds_read_b64_tr_b16 %s, v%d offset:%d" % (vr(F+16+(cb*2+gu)*4+jx*2, 2), aW[cb], h*4096+jx*512+gu*8192))
                for b in range(2, 4): o.append("ds_read_b128 %s, v%d offset:%d" % (vr(F+4*b, 4), aX[h], b*2048))
            o.append("ds_read_b128 %s, v%d" % (vr(F+36, 4), aS[h]))
            if "--nolds" in sys.argv: return []
            if "--notr" in sys.argv: return [x for x in o if "_tr_" not in x]
            if "--nob128" in sys.argv: return [x for x in o if "_tr_" in x]
            return o
        def mfmas(h):
            F = FS[h]; o = []
            if ssm:
                for b in range(4):
                    for q in range(5):
                        c = ACC + (q*4+b)*4
                        o.append("v_mfma_f32_16x16x32_bf16 %s, %s, %s, %s" % (vr(c,4), vr(F+4*b,4), vr(F+16+4*q,4), vr(c,4)))
                    if b < 3:
                        c = SACC + b*4
                        o.append("v_mfma_f32_16x16x32_bf16 %s, %s, %s, %s" % (vr(c,4), vr(vONE,4), vr(F+16+4*b,4), vr(c,4)))
            else:
                for b in range(4):
                    for w4 in range(4):
                        c = ACC + (w4*4+b)*4
                        o.append("v_mfma_f32_16x16x32_bf16 %s, %s, %s, %s" % (vr(c,4), vr(F+16+4*w4,4), vr(F+4*b,4), vr(c,4)))
                    if b < 2:
                        c = SACC + b*4
                        o.append("v_mfma_f32_16x16x32_bf16 %s, %s, %s, %s" % (vr(c,4), vr(F+16+4*b,4), vr(vONE,4), vr(c,4)))
            if "--nomfma" in sys.argv: return ["s_nop 0" for x in o]
            return o
        dma = dma_ssm if ssm else dma_ffn
        L = "L_k1_loop_" + tag
        k("%s:" % L)
        if STAMPS:
            k("s_cmp_lg_u32 s%d, 1\ns_cbranch_scc1 %s_ns\ns_memrealtime s[94:95]\ns_memtime s[96:97]\ns_waitcnt lgkmcnt(0)\n%s_ns:" % (sIt, L, L))
        deep = 1
        for a in sys.argv:
            if a.startswith("--deep="): deep = int(a[7:])
        if NPF:
            k("s_waitcnt vmcnt(%d)\ns_cmp_lt_u32 s%d, 2\ns_cbranch_scc1 %s_w" % (ndma*deep+NPF, sIt, L))
        k("s_waitcnt vmcnt(%d)" % (ndma*deep))
        if NPF: k("%s_w:" % L)
        if "--nobar" not in sys.argv: k("s_barrier")
        k("s_cmp_lt_u32 s%d, " % sIt + ("0" if "--nodma" in sys.argv else "8") + "\ns_cselect_b32 s%d, s%d, 0\ns_cselect_b32 s%d, s%d, 0" % (SX+2, SX+2, SW0+2, SW0+2))
        if not ssm: k("s_cselect_b32 s%d, s%d, 0" % (SW1+2, SW1+2))
        rd0 = reads(0)
        st1 = stats_ops(FS[1]+36)
        d = dma() + dma_adv()
        mix = []
        if "--nodmai" in sys.argv: d = dma_adv()
        per = (len(st1) + len(d) - 1)//len(d)
        for i, x in enumerate(d):
            mix.append(x); mix += st1[i*per:(i+1)*per]
        interleave(k, mfmas(1), rd0 + mix, lead=4)
        k("s_waitcnt lgkmcnt(0)")
        rd1 = reads(1)
        adv = ["s_mov_b32 s%d, %d\ns_add_u32 s%d, s%d, 1\ns_cmp_eq_u32 s%d, 3\ns_cselect_b32 s%d, 0, s%d\ns_cselect_b32 s%d, %d, s%d" % (sDelta, SL, sRd, sRd, sRd, sRd, sRd, sDelta, (-2*SL) & 0xffffffff, sDelta)]
        regs = aX + aS + (aW if ssm else aW[:2])
        adv += ["v_add_u32 v%d, s%d, v%d" % (r, sDelta, r) for r in regs]
        interleave(k, mfmas(0), rd1 + stats_ops(FS[0]+36) + adv, lead=0)
        k("s_add_u32 s%d, s%d, 1\ns_cmp_lt_u32 s%d, 10" % (sIt, sIt, sIt))
        k("s_waitcnt lgkmcnt(0)")
        k("s_cbranch_scc1 %s" % L)
        if deep > 1: k("s_waitcnt vmcnt(0)")
        if STAMPS: k("s_memtime s[98:99]")
        interleave(k, mfmas(1), stats_ops(FS[1]+36))

    def bf16r(d, s):
        k("v_cvt_pk_bf16_f32 v%d, v%d, v%d\nv_lshlrev_b32 v%d, 16, v%d" % (d, s, s, d, d))

    def stats_finish():
        a, q = st_acc[0], st_acc[2]
        k("v_add_f32 v%d, v%d, v%d\nv_add_f32 v%d, v%d, v%d" % (a, a, st_acc[1], q, q, st_acc[3]))
        for sw in ("v_permlane16_swap_b32", "v_permlane32_swap_b32"):
            k("v_mov_b32 v%d, v%d\nv_mov_b32 v%d, v%d" % (st_acc[1], a, st_acc[3], q))
            k("%s v%d, v%d\n%s v%d, v%d" % (sw, a, st_acc[1], sw, q, st_acc[3]))
            k("v_add_f32 v%d, v%d, v%d\nv_add_f32 v%d, v%d, v%d" % (a, a, st_acc[1], q, q, st_acc[3]))
        k("v_mul_f32 v%d, %s, v%d" % (a, f32(1/640.), a))
        k("v_mul_f32 v%d, %s, v%d" % (q, f32(1/640.), q))
        k("v_fma_f32 v%d, -v%d, v%d, v%d" % (q, a, a, q))
        k("v_max_f32 v%d, 0, v%d" % (q, q))
        m, rs, s = st_t[0], st_t[1], st_t[2]
        bf16r(m, a)
        bf16r(q, q)
        k("v_add_f32 v%d, %s, v%d" % (q, f32(1e-5), q))
        bf16r(q, q)
        k("v_sqrt_f32 v%d, v%d" % (q, q))
        bf16r(s, q)
        k("v_rcp_f32 v%d, v%d" % (rs, s))
        k("s_lshl_b32 s%d, s%d, 2\ns_add_u32 s%d, s%d, s%d\ns_lshl_b32 s%d, s%d, 6\ns_add_u32 s%d, s%d, %d" % (sT0, sMH, sT0, sT0, sNQ, sT0, sT0, sT0, sT0, STAT_M))
        k("v_lshl_add_u32 v%d, v%d, 2, s%d" % (vT[0], vM, sT0))
        k("ds_write_b32 v%d, v%d\nds_write_b32 v%d, v%d offset:512\nds_write_b32 v%d, v%d offset:1024" % (vT[0], m, vT[0], rs, vT[0], s))
        return m, rs

    sE, sUN, sCOL = sT0, sT1, sT2
    srd(k, SW0, pG, 640*3072)
    srd(k, SW1, pU, 640*3072)
    k("s_and_b32 s%d, s%d, 1\ns_lshl_b32 s%d, s%d, 1\ns_add_u32 s%d, s%d, s%d" % (sT3, sNQ, sE, sMH, sE, sE, sT3))
    k("s_lshr_b32 s%d, s%d, 1\ns_cmp_eq_u32 s%d, 0\ns_cselect_b32 s%d, s%d, 0" % (sUN, sNQ, sTY, sUN, sUN))
    k("s_lshl_b32 s14, s%d, 7\ns_lshl_b32 s15, s%d, 6\ns_add_u32 s14, s14, s15" % (sJJ, sUN))
    k("s_lshl_b32 s15, s%d, 6\ns_add_u32 s15, s15, 1024" % sJJ)
    k("s_cmp_eq_u32 s%d, 0\ns_cselect_b32 s%d, s14, s15" % (sTY, sCOL))
    k("s_lshr_b32 s14, s%d, 5\ns_add_u32 s14, s14, s%d" % (sCOL, sT3))
    k("s_lshl_b32 s15, s%d, 1\ns_add_u32 s15, s15, s%d\ns_mul_i32 s15, s15, 88\ns_add_u32 s14, s14, s15\ns_lshl_b32 s%d, s14, 12" % (sI, sMH, sKS))
    k("s_lshl_b32 s14, s%d, 3" % sE)
    k("v_add_u32 v%d, s14, v%d\nv_mul_u32_u24 v%d, 3072, v%d" % (vT[0], vII, vT[0], vT[0]))
    k("s_lshl_b32 s14, s%d, 1" % sT3)
    k("v_bfe_u32 v%d, v%d, 1, 1\nv_or_b32 v%d, s14, v%d" % (vT[1], vII, vT[1], vT[1]))
    k("v_lshlrev_b32 v%d, 1, v%d\nv_xor_b32 v%d, v%d, v%d" % (vT[1], vT[1], vT[1], vT[1], vSL))
    k("v_lshl_add_u32 v%d, v%d, 4, v%d" % (vT[0], vT[1], vT[0]))
    k("s_lshl_b32 s14, s%d, 1" % sCOL)
    k("v_add_u32 v%d, s14, v%d" % (vWo, vT[0]))
    k("s_lshl_b32 s14, s%d, 14\ns_lshl_b32 s15, s%d, 10\ns_add_u32 s%d, s14, s15\ns_add_u32 s%d, s%d, 16384" % (sUN, sE, sWl, sWl, sWl))
    k("v_lshrrev_b32 v%d, 2, v%d\nv_lshl_add_u32 v%d, v%d, 3, v%d\nv_lshlrev_b32 v%d, 7, v%d" % (vT[0], vM, vT[0], vG, vT[0], vT[0], vT[0]))
    k("v_and_b32 v%d, 1, v%d\nv_lshlrev_b32 v%d, 1, v%d\nv_lshrrev_b32 v%d, 3, v%d\nv_or_b32 v%d, v%d, v%d" % (vT[1], vG, vT[1], vT[1], vT[2], vM, vT[1], vT[1], vT[2]))
    k("s_lshl_b32 s15, s%d, 1\ns_add_u32 s15, s15, s%d" % (sT3, sMH))
    k("v_xor_b32 v%d, s15, v%d\nv_lshl_add_u32 v%d, v%d, 5, v%d" % (vT[1], vT[1], vT[0], vT[1], vT[0]))
    k("v_and_b32 v%d, 3, v%d\nv_lshl_add_u32 v%d, v%d, 3, v%d" % (vT[1], vM, vT[0], vT[1], vT[0]))
    k("s_add_u32 s14, s14, 16384")
    k("v_add_u32 v%d, s14, v%d\nv_xor_b32 v%d, 32, v%d" % (aW[0], vT[0], aW[1], aW[0]))
    sTask, sQ, sR = 14, 15, 83
    k("s_lshl_b32 s%d, s%d, 3\ns_add_u32 s%d, s%d, s%d\ns_lshl_b32 s%d, s%d, 2" % (sTask, sI, sTask, sTask, sJJ, sTask, sTask))
    k("s_cmp_eq_u32 s%d, 1\ns_cbranch_scc1 L_k1_packC" % sTY)
    k("s_add_u32 s%d, s%d, s%d" % (sTask, sTask, sW))
    k("s_cmp_ge_u32 s%d, 4\ns_cbranch_scc1 L_k1_nopack" % sW)
    k("s_cmp_ge_u32 s%d, 480\ns_cbranch_scc1 L_k1_nopack" % sTask)
    k("s_mul_i32 s%d, s%d, 6554\ns_lshr_b32 s%d, s%d, 16\ns_mul_i32 s%d, s%d, 10\ns_sub_u32 s%d, s%d, s%d" % (sQ, sTask, sQ, sQ, sR, sQ, sR, sTask, sR))
    srd(k, SP0, pDn, 1536*1280)
    k("v_mul_u32_u24 v%d, 1280, v%d\nv_lshl_add_u32 v%d, v%d, 4, v%d" % (vT[0], vII, vT[0], vSL, vT[0]))
    k("s_mul_i32 s%d, s%d, 40960\ns_lshl_b32 s%d, s%d, 7\ns_add_u32 s%d, s%d, s%d" % (sT1, sQ, sT2, sR, sT1, sT1, sT2))
    k("s_mul_i32 s%d, s%d, %d\ns_add_u32 s%d, s%d, 49152\ns_cmp_eq_u32 s%d, 3\ns_cselect_b32 s%d, %d, s%d" % (sT2, sW, SL, sT2, sT2, sW, sT2, SPARE, sT2))
    k("s_mov_b32 m0, s%d" % sT2)
    for a in range(4):
        k("buffer_load_dwordx4 v%d, s[%d:%d], s%d offen lds" % (vT[0], SP0, SP0+3, sT1))
        if a < 3: k("s_add_u32 s%d, s%d, 10240\ns_add_u32 m0, m0, 1024" % (sT1, sT1))
    k("s_mov_b32 s%d, s%d" % (sT3, sT2))
    for s in range(2):
        for x in dma_ffn() + dma_adv(): k(x)
    prefetch()
    k("v_lshrrev_b32 v%d, 2, v%d\nv_lshl_add_u32 v%d, v%d, 2, v%d\nv_lshlrev_b32 v%d, 7, v%d" % (vT[0], vM, vT[0], vG, vT[0], vT[0], vT[0]))
    k("v_and_b32 v%d, 3, v%d\nv_lshl_add_u32 v%d, v%d, 3, v%d\nv_add_u32 v%d, s%d, v%d" % (vT[1], vM, vT[0], vT[1], vT[0], vT[0], sT3, vT[0]))
    k("v_lshlrev_b32 v%d, 4, v%d" % (vT[1], vL))
    k("s_waitcnt vmcnt(%d)" % (12+NPF))
    P = FS[0]
    for c4 in range(4):
        k("ds_read_b64_tr_b16 %s, v%d offset:%d" % (vr(P+c4*4, 2), vT[0], c4*32))
        k("ds_read_b64_tr_b16 %s, v%d offset:%d" % (vr(P+c4*4+2, 2), vT[0], c4*32+2048))
    for c4 in range(4):
        k("s_lshl_b32 s%d, s%d, 2\ns_add_u32 s%d, s%d, %d\ns_mul_i32 s%d, s%d, 52\ns_lshr_b32 s%d, s%d, 8" % (sT0, sR, sT0, sT0, c4, sT1, sT0, sT1, sT1))
        k("s_mul_i32 s%d, s%d, 435\ns_add_u32 s%d, s%d, s%d\ns_mul_i32 s%d, s%d, 5\ns_add_u32 s%d, s%d, s%d" % (sT1, sT1, sT1, sT1, sT0, sT0, sQ, sT1, sT1, sT0))
        k("s_lshl_b32 s%d, s%d, 10\ns_add_u32 s%d, s%d, %d" % (sT1, sT1, sT1, sT1, B2_OFF))
        k("s_waitcnt lgkmcnt(%d)" % (6-2*c4))
        k("buffer_store_dwordx4 %s, v%d, s[%d:%d], s%d offen" % (vr(P+c4*4, 4), vT[1], SA2, SA2+3, sT1))
    k("s_branch L_k1_loop_ffn")
    k("L_k1_packC:")
    k("s_add_u32 s%d, s%d, s%d" % (sTask, sTask, sE))
    k("s_cmp_ge_u32 s%d, 400\ns_cbranch_scc1 L_k1_nopack" % sTask)
    k("s_mul_i32 s%d, s%d, 6554\ns_lshr_b32 s%d, s%d, 16\ns_mul_i32 s%d, s%d, 10\ns_sub_u32 s%d, s%d, s%d" % (sQ, sTask, sQ, sQ, sR, sQ, sR, sTask, sR))
    srd(k, SP0, pCre, 640*1280)
    srd(k, SP1, pCim, 640*1280)
    k("v_mul_u32_u24 v%d, 1280, v%d\nv_lshl_add_u32 v%d, v%d, 4, v%d" % (vT[0], vM, vT[0], vG, vT[0]))
    k("s_mul_i32 s%d, s%d, 20480\ns_lshl_b32 s%d, s%d, 7\ns_add_u32 s%d, s%d, s%d" % (sT1, sQ, sT2, sR, sT1, sT1, sT2))
    for part in range(2):
        for hh in range(2):
            S = SP0 if part == 0 else SP1
            k("buffer_load_dwordx4 %s, v%d, s[%d:%d], s%d offen offset:%d" % (vr(P+(part*2+hh)*4, 4), vT[0], S, S+3, sT1, hh*64))
    for s in range(2):
        for x in dma_ffn() + dma_adv(): k(x)
    prefetch()
    k("v_lshrrev_b32 v%d, 1, v%d\nv_mul_u32_u24 v%d, 5120, v%d" % (vT[1], vG, vT[1], vT[1]))
    k("v_and_b32 v%d, 1, v%d\nv_lshl_add_u32 v%d, v%d, 5, v%d\nv_lshl_add_u32 v%d, v%d, 4, v%d" % (vT[2], vG, vT[2], vT[2], vM, vT[1], vT[2], vT[1]))
    k("s_mul_i32 s%d, s%d, 52\ns_lshr_b32 s%d, s%d, 8\ns_mul_i32 s%d, s%d, 435\ns_add_u32 s%d, s%d, s%d" % (sT1, sQ, sT1, sT1, sT1, sT1, sT1, sT1, sQ))
    k("s_mul_i32 s%d, s%d, 20\ns_add_u32 s%d, s%d, s%d\ns_add_u32 s%d, s%d, 240\ns_lshl_b32 s%d, s%d, 10\ns_add_u32 s%d, s%d, %d" % (sT0, sR, sT1, sT1, sT0, sT1, sT1, sT1, sT1, sT1, sT1, B2_OFF))
    k("s_add_u32 s%d, s%d, 10240" % (sT0, sT1))
    k("s_waitcnt vmcnt(%d)" % (12+NPF))
    for r in range(8, 16): k("v_xor_b32 v%d, 0x80008000, v%d" % (P+r, P+r))
    for part in range(2):
        for hh in range(2):
            k("buffer_store_dwordx4 %s, v%d, s[%d:%d], s%d offen offset:%d" % (vr(P+(part*2+hh)*4, 4), vT[1], SA2, SA2+3, sT0 if hh else sT1, part*256))
    k("s_branch L_k1_loop_ffn")
    k("L_k1_nopack:")
    for s in range(2):
        for x in dma_ffn() + dma_adv(): k(x)
    prefetch()
    main_loop("ffn", False)
    stamp(k, 1)
    m, rs = stats_finish()
    k("s_or_b32 s%d, s%d, s%d\ns_cmp_lg_u32 s%d, 0\ns_cbranch_scc1 L_k1_nost" % (sT0, sTY, sJJ, sT0))
    k("s_lshl_b32 s%d, s%d, 7\ns_lshl_b32 s%d, s%d, 6\ns_add_u32 s%d, s%d, s%d\ns_lshl_b32 s%d, s%d, 2\ns_add_u32 s%d, s%d, s%d" % (sT0, sI, sT1, sMH, sT0, sT0, sT1, sT1, sNQ, sT0, sT0, sT1))
    k("v_lshrrev_b32 v%d, 2, v%d\nv_lshlrev_b32 v%d, 4, v%d\nv_and_b32 v%d, 3, v%d\nv_add3_u32 v%d, v%d, v%d, s%d" % (vT[1], vM, vT[1], vT[1], vT[2], vM, vT[1], vT[1], vT[2], sT0))
    k("v_lshlrev_b32 v%d, 3, v%d\nv_add_u32 v%d, 0x%x, v%d" % (vT[1], vT[1], vT[1], ST_OFF, vT[1]))
    assert rs == m+1 and m % 2 == 0
    k("global_store_dwordx2 v%d, v[%d:%d], s[%d:%d]" % (vT[1], m, m+1, pWs, pWs+1))
    k("L_k1_nost:")
    k("s_lshl_b32 s%d, s%d, 8\ns_add_u32 s%d, s%d, %d\ns_lshl_b32 s%d, s%d, 7\ns_add_u32 s%d, s%d, s%d" % (sT0, sNQ, sT0, sT0, SX_FFN, sT1, sMH, sT1, sT1, sT0))
    k("v_lshl_add_u32 v%d, v%d, 4, s%d" % (vT[1], vG, sT1))
    k("ds_write_b128 v%d, %s\nds_write_b128 v%d, %s offset:64" % (vT[1], vr(SACC, 4), vT[1], vr(SACC+4, 4)))
    k("v_xor_b32 v%d, 128, v%d" % (vT[1], vT[1]))
    k("s_lshl_b32 s%d, s%d, 8\ns_add_u32 s%d, s%d, %d" % (sT0, sMH, sT0, sT0, STAT_M))
    k("v_lshl_add_u32 v%d, v%d, 2, s%d" % (vT[2], vM, sT0))
    k("s_waitcnt vmcnt(0) lgkmcnt(0)\ns_barrier")
    E = FS[0]
    So = E
    Mb, RSb, Sb = E+8, E+12, E+16
    k("ds_read_b128 %s, v%d\nds_read_b128 %s, v%d offset:64" % (vr(So, 4), vT[1], vr(So+4, 4), vT[1]))
    for b in range(4):
        k("ds_read_b32 v%d, v%d offset:%d\nds_read_b32 v%d, v%d offset:%d\nds_read_b32 v%d, v%d offset:%d" % (Mb+b, vT[2], b*64, RSb+b, vT[2], 512+b*64, Sb+b, vT[2], 1024+b*64))
    k("v_lshlrev_b32 v%d, 4, v%d" % (vT[3], vL))
    c0 = -2*math.sqrt(2/math.pi)*math.log2(math.e)
    k("s_mov_b32 s%d, %s" % (sT0, f32(c0*0.044715)))
    k("v_mov_b32 v%d, %s" % (vT[4], f32(c0)))
    k("s_cmp_eq_u32 s%d, 1\ns_cselect_b64 s[14:15], -1, 0" % sMH)
    k("s_waitcnt lgkmcnt(0)")
    T = E+20
    O = FS[1]
    for b in range(4):
        if b == 1:
            k("s_barrier")
        for cb in range(2):
            Sg = SACC if cb == 0 else So
            Su = SACC+4 if cb == 0 else So+4
            G = ACC + ((cb*2+0)*4+b)*4; U = ACC + ((cb*2+1)*4+b)*4
            R4 = range(4)
            for r in R4: k("v_fma_f32 v%d, -v%d, v%d, v%d" % (G+r, Mb+b, Sg+r, G+r))
            for r in R4: k("v_mul_f32 v%d, v%d, v%d" % (G+r, RSb+b, G+r))
            for r in R4: k("v_mul_f32 v%d, v%d, v%d" % (T+r, G+r, G+r))
            for r in R4: k("v_fma_f32 v%d, v%d, s%d, v%d" % (T+r, T+r, sT0, vT[4]))
            for r in R4: k("v_mul_f32 v%d, v%d, v%d" % (T+r, T+r, G+r))
            for r in R4: k("v_exp_f32 v%d, v%d" % (T+r, T+r))
            for r in R4: k("v_fma_f32 v%d, -v%d, v%d, v%d" % (U+r, Mb+b, Su+r, U+r))
            for r in R4: k("v_fma_f32 v%d, v%d, v%d, v%d" % (T+r, T+r, Sb+b, Sb+b))
            for r in R4: k("v_rcp_f32 v%d, v%d" % (T+r, T+r))
            for r in R4: k("v_mul_f32 v%d, v%d, v%d" % (G+r, G+r, U+r))
            for r in R4: k("v_mul_f32 v%d, v%d, v%d" % (G+r, G+r, T+r))
            k("v_cvt_pk_bf16_f32 v%d, v%d, v%d\nv_cvt_pk_bf16_f32 v%d, v%d, v%d" % (T+4+cb*2, G, G+1, T+5+cb*2, G+2, G+3))
        Ob = O + b*4
        for r in range(2):
            k("v_cndmask_b32 v%d, v%d, v%d, s[14:15]" % (Ob+r, T+4+r, T+6+r))
            k("v_cndmask_b32 v%d, v%d, v%d, s[14:15]" % (Ob+2+r, T+6+r, T+4+r))
        k("buffer_store_dwordx4 %s, v%d, s[%d:%d], s%d offen offset:%d" % (vr(Ob, 4), vT[3], SA2, SA2+3, sKS, b*1024))
    stamp(k, 2)
    stamp_out(k, 0, 8, pWs, FS[0])
    k("s_endpgm")

    k("L_k1_ssm:")
    ca = Alloc(CONST)
    cLr = ca(5); cMu = ca(5); cKr = ca(5); cKk = ca(5); c16r = ca(5); c16k = ca(5)
    cA2 = ca(5); cBt = ca(5)
    assert ca.n <= 252, ca.n
    k("s_cmp_eq_u32 s%d, 0\ns_cselect_b32 s%d, s%d, s%d\ns_cselect_b32 s%d, s%d, s%d" % (sNQ, SW0, pBre, pBim, SW0+1, pBre+1, pBim+1))
    k("s_mov_b32 s%d, %d\ns_mov_b32 s%d, 0x20000" % (SW0+2, 640*1280, SW0+3))
    k("s_lshl_b32 s%d, s%d, 1\ns_mul_i32 s%d, s%d, -3" % (sOffP, sMH, sOffQ, sMH))
    k("s_mul_i32 s%d, s%d, 80\ns_mul_i32 s%d, s%d, 40\ns_add_u32 s%d, s%d, s%d" % (sT0, sJJ, sT1, sNQ, sT1, sT1, sT0))
    k("s_lshl_b32 s%d, s%d, 3\ns_add_u32 s%d, s%d, s%d\ns_lshl_b32 s%d, s%d, 3\ns_add_u32 s%d, s%d, s%d" % (sT2, sOffP, sT2, sT2, sT1, sT3, sOffQ, sT3, sT3, sT1))
    k("v_add_u32 v%d, s%d, v%d\nv_lshlrev_b32 v%d, 1, v%d\nv_add_u32 v%d, s%d, v%d\nv_lshlrev_b32 v%d, 1, v%d" % (vT[0], sT2, vSL, vT[0], vT[0], vT[1], sT3, vSL, vT[1], vT[1]))
    k("v_add_u32 v%d, 48, v%d" % (vT[1], vT[1]))
    P = FS[0]
    for q in range(5):
        va_, off = (vT[0], q*16) if q < 3 else (vT[1], (q-3)*16)
        for n, p in enumerate((pLre, pLim, pLdt)):
            k("global_load_ushort v%d, v%d, s[%d:%d] offset:%d" % (P+n*5+q, va_, p, p+1, off))
    k("s_mul_i32 s%d, s%d, 40\ns_add_u32 s%d, s%d, s%d" % (sT1, sMH, sT1, sT1, sT0))
    k("v_add_u32 v%d, s%d, v%d\nv_mul_u32_u24 v%d, 1280, v%d" % (vT[2], sT1, vII, vT[2], vT[2]))
    k("s_lshl_b32 s%d, s%d, 2" % (sT1, sNQ))
    k("v_lshrrev_b32 v%d, 1, v%d\nv_or_b32 v%d, s%d, v%d\nv_xor_b32 v%d, v%d, v%d" % (vT[3], vII, vT[3], sT1, vT[3], vT[3], vT[3], vSL))
    k("v_lshl_add_u32 v%d, v%d, 4, v%d" % (vWo, vT[3], vT[2]))
    k("s_mul_i32 s%d, s%d, 10240\ns_lshl_b32 s%d, s%d, 10\ns_add_u32 s%d, s%d, s%d\ns_add_u32 s%d, s%d, 32768" % (sWl, sMH, sT1, sNQ, sWl, sWl, sT1, sWl, sWl))
    for s in range(2):
        for x in dma_ssm() + dma_adv(): k(x)
    prefetch()
    k("s_mul_i32 s%d, s%d, 5\ns_add_u32 s%d, s%d, s%d\ns_add_u32 s%d, s%d, s%d" % (sT0, sNQ, sOffP, sOffP, sT0, sOffQ, sOffQ, sT0))
    k("s_lshl_b32 s%d, s%d, 11\ns_add_u32 s%d, s%d, 32768\ns_lshl_b32 s%d, s%d, 11\ns_add_u32 s%d, s%d, 32768" % (sT0, sOffP, sT0, sT0, sT1, sOffQ, sT1, sT1))
    k("v_add_u32 v%d, s%d, v%d\nv_xor_b32 v%d, 64, v%d\nv_add_u32 v%d, s%d, v%d\nv_xor_b32 v%d, 64, v%d" % (aW[0], sT0, vT[5], aW[1], aW[0], aW[2], sT1, vT[5], aW[3], aW[2]))
    k("v_lshrrev_b32 v%d, 3, v%d\nv_xor_b32 v%d, 1, v%d\nv_lshlrev_b32 v%d, 31, v%d" % (vT[4], vM, vT[4], vT[4], vT[4], vT[4]))
    k("s_waitcnt vmcnt(%d)" % (14+NPF))
    LOG2E = math.log2(math.e)
    def cpow(dr, dk, q, nreg_or_imm, t0, t1):
        n = nreg_or_imm
        k("v_mul_f32 v%d, %s, v%d\nv_mul_f32 v%d, %s, v%d" % (t0, n, cA2+q, t1, n, cBt+q))
        k("v_exp_f32 v%d, v%d\nv_rndne_f32 v%d, v%d\nv_sub_f32 v%d, v%d, v%d" % (t0, t0, dr, t1, t1, t1, dr))
        k("v_cos_f32 v%d, v%d\nv_sin_f32 v%d, v%d" % (dr, t1, dk, t1))
        k("v_mul_f32 v%d, v%d, v%d\nv_mul_f32 v%d, v%d, v%d" % (dr, dr, t0, dk, dk, t0))
    for q in range(5):
        lre, lim, ldt = P+q, P+5+q, P+10+q
        t0, t1, t2 = P+16, P+17, P+18
        k("v_lshlrev_b32 v%d, 16, v%d\nv_lshlrev_b32 v%d, 16, v%d\nv_lshlrev_b32 v%d, 16, v%d" % (lre, lre, lim, lim, ldt, ldt))
        k("v_xor_b32 v%d, v%d, v%d" % (lim, lim, vT[4]))
        k("v_mul_f32 v%d, %s, v%d\nv_exp_f32 v%d, v%d" % (ldt, f32(LOG2E), ldt, ldt, ldt))
        bf16r(ldt, ldt)
        k("v_mul_f32 v%d, v%d, v%d\nv_mul_f32 v%d, v%d, v%d" % (cA2+q, ldt, lre, cBt+q, ldt, lim))
        k("v_mul_f32 v%d, %s, v%d\nv_mul_f32 v%d, %s, v%d" % (cA2+q, f32(LOG2E), cA2+q, cBt+q, f32(1/(2*math.pi)), cBt+q))
        cpow(cLr+q, cMu+q, q, "1.0", t0, t1)
        cpow(c16r+q, c16k+q, q, f32(16.0), t0, t1)
        k("v_add_f32 v%d, -1.0, v%d" % (t0, cLr+q))
        k("v_mul_f32 v%d, v%d, v%d\nv_fmac_f32 v%d, v%d, v%d" % (t1, lre, lre, t1, lim, lim))
        k("v_rcp_f32 v%d, v%d" % (t1, t1))
        k("v_mul_f32 v%d, v%d, v%d\nv_fmac_f32 v%d, v%d, v%d" % (cKr+q, t0, lre, cKr+q, cMu+q, lim))
        k("v_mul_f32 v%d, v%d, v%d\nv_fma_f32 v%d, -v%d, v%d, v%d" % (cKk+q, cMu+q, lre, cKk+q, t0, lim, cKk+q))
        k("v_add_f32 v%d, v%d, v%d" % (t1, t1, t1))
        k("v_mul_f32 v%d, v%d, v%d\nv_mul_f32 v%d, v%d, v%d" % (cKr+q, cKr+q, t1, cKk+q, cKk+q, t1))
    main_loop("ssm", True)
    stamp(k, 1)
    k("s_setprio 2")
    stats_finish()
    k("s_lshl_b32 s%d, s%d, 6\ns_add_u32 s%d, s%d, %d\ns_lshl_b32 s%d, s%d, 6\ns_add_u32 s%d, s%d, %d" % (sT0, sOffP, sT0, sT0, SX_SSM, sT1, sOffQ, sT1, sT1, SX_SSM))
    k("v_lshl_add_u32 v%d, v%d, 2, s%d\nv_lshl_add_u32 v%d, v%d, 2, s%d" % (vT[1], vM, sT0, vT[2], vM, sT1))
    for q in range(3): k("ds_write_b32 v%d, v%d offset:%d" % (vT[1], SACC+4*q, q*64))
    k("s_lshl_b32 s%d, s%d, 8\ns_add_u32 s%d, s%d, %d" % (sT0, sMH, sT0, sT0, STAT_M))
    k("v_lshl_add_u32 v%d, v%d, 4, s%d" % (vT[3], vG, sT0))
    k("s_waitcnt vmcnt(0) lgkmcnt(0)\ns_barrier")
    E = FS[0]
    assert FS[1] == FS[0] + 40
    M4, RS4 = E, E+16
    Sq = [SACC, SACC+4, SACC+8, SACC+1, SACC+2]
    for q in (3, 4): k("ds_read_b32 v%d, v%d offset:%d" % (Sq[q], vT[2], q*64))
    for b in range(4):
        k("ds_read_b128 %s, v%d offset:%d\nds_read_b128 %s, v%d offset:%d" % (vr(M4+4*b, 4), vT[3], b*64, vr(RS4+4*b, 4), vT[3], 512+b*64))
    k("s_lshl_b32 s%d, s%d, 9\ns_lshl_b32 s%d, s%d, 9\ns_add_u32 s%d, s%d, %d\ns_add_u32 s%d, s%d, %d" % (sT0, sOffP, sT1, sOffQ, sT0, sT0, SEG, sT1, sT1, SEG))
    k("v_lshl_add_u32 v%d, v%d, 5, s%d\nv_lshl_add_u32 v%d, v%d, 5, s%d" % (vT[1], vM, sT0, vT[2], vM, sT1))
    k("s_lshl_b32 s%d, s%d, 2" % (sT0, sMH))
    k("v_add_u32 v%d, s%d, v%d" % (vT[0], sT0, vG))
    k("v_lshl_add_u32 v%d, v%d, 2, v%d\nv_lshl_add_u32 v%d, v%d, 2, v%d" % (vT[3], vT[0], vT[1], vT[4], vT[0], vT[2]))
    Z = [[ACC + (q*4 + (t >> 2))*4 + (t & 3) for t in range(16)] for q in range(5)]
    H = [[E+32+q, E+37+q] for q in range(5)]
    k("s_waitcnt lgkmcnt(0)")
    for t in range(16):
        for q in range(5): k("v_fma_f32 v%d, -v%d, v%d, v%d" % (Z[q][t], M4+t, Sq[q], Z[q][t]))
        for q in range(5): k("v_mul_f32 v%d, v%d, v%d" % (Z[q][t], RS4+t, Z[q][t]))
        if t >= 1:
            prev = [Z[q][0] if t == 1 else H[q][t & 1] for q in range(5)]
            cur = [H[q][(t+1) & 1] for q in range(5)]
            for q in range(5): k("v_fma_f32 v%d, v%d, v%d, v%d" % (cur[q], cLr+q, prev[q], Z[q][t]))
            for q in range(5): k("v_fmac_f32_dpp v%d, v%d, v%d%s" % (cur[q], prev[q], cMu+q, DPP))
    end = [H[q][0] for q in range(5)]
    for q in range(5): k("ds_write_b32 v%d, v%d offset:%d" % (vT[3] if q < 3 else vT[4], end[q], q*512))
    MK = lambda s: "s[%d:%d]" % (16+2*s, 17+2*s)
    for s in range(1, 8): k("v_cmp_eq_u32 %s, %d, v%d" % (MK(s), s, vT[0]))
    k("s_waitcnt lgkmcnt(0)\ns_barrier")
    EN = E
    for q in range(5):
        a_ = vT[1] if q < 3 else vT[2]
        k("ds_read_b128 %s, v%d offset:%d\nds_read_b128 %s, v%d offset:%d" % (vr(EN+8*q, 4), a_, q*512, vr(EN+8*q+4, 4), a_, q*512+16))
    MINE = E+40; TOT = E+48
    for q in range(5): k("v_mov_b32 v%d, 0" % (MINE+q))
    k("s_waitcnt lgkmcnt(0)")
    for s in range(1, 8):
        for q in range(5): k("v_cndmask_b32 v%d, v%d, v%d, %s" % (MINE+q, MINE+q, EN+8*q+s-1, MK(s)))
        for q in range(5): k("v_fmac_f32 v%d, v%d, v%d" % (EN+8*q+s, c16r+q, EN+8*q+s-1))
        for q in range(5): k("v_fmac_f32_dpp v%d, v%d, v%d%s" % (EN+8*q+s, EN+8*q+s-1, c16k+q, DPP))
    SC = SP0
    k("s_lshl_b32 s%d, s%d, 1\ns_add_u32 s%d, s%d, s%d" % (sT2, sJJ, sT2, sT2, sNQ))
    k("s_lshl_b32 s%d, s%d, 13\ns_add_u32 s%d, s%d, 0x%x" % (sT0, sT2, sT0, sT0, CAR_OFF))
    srd(k, SC, pWs, 8192, "s%d" % sT0)
    k("s_cmp_lg_u32 s%d, 0\ns_cbranch_scc1 L_k1_nopub" % sMH)
    for q in range(5): k("v_mov_b32 v%d, v%d" % (TOT+q, EN+8*q+7))
    k("s_lshl_b32 s%d, s%d, 9" % (sT0, sI))
    k("v_lshlrev_b32 v%d, 5, v%d" % (vT[1], vM))
    k("s_mov_b64 exec, 0xffff")
    k("buffer_store_dwordx4 %s, v%d, s[%d:%d], s%d offen sc0 sc1" % (vr(TOT, 4), vT[1], SC, SC+3, sT0))
    k("buffer_store_dword v%d, v%d, s[%d:%d], s%d offen offset:16 sc0 sc1" % (TOT+4, vT[1], SC, SC+3, sT0))
    k("s_lshl_b32 s%d, s%d, 4\ns_add_u32 s%d, s%d, s%d" % (sT0, sT2, sT0, sT0, sI))
    k("v_mov_b32 v%d, s%d\nv_mov_b32 v%d, 1" % (vT[1], sT0, vT[2]))
    k("s_mov_b64 exec, 1")
    k("s_waitcnt vmcnt(0)")
    k("global_store_byte v%d, v%d, s[%d:%d] sc0 sc1" % (vT[1], vT[2], pDbg, pDbg+1))
    k("s_mov_b64 exec, -1")
    k("L_k1_nopub:")
    stamp(k, 2)
    free = [E+i for i in range(5)]
    for t in range(16):
        nf = []
        for q in range(5): k("v_mul_f32 v%d, v%d, v%d" % (free[q], cKr+q, Z[q][t]))
        for q in range(5): k("v_fmac_f32_dpp v%d, v%d, v%d%s" % (free[q], Z[q][t], cKk+q, DPP))
        for q in range(5):
            nf.append(Z[q][t]); Z[q][t] = free[q]
        free = nf
    PW = E+8
    t0, t1 = E+60, E+61
    k("v_cvt_f32_u32 v%d, v%d\nv_mul_f32 v%d, %s, v%d" % (E+62, vG, E+62, f32(128.0), E+62))
    k("v_cvt_f32_u32 v%d, v%d\nv_mul_f32 v%d, %s, v%d" % (E+63, vT[0], E+63, f32(16.0), E+63))
    for q in range(5):
        cpow(PW+q, PW+5+q, q, f32(512.0), t0, t1)
        cpow(PW+10+q, PW+15+q, q, "v%d" % (E+62), t0, t1)
        cpow(PW+20+q, PW+25+q, q, "v%d" % (E+63), t0, t1)
    for d in range(4):
        k("s_sub_i32 s%d, s%d, %d\ns_max_i32 s%d, s%d, 0\ns_min_i32 s%d, s%d, 4\ns_lshl_b32 s%d, s%d, 3" % (sT0, sI, 4*d, sT0, sT0, sT0, sT0, sT0, sT0))
        k("s_lshl_b64 s[14:15], 1, s%d\ns_sub_u32 s14, s14, 1\ns_and_b32 s%d, s14, 0x01010101" % (sT0, 72+d))
    k("s_lshl_b32 s%d, s%d, 4" % (sT0, sT2))
    k("v_mov_b32 v%d, s%d" % (vT[1], sT0))
    FL = E+64
    k("s_mov_b32 s%d, 0" % sIt)
    k("L_k1_poll:")
    k("global_load_dwordx4 %s, v%d, s[%d:%d] sc0 sc1" % (vr(FL, 4), vT[1], pDbg, pDbg+1))
    k("s_add_u32 s%d, s%d, 1" % (sIt, sIt))
    k("s_waitcnt vmcnt(0)")
    for d in range(4): k("v_readfirstlane_b32 s%d, v%d" % (9+d, FL+d))
    for d in range(4): k("s_andn2_b32 s%d, s%d, s%d" % (9+d, 72+d, 9+d))
    k("s_or_b32 s9, s9, s10\ns_or_b32 s11, s11, s12\ns_or_b32 s9, s9, s11")
    k("s_cbranch_scc0 L_k1_polled")
    k("s_cmp_lt_u32 s%d, 0x40000\ns_cbranch_scc0 L_k1_polled" % sIt)
    k("s_sleep 1\ns_branch L_k1_poll")
    k("L_k1_polled:")
    stamp(k, 3)
    k("s_sub_u32 s%d, s%d, 1" % (sT0, sI))
    k("v_sub_u32 v%d, s%d, v%d\nv_lshlrev_b32 v%d, 9, v%d\nv_lshl_add_u32 v%d, v%d, 5, v%d" % (vT[1], sT0, vG, vT[1], vT[1], vT[1], vM, vT[1]))
    k("s_lshl_b32 s%d, s%d, 3\ns_mul_i32 s%d, s%d, -12\ns_add_u32 s%d, s%d, 12" % (sT0, sMH, sT1, sMH, sT1, sT1))
    PR = E+40+8
    PR = E+48
    for u in range(4):
        k("v_subrev_u32 v%d, %d, v%d" % (vT[2], u*2048, vT[1]))
        k("v_add_u32 v%d, s%d, v%d\nv_add_u32 v%d, s%d, v%d" % (vT[3], sT0, vT[2], vT[4], sT1, vT[2]))
        k("buffer_load_dwordx3 %s, v%d, s[%d:%d], 0 offen sc0 sc1" % (vr(PR+6*u, 3), vT[3], SC, SC+3))
        k("buffer_load_dwordx2 %s, v%d, s[%d:%d], 0 offen sc0 sc1" % (vr(PR+6*u+4, 2), vT[4], SC, SC+3))
    pr = lambda u, q: PR+6*u+(q if q < 3 else q+1)
    k("s_waitcnt vmcnt(0)")
    for u in (2, 1, 0):
        for q in range(5): k("v_fmac_f32 v%d, v%d, v%d" % (pr(u, q), PW+q, pr(u+1, q)))
        for q in range(5): k("v_fmac_f32_dpp v%d, v%d, v%d%s" % (pr(u, q), pr(u+1, q), PW+5+q, DPP))
    for q in range(5): k("v_mul_f32 v%d, v%d, v%d" % (pr(1, q), PW+10+q, pr(0, q)))
    for q in range(5): k("v_fmac_f32_dpp v%d, v%d, v%d%s" % (pr(1, q), pr(0, q), PW+15+q, DPP))
    for sw in ("v_permlane16_swap_b32", "v_permlane32_swap_b32"):
        for q in range(5): k("v_mov_b32 v%d, v%d" % (pr(2, q), pr(1, q)))
        for q in range(5): k("%s v%d, v%d" % (sw, pr(1, q), pr(2, q)))
        for q in range(5): k("v_add_f32 v%d, v%d, v%d" % (pr(1, q), pr(1, q), pr(2, q)))
    for q in range(5): k("v_fmac_f32 v%d, v%d, v%d" % (MINE+q, PW+20+q, pr(1, q)))
    for q in range(5): k("v_fmac_f32_dpp v%d, v%d, v%d%s" % (MINE+q, pr(1, q), PW+25+q, DPP))
    for q in range(5): k("v_mul_f32 v%d, v%d, v%d" % (pr(0, q), cKr+q, MINE+q))
    for q in range(5): k("v_fmac_f32_dpp v%d, v%d, v%d%s" % (pr(0, q), MINE+q, cKk+q, DPP))
    PK = E+8
    for t in range(16):
        prev = [pr(0, q) if t == 0 else Z[q][t-1] for q in range(5)]
        for q in range(5): k("v_fmac_f32 v%d, v%d, v%d" % (Z[q][t], cLr+q, prev[q]))
        for q in range(5): k("v_fmac_f32_dpp v%d, v%d, v%d%s" % (Z[q][t], prev[q], cMu+q, DPP))
        if t & 1:
            for q in range(5): k("v_cvt_pk_bf16_f32 v%d, v%d, v%d" % (PK+8*q+(t >> 1), Z[q][t-1], Z[q][t]))
    k("s_lshl_b32 s%d, s%d, 1\ns_add_u32 s%d, s%d, s%d\ns_mul_i32 s%d, s%d, %d\ns_add_u32 s%d, s%d, %d" % (sT0, sMH, sT0, sT0, sNQ, sT0, sT0, 80*TRP, sT0, sT0, TRB))
    k("v_mul_u32_u24 v%d, %d, v%d\nv_lshl_add_u32 v%d, v%d, 5, v%d\nv_add_u32 v%d, s%d, v%d" % (vT[1], TRP, vM, vT[1], vG, vT[1], vT[1], sT0, vT[1]))
    for q in range(5):
        k("ds_write_b128 v%d, %s offset:%d\nds_write_b128 v%d, %s offset:%d" % (vT[1], vr(PK+8*q, 4), q*16*TRP, vT[1], vr(PK+8*q+4, 4), q*16*TRP+16))
    k("v_and_b32 v%d, 1, v%d\nv_lshrrev_b32 v%d, 2, v%d\nv_lshl_add_u32 v%d, v%d, 3, v%d\nv_mul_u32_u24 v%d, %d, v%d" % (vT[2], vG, vT[3], vM, vT[2], vT[2], vT[3], vT[2], TRP, vT[2]))
    k("v_and_b32 v%d, 3, v%d\nv_lshl_add_u32 v%d, v%d, 5, v%d" % (vT[3], vM, vT[2], vT[3], vT[2]))
    k("v_lshrrev_b32 v%d, 1, v%d\nv_lshl_add_u32 v%d, v%d, 3, v%d\nv_add_u32 v%d, s%d, v%d" % (vT[3], vG, vT[2], vT[3], vT[2], vT[2], sT0, vT[2]))
    k("v_and_b32 v%d, 31, v%d\nv_lshlrev_b32 v%d, 4, v%d\nv_lshl_add_u32 v%d, v%d, 10, v%d" % (vT[4], vL, vT[4], vT[4], vT[4], vT[3], vT[4]))
    k("s_lshl_b32 s%d, s%d, 1\ns_add_u32 s%d, s%d, s%d\ns_mul_i32 s%d, s%d, 88\ns_add_u32 s%d, s%d, 48\ns_lshl_b32 s%d, s%d, 12" % (sKS, sI, sKS, sKS, sMH, sKS, sKS, sKS, sKS, sKS, sKS))
    k("s_mul_i32 s%d, s%d, 10\ns_add_u32 s%d, s%d, s%d\ns_add_u32 s%d, s%d, s%d" % (sT0, sJJ, sOffP, sOffP, sT0, sOffQ, sOffQ, sT0))
    k("s_waitcnt lgkmcnt(0)")
    OUT = ACC
    for q in range(5):
        for bp in range(2):
            o = OUT + (q*2+bp)*4
            k("ds_read_b64_tr_b16 %s, v%d offset:%d\nds_read_b64_tr_b16 %s, v%d offset:%d" % (vr(o, 2), vT[2], q*16*TRP+bp*16, vr(o+2, 2), vT[2], q*16*TRP+bp*16+4*TRP))
        if q == 2: k("s_waitcnt lgkmcnt(4)")
    for q in range(5):
        k("s_add_u32 s%d, s%d, %d\ns_lshr_b32 s%d, s%d, 1\ns_lshl_b32 s%d, s%d, 12\ns_and_b32 s%d, s%d, 1\ns_lshl_b32 s%d, s%d, 9" % (sT0, sOffP if q < 3 else sOffQ, q, sT1, sT0, sT1, sT1, sT0, sT0, sT0, sT0))
        k("s_add_u32 s%d, s%d, s%d\ns_add_u32 s%d, s%d, s%d" % (sT0, sT0, sT1, sT0, sT0, sKS))
        k("s_waitcnt lgkmcnt(%d)" % min(15, 16-4*q))
        for bp in range(2):
            o = OUT + (q*2+bp)*4
            k("buffer_store_dwordx4 %s, v%d, s[%d:%d], s%d offen offset:%d" % (vr(o, 4), vT[4], SA2, SA2+3, sT0, bp*2048))
    stamp(k, 4)
    stamp_out(k, 0, 8, pWs, FS[0])
    k("L_k1_end:")
    k("s_endpgm")
    return k

def gen_k2():
    k = Kern("k2_kernel")
    DEPTH = 6; NS = 22
    sW, sMI, sNI = 3, 4, 5
    SA, SB, SXr, SO = 48, 52, 56, 60
    k("s_cmp_ge_u32 s2, 256\ns_cbranch_scc1 L_k2_end")
    stamp(k, 0)
    k("s_load_dwordx16 s[16:31], s[0:1], 0\ns_load_dwordx16 s[32:47], s[0:1], 64")
    k("s_and_b32 s6, s2, 7\ns_lshr_b32 s7, s2, 3")
    k("s_lshr_b32 s%d, s6, 1\ns_lshl_b32 s%d, s%d, 3\ns_and_b32 s8, s7, 7\ns_add_u32 s%d, s%d, s8" % (sMI, sMI, sMI, sMI, sMI))
    k("s_and_b32 s%d, s6, 1\ns_lshl_b32 s%d, s%d, 2\ns_lshr_b32 s8, s7, 3\ns_add_u32 s%d, s%d, s8" % (sNI, sNI, sNI, sNI, sNI))
    k("v_lshrrev_b32 v2, 6, v0\nv_and_b32 v1, 63, v0")
    k("v_readfirstlane_b32 s%d, v2" % sW)
    k("v_lshlrev_b32 v2, 4, v1\nv_add_u32 v3, 4096, v2")
    k("s_mul_i32 s6, s%d, %d\ns_mul_i32 s7, s%d, %d\ns_add_u32 s6, s6, s7" % (sMI, 88*4096, sW, 22*4096))
    k("s_mul_i32 s8, s%d, %d\ns_mul_i32 s7, s%d, %d\ns_add_u32 s8, s8, s7\ns_add_u32 s8, s8, %d" % (sNI, 88*5120, sW, 22*5120, B2_OFF))
    k("s_waitcnt lgkmcnt(0)")
    srd(k, SA, pWs, 22*4096, "s6")
    srd(k, SB, pWs, 22*5120, "s8")
    VB = 48
    def reg(buf, f):
        idx = buf*36 + f*4
        if VB + idx + 4 <= 256: return "v[%d:%d]" % (VB+idx, VB+idx+3)
        idx = idx - (256-VB) + 80
        return "a[%d:%d]" % (idx, idx+3)
    def loads(step):
        b = step % DEPTH
        o = ["s_mov_b32 s9, %d\ns_mov_b32 s10, %d" % (step*4096, step*5120)]
        for f in range(4): o.append("buffer_load_dwordx4 %s, v2, s[%d:%d], s9 offen offset:%d" % (reg(b, f), SA, SA+3, f*1024))
        for f in range(4): o.append("buffer_load_dwordx4 %s, v2, s[%d:%d], s10 offen offset:%d" % (reg(b, 4+f), SB, SB+3, f*1024))
        o.append("buffer_load_dwordx4 %s, v3, s[%d:%d], s10 offen" % (reg(b, 8), SB, SB+3))
        return o
    for s in range(2):
        for x in loads(s): k(x)
    k("v_and_b32 v4, 15, v1\nv_lshrrev_b32 v5, 4, v1")
    k("v_lshrrev_b32 v6, 2, v4\nv_lshlrev_b32 v6, 4, v6\nv_and_b32 v7, 3, v4")
    k("s_lshl_b32 s6, s%d, 6\ns_lshl_b32 s7, s%d, 2\ns_add_u32 s6, s6, s7" % (sMI, sW))
    k("v_add3_u32 v6, v6, v7, s6")
    k("s_mul_i32 s7, s%d, 80" % sNI)
    k("v_lshl_add_u32 v7, v5, 2, s7")
    k("v_mul_u32_u24 v8, 640, v6\nv_add_u32 v8, v8, v7")
    k("v_lshlrev_b32 v9, 1, v8\nv_lshlrev_b32 v8, 2, v8\nv_lshlrev_b32 v7, 1, v7")
    k("v_lshlrev_b32 v6, 3, v6\nv_add_u32 v6, 0x%x, v6" % ST_OFF)
    XR, DR, ST = 10, 20, 30
    for cb in range(5):
        k("global_load_dwordx2 v[%d:%d], v9, s[%d:%d] offset:%d" % (XR+2*cb, XR+2*cb+1, pX, pX+1, cb*32))
        k("global_load_dwordx2 v[%d:%d], v7, s[%d:%d] offset:%d" % (DR+2*cb, DR+2*cb+1, pD, pD+1, cb*32))
    k("global_load_dwordx2 v[%d:%d], v6, s[%d:%d]" % (ST, ST+1, pWs, pWs+1))
    NX = 11
    for s in range(2, DEPTH-1):
        for x in loads(s): k(x)
    srd(k, SO, pOut, 2048*640*4)
    k("s_mov_b32 s13, 0xffff0000")
    ABASE = 130
    base_ops = []
    for cb in range(5):
        o = []
        X4, D4, T4 = 32, 36, 40
        for h in range(2):
            o += ["v_lshlrev_b32 v%d, 16, v%d" % (X4+2*h, XR+2*cb+h), "v_and_b32 v%d, s13, v%d" % (X4+2*h+1, XR+2*cb+h),
                  "v_lshlrev_b32 v%d, 16, v%d" % (D4+2*h, DR+2*cb+h), "v_and_b32 v%d, s13, v%d" % (D4+2*h+1, DR+2*cb+h)]
        def rnd():
            r = []
            for h in range(2): r.append("v_cvt_pk_bf16_f32 v%d, v%d, v%d" % (T4+4+h, T4+2*h, T4+2*h+1))
            for h in range(2): r += ["v_lshlrev_b32 v%d, 16, v%d" % (T4+2*h, T4+4+h), "v_and_b32 v%d, s13, v%d" % (T4+2*h+1, T4+4+h)]
            return r
        for r in range(4): o.append("v_sub_f32 v%d, v%d, v%d" % (T4+r, X4+r, ST))
        o += rnd()
        for r in range(4): o.append("v_mul_f32 v%d, v%d, v%d" % (T4+r, T4+r, ST+1))
        o += rnd()
        for r in range(4): o.append("v_mul_f32 v%d, v%d, v%d" % (T4+r, T4+r, D4+r))
        o += rnd()
        for r in range(4): o.append("v_add_f32 v%d, v%d, v%d" % (T4+r, T4+r, X4+r))
        for r in range(4): o.append("v_accvgpr_write_b32 a%d, v%d" % (ABASE+cb*4+r, T4+r))
        base_ops.append(o)
    D1 = DEPTH-1
    for s in range(NS):
        nxt = s + D1
        ld = loads(nxt) if nxt < NS else []
        later = min(nxt-1, NS-1) - s
        n = later*9 + (NX if s < 2 else 0)
        if s == 1: n = later*9 + NX
        if s == 0: n = later*9 + NX
        k("s_waitcnt vmcnt(%d)" % min(n, 63))
        b = s % DEPTH
        mf = []
        for i in range(4):
            for j in range(5):
                c = (i*5+j)*4
                mf.append("v_mfma_f32_16x16x32_bf16 a[%d:%d], %s, %s, %s" % (c, c+3, reg(b, 4+j), reg(b, i), ("a[%d:%d]" % (c, c+3)) if s else "0"))
        fill = list(ld)
        if 3 <= s < 8: fill += base_ops[s-3]
        interleave(k, mf, fill, lead=len(ld))
    stamp(k, 1)
    k("s_mul_i32 s6, s%d, 20480" % sW)
    k("v_add_u32 v4, s6, v2")
    for t in range(20):
        k("ds_write_b128 v4, a[%d:%d] offset:%d" % (t*4, t*4+3, t*1024))
    k("s_mul_i32 s6, s%d, 5120" % sW)
    k("v_add_u32 v4, s6, v2\nv_add_u32 v5, 40960, v4")
    k("s_waitcnt lgkmcnt(0)\ns_barrier")
    R = VB
    for cb in range(5):
        for p in range(4):
            k("ds_read_b128 v[%d:%d], v%d offset:%d" % (R+(cb*4+p)*4, R+(cb*4+p)*4+3, 4 if p < 2 else 5, (p & 1)*20480+cb*1024))
        if cb == 2: k("s_waitcnt lgkmcnt(4)")
    for cb in range(5):
        for r in range(4): k("v_accvgpr_read_b32 v%d, a%d" % (32+r, ABASE+cb*4+r))
        k("s_waitcnt lgkmcnt(%d)" % min(15, 16-4*cb))
        q = R+cb*16
        for r in range(4): k("v_add_f32 v%d, v%d, v%d" % (q+r, q+r, q+4+r))
        for r in range(4): k("v_add_f32 v%d, v%d, v%d" % (q+8+r, q+8+r, q+12+r))
        for r in range(4): k("v_add_f32 v%d, v%d, v%d" % (q+r, q+r, 32+r))
        for r in range(4): k("v_add_f32 v%d, v%d, v%d" % (q+r, q+r, q+8+r))
        k("buffer_store_dwordx4 v[%d:%d], v8, s[%d:%d], 0 offen offset:%d" % (q, q+3, SO, SO+3, cb*64))
    stamp(k, 2)
    stamp_out(k, 1, 8, pWs, 32)
    k("L_k2_end:")
    k("s_endpgm")
    return k

if __name__ == "__main__":
    ref = open("parallel_sum__ssm_conv_s5__geglu_ffn__prompt.s.ref").read().split("\n")
    hdr = [l for l in ref if l.startswith(";") and "@launch" not in l and "Override" not in l and "grid=ceil" not in l]
    hdr += ["; @launch kernel=k1_kernel grid=(256,1,1) block=(512,1,1) lds=163840",
            "; @launch kernel=k2_kernel grid=(256,1,1) block=(256,1,1) lds=81920"]
    out = [a for a in sys.argv[1:] if not a.startswith("--")][0]
    open(out, "w").write(emit_file(hdr, [(gen_k1(), dict(vgpr=256, accum=256)), (gen_k2(), dict(vgpr=512, accum=256))]))
```

```python
import sys, struct, math
from asmgen import *

A2_OFF = 0
B2_OFF = 0xC00000
CAR_OFF = 0x1000000
RST_OFF = 0x1100000
SB_OFF = 0x1108000
SG_OFF = 0x1110000
STAMP_OFF = 0x1200000
WS_NREC = 0x1300000
SL = 53248
SPARE = 3*SL
STAT_M = SPARE
SFF = SPARE + 2048
PART = SPARE + 2048
TRB = 0
TRP = 144
ARG = sys.argv
STAMPS = "--stamps" in ARG
TRACE = "--trace" in ARG
def opt(name, default):
    for a in ARG:
        if a.startswith("--%s=" % name): return int(a.split("=")[1])
    return default

def f32(x): return "0x%08x" % struct.unpack("<I", struct.pack("<f", x))[0]
def vr(a, n=1): return "v%d" % a if n == 1 else "v[%d:%d]" % (a, a+n-1)
def sq(a): return "s[%d:%d]" % (a, a+3)
def sp(a): return "s[%d:%d]" % (a, a+1)
def ror(n): return " row_ror:%d row_mask:0xf bank_mask:0xf" % n
DPP = ror(8)
SC = " sc0 sc1"

class Alloc:
    def __init__(self, start): self.n = start
    def __call__(self, n=1, align=1):
        self.n = (self.n + align - 1)//align*align
        r = self.n; self.n += n; return r

def interleave(k, mf, fill, lead=0, per=None):
    for f in fill[:lead]: k(f)
    fill = fill[lead:]
    n = len(mf); done = 0
    for i, m in enumerate(mf):
        k(m)
        tgt = (len(fill)*(i+1) + n - 1)//n if per is None else per*(i+1)
        while done < min(tgt, len(fill)):
            k(fill[done]); done += 1
    while done < len(fill):
        k(fill[done]); done += 1

def srd(k, d, base, nrec, off=None):
    if off is None:
        k("s_mov_b32 s%d, s%d\ns_mov_b32 s%d, s%d" % (d, base, d+1, base+1))
    else:
        k("s_add_u32 s%d, s%d, %s\ns_addc_u32 s%d, s%d, 0" % (d, base, off, d+1, base+1))
    k("s_mov_b32 s%d, %s\ns_mov_b32 s%d, 0x20000" % (d+2, nrec, d+3))

def stamp(k, idx):
    if STAMPS: k("s_memrealtime s[%d:%d]" % (84+2*idx, 85+2*idx))
def stamp_out(k, kern, n, wsreg, vt):
    if not STAMPS: return
    k("s_waitcnt lgkmcnt(0)")
    for i in range(n): k("v_mov_b32 v%d, s%d" % (vt+i, 84+2*i))
    k("v_lshrrev_b32 v%d, 6, v0" % (vt+8))
    k("s_lshl_b32 s83, s2, 3")
    k("v_add_u32 v%d, s83, v%d" % (vt+8, vt+8))
    k("v_lshlrev_b32 v%d, 5, v%d" % (vt+8, vt+8))
    k("v_add_u32 v%d, 0x%x, v%d" % (vt+8, STAMP_OFF + kern*0x20000, vt+8))
    if TRACE and kern == 0:
        k("s_lshl_b32 s83, s2, 11\ns_add_u32 s83, s83, 0x%x\nv_lshl_add_u32 v%d, v0, 2, s83" % (STAMP_OFF + 0x40000, vt+9))
        k("global_store_dword v%d, v250, s[%d:%d]" % (vt+9, wsreg, wsreg+1))
    k("s_mov_b64 exec, 1")
    k("global_store_dwordx4 v%d, v[%d:%d], s[%d:%d]" % (vt+8, vt, vt+3, wsreg, wsreg+1))
    k("global_store_dwordx4 v%d, v[%d:%d], s[%d:%d] offset:16" % (vt+8, vt+4, vt+7, wsreg, wsreg+1))

pX, pLre, pLim, pBre, pBim, pCre, pCim, pLdt, pD, pBx, pG, pU, pDn, pOut, pDbg, pWs = [16+2*i for i in range(16)]
LOG2E = math.log2(math.e)

def gen_k1():
    k = Kern("k1_kernel")
    sW, sMH, sNQ, sI, sJJ, sTY = 3, 4, 5, 6, 7, 8
    sT0, sT1, sT2, sT3 = 9, 10, 11, 12
    sMASK = 13
    sPQ, sPR = 14, 15
    SX, SW0, SW1, SWS, SP0, SP1 = 48, 52, 56, 60, 64, 68
    sKx, sKw, sDst, sDelta, sIt, sRd, sWl, sXl, sKS, sDuty, sNon, sCol = range(72, 84)
    sU0, sU1 = 100, 101
    k("s_cmp_ge_u32 s2, 256\ns_cbranch_scc1 L_k1_end")
    k("s_load_dwordx16 s[16:31], s[0:1], 0\ns_load_dwordx16 s[32:47], s[0:1], 64")
    k("s_memrealtime s[100:101]")
    stamp(k, 0)
    va = Alloc(1)
    vL = va(); vM = va(); vG = va(); vII = va(); vSL = va()
    vT = [va() for _ in range(6)]
    vXo = va(); vWo = va()
    aX = [va(), va()]; aW = [va(), va()]
    FS = [va(36, 4), va(36, 4)]
    SLC = va(20, 4)
    ACC = va(80, 4)
    CONST = va(0)
    PKR = ACC + 64
    if TRACE: k("v_mov_b32 v250, 0")
    k("v_lshrrev_b32 v%d, 6, v0" % vT[0])
    k("v_and_b32 v%d, 63, v0" % vL)
    k("v_readfirstlane_b32 s%d, v%d" % (sW, vT[0]))
    k("v_and_b32 v%d, 15, v0\nv_lshrrev_b32 v%d, 4, v%d" % (vM, vG, vL))
    k("v_lshrrev_b32 v%d, 3, v%d\nv_and_b32 v%d, 7, v0" % (vII, vL, vSL))
    k("s_lshr_b32 s%d, s%d, 2" % (sMH, sW))
    k("s_lshl_b32 s%d, s%d, 1\ns_add_u32 s%d, s%d, s%d\ns_and_b32 s%d, s%d, 3" % (sT0, sMH, sNQ, sW, sT0, sNQ, sNQ))
    k("s_and_b32 s%d, s2, 7\ns_lshr_b32 s%d, s2, 3" % (sT0, sT1))
    k("s_lshr_b32 s%d, s%d, 2\ns_lshl_b32 s%d, s%d, 3\ns_and_b32 s%d, s%d, 7\ns_add_u32 s%d, s%d, s%d" % (sI, sT0, sI, sI, sT2, sT1, sI, sI, sT2))
    k("s_and_b32 s%d, s%d, 3\ns_lshl_b32 s%d, s%d, 2\ns_lshr_b32 s%d, s%d, 3\ns_add_u32 s%d, s%d, s%d" % (sJJ, sT0, sJJ, sJJ, sT2, sT1, sJJ, sJJ, sT2))
    k("s_and_b32 s%d, s%d, 1\ns_lshr_b32 s%d, s%d, 1" % (sTY, sJJ, sJJ, sJJ))
    k("s_mov_b32 s%d, 0xffff0000" % sMASK)
    k("s_add_u32 s%d, s%d, 3" % (sDuty, sMH))
    k("s_and_b32 s%d, s%d, 1" % (sT0, sW))
    k("s_lshr_b32 s%d, s%d, 1\ns_and_b32 s%d, s%d, 3" % (sT1, sW, sT1, sT1))
    k("s_lshl_b32 s%d, s%d, 7\ns_lshl_b32 s%d, s%d, 5\ns_add_u32 s%d, s%d, s%d" % (sT2, sI, sT3, sT0, sT2, sT2, sT3))
    k("s_lshl_b32 s%d, s%d, 2\ns_add_u32 s%d, s%d, s%d" % (sT3, sT1, sT2, sT2, sT3))
    k("v_lshrrev_b32 v%d, 2, v%d\nv_lshlrev_b32 v%d, 4, v%d\nv_and_b32 v%d, 3, v%d" % (vT[0], vII, vT[0], vT[0], vT[1], vII))
    k("v_add3_u32 v%d, v%d, v%d, s%d" % (vT[0], vT[0], vT[1], sT2))
    k("v_mul_u32_u24 v%d, 1280, v%d" % (vT[0], vT[0]))
    k("s_lshl_b32 s%d, s%d, 2" % (sT3, sT0))
    k("v_lshrrev_b32 v%d, 1, v%d\nv_or_b32 v%d, s%d, v%d\nv_xor_b32 v%d, v%d, v%d" % (vT[1], vII, vT[1], sT3, vT[1], vT[1], vT[1], vSL))
    k("v_lshl_add_u32 v%d, v%d, 4, v%d" % (vXo, vT[1], vT[0]))
    k("s_lshl_b32 s%d, s%d, 10" % (sXl, sW))
    k("v_lshrrev_b32 v%d, 1, v%d\nv_xor_b32 v%d, v%d, v%d\nv_lshlrev_b32 v%d, 4, v%d" % (vT[0], vM, vT[0], vT[0], vG, vT[0], vT[0]))
    k("v_lshl_add_u32 v%d, v%d, 7, v%d" % (vT[5], vM, vT[0]))
    k("s_lshl_b32 s%d, s%d, 13" % (sT0, sMH))
    k("v_add_u32 v%d, s%d, v%d\nv_xor_b32 v%d, 64, v%d" % (aX[0], sT0, vT[5], aX[1], aX[0]))
    k("s_mov_b32 s%d, 0\ns_mov_b32 s%d, 0\ns_mov_b32 s%d, 0\ns_mov_b32 s%d, 0\ns_mov_b32 s%d, 0" % (sKx, sKw, sDst, sIt, sRd))
    k("s_cmp_lt_u32 s%d, 2\ns_cselect_b32 s%d, s%d, 0\ns_cmp_eq_u32 s%d, 1\ns_cbranch_scc1 L_k1_ssm" % (sNQ, sT0, sTY, sT0))

    def common_srds():
        srd(k, SX, pX, 2048*1280)
        srd(k, SWS, pWs, WS_NREC)
    def dma_x():
        return ["s_add_u32 m0, s%d, s%d\ns_add_u32 s%d, s%d, 81920\nbuffer_load_dwordx4 v%d, %s, s%d offen lds" % (sDst, sXl, sT0, sKx, vXo, sq(SX), sKx),
                "s_add_u32 m0, m0, 8192\ns_nop 0\nbuffer_load_dwordx4 v%d, %s, s%d offen lds" % (vXo, sq(SX), sT0)]
    def dma_ffn():
        return dma_x() + [
            "s_add_u32 m0, s%d, s%d\ns_add_u32 s%d, s%d, 98304\nbuffer_load_dwordx4 v%d, %s, s%d offen lds" % (sDst, sWl, sT1, sKw, vWo, sq(SW0), sKw),
            "s_add_u32 m0, m0, 8192\ns_add_u32 s%d, s%d, 128\nbuffer_load_dwordx4 v%d, %s, s%d offen lds" % (sKx, sKx, vWo, sq(SW1), sKw),
            "s_add_u32 m0, m0, 4096\ns_add_u32 s%d, s%d, 196608\nbuffer_load_dwordx4 v%d, %s, s%d offen lds" % (sKw, sKw, vWo, sq(SW1), sT1),
            "s_sub_u32 m0, m0, 8192\ns_add_u32 s%d, s%d, %d\nbuffer_load_dwordx4 v%d, %s, s%d offen lds" % (sDst, sDst, SL, vWo, sq(SW0), sT1),
            "s_cmp_eq_u32 s%d, %d\ns_cselect_b32 s%d, 0, s%d" % (sDst, 3*SL, sDst, sDst)]
    def dma_ssm():
        o = dma_x()
        o.append("s_add_u32 m0, s%d, s%d\ns_add_u32 s%d, s%d, %d\nbuffer_load_dwordx4 v%d, %s, s%d offen lds" % (sDst, sWl, sDst, sDst, SL, vWo, sq(SW0), sKx))
        for q in range(1, 5):
            o.append("s_add_u32 m0, m0, 2048\ns_add_u32 s%d, s%d, %d\nbuffer_load_dwordx4 v%d, %s, s%d offen lds" % (sT1, sKx, q*10240, vWo, sq(SW0), sT1))
        o.append("s_add_u32 s%d, s%d, 128\ns_cmp_eq_u32 s%d, %d\ns_cselect_b32 s%d, 0, s%d" % (sKx, sKx, sDst, 3*SL, sDst, sDst))
        return o

    def nonce_publish():
        k("s_or_b32 s%d, s2, s%d\ns_cmp_lg_u32 s%d, 0\ns_cbranch_scc1 L_k1_nn" % (sT0, sW, sT0))
        k("s_or_b32 s%d, s100, 1" % sT0)
        k("v_mov_b32 v%d, s%d\nv_mov_b32 v%d, 0" % (vT[0], sT0, vT[1]))
        k("global_store_dword v%d, v%d, %s%s" % (vT[1], vT[0], sp(pDbg), SC))
        k("L_k1_nn:")

    def slice_loads():
        k("v_lshlrev_b32 v%d, 4, v%d\nv_lshlrev_b32 v%d, 2, v%d" % (vT[0], vL, vT[1], vL))
        k("s_lshl_b32 s%d, s2, 3\ns_add_u32 s%d, s%d, s%d\ns_mul_i32 s%d, s%d, 1280" % (sT0, sT0, sT0, sW, sT0, sT0))
        k("buffer_load_dwordx4 %s, v%d, %s, s%d offen" % (vr(SLC, 4), vT[0], sq(SX), sT0))
        k("buffer_load_dword v%d, v%d, %s, s%d offen offset:1024" % (SLC+16, vT[1], sq(SX), sT0))
        k("s_mul_i32 s%d, s2, 5\ns_add_u32 s%d, s%d, s%d" % (sT0, sT0, sT0, sW))
        k("s_cmp_lt_u32 s2, 128\ns_cselect_b32 s%d, s%d, s%d\ns_cselect_b32 s%d, s%d, s%d\ns_cselect_b32 s%d, 0, 640" % (SP1, pBre, pBim, SP1+1, pBre+1, pBim+1, sT1))
        k("s_sub_u32 s%d, s%d, s%d\ns_mul_i32 s%d, s%d, 1280" % (sT0, sT0, sT1, sT0, sT0))
        k("s_cmp_lt_u32 s%d, 5\ns_cselect_b32 s%d, %d, 0\ns_mov_b32 s%d, 0x20000" % (sW, SP1+2, 640*1280, SP1+3))
        k("buffer_load_dwordx4 %s, v%d, %s, s%d offen" % (vr(SLC+4, 4), vT[0], sq(SP1), sT0))
        k("buffer_load_dword v%d, v%d, %s, s%d offen offset:1024" % (SLC+17, vT[1], sq(SP1), sT0))
        k("s_mul_i32 s%d, s2, 1366\ns_lshr_b32 s%d, s%d, 16\ns_mul_i32 s%d, s%d, 48\ns_sub_u32 s%d, s2, s%d" % (sT0, sT0, sT0, sT1, sT0, sT1, sT1))
        k("s_cmp_lt_u32 s%d, 24\ns_cselect_b32 s%d, s%d, s%d\ns_cselect_b32 s%d, s%d, s%d\ns_cselect_b32 s%d, 0, 24" % (sT1, SP1, pG, pU, SP1+1, pG+1, pU+1, sT2))
        k("s_sub_u32 s%d, s%d, s%d\ns_lshl_b32 s%d, s%d, 7" % (sT1, sT1, sT2, sT1, sT1))
        k("s_lshl_b32 s%d, s%d, 3\ns_add_u32 s%d, s%d, s%d\ns_mul_i32 s%d, s%d, %d\ns_add_u32 s%d, s%d, s%d" % (sT0, sT0, sT0, sT0, sW, sT0, sT0, 16*3072, sT0, sT0, sT1))
        k("s_cmp_lt_u32 s2, 240\ns_cselect_b32 s%d, %d, 0" % (SP1+2, 640*3072))
        k("v_mul_u32_u24 v%d, 3072, v%d\nv_lshl_add_u32 v%d, v%d, 4, v%d" % (vT[0], vII, vT[0], vSL, vT[0]))
        k("s_add_u32 s%d, s%d, %d" % (sT1, sT0, 8*3072))
        k("buffer_load_dwordx4 %s, v%d, %s, s%d offen" % (vr(SLC+8, 4), vT[0], sq(SP1), sT0))
        k("buffer_load_dwordx4 %s, v%d, %s, s%d offen" % (vr(SLC+12, 4), vT[0], sq(SP1), sT1))
        return 6

    def bf16r(d, s):
        k("v_cvt_pk_bf16_f32 v%d, v%d, v%d\nv_lshlrev_b32 v%d, 16, v%d" % (d, s, s, d, d))
    def wave_sum(regs, tmp):
        for n in (8, 4, 2, 1):
            for r in regs: k("v_add_f32_dpp v%d, v%d, v%d%s" % (r, r, r, ror(n)))
        for sw in ("v_permlane16_swap_b32", "v_permlane32_swap_b32"):
            for r, t in zip(regs, tmp): k("v_mov_b32 v%d, v%d" % (t, r))
            for r, t in zip(regs, tmp): k("%s v%d, v%d" % (sw, r, t))
            for r, t in zip(regs, tmp): k("v_add_f32 v%d, v%d, v%d" % (r, r, t))

    def get_nonce(tag, vN):
        k("s_mov_b32 s%d, 0" % sT3)
        k("L_k1_gn_%s:" % tag)
        k("v_readfirstlane_b32 s%d, v%d" % (sNon, vN))
        k("s_add_u32 s%d, s%d, 1\ns_cmp_lg_u32 s%d, 0\ns_cbranch_scc1 L_k1_gnd_%s" % (sT3, sT3, sNon, tag))
        k("s_cmp_gt_u32 s%d, 0x40000\ns_cbranch_scc1 L_k1_gnd_%s" % (sT3, tag))
        k("v_mov_b32 v%d, 0" % vT[0])
        k("global_load_dword v%d, v%d, %s%s\ns_waitcnt vmcnt(0)\ns_branch L_k1_gn_%s" % (vN, vT[0], sp(pDbg), SC, tag))
        k("L_k1_gnd_%s:" % tag)

    def duty1(tag):
        T = FS[0]
        get_nonce(tag, SLC+18)
        k("v_and_b32 v%d, 1, v%d\nv_lshlrev_b32 v%d, 4, v%d\nv_lshlrev_b32 v%d, v%d, 0x3f80" % (T+32, vM, T+32, T+32, T+32, T+32) if False else
          "v_and_b32 v%d, 1, v%d\nv_lshlrev_b32 v%d, 4, v%d\nv_mov_b32 v%d, 0x3f80\nv_lshlrev_b32 v%d, v%d, v%d" % (T+32, vM, T+32, T+32, T+33, T+32, T+32, T+33))
        k("v_bfe_u32 v%d, v%d, 1, 2" % (T+33, vM))
        for d in range(4):
            k("v_cmp_eq_u32 vcc, %d, v%d\nv_cndmask_b32 v%d, 0, v%d, vcc" % (d, T+33, T+24+d, T+32))
        k("v_mfma_f32_16x16x32_bf16 %s, %s, %s, 0" % (vr(T+28, 4), vr(T+24, 4), vr(SLC+8, 4)))
        k("v_mfma_f32_16x16x32_bf16 %s, %s, %s, %s" % (vr(T+28, 4), vr(T+24, 4), vr(SLC+12, 4), vr(T+28, 4)))
        xs = [SLC, SLC+1, SLC+2, SLC+3, SLC+16]; bs = [SLC+4, SLC+5, SLC+6, SLC+7, SLC+17]
        for base, src in ((T, xs), (T+10, bs)):
            for d, r in enumerate(src):
                k("v_lshlrev_b32 v%d, 16, v%d\nv_and_b32 v%d, s%d, v%d" % (base+2*d, r, base+2*d+1, sMASK, r))
        A, B = T+20, T+21
        k("v_add_f32 v%d, v%d, v%d\nv_add_f32 v%d, v%d, v%d" % (A, T, T+1, B, T+10, T+11))
        for d in range(2, 10):
            k("v_add_f32 v%d, v%d, v%d\nv_add_f32 v%d, v%d, v%d" % (A, A, T+d, B, B, T+10+d))
        wave_sum([A, B], [T+22, T+23])
        for r in range(4): k("v_add_f32_dpp v%d, v%d, v%d%s" % (T+28+r, T+28+r, T+28+r, DPP))
        k("s_lshl_b32 s%d, s%d, 8\ns_add_u32 s%d, s%d, %d" % (sT0, sW, sT0, sT0, PART))
        k("v_and_b32 v%d, 1, v%d\nv_lshlrev_b32 v%d, 4, v%d\nv_lshl_add_u32 v%d, v%d, 5, v%d\nv_add_u32 v%d, s%d, v%d" % (T+32, vG, T+32, T+32, T+32, vSL, T+32, T+32, sT0, T+32))
        k("ds_write_b128 v%d, %s" % (T+32, vr(T+28, 4)))
        k("v_mov_b32 v%d, v%d\nv_mov_b32 v%d, s%d" % (T+10, B, T+11, sNon))
        k("s_mul_i32 s%d, s2, 5\ns_add_u32 s%d, s%d, s%d\ns_lshl_b32 s%d, s%d, 3\ns_add_u32 s%d, s%d, 0x%x" % (sT0, sT0, sT0, sW, sT0, sT0, sT0, sT0, SB_OFF))
        k("s_cmp_lt_u32 s%d, 5\ns_cselect_b32 s%d, s%d, 0x%x" % (sW, sT0, sT0, WS_NREC))
        k("v_mov_b32 v%d, s%d" % (T+12, sT0))
        k("v_mul_f32 v%d, %s, v%d" % (A, f32(1/640.), A))
        k("s_mov_b64 exec, 1")
        k("buffer_store_dwordx2 %s, v%d, %s, 0 offen%s" % (vr(T+10, 2), T+12, sq(SWS), SC))
        k("s_mov_b64 exec, -1")
        for d in range(10): k("v_sub_f32 v%d, v%d, v%d" % (T+d, T+d, A))
        k("v_mul_f32 v%d, v%d, v%d\nv_mul_f32 v%d, v%d, v%d" % (B, T, T, T+22, T+1, T+1))
        for d in range(2, 10, 2): k("v_fmac_f32 v%d, v%d, v%d\nv_fmac_f32 v%d, v%d, v%d" % (B, T+d, T+d, T+22, T+d+1, T+d+1))
        k("v_add_f32 v%d, v%d, v%d" % (B, B, T+22))
        wave_sum([B], [T+22])
        k("v_mul_f32 v%d, %s, v%d" % (B, f32(1/640.), B))
        bf16r(B, B)
        k("v_add_f32 v%d, %s, v%d" % (B, f32(1e-5), B))
        bf16r(B, B)
        k("v_sqrt_f32 v%d, v%d" % (B, B))
        k("v_cvt_pk_bf16_f32 v%d, v%d, v%d\nv_mov_b32 v%d, s%d" % (T+14, A, B, T+15, sNon))
        k("s_lshl_b32 s%d, s2, 3\ns_add_u32 s%d, s%d, s%d\ns_lshl_b32 s%d, s%d, 3\ns_add_u32 s%d, s%d, 0x%x" % (sT0, sT0, sT0, sW, sT0, sT0, sT0, sT0, RST_OFF))
        k("v_mov_b32 v%d, s%d" % (T+16, sT0))
        k("s_mov_b64 exec, 1")
        k("buffer_store_dwordx2 %s, v%d, %s, 0 offen%s" % (vr(T+14, 2), T+16, sq(SWS), SC))
        k("s_mov_b64 exec, -1")

    def duty2():
        T = FS[0]
        k("v_lshlrev_b32 v%d, 2, v%d\nv_add_u32 v%d, %d, v%d" % (T+8, vL, T+8, PART, T+8))
        for p in range(8): k("ds_read_b32 v%d, v%d offset:%d" % (T+p, T+8, p*256))
        k("s_lshl_b32 s%d, s2, 9\ns_add_u32 s%d, s%d, 0x%x\ns_cmp_lt_u32 s2, 240\ns_cselect_b32 s%d, s%d, 0x%x" % (sT0, sT0, sT0, SG_OFF, sT0, sT0, WS_NREC))
        k("v_lshl_add_u32 v%d, v%d, 3, s%d\nv_mov_b32 v%d, s%d" % (T+9, vL, sT0, T+11, sNon))
        k("s_waitcnt lgkmcnt(0)")
        for p in range(0, 8, 2): k("v_add_f32 v%d, v%d, v%d" % (T+p, T+p, T+p+1))
        k("v_add_f32 v%d, v%d, v%d\nv_add_f32 v%d, v%d, v%d\nv_add_f32 v%d, v%d, v%d" % (T, T, T+2, T+4, T+4, T+6, T+10, T, T+4))
        k("buffer_store_dwordx2 %s, v%d, %s, 0 offen%s" % (vr(T+10, 2), T+9, sq(SWS), SC))

    EI = SLC
    def ei_addr(ssm):
        k("s_lshl_b32 s%d, s%d, 1\ns_add_u32 s%d, s%d, s%d\ns_lshl_b32 s%d, s%d, 9\ns_add_u32 s%d, s%d, 0x%x" % (sT0, sI, sT0, sT0, sMH, sT0, sT0, sT0, sT0, RST_OFF))
        k("v_lshrrev_b32 v%d, 2, v%d\nv_lshlrev_b32 v%d, 4, v%d\nv_lshl_add_u32 v%d, v%d, 2, v%d" % (EI+12, vM, EI+12, EI+12, EI+12, vG, EI+12))
        k("v_and_b32 v%d, 3, v%d\nv_add_u32 v%d, v%d, v%d\nv_lshl_add_u32 v%d, v%d, 3, s%d" % (EI+13, vM, EI+12, EI+12, EI+13, EI+12, EI+12, sT0))
        if ssm:
            k("s_mul_i32 s%d, s%d, 80\ns_mul_i32 s%d, s%d, 40\ns_add_u32 s%d, s%d, s%d\ns_lshl_b32 s%d, s%d, 3\ns_add_u32 s%d, s%d, 0x%x" % (sT0, sJJ, sT1, sNQ, sT0, sT0, sT1, sT0, sT0, sT0, sT0, SB_OFF))
            k("v_lshrrev_b32 v%d, 3, v%d\nv_mul_u32_u24 v%d, 640, v%d\nv_add_u32 v%d, v%d, v%d\nv_lshl_add_u32 v%d, v%d, 3, s%d" % (EI+13, vM, EI+13, EI+13, EI+13, EI+13, vSL, EI+13, EI+13, sT0))
        else:
            k("s_lshl_b32 s%d, s%d, 3\ns_add_u32 s%d, s%d, 0x%x" % (sT0, sCol, sT0, sT0, SG_OFF))
            k("v_lshrrev_b32 v%d, 5, v%d\nv_mul_u32_u24 v%d, 1504, v%d\nv_add_u32 v%d, v%d, v%d\nv_lshl_add_u32 v%d, v%d, 3, s%d" % (EI+13, vL, EI+13, EI+13, EI+13, EI+13, vL, EI+13, EI+13, sT0))
    def ei_loads(ssm):
        k("buffer_load_dwordx2 %s, v%d, %s, 0 offen%s" % (vr(EI, 2), EI+12, sq(SWS), SC))
        for p in range(5):
            if ssm: k("buffer_load_dwordx2 %s, v%d, %s, 0 offen offset:%d%s" % (vr(EI+2+2*p, 2), EI+13, sq(SWS), p*64, SC))
            else:
                k("s_mov_b32 s%d, %d" % (sT0, p*3072*8))
                k("buffer_load_dwordx2 %s, v%d, %s, s%d offen%s" % (vr(EI+2+2*p, 2), EI+13, sq(SWS), sT0, SC))
    def ei_process(tag, ssm):
        T = FS[0]
        k("s_mov_b32 s%d, 0" % sT3)
        k("L_k1_ei_%s:" % tag)
        k("v_xor_b32 v%d, s%d, v%d" % (T, sNon, EI+1))
        for p in range(5): k("v_xor_b32 v%d, s%d, v%d\nv_or_b32 v%d, v%d, v%d" % (T+1, sNon, EI+3+2*p, T, T, T+1))
        k("v_cmp_ne_u32 vcc, 0, v%d" % T)
        k("s_add_u32 s%d, s%d, 1" % (sT3, sT3))
        k("s_cbranch_vccz L_k1_eid_%s" % tag)
        k("s_cmp_gt_u32 s%d, 0x40000\ns_cbranch_scc1 L_k1_eid_%s" % (sT3, tag))
        ei_loads(ssm)
        k("s_waitcnt vmcnt(0)\ns_branch L_k1_ei_%s" % tag)
        k("L_k1_eid_%s:" % tag)
        k("v_lshlrev_b32 v%d, 16, v%d\nv_and_b32 v%d, s%d, v%d\nv_rcp_f32 v%d, v%d" % (T, EI, T+1, sMASK, EI, T+2, T+1))
        k("s_mul_i32 s%d, s%d, 768\ns_add_u32 s%d, s%d, %d" % (sT0, sMH, sT0, sT0, STAT_M))
        k("v_lshl_add_u32 v%d, v%d, 2, s%d" % (T+3, vL, sT0))
        k("ds_write_b32 v%d, v%d\nds_write_b32 v%d, v%d offset:256" % (T+3, T, T+3, T+2))
        if not ssm:
            k("ds_write_b32 v%d, v%d offset:512" % (T+3, T+1))
            k("v_add_f32 v%d, v%d, v%d\nv_add_f32 v%d, v%d, v%d\nv_add_f32 v%d, v%d, v%d\nv_add_f32 v%d, v%d, v%d" % (EI+2, EI+2, EI+4, EI+6, EI+6, EI+8, EI+2, EI+2, EI+10, EI+2, EI+2, EI+6))
            k("s_lshl_b32 s%d, s%d, 8\ns_add_u32 s%d, s%d, %d" % (sT0, sNQ, sT0, sT0, SFF))
            k("v_lshl_add_u32 v%d, v%d, 2, s%d" % (T+4, vL, sT0))
            k("ds_write_b32 v%d, v%d" % (T+4, EI+2))
        k("s_waitcnt lgkmcnt(0)")

    def main_loop(tag, ssm, NX, pack_duty, post_reads):
        nd = 7 if ssm else 6
        def reads(h):
            F = FS[h]; o = []
            xr = ["ds_read_b128 %s, v%d offset:%d" % (vr(F+4*b, 4), aX[h], b*2048) for b in range(4)]
            if ssm:
                wr = ["ds_read_b128 %s, v%d offset:%d" % (vr(F+16+4*q, 4), aW[h], q*2048) for q in range(5)]
            else:
                wr = ["ds_read_b64_tr_b16 %s, v%d offset:%d" % (vr(F+16+(cb*2+gu)*4+jx*2, 2), aW[cb], h*4096+jx*512+gu*8192)
                      for cb in range(2) for gu in range(2) for jx in range(2)]
            return xr[:1] + wr + xr[1:]
        def mfmas(h, first=False):
            F = FS[h]; o = []
            for b in range(4):
                for q in range(5 if ssm else 4):
                    c = ACC + (q*4+b)*4
                    X_, W_ = vr(F+4*b, 4), vr(F+16+4*q, 4)
                    o.append("v_mfma_f32_16x16x32_bf16 %s, %s, %s, %s" % ((vr(c,4), X_, W_, vr(c,4)) if ssm else (vr(c,4), W_, X_, vr(c,4))))
            return o
        dma = dma_ssm if ssm else dma_ffn
        L = "L_k1_loop_" + tag
        k("s_waitcnt vmcnt(%d)\ns_barrier" % (2*nd + NX))
        stamp(k, 5) if not TRACE else None
        for x in reads(0): k(x)
        k("s_branch %s_mid" % L)
        k("%s_sp:" % L)
        k("s_cmp_eq_u32 s%d, 2\ns_cbranch_scc0 %s_sp1" % (sIt, L))
        k("v_mov_b32 v%d, 0" % vT[0])
        k("global_load_dword v%d, v%d, %s%s" % (SLC+18, vT[0], sp(pDbg), SC))
        k("s_branch %s_top" % L)
        k("%s_sp1:" % L)
        k("s_cmp_eq_u32 s%d, s%d\ns_cbranch_scc0 %s_sp2" % (sIt, sDuty, L))
        duty1(tag)
        if pack_duty: pack_duty()
        k("s_branch %s_top" % L)
        k("%s_sp2:" % L)
        k("s_cmp_eq_u32 s%d, 8\ns_cbranch_scc0 %s_sp3" % (sIt, L))
        ei_addr(ssm)
        ei_loads(ssm)
        k("s_branch %s_top" % L)
        k("%s_sp3:" % L)
        k("s_cmp_eq_u32 s%d, 9\ns_cbranch_scc0 %s_sp4" % (sIt, L))
        ei_process(tag, ssm)
        k("s_branch %s_top" % L)
        k("%s_sp4:" % L)
        if not ssm:
            k("s_cmp_eq_u32 s%d, 5\ns_cbranch_scc0 %s_top\ns_cmp_eq_u32 s%d, 2\ns_cbranch_scc0 %s_top" % (sIt, L, sW, L))
            duty2()
        k("s_branch %s_top" % L)
        k(".p2align 6")
        k("%s:" % L)
        if TRACE:
            k("s_memrealtime s[96:97]\ns_lshl_b32 s98, s%d, 2\ns_add_u32 s98, s98, 3\ns_waitcnt lgkmcnt(0)\ns_mov_b32 m0, s98\ns_nop 0\nv_writelane_b32 v250, s96, m0" % sIt)
        k("s_waitcnt vmcnt(%d)" % (nd+NX))
        k("s_cmp_lt_u32 s%d, 3\ns_cbranch_scc1 %s_w" % (sIt, L))
        k("s_waitcnt vmcnt(%d)" % nd)
        k("s_cmp_lt_u32 s%d, 9\ns_cbranch_scc1 %s_w" % (sIt, L))
        k("s_waitcnt vmcnt(0)")
        k("%s_w:" % L)
        if TRACE:
            k("s_memrealtime s[96:97]\ns_lshl_b32 s98, s%d, 2\ns_waitcnt lgkmcnt(0)\ns_mov_b32 m0, s98\ns_nop 0\nv_writelane_b32 v250, s96, m0" % sIt)
        k("s_barrier")
        if TRACE:
            k("s_memrealtime s[96:97]\ns_memtime s[94:95]\ns_add_u32 s98, s98, 1\ns_waitcnt lgkmcnt(0)\ns_mov_b32 m0, s98\ns_nop 0\nv_writelane_b32 v250, s96, m0\ns_add_u32 m0, m0, 1\ns_nop 0\nv_writelane_b32 v250, s94, m0")
        k("s_bitcmp1_b32 %d, s%d\ns_cbranch_scc1 %s_sp" % (0x33c, sIt, L))
        k("%s_top:" % L)
        STAG = opt("stag", 1)
        rd0 = reads(0); rd1 = reads(1)
        adv = ["s_mov_b32 s%d, %d\ns_add_u32 s%d, s%d, 1\ns_cmp_eq_u32 s%d, 3\ns_cselect_b32 s%d, 0, s%d\ns_cselect_b32 s%d, %d, s%d" % (sDelta, SL, sRd, sRd, sRd, sRd, sRd, sDelta, (-2*SL) & 0xffffffff, sDelta)]
        adv += ["v_add_u32 v%d, s%d, v%d" % (r, sDelta, r) for r in aX + aW]
        def dma_block(which, lab):
            if which is None: k("s_cmp_lt_u32 s%d, 8\ns_cbranch_scc0 %s" % (sIt, lab))
            else: k("s_sub_u32 s%d, s%d, 1\ns_cmp_eq_u32 s%d, %d\ns_cselect_b32 s%d, s%d, 100\ns_cmp_lt_u32 s%d, 7\ns_cbranch_scc0 %s" % (sT0, sIt, sMH, which, sT0, sT0, sT0, lab))
            for x in dma(): k(x)
            k("%s:" % lab)
        m1 = mfmas(1); m0 = mfmas(0)
        nA = opt("na", 4)
        interleave(k, m1[:nA], rd0, lead=3, per=3)
        dma_block(0 if STAG else None, L+"_d0")
        for x in m1[nA:]: k(x)
        k("%s_mid:" % L)
        k("s_waitcnt lgkmcnt(0)")
        interleave(k, m0[:nA], rd1, lead=0, per=3)
        if STAG: dma_block(1, L+"_d1")
        interleave(k, m0[nA:], adv)
        k("s_add_u32 s%d, s%d, 1\ns_cmp_lt_u32 s%d, 10" % (sIt, sIt, sIt))
        k("s_waitcnt lgkmcnt(0)")
        k("s_cbranch_scc1 %s" % L)
        k("s_barrier")
        interleave(k, m1, post_reads(), lead=4, per=2)

    sE, sUN = sT0, sT1
    k("s_and_b32 s%d, s%d, 1\ns_lshl_b32 s%d, s%d, 1\ns_add_u32 s%d, s%d, s%d" % (sT3, sNQ, sE, sMH, sE, sE, sT3))
    k("s_lshr_b32 s%d, s%d, 1\ns_cmp_eq_u32 s%d, 0\ns_cselect_b32 s%d, s%d, 0" % (sUN, sNQ, sTY, sUN, sUN))
    k("s_lshl_b32 s14, s%d, 7\ns_lshl_b32 s15, s%d, 6\ns_add_u32 s14, s14, s15" % (sJJ, sUN))
    k("s_lshl_b32 s15, s%d, 6\ns_add_u32 s15, s15, 1024" % sJJ)
    k("s_cmp_eq_u32 s%d, 0\ns_cselect_b32 s%d, s14, s15" % (sTY, sT2))
    k("s_lshl_b32 s14, s%d, 5\ns_add_u32 s%d, s%d, s14" % (sT3, sCol, sT2))
    k("s_lshr_b32 s14, s%d, 5" % sCol)
    k("s_lshl_b32 s15, s%d, 1\ns_add_u32 s15, s15, s%d\ns_mul_i32 s15, s15, 88\ns_add_u32 s14, s14, s15\ns_lshl_b32 s%d, s14, 12" % (sI, sMH, sKS))
    k("s_lshl_b32 s14, s%d, 3" % sE)
    k("v_add_u32 v%d, s14, v%d\nv_mul_u32_u24 v%d, 3072, v%d" % (vT[0], vII, vT[0], vT[0]))
    k("s_lshl_b32 s14, s%d, 1" % sT3)
    k("v_bfe_u32 v%d, v%d, 1, 1\nv_or_b32 v%d, s14, v%d" % (vT[1], vII, vT[1], vT[1]))
    k("v_lshlrev_b32 v%d, 1, v%d\nv_xor_b32 v%d, v%d, v%d" % (vT[1], vT[1], vT[1], vT[1], vSL))
    k("v_lshl_add_u32 v%d, v%d, 4, v%d" % (vT[0], vT[1], vT[0]))
    k("s_lshl_b32 s15, s%d, 1" % sT2)
    k("v_add_u32 v%d, s15, v%d" % (vWo, vT[0]))
    k("s_lshl_b32 s%d, s%d, 14\ns_lshl_b32 s15, s%d, 10\ns_add_u32 s%d, s%d, s15\ns_add_u32 s%d, s%d, 16384" % (sT2, sUN, sE, sWl, sT2, sWl, sWl))
    k("v_lshrrev_b32 v%d, 2, v%d\nv_lshl_add_u32 v%d, v%d, 3, v%d\nv_lshlrev_b32 v%d, 7, v%d" % (vT[0], vM, vT[0], vG, vT[0], vT[0], vT[0]))
    k("v_and_b32 v%d, 1, v%d\nv_lshlrev_b32 v%d, 1, v%d\nv_lshrrev_b32 v%d, 3, v%d\nv_or_b32 v%d, v%d, v%d" % (vT[1], vG, vT[1], vT[1], vT[2], vM, vT[1], vT[1], vT[2]))
    k("v_xor_b32 v%d, s14, v%d\nv_lshl_add_u32 v%d, v%d, 5, v%d" % (vT[1], vT[1], vT[0], vT[1], vT[0]))
    k("v_and_b32 v%d, 3, v%d\nv_lshl_add_u32 v%d, v%d, 3, v%d" % (vT[1], vM, vT[0], vT[1], vT[0]))
    k("s_add_u32 s%d, s%d, 16384" % (sT2, sT2))
    k("v_add_u32 v%d, s%d, v%d\nv_xor_b32 v%d, 32, v%d" % (aW[0], sT2, vT[0], aW[1], aW[0]))
    k("s_lshl_b32 s14, s%d, 3\ns_add_u32 s14, s14, s%d\ns_lshl_b32 s14, s14, 2\ns_add_u32 s14, s14, s%d" % (sI, sJJ, sE))
    k("s_and_b32 s15, s%d, 2\ns_cmp_eq_u32 s%d, 1\ns_cselect_b32 s15, 0, s15\ns_cmp_eq_u32 s15, 0\ns_cselect_b32 s14, s14, 1000" % (sW, sTY))
    k("s_mul_i32 s%d, s14, 6554\ns_lshr_b32 s%d, s%d, 16\ns_mul_i32 s15, s%d, 10\ns_sub_u32 s15, s14, s15\ns_mov_b32 s14, s%d" % (sT3, sT3, sT3, sT3, sT3))
    k("s_waitcnt lgkmcnt(0)")
    common_srds()
    srd(k, SW0, pG, 640*3072)
    srd(k, SW1, pU, 640*3072)
    for s in range(3):
        for x in dma_ffn(): k(x)
    nonce_publish()
    NX = slice_loads()
    for r in range(0, 64, 2): k("v_mov_b64 v[%d:%d], 0" % (ACC+r, ACC+r+1))
    k("s_cmp_eq_u32 s%d, 1\ns_cbranch_scc1 L_k1_plC" % sTY)
    srd(k, SP0, pDn, 1536*1280)
    k("v_mul_u32_u24 v%d, 1280, v%d\nv_lshl_add_u32 v%d, v%d, 4, v%d" % (vT[0], vII, vT[0], vSL, vT[0]))
    k("s_mul_i32 s%d, s%d, 40960\ns_lshl_b32 s%d, s%d, 7\ns_add_u32 s%d, s%d, s%d" % (sT1, sPQ, sT2, sPR, sT1, sT1, sT2))
    k("s_cmp_lt_u32 s%d, 48\ns_cselect_b32 s%d, s%d, 0" % (sPQ, SP0+2, SP0+2))
    for a in range(4):
        k("buffer_load_dwordx4 %s, v%d, %s, s%d offen" % (vr(PKR+4*a, 4), vT[0], sq(SP0), sT1))
        if a < 3: k("s_add_u32 s%d, s%d, 10240" % (sT1, sT1))
    k("s_branch L_k1_pld")
    k("L_k1_plC:")
    srd(k, SP0, pCre, 640*1280)
    srd(k, SP1, pCim, 640*1280)
    k("v_mul_u32_u24 v%d, 1280, v%d\nv_lshl_add_u32 v%d, v%d, 4, v%d" % (vT[0], vM, vT[0], vG, vT[0]))
    k("s_mul_i32 s%d, s%d, 20480\ns_lshl_b32 s%d, s%d, 7\ns_add_u32 s%d, s%d, s%d" % (sT1, sPQ, sT2, sPR, sT1, sT1, sT2))
    k("s_cmp_lt_u32 s%d, 40\ns_cselect_b32 s%d, s%d, 0\ns_cselect_b32 s%d, s%d, 0" % (sPQ, SP0+2, SP0+2, SP1+2, SP1+2))
    for part in range(2):
        for hh in range(2):
            k("buffer_load_dwordx4 %s, v%d, %s, s%d offen offset:%d" % (vr(PKR+(part*2+hh)*4, 4), vT[0], sq(SP0 if part == 0 else SP1), sT1, hh*64))
    k("L_k1_pld:")
    NX += 4
    PSC = SC if "--packsc" in ARG else ""
    def pack_duty():
        T = FS[0]
        k("s_cmp_eq_u32 s%d, 1\ns_cbranch_scc1 L_k1_pdC" % sTY)
        k("s_cmp_ge_u32 s%d, 48\ns_cbranch_scc1 L_k1_pdd" % sPQ)
        k("s_and_b32 s%d, s%d, 1\ns_mul_i32 s%d, s%d, %d\ns_add_u32 s%d, s%d, 49152" % (sT2, sW, sT2, sT2, SL, sT2, sT2))
        k("v_lshlrev_b32 v%d, 4, v%d\nv_add_u32 v%d, s%d, v%d" % (T+33, vL, T+32, sT2, T+33))
        for a in range(4): k("ds_write_b128 v%d, %s offset:%d" % (T+32, vr(PKR+4*a, 4), a*1024))
        k("v_lshrrev_b32 v%d, 2, v%d\nv_lshl_add_u32 v%d, v%d, 2, v%d\nv_lshlrev_b32 v%d, 7, v%d" % (T+34, vM, T+34, vG, T+34, T+34, T+34))
        k("v_and_b32 v%d, 3, v%d\nv_lshl_add_u32 v%d, v%d, 3, v%d\nv_add_u32 v%d, s%d, v%d" % (T+35, vM, T+34, T+35, T+34, T+34, sT2, T+34))
        k("s_waitcnt lgkmcnt(0)")
        for c4 in range(4):
            k("ds_read_b64_tr_b16 %s, v%d offset:%d" % (vr(PKR+c4*4, 2), T+34, c4*32))
            k("ds_read_b64_tr_b16 %s, v%d offset:%d" % (vr(PKR+c4*4+2, 2), T+34, c4*32+2048))
        for c4 in range(4):
            k("s_lshl_b32 s%d, s%d, 2\ns_add_u32 s%d, s%d, %d\ns_mul_i32 s%d, s%d, 52\ns_lshr_b32 s%d, s%d, 8" % (sT0, sPR, sT0, sT0, c4, sT1, sT0, sT1, sT1))
            k("s_mul_i32 s%d, s%d, 435\ns_add_u32 s%d, s%d, s%d\ns_mul_i32 s%d, s%d, 5\ns_add_u32 s%d, s%d, s%d" % (sT1, sT1, sT1, sT1, sT0, sT0, sPQ, sT1, sT1, sT0))
            k("s_lshl_b32 s%d, s%d, 10\ns_add_u32 s%d, s%d, %d" % (sT1, sT1, sT1, sT1, B2_OFF))
            k("s_waitcnt lgkmcnt(%d)" % (6-2*c4))
            k("buffer_store_dwordx4 %s, v%d, %s, s%d offen%s" % (vr(PKR+c4*4, 4), T+33, sq(SWS), sT1, PSC))
        k("s_branch L_k1_pdd")
        k("L_k1_pdC:")
        k("s_cmp_ge_u32 s%d, 40\ns_cbranch_scc1 L_k1_pdd" % sPQ)
        k("v_lshrrev_b32 v%d, 1, v%d\nv_mul_u32_u24 v%d, 5120, v%d" % (T+33, vG, T+33, T+33))
        k("v_and_b32 v%d, 1, v%d\nv_lshl_add_u32 v%d, v%d, 5, v%d\nv_lshl_add_u32 v%d, v%d, 4, v%d" % (T+34, vG, T+34, T+34, vM, T+33, T+34, T+33))
        k("s_mul_i32 s%d, s%d, 52\ns_lshr_b32 s%d, s%d, 8\ns_mul_i32 s%d, s%d, 435\ns_add_u32 s%d, s%d, s%d" % (sT1, sPQ, sT1, sT1, sT1, sT1, sT1, sT1, sPQ))
        k("s_mul_i32 s%d, s%d, 20\ns_add_u32 s%d, s%d, s%d\ns_add_u32 s%d, s%d, 240\ns_lshl_b32 s%d, s%d, 10\ns_add_u32 s%d, s%d, %d" % (sT0, sPR, sT1, sT1, sT0, sT1, sT1, sT1, sT1, sT1, sT1, B2_OFF))
        k("s_add_u32 s%d, s%d, 10240" % (sT0, sT1))
        for r in range(8, 16): k("v_xor_b32 v%d, 0x80008000, v%d" % (PKR+r, PKR+r))
        for part in range(2):
            for hh in range(2):
                k("buffer_store_dwordx4 %s, v%d, %s, s%d offen offset:%d%s" % (vr(PKR+(part*2+hh)*4, 4), T+33, sq(SWS), sT0 if hh else sT1, part*256, PSC))
        k("L_k1_pdd:")
    E = FS[0]
    S4 = E
    Mb, RSb, Sb = E+16, E+20, E+24
    def post_ffn():
        o = ["s_lshl_b32 s%d, s%d, 8\ns_add_u32 s%d, s%d, %d\nv_lshl_add_u32 v%d, v%d, 4, s%d" % (sT0, sNQ, sT0, sT0, SFF, vT[1], vG, sT0),
             "s_mul_i32 s%d, s%d, 768\ns_add_u32 s%d, s%d, %d\nv_lshl_add_u32 v%d, v%d, 2, s%d" % (sT0, sMH, sT0, sT0, STAT_M, vT[2], vM, sT0)]
        for j in range(4): o.append("ds_read_b128 %s, v%d offset:%d" % (vr(S4+4*j, 4), vT[1], j*64))
        for b in range(0, 4, 2):
            for a, off in ((Mb, 0), (RSb, 64), (Sb, 128)):
                o.append("ds_read2_b32 %s, v%d offset0:%d offset1:%d" % (vr(a+b, 2), vT[2], off+b*16, off+b*16+16))
        c0 = -2*math.sqrt(2/math.pi)*LOG2E
        o += ["v_lshlrev_b32 v%d, 4, v%d" % (vT[3], vL), "s_mov_b32 s%d, %s\nv_mov_b32 v%d, %s" % (sT1, f32(c0*0.044715), vT[4], f32(c0))]
        return o
    main_loop("ffn", False, NX, pack_duty, post_ffn)
    stamp(k, 1)
    k("s_waitcnt lgkmcnt(0)")
    T = E+28
    O = SLC
    for b in range(4):
        R8 = [(cb, r) for cb in range(2) for r in range(4)]
        G = lambda cb, r: ACC + ((cb*2+0)*4+b)*4 + r
        U = lambda cb, r: ACC + ((cb*2+1)*4+b)*4 + r
        Tm = lambda cb, r: T + cb*4 + r
        for cb, r in R8: k("v_fma_f32 v%d, -v%d, v%d, v%d" % (G(cb,r), Mb+b, S4+cb*4+r, G(cb,r)))
        for cb, r in R8: k("v_mul_f32 v%d, v%d, v%d" % (G(cb,r), RSb+b, G(cb,r)))
        for cb, r in R8: k("v_mul_f32 v%d, v%d, v%d" % (Tm(cb,r), G(cb,r), G(cb,r)))
        for cb, r in R8: k("v_fma_f32 v%d, v%d, s%d, v%d" % (Tm(cb,r), Tm(cb,r), sT1, vT[4]))
        for cb, r in R8: k("v_mul_f32 v%d, v%d, v%d" % (Tm(cb,r), Tm(cb,r), G(cb,r)))
        for cb, r in R8:
            k("v_exp_f32 v%d, v%d" % (Tm(cb,r), Tm(cb,r)))
            k("v_fma_f32 v%d, -v%d, v%d, v%d" % (U(cb,r), Mb+b, S4+8+cb*4+r, U(cb,r)))
        for cb, r in R8: k("v_fma_f32 v%d, v%d, v%d, v%d" % (Tm(cb,r), Tm(cb,r), Sb+b, Sb+b))
        for cb, r in R8:
            k("v_rcp_f32 v%d, v%d" % (Tm(cb,r), Tm(cb,r)))
            k("v_mul_f32 v%d, v%d, v%d" % (G(cb,r), G(cb,r), U(cb,r)))
        for cb, r in R8: k("v_mul_f32 v%d, v%d, v%d" % (G(cb,r), G(cb,r), Tm(cb,r)))
        Ob = O + b*4
        for cb in range(2):
            k("v_cvt_pk_bf16_f32 v%d, v%d, v%d\nv_cvt_pk_bf16_f32 v%d, v%d, v%d" % (Ob+cb*2, G(cb,0), G(cb,1), Ob+cb*2+1, G(cb,2), G(cb,3)))
        k("buffer_store_dwordx4 %s, v%d, %s, s%d offen offset:%d" % (vr(Ob, 4), vT[3], sq(SWS), sKS, b*1024))
    stamp(k, 2)
    stamp_out(k, 0, 8, pWs, FS[0])
    k("s_endpgm")

    k("L_k1_ssm:")
    ca = Alloc(CONST)
    cLr = ca(5); cMu = ca(5); cKr = ca(5); cKk = ca(5); c16r = ca(5); c16k = ca(5)
    cA2 = ca(5); cBt = ca(5)
    XT = ca(0, 4)
    print("ssm regs: const end", ca.n, file=sys.stderr)
    k("s_mul_i32 s%d, s%d, 80\ns_mul_i32 s%d, s%d, 40\ns_add_u32 s%d, s%d, s%d" % (sT0, sJJ, sT1, sNQ, sT1, sT1, sT0))
    k("v_add_u32 v%d, s%d, v%d\nv_lshlrev_b32 v%d, 1, v%d" % (vT[0], sT1, vSL, vT[0], vT[0]))
    k("s_mul_i32 s%d, s%d, 40\ns_add_u32 s%d, s%d, s%d" % (sT1, sMH, sT1, sT1, sT0))
    k("v_add_u32 v%d, s%d, v%d\nv_mul_u32_u24 v%d, 1280, v%d" % (vT[2], sT1, vII, vT[2], vT[2]))
    k("s_lshl_b32 s%d, s%d, 2" % (sT1, sNQ))
    k("v_lshrrev_b32 v%d, 1, v%d\nv_or_b32 v%d, s%d, v%d\nv_xor_b32 v%d, v%d, v%d" % (vT[3], vII, vT[3], sT1, vT[3], vT[3], vT[3], vSL))
    k("v_lshl_add_u32 v%d, v%d, 4, v%d" % (vWo, vT[3], vT[2]))
    k("s_mul_i32 s%d, s%d, 10240\ns_lshl_b32 s%d, s%d, 10\ns_add_u32 s%d, s%d, s%d\ns_add_u32 s%d, s%d, 32768" % (sWl, sMH, sT1, sNQ, sWl, sWl, sT1, sWl, sWl))
    k("s_mul_i32 s%d, s%d, 10240\ns_add_u32 s%d, s%d, 32768" % (sT0, sNQ, sT0, sT0))
    k("v_add_u32 v%d, s%d, v%d\nv_xor_b32 v%d, 64, v%d" % (aW[0], sT0, vT[5], aW[1], aW[0]))
    k("v_lshrrev_b32 v%d, 3, v%d\nv_xor_b32 v%d, 1, v%d\nv_lshlrev_b32 v%d, 31, v%d" % (vT[4], vM, vT[4], vT[4], vT[4], vT[4]))
    k("s_waitcnt lgkmcnt(0)")
    P = FS[0]
    for q in range(5):
        for n, p in enumerate((pLre, pLim, pLdt)):
            k("global_load_ushort v%d, v%d, %s offset:%d" % (P+n*5+q, vT[0], sp(p), q*16))
    common_srds()
    k("s_cmp_eq_u32 s%d, 0\ns_cselect_b32 s%d, s%d, s%d\ns_cselect_b32 s%d, s%d, s%d" % (sNQ, SW0, pBre, pBim, SW0+1, pBre+1, pBim+1))
    k("s_mov_b32 s%d, %d\ns_mov_b32 s%d, 0x20000" % (SW0+2, 640*1280, SW0+3))
    for s in range(3):
        for x in dma_ssm(): k(x)
    NX = slice_loads()
    for r in range(0, 80, 2): k("v_mov_b64 v[%d:%d], 0" % (ACC+r, ACC+r+1))
    k("s_waitcnt vmcnt(%d)" % (21+NX))
    def cpow(dr, dk, q, n, t0, t1):
        k("v_mul_f32 v%d, %s, v%d\nv_mul_f32 v%d, %s, v%d" % (t0, n, cA2+q, t1, n, cBt+q))
        k("v_exp_f32 v%d, v%d\nv_rndne_f32 v%d, v%d\nv_sub_f32 v%d, v%d, v%d" % (t0, t0, dr, t1, t1, t1, dr))
        k("v_cos_f32 v%d, v%d\nv_sin_f32 v%d, v%d" % (dr, t1, dk, t1))
        k("v_mul_f32 v%d, v%d, v%d\nv_mul_f32 v%d, v%d, v%d" % (dr, dr, t0, dk, dk, t0))
    for q in range(5):
        lre, lim, ldt = P+q, P+5+q, P+10+q
        t0, t1 = P+16, P+17
        k("v_lshlrev_b32 v%d, 16, v%d\nv_lshlrev_b32 v%d, 16, v%d\nv_lshlrev_b32 v%d, 16, v%d" % (lre, lre, lim, lim, ldt, ldt))
        k("v_xor_b32 v%d, v%d, v%d" % (lim, lim, vT[4]))
        k("v_mul_f32 v%d, %s, v%d\nv_exp_f32 v%d, v%d" % (ldt, f32(LOG2E), ldt, ldt, ldt))
        bf16r(ldt, ldt)
        k("v_mul_f32 v%d, v%d, v%d\nv_mul_f32 v%d, v%d, v%d" % (cA2+q, ldt, lre, cBt+q, ldt, lim))
        k("v_mul_f32 v%d, %s, v%d\nv_mul_f32 v%d, %s, v%d" % (cA2+q, f32(LOG2E), cA2+q, cBt+q, f32(1/(2*math.pi)), cBt+q))
        cpow(cLr+q, cMu+q, q, "1.0", t0, t1)
        cpow(c16r+q, c16k+q, q, f32(16.0), t0, t1)
        k("v_add_f32 v%d, -1.0, v%d" % (t0, cLr+q))
        k("v_mul_f32 v%d, v%d, v%d\nv_fmac_f32 v%d, v%d, v%d" % (t1, lre, lre, t1, lim, lim))
        k("v_rcp_f32 v%d, v%d" % (t1, t1))
        k("v_mul_f32 v%d, v%d, v%d\nv_fmac_f32 v%d, v%d, v%d" % (cKr+q, t0, lre, cKr+q, cMu+q, lim))
        k("v_mul_f32 v%d, v%d, v%d\nv_fma_f32 v%d, -v%d, v%d, v%d" % (cKk+q, cMu+q, lre, cKk+q, t0, lim, cKk+q))
        k("v_add_f32 v%d, v%d, v%d" % (t1, t1, t1))
        k("v_mul_f32 v%d, v%d, v%d\nv_mul_f32 v%d, v%d, v%d" % (cKr+q, cKr+q, t1, cKk+q, cKk+q, t1))
    E = FS[0]
    assert FS[1] == FS[0]+36 and SLC == FS[1]+36
    M4, RS4 = E, E+16
    def post_ssm():
        o = ["s_mul_i32 s%d, s%d, 768\ns_add_u32 s%d, s%d, %d\nv_lshl_add_u32 v%d, v%d, 4, s%d" % (sT0, sMH, sT0, sT0, STAT_M, vT[3], vG, sT0)]
        for b in range(4):
            o.append("ds_read_b128 %s, v%d offset:%d\nds_read_b128 %s, v%d offset:%d" % (vr(M4+4*b, 4), vT[3], b*64, vr(RS4+4*b, 4), vT[3], 256+b*64))
        o.append("s_lshl_b32 s%d, s%d, 1\ns_add_u32 s%d, s%d, s%d\ns_lshl_b32 s%d, s%d, 14\ns_add_u32 s%d, s%d, 0x%x" % (sT2, sJJ, sT2, sT2, sNQ, sT0, sT2, sT0, sT0, CAR_OFF))
        o.append("s_add_u32 s%d, s%d, s%d\ns_addc_u32 s%d, s%d, 0\ns_mov_b32 s%d, 16384\ns_mov_b32 s%d, 0x20000" % (SP0, pWs, sT0, SP0+1, pWs+1, SP0+2, SP0+3))
        o.append("s_lshl_b32 s%d, s%d, 1\ns_add_u32 s%d, s%d, s%d" % (sKx, sI, sKx, sKx, sMH))
        for s in range(1, 4): o.append("v_cmp_eq_u32 %s, %d, v%d" % (sp(16+2*s), s, vG))
        return o
    main_loop("ssm", True, NX, None, post_ssm)
    stamp(k, 1)
    k("s_setprio 2")
    sC = sKx
    Sq = [EI+2+2*q for q in range(5)]
    Z = [[ACC + (q*4 + (t >> 2))*4 + (t & 3) for t in range(16)] for q in range(5)]
    H = [[XT+q, XT+5+q] for q in range(5)]
    k("s_waitcnt lgkmcnt(0)")
    for t in range(16):
        if t % 2 == 0:
            for q in range(5): k("v_pk_fma_f32 %s, %s, %s, %s op_sel_hi:[1,0,1] neg_lo:[1,0,0] neg_hi:[1,0,0]" % (vr(Z[q][t], 2), vr(M4+t, 2), vr(Sq[q], 2), vr(Z[q][t], 2)))
            for q in range(5): k("v_pk_mul_f32 %s, %s, %s" % (vr(Z[q][t], 2), vr(RS4+t, 2), vr(Z[q][t], 2)))
        if t >= 1:
            prev = [Z[q][0] if t == 1 else H[q][t & 1] for q in range(5)]
            cur = [H[q][(t+1) & 1] for q in range(5)]
            for q in range(5): k("v_fma_f32 v%d, v%d, v%d, v%d" % (cur[q], cLr+q, prev[q], Z[q][t]))
            for q in range(5): k("v_fmac_f32_dpp v%d, v%d, v%d%s" % (cur[q], prev[q], cMu+q, DPP))
    a_ = [H[q][0] for q in range(5)]; b_ = [H[q][1] for q in range(5)]
    c_ = [E+q for q in range(5)]
    TOT = E+8
    d_ = [TOT, TOT+1, TOT+2, TOT+4, TOT+5]
    MINE = XT+10
    for q in range(5): k("v_mov_b32 v%d, v%d" % (b_[q], a_[q]))
    for q in range(5): k("v_permlane16_swap_b32 v%d, v%d" % (a_[q], b_[q]))
    for q in range(5): k("v_mov_b32 v%d, v%d\nv_mov_b32 v%d, v%d" % (c_[q], a_[q], d_[q], b_[q]))
    for q in range(5): k("v_permlane32_swap_b32 v%d, v%d\nv_permlane32_swap_b32 v%d, v%d" % (a_[q], c_[q], b_[q], d_[q]))
    seq = [a_, b_, c_, d_]
    for s in range(1, 4):
        for q in range(5): k("v_fmac_f32 v%d, v%d, v%d" % (seq[s][q], c16r+q, seq[s-1][q]))
        for q in range(5): k("v_fmac_f32_dpp v%d, v%d, v%d%s" % (seq[s][q], seq[s-1][q], c16k+q, DPP))
    k("v_mov_b32 v%d, s%d\nv_mov_b32 v%d, s%d" % (TOT+3, sNon, TOT+7, sNon))
    k("s_lshl_b32 s%d, s%d, 9" % (sT0, sC))
    k("v_lshlrev_b32 v%d, 5, v%d" % (vT[1], vM))
    k("s_mov_b64 exec, 0xffff")
    k("buffer_store_dwordx4 %s, v%d, %s, s%d offen%s" % (vr(TOT, 4), vT[1], sq(SP0), sT0, SC))
    k("buffer_store_dwordx4 %s, v%d, %s, s%d offen offset:16%s" % (vr(TOT+4, 4), vT[1], sq(SP0), sT0, SC))
    k("s_mov_b64 exec, -1")
    stamp(k, 2)
    for q in range(5): k("v_cndmask_b32 v%d, 0, v%d, %s" % (MINE+q, a_[q], sp(18)))
    for q in range(5): k("v_cndmask_b32 v%d, v%d, v%d, %s" % (MINE+q, MINE+q, b_[q], sp(20)))
    for q in range(5): k("v_cndmask_b32 v%d, v%d, v%d, %s" % (MINE+q, MINE+q, c_[q], sp(22)))
    free = list(a_)
    for t in range(16):
        nf = []
        for q in range(5): k("v_mul_f32 v%d, v%d, v%d" % (free[q], cKr+q, Z[q][t]))
        for q in range(5): k("v_fmac_f32_dpp v%d, v%d, v%d%s" % (free[q], Z[q][t], cKk+q, DPP))
        for q in range(5):
            nf.append(Z[q][t]); Z[q][t] = free[q]
        free = nf
    PR = E+16
    k("s_sub_u32 s%d, s%d, 1" % (sT0, sC))
    k("v_sub_u32 v%d, s%d, v%d\nv_lshlrev_b32 v%d, 9, v%d\nv_lshl_add_u32 v%d, v%d, 5, v%d" % (vT[1], sT0, vG, vT[1], vT[1], vT[1], vM, vT[1]))
    def pred_loads():
        for u in range(8):
            if u: k("v_subrev_u32 v%d, %d, v%d" % (vT[2], u*2048, vT[1]))
            a = vT[2] if u else vT[1]
            k("buffer_load_dwordx4 %s, v%d, %s, 0 offen%s" % (vr(PR+8*u, 4), a, sq(SP0), SC))
            k("buffer_load_dwordx4 %s, v%d, %s, 0 offen offset:16%s" % (vr(PR+8*u+4, 4), a, sq(SP0), SC))
    pred_loads()
    t0, t1, n64, n16 = E, E+1, E+2, E+3
    k("v_cvt_f32_u32 v%d, v%d\nv_mul_f32 v%d, %s, v%d\nv_mul_f32 v%d, %s, v%d" % (n16, vG, n64, f32(64.0), n16, n16, f32(16.0), n16))
    for q in range(5):
        cpow(b_[q], free[q], q, f32(256.0), t0, t1)
        cpow(c16r+q, c16k+q, q, "v%d" % n64, t0, t1)
        cpow(E+80+q, E+85+q, q, "v%d" % n16, t0, t1)
    k("s_mov_b32 s%d, 0" % sT3)
    k("L_k1_poll:")
    k("s_waitcnt vmcnt(0)")
    k("v_mov_b32 v%d, 0" % t0)
    for u in range(8):
        k("v_xor_b32 v%d, s%d, v%d\nv_xor_b32 v%d, s%d, v%d\nv_or_b32 v%d, v%d, v%d" % (t1, sNon, PR+8*u+3, n64, sNon, PR+8*u+7, t1, t1, n64))
        k("v_cmp_le_i32 vcc, %d, v%d\nv_cndmask_b32 v%d, 0, v%d, vcc\nv_or_b32 v%d, v%d, v%d" % (u*2048, vT[1], t1, t1, t0, t0, t1))
    k("v_cmp_ne_u32 vcc, 0, v%d" % t0)
    k("s_add_u32 s%d, s%d, 1" % (sT3, sT3))
    k("s_cbranch_vccz L_k1_polled")
    k("s_cmp_gt_u32 s%d, 0x40000\ns_cbranch_scc1 L_k1_polled" % sT3)
    pred_loads()
    k("s_branch L_k1_poll")
    k("L_k1_polled:")
    stamp(k, 3)
    pr = lambda u, q: PR+8*u+(q if q < 3 else q+1)
    for u in range(6, -1, -1):
        for q in range(5): k("v_fmac_f32 v%d, v%d, v%d" % (pr(u, q), b_[q], pr(u+1, q)))
        for q in range(5): k("v_fmac_f32_dpp v%d, v%d, v%d%s" % (pr(u, q), pr(u+1, q), free[q], DPP))
    for q in range(5): k("v_mul_f32 v%d, v%d, v%d" % (pr(1, q), c16r+q, pr(0, q)))
    for q in range(5): k("v_fmac_f32_dpp v%d, v%d, v%d%s" % (pr(1, q), pr(0, q), c16k+q, DPP))
    for sw in ("v_permlane16_swap_b32", "v_permlane32_swap_b32"):
        for q in range(5): k("v_mov_b32 v%d, v%d" % (pr(2, q), pr(1, q)))
        for q in range(5): k("%s v%d, v%d" % (sw, pr(1, q), pr(2, q)))
        for q in range(5): k("v_add_f32 v%d, v%d, v%d" % (pr(1, q), pr(1, q), pr(2, q)))
    for q in range(5): k("v_fmac_f32 v%d, v%d, v%d" % (MINE+q, E+80+q, pr(1, q)))
    for q in range(5): k("v_fmac_f32_dpp v%d, v%d, v%d%s" % (MINE+q, pr(1, q), E+85+q, DPP))
    for q in range(5): k("v_mul_f32 v%d, v%d, v%d" % (pr(0, q), cKr+q, MINE+q))
    for q in range(5): k("v_fmac_f32_dpp v%d, v%d, v%d%s" % (pr(0, q), MINE+q, cKk+q, DPP))
    PK = E+32
    k("s_lshl_b32 s%d, s%d, 1\ns_add_u32 s%d, s%d, s%d\ns_mul_i32 s%d, s%d, %d\ns_add_u32 s%d, s%d, %d" % (sT0, sMH, sT0, sT0, sNQ, sT0, sT0, 80*TRP, sT0, sT0, TRB))
    k("v_mul_u32_u24 v%d, %d, v%d\nv_lshl_add_u32 v%d, v%d, 5, v%d\nv_add_u32 v%d, s%d, v%d" % (vT[1], TRP, vM, vT[1], vG, vT[1], vT[1], sT0, vT[1]))
    for t in range(16):
        prev = [pr(0, q) if t == 0 else Z[q][t-1] for q in range(5)]
        for q in range(5): k("v_fmac_f32 v%d, v%d, v%d" % (Z[q][t], cLr+q, prev[q]))
        for q in range(5): k("v_fmac_f32_dpp v%d, v%d, v%d%s" % (Z[q][t], prev[q], cMu+q, DPP))
        if t & 1:
            for q in range(5): k("v_cvt_pk_bf16_f32 v%d, v%d, v%d" % (PK+8*q+(t >> 1), Z[q][t-1], Z[q][t]))
        if t == 8:
            for q in range(5): k("ds_write_b128 v%d, %s offset:%d" % (vT[1], vr(PK+8*q, 4), q*16*TRP))
    for q in range(5): k("ds_write_b128 v%d, %s offset:%d" % (vT[1], vr(PK+8*q+4, 4), q*16*TRP+16))
    k("v_and_b32 v%d, 1, v%d\nv_lshrrev_b32 v%d, 2, v%d\nv_lshl_add_u32 v%d, v%d, 3, v%d\nv_mul_u32_u24 v%d, %d, v%d" % (vT[2], vG, vT[3], vM, vT[2], vT[2], vT[3], vT[2], TRP, vT[2]))
    k("v_and_b32 v%d, 3, v%d\nv_lshl_add_u32 v%d, v%d, 5, v%d" % (vT[3], vM, vT[2], vT[3], vT[2]))
    k("v_lshrrev_b32 v%d, 1, v%d\nv_lshl_add_u32 v%d, v%d, 3, v%d\nv_add_u32 v%d, s%d, v%d" % (vT[3], vG, vT[2], vT[3], vT[2], vT[2], sT0, vT[2]))
    k("v_and_b32 v%d, 31, v%d\nv_lshlrev_b32 v%d, 4, v%d\nv_lshl_add_u32 v%d, v%d, 10, v%d" % (vT[4], vL, vT[4], vT[4], vT[4], vT[3], vT[4]))
    k("s_mul_i32 s%d, s%d, 88\ns_add_u32 s%d, s%d, 48\ns_lshl_b32 s%d, s%d, 12" % (sKS, sC, sKS, sKS, sKS, sKS))
    k("s_mul_i32 s%d, s%d, 10\ns_mul_i32 s%d, s%d, 5\ns_add_u32 s%d, s%d, s%d" % (sT2, sJJ, sT0, sNQ, sT2, sT2, sT0))
    k("s_waitcnt lgkmcnt(0)")
    OUT = ACC
    for bp in range(2):
        if bp: k("s_waitcnt lgkmcnt(5)")
        for q in range(5):
            o = OUT + (q*2+bp)*4
            k("ds_read_b64_tr_b16 %s, v%d offset:%d\nds_read_b64_tr_b16 %s, v%d offset:%d" % (vr(o, 2), vT[2], q*16*TRP+bp*16, vr(o+2, 2), vT[2], q*16*TRP+bp*16+4*TRP))
    for q in range(5):
        k("s_add_u32 s%d, s%d, %d\ns_lshr_b32 s%d, s%d, 1\ns_lshl_b32 s%d, s%d, 12\ns_and_b32 s%d, s%d, 1\ns_lshl_b32 s%d, s%d, 9" % (sT0, sT2, q, sT1, sT0, sT1, sT1, sT0, sT0, sT0, sT0))
        k("s_add_u32 s%d, s%d, s%d\ns_add_u32 s%d, s%d, s%d" % (sT0, sT0, sT1, 72+q, sT0, sKS))
    for bp in range(2):
        for q in range(5):
            k("s_waitcnt lgkmcnt(%d)" % min(15, 18-2*(bp*5+q)))
            o = OUT + (q*2+bp)*4
            k("buffer_store_dwordx4 %s, v%d, %s, s%d offen offset:%d" % (vr(o, 4), vT[4], sq(SWS), 72+q, bp*2048))
    stamp(k, 4)
    stamp_out(k, 0, 8, pWs, FS[0])
    k("L_k1_end:")
    k("s_endpgm")
    assert XT + 15 <= 256
    return k

def gen_k2():
    k = Kern("k2_kernel")
    DEPTH = 6; NS = 22
    sW, sMI, sNI = 3, 4, 5
    SA, SB, SXr, SO = 48, 52, 56, 60
    k("s_cmp_ge_u32 s2, 256\ns_cbranch_scc1 L_k2_end")
    stamp(k, 0)
    k("s_load_dwordx16 s[16:31], s[0:1], 0\ns_load_dwordx16 s[32:47], s[0:1], 64")
    k("s_and_b32 s6, s2, 7\ns_lshr_b32 s7, s2, 3")
    k("s_lshr_b32 s%d, s6, 1\ns_lshl_b32 s%d, s%d, 3\ns_and_b32 s8, s7, 7\ns_add_u32 s%d, s%d, s8" % (sMI, sMI, sMI, sMI, sMI))
    k("s_and_b32 s%d, s6, 1\ns_lshl_b32 s%d, s%d, 2\ns_lshr_b32 s8, s7, 3\ns_add_u32 s%d, s%d, s8" % (sNI, sNI, sNI, sNI, sNI))
    k("v_lshrrev_b32 v2, 6, v0\nv_and_b32 v1, 63, v0")
    k("v_readfirstlane_b32 s%d, v2" % sW)
    k("v_lshlrev_b32 v2, 4, v1\nv_add_u32 v3, 4096, v2")
    k("s_mul_i32 s6, s%d, %d\ns_mul_i32 s7, s%d, %d\ns_add_u32 s6, s6, s7" % (sMI, 88*4096, sW, 22*4096))
    k("s_mul_i32 s8, s%d, %d\ns_mul_i32 s7, s%d, %d\ns_add_u32 s8, s8, s7\ns_add_u32 s8, s8, %d" % (sNI, 88*5120, sW, 22*5120, B2_OFF))
    k("s_waitcnt lgkmcnt(0)")
    srd(k, SA, pWs, 22*4096, "s6")
    srd(k, SB, pWs, 22*5120, "s8")
    VB = 48
    def reg(buf, f):
        idx = buf*36 + f*4
        if VB + idx + 4 <= 256: return "v[%d:%d]" % (VB+idx, VB+idx+3)
        idx = idx - (256-VB) + 80
        return "a[%d:%d]" % (idx, idx+3)
    def loads(step):
        b = step % DEPTH
        o = ["s_mov_b32 s9, %d\ns_mov_b32 s10, %d" % (step*4096, step*5120)]
        for f in range(4): o.append("buffer_load_dwordx4 %s, v2, %s, s9 offen offset:%d" % (reg(b, f), sq(SA), f*1024))
        for f in range(4): o.append("buffer_load_dwordx4 %s, v2, %s, s10 offen offset:%d" % (reg(b, 4+f), sq(SB), f*1024))
        o.append("buffer_load_dwordx4 %s, v3, %s, s10 offen" % (reg(b, 8), sq(SB)))
        return o
    for s in range(2):
        for x in loads(s): k(x)
    k("v_and_b32 v4, 15, v1\nv_lshrrev_b32 v5, 4, v1")
    k("v_lshrrev_b32 v6, 2, v4\nv_lshlrev_b32 v6, 4, v6\nv_and_b32 v7, 3, v4")
    k("s_lshl_b32 s6, s%d, 6\ns_lshl_b32 s7, s%d, 2\ns_add_u32 s6, s6, s7" % (sMI, sW))
    k("v_add3_u32 v6, v6, v7, s6")
    k("s_mul_i32 s7, s%d, 80" % sNI)
    k("v_lshl_add_u32 v7, v5, 2, s7")
    k("v_mul_u32_u24 v8, 640, v6\nv_add_u32 v8, v8, v7")
    k("v_lshlrev_b32 v9, 1, v8\nv_lshlrev_b32 v8, 2, v8\nv_lshlrev_b32 v7, 1, v7")
    k("v_lshlrev_b32 v6, 3, v6\nv_add_u32 v6, 0x%x, v6" % RST_OFF)
    XR, DR, ST = 10, 20, 30
    for cb in range(5):
        k("global_load_dwordx2 v[%d:%d], v9, %s offset:%d" % (XR+2*cb, XR+2*cb+1, sp(pX), cb*32))
        k("global_load_dwordx2 v[%d:%d], v7, %s offset:%d" % (DR+2*cb, DR+2*cb+1, sp(pD), cb*32))
    k("global_load_dword v%d, v6, %s" % (ST, sp(pWs)))
    NX = 11
    for s in range(2, DEPTH-1):
        for x in loads(s): k(x)
    srd(k, SO, pOut, 2048*640*4)
    k("s_mov_b32 s13, 0xffff0000")
    ABASE = 130
    base_ops = []
    for cb in range(5):
        o = []
        if cb == 0: o += ["v_and_b32 v%d, s13, v%d" % (ST+1, ST), "v_lshlrev_b32 v%d, 16, v%d" % (ST, ST), "v_rcp_f32 v%d, v%d" % (ST+1, ST+1)]
        X4, D4, T4 = 32, 36, 40
        for h in range(2):
            o += ["v_lshlrev_b32 v%d, 16, v%d" % (X4+2*h, XR+2*cb+h), "v_and_b32 v%d, s13, v%d" % (X4+2*h+1, XR+2*cb+h),
                  "v_lshlrev_b32 v%d, 16, v%d" % (D4+2*h, DR+2*cb+h), "v_and_b32 v%d, s13, v%d" % (D4+2*h+1, DR+2*cb+h)]
        def rnd():
            r = []
            for h in range(2): r.append("v_cvt_pk_bf16_f32 v%d, v%d, v%d" % (T4+4+h, T4+2*h, T4+2*h+1))
            for h in range(2): r += ["v_lshlrev_b32 v%d, 16, v%d" % (T4+2*h, T4+4+h), "v_and_b32 v%d, s13, v%d" % (T4+2*h+1, T4+4+h)]
            return r
        for r in range(4): o.append("v_sub_f32 v%d, v%d, v%d" % (T4+r, X4+r, ST))
        o += rnd()
        for r in range(4): o.append("v_mul_f32 v%d, v%d, v%d" % (T4+r, T4+r, ST+1))
        o += rnd()
        for r in range(4): o.append("v_mul_f32 v%d, v%d, v%d" % (T4+r, T4+r, D4+r))
        o += rnd()
        for r in range(4): o.append("v_add_f32 v%d, v%d, v%d" % (T4+r, T4+r, X4+r))
        for r in range(4): o.append("v_accvgpr_write_b32 a%d, v%d" % (ABASE+cb*4+r, T4+r))
        base_ops.append(o)
    D1 = DEPTH-1
    for s in range(NS):
        nxt = s + D1
        ld = loads(nxt) if nxt < NS else []
        later = min(nxt-1, NS-1) - s
        n = later*9 + (NX if s < 2 else 0)
        k("s_waitcnt vmcnt(%d)" % min(n, 63))
        b = s % DEPTH
        mf = []
        for i in range(4):
            for j in range(5):
                c = (i*5+j)*4
                mf.append("v_mfma_f32_16x16x32_bf16 a[%d:%d], %s, %s, %s" % (c, c+3, reg(b, 4+j), reg(b, i), ("a[%d:%d]" % (c, c+3)) if s else "0"))
        fill = list(ld)
        if 3 <= s < 8: fill += base_ops[s-3]
        interleave(k, mf, fill, lead=len(ld))
    stamp(k, 1)
    k("s_mul_i32 s6, s%d, 20480" % sW)
    k("v_add_u32 v4, s6, v2")
    for t in range(20):
        k("ds_write_b128 v4, a[%d:%d] offset:%d" % (t*4, t*4+3, t*1024))
    k("s_mul_i32 s6, s%d, 5120" % sW)
    k("v_add_u32 v4, s6, v2\nv_add_u32 v5, 40960, v4")
    k("s_waitcnt lgkmcnt(0)\ns_barrier")
    R = VB
    for cb in range(5):
        for p in range(4):
            k("ds_read_b128 v[%d:%d], v%d offset:%d" % (R+(cb*4+p)*4, R+(cb*4+p)*4+3, 4 if p < 2 else 5, (p & 1)*20480+cb*1024))
        if cb == 2: k("s_waitcnt lgkmcnt(4)")
    for cb in range(5):
        for r in range(4): k("v_accvgpr_read_b32 v%d, a%d" % (32+r, ABASE+cb*4+r))
        k("s_waitcnt lgkmcnt(%d)" % min(15, 16-4*cb))
        q = R+cb*16
        for r in range(4): k("v_add_f32 v%d, v%d, v%d" % (q+r, q+r, q+4+r))
        for r in range(4): k("v_add_f32 v%d, v%d, v%d" % (q+8+r, q+8+r, q+12+r))
        for r in range(4): k("v_add_f32 v%d, v%d, v%d" % (q+r, q+r, 32+r))
        for r in range(4): k("v_add_f32 v%d, v%d, v%d" % (q+r, q+r, q+8+r))
        k("buffer_store_dwordx4 v[%d:%d], v8, %s, 0 offen offset:%d" % (q, q+3, sq(SO), cb*64))
    stamp(k, 2)
    stamp_out(k, 1, 8, pWs, 32)
    k("L_k2_end:")
    k("s_endpgm")
    return k

if __name__ == "__main__":
    ref = open("parallel_sum__ssm_conv_s5__geglu_ffn__prompt.s.ref").read().split("\n")
    hdr = [l for l in ref if l.startswith(";") and "@launch" not in l and "Override" not in l and "grid=ceil" not in l]
    hdr += ["; @launch kernel=k1_kernel grid=(256,1,1) block=(512,1,1) lds=163840",
            "; @launch kernel=k2_kernel grid=(256,1,1) block=(256,1,1) lds=81920"]
    out = [a for a in sys.argv[1:] if not a.startswith("--")][0]
    open(out, "w").write(emit_file(hdr, [(gen_k1(), dict(vgpr=256, accum=256)), (gen_k2(), dict(vgpr=512, accum=256))]))
```

```python
import sys, struct, math
from asmgen import *
import gen2
from gen2 import (A2_OFF, B2_OFF, CAR_OFF, RST_OFF, SB_OFF, SG_OFF, STAMP_OFF, WS_NREC, SL, SPARE, TRP, f32, vr, sq, sp, ror, DPP, SC,
                  Alloc, interleave, srd, stamp, stamp_out, opt, ARG, STAMPS, LOG2E,
                  pX, pLre, pLim, pBre, pBim, pCre, pCim, pLdt, pD, pBx, pG, pU, pDn, pOut, pDbg, pWs)
STAT_M = SPARE
SFF = SPARE + 1536
SSS = SPARE + 2560
TRB = SL
FLG = SPARE + 4032
PF_OFF = 0x1130000
FL_OFF = 0x1131000
TRACE = "--trace" in ARG
S1 = " sc1"
if opt("sc", 1): SC = " sc1"
KNAME = "parallel_sum__ssm_conv_s5__geglu_ffn__prompt_kernel"

def gen_k1():
    k = Kern(KNAME)
    sW, sMH, sNH, sI, sJJ, sTY = 3, 4, 5, 6, 7, 8
    sT0, sT1, sT2, sT3 = 9, 10, 11, 12
    sMASK = 13
    SX, SW0, SW1, SWS, SP0, SP1 = 48, 52, 56, 60, 64, 68
    sKx, sKw, sDst, sDelta, sIt, sRd, sA, sB, sKS, sC, sNon, sCol = range(72, 84)
    k("s_cmp_ge_u32 s2, 256\ns_cbranch_scc1 L_k1_end")
    k("s_load_dwordx16 s[16:31], s[0:1], 0\ns_load_dwordx16 s[32:47], s[0:1], 64")
    k("s_memrealtime s[100:101]")
    stamp(k, 0)
    vL, vM, vG, vII, vSL = 1, 2, 3, 4, 5
    vT = [6, 7, 8, 9, 10, 11]
    if TRACE: k("v_mov_b32 v255, 0")
    k("v_lshrrev_b32 v%d, 6, v0" % vT[0])
    k("v_and_b32 v%d, 63, v0" % vL)
    k("v_readfirstlane_b32 s%d, v%d" % (sW, vT[0]))
    k("v_and_b32 v%d, 15, v0\nv_lshrrev_b32 v%d, 4, v%d" % (vM, vG, vL))
    k("v_lshrrev_b32 v%d, 3, v%d\nv_and_b32 v%d, 7, v0" % (vII, vL, vSL))
    k("v_mov_b32 v%d, 0\nv_lshlrev_b32 v%d, 2, v%d\nv_add_u32 v%d, %d, v%d\nds_write_b32 v%d, v%d" % (vT[1], vT[2], vM, vT[2], FLG, vT[2], vT[2], vT[1]))
    k("s_and_b32 s%d, s2, 7\ns_lshr_b32 s%d, s2, 3" % (sT0, sT1))
    k("s_lshr_b32 s%d, s%d, 2\ns_lshl_b32 s%d, s%d, 3\ns_and_b32 s%d, s%d, 7\ns_add_u32 s%d, s%d, s%d" % (sI, sT0, sI, sI, sT2, sT1, sI, sI, sT2))
    k("s_and_b32 s%d, s%d, 3\ns_lshl_b32 s%d, s%d, 2\ns_lshr_b32 s%d, s%d, 3\ns_add_u32 s%d, s%d, s%d" % (sJJ, sT0, sJJ, sJJ, sT2, sT1, sJJ, sJJ, sT2))
    k("s_and_b32 s%d, s%d, 1\ns_lshr_b32 s%d, s%d, 1" % (sTY, sJJ, sJJ, sJJ))
    k("s_mov_b32 s%d, 0xffff0000" % sMASK)
    k("s_and_b32 s%d, s%d, 1\ns_bfe_u32 s%d, s%d, 0x10001" % (sMH, sW, sNH, sW))
    k("s_lshl_b32 s%d, s%d, 7\ns_lshl_b32 s%d, s%d, 6\ns_add_u32 s%d, s%d, 1024\ns_cmp_eq_u32 s%d, 0\ns_cselect_b32 s%d, s%d, s%d" % (sT0, sJJ, sT1, sJJ, sT1, sT1, sTY, sCol, sT0, sT1))
    k("s_waitcnt lgkmcnt(0)\ns_barrier")
    k("s_cmp_lt_u32 s%d, 4\ns_cbranch_scc1 L_k1_C" % sW)
    k("s_cmp_ge_u32 s%d, 6\ns_cbranch_scc1 L_k1_D" % sW)

    def bf16r(d, s):
        k("v_cvt_pk_bf16_f32 v%d, v%d, v%d\nv_lshlrev_b32 v%d, 16, v%d" % (d, s, s, d, d))
    def trace(idx_sreg, mul, add):
        if TRACE:
            k("s_memrealtime s[100:101]\ns_mul_i32 m0, s%d, %d\ns_add_u32 m0, m0, %d\ns_waitcnt lgkmcnt(0)\nv_writelane_b32 v255, s100, m0" % (idx_sreg, mul, add))
    def finish(vt):
        if TRACE:
            k("s_lshl_b32 s83, s2, 11\ns_add_u32 s83, s83, 0x%x\nv_lshl_add_u32 v%d, v0, 2, s83" % (STAMP_OFF + 0x40000, vt+9))
            k("global_store_dword v%d, v255, %s" % (vt+9, sp(pWs)))
        stamp_out(k, 0, 8, pWs, vt)
        k("s_endpgm")

    vXo, vWo, vSo = [12, 13], [14, 15], [16, 17]
    vF = 18
    k("s_lshl_b32 s%d, s%d, 7" % (sT2, sI))
    k("v_lshrrev_b32 v%d, 2, v%d\nv_lshlrev_b32 v%d, 4, v%d\nv_and_b32 v%d, 3, v%d" % (vT[0], vII, vT[0], vT[0], vT[1], vII))
    k("v_add3_u32 v%d, v%d, v%d, s%d" % (vT[0], vT[0], vT[1], sT2))
    k("v_mul_u32_u24 v%d, 1280, v%d" % (vT[0], vT[0]))
    k("v_lshrrev_b32 v%d, 1, v%d\nv_xor_b32 v%d, v%d, v%d" % (vT[1], vII, vT[1], vT[1], vSL))
    k("v_lshl_add_u32 v%d, v%d, 4, v%d\nv_xor_b32 v%d, 64, v%d" % (vXo[0], vT[1], vT[0], vXo[1], vXo[0]))
    k("s_mul_i32 s%d, s%d, 80" % (sT0, sJJ))
    k("v_add_u32 v%d, s%d, v%d\nv_mul_u32_u24 v%d, 1280, v%d\nv_lshl_add_u32 v%d, v%d, 4, v%d\nv_xor_b32 v%d, 64, v%d" % (vT[2], sT0, vII, vT[2], vT[2], vSo[0], vT[1], vT[2], vSo[1], vSo[0]))
    k("v_mul_u32_u24 v%d, 3072, v%d" % (vT[0], vII))
    k("v_and_b32 v%d, 2, v%d\nv_xor_b32 v%d, v%d, v%d" % (vT[1], vII, vT[1], vT[1], vSL))
    k("v_lshl_add_u32 v%d, v%d, 4, v%d" % (vT[0], vT[1], vT[0]))
    k("s_lshl_b32 s%d, s%d, 1" % (sT0, sCol))
    k("v_add_u32 v%d, s%d, v%d\nv_xor_b32 v%d, 64, v%d" % (vWo[0], sT0, vT[0], vWo[1], vWo[0]))
    k("s_lshl_b32 s%d, s%d, 7\ns_mul_i32 s%d, s%d, 196608\ns_mul_i32 s%d, s%d, %d\ns_mov_b32 s%d, s%d" % (sKx, sMH, sKw, sMH, sDst, sMH, SL, sIt, sMH))
    k("v_mov_b32 v%d, %d" % (vF, FLG))
    k("s_lshl_b32 s%d, s%d, 2\ns_add_u32 s%d, s%d, %d\nv_mov_b32 v%d, s%d" % (sT0, sMH, sT0, sT0, FLG+16, vF+1, sT0))
    srd(k, SX, pX, 2048*1280)
    srd(k, SW0, pG, 640*3072)
    srd(k, SW1, pU, 640*3072)
    srd(k, SP0, pBre, 640*1280)
    srd(k, SP1, pBim, 640*1280)
    def dma(ldsoff, voff, S, sbase, add):
        k("s_add_u32 m0, s%d, %d\ns_add_u32 s%d, s%d, %d\nbuffer_load_dwordx4 v%d, %s, s%d offen lds" % (sDst, ldsoff, sT0, sbase, add, voff, sq(S), sT0))
    def wait_word(lab, off, need, va, vt):
        k("v_mov_b32 v%d, %d" % (va, FLG+off))
        k("%s:" % lab)
        k("ds_read_b32 v%d, v%d\ns_waitcnt lgkmcnt(0)\nv_readfirstlane_b32 s%d, v%d" % (vt, va, sT0, vt))
        k("s_cmp_ge_i32 s%d, %s\ns_cbranch_scc1 %s_ok\ns_sleep 1\ns_branch %s\n%s_ok:" % (sT0, need, lab, lab, lab))
    def wait_done(lab, need, vaddr, vt):
        k("%s:" % lab)
        k("ds_read_b128 %s, v%d\ns_waitcnt lgkmcnt(0)" % (vr(vt, 4), vaddr))
        k("v_min_u32 v%d, v%d, v%d\nv_min3_u32 v%d, v%d, v%d, v%d" % (vt, vt, vt+1, vt, vt, vt+2, vt+3))
        k("v_readfirstlane_b32 s%d, v%d" % (sT0, vt))
        k("s_cmp_ge_i32 s%d, %s\ns_cbranch_scc1 %s_ok\ns_sleep 1\ns_branch %s\n%s_ok:" % (sT0, need, lab, lab, lab))
    if opt("ord", 1): wait_word("L_k1_lw0", 32, "s%d" % sMH, 21, 20)
    k("s_cmp_eq_u32 s%d, 1\ns_cbranch_scc1 L_k1_LB_dma\ns_branch L_k1_LA_dma" % sTY)
    for ty in "AB":
        L = "L_k1_L" + ty
        k("%s:" % L)
        trace(sIt, 4, 0)
        k("s_sub_u32 s%d, s%d, 2" % (sT1, sIt))
        wait_done(L+"_wd", "s%d" % sT1, vF, 20)
        k("%s_dma:" % L)
        trace(sIt, 4, 1)
        k("s_mov_b32 s%d, s%d\ns_mov_b32 s%d, s%d\ns_mov_b32 s%d, s%d\ns_mov_b32 s%d, 0" % (sA, sDst, sB, sKx, sKS, sKw, sRd))
        k("%s_in:" % L)
        def dma2(ldsoff, voff, S, sbase, add):
            k("s_add_u32 m0, s%d, %d\ns_add_u32 s%d, s%d, %d\nbuffer_load_dwordx4 v%d, %s, s%d offen lds" % (sA, ldsoff, sT0, sbase, add, voff, sq(S), sT0))
        xs = [(hf*8192+pa*1024, vXo[pa], SX, sB, (pa*32+hf*64)*1280) for hf in range(2) for pa in range(2)]
        ws = [(16384+un*16384+gu*8192+pa*1024, vWo[pa], SW1 if gu else SW0, sKS, pa*8*3072+un*128) for pa in range(2) for un in range(2 if ty == "A" else 1) for gu in range(2)]
        r = len(ws)//4
        for i in range(4):
            for o in ws[i*r:(i+1)*r] + xs[i:i+1]: dma2(*o)
        k("s_add_u32 s%d, s%d, 2048\ns_add_u32 s%d, s%d, 5120\ns_add_u32 s%d, s%d, %d\ns_add_u32 s%d, s%d, 1\ns_cmp_lt_u32 s%d, 4\ns_cbranch_scc1 %s_in" % (sA, sA, sB, sB, sKS, sKS, 16*3072, sRd, sRd, sRd, L))
        if ty == "B":
            k("s_mov_b32 s%d, s%d\ns_mov_b32 s%d, s%d\ns_mov_b32 s%d, 0" % (sA, sDst, sB, sKx, sRd))
            k("%s_in2:" % L)
            for bb in range(2):
                for pt in range(2): dma2(32768+bb*2048+pt*1024, vSo[pt], SP1 if pt else SP0, sB, bb*10240)
            k("s_add_u32 s%d, s%d, 4096\ns_add_u32 s%d, s%d, 20480\ns_add_u32 s%d, s%d, 1\ns_cmp_lt_u32 s%d, 5\ns_cbranch_scc1 %s_in2" % (sA, sA, sB, sB, sRd, sRd, sRd, L))
        k("s_add_u32 s%d, s%d, 256\ns_add_u32 s%d, s%d, %d\ns_add_u32 s%d, s%d, %d" % (sKx, sKx, sKw, sKw, 2*196608, sDst, sDst, 2*SL))
        k("s_cmp_ge_u32 s%d, %d\ns_cselect_b32 s%d, %d, 0\ns_sub_u32 s%d, s%d, s%d" % (sDst, 3*SL, sT0, 3*SL, sDst, sDst, sT0))
        k("s_add_u32 s%d, s%d, 1\nv_mov_b32 v20, s%d" % (sT0, sIt, sT0))
        k("ds_write_b32 v%d, v20 offset:16" % (vF+1))
        trace(sIt, 4, 2)
        k("s_waitcnt vmcnt(0)")
        k("ds_write_b32 v%d, v20" % (vF+1))
        trace(sIt, 4, 3)
        k("s_add_u32 s%d, s%d, 2\ns_cmp_lt_u32 s%d, 10\ns_cbranch_scc1 %s" % (sIt, sIt, sIt, L))
        k("s_branch L_k1_Lend")
    k("L_k1_Lend:")
    wait_word("L_k1_lg", 36, "10", 21, 20)
    srd(k, SWS, pWs, WS_NREC)
    k("s_mov_b32 s%d, 0\nv_mov_b32 v%d, 0" % (sT3, vT[1]))
    k("L_k1_lgn:")
    k("global_load_dword v%d, v%d, %s%s\ns_add_u32 s%d, s%d, 1\ns_waitcnt vmcnt(0)" % (vT[2], vT[1], sp(pDbg), SC, sT3, sT3))
    k("v_readfirstlane_b32 s%d, v%d" % (sNon, vT[2]))
    k("s_cmp_lg_u32 s%d, 0\ns_cbranch_scc1 L_k1_P2\ns_cmp_lt_u32 s%d, 0x40000\ns_cbranch_scc1 L_k1_lgn\ns_branch L_k1_P2" % (sNon, sT3))

    k("L_k1_D:")
    XR = 16
    YR = 36
    PK = 100
    T = 132
    vN = 12
    sPQ, sPR = [14, 78], [15, 79]
    k("v_mul_u32_u24 v%d, 1280, v%d\nv_lshl_add_u32 v%d, v%d, 4, v%d" % (vT[0], vG, vT[0], vM, vT[0]))
    k("s_lshl_b32 s%d, s2, 1\ns_add_u32 s%d, s%d, s%d" % (sC, sC, sC, sMH))
    k("s_mul_i32 s%d, s%d, 5120" % (sT0, sC))
    srd(k, SX, pX, 2048*1280)
    srd(k, SWS, pWs, WS_NREC)
    k("s_cmp_lg_u32 s%d, 0\ns_cbranch_scc1 L_k1_nn" % sC)
    k("s_or_b32 s%d, s100, 1" % sT0)
    k("v_mov_b32 v%d, s%d\nv_mov_b32 v%d, 0" % (vT[2], sT0, vT[1]))
    k("global_store_dword v%d, v%d, %s%s" % (vT[1], vT[2], sp(pDbg), SC))
    k("L_k1_nn:")
    B1 = opt("b1", 2); GATE = opt("gate", 3)
    SNT = " nt" if opt("snt", 0) else ""
    def gate(lab):
        if GATE == 1: wait_word(lab, 32, "1", vT[3], vT[2])
        if GATE == 2: wait_word(lab, 36, "2", vT[3], vT[2])
        if GATE == 3: wait_word(lab, 32, "3", vT[3], vT[2])
    k("s_mul_i32 s%d, s%d, 5120" % (sKx, sC))
    xl = lambda c: k("buffer_load_dwordx4 %s, v%d, %s, s%d offen offset:%d%s" % (vr(XR+4*c, 4), vT[0], sq(SX), sKx, c*256, SNT))
    k("s_cmp_eq_u32 s%d, 1\ns_cbranch_scc1 L_k1_D1a" % sMH)
    k("s_mul_i32 s%d, s2, 1366\ns_lshr_b32 s%d, s%d, 16\ns_mul_i32 s%d, s%d, 48\ns_sub_u32 s%d, s2, s%d" % (sT0, sT0, sT0, sT1, sT0, sT1, sT1))
    k("s_cmp_lt_u32 s%d, 24\ns_cselect_b32 s%d, s%d, s%d\ns_cselect_b32 s%d, s%d, s%d\ns_cselect_b32 s%d, 0, 24" % (sT1, SP1, pG, pU, SP1+1, pG+1, pU+1, sT2))
    k("s_sub_u32 s%d, s%d, s%d\ns_lshl_b32 s%d, s%d, 7\ns_mul_i32 s%d, s%d, %d\ns_add_u32 s%d, s%d, s%d" % (sT1, sT1, sT2, sT1, sT1, sT0, sT0, 8*3072, sKw, sT0, sT1))
    k("s_cmp_lt_u32 s2, 240\ns_cselect_b32 s%d, %d, 0\ns_mov_b32 s%d, 0x20000" % (SP1+2, 640*3072, SP1+3))
    k("v_mul_u32_u24 v%d, 3072, v%d\nv_lshl_add_u32 v%d, v%d, 4, v%d" % (vT[1], vII, vT[1], vSL, vT[1]))
    a_ = 0
    for c in range(5):
        if c == B1: gate("L_k1_g0")
        xl(c)
        while a_ < 16 and a_*40 < 128*(c+1):
            k("buffer_load_dwordx4 %s, v%d, %s, s%d offen%s" % (vr(YR+4*a_, 4), vT[1], sq(SP1), sKw, SNT))
            k("s_add_u32 s%d, s%d, %d" % (sKw, sKw, 40*3072))
            a_ += 1
    if B1 >= 5: gate("L_k1_g0")
    k("s_branch L_k1_Db")
    k("L_k1_D1a:")
    k("s_cmp_lt_u32 s2, 80\ns_cselect_b32 s%d, s%d, s%d\ns_cselect_b32 s%d, s%d, s%d\ns_cselect_b32 s%d, 0, 80" % (SP1, pBre, pBim, SP1+1, pBre+1, pBim+1, sT1))
    k("s_sub_u32 s%d, s2, s%d\ns_mul_i32 s%d, s%d, 10240\ns_add_u32 s%d, s%d, 5120" % (sT0, sT1, sKw, sT0, sDst, sKw))
    k("s_cmp_lt_u32 s2, 160\ns_cselect_b32 s%d, %d, 0\ns_mov_b32 s%d, 0x20000" % (SP1+2, 640*1280, SP1+3))
    for c in range(5):
        if c == B1: gate("L_k1_g1")
        xl(c)
        for hh in range(2): k("buffer_load_dwordx4 %s, v%d, %s, s%d offen offset:%d%s" % (vr(YR+20*hh+4*c, 4), vT[0], sq(SP1), sDst if hh else sKw, c*256, SNT))
    if B1 >= 5: gate("L_k1_g1")
    k("L_k1_Db:")
    k("s_lshl_b32 s%d, s%d, 3\ns_add_u32 s%d, s%d, s%d\ns_lshl_b32 s%d, s%d, 1\ns_add_u32 s%d, s%d, s%d\ns_lshl_b32 s%d, s%d, 1" % (sT3, sI, sT3, sT3, sJJ, sT3, sT3, sT3, sT3, sMH, sT3, sT3))
    for n in range(2):
        k("s_add_u32 s%d, s%d, %d\ns_mul_i32 s%d, s%d, 6554\ns_lshr_b32 s%d, s%d, 16\ns_mul_i32 s%d, s%d, 10\ns_sub_u32 s%d, s%d, s%d" % (sT0, sT3, n, sPQ[n], sT0, sPQ[n], sPQ[n], sT1, sPQ[n], sPR[n], sT0, sT1))
    k("v_mov_b32 v%d, 0" % vT[1])
    k("global_load_dword v%d, v%d, %s%s" % (vN, vT[1], sp(pDbg), SC))
    if opt("packlate", 0): k("s_waitcnt vmcnt(1)")
    PNT = " nt" if opt("pnt", 1) else ""
    k("s_cmp_eq_u32 s%d, 1\ns_cbranch_scc1 L_k1_plC" % sTY)
    srd(k, SP0, pDn, 1536*1280)
    k("v_mul_u32_u24 v%d, 1280, v%d\nv_lshl_add_u32 v%d, v%d, 4, v%d" % (vT[1], vII, vT[1], vSL, vT[1]))
    k("s_cmp_lt_u32 s%d, 48\ns_cselect_b32 s%d, s%d, 0" % (sPQ[0], SP0+2, SP0+2))
    for n in range(2):
        k("s_mul_i32 s%d, s%d, 40960\ns_lshl_b32 s%d, s%d, 7\ns_add_u32 s%d, s%d, s%d" % (sT1, sPQ[n], sT2, sPR[n], sT1, sT1, sT2))
        for a in range(4):
            k("buffer_load_dwordx4 %s, v%d, %s, s%d offen%s" % (vr(PK+16*n+4*a, 4), vT[1], sq(SP0), sT1, PNT))
            if a < 3: k("s_add_u32 s%d, s%d, 10240" % (sT1, sT1))
    k("s_branch L_k1_pld")
    k("L_k1_plC:")
    srd(k, SP0, pCre, 640*1280)
    srd(k, SP1, pCim, 640*1280)
    k("v_mul_u32_u24 v%d, 1280, v%d\nv_lshl_add_u32 v%d, v%d, 4, v%d" % (vT[1], vII, vT[1], vSL, vT[1]))
    k("s_cmp_lt_u32 s%d, 40\ns_cselect_b32 s%d, s%d, 0\ns_cselect_b32 s%d, s%d, 0" % (sPQ[0], SP0+2, SP0+2, SP1+2, SP1+2))
    for n in range(2):
        k("s_mul_i32 s%d, s%d, 20480\ns_lshl_b32 s%d, s%d, 7\ns_add_u32 s%d, s%d, s%d" % (sT1, sPQ[n], sT2, sPR[n], sT1, sT1, sT2))
        k("s_add_u32 s%d, s%d, 10240" % (sT2, sT1))
        for part in range(2):
            for hh in range(2):
                k("buffer_load_dwordx4 %s, v%d, %s, s%d offen%s" % (vr(PK+16*n+(part*2+hh)*4, 4), vT[1], sq(SP0 if part == 0 else SP1), sT2 if hh else sT1, PNT))
    k("L_k1_pld:")
    k("s_waitcnt vmcnt(8)")
    stamp(k, 7)
    def unpack(dst, src, n):
        for d in range(n): k("v_lshlrev_b32 v%d, 16, v%d\nv_and_b32 v%d, s%d, v%d" % (dst+2*d, src+d, dst+2*d+1, sMASK, src+d))
    def row_sum(regs):
        for n in (8, 4, 2, 1):
            for r in regs: k("v_add_f32_dpp v%d, v%d, v%d%s" % (r, r, r, ror(n)))
    def tree(dst, src, n):
        k("v_add_f32 v%d, v%d, v%d\nv_add_f32 v%d, v%d, v%d" % (dst, src, src+1, dst+1, src+2, src+3))
        for d in range(4, n, 2): k("v_add_f32 v%d, v%d, v%d\nv_add_f32 v%d, v%d, v%d" % (dst, dst, src+d, dst+1, dst+1, src+d+1))
        k("v_add_f32 v%d, v%d, v%d" % (dst, dst, dst+1))
    A, B = T+40, T+42
    unpack(T, XR, 20)
    tree(A, T, 40)
    row_sum([A])
    k("v_mul_f32 v%d, %s, v%d" % (A, f32(1/640.), A))
    for d in range(40): k("v_sub_f32 v%d, v%d, v%d" % (T+d, T+d, A))
    k("v_mul_f32 v%d, v%d, v%d\nv_mul_f32 v%d, v%d, v%d" % (B, T, T, B+1, T+1, T+1))
    for d in range(2, 40, 2): k("v_fmac_f32 v%d, v%d, v%d\nv_fmac_f32 v%d, v%d, v%d" % (B, T+d, T+d, B+1, T+d+1, T+d+1))
    k("v_add_f32 v%d, v%d, v%d" % (B, B, B+1))
    row_sum([B])
    k("v_mul_f32 v%d, %s, v%d" % (B, f32(1/640.), B))
    bf16r(B, B)
    k("v_add_f32 v%d, %s, v%d" % (B, f32(1e-5), B))
    bf16r(B, B)
    k("v_sqrt_f32 v%d, v%d" % (B, B))
    k("s_mov_b32 s%d, 0" % sT3)
    k("L_k1_gn:")
    k("v_readfirstlane_b32 s%d, v%d" % (sNon, vN))
    k("s_add_u32 s%d, s%d, 1\ns_cmp_lg_u32 s%d, 0\ns_cbranch_scc1 L_k1_gnd" % (sT3, sT3, sNon))
    k("s_cmp_gt_u32 s%d, 0x40000\ns_cbranch_scc1 L_k1_gnd" % sT3)
    k("v_mov_b32 v%d, 0" % vT[1])
    k("global_load_dword v%d, v%d, %s%s\ns_waitcnt vmcnt(0)\ns_branch L_k1_gn" % (vN, vT[1], sp(pDbg), SC))
    k("L_k1_gnd:")
    k("s_max_u32 s%d, s%d, 1" % (sNon, sNon))
    k("v_cvt_pk_bf16_f32 v%d, v%d, v%d\nv_mov_b32 v%d, s%d" % (T+44, A, B, T+45, sNon))
    k("s_lshl_b32 s%d, s%d, 5\ns_add_u32 s%d, s%d, 0x%x" % (sT0, sC, sT0, sT0, RST_OFF))
    k("v_lshlrev_b32 v%d, 3, v%d" % (vT[2], vG))
    k("s_mov_b32 exec_lo, 0x00010001\ns_mov_b32 exec_hi, 0x00010001")
    k("buffer_store_dwordx2 %s, v%d, %s, s%d offen%s" % (vr(T+44, 2), vT[2], sq(SWS), sT0, SC))
    k("s_mov_b64 exec, -1")
    k("s_cmp_eq_u32 s%d, 1\ns_cbranch_scc1 L_k1_D1b" % sMH)
    k("v_and_b32 v%d, 1, v%d\nv_lshlrev_b32 v%d, 4, v%d\nv_mov_b32 v%d, 0x3f80\nv_lshlrev_b32 v%d, v%d, v%d" % (T+8, vM, T+8, T+8, T+9, T+8, T+8, T+9))
    k("v_bfe_u32 v%d, v%d, 1, 2" % (T+9, vM))
    for d in range(4): k("v_cmp_eq_u32 vcc, %d, v%d\nv_cndmask_b32 v%d, 0, v%d, vcc" % (d, T+9, T+d, T+8))
    for a in range(16): k("v_mfma_f32_16x16x32_bf16 %s, %s, %s, %s" % (vr(T+4, 4), vr(T, 4), vr(YR+4*a, 4), vr(T+4, 4) if a else "0"))
    k("s_lshl_b32 s%d, s2, 9\ns_add_u32 s%d, s%d, 0x%x\ns_cmp_lt_u32 s2, 240\ns_cselect_b32 s%d, s%d, 0x%x" % (sT0, sT0, sT0, SG_OFF, sT0, sT0, WS_NREC))
    k("v_lshlrev_b32 v%d, 5, v%d\nv_lshl_add_u32 v%d, v%d, 6, v%d\nv_add_u32 v%d, s%d, v%d" % (T+8, vG, T+8, vSL, T+8, T+8, sT0, T+8))
    for r in range(4): k("v_mov_b32 v%d, s%d" % (T+13+2*r, sNon))
    for r in range(4): k("v_add_f32_dpp v%d, v%d, v%d%s" % (T+12+2*r, T+4+r, T+4+r, DPP))
    k("s_mov_b32 exec_lo, 0x00ff00ff\ns_mov_b32 exec_hi, 0")
    k("buffer_store_dwordx4 %s, v%d, %s, 0 offen%s" % (vr(T+12, 4), T+8, sq(SWS), SC))
    k("buffer_store_dwordx4 %s, v%d, %s, 0 offen offset:16%s" % (vr(T+16, 4), T+8, sq(SWS), SC))
    k("s_mov_b64 exec, -1")
    k("s_branch L_k1_Dc")
    k("L_k1_D1b:")
    for hh in range(2):
        unpack(T, YR+20*hh, 20)
        tree(A+2*hh, T, 40)
    row_sum([A, A+2])
    k("v_mov_b32 v%d, s%d\nv_mov_b32 v%d, s%d" % (A+1, sNon, A+3, sNon))
    k("s_lshl_b32 s%d, s2, 6\ns_add_u32 s%d, s%d, 0x%x\ns_cmp_lt_u32 s2, 160\ns_cselect_b32 s%d, s%d, 0x%x" % (sT0, sT0, sT0, SB_OFF, sT0, sT0, WS_NREC))
    k("v_add_u32 v%d, s%d, v%d" % (vT[3], sT0, vT[2]))
    k("s_mov_b32 exec_lo, 0x00010001\ns_mov_b32 exec_hi, 0x00010001")
    k("buffer_store_dwordx2 %s, v%d, %s, 0 offen%s" % (vr(A, 2), vT[3], sq(SWS), SC))
    k("buffer_store_dwordx2 %s, v%d, %s, 0 offen offset:32%s" % (vr(A+2, 2), vT[3], sq(SWS), SC))
    k("s_mov_b64 exec, -1")
    k("L_k1_Dc:")
    PSC = S1
    k("s_waitcnt vmcnt(3)")
    k("s_cmp_eq_u32 s%d, 1\ns_cbranch_scc1 L_k1_pdC" % sTY)
    k("s_cmp_ge_u32 s%d, 48\ns_cbranch_scc1 L_k1_pdd" % sPQ[0])
    k("s_mul_i32 s%d, s%d, %d\ns_add_u32 s%d, s%d, 49152" % (sT2, sMH, SL, sT2, sT2))
    k("v_lshlrev_b32 v%d, 4, v%d\nv_add_u32 v%d, s%d, v%d" % (T+1, vL, T, sT2, T+1))
    k("v_lshrrev_b32 v%d, 2, v%d\nv_lshl_add_u32 v%d, v%d, 2, v%d\nv_lshlrev_b32 v%d, 7, v%d" % (T+2, vM, T+2, vG, T+2, T+2, T+2))
    k("v_and_b32 v%d, 3, v%d\nv_lshl_add_u32 v%d, v%d, 3, v%d\nv_add_u32 v%d, s%d, v%d" % (T+3, vM, T+2, T+3, T+2, T+2, sT2, T+2))
    for n in range(2):
        for a in range(4): k("ds_write_b128 v%d, %s offset:%d" % (T, vr(PK+16*n+4*a, 4), a*1024))
        k("s_waitcnt lgkmcnt(0)")
        for c4 in range(4):
            k("ds_read_b64_tr_b16 %s, v%d offset:%d" % (vr(PK+16*n+c4*4, 2), T+2, c4*32))
            k("ds_read_b64_tr_b16 %s, v%d offset:%d" % (vr(PK+16*n+c4*4+2, 2), T+2, c4*32+2048))
        for c4 in range(4):
            k("s_lshl_b32 s%d, s%d, 2\ns_add_u32 s%d, s%d, %d\ns_mul_i32 s%d, s%d, 52\ns_lshr_b32 s%d, s%d, 8" % (sT0, sPR[n], sT0, sT0, c4, sT1, sT0, sT1, sT1))
            k("s_mul_i32 s%d, s%d, 435\ns_add_u32 s%d, s%d, s%d\ns_mul_i32 s%d, s%d, 5\ns_add_u32 s%d, s%d, s%d" % (sT1, sT1, sT1, sT1, sT0, sT0, sPQ[n], sT1, sT1, sT0))
            k("s_lshl_b32 s%d, s%d, 10\ns_add_u32 s%d, s%d, %d" % (sT1, sT1, sT1, sT1, B2_OFF))
            k("s_waitcnt lgkmcnt(%d)" % (6-2*c4))
            k("buffer_store_dwordx4 %s, v%d, %s, s%d offen%s" % (vr(PK+16*n+c4*4, 4), T+1, sq(SWS), sT1, PSC))
    k("s_branch L_k1_pdd")
    k("L_k1_pdC:")
    k("s_cmp_ge_u32 s%d, 40\ns_cbranch_scc1 L_k1_pdd" % sPQ[0])
    k("v_lshrrev_b32 v%d, 1, v%d\nv_mul_u32_u24 v%d, 5120, v%d" % (T+1, vSL, T+1, T+1))
    k("v_and_b32 v%d, 1, v%d\nv_lshl_add_u32 v%d, v%d, 5, v%d\nv_lshl_add_u32 v%d, v%d, 4, v%d" % (T+2, vSL, T+2, T+2, vII, T+1, T+2, T+1))
    for n in range(2):
        k("s_mul_i32 s%d, s%d, 52\ns_lshr_b32 s%d, s%d, 8\ns_mul_i32 s%d, s%d, 435\ns_add_u32 s%d, s%d, s%d" % (sT1, sPQ[n], sT1, sT1, sT1, sT1, sT1, sT1, sPQ[n]))
        k("s_mul_i32 s%d, s%d, 20\ns_add_u32 s%d, s%d, s%d\ns_add_u32 s%d, s%d, 240\ns_lshl_b32 s%d, s%d, 10\ns_add_u32 s%d, s%d, %d" % (sT0, sPR[n], sT1, sT1, sT0, sT1, sT1, sT1, sT1, sT1, sT1, B2_OFF))
        for r in range(8, 16): k("v_xor_b32 v%d, 0x80008000, v%d" % (PK+16*n+r, PK+16*n+r))
        for part in range(2):
            for hh in range(2):
                k("buffer_store_dwordx4 %s, v%d, %s, s%d offen offset:%d%s" % (vr(PK+16*n+(part*2+hh)*4, 4), T+1, sq(SWS), sT1, part*256+hh*128, PSC))
    k("L_k1_pdd:")
    k("s_lshl_b32 s%d, s%d, 2\ns_add_u32 s%d, s%d, 0x%x\nv_mov_b32 v%d, s%d\nv_mov_b32 v%d, s%d" % (sT0, sC, sT0, sT0, PF_OFF, T, sT0, T+1, sNon))
    k("s_waitcnt vmcnt(0)\ns_mov_b64 exec, 1")
    k("buffer_store_dword v%d, v%d, %s, 0 offen%s\ns_mov_b64 exec, -1" % (T+1, T, sq(SWS), SC))
    stamp(k, 2)
    EI = 16
    aSt, aS0, aS1 = 40, 41, 42
    k("s_lshl_b32 s%d, s%d, 1\ns_add_u32 s%d, s%d, s%d\ns_lshl_b32 s%d, s%d, 9\ns_add_u32 s%d, s%d, 0x%x" % (sT0, sI, sT0, sT0, sMH, sT0, sT0, sT0, sT0, RST_OFF))
    k("v_lshrrev_b32 v%d, 2, v%d\nv_lshlrev_b32 v%d, 4, v%d\nv_lshl_add_u32 v%d, v%d, 2, v%d" % (aSt, vM, aSt, aSt, aSt, vG, aSt))
    k("v_and_b32 v%d, 3, v%d\nv_add_u32 v%d, v%d, v%d\nv_lshl_add_u32 v%d, v%d, 3, s%d" % (aS0, vM, aSt, aSt, aS0, aSt, aSt, sT0))
    k("s_cmp_eq_u32 s%d, 1\ns_cbranch_scc1 L_k1_eaB" % sTY)
    k("s_lshl_b32 s%d, s%d, 6\ns_add_u32 s%d, s%d, s%d\ns_lshl_b32 s%d, s%d, 3\ns_add_u32 s%d, s%d, 0x%x" % (sT0, sMH, sT0, sT0, sCol, sT0, sT0, sT0, sT0, SG_OFF))
    k("v_lshl_add_u32 v%d, v%d, 3, s%d\nv_add_u32 v%d, %d, v%d" % (aS0, vL, sT0, aS1, 1536*8, aS0))
    k("s_mov_b32 s%d, %d" % (sKw, 3072*8))
    k("s_branch L_k1_ead")
    k("L_k1_eaB:")
    k("s_lshl_b32 s%d, s%d, 5\ns_add_u32 s%d, s%d, s%d\ns_lshl_b32 s%d, s%d, 3\ns_add_u32 s%d, s%d, 0x%x" % (sT0, sMH, sT0, sT0, sCol, sT0, sT0, sT0, sT0, SG_OFF))
    k("v_lshrrev_b32 v%d, 5, v%d\nv_mul_u32_u24 v%d, 1504, v%d\nv_add_u32 v%d, v%d, v%d\nv_lshl_add_u32 v%d, v%d, 3, s%d" % (aS0, vL, aS0, aS0, aS0, aS0, vL, aS0, aS0, sT0))
    k("s_mul_i32 s%d, s%d, 80\ns_mul_i32 s%d, s%d, 40\ns_add_u32 s%d, s%d, s%d\ns_lshl_b32 s%d, s%d, 3\ns_add_u32 s%d, s%d, 0x%x" % (sT0, sJJ, sT1, sMH, sT0, sT0, sT1, sT0, sT0, sT0, sT0, SB_OFF))
    k("v_lshrrev_b32 v%d, 3, v%d\nv_mul_u32_u24 v%d, 640, v%d\nv_add_u32 v%d, v%d, v%d\nv_lshl_add_u32 v%d, v%d, 3, s%d" % (aS1, vM, aS1, aS1, aS1, aS1, vSL, aS1, aS1, sT0))
    k("s_mov_b32 s%d, 64" % sKw)
    k("L_k1_ead:")
    wait_word("L_k1_eg", 36, "%d" % opt("eigate", 10), T, T+1)
    k("s_mov_b32 s%d, 0" % sT3)
    k("L_k1_eil:")
    k("buffer_load_dwordx2 %s, v%d, %s, 0 offen%s" % (vr(EI, 2), aSt, sq(SWS), SC))
    for p in range(5):
        k("s_mov_b32 s%d, %d\ns_mul_i32 s%d, s%d, %d" % (sT0, p*3072*8, sT1, sKw, p))
        k("buffer_load_dwordx2 %s, v%d, %s, s%d offen%s" % (vr(EI+2+2*p, 2), aS0, sq(SWS), sT0, SC))
        k("buffer_load_dwordx2 %s, v%d, %s, s%d offen%s" % (vr(EI+12+2*p, 2), aS1, sq(SWS), sT1, SC))
    k("s_waitcnt vmcnt(0)")
    k("v_xor_b32 v%d, s%d, v%d" % (T, sNon, EI+1))
    for p in range(10): k("v_xor_b32 v%d, s%d, v%d\nv_or_b32 v%d, v%d, v%d" % (T+1, sNon, EI+3+2*p, T, T, T+1))
    k("v_cmp_ne_u32 vcc, 0, v%d" % T)
    k("s_add_u32 s%d, s%d, 1" % (sT3, sT3))
    k("s_cbranch_vccz L_k1_eid")
    k("s_sleep 4\ns_cmp_lt_u32 s%d, 0x40000\ns_cbranch_scc1 L_k1_eil" % sT3)
    k("L_k1_eid:")
    k("v_lshlrev_b32 v%d, 16, v%d\nv_and_b32 v%d, s%d, v%d\nv_rcp_f32 v%d, v%d" % (T, EI, T+1, sMASK, EI, T+2, T+1))
    k("s_mul_i32 s%d, s%d, 768\ns_add_u32 s%d, s%d, %d" % (sT0, sMH, sT0, sT0, STAT_M))
    k("v_lshl_add_u32 v%d, v%d, 2, s%d" % (T+3, vL, sT0))
    k("ds_write_b32 v%d, v%d\nds_write_b32 v%d, v%d offset:256\nds_write_b32 v%d, v%d offset:512" % (T+3, T, T+3, T+2, T+3, T+1))
    def sum5(b): k("v_add_f32 v%d, v%d, v%d\nv_add_f32 v%d, v%d, v%d\nv_add_f32 v%d, v%d, v%d\nv_add_f32 v%d, v%d, v%d" % (b, b, b+2, b+4, b+4, b+6, b, b, b+8, b, b, b+4))
    sum5(EI+2)
    k("s_lshl_b32 s%d, s%d, 9\ns_add_u32 s%d, s%d, %d" % (sT0, sMH, sT0, sT0, SFF))
    k("v_lshl_add_u32 v%d, v%d, 2, s%d" % (T+4, vL, sT0))
    k("ds_write_b32 v%d, v%d" % (T+4, EI+2))
    k("s_cmp_eq_u32 s%d, 1\ns_cbranch_scc1 L_k1_ewB" % sTY)
    sum5(EI+12)
    k("ds_write_b32 v%d, v%d offset:256" % (T+4, EI+12))
    k("s_branch L_k1_ewd")
    k("L_k1_ewB:")
    k("s_mul_i32 s%d, s%d, 384\ns_add_u32 s%d, s%d, %d" % (sT0, sMH, sT0, sT0, SSS))
    k("v_lshl_add_u32 v%d, v%d, 2, s%d" % (T+5, vM, sT0))
    for p in range(5): k("ds_write_b32 v%d, v%d offset:%d" % (T+5, EI+12+2*p, p*64))
    k("L_k1_ewd:")
    k("s_lshl_b32 s%d, s%d, 2\ns_add_u32 s%d, s%d, %d\nv_mov_b32 v%d, s%d\nv_mov_b32 v%d, s%d" % (sT0, sMH, sT0, sT0, FLG+24, T+6, sT0, T+7, sNon))
    k("ds_write_b32 v%d, v%d" % (T+6, T+7))
    k("L_k1_P2:")
    stamp(k, 1)
    if TRACE:
        k("s_lshl_b32 s83, s2, 11\ns_add_u32 s83, s83, 0x%x\nv_lshl_add_u32 v12, v0, 2, s83" % (STAMP_OFF + 0x40000))
        k("global_store_dword v12, v255, %s" % sp(pWs))
    sP, sMI, sNI = 4, 5, 6
    sAb, sBb = [72, 73, 74], [75, 76, 77]
    sR, sSh = 78, 79
    SO = SX
    AR, BR, AC = 12, 76, 176
    vA = [2, 3, 4, 5]; vB0, vB1, vOut, vLd, vFl, vFa = 6, 7, 8, 9, 10, 11
    k("s_sub_u32 s%d, s%d, 4" % (sP, sW))
    k("s_and_b32 s%d, s2, 7\ns_lshr_b32 s%d, s2, 3" % (sT0, sT1))
    k("s_lshr_b32 s%d, s%d, 1\ns_lshl_b32 s%d, s%d, 3\ns_and_b32 s%d, s%d, 7\ns_add_u32 s%d, s%d, s%d" % (sMI, sT0, sMI, sMI, sT2, sT1, sMI, sMI, sT2))
    k("s_and_b32 s%d, s%d, 1\ns_lshl_b32 s%d, s%d, 2\ns_lshr_b32 s%d, s%d, 3\ns_add_u32 s%d, s%d, s%d" % (sNI, sT0, sNI, sNI, sT2, sT1, sNI, sNI, sT2))
    X_, D_, ST_, PFr, tA, tB, tC = AR, AR+10, AR+20, AR+24, AR+32, AR+33, AR+34
    k("v_lshrrev_b32 v%d, 2, v%d\nv_lshlrev_b32 v%d, 4, v%d\nv_and_b32 v%d, 3, v%d" % (tA, vM, tA, tA, tB, vM))
    k("s_lshl_b32 s%d, s%d, 6\ns_lshl_b32 s%d, s%d, 2\ns_add_u32 s%d, s%d, s%d" % (sT0, sMI, sT1, sP, sT0, sT0, sT1))
    k("v_add3_u32 v%d, v%d, v%d, s%d" % (tA, tA, tB, sT0))
    k("s_mul_i32 s%d, s%d, 80" % (sT1, sNI))
    k("v_lshl_add_u32 v%d, v%d, 2, s%d" % (tB, vG, sT1))
    k("v_mul_u32_u24 v%d, 640, v%d\nv_add_u32 v%d, v%d, v%d" % (vOut, tA, vOut, vOut, tB))
    k("v_lshlrev_b32 v%d, 1, v%d\nv_lshlrev_b32 v%d, 2, v%d\nv_lshlrev_b32 v%d, 1, v%d" % (tC, vOut, vOut, vOut, tB, tB))
    k("v_lshlrev_b32 v%d, 3, v%d\nv_add_u32 v%d, 0x%x, v%d" % (tA, tA, tA, RST_OFF, tA))
    k("v_lshlrev_b32 v%d, 4, v%d\nv_add_u32 v%d, 4096, v%d" % (vB0, vL, vB1, vB0))
    for cb in range(5):
        k("global_load_dwordx2 %s, v%d, %s offset:%d" % (vr(X_+2*cb, 2), tC, sp(pX), cb*32))
        k("global_load_dwordx2 %s, v%d, %s offset:%d" % (vr(D_+2*cb, 2), tB, sp(pD), cb*32))
    k("s_mov_b32 s%d, 0\ns_mov_b32 s%d, 0x%x" % (sT3, sT2, PF_OFF))
    k("L_k1_pfl:")
    k("buffer_load_dwordx2 %s, v%d, %s, 0 offen%s" % (vr(ST_, 2), tA, sq(SWS), SC))
    k("buffer_load_dwordx4 %s, v%d, %s, s%d offen%s" % (vr(PFr, 4), vB0, sq(SWS), sT2, SC))
    k("buffer_load_dwordx4 %s, v%d, %s, s%d offen offset:1024%s" % (vr(PFr+4, 4), vB0, sq(SWS), sT2, SC))
    for f in range(4): k("s_xor_b32 s%d, s%d, %d\ns_lshl_b32 s%d, s%d, 10\nv_add_u32 v%d, s%d, v%d" % (sT0, sP, f, sT0, sT0, vA[f], sT0, vB0))
    k("s_mul_i32 s%d, s%d, 88\ns_mul_i32 s%d, s%d, 88" % (sT0, sMI, sT1, sNI))
    for g, (mul, add) in enumerate(((8, 0), (4, 32), (10, 48))):
        k("s_mul_i32 s%d, s%d, %d\ns_add_u32 s%d, s%d, %d\ns_add_u32 s%d, s%d, s%d\ns_add_u32 s%d, s%d, s%d" % (sAb[g], sP, mul, sAb[g], sAb[g], add, sBb[g], sAb[g], sT1, sAb[g], sAb[g], sT0))
        k("s_lshl_b32 s%d, s%d, 12\ns_mul_i32 s%d, s%d, 5120\ns_add_u32 s%d, s%d, 0x%x" % (sAb[g], sAb[g], sBb[g], sBb[g], sBb[g], sBb[g], B2_OFF))
    def region(dst, src):
        k("s_and_b32 s%d, s%d, 1\ns_mul_i32 s%d, s%d, 25600\ns_cmp_lt_u32 s%d, 2\ns_cselect_b32 s%d, %d, 0\ns_add_u32 s%d, s%d, s%d" % (dst, src, dst, dst, src, sT0, 2*SL, dst, dst, sT0))
    region(sR, sP)
    k("v_add_u32 v%d, s%d, v%d" % (vLd, sR, vB0))
    k("s_lshl_b32 s%d, s%d, 8\ns_add_u32 s%d, s%d, 0x%x\nv_lshl_add_u32 v%d, v%d, 2, s%d\ns_lshl_b32 s%d, s%d, 2" % (sT0, sMI, sT0, sT0, FL_OFF, vFa, vL, sT0, sSh, sP))
    k("s_waitcnt vmcnt(0)")
    k("v_xor_b32 v%d, s%d, v%d" % (tB, sNon, ST_+1))
    for r in range(8): k("v_xor_b32 v%d, s%d, v%d\nv_or_b32 v%d, v%d, v%d" % (tC, sNon, PFr+r, tB, tB, tC))
    k("v_cmp_ne_u32 vcc, 0, v%d" % tB)
    k("s_add_u32 s%d, s%d, 1" % (sT3, sT3))
    k("s_cbranch_vccz L_k1_pfd")
    k("s_sleep 4\ns_cmp_lt_u32 s%d, 0x40000\ns_cbranch_scc1 L_k1_pfl" % sT3)
    k("L_k1_pfd:")
    steps = [(0, i) for i in range(8)] + [(1, i) for i in range(4)] + [(2, i) for i in range(10)]
    NS = len(steps)
    LS = [17, 18, 19, 20, 21] if opt("lsl", 1) else [7, 10, 13, 16, 19]
    NA, NB = 4, 5
    vm = []
    def ldB(s, buf):
        g, i = steps[s]
        o = ["s_add_u32 s%d, s%d, %d" % (sT1, sBb[g], i*5120)]
        for f in range(5):
            o.append("buffer_load_dwordx4 %s, v%d, %s, s%d offen offset:%d%s" % (vr(BR+buf*20+f*4, 4), vB1 if f == 4 else vB0, sq(SWS), sT1, (f & 3)*1024, S1))
            vm.append(("B", s))
        return o
    def ldA(s):
        g, i = steps[s]
        o = ["s_add_u32 s%d, s%d, %d" % (sT0, sAb[g], i*4096)]
        for f in range(4):
            o.append("buffer_load_dwordx4 %s, v%d, %s, s%d offen%s" % (vr(AR+(s % NA)*16+f*4, 4), vA[f], sq(SWS), sT0, S1))
            vm.append(("A", s))
        return o
    def vwait(tags):
        idx = max(i for i, x in enumerate(vm) if x in tags)
        return min(63, len(vm)-1-idx)
    bbuf = {}
    streamed = [s for s in range(NS) if s not in LS]
    for j in range(NB):
        bbuf[streamed[j]] = j
        for x in ldB(streamed[j], j): k(x)
    nextB = NB
    srd(k, SO, pOut, 2048*640*4)
    k("v_mov_b32 v%d, %d" % (AR+40, FLG))
    k("s_lshr_b32 s%d, s%d, 1\ns_add_u32 s%d, s%d, 9" % (sT1, sP, sT1, sT1))
    stamp(k, 2)
    wait_done("L_k1_p2w", "s%d" % sT1, AR+40, AR+44)
    for j, s_ in enumerate(LS):
        g, i = steps[s_]
        k("s_add_u32 m0, s%d, %d\ns_add_u32 s%d, s%d, %d" % (sR, j*5120, sT1, sBb[g], i*5120))
        for f in range(4):
            k("buffer_load_dwordx4 v%d, %s, s%d offen offset:%d%s lds" % (vB0, sq(SWS), sT1, f*1024, S1)); vm.append(("L", s_))
        k("s_add_u32 m0, s%d, %d" % (sR, j*5120+4096))
        k("buffer_load_dwordx4 v%d, %s, s%d offen%s lds" % (vB1, sq(SWS), sT1, S1)); vm.append(("L", s_))
    stamp(k, 3)
    def flag_load():
        vm.append(("F", 0))
        return "buffer_load_dword v%d, v%d, %s, 0 offen%s" % (vFl, vFa, sq(SWS), SC)
    def flag_check(g):
        lab = "L_k1_fc%d" % g
        k("s_waitcnt vmcnt(%d)" % vwait([("F", 0)]))
        k("s_mov_b32 s%d, 0\ns_branch %s_c" % (sT3, lab))
        k("%s_r:" % lab)
        k("s_sleep 2\nbuffer_load_dword v%d, v%d, %s, 0 offen%s\ns_waitcnt vmcnt(0)" % (vFl, vFa, sq(SWS), SC))
        k("%s_c:" % lab)
        k("v_cmp_eq_u32 vcc, s%d, v%d" % (sNon, vFl))
        k("s_add_u32 s%d, s%d, %d\ns_add_u32 s%d, s%d, 1" % (sT0, sSh, 16*g, sT3, sT3))
        k("s_lshr_b64 s[14:15], vcc, s%d\ns_and_b32 s14, s14, 15\ns_cmp_eq_u32 s14, 15\ns_cbranch_scc1 %s_d" % (sT0, lab))
        k("s_cmp_lt_u32 s%d, 0x40000\ns_cbranch_scc1 %s_r" % (sT3, lab))
        k("%s_d:" % lab)
    k("v_and_b32 v%d, s%d, v%d\nv_lshlrev_b32 v%d, 16, v%d\nv_rcp_f32 v%d, v%d" % (ST_+1, sMASK, ST_, ST_, ST_, ST_+1, ST_+1))
    X4, D4, T4 = AR+24, AR+28, AR+32
    for cb in range(5):
        for h in range(2):
            k("v_lshlrev_b32 v%d, 16, v%d\nv_and_b32 v%d, s%d, v%d\nv_lshlrev_b32 v%d, 16, v%d\nv_and_b32 v%d, s%d, v%d" % (X4+2*h, X_+2*cb+h, X4+2*h+1, sMASK, X_+2*cb+h, D4+2*h, D_+2*cb+h, D4+2*h+1, sMASK, D_+2*cb+h))
        def rnd():
            for h in range(2): k("v_cvt_pk_bf16_f32 v%d, v%d, v%d" % (T4+4+h, T4+2*h, T4+2*h+1))
            for h in range(2): k("v_lshlrev_b32 v%d, 16, v%d\nv_and_b32 v%d, s%d, v%d" % (T4+2*h, T4+4+h, T4+2*h+1, sMASK, T4+4+h))
        for r in range(4): k("v_sub_f32 v%d, v%d, v%d" % (T4+r, X4+r, ST_))
        rnd()
        for r in range(4): k("v_mul_f32 v%d, v%d, v%d" % (T4+r, T4+r, ST_+1))
        rnd()
        for r in range(4): k("v_mul_f32 v%d, v%d, v%d" % (T4+r, T4+r, D4+r))
        rnd()
        for r in range(4): k("v_add_f32 v%d, v%d, v%d" % (AC+cb*4+r, T4+r, X4+r))
    k(flag_load())
    flag_check(0)
    stamp(k, 4)
    for s_ in range(NA):
        for x in ldA(s_): k(x)
    pend = []
    for s_ in range(NS):
        fill = pend; pend = []
        need = [("A", s_)] + ([("B", s_)] if s_ not in LS else [])
        for x in fill: k(x)
        k("s_waitcnt vmcnt(%d)%s" % (vwait(need), " lgkmcnt(0)" if s_ in LS else ""))
        for f in range(4):
            for cb in range(5):
                c = AC + (f*5+cb)*4
                k("v_mfma_f32_16x16x32_bf16 %s, %s, %s, %s" % (vr(c, 4), vr(BR+bbuf[s_]*20+cb*4, 4), vr(AR+(s_ % NA)*16+f*4, 4), vr(c, 4) if (s_ or f == 0) else "0"))
        nA = s_ + NA
        if nA < NS:
            if steps[nA][1] == 0:
                if steps[nA][0] == 2: stamp(k, 0)
                flag_check(steps[nA][0])
                if steps[nA][0] == 2: stamp(k, 7)
            pend += ldA(nA)
        fb = bbuf[s_]
        if s_+2 in LS:
            bbuf[s_+2] = fb
            j = LS.index(s_+2)
            pend.append("s_waitcnt vmcnt(%d)" % vwait([("L", s_+2)]))
            for f in range(5): pend.append("ds_read_b128 %s, v%d offset:%d" % (vr(BR+fb*20+f*4, 4), vLd, j*5120+f*1024))
        elif nextB < len(streamed):
            bbuf[streamed[nextB]] = fb
            pend += ldB(streamed[nextB], fb); nextB += 1
        if s_+NA+2 < NS and steps[s_+NA+2][1] == 0: pend.append(flag_load())
    stamp(k, 5)
    for f in range(1, 4):
        for cb in range(5): k("ds_write_b128 v%d, %s offset:%d" % (vLd, vr(AC+(f*5+cb)*4, 4), (f-1)*5120+cb*1024))
    for f in range(1, 4):
        k("s_xor_b32 s%d, s%d, %d" % (sT2, sP, f))
        region(sT1, sT2)
        k("v_add_u32 v%d, s%d, v%d" % (vA[f], sT1, vB0))
    k("s_waitcnt lgkmcnt(0)\ns_barrier")
    for cb in range(5):
        for f in range(1, 4): k("ds_read_b128 %s, v%d offset:%d" % (vr(AR+(cb*3+f-1)*4, 4), vA[f], (f-1)*5120+cb*1024))
    for cb in range(5):
        k("s_waitcnt lgkmcnt(%d)" % (12-3*cb))
        q = AR+cb*12; c = AC+cb*4
        for h in range(0, 4, 2):
            k("v_pk_add_f32 %s, %s, %s\nv_pk_add_f32 %s, %s, %s" % (vr(c+h, 2), vr(c+h, 2), vr(q+h, 2), vr(q+4+h, 2), vr(q+4+h, 2), vr(q+8+h, 2)))
        for h in range(0, 4, 2): k("v_pk_add_f32 %s, %s, %s" % (vr(c+h, 2), vr(c+h, 2), vr(q+4+h, 2)))
        k("buffer_store_dwordx4 %s, v%d, %s, 0 offen offset:%d" % (vr(c, 4), vOut, sq(SO), cb*64))
    stamp(k, 6)
    stamp_out(k, 0, 8, pWs, 76)
    k("s_endpgm")

    k("L_k1_C:")
    k("s_setprio 3")
    aX = [12, 13]; aW = [14, 15, 16, 17]
    XS = [20, 36]
    WR = 52
    ACC = 84
    k("v_lshrrev_b32 v%d, 1, v%d\nv_xor_b32 v%d, v%d, v%d\nv_lshlrev_b32 v%d, 4, v%d" % (vT[0], vM, vT[0], vT[0], vG, vT[0], vT[0]))
    k("v_lshl_add_u32 v%d, v%d, 7, v%d" % (vT[5], vM, vT[0]))
    k("s_lshl_b32 s%d, s%d, 13" % (sT0, sMH))
    k("v_add_u32 v%d, s%d, v%d\nv_xor_b32 v%d, 64, v%d" % (aX[0], sT0, vT[5], aX[1], aX[0]))
    k("v_lshrrev_b32 v%d, 2, v%d\nv_lshl_add_u32 v%d, v%d, 3, v%d\nv_lshlrev_b32 v%d, 7, v%d" % (vT[0], vM, vT[0], vG, vT[0], vT[0], vT[0]))
    k("v_and_b32 v%d, 1, v%d\nv_lshlrev_b32 v%d, 1, v%d\nv_lshrrev_b32 v%d, 3, v%d\nv_or_b32 v%d, v%d, v%d" % (vT[1], vG, vT[1], vT[1], vT[2], vM, vT[1], vT[1], vT[2]))
    k("v_lshl_add_u32 v%d, v%d, 5, v%d" % (vT[0], vT[1], vT[0]))
    k("v_and_b32 v%d, 3, v%d\nv_lshl_add_u32 v%d, v%d, 3, v%d\nv_add_u32 v%d, 16384, v%d" % (vT[1], vM, vT[0], vT[1], vT[0], vT[0], vT[0]))
    k("s_lshl_b32 s%d, s%d, 1\ns_add_u32 s%d, s%d, s%d" % (sC, sI, sC, sC, sMH))
    k("s_mov_b32 s%d, 0\ns_mov_b32 s%d, 0" % (sIt, sRd))
    k("s_cmp_eq_u32 s%d, 1\ns_cbranch_scc1 L_k1_CB" % sTY)

    def c_loop(tag, frags, R, D, WR, addr_regs, post):
        n = len(frags); N = 2*n
        assert N % R == 0
        def wreg(p): return WR + (p % R)*4
        def rdW(p): return frags[p % n][0]((p % N)//n, wreg(p))
        def rdX(h): return ["ds_read_b128 %s, v%d offset:%d" % (vr(XS[h]+4*b, 4), aX[h], b*2048) for b in range(4)]
        def mf(p): return [frags[p % n][1](b, XS[(p % N)//n]+4*b, wreg(p)) for b in range(4)]
        adv = ["s_mov_b32 s%d, %d\ns_add_u32 s%d, s%d, 1\ns_cmp_eq_u32 s%d, 3\ns_cselect_b32 s%d, 0, s%d\ns_cselect_b32 s%d, %d, s%d" % (sDelta, SL, sRd, sRd, sRd, sRd, sRd, sDelta, (-2*SL) & 0xffffffff, sDelta)]
        adv += ["v_add_u32 v%d, s%d, v%d" % (r, sDelta, r) for r in addr_regs]
        vFl, vFa, vDa, vDv = 18, 19, vT[2], vT[3]
        sF = sA
        import re as _re
        def build():
            seq = []
            for j in range(N):
                loads = [("ld", x, ("W", j)) for x in rdW(j)]
                if j == 0: loads = [("ld", x, ("X0", b)) for b, x in enumerate(rdX(0)[:2])] + loads
                if j == 1: loads = [("ld", x, ("X0", b+2)) for b, x in enumerate(rdX(0)[2:])] + loads
                if D <= j < D+4: loads += [("ld", rdX(1)[j-D], ("X1", j-D))]
                if j == N-3: loads += [("ld", "ds_read_b32 v%d, v%d " % (vFl, vFa), ("F", 0))]
                if j == N-1: loads += [("ld", "ds_write_b32 v%d, v%d" % (vDa, vDv), ("DW", 0))]
                p = j - D
                ms = mf(p % N)
                for b in range(4):
                    need = [("W", p % N)] + [("X%d" % ((p % N)//n), bb) for bb in range(4)]
                    seq.append(("mf", ms[b], (need, p < 0)))
                    if b < 3:
                        if loads: seq.append(loads.pop(0))
                    else: seq += loads
                    if j == N-1 and b == 1: seq.append(("use", "v_readfirstlane_b32 s%d, v%d" % (sF, vFl), ([("F", 0)], False)))
                if j == D: seq.append(("x", adv[0], None))
                if j == D+1: seq.append(("x", "v_xor_b32 v%d, 4, v%d" % (vFa, vFa), None))
                if j == D+2: seq.append(("x", "v_add_u32 v%d, 1, v%d" % (vDv, vDv), None))
            pos0 = next(i for i, x in enumerate(seq) if x[0] == "x")
            used = set(); ins = []
            for r, a_ in zip(addr_regs, adv[1:]):
                last = max(i for i, x in enumerate(seq) if x[0] == "ld" and _re.search(r", v%d " % r, x[1]+" "))
                i = max(last, pos0) + 1
                while i < len(seq) and not (seq[i][0] == "mf" and i not in used and (i+1 >= len(seq) or seq[i+1][0] == "mf")): i += 1
                i = min(i, len(seq)-1)
                used.add(i); ins.append((i, a_))
            for i, a_ in sorted(ins, reverse=True): seq.insert(i+1, ("x", a_, None))
            return seq
        def emit(seq, prev):
            issued = [(t, True) for t in prev]
            cur = 99
            for kind, text, tg in seq:
                if kind == "ld": issued.append((tg, False)); cur += 1
                elif kind == "lab": cur = 99
                elif kind in ("mf", "use"):
                    w = 15
                    for t in tg[0]:
                        idx = max(i for i, x in enumerate(issued) if x == (t, tg[1]))
                        w = min(w, len(issued)-1-idx)
                    if w < cur:
                        k("s_waitcnt lgkmcnt(%d)" % w); cur = w
                k(text)
        L = "L_k1_cl" + tag
        k("v_mov_b32 v%d, %d\nv_mov_b32 v%d, 0" % (vFa, FLG+16, vDv))
        k("s_lshl_b32 s%d, s%d, 2\ns_add_u32 s%d, s%d, %d\nv_mov_b32 v%d, s%d" % (sT0, sW, sT0, sT0, FLG, vDa, sT0))
        s2 = build()
        allld = [x[2] for x in s2 if x[0] == "ld"]
        idx2 = next(i for i, x in enumerate(s2) if x[0] == "mf" and not x[2][1])
        k("%s_sp:" % L)
        k("ds_read_b32 v%d, v%d\ns_waitcnt lgkmcnt(0)\nv_readfirstlane_b32 s%d, v%d" % (vFl, vFa, sF, vFl))
        k("s_cmp_gt_u32 s%d, s%d\ns_cbranch_scc0 %s_sp" % (sF, sIt, L))
        k("s_cmp_lg_u32 s%d, 0\ns_cbranch_scc1 %s" % (sIt, L))
        stamp(k, 5)
        for x in s2[:idx2]:
            if x[0] == "ld": k(x[1])
        k("s_branch %s_mid" % L)
        k(".p2align 6")
        k("%s:" % L)
        trace(sIt, 4, 1)
        s2 = s2[:idx2] + [("lab", "%s_mid:" % L, None)] + s2[idx2:]
        lastmf = max(i for i, x in enumerate(s2) if x[0] == "mf")
        s2.insert(lastmf, ("x", "s_add_u32 s%d, s%d, 1\ns_cmp_eq_u32 s%d, 10\ns_cselect_b32 s%d, 0, s%d\ns_cmp_gt_u32 s%d, s%d" % (sIt, sIt, sIt, sF, sF, sF, sIt), None))
        emit(s2, allld)
        if TRACE:
            trace(sIt, 4, 0)
            k("s_cmp_gt_u32 s%d, s%d" % (sF, sIt))
        k("s_cbranch_scc1 %s" % L)
        k("s_cmp_lt_u32 s%d, 10\ns_cbranch_scc1 %s_sp" % (sIt, L))
        k("v_mov_b32 v%d, %d" % (vFa, FLG+24))
        k("ds_read_b64 %s, v%d" % (vr(vT[0], 2), vFa))
        k("s_waitcnt lgkmcnt(6)")
        for x in mf(N-D): k(x)
        k("s_branch %s_ec" % L)
        k("%s_es:" % L)
        k("ds_read_b64 %s, v%d" % (vr(vT[0], 2), vFa))
        k("%s_ec:" % L)
        k("s_waitcnt lgkmcnt(0)")
        k("v_min_u32 v%d, v%d, v%d\nv_readfirstlane_b32 s%d, v%d" % (vT[0], vT[0], vT[1], sNon, vT[0]))
        k("s_cmp_eq_u32 s%d, 0\ns_cbranch_scc1 %s_es" % (sNon, L))
        tail = []
        for p in range(N-D+1, N): tail += mf(p)
        interleave(k, tail, post(), lead=2, per=1)

    c0 = -2*math.sqrt(2/math.pi)*LOG2E
    def ffn_epilogue(ACCF, ncb, S4, Mb, RSb, Sb, T, O, K0, vSt, blocks):
        for bi, (b, pr_) in enumerate(blocks):
            sel = b & 1
            bc = lambda base: vr(base + (b & ~1), 2)
            os0 = " op_sel:[%d,0,0] op_sel_hi:[%d,1,1]" % (sel, sel)
            items = [(cb, hh) for cb in (2*pr_, 2*pr_+1) for hh in range(2)]
            G = lambda cb, hh: ACCF + (cb*4+b)*4 + 2*hh
            U = lambda cb, hh: ACCF + ((ncb+cb)*4+b)*4 + 2*hh
            Tm = lambda cb, hh: T + (cb & 1)*4 + 2*hh
            for cb, hh in items: k("v_pk_fma_f32 %s, %s, %s, %s%s neg_lo:[1,0,0] neg_hi:[1,0,0]" % (vr(G(cb,hh),2), bc(Mb), vr(S4+cb*4+2*hh,2), vr(G(cb,hh),2), os0))
            for cb, hh in items: k("v_pk_mul_f32 %s, %s, %s op_sel:[%d,0] op_sel_hi:[%d,1]" % (vr(G(cb,hh),2), bc(RSb), vr(G(cb,hh),2), sel, sel))
            for cb, hh in items: k("v_pk_mul_f32 %s, %s, %s" % (vr(Tm(cb,hh),2), vr(G(cb,hh),2), vr(G(cb,hh),2)))
            for cb, hh in items: k("v_pk_fma_f32 %s, %s, %s, %s op_sel:[0,0,1] op_sel_hi:[1,0,1]" % (vr(Tm(cb,hh),2), vr(Tm(cb,hh),2), vr(K0,2), vr(K0,2)))
            for cb, hh in items: k("v_pk_mul_f32 %s, %s, %s" % (vr(Tm(cb,hh),2), vr(Tm(cb,hh),2), vr(G(cb,hh),2)))
            for cb, hh in items:
                k("v_exp_f32 v%d, v%d\nv_exp_f32 v%d, v%d" % (Tm(cb,hh), Tm(cb,hh), Tm(cb,hh)+1, Tm(cb,hh)+1))
                k("v_pk_fma_f32 %s, %s, %s, %s%s neg_lo:[1,0,0] neg_hi:[1,0,0]" % (vr(U(cb,hh),2), bc(Mb), vr(S4+(ncb+cb)*4+2*hh,2), vr(U(cb,hh),2), os0))
            for cb, hh in items: k("v_pk_fma_f32 %s, %s, %s, %s op_sel:[0,%d,%d] op_sel_hi:[1,%d,%d]" % (vr(Tm(cb,hh),2), vr(Tm(cb,hh),2), bc(Sb), bc(Sb), sel, sel, sel, sel))
            for cb, hh in items:
                k("v_rcp_f32 v%d, v%d\nv_rcp_f32 v%d, v%d" % (Tm(cb,hh), Tm(cb,hh), Tm(cb,hh)+1, Tm(cb,hh)+1))
                k("v_pk_mul_f32 %s, %s, %s" % (vr(G(cb,hh),2), vr(G(cb,hh),2), vr(U(cb,hh),2)))
            for cb, hh in items: k("v_pk_mul_f32 %s, %s, %s" % (vr(G(cb,hh),2), vr(G(cb,hh),2), vr(Tm(cb,hh),2)))
            Ob = O + (bi & 1)*4
            for j_, (cb, hh) in enumerate(items): k("v_cvt_pk_bf16_f32 v%d, v%d, v%d" % (Ob+j_, G(cb,hh), G(cb,hh)+1))
            if pr_: k("s_add_u32 s%d, s%d, 4096" % (sT0, sKS))
            k("buffer_store_dwordx4 %s, v%d, %s, s%d offen offset:%d%s" % (vr(Ob, 4), vSt, sq(SWS), sT0 if pr_ else sKS, b*1024, S1))

    def a2_flag(group, nwait, va, vv):
        k("s_lshl_b32 s%d, s%d, 6\ns_lshl_b32 s%d, s%d, 1\ns_add_u32 s%d, s%d, s%d\ns_add_u32 s%d, s%d, s%d\ns_lshl_b32 s%d, s%d, 2\ns_add_u32 s%d, s%d, 0x%x" %
          (sT0, sC, sT1, sJJ, sT0, sT0, sT1, sT0, sT0, sNH, sT0, sT0, sT0, sT0, FL_OFF + group*64))
        k("v_mov_b32 v%d, s%d\nv_mov_b32 v%d, s%d" % (va, sT0, vv, sNon))
        k("s_waitcnt vmcnt(%d)\ns_mov_b64 exec, 1" % nwait)
        k("buffer_store_dword v%d, v%d, %s, 0 offen%s\ns_mov_b64 exec, -1" % (vv, va, sq(SWS), SC))

    def ffn_frag(ACCF, idx, areg, gu):
        rd = lambda h, reg: ["ds_read_b64_tr_b16 %s, v%d offset:%d" % (vr(reg+2*jx, 2), areg, h*4096+jx*512+gu*8192) for jx in range(2)]
        mf = lambda b, x, w: "v_mfma_f32_16x16x32_bf16 %s, %s, %s, %s" % (vr(ACCF+(idx*4+b)*4, 4), vr(w, 4), vr(x, 4), vr(ACCF+(idx*4+b)*4, 4))
        return (rd, mf)

    k("s_lshl_b32 s%d, s%d, 14" % (sT0, sNH))
    k("v_add_u32 v%d, s%d, v%d" % (aW[0], sT0, vT[0]))
    for c in range(1, 4): k("v_xor_b32 v%d, %d, v%d" % (aW[c], 32*c, aW[0]))
    k("s_lshr_b32 s%d, s%d, 5\ns_lshl_b32 s%d, s%d, 1\ns_add_u32 s%d, s%d, s%d\ns_mul_i32 s%d, s%d, 88\ns_add_u32 s%d, s%d, s%d\ns_lshl_b32 s%d, s%d, 12" % (sT0, sCol, sT1, sNH, sT0, sT0, sT1, sT1, sC, sT0, sT0, sT1, sKS, sT0))
    for r in range(0, 128, 2): k("v_mov_b64 v[%d:%d], 0" % (ACC+r, ACC+r+1))
    srd(k, SWS, pWs, WS_NREC)
    E = 212
    S4 = E; Mb, RSb, Sb = XS[0], XS[0]+4, XS[0]+8; K0 = XS[0]+12
    def postA():
        o = ["s_lshl_b32 s%d, s%d, 9\ns_add_u32 s%d, s%d, %d\nv_lshl_add_u32 v%d, v%d, 4, s%d" % (sT0, sNH, sT0, sT0, SFF, vT[1], vG, sT0),
             "s_mul_i32 s%d, s%d, 768\ns_add_u32 s%d, s%d, %d\nv_lshl_add_u32 v%d, v%d, 2, s%d" % (sT0, sMH, sT0, sT0, STAT_M, vT[2], vM, sT0)]
        for b in range(0, 4, 2):
            for a, off in ((Mb, 0), (RSb, 64), (Sb, 128)):
                o.append("ds_read2_b32 %s, v%d offset0:%d offset1:%d" % (vr(a+b, 2), vT[2], off+b*16, off+b*16+16))
        for j in range(8): o.append("ds_read_b128 %s, v%d offset:%d" % (vr(S4+4*j, 4), vT[1], j*64))
        o += ["v_lshlrev_b32 v%d, 4, v%d" % (vT[3], vL), "v_mov_b32 v%d, %s\nv_mov_b32 v%d, %s" % (K0, f32(c0*0.044715), K0+1, f32(c0))]
        return o
    fr = []
    for cb in range(4):
        for gu in range(2): fr.append(ffn_frag(ACC, gu*4+cb, aW[cb], gu))
    c_loop("A", fr, 8, opt("da", 5), WR, aX + aW, postA)
    stamp(k, 1)
    k("s_waitcnt lgkmcnt(0)")
    ffn_epilogue(ACC, 4, S4, Mb, RSb, Sb, E+32, XS[1], K0, vT[3], [(b, p) for p in range(2) for b in range(4)])
    stamp(k, 2)
    a2_flag(0, 0, vT[0], vT[1])
    stamp(k, 4)
    finish(20)

    k("L_k1_CB:")
    WRB = 52
    ACCF = 76
    ACCS = 140
    ca = Alloc(220)
    cLr = ca(5); cMu = ca(5); cKr = ca(5); cKk = ca(5); cA2 = ca(5); cBt = ca(5)
    k("s_lshl_b32 s%d, s%d, 6" % (sT0, sNH))
    k("v_xor_b32 v%d, s%d, v%d\nv_xor_b32 v%d, 32, v%d" % (aW[0], sT0, vT[0], aW[1], aW[0]))
    k("s_mul_i32 s%d, s%d, 10240\ns_add_u32 s%d, s%d, 32768" % (sT0, sNH, sT0, sT0))
    k("v_add_u32 v%d, s%d, v%d\nv_xor_b32 v%d, 64, v%d" % (aW[2], sT0, vT[5], aW[3], aW[2]))
    k("s_lshr_b32 s%d, s%d, 5\ns_add_u32 s%d, s%d, s%d\ns_mul_i32 s%d, s%d, 88\ns_add_u32 s%d, s%d, s%d\ns_lshl_b32 s%d, s%d, 12" % (sT0, sCol, sT0, sT0, sNH, sT1, sC, sT0, sT0, sT1, sKS, sT0))
    k("s_mul_i32 s%d, s%d, 80\ns_mul_i32 s%d, s%d, 40\ns_add_u32 s%d, s%d, s%d" % (sT0, sJJ, sT1, sNH, sT1, sT1, sT0))
    k("v_add_u32 v%d, s%d, v%d\nv_lshlrev_b32 v%d, 1, v%d" % (vT[0], sT1, vSL, vT[0], vT[0]))
    k("v_lshrrev_b32 v%d, 3, v%d\nv_xor_b32 v%d, 1, v%d\nv_lshlrev_b32 v%d, 31, v%d" % (vT[4], vM, vT[4], vT[4], vT[4], vT[4]))
    P = XS[0]
    for q in range(5):
        for n, p in enumerate((pLre, pLim, pLdt)):
            k("global_load_ushort v%d, v%d, %s offset:%d" % (P+n*5+q, vT[0], sp(p), q*16))
    srd(k, SWS, pWs, WS_NREC)
    for r in range(0, 144, 2): k("v_mov_b64 v[%d:%d], 0" % (ACCF+r, ACCF+r+1))
    k("s_lshl_b32 s%d, s%d, 1\ns_add_u32 s%d, s%d, s%d\ns_lshl_b32 s%d, s%d, 14\ns_add_u32 s%d, s%d, 0x%x" % (sT2, sJJ, sT2, sT2, sNH, sT0, sT2, sT0, sT0, CAR_OFF))
    srd(k, SP0, pWs, 16384, "s%d" % sT0)
    k("s_waitcnt vmcnt(0)")
    def cpow5(dr, dk, n, t0, t1):
        R5 = range(5)
        for q in R5: k("v_mul_f32 v%d, %s, v%d\nv_mul_f32 v%d, %s, v%d" % (t0+q, n, cA2+q, t1+q, n, cBt+q))
        for q in R5: k("v_exp_f32 v%d, v%d\nv_rndne_f32 v%d, v%d" % (t0+q, t0+q, dr[q], t1+q))
        for q in R5: k("v_sub_f32 v%d, v%d, v%d" % (t1+q, t1+q, dr[q]))
        for q in R5: k("v_cos_f32 v%d, v%d\nv_sin_f32 v%d, v%d" % (dr[q], t1+q, dk[q], t1+q))
        for q in R5: k("v_mul_f32 v%d, v%d, v%d\nv_mul_f32 v%d, v%d, v%d" % (dr[q], dr[q], t0+q, dk[q], dk[q], t0+q))
    r5 = lambda b: [b+q for q in range(5)]
    lre, lim, ldt, t0, t1 = P, P+5, P+10, P+16, P+21
    for q in range(15): k("v_lshlrev_b32 v%d, 16, v%d" % (P+q, P+q))
    for q in range(5): k("v_xor_b32 v%d, v%d, v%d\nv_mul_f32 v%d, %s, v%d" % (lim+q, lim+q, vT[4], ldt+q, f32(LOG2E), ldt+q))
    for q in range(5): k("v_exp_f32 v%d, v%d" % (ldt+q, ldt+q))
    for q in range(5): k("v_cvt_pk_bf16_f32 v%d, v%d, v%d" % (ldt+q, ldt+q, ldt+q))
    for q in range(5): k("v_lshlrev_b32 v%d, 16, v%d" % (ldt+q, ldt+q))
    for q in range(5): k("v_mul_f32 v%d, v%d, v%d\nv_mul_f32 v%d, v%d, v%d" % (cA2+q, ldt+q, lre+q, cBt+q, ldt+q, lim+q))
    for q in range(5): k("v_mul_f32 v%d, %s, v%d\nv_mul_f32 v%d, %s, v%d" % (cA2+q, f32(LOG2E), cA2+q, cBt+q, f32(1/(2*math.pi)), cBt+q))
    cpow5(r5(cLr), r5(cMu), "1.0", t0, t1)
    for q in range(5): k("v_add_f32 v%d, -1.0, v%d\nv_mul_f32 v%d, v%d, v%d" % (t0+q, cLr+q, t1+q, lre+q, lre+q))
    for q in range(5): k("v_fmac_f32 v%d, v%d, v%d" % (t1+q, lim+q, lim+q))
    for q in range(5): k("v_rcp_f32 v%d, v%d" % (t1+q, t1+q))
    for q in range(5): k("v_mul_f32 v%d, v%d, v%d\nv_mul_f32 v%d, v%d, v%d" % (cKr+q, t0+q, lre+q, cKk+q, cMu+q, lre+q))
    for q in range(5): k("v_fmac_f32 v%d, v%d, v%d\nv_fma_f32 v%d, -v%d, v%d, v%d" % (cKr+q, cMu+q, lim+q, cKk+q, t0+q, lim+q, cKk+q))
    for q in range(5): k("v_add_f32 v%d, v%d, v%d" % (t1+q, t1+q, t1+q))
    for q in range(5): k("v_mul_f32 v%d, v%d, v%d\nv_mul_f32 v%d, v%d, v%d" % (cKr+q, cKr+q, t1+q, cKk+q, cKk+q, t1+q))
    for s in range(1, 4): k("v_cmp_eq_u32 %s, %d, v%d" % (sp(16+2*s), s, vG))
    def ssm_frag(q):
        rd = lambda h, reg: ["ds_read_b128 %s, v%d offset:%d" % (vr(reg, 4), aW[2+h], q*2048)]
        mf = lambda b, x, w: "v_mfma_f32_16x16x32_bf16 %s, %s, %s, %s" % (vr(ACCS+(q*4+b)*4, 4), vr(x, 4), vr(w, 4), vr(ACCS+(q*4+b)*4, 4))
        return (rd, mf)
    fr = [ssm_frag(q) for q in range(5)]
    for cb in range(2):
        for gu in range(2): fr.append(ffn_frag(ACCF, gu*2+cb, aW[cb], gu))
    M4 = XS[0]
    def postB():
        o = ["s_mul_i32 s%d, s%d, 768\ns_add_u32 s%d, s%d, %d\nv_lshl_add_u32 v%d, v%d, 4, s%d\nv_lshl_add_u32 v%d, v%d, 2, s%d" % (sT0, sMH, sT0, sT0, STAT_M, vT[3], vG, sT0, vT[2], vM, sT0),
             "s_mul_i32 s%d, s%d, 384\ns_add_u32 s%d, s%d, %d\nv_lshl_add_u32 v%d, v%d, 2, s%d" % (sT0, sNH, sT0, sT0, SSS, vT[1], vM, sT0)]
        for b in range(4): o.append("ds_read_b128 %s, v%d offset:%d" % (vr(M4+4*b, 4), vT[3], b*64))
        for q in range(5): o.append("ds_read_b32 v%d, v%d offset:%d" % ([12, 14, 16, 18, 250][q], vT[1], q*64))
        return o
    c_loop("B", fr, 6, opt("db", 5), WRB, aX + aW, postB)
    stamp(k, 1)
    Sq = [12, 14, 16, 18, 250]
    RS4 = XS[1]
    for b in range(4): k("ds_read_b128 %s, v%d offset:%d" % (vr(RS4+4*b, 4), vT[3], 256+b*64))
    Z = [[ACCS + (q*4 + (t >> 2))*4 + (t & 3) for t in range(16)] for q in range(5)]
    H = [[52+q, 57+q] for q in range(5)]
    c16r, c16k = r5(62), r5(67)
    k("s_waitcnt lgkmcnt(4)")
    for t in range(0, 16, 2):
        for q in range(5): k("v_pk_fma_f32 %s, %s, %s, %s op_sel_hi:[1,0,1] neg_lo:[1,0,0] neg_hi:[1,0,0]" % (vr(Z[q][t], 2), vr(M4+t, 2), vr(Sq[q], 2), vr(Z[q][t], 2)))
    k("s_waitcnt lgkmcnt(0)")
    for t in range(16):
        if t % 2 == 0:
            for q in range(5): k("v_pk_mul_f32 %s, %s, %s" % (vr(Z[q][t], 2), vr(RS4+t, 2), vr(Z[q][t], 2)))
        if t >= 1:
            prev = [Z[q][0] if t == 1 else H[q][t & 1] for q in range(5)]
            cur = [H[q][(t+1) & 1] for q in range(5)]
            for q in range(5): k("v_fma_f32 v%d, v%d, v%d, v%d" % (cur[q], cLr+q, prev[q], Z[q][t]))
            for q in range(5): k("v_fmac_f32_dpp v%d, v%d, v%d%s" % (cur[q], prev[q], cMu+q, DPP))
    cpow5(c16r, c16k, f32(16.0), 20, 25)
    a_ = [H[q][0] for q in range(5)]; b_ = [H[q][1] for q in range(5)]
    c_ = r5(20)
    TOT = 28
    d_ = [TOT, TOT+1, TOT+2, TOT+4, TOT+5]
    MINE = [12, 13, 14, 15, 16]
    for q in range(5): k("v_mov_b32 v%d, v%d" % (b_[q], a_[q]))
    for q in range(5): k("v_permlane16_swap_b32 v%d, v%d" % (a_[q], b_[q]))
    for q in range(5): k("v_mov_b32 v%d, v%d\nv_mov_b32 v%d, v%d" % (c_[q], a_[q], d_[q], b_[q]))
    for q in range(5): k("v_permlane32_swap_b32 v%d, v%d\nv_permlane32_swap_b32 v%d, v%d" % (a_[q], c_[q], b_[q], d_[q]))
    seq = [a_, b_, c_, d_]
    for s in range(1, 4):
        for q in range(5): k("v_fmac_f32 v%d, v%d, v%d" % (seq[s][q], c16r[q], seq[s-1][q]))
        for q in range(5): k("v_fmac_f32_dpp v%d, v%d, v%d%s" % (seq[s][q], seq[s-1][q], c16k[q], DPP))
    k("v_mov_b32 v%d, s%d\nv_mov_b32 v%d, s%d" % (TOT+3, sNon, TOT+7, sNon))
    k("s_lshl_b32 s%d, s%d, 9" % (sT0, sC))
    k("v_lshlrev_b32 v%d, 5, v%d" % (vT[1], vM))
    k("s_mov_b64 exec, 0xffff")
    k("buffer_store_dwordx4 %s, v%d, %s, s%d offen%s" % (vr(TOT, 4), vT[1], sq(SP0), sT0, SC))
    k("buffer_store_dwordx4 %s, v%d, %s, s%d offen offset:16%s" % (vr(TOT+4, 4), vT[1], sq(SP0), sT0, SC))
    k("s_mov_b64 exec, -1")
    stamp(k, 2)
    S4 = 36; Mb, RSb, Sb = 62, 66, 70; K0 = 74
    k("s_lshl_b32 s%d, s%d, 9\ns_add_u32 s%d, s%d, %d\nv_lshl_add_u32 v%d, v%d, 4, s%d" % (sT0, sNH, sT0, sT0, SFF, vT[1], vG, sT0))
    for b in range(0, 4, 2):
        for a, off in ((Mb, 0), (RSb, 64), (Sb, 128)):
            k("ds_read2_b32 %s, v%d offset0:%d offset1:%d" % (vr(a+b, 2), vT[2], off+b*16, off+b*16+16))
    for j in range(4): k("ds_read_b128 %s, v%d offset:%d" % (vr(S4+4*j, 4), vT[1], j*64))
    for q in range(5): k("v_cndmask_b32 v%d, 0, v%d, %s" % (MINE[q], a_[q], sp(18)))
    for q in range(5): k("v_cndmask_b32 v%d, v%d, v%d, %s" % (MINE[q], MINE[q], b_[q], sp(20)))
    for q in range(5): k("v_cndmask_b32 v%d, v%d, v%d, %s" % (MINE[q], MINE[q], c_[q], sp(22)))
    k("v_lshlrev_b32 v%d, 4, v%d\nv_mov_b32 v%d, %s\nv_mov_b32 v%d, %s" % (vT[3], vL, K0, f32(c0*0.044715), K0+1, f32(c0)))
    k("s_waitcnt lgkmcnt(0)")
    ffn_epilogue(ACCF, 2, S4, Mb, RSb, Sb, 20, 52, K0, vT[3], [(b, 0) for b in range(4)])
    stamp(k, 6)
    PR = ACCF
    k("s_sub_u32 s%d, s%d, 1" % (sT0, sC))
    k("v_sub_u32 v%d, s%d, v%d\nv_lshlrev_b32 v%d, 9, v%d\nv_lshl_add_u32 v%d, v%d, 5, v%d" % (vT[1], sT0, vG, vT[1], vT[1], vT[1], vM, vT[1]))
    def pred_loads():
        for u in range(8):
            if u: k("v_subrev_u32 v%d, %d, v%d" % (vT[2], u*2048, vT[1]))
            a = vT[2] if u else vT[1]
            k("buffer_load_dwordx4 %s, v%d, %s, 0 offen%s" % (vr(PR+8*u, 4), a, sq(SP0), SC))
            k("buffer_load_dwordx4 %s, v%d, %s, 0 offen offset:16%s" % (vr(PR+8*u+4, 4), a, sq(SP0), SC))
    pred_loads()
    free = r5(20)
    for t in range(16):
        nf = []
        for q in range(5): k("v_mul_f32 v%d, v%d, v%d" % (free[q], cKr+q, Z[q][t]))
        for q in range(5): k("v_fmac_f32_dpp v%d, v%d, v%d%s" % (free[q], Z[q][t], cKk+q, DPP))
        for q in range(5):
            nf.append(Z[q][t]); Z[q][t] = free[q]
        free = nf
    t0, t1 = 60, 65; n64, n16 = 70, 71
    L256r, L256k, L64r, L64k, Psr, Psk = r5(25), r5(30), r5(35), r5(40), r5(45), free
    k("v_cvt_f32_u32 v%d, v%d\nv_mul_f32 v%d, %s, v%d\nv_mul_f32 v%d, %s, v%d" % (n16, vG, n64, f32(64.0), n16, n16, f32(16.0), n16))
    cpow5(L256r, L256k, f32(256.0), t0, t1)
    cpow5(L64r, L64k, "v%d" % n64, t0, t1)
    cpow5(Psr, Psk, "v%d" % n16, t0, t1)
    a2_flag(1, 16, 72, 73)
    k("s_mov_b32 s%d, 0" % sT3)
    k("s_waitcnt vmcnt(1)\ns_branch L_k1_poll2")
    k("L_k1_poll:")
    k("s_waitcnt vmcnt(0)")
    k("L_k1_poll2:")
    k("v_mov_b32 v%d, 0" % t0)
    for u in range(8):
        k("v_xor_b32 v%d, s%d, v%d\nv_xor_b32 v%d, s%d, v%d\nv_cmp_le_i32 vcc, %d, v%d\nv_or_b32 v%d, v%d, v%d" % (t1, sNon, PR+8*u+3, t1+1, sNon, PR+8*u+7, u*2048, vT[1], t1, t1, t1+1))
        k("v_cndmask_b32 v%d, 0, v%d, vcc\nv_or_b32 v%d, v%d, v%d" % (t1, t1, t0, t0, t1))
    k("v_cmp_ne_u32 vcc, 0, v%d" % t0)
    k("s_add_u32 s%d, s%d, 1" % (sT3, sT3))
    k("s_cbranch_vccz L_k1_polled")
    k("s_cmp_gt_u32 s%d, 0x40000\ns_cbranch_scc1 L_k1_polled" % sT3)
    pred_loads()
    k("s_branch L_k1_poll")
    k("L_k1_polled:")
    stamp(k, 3)
    pr = lambda u, q: PR+8*u+(q if q < 3 else q+1)
    for u in range(6, -1, -1):
        for q in range(5): k("v_fmac_f32 v%d, v%d, v%d" % (pr(u, q), L256r[q], pr(u+1, q)))
        for q in range(5): k("v_fmac_f32_dpp v%d, v%d, v%d%s" % (pr(u, q), pr(u+1, q), L256k[q], DPP))
    for q in range(5): k("v_mul_f32 v%d, v%d, v%d" % (pr(1, q), L64r[q], pr(0, q)))
    for q in range(5): k("v_fmac_f32_dpp v%d, v%d, v%d%s" % (pr(1, q), pr(0, q), L64k[q], DPP))
    for sw in ("v_permlane16_swap_b32", "v_permlane32_swap_b32"):
        for q in range(5): k("v_mov_b32 v%d, v%d" % (pr(2, q), pr(1, q)))
        for q in range(5): k("%s v%d, v%d" % (sw, pr(1, q), pr(2, q)))
        for q in range(5): k("v_add_f32 v%d, v%d, v%d" % (pr(1, q), pr(1, q), pr(2, q)))
    for q in range(5): k("v_fmac_f32 v%d, v%d, v%d" % (MINE[q], Psr[q], pr(1, q)))
    for q in range(5): k("v_fmac_f32_dpp v%d, v%d, v%d%s" % (MINE[q], pr(1, q), Psk[q], DPP))
    for q in range(5): k("v_mul_f32 v%d, v%d, v%d" % (pr(0, q), cKr+q, MINE[q]))
    for q in range(5): k("v_fmac_f32_dpp v%d, v%d, v%d%s" % (pr(0, q), MINE[q], cKk+q, DPP))
    PK = PR+16
    k("v_mov_b32 v%d, %d" % (vT[1], FLG))
    wait_done("L_k1_trw", "8", vT[1], PK)
    k("s_mul_i32 s%d, s%d, %d\ns_add_u32 s%d, s%d, %d" % (sT0, sW, 80*TRP, sT0, sT0, TRB))
    k("v_mul_u32_u24 v%d, %d, v%d\nv_lshl_add_u32 v%d, v%d, 5, v%d\nv_add_u32 v%d, s%d, v%d" % (vT[1], TRP, vM, vT[1], vG, vT[1], vT[1], sT0, vT[1]))
    k("v_and_b32 v%d, 1, v%d\nv_lshrrev_b32 v%d, 2, v%d\nv_lshl_add_u32 v%d, v%d, 3, v%d\nv_mul_u32_u24 v%d, %d, v%d" % (vT[2], vG, vT[3], vM, vT[2], vT[2], vT[3], vT[2], TRP, vT[2]))
    k("v_and_b32 v%d, 3, v%d\nv_lshl_add_u32 v%d, v%d, 5, v%d" % (vT[3], vM, vT[2], vT[3], vT[2]))
    k("v_lshrrev_b32 v%d, 1, v%d\nv_lshl_add_u32 v%d, v%d, 3, v%d\nv_add_u32 v%d, s%d, v%d" % (vT[3], vG, vT[2], vT[3], vT[2], vT[2], sT0, vT[2]))
    k("v_and_b32 v%d, 31, v%d\nv_lshlrev_b32 v%d, 4, v%d\nv_lshl_add_u32 v%d, v%d, 10, v%d" % (vT[4], vL, vT[4], vT[4], vT[4], vT[3], vT[4]))
    k("s_mul_i32 s%d, s%d, 88\ns_add_u32 s%d, s%d, 48\ns_lshl_b32 s%d, s%d, 12" % (sKS, sC, sKS, sKS, sKS, sKS))
    k("s_mul_i32 s%d, s%d, 10\ns_mul_i32 s%d, s%d, 5\ns_add_u32 s%d, s%d, s%d" % (sT2, sJJ, sT0, sNH, sT2, sT2, sT0))
    for q in range(5):
        k("s_add_u32 s%d, s%d, %d\ns_lshr_b32 s%d, s%d, 1\ns_lshl_b32 s%d, s%d, 12\ns_and_b32 s%d, s%d, 1\ns_lshl_b32 s%d, s%d, 9" % (sT0, sT2, q, sT1, sT0, sT1, sT1, sT0, sT0, sT0, sT0))
        k("s_add_u32 s%d, s%d, s%d\ns_add_u32 s%d, s%d, s%d" % (sT0, sT0, sT1, 72+q, sT0, sKS))
    OUT = 28
    def tr_reads(bp):
        for q in range(5):
            o = OUT + (bp*5+q)*4
            k("ds_read_b64_tr_b16 %s, v%d offset:%d\nds_read_b64_tr_b16 %s, v%d offset:%d" % (vr(o, 2), vT[2], q*16*TRP+bp*16, vr(o+2, 2), vT[2], q*16*TRP+bp*16+4*TRP))
    def tr_stores(bp, waits):
        for q in range(5):
            if waits: k("s_waitcnt lgkmcnt(%d)" % (8-2*q))
            k("buffer_store_dwordx4 %s, v%d, %s, s%d offen offset:%d%s" % (vr(OUT+(bp*5+q)*4, 4), vT[4], sq(SWS), 72+q, bp*2048, S1))
    for t in range(16):
        prev = [pr(0, q) if t == 0 else Z[q][t-1] for q in range(5)]
        for q in range(5): k("v_fmac_f32 v%d, v%d, v%d" % (Z[q][t], cLr+q, prev[q]))
        for q in range(5): k("v_fmac_f32_dpp v%d, v%d, v%d%s" % (Z[q][t], prev[q], cMu+q, DPP))
        if t & 1:
            for q in range(5): k("v_cvt_pk_bf16_f32 v%d, v%d, v%d" % (PK+8*q+(t >> 1), Z[q][t-1], Z[q][t]))
        if t == 8:
            for q in range(5): k("ds_write_b128 v%d, %s offset:%d" % (vT[1], vr(PK+8*q, 4), q*16*TRP))
        if t == 10: tr_reads(0)
        if t == 13:
            k("s_waitcnt lgkmcnt(0)")
            tr_stores(0, False)
    for q in range(5): k("ds_write_b128 v%d, %s offset:%d" % (vT[1], vr(PK+8*q+4, 4), q*16*TRP+16))
    tr_reads(1)
    tr_stores(1, True)
    a2_flag(2, 0, vT[0], vT[1])
    stamp(k, 4)
    finish(76)
    k("L_k1_end:")
    k("s_endpgm")
    return k

if __name__ == "__main__":
    ref = open("parallel_sum__ssm_conv_s5__geglu_ffn__prompt.s.ref").read().split("\n")
    hdr = [l for l in ref if l.startswith(";") and "@launch" not in l and "Override" not in l and "grid=ceil" not in l]
    hdr += ["; @launch grid=(256,1,1) block=(512,1,1) lds=163840"]
    out = [a for a in sys.argv[1:] if not a.startswith("--")][0]
    gen2.TRACE = False
    open(out, "w").write(emit_file(hdr, [(gen_k1(), dict(vgpr=256, accum=256))]))
```

```python
import sys, struct, math
from asmgen import *
import gen2
from gen2 import (A2_OFF, B2_OFF, CAR_OFF, RST_OFF, SB_OFF, SG_OFF, STAMP_OFF, WS_NREC, SL, SPARE, TRP, f32, vr, sq, sp, ror, DPP, SC,
                  Alloc, interleave, srd, stamp, stamp_out, opt, ARG, STAMPS, LOG2E,
                  pX, pLre, pLim, pBre, pBim, pCre, pCim, pLdt, pD, pBx, pG, pU, pDn, pOut, pDbg, pWs)
STAT_M = SPARE
SFF = SPARE + 1536
SSS = SPARE + 2560
TRB = SL
FLG = SPARE + 4032
PF_OFF = 0x1130000
FL_OFF = 0x1131000
TRACE = "--trace" in ARG
S1 = [" sc1", " sc0 sc1", " sc1 nt", ""][opt("st2", 0)]
if opt("sc", 1): SC = " sc1"
KNAME = "parallel_sum__ssm_conv_s5__geglu_ffn__prompt_kernel"

def gen_k1():
    k = Kern(KNAME)
    sW, sMH, sNH, sI, sJJ, sTY = 3, 4, 5, 6, 7, 8
    sT0, sT1, sT2, sT3 = 9, 10, 11, 12
    sMASK = 13
    SX, SW0, SW1, SWS, SP0, SP1 = 48, 52, 56, 60, 64, 68
    sKx, sKw, sDst, sDelta, sIt, sRd, sA, sB, sKS, sC, sNon, sCol = range(72, 84)
    k("s_cmp_ge_u32 s2, 256\ns_cbranch_scc1 L_k1_end")
    k("s_load_dwordx16 s[16:31], s[0:1], 0\ns_load_dwordx16 s[32:47], s[0:1], 64")
    k("s_memrealtime s[100:101]")
    stamp(k, 0)
    vL, vM, vG, vII, vSL = 1, 2, 3, 4, 5
    vT = [6, 7, 8, 9, 10, 11]
    if TRACE: k("v_mov_b32 v255, 0")
    k("v_lshrrev_b32 v%d, 6, v0" % vT[0])
    k("v_and_b32 v%d, 63, v0" % vL)
    k("v_readfirstlane_b32 s%d, v%d" % (sW, vT[0]))
    k("v_and_b32 v%d, 15, v0\nv_lshrrev_b32 v%d, 4, v%d" % (vM, vG, vL))
    k("v_lshrrev_b32 v%d, 3, v%d\nv_and_b32 v%d, 7, v0" % (vII, vL, vSL))
    k("v_mov_b32 v%d, 0\nv_lshlrev_b32 v%d, 2, v%d\nv_add_u32 v%d, %d, v%d\nds_write_b32 v%d, v%d" % (vT[1], vT[2], vM, vT[2], FLG, vT[2], vT[2], vT[1]))
    k("s_and_b32 s%d, s2, 7\ns_lshr_b32 s%d, s2, 3" % (sT0, sT1))
    k("s_lshr_b32 s%d, s%d, 2\ns_lshl_b32 s%d, s%d, 3\ns_and_b32 s%d, s%d, 7\ns_add_u32 s%d, s%d, s%d" % (sI, sT0, sI, sI, sT2, sT1, sI, sI, sT2))
    k("s_and_b32 s%d, s%d, 3\ns_lshl_b32 s%d, s%d, 2\ns_lshr_b32 s%d, s%d, 3\ns_add_u32 s%d, s%d, s%d" % (sJJ, sT0, sJJ, sJJ, sT2, sT1, sJJ, sJJ, sT2))
    k("s_and_b32 s%d, s%d, 1\ns_lshr_b32 s%d, s%d, 1" % (sTY, sJJ, sJJ, sJJ))
    k("s_mov_b32 s%d, 0xffff0000" % sMASK)
    k("s_and_b32 s%d, s%d, 1\ns_bfe_u32 s%d, s%d, 0x10001" % (sMH, sW, sNH, sW))
    k("s_lshl_b32 s%d, s%d, 7\ns_lshl_b32 s%d, s%d, 6\ns_add_u32 s%d, s%d, 1024\ns_cmp_eq_u32 s%d, 0\ns_cselect_b32 s%d, s%d, s%d" % (sT0, sJJ, sT1, sJJ, sT1, sT1, sTY, sCol, sT0, sT1))
    k("s_waitcnt lgkmcnt(0)\ns_barrier")
    k("s_cmp_lt_u32 s%d, 4\ns_cbranch_scc1 L_k1_C" % sW)
    k("s_cmp_ge_u32 s%d, 6\ns_cbranch_scc1 L_k1_D" % sW)

    def bf16r(d, s):
        k("v_cvt_pk_bf16_f32 v%d, v%d, v%d\nv_lshlrev_b32 v%d, 16, v%d" % (d, s, s, d, d))
    r5 = lambda b: [b+q for q in range(5)]
    def cpow5(dr, dk, n, t0, t1, cA2, cBt):
        R5 = range(5)
        for q in R5: k("v_mul_f32 v%d, %s, v%d\nv_mul_f32 v%d, %s, v%d" % (t0+q, n, cA2+q, t1+q, n, cBt+q))
        for q in R5: k("v_exp_f32 v%d, v%d\nv_rndne_f32 v%d, v%d" % (t0+q, t0+q, dr[q], t1+q))
        for q in R5: k("v_sub_f32 v%d, v%d, v%d" % (t1+q, t1+q, dr[q]))
        for q in R5: k("v_cos_f32 v%d, v%d\nv_sin_f32 v%d, v%d" % (dr[q], t1+q, dk[q], t1+q))
        for q in R5: k("v_mul_f32 v%d, v%d, v%d\nv_mul_f32 v%d, v%d, v%d" % (dr[q], dr[q], t0+q, dk[q], dk[q], t0+q))
    def param_loads(P, snh, va):
        k("s_mul_i32 s%d, s%d, 80\ns_mul_i32 s%d, s%d, 40\ns_add_u32 s%d, s%d, s%d" % (sT0, sJJ, sT1, snh, sT1, sT1, sT0))
        k("v_add_u32 v%d, s%d, v%d\nv_lshlrev_b32 v%d, 1, v%d" % (va, sT1, vSL, va, va))
        for q in range(5):
            for n, p in enumerate((pLre, pLim, pLdt)):
                k("global_load_ushort v%d, v%d, %s offset:%d" % (P+n*5+q, va, sp(p), q*16))
    def param_ab(P, cA2, cBt, vs):
        lre, lim, ldt = P, P+5, P+10
        k("v_lshrrev_b32 v%d, 3, v%d\nv_xor_b32 v%d, 1, v%d\nv_lshlrev_b32 v%d, 31, v%d" % (vs, vM, vs, vs, vs, vs))
        for q in range(15): k("v_lshlrev_b32 v%d, 16, v%d" % (P+q, P+q))
        for q in range(5): k("v_xor_b32 v%d, v%d, v%d\nv_mul_f32 v%d, %s, v%d" % (lim+q, lim+q, vs, ldt+q, f32(LOG2E), ldt+q))
        for q in range(5): k("v_exp_f32 v%d, v%d" % (ldt+q, ldt+q))
        for q in range(5): k("v_cvt_pk_bf16_f32 v%d, v%d, v%d" % (ldt+q, ldt+q, ldt+q))
        for q in range(5): k("v_lshlrev_b32 v%d, 16, v%d" % (ldt+q, ldt+q))
        for q in range(5): k("v_mul_f32 v%d, v%d, v%d\nv_mul_f32 v%d, v%d, v%d" % (cA2+q, ldt+q, lre+q, cBt+q, ldt+q, lim+q))
        for q in range(5): k("v_mul_f32 v%d, %s, v%d\nv_mul_f32 v%d, %s, v%d" % (cA2+q, f32(LOG2E), cA2+q, cBt+q, f32(1/(2*math.pi)), cBt+q))
    def trace(idx_sreg, mul, add):
        if TRACE:
            k("s_memrealtime s[100:101]\ns_mul_i32 m0, s%d, %d\ns_add_u32 m0, m0, %d\ns_waitcnt lgkmcnt(0)\nv_writelane_b32 v255, s100, m0" % (idx_sreg, mul, add))
    def ev(n):
        if TRACE: k("s_memrealtime s[100:101]\ns_waitcnt lgkmcnt(0)\nv_writelane_b32 v255, s100, %d" % n)
    def finish(vt):
        if TRACE:
            k("s_lshl_b32 s83, s2, 11\ns_add_u32 s83, s83, 0x%x\nv_lshl_add_u32 v%d, v0, 2, s83" % (STAMP_OFF + 0x40000, vt+9))
            k("global_store_dword v%d, v255, %s" % (vt+9, sp(pWs)))
        stamp_out(k, 0, 8, pWs, vt)
        k("s_endpgm")

    vXo, vWo, vSo = 12, 13, 14
    vF = 18
    k("s_lshl_b32 s%d, s%d, 7\ns_lshl_b32 s%d, s%d, 5\ns_add_u32 s%d, s%d, s%d" % (sT2, sI, sT3, sMH, sT2, sT2, sT3))
    k("v_lshrrev_b32 v%d, 2, v%d\nv_lshlrev_b32 v%d, 4, v%d\nv_and_b32 v%d, 3, v%d" % (vT[0], vII, vT[0], vT[0], vT[1], vII))
    k("v_add3_u32 v%d, v%d, v%d, s%d" % (vT[0], vT[0], vT[1], sT2))
    k("v_mul_u32_u24 v%d, 1280, v%d" % (vT[0], vT[0]))
    k("s_lshl_b32 s%d, s%d, 2" % (sT3, sMH))
    k("v_lshrrev_b32 v%d, 1, v%d\nv_or_b32 v%d, s%d, v%d\nv_xor_b32 v%d, v%d, v%d" % (vT[1], vII, vT[1], sT3, vT[1], vT[1], vT[1], vSL))
    k("v_lshl_add_u32 v%d, v%d, 4, v%d" % (vXo, vT[1], vT[0]))
    k("s_mul_i32 s%d, s%d, 80" % (sT0, sJJ))
    k("v_add_u32 v%d, s%d, v%d\nv_mul_u32_u24 v%d, 1280, v%d\nv_lshl_add_u32 v%d, v%d, 4, v%d" % (vT[2], sT0, vII, vT[2], vT[2], vSo, vT[1], vT[2]))
    k("s_lshl_b32 s%d, s%d, 3" % (sT0, sMH))
    k("v_add_u32 v%d, s%d, v%d\nv_mul_u32_u24 v%d, 3072, v%d" % (vT[0], sT0, vII, vT[0], vT[0]))
    k("v_and_b32 v%d, 2, v%d\nv_or_b32 v%d, s%d, v%d\nv_xor_b32 v%d, v%d, v%d" % (vT[1], vII, vT[1], sT3, vT[1], vT[1], vT[1], vSL))
    k("v_lshl_add_u32 v%d, v%d, 4, v%d" % (vT[0], vT[1], vT[0]))
    k("s_lshl_b32 s%d, s%d, 1" % (sT0, sCol))
    k("v_add_u32 v%d, s%d, v%d" % (vWo, sT0, vT[0]))
    k("s_mov_b32 s%d, 0\ns_mov_b32 s%d, 0\ns_lshl_b32 s%d, s%d, 10\ns_mov_b32 s%d, 0\ns_mov_b32 s%d, 0" % (sKx, sKw, sDst, sMH, sIt, sRd))
    k("v_mov_b32 v%d, %d\nv_mov_b32 v24, 0" % (vF, FLG))
    k("s_lshl_b32 s%d, s%d, 2\ns_add_u32 s%d, s%d, %d\nv_mov_b32 v%d, s%d" % (sT0, sMH, sT0, sT0, FLG+16, vF+1, sT0))
    srd(k, SX, pX, 2048*1280)
    srd(k, SW0, pG, 640*3072)
    srd(k, SW1, pU, 640*3072)
    k("s_cmp_eq_u32 s%d, 0\ns_cselect_b32 s%d, s%d, s%d\ns_cselect_b32 s%d, s%d, s%d" % (sMH, SP0, pBre, pBim, SP0+1, pBre+1, pBim+1))
    k("s_mov_b32 s%d, %d\ns_mov_b32 s%d, 0x20000" % (SP0+2, 640*1280, SP0+3))
    def wait_word(lab, off, need, va, vt):
        k("v_mov_b32 v%d, %d" % (va, FLG+off))
        k("%s:" % lab)
        k("ds_read_b32 v%d, v%d\ns_waitcnt lgkmcnt(0)\nv_readfirstlane_b32 s%d, v%d" % (vt, va, sT0, vt))
        k("s_cmp_ge_i32 s%d, %s\ns_cbranch_scc1 %s_ok\ns_sleep 1\ns_branch %s\n%s_ok:" % (sT0, need, lab, lab, lab))
    def wait_done(lab, need, vaddr, vt):
        k("%s:" % lab)
        k("ds_read_b128 %s, v%d\ns_waitcnt lgkmcnt(0)" % (vr(vt, 4), vaddr))
        k("v_min_u32 v%d, v%d, v%d\nv_min3_u32 v%d, v%d, v%d, v%d" % (vt, vt, vt+1, vt, vt, vt+2, vt+3))
        k("v_readfirstlane_b32 s%d, v%d" % (sT0, vt))
        k("s_cmp_ge_i32 s%d, %s\ns_cbranch_scc1 %s_ok\ns_sleep 1\ns_branch %s\n%s_ok:" % (sT0, need, lab, lab, lab))
    k("s_cmp_eq_u32 s%d, 1\ns_cbranch_scc1 L_k1_LB_dma\ns_branch L_k1_LA_dma" % sTY)
    def dma(ldsoff, voff, S, sbase, add):
        k("s_add_u32 m0, s%d, %d\ns_add_u32 s%d, s%d, %d\nbuffer_load_dwordx4 v%d, %s, s%d offen lds" % (sDst, ldsoff, sT0, sbase, add, voff, sq(S), sT0))
    NSIG = opt("nsig", 6)
    def chk(lab, add, sig):
        k("s_lshl_b32 s%d, s%d, 1\ns_add_i32 s%d, s%d, %d\ns_waitcnt lgkmcnt(0)" % (sT1, sIt, sT1, sT1, add))
        k("v_min_u32 v20, v20, v21\nv_min3_u32 v20, v20, v22, v23\nv_readfirstlane_b32 s%d, v20" % sT0)
        k("s_cmp_ge_i32 s%d, s%d\ns_cbranch_scc1 %s_go" % (sT0, sT1, lab))
        if sig: k("s_waitcnt vmcnt(0)\nds_write_b32 v%d, v24" % (vF+1))
        wait_done(lab+"_wd", "s%d" % sT1, vF, 20)
        k("%s_go:" % lab)
    for ty in "BA":
        L = "L_k1_L" + ty
        k("%s:" % L)
        trace(sIt, 4, 0)
        chk(L+"_c1", -5, True)
        k("%s_dma:" % L)
        trace(sIt, 4, 1)
        xs = [(n*2048, vXo, SX, sKx, ((n & 3)*4 + (n >> 2)*64)*1280) for n in range(8)]
        ws = []
        for n in range(4):
            for un in range(2 if ty == "A" else 1):
                for gu in range(2):
                    ws.append((16384+un*16384+gu*8192+n*2048, vWo, SW1 if gu else SW0, sKw, n*16*3072+un*128))
        h = len(ws)//2
        p1 = []
        for i in range(8): p1 += xs[i:i+1] + ws[:h][i*h//8:(i+1)*h//8]
        p2 = ws[h:]
        if ty == "B": p2 += [(32768+b*2048, vSo, SP0, sKx, b*10240) for b in range(10)]
        for i, o in enumerate(p1):
            if i == NSIG:
                k("s_waitcnt vmcnt(%d)\nds_write_b32 v%d, v24\nv_add_u32 v24, 1, v24" % (NSIG, vF+1))
                trace(sIt, 4, 3)
            if i == len(p1)-2: k("ds_read_b128 v[20:23], v%d" % vF)
            dma(*o)
        chk(L+"_c2", -4, False)
        for i, o in enumerate(p2):
            if i == len(p2)-2: k("ds_read_b128 v[20:23], v%d" % vF)
            dma(*o)
        k("ds_write_b32 v%d, v24 offset:16" % (vF+1))
        k("s_add_u32 s%d, s%d, 128\ns_add_u32 s%d, s%d, 196608\ns_add_u32 s%d, s%d, %d\ns_add_u32 s%d, s%d, 1" % (sKx, sKx, sKw, sKw, sDst, sDst, SL, sRd, sRd))
        k("s_cmp_eq_u32 s%d, 3\ns_cselect_b32 s%d, 0, s%d\ns_cselect_b32 s%d, %d, 0\ns_sub_u32 s%d, s%d, s%d" % (sRd, sRd, sRd, sT0, 3*SL, sDst, sDst, sT0))
        trace(sIt, 4, 2)
        k("s_add_u32 s%d, s%d, 1\ns_cmp_lt_u32 s%d, 10\ns_cbranch_scc1 %s" % (sIt, sIt, sIt, L))
        if ty == "B": k("s_branch L_k1_Lend")
    k("L_k1_Lend:")
    srd(k, SWS, pWs, WS_NREC)
    k("v_mov_b32 v72, v%d\nv_mov_b32 v73, v24" % (vF+1))
    k("s_branch L_k1_P2")

    k("L_k1_D:")
    XR = 16
    YR = 36
    PK = 100
    T = 132
    vN = 12
    sPQ, sPR = [14, 78], [15, 79]
    k("v_mul_u32_u24 v%d, 1280, v%d\nv_lshl_add_u32 v%d, v%d, 4, v%d" % (vT[0], vG, vT[0], vM, vT[0]))
    k("s_lshl_b32 s%d, s2, 1\ns_add_u32 s%d, s%d, s%d" % (sC, sC, sC, sMH))
    k("s_mul_i32 s%d, s%d, 5120" % (sT0, sC))
    srd(k, SX, pX, 2048*1280)
    srd(k, SWS, pWs, WS_NREC)
    k("s_cmp_lg_u32 s%d, 0\ns_cbranch_scc1 L_k1_nn" % sC)
    k("s_or_b32 s%d, s100, 1" % sT0)
    k("v_mov_b32 v%d, s%d\nv_mov_b32 v%d, 0" % (vT[2], sT0, vT[1]))
    k("global_store_dword v%d, v%d, %s%s" % (vT[1], vT[2], sp(pDbg), SC))
    k("L_k1_nn:")
    B1 = opt("b1", 2); GATE = opt("gate", 3)
    SNT = " nt" if opt("snt", 0) else ""
    def gate(lab):
        if GATE: wait_word(lab, 36, "%d" % GATE, vT[3], vT[2])
    k("s_mul_i32 s%d, s%d, 5120" % (sKx, sC))
    xl = lambda c: k("buffer_load_dwordx4 %s, v%d, %s, s%d offen offset:%d%s" % (vr(XR+4*c, 4), vT[0], sq(SX), sKx, c*256, SNT))
    k("s_cmp_eq_u32 s%d, 1\ns_cbranch_scc1 L_k1_D1a" % sMH)
    k("s_mul_i32 s%d, s2, 1366\ns_lshr_b32 s%d, s%d, 16\ns_mul_i32 s%d, s%d, 48\ns_sub_u32 s%d, s2, s%d" % (sT0, sT0, sT0, sT1, sT0, sT1, sT1))
    k("s_cmp_lt_u32 s%d, 24\ns_cselect_b32 s%d, s%d, s%d\ns_cselect_b32 s%d, s%d, s%d\ns_cselect_b32 s%d, 0, 24" % (sT1, SP1, pG, pU, SP1+1, pG+1, pU+1, sT2))
    k("s_sub_u32 s%d, s%d, s%d\ns_lshl_b32 s%d, s%d, 7\ns_mul_i32 s%d, s%d, %d\ns_add_u32 s%d, s%d, s%d" % (sT1, sT1, sT2, sT1, sT1, sT0, sT0, 8*3072, sKw, sT0, sT1))
    k("s_cmp_lt_u32 s2, 240\ns_cselect_b32 s%d, %d, 0\ns_mov_b32 s%d, 0x20000" % (SP1+2, 640*3072, SP1+3))
    k("v_mul_u32_u24 v%d, 3072, v%d\nv_lshl_add_u32 v%d, v%d, 4, v%d" % (vT[1], vII, vT[1], vSL, vT[1]))
    a_ = 0
    for c in range(5):
        if c == B1: gate("L_k1_g0")
        xl(c)
        while a_ < 16 and a_*40 < 128*(c+1):
            k("buffer_load_dwordx4 %s, v%d, %s, s%d offen%s" % (vr(YR+4*a_, 4), vT[1], sq(SP1), sKw, SNT))
            k("s_add_u32 s%d, s%d, %d" % (sKw, sKw, 40*3072))
            a_ += 1
    if B1 >= 5: gate("L_k1_g0")
    k("s_branch L_k1_Db")
    k("L_k1_D1a:")
    k("s_cmp_lt_u32 s2, 80\ns_cselect_b32 s%d, s%d, s%d\ns_cselect_b32 s%d, s%d, s%d\ns_cselect_b32 s%d, 0, 80" % (SP1, pBre, pBim, SP1+1, pBre+1, pBim+1, sT1))
    k("s_sub_u32 s%d, s2, s%d\ns_mul_i32 s%d, s%d, 10240\ns_add_u32 s%d, s%d, 5120" % (sT0, sT1, sKw, sT0, sDst, sKw))
    k("s_cmp_lt_u32 s2, 160\ns_cselect_b32 s%d, %d, 0\ns_mov_b32 s%d, 0x20000" % (SP1+2, 640*1280, SP1+3))
    for c in range(5):
        if c == B1: gate("L_k1_g1")
        xl(c)
        for hh in range(2): k("buffer_load_dwordx4 %s, v%d, %s, s%d offen offset:%d%s" % (vr(YR+20*hh+4*c, 4), vT[0], sq(SP1), sDst if hh else sKw, c*256, SNT))
    if B1 >= 5: gate("L_k1_g1")
    k("L_k1_Db:")
    if opt("cpf", 1):
        k("s_getpc_b64 s[70:71]")
        k("L_k1_pc:")
        k("s_sub_u32 s70, s70, L_k1_pc-%s\ns_subb_u32 s71, s71, 0" % KNAME)
        k("s_lshr_b32 s%d, s2, 3\ns_lshl_b32 s%d, s%d, 1\ns_add_u32 s%d, s%d, s%d\ns_and_b32 s%d, s%d, 7\ns_lshl_b32 s%d, s%d, 13" % (sT0, sT0, sT0, sT0, sT0, sMH, sT0, sT0, sT0, sT0))
        k("v_lshl_add_u32 v14, v%d, 7, s%d\nv_min_u32 v14, L_k1_end-%s, v14" % (vL, sT0, KNAME))
        k("s_cmp_lt_u32 s%d, L_k1_end-%s\ns_cbranch_scc0 L_k1_ncp\ns_cmp_lt_u32 s2, 64\ns_cbranch_scc0 L_k1_ncp" % (sT0, KNAME))
        k("global_load_dword v15, v14, s[70:71]")
        k("L_k1_ncp:")
    ev(0)
    k("s_lshl_b32 s%d, s%d, 3\ns_add_u32 s%d, s%d, s%d\ns_lshl_b32 s%d, s%d, 1\ns_add_u32 s%d, s%d, s%d\ns_lshl_b32 s%d, s%d, 1" % (sT3, sI, sT3, sT3, sJJ, sT3, sT3, sT3, sT3, sMH, sT3, sT3))
    for n in range(2):
        k("s_add_u32 s%d, s%d, %d\ns_mul_i32 s%d, s%d, 6554\ns_lshr_b32 s%d, s%d, 16\ns_mul_i32 s%d, s%d, 10\ns_sub_u32 s%d, s%d, s%d" % (sT0, sT3, n, sPQ[n], sT0, sPQ[n], sPQ[n], sT1, sPQ[n], sPR[n], sT0, sT1))
    k("v_mov_b32 v%d, 0" % vT[1])
    k("global_load_dword v%d, v%d, %s%s" % (vN, vT[1], sp(pDbg), SC))
    if opt("packlate", 0): k("s_waitcnt vmcnt(1)")
    PNT = " nt" if opt("pnt", 1) else ""
    k("s_cmp_eq_u32 s%d, 1\ns_cbranch_scc1 L_k1_plC" % sTY)
    srd(k, SP0, pDn, 1536*1280)
    k("v_mul_u32_u24 v%d, 1280, v%d\nv_lshl_add_u32 v%d, v%d, 4, v%d" % (vT[1], vII, vT[1], vSL, vT[1]))
    k("s_cmp_lt_u32 s%d, 48\ns_cselect_b32 s%d, s%d, 0" % (sPQ[0], SP0+2, SP0+2))
    for n in range(2):
        k("s_mul_i32 s%d, s%d, 40960\ns_lshl_b32 s%d, s%d, 7\ns_add_u32 s%d, s%d, s%d" % (sT1, sPQ[n], sT2, sPR[n], sT1, sT1, sT2))
        for a in range(4):
            k("buffer_load_dwordx4 %s, v%d, %s, s%d offen%s" % (vr(PK+16*n+4*a, 4), vT[1], sq(SP0), sT1, PNT))
            if a < 3: k("s_add_u32 s%d, s%d, 10240" % (sT1, sT1))
    k("s_branch L_k1_pld")
    k("L_k1_plC:")
    PP = 180
    param_loads(PP, sMH, vT[1])
    srd(k, SP0, pCre, 640*1280)
    srd(k, SP1, pCim, 640*1280)
    k("v_mul_u32_u24 v%d, 1280, v%d\nv_lshl_add_u32 v%d, v%d, 4, v%d" % (vT[1], vII, vT[1], vSL, vT[1]))
    k("s_cmp_lt_u32 s%d, 40\ns_cselect_b32 s%d, s%d, 0\ns_cselect_b32 s%d, s%d, 0" % (sPQ[0], SP0+2, SP0+2, SP1+2, SP1+2))
    for n in range(2):
        k("s_mul_i32 s%d, s%d, 20480\ns_lshl_b32 s%d, s%d, 7\ns_add_u32 s%d, s%d, s%d" % (sT1, sPQ[n], sT2, sPR[n], sT1, sT1, sT2))
        k("s_add_u32 s%d, s%d, 10240" % (sT2, sT1))
        for part in range(2):
            for hh in range(2):
                k("buffer_load_dwordx4 %s, v%d, %s, s%d offen%s" % (vr(PK+16*n+(part*2+hh)*4, 4), vT[1], sq(SP0 if part == 0 else SP1), sT2 if hh else sT1, PNT))
    k("L_k1_pld:")
    k("v_mov_b32 v13, 0x3f803f80")
    ev(1)
    k("s_waitcnt vmcnt(8)")
    ev(2)
    stamp(k, 7)
    def unpack(dst, src, n):
        for d in range(n): k("v_lshlrev_b32 v%d, 16, v%d\nv_and_b32 v%d, s%d, v%d" % (dst+2*d, src+d, dst+2*d+1, sMASK, src+d))
    def row_sum(regs):
        for n in (8, 4, 2, 1):
            for r in regs: k("v_add_f32_dpp v%d, v%d, v%d%s" % (r, r, r, ror(n)))
    def tree(dst, src, n):
        k("v_add_f32 v%d, v%d, v%d\nv_add_f32 v%d, v%d, v%d" % (dst, src, src+1, dst+1, src+2, src+3))
        for d in range(4, n, 2): k("v_add_f32 v%d, v%d, v%d\nv_add_f32 v%d, v%d, v%d" % (dst, dst, src+d, dst+1, dst+1, src+d+1))
        k("v_add_f32 v%d, v%d, v%d" % (dst, dst, dst+1))
    A, B = T+40, T+42
    def dsum(dst, src, n, sq_):
        for d in range(n):
            k("v_dot2_f32_bf16 v%d, v%d, v%d, %s" % (dst+(d & 1), src+d, src+d if sq_ else 13, "v%d" % (dst+(d & 1)) if d > 1 else "0"))
    dsum(A, XR, 20, False)
    dsum(B, XR, 20, True)
    k("v_add_f32 v%d, v%d, v%d\nv_add_f32 v%d, v%d, v%d" % (A, A, A+1, B, B, B+1))
    row_sum([A, B])
    k("v_mul_f32 v%d, %s, v%d" % (A, f32(1/640.), A))
    k("v_mul_f32 v%d, %s, v%d" % (B, f32(1/640.), B))
    k("v_fma_f32 v%d, -v%d, v%d, v%d\nv_max_f32 v%d, 0, v%d" % (B, A, A, B, B, B))
    bf16r(B, B)
    k("v_add_f32 v%d, %s, v%d" % (B, f32(1e-5), B))
    bf16r(B, B)
    k("v_sqrt_f32 v%d, v%d" % (B, B))
    k("s_mov_b32 s%d, 0" % sT3)
    k("L_k1_gn:")
    k("v_readfirstlane_b32 s%d, v%d" % (sNon, vN))
    k("s_add_u32 s%d, s%d, 1\ns_cmp_lg_u32 s%d, 0\ns_cbranch_scc1 L_k1_gnd" % (sT3, sT3, sNon))
    k("s_cmp_gt_u32 s%d, 0x40000\ns_cbranch_scc1 L_k1_gnd" % sT3)
    k("v_mov_b32 v%d, 0" % vT[1])
    k("global_load_dword v%d, v%d, %s%s\ns_waitcnt vmcnt(0)\ns_branch L_k1_gn" % (vN, vT[1], sp(pDbg), SC))
    k("L_k1_gnd:")
    k("s_max_u32 s%d, s%d, 1" % (sNon, sNon))
    k("v_cvt_pk_bf16_f32 v%d, v%d, v%d\nv_mov_b32 v%d, s%d" % (T+44, A, B, T+45, sNon))
    k("s_lshl_b32 s%d, s%d, 5\ns_add_u32 s%d, s%d, 0x%x" % (sT0, sC, sT0, sT0, RST_OFF))
    k("v_lshlrev_b32 v%d, 3, v%d" % (vT[2], vG))
    k("s_mov_b32 exec_lo, 0x00010001\ns_mov_b32 exec_hi, 0x00010001")
    k("buffer_store_dwordx2 %s, v%d, %s, s%d offen%s" % (vr(T+44, 2), vT[2], sq(SWS), sT0, SC))
    k("s_mov_b64 exec, -1")
    k("s_cmp_eq_u32 s%d, 1\ns_cbranch_scc1 L_k1_D1b" % sMH)
    k("v_and_b32 v%d, 1, v%d\nv_lshlrev_b32 v%d, 4, v%d\nv_mov_b32 v%d, 0x3f80\nv_lshlrev_b32 v%d, v%d, v%d" % (T+8, vM, T+8, T+8, T+9, T+8, T+8, T+9))
    k("v_bfe_u32 v%d, v%d, 1, 2" % (T+9, vM))
    for d in range(4): k("v_cmp_eq_u32 vcc, %d, v%d\nv_cndmask_b32 v%d, 0, v%d, vcc" % (d, T+9, T+d, T+8))
    for a in range(16): k("v_mfma_f32_16x16x32_bf16 %s, %s, %s, %s" % (vr(T+4, 4), vr(T, 4), vr(YR+4*a, 4), vr(T+4, 4) if a else "0"))
    k("s_lshl_b32 s%d, s2, 9\ns_add_u32 s%d, s%d, 0x%x\ns_cmp_lt_u32 s2, 240\ns_cselect_b32 s%d, s%d, 0x%x" % (sT0, sT0, sT0, SG_OFF, sT0, sT0, WS_NREC))
    k("v_lshlrev_b32 v%d, 5, v%d\nv_lshl_add_u32 v%d, v%d, 6, v%d\nv_add_u32 v%d, s%d, v%d" % (T+8, vG, T+8, vSL, T+8, T+8, sT0, T+8))
    for r in range(4): k("v_mov_b32 v%d, s%d" % (T+13+2*r, sNon))
    for r in range(4): k("v_add_f32_dpp v%d, v%d, v%d%s" % (T+12+2*r, T+4+r, T+4+r, DPP))
    k("s_mov_b32 exec_lo, 0x00ff00ff\ns_mov_b32 exec_hi, 0")
    k("buffer_store_dwordx4 %s, v%d, %s, 0 offen%s" % (vr(T+12, 4), T+8, sq(SWS), SC))
    k("buffer_store_dwordx4 %s, v%d, %s, 0 offen offset:16%s" % (vr(T+16, 4), T+8, sq(SWS), SC))
    k("s_mov_b64 exec, -1")
    k("s_branch L_k1_Dc")
    k("L_k1_D1b:")
    for hh in range(2): dsum(A+2*hh, YR+20*hh, 20, False)
    k("v_add_f32 v%d, v%d, v%d\nv_add_f32 v%d, v%d, v%d" % (A, A, A+1, A+2, A+2, A+3))
    row_sum([A, A+2])
    k("v_mov_b32 v%d, s%d\nv_mov_b32 v%d, s%d" % (A+1, sNon, A+3, sNon))
    k("s_lshl_b32 s%d, s2, 6\ns_add_u32 s%d, s%d, 0x%x\ns_cmp_lt_u32 s2, 160\ns_cselect_b32 s%d, s%d, 0x%x" % (sT0, sT0, sT0, SB_OFF, sT0, sT0, WS_NREC))
    k("v_add_u32 v%d, s%d, v%d" % (vT[3], sT0, vT[2]))
    k("s_mov_b32 exec_lo, 0x00010001\ns_mov_b32 exec_hi, 0x00010001")
    k("buffer_store_dwordx2 %s, v%d, %s, 0 offen%s" % (vr(A, 2), vT[3], sq(SWS), SC))
    k("buffer_store_dwordx2 %s, v%d, %s, 0 offen offset:32%s" % (vr(A+2, 2), vT[3], sq(SWS), SC))
    k("s_mov_b64 exec, -1")
    k("L_k1_Dc:")
    ev(3)
    PSC = S1
    k("s_waitcnt vmcnt(3)")
    k("s_cmp_eq_u32 s%d, 1\ns_cbranch_scc1 L_k1_pdC" % sTY)
    k("s_cmp_ge_u32 s%d, 48\ns_cbranch_scc1 L_k1_pdd" % sPQ[0])
    k("s_mul_i32 s%d, s%d, %d\ns_add_u32 s%d, s%d, 49152" % (sT2, sMH, SL, sT2, sT2))
    k("v_lshlrev_b32 v%d, 4, v%d\nv_add_u32 v%d, s%d, v%d" % (T+1, vL, T, sT2, T+1))
    k("v_lshrrev_b32 v%d, 2, v%d\nv_lshl_add_u32 v%d, v%d, 2, v%d\nv_lshlrev_b32 v%d, 7, v%d" % (T+2, vM, T+2, vG, T+2, T+2, T+2))
    k("v_and_b32 v%d, 3, v%d\nv_lshl_add_u32 v%d, v%d, 3, v%d\nv_add_u32 v%d, s%d, v%d" % (T+3, vM, T+2, T+3, T+2, T+2, sT2, T+2))
    for n in range(2):
        for a in range(4): k("ds_write_b128 v%d, %s offset:%d" % (T, vr(PK+16*n+4*a, 4), a*1024))
        k("s_waitcnt lgkmcnt(0)")
        for c4 in range(4):
            k("ds_read_b64_tr_b16 %s, v%d offset:%d" % (vr(PK+16*n+c4*4, 2), T+2, c4*32))
            k("ds_read_b64_tr_b16 %s, v%d offset:%d" % (vr(PK+16*n+c4*4+2, 2), T+2, c4*32+2048))
        for c4 in range(4):
            k("s_lshl_b32 s%d, s%d, 2\ns_add_u32 s%d, s%d, %d\ns_mul_i32 s%d, s%d, 52\ns_lshr_b32 s%d, s%d, 8" % (sT0, sPR[n], sT0, sT0, c4, sT1, sT0, sT1, sT1))
            k("s_mul_i32 s%d, s%d, 435\ns_add_u32 s%d, s%d, s%d\ns_mul_i32 s%d, s%d, 5\ns_add_u32 s%d, s%d, s%d" % (sT1, sT1, sT1, sT1, sT0, sT0, sPQ[n], sT1, sT1, sT0))
            k("s_lshl_b32 s%d, s%d, 10\ns_add_u32 s%d, s%d, %d" % (sT1, sT1, sT1, sT1, B2_OFF))
            k("s_waitcnt lgkmcnt(%d)" % (6-2*c4))
            k("buffer_store_dwordx4 %s, v%d, %s, s%d offen%s" % (vr(PK+16*n+c4*4, 4), T+1, sq(SWS), sT1, PSC))
    k("s_branch L_k1_pdd")
    k("L_k1_pdC:")
    k("s_cmp_ge_u32 s%d, 40\ns_cbranch_scc1 L_k1_pdd" % sPQ[0])
    k("v_lshrrev_b32 v%d, 1, v%d\nv_mul_u32_u24 v%d, 5120, v%d" % (T+1, vSL, T+1, T+1))
    k("v_and_b32 v%d, 1, v%d\nv_lshl_add_u32 v%d, v%d, 5, v%d\nv_lshl_add_u32 v%d, v%d, 4, v%d" % (T+2, vSL, T+2, T+2, vII, T+1, T+2, T+1))
    for n in range(2):
        k("s_mul_i32 s%d, s%d, 52\ns_lshr_b32 s%d, s%d, 8\ns_mul_i32 s%d, s%d, 435\ns_add_u32 s%d, s%d, s%d" % (sT1, sPQ[n], sT1, sT1, sT1, sT1, sT1, sT1, sPQ[n]))
        k("s_mul_i32 s%d, s%d, 20\ns_add_u32 s%d, s%d, s%d\ns_add_u32 s%d, s%d, 240\ns_lshl_b32 s%d, s%d, 10\ns_add_u32 s%d, s%d, %d" % (sT0, sPR[n], sT1, sT1, sT0, sT1, sT1, sT1, sT1, sT1, sT1, B2_OFF))
        for r in range(8, 16): k("v_xor_b32 v%d, 0x80008000, v%d" % (PK+16*n+r, PK+16*n+r))
        for part in range(2):
            for hh in range(2):
                k("buffer_store_dwordx4 %s, v%d, %s, s%d offen offset:%d%s" % (vr(PK+16*n+(part*2+hh)*4, 4), T+1, sq(SWS), sT1, part*256+hh*128, PSC))
    k("L_k1_pdd:")
    if opt("pw", 0):
        k("s_mul_i32 s%d, s%d, 22528\nv_lshlrev_b32 v%d, 4, v%d" % (sT0, sC, T+3, vL))
        for j in range(22):
            k("buffer_store_dwordx4 %s, v%d, %s, s%d offen offset:%d sc1" % (vr(XR, 4), T+3, sq(SWS), sT0, (j & 3)*1024))
            if j & 3 == 3: k("s_add_u32 s%d, s%d, 4096" % (sT0, sT0))
    ev(4)
    k("s_lshl_b32 s%d, s%d, 2\ns_add_u32 s%d, s%d, 0x%x\nv_mov_b32 v%d, s%d\nv_mov_b32 v%d, s%d" % (sT0, sC, sT0, sT0, PF_OFF, T, sT0, T+1, sNon))
    k("s_waitcnt vmcnt(0)\ns_mov_b64 exec, 1")
    k("buffer_store_dword v%d, v%d, %s, 0 offen%s\ns_mov_b64 exec, -1" % (T+1, T, sq(SWS), SC))
    stamp(k, 2)
    ev(5)
    TB = 48
    k("s_cmp_eq_u32 s%d, 0\ns_cbranch_scc1 L_k1_ntb" % sTY)
    param_ab(PP, 80, 85, vT[1])
    k("v_cvt_f32_u32 v%d, v%d\nv_mul_f32 v%d, %s, v%d\nv_mul_f32 v%d, %s, v%d" % (vT[1], vG, vT[2], f32(64.0), vT[1], vT[1], f32(16.0), vT[1]))
    cpow5(r5(TB), r5(TB+5), f32(256.0), 90, 95, 80, 85)
    cpow5(r5(TB+12), r5(TB+17), "v%d" % vT[2], 90, 95, 80, 85)
    cpow5(r5(TB+22), r5(TB+27), "v%d" % vT[1], 90, 95, 80, 85)
    k("L_k1_ntb:")
    EI = 16
    aSt, aS0, aS1 = 40, 41, 42
    k("s_lshl_b32 s%d, s%d, 1\ns_add_u32 s%d, s%d, s%d\ns_lshl_b32 s%d, s%d, 9\ns_add_u32 s%d, s%d, 0x%x" % (sT0, sI, sT0, sT0, sMH, sT0, sT0, sT0, sT0, RST_OFF))
    k("v_lshrrev_b32 v%d, 2, v%d\nv_lshlrev_b32 v%d, 4, v%d\nv_lshl_add_u32 v%d, v%d, 2, v%d" % (aSt, vM, aSt, aSt, aSt, vG, aSt))
    k("v_and_b32 v%d, 3, v%d\nv_add_u32 v%d, v%d, v%d\nv_lshl_add_u32 v%d, v%d, 3, s%d" % (aS0, vM, aSt, aSt, aS0, aSt, aSt, sT0))
    k("s_cmp_eq_u32 s%d, 1\ns_cbranch_scc1 L_k1_eaB" % sTY)
    k("s_lshl_b32 s%d, s%d, 6\ns_add_u32 s%d, s%d, s%d\ns_lshl_b32 s%d, s%d, 3\ns_add_u32 s%d, s%d, 0x%x" % (sT0, sMH, sT0, sT0, sCol, sT0, sT0, sT0, sT0, SG_OFF))
    k("v_lshl_add_u32 v%d, v%d, 3, s%d\nv_add_u32 v%d, %d, v%d" % (aS0, vL, sT0, aS1, 1536*8, aS0))
    k("s_mov_b32 s%d, %d" % (sKw, 3072*8))
    k("s_branch L_k1_ead")
    k("L_k1_eaB:")
    k("s_lshl_b32 s%d, s%d, 5\ns_add_u32 s%d, s%d, s%d\ns_lshl_b32 s%d, s%d, 3\ns_add_u32 s%d, s%d, 0x%x" % (sT0, sMH, sT0, sT0, sCol, sT0, sT0, sT0, sT0, SG_OFF))
    k("v_lshrrev_b32 v%d, 5, v%d\nv_mul_u32_u24 v%d, 1504, v%d\nv_add_u32 v%d, v%d, v%d\nv_lshl_add_u32 v%d, v%d, 3, s%d" % (aS0, vL, aS0, aS0, aS0, aS0, vL, aS0, aS0, sT0))
    k("s_mul_i32 s%d, s%d, 80\ns_mul_i32 s%d, s%d, 40\ns_add_u32 s%d, s%d, s%d\ns_lshl_b32 s%d, s%d, 3\ns_add_u32 s%d, s%d, 0x%x" % (sT0, sJJ, sT1, sMH, sT0, sT0, sT1, sT0, sT0, sT0, sT0, SB_OFF))
    k("v_lshrrev_b32 v%d, 3, v%d\nv_mul_u32_u24 v%d, 640, v%d\nv_add_u32 v%d, v%d, v%d\nv_lshl_add_u32 v%d, v%d, 3, s%d" % (aS1, vM, aS1, aS1, aS1, aS1, vSL, aS1, aS1, sT0))
    k("s_mov_b32 s%d, 64" % sKw)
    k("L_k1_ead:")
    ev(6)
    wait_word("L_k1_pg", 36, "%d" % opt("pfgate", 9), T, T+1)
    k("s_mov_b32 s%d, 0" % sT3)
    k("s_lshl_b32 s%d, s%d, 10\ns_add_u32 s%d, s%d, 0x%x\nv_lshlrev_b32 v43, 4, v%d" % (sKx, sMH, sKx, sKx, PF_OFF, vL))
    k("L_k1_pfl:")
    k("buffer_load_dwordx4 v[44:47], v43, %s, s%d offen%s\ns_waitcnt vmcnt(0)" % (sq(SWS), sKx, SC))
    k("v_xor_b32 v%d, s%d, v44" % (T, sNon))
    for r_ in (45, 46, 47): k("v_xor_b32 v%d, s%d, v%d\nv_or_b32 v%d, v%d, v%d" % (T+1, sNon, r_, T, T, T+1))
    k("v_cmp_ne_u32 vcc, 0, v%d" % T)
    k("s_add_u32 s%d, s%d, 1" % (sT3, sT3))
    k("s_cbranch_vccz L_k1_pfd")
    k("s_sleep 16\ns_cmp_lt_u32 s%d, 0x40000\ns_cbranch_scc1 L_k1_pfl" % sT3)
    k("L_k1_pfd:")
    ev(7)
    k("s_lshl_b32 s%d, s%d, 2\ns_add_u32 s%d, s%d, %d\nv_mov_b32 v%d, s%d\nv_mov_b32 v%d, s%d" % (sT0, sMH, sT0, sT0, FLG+24, T+6, sT0, T+7, sNon))
    k("ds_write_b32 v%d, v%d offset:16" % (T+6, T+7))
    k("v_mov_b32 v%d, %d" % (T+2, FLG+40))
    k("L_k1_pf2:")
    k("ds_read_b64 %s, v%d\ns_waitcnt lgkmcnt(0)\nv_min_u32 v%d, v%d, v%d\nv_readfirstlane_b32 s%d, v%d" % (vr(T, 2), T+2, T, T, T+1, sT0, T))
    k("s_cmp_lg_u32 s%d, 0\ns_cbranch_scc1 L_k1_pf2o\ns_sleep 1\ns_branch L_k1_pf2\nL_k1_pf2o:" % sT0)
    wait_word("L_k1_eg", 36, "%d" % opt("eigate", 9), T, T+1)
    k("buffer_load_dwordx2 %s, v%d, %s, 0 offen%s" % (vr(EI, 2), aSt, sq(SWS), SC))
    for p in range(5):
        k("s_mov_b32 s%d, %d\ns_mul_i32 s%d, s%d, %d" % (sT0, p*3072*8, sT1, sKw, p))
        k("buffer_load_dwordx2 %s, v%d, %s, s%d offen%s" % (vr(EI+2+2*p, 2), aS0, sq(SWS), sT0, SC))
        k("buffer_load_dwordx2 %s, v%d, %s, s%d offen%s" % (vr(EI+12+2*p, 2), aS1, sq(SWS), sT1, SC))
    k("s_cmp_eq_u32 s%d, 0\ns_cbranch_scc1 L_k1_ntw" % sTY)
    k("v_mov_b32 v%d, %d" % (T+2, FLG))
    wait_done("L_k1_tbw", "16", T+2, T+8)
    k("s_mul_i32 s%d, s%d, %d\ns_add_u32 s%d, s%d, %d\nv_add_u32 v43, s%d, v43" % (sT0, sMH, 2*80*TRP, sT0, sT0, TRB, sT0))
    for w2 in range(2):
        for qd in range(8): k("ds_write_b128 v43, %s offset:%d" % (vr(TB+4*qd, 4), w2*80*TRP+qd*1024))
    k("L_k1_ntw:")
    k("s_waitcnt vmcnt(0)")
    k("L_k1_eid:")
    ev(8)
    k("v_lshlrev_b32 v%d, 16, v%d\nv_and_b32 v%d, s%d, v%d\nv_rcp_f32 v%d, v%d" % (T, EI, T+1, sMASK, EI, T+2, T+1))
    k("s_mul_i32 s%d, s%d, 768\ns_add_u32 s%d, s%d, %d" % (sT0, sMH, sT0, sT0, STAT_M))
    k("v_lshl_add_u32 v%d, v%d, 2, s%d" % (T+3, vL, sT0))
    k("ds_write_b32 v%d, v%d\nds_write_b32 v%d, v%d offset:256\nds_write_b32 v%d, v%d offset:512" % (T+3, T, T+3, T+2, T+3, T+1))
    def sum5(b): k("v_add_f32 v%d, v%d, v%d\nv_add_f32 v%d, v%d, v%d\nv_add_f32 v%d, v%d, v%d\nv_add_f32 v%d, v%d, v%d" % (b, b, b+2, b+4, b+4, b+6, b, b, b+8, b, b, b+4))
    sum5(EI+2)
    k("s_lshl_b32 s%d, s%d, 9\ns_add_u32 s%d, s%d, %d" % (sT0, sMH, sT0, sT0, SFF))
    k("v_lshl_add_u32 v%d, v%d, 2, s%d" % (T+4, vL, sT0))
    k("ds_write_b32 v%d, v%d" % (T+4, EI+2))
    k("s_cmp_eq_u32 s%d, 1\ns_cbranch_scc1 L_k1_ewB" % sTY)
    sum5(EI+12)
    k("ds_write_b32 v%d, v%d offset:256" % (T+4, EI+12))
    k("s_branch L_k1_ewd")
    k("L_k1_ewB:")
    k("s_mul_i32 s%d, s%d, 384\ns_add_u32 s%d, s%d, %d" % (sT0, sMH, sT0, sT0, SSS))
    k("v_lshl_add_u32 v%d, v%d, 2, s%d" % (T+5, vM, sT0))
    for p in range(5): k("ds_write_b32 v%d, v%d offset:%d" % (T+5, EI+12+2*p, p*64))
    k("L_k1_ewd:")
    k("ds_write_b32 v%d, v%d" % (T+6, T+7))
    k("v_mov_b32 v72, %d\nv_mov_b32 v73, 0" % (FLG+48))
    k("L_k1_P2:")
    stamp(k, 1)
    if TRACE:
        k("s_lshl_b32 s83, s2, 11\ns_add_u32 s83, s83, 0x%x\nv_lshl_add_u32 v12, v0, 2, s83" % (STAMP_OFF + 0x40000))
        k("global_store_dword v12, v255, %s" % sp(pWs))
    LD2 = ["", " sc1", " nt", " sc0 sc1", " sc1 nt"][opt("ld2", 1)]
    sP, sMI, sNI = 4, 5, 6
    sAb, sBb = [72, 73, 74], [75, 76, 77]
    sR, sSh = 78, 79
    SO = SX
    AR, BR, AC = 12, 76, 176
    vA = [2, 3, 4, 5]; vB0, vB1, vOut, vLd, vFl, vFa = 6, 7, 8, 9, 10, 11
    k("s_sub_u32 s%d, s%d, 4" % (sP, sW))
    k("s_and_b32 s%d, s2, 7\ns_lshr_b32 s%d, s2, 3" % (sT0, sT1))
    k("s_lshr_b32 s%d, s%d, 1\ns_lshl_b32 s%d, s%d, 3\ns_and_b32 s%d, s%d, 7\ns_add_u32 s%d, s%d, s%d" % (sMI, sT0, sMI, sMI, sT2, sT1, sMI, sMI, sT2))
    k("s_and_b32 s%d, s%d, 1\ns_lshl_b32 s%d, s%d, 2\ns_lshr_b32 s%d, s%d, 3\ns_add_u32 s%d, s%d, s%d" % (sNI, sT0, sNI, sNI, sT2, sT1, sNI, sNI, sT2))
    X_, D_, ST_, PFr, tA, tB, tC = AR, AR+10, AR+20, AR+24, AR+32, AR+33, AR+34
    k("v_lshrrev_b32 v%d, 2, v%d\nv_lshlrev_b32 v%d, 4, v%d\nv_and_b32 v%d, 3, v%d" % (tA, vM, tA, tA, tB, vM))
    k("s_lshl_b32 s%d, s%d, 6\ns_lshl_b32 s%d, s%d, 2\ns_add_u32 s%d, s%d, s%d" % (sT0, sMI, sT1, sP, sT0, sT0, sT1))
    k("v_add3_u32 v%d, v%d, v%d, s%d" % (tA, tA, tB, sT0))
    k("s_mul_i32 s%d, s%d, 80" % (sT1, sNI))
    k("v_lshl_add_u32 v%d, v%d, 2, s%d" % (tB, vG, sT1))
    k("v_mul_u32_u24 v%d, 640, v%d\nv_add_u32 v%d, v%d, v%d" % (vOut, tA, vOut, vOut, tB))
    k("v_lshlrev_b32 v%d, 2, v%d" % (vOut, vOut))
    k("v_lshlrev_b32 v%d, 4, v%d\nv_add_u32 v%d, 4096, v%d" % (vB0, vL, vB1, vB0))
    for f in range(4): k("s_xor_b32 s%d, s%d, %d\ns_lshl_b32 s%d, s%d, 10\nv_add_u32 v%d, s%d, v%d" % (sT0, sP, f, sT0, sT0, vA[f], sT0, vB0))
    k("s_mul_i32 s%d, s%d, %d\ns_mul_i32 s%d, s%d, %d\ns_add_u32 s%d, s%d, 0x%x" % (sBb[0], sMI, 88*4096, sBb[1], sNI, 88*5120, sBb[1], sBb[1], B2_OFF))
    for g, (mul, add) in enumerate(((8, 0), (4, 32), (10, 48))):
        k("s_mul_i32 s%d, s%d, %d\ns_add_u32 s%d, s%d, %d" % (sAb[g], sP, mul, sAb[g], sAb[g], add))
    def region(dst, src):
        k("s_and_b32 s%d, s%d, 1\ns_mul_i32 s%d, s%d, 25600\ns_cmp_lt_u32 s%d, 2\ns_cselect_b32 s%d, %d, 0\ns_add_u32 s%d, s%d, s%d" % (dst, src, dst, dst, src, sT0, 2*SL, dst, dst, sT0))
    region(sR, sP)
    k("v_add_u32 v%d, s%d, v%d" % (vLd, sR, vB0))
    k("s_lshl_b32 s%d, s%d, 2\ns_add_u32 s%d, s%d, s%d\ns_mul_i32 s%d, s%d, 512\ns_add_u32 s%d, s%d, 0x%x" % (sSh, sMI, sSh, sSh, sP, sSh, sSh, sSh, sSh, FL_OFF))
    k("v_and_b32 v%d, 3, v%d\nv_lshlrev_b32 v%d, 2, v%d\nv_mov_b32 v%d, %d" % (vFa, vL, vFa, vFa, PFr+2, FLG+32))
    k("s_waitcnt vmcnt(0)\nds_write_b32 v72, v73")
    steps = [(0, i) for i in (0, 2, 4, 6, 1, 3, 5, 7)] + [(1, i) for i in range(4)] + [(2, i) for i in range(10)]
    fgrp = {0: 0, 4: 3, 8: 1, 12: 2}
    NS = len(steps)
    sK = list(range(16, 32)) + list(range(34, 40))
    ROT = opt("rot", 1)
    k("s_lshr_b32 s%d, s2, 3\ns_and_b32 s%d, s%d, 7\ns_lshr_b32 s%d, s%d, 3" % (sT1, sT0, sT1, sT1, sT1))
    if ROT:
        k("s_add_u32 s%d, s%d, s%d\ns_and_b32 s%d, s%d, 3" % (sT2, sT0, sT1, sT2, sT2))
        k("s_mul_i32 s%d, s%d, 3\ns_add_u32 s%d, s%d, s%d\ns_cmp_ge_u32 s%d, 10\ns_cselect_b32 s%d, 10, 0\ns_sub_u32 s%d, s%d, s%d" % (sT3, sT1, sT3, sT3, sT0, sT3, sT0, sT3, sT3, sT0))
    else:
        k("s_mov_b32 s%d, 0\ns_mov_b32 s%d, 0" % (sT2, sT3))
    for j in range(4):
        k("s_add_u32 s%d, s%d, %d\ns_and_b32 s%d, s%d, 3\ns_add_u32 s%d, s%d, s%d\ns_lshl_b32 s%d, s%d, 1\ns_add_u32 s%d, s%d, s%d\ns_add_u32 s%d, s%d, 1" %
          (sT0, sT2, j, sT0, sT0, sK[8+j], sT0, sAb[1], sT0, sT0, sK[j], sT0, sAb[0], sK[4+j], sK[j]))
    for j in range(10):
        k("s_add_u32 s%d, s%d, %d\ns_cmp_ge_u32 s%d, 10\ns_cselect_b32 s%d, 10, 0\ns_sub_u32 s%d, s%d, s%d\ns_add_u32 s%d, s%d, s%d" % (sT0, sT3, j, sT0, sT1, sT0, sT0, sT1, sK[12+j], sT0, sAb[2]))
    LS = [[7, 10, 13, 16, 19], [17, 18, 19, 20, 21], [9, 12, 15, 18, 21], [13, 15, 17, 19, 21]][opt("lsl", 1)]
    NA, NB = 4, 5
    vm = []
    THR = opt("thr", 0)
    def ldB(s, buf):
        g, i = steps[s]
        o = (["s_waitcnt vmcnt(%d)" % THR] if THR else []) + ["s_mul_i32 s%d, s%d, 5120\ns_add_u32 s%d, s%d, s%d" % (sT1, sK[s], sT1, sT1, sBb[1])]
        for f in range(5):
            o.append("buffer_load_dwordx4 %s, v%d, %s, s%d offen offset:%d%s" % (vr(BR+buf*20+f*4, 4), vB1 if f == 4 else vB0, sq(SWS), sT1, (f & 3)*1024, LD2))
            vm.append(("B", s))
        return o
    def ldA(s):
        g, i = steps[s]
        o = (["s_waitcnt vmcnt(%d)" % THR] if THR else []) + ["s_lshl_b32 s%d, s%d, 12\ns_add_u32 s%d, s%d, s%d" % (sT0, sK[s], sT0, sT0, sBb[0])]
        for f in range(4):
            o.append("buffer_load_dwordx4 %s, v%d, %s, s%d offen%s" % (vr(AR+(s % NA)*16+f*4, 4), vA[f], sq(SWS), sT0, LD2))
            vm.append(("A", s))
        return o
    def vwait(tags):
        idx = max(i for i, x in enumerate(vm) if x in tags)
        return min(63, len(vm)-1-idx)
    bbuf = {}
    k("L_k1_p2e:")
    k("ds_read_b128 %s, v%d\ns_waitcnt lgkmcnt(0)\nv_min_u32 v%d, v%d, v%d\nv_readfirstlane_b32 s%d, v%d\nv_readfirstlane_b32 s%d, v%d" % (vr(PFr+4, 4), PFr+2, PFr+6, PFr+6, PFr+7, sNon, PFr+6, sT0, PFr+5))
    k("s_cmp_lt_u32 s%d, %d\ns_cselect_b32 s%d, 0, s%d\ns_cmp_lg_u32 s%d, 0\ns_cbranch_scc1 L_k1_p2eo\ns_sleep 1\ns_branch L_k1_p2e\nL_k1_p2eo:" % (sT0, opt("bgate", 10), sT0, sNon, sT0))
    streamed = [s for s in range(NS) if s not in LS]
    for j in range(NB):
        bbuf[streamed[j]] = j
        for x in ldB(streamed[j], j): k(x)
    nextB = NB
    srd(k, SO, pOut, 2048*640*4)
    k("v_mov_b32 v%d, %d" % (AR+40, FLG))
    k("s_and_b32 s%d, s%d, 2\ns_add_u32 s%d, s%d, 18" % (sT1, sP, sT1, sT1))
    stamp(k, 2)
    wait_done("L_k1_p2w", "s%d" % sT1, AR+40, AR+44)
    for j, s_ in enumerate(LS):
        g, i = steps[s_]
        if THR: k("s_waitcnt vmcnt(%d)" % THR)
        k("s_add_u32 m0, s%d, %d\ns_mul_i32 s%d, s%d, 5120\ns_add_u32 s%d, s%d, s%d" % (sR, j*5120, sT1, sK[s_], sT1, sT1, sBb[1]))
        for f in range(4):
            k("buffer_load_dwordx4 v%d, %s, s%d offen offset:%d%s lds" % (vB0, sq(SWS), sT1, f*1024, LD2)); vm.append(("L", s_))
        k("s_add_u32 m0, s%d, %d" % (sR, j*5120+4096))
        k("buffer_load_dwordx4 v%d, %s, s%d offen%s lds" % (vB1, sq(SWS), sT1, LD2)); vm.append(("L", s_))
    stamp(k, 3)
    def flag_load(g):
        vm.append(("F", 0))
        return "buffer_load_dword v%d, v%d, %s, s%d offen offset:%d%s" % (vFl, vFa, sq(SWS), sSh, g*128, SC)
    def flag_check(g):
        lab = "L_k1_fc%d" % g
        k("s_waitcnt vmcnt(%d)" % vwait([("F", 0)]))
        k("s_mov_b32 s%d, 0\ns_branch %s_c" % (sT3, lab))
        k("%s_r:" % lab)
        k("s_sleep %d\nbuffer_load_dword v%d, v%d, %s, s%d offen offset:%d%s\ns_waitcnt vmcnt(0)" % (opt("psl", 16), vFl, vFa, sq(SWS), sSh, g*128, SC))
        k("%s_c:" % lab)
        k("v_cmp_ne_u32 vcc, s%d, v%d" % (sNon, vFl))
        k("s_add_u32 s%d, s%d, 1" % (sT3, sT3))
        k("s_cbranch_vccz %s_d" % lab)
        k("s_cmp_lt_u32 s%d, 0x40000\ns_cbranch_scc1 %s_r" % (sT3, lab))
        k("%s_d:" % lab)
    k(flag_load(0))
    flag_check(0)
    stamp(k, 4)
    for s_ in range(NA):
        for x in ldA(s_): k(x)
    LEAD = {4: opt("ld3", 3), 8: opt("ld1", 2), 12: opt("ld2_", 1)}
    chkpos = {g: g - 1 - LEAD[g] for g in LEAD}
    nextA = NA
    if chkpos[4] <= 0: k(flag_load(3))
    pend = []
    for s_ in range(NS):
        fill = pend; pend = []
        need = [("A", s_)] + ([("B", s_)] if s_ not in LS else [])
        mf_ = []
        for f in range(4):
            for cb in range(5):
                c = AC + (f*5+cb)*4
                mf_.append("v_mfma_f32_16x16x32_bf16 %s, %s, %s, %s" % (vr(c, 4), vr(BR+bbuf[s_]*20+cb*4, 4), vr(AR+(s_ % NA)*16+f*4, 4), vr(c, 4) if s_ else "0"))
        if opt("ilv", 0):
            nf = sum(1 for x in fill if x.startswith("buffer_load"))
            k("s_waitcnt vmcnt(%d)%s" % (max(0, vwait(need)-nf), " lgkmcnt(0)" if s_ in LS else ""))
            interleave(k, mf_, fill, per=1)
        else:
            for x in fill: k(x)
            k("s_waitcnt vmcnt(%d)%s" % (vwait(need), " lgkmcnt(0)" if s_ in LS else ""))
            for x in mf_: k(x)
        for g_ in chkpos:
            if chkpos[g_] == s_:
                if fgrp[g_] == 2: stamp(k, 0)
                flag_check(fgrp[g_])
                if fgrp[g_] == 2: stamp(k, 7)
        while nextA < NS and nextA <= s_ + NA and all(not (g_ <= nextA and chkpos[g_] > s_) for g_ in chkpos):
            pend += ldA(nextA); nextA += 1
        fb = bbuf[s_]
        if s_+2 in LS:
            bbuf[s_+2] = fb
            j = LS.index(s_+2)
            pend.append("s_waitcnt vmcnt(%d)" % vwait([("L", s_+2)]))
            for f in range(5): pend.append("ds_read_b128 %s, v%d offset:%d" % (vr(BR+fb*20+f*4, 4), vLd, j*5120+f*1024))
        elif nextB < len(streamed):
            bbuf[streamed[nextB]] = fb
            pend += ldB(streamed[nextB], fb); nextB += 1
        for g_ in chkpos:
            if chkpos[g_] == s_+1: pend.insert(0, None); fl_ = fgrp[g_]
        if pend and pend[0] is None:
            nl = sum(1 for x in pend[1:] if x.startswith("buffer_load"))
            txt = flag_load(fl_); vm.pop(); vm.insert(len(vm)-nl, ("F", 0)); pend[0] = txt
    stamp(k, 5)
    for f in range(1, 4):
        for cb in range(5): k("ds_write_b128 v%d, %s offset:%d" % (vLd, vr(AC+(f*5+cb)*4, 4), (f-1)*5120+cb*1024))
    for f in range(1, 4):
        k("s_xor_b32 s%d, s%d, %d" % (sT2, sP, f))
        region(sT1, sT2)
        k("v_add_u32 v%d, s%d, v%d" % (vA[f], sT1, vB0))
    k("s_mul_i32 s%d, s%d, %d\ns_add_u32 s%d, s%d, %d\nv_add_u32 v%d, s%d, v%d" % (sT1, sP, 80*TRP, sT1, sT1, TRB, vA[0], sT1, vB0))
    k("s_waitcnt lgkmcnt(0)\ns_barrier")
    for cb in range(5):
        for f in range(4): k("ds_read_b128 %s, v%d offset:%d" % (vr(AR+(cb*4+f)*4, 4), vA[f], max(f-1, 0)*5120+cb*1024))
        if cb == 2: k("s_waitcnt lgkmcnt(7)")
    for cb in range(5):
        k("s_waitcnt lgkmcnt(%d)" % min(15, 16-4*cb))
        q = AR+cb*16; c = AC+cb*4
        for h in range(0, 4, 2):
            k("v_pk_add_f32 %s, %s, %s\nv_pk_add_f32 %s, %s, %s" % (vr(q+h, 2), vr(q+h, 2), vr(q+4+h, 2), vr(q+8+h, 2), vr(q+8+h, 2), vr(q+12+h, 2)))
        for h in range(0, 4, 2): k("v_pk_add_f32 %s, %s, %s" % (vr(c+h, 2), vr(c+h, 2), vr(q+h, 2)))
        for h in range(0, 4, 2): k("v_pk_add_f32 %s, %s, %s" % (vr(c+h, 2), vr(c+h, 2), vr(q+8+h, 2)))
        k("buffer_store_dwordx4 %s, v%d, %s, 0 offen offset:%d" % (vr(c, 4), vOut, sq(SO), cb*64))
    stamp(k, 6)
    stamp_out(k, 0, 8, pWs, 76)
    k("s_endpgm")

    k("L_k1_C:")
    k("s_setprio 3")
    aX = [12, 13]; aW = [14, 15, 16, 17]
    XS = [20, 36]
    WR = 52
    ACC = 84
    k("v_lshrrev_b32 v%d, 1, v%d\nv_xor_b32 v%d, v%d, v%d\nv_lshlrev_b32 v%d, 4, v%d" % (vT[0], vM, vT[0], vT[0], vG, vT[0], vT[0]))
    k("v_lshl_add_u32 v%d, v%d, 7, v%d" % (vT[5], vM, vT[0]))
    k("s_lshl_b32 s%d, s%d, 13" % (sT0, sMH))
    k("v_add_u32 v%d, s%d, v%d\nv_xor_b32 v%d, 64, v%d" % (aX[0], sT0, vT[5], aX[1], aX[0]))
    k("v_lshrrev_b32 v%d, 2, v%d\nv_lshl_add_u32 v%d, v%d, 3, v%d\nv_lshlrev_b32 v%d, 7, v%d" % (vT[0], vM, vT[0], vG, vT[0], vT[0], vT[0]))
    k("v_and_b32 v%d, 1, v%d\nv_lshlrev_b32 v%d, 1, v%d\nv_lshrrev_b32 v%d, 3, v%d\nv_or_b32 v%d, v%d, v%d" % (vT[1], vG, vT[1], vT[1], vT[2], vM, vT[1], vT[1], vT[2]))
    k("v_lshl_add_u32 v%d, v%d, 5, v%d" % (vT[0], vT[1], vT[0]))
    k("v_and_b32 v%d, 3, v%d\nv_lshl_add_u32 v%d, v%d, 3, v%d\nv_add_u32 v%d, 16384, v%d" % (vT[1], vM, vT[0], vT[1], vT[0], vT[0], vT[0]))
    k("s_lshl_b32 s%d, s%d, 1\ns_add_u32 s%d, s%d, s%d" % (sC, sI, sC, sC, sMH))
    k("s_mov_b32 s%d, 0\ns_mov_b32 s%d, 0" % (sIt, sRd))
    k("s_cmp_eq_u32 s%d, 1\ns_cbranch_scc1 L_k1_CB" % sTY)

    def c_loop(tag, frags, R, D, WR, addr_regs, post):
        n = len(frags); N = 2*n
        assert N % R == 0
        def wreg(p): return WR + (p % R)*4
        def rdW(p): return frags[p % n][0]((p % N)//n, wreg(p))
        def rdX(h): return ["ds_read_b128 %s, v%d offset:%d" % (vr(XS[h]+4*b, 4), aX[h], b*2048) for b in range(4)]
        def mf(p): return [frags[p % n][1](b, XS[(p % N)//n]+4*b, wreg(p)) for b in range(4)]
        adv = ["s_mov_b32 s%d, %d\ns_add_u32 s%d, s%d, 1\ns_cmp_eq_u32 s%d, 3\ns_cselect_b32 s%d, 0, s%d\ns_cselect_b32 s%d, %d, s%d" % (sDelta, SL, sRd, sRd, sRd, sRd, sRd, sDelta, (-2*SL) & 0xffffffff, sDelta)]
        adv += ["v_add_u32 v%d, s%d, v%d" % (r, sDelta, r) for r in addr_regs]
        vFl, vFa, vDa, vDv = 18, vT[1], vT[2], vT[3]
        sF = sA
        import re as _re
        def build():
            seq = []
            for j in range(N):
                loads = [("ld", x, ("W", j)) for x in rdW(j)]
                if j == 0: loads = [("ld", x, ("X0", b)) for b, x in enumerate(rdX(0)[:2])] + loads
                if j == 1: loads = [("ld", x, ("X0", b+2)) for b, x in enumerate(rdX(0)[2:])] + loads
                if D <= j < D+4: loads += [("ld", rdX(1)[j-D], ("X1", j-D))]
                if j == N-opt("fl", 2): loads += [("ld", "ds_read_b64 %s, v%d " % (vr(vFl, 2), vFa), ("F", 0))]
                if j == N-1 or j == max(n-1, D+3): loads += [("ld", "ds_write_b32 v%d, v%d" % (vDa, vDv), ("DW", j))]
                p = j - D
                ms = mf(p % N)
                for b in range(4):
                    need = [("W", p % N)] + [("X%d" % ((p % N)//n), bb) for bb in range(4)]
                    seq.append(("mf", ms[b], (need, p < 0)))
                    if b < 3:
                        if loads: seq.append(loads.pop(0))
                    else: seq += loads
                    if j == N-1 and b == 1: seq.append(("use", "v_min_u32 v%d, v%d, v%d" % (vFl, vFl, vFl+1), ([("F", 0)], False)))
                    if j == N-1 and b == 2: seq.append(("x", "v_readfirstlane_b32 s%d, v%d" % (sF, vFl), None))
                if j == D: seq.append(("x", adv[0], None))
                if j == D+1 or j == N-4: seq.append(("x", "v_add_u32 v%d, 1, v%d" % (vDv, vDv), None))
            pos0 = next(i for i, x in enumerate(seq) if x[0] == "x")
            used = set(); ins = []
            for r, a_ in zip(addr_regs, adv[1:]):
                last = max(i for i, x in enumerate(seq) if x[0] == "ld" and _re.search(r", v%d " % r, x[1]+" "))
                i = max(last, pos0) + 1
                while i < len(seq) and not (seq[i][0] == "mf" and i not in used and (i+1 >= len(seq) or seq[i+1][0] == "mf")): i += 1
                i = min(i, len(seq)-1)
                used.add(i); ins.append((i, a_))
            for i, a_ in sorted(ins, reverse=True): seq.insert(i+1, ("x", a_, None))
            return seq
        def emit(seq, prev):
            issued = [(t, True) for t in prev]
            cur = 99
            for kind, text, tg in seq:
                if kind == "ld": issued.append((tg, False)); cur += 1
                elif kind == "lab": cur = 99
                elif kind in ("mf", "use"):
                    w = 15
                    for t in tg[0]:
                        idx = max(i for i, x in enumerate(issued) if x == (t, tg[1]))
                        w = min(w, len(issued)-1-idx)
                    if w < cur:
                        k("s_waitcnt lgkmcnt(%d)" % w); cur = w
                k(text)
        L = "L_k1_cl" + tag
        k("v_mov_b32 v%d, %d\nv_mov_b32 v%d, 0" % (vFa, FLG+16, vDv))
        k("s_lshl_b32 s%d, s%d, 2\ns_add_u32 s%d, s%d, %d\nv_mov_b32 v%d, s%d" % (sT0, sW, sT0, sT0, FLG, vDa, sT0))
        s2 = build()
        allld = [x[2] for x in s2 if x[0] == "ld"]
        idx2 = next(i for i, x in enumerate(s2) if x[0] == "mf" and not x[2][1])
        k("%s_sp:" % L)
        k("ds_read_b64 %s, v%d\ns_waitcnt lgkmcnt(0)\nv_min_u32 v%d, v%d, v%d\nv_readfirstlane_b32 s%d, v%d" % (vr(vFl, 2), vFa, vFl, vFl, vFl+1, sF, vFl))
        k("s_cmp_gt_u32 s%d, s%d\ns_cbranch_scc0 %s_sp" % (sF, sIt, L))
        k("s_cmp_lg_u32 s%d, 0\ns_cbranch_scc1 %s" % (sIt, L))
        stamp(k, 5)
        for x in s2[:idx2]:
            if x[0] == "ld": k(x[1])
        k("s_branch %s_mid" % L)
        k(".p2align 6")
        k("%s:" % L)
        trace(sIt, 4, 1)
        if opt("clk", 0):
            k("s_cmp_lg_u32 s%d, 5\ns_cbranch_scc1 %s_nc\ns_memrealtime s[84:85]\ns_memtime s[90:91]\n%s_nc:" % (sIt, L, L))
        s2 = s2[:idx2] + [("lab", "%s_mid:" % L, None)] + s2[idx2:]
        lastmf = max(i for i, x in enumerate(s2) if x[0] == "mf")
        s2.insert(lastmf, ("x", "s_add_u32 s%d, s%d, 1\ns_cmp_eq_u32 s%d, 10\ns_cselect_b32 s%d, 0, s%d\ns_cmp_gt_u32 s%d, s%d" % (sIt, sIt, sIt, sF, sF, sF, sIt), None))
        emit(s2, allld)
        if TRACE:
            trace(sIt, 4, 0)
            k("s_cmp_gt_u32 s%d, s%d" % (sF, sIt))
        k("s_cbranch_scc1 %s" % L)
        k("s_cmp_lt_u32 s%d, 10\ns_cbranch_scc1 %s_sp" % (sIt, L))
        if opt("clk", 0): k("s_memrealtime s[94:95]\ns_memtime s[96:97]")
        k("ds_read_b64 %s, v%d offset:8" % (vr(vFl, 2), vFa))
        k("s_waitcnt lgkmcnt(6)")
        for x in mf(N-D): k(x)
        k("s_branch %s_ec" % L)
        k("%s_es:" % L)
        k("ds_read_b64 %s, v%d offset:8" % (vr(vFl, 2), vFa))
        k("%s_ec:" % L)
        k("s_waitcnt lgkmcnt(0)")
        k("v_min_u32 v%d, v%d, v%d\nv_readfirstlane_b32 s%d, v%d" % (vFl, vFl, vFl+1, sNon, vFl))
        k("s_cmp_eq_u32 s%d, 0\ns_cbranch_scc1 %s_es" % (sNon, L))
        tail = []
        for p in range(N-D+1, N): tail += mf(p)
        interleave(k, tail, post(), lead=2, per=1)

    c0 = -2*math.sqrt(2/math.pi)*LOG2E
    def ffn_epilogue(ACCF, ncb, S4, Mb, RSb, Sb, T, O, K0, vSt, blocks, defer=None):
        for bi, (b, pr_) in enumerate(blocks):
            sel = b & 1
            bc = lambda base: vr(base + (b & ~1), 2)
            os0 = " op_sel:[%d,0,0] op_sel_hi:[%d,1,1]" % (sel, sel)
            items = [(cb, hh) for cb in (2*pr_, 2*pr_+1) for hh in range(2)]
            G = lambda cb, hh: ACCF + (cb*4+b)*4 + 2*hh
            U = lambda cb, hh: ACCF + ((ncb+cb)*4+b)*4 + 2*hh
            Tm = lambda cb, hh: T + (cb & 1)*4 + 2*hh
            for cb, hh in items: k("v_pk_fma_f32 %s, %s, %s, %s%s neg_lo:[1,0,0] neg_hi:[1,0,0]" % (vr(G(cb,hh),2), bc(Mb), vr(S4+cb*4+2*hh,2), vr(G(cb,hh),2), os0))
            for cb, hh in items: k("v_pk_mul_f32 %s, %s, %s op_sel:[%d,0] op_sel_hi:[%d,1]" % (vr(G(cb,hh),2), bc(RSb), vr(G(cb,hh),2), sel, sel))
            for cb, hh in items: k("v_pk_mul_f32 %s, %s, %s" % (vr(Tm(cb,hh),2), vr(G(cb,hh),2), vr(G(cb,hh),2)))
            for cb, hh in items: k("v_pk_fma_f32 %s, %s, %s, %s op_sel:[0,0,1] op_sel_hi:[1,0,1]" % (vr(Tm(cb,hh),2), vr(Tm(cb,hh),2), vr(K0,2), vr(K0,2)))
            for cb, hh in items: k("v_pk_mul_f32 %s, %s, %s" % (vr(Tm(cb,hh),2), vr(Tm(cb,hh),2), vr(G(cb,hh),2)))
            for cb, hh in items:
                k("v_exp_f32 v%d, v%d\nv_exp_f32 v%d, v%d" % (Tm(cb,hh), Tm(cb,hh), Tm(cb,hh)+1, Tm(cb,hh)+1))
                k("v_pk_fma_f32 %s, %s, %s, %s%s neg_lo:[1,0,0] neg_hi:[1,0,0]" % (vr(U(cb,hh),2), bc(Mb), vr(S4+(ncb+cb)*4+2*hh,2), vr(U(cb,hh),2), os0))
            for cb, hh in items: k("v_pk_fma_f32 %s, %s, %s, %s op_sel:[0,%d,%d] op_sel_hi:[1,%d,%d]" % (vr(Tm(cb,hh),2), vr(Tm(cb,hh),2), bc(Sb), bc(Sb), sel, sel, sel, sel))
            for cb, hh in items:
                k("v_rcp_f32 v%d, v%d\nv_rcp_f32 v%d, v%d" % (Tm(cb,hh), Tm(cb,hh), Tm(cb,hh)+1, Tm(cb,hh)+1))
                k("v_pk_mul_f32 %s, %s, %s" % (vr(G(cb,hh),2), vr(G(cb,hh),2), vr(U(cb,hh),2)))
            for cb, hh in items: k("v_pk_mul_f32 %s, %s, %s" % (vr(G(cb,hh),2), vr(G(cb,hh),2), vr(Tm(cb,hh),2)))
            Ob = O + (bi & 1)*4 if defer is None else O[bi]
            for j_, (cb, hh) in enumerate(items): k("v_cvt_pk_bf16_f32 v%d, v%d, v%d" % (Ob+j_, G(cb,hh), G(cb,hh)+1))
            if pr_: k("s_add_u32 s%d, s%d, 4096" % (sT0, sKS))
            st_ = "buffer_store_dwordx4 %s, v%d, %s, s%d offen offset:%d%s" % (vr(Ob, 4), vSt, sq(SWS), sT0 if pr_ else sKS, b*1024, S1)
            if defer is None: k(st_)
            else: defer.append(st_)

    def a2_flag(group, nwait, va, vv):
        k("s_lshl_b32 s%d, s%d, 2\ns_lshr_b32 s%d, s%d, 1\ns_add_u32 s%d, s%d, s%d\ns_mul_i32 s%d, s%d, 512" % (sT0, sC, sT1, sJJ, sT0, sT0, sT1, sT0, sT0))
        k("s_and_b32 s%d, s%d, 1\ns_lshl_b32 s%d, s%d, 1\ns_add_u32 s%d, s%d, s%d\ns_lshl_b32 s%d, s%d, 2\ns_add_u32 s%d, s%d, s%d\ns_add_u32 s%d, s%d, 0x%x" % (sT1, sJJ, sT1, sT1, sT1, sT1, sNH, sT1, sT1, sT0, sT0, sT1, sT0, sT0, FL_OFF + group*128))
        k("v_mov_b32 v%d, s%d\nv_mov_b32 v%d, s%d" % (va, sT0, vv, sNon))
        k("s_waitcnt vmcnt(%d)\ns_mov_b64 exec, 1" % nwait)
        k("buffer_store_dword v%d, v%d, %s, 0 offen%s\ns_mov_b64 exec, -1" % (vv, va, sq(SWS), SC))

    def base_loads(R):
        k("s_and_b32 s%d, s2, 7\ns_lshr_b32 s%d, s2, 3" % (sT0, sT1))
        k("s_lshr_b32 s%d, s%d, 1\ns_lshl_b32 s%d, s%d, 3\ns_and_b32 s%d, s%d, 7\ns_add_u32 s%d, s%d, s%d" % (sT3, sT0, sT3, sT3, sT2, sT1, sT3, sT3, sT2))
        k("s_and_b32 s%d, s%d, 1\ns_lshl_b32 s%d, s%d, 2\ns_lshr_b32 s%d, s%d, 3\ns_add_u32 s%d, s%d, s%d\ns_mul_i32 s%d, s%d, 80" % (sT0, sT0, sT0, sT0, sT2, sT1, sT0, sT0, sT2, sT0, sT0))
        k("s_lshl_b32 s%d, s%d, 6\ns_lshl_b32 s%d, s%d, 2\ns_add_u32 s%d, s%d, s%d" % (sT3, sT3, sT1, sW, sT3, sT3, sT1))
        ra, rb, rc = R+22, R+23, R+24
        k("v_lshrrev_b32 v%d, 2, v%d\nv_lshlrev_b32 v%d, 4, v%d\nv_and_b32 v%d, 3, v%d\nv_add3_u32 v%d, v%d, v%d, s%d" % (ra, vM, ra, ra, rb, vM, ra, ra, rb, sT3))
        k("v_lshl_add_u32 v%d, v%d, 2, s%d" % (rb, vG, sT0))
        k("v_mul_u32_u24 v%d, 640, v%d\nv_add_u32 v%d, v%d, v%d\nv_lshlrev_b32 v%d, 1, v%d\nv_lshlrev_b32 v%d, 1, v%d" % (rc, ra, rc, rc, rb, rc, rc, rb, rb))
        k("v_lshlrev_b32 v%d, 3, v%d\nv_add_u32 v%d, 0x%x, v%d" % (ra, ra, ra, RST_OFF, ra))
        for cb in range(5):
            k("global_load_dwordx2 %s, v%d, %s offset:%d" % (vr(R+2*cb, 2), rc, sp(pX), cb*32))
            k("global_load_dwordx2 %s, v%d, %s offset:%d" % (vr(R+10+2*cb, 2), rb, sp(pD), cb*32))
        k("buffer_load_dword v%d, v%d, %s, 0 offen%s" % (R+20, ra, sq(SWS), SC))
    def base_compute(R):
        k("s_setprio 0")
        ST_ = R+20; X4, D4, T4 = R+28, R+48, R+68
        k("s_mul_i32 s%d, s%d, %d\ns_add_u32 s%d, s%d, %d\nv_lshl_add_u32 v%d, v%d, 4, s%d" % (sT0, sW, 80*TRP, sT0, sT0, TRB, R+22, vL, sT0))
        k("v_mov_b32 v%d, %d" % (R+23, FLG))
        wait_done("L_k1_bw%d" % R, "16", R+23, R+24)
        k("s_waitcnt vmcnt(0)")
        k("v_and_b32 v%d, s%d, v%d\nv_lshlrev_b32 v%d, 16, v%d\nv_rcp_f32 v%d, v%d" % (ST_+1, sMASK, ST_, ST_, ST_, ST_+1, ST_+1))
        for d in range(10): k("v_lshlrev_b32 v%d, 16, v%d\nv_and_b32 v%d, s%d, v%d\nv_lshlrev_b32 v%d, 16, v%d\nv_and_b32 v%d, s%d, v%d" % (X4+2*d, R+d, X4+2*d+1, sMASK, R+d, D4+2*d, R+10+d, D4+2*d+1, sMASK, R+10+d))
        def rnd():
            for h in range(10): k("v_cvt_pk_bf16_f32 v%d, v%d, v%d" % (T4+20+h, T4+2*h, T4+2*h+1))
            for h in range(10): k("v_lshlrev_b32 v%d, 16, v%d\nv_and_b32 v%d, s%d, v%d" % (T4+2*h, T4+20+h, T4+2*h+1, sMASK, T4+20+h))
        for r in range(20): k("v_sub_f32 v%d, v%d, v%d" % (T4+r, X4+r, ST_))
        rnd()
        for r in range(20): k("v_mul_f32 v%d, v%d, v%d" % (T4+r, T4+r, ST_+1))
        rnd()
        for r in range(20): k("v_mul_f32 v%d, v%d, v%d" % (T4+r, T4+r, D4+r))
        rnd()
        for r in range(20): k("v_add_f32 v%d, v%d, v%d" % (T4+r, T4+r, X4+r))
        for cb in range(5): k("ds_write_b128 v%d, %s offset:%d" % (R+22, vr(T4+4*cb, 4), cb*1024))
        k("s_waitcnt lgkmcnt(0)")

    def ffn_frag(ACCF, idx, areg, gu):
        rd = lambda h, reg: ["ds_read_b64_tr_b16 %s, v%d offset:%d" % (vr(reg+2*jx, 2), areg, h*4096+jx*512+gu*8192) for jx in range(2)]
        mf = lambda b, x, w: "v_mfma_f32_16x16x32_bf16 %s, %s, %s, %s" % (vr(ACCF+(idx*4+b)*4, 4), vr(w, 4), vr(x, 4), vr(ACCF+(idx*4+b)*4, 4))
        return (rd, mf)

    k("s_lshl_b32 s%d, s%d, 14" % (sT0, sNH))
    k("v_add_u32 v%d, s%d, v%d" % (aW[0], sT0, vT[0]))
    for c in range(1, 4): k("v_xor_b32 v%d, %d, v%d" % (aW[c], 32*c, aW[0]))
    k("s_lshr_b32 s%d, s%d, 5\ns_lshl_b32 s%d, s%d, 1\ns_add_u32 s%d, s%d, s%d\ns_mul_i32 s%d, s%d, 88\ns_add_u32 s%d, s%d, s%d\ns_lshl_b32 s%d, s%d, 12" % (sT0, sCol, sT1, sNH, sT0, sT0, sT1, sT1, sC, sT0, sT0, sT1, sKS, sT0))
    for r in range(0, 128, 2): k("v_mov_b64 v[%d:%d], 0" % (ACC+r, ACC+r+1))
    srd(k, SWS, pWs, WS_NREC)
    E = 212
    S4 = E; Mb, RSb, Sb = XS[0], XS[0]+4, XS[0]+8; K0 = XS[0]+12
    def postA():
        o = ["s_lshl_b32 s%d, s%d, 9\ns_add_u32 s%d, s%d, %d\nv_lshl_add_u32 v%d, v%d, 4, s%d" % (sT0, sNH, sT0, sT0, SFF, vT[1], vG, sT0),
             "s_mul_i32 s%d, s%d, 768\ns_add_u32 s%d, s%d, %d\nv_lshl_add_u32 v%d, v%d, 2, s%d" % (sT0, sMH, sT0, sT0, STAT_M, vT[2], vM, sT0)]
        for b in range(0, 4, 2):
            for a, off in ((Mb, 0), (RSb, 64), (Sb, 128)):
                o.append("ds_read2_b32 %s, v%d offset0:%d offset1:%d" % (vr(a+b, 2), vT[2], off+b*16, off+b*16+16))
        for j in range(8): o.append("ds_read_b128 %s, v%d offset:%d" % (vr(S4+4*j, 4), vT[1], j*64))
        o += ["v_lshlrev_b32 v%d, 4, v%d" % (vT[3], vL), "v_mov_b32 v%d, %s\nv_mov_b32 v%d, %s" % (K0, f32(c0*0.044715), K0+1, f32(c0))]
        return o
    fr = []
    for cb in range(4):
        for gu in range(2): fr.append(ffn_frag(ACC, gu*4+cb, aW[cb], gu))
    c_loop("A", fr, 8, opt("da", 5), WR, aX + aW, postA)
    stamp(k, 1)
    k("s_waitcnt lgkmcnt(0)")
    blk = [(b, p) for p in range(2) for b in range(4)]
    HF = opt("hf", 6)
    ffn_epilogue(ACC, 4, S4, Mb, RSb, Sb, E+32, XS[1], K0, vT[3], blk[:HF])
    a2_flag(0, HF-4, vT[0], vT[1])
    ffn_epilogue(ACC, 4, S4, Mb, RSb, Sb, E+32, XS[1], K0, vT[3], blk[HF:])
    stamp(k, 2)
    a2_flag(3, 0, vT[0], vT[1])
    stamp(k, 4)
    k("s_branch L_k1_base")

    k("L_k1_CB:")
    WRB = 52
    ACCF = 76
    ACCS = 140
    ca = Alloc(220)
    cLr = ca(5); cMu = ca(5); cKk = ca(5); c16r = ca(5); c16k = ca(5); cKr = ca(10, 2)
    assert ca.n <= (255 if TRACE else 256) + 1
    k("s_lshl_b32 s%d, s%d, 6" % (sT0, sNH))
    k("v_xor_b32 v%d, s%d, v%d\nv_xor_b32 v%d, 32, v%d" % (aW[0], sT0, vT[0], aW[1], aW[0]))
    k("s_mul_i32 s%d, s%d, 10240\ns_add_u32 s%d, s%d, 32768" % (sT0, sNH, sT0, sT0))
    k("v_add_u32 v%d, s%d, v%d\nv_xor_b32 v%d, 64, v%d" % (aW[2], sT0, vT[5], aW[3], aW[2]))
    P = XS[0]
    param_loads(P, sNH, vT[0])
    k("s_lshr_b32 s%d, s%d, 5\ns_add_u32 s%d, s%d, s%d\ns_mul_i32 s%d, s%d, 88\ns_add_u32 s%d, s%d, s%d\ns_lshl_b32 s%d, s%d, 12" % (sT0, sCol, sT0, sT0, sNH, sT1, sC, sT0, sT0, sT1, sKS, sT0))
    srd(k, SWS, pWs, WS_NREC)
    for r in range(0, 144, 2): k("v_mov_b64 v[%d:%d], 0" % (ACCF+r, ACCF+r+1))
    k("s_lshl_b32 s%d, s%d, 1\ns_add_u32 s%d, s%d, s%d\ns_lshl_b32 s%d, s%d, 14\ns_add_u32 s%d, s%d, 0x%x" % (sT2, sJJ, sT2, sT2, sNH, sT0, sT2, sT0, sT0, CAR_OFF))
    srd(k, SP0, pWs, 16384, "s%d" % sT0)
    sSS = [68, 69, 70, 71, 14]
    k("s_mul_i32 s%d, s%d, 88\ns_add_u32 s%d, s%d, 48\ns_lshl_b32 s%d, s%d, 12" % (sT3, sC, sT3, sT3, sT3, sT3))
    k("s_mul_i32 s%d, s%d, 10\ns_mul_i32 s%d, s%d, 5\ns_add_u32 s%d, s%d, s%d" % (sT2, sJJ, sT0, sNH, sT2, sT2, sT0))
    for q in range(5):
        k("s_add_u32 s%d, s%d, %d\ns_lshr_b32 s%d, s%d, 1\ns_lshl_b32 s%d, s%d, 12\ns_and_b32 s%d, s%d, 1\ns_lshl_b32 s%d, s%d, 9" % (sT0, sT2, q, sT1, sT0, sT1, sT1, sT0, sT0, sT0, sT0))
        k("s_add_u32 s%d, s%d, s%d\ns_add_u32 s%d, s%d, s%d" % (sT0, sT0, sT1, sSS[q], sT0, sT3))
    k("s_waitcnt vmcnt(0)")
    lre, lim, t0, t1, cA2, cBt = P, P+5, P+16, P+21, P+32, P+37
    KR = [cKr+2*q for q in range(5)]
    param_ab(P, cA2, cBt, vT[4])
    cpow5(r5(cLr), r5(cMu), "1.0", t0, t1, cA2, cBt)
    cpow5(r5(c16r), r5(c16k), f32(16.0), t0, t1, cA2, cBt)
    for q in range(5): k("v_add_f32 v%d, -1.0, v%d\nv_mul_f32 v%d, v%d, v%d" % (t0+q, cLr+q, t1+q, lre+q, lre+q))
    for q in range(5): k("v_fmac_f32 v%d, v%d, v%d" % (t1+q, lim+q, lim+q))
    for q in range(5): k("v_rcp_f32 v%d, v%d" % (t1+q, t1+q))
    for q in range(5): k("v_mul_f32 v%d, v%d, v%d\nv_mul_f32 v%d, v%d, v%d" % (KR[q], t0+q, lre+q, cKk+q, cMu+q, lre+q))
    for q in range(5): k("v_fmac_f32 v%d, v%d, v%d\nv_fma_f32 v%d, -v%d, v%d, v%d" % (KR[q], cMu+q, lim+q, cKk+q, t0+q, lim+q, cKk+q))
    for q in range(5): k("v_add_f32 v%d, v%d, v%d" % (t1+q, t1+q, t1+q))
    for q in range(5): k("v_mul_f32 v%d, v%d, v%d\nv_mul_f32 v%d, v%d, v%d" % (KR[q], KR[q], t1+q, cKk+q, cKk+q, t1+q))
    for s in range(1, 4): k("v_cmp_eq_u32 %s, %d, v%d" % (sp(16+2*s), s, vG))
    def ssm_frag(q):
        rd = lambda h, reg: ["ds_read_b128 %s, v%d offset:%d" % (vr(reg, 4), aW[2+h], q*2048)]
        mf = lambda b, x, w: "v_mfma_f32_16x16x32_bf16 %s, %s, %s, %s" % (vr(ACCS+(q*4+b)*4, 4), vr(x, 4), vr(w, 4), vr(ACCS+(q*4+b)*4, 4))
        return (rd, mf)
    fr = [ssm_frag(q) for q in range(5)]
    for cb in range(2):
        for gu in range(2): fr.append(ffn_frag(ACCF, gu*2+cb, aW[cb], gu))
    M4 = XS[0]
    SQ = [247, 249, 251, 253, 245]
    def postB():
        o = ["s_mul_i32 s%d, s%d, 768\ns_add_u32 s%d, s%d, %d\nv_lshl_add_u32 v%d, v%d, 4, s%d\nv_lshl_add_u32 v%d, v%d, 2, s%d" % (sT0, sMH, sT0, sT0, STAT_M, vT[3], vG, sT0, vT[2], vM, sT0),
             "s_mul_i32 s%d, s%d, 384\ns_add_u32 s%d, s%d, %d\nv_lshl_add_u32 v%d, v%d, 2, s%d" % (sT0, sNH, sT0, sT0, SSS, vT[1], vM, sT0)]
        for b in range(4): o.append("ds_read_b128 %s, v%d offset:%d" % (vr(M4+4*b, 4), vT[3], b*64))
        for q in range(5): o.append("ds_read_b32 v%d, v%d offset:%d" % (SQ[q], vT[1], q*64))
        return o
    c_loop("B", fr, 6, opt("db", 5), WRB, aX + aW, postB)
    stamp(k, 1)
    RS4 = XS[1]
    for b in range(4): k("ds_read_b128 %s, v%d offset:%d" % (vr(RS4+4*b, 4), vT[3], 256+b*64))
    Z = [[ACCS + (q*4 + (t >> 2))*4 + (t & 3) for t in range(16)] for q in range(5)]
    H = [[52+q, 57+q] for q in range(5)]
    k("s_waitcnt lgkmcnt(4)")
    for t in range(0, 16, 2):
        for q in range(5): k("v_pk_fma_f32 %s, %s, %s, %s op_sel:[0,1,0] op_sel_hi:[1,1,1] neg_lo:[1,0,0] neg_hi:[1,0,0]" % (vr(Z[q][t], 2), vr(M4+t, 2), vr(SQ[q]-1, 2), vr(Z[q][t], 2)))
    k("s_waitcnt lgkmcnt(0)")
    for t in range(16):
        if t % 2 == 0:
            for q in range(5): k("v_pk_mul_f32 %s, %s, %s" % (vr(Z[q][t], 2), vr(RS4+t, 2), vr(Z[q][t], 2)))
        if t >= 1:
            prev = [Z[q][0] if t == 1 else H[q][t & 1] for q in range(5)]
            cur = [H[q][(t+1) & 1] for q in range(5)]
            for q in range(5): k("v_fma_f32 v%d, v%d, v%d, v%d" % (cur[q], cLr+q, prev[q], Z[q][t]))
            for q in range(5): k("v_fmac_f32_dpp v%d, v%d, v%d%s" % (cur[q], prev[q], cMu+q, DPP))
    a_ = [H[q][0] for q in range(5)]; b_ = [H[q][1] for q in range(5)]
    c_ = r5(20)
    TOT = 28
    d_ = [TOT, TOT+1, TOT+2, TOT+4, TOT+5]
    MINE = [12, 13, 14, 15, 16]
    S4 = 36; Mb, RSb, Sb = 62, 66, 70; K0 = 74
    def ffn_inputs():
        k("s_lshl_b32 s%d, s%d, 9\ns_add_u32 s%d, s%d, %d\nv_lshl_add_u32 v%d, v%d, 4, s%d" % (sT0, sNH, sT0, sT0, SFF, vT[0], vG, sT0))
        for b in range(0, 4, 2):
            for a, off in ((Mb, 0), (RSb, 64), (Sb, 128)):
                k("ds_read2_b32 %s, v%d offset0:%d offset1:%d" % (vr(a+b, 2), vT[2], off+b*16, off+b*16+16))
        for j in range(4): k("ds_read_b128 %s, v%d offset:%d" % (vr(S4+4*j, 4), vT[0], j*64))
        k("v_mov_b32 v%d, %s\nv_mov_b32 v%d, %s" % (K0, f32(c0*0.044715), K0+1, f32(c0)))
    ffn_inputs()
    for q in range(5): k("v_mov_b32 v%d, v%d" % (b_[q], a_[q]))
    for q in range(5): k("v_permlane16_swap_b32 v%d, v%d" % (a_[q], b_[q]))
    for q in range(5): k("v_mov_b32 v%d, v%d\nv_mov_b32 v%d, v%d" % (c_[q], a_[q], d_[q], b_[q]))
    for q in range(5): k("v_permlane32_swap_b32 v%d, v%d\nv_permlane32_swap_b32 v%d, v%d" % (a_[q], c_[q], b_[q], d_[q]))
    seq = [a_, b_, c_, d_]
    k("v_mov_b32 v%d, s%d\nv_mov_b32 v%d, s%d" % (TOT+3, sNon, TOT+7, sNon))
    k("s_lshl_b32 s%d, s%d, 9" % (sT0, sC))
    k("v_lshlrev_b32 v%d, 4, v%d" % (vT[1], vM))
    for s in range(1, 4):
        for q in range(5): k("v_fmac_f32 v%d, v%d, v%d" % (seq[s][q], c16r+q, seq[s-1][q]))
        for q in range(5): k("v_fmac_f32_dpp v%d, v%d, v%d%s" % (seq[s][q], seq[s-1][q], c16k+q, DPP))
    k("s_mov_b64 exec, 0xffff")
    k("buffer_store_dwordx4 %s, v%d, %s, s%d offen%s" % (vr(TOT, 4), vT[1], sq(SP0), sT0, SC))
    k("buffer_store_dwordx4 %s, v%d, %s, s%d offen offset:256%s" % (vr(TOT+4, 4), vT[1], sq(SP0), sT0, SC))
    k("s_mov_b64 exec, -1")
    stamp(k, 2)
    for q in range(5): k("v_cndmask_b32 v%d, 0, v%d, %s" % (MINE[q], a_[q], sp(18)))
    for q in range(5): k("v_cndmask_b32 v%d, v%d, v%d, %s" % (MINE[q], MINE[q], b_[q], sp(20)))
    for q in range(5): k("v_cndmask_b32 v%d, v%d, v%d, %s" % (MINE[q], MINE[q], c_[q], sp(22)))
    k("v_lshlrev_b32 v%d, 4, v%d" % (vT[3], vL))
    k("s_waitcnt lgkmcnt(0)")
    dst_ = []
    ffn_epilogue(ACCF, 2, S4, Mb, RSb, Sb, 20, [236, 240, 52, 56], K0, vT[3], [(b, 0) for b in range(4)], defer=dst_)
    if not opt("clk", 0): stamp(k, 6)
    PRb = [ACCF + u*8 for u in range(8)]
    k("s_sub_u32 s%d, s%d, 1" % (sT0, sC))
    k("v_sub_u32 v%d, s%d, v%d\nv_lshlrev_b32 v%d, 9, v%d\nv_lshl_add_u32 v%d, v%d, 4, v%d" % (vT[1], sT0, vG, vT[1], vT[1], vT[1], vM, vT[1]))
    def pred_loads():
        for u in range(8):
            if u: k("v_subrev_u32 v%d, %d, v%d" % (vT[0], u*2048, vT[1]))
            a = vT[0] if u else vT[1]
            k("buffer_load_dwordx4 %s, v%d, %s, 0 offen%s" % (vr(PRb[u], 4), a, sq(SP0), SC))
            k("buffer_load_dwordx4 %s, v%d, %s, 0 offen offset:256%s" % (vr(PRb[u]+4, 4), a, sq(SP0), SC))
    pred_loads()
    for x in dst_: k(x)
    k("s_mul_i32 s%d, s%d, %d\ns_add_u32 s%d, s%d, %d" % (sKx, sW, 80*TRP, sKx, sKx, TRB))
    k("v_add_u32 v%d, s%d, v%d" % (vT[4], sKx, vT[3]))
    for qd in range(3): k("ds_read_b128 %s, v%d offset:%d" % (vr(32+4*qd, 4), vT[4], qd*1024))
    L256r, L256k = r5(32), r5(37)
    free = [20+2*q for q in range(5)]
    for t in range(0, 16, 2):
        nf = []
        for q in range(5): k("v_pk_mul_f32 %s, %s, %s op_sel_hi:[0,1]" % (vr(free[q], 2), vr(KR[q], 2), vr(Z[q][t], 2)))
        for e in range(2):
            for q in range(5): k("v_fmac_f32_dpp v%d, v%d, v%d%s" % (free[q]+e, Z[q][t]+e, cKk+q, DPP))
        for q in range(5):
            nf.append(Z[q][t]); Z[q][t] = free[q]; Z[q][t+1] = free[q]+1
        free = nf
    t0, t1 = 30, 31
    k("s_mov_b32 s%d, 0\ns_waitcnt vmcnt(4)\ns_branch L_k1_poll2" % sT3)
    k("L_k1_poll:")
    k("s_waitcnt vmcnt(0)")
    k("L_k1_poll2:")
    k("s_mov_b32 s%d, 0" % sT2)
    for u in range(8):
        k("v_cmp_ne_u32 s[24:25], s%d, v%d\nv_cmp_ne_u32 s[26:27], s%d, v%d\nv_cmp_le_i32 vcc, %d, v%d" % (sNon, PRb[u]+3, sNon, PRb[u]+7, u*2048, vT[1]))
        k("s_or_b64 s[24:25], s[24:25], s[26:27]\ns_and_b64 s[24:25], s[24:25], vcc\ns_cbranch_scc0 L_k1_pu%d" % u)
        k("s_cmp_lg_u32 s%d, 0\ns_cbranch_scc1 L_k1_ps%d\ns_sleep %d\nL_k1_ps%d:" % (sT2, u, opt("csl", 8), u))
        k("s_mov_b32 s%d, 1" % sT2)
        k("v_subrev_u32 v%d, %d, v%d" % (vT[0], u*2048, vT[1]))
        k("s_mov_b64 exec, s[24:25]")
        k("buffer_load_dwordx4 %s, v%d, %s, 0 offen%s" % (vr(PRb[u], 4), vT[0], sq(SP0), SC))
        k("buffer_load_dwordx4 %s, v%d, %s, 0 offen offset:256%s" % (vr(PRb[u]+4, 4), vT[0], sq(SP0), SC))
        k("s_mov_b64 exec, -1")
        k("L_k1_pu%d:" % u)
    k("s_add_u32 s%d, s%d, 1\ns_cmp_eq_u32 s%d, 0\ns_cbranch_scc1 L_k1_polled" % (sT3, sT3, sT2))
    k("s_cmp_lt_u32 s%d, 0x40000\ns_cbranch_scc1 L_k1_poll" % sT3)
    k("L_k1_polled:")
    if not opt("clk", 0): stamp(k, 3)
    pr = lambda u, q: PRb[u]+(q if q < 3 else q+1)
    k("s_waitcnt lgkmcnt(0)")
    for u in range(6, -1, -1):
        for q in range(5): k("v_fmac_f32 v%d, v%d, v%d" % (pr(u, q), L256r[q], pr(u+1, q)))
        for q in range(5): k("v_fmac_f32_dpp v%d, v%d, v%d%s" % (pr(u, q), pr(u+1, q), L256k[q], DPP))
        if u == 4:
            for qd in range(5): k("ds_read_b128 %s, v%d offset:%d" % (vr(PRb[5]+4*qd, 4), vT[4], (3+qd)*1024))
    L64r, L64k, Psr, Psk = r5(PRb[5]), r5(PRb[5]+5), r5(PRb[5]+10), r5(PRb[5]+15)
    k("s_waitcnt lgkmcnt(0)")
    for q in range(5): k("v_mul_f32 v%d, v%d, v%d" % (pr(1, q), L64r[q], pr(0, q)))
    for q in range(5): k("v_fmac_f32_dpp v%d, v%d, v%d%s" % (pr(1, q), pr(0, q), L64k[q], DPP))
    for sw in ("v_permlane16_swap_b32", "v_permlane32_swap_b32"):
        for q in range(5): k("v_mov_b32 v%d, v%d" % (pr(2, q), pr(1, q)))
        for q in range(5): k("%s v%d, v%d" % (sw, pr(1, q), pr(2, q)))
        for q in range(5): k("v_add_f32 v%d, v%d, v%d" % (pr(1, q), pr(1, q), pr(2, q)))
    for q in range(5): k("v_fmac_f32 v%d, v%d, v%d" % (MINE[q], Psr[q], pr(1, q)))
    for q in range(5): k("v_fmac_f32_dpp v%d, v%d, v%d%s" % (MINE[q], pr(1, q), Psk[q], DPP))
    CIN = [f for f in free]
    for q in range(5): k("v_mul_f32 v%d, v%d, v%d" % (CIN[q], KR[q], MINE[q]))
    for q in range(5): k("v_fmac_f32_dpp v%d, v%d, v%d%s" % (CIN[q], MINE[q], cKk+q, DPP))
    PK = 32
    OUTQ = [ACCF + 4*j for j in range(10)]
    k("v_mul_u32_u24 v%d, %d, v%d\nv_lshl_add_u32 v%d, v%d, 5, v%d\nv_add_u32 v%d, s%d, v%d" % (vT[1], TRP, vM, vT[1], vG, vT[1], vT[1], sKx, vT[1]))
    k("v_and_b32 v%d, 1, v%d\nv_lshrrev_b32 v%d, 2, v%d\nv_lshl_add_u32 v%d, v%d, 3, v%d\nv_mul_u32_u24 v%d, %d, v%d" % (vT[0], vG, vT[4], vM, vT[0], vT[0], vT[4], vT[0], TRP, vT[0]))
    k("v_and_b32 v%d, 3, v%d\nv_lshl_add_u32 v%d, v%d, 5, v%d" % (vT[4], vM, vT[0], vT[4], vT[0]))
    k("v_lshrrev_b32 v%d, 1, v%d\nv_lshl_add_u32 v%d, v%d, 3, v%d\nv_add_u32 v%d, s%d, v%d" % (vT[5], vG, vT[0], vT[5], vT[0], vT[0], sKx, vT[0]))
    k("v_and_b32 v%d, 31, v%d\nv_lshlrev_b32 v%d, 4, v%d\nv_lshl_add_u32 v%d, v%d, 10, v%d" % (vT[4], vL, vT[4], vT[4], vT[4], vT[5], vT[4]))
    def tr_reads(bp):
        for q in range(5):
            o = OUTQ[bp*5+q]
            k("ds_read_b64_tr_b16 %s, v%d offset:%d\nds_read_b64_tr_b16 %s, v%d offset:%d" % (vr(o, 2), vT[0], q*16*TRP+bp*16, vr(o+2, 2), vT[0], q*16*TRP+bp*16+4*TRP))
    def tr_stores(bp, waits):
        for q in range(5):
            if waits: k("s_waitcnt lgkmcnt(%d)" % (8-2*q))
            k("buffer_store_dwordx4 %s, v%d, %s, s%d offen offset:%d%s" % (vr(OUTQ[bp*5+q], 4), vT[4], sq(SWS), sSS[q], bp*2048, S1))
    for t in range(16):
        prev = [CIN[q] if t == 0 else Z[q][t-1] for q in range(5)]
        for q in range(5): k("v_fmac_f32 v%d, v%d, v%d" % (Z[q][t], cLr+q, prev[q]))
        for q in range(5): k("v_fmac_f32_dpp v%d, v%d, v%d%s" % (Z[q][t], prev[q], cMu+q, DPP))
        if t & 1:
            for q in range(5): k("v_cvt_pk_bf16_f32 v%d, v%d, v%d" % (PK+8*q+(t >> 1), Z[q][t-1], Z[q][t]))
        if t == 8:
            for q in range(5): k("ds_write_b128 v%d, %s offset:%d" % (vT[1], vr(PK+8*q, 4), q*16*TRP))
        if t == 10: tr_reads(0)
        if t == 13:
            a2_flag(1, 0, 30, 31)
            stamp(k, 7)
            k("s_waitcnt lgkmcnt(0)")
            tr_stores(0, False)
    for q in range(5): k("ds_write_b128 v%d, %s offset:%d" % (vT[1], vr(PK+8*q+4, 4), q*16*TRP+16))
    tr_reads(1)
    tr_stores(1, True)
    base_loads(140)
    a2_flag(2, 11, vT[0], vT[1])
    stamp(k, 4)
    k("s_branch L_k1_base2")
    k("L_k1_base:")
    base_loads(140)
    k("L_k1_base2:")
    base_compute(140)
    finish(100)
    k("L_k1_end:")
    k("s_endpgm")
    return k

if __name__ == "__main__":
    ref = open("parallel_sum__ssm_conv_s5__geglu_ffn__prompt.s.ref").read().split("\n")
    hdr = [l for l in ref if l.startswith(";") and "@launch" not in l and "Override" not in l and "grid=ceil" not in l]
    hdr += ["; @launch grid=(256,1,1) block=(512,1,1) lds=163840"]
    out = [a for a in sys.argv[1:] if not a.startswith("--")][0]
    gen2.TRACE = False
    open(out, "w").write(emit_file(hdr, [(gen_k1(), dict(vgpr=256, accum=256))]))
```

```python
import sys, struct, math
from asmgen import *
import gen2
from gen2 import (A2_OFF, B2_OFF, CAR_OFF, RST_OFF, SB_OFF, SG_OFF, STAMP_OFF, WS_NREC, SL, SPARE, TRP, f32, vr, sq, sp, ror, DPP, SC,
                  Alloc, interleave, srd, stamp, stamp_out, opt, ARG, STAMPS, LOG2E,
                  pX, pLre, pLim, pBre, pBim, pCre, pCim, pLdt, pD, pBx, pG, pU, pDn, pOut, pDbg, pWs)
STAT_M = SPARE
SFF = SPARE + 1536
SSS = SPARE + 2560
TRB = SL
FLG = SPARE + 4032
PF_OFF = 0x1130000
FL_OFF = 0x1131000
TRACE = "--trace" in ARG
S1 = [" sc1", " sc0 sc1", " sc1 nt", ""][opt("st2", 0)]
if opt("sc", 1): SC = " sc1"
FSP = opt("fsp", 128)
FGS = max(128, 4*FSP)
PSC_ = [" sc1", " sc0 sc1"][opt("psc", 0)]
KNAME = "parallel_sum__ssm_conv_s5__geglu_ffn__prompt_kernel"

def gen_k1():
    k = Kern(KNAME)
    sW, sMH, sNH, sI, sJJ, sTY = 3, 4, 5, 6, 7, 8
    sT0, sT1, sT2, sT3 = 9, 10, 11, 12
    sMASK = 13
    SX, SW0, SW1, SWS, SP0, SP1 = 48, 52, 56, 60, 64, 68
    sKx, sKw, sDst, sDelta, sIt, sRd, sA, sB, sKS, sC, sNon, sCol = range(72, 84)
    k("s_cmp_ge_u32 s2, 256\ns_cbranch_scc1 L_k1_end")
    k("s_load_dwordx16 s[16:31], s[0:1], 0\ns_load_dwordx16 s[32:47], s[0:1], 64")
    k("s_memrealtime s[100:101]")
    stamp(k, 0)
    vL, vM, vG, vII, vSL = 1, 2, 3, 4, 5
    vT = [6, 7, 8, 9, 10, 11]
    if TRACE: k("v_mov_b32 v255, 0")
    k("v_lshrrev_b32 v%d, 6, v0" % vT[0])
    k("v_and_b32 v%d, 63, v0" % vL)
    k("v_readfirstlane_b32 s%d, v%d" % (sW, vT[0]))
    k("v_and_b32 v%d, 15, v0\nv_lshrrev_b32 v%d, 4, v%d" % (vM, vG, vL))
    k("v_lshrrev_b32 v%d, 3, v%d\nv_and_b32 v%d, 7, v0" % (vII, vL, vSL))
    k("v_mov_b32 v%d, 0\nv_lshlrev_b32 v%d, 2, v%d\nv_add_u32 v%d, %d, v%d\nds_write_b32 v%d, v%d" % (vT[1], vT[2], vM, vT[2], FLG, vT[2], vT[2], vT[1]))
    k("s_and_b32 s%d, s2, 7\ns_lshr_b32 s%d, s2, 3" % (sT0, sT1))
    k("s_lshr_b32 s%d, s%d, 2\ns_lshl_b32 s%d, s%d, 3\ns_and_b32 s%d, s%d, 7\ns_add_u32 s%d, s%d, s%d" % (sI, sT0, sI, sI, sT2, sT1, sI, sI, sT2))
    k("s_and_b32 s%d, s%d, 3\ns_lshl_b32 s%d, s%d, 2\ns_lshr_b32 s%d, s%d, 3\ns_add_u32 s%d, s%d, s%d" % (sJJ, sT0, sJJ, sJJ, sT2, sT1, sJJ, sJJ, sT2))
    k("s_and_b32 s%d, s%d, 1\ns_lshr_b32 s%d, s%d, 1" % (sTY, sJJ, sJJ, sJJ))
    k("s_mov_b32 s%d, 0xffff0000" % sMASK)
    k("s_and_b32 s%d, s%d, 1\ns_bfe_u32 s%d, s%d, 0x10001" % (sMH, sW, sNH, sW))
    k("s_lshl_b32 s%d, s%d, 7\ns_lshl_b32 s%d, s%d, 6\ns_add_u32 s%d, s%d, 1024\ns_cmp_eq_u32 s%d, 0\ns_cselect_b32 s%d, s%d, s%d" % (sT0, sJJ, sT1, sJJ, sT1, sT1, sTY, sCol, sT0, sT1))
    k("s_waitcnt lgkmcnt(0)\ns_barrier")
    k("s_cmp_lt_u32 s%d, 4\ns_cbranch_scc1 L_k1_C" % sW)
    k("s_cmp_ge_u32 s%d, 6\ns_cbranch_scc1 L_k1_D" % sW)

    def bf16r(d, s):
        k("v_cvt_pk_bf16_f32 v%d, v%d, v%d\nv_lshlrev_b32 v%d, 16, v%d" % (d, s, s, d, d))
    r5 = lambda b: [b+q for q in range(5)]
    def cpow5(dr, dk, n, t0, t1, cA2, cBt):
        R5 = range(5)
        for q in R5: k("v_mul_f32 v%d, %s, v%d\nv_mul_f32 v%d, %s, v%d" % (t0+q, n, cA2+q, t1+q, n, cBt+q))
        for q in R5: k("v_exp_f32 v%d, v%d\nv_rndne_f32 v%d, v%d" % (t0+q, t0+q, dr[q], t1+q))
        for q in R5: k("v_sub_f32 v%d, v%d, v%d" % (t1+q, t1+q, dr[q]))
        for q in R5: k("v_cos_f32 v%d, v%d\nv_sin_f32 v%d, v%d" % (dr[q], t1+q, dk[q], t1+q))
        for q in R5: k("v_mul_f32 v%d, v%d, v%d\nv_mul_f32 v%d, v%d, v%d" % (dr[q], dr[q], t0+q, dk[q], dk[q], t0+q))
    def param_loads(P, snh, va):
        k("s_mul_i32 s%d, s%d, 80\ns_mul_i32 s%d, s%d, 40\ns_add_u32 s%d, s%d, s%d" % (sT0, sJJ, sT1, snh, sT1, sT1, sT0))
        k("v_add_u32 v%d, s%d, v%d\nv_lshlrev_b32 v%d, 1, v%d" % (va, sT1, vSL, va, va))
        for q in range(5):
            for n, p in enumerate((pLre, pLim, pLdt)):
                k("global_load_ushort v%d, v%d, %s offset:%d" % (P+n*5+q, va, sp(p), q*16))
    def param_ab(P, cA2, cBt, vs):
        lre, lim, ldt = P, P+5, P+10
        k("v_lshrrev_b32 v%d, 3, v%d\nv_xor_b32 v%d, 1, v%d\nv_lshlrev_b32 v%d, 31, v%d" % (vs, vM, vs, vs, vs, vs))
        for q in range(15): k("v_lshlrev_b32 v%d, 16, v%d" % (P+q, P+q))
        for q in range(5): k("v_xor_b32 v%d, v%d, v%d\nv_mul_f32 v%d, %s, v%d" % (lim+q, lim+q, vs, ldt+q, f32(LOG2E), ldt+q))
        for q in range(5): k("v_exp_f32 v%d, v%d" % (ldt+q, ldt+q))
        for q in range(5): k("v_cvt_pk_bf16_f32 v%d, v%d, v%d" % (ldt+q, ldt+q, ldt+q))
        for q in range(5): k("v_lshlrev_b32 v%d, 16, v%d" % (ldt+q, ldt+q))
        for q in range(5): k("v_mul_f32 v%d, v%d, v%d\nv_mul_f32 v%d, v%d, v%d" % (cA2+q, ldt+q, lre+q, cBt+q, ldt+q, lim+q))
        for q in range(5): k("v_mul_f32 v%d, %s, v%d\nv_mul_f32 v%d, %s, v%d" % (cA2+q, f32(LOG2E), cA2+q, cBt+q, f32(1/(2*math.pi)), cBt+q))
    def trace(idx_sreg, mul, add):
        if TRACE:
            k("s_memrealtime s[100:101]\ns_mul_i32 m0, s%d, %d\ns_add_u32 m0, m0, %d\ns_waitcnt lgkmcnt(0)\nv_writelane_b32 v255, s100, m0" % (idx_sreg, mul, add))
    def ev(n):
        if TRACE: k("s_memrealtime s[100:101]\ns_waitcnt lgkmcnt(0)\nv_writelane_b32 v255, s100, %d" % n)
    def finish(vt):
        if TRACE:
            k("s_lshl_b32 s83, s2, 11\ns_add_u32 s83, s83, 0x%x\nv_lshl_add_u32 v%d, v0, 2, s83" % (STAMP_OFF + 0x40000, vt+9))
            k("global_store_dword v%d, v255, %s" % (vt+9, sp(pWs)))
        stamp_out(k, 0, 8, pWs, vt)
        k("s_endpgm")

    vXo, vWo, vSo = 12, 13, 14
    vF = 18
    k("s_lshl_b32 s%d, s%d, 7\ns_lshl_b32 s%d, s%d, 5\ns_add_u32 s%d, s%d, s%d" % (sT2, sI, sT3, sMH, sT2, sT2, sT3))
    k("v_lshrrev_b32 v%d, 2, v%d\nv_lshlrev_b32 v%d, 4, v%d\nv_and_b32 v%d, 3, v%d" % (vT[0], vII, vT[0], vT[0], vT[1], vII))
    k("v_add3_u32 v%d, v%d, v%d, s%d" % (vT[0], vT[0], vT[1], sT2))
    k("v_mul_u32_u24 v%d, 1280, v%d" % (vT[0], vT[0]))
    k("s_lshl_b32 s%d, s%d, 2" % (sT3, sMH))
    k("v_lshrrev_b32 v%d, 1, v%d\nv_or_b32 v%d, s%d, v%d\nv_xor_b32 v%d, v%d, v%d" % (vT[1], vII, vT[1], sT3, vT[1], vT[1], vT[1], vSL))
    k("v_lshl_add_u32 v%d, v%d, 4, v%d" % (vXo, vT[1], vT[0]))
    k("s_mul_i32 s%d, s%d, 80" % (sT0, sJJ))
    k("v_add_u32 v%d, s%d, v%d\nv_mul_u32_u24 v%d, 1280, v%d\nv_lshl_add_u32 v%d, v%d, 4, v%d" % (vT[2], sT0, vII, vT[2], vT[2], vSo, vT[1], vT[2]))
    k("s_lshl_b32 s%d, s%d, 3" % (sT0, sMH))
    k("v_add_u32 v%d, s%d, v%d\nv_mul_u32_u24 v%d, 3072, v%d" % (vT[0], sT0, vII, vT[0], vT[0]))
    k("v_and_b32 v%d, 2, v%d\nv_or_b32 v%d, s%d, v%d\nv_xor_b32 v%d, v%d, v%d" % (vT[1], vII, vT[1], sT3, vT[1], vT[1], vT[1], vSL))
    k("v_lshl_add_u32 v%d, v%d, 4, v%d" % (vT[0], vT[1], vT[0]))
    k("s_lshl_b32 s%d, s%d, 1" % (sT0, sCol))
    k("v_add_u32 v%d, s%d, v%d" % (vWo, sT0, vT[0]))
    k("s_mov_b32 s%d, 0\ns_mov_b32 s%d, 0\ns_lshl_b32 s%d, s%d, 10\ns_mov_b32 s%d, 0\ns_mov_b32 s%d, 0" % (sKx, sKw, sDst, sMH, sIt, sRd))
    k("v_mov_b32 v%d, %d\nv_mov_b32 v24, 0" % (vF, FLG))
    k("s_lshl_b32 s%d, s%d, 2\ns_add_u32 s%d, s%d, %d\nv_mov_b32 v%d, s%d" % (sT0, sMH, sT0, sT0, FLG+16, vF+1, sT0))
    srd(k, SX, pX, 2048*1280)
    srd(k, SW0, pG, 640*3072)
    srd(k, SW1, pU, 640*3072)
    k("s_cmp_eq_u32 s%d, 0\ns_cselect_b32 s%d, s%d, s%d\ns_cselect_b32 s%d, s%d, s%d" % (sMH, SP0, pBre, pBim, SP0+1, pBre+1, pBim+1))
    k("s_mov_b32 s%d, %d\ns_mov_b32 s%d, 0x20000" % (SP0+2, 640*1280, SP0+3))
    def wait_word(lab, off, need, va, vt):
        k("v_mov_b32 v%d, %d" % (va, FLG+off))
        k("%s:" % lab)
        k("ds_read_b32 v%d, v%d\ns_waitcnt lgkmcnt(0)\nv_readfirstlane_b32 s%d, v%d" % (vt, va, sT0, vt))
        k("s_cmp_ge_i32 s%d, %s\ns_cbranch_scc1 %s_ok\ns_sleep 1\ns_branch %s\n%s_ok:" % (sT0, need, lab, lab, lab))
    def wait_done(lab, need, vaddr, vt):
        k("%s:" % lab)
        k("ds_read_b128 %s, v%d\ns_waitcnt lgkmcnt(0)" % (vr(vt, 4), vaddr))
        k("v_min_u32 v%d, v%d, v%d\nv_min3_u32 v%d, v%d, v%d, v%d" % (vt, vt, vt+1, vt, vt, vt+2, vt+3))
        k("v_readfirstlane_b32 s%d, v%d" % (sT0, vt))
        k("s_cmp_ge_i32 s%d, %s\ns_cbranch_scc1 %s_ok\ns_sleep 1\ns_branch %s\n%s_ok:" % (sT0, need, lab, lab, lab))
    k("s_cmp_eq_u32 s%d, 1\ns_cbranch_scc1 L_k1_LB_dma\ns_branch L_k1_LA_dma" % sTY)
    def dma(ldsoff, voff, S, sbase, add):
        k("s_add_u32 m0, s%d, %d\ns_add_u32 s%d, s%d, %d\nbuffer_load_dwordx4 v%d, %s, s%d offen lds" % (sDst, ldsoff, sT0, sbase, add, voff, sq(S), sT0))
    NSIG = opt("nsig", 6)
    def chk(lab, add, sig):
        k("s_lshl_b32 s%d, s%d, 1\ns_add_i32 s%d, s%d, %d\ns_waitcnt lgkmcnt(0)" % (sT1, sIt, sT1, sT1, add))
        k("v_min_u32 v20, v20, v21\nv_min3_u32 v20, v20, v22, v23\nv_readfirstlane_b32 s%d, v20" % sT0)
        k("s_cmp_ge_i32 s%d, s%d\ns_cbranch_scc1 %s_go" % (sT0, sT1, lab))
        if sig: k("s_waitcnt vmcnt(0)\nds_write_b32 v%d, v24" % (vF+1))
        wait_done(lab+"_wd", "s%d" % sT1, vF, 20)
        k("%s_go:" % lab)
    for ty in "BA":
        L = "L_k1_L" + ty
        k("%s:" % L)
        trace(sIt, 4, 0)
        chk(L+"_c1", -5, True)
        k("%s_dma:" % L)
        trace(sIt, 4, 1)
        xs = [(n*2048, vXo, SX, sKx, ((n & 3)*4 + (n >> 2)*64)*1280) for n in range(8)]
        ws = []
        for n in range(4):
            for un in range(2 if ty == "A" else 1):
                for gu in range(2):
                    ws.append((16384+un*16384+gu*8192+n*2048, vWo, SW1 if gu else SW0, sKw, n*16*3072+un*128))
        h = len(ws)//2
        p1 = []
        for i in range(8): p1 += xs[i:i+1] + ws[:h][i*h//8:(i+1)*h//8]
        p2 = ws[h:]
        if ty == "B": p2 += [(32768+b*2048, vSo, SP0, sKx, b*10240) for b in range(10)]
        for i, o in enumerate(p1):
            if i == NSIG:
                k("s_waitcnt vmcnt(%d)\nds_write_b32 v%d, v24\nv_add_u32 v24, 1, v24" % (NSIG, vF+1))
                trace(sIt, 4, 3)
            if i == len(p1)-2: k("ds_read_b128 v[20:23], v%d" % vF)
            dma(*o)
        chk(L+"_c2", -4, False)
        for i, o in enumerate(p2):
            if i == len(p2)-2: k("ds_read_b128 v[20:23], v%d" % vF)
            dma(*o)
        k("ds_write_b32 v%d, v24 offset:16" % (vF+1))
        k("s_add_u32 s%d, s%d, 128\ns_add_u32 s%d, s%d, 196608\ns_add_u32 s%d, s%d, %d\ns_add_u32 s%d, s%d, 1" % (sKx, sKx, sKw, sKw, sDst, sDst, SL, sRd, sRd))
        k("s_cmp_eq_u32 s%d, 3\ns_cselect_b32 s%d, 0, s%d\ns_cselect_b32 s%d, %d, 0\ns_sub_u32 s%d, s%d, s%d" % (sRd, sRd, sRd, sT0, 3*SL, sDst, sDst, sT0))
        trace(sIt, 4, 2)
        k("s_add_u32 s%d, s%d, 1\ns_cmp_lt_u32 s%d, 10\ns_cbranch_scc1 %s" % (sIt, sIt, sIt, L))
        if ty == "B": k("s_branch L_k1_Lend")
    k("L_k1_Lend:")
    srd(k, SWS, pWs, WS_NREC)
    k("v_mov_b32 v72, v%d\nv_mov_b32 v73, v24" % (vF+1))
    k("s_branch L_k1_P2")

    k("L_k1_D:")
    XR = 16
    YR = 36
    PK = 100
    T = 132
    vN = 12
    sPQ, sPR = [14, 78], [15, 79]
    k("v_mul_u32_u24 v%d, 1280, v%d\nv_lshl_add_u32 v%d, v%d, 4, v%d" % (vT[0], vG, vT[0], vM, vT[0]))
    XL = opt("xl", 1)
    sQ_, sG_ = sIt, sRd
    if XL:
        k("s_and_b32 s%d, s2, 7\ns_lshl_b32 s%d, s%d, 5\ns_lshr_b32 s%d, s2, 3\ns_add_u32 s%d, s%d, s%d\ns_lshl_b32 s%d, s%d, 1\ns_add_u32 s%d, s%d, s%d" % (sT0, sT0, sT0, sT1, sT0, sT0, sT1, sC, sT0, sC, sC, sMH))
        k("s_bfe_u32 s%d, s2, 0x10002\ns_lshl_b32 s%d, s%d, 5\ns_add_u32 s%d, s%d, s%d" % (sQ_, sQ_, sQ_, sQ_, sQ_, sT1))
    else:
        k("s_lshl_b32 s%d, s2, 1\ns_add_u32 s%d, s%d, s%d" % (sC, sC, sC, sMH))
    srd(k, SX, pX, 2048*1280)
    srd(k, SWS, pWs, WS_NREC)
    k("s_cmp_lg_u32 s%d, 0\ns_cbranch_scc1 L_k1_nn" % sC)
    k("s_or_b32 s%d, s100, 1" % sT0)
    k("v_mov_b32 v%d, s%d\nv_mov_b32 v%d, 0" % (vT[2], sT0, vT[1]))
    k("global_store_dword v%d, v%d, %s%s" % (vT[1], vT[2], sp(pDbg), SC))
    k("L_k1_nn:")
    B1 = opt("b1", 2); GATE = opt("gate", 3)
    SNT = " nt" if opt("snt", 0) else ""
    def gate(lab):
        if GATE: wait_word(lab, 36, "%d" % GATE, vT[3], vT[2])
    k("s_mul_i32 s%d, s%d, 5120" % (sKx, sC))
    xl = lambda c: k("buffer_load_dwordx4 %s, v%d, %s, s%d offen offset:%d%s" % (vr(XR+4*c, 4), vT[0], sq(SX), sKx, c*256, SNT))
    k("s_cmp_eq_u32 s%d, 1\ns_cbranch_scc1 L_k1_D1a" % sMH)
    if XL:
        k("s_mul_i32 s%d, s%d, 43\ns_lshr_b32 s%d, s%d, 9\ns_mul_i32 s%d, s%d, 12\ns_sub_u32 s%d, s%d, s%d" % (sT0, sQ_, sT0, sT0, sT1, sT0, sT1, sQ_, sT1))
        k("s_cmp_lt_u32 s%d, 6\ns_cselect_b32 s%d, s%d, s%d\ns_cselect_b32 s%d, s%d, s%d\ns_cselect_b32 s%d, 0, 6\ns_cselect_b32 s%d, 0, 24" % (sT1, SP1, pG, pU, SP1+1, pG+1, pU+1, sT2, sG_))
        k("s_sub_u32 s%d, s%d, s%d\ns_and_b32 s%d, s2, 3\ns_lshl_b32 s%d, s%d, 2\ns_lshl_b32 s%d, s%d, 1\ns_add_u32 s%d, s%d, 12" % (sT1, sT1, sT2, sT2, sT3, sT2, sT2, sT2, sT2, sT2))
        k("s_cmp_lt_u32 s%d, 4\ns_cselect_b32 s%d, s%d, s%d\ns_add_u32 s%d, s%d, s%d" % (sT1, sT2, sT3, sT2, sT1, sT1, sT2))
        k("s_add_u32 s%d, s%d, s%d\ns_mul_i32 s%d, s%d, 48\ns_add_u32 s%d, s%d, s%d" % (sG_, sG_, sT1, sT2, sT0, sG_, sG_, sT2))
        k("s_lshl_b32 s%d, s%d, 7\ns_mul_i32 s%d, s%d, %d\ns_add_u32 s%d, s%d, s%d" % (sT1, sT1, sT0, sT0, 8*3072, sKw, sT0, sT1))
        k("s_cmp_lt_u32 s%d, 60\ns_cselect_b32 s%d, %d, 0\ns_cselect_b32 s%d, s%d, 1000\ns_mov_b32 s%d, 0x20000" % (sQ_, SP1+2, 640*3072, sG_, sG_, SP1+3))
    else:
        k("s_mov_b32 s%d, s2" % sG_)
        k("s_mul_i32 s%d, s2, 1366\ns_lshr_b32 s%d, s%d, 16\ns_mul_i32 s%d, s%d, 48\ns_sub_u32 s%d, s2, s%d" % (sT0, sT0, sT0, sT1, sT0, sT1, sT1))
        k("s_cmp_lt_u32 s%d, 24\ns_cselect_b32 s%d, s%d, s%d\ns_cselect_b32 s%d, s%d, s%d\ns_cselect_b32 s%d, 0, 24" % (sT1, SP1, pG, pU, SP1+1, pG+1, pU+1, sT2))
        k("s_sub_u32 s%d, s%d, s%d\ns_lshl_b32 s%d, s%d, 7\ns_mul_i32 s%d, s%d, %d\ns_add_u32 s%d, s%d, s%d" % (sT1, sT1, sT2, sT1, sT1, sT0, sT0, 8*3072, sKw, sT0, sT1))
        k("s_cmp_lt_u32 s2, 240\ns_cselect_b32 s%d, %d, 0\ns_mov_b32 s%d, 0x20000" % (SP1+2, 640*3072, SP1+3))
    k("v_mul_u32_u24 v%d, 3072, v%d\nv_lshl_add_u32 v%d, v%d, 4, v%d" % (vT[1], vII, vT[1], vSL, vT[1]))
    a_ = 0
    for c in range(5):
        if c == B1: gate("L_k1_g0")
        xl(c)
        while a_ < 16 and a_*40 < 128*(c+1):
            k("buffer_load_dwordx4 %s, v%d, %s, s%d offen%s" % (vr(YR+4*a_, 4), vT[1], sq(SP1), sKw, SNT))
            k("s_add_u32 s%d, s%d, %d" % (sKw, sKw, 40*3072))
            a_ += 1
    if B1 >= 5: gate("L_k1_g0")
    k("s_branch L_k1_Db")
    k("L_k1_D1a:")
    if XL:
        k("s_cmp_lt_u32 s%d, 20\ns_cselect_b32 s%d, s%d, s%d\ns_cselect_b32 s%d, s%d, s%d\ns_cselect_b32 s%d, 0, 20\ns_cselect_b32 s%d, 0, 80" % (sQ_, SP1, pBre, pBim, SP1+1, pBre+1, pBim+1, sT1, sG_))
        k("s_sub_u32 s%d, s%d, s%d\ns_and_b32 s%d, s2, 3\ns_mul_i32 s%d, s%d, 20\ns_add_u32 s%d, s%d, s%d\ns_add_u32 s%d, s%d, s%d" % (sT0, sQ_, sT1, sT1, sT1, sT1, sT0, sT0, sT1, sG_, sG_, sT0))
        k("s_mul_i32 s%d, s%d, 10240\ns_add_u32 s%d, s%d, 5120" % (sKw, sT0, sDst, sKw))
        k("s_cmp_lt_u32 s%d, 40\ns_cselect_b32 s%d, %d, 0\ns_cselect_b32 s%d, s%d, 1000\ns_mov_b32 s%d, 0x20000" % (sQ_, SP1+2, 640*1280, sG_, sG_, SP1+3))
    else:
        k("s_mov_b32 s%d, s2" % sG_)
        k("s_cmp_lt_u32 s2, 80\ns_cselect_b32 s%d, s%d, s%d\ns_cselect_b32 s%d, s%d, s%d\ns_cselect_b32 s%d, 0, 80" % (SP1, pBre, pBim, SP1+1, pBre+1, pBim+1, sT1))
        k("s_sub_u32 s%d, s2, s%d\ns_mul_i32 s%d, s%d, 10240\ns_add_u32 s%d, s%d, 5120" % (sT0, sT1, sKw, sT0, sDst, sKw))
        k("s_cmp_lt_u32 s2, 160\ns_cselect_b32 s%d, %d, 0\ns_mov_b32 s%d, 0x20000" % (SP1+2, 640*1280, SP1+3))
    for c in range(5):
        if c == B1: gate("L_k1_g1")
        xl(c)
        for hh in range(2): k("buffer_load_dwordx4 %s, v%d, %s, s%d offen offset:%d%s" % (vr(YR+20*hh+4*c, 4), vT[0], sq(SP1), sDst if hh else sKw, c*256, SNT))
    if B1 >= 5: gate("L_k1_g1")
    k("L_k1_Db:")
    if opt("cpf", 1):
        k("s_getpc_b64 s[70:71]")
        k("L_k1_pc:")
        k("s_sub_u32 s70, s70, L_k1_pc-%s\ns_subb_u32 s71, s71, 0" % KNAME)
        k("s_lshr_b32 s%d, s2, 3\ns_lshl_b32 s%d, s%d, 1\ns_add_u32 s%d, s%d, s%d\ns_and_b32 s%d, s%d, 7\ns_lshl_b32 s%d, s%d, 13" % (sT0, sT0, sT0, sT0, sT0, sMH, sT0, sT0, sT0, sT0))
        k("v_lshl_add_u32 v14, v%d, 7, s%d\nv_min_u32 v14, L_k1_end-%s, v14" % (vL, sT0, KNAME))
        k("s_cmp_lt_u32 s%d, L_k1_end-%s\ns_cbranch_scc0 L_k1_ncp\ns_cmp_lt_u32 s2, 64\ns_cbranch_scc0 L_k1_ncp" % (sT0, KNAME))
        k("global_load_dword v15, v14, s[70:71]")
        k("L_k1_ncp:")
    ev(0)
    k("s_lshl_b32 s%d, s%d, 3\ns_add_u32 s%d, s%d, s%d\ns_lshl_b32 s%d, s%d, 1\ns_add_u32 s%d, s%d, s%d\ns_lshl_b32 s%d, s%d, 1" % (sT3, sI, sT3, sT3, sJJ, sT3, sT3, sT3, sT3, sMH, sT3, sT3))
    for n in range(2):
        k("s_add_u32 s%d, s%d, %d\ns_mul_i32 s%d, s%d, 6554\ns_lshr_b32 s%d, s%d, 16\ns_mul_i32 s%d, s%d, 10\ns_sub_u32 s%d, s%d, s%d" % (sT0, sT3, n, sPQ[n], sT0, sPQ[n], sPQ[n], sT1, sPQ[n], sPR[n], sT0, sT1))
    k("v_mov_b32 v%d, 0" % vT[1])
    k("global_load_dword v%d, v%d, %s%s" % (vN, vT[1], sp(pDbg), SC))
    if opt("packlate", 0): k("s_waitcnt vmcnt(1)")
    PNT = " nt" if opt("pnt", 1) else ""
    k("s_cmp_eq_u32 s%d, 1\ns_cbranch_scc1 L_k1_plC" % sTY)
    srd(k, SP0, pDn, 1536*1280)
    k("v_mul_u32_u24 v%d, 1280, v%d\nv_lshl_add_u32 v%d, v%d, 4, v%d" % (vT[1], vII, vT[1], vSL, vT[1]))
    k("s_cmp_lt_u32 s%d, 48\ns_cselect_b32 s%d, s%d, 0" % (sPQ[0], SP0+2, SP0+2))
    for n in range(2):
        k("s_mul_i32 s%d, s%d, 40960\ns_lshl_b32 s%d, s%d, 7\ns_add_u32 s%d, s%d, s%d" % (sT1, sPQ[n], sT2, sPR[n], sT1, sT1, sT2))
        for a in range(4):
            k("buffer_load_dwordx4 %s, v%d, %s, s%d offen%s" % (vr(PK+16*n+4*a, 4), vT[1], sq(SP0), sT1, PNT))
            if a < 3: k("s_add_u32 s%d, s%d, 10240" % (sT1, sT1))
    k("s_branch L_k1_pld")
    k("L_k1_plC:")
    PP = 180
    param_loads(PP, sMH, vT[1])
    srd(k, SP0, pCre, 640*1280)
    srd(k, SP1, pCim, 640*1280)
    k("v_mul_u32_u24 v%d, 1280, v%d\nv_lshl_add_u32 v%d, v%d, 4, v%d" % (vT[1], vII, vT[1], vSL, vT[1]))
    k("s_cmp_lt_u32 s%d, 40\ns_cselect_b32 s%d, s%d, 0\ns_cselect_b32 s%d, s%d, 0" % (sPQ[0], SP0+2, SP0+2, SP1+2, SP1+2))
    for n in range(2):
        k("s_mul_i32 s%d, s%d, 20480\ns_lshl_b32 s%d, s%d, 7\ns_add_u32 s%d, s%d, s%d" % (sT1, sPQ[n], sT2, sPR[n], sT1, sT1, sT2))
        k("s_add_u32 s%d, s%d, 10240" % (sT2, sT1))
        for part in range(2):
            for hh in range(2):
                k("buffer_load_dwordx4 %s, v%d, %s, s%d offen%s" % (vr(PK+16*n+(part*2+hh)*4, 4), vT[1], sq(SP0 if part == 0 else SP1), sT2 if hh else sT1, PNT))
    k("L_k1_pld:")
    k("v_mov_b32 v13, 0x3f803f80")
    ev(1)
    k("s_waitcnt vmcnt(8)")
    ev(2)
    stamp(k, 7)
    def unpack(dst, src, n):
        for d in range(n): k("v_lshlrev_b32 v%d, 16, v%d\nv_and_b32 v%d, s%d, v%d" % (dst+2*d, src+d, dst+2*d+1, sMASK, src+d))
    def row_sum(regs):
        for n in (8, 4, 2, 1):
            for r in regs: k("v_add_f32_dpp v%d, v%d, v%d%s" % (r, r, r, ror(n)))
    def tree(dst, src, n):
        k("v_add_f32 v%d, v%d, v%d\nv_add_f32 v%d, v%d, v%d" % (dst, src, src+1, dst+1, src+2, src+3))
        for d in range(4, n, 2): k("v_add_f32 v%d, v%d, v%d\nv_add_f32 v%d, v%d, v%d" % (dst, dst, src+d, dst+1, dst+1, src+d+1))
        k("v_add_f32 v%d, v%d, v%d" % (dst, dst, dst+1))
    A, B = T+40, T+42
    def dsum(dst, src, n, sq_):
        for d in range(n):
            k("v_dot2_f32_bf16 v%d, v%d, v%d, %s" % (dst+(d & 1), src+d, src+d if sq_ else 13, "v%d" % (dst+(d & 1)) if d > 1 else "0"))
    dsum(A, XR, 20, False)
    dsum(B, XR, 20, True)
    k("v_add_f32 v%d, v%d, v%d\nv_add_f32 v%d, v%d, v%d" % (A, A, A+1, B, B, B+1))
    row_sum([A, B])
    k("v_mul_f32 v%d, %s, v%d" % (A, f32(1/640.), A))
    k("v_mul_f32 v%d, %s, v%d" % (B, f32(1/640.), B))
    k("v_fma_f32 v%d, -v%d, v%d, v%d\nv_max_f32 v%d, 0, v%d" % (B, A, A, B, B, B))
    bf16r(B, B)
    k("v_add_f32 v%d, %s, v%d" % (B, f32(1e-5), B))
    bf16r(B, B)
    k("v_sqrt_f32 v%d, v%d" % (B, B))
    k("s_mov_b32 s%d, 0" % sT3)
    k("L_k1_gn:")
    k("v_readfirstlane_b32 s%d, v%d" % (sNon, vN))
    k("s_add_u32 s%d, s%d, 1\ns_cmp_lg_u32 s%d, 0\ns_cbranch_scc1 L_k1_gnd" % (sT3, sT3, sNon))
    k("s_cmp_gt_u32 s%d, 0x40000\ns_cbranch_scc1 L_k1_gnd" % sT3)
    k("v_mov_b32 v%d, 0" % vT[1])
    k("global_load_dword v%d, v%d, %s%s\ns_waitcnt vmcnt(0)\ns_branch L_k1_gn" % (vN, vT[1], sp(pDbg), SC))
    k("L_k1_gnd:")
    k("s_max_u32 s%d, s%d, 1" % (sNon, sNon))
    k("v_cvt_pk_bf16_f32 v%d, v%d, v%d\nv_mov_b32 v%d, s%d" % (T+44, A, B, T+45, sNon))
    k("s_lshl_b32 s%d, s%d, 5\ns_add_u32 s%d, s%d, 0x%x" % (sT0, sC, sT0, sT0, RST_OFF))
    k("v_lshlrev_b32 v%d, 3, v%d" % (vT[2], vG))
    k("s_mov_b32 exec_lo, 0x00010001\ns_mov_b32 exec_hi, 0x00010001")
    k("buffer_store_dwordx2 %s, v%d, %s, s%d offen%s" % (vr(T+44, 2), vT[2], sq(SWS), sT0, SC))
    k("s_mov_b64 exec, -1")
    k("s_cmp_eq_u32 s%d, 1\ns_cbranch_scc1 L_k1_D1b" % sMH)
    k("v_and_b32 v%d, 1, v%d\nv_lshlrev_b32 v%d, 4, v%d\nv_mov_b32 v%d, 0x3f80\nv_lshlrev_b32 v%d, v%d, v%d" % (T+8, vM, T+8, T+8, T+9, T+8, T+8, T+9))
    k("v_bfe_u32 v%d, v%d, 1, 2" % (T+9, vM))
    for d in range(4): k("v_cmp_eq_u32 vcc, %d, v%d\nv_cndmask_b32 v%d, 0, v%d, vcc" % (d, T+9, T+d, T+8))
    for a in range(16): k("v_mfma_f32_16x16x32_bf16 %s, %s, %s, %s" % (vr(T+4, 4), vr(T, 4), vr(YR+4*a, 4), vr(T+4, 4) if a else "0"))
    k("s_lshl_b32 s%d, s%d, 9\ns_add_u32 s%d, s%d, 0x%x\ns_cmp_lt_u32 s%d, 240\ns_cselect_b32 s%d, s%d, 0x%x" % (sT0, sG_, sT0, sT0, SG_OFF, sG_, sT0, sT0, WS_NREC))
    k("v_lshlrev_b32 v%d, 5, v%d\nv_lshl_add_u32 v%d, v%d, 6, v%d\nv_add_u32 v%d, s%d, v%d" % (T+8, vG, T+8, vSL, T+8, T+8, sT0, T+8))
    for r in range(4): k("v_mov_b32 v%d, s%d" % (T+13+2*r, sNon))
    for r in range(4): k("v_add_f32_dpp v%d, v%d, v%d%s" % (T+12+2*r, T+4+r, T+4+r, DPP))
    k("s_mov_b32 exec_lo, 0x00ff00ff\ns_mov_b32 exec_hi, 0")
    k("buffer_store_dwordx4 %s, v%d, %s, 0 offen%s" % (vr(T+12, 4), T+8, sq(SWS), SC))
    k("buffer_store_dwordx4 %s, v%d, %s, 0 offen offset:16%s" % (vr(T+16, 4), T+8, sq(SWS), SC))
    k("s_mov_b64 exec, -1")
    k("s_branch L_k1_Dc")
    k("L_k1_D1b:")
    for hh in range(2): dsum(A+2*hh, YR+20*hh, 20, False)
    k("v_add_f32 v%d, v%d, v%d\nv_add_f32 v%d, v%d, v%d" % (A, A, A+1, A+2, A+2, A+3))
    row_sum([A, A+2])
    k("v_mov_b32 v%d, s%d\nv_mov_b32 v%d, s%d" % (A+1, sNon, A+3, sNon))
    k("s_lshl_b32 s%d, s%d, 6\ns_add_u32 s%d, s%d, 0x%x\ns_cmp_lt_u32 s%d, 160\ns_cselect_b32 s%d, s%d, 0x%x" % (sT0, sG_, sT0, sT0, SB_OFF, sG_, sT0, sT0, WS_NREC))
    k("v_add_u32 v%d, s%d, v%d" % (vT[3], sT0, vT[2]))
    k("s_mov_b32 exec_lo, 0x00010001\ns_mov_b32 exec_hi, 0x00010001")
    k("buffer_store_dwordx2 %s, v%d, %s, 0 offen%s" % (vr(A, 2), vT[3], sq(SWS), SC))
    k("buffer_store_dwordx2 %s, v%d, %s, 0 offen offset:32%s" % (vr(A+2, 2), vT[3], sq(SWS), SC))
    k("s_mov_b64 exec, -1")
    k("L_k1_Dc:")
    ev(3)
    PSC = S1
    k("s_waitcnt vmcnt(3)")
    k("s_cmp_eq_u32 s%d, 1\ns_cbranch_scc1 L_k1_pdC" % sTY)
    k("s_cmp_ge_u32 s%d, 48\ns_cbranch_scc1 L_k1_pdd" % sPQ[0])
    k("s_mul_i32 s%d, s%d, %d\ns_add_u32 s%d, s%d, 49152" % (sT2, sMH, SL, sT2, sT2))
    k("v_lshlrev_b32 v%d, 4, v%d\nv_add_u32 v%d, s%d, v%d" % (T+1, vL, T, sT2, T+1))
    k("v_lshrrev_b32 v%d, 2, v%d\nv_lshl_add_u32 v%d, v%d, 2, v%d\nv_lshlrev_b32 v%d, 7, v%d" % (T+2, vM, T+2, vG, T+2, T+2, T+2))
    k("v_and_b32 v%d, 3, v%d\nv_lshl_add_u32 v%d, v%d, 3, v%d\nv_add_u32 v%d, s%d, v%d" % (T+3, vM, T+2, T+3, T+2, T+2, sT2, T+2))
    for n in range(2):
        for a in range(4): k("ds_write_b128 v%d, %s offset:%d" % (T, vr(PK+16*n+4*a, 4), a*1024))
        k("s_waitcnt lgkmcnt(0)")
        for c4 in range(4):
            k("ds_read_b64_tr_b16 %s, v%d offset:%d" % (vr(PK+16*n+c4*4, 2), T+2, c4*32))
            k("ds_read_b64_tr_b16 %s, v%d offset:%d" % (vr(PK+16*n+c4*4+2, 2), T+2, c4*32+2048))
        for c4 in range(4):
            k("s_lshl_b32 s%d, s%d, 2\ns_add_u32 s%d, s%d, %d\ns_mul_i32 s%d, s%d, 52\ns_lshr_b32 s%d, s%d, 8" % (sT0, sPR[n], sT0, sT0, c4, sT1, sT0, sT1, sT1))
            k("s_mul_i32 s%d, s%d, 435\ns_add_u32 s%d, s%d, s%d\ns_mul_i32 s%d, s%d, 5\ns_add_u32 s%d, s%d, s%d" % (sT1, sT1, sT1, sT1, sT0, sT0, sPQ[n], sT1, sT1, sT0))
            k("s_lshl_b32 s%d, s%d, 10\ns_add_u32 s%d, s%d, %d" % (sT1, sT1, sT1, sT1, B2_OFF))
            k("s_waitcnt lgkmcnt(%d)" % (6-2*c4))
            k("buffer_store_dwordx4 %s, v%d, %s, s%d offen%s" % (vr(PK+16*n+c4*4, 4), T+1, sq(SWS), sT1, PSC))
    k("s_branch L_k1_pdd")
    k("L_k1_pdC:")
    k("s_cmp_ge_u32 s%d, 40\ns_cbranch_scc1 L_k1_pdd" % sPQ[0])
    k("v_lshrrev_b32 v%d, 1, v%d\nv_mul_u32_u24 v%d, 5120, v%d" % (T+1, vSL, T+1, T+1))
    k("v_and_b32 v%d, 1, v%d\nv_lshl_add_u32 v%d, v%d, 5, v%d\nv_lshl_add_u32 v%d, v%d, 4, v%d" % (T+2, vSL, T+2, T+2, vII, T+1, T+2, T+1))
    for n in range(2):
        k("s_mul_i32 s%d, s%d, 52\ns_lshr_b32 s%d, s%d, 8\ns_mul_i32 s%d, s%d, 435\ns_add_u32 s%d, s%d, s%d" % (sT1, sPQ[n], sT1, sT1, sT1, sT1, sT1, sT1, sPQ[n]))
        k("s_mul_i32 s%d, s%d, 20\ns_add_u32 s%d, s%d, s%d\ns_add_u32 s%d, s%d, 240\ns_lshl_b32 s%d, s%d, 10\ns_add_u32 s%d, s%d, %d" % (sT0, sPR[n], sT1, sT1, sT0, sT1, sT1, sT1, sT1, sT1, sT1, B2_OFF))
        for r in range(8, 16): k("v_xor_b32 v%d, 0x80008000, v%d" % (PK+16*n+r, PK+16*n+r))
        for part in range(2):
            for hh in range(2):
                k("buffer_store_dwordx4 %s, v%d, %s, s%d offen offset:%d%s" % (vr(PK+16*n+(part*2+hh)*4, 4), T+1, sq(SWS), sT1, part*256+hh*128, PSC))
    k("L_k1_pdd:")
    if opt("pw", 0):
        k("s_mul_i32 s%d, s%d, 22528\nv_lshlrev_b32 v%d, 4, v%d" % (sT0, sC, T+3, vL))
        for j in range(22):
            k("buffer_store_dwordx4 %s, v%d, %s, s%d offen offset:%d sc1" % (vr(XR, 4), T+3, sq(SWS), sT0, (j & 3)*1024))
            if j & 3 == 3: k("s_add_u32 s%d, s%d, 4096" % (sT0, sT0))
    ev(4)
    k("s_lshl_b32 s%d, s%d, 2\ns_add_u32 s%d, s%d, 0x%x\nv_mov_b32 v%d, s%d\nv_mov_b32 v%d, s%d" % (sT0, sC, sT0, sT0, PF_OFF, T, sT0, T+1, sNon))
    k("s_waitcnt vmcnt(0)\ns_mov_b64 exec, 1")
    k("buffer_store_dword v%d, v%d, %s, 0 offen%s\ns_mov_b64 exec, -1" % (T+1, T, sq(SWS), SC))
    stamp(k, 2)
    ev(5)
    TB = 48
    k("s_cmp_eq_u32 s%d, 0\ns_cbranch_scc1 L_k1_ntb" % sTY)
    param_ab(PP, 80, 85, vT[1])
    k("v_cvt_f32_u32 v%d, v%d\nv_mul_f32 v%d, %s, v%d\nv_mul_f32 v%d, %s, v%d" % (vT[1], vG, vT[2], f32(64.0), vT[1], vT[1], f32(16.0), vT[1]))
    cpow5(r5(TB), r5(TB+5), f32(256.0), 90, 95, 80, 85)
    cpow5(r5(TB+12), r5(TB+17), "v%d" % vT[2], 90, 95, 80, 85)
    cpow5(r5(TB+22), r5(TB+27), "v%d" % vT[1], 90, 95, 80, 85)
    k("L_k1_ntb:")
    EI = 16
    aSt, aS0, aS1 = 40, 41, 42
    k("s_lshl_b32 s%d, s%d, 1\ns_add_u32 s%d, s%d, s%d\ns_lshl_b32 s%d, s%d, 9\ns_add_u32 s%d, s%d, 0x%x" % (sT0, sI, sT0, sT0, sMH, sT0, sT0, sT0, sT0, RST_OFF))
    k("v_lshrrev_b32 v%d, 2, v%d\nv_lshlrev_b32 v%d, 4, v%d\nv_lshl_add_u32 v%d, v%d, 2, v%d" % (aSt, vM, aSt, aSt, aSt, vG, aSt))
    k("v_and_b32 v%d, 3, v%d\nv_add_u32 v%d, v%d, v%d\nv_lshl_add_u32 v%d, v%d, 3, s%d" % (aS0, vM, aSt, aSt, aS0, aSt, aSt, sT0))
    k("s_cmp_eq_u32 s%d, 1\ns_cbranch_scc1 L_k1_eaB" % sTY)
    k("s_lshl_b32 s%d, s%d, 6\ns_add_u32 s%d, s%d, s%d\ns_lshl_b32 s%d, s%d, 3\ns_add_u32 s%d, s%d, 0x%x" % (sT0, sMH, sT0, sT0, sCol, sT0, sT0, sT0, sT0, SG_OFF))
    k("v_lshl_add_u32 v%d, v%d, 3, s%d\nv_add_u32 v%d, %d, v%d" % (aS0, vL, sT0, aS1, 1536*8, aS0))
    k("s_mov_b32 s%d, %d" % (sKw, 3072*8))
    k("s_branch L_k1_ead")
    k("L_k1_eaB:")
    k("s_lshl_b32 s%d, s%d, 5\ns_add_u32 s%d, s%d, s%d\ns_lshl_b32 s%d, s%d, 3\ns_add_u32 s%d, s%d, 0x%x" % (sT0, sMH, sT0, sT0, sCol, sT0, sT0, sT0, sT0, SG_OFF))
    k("v_lshrrev_b32 v%d, 5, v%d\nv_mul_u32_u24 v%d, 1504, v%d\nv_add_u32 v%d, v%d, v%d\nv_lshl_add_u32 v%d, v%d, 3, s%d" % (aS0, vL, aS0, aS0, aS0, aS0, vL, aS0, aS0, sT0))
    k("s_mul_i32 s%d, s%d, 80\ns_mul_i32 s%d, s%d, 40\ns_add_u32 s%d, s%d, s%d\ns_lshl_b32 s%d, s%d, 3\ns_add_u32 s%d, s%d, 0x%x" % (sT0, sJJ, sT1, sMH, sT0, sT0, sT1, sT0, sT0, sT0, sT0, SB_OFF))
    k("v_lshrrev_b32 v%d, 3, v%d\nv_mul_u32_u24 v%d, 640, v%d\nv_add_u32 v%d, v%d, v%d\nv_lshl_add_u32 v%d, v%d, 3, s%d" % (aS1, vM, aS1, aS1, aS1, aS1, vSL, aS1, aS1, sT0))
    k("s_mov_b32 s%d, 64" % sKw)
    k("L_k1_ead:")
    ev(6)
    wait_word("L_k1_pg", 36, "%d" % opt("pfgate", 9), T, T+1)
    k("s_mov_b32 s%d, 0" % sT3)
    k("s_lshl_b32 s%d, s%d, 10\ns_add_u32 s%d, s%d, 0x%x\nv_lshlrev_b32 v43, 4, v%d" % (sKx, sMH, sKx, sKx, PF_OFF, vL))
    k("L_k1_pfl:")
    k("buffer_load_dwordx4 v[44:47], v43, %s, s%d offen%s\ns_waitcnt vmcnt(0)" % (sq(SWS), sKx, SC))
    k("v_xor_b32 v%d, s%d, v44" % (T, sNon))
    for r_ in (45, 46, 47): k("v_xor_b32 v%d, s%d, v%d\nv_or_b32 v%d, v%d, v%d" % (T+1, sNon, r_, T, T, T+1))
    k("v_cmp_ne_u32 vcc, 0, v%d" % T)
    k("s_add_u32 s%d, s%d, 1" % (sT3, sT3))
    k("s_cbranch_vccz L_k1_pfd")
    k("s_sleep 16\ns_cmp_lt_u32 s%d, 0x40000\ns_cbranch_scc1 L_k1_pfl" % sT3)
    k("L_k1_pfd:")
    ev(7)
    k("s_lshl_b32 s%d, s%d, 2\ns_add_u32 s%d, s%d, %d\nv_mov_b32 v%d, s%d\nv_mov_b32 v%d, s%d" % (sT0, sMH, sT0, sT0, FLG+24, T+6, sT0, T+7, sNon))
    k("ds_write_b32 v%d, v%d offset:16" % (T+6, T+7))
    k("v_mov_b32 v%d, %d" % (T+2, FLG+40))
    k("L_k1_pf2:")
    k("ds_read_b64 %s, v%d\ns_waitcnt lgkmcnt(0)\nv_min_u32 v%d, v%d, v%d\nv_readfirstlane_b32 s%d, v%d" % (vr(T, 2), T+2, T, T, T+1, sT0, T))
    k("s_cmp_lg_u32 s%d, 0\ns_cbranch_scc1 L_k1_pf2o\ns_sleep 1\ns_branch L_k1_pf2\nL_k1_pf2o:" % sT0)
    wait_word("L_k1_eg", 36, "%d" % opt("eigate", 9), T, T+1)
    k("buffer_load_dwordx2 %s, v%d, %s, 0 offen%s" % (vr(EI, 2), aSt, sq(SWS), SC))
    for p in range(5):
        k("s_mov_b32 s%d, %d\ns_mul_i32 s%d, s%d, %d" % (sT0, p*3072*8, sT1, sKw, p))
        k("buffer_load_dwordx2 %s, v%d, %s, s%d offen%s" % (vr(EI+2+2*p, 2), aS0, sq(SWS), sT0, SC))
        k("buffer_load_dwordx2 %s, v%d, %s, s%d offen%s" % (vr(EI+12+2*p, 2), aS1, sq(SWS), sT1, SC))
    k("s_cmp_eq_u32 s%d, 0\ns_cbranch_scc1 L_k1_ntw" % sTY)
    k("v_mov_b32 v%d, %d" % (T+2, FLG))
    wait_done("L_k1_tbw", "16", T+2, T+8)
    k("s_mul_i32 s%d, s%d, %d\ns_add_u32 s%d, s%d, %d\nv_add_u32 v43, s%d, v43" % (sT0, sMH, 2*80*TRP, sT0, sT0, TRB, sT0))
    for w2 in range(2):
        for qd in range(8): k("ds_write_b128 v43, %s offset:%d" % (vr(TB+4*qd, 4), w2*80*TRP+qd*1024))
    k("L_k1_ntw:")
    k("s_waitcnt vmcnt(0)")
    k("L_k1_eid:")
    ev(8)
    k("v_lshlrev_b32 v%d, 16, v%d\nv_and_b32 v%d, s%d, v%d\nv_rcp_f32 v%d, v%d" % (T, EI, T+1, sMASK, EI, T+2, T+1))
    k("s_mul_i32 s%d, s%d, 768\ns_add_u32 s%d, s%d, %d" % (sT0, sMH, sT0, sT0, STAT_M))
    k("v_lshl_add_u32 v%d, v%d, 2, s%d" % (T+3, vL, sT0))
    k("ds_write_b32 v%d, v%d\nds_write_b32 v%d, v%d offset:256\nds_write_b32 v%d, v%d offset:512" % (T+3, T, T+3, T+2, T+3, T+1))
    def sum5(b): k("v_add_f32 v%d, v%d, v%d\nv_add_f32 v%d, v%d, v%d\nv_add_f32 v%d, v%d, v%d\nv_add_f32 v%d, v%d, v%d" % (b, b, b+2, b+4, b+4, b+6, b, b, b+8, b, b, b+4))
    sum5(EI+2)
    k("s_lshl_b32 s%d, s%d, 9\ns_add_u32 s%d, s%d, %d" % (sT0, sMH, sT0, sT0, SFF))
    k("v_lshl_add_u32 v%d, v%d, 2, s%d" % (T+4, vL, sT0))
    k("ds_write_b32 v%d, v%d" % (T+4, EI+2))
    k("s_cmp_eq_u32 s%d, 1\ns_cbranch_scc1 L_k1_ewB" % sTY)
    sum5(EI+12)
    k("ds_write_b32 v%d, v%d offset:256" % (T+4, EI+12))
    k("s_branch L_k1_ewd")
    k("L_k1_ewB:")
    k("s_mul_i32 s%d, s%d, 384\ns_add_u32 s%d, s%d, %d" % (sT0, sMH, sT0, sT0, SSS))
    k("v_lshl_add_u32 v%d, v%d, 2, s%d" % (T+5, vM, sT0))
    for p in range(5): k("ds_write_b32 v%d, v%d offset:%d" % (T+5, EI+12+2*p, p*64))
    k("L_k1_ewd:")
    k("ds_write_b32 v%d, v%d" % (T+6, T+7))
    k("v_mov_b32 v72, %d\nv_mov_b32 v73, 0" % (FLG+48))
    k("L_k1_P2:")
    stamp(k, 1)
    if TRACE:
        k("s_lshl_b32 s83, s2, 11\ns_add_u32 s83, s83, 0x%x\nv_lshl_add_u32 v12, v0, 2, s83" % (STAMP_OFF + 0x40000))
        k("global_store_dword v12, v255, %s" % sp(pWs))
    LD2 = ["", " sc1", " nt", " sc0 sc1", " sc1 nt"][opt("ld2", 1)]
    sP, sMI, sNI = 4, 5, 6
    sAb, sBb = [72, 73, 74], [75, 76, 77]
    sR, sSh = 78, 79
    SO = SX
    AR, BR, AC = 12, 76, 176
    vA = [2, 3, 4, 5]; vB0, vB1, vOut, vLd, vFl, vFa = 6, 7, 8, 9, 10, 11
    k("s_sub_u32 s%d, s%d, 4" % (sP, sW))
    k("s_and_b32 s%d, s2, 7\ns_lshr_b32 s%d, s2, 3" % (sT0, sT1))
    k("s_lshr_b32 s%d, s%d, 1\ns_lshl_b32 s%d, s%d, 3\ns_and_b32 s%d, s%d, 7\ns_add_u32 s%d, s%d, s%d" % (sMI, sT0, sMI, sMI, sT2, sT1, sMI, sMI, sT2))
    k("s_and_b32 s%d, s%d, 1\ns_lshl_b32 s%d, s%d, 2\ns_lshr_b32 s%d, s%d, 3\ns_add_u32 s%d, s%d, s%d" % (sNI, sT0, sNI, sNI, sT2, sT1, sNI, sNI, sT2))
    X_, D_, ST_, PFr, tA, tB, tC = AR, AR+10, AR+20, AR+24, AR+32, AR+33, AR+34
    k("v_lshrrev_b32 v%d, 2, v%d\nv_lshlrev_b32 v%d, 4, v%d\nv_and_b32 v%d, 3, v%d" % (tA, vM, tA, tA, tB, vM))
    k("s_lshl_b32 s%d, s%d, 6\ns_lshl_b32 s%d, s%d, 2\ns_add_u32 s%d, s%d, s%d" % (sT0, sMI, sT1, sP, sT0, sT0, sT1))
    k("v_add3_u32 v%d, v%d, v%d, s%d" % (tA, tA, tB, sT0))
    k("s_mul_i32 s%d, s%d, 80" % (sT1, sNI))
    k("v_lshl_add_u32 v%d, v%d, 2, s%d" % (tB, vG, sT1))
    k("v_mul_u32_u24 v%d, 640, v%d\nv_add_u32 v%d, v%d, v%d" % (vOut, tA, vOut, vOut, tB))
    k("v_lshlrev_b32 v%d, 2, v%d" % (vOut, vOut))
    k("v_lshlrev_b32 v%d, 4, v%d\nv_add_u32 v%d, 4096, v%d" % (vB0, vL, vB1, vB0))
    for f in range(4): k("s_xor_b32 s%d, s%d, %d\ns_lshl_b32 s%d, s%d, 10\nv_add_u32 v%d, s%d, v%d" % (sT0, sP, f, sT0, sT0, vA[f], sT0, vB0))
    k("s_mul_i32 s%d, s%d, %d\ns_mul_i32 s%d, s%d, %d\ns_add_u32 s%d, s%d, 0x%x" % (sBb[0], sMI, 88*4096, sBb[1], sNI, 88*5120, sBb[1], sBb[1], B2_OFF))
    for g, (mul, add) in enumerate(((8, 0), (4, 32), (10, 48))):
        k("s_mul_i32 s%d, s%d, %d\ns_add_u32 s%d, s%d, %d" % (sAb[g], sP, mul, sAb[g], sAb[g], add))
    def region(dst, src):
        k("s_and_b32 s%d, s%d, 1\ns_mul_i32 s%d, s%d, 25600\ns_cmp_lt_u32 s%d, 2\ns_cselect_b32 s%d, %d, 0\ns_add_u32 s%d, s%d, s%d" % (dst, src, dst, dst, src, sT0, 2*SL, dst, dst, sT0))
    region(sR, sP)
    k("v_add_u32 v%d, s%d, v%d" % (vLd, sR, vB0))
    k("s_lshl_b32 s%d, s%d, 2\ns_add_u32 s%d, s%d, s%d\ns_mul_i32 s%d, s%d, %d\ns_add_u32 s%d, s%d, 0x%x" % (sSh, sMI, sSh, sSh, sP, sSh, sSh, 4*FGS, sSh, sSh, FL_OFF))
    k("v_and_b32 v%d, 3, v%d\nv_mul_u32_u24 v%d, %d, v%d\nv_mov_b32 v%d, %d" % (vFa, vL, vFa, FSP, vFa, PFr+2, FLG+32))
    k("s_waitcnt vmcnt(0)\nds_write_b32 v72, v73")
    steps = [(0, i) for i in (0, 2, 4, 6, 1, 3, 5, 7)] + [(1, i) for i in range(4)] + [(2, i) for i in range(10)]
    fgrp = {0: 0, 4: 3, 8: 1, 12: 2}
    NS = len(steps)
    sK = list(range(16, 32)) + list(range(34, 40))
    ROT = opt("rot", 0)
    k("s_lshr_b32 s%d, s2, 3\ns_and_b32 s%d, s%d, 7\ns_lshr_b32 s%d, s%d, 3" % (sT1, sT0, sT1, sT1, sT1))
    if ROT:
        k("s_add_u32 s%d, s%d, s%d\ns_and_b32 s%d, s%d, 3" % (sT2, sT0, sT1, sT2, sT2))
        k("s_mul_i32 s%d, s%d, 3\ns_add_u32 s%d, s%d, s%d\ns_cmp_ge_u32 s%d, 10\ns_cselect_b32 s%d, 10, 0\ns_sub_u32 s%d, s%d, s%d" % (sT3, sT1, sT3, sT3, sT0, sT3, sT0, sT3, sT3, sT0))
    else:
        k("s_mov_b32 s%d, 0\ns_mov_b32 s%d, 0" % (sT2, sT3))
    for j in range(4):
        k("s_add_u32 s%d, s%d, %d\ns_and_b32 s%d, s%d, 3\ns_add_u32 s%d, s%d, s%d\ns_lshl_b32 s%d, s%d, 1\ns_add_u32 s%d, s%d, s%d\ns_add_u32 s%d, s%d, 1" %
          (sT0, sT2, j, sT0, sT0, sK[8+j], sT0, sAb[1], sT0, sT0, sK[j], sT0, sAb[0], sK[4+j], sK[j]))
    for j in range(10):
        k("s_add_u32 s%d, s%d, %d\ns_cmp_ge_u32 s%d, 10\ns_cselect_b32 s%d, 10, 0\ns_sub_u32 s%d, s%d, s%d\ns_add_u32 s%d, s%d, s%d" % (sT0, sT3, j, sT0, sT1, sT0, sT0, sT1, sK[12+j], sT0, sAb[2]))
    LS = [[7, 10, 13, 16, 19], [17, 18, 19, 20, 21], [9, 12, 15, 18, 21], [13, 15, 17, 19, 21], [], [20, 21]][opt("lsl", 5)]
    NA, NB = 4, 5
    vm = []
    THR = opt("thr", 0)
    def ldB(s, buf):
        g, i = steps[s]
        o = (["s_waitcnt vmcnt(%d)" % THR] if THR else []) + ["s_mul_i32 s%d, s%d, 5120\ns_add_u32 s%d, s%d, s%d" % (sT1, sK[s], sT1, sT1, sBb[1])]
        for f in range(5):
            o.append("buffer_load_dwordx4 %s, v%d, %s, s%d offen offset:%d%s" % (vr(BR+buf*20+f*4, 4), vB1 if f == 4 else vB0, sq(SWS), sT1, (f & 3)*1024, LD2))
            vm.append(("B", s))
        return o
    def ldA(s):
        g, i = steps[s]
        o = (["s_waitcnt vmcnt(%d)" % THR] if THR else []) + ["s_lshl_b32 s%d, s%d, 12\ns_add_u32 s%d, s%d, s%d" % (sT0, sK[s], sT0, sT0, sBb[0])]
        for f in range(4):
            o.append("buffer_load_dwordx4 %s, v%d, %s, s%d offen%s" % (vr(AR+(s % NA)*16+f*4, 4), vA[f], sq(SWS), sT0, LD2))
            vm.append(("A", s))
        return o
    def vwait(tags):
        idx = max(i for i, x in enumerate(vm) if x in tags)
        return min(63, len(vm)-1-idx)
    bbuf = {}
    k("L_k1_p2e:")
    k("ds_read_b128 %s, v%d\ns_waitcnt lgkmcnt(0)\nv_min_u32 v%d, v%d, v%d\nv_readfirstlane_b32 s%d, v%d\nv_readfirstlane_b32 s%d, v%d" % (vr(PFr+4, 4), PFr+2, PFr+6, PFr+6, PFr+7, sNon, PFr+6, sT0, PFr+5))
    k("s_cmp_lt_u32 s%d, %d\ns_cselect_b32 s%d, 0, s%d\ns_cmp_lg_u32 s%d, 0\ns_cbranch_scc1 L_k1_p2eo\ns_sleep 1\ns_branch L_k1_p2e\nL_k1_p2eo:" % (sT0, opt("bgate", 10), sT0, sNon, sT0))
    streamed = [s for s in range(NS) if s not in LS]
    NPRE = opt("npre", NB)
    for j in range(NB):
        bbuf[streamed[j]] = j
        if j < NPRE:
            for x in ldB(streamed[j], j): k(x)
    nextB = NB
    srd(k, SO, pOut, 2048*640*4)
    k("v_mov_b32 v%d, %d" % (AR+40, FLG))
    k("s_and_b32 s%d, s%d, 2\ns_add_u32 s%d, s%d, 18" % (sT1, sP, sT1, sT1))
    stamp(k, 2)
    wait_done("L_k1_p2w", "s%d" % sT1, AR+40, AR+44)
    for j, s_ in enumerate(LS):
        g, i = steps[s_]
        if THR: k("s_waitcnt vmcnt(%d)" % THR)
        k("s_add_u32 m0, s%d, %d\ns_mul_i32 s%d, s%d, 5120\ns_add_u32 s%d, s%d, s%d" % (sR, j*5120, sT1, sK[s_], sT1, sT1, sBb[1]))
        for f in range(4):
            k("buffer_load_dwordx4 v%d, %s, s%d offen offset:%d%s lds" % (vB0, sq(SWS), sT1, f*1024, LD2)); vm.append(("L", s_))
        k("s_add_u32 m0, s%d, %d" % (sR, j*5120+4096))
        k("buffer_load_dwordx4 v%d, %s, s%d offen%s lds" % (vB1, sq(SWS), sT1, LD2)); vm.append(("L", s_))
    if opt("tb", 0):
        assert not ROT
        rest = streamed[NB:]
        tv, tj = AR+40, AR+41
        k("v_mul_u32_u24 v%d, 52, v%d\nv_lshrrev_b32 v%d, 8, v%d" % (tj, vL, tj, tj))
        k("v_mov_b32 v%d, s%d" % (tv, sK[rest[0]]))
        for j in range(1, len(rest)):
            k("v_cmp_le_u32 vcc, %d, v%d\nv_mov_b32 v%d, s%d\nv_cndmask_b32 v%d, v%d, v%d, vcc" % (j, tj, AR+42, sK[rest[j]], tv, tv, AR+42))
        k("v_mul_u32_u24 v%d, 5, v%d\nv_sub_u32 v%d, v%d, v%d" % (tj, tj, tj, vL, tj))
        k("s_lshr_b32 s%d, s2, 3\ns_and_b32 s%d, s%d, 7\ns_mul_i32 s%d, s%d, 640\ns_add_u32 s%d, s%d, s%d" % (sT0, sT0, sT0, sT0, sT0, sT0, sT0, sBb[1]))
        k("v_mul_u32_u24 v%d, 5120, v%d\nv_lshl_add_u32 v%d, v%d, 7, v%d" % (tv, tv, tv, tj, tv))
        k("buffer_load_dword v%d, v%d, %s, s%d offen%s" % (vFl, tv, sq(SWS), sT0, LD2)); vm.append(("T", 0))
    stamp(k, 3)
    def flag_load(g):
        vm.append(("F", 0))
        return "buffer_load_dword v%d, v%d, %s, s%d offen offset:%d%s" % (vFl, vFa, sq(SWS), sSh, g*FGS, PSC_)
    def flag_check(g):
        lab = "L_k1_fc%d" % g
        k("s_waitcnt vmcnt(%d)" % vwait([("F", 0)]))
        k("s_mov_b32 s%d, 0\ns_branch %s_c" % (sT3, lab))
        k("%s_r:" % lab)
        k("s_sleep %d\nbuffer_load_dword v%d, v%d, %s, s%d offen offset:%d%s\ns_waitcnt vmcnt(0)" % (opt("psl", 16), vFl, vFa, sq(SWS), sSh, g*FGS, PSC_))
        k("%s_c:" % lab)
        k("v_cmp_ne_u32 vcc, s%d, v%d" % (sNon, vFl))
        k("s_add_u32 s%d, s%d, 1" % (sT3, sT3))
        k("s_cbranch_vccz %s_d" % lab)
        k("s_cmp_lt_u32 s%d, 0x40000\ns_cbranch_scc1 %s_r" % (sT3, lab))
        k("%s_d:" % lab)
    if opt("pd", 0): k("s_waitcnt vmcnt(0)\ns_sleep %d" % opt("pd", 0))
    k(flag_load(0))
    flag_check(0)
    stamp(k, 4)
    for s_ in range(NB):
        if s_ < NA:
            for x in ldA(s_): k(x)
        if s_ >= NPRE:
            for x in ldB(streamed[s_], s_): k(x)
    LEAD = {4: opt("ld3", 3), 8: opt("ld1", 2), 12: opt("ld2_", 1)}
    chkpos = {g: g - 1 - LEAD[g] for g in LEAD}
    nextA = NA
    if chkpos[4] <= 0: k(flag_load(3))
    pend = []
    for s_ in range(NS):
        fill = pend; pend = []
        need = [("A", s_)] + ([("B", s_)] if s_ not in LS else [])
        mf_ = []
        for f in range(4):
            for cb in range(5):
                c = AC + (f*5+cb)*4
                mf_.append("v_mfma_f32_16x16x32_bf16 %s, %s, %s, %s" % (vr(c, 4), vr(BR+bbuf[s_]*20+cb*4, 4), vr(AR+(s_ % NA)*16+f*4, 4), vr(c, 4) if s_ else "0"))
        if opt("ilv", 0):
            nf = sum(1 for x in fill if x.startswith("buffer_load"))
            k("s_waitcnt vmcnt(%d)%s" % (max(0, vwait(need)-nf), " lgkmcnt(0)" if s_ in LS else ""))
            interleave(k, mf_, fill, per=1)
        else:
            for x in fill: k(x)
            k("s_waitcnt vmcnt(%d)%s" % (vwait(need), " lgkmcnt(0)" if s_ in LS else ""))
            if opt("p2t", 0): k("s_memrealtime s[100:101]")
            for x in mf_: k(x)
            if opt("p2t", 0): k("s_waitcnt lgkmcnt(0)\nv_writelane_b32 v1, s100, %d" % s_)
        for g_ in chkpos:
            if chkpos[g_] == s_:
                if fgrp[g_] == 2: stamp(k, 0)
                flag_check(fgrp[g_])
                if fgrp[g_] == 2: stamp(k, 7)
        while nextA < NS and nextA <= s_ + NA and all(not (g_ <= nextA and chkpos[g_] > s_) for g_ in chkpos):
            pend += ldA(nextA); nextA += 1
        fb = bbuf[s_]
        if s_+2 in LS:
            bbuf[s_+2] = fb
            j = LS.index(s_+2)
            pend.append("s_waitcnt vmcnt(%d)" % vwait([("L", s_+2)]))
            for f in range(5): pend.append("ds_read_b128 %s, v%d offset:%d" % (vr(BR+fb*20+f*4, 4), vLd, j*5120+f*1024))
        elif nextB < len(streamed):
            bbuf[streamed[nextB]] = fb
            pend += ldB(streamed[nextB], fb); nextB += 1
        for g_ in chkpos:
            if chkpos[g_] == s_+1: pend.insert(0, None); fl_ = fgrp[g_]
        if pend and pend[0] is None:
            nl = sum(1 for x in pend[1:] if x.startswith("buffer_load"))
            txt = flag_load(fl_); vm.pop(); vm.insert(len(vm)-nl, ("F", 0)); pend[0] = txt
    stamp(k, 5)
    for f in range(1, 4):
        for cb in range(5): k("ds_write_b128 v%d, %s offset:%d" % (vLd, vr(AC+(f*5+cb)*4, 4), (f-1)*5120+cb*1024))
    for f in range(1, 4):
        k("s_xor_b32 s%d, s%d, %d" % (sT2, sP, f))
        region(sT1, sT2)
        k("v_add_u32 v%d, s%d, v%d" % (vA[f], sT1, vB0))
    k("s_mul_i32 s%d, s%d, %d\ns_add_u32 s%d, s%d, %d\nv_add_u32 v%d, s%d, v%d" % (sT1, sP, 80*TRP, sT1, sT1, TRB, vA[0], sT1, vB0))
    k("s_waitcnt lgkmcnt(0)\ns_barrier")
    for cb in range(5):
        for f in range(4): k("ds_read_b128 %s, v%d offset:%d" % (vr(AR+(cb*4+f)*4, 4), vA[f], max(f-1, 0)*5120+cb*1024))
        if cb == 2: k("s_waitcnt lgkmcnt(7)")
    for cb in range(5):
        k("s_waitcnt lgkmcnt(%d)" % min(15, 16-4*cb))
        q = AR+cb*16; c = AC+cb*4
        for h in range(0, 4, 2):
            k("v_pk_add_f32 %s, %s, %s\nv_pk_add_f32 %s, %s, %s" % (vr(q+h, 2), vr(q+h, 2), vr(q+4+h, 2), vr(q+8+h, 2), vr(q+8+h, 2), vr(q+12+h, 2)))
        for h in range(0, 4, 2): k("v_pk_add_f32 %s, %s, %s" % (vr(c+h, 2), vr(c+h, 2), vr(q+h, 2)))
        for h in range(0, 4, 2): k("v_pk_add_f32 %s, %s, %s" % (vr(c+h, 2), vr(c+h, 2), vr(q+8+h, 2)))
        k("buffer_store_dwordx4 %s, v%d, %s, 0 offen offset:%d%s" % (vr(c, 4), vOut, sq(SO), cb*64, ["", " sc1", " nt", " sc0 sc1"][opt("osc", 0)]))
    stamp(k, 6)
    if opt("p2t", 0):
        k("s_lshl_b32 s83, s2, 11\ns_add_u32 s83, s83, 0x%x\nv_lshl_add_u32 v12, v0, 2, s83" % (STAMP_OFF + 0x40000))
        k("global_store_dword v12, v1, %s" % sp(pWs))
    stamp_out(k, 0, 8, pWs, 76)
    k("s_endpgm")

    k("L_k1_C:")
    k("s_setprio 3")
    aX = [12, 13]; aW = [14, 15, 16, 17]
    XS = [20, 36]
    WR = 52
    ACC = 84
    k("v_lshrrev_b32 v%d, 1, v%d\nv_xor_b32 v%d, v%d, v%d\nv_lshlrev_b32 v%d, 4, v%d" % (vT[0], vM, vT[0], vT[0], vG, vT[0], vT[0]))
    k("v_lshl_add_u32 v%d, v%d, 7, v%d" % (vT[5], vM, vT[0]))
    k("s_lshl_b32 s%d, s%d, 13" % (sT0, sMH))
    k("v_add_u32 v%d, s%d, v%d\nv_xor_b32 v%d, 64, v%d" % (aX[0], sT0, vT[5], aX[1], aX[0]))
    k("v_lshrrev_b32 v%d, 2, v%d\nv_lshl_add_u32 v%d, v%d, 3, v%d\nv_lshlrev_b32 v%d, 7, v%d" % (vT[0], vM, vT[0], vG, vT[0], vT[0], vT[0]))
    k("v_and_b32 v%d, 1, v%d\nv_lshlrev_b32 v%d, 1, v%d\nv_lshrrev_b32 v%d, 3, v%d\nv_or_b32 v%d, v%d, v%d" % (vT[1], vG, vT[1], vT[1], vT[2], vM, vT[1], vT[1], vT[2]))
    k("v_lshl_add_u32 v%d, v%d, 5, v%d" % (vT[0], vT[1], vT[0]))
    k("v_and_b32 v%d, 3, v%d\nv_lshl_add_u32 v%d, v%d, 3, v%d\nv_add_u32 v%d, 16384, v%d" % (vT[1], vM, vT[0], vT[1], vT[0], vT[0], vT[0]))
    k("s_lshl_b32 s%d, s%d, 1\ns_add_u32 s%d, s%d, s%d" % (sC, sI, sC, sC, sMH))
    k("s_mov_b32 s%d, 0\ns_mov_b32 s%d, 0" % (sIt, sRd))
    k("s_cmp_eq_u32 s%d, 1\ns_cbranch_scc1 L_k1_CB" % sTY)

    def c_loop(tag, frags, R, D, WR, addr_regs, post):
        n = len(frags); N = 2*n
        assert N % R == 0
        def wreg(p): return WR + (p % R)*4
        def rdW(p): return frags[p % n][0]((p % N)//n, wreg(p))
        def rdX(h): return ["ds_read_b128 %s, v%d offset:%d" % (vr(XS[h]+4*b, 4), aX[h], b*2048) for b in range(4)]
        def mf(p): return [frags[p % n][1](b, XS[(p % N)//n]+4*b, wreg(p)) for b in range(4)]
        adv = ["s_mov_b32 s%d, %d\ns_add_u32 s%d, s%d, 1\ns_cmp_eq_u32 s%d, 3\ns_cselect_b32 s%d, 0, s%d\ns_cselect_b32 s%d, %d, s%d" % (sDelta, SL, sRd, sRd, sRd, sRd, sRd, sDelta, (-2*SL) & 0xffffffff, sDelta)]
        adv += ["v_add_u32 v%d, s%d, v%d" % (r, sDelta, r) for r in addr_regs]
        vFl, vFa, vDa, vDv = 18, vT[1], vT[2], vT[3]
        sF = sA
        import re as _re
        FLS = N - opt("fl", 3)
        def build():
            mfs = []; gaps = [[] for _ in range(4*N)]
            for j in range(N):
                loads = [("ld", x, ("W", j)) for x in rdW(j)]
                if j == 0: loads = [("ld", x, ("X0", b)) for b, x in enumerate(rdX(0)[:2])] + loads
                if j == 1: loads = [("ld", x, ("X0", b+2)) for b, x in enumerate(rdX(0)[2:])] + loads
                if D <= j < D+4: loads += [("ld", rdX(1)[j-D], ("X1", j-D))]
                if j == FLS: loads += [("ld", "ds_read_b64 %s, v%d " % (vr(vFl, 2), vFa), ("F", 0))]
                if j == N-1 or j == max(n-1, D+3): loads += [("ld", "ds_write_b32 v%d, v%d" % (vDa, vDv), ("DW", j))]
                p = j - D
                ms = mf(p % N)
                for b in range(4):
                    need = [("W", p % N)] + [("X%d" % ((p % N)//n), bb) for bb in range(4)]
                    mfs.append(("mf", ms[b], (need, p < 0)))
                    if b < 3:
                        if loads: gaps[j*4+b].append(loads.pop(0))
                    else: gaps[j*4+b] += loads
            def place(e, lo, hi=4*N-1):
                for cap in (0, 1, 2, 3):
                    for g in range(lo, hi+1):
                        if len(gaps[g]) + (1 if g % 4 == 3 else 0) <= cap:
                            gaps[g].append(e); return g
                raise Exception
            g = 4*D
            def place_s(txt, lo):
                for g in range(lo, 4*N):
                    if len(gaps[g]) + (1 if g % 4 == 3 else 0) <= 1:
                        gaps[g].append(("x", txt, None)); return g
            for txt in ("s_add_u32 s%d, s%d, 1" % (sRd, sRd), "s_cmp_eq_u32 s%d, 3" % sRd, "s_cselect_b32 s%d, s14, s15" % sDelta, "s_cselect_b32 s%d, 0, s%d" % (sRd, sRd), "s_add_u32 s%d, s%d, 1" % (sIt, sIt)):
                g = place_s(txt, g) + 1
            gd = g
            mid = max(n-1, D+3)
            place_s("v_add_u32 v%d, 1, v%d" % (vDv, vDv), gd)
            place(("x", "v_add_u32 v%d, 1, v%d" % (vDv, vDv), None), 4*mid+4, 4*(N-1)-1)
            g1 = place(("use", "v_min_u32 v%d, v%d, v%d" % (vFl, vFl, vFl+1), ([("F", 0)], False)), 4*(N-2)+2, 4*N-4)
            gaps[g1+1].append(("x", "v_readfirstlane_b32 s%d, v%d" % (sF, vFl), None))
            gaps[4*N-2].append(("x", "s_cmp_gt_u32 s%d, s%d" % (sF, sIt), None))
            for r in addr_regs:
                last = max(g for g in range(4*N) for x in gaps[g] if x[0] == "ld" and _re.search(r", v%d " % r, x[1]+" "))
                place(("x", "v_add_u32 v%d, s%d, v%d" % (r, sDelta, r), None), min(max(last+1, gd), 4*N-1))
            seq = []
            for m_, gp in zip(mfs, gaps): seq += [m_] + gp
            return seq
        def emit(seq, prev):
            issued = [(t, True) for t in prev]
            cur = 99
            for kind, text, tg in seq:
                if kind == "ld": issued.append((tg, False)); cur += 1
                elif kind == "lab": cur = 99
                elif kind in ("mf", "use"):
                    w = 15
                    for t in tg[0]:
                        idx = max(i for i, x in enumerate(issued) if x == (t, tg[1]))
                        w = min(w, len(issued)-1-idx)
                    if w < cur:
                        k("s_waitcnt lgkmcnt(%d)" % w); cur = w
                k(text)
        L = "L_k1_cl" + tag
        k("v_mov_b32 v%d, %d\nv_mov_b32 v%d, 0\ns_mov_b32 s14, %d\ns_mov_b32 s15, %d" % (vFa, FLG+16, vDv, (-2*SL) & 0xffffffff, SL))
        k("s_lshl_b32 s%d, s%d, 2\ns_add_u32 s%d, s%d, %d\nv_mov_b32 v%d, s%d" % (sT0, sW, sT0, sT0, FLG, vDa, sT0))
        s2 = build()
        allld = [x[2] for x in s2 if x[0] == "ld"]
        idx2 = next(i for i, x in enumerate(s2) if x[0] == "mf" and not x[2][1])
        k("%s_sp:" % L)
        k("ds_read_b64 %s, v%d\ns_waitcnt lgkmcnt(0)\nv_min_u32 v%d, v%d, v%d\nv_readfirstlane_b32 s%d, v%d" % (vr(vFl, 2), vFa, vFl, vFl, vFl+1, sF, vFl))
        k("s_cmp_gt_u32 s%d, s%d\ns_cbranch_scc0 %s_sp" % (sF, sIt, L))
        k("s_cmp_lg_u32 s%d, 0\ns_cbranch_scc1 %s" % (sIt, L))
        stamp(k, 5)
        for x in s2[:idx2]:
            if x[0] == "ld": k(x[1])
        k("s_branch %s_mid" % L)
        k(".p2align 6")
        k("%s:" % L)
        trace(sIt, 4, 1)
        if opt("clk", 0):
            k("s_cmp_lg_u32 s%d, 5\ns_cbranch_scc1 %s_nc\ns_memrealtime s[84:85]\ns_memtime s[90:91]\n%s_nc:" % (sIt, L, L))
        s2 = s2[:idx2] + [("lab", "%s_mid:" % L, None)] + s2[idx2:]
        emit(s2, allld)
        if TRACE:
            trace(sIt, 4, 0)
            k("s_cmp_gt_u32 s%d, s%d" % (sF, sIt))
        k("s_cbranch_scc1 %s" % L)
        k("s_cmp_lt_u32 s%d, 10\ns_cbranch_scc1 %s_sp" % (sIt, L))
        if opt("clk", 0): k("s_memrealtime s[94:95]\ns_memtime s[96:97]")
        k("ds_read_b64 %s, v%d offset:8" % (vr(vFl, 2), vFa))
        k("s_waitcnt lgkmcnt(6)")
        for x in mf(N-D): k(x)
        k("s_branch %s_ec" % L)
        k("%s_es:" % L)
        k("ds_read_b64 %s, v%d offset:8" % (vr(vFl, 2), vFa))
        k("%s_ec:" % L)
        k("s_waitcnt lgkmcnt(0)")
        k("v_min_u32 v%d, v%d, v%d\nv_readfirstlane_b32 s%d, v%d" % (vFl, vFl, vFl+1, sNon, vFl))
        k("s_cmp_eq_u32 s%d, 0\ns_cbranch_scc1 %s_es" % (sNon, L))
        tail = []
        for p in range(N-D+1, N): tail += mf(p)
        interleave(k, tail, post(), lead=2, per=1)

    c0 = -2*math.sqrt(2/math.pi)*LOG2E
    def ffn_epilogue(ACCF, ncb, S4, Mb, RSb, Sb, T, O, K0, vSt, blocks, defer=None):
        for bi, (b, pr_) in enumerate(blocks):
            sel = b & 1
            bc = lambda base: vr(base + (b & ~1), 2)
            os0 = " op_sel:[%d,0,0] op_sel_hi:[%d,1,1]" % (sel, sel)
            items = [(cb, hh) for cb in (2*pr_, 2*pr_+1) for hh in range(2)]
            G = lambda cb, hh: ACCF + (cb*4+b)*4 + 2*hh
            U = lambda cb, hh: ACCF + ((ncb+cb)*4+b)*4 + 2*hh
            Tm = lambda cb, hh: T + (cb & 1)*4 + 2*hh
            for cb, hh in items: k("v_pk_fma_f32 %s, %s, %s, %s%s neg_lo:[1,0,0] neg_hi:[1,0,0]" % (vr(G(cb,hh),2), bc(Mb), vr(S4+cb*4+2*hh,2), vr(G(cb,hh),2), os0))
            for cb, hh in items: k("v_pk_mul_f32 %s, %s, %s op_sel:[%d,0] op_sel_hi:[%d,1]" % (vr(G(cb,hh),2), bc(RSb), vr(G(cb,hh),2), sel, sel))
            for cb, hh in items: k("v_pk_mul_f32 %s, %s, %s" % (vr(Tm(cb,hh),2), vr(G(cb,hh),2), vr(G(cb,hh),2)))
            for cb, hh in items: k("v_pk_fma_f32 %s, %s, %s, %s op_sel:[0,0,1] op_sel_hi:[1,0,1]" % (vr(Tm(cb,hh),2), vr(Tm(cb,hh),2), vr(K0,2), vr(K0,2)))
            for cb, hh in items: k("v_pk_mul_f32 %s, %s, %s" % (vr(Tm(cb,hh),2), vr(Tm(cb,hh),2), vr(G(cb,hh),2)))
            for cb, hh in items:
                k("v_exp_f32 v%d, v%d\nv_exp_f32 v%d, v%d" % (Tm(cb,hh), Tm(cb,hh), Tm(cb,hh)+1, Tm(cb,hh)+1))
                k("v_pk_fma_f32 %s, %s, %s, %s%s neg_lo:[1,0,0] neg_hi:[1,0,0]" % (vr(U(cb,hh),2), bc(Mb), vr(S4+(ncb+cb)*4+2*hh,2), vr(U(cb,hh),2), os0))
            for cb, hh in items: k("v_pk_fma_f32 %s, %s, %s, %s op_sel:[0,%d,%d] op_sel_hi:[1,%d,%d]" % (vr(Tm(cb,hh),2), vr(Tm(cb,hh),2), bc(Sb), bc(Sb), sel, sel, sel, sel))
            for cb, hh in items:
                k("v_rcp_f32 v%d, v%d\nv_rcp_f32 v%d, v%d" % (Tm(cb,hh), Tm(cb,hh), Tm(cb,hh)+1, Tm(cb,hh)+1))
                k("v_pk_mul_f32 %s, %s, %s" % (vr(G(cb,hh),2), vr(G(cb,hh),2), vr(U(cb,hh),2)))
            for cb, hh in items: k("v_pk_mul_f32 %s, %s, %s" % (vr(G(cb,hh),2), vr(G(cb,hh),2), vr(Tm(cb,hh),2)))
            Ob = O + (bi & 1)*4 if defer is None else O[bi]
            for j_, (cb, hh) in enumerate(items): k("v_cvt_pk_bf16_f32 v%d, v%d, v%d" % (Ob+j_, G(cb,hh), G(cb,hh)+1))
            if pr_: k("s_add_u32 s%d, s%d, 4096" % (sT0, sKS))
            st_ = "buffer_store_dwordx4 %s, v%d, %s, s%d offen offset:%d%s" % (vr(Ob, 4), vSt, sq(SWS), sT0 if pr_ else sKS, b*1024, S1)
            if defer is None: k(st_)
            else: defer.append(st_)

    def a2_flag(group, nwait, va, vv):
        k("s_lshl_b32 s%d, s%d, 2\ns_lshr_b32 s%d, s%d, 1\ns_add_u32 s%d, s%d, s%d\ns_mul_i32 s%d, s%d, %d" % (sT0, sC, sT1, sJJ, sT0, sT0, sT1, sT0, sT0, 4*FGS))
        k("s_and_b32 s%d, s%d, 1\ns_lshl_b32 s%d, s%d, 1\ns_add_u32 s%d, s%d, s%d\ns_mul_i32 s%d, s%d, %d\ns_add_u32 s%d, s%d, s%d\ns_add_u32 s%d, s%d, 0x%x" % (sT1, sJJ, sT1, sT1, sT1, sT1, sNH, sT1, sT1, FSP, sT0, sT0, sT1, sT0, sT0, FL_OFF + group*FGS))
        k("v_mov_b32 v%d, s%d\nv_mov_b32 v%d, s%d" % (va, sT0, vv, sNon))
        k("s_waitcnt vmcnt(%d)\ns_mov_b64 exec, 1" % nwait)
        k("buffer_store_dword v%d, v%d, %s, 0 offen%s\ns_mov_b64 exec, -1" % (vv, va, sq(SWS), SC))

    def base_loads(R):
        k("s_and_b32 s%d, s2, 7\ns_lshr_b32 s%d, s2, 3" % (sT0, sT1))
        k("s_lshr_b32 s%d, s%d, 1\ns_lshl_b32 s%d, s%d, 3\ns_and_b32 s%d, s%d, 7\ns_add_u32 s%d, s%d, s%d" % (sT3, sT0, sT3, sT3, sT2, sT1, sT3, sT3, sT2))
        k("s_and_b32 s%d, s%d, 1\ns_lshl_b32 s%d, s%d, 2\ns_lshr_b32 s%d, s%d, 3\ns_add_u32 s%d, s%d, s%d\ns_mul_i32 s%d, s%d, 80" % (sT0, sT0, sT0, sT0, sT2, sT1, sT0, sT0, sT2, sT0, sT0))
        k("s_lshl_b32 s%d, s%d, 6\ns_lshl_b32 s%d, s%d, 2\ns_add_u32 s%d, s%d, s%d" % (sT3, sT3, sT1, sW, sT3, sT3, sT1))
        ra, rb, rc = R+22, R+23, R+24
        k("v_lshrrev_b32 v%d, 2, v%d\nv_lshlrev_b32 v%d, 4, v%d\nv_and_b32 v%d, 3, v%d\nv_add3_u32 v%d, v%d, v%d, s%d" % (ra, vM, ra, ra, rb, vM, ra, ra, rb, sT3))
        k("v_lshl_add_u32 v%d, v%d, 2, s%d" % (rb, vG, sT0))
        k("v_mul_u32_u24 v%d, 640, v%d\nv_add_u32 v%d, v%d, v%d\nv_lshlrev_b32 v%d, 1, v%d\nv_lshlrev_b32 v%d, 1, v%d" % (rc, ra, rc, rc, rb, rc, rc, rb, rb))
        k("v_lshlrev_b32 v%d, 3, v%d\nv_add_u32 v%d, 0x%x, v%d" % (ra, ra, ra, RST_OFF, ra))
        for cb in range(5):
            k("global_load_dwordx2 %s, v%d, %s offset:%d" % (vr(R+2*cb, 2), rc, sp(pX), cb*32))
            k("global_load_dwordx2 %s, v%d, %s offset:%d" % (vr(R+10+2*cb, 2), rb, sp(pD), cb*32))
        k("buffer_load_dword v%d, v%d, %s, 0 offen%s" % (R+20, ra, sq(SWS), SC))
    def base_compute(R):
        k("s_setprio 0")
        ST_ = R+20; X4, D4, T4 = R+28, R+48, R+68
        k("s_mul_i32 s%d, s%d, %d\ns_add_u32 s%d, s%d, %d\nv_lshl_add_u32 v%d, v%d, 4, s%d" % (sT0, sW, 80*TRP, sT0, sT0, TRB, R+22, vL, sT0))
        k("v_mov_b32 v%d, %d" % (R+23, FLG))
        wait_done("L_k1_bw%d" % R, "16", R+23, R+24)
        k("s_waitcnt vmcnt(0)")
        k("v_and_b32 v%d, s%d, v%d\nv_lshlrev_b32 v%d, 16, v%d\nv_rcp_f32 v%d, v%d" % (ST_+1, sMASK, ST_, ST_, ST_, ST_+1, ST_+1))
        for d in range(10): k("v_lshlrev_b32 v%d, 16, v%d\nv_and_b32 v%d, s%d, v%d\nv_lshlrev_b32 v%d, 16, v%d\nv_and_b32 v%d, s%d, v%d" % (X4+2*d, R+d, X4+2*d+1, sMASK, R+d, D4+2*d, R+10+d, D4+2*d+1, sMASK, R+10+d))
        def rnd():
            for h in range(10): k("v_cvt_pk_bf16_f32 v%d, v%d, v%d" % (T4+20+h, T4+2*h, T4+2*h+1))
            for h in range(10): k("v_lshlrev_b32 v%d, 16, v%d\nv_and_b32 v%d, s%d, v%d" % (T4+2*h, T4+20+h, T4+2*h+1, sMASK, T4+20+h))
        for r in range(20): k("v_sub_f32 v%d, v%d, v%d" % (T4+r, X4+r, ST_))
        rnd()
        for r in range(20): k("v_mul_f32 v%d, v%d, v%d" % (T4+r, T4+r, ST_+1))
        rnd()
        for r in range(20): k("v_mul_f32 v%d, v%d, v%d" % (T4+r, T4+r, D4+r))
        rnd()
        for r in range(20): k("v_add_f32 v%d, v%d, v%d" % (T4+r, T4+r, X4+r))
        for cb in range(5): k("ds_write_b128 v%d, %s offset:%d" % (R+22, vr(T4+4*cb, 4), cb*1024))
        k("s_waitcnt lgkmcnt(0)")

    def ffn_frag(ACCF, idx, areg, gu):
        rd = lambda h, reg: ["ds_read_b64_tr_b16 %s, v%d offset:%d" % (vr(reg+2*jx, 2), areg, h*4096+jx*512+gu*8192) for jx in range(2)]
        mf = lambda b, x, w: "v_mfma_f32_16x16x32_bf16 %s, %s, %s, %s" % (vr(ACCF+(idx*4+b)*4, 4), vr(w, 4), vr(x, 4), vr(ACCF+(idx*4+b)*4, 4))
        return (rd, mf)

    k("s_lshl_b32 s%d, s%d, 14" % (sT0, sNH))
    k("v_add_u32 v%d, s%d, v%d" % (aW[0], sT0, vT[0]))
    for c in range(1, 4): k("v_xor_b32 v%d, %d, v%d" % (aW[c], 32*c, aW[0]))
    k("s_lshr_b32 s%d, s%d, 5\ns_lshl_b32 s%d, s%d, 1\ns_add_u32 s%d, s%d, s%d\ns_mul_i32 s%d, s%d, 88\ns_add_u32 s%d, s%d, s%d\ns_lshl_b32 s%d, s%d, 12" % (sT0, sCol, sT1, sNH, sT0, sT0, sT1, sT1, sC, sT0, sT0, sT1, sKS, sT0))
    for r in range(0, 128, 2): k("v_mov_b64 v[%d:%d], 0" % (ACC+r, ACC+r+1))
    srd(k, SWS, pWs, WS_NREC)
    E = 212
    S4 = E; Mb, RSb, Sb = XS[0], XS[0]+4, XS[0]+8; K0 = XS[0]+12
    def postA():
        o = ["s_lshl_b32 s%d, s%d, 9\ns_add_u32 s%d, s%d, %d\nv_lshl_add_u32 v%d, v%d, 4, s%d" % (sT0, sNH, sT0, sT0, SFF, vT[1], vG, sT0),
             "s_mul_i32 s%d, s%d, 768\ns_add_u32 s%d, s%d, %d\nv_lshl_add_u32 v%d, v%d, 2, s%d" % (sT0, sMH, sT0, sT0, STAT_M, vT[2], vM, sT0)]
        for b in range(0, 4, 2):
            for a, off in ((Mb, 0), (RSb, 64), (Sb, 128)):
                o.append("ds_read2_b32 %s, v%d offset0:%d offset1:%d" % (vr(a+b, 2), vT[2], off+b*16, off+b*16+16))
        for j in range(8): o.append("ds_read_b128 %s, v%d offset:%d" % (vr(S4+4*j, 4), vT[1], j*64))
        o += ["v_lshlrev_b32 v%d, 4, v%d" % (vT[3], vL), "v_mov_b32 v%d, %s\nv_mov_b32 v%d, %s" % (K0, f32(c0*0.044715), K0+1, f32(c0))]
        return o
    fr = []
    for cb in range(4):
        for gu in range(2): fr.append(ffn_frag(ACC, gu*4+cb, aW[cb], gu))
    c_loop("A", fr, 8, opt("da", 5), WR, aX + aW, postA)
    stamp(k, 1)
    k("s_waitcnt lgkmcnt(0)")
    blk = [(b, p) for p in range(2) for b in range(4)]
    HF = opt("hf", 6)
    ffn_epilogue(ACC, 4, S4, Mb, RSb, Sb, E+32, XS[1], K0, vT[3], blk[:HF])
    a2_flag(0, HF-4, vT[0], vT[1])
    ffn_epilogue(ACC, 4, S4, Mb, RSb, Sb, E+32, XS[1], K0, vT[3], blk[HF:])
    stamp(k, 2)
    a2_flag(3, 0, vT[0], vT[1])
    stamp(k, 4)
    k("s_branch L_k1_base")

    k("L_k1_CB:")
    WRB = 52
    ACCF = 76
    ACCS = 140
    ca = Alloc(220)
    cLr = ca(5); cMu = ca(5); cKk = ca(5); c16r = ca(5); c16k = ca(5); cKr = ca(10, 2)
    assert ca.n <= (255 if TRACE else 256) + 1
    k("s_lshl_b32 s%d, s%d, 6" % (sT0, sNH))
    k("v_xor_b32 v%d, s%d, v%d\nv_xor_b32 v%d, 32, v%d" % (aW[0], sT0, vT[0], aW[1], aW[0]))
    k("s_mul_i32 s%d, s%d, 10240\ns_add_u32 s%d, s%d, 32768" % (sT0, sNH, sT0, sT0))
    k("v_add_u32 v%d, s%d, v%d\nv_xor_b32 v%d, 64, v%d" % (aW[2], sT0, vT[5], aW[3], aW[2]))
    P = XS[0]
    param_loads(P, sNH, vT[0])
    k("s_lshr_b32 s%d, s%d, 5\ns_add_u32 s%d, s%d, s%d\ns_mul_i32 s%d, s%d, 88\ns_add_u32 s%d, s%d, s%d\ns_lshl_b32 s%d, s%d, 12" % (sT0, sCol, sT0, sT0, sNH, sT1, sC, sT0, sT0, sT1, sKS, sT0))
    srd(k, SWS, pWs, WS_NREC)
    for r in range(0, 144, 2): k("v_mov_b64 v[%d:%d], 0" % (ACCF+r, ACCF+r+1))
    k("s_lshl_b32 s%d, s%d, 1\ns_add_u32 s%d, s%d, s%d\ns_lshl_b32 s%d, s%d, 14\ns_add_u32 s%d, s%d, 0x%x" % (sT2, sJJ, sT2, sT2, sNH, sT0, sT2, sT0, sT0, CAR_OFF))
    srd(k, SP0, pWs, 16384, "s%d" % sT0)
    sSS = [68, 69, 70, 71, 79]
    k("s_mul_i32 s%d, s%d, 88\ns_add_u32 s%d, s%d, 48\ns_lshl_b32 s%d, s%d, 12" % (sT3, sC, sT3, sT3, sT3, sT3))
    k("s_mul_i32 s%d, s%d, 10\ns_mul_i32 s%d, s%d, 5\ns_add_u32 s%d, s%d, s%d" % (sT2, sJJ, sT0, sNH, sT2, sT2, sT0))
    for q in range(5):
        k("s_add_u32 s%d, s%d, %d\ns_lshr_b32 s%d, s%d, 1\ns_lshl_b32 s%d, s%d, 12\ns_and_b32 s%d, s%d, 1\ns_lshl_b32 s%d, s%d, 9" % (sT0, sT2, q, sT1, sT0, sT1, sT1, sT0, sT0, sT0, sT0))
        k("s_add_u32 s%d, s%d, s%d\ns_add_u32 s%d, s%d, s%d" % (sT0, sT0, sT1, sSS[q], sT0, sT3))
    k("s_waitcnt vmcnt(0)")
    lre, lim, t0, t1, cA2, cBt = P, P+5, P+16, P+21, P+32, P+37
    KR = [cKr+2*q for q in range(5)]
    param_ab(P, cA2, cBt, vT[4])
    cpow5(r5(cLr), r5(cMu), "1.0", t0, t1, cA2, cBt)
    cpow5(r5(c16r), r5(c16k), f32(16.0), t0, t1, cA2, cBt)
    for q in range(5): k("v_add_f32 v%d, -1.0, v%d\nv_mul_f32 v%d, v%d, v%d" % (t0+q, cLr+q, t1+q, lre+q, lre+q))
    for q in range(5): k("v_fmac_f32 v%d, v%d, v%d" % (t1+q, lim+q, lim+q))
    for q in range(5): k("v_rcp_f32 v%d, v%d" % (t1+q, t1+q))
    for q in range(5): k("v_mul_f32 v%d, v%d, v%d\nv_mul_f32 v%d, v%d, v%d" % (KR[q], t0+q, lre+q, cKk+q, cMu+q, lre+q))
    for q in range(5): k("v_fmac_f32 v%d, v%d, v%d\nv_fma_f32 v%d, -v%d, v%d, v%d" % (KR[q], cMu+q, lim+q, cKk+q, t0+q, lim+q, cKk+q))
    for q in range(5): k("v_add_f32 v%d, v%d, v%d" % (t1+q, t1+q, t1+q))
    for q in range(5): k("v_mul_f32 v%d, v%d, v%d\nv_mul_f32 v%d, v%d, v%d" % (KR[q], KR[q], t1+q, cKk+q, cKk+q, t1+q))
    for s in range(1, 4): k("v_cmp_eq_u32 %s, %d, v%d" % (sp(16+2*s), s, vG))
    def ssm_frag(q):
        rd = lambda h, reg: ["ds_read_b128 %s, v%d offset:%d" % (vr(reg, 4), aW[2+h], q*2048)]
        mf = lambda b, x, w: "v_mfma_f32_16x16x32_bf16 %s, %s, %s, %s" % (vr(ACCS+(q*4+b)*4, 4), vr(x, 4), vr(w, 4), vr(ACCS+(q*4+b)*4, 4))
        return (rd, mf)
    fr = [ssm_frag(q) for q in range(5)]
    for cb in range(2):
        for gu in range(2): fr.append(ffn_frag(ACCF, gu*2+cb, aW[cb], gu))
    M4 = XS[0]
    SQ = [247, 249, 251, 253, 245]
    def postB():
        o = ["s_mul_i32 s%d, s%d, 768\ns_add_u32 s%d, s%d, %d\nv_lshl_add_u32 v%d, v%d, 4, s%d\nv_lshl_add_u32 v%d, v%d, 2, s%d" % (sT0, sMH, sT0, sT0, STAT_M, vT[3], vG, sT0, vT[2], vM, sT0),
             "s_mul_i32 s%d, s%d, 384\ns_add_u32 s%d, s%d, %d\nv_lshl_add_u32 v%d, v%d, 2, s%d" % (sT0, sNH, sT0, sT0, SSS, vT[1], vM, sT0)]
        for b in range(4): o.append("ds_read_b128 %s, v%d offset:%d" % (vr(M4+4*b, 4), vT[3], b*64))
        for q in range(5): o.append("ds_read_b32 v%d, v%d offset:%d" % (SQ[q], vT[1], q*64))
        return o
    c_loop("B", fr, 6, opt("db", 5), WRB, aX + aW, postB)
    stamp(k, 1)
    RS4 = XS[1]
    for b in range(4): k("ds_read_b128 %s, v%d offset:%d" % (vr(RS4+4*b, 4), vT[3], 256+b*64))
    Z = [[ACCS + (q*4 + (t >> 2))*4 + (t & 3) for t in range(16)] for q in range(5)]
    H = [[52+q, 57+q] for q in range(5)]
    k("s_waitcnt lgkmcnt(4)")
    for t in range(0, 16, 2):
        for q in range(5): k("v_pk_fma_f32 %s, %s, %s, %s op_sel:[0,1,0] op_sel_hi:[1,1,1] neg_lo:[1,0,0] neg_hi:[1,0,0]" % (vr(Z[q][t], 2), vr(M4+t, 2), vr(SQ[q]-1, 2), vr(Z[q][t], 2)))
    k("s_waitcnt lgkmcnt(0)")
    for t in range(16):
        if t % 2 == 0:
            for q in range(5): k("v_pk_mul_f32 %s, %s, %s" % (vr(Z[q][t], 2), vr(RS4+t, 2), vr(Z[q][t], 2)))
        if t >= 1:
            prev = [Z[q][0] if t == 1 else H[q][t & 1] for q in range(5)]
            cur = [H[q][(t+1) & 1] for q in range(5)]
            for q in range(5): k("v_fma_f32 v%d, v%d, v%d, v%d" % (cur[q], cLr+q, prev[q], Z[q][t]))
            for q in range(5): k("v_fmac_f32_dpp v%d, v%d, v%d%s" % (cur[q], prev[q], cMu+q, DPP))
    a_ = [H[q][0] for q in range(5)]; b_ = [H[q][1] for q in range(5)]
    c_ = r5(20)
    TOT = 28
    d_ = [TOT, TOT+1, TOT+2, TOT+4, TOT+5]
    MINE = [12, 13, 14, 15, 16]
    S4 = 36; Mb, RSb, Sb = 62, 66, 70; K0 = 74
    def ffn_inputs():
        k("s_lshl_b32 s%d, s%d, 9\ns_add_u32 s%d, s%d, %d\nv_lshl_add_u32 v%d, v%d, 4, s%d" % (sT0, sNH, sT0, sT0, SFF, vT[0], vG, sT0))
        for b in range(0, 4, 2):
            for a, off in ((Mb, 0), (RSb, 64), (Sb, 128)):
                k("ds_read2_b32 %s, v%d offset0:%d offset1:%d" % (vr(a+b, 2), vT[2], off+b*16, off+b*16+16))
        for j in range(4): k("ds_read_b128 %s, v%d offset:%d" % (vr(S4+4*j, 4), vT[0], j*64))
        k("v_mov_b32 v%d, %s\nv_mov_b32 v%d, %s" % (K0, f32(c0*0.044715), K0+1, f32(c0)))
    ffn_inputs()
    for q in range(5): k("v_mov_b32 v%d, v%d" % (b_[q], a_[q]))
    for q in range(5): k("v_permlane16_swap_b32 v%d, v%d" % (a_[q], b_[q]))
    for q in range(5): k("v_mov_b32 v%d, v%d\nv_mov_b32 v%d, v%d" % (c_[q], a_[q], d_[q], b_[q]))
    for q in range(5): k("v_permlane32_swap_b32 v%d, v%d\nv_permlane32_swap_b32 v%d, v%d" % (a_[q], c_[q], b_[q], d_[q]))
    seq = [a_, b_, c_, d_]
    k("v_mov_b32 v%d, s%d\nv_mov_b32 v%d, s%d" % (TOT+3, sNon, TOT+7, sNon))
    k("s_lshl_b32 s%d, s%d, 9" % (sT0, sC))
    k("v_lshlrev_b32 v%d, 4, v%d" % (vT[1], vM))
    for s in range(1, 4):
        for q in range(5): k("v_fmac_f32 v%d, v%d, v%d" % (seq[s][q], c16r+q, seq[s-1][q]))
        for q in range(5): k("v_fmac_f32_dpp v%d, v%d, v%d%s" % (seq[s][q], seq[s-1][q], c16k+q, DPP))
    k("s_mov_b64 exec, 0xffff")
    k("buffer_store_dwordx4 %s, v%d, %s, s%d offen%s" % (vr(TOT, 4), vT[1], sq(SP0), sT0, SC))
    k("buffer_store_dwordx4 %s, v%d, %s, s%d offen offset:256%s" % (vr(TOT+4, 4), vT[1], sq(SP0), sT0, SC))
    k("s_mov_b64 exec, -1")
    stamp(k, 2)
    for q in range(5): k("v_cndmask_b32 v%d, 0, v%d, %s" % (MINE[q], a_[q], sp(18)))
    for q in range(5): k("v_cndmask_b32 v%d, v%d, v%d, %s" % (MINE[q], MINE[q], b_[q], sp(20)))
    for q in range(5): k("v_cndmask_b32 v%d, v%d, v%d, %s" % (MINE[q], MINE[q], c_[q], sp(22)))
    k("v_lshlrev_b32 v%d, 4, v%d" % (vT[3], vL))
    k("s_waitcnt lgkmcnt(0)")
    dst_ = []
    ffn_epilogue(ACCF, 2, S4, Mb, RSb, Sb, 20, 236, K0, vT[3], [(b, 0) for b in range(4)])
    if not opt("clk", 0): stamp(k, 6)
    PRb = [ACCF + u*8 for u in range(8)]
    k("s_sub_u32 s%d, s%d, 1" % (sT0, sC))
    k("v_sub_u32 v%d, s%d, v%d\nv_lshlrev_b32 v%d, 9, v%d\nv_lshl_add_u32 v%d, v%d, 4, v%d" % (vT[1], sT0, vG, vT[1], vT[1], vT[1], vM, vT[1]))
    def pred_loads():
        for u in range(8):
            if u: k("v_subrev_u32 v%d, %d, v%d" % (vT[0], u*2048, vT[1]))
            a = vT[0] if u else vT[1]
            k("buffer_load_dwordx4 %s, v%d, %s, 0 offen%s" % (vr(PRb[u], 4), a, sq(SP0), PSC_))
            k("buffer_load_dwordx4 %s, v%d, %s, 0 offen offset:256%s" % (vr(PRb[u]+4, 4), a, sq(SP0), PSC_))
    pred_loads()
    for x in dst_: k(x)
    k("s_mul_i32 s%d, s%d, %d\ns_add_u32 s%d, s%d, %d" % (sKx, sW, 80*TRP, sKx, sKx, TRB))
    k("v_add_u32 v%d, s%d, v%d" % (vT[4], sKx, vT[3]))
    for qd in range(3): k("ds_read_b128 %s, v%d offset:%d" % (vr(32+4*qd, 4), vT[4], qd*1024))
    L256r, L256k = r5(32), r5(37)
    free = [20+2*q for q in range(5)]
    for t in range(0, 16, 2):
        nf = []
        for q in range(5): k("v_pk_mul_f32 %s, %s, %s op_sel_hi:[0,1]" % (vr(free[q], 2), vr(KR[q], 2), vr(Z[q][t], 2)))
        for e in range(2):
            for q in range(5): k("v_fmac_f32_dpp v%d, v%d, v%d%s" % (free[q]+e, Z[q][t]+e, cKk+q, DPP))
        for q in range(5):
            nf.append(Z[q][t]); Z[q][t] = free[q]; Z[q][t+1] = free[q]+1
        free = nf
    t0, t1 = 30, 31
    a2_flag(1, 16, 30, 31)
    stamp(k, 7)
    k("s_mov_b32 s%d, 0\ns_waitcnt vmcnt(1)\ns_branch L_k1_poll2" % sT3)
    k("L_k1_poll:")
    k("s_waitcnt vmcnt(0)")
    k("L_k1_poll2:")
    k("s_mov_b32 s%d, 0" % sT2)
    for u in range(8):
        k("v_cmp_ne_u32 s[24:25], s%d, v%d\nv_cmp_ne_u32 s[26:27], s%d, v%d\nv_cmp_le_i32 vcc, %d, v%d" % (sNon, PRb[u]+3, sNon, PRb[u]+7, u*2048, vT[1]))
        k("s_or_b64 s[24:25], s[24:25], s[26:27]\ns_and_b64 s[24:25], s[24:25], vcc\ns_cbranch_scc0 L_k1_pu%d" % u)
        k("s_cmp_lg_u32 s%d, 0\ns_cbranch_scc1 L_k1_ps%d\ns_sleep %d\nL_k1_ps%d:" % (sT2, u, opt("csl", 8), u))
        k("s_mov_b32 s%d, 1" % sT2)
        k("v_subrev_u32 v%d, %d, v%d" % (vT[0], u*2048, vT[1]))
        k("s_mov_b64 exec, s[24:25]")
        k("buffer_load_dwordx4 %s, v%d, %s, 0 offen%s" % (vr(PRb[u], 4), vT[0], sq(SP0), PSC_))
        k("buffer_load_dwordx4 %s, v%d, %s, 0 offen offset:256%s" % (vr(PRb[u]+4, 4), vT[0], sq(SP0), PSC_))
        k("s_mov_b64 exec, -1")
        k("L_k1_pu%d:" % u)
    k("s_add_u32 s%d, s%d, 1\ns_cmp_eq_u32 s%d, 0\ns_cbranch_scc1 L_k1_polled" % (sT3, sT3, sT2))
    k("s_cmp_lt_u32 s%d, 0x40000\ns_cbranch_scc1 L_k1_poll" % sT3)
    k("L_k1_polled:")
    if not opt("clk", 0): stamp(k, 3)
    pr = lambda u, q: PRb[u]+(q if q < 3 else q+1)
    k("s_waitcnt lgkmcnt(0)")
    for u in range(6, -1, -1):
        for q in range(5): k("v_fmac_f32 v%d, v%d, v%d" % (pr(u, q), L256r[q], pr(u+1, q)))
        for q in range(5): k("v_fmac_f32_dpp v%d, v%d, v%d%s" % (pr(u, q), pr(u+1, q), L256k[q], DPP))
        if u == 4:
            for qd in range(5): k("ds_read_b128 %s, v%d offset:%d" % (vr(PRb[5]+4*qd, 4), vT[4], (3+qd)*1024))
    L64r, L64k, Psr, Psk = r5(PRb[5]), r5(PRb[5]+5), r5(PRb[5]+10), r5(PRb[5]+15)
    k("s_waitcnt lgkmcnt(0)")
    for q in range(5): k("v_mul_f32 v%d, v%d, v%d" % (pr(1, q), L64r[q], pr(0, q)))
    for q in range(5): k("v_fmac_f32_dpp v%d, v%d, v%d%s" % (pr(1, q), pr(0, q), L64k[q], DPP))
    for sw in ("v_permlane16_swap_b32", "v_permlane32_swap_b32"):
        for q in range(5): k("v_mov_b32 v%d, v%d" % (pr(2, q), pr(1, q)))
        for q in range(5): k("%s v%d, v%d" % (sw, pr(1, q), pr(2, q)))
        for q in range(5): k("v_add_f32 v%d, v%d, v%d" % (pr(1, q), pr(1, q), pr(2, q)))
    for q in range(5): k("v_fmac_f32 v%d, v%d, v%d" % (MINE[q], Psr[q], pr(1, q)))
    for q in range(5): k("v_fmac_f32_dpp v%d, v%d, v%d%s" % (MINE[q], pr(1, q), Psk[q], DPP))
    CIN = [f for f in free]
    for q in range(5): k("v_mul_f32 v%d, v%d, v%d" % (CIN[q], KR[q], MINE[q]))
    for q in range(5): k("v_fmac_f32_dpp v%d, v%d, v%d%s" % (CIN[q], MINE[q], cKk+q, DPP))
    PK = 32
    OUTQ = [ACCF + 4*j for j in range(10)]
    k("v_mul_u32_u24 v%d, %d, v%d\nv_lshl_add_u32 v%d, v%d, 5, v%d\nv_add_u32 v%d, s%d, v%d" % (vT[1], TRP, vM, vT[1], vG, vT[1], vT[1], sKx, vT[1]))
    k("v_and_b32 v%d, 1, v%d\nv_lshrrev_b32 v%d, 2, v%d\nv_lshl_add_u32 v%d, v%d, 3, v%d\nv_mul_u32_u24 v%d, %d, v%d" % (vT[0], vG, vT[4], vM, vT[0], vT[0], vT[4], vT[0], TRP, vT[0]))
    k("v_and_b32 v%d, 3, v%d\nv_lshl_add_u32 v%d, v%d, 5, v%d" % (vT[4], vM, vT[0], vT[4], vT[0]))
    k("v_lshrrev_b32 v%d, 1, v%d\nv_lshl_add_u32 v%d, v%d, 3, v%d\nv_add_u32 v%d, s%d, v%d" % (vT[5], vG, vT[0], vT[5], vT[0], vT[0], sKx, vT[0]))
    k("v_and_b32 v%d, 31, v%d\nv_lshlrev_b32 v%d, 4, v%d\nv_lshl_add_u32 v%d, v%d, 10, v%d" % (vT[4], vL, vT[4], vT[4], vT[4], vT[5], vT[4]))
    def tr_reads(bp):
        for q in range(5):
            o = OUTQ[bp*5+q]
            k("ds_read_b64_tr_b16 %s, v%d offset:%d\nds_read_b64_tr_b16 %s, v%d offset:%d" % (vr(o, 2), vT[0], q*16*TRP+bp*16, vr(o+2, 2), vT[0], q*16*TRP+bp*16+4*TRP))
    def tr_stores(bp, waits):
        for q in range(5):
            if waits: k("s_waitcnt lgkmcnt(%d)" % (8-2*q))
            k("buffer_store_dwordx4 %s, v%d, %s, s%d offen offset:%d%s" % (vr(OUTQ[bp*5+q], 4), vT[4], sq(SWS), sSS[q], bp*2048, S1))
    for t in range(16):
        prev = [CIN[q] if t == 0 else Z[q][t-1] for q in range(5)]
        for q in range(5): k("v_fmac_f32 v%d, v%d, v%d" % (Z[q][t], cLr+q, prev[q]))
        for q in range(5): k("v_fmac_f32_dpp v%d, v%d, v%d%s" % (Z[q][t], prev[q], cMu+q, DPP))
        if t & 1:
            for q in range(5): k("v_cvt_pk_bf16_f32 v%d, v%d, v%d" % (PK+8*q+(t >> 1), Z[q][t-1], Z[q][t]))
        if t == 8:
            for q in range(5): k("ds_write_b128 v%d, %s offset:%d" % (vT[1], vr(PK+8*q, 4), q*16*TRP))
        if t == 10: tr_reads(0)
        if t == 13:
            k("s_waitcnt lgkmcnt(0)")
            tr_stores(0, False)
    for q in range(5): k("ds_write_b128 v%d, %s offset:%d" % (vT[1], vr(PK+8*q+4, 4), q*16*TRP+16))
    tr_reads(1)
    tr_stores(1, True)
    a2_flag(2, 0, vT[0], vT[1])
    stamp(k, 4)
    k("L_k1_base:")
    base_loads(140)
    k("L_k1_base2:")
    base_compute(140)
    finish(100)
    k("L_k1_end:")
    k("s_endpgm")
    return k

if __name__ == "__main__":
    ref = open("parallel_sum__ssm_conv_s5__geglu_ffn__prompt.s.ref").read().split("\n")
    hdr = [l for l in ref if l.startswith(";") and "@launch" not in l and "Override" not in l and "grid=ceil" not in l]
    hdr += ["; @launch grid=(256,1,1) block=(512,1,1) lds=163840"]
    out = [a for a in sys.argv[1:] if not a.startswith("--")][0]
    gen2.TRACE = False
    open(out, "w").write(emit_file(hdr, [(gen_k1(), dict(vgpr=256, accum=256))]))
```

```python
import sys
from asmgen import *
K = "parallel_sum__ssm_conv_s5__geglu_ffn__prompt_kernel"
base = open("g1.s").read()
def build(mode, out):
    w = Kern("w_kernel")
    w("s_cmp_ge_u32 s2, 256\ns_cbranch_scc1 L_w_end")
    if mode != "empty":
        w("s_load_dwordx16 s[16:31], s[0:1], 0\ns_load_dwordx16 s[32:47], s[0:1], 64")
        w("s_lshr_b32 s3, s2, 3")
        w("s_waitcnt lgkmcnt(0)\ns_mov_b32 s51, 0x20000")
        bufs = [(16, 2048*1280), (22, 640*1280), (24, 640*1280), (26, 640*1280), (28, 640*1280), (36, 640*3072), (38, 640*3072), (40, 1536*1280), (42, 2048*640*4), (46, 0x1300000), (18, 1280), (20, 1280), (30, 1280), (32, 1280), (44, 256)]
        if mode.startswith("tlb"):
            st = int(mode[3:])
            w("s_lshl_b32 s4, s3, 6\nv_add_u32 v1, s4, v0\ns_mov_b32 s5, %d\nv_mul_lo_u32 v1, v1, s5" % st)
            for p, sz in bufs:
                for o in range(0, sz, st*2048):
                    w("s_mov_b32 s48, s%d\ns_mov_b32 s49, s%d\ns_mov_b32 s50, %d\ns_mov_b32 s6, %d\nbuffer_load_dword v2, v1, s[48:51], s6 offen" % (p, p+1, sz, o))
        elif mode == "data":
            w("v_lshlrev_b32 v1, 4, v0")
            n = 0
            for p, sz in bufs[:8]:
                sl = sz//256
                w("s_mov_b32 s48, s%d\ns_mov_b32 s49, s%d\ns_mul_i32 s4, s2, %d\ns_add_u32 s50, s4, %d" % (p, p+1, sl, sl))
                for o in range(0, sl, 1024):
                    w("buffer_load_dwordx4 v[4:7], v1, s[48:51], s4 offen\ns_add_u32 s4, s4, 1024"); n += 1
        elif mode == "code":
            w("s_getpc_b64 s[6:7]\nL_w_pc:\ns_sub_u32 s6, s6, L_w_pc-%s\ns_subb_u32 s7, s7, 0" % K)
            w("s_and_b32 s4, s3, 7\ns_lshl_b32 s4, s4, 13\nv_lshl_add_u32 v1, v0, 7, s4\nv_min_u32 v1, L_k1_end-%s, v1\nglobal_load_dword v2, v1, s[6:7]" % K)
        w("s_waitcnt vmcnt(0)")
    w("L_w_end:\ns_endpgm")
    s = base.replace("; @launch grid=(256,1,1) block=(512,1,1) lds=163840\n",
        "; @launch kernel=w_kernel grid=(256,1,1) block=(64,1,1) lds=0\n; @launch kernel=%s grid=(256,1,1) block=(512,1,1) lds=163840\n" % K)
    s = s.replace('.section .rodata,"a"', ".globl w_kernel\n.p2align 8\n.type w_kernel,@function\nw_kernel:\n" + "\n".join(w.body()) + '\n.section .rodata,"a"')
    s += """.p2align 6
.amdhsa_kernel w_kernel
  .amdhsa_next_free_vgpr 16
  .amdhsa_next_free_sgpr 64
  .amdhsa_accum_offset 16
  .amdhsa_group_segment_fixed_size 0
  .amdhsa_kernarg_size 128
  .amdhsa_user_sgpr_count 2
  .amdhsa_user_sgpr_kernarg_segment_ptr 1
  .amdhsa_system_sgpr_workgroup_id_x 1
.end_amdhsa_kernel
"""
    open(out, "w").write(s)
for m in ("empty", "tlb65536", "tlb4096", "data", "code"):
    build(m, "w_%s.s" % m)
```

```python
import sys, struct, math
from asmgen import *
import gen2
from gen2 import (A2_OFF, B2_OFF, CAR_OFF, RST_OFF, SB_OFF, SG_OFF, STAMP_OFF, WS_NREC, SL, SPARE, TRP, f32, vr, sq, sp, ror, DPP, SC,
                  Alloc, interleave, srd, stamp, stamp_out, opt, ARG, STAMPS, LOG2E,
                  pX, pLre, pLim, pBre, pBim, pCre, pCim, pLdt, pD, pBx, pG, pU, pDn, pOut, pDbg, pWs)
STAT_M = SPARE
SFF = SPARE + 1536
SSS = SPARE + 2560
TRB = SL
FLG = SPARE + 4032
PF_OFF = 0x1130000
FL_OFF = 0x1131000
TRACE = "--trace" in ARG
S1 = [" sc1", " sc0 sc1", " sc1 nt", ""][opt("st2", 0)]
if opt("sc", 1): SC = " sc1"
FSP = 4
FGS = 16
FLS_ = 128
PSC_ = [" sc1", " sc0 sc1"][opt("psc", 0)]
KNAME = "parallel_sum__ssm_conv_s5__geglu_ffn__prompt_kernel"

def gen_k1():
    k = Kern(KNAME)
    sW, sMH, sNH, sI, sJJ, sTY = 3, 4, 5, 6, 7, 8
    sT0, sT1, sT2, sT3 = 9, 10, 11, 12
    sMASK = 13
    SX, SW0, SW1, SWS, SP0, SP1 = 48, 52, 56, 60, 64, 68
    sKx, sKw, sDst, sDelta, sIt, sRd, sA, sB, sKS, sC, sNon, sCol = range(72, 84)
    k("s_cmp_ge_u32 s2, 256\ns_cbranch_scc1 L_k1_end")
    k("s_load_dwordx16 s[16:31], s[0:1], 0\ns_load_dwordx16 s[32:47], s[0:1], 64")
    k("s_memrealtime s[100:101]")
    stamp(k, 0)
    vL, vM, vG, vII, vSL = 1, 2, 3, 4, 5
    vT = [6, 7, 8, 9, 10, 11]
    if TRACE: k("v_mov_b32 v255, 0")
    k("v_lshrrev_b32 v%d, 6, v0" % vT[0])
    k("v_and_b32 v%d, 63, v0" % vL)
    k("v_readfirstlane_b32 s%d, v%d" % (sW, vT[0]))
    k("v_and_b32 v%d, 15, v0\nv_lshrrev_b32 v%d, 4, v%d" % (vM, vG, vL))
    k("v_lshrrev_b32 v%d, 3, v%d\nv_and_b32 v%d, 7, v0" % (vII, vL, vSL))
    k("v_mov_b32 v%d, 0\nv_lshlrev_b32 v%d, 2, v%d\nv_add_u32 v%d, %d, v%d\nds_write_b32 v%d, v%d" % (vT[1], vT[2], vM, vT[2], FLG, vT[2], vT[2], vT[1]))
    k("s_and_b32 s%d, s2, 7\ns_lshr_b32 s%d, s2, 3" % (sT0, sT1))
    k("s_lshr_b32 s%d, s%d, 2\ns_lshl_b32 s%d, s%d, 3\ns_and_b32 s%d, s%d, 7\ns_add_u32 s%d, s%d, s%d" % (sI, sT0, sI, sI, sT2, sT1, sI, sI, sT2))
    k("s_and_b32 s%d, s%d, 3\ns_lshl_b32 s%d, s%d, 2\ns_lshr_b32 s%d, s%d, 3\ns_add_u32 s%d, s%d, s%d" % (sJJ, sT0, sJJ, sJJ, sT2, sT1, sJJ, sJJ, sT2))
    k("s_and_b32 s%d, s%d, 1\ns_lshr_b32 s%d, s%d, 1" % (sTY, sJJ, sJJ, sJJ))
    k("s_mov_b32 s%d, 0xffff0000" % sMASK)
    k("s_and_b32 s%d, s%d, 1\ns_bfe_u32 s%d, s%d, 0x10001" % (sMH, sW, sNH, sW))
    k("s_lshl_b32 s%d, s%d, 7\ns_lshl_b32 s%d, s%d, 6\ns_add_u32 s%d, s%d, 1024\ns_cmp_eq_u32 s%d, 0\ns_cselect_b32 s%d, s%d, s%d" % (sT0, sJJ, sT1, sJJ, sT1, sT1, sTY, sCol, sT0, sT1))
    k("s_waitcnt lgkmcnt(0)\ns_barrier")
    k("s_cmp_lt_u32 s%d, 4\ns_cbranch_scc1 L_k1_C" % sW)
    k("s_cmp_ge_u32 s%d, 6\ns_cbranch_scc1 L_k1_D" % sW)

    def bf16r(d, s):
        k("v_cvt_pk_bf16_f32 v%d, v%d, v%d\nv_lshlrev_b32 v%d, 16, v%d" % (d, s, s, d, d))
    r5 = lambda b: [b+q for q in range(5)]
    def cpow5(dr, dk, n, t0, t1, cA2, cBt):
        R5 = range(5)
        for q in R5: k("v_mul_f32 v%d, %s, v%d\nv_mul_f32 v%d, %s, v%d" % (t0+q, n, cA2+q, t1+q, n, cBt+q))
        for q in R5: k("v_exp_f32 v%d, v%d\nv_rndne_f32 v%d, v%d" % (t0+q, t0+q, dr[q], t1+q))
        for q in R5: k("v_sub_f32 v%d, v%d, v%d" % (t1+q, t1+q, dr[q]))
        for q in R5: k("v_cos_f32 v%d, v%d\nv_sin_f32 v%d, v%d" % (dr[q], t1+q, dk[q], t1+q))
        for q in R5: k("v_mul_f32 v%d, v%d, v%d\nv_mul_f32 v%d, v%d, v%d" % (dr[q], dr[q], t0+q, dk[q], dk[q], t0+q))
    def param_loads(P, snh, va):
        k("s_mul_i32 s%d, s%d, 80\ns_mul_i32 s%d, s%d, 40\ns_add_u32 s%d, s%d, s%d" % (sT0, sJJ, sT1, snh, sT1, sT1, sT0))
        k("v_add_u32 v%d, s%d, v%d\nv_lshlrev_b32 v%d, 1, v%d" % (va, sT1, vSL, va, va))
        for q in range(5):
            for n, p in enumerate((pLre, pLim, pLdt)):
                k("global_load_ushort v%d, v%d, %s offset:%d" % (P+n*5+q, va, sp(p), q*16))
    def param_ab(P, cA2, cBt, vs):
        lre, lim, ldt = P, P+5, P+10
        k("v_lshrrev_b32 v%d, 3, v%d\nv_xor_b32 v%d, 1, v%d\nv_lshlrev_b32 v%d, 31, v%d" % (vs, vM, vs, vs, vs, vs))
        for q in range(15): k("v_lshlrev_b32 v%d, 16, v%d" % (P+q, P+q))
        for q in range(5): k("v_xor_b32 v%d, v%d, v%d\nv_mul_f32 v%d, %s, v%d" % (lim+q, lim+q, vs, ldt+q, f32(LOG2E), ldt+q))
        for q in range(5): k("v_exp_f32 v%d, v%d" % (ldt+q, ldt+q))
        for q in range(5): k("v_cvt_pk_bf16_f32 v%d, v%d, v%d" % (ldt+q, ldt+q, ldt+q))
        for q in range(5): k("v_lshlrev_b32 v%d, 16, v%d" % (ldt+q, ldt+q))
        for q in range(5): k("v_mul_f32 v%d, v%d, v%d\nv_mul_f32 v%d, v%d, v%d" % (cA2+q, ldt+q, lre+q, cBt+q, ldt+q, lim+q))
        for q in range(5): k("v_mul_f32 v%d, %s, v%d\nv_mul_f32 v%d, %s, v%d" % (cA2+q, f32(LOG2E), cA2+q, cBt+q, f32(1/(2*math.pi)), cBt+q))
    def trace(idx_sreg, mul, add):
        if TRACE:
            k("s_memrealtime s[100:101]\ns_mul_i32 m0, s%d, %d\ns_add_u32 m0, m0, %d\ns_waitcnt lgkmcnt(0)\nv_writelane_b32 v255, s100, m0" % (idx_sreg, mul, add))
    def ev(n):
        if TRACE: k("s_memrealtime s[100:101]\ns_waitcnt lgkmcnt(0)\nv_writelane_b32 v255, s100, %d" % n)
    def finish(vt):
        if TRACE:
            k("s_lshl_b32 s83, s2, 11\ns_add_u32 s83, s83, 0x%x\nv_lshl_add_u32 v%d, v0, 2, s83" % (STAMP_OFF + 0x40000, vt+9))
            k("global_store_dword v%d, v255, %s" % (vt+9, sp(pWs)))
        stamp_out(k, 0, 8, pWs, vt)
        k("s_endpgm")

    vXo, vWo, vSo = 12, 13, 14
    vF = 18
    k("s_lshl_b32 s%d, s%d, 7\ns_lshl_b32 s%d, s%d, 5\ns_add_u32 s%d, s%d, s%d" % (sT2, sI, sT3, sMH, sT2, sT2, sT3))
    k("v_lshrrev_b32 v%d, 2, v%d\nv_lshlrev_b32 v%d, 4, v%d\nv_and_b32 v%d, 3, v%d" % (vT[0], vII, vT[0], vT[0], vT[1], vII))
    k("v_add3_u32 v%d, v%d, v%d, s%d" % (vT[0], vT[0], vT[1], sT2))
    k("v_mul_u32_u24 v%d, 1280, v%d" % (vT[0], vT[0]))
    k("s_lshl_b32 s%d, s%d, 2" % (sT3, sMH))
    k("v_lshrrev_b32 v%d, 1, v%d\nv_or_b32 v%d, s%d, v%d\nv_xor_b32 v%d, v%d, v%d" % (vT[1], vII, vT[1], sT3, vT[1], vT[1], vT[1], vSL))
    k("v_lshl_add_u32 v%d, v%d, 4, v%d" % (vXo, vT[1], vT[0]))
    k("s_mul_i32 s%d, s%d, 80" % (sT0, sJJ))
    k("v_add_u32 v%d, s%d, v%d\nv_mul_u32_u24 v%d, 1280, v%d\nv_lshl_add_u32 v%d, v%d, 4, v%d" % (vT[2], sT0, vII, vT[2], vT[2], vSo, vT[1], vT[2]))
    k("s_lshl_b32 s%d, s%d, 3" % (sT0, sMH))
    k("v_add_u32 v%d, s%d, v%d\nv_mul_u32_u24 v%d, 3072, v%d" % (vT[0], sT0, vII, vT[0], vT[0]))
    k("v_and_b32 v%d, 2, v%d\nv_or_b32 v%d, s%d, v%d\nv_xor_b32 v%d, v%d, v%d" % (vT[1], vII, vT[1], sT3, vT[1], vT[1], vT[1], vSL))
    k("v_lshl_add_u32 v%d, v%d, 4, v%d" % (vT[0], vT[1], vT[0]))
    k("s_lshl_b32 s%d, s%d, 1" % (sT0, sCol))
    k("v_add_u32 v%d, s%d, v%d" % (vWo, sT0, vT[0]))
    k("s_mov_b32 s%d, 0\ns_mov_b32 s%d, 0\ns_lshl_b32 s%d, s%d, 10\ns_mov_b32 s%d, 0\ns_mov_b32 s%d, 0" % (sKx, sKw, sDst, sMH, sIt, sRd))
    k("v_mov_b32 v%d, %d\nv_mov_b32 v24, 0" % (vF, FLG))
    k("s_lshl_b32 s%d, s%d, 2\ns_add_u32 s%d, s%d, %d\nv_mov_b32 v%d, s%d" % (sT0, sMH, sT0, sT0, FLG+16, vF+1, sT0))
    srd(k, SX, pX, 2048*1280)
    srd(k, SW0, pG, 640*3072)
    srd(k, SW1, pU, 640*3072)
    k("s_cmp_eq_u32 s%d, 0\ns_cselect_b32 s%d, s%d, s%d\ns_cselect_b32 s%d, s%d, s%d" % (sMH, SP0, pBre, pBim, SP0+1, pBre+1, pBim+1))
    k("s_mov_b32 s%d, %d\ns_mov_b32 s%d, 0x20000" % (SP0+2, 640*1280, SP0+3))
    def wait_word(lab, off, need, va, vt):
        k("v_mov_b32 v%d, %d" % (va, FLG+off))
        k("%s:" % lab)
        k("ds_read_b32 v%d, v%d\ns_waitcnt lgkmcnt(0)\nv_readfirstlane_b32 s%d, v%d" % (vt, va, sT0, vt))
        k("s_cmp_ge_i32 s%d, %s\ns_cbranch_scc1 %s_ok\ns_sleep 1\ns_branch %s\n%s_ok:" % (sT0, need, lab, lab, lab))
    def wait_done(lab, need, vaddr, vt):
        k("%s:" % lab)
        k("ds_read_b128 %s, v%d\ns_waitcnt lgkmcnt(0)" % (vr(vt, 4), vaddr))
        k("v_min_u32 v%d, v%d, v%d\nv_min3_u32 v%d, v%d, v%d, v%d" % (vt, vt, vt+1, vt, vt, vt+2, vt+3))
        k("v_readfirstlane_b32 s%d, v%d" % (sT0, vt))
        k("s_cmp_ge_i32 s%d, %s\ns_cbranch_scc1 %s_ok\ns_sleep 1\ns_branch %s\n%s_ok:" % (sT0, need, lab, lab, lab))
    k("s_cmp_eq_u32 s%d, 1\ns_cbranch_scc1 L_k1_LB_dma\ns_branch L_k1_LA_dma" % sTY)
    def dma(ldsoff, voff, S, sbase, add):
        k("s_add_u32 m0, s%d, %d\ns_add_u32 s%d, s%d, %d\nbuffer_load_dwordx4 v%d, %s, s%d offen lds" % (sDst, ldsoff, sT0, sbase, add, voff, sq(S), sT0))
    NSIG = opt("nsig", 6)
    def chk(lab, add, sig):
        k("s_lshl_b32 s%d, s%d, 1\ns_add_i32 s%d, s%d, %d\ns_waitcnt lgkmcnt(0)" % (sT1, sIt, sT1, sT1, add))
        k("v_min_u32 v20, v20, v21\nv_min3_u32 v20, v20, v22, v23\nv_readfirstlane_b32 s%d, v20" % sT0)
        k("s_cmp_ge_i32 s%d, s%d\ns_cbranch_scc1 %s_go" % (sT0, sT1, lab))
        if sig: k("s_waitcnt vmcnt(0)\nds_write_b32 v%d, v24" % (vF+1))
        wait_done(lab+"_wd", "s%d" % sT1, vF, 20)
        k("%s_go:" % lab)
    for ty in "BA":
        L = "L_k1_L" + ty
        k("%s:" % L)
        trace(sIt, 4, 0)
        chk(L+"_c1", -5, True)
        k("%s_dma:" % L)
        trace(sIt, 4, 1)
        xs = [(n*2048, vXo, SX, sKx, ((n & 3)*4 + (n >> 2)*64)*1280) for n in range(8)]
        ws = []
        for n in range(4):
            for un in range(2 if ty == "A" else 1):
                for gu in range(2):
                    ws.append((16384+un*16384+gu*8192+n*2048, vWo, SW1 if gu else SW0, sKw, n*16*3072+un*128))
        h = len(ws)//2
        p1 = []
        for i in range(8): p1 += xs[i:i+1] + ws[:h][i*h//8:(i+1)*h//8]
        p2 = ws[h:]
        if ty == "B": p2 += [(32768+b*2048, vSo, SP0, sKx, b*10240) for b in range(10)]
        for i, o in enumerate(p1):
            if i == NSIG:
                k("s_waitcnt vmcnt(%d)\nds_write_b32 v%d, v24\nv_add_u32 v24, 1, v24" % (NSIG, vF+1))
                trace(sIt, 4, 3)
            if i == len(p1)-2: k("ds_read_b128 v[20:23], v%d" % vF)
            dma(*o)
        chk(L+"_c2", -4, False)
        for i, o in enumerate(p2):
            if i == len(p2)-2: k("ds_read_b128 v[20:23], v%d" % vF)
            dma(*o)
        k("ds_write_b32 v%d, v24 offset:16" % (vF+1))
        k("s_add_u32 s%d, s%d, 128\ns_add_u32 s%d, s%d, 196608\ns_add_u32 s%d, s%d, %d\ns_add_u32 s%d, s%d, 1" % (sKx, sKx, sKw, sKw, sDst, sDst, SL, sRd, sRd))
        k("s_cmp_eq_u32 s%d, 3\ns_cselect_b32 s%d, 0, s%d\ns_cselect_b32 s%d, %d, 0\ns_sub_u32 s%d, s%d, s%d" % (sRd, sRd, sRd, sT0, 3*SL, sDst, sDst, sT0))
        trace(sIt, 4, 2)
        k("s_add_u32 s%d, s%d, 1\ns_cmp_lt_u32 s%d, 10\ns_cbranch_scc1 %s" % (sIt, sIt, sIt, L))
        if ty == "B": k("s_branch L_k1_Lend")
    k("L_k1_Lend:")
    srd(k, SWS, pWs, WS_NREC)
    k("v_mov_b32 v72, v%d\nv_mov_b32 v73, v24" % (vF+1))
    k("s_branch L_k1_P2")

    k("L_k1_D:")
    XR = 16
    YR = 36
    PK = 100
    T = 132
    vN = 12
    sPQ, sPR = [14, 78], [15, 79]
    k("v_mul_u32_u24 v%d, 1280, v%d\nv_lshl_add_u32 v%d, v%d, 4, v%d" % (vT[0], vG, vT[0], vM, vT[0]))
    XL = opt("xl", 1)
    sQ_, sG_ = sIt, sRd
    if XL:
        k("s_and_b32 s%d, s2, 7\ns_lshl_b32 s%d, s%d, 5\ns_lshr_b32 s%d, s2, 3\ns_add_u32 s%d, s%d, s%d\ns_lshl_b32 s%d, s%d, 1\ns_add_u32 s%d, s%d, s%d" % (sT0, sT0, sT0, sT1, sT0, sT0, sT1, sC, sT0, sC, sC, sMH))
        k("s_bfe_u32 s%d, s2, 0x10002\ns_lshl_b32 s%d, s%d, 5\ns_add_u32 s%d, s%d, s%d" % (sQ_, sQ_, sQ_, sQ_, sQ_, sT1))
    else:
        k("s_lshl_b32 s%d, s2, 1\ns_add_u32 s%d, s%d, s%d" % (sC, sC, sC, sMH))
    srd(k, SX, pX, 2048*1280)
    srd(k, SWS, pWs, WS_NREC)
    k("s_cmp_lg_u32 s%d, 0\ns_cbranch_scc1 L_k1_nn" % sC)
    k("s_or_b32 s%d, s100, 1" % sT0)
    k("v_mov_b32 v%d, s%d\nv_mov_b32 v%d, 0" % (vT[2], sT0, vT[1]))
    k("global_store_dword v%d, v%d, %s%s" % (vT[1], vT[2], sp(pDbg), SC))
    k("L_k1_nn:")
    B1 = opt("b1", 2); GATE = opt("gate", 3)
    SNT = " nt" if opt("snt", 0) else ""
    def gate(lab):
        if GATE: wait_word(lab, 36, "%d" % GATE, vT[3], vT[2])
    k("s_mul_i32 s%d, s%d, 5120" % (sKx, sC))
    xl = lambda c: k("buffer_load_dwordx4 %s, v%d, %s, s%d offen offset:%d%s" % (vr(XR+4*c, 4), vT[0], sq(SX), sKx, c*256, SNT))
    k("s_cmp_eq_u32 s%d, 1\ns_cbranch_scc1 L_k1_D1a" % sMH)
    if XL:
        k("s_mul_i32 s%d, s%d, 43\ns_lshr_b32 s%d, s%d, 9\ns_mul_i32 s%d, s%d, 12\ns_sub_u32 s%d, s%d, s%d" % (sT0, sQ_, sT0, sT0, sT1, sT0, sT1, sQ_, sT1))
        k("s_cmp_lt_u32 s%d, 6\ns_cselect_b32 s%d, s%d, s%d\ns_cselect_b32 s%d, s%d, s%d\ns_cselect_b32 s%d, 0, 6\ns_cselect_b32 s%d, 0, 24" % (sT1, SP1, pG, pU, SP1+1, pG+1, pU+1, sT2, sG_))
        k("s_sub_u32 s%d, s%d, s%d\ns_and_b32 s%d, s2, 3\ns_lshl_b32 s%d, s%d, 2\ns_lshl_b32 s%d, s%d, 1\ns_add_u32 s%d, s%d, 12" % (sT1, sT1, sT2, sT2, sT3, sT2, sT2, sT2, sT2, sT2))
        k("s_cmp_lt_u32 s%d, 4\ns_cselect_b32 s%d, s%d, s%d\ns_add_u32 s%d, s%d, s%d" % (sT1, sT2, sT3, sT2, sT1, sT1, sT2))
        k("s_add_u32 s%d, s%d, s%d\ns_mul_i32 s%d, s%d, 48\ns_add_u32 s%d, s%d, s%d" % (sG_, sG_, sT1, sT2, sT0, sG_, sG_, sT2))
        k("s_lshl_b32 s%d, s%d, 7\ns_mul_i32 s%d, s%d, %d\ns_add_u32 s%d, s%d, s%d" % (sT1, sT1, sT0, sT0, 8*3072, sKw, sT0, sT1))
        k("s_cmp_lt_u32 s%d, 60\ns_cselect_b32 s%d, %d, 0\ns_cselect_b32 s%d, s%d, 1000\ns_mov_b32 s%d, 0x20000" % (sQ_, SP1+2, 640*3072, sG_, sG_, SP1+3))
    else:
        k("s_mov_b32 s%d, s2" % sG_)
        k("s_mul_i32 s%d, s2, 1366\ns_lshr_b32 s%d, s%d, 16\ns_mul_i32 s%d, s%d, 48\ns_sub_u32 s%d, s2, s%d" % (sT0, sT0, sT0, sT1, sT0, sT1, sT1))
        k("s_cmp_lt_u32 s%d, 24\ns_cselect_b32 s%d, s%d, s%d\ns_cselect_b32 s%d, s%d, s%d\ns_cselect_b32 s%d, 0, 24" % (sT1, SP1, pG, pU, SP1+1, pG+1, pU+1, sT2))
        k("s_sub_u32 s%d, s%d, s%d\ns_lshl_b32 s%d, s%d, 7\ns_mul_i32 s%d, s%d, %d\ns_add_u32 s%d, s%d, s%d" % (sT1, sT1, sT2, sT1, sT1, sT0, sT0, 8*3072, sKw, sT0, sT1))
        k("s_cmp_lt_u32 s2, 240\ns_cselect_b32 s%d, %d, 0\ns_mov_b32 s%d, 0x20000" % (SP1+2, 640*3072, SP1+3))
    k("v_mul_u32_u24 v%d, 3072, v%d\nv_lshl_add_u32 v%d, v%d, 4, v%d" % (vT[1], vII, vT[1], vSL, vT[1]))
    a_ = 0
    for c in range(5):
        if c == B1: gate("L_k1_g0")
        xl(c)
        while a_ < 16 and a_*40 < 128*(c+1):
            k("buffer_load_dwordx4 %s, v%d, %s, s%d offen%s" % (vr(YR+4*a_, 4), vT[1], sq(SP1), sKw, SNT))
            k("s_add_u32 s%d, s%d, %d" % (sKw, sKw, 40*3072))
            a_ += 1
    if B1 >= 5: gate("L_k1_g0")
    k("s_branch L_k1_Db")
    k("L_k1_D1a:")
    if XL:
        k("s_cmp_lt_u32 s%d, 20\ns_cselect_b32 s%d, s%d, s%d\ns_cselect_b32 s%d, s%d, s%d\ns_cselect_b32 s%d, 0, 20\ns_cselect_b32 s%d, 0, 80" % (sQ_, SP1, pBre, pBim, SP1+1, pBre+1, pBim+1, sT1, sG_))
        k("s_sub_u32 s%d, s%d, s%d\ns_and_b32 s%d, s2, 3\ns_mul_i32 s%d, s%d, 20\ns_add_u32 s%d, s%d, s%d\ns_add_u32 s%d, s%d, s%d" % (sT0, sQ_, sT1, sT1, sT1, sT1, sT0, sT0, sT1, sG_, sG_, sT0))
        k("s_mul_i32 s%d, s%d, 10240\ns_add_u32 s%d, s%d, 5120" % (sKw, sT0, sDst, sKw))
        k("s_cmp_lt_u32 s%d, 40\ns_cselect_b32 s%d, %d, 0\ns_cselect_b32 s%d, s%d, 1000\ns_mov_b32 s%d, 0x20000" % (sQ_, SP1+2, 640*1280, sG_, sG_, SP1+3))
    else:
        k("s_mov_b32 s%d, s2" % sG_)
        k("s_cmp_lt_u32 s2, 80\ns_cselect_b32 s%d, s%d, s%d\ns_cselect_b32 s%d, s%d, s%d\ns_cselect_b32 s%d, 0, 80" % (SP1, pBre, pBim, SP1+1, pBre+1, pBim+1, sT1))
        k("s_sub_u32 s%d, s2, s%d\ns_mul_i32 s%d, s%d, 10240\ns_add_u32 s%d, s%d, 5120" % (sT0, sT1, sKw, sT0, sDst, sKw))
        k("s_cmp_lt_u32 s2, 160\ns_cselect_b32 s%d, %d, 0\ns_mov_b32 s%d, 0x20000" % (SP1+2, 640*1280, SP1+3))
    for c in range(5):
        if c == B1: gate("L_k1_g1")
        xl(c)
        for hh in range(2): k("buffer_load_dwordx4 %s, v%d, %s, s%d offen offset:%d%s" % (vr(YR+20*hh+4*c, 4), vT[0], sq(SP1), sDst if hh else sKw, c*256, SNT))
    if B1 >= 5: gate("L_k1_g1")
    k("L_k1_Db:")
    if opt("cpf", 1):
        k("s_getpc_b64 s[70:71]")
        k("L_k1_pc:")
        k("s_sub_u32 s70, s70, L_k1_pc-%s\ns_subb_u32 s71, s71, 0" % KNAME)
        k("s_lshr_b32 s%d, s2, 3\ns_lshl_b32 s%d, s%d, 1\ns_add_u32 s%d, s%d, s%d\ns_and_b32 s%d, s%d, 7\ns_lshl_b32 s%d, s%d, 13" % (sT0, sT0, sT0, sT0, sT0, sMH, sT0, sT0, sT0, sT0))
        k("v_lshl_add_u32 v14, v%d, 7, s%d\nv_min_u32 v14, L_k1_end-%s, v14" % (vL, sT0, KNAME))
        k("s_cmp_lt_u32 s%d, L_k1_end-%s\ns_cbranch_scc0 L_k1_ncp\ns_cmp_lt_u32 s2, 64\ns_cbranch_scc0 L_k1_ncp" % (sT0, KNAME))
        k("global_load_dword v15, v14, s[70:71]")
        k("L_k1_ncp:")
    ev(0)
    k("s_lshl_b32 s%d, s%d, 3\ns_add_u32 s%d, s%d, s%d\ns_lshl_b32 s%d, s%d, 1\ns_add_u32 s%d, s%d, s%d\ns_lshl_b32 s%d, s%d, 1" % (sT3, sI, sT3, sT3, sJJ, sT3, sT3, sT3, sT3, sMH, sT3, sT3))
    for n in range(2):
        k("s_add_u32 s%d, s%d, %d\ns_mul_i32 s%d, s%d, 6554\ns_lshr_b32 s%d, s%d, 16\ns_mul_i32 s%d, s%d, 10\ns_sub_u32 s%d, s%d, s%d" % (sT0, sT3, n, sPQ[n], sT0, sPQ[n], sPQ[n], sT1, sPQ[n], sPR[n], sT0, sT1))
    k("v_mov_b32 v%d, 0" % vT[1])
    k("global_load_dword v%d, v%d, %s%s" % (vN, vT[1], sp(pDbg), SC))
    if opt("packlate", 0): k("s_waitcnt vmcnt(1)")
    PNT = " nt" if opt("pnt", 1) else ""
    PA = opt("pa", 0)
    PK2 = 180 if PA else PK
    k("s_cmp_eq_u32 s%d, 1\ns_cbranch_scc1 L_k1_plC" % sTY)
    srd(k, SP0, pDn, 1536*1280)
    k("v_mul_u32_u24 v%d, 1280, v%d\nv_lshl_add_u32 v%d, v%d, 4, v%d" % (vT[1], vII, vT[1], vSL, vT[1]))
    k("s_cmp_lt_u32 s%d, 48\ns_cselect_b32 s%d, s%d, 0" % (sPQ[0], SP0+2, SP0+2))
    for n in range(2):
        k("s_mul_i32 s%d, s%d, 40960\ns_lshl_b32 s%d, s%d, 7\ns_add_u32 s%d, s%d, s%d" % (sT1, sPQ[n], sT2, sPR[n], sT1, sT1, sT2))
        for a in range(4):
            k("buffer_load_dwordx4 %s, v%d, %s, s%d offen%s" % (vr(PK+16*n+4*a, 4), vT[1], sq(SP0), sT1, PNT))
            if a < 3: k("s_add_u32 s%d, s%d, 10240" % (sT1, sT1))
    PP = 180
    if PA:
        k("s_branch L_k1_plC2")
        k("L_k1_plC:")
        param_loads(PP, sMH, vT[1])
        k("s_waitcnt vmcnt(15)\ns_branch L_k1_pld")
        k("L_k1_plC2:")
    else:
        k("s_branch L_k1_pld")
        k("L_k1_plC:")
        param_loads(PP, sMH, vT[1])
    srd(k, SP0, pCre, 640*1280)
    srd(k, SP1, pCim, 640*1280)
    cr_, cc_ = (vSL, vII) if opt("cs", 1) else (vII, vSL)
    k("v_mul_u32_u24 v%d, 1280, v%d\nv_lshl_add_u32 v%d, v%d, 4, v%d" % (vT[1], cr_, vT[1], cc_, vT[1]))
    k("s_cmp_lt_u32 s%d, 40\ns_cselect_b32 s%d, s%d, 0\ns_cselect_b32 s%d, s%d, 0" % (sPQ[0], SP0+2, SP0+2, SP1+2, SP1+2))
    for n in range(2):
        k("s_mul_i32 s%d, s%d, 20480\ns_lshl_b32 s%d, s%d, 7\ns_add_u32 s%d, s%d, s%d" % (sT1, sPQ[n], sT2, sPR[n], sT1, sT1, sT2))
        k("s_add_u32 s%d, s%d, 10240" % (sT2, sT1))
        for part in range(2):
            for hh in range(2):
                k("buffer_load_dwordx4 %s, v%d, %s, s%d offen%s" % (vr(PK2+16*n+(part*2+hh)*4, 4), vT[1], sq(SP0 if part == 0 else SP1), sT2 if hh else sT1, PNT))
    k("L_k1_pld:")
    k("v_mov_b32 v13, 0x3f803f80")
    ev(1)
    k("s_waitcnt vmcnt(%d)" % (16 if PA else 8))
    ev(2)
    stamp(k, 7)
    def unpack(dst, src, n):
        for d in range(n): k("v_lshlrev_b32 v%d, 16, v%d\nv_and_b32 v%d, s%d, v%d" % (dst+2*d, src+d, dst+2*d+1, sMASK, src+d))
    def row_sum(regs):
        for n in (8, 4, 2, 1):
            for r in regs: k("v_add_f32_dpp v%d, v%d, v%d%s" % (r, r, r, ror(n)))
    def tree(dst, src, n):
        k("v_add_f32 v%d, v%d, v%d\nv_add_f32 v%d, v%d, v%d" % (dst, src, src+1, dst+1, src+2, src+3))
        for d in range(4, n, 2): k("v_add_f32 v%d, v%d, v%d\nv_add_f32 v%d, v%d, v%d" % (dst, dst, src+d, dst+1, dst+1, src+d+1))
        k("v_add_f32 v%d, v%d, v%d" % (dst, dst, dst+1))
    A, B = T+40, T+42
    def dsum(dst, src, n, sq_):
        for d in range(n):
            k("v_dot2_f32_bf16 v%d, v%d, v%d, %s" % (dst+(d & 1), src+d, src+d if sq_ else 13, "v%d" % (dst+(d & 1)) if d > 1 else "0"))
    dsum(A, XR, 20, False)
    dsum(B, XR, 20, True)
    k("v_add_f32 v%d, v%d, v%d\nv_add_f32 v%d, v%d, v%d" % (A, A, A+1, B, B, B+1))
    row_sum([A, B])
    k("v_mul_f32 v%d, %s, v%d" % (A, f32(1/640.), A))
    k("v_mul_f32 v%d, %s, v%d" % (B, f32(1/640.), B))
    k("v_fma_f32 v%d, -v%d, v%d, v%d\nv_max_f32 v%d, 0, v%d" % (B, A, A, B, B, B))
    bf16r(B, B)
    k("v_add_f32 v%d, %s, v%d" % (B, f32(1e-5), B))
    bf16r(B, B)
    k("v_sqrt_f32 v%d, v%d" % (B, B))
    k("s_mov_b32 s%d, 0" % sT3)
    k("L_k1_gn:")
    k("v_readfirstlane_b32 s%d, v%d" % (sNon, vN))
    k("s_add_u32 s%d, s%d, 1\ns_cmp_lg_u32 s%d, 0\ns_cbranch_scc1 L_k1_gnd" % (sT3, sT3, sNon))
    k("s_cmp_gt_u32 s%d, 0x40000\ns_cbranch_scc1 L_k1_gnd" % sT3)
    k("v_mov_b32 v%d, 0" % vT[1])
    k("global_load_dword v%d, v%d, %s%s\ns_waitcnt vmcnt(0)\ns_branch L_k1_gn" % (vN, vT[1], sp(pDbg), SC))
    k("L_k1_gnd:")
    k("s_max_u32 s%d, s%d, 1" % (sNon, sNon))
    k("v_cvt_pk_bf16_f32 v%d, v%d, v%d\nv_mov_b32 v%d, s%d" % (T+44, A, B, T+45, sNon))
    k("s_lshl_b32 s%d, s%d, 5\ns_add_u32 s%d, s%d, 0x%x" % (sT0, sC, sT0, sT0, RST_OFF))
    k("v_lshlrev_b32 v%d, 3, v%d" % (vT[2], vG))
    k("s_mov_b32 exec_lo, 0x00010001\ns_mov_b32 exec_hi, 0x00010001")
    k("buffer_store_dwordx2 %s, v%d, %s, s%d offen%s" % (vr(T+44, 2), vT[2], sq(SWS), sT0, SC))
    k("s_mov_b64 exec, -1")
    k("s_cmp_eq_u32 s%d, 1\ns_cbranch_scc1 L_k1_D1b" % sMH)
    k("v_and_b32 v%d, 1, v%d\nv_lshlrev_b32 v%d, 4, v%d\nv_mov_b32 v%d, 0x3f80\nv_lshlrev_b32 v%d, v%d, v%d" % (T+8, vM, T+8, T+8, T+9, T+8, T+8, T+9))
    k("v_bfe_u32 v%d, v%d, 1, 2" % (T+9, vM))
    for d in range(4): k("v_cmp_eq_u32 vcc, %d, v%d\nv_cndmask_b32 v%d, 0, v%d, vcc" % (d, T+9, T+d, T+8))
    for a in range(16): k("v_mfma_f32_16x16x32_bf16 %s, %s, %s, %s" % (vr(T+4, 4), vr(T, 4), vr(YR+4*a, 4), vr(T+4, 4) if a else "0"))
    k("s_lshl_b32 s%d, s%d, 9\ns_add_u32 s%d, s%d, 0x%x\ns_cmp_lt_u32 s%d, 240\ns_cselect_b32 s%d, s%d, 0x%x" % (sT0, sG_, sT0, sT0, SG_OFF, sG_, sT0, sT0, WS_NREC))
    k("v_lshlrev_b32 v%d, 5, v%d\nv_lshl_add_u32 v%d, v%d, 6, v%d\nv_add_u32 v%d, s%d, v%d" % (T+8, vG, T+8, vSL, T+8, T+8, sT0, T+8))
    for r in range(4): k("v_mov_b32 v%d, s%d" % (T+13+2*r, sNon))
    for r in range(4): k("v_add_f32_dpp v%d, v%d, v%d%s" % (T+12+2*r, T+4+r, T+4+r, DPP))
    k("s_mov_b32 exec_lo, 0x00ff00ff\ns_mov_b32 exec_hi, 0")
    k("buffer_store_dwordx4 %s, v%d, %s, 0 offen%s" % (vr(T+12, 4), T+8, sq(SWS), SC))
    k("buffer_store_dwordx4 %s, v%d, %s, 0 offen offset:16%s" % (vr(T+16, 4), T+8, sq(SWS), SC))
    k("s_mov_b64 exec, -1")
    k("s_branch L_k1_Dc")
    k("L_k1_D1b:")
    for hh in range(2): dsum(A+2*hh, YR+20*hh, 20, False)
    k("v_add_f32 v%d, v%d, v%d\nv_add_f32 v%d, v%d, v%d" % (A, A, A+1, A+2, A+2, A+3))
    row_sum([A, A+2])
    k("v_mov_b32 v%d, s%d\nv_mov_b32 v%d, s%d" % (A+1, sNon, A+3, sNon))
    k("s_lshl_b32 s%d, s%d, 6\ns_add_u32 s%d, s%d, 0x%x\ns_cmp_lt_u32 s%d, 160\ns_cselect_b32 s%d, s%d, 0x%x" % (sT0, sG_, sT0, sT0, SB_OFF, sG_, sT0, sT0, WS_NREC))
    k("v_add_u32 v%d, s%d, v%d" % (vT[3], sT0, vT[2]))
    k("s_mov_b32 exec_lo, 0x00010001\ns_mov_b32 exec_hi, 0x00010001")
    k("buffer_store_dwordx2 %s, v%d, %s, 0 offen%s" % (vr(A, 2), vT[3], sq(SWS), SC))
    k("buffer_store_dwordx2 %s, v%d, %s, 0 offen offset:32%s" % (vr(A+2, 2), vT[3], sq(SWS), SC))
    k("s_mov_b64 exec, -1")
    k("L_k1_Dc:")
    ev(3)
    PSC = S1
    k("s_waitcnt vmcnt(3)")
    k("s_cmp_eq_u32 s%d, 1\ns_cbranch_scc1 %s" % (sTY, "L_k1_pdd" if PA else "L_k1_pdC"))
    k("s_cmp_ge_u32 s%d, 48\ns_cbranch_scc1 L_k1_pdd" % sPQ[0])
    k("s_mul_i32 s%d, s%d, %d\ns_add_u32 s%d, s%d, 49152" % (sT2, sMH, SL, sT2, sT2))
    k("v_lshlrev_b32 v%d, 4, v%d\nv_add_u32 v%d, s%d, v%d" % (T+1, vL, T, sT2, T+1))
    k("v_lshrrev_b32 v%d, 2, v%d\nv_lshl_add_u32 v%d, v%d, 2, v%d\nv_lshlrev_b32 v%d, 7, v%d" % (T+2, vM, T+2, vG, T+2, T+2, T+2))
    k("v_and_b32 v%d, 3, v%d\nv_lshl_add_u32 v%d, v%d, 3, v%d\nv_add_u32 v%d, s%d, v%d" % (T+3, vM, T+2, T+3, T+2, T+2, sT2, T+2))
    for n in range(2):
        for a in range(4): k("ds_write_b128 v%d, %s offset:%d" % (T, vr(PK+16*n+4*a, 4), a*1024))
        k("s_waitcnt lgkmcnt(0)")
        for c4 in range(4):
            k("ds_read_b64_tr_b16 %s, v%d offset:%d" % (vr(PK+16*n+c4*4, 2), T+2, c4*32))
            k("ds_read_b64_tr_b16 %s, v%d offset:%d" % (vr(PK+16*n+c4*4+2, 2), T+2, c4*32+2048))
        for c4 in range(4):
            k("s_lshl_b32 s%d, s%d, 2\ns_add_u32 s%d, s%d, %d\ns_mul_i32 s%d, s%d, 52\ns_lshr_b32 s%d, s%d, 8" % (sT0, sPR[n], sT0, sT0, c4, sT1, sT0, sT1, sT1))
            k("s_mul_i32 s%d, s%d, 435\ns_add_u32 s%d, s%d, s%d\ns_mul_i32 s%d, s%d, 5\ns_add_u32 s%d, s%d, s%d" % (sT1, sT1, sT1, sT1, sT0, sT0, sPQ[n], sT1, sT1, sT0))
            k("s_lshl_b32 s%d, s%d, 10\ns_add_u32 s%d, s%d, %d" % (sT1, sT1, sT1, sT1, B2_OFF))
            k("s_waitcnt lgkmcnt(%d)" % (6-2*c4))
            k("buffer_store_dwordx4 %s, v%d, %s, s%d offen%s" % (vr(PK+16*n+c4*4, 4), T+1, sq(SWS), sT1, PSC))
    if not PA: k("s_branch L_k1_pdd")
    k("L_k1_pdC:")
    k("s_cmp_ge_u32 s%d, 40\ns_cbranch_scc1 L_k1_pdd" % sPQ[0])
    k("v_lshrrev_b32 v%d, 1, v%d\nv_mul_u32_u24 v%d, 5120, v%d" % (T+1, cc_, T+1, T+1))
    k("v_and_b32 v%d, 1, v%d\nv_lshl_add_u32 v%d, v%d, 5, v%d\nv_lshl_add_u32 v%d, v%d, 4, v%d" % (T+2, cc_, T+2, T+2, cr_, T+1, T+2, T+1))
    for n in range(2):
        k("s_mul_i32 s%d, s%d, 52\ns_lshr_b32 s%d, s%d, 8\ns_mul_i32 s%d, s%d, 435\ns_add_u32 s%d, s%d, s%d" % (sT1, sPQ[n], sT1, sT1, sT1, sT1, sT1, sT1, sPQ[n]))
        k("s_mul_i32 s%d, s%d, 20\ns_add_u32 s%d, s%d, s%d\ns_add_u32 s%d, s%d, 240\ns_lshl_b32 s%d, s%d, 10\ns_add_u32 s%d, s%d, %d" % (sT0, sPR[n], sT1, sT1, sT0, sT1, sT1, sT1, sT1, sT1, sT1, B2_OFF))
        for r in range(8, 16): k("v_xor_b32 v%d, 0x80008000, v%d" % (PK2+16*n+r, PK2+16*n+r))
        for part in range(2):
            for hh in range(2):
                k("buffer_store_dwordx4 %s, v%d, %s, s%d offen offset:%d%s" % (vr(PK2+16*n+(part*2+hh)*4, 4), T+1, sq(SWS), sT1, part*256+hh*128, PSC))
    k("L_k1_pdd:")
    if opt("pw", 0):
        k("s_mul_i32 s%d, s%d, 22528\nv_lshlrev_b32 v%d, 4, v%d" % (sT0, sC, T+3, vL))
        for j in range(22):
            k("buffer_store_dwordx4 %s, v%d, %s, s%d offen offset:%d sc1" % (vr(XR, 4), T+3, sq(SWS), sT0, (j & 3)*1024))
            if j & 3 == 3: k("s_add_u32 s%d, s%d, 4096" % (sT0, sT0))
    ev(4)
    k("s_lshl_b32 s%d, s%d, 2\ns_add_u32 s%d, s%d, 0x%x\nv_mov_b32 v%d, s%d\nv_mov_b32 v%d, s%d" % (sT0, sC, sT0, sT0, PF_OFF, T, sT0, T+1, sNon))
    k("s_waitcnt vmcnt(0)\ns_mov_b64 exec, 1")
    k("buffer_store_dword v%d, v%d, %s, 0 offen%s\ns_mov_b64 exec, -1" % (T+1, T, sq(SWS), SC))
    stamp(k, 2)
    ev(5)
    TB = 48
    k("s_cmp_eq_u32 s%d, 0\ns_cbranch_scc1 L_k1_ntb" % sTY)
    param_ab(PP, 80, 85, vT[1])
    k("v_cvt_f32_u32 v%d, v%d\nv_mul_f32 v%d, %s, v%d\nv_mul_f32 v%d, %s, v%d" % (vT[1], vG, vT[2], f32(64.0), vT[1], vT[1], f32(16.0), vT[1]))
    cpow5(r5(TB), r5(TB+5), f32(256.0), 90, 95, 80, 85)
    cpow5(r5(TB+12), r5(TB+17), "v%d" % vT[2], 90, 95, 80, 85)
    cpow5(r5(TB+22), r5(TB+27), "v%d" % vT[1], 90, 95, 80, 85)
    k("L_k1_ntb:")
    EI = 16
    aSt, aS0, aS1 = 40, 41, 42
    k("s_lshl_b32 s%d, s%d, 1\ns_add_u32 s%d, s%d, s%d\ns_lshl_b32 s%d, s%d, 9\ns_add_u32 s%d, s%d, 0x%x" % (sT0, sI, sT0, sT0, sMH, sT0, sT0, sT0, sT0, RST_OFF))
    k("v_lshrrev_b32 v%d, 2, v%d\nv_lshlrev_b32 v%d, 4, v%d\nv_lshl_add_u32 v%d, v%d, 2, v%d" % (aSt, vM, aSt, aSt, aSt, vG, aSt))
    k("v_and_b32 v%d, 3, v%d\nv_add_u32 v%d, v%d, v%d\nv_lshl_add_u32 v%d, v%d, 3, s%d" % (aS0, vM, aSt, aSt, aS0, aSt, aSt, sT0))
    k("s_cmp_eq_u32 s%d, 1\ns_cbranch_scc1 L_k1_eaB" % sTY)
    k("s_lshl_b32 s%d, s%d, 6\ns_add_u32 s%d, s%d, s%d\ns_lshl_b32 s%d, s%d, 3\ns_add_u32 s%d, s%d, 0x%x" % (sT0, sMH, sT0, sT0, sCol, sT0, sT0, sT0, sT0, SG_OFF))
    k("v_lshl_add_u32 v%d, v%d, 3, s%d\nv_add_u32 v%d, %d, v%d" % (aS0, vL, sT0, aS1, 1536*8, aS0))
    k("s_mov_b32 s%d, %d" % (sKw, 3072*8))
    k("s_branch L_k1_ead")
    k("L_k1_eaB:")
    k("s_lshl_b32 s%d, s%d, 5\ns_add_u32 s%d, s%d, s%d\ns_lshl_b32 s%d, s%d, 3\ns_add_u32 s%d, s%d, 0x%x" % (sT0, sMH, sT0, sT0, sCol, sT0, sT0, sT0, sT0, SG_OFF))
    k("v_lshrrev_b32 v%d, 5, v%d\nv_mul_u32_u24 v%d, 1504, v%d\nv_add_u32 v%d, v%d, v%d\nv_lshl_add_u32 v%d, v%d, 3, s%d" % (aS0, vL, aS0, aS0, aS0, aS0, vL, aS0, aS0, sT0))
    k("s_mul_i32 s%d, s%d, 80\ns_mul_i32 s%d, s%d, 40\ns_add_u32 s%d, s%d, s%d\ns_lshl_b32 s%d, s%d, 3\ns_add_u32 s%d, s%d, 0x%x" % (sT0, sJJ, sT1, sMH, sT0, sT0, sT1, sT0, sT0, sT0, sT0, SB_OFF))
    k("v_lshrrev_b32 v%d, 3, v%d\nv_mul_u32_u24 v%d, 640, v%d\nv_add_u32 v%d, v%d, v%d\nv_lshl_add_u32 v%d, v%d, 3, s%d" % (aS1, vM, aS1, aS1, aS1, aS1, vSL, aS1, aS1, sT0))
    k("s_mov_b32 s%d, 64" % sKw)
    k("L_k1_ead:")
    ev(6)
    wait_word("L_k1_pg", 36, "%d" % opt("pfgate", 9), T, T+1)
    k("s_mov_b32 s%d, 0" % sT3)
    k("s_lshl_b32 s%d, s%d, 10\ns_add_u32 s%d, s%d, 0x%x\nv_lshlrev_b32 v43, 4, v%d" % (sKx, sMH, sKx, sKx, PF_OFF, vL))
    k("L_k1_pfl:")
    k("buffer_load_dwordx4 v[44:47], v43, %s, s%d offen%s\ns_waitcnt vmcnt(0)" % (sq(SWS), sKx, SC))
    k("v_xor_b32 v%d, s%d, v44" % (T, sNon))
    for r_ in (45, 46, 47): k("v_xor_b32 v%d, s%d, v%d\nv_or_b32 v%d, v%d, v%d" % (T+1, sNon, r_, T, T, T+1))
    k("v_cmp_ne_u32 vcc, 0, v%d" % T)
    k("s_add_u32 s%d, s%d, 1" % (sT3, sT3))
    k("s_cbranch_vccz L_k1_pfd")
    k("s_sleep 16\ns_cmp_lt_u32 s%d, 0x40000\ns_cbranch_scc1 L_k1_pfl" % sT3)
    k("L_k1_pfd:")
    ev(7)
    k("s_lshl_b32 s%d, s%d, 2\ns_add_u32 s%d, s%d, %d\nv_mov_b32 v%d, s%d\nv_mov_b32 v%d, s%d" % (sT0, sMH, sT0, sT0, FLG+24, T+6, sT0, T+7, sNon))
    k("ds_write_b32 v%d, v%d offset:16" % (T+6, T+7))
    k("v_mov_b32 v%d, %d" % (T+2, FLG+40))
    k("L_k1_pf2:")
    k("ds_read_b64 %s, v%d\ns_waitcnt lgkmcnt(0)\nv_min_u32 v%d, v%d, v%d\nv_readfirstlane_b32 s%d, v%d" % (vr(T, 2), T+2, T, T, T+1, sT0, T))
    k("s_cmp_lg_u32 s%d, 0\ns_cbranch_scc1 L_k1_pf2o\ns_sleep 1\ns_branch L_k1_pf2\nL_k1_pf2o:" % sT0)
    wait_word("L_k1_eg", 36, "%d" % opt("eigate", 9), T, T+1)
    k("buffer_load_dwordx2 %s, v%d, %s, 0 offen%s" % (vr(EI, 2), aSt, sq(SWS), SC))
    for p in range(5):
        k("s_mov_b32 s%d, %d\ns_mul_i32 s%d, s%d, %d" % (sT0, p*3072*8, sT1, sKw, p))
        k("buffer_load_dwordx2 %s, v%d, %s, s%d offen%s" % (vr(EI+2+2*p, 2), aS0, sq(SWS), sT0, SC))
        k("buffer_load_dwordx2 %s, v%d, %s, s%d offen%s" % (vr(EI+12+2*p, 2), aS1, sq(SWS), sT1, SC))
    k("s_cmp_eq_u32 s%d, 0\ns_cbranch_scc1 L_k1_ntw" % sTY)
    k("v_mov_b32 v%d, %d" % (T+2, FLG))
    wait_done("L_k1_tbw", "16", T+2, T+8)
    k("s_mul_i32 s%d, s%d, %d\ns_add_u32 s%d, s%d, %d\nv_add_u32 v43, s%d, v43" % (sT0, sMH, 2*80*TRP, sT0, sT0, TRB, sT0))
    for w2 in range(2):
        for qd in range(8): k("ds_write_b128 v43, %s offset:%d" % (vr(TB+4*qd, 4), w2*80*TRP+qd*1024))
    k("L_k1_ntw:")
    k("s_waitcnt vmcnt(0)")
    k("L_k1_eid:")
    ev(8)
    k("v_lshlrev_b32 v%d, 16, v%d\nv_and_b32 v%d, s%d, v%d\nv_rcp_f32 v%d, v%d" % (T, EI, T+1, sMASK, EI, T+2, T+1))
    k("s_mul_i32 s%d, s%d, 768\ns_add_u32 s%d, s%d, %d" % (sT0, sMH, sT0, sT0, STAT_M))
    k("v_lshl_add_u32 v%d, v%d, 2, s%d" % (T+3, vL, sT0))
    k("ds_write_b32 v%d, v%d\nds_write_b32 v%d, v%d offset:256\nds_write_b32 v%d, v%d offset:512" % (T+3, T, T+3, T+2, T+3, T+1))
    def sum5(b): k("v_add_f32 v%d, v%d, v%d\nv_add_f32 v%d, v%d, v%d\nv_add_f32 v%d, v%d, v%d\nv_add_f32 v%d, v%d, v%d" % (b, b, b+2, b+4, b+4, b+6, b, b, b+8, b, b, b+4))
    sum5(EI+2)
    k("s_lshl_b32 s%d, s%d, 9\ns_add_u32 s%d, s%d, %d" % (sT0, sMH, sT0, sT0, SFF))
    k("v_lshl_add_u32 v%d, v%d, 2, s%d" % (T+4, vL, sT0))
    k("ds_write_b32 v%d, v%d" % (T+4, EI+2))
    k("s_cmp_eq_u32 s%d, 1\ns_cbranch_scc1 L_k1_ewB" % sTY)
    sum5(EI+12)
    k("ds_write_b32 v%d, v%d offset:256" % (T+4, EI+12))
    k("s_branch L_k1_ewd")
    k("L_k1_ewB:")
    k("s_mul_i32 s%d, s%d, 384\ns_add_u32 s%d, s%d, %d" % (sT0, sMH, sT0, sT0, SSS))
    k("v_lshl_add_u32 v%d, v%d, 2, s%d" % (T+5, vM, sT0))
    for p in range(5): k("ds_write_b32 v%d, v%d offset:%d" % (T+5, EI+12+2*p, p*64))
    k("L_k1_ewd:")
    k("ds_write_b32 v%d, v%d" % (T+6, T+7))
    k("v_mov_b32 v72, %d\nv_mov_b32 v73, 0" % (FLG+48))
    k("L_k1_P2:")
    if opt("p2prio", 0): k("s_setprio %d" % opt("p2prio", 0))
    stamp(k, 1)
    if TRACE:
        k("s_lshl_b32 s83, s2, 11\ns_add_u32 s83, s83, 0x%x\nv_lshl_add_u32 v12, v0, 2, s83" % (STAMP_OFF + 0x40000))
        k("global_store_dword v12, v255, %s" % sp(pWs))
    LD2 = ["", " sc1", " nt", " sc0 sc1", " sc1 nt"][opt("ld2", 1)]
    sP, sMI, sNI = 4, 5, 6
    sAb, sBb = [72, 73, 74], [75, 76, 77]
    sR, sSh = 78, 79
    SO = SX
    AR, BR, AC = 12, 76, 176
    vA = [2, 3, 4, 5]; vB0, vB1, vOut, vLd, vFl, vFa = 6, 7, 8, 9, 10, 11
    k("s_sub_u32 s%d, s%d, 4" % (sP, sW))
    k("s_and_b32 s%d, s2, 7\ns_lshr_b32 s%d, s2, 3" % (sT0, sT1))
    k("s_lshr_b32 s%d, s%d, 1\ns_lshl_b32 s%d, s%d, 3\ns_and_b32 s%d, s%d, 7\ns_add_u32 s%d, s%d, s%d" % (sMI, sT0, sMI, sMI, sT2, sT1, sMI, sMI, sT2))
    k("s_and_b32 s%d, s%d, 1\ns_lshl_b32 s%d, s%d, 2\ns_lshr_b32 s%d, s%d, 3\ns_add_u32 s%d, s%d, s%d" % (sNI, sT0, sNI, sNI, sT2, sT1, sNI, sNI, sT2))
    X_, D_, ST_, PFr, tA, tB, tC = AR, AR+10, AR+20, AR+24, AR+32, AR+33, AR+34
    k("v_bfe_u32 v%d, v%d, 1, 2\nv_xor_b32 v%d, v%d, v%d\nv_mul_u32_u24 v%d, 320, v%d\nv_lshl_add_u32 v%d, v%d, 4, v%d" % (tA, vM, tA, tA, vG, vOut, vM, vOut, tA, vOut))
    k("v_lshlrev_b32 v%d, 4, v%d\nv_add_u32 v%d, 4096, v%d" % (vB0, vL, vB1, vB0))
    for f in range(4): k("s_xor_b32 s%d, s%d, %d\ns_lshl_b32 s%d, s%d, 10\nv_add_u32 v%d, s%d, v%d" % (sT0, sP, f, sT0, sT0, vA[f], sT0, vB0))
    k("s_mul_i32 s%d, s%d, %d\ns_mul_i32 s%d, s%d, %d\ns_add_u32 s%d, s%d, 0x%x" % (sBb[0], sMI, 88*4096, sBb[1], sNI, 88*5120, sBb[1], sBb[1], B2_OFF))
    for g, (mul, add) in enumerate(((8, 0), (4, 32), (10, 48))):
        k("s_mul_i32 s%d, s%d, %d\ns_add_u32 s%d, s%d, %d" % (sAb[g], sP, mul, sAb[g], sAb[g], add))
    def region(dst, src):
        k("s_and_b32 s%d, s%d, 1\ns_mul_i32 s%d, s%d, 25600\ns_cmp_lt_u32 s%d, 2\ns_cselect_b32 s%d, %d, 0\ns_add_u32 s%d, s%d, s%d" % (dst, src, dst, dst, src, sT0, 2*SL, dst, dst, sT0))
    region(sR, sP)
    k("v_add_u32 v%d, s%d, v%d\nv_add_u32 v%d, s%d, v%d" % (vLd, sR, vB0, vOut, sR, vOut))
    k("s_lshl_b32 s%d, s%d, 2\ns_add_u32 s%d, s%d, s%d\ns_mul_i32 s%d, s%d, %d\ns_add_u32 s%d, s%d, 0x%x" % (sSh, sMI, sSh, sSh, sP, sSh, sSh, FLS_, sSh, sSh, FL_OFF))
    k("v_and_b32 v%d, 15, v%d\nv_lshlrev_b32 v%d, 2, v%d\nv_mov_b32 v%d, %d" % (vFa, vL, vFa, vFa, PFr+2, FLG+32))
    k("s_waitcnt vmcnt(0)\nds_write_b32 v72, v73")
    steps = [(0, i) for i in (0, 2, 4, 6, 1, 3, 5, 7)] + [(1, i) for i in range(4)] + [(2, i) for i in range(10)]
    fgrp = {0: 0, 4: 3, 8: 1, 12: 2}
    NS = len(steps)
    sK = list(range(16, 32)) + list(range(34, 40))
    ROT = opt("rot", 0)
    k("s_lshr_b32 s%d, s2, 3\ns_and_b32 s%d, s%d, 7\ns_lshr_b32 s%d, s%d, 3" % (sT1, sT0, sT1, sT1, sT1))
    if ROT:
        k("s_add_u32 s%d, s%d, s%d\ns_and_b32 s%d, s%d, 3" % (sT2, sT0, sT1, sT2, sT2))
        k("s_mul_i32 s%d, s%d, 3\ns_add_u32 s%d, s%d, s%d\ns_cmp_ge_u32 s%d, 10\ns_cselect_b32 s%d, 10, 0\ns_sub_u32 s%d, s%d, s%d" % (sT3, sT1, sT3, sT3, sT0, sT3, sT0, sT3, sT3, sT0))
    else:
        k("s_mov_b32 s%d, 0\ns_mov_b32 s%d, 0" % (sT2, sT3))
    for j in range(4):
        k("s_add_u32 s%d, s%d, %d\ns_and_b32 s%d, s%d, 3\ns_add_u32 s%d, s%d, s%d\ns_lshl_b32 s%d, s%d, 1\ns_add_u32 s%d, s%d, s%d\ns_add_u32 s%d, s%d, 1" %
          (sT0, sT2, j, sT0, sT0, sK[8+j], sT0, sAb[1], sT0, sT0, sK[j], sT0, sAb[0], sK[4+j], sK[j]))
    for j in range(10):
        k("s_add_u32 s%d, s%d, %d\ns_cmp_ge_u32 s%d, 10\ns_cselect_b32 s%d, 10, 0\ns_sub_u32 s%d, s%d, s%d\ns_add_u32 s%d, s%d, s%d" % (sT0, sT3, j, sT0, sT1, sT0, sT0, sT1, sK[12+j], sT0, sAb[2]))
    LS = [[7, 10, 13, 16, 19], [17, 18, 19, 20, 21], [9, 12, 15, 18, 21], [13, 15, 17, 19, 21], [], [20, 21]][opt("lsl", 0)]
    NA, NB = 4, 5
    vm = []
    THR = opt("thr", 0)
    def ldB(s, buf):
        g, i = steps[s]
        o = (["s_waitcnt vmcnt(%d)" % THR] if THR else []) + ["s_mul_i32 s%d, s%d, 5120\ns_add_u32 s%d, s%d, s%d" % (sT1, sK[s], sT1, sT1, sBb[1])]
        for f in range(5):
            o.append("buffer_load_dwordx4 %s, v%d, %s, s%d offen offset:%d%s" % (vr(BR+buf*20+f*4, 4), vB1 if f == 4 else vB0, sq(SWS), sT1, (f & 3)*1024, LD2))
            vm.append(("B", s))
        return o
    def ldA(s):
        g, i = steps[s]
        o = (["s_waitcnt vmcnt(%d)" % THR] if THR else []) + ["s_lshl_b32 s%d, s%d, 12\ns_add_u32 s%d, s%d, s%d" % (sT0, sK[s], sT0, sT0, sBb[0])]
        for f in range(4):
            o.append("buffer_load_dwordx4 %s, v%d, %s, s%d offen%s" % (vr(AR+(s % NA)*16+f*4, 4), vA[f], sq(SWS), sT0, LD2))
            vm.append(("A", s))
        return o
    def vwait(tags):
        idx = max(i for i, x in enumerate(vm) if x in tags)
        return min(63, len(vm)-1-idx)
    bbuf = {}
    k("L_k1_p2e:")
    k("ds_read_b128 %s, v%d\ns_waitcnt lgkmcnt(0)\nv_min_u32 v%d, v%d, v%d\nv_readfirstlane_b32 s%d, v%d\nv_readfirstlane_b32 s%d, v%d" % (vr(PFr+4, 4), PFr+2, PFr+6, PFr+6, PFr+7, sNon, PFr+6, sT0, PFr+5))
    k("s_cmp_lt_u32 s%d, %d\ns_cselect_b32 s%d, 0, s%d\ns_cmp_lg_u32 s%d, 0\ns_cbranch_scc1 L_k1_p2eo\ns_sleep 1\ns_branch L_k1_p2e\nL_k1_p2eo:" % (sT0, opt("bgate", 10), sT0, sNon, sT0))
    streamed = [s for s in range(NS) if s not in LS]
    NPRE = opt("npre", NB)
    for j in range(NB):
        bbuf[streamed[j]] = j
        if j < NPRE:
            for x in ldB(streamed[j], j): k(x)
    nextB = NB
    srd(k, SO, pOut, 2048*640*4)
    k("v_mov_b32 v%d, %d" % (AR+40, FLG))
    k("s_and_b32 s%d, s%d, 2\ns_add_u32 s%d, s%d, 18" % (sT1, sP, sT1, sT1))
    stamp(k, 2)
    wait_done("L_k1_p2w", "s%d" % sT1, AR+40, AR+44)
    for j, s_ in enumerate(LS):
        g, i = steps[s_]
        if THR: k("s_waitcnt vmcnt(%d)" % THR)
        k("s_add_u32 m0, s%d, %d\ns_mul_i32 s%d, s%d, 5120\ns_add_u32 s%d, s%d, s%d" % (sR, j*5120, sT1, sK[s_], sT1, sT1, sBb[1]))
        for f in range(4):
            k("buffer_load_dwordx4 v%d, %s, s%d offen offset:%d%s lds" % (vB0, sq(SWS), sT1, f*1024, LD2)); vm.append(("L", s_))
        k("s_add_u32 m0, s%d, %d" % (sR, j*5120+4096))
        k("buffer_load_dwordx4 v%d, %s, s%d offen%s lds" % (vB1, sq(SWS), sT1, LD2)); vm.append(("L", s_))
    if opt("tb", 0):
        assert not ROT
        rest = streamed[NB:]
        tv, tj = AR+40, AR+41
        k("v_mul_u32_u24 v%d, 52, v%d\nv_lshrrev_b32 v%d, 8, v%d" % (tj, vL, tj, tj))
        k("v_mov_b32 v%d, s%d" % (tv, sK[rest[0]]))
        for j in range(1, len(rest)):
            k("v_cmp_le_u32 vcc, %d, v%d\nv_mov_b32 v%d, s%d\nv_cndmask_b32 v%d, v%d, v%d, vcc" % (j, tj, AR+42, sK[rest[j]], tv, tv, AR+42))
        k("v_mul_u32_u24 v%d, 5, v%d\nv_sub_u32 v%d, v%d, v%d" % (tj, tj, tj, vL, tj))
        k("s_lshr_b32 s%d, s2, 3\ns_and_b32 s%d, s%d, 7\ns_mul_i32 s%d, s%d, 640\ns_add_u32 s%d, s%d, s%d" % (sT0, sT0, sT0, sT0, sT0, sT0, sT0, sBb[1]))
        k("v_mul_u32_u24 v%d, 5120, v%d\nv_lshl_add_u32 v%d, v%d, 7, v%d" % (tv, tv, tv, tj, tv))
        k("buffer_load_dword v%d, v%d, %s, s%d offen%s" % (vFl, tv, sq(SWS), sT0, LD2)); vm.append(("T", 0))
    stamp(k, 3)
    def flag_load(g):
        vm.append(("F", 0))
        return "buffer_load_dword v%d, v%d, %s, s%d offen offset:%d%s" % (vFl, vFa, sq(SWS), sSh, 0, PSC_)
    def flag_check(g):
        lab = "L_k1_fc%d" % g
        k("s_waitcnt vmcnt(%d)" % vwait([("F", 0)]))
        k("s_mov_b32 s%d, 0\ns_branch %s_c" % (sT3, lab))
        k("%s_r:" % lab)
        k("s_sleep %d\n%s_r2:\nbuffer_load_dword v%d, v%d, %s, s%d offen offset:%d%s\ns_waitcnt vmcnt(0)" % (opt("psl", 8), lab, vFl, vFa, sq(SWS), sSh, 0, PSC_))
        k("%s_c:" % lab)
        k("v_cmp_ne_u32 vcc, s%d, v%d" % (sNon, vFl))
        k("s_add_u32 s%d, s%d, 1" % (sT3, sT3))
        k("s_and_b32 s%d, vcc_lo, 0x%x\ns_cbranch_scc0 %s_d" % (sT0, 15 << (4*g), lab))
        k("s_cmp_eq_u32 s%d, 1\ns_cbranch_scc1 %s_r2\ns_cmp_lt_u32 s%d, 0x40000\ns_cbranch_scc1 %s_r" % (sT3, lab, sT3, lab))
        k("%s_d:" % lab)
        if opt("p2t", 0): k("s_memrealtime s[100:101]\ns_waitcnt lgkmcnt(0)\nv_writelane_b32 v1, s100, %d\nv_writelane_b32 v1, s%d, %d" % (32+g, sT3, 40+g))
    if opt("pd", 0): k("s_waitcnt vmcnt(0)\ns_sleep %d" % opt("pd", 0))
    k(flag_load(0))
    flag_check(0)
    stamp(k, 4)
    for s_ in range(NB):
        if s_ < NA:
            for x in ldA(s_): k(x)
        if s_ >= NPRE:
            for x in ldB(streamed[s_], s_): k(x)
    LEAD = {4: opt("ld3", 1), 8: opt("ld1", 2), 12: opt("ld2_", 2)}
    chkpos = {g: g - 1 - LEAD[g] for g in LEAD}
    nextA = NA
    FA = opt("fa", 3)
    pend = []
    for s_ in range(NS):
        fill = pend; pend = []
        need = [("A", s_)] + ([("B", s_)] if s_ not in LS else [])
        mf_ = []
        for f in range(4):
            for cb in range(5):
                c = AC + (f*5+cb)*4
                mf_.append("v_mfma_f32_16x16x32_bf16 %s, %s, %s, %s" % (vr(c, 4), vr(BR+bbuf[s_]*20+cb*4, 4), vr(AR+(s_ % NA)*16+f*4, 4), vr(c, 4) if s_ else "0"))
        if opt("ilv", 1):
            nf = sum(1 for x in fill if x.startswith("buffer_load"))
            k("s_waitcnt vmcnt(%d)%s" % (max(0, vwait(need)-nf), " lgkmcnt(0)" if s_ in LS else ""))
            if opt("p2t", 0): k("s_memrealtime s[100:101]")
            interleave(k, mf_, fill, per=1)
            if opt("p2t", 0): k("s_waitcnt lgkmcnt(0)\nv_writelane_b32 v1, s100, %d" % s_)
        else:
            for x in fill: k(x)
            k("s_waitcnt vmcnt(%d)%s" % (vwait(need), " lgkmcnt(0)" if s_ in LS else ""))
            if opt("p2t", 0): k("s_memrealtime s[100:101]")
            for x in mf_: k(x)
            if opt("p2t", 0): k("s_waitcnt lgkmcnt(0)\nv_writelane_b32 v1, s100, %d" % s_)
        for g_ in chkpos:
            if chkpos[g_] == s_:
                if fgrp[g_] == 2: stamp(k, 0)
                flag_check(fgrp[g_])
                if fgrp[g_] == 2: stamp(k, 7)
        while nextA < NS and nextA <= s_ + NA and all(not (g_ <= nextA and chkpos[g_] > s_) for g_ in chkpos):
            pend += ldA(nextA); nextA += 1
        fb = bbuf[s_]
        if s_+2 in LS:
            bbuf[s_+2] = fb
            j = LS.index(s_+2)
            pend.append("s_waitcnt vmcnt(%d)" % vwait([("L", s_+2)]))
            for f in range(5): pend.append("ds_read_b128 %s, v%d offset:%d" % (vr(BR+fb*20+f*4, 4), vLd, j*5120+f*1024))
        elif nextB < len(streamed):
            bbuf[streamed[nextB]] = fb
            pend += ldB(streamed[nextB], fb); nextB += 1
        for g_ in chkpos:
            if chkpos[g_] == s_+FA: pend.insert(0, None); fl_ = fgrp[g_]
        if pend and pend[0] is None:
            nl = sum(1 for x in pend[1:] if x.startswith("buffer_load"))
            txt = flag_load(fl_); vm.pop(); vm.insert(len(vm)-nl, ("F", 0)); pend[0] = txt
    stamp(k, 5)
    OSC = ["", " sc1", " nt", " sc0 sc1"][opt("osc", 1)]
    for f in (1, 2, 3, 0):
        for cb in range(5): k("ds_write_b128 v%d, %s offset:%d" % (vOut, vr(AC+(f*5+cb)*4, 4), f*5120+cb*64))
    for f in range(1, 4):
        k("s_xor_b32 s%d, s%d, %d" % (sT2, sP, f))
        region(sT1, sT2)
        k("v_add_u32 v%d, s%d, v%d" % (vA[f], sT1, vB0))
    k("s_mul_i32 s%d, s%d, %d\ns_add_u32 s%d, s%d, %d\nv_add_u32 v%d, s%d, v%d" % (sT1, sP, 80*TRP, sT1, sT1, TRB, vA[0], sT1, vB0))
    GO = BR + 40
    k("v_lshrrev_b32 v%d, 4, v%d" % (vFl, vB0))
    k("s_lshl_b32 s%d, s%d, 6\ns_lshl_b32 s%d, s%d, 2\ns_add_u32 s%d, s%d, s%d\ns_mul_i32 s%d, s%d, 2560\ns_mul_i32 s%d, s%d, 320\ns_add_u32 s%d, s%d, s%d" % (sT0, sMI, sT1, sP, sT0, sT0, sT1, sT0, sT0, sT1, sNI, sT3, sT0, sT1))
    R5 = range(5)
    e_, r_, q_, t_ = GO+5, GO+10, GO+15, GO+20
    for it in R5: k("v_add_u32 v%d, %d, v%d" % (e_+it, it*64, vFl))
    for it in R5: k("v_mul_u32_u24 v%d, 205, v%d" % (r_+it, e_+it))
    for it in R5: k("v_lshrrev_b32 v%d, 12, v%d" % (r_+it, r_+it))
    for it in R5: k("v_mul_u32_u24 v%d, 20, v%d\nv_bfe_u32 v%d, v%d, 1, 2" % (q_+it, r_+it, t_+it, r_+it))
    for it in R5: k("v_sub_u32 v%d, v%d, v%d" % (q_+it, e_+it, q_+it))
    for it in R5: k("v_xor_b32 v%d, v%d, v%d\nv_lshrrev_b32 v%d, 2, v%d" % (q_+it, q_+it, t_+it, t_+it, r_+it))
    for it in R5: k("v_mad_u32_u24 v%d, v%d, 12, v%d" % (r_+it, t_+it, r_+it))
    for it in R5: k("v_mul_u32_u24 v%d, 2560, v%d" % (r_+it, r_+it))
    for it in R5: k("v_lshl_add_u32 v%d, v%d, 4, v%d" % (GO+it, q_+it, r_+it))
    k("s_waitcnt lgkmcnt(0)\ns_barrier")
    for it in R5:
        for f in range(5):
            a_, off = (vA[f], f*5120) if f < 4 else (vLd, 0)
            if f == 0: off = 0
            k("ds_read_b128 %s, v%d offset:%d" % (vr(AR+(it*5+f)*4, 4), a_, off+it*1024))
        if it == 2: k("s_waitcnt lgkmcnt(5)")
    for it in R5:
        k("s_waitcnt lgkmcnt(%d)" % min(15, 20-5*it))
        q = AR+it*20
        for h in range(0, 4, 2):
            k("v_pk_add_f32 %s, %s, %s\nv_pk_add_f32 %s, %s, %s" % (vr(q+h, 2), vr(q+h, 2), vr(q+4+h, 2), vr(q+8+h, 2), vr(q+8+h, 2), vr(q+12+h, 2)))
        for h in range(0, 4, 2): k("v_pk_add_f32 %s, %s, %s" % (vr(q+h, 2), vr(q+h, 2), vr(q+16+h, 2)))
        for h in range(0, 4, 2): k("v_pk_add_f32 %s, %s, %s" % (vr(q+h, 2), vr(q+h, 2), vr(q+8+h, 2)))
        k("buffer_store_dwordx4 %s, v%d, %s, s%d offen%s" % (vr(q, 4), GO+it, sq(SO), sT3, OSC))
    stamp(k, 6)
    if opt("p2t", 0):
        k("s_lshl_b32 s83, s2, 11\ns_add_u32 s83, s83, 0x%x\nv_lshl_add_u32 v12, v0, 2, s83" % (STAMP_OFF + 0x40000))
        k("global_store_dword v12, v1, %s" % sp(pWs))
    stamp_out(k, 0, 8, pWs, 76)
    k("s_endpgm")

    k("L_k1_C:")
    k("s_setprio 3")
    aX = [12, 13]; aW = [14, 15, 16, 17]
    XS = [20, 36]
    WR = 52
    ACC = 84
    k("v_lshrrev_b32 v%d, 1, v%d\nv_xor_b32 v%d, v%d, v%d\nv_lshlrev_b32 v%d, 4, v%d" % (vT[0], vM, vT[0], vT[0], vG, vT[0], vT[0]))
    k("v_lshl_add_u32 v%d, v%d, 7, v%d" % (vT[5], vM, vT[0]))
    k("s_lshl_b32 s%d, s%d, 13" % (sT0, sMH))
    k("v_add_u32 v%d, s%d, v%d\nv_xor_b32 v%d, 64, v%d" % (aX[0], sT0, vT[5], aX[1], aX[0]))
    k("v_lshrrev_b32 v%d, 2, v%d\nv_lshl_add_u32 v%d, v%d, 3, v%d\nv_lshlrev_b32 v%d, 7, v%d" % (vT[0], vM, vT[0], vG, vT[0], vT[0], vT[0]))
    k("v_and_b32 v%d, 1, v%d\nv_lshlrev_b32 v%d, 1, v%d\nv_lshrrev_b32 v%d, 3, v%d\nv_or_b32 v%d, v%d, v%d" % (vT[1], vG, vT[1], vT[1], vT[2], vM, vT[1], vT[1], vT[2]))
    k("v_lshl_add_u32 v%d, v%d, 5, v%d" % (vT[0], vT[1], vT[0]))
    k("v_and_b32 v%d, 3, v%d\nv_lshl_add_u32 v%d, v%d, 3, v%d\nv_add_u32 v%d, 16384, v%d" % (vT[1], vM, vT[0], vT[1], vT[0], vT[0], vT[0]))
    k("s_lshl_b32 s%d, s%d, 1\ns_add_u32 s%d, s%d, s%d" % (sC, sI, sC, sC, sMH))
    k("s_mov_b32 s%d, 0\ns_mov_b32 s%d, 0" % (sIt, sRd))
    k("s_cmp_eq_u32 s%d, 1\ns_cbranch_scc1 L_k1_CB" % sTY)

    def c_loop(tag, frags, R, D, WR, addr_regs, post):
        n = len(frags); N = 2*n
        assert N % R == 0
        def wreg(p): return WR + (p % R)*4
        def rdW(p): return frags[p % n][0]((p % N)//n, wreg(p))
        def rdX(h): return ["ds_read_b128 %s, v%d offset:%d" % (vr(XS[h]+4*b, 4), aX[h], b*2048) for b in range(4)]
        def mf(p): return [frags[p % n][1](b, XS[(p % N)//n]+4*b, wreg(p)) for b in range(4)]
        adv = ["s_mov_b32 s%d, %d\ns_add_u32 s%d, s%d, 1\ns_cmp_eq_u32 s%d, 3\ns_cselect_b32 s%d, 0, s%d\ns_cselect_b32 s%d, %d, s%d" % (sDelta, SL, sRd, sRd, sRd, sRd, sRd, sDelta, (-2*SL) & 0xffffffff, sDelta)]
        adv += ["v_add_u32 v%d, s%d, v%d" % (r, sDelta, r) for r in addr_regs]
        vFl, vFa, vDa, vDv = 18, vT[1], vT[2], vT[3]
        sF = sA
        import re as _re
        FLS = N - opt("fl", 3)
        def build():
            mfs = []; gaps = [[] for _ in range(4*N)]
            for j in range(N):
                loads = [("ld", x, ("W", j)) for x in rdW(j)]
                if j == 0: loads = [("ld", x, ("X0", b)) for b, x in enumerate(rdX(0)[:2])] + loads
                if j == 1: loads = [("ld", x, ("X0", b+2)) for b, x in enumerate(rdX(0)[2:])] + loads
                if D <= j < D+4: loads += [("ld", rdX(1)[j-D], ("X1", j-D))]
                if j == FLS: loads += [("ld", "ds_read_b64 %s, v%d " % (vr(vFl, 2), vFa), ("F", 0))]
                if j == N-1 or j == max(n-1, D+3): loads += [("ld", "ds_write_b32 v%d, v%d" % (vDa, vDv), ("DW", j))]
                p = j - D
                ms = mf(p % N)
                for b in range(4):
                    need = [("W", p % N)] + [("X%d" % ((p % N)//n), bb) for bb in range(4)]
                    mfs.append(("mf", ms[b], (need, p < 0)))
                    if b < 3:
                        if loads: gaps[j*4+b].append(loads.pop(0))
                    else: gaps[j*4+b] += loads
            def place(e, lo, hi=4*N-1):
                for cap in (0, 1, 2, 3):
                    for g in range(lo, hi+1):
                        if len(gaps[g]) + (1 if g % 4 == 3 else 0) <= cap:
                            gaps[g].append(e); return g
                raise Exception
            g = 4*D
            def place_s(txt, lo):
                for g in range(lo, 4*N):
                    if len(gaps[g]) + (1 if g % 4 == 3 else 0) <= 1:
                        gaps[g].append(("x", txt, None)); return g
            for txt in ("s_add_u32 s%d, s%d, 1" % (sRd, sRd), "s_cmp_eq_u32 s%d, 3" % sRd, "s_cselect_b32 s%d, s14, s15" % sDelta, "s_cselect_b32 s%d, 0, s%d" % (sRd, sRd), "s_add_u32 s%d, s%d, 1" % (sIt, sIt)):
                g = place_s(txt, g) + 1
            gd = g
            mid = max(n-1, D+3)
            place_s("v_add_u32 v%d, 1, v%d" % (vDv, vDv), gd)
            place(("x", "v_add_u32 v%d, 1, v%d" % (vDv, vDv), None), 4*mid+4, 4*(N-1)-1)
            g1 = place(("use", "v_min_u32 v%d, v%d, v%d" % (vFl, vFl, vFl+1), ([("F", 0)], False)), 4*(N-2)+2, 4*N-4)
            gaps[g1+1].append(("x", "v_readfirstlane_b32 s%d, v%d" % (sF, vFl), None))
            gaps[4*N-2].append(("x", "s_cmp_gt_u32 s%d, s%d" % (sF, sIt), None))
            for r in addr_regs:
                last = max(g for g in range(4*N) for x in gaps[g] if x[0] == "ld" and _re.search(r", v%d " % r, x[1]+" "))
                place(("x", "v_add_u32 v%d, s%d, v%d" % (r, sDelta, r), None), min(max(last+1, gd), 4*N-1))
            seq = []
            for m_, gp in zip(mfs, gaps): seq += [m_] + gp
            return seq
        def emit(seq, prev):
            issued = [(t, True) for t in prev]
            cur = 99
            for kind, text, tg in seq:
                if kind == "ld": issued.append((tg, False)); cur += 1
                elif kind == "lab": cur = 99
                elif kind in ("mf", "use"):
                    w = 15
                    for t in tg[0]:
                        idx = max(i for i, x in enumerate(issued) if x == (t, tg[1]))
                        w = min(w, len(issued)-1-idx)
                    if w < cur:
                        k("s_waitcnt lgkmcnt(%d)" % w); cur = w
                k(text)
        L = "L_k1_cl" + tag
        k("v_mov_b32 v%d, %d\nv_mov_b32 v%d, 0\ns_mov_b32 s14, %d\ns_mov_b32 s15, %d" % (vFa, FLG+16, vDv, (-2*SL) & 0xffffffff, SL))
        k("s_lshl_b32 s%d, s%d, 2\ns_add_u32 s%d, s%d, %d\nv_mov_b32 v%d, s%d" % (sT0, sW, sT0, sT0, FLG, vDa, sT0))
        s2 = build()
        allld = [x[2] for x in s2 if x[0] == "ld"]
        idx2 = next(i for i, x in enumerate(s2) if x[0] == "mf" and not x[2][1])
        k("%s_sp:" % L)
        k("ds_read_b64 %s, v%d\ns_waitcnt lgkmcnt(0)\nv_min_u32 v%d, v%d, v%d\nv_readfirstlane_b32 s%d, v%d" % (vr(vFl, 2), vFa, vFl, vFl, vFl+1, sF, vFl))
        k("s_cmp_gt_u32 s%d, s%d\ns_cbranch_scc0 %s_sp" % (sF, sIt, L))
        k("s_cmp_lg_u32 s%d, 0\ns_cbranch_scc1 %s" % (sIt, L))
        stamp(k, 5)
        for x in s2[:idx2]:
            if x[0] == "ld": k(x[1])
        k("s_branch %s_mid" % L)
        k(".p2align 6")
        k("%s:" % L)
        trace(sIt, 4, 1)
        if opt("clk", 0):
            k("s_cmp_lg_u32 s%d, 5\ns_cbranch_scc1 %s_nc\ns_memrealtime s[84:85]\ns_memtime s[90:91]\n%s_nc:" % (sIt, L, L))
        s2 = s2[:idx2] + [("lab", "%s_mid:" % L, None)] + s2[idx2:]
        emit(s2, allld)
        if TRACE:
            trace(sIt, 4, 0)
            k("s_cmp_gt_u32 s%d, s%d" % (sF, sIt))
        k("s_cbranch_scc1 %s" % L)
        k("s_cmp_lt_u32 s%d, 10\ns_cbranch_scc1 %s_sp" % (sIt, L))
        if opt("cprio", 3) != 3: k("s_setprio %d" % opt("cprio", 3))
        if opt("clk", 0): k("s_memrealtime s[94:95]\ns_memtime s[96:97]")
        k("ds_read_b64 %s, v%d offset:8" % (vr(vFl, 2), vFa))
        k("s_waitcnt lgkmcnt(6)")
        for x in mf(N-D): k(x)
        k("s_branch %s_ec" % L)
        k("%s_es:" % L)
        k("ds_read_b64 %s, v%d offset:8" % (vr(vFl, 2), vFa))
        k("%s_ec:" % L)
        k("s_waitcnt lgkmcnt(0)")
        k("v_min_u32 v%d, v%d, v%d\nv_readfirstlane_b32 s%d, v%d" % (vFl, vFl, vFl+1, sNon, vFl))
        k("s_cmp_eq_u32 s%d, 0\ns_cbranch_scc1 %s_es" % (sNon, L))
        tail = []
        for p in range(N-D+1, N): tail += mf(p)
        interleave(k, tail, post(), lead=2, per=1)

    c0 = -2*math.sqrt(2/math.pi)*LOG2E
    def ffn_epilogue(ACCF, ncb, S4, Mb, RSb, Sb, T, O, K0, vSt, blocks, defer=None):
        for bi, (b, pr_) in enumerate(blocks):
            sel = b & 1
            bc = lambda base: vr(base + (b & ~1), 2)
            os0 = " op_sel:[%d,0,0] op_sel_hi:[%d,1,1]" % (sel, sel)
            items = [(cb, hh) for cb in (2*pr_, 2*pr_+1) for hh in range(2)]
            G = lambda cb, hh: ACCF + (cb*4+b)*4 + 2*hh
            U = lambda cb, hh: ACCF + ((ncb+cb)*4+b)*4 + 2*hh
            Tm = lambda cb, hh: T + (cb & 1)*4 + 2*hh
            for cb, hh in items: k("v_pk_fma_f32 %s, %s, %s, %s%s neg_lo:[1,0,0] neg_hi:[1,0,0]" % (vr(G(cb,hh),2), bc(Mb), vr(S4+cb*4+2*hh,2), vr(G(cb,hh),2), os0))
            for cb, hh in items: k("v_pk_mul_f32 %s, %s, %s op_sel:[%d,0] op_sel_hi:[%d,1]" % (vr(G(cb,hh),2), bc(RSb), vr(G(cb,hh),2), sel, sel))
            for cb, hh in items: k("v_pk_mul_f32 %s, %s, %s" % (vr(Tm(cb,hh),2), vr(G(cb,hh),2), vr(G(cb,hh),2)))
            for cb, hh in items: k("v_pk_fma_f32 %s, %s, %s, %s op_sel:[0,0,1] op_sel_hi:[1,0,1]" % (vr(Tm(cb,hh),2), vr(Tm(cb,hh),2), vr(K0,2), vr(K0,2)))
            for cb, hh in items: k("v_pk_mul_f32 %s, %s, %s" % (vr(Tm(cb,hh),2), vr(Tm(cb,hh),2), vr(G(cb,hh),2)))
            for cb, hh in items:
                k("v_exp_f32 v%d, v%d\nv_exp_f32 v%d, v%d" % (Tm(cb,hh), Tm(cb,hh), Tm(cb,hh)+1, Tm(cb,hh)+1))
                k("v_pk_fma_f32 %s, %s, %s, %s%s neg_lo:[1,0,0] neg_hi:[1,0,0]" % (vr(U(cb,hh),2), bc(Mb), vr(S4+(ncb+cb)*4+2*hh,2), vr(U(cb,hh),2), os0))
            for cb, hh in items: k("v_pk_fma_f32 %s, %s, %s, %s op_sel:[0,%d,%d] op_sel_hi:[1,%d,%d]" % (vr(Tm(cb,hh),2), vr(Tm(cb,hh),2), bc(Sb), bc(Sb), sel, sel, sel, sel))
            for cb, hh in items:
                k("v_rcp_f32 v%d, v%d\nv_rcp_f32 v%d, v%d" % (Tm(cb,hh), Tm(cb,hh), Tm(cb,hh)+1, Tm(cb,hh)+1))
                k("v_pk_mul_f32 %s, %s, %s" % (vr(G(cb,hh),2), vr(G(cb,hh),2), vr(U(cb,hh),2)))
            for cb, hh in items: k("v_pk_mul_f32 %s, %s, %s" % (vr(G(cb,hh),2), vr(G(cb,hh),2), vr(Tm(cb,hh),2)))
            Ob = O + (bi & 1)*4 if defer is None else O[bi]
            for j_, (cb, hh) in enumerate(items): k("v_cvt_pk_bf16_f32 v%d, v%d, v%d" % (Ob+j_, G(cb,hh), G(cb,hh)+1))
            if pr_: k("s_add_u32 s%d, s%d, 4096" % (sT0, sKS))
            st_ = "buffer_store_dwordx4 %s, v%d, %s, s%d offen offset:%d%s" % (vr(Ob, 4), vSt, sq(SWS), sT0 if pr_ else sKS, b*1024, S1)
            if defer is None: k(st_)
            else: defer.append(st_)

    def a2_flag(group, nwait, va, vv):
        k("s_lshl_b32 s%d, s%d, 2\ns_lshr_b32 s%d, s%d, 1\ns_add_u32 s%d, s%d, s%d\ns_mul_i32 s%d, s%d, %d" % (sT0, sC, sT1, sJJ, sT0, sT0, sT1, sT0, sT0, FLS_))
        k("s_and_b32 s%d, s%d, 1\ns_lshl_b32 s%d, s%d, 1\ns_add_u32 s%d, s%d, s%d\ns_mul_i32 s%d, s%d, %d\ns_add_u32 s%d, s%d, s%d\ns_add_u32 s%d, s%d, 0x%x" % (sT1, sJJ, sT1, sT1, sT1, sT1, sNH, sT1, sT1, FSP, sT0, sT0, sT1, sT0, sT0, FL_OFF + group*FGS))
        k("v_mov_b32 v%d, s%d\nv_mov_b32 v%d, s%d" % (va, sT0, vv, sNon))
        k("s_waitcnt vmcnt(%d)\ns_mov_b64 exec, 1" % nwait)
        k("buffer_store_dword v%d, v%d, %s, 0 offen%s\ns_mov_b64 exec, -1" % (vv, va, sq(SWS), SC))

    def base_loads(R):
        k("s_and_b32 s%d, s2, 7\ns_lshr_b32 s%d, s2, 3" % (sT0, sT1))
        k("s_lshr_b32 s%d, s%d, 1\ns_lshl_b32 s%d, s%d, 3\ns_and_b32 s%d, s%d, 7\ns_add_u32 s%d, s%d, s%d" % (sT3, sT0, sT3, sT3, sT2, sT1, sT3, sT3, sT2))
        k("s_and_b32 s%d, s%d, 1\ns_lshl_b32 s%d, s%d, 2\ns_lshr_b32 s%d, s%d, 3\ns_add_u32 s%d, s%d, s%d\ns_mul_i32 s%d, s%d, 80" % (sT0, sT0, sT0, sT0, sT2, sT1, sT0, sT0, sT2, sT0, sT0))
        k("s_lshl_b32 s%d, s%d, 6\ns_lshl_b32 s%d, s%d, 2\ns_add_u32 s%d, s%d, s%d" % (sT3, sT3, sT1, sW, sT3, sT3, sT1))
        ra, rb, rc = R+22, R+23, R+24
        k("v_lshrrev_b32 v%d, 2, v%d\nv_lshlrev_b32 v%d, 4, v%d\nv_and_b32 v%d, 3, v%d\nv_add3_u32 v%d, v%d, v%d, s%d" % (ra, vM, ra, ra, rb, vM, ra, ra, rb, sT3))
        k("v_lshl_add_u32 v%d, v%d, 2, s%d" % (rb, vG, sT0))
        k("v_mul_u32_u24 v%d, 640, v%d\nv_add_u32 v%d, v%d, v%d\nv_lshlrev_b32 v%d, 1, v%d\nv_lshlrev_b32 v%d, 1, v%d" % (rc, ra, rc, rc, rb, rc, rc, rb, rb))
        k("v_lshlrev_b32 v%d, 3, v%d\nv_add_u32 v%d, 0x%x, v%d" % (ra, ra, ra, RST_OFF, ra))
        for cb in range(5):
            k("global_load_dwordx2 %s, v%d, %s offset:%d" % (vr(R+2*cb, 2), rc, sp(pX), cb*32))
            k("global_load_dwordx2 %s, v%d, %s offset:%d" % (vr(R+10+2*cb, 2), rb, sp(pD), cb*32))
        k("buffer_load_dword v%d, v%d, %s, 0 offen%s" % (R+20, ra, sq(SWS), SC))
    def base_compute(R):
        k("s_setprio 0")
        ST_ = R+20; X4, D4, T4 = R+28, R+48, R+68
        k("s_mul_i32 s%d, s%d, %d\ns_add_u32 s%d, s%d, %d" % (sT0, sW, 80*TRP, sT0, sT0, TRB))
        k("v_bfe_u32 v%d, v%d, 1, 2\nv_xor_b32 v%d, v%d, v%d\nv_mul_u32_u24 v%d, 320, v%d\nv_lshl_add_u32 v%d, v%d, 4, v%d\nv_add_u32 v%d, s%d, v%d" % (R+23, vM, R+23, R+23, vG, R+22, vM, R+22, R+23, R+22, R+22, sT0, R+22))
        k("v_mov_b32 v%d, %d" % (R+23, FLG))
        wait_done("L_k1_bw%d" % R, "16", R+23, R+24)
        k("s_waitcnt vmcnt(0)")
        k("v_and_b32 v%d, s%d, v%d\nv_lshlrev_b32 v%d, 16, v%d\nv_rcp_f32 v%d, v%d" % (ST_+1, sMASK, ST_, ST_, ST_, ST_+1, ST_+1))
        for d in range(10): k("v_lshlrev_b32 v%d, 16, v%d\nv_and_b32 v%d, s%d, v%d\nv_lshlrev_b32 v%d, 16, v%d\nv_and_b32 v%d, s%d, v%d" % (X4+2*d, R+d, X4+2*d+1, sMASK, R+d, D4+2*d, R+10+d, D4+2*d+1, sMASK, R+10+d))
        def rnd():
            for h in range(10): k("v_cvt_pk_bf16_f32 v%d, v%d, v%d" % (T4+20+h, T4+2*h, T4+2*h+1))
            for h in range(10): k("v_lshlrev_b32 v%d, 16, v%d\nv_and_b32 v%d, s%d, v%d" % (T4+2*h, T4+20+h, T4+2*h+1, sMASK, T4+20+h))
        for r in range(20): k("v_sub_f32 v%d, v%d, v%d" % (T4+r, X4+r, ST_))
        rnd()
        for r in range(20): k("v_mul_f32 v%d, v%d, v%d" % (T4+r, T4+r, ST_+1))
        rnd()
        for r in range(20): k("v_mul_f32 v%d, v%d, v%d" % (T4+r, T4+r, D4+r))
        rnd()
        for r in range(20): k("v_add_f32 v%d, v%d, v%d" % (T4+r, T4+r, X4+r))
        for cb in range(5): k("ds_write_b128 v%d, %s offset:%d" % (R+22, vr(T4+4*cb, 4), cb*64))
        k("s_waitcnt lgkmcnt(0)")

    def ffn_frag(ACCF, idx, areg, gu):
        rd = lambda h, reg: ["ds_read_b64_tr_b16 %s, v%d offset:%d" % (vr(reg+2*jx, 2), areg, h*4096+jx*512+gu*8192) for jx in range(2)]
        mf = lambda b, x, w: "v_mfma_f32_16x16x32_bf16 %s, %s, %s, %s" % (vr(ACCF+(idx*4+b)*4, 4), vr(w, 4), vr(x, 4), vr(ACCF+(idx*4+b)*4, 4))
        return (rd, mf)

    k("s_lshl_b32 s%d, s%d, 14" % (sT0, sNH))
    k("v_add_u32 v%d, s%d, v%d" % (aW[0], sT0, vT[0]))
    for c in range(1, 4): k("v_xor_b32 v%d, %d, v%d" % (aW[c], 32*c, aW[0]))
    k("s_lshr_b32 s%d, s%d, 5\ns_lshl_b32 s%d, s%d, 1\ns_add_u32 s%d, s%d, s%d\ns_mul_i32 s%d, s%d, 88\ns_add_u32 s%d, s%d, s%d\ns_lshl_b32 s%d, s%d, 12" % (sT0, sCol, sT1, sNH, sT0, sT0, sT1, sT1, sC, sT0, sT0, sT1, sKS, sT0))
    for r in range(0, 128, 2): k("v_mov_b64 v[%d:%d], 0" % (ACC+r, ACC+r+1))
    srd(k, SWS, pWs, WS_NREC)
    E = 212
    S4 = E; Mb, RSb, Sb = XS[0], XS[0]+4, XS[0]+8; K0 = XS[0]+12
    def postA():
        o = ["s_lshl_b32 s%d, s%d, 9\ns_add_u32 s%d, s%d, %d\nv_lshl_add_u32 v%d, v%d, 4, s%d" % (sT0, sNH, sT0, sT0, SFF, vT[1], vG, sT0),
             "s_mul_i32 s%d, s%d, 768\ns_add_u32 s%d, s%d, %d\nv_lshl_add_u32 v%d, v%d, 2, s%d" % (sT0, sMH, sT0, sT0, STAT_M, vT[2], vM, sT0)]
        for b in range(0, 4, 2):
            for a, off in ((Mb, 0), (RSb, 64), (Sb, 128)):
                o.append("ds_read2_b32 %s, v%d offset0:%d offset1:%d" % (vr(a+b, 2), vT[2], off+b*16, off+b*16+16))
        for j in range(8): o.append("ds_read_b128 %s, v%d offset:%d" % (vr(S4+4*j, 4), vT[1], j*64))
        o += ["v_lshlrev_b32 v%d, 4, v%d" % (vT[3], vL), "v_mov_b32 v%d, %s\nv_mov_b32 v%d, %s" % (K0, f32(c0*0.044715), K0+1, f32(c0))]
        return o
    fr = []
    for cb in range(4):
        for gu in range(2): fr.append(ffn_frag(ACC, gu*4+cb, aW[cb], gu))
    c_loop("A", fr, 8, opt("da", 5), WR, aX + aW, postA)
    stamp(k, 1)
    k("s_waitcnt lgkmcnt(0)")
    blk = [(b, p) for p in range(2) for b in range(4)]
    HF = opt("hf", 6)
    ffn_epilogue(ACC, 4, S4, Mb, RSb, Sb, E+32, XS[1], K0, vT[3], blk[:HF])
    a2_flag(0, HF-4, vT[0], vT[1])
    ffn_epilogue(ACC, 4, S4, Mb, RSb, Sb, E+32, XS[1], K0, vT[3], blk[HF:])
    stamp(k, 2)
    a2_flag(3, 0, vT[0], vT[1])
    stamp(k, 4)
    k("s_branch L_k1_base")

    k("L_k1_CB:")
    WRB = 52
    ACCF = 76
    ACCS = 140
    ca = Alloc(220)
    cLr = ca(5); cMu = ca(5); cKk = ca(5); c16r = ca(5); c16k = ca(5); cKr = ca(10, 2)
    assert ca.n <= (255 if TRACE else 256) + 1
    k("s_lshl_b32 s%d, s%d, 6" % (sT0, sNH))
    k("v_xor_b32 v%d, s%d, v%d\nv_xor_b32 v%d, 32, v%d" % (aW[0], sT0, vT[0], aW[1], aW[0]))
    k("s_mul_i32 s%d, s%d, 10240\ns_add_u32 s%d, s%d, 32768" % (sT0, sNH, sT0, sT0))
    k("v_add_u32 v%d, s%d, v%d\nv_xor_b32 v%d, 64, v%d" % (aW[2], sT0, vT[5], aW[3], aW[2]))
    P = XS[0]
    param_loads(P, sNH, vT[0])
    k("s_lshr_b32 s%d, s%d, 5\ns_add_u32 s%d, s%d, s%d\ns_mul_i32 s%d, s%d, 88\ns_add_u32 s%d, s%d, s%d\ns_lshl_b32 s%d, s%d, 12" % (sT0, sCol, sT0, sT0, sNH, sT1, sC, sT0, sT0, sT1, sKS, sT0))
    srd(k, SWS, pWs, WS_NREC)
    for r in range(0, 144, 2): k("v_mov_b64 v[%d:%d], 0" % (ACCF+r, ACCF+r+1))
    k("s_lshl_b32 s%d, s%d, 1\ns_add_u32 s%d, s%d, s%d\ns_lshl_b32 s%d, s%d, 14\ns_add_u32 s%d, s%d, 0x%x" % (sT2, sJJ, sT2, sT2, sNH, sT0, sT2, sT0, sT0, CAR_OFF))
    srd(k, SP0, pWs, 16384, "s%d" % sT0)
    sSS = [68, 69, 70, 71, 79]
    k("s_mul_i32 s%d, s%d, 88\ns_add_u32 s%d, s%d, 48\ns_lshl_b32 s%d, s%d, 12" % (sT3, sC, sT3, sT3, sT3, sT3))
    k("s_mul_i32 s%d, s%d, 10\ns_mul_i32 s%d, s%d, 5\ns_add_u32 s%d, s%d, s%d" % (sT2, sJJ, sT0, sNH, sT2, sT2, sT0))
    for q in range(5):
        k("s_add_u32 s%d, s%d, %d\ns_lshr_b32 s%d, s%d, 1\ns_lshl_b32 s%d, s%d, 12\ns_and_b32 s%d, s%d, 1\ns_lshl_b32 s%d, s%d, 9" % (sT0, sT2, q, sT1, sT0, sT1, sT1, sT0, sT0, sT0, sT0))
        k("s_add_u32 s%d, s%d, s%d\ns_add_u32 s%d, s%d, s%d" % (sT0, sT0, sT1, sSS[q], sT0, sT3))
    k("s_waitcnt vmcnt(0)")
    lre, lim, t0, t1, cA2, cBt = P, P+5, P+16, P+21, P+32, P+37
    KR = [cKr+2*q for q in range(5)]
    param_ab(P, cA2, cBt, vT[4])
    cpow5(r5(cLr), r5(cMu), "1.0", t0, t1, cA2, cBt)
    cpow5(r5(c16r), r5(c16k), f32(16.0), t0, t1, cA2, cBt)
    for q in range(5): k("v_add_f32 v%d, -1.0, v%d\nv_mul_f32 v%d, v%d, v%d" % (t0+q, cLr+q, t1+q, lre+q, lre+q))
    for q in range(5): k("v_fmac_f32 v%d, v%d, v%d" % (t1+q, lim+q, lim+q))
    for q in range(5): k("v_rcp_f32 v%d, v%d" % (t1+q, t1+q))
    for q in range(5): k("v_mul_f32 v%d, v%d, v%d\nv_mul_f32 v%d, v%d, v%d" % (KR[q], t0+q, lre+q, cKk+q, cMu+q, lre+q))
    for q in range(5): k("v_fmac_f32 v%d, v%d, v%d\nv_fma_f32 v%d, -v%d, v%d, v%d" % (KR[q], cMu+q, lim+q, cKk+q, t0+q, lim+q, cKk+q))
    for q in range(5): k("v_add_f32 v%d, v%d, v%d" % (t1+q, t1+q, t1+q))
    for q in range(5): k("v_mul_f32 v%d, v%d, v%d\nv_mul_f32 v%d, v%d, v%d" % (KR[q], KR[q], t1+q, cKk+q, cKk+q, t1+q))
    for s in range(1, 4): k("v_cmp_eq_u32 %s, %d, v%d" % (sp(16+2*s), s, vG))
    def ssm_frag(q):
        rd = lambda h, reg: ["ds_read_b128 %s, v%d offset:%d" % (vr(reg, 4), aW[2+h], q*2048)]
        mf = lambda b, x, w: "v_mfma_f32_16x16x32_bf16 %s, %s, %s, %s" % (vr(ACCS+(q*4+b)*4, 4), vr(x, 4), vr(w, 4), vr(ACCS+(q*4+b)*4, 4))
        return (rd, mf)
    fr = [ssm_frag(q) for q in range(5)]
    for cb in range(2):
        for gu in range(2): fr.append(ffn_frag(ACCF, gu*2+cb, aW[cb], gu))
    M4 = XS[0]
    SQ = [247, 249, 251, 253, 245]
    def postB():
        o = ["s_mul_i32 s%d, s%d, 768\ns_add_u32 s%d, s%d, %d\nv_lshl_add_u32 v%d, v%d, 4, s%d\nv_lshl_add_u32 v%d, v%d, 2, s%d" % (sT0, sMH, sT0, sT0, STAT_M, vT[3], vG, sT0, vT[2], vM, sT0),
             "s_mul_i32 s%d, s%d, 384\ns_add_u32 s%d, s%d, %d\nv_lshl_add_u32 v%d, v%d, 2, s%d" % (sT0, sNH, sT0, sT0, SSS, vT[1], vM, sT0)]
        for b in range(4): o.append("ds_read_b128 %s, v%d offset:%d" % (vr(M4+4*b, 4), vT[3], b*64))
        for q in range(5): o.append("ds_read_b32 v%d, v%d offset:%d" % (SQ[q], vT[1], q*64))
        return o
    c_loop("B", fr, 6, opt("db", 5), WRB, aX + aW, postB)
    stamp(k, 1)
    RS4 = XS[1]
    for b in range(4): k("ds_read_b128 %s, v%d offset:%d" % (vr(RS4+4*b, 4), vT[3], 256+b*64))
    Z = [[ACCS + (q*4 + (t >> 2))*4 + (t & 3) for t in range(16)] for q in range(5)]
    H = [[52+q, 57+q] for q in range(5)]
    k("s_waitcnt lgkmcnt(4)")
    for t in range(0, 16, 2):
        for q in range(5): k("v_pk_fma_f32 %s, %s, %s, %s op_sel:[0,1,0] op_sel_hi:[1,1,1] neg_lo:[1,0,0] neg_hi:[1,0,0]" % (vr(Z[q][t], 2), vr(M4+t, 2), vr(SQ[q]-1, 2), vr(Z[q][t], 2)))
    k("s_waitcnt lgkmcnt(0)")
    for t in range(16):
        if t % 2 == 0:
            for q in range(5): k("v_pk_mul_f32 %s, %s, %s" % (vr(Z[q][t], 2), vr(RS4+t, 2), vr(Z[q][t], 2)))
        if t >= 1:
            prev = [Z[q][0] if t == 1 else H[q][t & 1] for q in range(5)]
            cur = [H[q][(t+1) & 1] for q in range(5)]
            for q in range(5): k("v_fma_f32 v%d, v%d, v%d, v%d" % (cur[q], cLr+q, prev[q], Z[q][t]))
            for q in range(5): k("v_fmac_f32_dpp v%d, v%d, v%d%s" % (cur[q], prev[q], cMu+q, DPP))
    a_ = [H[q][0] for q in range(5)]; b_ = [H[q][1] for q in range(5)]
    c_ = r5(20)
    TOT = 28
    d_ = [TOT, TOT+1, TOT+2, TOT+4, TOT+5]
    MINE = [12, 13, 14, 15, 16]
    S4 = 36; Mb, RSb, Sb = 62, 66, 70; K0 = 74
    def ffn_inputs():
        k("s_lshl_b32 s%d, s%d, 9\ns_add_u32 s%d, s%d, %d\nv_lshl_add_u32 v%d, v%d, 4, s%d" % (sT0, sNH, sT0, sT0, SFF, vT[0], vG, sT0))
        for b in range(0, 4, 2):
            for a, off in ((Mb, 0), (RSb, 64), (Sb, 128)):
                k("ds_read2_b32 %s, v%d offset0:%d offset1:%d" % (vr(a+b, 2), vT[2], off+b*16, off+b*16+16))
        for j in range(4): k("ds_read_b128 %s, v%d offset:%d" % (vr(S4+4*j, 4), vT[0], j*64))
        k("v_mov_b32 v%d, %s\nv_mov_b32 v%d, %s" % (K0, f32(c0*0.044715), K0+1, f32(c0)))
    ffn_inputs()
    for q in range(5): k("v_mov_b32 v%d, v%d" % (b_[q], a_[q]))
    for q in range(5): k("v_permlane16_swap_b32 v%d, v%d" % (a_[q], b_[q]))
    for q in range(5): k("v_mov_b32 v%d, v%d\nv_mov_b32 v%d, v%d" % (c_[q], a_[q], d_[q], b_[q]))
    for q in range(5): k("v_permlane32_swap_b32 v%d, v%d\nv_permlane32_swap_b32 v%d, v%d" % (a_[q], c_[q], b_[q], d_[q]))
    seq = [a_, b_, c_, d_]
    k("v_mov_b32 v%d, s%d\nv_mov_b32 v%d, s%d" % (TOT+3, sNon, TOT+7, sNon))
    k("s_lshl_b32 s%d, s%d, 9" % (sT0, sC))
    k("v_lshlrev_b32 v%d, 4, v%d" % (vT[1], vM))
    for s in range(1, 4):
        for q in range(5): k("v_fmac_f32 v%d, v%d, v%d" % (seq[s][q], c16r+q, seq[s-1][q]))
        for q in range(5): k("v_fmac_f32_dpp v%d, v%d, v%d%s" % (seq[s][q], seq[s-1][q], c16k+q, DPP))
    k("s_mov_b64 exec, 0xffff")
    k("buffer_store_dwordx4 %s, v%d, %s, s%d offen%s" % (vr(TOT, 4), vT[1], sq(SP0), sT0, SC))
    k("buffer_store_dwordx4 %s, v%d, %s, s%d offen offset:256%s" % (vr(TOT+4, 4), vT[1], sq(SP0), sT0, SC))
    k("s_mov_b64 exec, -1")
    stamp(k, 2)
    for q in range(5): k("v_cndmask_b32 v%d, 0, v%d, %s" % (MINE[q], a_[q], sp(18)))
    for q in range(5): k("v_cndmask_b32 v%d, v%d, v%d, %s" % (MINE[q], MINE[q], b_[q], sp(20)))
    for q in range(5): k("v_cndmask_b32 v%d, v%d, v%d, %s" % (MINE[q], MINE[q], c_[q], sp(22)))
    k("v_lshlrev_b32 v%d, 4, v%d" % (vT[3], vL))
    k("s_waitcnt lgkmcnt(0)")
    dst_ = []
    ffn_epilogue(ACCF, 2, S4, Mb, RSb, Sb, 20, 236, K0, vT[3], [(b, 0) for b in range(4)])
    if not opt("clk", 0): stamp(k, 6)
    PRb = [ACCF + u*8 for u in range(8)]
    k("s_sub_u32 s%d, s%d, 1" % (sT0, sC))
    k("v_sub_u32 v%d, s%d, v%d\nv_lshlrev_b32 v%d, 9, v%d\nv_lshl_add_u32 v%d, v%d, 4, v%d" % (vT[1], sT0, vG, vT[1], vT[1], vT[1], vM, vT[1]))
    def pred_loads():
        for u in range(8):
            if u: k("v_subrev_u32 v%d, %d, v%d" % (vT[0], u*2048, vT[1]))
            a = vT[0] if u else vT[1]
            k("buffer_load_dwordx4 %s, v%d, %s, 0 offen%s" % (vr(PRb[u], 4), a, sq(SP0), PSC_))
            k("buffer_load_dwordx4 %s, v%d, %s, 0 offen offset:256%s" % (vr(PRb[u]+4, 4), a, sq(SP0), PSC_))
    pred_loads()
    for x in dst_: k(x)
    k("s_mul_i32 s%d, s%d, %d\ns_add_u32 s%d, s%d, %d" % (sKx, sW, 80*TRP, sKx, sKx, TRB))
    k("v_add_u32 v%d, s%d, v%d" % (vT[4], sKx, vT[3]))
    for qd in range(3): k("ds_read_b128 %s, v%d offset:%d" % (vr(32+4*qd, 4), vT[4], qd*1024))
    L256r, L256k = r5(32), r5(37)
    free = [20+2*q for q in range(5)]
    for t in range(0, 16, 2):
        nf = []
        for q in range(5): k("v_pk_mul_f32 %s, %s, %s op_sel_hi:[0,1]" % (vr(free[q], 2), vr(KR[q], 2), vr(Z[q][t], 2)))
        for e in range(2):
            for q in range(5): k("v_fmac_f32_dpp v%d, v%d, v%d%s" % (free[q]+e, Z[q][t]+e, cKk+q, DPP))
        for q in range(5):
            nf.append(Z[q][t]); Z[q][t] = free[q]; Z[q][t+1] = free[q]+1
        free = nf
    t0, t1 = 30, 31
    a2_flag(1, 16, 30, 31)
    stamp(k, 7)
    k("s_mov_b32 s%d, 0\ns_waitcnt vmcnt(1)\ns_branch L_k1_poll2" % sT3)
    k("L_k1_poll:")
    k("s_waitcnt vmcnt(0)")
    k("L_k1_poll2:")
    k("s_mov_b32 s%d, 0" % sT2)
    for u in range(8):
        k("v_cmp_ne_u32 s[24:25], s%d, v%d\nv_cmp_ne_u32 s[26:27], s%d, v%d\nv_cmp_le_i32 vcc, %d, v%d" % (sNon, PRb[u]+3, sNon, PRb[u]+7, u*2048, vT[1]))
        k("s_or_b64 s[24:25], s[24:25], s[26:27]\ns_and_b64 s[24:25], s[24:25], vcc\ns_cbranch_scc0 L_k1_pu%d" % u)
        k("s_cmp_lg_u32 s%d, 0\ns_cbranch_scc1 L_k1_ps%d\ns_sleep %d\nL_k1_ps%d:" % (sT2, u, opt("csl", 8), u))
        k("s_mov_b32 s%d, 1" % sT2)
        k("v_subrev_u32 v%d, %d, v%d" % (vT[0], u*2048, vT[1]))
        k("s_mov_b64 exec, s[24:25]")
        k("buffer_load_dwordx4 %s, v%d, %s, 0 offen%s" % (vr(PRb[u], 4), vT[0], sq(SP0), PSC_))
        k("buffer_load_dwordx4 %s, v%d, %s, 0 offen offset:256%s" % (vr(PRb[u]+4, 4), vT[0], sq(SP0), PSC_))
        k("s_mov_b64 exec, -1")
        k("L_k1_pu%d:" % u)
    k("s_add_u32 s%d, s%d, 1\ns_cmp_eq_u32 s%d, 0\ns_cbranch_scc1 L_k1_polled" % (sT3, sT3, sT2))
    k("s_cmp_lt_u32 s%d, 0x40000\ns_cbranch_scc1 L_k1_poll" % sT3)
    k("L_k1_polled:")
    if not opt("clk", 0): stamp(k, 3)
    pr = lambda u, q: PRb[u]+(q if q < 3 else q+1)
    k("s_waitcnt lgkmcnt(0)")
    for u in range(6, -1, -1):
        for q in range(5): k("v_fmac_f32 v%d, v%d, v%d" % (pr(u, q), L256r[q], pr(u+1, q)))
        for q in range(5): k("v_fmac_f32_dpp v%d, v%d, v%d%s" % (pr(u, q), pr(u+1, q), L256k[q], DPP))
        if u == 4:
            for qd in range(5): k("ds_read_b128 %s, v%d offset:%d" % (vr(PRb[5]+4*qd, 4), vT[4], (3+qd)*1024))
    L64r, L64k, Psr, Psk = r5(PRb[5]), r5(PRb[5]+5), r5(PRb[5]+10), r5(PRb[5]+15)
    k("s_waitcnt lgkmcnt(0)")
    for q in range(5): k("v_mul_f32 v%d, v%d, v%d" % (pr(1, q), L64r[q], pr(0, q)))
    for q in range(5): k("v_fmac_f32_dpp v%d, v%d, v%d%s" % (pr(1, q), pr(0, q), L64k[q], DPP))
    for sw in ("v_permlane16_swap_b32", "v_permlane32_swap_b32"):
        for q in range(5): k("v_mov_b32 v%d, v%d" % (pr(2, q), pr(1, q)))
        for q in range(5): k("%s v%d, v%d" % (sw, pr(1, q), pr(2, q)))
        for q in range(5): k("v_add_f32 v%d, v%d, v%d" % (pr(1, q), pr(1, q), pr(2, q)))
    for q in range(5): k("v_fmac_f32 v%d, v%d, v%d" % (MINE[q], Psr[q], pr(1, q)))
    for q in range(5): k("v_fmac_f32_dpp v%d, v%d, v%d%s" % (MINE[q], pr(1, q), Psk[q], DPP))
    CIN = [f for f in free]
    for q in range(5): k("v_mul_f32 v%d, v%d, v%d" % (CIN[q], KR[q], MINE[q]))
    for q in range(5): k("v_fmac_f32_dpp v%d, v%d, v%d%s" % (CIN[q], MINE[q], cKk+q, DPP))
    PK = 32
    OUTQ = [ACCF + 4*j for j in range(10)]
    k("v_mul_u32_u24 v%d, %d, v%d\nv_lshl_add_u32 v%d, v%d, 5, v%d\nv_add_u32 v%d, s%d, v%d" % (vT[1], TRP, vM, vT[1], vG, vT[1], vT[1], sKx, vT[1]))
    k("v_and_b32 v%d, 1, v%d\nv_lshrrev_b32 v%d, 2, v%d\nv_lshl_add_u32 v%d, v%d, 3, v%d\nv_mul_u32_u24 v%d, %d, v%d" % (vT[0], vG, vT[4], vM, vT[0], vT[0], vT[4], vT[0], TRP, vT[0]))
    k("v_and_b32 v%d, 3, v%d\nv_lshl_add_u32 v%d, v%d, 5, v%d" % (vT[4], vM, vT[0], vT[4], vT[0]))
    k("v_lshrrev_b32 v%d, 1, v%d\nv_lshl_add_u32 v%d, v%d, 3, v%d\nv_add_u32 v%d, s%d, v%d" % (vT[5], vG, vT[0], vT[5], vT[0], vT[0], sKx, vT[0]))
    k("v_and_b32 v%d, 31, v%d\nv_lshlrev_b32 v%d, 4, v%d\nv_lshl_add_u32 v%d, v%d, 10, v%d" % (vT[4], vL, vT[4], vT[4], vT[4], vT[5], vT[4]))
    def tr_reads(bp):
        for q in range(5):
            o = OUTQ[bp*5+q]
            k("ds_read_b64_tr_b16 %s, v%d offset:%d\nds_read_b64_tr_b16 %s, v%d offset:%d" % (vr(o, 2), vT[0], q*16*TRP+bp*16, vr(o+2, 2), vT[0], q*16*TRP+bp*16+4*TRP))
    def tr_stores(bp, waits):
        for q in range(5):
            if waits: k("s_waitcnt lgkmcnt(%d)" % (8-2*q))
            k("buffer_store_dwordx4 %s, v%d, %s, s%d offen offset:%d%s" % (vr(OUTQ[bp*5+q], 4), vT[4], sq(SWS), sSS[q], bp*2048, S1))
    for t in range(16):
        prev = [CIN[q] if t == 0 else Z[q][t-1] for q in range(5)]
        for q in range(5): k("v_fmac_f32 v%d, v%d, v%d" % (Z[q][t], cLr+q, prev[q]))
        for q in range(5): k("v_fmac_f32_dpp v%d, v%d, v%d%s" % (Z[q][t], prev[q], cMu+q, DPP))
        if t & 1:
            for q in range(5): k("v_cvt_pk_bf16_f32 v%d, v%d, v%d" % (PK+8*q+(t >> 1), Z[q][t-1], Z[q][t]))
        if t == 8:
            for q in range(5): k("ds_write_b128 v%d, %s offset:%d" % (vT[1], vr(PK+8*q, 4), q*16*TRP))
        if t == 10: tr_reads(0)
        if t == 13:
            k("s_waitcnt lgkmcnt(0)")
            tr_stores(0, False)
    for q in range(5): k("ds_write_b128 v%d, %s offset:%d" % (vT[1], vr(PK+8*q+4, 4), q*16*TRP+16))
    tr_reads(1)
    tr_stores(1, True)
    a2_flag(2, 0, vT[0], vT[1])
    stamp(k, 4)
    k("L_k1_base:")
    base_loads(140)
    k("L_k1_base2:")
    base_compute(140)
    finish(100)
    k("L_k1_end:")
    k("s_endpgm")
    return k

if __name__ == "__main__":
    ref = open("parallel_sum__ssm_conv_s5__geglu_ffn__prompt.s.ref").read().split("\n")
    hdr = [l for l in ref if l.startswith(";") and "@launch" not in l and "Override" not in l and "grid=ceil" not in l]
    hdr += ["; @launch grid=(256,1,1) block=(512,1,1) lds=163840"]
    out = [a for a in sys.argv[1:] if not a.startswith("--")][0]
    gen2.TRACE = False
    open(out, "w").write(emit_file(hdr, [(gen_k1(), dict(vgpr=256, accum=256))]))
```

```python
import sys, struct, math
from asmgen import *
import gen2
from gen2 import (A2_OFF, B2_OFF, CAR_OFF, RST_OFF, SB_OFF, SG_OFF, STAMP_OFF, WS_NREC, SL, SPARE, TRP, f32, vr, sq, sp, ror, DPP, SC,
                  Alloc, interleave, srd, stamp, stamp_out, opt, ARG, STAMPS, LOG2E,
                  pX, pLre, pLim, pBre, pBim, pCre, pCim, pLdt, pD, pBx, pG, pU, pDn, pOut, pDbg, pWs)
STAT_M = SPARE
SFF = SPARE + 1536
SSS = SPARE + 2560
TRB = SL
FLG = SPARE + 4032
PF_OFF = 0x1130000
FL_OFF = 0x1131000
CH_OFF = 0x1140000
TRACE = "--trace" in ARG
S1 = [" sc1", " sc0 sc1", " sc1 nt", ""][opt("st2", 0)]
if opt("sc", 1): SC = " sc1"
FSP = 4
FGS = 16
FLS_ = 128
PSC_ = [" sc1", " sc0 sc1"][opt("psc", 0)]
KNAME = "parallel_sum__ssm_conv_s5__geglu_ffn__prompt_kernel"

def gen_k1():
    k = Kern(KNAME)
    sW, sMH, sNH, sI, sJJ, sTY = 3, 4, 5, 6, 7, 8
    sT0, sT1, sT2, sT3 = 9, 10, 11, 12
    sMASK = 13
    SX, SW0, SW1, SWS, SP0, SP1 = 48, 52, 56, 60, 64, 68
    sKx, sKw, sDst, sDelta, sIt, sRd, sA, sB, sKS, sC, sNon, sCol = range(72, 84)
    k("s_cmp_ge_u32 s2, 256\ns_cbranch_scc1 L_k1_end")
    k("s_load_dwordx16 s[16:31], s[0:1], 0\ns_load_dwordx16 s[32:47], s[0:1], 64")
    k("s_memrealtime s[100:101]")
    stamp(k, 0)
    vL, vM, vG, vII, vSL = 1, 2, 3, 4, 5
    vT = [6, 7, 8, 9, 10, 11]
    if TRACE: k("v_mov_b32 v255, 0")
    k("v_lshrrev_b32 v%d, 6, v0" % vT[0])
    k("v_and_b32 v%d, 63, v0" % vL)
    k("v_readfirstlane_b32 s%d, v%d" % (sW, vT[0]))
    k("v_and_b32 v%d, 15, v0\nv_lshrrev_b32 v%d, 4, v%d" % (vM, vG, vL))
    k("v_lshrrev_b32 v%d, 3, v%d\nv_and_b32 v%d, 7, v0" % (vII, vL, vSL))
    k("v_mov_b32 v%d, 0\nv_lshlrev_b32 v%d, 2, v%d\nv_add_u32 v%d, %d, v%d\nds_write_b32 v%d, v%d" % (vT[1], vT[2], vM, vT[2], FLG, vT[2], vT[2], vT[1]))
    k("s_and_b32 s%d, s2, 7\ns_lshr_b32 s%d, s2, 3" % (sT0, sT1))
    k("s_lshr_b32 s%d, s%d, 2\ns_lshl_b32 s%d, s%d, 3\ns_and_b32 s%d, s%d, 7\ns_add_u32 s%d, s%d, s%d" % (sI, sT0, sI, sI, sT2, sT1, sI, sI, sT2))
    k("s_and_b32 s%d, s%d, 3\ns_lshl_b32 s%d, s%d, 2\ns_lshr_b32 s%d, s%d, 3\ns_add_u32 s%d, s%d, s%d" % (sJJ, sT0, sJJ, sJJ, sT2, sT1, sJJ, sJJ, sT2))
    k("s_and_b32 s%d, s%d, 1\ns_lshr_b32 s%d, s%d, 1" % (sTY, sJJ, sJJ, sJJ))
    k("s_mov_b32 s%d, 0xffff0000" % sMASK)
    k("s_and_b32 s%d, s%d, 1\ns_bfe_u32 s%d, s%d, 0x10001" % (sMH, sW, sNH, sW))
    k("s_lshl_b32 s%d, s%d, 7\ns_lshl_b32 s%d, s%d, 6\ns_add_u32 s%d, s%d, 1024\ns_cmp_eq_u32 s%d, 0\ns_cselect_b32 s%d, s%d, s%d" % (sT0, sJJ, sT1, sJJ, sT1, sT1, sTY, sCol, sT0, sT1))
    k("s_waitcnt lgkmcnt(0)\ns_barrier")
    k("s_cmp_lt_u32 s%d, 4\ns_cbranch_scc1 L_k1_C" % sW)
    k("s_cmp_ge_u32 s%d, 6\ns_cbranch_scc1 L_k1_D" % sW)

    def bf16r(d, s):
        k("v_cvt_pk_bf16_f32 v%d, v%d, v%d\nv_lshlrev_b32 v%d, 16, v%d" % (d, s, s, d, d))
    r5 = lambda b: [b+q for q in range(5)]
    def cpow5(dr, dk, n, t0, t1, cA2, cBt):
        R5 = range(5)
        for q in R5: k("v_mul_f32 v%d, %s, v%d\nv_mul_f32 v%d, %s, v%d" % (t0+q, n, cA2+q, t1+q, n, cBt+q))
        for q in R5: k("v_exp_f32 v%d, v%d\nv_rndne_f32 v%d, v%d" % (t0+q, t0+q, dr[q], t1+q))
        for q in R5: k("v_sub_f32 v%d, v%d, v%d" % (t1+q, t1+q, dr[q]))
        for q in R5: k("v_cos_f32 v%d, v%d\nv_sin_f32 v%d, v%d" % (dr[q], t1+q, dk[q], t1+q))
        for q in R5: k("v_mul_f32 v%d, v%d, v%d\nv_mul_f32 v%d, v%d, v%d" % (dr[q], dr[q], t0+q, dk[q], dk[q], t0+q))
    def param_loads(P, snh, va):
        k("s_mul_i32 s%d, s%d, 80\ns_mul_i32 s%d, s%d, 40\ns_add_u32 s%d, s%d, s%d" % (sT0, sJJ, sT1, snh, sT1, sT1, sT0))
        k("v_add_u32 v%d, s%d, v%d\nv_lshlrev_b32 v%d, 1, v%d" % (va, sT1, vSL, va, va))
        for q in range(5):
            for n, p in enumerate((pLre, pLim, pLdt)):
                k("global_load_ushort v%d, v%d, %s offset:%d" % (P+n*5+q, va, sp(p), q*16))
    def param_ab(P, cA2, cBt, vs):
        lre, lim, ldt = P, P+5, P+10
        k("v_lshrrev_b32 v%d, 3, v%d\nv_xor_b32 v%d, 1, v%d\nv_lshlrev_b32 v%d, 31, v%d" % (vs, vM, vs, vs, vs, vs))
        for q in range(15): k("v_lshlrev_b32 v%d, 16, v%d" % (P+q, P+q))
        for q in range(5): k("v_xor_b32 v%d, v%d, v%d\nv_mul_f32 v%d, %s, v%d" % (lim+q, lim+q, vs, ldt+q, f32(LOG2E), ldt+q))
        for q in range(5): k("v_exp_f32 v%d, v%d" % (ldt+q, ldt+q))
        for q in range(5): k("v_cvt_pk_bf16_f32 v%d, v%d, v%d" % (ldt+q, ldt+q, ldt+q))
        for q in range(5): k("v_lshlrev_b32 v%d, 16, v%d" % (ldt+q, ldt+q))
        for q in range(5): k("v_mul_f32 v%d, v%d, v%d\nv_mul_f32 v%d, v%d, v%d" % (cA2+q, ldt+q, lre+q, cBt+q, ldt+q, lim+q))
        for q in range(5): k("v_mul_f32 v%d, %s, v%d\nv_mul_f32 v%d, %s, v%d" % (cA2+q, f32(LOG2E), cA2+q, cBt+q, f32(1/(2*math.pi)), cBt+q))
    def trace(idx_sreg, mul, add):
        if TRACE:
            k("s_memrealtime s[100:101]\ns_mul_i32 m0, s%d, %d\ns_add_u32 m0, m0, %d\ns_waitcnt lgkmcnt(0)\nv_writelane_b32 v255, s100, m0" % (idx_sreg, mul, add))
    def ev(n):
        if TRACE: k("s_memrealtime s[100:101]\ns_waitcnt lgkmcnt(0)\nv_writelane_b32 v255, s100, %d" % n)
    def finish(vt):
        if TRACE:
            k("s_lshl_b32 s83, s2, 11\ns_add_u32 s83, s83, 0x%x\nv_lshl_add_u32 v%d, v0, 2, s83" % (STAMP_OFF + 0x40000, vt+9))
            k("global_store_dword v%d, v255, %s" % (vt+9, sp(52)))
        stamp_out(k, 0, 8, 52, vt)
        k("s_endpgm")

    vXo, vWo, vSo = 12, 13, 14
    vF = 18
    k("s_lshl_b32 s%d, s%d, 7\ns_lshl_b32 s%d, s%d, 5\ns_add_u32 s%d, s%d, s%d" % (sT2, sI, sT3, sMH, sT2, sT2, sT3))
    k("v_lshrrev_b32 v%d, 2, v%d\nv_lshlrev_b32 v%d, 4, v%d\nv_and_b32 v%d, 3, v%d" % (vT[0], vII, vT[0], vT[0], vT[1], vII))
    k("v_add3_u32 v%d, v%d, v%d, s%d" % (vT[0], vT[0], vT[1], sT2))
    k("v_mul_u32_u24 v%d, 1280, v%d" % (vT[0], vT[0]))
    k("s_lshl_b32 s%d, s%d, 2" % (sT3, sMH))
    k("v_lshrrev_b32 v%d, 1, v%d\nv_or_b32 v%d, s%d, v%d\nv_xor_b32 v%d, v%d, v%d" % (vT[1], vII, vT[1], sT3, vT[1], vT[1], vT[1], vSL))
    k("v_lshl_add_u32 v%d, v%d, 4, v%d" % (vXo, vT[1], vT[0]))
    k("s_mul_i32 s%d, s%d, 80" % (sT0, sJJ))
    k("v_add_u32 v%d, s%d, v%d\nv_mul_u32_u24 v%d, 1280, v%d\nv_lshl_add_u32 v%d, v%d, 4, v%d" % (vT[2], sT0, vII, vT[2], vT[2], vSo, vT[1], vT[2]))
    k("s_lshl_b32 s%d, s%d, 3" % (sT0, sMH))
    k("v_add_u32 v%d, s%d, v%d\nv_mul_u32_u24 v%d, 3072, v%d" % (vT[0], sT0, vII, vT[0], vT[0]))
    k("v_and_b32 v%d, 2, v%d\nv_or_b32 v%d, s%d, v%d\nv_xor_b32 v%d, v%d, v%d" % (vT[1], vII, vT[1], sT3, vT[1], vT[1], vT[1], vSL))
    k("v_lshl_add_u32 v%d, v%d, 4, v%d" % (vT[0], vT[1], vT[0]))
    k("s_lshl_b32 s%d, s%d, 1" % (sT0, sCol))
    k("v_add_u32 v%d, s%d, v%d" % (vWo, sT0, vT[0]))
    k("s_mov_b32 s%d, 0\ns_mov_b32 s%d, 0\ns_lshl_b32 s%d, s%d, 10\ns_mov_b32 s%d, 0\ns_mov_b32 s%d, 0" % (sKx, sKw, sDst, sMH, sIt, sRd))
    k("v_mov_b32 v%d, %d\nv_mov_b32 v24, 0" % (vF, FLG))
    k("s_lshl_b32 s%d, s%d, 2\ns_add_u32 s%d, s%d, %d\nv_mov_b32 v%d, s%d" % (sT0, sMH, sT0, sT0, FLG+16, vF+1, sT0))
    srd(k, SX, pX, 2048*1280)
    srd(k, SW0, pG, 640*3072)
    srd(k, SW1, pU, 640*3072)
    k("s_cmp_eq_u32 s%d, 0\ns_cselect_b32 s%d, s%d, s%d\ns_cselect_b32 s%d, s%d, s%d" % (sMH, SP0, pBre, pBim, SP0+1, pBre+1, pBim+1))
    k("s_mov_b32 s%d, %d\ns_mov_b32 s%d, 0x20000" % (SP0+2, 640*1280, SP0+3))
    def wait_word(lab, off, need, va, vt):
        k("v_mov_b32 v%d, %d" % (va, FLG+off))
        k("%s:" % lab)
        k("ds_read_b32 v%d, v%d\ns_waitcnt lgkmcnt(0)\nv_readfirstlane_b32 s%d, v%d" % (vt, va, sT0, vt))
        k("s_cmp_ge_i32 s%d, %s\ns_cbranch_scc1 %s_ok\ns_sleep 1\ns_branch %s\n%s_ok:" % (sT0, need, lab, lab, lab))
    def wait_done(lab, need, vaddr, vt):
        k("%s:" % lab)
        k("ds_read_b128 %s, v%d\ns_waitcnt lgkmcnt(0)" % (vr(vt, 4), vaddr))
        k("v_min_u32 v%d, v%d, v%d\nv_min3_u32 v%d, v%d, v%d, v%d" % (vt, vt, vt+1, vt, vt, vt+2, vt+3))
        k("v_readfirstlane_b32 s%d, v%d" % (sT0, vt))
        k("s_cmp_ge_i32 s%d, %s\ns_cbranch_scc1 %s_ok\ns_sleep 1\ns_branch %s\n%s_ok:" % (sT0, need, lab, lab, lab))
    k("s_cmp_eq_u32 s%d, 1\ns_cbranch_scc1 L_k1_LB_dma\ns_branch L_k1_LA_dma" % sTY)
    def dma(ldsoff, voff, S, sbase, add):
        k("s_add_u32 m0, s%d, %d\ns_add_u32 s%d, s%d, %d\nbuffer_load_dwordx4 v%d, %s, s%d offen lds" % (sDst, ldsoff, sT0, sbase, add, voff, sq(S), sT0))
    NSIG = opt("nsig", 6)
    def chk(lab, add, sig):
        k("s_lshl_b32 s%d, s%d, 1\ns_add_i32 s%d, s%d, %d\ns_waitcnt lgkmcnt(0)" % (sT1, sIt, sT1, sT1, add))
        k("v_min_u32 v20, v20, v21\nv_min3_u32 v20, v20, v22, v23\nv_readfirstlane_b32 s%d, v20" % sT0)
        k("s_cmp_ge_i32 s%d, s%d\ns_cbranch_scc1 %s_go" % (sT0, sT1, lab))
        if sig: k("s_waitcnt vmcnt(0)\nds_write_b32 v%d, v24" % (vF+1))
        wait_done(lab+"_wd", "s%d" % sT1, vF, 20)
        k("%s_go:" % lab)
    for ty in "BA":
        L = "L_k1_L" + ty
        k("%s:" % L)
        trace(sIt, 4, 0)
        chk(L+"_c1", -5, True)
        k("%s_dma:" % L)
        trace(sIt, 4, 1)
        xs = [(n*2048, vXo, SX, sKx, ((n & 3)*4 + (n >> 2)*64)*1280) for n in range(8)]
        ws = []
        for n in range(4):
            for un in range(2 if ty == "A" else 1):
                for gu in range(2):
                    ws.append((16384+un*16384+gu*8192+n*2048, vWo, SW1 if gu else SW0, sKw, n*16*3072+un*128))
        h = len(ws)//2
        p1 = []
        for i in range(8): p1 += xs[i:i+1] + ws[:h][i*h//8:(i+1)*h//8]
        p2 = ws[h:]
        if ty == "B": p2 += [(32768+b*2048, vSo, SP0, sKx, b*10240) for b in range(10)]
        for i, o in enumerate(p1):
            if i == NSIG:
                k("s_waitcnt vmcnt(%d)\nds_write_b32 v%d, v24\nv_add_u32 v24, 1, v24" % (NSIG, vF+1))
                trace(sIt, 4, 3)
            if i == len(p1)-2: k("ds_read_b128 v[20:23], v%d" % vF)
            dma(*o)
        chk(L+"_c2", -4, False)
        for i, o in enumerate(p2):
            if i == len(p2)-2: k("ds_read_b128 v[20:23], v%d" % vF)
            dma(*o)
        k("ds_write_b32 v%d, v24 offset:16" % (vF+1))
        k("s_add_u32 s%d, s%d, 128\ns_add_u32 s%d, s%d, 196608\ns_add_u32 s%d, s%d, %d\ns_add_u32 s%d, s%d, 1" % (sKx, sKx, sKw, sKw, sDst, sDst, SL, sRd, sRd))
        k("s_cmp_eq_u32 s%d, 3\ns_cselect_b32 s%d, 0, s%d\ns_cselect_b32 s%d, %d, 0\ns_sub_u32 s%d, s%d, s%d" % (sRd, sRd, sRd, sT0, 3*SL, sDst, sDst, sT0))
        trace(sIt, 4, 2)
        k("s_add_u32 s%d, s%d, 1\ns_cmp_lt_u32 s%d, 10\ns_cbranch_scc1 %s" % (sIt, sIt, sIt, L))
        if ty == "B": k("s_branch L_k1_Lend")
    k("L_k1_Lend:")
    srd(k, SWS, pWs, WS_NREC)
    k("v_mov_b32 v72, v%d\nv_mov_b32 v73, v24" % (vF+1))
    k("s_branch L_k1_P2")

    k("L_k1_D:")
    XR = 16
    YR = 36
    PK = 100
    T = 132
    vN = 12
    sPQ, sPR = [14, 78], [15, 79]
    k("v_mul_u32_u24 v%d, 1280, v%d\nv_lshl_add_u32 v%d, v%d, 4, v%d" % (vT[0], vG, vT[0], vM, vT[0]))
    XL = opt("xl", 1)
    sQ_, sG_ = sIt, sRd
    if XL:
        k("s_and_b32 s%d, s2, 7\ns_lshl_b32 s%d, s%d, 5\ns_lshr_b32 s%d, s2, 3\ns_add_u32 s%d, s%d, s%d\ns_lshl_b32 s%d, s%d, 1\ns_add_u32 s%d, s%d, s%d" % (sT0, sT0, sT0, sT1, sT0, sT0, sT1, sC, sT0, sC, sC, sMH))
        k("s_bfe_u32 s%d, s2, 0x10002\ns_lshl_b32 s%d, s%d, 5\ns_add_u32 s%d, s%d, s%d" % (sQ_, sQ_, sQ_, sQ_, sQ_, sT1))
    else:
        k("s_lshl_b32 s%d, s2, 1\ns_add_u32 s%d, s%d, s%d" % (sC, sC, sC, sMH))
    srd(k, SX, pX, 2048*1280)
    srd(k, SWS, pWs, WS_NREC)
    k("s_cmp_lg_u32 s%d, 0\ns_cbranch_scc1 L_k1_nn" % sC)
    k("s_or_b32 s%d, s100, 1" % sT0)
    k("v_mov_b32 v%d, s%d\nv_mov_b32 v%d, 0" % (vT[2], sT0, vT[1]))
    k("global_store_dword v%d, v%d, %s%s" % (vT[1], vT[2], sp(pDbg), SC))
    k("L_k1_nn:")
    B1 = opt("b1", 2); GATE = opt("gate", 3)
    SNT = " nt" if opt("snt", 0) else ""
    def gate(lab):
        if GATE: wait_word(lab, 36, "%d" % GATE, vT[3], vT[2])
    k("s_mul_i32 s%d, s%d, 5120" % (sKx, sC))
    xl = lambda c: k("buffer_load_dwordx4 %s, v%d, %s, s%d offen offset:%d%s" % (vr(XR+4*c, 4), vT[0], sq(SX), sKx, c*256, SNT))
    k("s_cmp_eq_u32 s%d, 1\ns_cbranch_scc1 L_k1_D1a" % sMH)
    if XL:
        k("s_mul_i32 s%d, s%d, 43\ns_lshr_b32 s%d, s%d, 9\ns_mul_i32 s%d, s%d, 12\ns_sub_u32 s%d, s%d, s%d" % (sT0, sQ_, sT0, sT0, sT1, sT0, sT1, sQ_, sT1))
        k("s_cmp_lt_u32 s%d, 6\ns_cselect_b32 s%d, s%d, s%d\ns_cselect_b32 s%d, s%d, s%d\ns_cselect_b32 s%d, 0, 6\ns_cselect_b32 s%d, 0, 24" % (sT1, SP1, pG, pU, SP1+1, pG+1, pU+1, sT2, sG_))
        k("s_sub_u32 s%d, s%d, s%d\ns_and_b32 s%d, s2, 3\ns_lshl_b32 s%d, s%d, 2\ns_lshl_b32 s%d, s%d, 1\ns_add_u32 s%d, s%d, 12" % (sT1, sT1, sT2, sT2, sT3, sT2, sT2, sT2, sT2, sT2))
        k("s_cmp_lt_u32 s%d, 4\ns_cselect_b32 s%d, s%d, s%d\ns_add_u32 s%d, s%d, s%d" % (sT1, sT2, sT3, sT2, sT1, sT1, sT2))
        k("s_add_u32 s%d, s%d, s%d\ns_mul_i32 s%d, s%d, 48\ns_add_u32 s%d, s%d, s%d" % (sG_, sG_, sT1, sT2, sT0, sG_, sG_, sT2))
        k("s_lshl_b32 s%d, s%d, 7\ns_mul_i32 s%d, s%d, %d\ns_add_u32 s%d, s%d, s%d" % (sT1, sT1, sT0, sT0, 8*3072, sKw, sT0, sT1))
        k("s_cmp_lt_u32 s%d, 60\ns_cselect_b32 s%d, %d, 0\ns_cselect_b32 s%d, s%d, 1000\ns_mov_b32 s%d, 0x20000" % (sQ_, SP1+2, 640*3072, sG_, sG_, SP1+3))
    else:
        k("s_mov_b32 s%d, s2" % sG_)
        k("s_mul_i32 s%d, s2, 1366\ns_lshr_b32 s%d, s%d, 16\ns_mul_i32 s%d, s%d, 48\ns_sub_u32 s%d, s2, s%d" % (sT0, sT0, sT0, sT1, sT0, sT1, sT1))
        k("s_cmp_lt_u32 s%d, 24\ns_cselect_b32 s%d, s%d, s%d\ns_cselect_b32 s%d, s%d, s%d\ns_cselect_b32 s%d, 0, 24" % (sT1, SP1, pG, pU, SP1+1, pG+1, pU+1, sT2))
        k("s_sub_u32 s%d, s%d, s%d\ns_lshl_b32 s%d, s%d, 7\ns_mul_i32 s%d, s%d, %d\ns_add_u32 s%d, s%d, s%d" % (sT1, sT1, sT2, sT1, sT1, sT0, sT0, 8*3072, sKw, sT0, sT1))
        k("s_cmp_lt_u32 s2, 240\ns_cselect_b32 s%d, %d, 0\ns_mov_b32 s%d, 0x20000" % (SP1+2, 640*3072, SP1+3))
    k("v_mul_u32_u24 v%d, 3072, v%d\nv_lshl_add_u32 v%d, v%d, 4, v%d" % (vT[1], vII, vT[1], vSL, vT[1]))
    a_ = 0
    for c in range(5):
        if c == B1: gate("L_k1_g0")
        xl(c)
        while a_ < 16 and a_*40 < 128*(c+1):
            k("buffer_load_dwordx4 %s, v%d, %s, s%d offen%s" % (vr(YR+4*a_, 4), vT[1], sq(SP1), sKw, SNT))
            k("s_add_u32 s%d, s%d, %d" % (sKw, sKw, 40*3072))
            a_ += 1
    if B1 >= 5: gate("L_k1_g0")
    k("s_branch L_k1_Db")
    k("L_k1_D1a:")
    if XL:
        k("s_cmp_lt_u32 s%d, 20\ns_cselect_b32 s%d, s%d, s%d\ns_cselect_b32 s%d, s%d, s%d\ns_cselect_b32 s%d, 0, 20\ns_cselect_b32 s%d, 0, 80" % (sQ_, SP1, pBre, pBim, SP1+1, pBre+1, pBim+1, sT1, sG_))
        k("s_sub_u32 s%d, s%d, s%d\ns_and_b32 s%d, s2, 3\ns_mul_i32 s%d, s%d, 20\ns_add_u32 s%d, s%d, s%d\ns_add_u32 s%d, s%d, s%d" % (sT0, sQ_, sT1, sT1, sT1, sT1, sT0, sT0, sT1, sG_, sG_, sT0))
        k("s_mul_i32 s%d, s%d, 10240\ns_add_u32 s%d, s%d, 5120" % (sKw, sT0, sDst, sKw))
        k("s_cmp_lt_u32 s%d, 40\ns_cselect_b32 s%d, %d, 0\ns_cselect_b32 s%d, s%d, 1000\ns_mov_b32 s%d, 0x20000" % (sQ_, SP1+2, 640*1280, sG_, sG_, SP1+3))
    else:
        k("s_mov_b32 s%d, s2" % sG_)
        k("s_cmp_lt_u32 s2, 80\ns_cselect_b32 s%d, s%d, s%d\ns_cselect_b32 s%d, s%d, s%d\ns_cselect_b32 s%d, 0, 80" % (SP1, pBre, pBim, SP1+1, pBre+1, pBim+1, sT1))
        k("s_sub_u32 s%d, s2, s%d\ns_mul_i32 s%d, s%d, 10240\ns_add_u32 s%d, s%d, 5120" % (sT0, sT1, sKw, sT0, sDst, sKw))
        k("s_cmp_lt_u32 s2, 160\ns_cselect_b32 s%d, %d, 0\ns_mov_b32 s%d, 0x20000" % (SP1+2, 640*1280, SP1+3))
    for c in range(5):
        if c == B1: gate("L_k1_g1")
        xl(c)
        for hh in range(2): k("buffer_load_dwordx4 %s, v%d, %s, s%d offen offset:%d%s" % (vr(YR+20*hh+4*c, 4), vT[0], sq(SP1), sDst if hh else sKw, c*256, SNT))
    if B1 >= 5: gate("L_k1_g1")
    k("L_k1_Db:")
    if opt("cpf", 1):
        k("s_getpc_b64 s[70:71]")
        k("L_k1_pc:")
        k("s_sub_u32 s70, s70, L_k1_pc-%s\ns_subb_u32 s71, s71, 0" % KNAME)
        k("s_lshr_b32 s%d, s2, 3\ns_lshl_b32 s%d, s%d, 1\ns_add_u32 s%d, s%d, s%d\ns_and_b32 s%d, s%d, 7\ns_lshl_b32 s%d, s%d, 13" % (sT0, sT0, sT0, sT0, sT0, sMH, sT0, sT0, sT0, sT0))
        k("v_lshl_add_u32 v14, v%d, 7, s%d\nv_min_u32 v14, L_k1_end-%s, v14" % (vL, sT0, KNAME))
        k("s_cmp_lt_u32 s%d, L_k1_end-%s\ns_cbranch_scc0 L_k1_ncp\ns_cmp_lt_u32 s2, 64\ns_cbranch_scc0 L_k1_ncp" % (sT0, KNAME))
        k("global_load_dword v15, v14, s[70:71]")
        k("L_k1_ncp:")
    ev(0)
    k("s_lshl_b32 s%d, s%d, 3\ns_add_u32 s%d, s%d, s%d\ns_lshl_b32 s%d, s%d, 1\ns_add_u32 s%d, s%d, s%d\ns_lshl_b32 s%d, s%d, 1" % (sT3, sI, sT3, sT3, sJJ, sT3, sT3, sT3, sT3, sMH, sT3, sT3))
    for n in range(2):
        k("s_add_u32 s%d, s%d, %d\ns_mul_i32 s%d, s%d, 6554\ns_lshr_b32 s%d, s%d, 16\ns_mul_i32 s%d, s%d, 10\ns_sub_u32 s%d, s%d, s%d" % (sT0, sT3, n, sPQ[n], sT0, sPQ[n], sPQ[n], sT1, sPQ[n], sPR[n], sT0, sT1))
    k("v_mov_b32 v%d, 0" % vT[1])
    k("global_load_dword v%d, v%d, %s%s" % (vN, vT[1], sp(pDbg), SC))
    if opt("packlate", 0): k("s_waitcnt vmcnt(1)")
    PNT = " nt" if opt("pnt", 1) else ""
    PA = opt("pa", 0)
    PK2 = 180 if PA else PK
    k("s_cmp_eq_u32 s%d, 1\ns_cbranch_scc1 L_k1_plC" % sTY)
    srd(k, SP0, pDn, 1536*1280)
    k("v_mul_u32_u24 v%d, 1280, v%d\nv_lshl_add_u32 v%d, v%d, 4, v%d" % (vT[1], vII, vT[1], vSL, vT[1]))
    k("s_cmp_lt_u32 s%d, 48\ns_cselect_b32 s%d, s%d, 0" % (sPQ[0], SP0+2, SP0+2))
    for n in range(2):
        k("s_mul_i32 s%d, s%d, 40960\ns_lshl_b32 s%d, s%d, 7\ns_add_u32 s%d, s%d, s%d" % (sT1, sPQ[n], sT2, sPR[n], sT1, sT1, sT2))
        for a in range(4):
            k("buffer_load_dwordx4 %s, v%d, %s, s%d offen%s" % (vr(PK+16*n+4*a, 4), vT[1], sq(SP0), sT1, PNT))
            if a < 3: k("s_add_u32 s%d, s%d, 10240" % (sT1, sT1))
    PP = 180
    if PA:
        k("s_branch L_k1_plC2")
        k("L_k1_plC:")
        param_loads(PP, sMH, vT[1])
        k("s_waitcnt vmcnt(15)\ns_branch L_k1_pld")
        k("L_k1_plC2:")
    else:
        k("s_branch L_k1_pld")
        k("L_k1_plC:")
        param_loads(PP, sMH, vT[1])
    srd(k, SP0, pCre, 640*1280)
    srd(k, SP1, pCim, 640*1280)
    cr_, cc_ = (vSL, vII) if opt("cs", 0) else (vII, vSL)
    k("v_mul_u32_u24 v%d, 1280, v%d\nv_lshl_add_u32 v%d, v%d, 4, v%d" % (vT[1], cr_, vT[1], cc_, vT[1]))
    k("s_cmp_lt_u32 s%d, 40\ns_cselect_b32 s%d, s%d, 0\ns_cselect_b32 s%d, s%d, 0" % (sPQ[0], SP0+2, SP0+2, SP1+2, SP1+2))
    for n in range(2):
        k("s_mul_i32 s%d, s%d, 20480\ns_lshl_b32 s%d, s%d, 7\ns_add_u32 s%d, s%d, s%d" % (sT1, sPQ[n], sT2, sPR[n], sT1, sT1, sT2))
        k("s_add_u32 s%d, s%d, 10240" % (sT2, sT1))
        for part in range(2):
            for hh in range(2):
                k("buffer_load_dwordx4 %s, v%d, %s, s%d offen%s" % (vr(PK2+16*n+(part*2+hh)*4, 4), vT[1], sq(SP0 if part == 0 else SP1), sT2 if hh else sT1, PNT))
    k("L_k1_pld:")
    k("v_mov_b32 v13, 0x3f803f80")
    ev(1)
    k("s_waitcnt vmcnt(%d)" % (16 if PA else 8))
    ev(2)
    stamp(k, 7)
    def unpack(dst, src, n):
        for d in range(n): k("v_lshlrev_b32 v%d, 16, v%d\nv_and_b32 v%d, s%d, v%d" % (dst+2*d, src+d, dst+2*d+1, sMASK, src+d))
    def row_sum(regs):
        for n in (8, 4, 2, 1):
            for r in regs: k("v_add_f32_dpp v%d, v%d, v%d%s" % (r, r, r, ror(n)))
    def tree(dst, src, n):
        k("v_add_f32 v%d, v%d, v%d\nv_add_f32 v%d, v%d, v%d" % (dst, src, src+1, dst+1, src+2, src+3))
        for d in range(4, n, 2): k("v_add_f32 v%d, v%d, v%d\nv_add_f32 v%d, v%d, v%d" % (dst, dst, src+d, dst+1, dst+1, src+d+1))
        k("v_add_f32 v%d, v%d, v%d" % (dst, dst, dst+1))
    A, B = T+40, T+42
    def dsum(dst, src, n, sq_):
        for d in range(n):
            k("v_dot2_f32_bf16 v%d, v%d, v%d, %s" % (dst+(d & 1), src+d, src+d if sq_ else 13, "v%d" % (dst+(d & 1)) if d > 1 else "0"))
    dsum(A, XR, 20, False)
    dsum(B, XR, 20, True)
    k("v_add_f32 v%d, v%d, v%d\nv_add_f32 v%d, v%d, v%d" % (A, A, A+1, B, B, B+1))
    row_sum([A, B])
    k("v_mul_f32 v%d, %s, v%d" % (A, f32(1/640.), A))
    k("v_mul_f32 v%d, %s, v%d" % (B, f32(1/640.), B))
    k("v_fma_f32 v%d, -v%d, v%d, v%d\nv_max_f32 v%d, 0, v%d" % (B, A, A, B, B, B))
    bf16r(B, B)
    k("v_add_f32 v%d, %s, v%d" % (B, f32(1e-5), B))
    bf16r(B, B)
    k("v_sqrt_f32 v%d, v%d" % (B, B))
    k("s_mov_b32 s%d, 0" % sT3)
    k("L_k1_gn:")
    k("v_readfirstlane_b32 s%d, v%d" % (sNon, vN))
    k("s_add_u32 s%d, s%d, 1\ns_cmp_lg_u32 s%d, 0\ns_cbranch_scc1 L_k1_gnd" % (sT3, sT3, sNon))
    k("s_cmp_gt_u32 s%d, 0x40000\ns_cbranch_scc1 L_k1_gnd" % sT3)
    k("v_mov_b32 v%d, 0" % vT[1])
    k("global_load_dword v%d, v%d, %s%s\ns_waitcnt vmcnt(0)\ns_branch L_k1_gn" % (vN, vT[1], sp(pDbg), SC))
    k("L_k1_gnd:")
    k("s_max_u32 s%d, s%d, 1" % (sNon, sNon))
    k("v_cvt_pk_bf16_f32 v%d, v%d, v%d\nv_mov_b32 v%d, s%d" % (T+44, A, B, T+45, sNon))
    k("s_lshl_b32 s%d, s%d, 5\ns_add_u32 s%d, s%d, 0x%x" % (sT0, sC, sT0, sT0, RST_OFF))
    k("v_lshlrev_b32 v%d, 3, v%d" % (vT[2], vG))
    k("s_mov_b32 exec_lo, 0x00010001\ns_mov_b32 exec_hi, 0x00010001")
    k("buffer_store_dwordx2 %s, v%d, %s, s%d offen%s" % (vr(T+44, 2), vT[2], sq(SWS), sT0, SC))
    k("s_mov_b64 exec, -1")
    k("s_cmp_eq_u32 s%d, 1\ns_cbranch_scc1 L_k1_D1b" % sMH)
    k("v_and_b32 v%d, 1, v%d\nv_lshlrev_b32 v%d, 4, v%d\nv_mov_b32 v%d, 0x3f80\nv_lshlrev_b32 v%d, v%d, v%d" % (T+8, vM, T+8, T+8, T+9, T+8, T+8, T+9))
    k("v_bfe_u32 v%d, v%d, 1, 2" % (T+9, vM))
    for d in range(4): k("v_cmp_eq_u32 vcc, %d, v%d\nv_cndmask_b32 v%d, 0, v%d, vcc" % (d, T+9, T+d, T+8))
    for a in range(16): k("v_mfma_f32_16x16x32_bf16 %s, %s, %s, %s" % (vr(T+4, 4), vr(T, 4), vr(YR+4*a, 4), vr(T+4, 4) if a else "0"))
    k("s_lshl_b32 s%d, s%d, 9\ns_add_u32 s%d, s%d, 0x%x\ns_cmp_lt_u32 s%d, 240\ns_cselect_b32 s%d, s%d, 0x%x" % (sT0, sG_, sT0, sT0, SG_OFF, sG_, sT0, sT0, WS_NREC))
    k("v_lshlrev_b32 v%d, 5, v%d\nv_lshl_add_u32 v%d, v%d, 6, v%d\nv_add_u32 v%d, s%d, v%d" % (T+8, vG, T+8, vSL, T+8, T+8, sT0, T+8))
    for r in range(4): k("v_mov_b32 v%d, s%d" % (T+13+2*r, sNon))
    for r in range(4): k("v_add_f32_dpp v%d, v%d, v%d%s" % (T+12+2*r, T+4+r, T+4+r, DPP))
    k("s_mov_b32 exec_lo, 0x00ff00ff\ns_mov_b32 exec_hi, 0")
    k("buffer_store_dwordx4 %s, v%d, %s, 0 offen%s" % (vr(T+12, 4), T+8, sq(SWS), SC))
    k("buffer_store_dwordx4 %s, v%d, %s, 0 offen offset:16%s" % (vr(T+16, 4), T+8, sq(SWS), SC))
    k("s_mov_b64 exec, -1")
    k("s_branch L_k1_Dc")
    k("L_k1_D1b:")
    for hh in range(2): dsum(A+2*hh, YR+20*hh, 20, False)
    k("v_add_f32 v%d, v%d, v%d\nv_add_f32 v%d, v%d, v%d" % (A, A, A+1, A+2, A+2, A+3))
    row_sum([A, A+2])
    k("v_mov_b32 v%d, s%d\nv_mov_b32 v%d, s%d" % (A+1, sNon, A+3, sNon))
    k("s_lshl_b32 s%d, s%d, 6\ns_add_u32 s%d, s%d, 0x%x\ns_cmp_lt_u32 s%d, 160\ns_cselect_b32 s%d, s%d, 0x%x" % (sT0, sG_, sT0, sT0, SB_OFF, sG_, sT0, sT0, WS_NREC))
    k("v_add_u32 v%d, s%d, v%d" % (vT[3], sT0, vT[2]))
    k("s_mov_b32 exec_lo, 0x00010001\ns_mov_b32 exec_hi, 0x00010001")
    k("buffer_store_dwordx2 %s, v%d, %s, 0 offen%s" % (vr(A, 2), vT[3], sq(SWS), SC))
    k("buffer_store_dwordx2 %s, v%d, %s, 0 offen offset:32%s" % (vr(A+2, 2), vT[3], sq(SWS), SC))
    k("s_mov_b64 exec, -1")
    k("L_k1_Dc:")
    ev(3)
    PSC = S1
    k("s_waitcnt vmcnt(3)")
    k("s_cmp_eq_u32 s%d, 1\ns_cbranch_scc1 %s" % (sTY, "L_k1_pdd" if PA else "L_k1_pdC"))
    k("s_cmp_ge_u32 s%d, 48\ns_cbranch_scc1 L_k1_pdd" % sPQ[0])
    k("s_mul_i32 s%d, s%d, %d\ns_add_u32 s%d, s%d, 49152" % (sT2, sMH, SL, sT2, sT2))
    k("v_lshlrev_b32 v%d, 4, v%d\nv_add_u32 v%d, s%d, v%d" % (T+1, vL, T, sT2, T+1))
    k("v_lshrrev_b32 v%d, 2, v%d\nv_lshl_add_u32 v%d, v%d, 2, v%d\nv_lshlrev_b32 v%d, 7, v%d" % (T+2, vM, T+2, vG, T+2, T+2, T+2))
    k("v_and_b32 v%d, 3, v%d\nv_lshl_add_u32 v%d, v%d, 3, v%d\nv_add_u32 v%d, s%d, v%d" % (T+3, vM, T+2, T+3, T+2, T+2, sT2, T+2))
    for n in range(2):
        for a in range(4): k("ds_write_b128 v%d, %s offset:%d" % (T, vr(PK+16*n+4*a, 4), a*1024))
        k("s_waitcnt lgkmcnt(0)")
        for c4 in range(4):
            k("ds_read_b64_tr_b16 %s, v%d offset:%d" % (vr(PK+16*n+c4*4, 2), T+2, c4*32))
            k("ds_read_b64_tr_b16 %s, v%d offset:%d" % (vr(PK+16*n+c4*4+2, 2), T+2, c4*32+2048))
        for c4 in range(4):
            k("s_lshl_b32 s%d, s%d, 2\ns_add_u32 s%d, s%d, %d\ns_mul_i32 s%d, s%d, 52\ns_lshr_b32 s%d, s%d, 8" % (sT0, sPR[n], sT0, sT0, c4, sT1, sT0, sT1, sT1))
            k("s_mul_i32 s%d, s%d, 435\ns_add_u32 s%d, s%d, s%d\ns_mul_i32 s%d, s%d, 5\ns_add_u32 s%d, s%d, s%d" % (sT1, sT1, sT1, sT1, sT0, sT0, sPQ[n], sT1, sT1, sT0))
            k("s_lshl_b32 s%d, s%d, 10\ns_add_u32 s%d, s%d, %d" % (sT1, sT1, sT1, sT1, B2_OFF))
            k("s_waitcnt lgkmcnt(%d)" % (6-2*c4))
            k("buffer_store_dwordx4 %s, v%d, %s, s%d offen%s" % (vr(PK+16*n+c4*4, 4), T+1, sq(SWS), sT1, PSC))
    if not PA: k("s_branch L_k1_pdd")
    k("L_k1_pdC:")
    k("s_cmp_ge_u32 s%d, 40\ns_cbranch_scc1 L_k1_pdd" % sPQ[0])
    k("v_lshrrev_b32 v%d, 1, v%d\nv_mul_u32_u24 v%d, 5120, v%d" % (T+1, cc_, T+1, T+1))
    k("v_and_b32 v%d, 1, v%d\nv_lshl_add_u32 v%d, v%d, 5, v%d\nv_lshl_add_u32 v%d, v%d, 4, v%d" % (T+2, cc_, T+2, T+2, cr_, T+1, T+2, T+1))
    for n in range(2):
        k("s_mul_i32 s%d, s%d, 52\ns_lshr_b32 s%d, s%d, 8\ns_mul_i32 s%d, s%d, 435\ns_add_u32 s%d, s%d, s%d" % (sT1, sPQ[n], sT1, sT1, sT1, sT1, sT1, sT1, sPQ[n]))
        k("s_mul_i32 s%d, s%d, 20\ns_add_u32 s%d, s%d, s%d\ns_add_u32 s%d, s%d, 240\ns_lshl_b32 s%d, s%d, 10\ns_add_u32 s%d, s%d, %d" % (sT0, sPR[n], sT1, sT1, sT0, sT1, sT1, sT1, sT1, sT1, sT1, B2_OFF))
        for r in range(8, 16): k("v_xor_b32 v%d, 0x80008000, v%d" % (PK2+16*n+r, PK2+16*n+r))
        for part in range(2):
            for hh in range(2):
                k("buffer_store_dwordx4 %s, v%d, %s, s%d offen offset:%d%s" % (vr(PK2+16*n+(part*2+hh)*4, 4), T+1, sq(SWS), sT1, part*256+hh*128, PSC))
    k("L_k1_pdd:")
    if opt("pw", 0):
        k("s_mul_i32 s%d, s%d, 22528\nv_lshlrev_b32 v%d, 4, v%d" % (sT0, sC, T+3, vL))
        for j in range(22):
            k("buffer_store_dwordx4 %s, v%d, %s, s%d offen offset:%d sc1" % (vr(XR, 4), T+3, sq(SWS), sT0, (j & 3)*1024))
            if j & 3 == 3: k("s_add_u32 s%d, s%d, 4096" % (sT0, sT0))
    ev(4)
    k("s_lshl_b32 s%d, s%d, 2\ns_add_u32 s%d, s%d, 0x%x\nv_mov_b32 v%d, s%d\nv_mov_b32 v%d, s%d" % (sT0, sC, sT0, sT0, PF_OFF, T, sT0, T+1, sNon))
    k("s_waitcnt vmcnt(0)\ns_mov_b64 exec, 1")
    k("buffer_store_dword v%d, v%d, %s, 0 offen%s\ns_mov_b64 exec, -1" % (T+1, T, sq(SWS), SC))
    stamp(k, 2)
    ev(5)
    TB = 48
    k("s_cmp_eq_u32 s%d, 0\ns_cbranch_scc1 L_k1_ntb" % sTY)
    param_ab(PP, 80, 85, vT[1])
    k("v_cvt_f32_u32 v%d, v%d\nv_mul_f32 v%d, %s, v%d\nv_mul_f32 v%d, %s, v%d" % (vT[1], vG, vT[2], f32(64.0), vT[1], vT[1], f32(16.0), vT[1]))
    cpow5(r5(TB), r5(TB+5), f32(256.0), 90, 95, 80, 85)
    cpow5(r5(TB+12), r5(TB+17), "v%d" % vT[2], 90, 95, 80, 85)
    cpow5(r5(TB+22), r5(TB+27), "v%d" % vT[1], 90, 95, 80, 85)
    k("L_k1_ntb:")
    EI = 16
    aSt, aS0, aS1 = 40, 41, 42
    k("s_lshl_b32 s%d, s%d, 1\ns_add_u32 s%d, s%d, s%d\ns_lshl_b32 s%d, s%d, 9\ns_add_u32 s%d, s%d, 0x%x" % (sT0, sI, sT0, sT0, sMH, sT0, sT0, sT0, sT0, RST_OFF))
    k("v_lshrrev_b32 v%d, 2, v%d\nv_lshlrev_b32 v%d, 4, v%d\nv_lshl_add_u32 v%d, v%d, 2, v%d" % (aSt, vM, aSt, aSt, aSt, vG, aSt))
    k("v_and_b32 v%d, 3, v%d\nv_add_u32 v%d, v%d, v%d\nv_lshl_add_u32 v%d, v%d, 3, s%d" % (aS0, vM, aSt, aSt, aS0, aSt, aSt, sT0))
    k("s_cmp_eq_u32 s%d, 1\ns_cbranch_scc1 L_k1_eaB" % sTY)
    k("s_lshl_b32 s%d, s%d, 6\ns_add_u32 s%d, s%d, s%d\ns_lshl_b32 s%d, s%d, 3\ns_add_u32 s%d, s%d, 0x%x" % (sT0, sMH, sT0, sT0, sCol, sT0, sT0, sT0, sT0, SG_OFF))
    k("v_lshl_add_u32 v%d, v%d, 3, s%d\nv_add_u32 v%d, %d, v%d" % (aS0, vL, sT0, aS1, 1536*8, aS0))
    k("s_mov_b32 s%d, %d" % (sKw, 3072*8))
    k("s_branch L_k1_ead")
    k("L_k1_eaB:")
    k("s_lshl_b32 s%d, s%d, 5\ns_add_u32 s%d, s%d, s%d\ns_lshl_b32 s%d, s%d, 3\ns_add_u32 s%d, s%d, 0x%x" % (sT0, sMH, sT0, sT0, sCol, sT0, sT0, sT0, sT0, SG_OFF))
    k("v_lshrrev_b32 v%d, 5, v%d\nv_mul_u32_u24 v%d, 1504, v%d\nv_add_u32 v%d, v%d, v%d\nv_lshl_add_u32 v%d, v%d, 3, s%d" % (aS0, vL, aS0, aS0, aS0, aS0, vL, aS0, aS0, sT0))
    k("s_mul_i32 s%d, s%d, 80\ns_mul_i32 s%d, s%d, 40\ns_add_u32 s%d, s%d, s%d\ns_lshl_b32 s%d, s%d, 3\ns_add_u32 s%d, s%d, 0x%x" % (sT0, sJJ, sT1, sMH, sT0, sT0, sT1, sT0, sT0, sT0, sT0, SB_OFF))
    k("v_lshrrev_b32 v%d, 3, v%d\nv_mul_u32_u24 v%d, 640, v%d\nv_add_u32 v%d, v%d, v%d\nv_lshl_add_u32 v%d, v%d, 3, s%d" % (aS1, vM, aS1, aS1, aS1, aS1, vSL, aS1, aS1, sT0))
    k("s_mov_b32 s%d, 64" % sKw)
    k("L_k1_ead:")
    ev(6)
    wait_word("L_k1_pg", 36, "%d" % opt("pfgate", 9), T, T+1)
    k("s_mov_b32 s%d, 0" % sT3)
    k("s_lshl_b32 s%d, s%d, 10\ns_add_u32 s%d, s%d, 0x%x\nv_lshlrev_b32 v43, 4, v%d" % (sKx, sMH, sKx, sKx, PF_OFF, vL))
    k("L_k1_pfl:")
    k("buffer_load_dwordx4 v[44:47], v43, %s, s%d offen%s\ns_waitcnt vmcnt(0)" % (sq(SWS), sKx, SC))
    k("v_xor_b32 v%d, s%d, v44" % (T, sNon))
    for r_ in (45, 46, 47): k("v_xor_b32 v%d, s%d, v%d\nv_or_b32 v%d, v%d, v%d" % (T+1, sNon, r_, T, T, T+1))
    k("v_cmp_ne_u32 vcc, 0, v%d" % T)
    k("s_add_u32 s%d, s%d, 1" % (sT3, sT3))
    k("s_cbranch_vccz L_k1_pfd")
    k("s_sleep 16\ns_cmp_lt_u32 s%d, 0x40000\ns_cbranch_scc1 L_k1_pfl" % sT3)
    k("L_k1_pfd:")
    ev(7)
    k("s_lshl_b32 s%d, s%d, 2\ns_add_u32 s%d, s%d, %d\nv_mov_b32 v%d, s%d\nv_mov_b32 v%d, s%d" % (sT0, sMH, sT0, sT0, FLG+24, T+6, sT0, T+7, sNon))
    k("ds_write_b32 v%d, v%d offset:16" % (T+6, T+7))
    k("v_mov_b32 v%d, %d" % (T+2, FLG+40))
    k("L_k1_pf2:")
    k("ds_read_b64 %s, v%d\ns_waitcnt lgkmcnt(0)\nv_min_u32 v%d, v%d, v%d\nv_readfirstlane_b32 s%d, v%d" % (vr(T, 2), T+2, T, T, T+1, sT0, T))
    k("s_cmp_lg_u32 s%d, 0\ns_cbranch_scc1 L_k1_pf2o\ns_sleep 1\ns_branch L_k1_pf2\nL_k1_pf2o:" % sT0)
    wait_word("L_k1_eg", 36, "%d" % opt("eigate", 9), T, T+1)
    k("buffer_load_dwordx2 %s, v%d, %s, 0 offen%s" % (vr(EI, 2), aSt, sq(SWS), SC))
    for p in range(5):
        k("s_mov_b32 s%d, %d\ns_mul_i32 s%d, s%d, %d" % (sT0, p*3072*8, sT1, sKw, p))
        k("buffer_load_dwordx2 %s, v%d, %s, s%d offen%s" % (vr(EI+2+2*p, 2), aS0, sq(SWS), sT0, SC))
        k("buffer_load_dwordx2 %s, v%d, %s, s%d offen%s" % (vr(EI+12+2*p, 2), aS1, sq(SWS), sT1, SC))
    k("s_cmp_eq_u32 s%d, 0\ns_cbranch_scc1 L_k1_ntw" % sTY)
    k("v_mov_b32 v%d, %d" % (T+2, FLG))
    wait_done("L_k1_tbw", "16", T+2, T+8)
    k("s_mul_i32 s%d, s%d, %d\ns_add_u32 s%d, s%d, %d\nv_add_u32 v43, s%d, v43" % (sT0, sMH, 2*80*TRP, sT0, sT0, TRB, sT0))
    for w2 in range(2):
        for qd in range(8): k("ds_write_b128 v43, %s offset:%d" % (vr(TB+4*qd, 4), w2*80*TRP+qd*1024))
    k("L_k1_ntw:")
    k("s_waitcnt vmcnt(0)")
    k("L_k1_eid:")
    ev(8)
    k("v_lshlrev_b32 v%d, 16, v%d\nv_and_b32 v%d, s%d, v%d\nv_rcp_f32 v%d, v%d" % (T, EI, T+1, sMASK, EI, T+2, T+1))
    k("s_mul_i32 s%d, s%d, 768\ns_add_u32 s%d, s%d, %d" % (sT0, sMH, sT0, sT0, STAT_M))
    k("v_lshl_add_u32 v%d, v%d, 2, s%d" % (T+3, vL, sT0))
    k("ds_write_b32 v%d, v%d\nds_write_b32 v%d, v%d offset:256\nds_write_b32 v%d, v%d offset:512" % (T+3, T, T+3, T+2, T+3, T+1))
    def sum5(b): k("v_add_f32 v%d, v%d, v%d\nv_add_f32 v%d, v%d, v%d\nv_add_f32 v%d, v%d, v%d\nv_add_f32 v%d, v%d, v%d" % (b, b, b+2, b+4, b+4, b+6, b, b, b+8, b, b, b+4))
    sum5(EI+2)
    k("s_lshl_b32 s%d, s%d, 9\ns_add_u32 s%d, s%d, %d" % (sT0, sMH, sT0, sT0, SFF))
    k("v_lshl_add_u32 v%d, v%d, 2, s%d" % (T+4, vL, sT0))
    k("ds_write_b32 v%d, v%d" % (T+4, EI+2))
    k("s_cmp_eq_u32 s%d, 1\ns_cbranch_scc1 L_k1_ewB" % sTY)
    sum5(EI+12)
    k("ds_write_b32 v%d, v%d offset:256" % (T+4, EI+12))
    k("s_branch L_k1_ewd")
    k("L_k1_ewB:")
    k("s_mul_i32 s%d, s%d, 384\ns_add_u32 s%d, s%d, %d" % (sT0, sMH, sT0, sT0, SSS))
    k("v_lshl_add_u32 v%d, v%d, 2, s%d" % (T+5, vM, sT0))
    for p in range(5): k("ds_write_b32 v%d, v%d offset:%d" % (T+5, EI+12+2*p, p*64))
    k("L_k1_ewd:")
    k("ds_write_b32 v%d, v%d" % (T+6, T+7))
    k("v_mov_b32 v72, %d\nv_mov_b32 v73, 0" % (FLG+48))
    k("L_k1_P2:")
    if opt("p2prio", 0): k("s_setprio %d" % opt("p2prio", 0))
    stamp(k, 1)
    if TRACE:
        k("s_lshl_b32 s83, s2, 11\ns_add_u32 s83, s83, 0x%x\nv_lshl_add_u32 v12, v0, 2, s83" % (STAMP_OFF + 0x40000))
        k("global_store_dword v12, v255, %s" % sp(pWs))
    LD2 = ["", " sc1", " nt", " sc0 sc1", " sc1 nt"][opt("ld2", 1)]
    sP, sMI, sNI = 4, 5, 6
    sAb, sBb = [72, 73, 74], [75, 76, 77]
    sR, sSh = 78, 79
    SO = SX
    AR, BR, AC = 12, 76, 176
    vA = [2, 3, 4, 5]; vB0, vB1, vOut, vLd, vFl, vFa = 6, 7, 8, 9, 10, 11
    k("s_sub_u32 s%d, s%d, 4" % (sP, sW))
    k("s_and_b32 s%d, s2, 7\ns_lshr_b32 s%d, s2, 3" % (sT0, sT1))
    k("s_lshr_b32 s%d, s%d, 1\ns_lshl_b32 s%d, s%d, 3\ns_and_b32 s%d, s%d, 7\ns_add_u32 s%d, s%d, s%d" % (sMI, sT0, sMI, sMI, sT2, sT1, sMI, sMI, sT2))
    k("s_and_b32 s%d, s%d, 1\ns_lshl_b32 s%d, s%d, 2\ns_lshr_b32 s%d, s%d, 3\ns_add_u32 s%d, s%d, s%d" % (sNI, sT0, sNI, sNI, sT2, sT1, sNI, sNI, sT2))
    X_, D_, ST_, PFr, tA, tB, tC = AR, AR+10, AR+20, AR+24, AR+32, AR+33, AR+34
    k("v_bfe_u32 v%d, v%d, 1, 2\nv_xor_b32 v%d, v%d, v%d\nv_mul_u32_u24 v%d, 320, v%d\nv_lshl_add_u32 v%d, v%d, 4, v%d" % (tA, vM, tA, tA, vG, vOut, vM, vOut, tA, vOut))
    k("v_lshlrev_b32 v%d, 4, v%d\nv_add_u32 v%d, 4096, v%d" % (vB0, vL, vB1, vB0))
    for f in range(4): k("s_xor_b32 s%d, s%d, %d\ns_lshl_b32 s%d, s%d, 10\nv_add_u32 v%d, s%d, v%d" % (sT0, sP, f, sT0, sT0, vA[f], sT0, vB0))
    k("s_mul_i32 s%d, s%d, %d\ns_mul_i32 s%d, s%d, %d\ns_add_u32 s%d, s%d, 0x%x" % (sBb[0], sMI, 88*4096, sBb[1], sNI, 88*5120, sBb[1], sBb[1], B2_OFF))
    for g, (mul, add) in enumerate(((8, 0), (4, 32), (10, 48))):
        k("s_mul_i32 s%d, s%d, %d\ns_add_u32 s%d, s%d, %d" % (sAb[g], sP, mul, sAb[g], sAb[g], add))
    def region(dst, src):
        k("s_and_b32 s%d, s%d, 1\ns_mul_i32 s%d, s%d, 25600\ns_cmp_lt_u32 s%d, 2\ns_cselect_b32 s%d, %d, 0\ns_add_u32 s%d, s%d, s%d" % (dst, src, dst, dst, src, sT0, 2*SL, dst, dst, sT0))
    region(sR, sP)
    k("v_add_u32 v%d, s%d, v%d\nv_add_u32 v%d, s%d, v%d" % (vLd, sR, vB0, vOut, sR, vOut))
    k("s_lshl_b32 s%d, s%d, 2\ns_add_u32 s%d, s%d, s%d\ns_mul_i32 s%d, s%d, %d\ns_add_u32 s%d, s%d, 0x%x" % (sSh, sMI, sSh, sSh, sP, sSh, sSh, FLS_, sSh, sSh, FL_OFF))
    k("v_and_b32 v%d, 15, v%d\nv_lshlrev_b32 v%d, 2, v%d\nv_mov_b32 v%d, %d" % (vFa, vL, vFa, vFa, PFr+2, FLG+32))
    k("s_waitcnt vmcnt(0)\nds_write_b32 v72, v73")
    steps = [(0, i) for i in (0, 2, 4, 6, 1, 3, 5, 7)] + [(1, i) for i in range(4)] + [(2, i) for i in range(10)]
    fgrp = {0: 0, 4: 3, 8: 1, 12: 2}
    NS = len(steps)
    sK = list(range(16, 32)) + list(range(34, 40))
    ROT = opt("rot", 0)
    k("s_lshr_b32 s%d, s2, 3\ns_and_b32 s%d, s%d, 7\ns_lshr_b32 s%d, s%d, 3" % (sT1, sT0, sT1, sT1, sT1))
    if ROT:
        k("s_add_u32 s%d, s%d, s%d\ns_and_b32 s%d, s%d, 3" % (sT2, sT0, sT1, sT2, sT2))
        k("s_mul_i32 s%d, s%d, 3\ns_add_u32 s%d, s%d, s%d\ns_cmp_ge_u32 s%d, 10\ns_cselect_b32 s%d, 10, 0\ns_sub_u32 s%d, s%d, s%d" % (sT3, sT1, sT3, sT3, sT0, sT3, sT0, sT3, sT3, sT0))
    else:
        k("s_mov_b32 s%d, 0\ns_mov_b32 s%d, 0" % (sT2, sT3))
    for j in range(4):
        k("s_add_u32 s%d, s%d, %d\ns_and_b32 s%d, s%d, 3\ns_add_u32 s%d, s%d, s%d\ns_lshl_b32 s%d, s%d, 1\ns_add_u32 s%d, s%d, s%d\ns_add_u32 s%d, s%d, 1" %
          (sT0, sT2, j, sT0, sT0, sK[8+j], sT0, sAb[1], sT0, sT0, sK[j], sT0, sAb[0], sK[4+j], sK[j]))
    for j in range(10):
        k("s_add_u32 s%d, s%d, %d\ns_cmp_ge_u32 s%d, 10\ns_cselect_b32 s%d, 10, 0\ns_sub_u32 s%d, s%d, s%d\ns_add_u32 s%d, s%d, s%d" % (sT0, sT3, j, sT0, sT1, sT0, sT0, sT1, sK[12+j], sT0, sAb[2]))
    LS = [[7, 10, 13, 16, 19], [17, 18, 19, 20, 21], [9, 12, 15, 18, 21], [13, 15, 17, 19, 21], [], [20, 21]][opt("lsl", 2)]
    NA, NB = 4, 5
    vm = []
    THR = opt("thr", 0)
    def ldB(s, buf):
        g, i = steps[s]
        o = (["s_waitcnt vmcnt(%d)" % THR] if THR else []) + ["s_mul_i32 s%d, s%d, 5120\ns_add_u32 s%d, s%d, s%d" % (sT1, sK[s], sT1, sT1, sBb[1])]
        for f in range(5):
            o.append("buffer_load_dwordx4 %s, v%d, %s, s%d offen offset:%d%s" % (vr(BR+buf*20+f*4, 4), vB1 if f == 4 else vB0, sq(SWS), sT1, (f & 3)*1024, LD2))
            vm.append(("B", s))
        return o
    def ldA(s):
        g, i = steps[s]
        o = (["s_waitcnt vmcnt(%d)" % THR] if THR else []) + ["s_lshl_b32 s%d, s%d, 12\ns_add_u32 s%d, s%d, s%d" % (sT0, sK[s], sT0, sT0, sBb[0])]
        for f in range(4):
            o.append("buffer_load_dwordx4 %s, v%d, %s, s%d offen%s" % (vr(AR+(s % NA)*16+f*4, 4), vA[f], sq(SWS), sT0, LD2))
            vm.append(("A", s))
        return o
    def vwait(tags):
        idx = max(i for i, x in enumerate(vm) if x in tags)
        return min(63, len(vm)-1-idx)
    bbuf = {}
    k("L_k1_p2e:")
    k("ds_read_b128 %s, v%d\ns_waitcnt lgkmcnt(0)\nv_min_u32 v%d, v%d, v%d\nv_readfirstlane_b32 s%d, v%d\nv_readfirstlane_b32 s%d, v%d" % (vr(PFr+4, 4), PFr+2, PFr+6, PFr+6, PFr+7, sNon, PFr+6, sT0, PFr+5))
    k("s_cmp_lt_u32 s%d, %d\ns_cselect_b32 s%d, 0, s%d\ns_cmp_lg_u32 s%d, 0\ns_cbranch_scc1 L_k1_p2eo\ns_sleep 1\ns_branch L_k1_p2e\nL_k1_p2eo:" % (sT0, opt("bgate", 10), sT0, sNon, sT0))
    streamed = [s for s in range(NS) if s not in LS]
    NPRE = opt("npre", NB)
    for j in range(NB):
        bbuf[streamed[j]] = j
        if j < NPRE:
            for x in ldB(streamed[j], j): k(x)
    nextB = NB
    srd(k, SO, pOut, 2048*640*4)
    k("v_mov_b32 v%d, %d" % (AR+40, FLG))
    k("s_and_b32 s%d, s%d, 2\ns_add_u32 s%d, s%d, 18" % (sT1, sP, sT1, sT1))
    stamp(k, 2)
    wait_done("L_k1_p2w", "s%d" % sT1, AR+40, AR+44)
    for j, s_ in enumerate(LS):
        g, i = steps[s_]
        if THR: k("s_waitcnt vmcnt(%d)" % THR)
        k("s_add_u32 m0, s%d, %d\ns_mul_i32 s%d, s%d, 5120\ns_add_u32 s%d, s%d, s%d" % (sR, j*5120, sT1, sK[s_], sT1, sT1, sBb[1]))
        for f in range(4):
            k("buffer_load_dwordx4 v%d, %s, s%d offen offset:%d%s lds" % (vB0, sq(SWS), sT1, f*1024, LD2)); vm.append(("L", s_))
        k("s_add_u32 m0, s%d, %d" % (sR, j*5120+4096))
        k("buffer_load_dwordx4 v%d, %s, s%d offen%s lds" % (vB1, sq(SWS), sT1, LD2)); vm.append(("L", s_))
    if opt("tb", 0):
        assert not ROT
        rest = streamed[NB:]
        tv, tj = AR+40, AR+41
        k("v_mul_u32_u24 v%d, 52, v%d\nv_lshrrev_b32 v%d, 8, v%d" % (tj, vL, tj, tj))
        k("v_mov_b32 v%d, s%d" % (tv, sK[rest[0]]))
        for j in range(1, len(rest)):
            k("v_cmp_le_u32 vcc, %d, v%d\nv_mov_b32 v%d, s%d\nv_cndmask_b32 v%d, v%d, v%d, vcc" % (j, tj, AR+42, sK[rest[j]], tv, tv, AR+42))
        k("v_mul_u32_u24 v%d, 5, v%d\nv_sub_u32 v%d, v%d, v%d" % (tj, tj, tj, vL, tj))
        k("s_lshr_b32 s%d, s2, 3\ns_and_b32 s%d, s%d, 7\ns_mul_i32 s%d, s%d, 640\ns_add_u32 s%d, s%d, s%d" % (sT0, sT0, sT0, sT0, sT0, sT0, sT0, sBb[1]))
        k("v_mul_u32_u24 v%d, 5120, v%d\nv_lshl_add_u32 v%d, v%d, 7, v%d" % (tv, tv, tv, tj, tv))
        k("buffer_load_dword v%d, v%d, %s, s%d offen%s" % (vFl, tv, sq(SWS), sT0, LD2)); vm.append(("T", 0))
    stamp(k, 3)
    k("s_add_u32 s40, s%d, s%d\ns_addc_u32 s41, s%d, 0" % (pWs, sSh, pWs+1))
    def flag_load(g):
        return "s_load_dwordx4 s[52:55], s[40:41], %d glc" % (g*16)
    def flag_check(g):
        lab = "L_k1_fc%d" % g
        k("s_mov_b32 s%d, 0\ns_branch %s_c" % (sT3, lab))
        k("%s_r:" % lab)
        k("s_sleep %d\n%s" % (opt("psl", 2), flag_load(g)))
        k("%s_c:" % lab)
        k("s_waitcnt lgkmcnt(0)")
        k("s_xor_b32 s52, s52, s%d\ns_xor_b32 s53, s53, s%d\ns_xor_b32 s54, s54, s%d\ns_xor_b32 s55, s55, s%d" % (sNon, sNon, sNon, sNon))
        k("s_add_u32 s%d, s%d, 1\ns_or_b64 s[52:53], s[52:53], s[54:55]\ns_cbranch_scc0 %s_d" % (sT3, sT3, lab))
        k("s_cmp_lt_u32 s%d, 0x100000\ns_cbranch_scc1 %s_r" % (sT3, lab))
        k("%s_d:" % lab)
        if opt("p2t", 0): k("s_memrealtime s[100:101]\ns_waitcnt lgkmcnt(0)\nv_writelane_b32 v1, s100, %d\nv_writelane_b32 v1, s%d, %d" % (32+g, sT3, 40+g))
    if opt("pd", 0): k("s_waitcnt vmcnt(0)\ns_sleep %d" % opt("pd", 0))
    k(flag_load(0))
    flag_check(0)
    stamp(k, 4)
    for s_ in range(NB):
        if s_ < NA:
            for x in ldA(s_): k(x)
        if s_ >= NPRE:
            for x in ldB(streamed[s_], s_): k(x)
    LEAD = {4: opt("ld3", 1), 8: opt("ld1", 2), 12: opt("ld2_", 2)}
    chkpos = {g: g - 1 - LEAD[g] for g in LEAD}
    nextA = NA
    if chkpos[4] == 0: k(flag_load(3))
    pend = []
    for s_ in range(NS):
        fill = pend; pend = []
        need = [("A", s_)] + ([("B", s_)] if s_ not in LS else [])
        mf_ = []
        for f in range(4):
            for cb in range(5):
                c = AC + (f*5+cb)*4
                mf_.append("v_mfma_f32_16x16x32_bf16 %s, %s, %s, %s" % (vr(c, 4), vr(BR+bbuf[s_]*20+cb*4, 4), vr(AR+(s_ % NA)*16+f*4, 4), vr(c, 4) if s_ else "0"))
        if opt("ilv", 1):
            nf = sum(1 for x in fill if x.startswith("buffer_load"))
            k("s_waitcnt vmcnt(%d)%s" % (max(0, vwait(need)-nf), " lgkmcnt(0)" if s_ in LS else ""))
            if opt("p2t", 0): k("s_memrealtime s[100:101]")
            interleave(k, mf_, fill, per=1)
            if opt("p2t", 0): k("s_waitcnt lgkmcnt(0)\nv_writelane_b32 v1, s100, %d" % s_)
        else:
            for x in fill: k(x)
            k("s_waitcnt vmcnt(%d)%s" % (vwait(need), " lgkmcnt(0)" if s_ in LS else ""))
            if opt("p2t", 0): k("s_memrealtime s[100:101]")
            for x in mf_: k(x)
            if opt("p2t", 0): k("s_waitcnt lgkmcnt(0)\nv_writelane_b32 v1, s100, %d" % s_)
        for g_ in chkpos:
            if chkpos[g_] == s_:
                if fgrp[g_] == 2: stamp(k, 0)
                flag_check(fgrp[g_])
                if fgrp[g_] == 2: stamp(k, 7)
        while nextA < NS and nextA <= s_ + NA and all(not (g_ <= nextA and chkpos[g_] > s_) for g_ in chkpos):
            pend += ldA(nextA); nextA += 1
        fb = bbuf[s_]
        if s_+2 in LS:
            bbuf[s_+2] = fb
            j = LS.index(s_+2)
            pend.append("s_waitcnt vmcnt(%d)" % vwait([("L", s_+2)]))
            for f in range(5): pend.append("ds_read_b128 %s, v%d offset:%d" % (vr(BR+fb*20+f*4, 4), vLd, j*5120+f*1024))
        elif nextB < len(streamed):
            bbuf[streamed[nextB]] = fb
            pend += ldB(streamed[nextB], fb); nextB += 1
        for g_ in chkpos:
            if chkpos[g_] == s_+1: pend.insert(0, flag_load(fgrp[g_]))
    stamp(k, 5)
    OSC = ["", " sc1", " nt", " sc0 sc1"][opt("osc", 1)]
    for f in (1, 2, 3, 0):
        for cb in range(5): k("ds_write_b128 v%d, %s offset:%d" % (vOut, vr(AC+(f*5+cb)*4, 4), f*5120+cb*64))
    for f in range(1, 4):
        k("s_xor_b32 s%d, s%d, %d" % (sT2, sP, f))
        region(sT1, sT2)
        k("v_add_u32 v%d, s%d, v%d" % (vA[f], sT1, vB0))
    k("s_mul_i32 s%d, s%d, %d\ns_add_u32 s%d, s%d, %d\nv_add_u32 v%d, s%d, v%d" % (sT1, sP, 80*TRP, sT1, sT1, TRB, vA[0], sT1, vB0))
    GO = BR + 40
    k("v_lshrrev_b32 v%d, 4, v%d" % (vFl, vB0))
    k("s_lshl_b32 s%d, s%d, 6\ns_lshl_b32 s%d, s%d, 2\ns_add_u32 s%d, s%d, s%d\ns_mul_i32 s%d, s%d, 2560\ns_mul_i32 s%d, s%d, 320\ns_add_u32 s%d, s%d, s%d" % (sT0, sMI, sT1, sP, sT0, sT0, sT1, sT0, sT0, sT1, sNI, sT3, sT0, sT1))
    R5 = range(5)
    e_, r_, q_, t_ = GO+5, GO+10, GO+15, GO+20
    for it in R5: k("v_add_u32 v%d, %d, v%d" % (e_+it, it*64, vFl))
    for it in R5: k("v_mul_u32_u24 v%d, 205, v%d" % (r_+it, e_+it))
    for it in R5: k("v_lshrrev_b32 v%d, 12, v%d" % (r_+it, r_+it))
    for it in R5: k("v_mul_u32_u24 v%d, 20, v%d\nv_bfe_u32 v%d, v%d, 1, 2" % (q_+it, r_+it, t_+it, r_+it))
    for it in R5: k("v_sub_u32 v%d, v%d, v%d" % (q_+it, e_+it, q_+it))
    for it in R5: k("v_xor_b32 v%d, v%d, v%d\nv_lshrrev_b32 v%d, 2, v%d" % (q_+it, q_+it, t_+it, t_+it, r_+it))
    for it in R5: k("v_mad_u32_u24 v%d, v%d, 12, v%d" % (r_+it, t_+it, r_+it))
    for it in R5: k("v_mul_u32_u24 v%d, 2560, v%d" % (r_+it, r_+it))
    for it in R5: k("v_lshl_add_u32 v%d, v%d, 4, v%d" % (GO+it, q_+it, r_+it))
    k("s_waitcnt lgkmcnt(0)\ns_barrier")
    for it in R5:
        for f in range(5):
            a_, off = (vA[f], f*5120) if f < 4 else (vLd, 0)
            if f == 0: off = 0
            k("ds_read_b128 %s, v%d offset:%d" % (vr(AR+(it*5+f)*4, 4), a_, off+it*1024))
        if it == 2: k("s_waitcnt lgkmcnt(5)")
    for it in R5:
        k("s_waitcnt lgkmcnt(%d)" % min(15, 20-5*it))
        q = AR+it*20
        for h in range(0, 4, 2):
            k("v_pk_add_f32 %s, %s, %s\nv_pk_add_f32 %s, %s, %s" % (vr(q+h, 2), vr(q+h, 2), vr(q+4+h, 2), vr(q+8+h, 2), vr(q+8+h, 2), vr(q+12+h, 2)))
        for h in range(0, 4, 2): k("v_pk_add_f32 %s, %s, %s" % (vr(q+h, 2), vr(q+h, 2), vr(q+16+h, 2)))
        for h in range(0, 4, 2): k("v_pk_add_f32 %s, %s, %s" % (vr(q+h, 2), vr(q+h, 2), vr(q+8+h, 2)))
        k("buffer_store_dwordx4 %s, v%d, %s, s%d offen%s" % (vr(q, 4), GO+it, sq(SO), sT3, OSC))
    stamp(k, 6)
    if opt("p2t", 0):
        k("s_lshl_b32 s83, s2, 11\ns_add_u32 s83, s83, 0x%x\nv_lshl_add_u32 v12, v0, 2, s83" % (STAMP_OFF + 0x40000))
        k("global_store_dword v12, v1, %s" % sp(pWs))
    stamp_out(k, 0, 8, pWs, 76)
    k("s_endpgm")

    k("L_k1_C:")
    k("s_setprio 3")
    k("s_mov_b64 s[48:49], %s\ns_mov_b64 s[50:51], %s\ns_mov_b64 s[52:53], %s" % (sp(pX), sp(pD), sp(pWs)))
    aX = [12, 13]; aW = [14, 15, 16, 17]
    XS = [20, 36]
    WR = 52
    ACC = 84
    k("v_lshrrev_b32 v%d, 1, v%d\nv_xor_b32 v%d, v%d, v%d\nv_lshlrev_b32 v%d, 4, v%d" % (vT[0], vM, vT[0], vT[0], vG, vT[0], vT[0]))
    k("v_lshl_add_u32 v%d, v%d, 7, v%d" % (vT[5], vM, vT[0]))
    k("s_lshl_b32 s%d, s%d, 13" % (sT0, sMH))
    k("v_add_u32 v%d, s%d, v%d\nv_xor_b32 v%d, 64, v%d" % (aX[0], sT0, vT[5], aX[1], aX[0]))
    k("v_lshrrev_b32 v%d, 2, v%d\nv_lshl_add_u32 v%d, v%d, 3, v%d\nv_lshlrev_b32 v%d, 7, v%d" % (vT[0], vM, vT[0], vG, vT[0], vT[0], vT[0]))
    k("v_and_b32 v%d, 1, v%d\nv_lshlrev_b32 v%d, 1, v%d\nv_lshrrev_b32 v%d, 3, v%d\nv_or_b32 v%d, v%d, v%d" % (vT[1], vG, vT[1], vT[1], vT[2], vM, vT[1], vT[1], vT[2]))
    k("v_lshl_add_u32 v%d, v%d, 5, v%d" % (vT[0], vT[1], vT[0]))
    k("v_and_b32 v%d, 3, v%d\nv_lshl_add_u32 v%d, v%d, 3, v%d\nv_add_u32 v%d, 16384, v%d" % (vT[1], vM, vT[0], vT[1], vT[0], vT[0], vT[0]))
    k("s_lshl_b32 s%d, s%d, 1\ns_add_u32 s%d, s%d, s%d" % (sC, sI, sC, sC, sMH))
    k("s_mov_b32 s%d, 0\ns_mov_b32 s%d, 0" % (sIt, sRd))
    k("s_cmp_eq_u32 s%d, 1\ns_cbranch_scc1 L_k1_CB" % sTY)

    def c_loop(tag, frags, R, D, WR, addr_regs, post):
        n = len(frags); N = 2*n
        assert N % R == 0
        def wreg(p): return WR + (p % R)*4
        def rdW(p): return frags[p % n][0]((p % N)//n, wreg(p))
        def rdX(h): return ["ds_read_b128 %s, v%d offset:%d" % (vr(XS[h]+4*b, 4), aX[h], b*2048) for b in range(4)]
        def mf(p): return [frags[p % n][1](b, XS[(p % N)//n]+4*b, wreg(p)) for b in range(4)]
        adv = ["s_mov_b32 s%d, %d\ns_add_u32 s%d, s%d, 1\ns_cmp_eq_u32 s%d, 3\ns_cselect_b32 s%d, 0, s%d\ns_cselect_b32 s%d, %d, s%d" % (sDelta, SL, sRd, sRd, sRd, sRd, sRd, sDelta, (-2*SL) & 0xffffffff, sDelta)]
        adv += ["v_add_u32 v%d, s%d, v%d" % (r, sDelta, r) for r in addr_regs]
        vFl, vFa, vDa, vDv = 18, vT[1], vT[2], vT[3]
        sF = sA
        import re as _re
        FLS = N - opt("fl", 3)
        def build():
            mfs = []; gaps = [[] for _ in range(4*N)]
            for j in range(N):
                loads = [("ld", x, ("W", j)) for x in rdW(j)]
                if j == 0: loads = [("ld", x, ("X0", b)) for b, x in enumerate(rdX(0)[:2])] + loads
                if j == 1: loads = [("ld", x, ("X0", b+2)) for b, x in enumerate(rdX(0)[2:])] + loads
                if D <= j < D+4: loads += [("ld", rdX(1)[j-D], ("X1", j-D))]
                if j == FLS: loads += [("ld", "ds_read_b64 %s, v%d " % (vr(vFl, 2), vFa), ("F", 0))]
                if j == N-1 or j == max(n-1, D+3): loads += [("ld", "ds_write_b32 v%d, v%d" % (vDa, vDv), ("DW", j))]
                p = j - D
                ms = mf(p % N)
                for b in range(4):
                    need = [("W", p % N)] + [("X%d" % ((p % N)//n), bb) for bb in range(4)]
                    mfs.append(("mf", ms[b], (need, p < 0)))
                    if b < 3:
                        if loads: gaps[j*4+b].append(loads.pop(0))
                    else: gaps[j*4+b] += loads
            def place(e, lo, hi=4*N-1):
                for cap in (0, 1, 2, 3):
                    for g in range(lo, hi+1):
                        if len(gaps[g]) + (1 if g % 4 == 3 else 0) <= cap:
                            gaps[g].append(e); return g
                raise Exception
            g = 4*D
            def place_s(txt, lo):
                for g in range(lo, 4*N):
                    if len(gaps[g]) + (1 if g % 4 == 3 else 0) <= 1:
                        gaps[g].append(("x", txt, None)); return g
            for txt in ("s_add_u32 s%d, s%d, 1" % (sRd, sRd), "s_cmp_eq_u32 s%d, 3" % sRd, "s_cselect_b32 s%d, s14, s15" % sDelta, "s_cselect_b32 s%d, 0, s%d" % (sRd, sRd), "s_add_u32 s%d, s%d, 1" % (sIt, sIt)):
                g = place_s(txt, g) + 1
            gd = g
            mid = max(n-1, D+3)
            place_s("v_add_u32 v%d, 1, v%d" % (vDv, vDv), gd)
            place(("x", "v_add_u32 v%d, 1, v%d" % (vDv, vDv), None), 4*mid+4, 4*(N-1)-1)
            g1 = place(("use", "v_min_u32 v%d, v%d, v%d" % (vFl, vFl, vFl+1), ([("F", 0)], False)), 4*(N-2)+2, 4*N-4)
            gaps[g1+1].append(("x", "v_readfirstlane_b32 s%d, v%d" % (sF, vFl), None))
            gaps[4*N-2].append(("x", "s_cmp_gt_u32 s%d, s%d" % (sF, sIt), None))
            for r in addr_regs:
                last = max(g for g in range(4*N) for x in gaps[g] if x[0] == "ld" and _re.search(r", v%d " % r, x[1]+" "))
                place(("x", "v_add_u32 v%d, s%d, v%d" % (r, sDelta, r), None), min(max(last+1, gd), 4*N-1))
            seq = []
            for m_, gp in zip(mfs, gaps): seq += [m_] + gp
            return seq
        def emit(seq, prev):
            issued = [(t, True) for t in prev]
            cur = 99
            for kind, text, tg in seq:
                if kind == "ld": issued.append((tg, False)); cur += 1
                elif kind == "lab": cur = 99
                elif kind in ("mf", "use"):
                    w = 15
                    for t in tg[0]:
                        idx = max(i for i, x in enumerate(issued) if x == (t, tg[1]))
                        w = min(w, len(issued)-1-idx)
                    if w < cur:
                        k("s_waitcnt lgkmcnt(%d)" % w); cur = w
                k(text)
        L = "L_k1_cl" + tag
        k("v_mov_b32 v%d, %d\nv_mov_b32 v%d, 0\ns_mov_b32 s14, %d\ns_mov_b32 s15, %d" % (vFa, FLG+16, vDv, (-2*SL) & 0xffffffff, SL))
        k("s_lshl_b32 s%d, s%d, 2\ns_add_u32 s%d, s%d, %d\nv_mov_b32 v%d, s%d" % (sT0, sW, sT0, sT0, FLG, vDa, sT0))
        s2 = build()
        allld = [x[2] for x in s2 if x[0] == "ld"]
        idx2 = next(i for i, x in enumerate(s2) if x[0] == "mf" and not x[2][1])
        k("%s_sp:" % L)
        k("ds_read_b64 %s, v%d\ns_waitcnt lgkmcnt(0)\nv_min_u32 v%d, v%d, v%d\nv_readfirstlane_b32 s%d, v%d" % (vr(vFl, 2), vFa, vFl, vFl, vFl+1, sF, vFl))
        k("s_cmp_gt_u32 s%d, s%d\ns_cbranch_scc0 %s_sp" % (sF, sIt, L))
        k("s_cmp_lg_u32 s%d, 0\ns_cbranch_scc1 %s" % (sIt, L))
        stamp(k, 5)
        for x in s2[:idx2]:
            if x[0] == "ld": k(x[1])
        k("s_branch %s_mid" % L)
        k(".p2align 6")
        k("%s:" % L)
        trace(sIt, 4, 1)
        if opt("clk", 0):
            k("s_cmp_lg_u32 s%d, 5\ns_cbranch_scc1 %s_nc\ns_memrealtime s[84:85]\ns_memtime s[90:91]\n%s_nc:" % (sIt, L, L))
        s2 = s2[:idx2] + [("lab", "%s_mid:" % L, None)] + s2[idx2:]
        emit(s2, allld)
        if TRACE:
            trace(sIt, 4, 0)
            k("s_cmp_gt_u32 s%d, s%d" % (sF, sIt))
        k("s_cbranch_scc1 %s" % L)
        k("s_cmp_lt_u32 s%d, 10\ns_cbranch_scc1 %s_sp" % (sIt, L))
        if opt("cprio", 3) != 3: k("s_setprio %d" % opt("cprio", 3))
        if opt("clk", 0): k("s_memrealtime s[94:95]\ns_memtime s[96:97]")
        k("ds_read_b64 %s, v%d offset:8" % (vr(vFl, 2), vFa))
        k("s_waitcnt lgkmcnt(6)")
        for x in mf(N-D): k(x)
        k("s_branch %s_ec" % L)
        k("%s_es:" % L)
        k("ds_read_b64 %s, v%d offset:8" % (vr(vFl, 2), vFa))
        k("%s_ec:" % L)
        k("s_waitcnt lgkmcnt(0)")
        k("v_min_u32 v%d, v%d, v%d\nv_readfirstlane_b32 s%d, v%d" % (vFl, vFl, vFl+1, sNon, vFl))
        k("s_cmp_eq_u32 s%d, 0\ns_cbranch_scc1 %s_es" % (sNon, L))
        tail = []
        for p in range(N-D+1, N): tail += mf(p)
        interleave(k, tail, post(), lead=2, per=1)

    c0 = -2*math.sqrt(2/math.pi)*LOG2E
    def ffn_epilogue(ACCF, ncb, S4, Mb, RSb, Sb, T, O, K0, vSt, blocks, defer=None):
        for bi, (b, pr_) in enumerate(blocks):
            sel = b & 1
            bc = lambda base: vr(base + (b & ~1), 2)
            os0 = " op_sel:[%d,0,0] op_sel_hi:[%d,1,1]" % (sel, sel)
            items = [(cb, hh) for cb in (2*pr_, 2*pr_+1) for hh in range(2)]
            G = lambda cb, hh: ACCF + (cb*4+b)*4 + 2*hh
            U = lambda cb, hh: ACCF + ((ncb+cb)*4+b)*4 + 2*hh
            Tm = lambda cb, hh: T + (cb & 1)*4 + 2*hh
            for cb, hh in items: k("v_pk_fma_f32 %s, %s, %s, %s%s neg_lo:[1,0,0] neg_hi:[1,0,0]" % (vr(G(cb,hh),2), bc(Mb), vr(S4+cb*4+2*hh,2), vr(G(cb,hh),2), os0))
            for cb, hh in items: k("v_pk_mul_f32 %s, %s, %s op_sel:[%d,0] op_sel_hi:[%d,1]" % (vr(G(cb,hh),2), bc(RSb), vr(G(cb,hh),2), sel, sel))
            for cb, hh in items: k("v_pk_mul_f32 %s, %s, %s" % (vr(Tm(cb,hh),2), vr(G(cb,hh),2), vr(G(cb,hh),2)))
            for cb, hh in items: k("v_pk_fma_f32 %s, %s, %s, %s op_sel:[0,0,1] op_sel_hi:[1,0,1]" % (vr(Tm(cb,hh),2), vr(Tm(cb,hh),2), vr(K0,2), vr(K0,2)))
            for cb, hh in items: k("v_pk_mul_f32 %s, %s, %s" % (vr(Tm(cb,hh),2), vr(Tm(cb,hh),2), vr(G(cb,hh),2)))
            for cb, hh in items:
                k("v_exp_f32 v%d, v%d\nv_exp_f32 v%d, v%d" % (Tm(cb,hh), Tm(cb,hh), Tm(cb,hh)+1, Tm(cb,hh)+1))
                k("v_pk_fma_f32 %s, %s, %s, %s%s neg_lo:[1,0,0] neg_hi:[1,0,0]" % (vr(U(cb,hh),2), bc(Mb), vr(S4+(ncb+cb)*4+2*hh,2), vr(U(cb,hh),2), os0))
            for cb, hh in items: k("v_pk_fma_f32 %s, %s, %s, %s op_sel:[0,%d,%d] op_sel_hi:[1,%d,%d]" % (vr(Tm(cb,hh),2), vr(Tm(cb,hh),2), bc(Sb), bc(Sb), sel, sel, sel, sel))
            for cb, hh in items:
                k("v_rcp_f32 v%d, v%d\nv_rcp_f32 v%d, v%d" % (Tm(cb,hh), Tm(cb,hh), Tm(cb,hh)+1, Tm(cb,hh)+1))
                k("v_pk_mul_f32 %s, %s, %s" % (vr(G(cb,hh),2), vr(G(cb,hh),2), vr(U(cb,hh),2)))
            for cb, hh in items: k("v_pk_mul_f32 %s, %s, %s" % (vr(G(cb,hh),2), vr(G(cb,hh),2), vr(Tm(cb,hh),2)))
            Ob = O + (bi & 1)*4 if defer is None else O[bi]
            for j_, (cb, hh) in enumerate(items): k("v_cvt_pk_bf16_f32 v%d, v%d, v%d" % (Ob+j_, G(cb,hh), G(cb,hh)+1))
            if pr_: k("s_add_u32 s%d, s%d, 4096" % (sT0, sKS))
            st_ = "buffer_store_dwordx4 %s, v%d, %s, s%d offen offset:%d%s" % (vr(Ob, 4), vSt, sq(SWS), sT0 if pr_ else sKS, b*1024, S1)
            if defer is None: k(st_)
            else: defer.append(st_)

    def a2_flag(group, nwait, va, vv):
        k("s_lshl_b32 s%d, s%d, 2\ns_lshr_b32 s%d, s%d, 1\ns_add_u32 s%d, s%d, s%d\ns_mul_i32 s%d, s%d, %d" % (sT0, sC, sT1, sJJ, sT0, sT0, sT1, sT0, sT0, FLS_))
        k("s_and_b32 s%d, s%d, 1\ns_lshl_b32 s%d, s%d, 1\ns_add_u32 s%d, s%d, s%d\ns_mul_i32 s%d, s%d, %d\ns_add_u32 s%d, s%d, s%d\ns_add_u32 s%d, s%d, 0x%x" % (sT1, sJJ, sT1, sT1, sT1, sT1, sNH, sT1, sT1, FSP, sT0, sT0, sT1, sT0, sT0, FL_OFF + group*FGS))
        k("v_mov_b32 v%d, s%d\nv_mov_b32 v%d, s%d" % (va, sT0, vv, sNon))
        k("s_waitcnt vmcnt(%d)\ns_mov_b64 exec, 1" % nwait)
        k("buffer_store_dword v%d, v%d, %s, 0 offen%s\ns_mov_b64 exec, -1" % (vv, va, sq(SWS), SC))

    def base_loads(R):
        k("s_and_b32 s%d, s2, 7\ns_lshr_b32 s%d, s2, 3" % (sT0, sT1))
        k("s_lshr_b32 s%d, s%d, 1\ns_lshl_b32 s%d, s%d, 3\ns_and_b32 s%d, s%d, 7\ns_add_u32 s%d, s%d, s%d" % (sT3, sT0, sT3, sT3, sT2, sT1, sT3, sT3, sT2))
        k("s_and_b32 s%d, s%d, 1\ns_lshl_b32 s%d, s%d, 2\ns_lshr_b32 s%d, s%d, 3\ns_add_u32 s%d, s%d, s%d\ns_mul_i32 s%d, s%d, 80" % (sT0, sT0, sT0, sT0, sT2, sT1, sT0, sT0, sT2, sT0, sT0))
        k("s_lshl_b32 s%d, s%d, 6\ns_lshl_b32 s%d, s%d, 2\ns_add_u32 s%d, s%d, s%d" % (sT3, sT3, sT1, sW, sT3, sT3, sT1))
        ra, rb, rc = R+22, R+23, R+24
        k("v_lshrrev_b32 v%d, 2, v%d\nv_lshlrev_b32 v%d, 4, v%d\nv_and_b32 v%d, 3, v%d\nv_add3_u32 v%d, v%d, v%d, s%d" % (ra, vM, ra, ra, rb, vM, ra, ra, rb, sT3))
        k("v_lshl_add_u32 v%d, v%d, 2, s%d" % (rb, vG, sT0))
        k("v_mul_u32_u24 v%d, 640, v%d\nv_add_u32 v%d, v%d, v%d\nv_lshlrev_b32 v%d, 1, v%d\nv_lshlrev_b32 v%d, 1, v%d" % (rc, ra, rc, rc, rb, rc, rc, rb, rb))
        k("v_lshlrev_b32 v%d, 3, v%d\nv_add_u32 v%d, 0x%x, v%d" % (ra, ra, ra, RST_OFF, ra))
        for cb in range(5):
            k("global_load_dwordx2 %s, v%d, %s offset:%d" % (vr(R+2*cb, 2), rc, sp(48), cb*32))
            k("global_load_dwordx2 %s, v%d, %s offset:%d" % (vr(R+10+2*cb, 2), rb, sp(50), cb*32))
        k("buffer_load_dword v%d, v%d, %s, 0 offen%s" % (R+20, ra, sq(SWS), SC))
    def base_compute(R):
        k("s_setprio 0")
        ST_ = R+20; X4, D4, T4 = R+28, R+48, R+68
        k("s_mul_i32 s%d, s%d, %d\ns_add_u32 s%d, s%d, %d" % (sT0, sW, 80*TRP, sT0, sT0, TRB))
        k("v_bfe_u32 v%d, v%d, 1, 2\nv_xor_b32 v%d, v%d, v%d\nv_mul_u32_u24 v%d, 320, v%d\nv_lshl_add_u32 v%d, v%d, 4, v%d\nv_add_u32 v%d, s%d, v%d" % (R+23, vM, R+23, R+23, vG, R+22, vM, R+22, R+23, R+22, R+22, sT0, R+22))
        k("v_mov_b32 v%d, %d" % (R+23, FLG))
        wait_done("L_k1_bw%d" % R, "16", R+23, R+24)
        k("s_waitcnt vmcnt(0)")
        k("v_and_b32 v%d, s%d, v%d\nv_lshlrev_b32 v%d, 16, v%d\nv_rcp_f32 v%d, v%d" % (ST_+1, sMASK, ST_, ST_, ST_, ST_+1, ST_+1))
        for d in range(10): k("v_lshlrev_b32 v%d, 16, v%d\nv_and_b32 v%d, s%d, v%d\nv_lshlrev_b32 v%d, 16, v%d\nv_and_b32 v%d, s%d, v%d" % (X4+2*d, R+d, X4+2*d+1, sMASK, R+d, D4+2*d, R+10+d, D4+2*d+1, sMASK, R+10+d))
        def rnd():
            for h in range(10): k("v_cvt_pk_bf16_f32 v%d, v%d, v%d" % (T4+20+h, T4+2*h, T4+2*h+1))
            for h in range(10): k("v_lshlrev_b32 v%d, 16, v%d\nv_and_b32 v%d, s%d, v%d" % (T4+2*h, T4+20+h, T4+2*h+1, sMASK, T4+20+h))
        for r in range(20): k("v_sub_f32 v%d, v%d, v%d" % (T4+r, X4+r, ST_))
        rnd()
        for r in range(20): k("v_mul_f32 v%d, v%d, v%d" % (T4+r, T4+r, ST_+1))
        rnd()
        for r in range(20): k("v_mul_f32 v%d, v%d, v%d" % (T4+r, T4+r, D4+r))
        rnd()
        for r in range(20): k("v_add_f32 v%d, v%d, v%d" % (T4+r, T4+r, X4+r))
        for cb in range(5): k("ds_write_b128 v%d, %s offset:%d" % (R+22, vr(T4+4*cb, 4), cb*64))
        k("s_waitcnt lgkmcnt(0)")

    def ffn_frag(ACCF, idx, areg, gu):
        rd = lambda h, reg: ["ds_read_b64_tr_b16 %s, v%d offset:%d" % (vr(reg+2*jx, 2), areg, h*4096+jx*512+gu*8192) for jx in range(2)]
        mf = lambda b, x, w: "v_mfma_f32_16x16x32_bf16 %s, %s, %s, %s" % (vr(ACCF+(idx*4+b)*4, 4), vr(w, 4), vr(x, 4), vr(ACCF+(idx*4+b)*4, 4))
        return (rd, mf)

    k("s_lshl_b32 s%d, s%d, 14" % (sT0, sNH))
    k("v_add_u32 v%d, s%d, v%d" % (aW[0], sT0, vT[0]))
    for c in range(1, 4): k("v_xor_b32 v%d, %d, v%d" % (aW[c], 32*c, aW[0]))
    k("s_lshr_b32 s%d, s%d, 5\ns_lshl_b32 s%d, s%d, 1\ns_add_u32 s%d, s%d, s%d\ns_mul_i32 s%d, s%d, 88\ns_add_u32 s%d, s%d, s%d\ns_lshl_b32 s%d, s%d, 12" % (sT0, sCol, sT1, sNH, sT0, sT0, sT1, sT1, sC, sT0, sT0, sT1, sKS, sT0))
    for r in range(0, 128, 2): k("v_mov_b64 v[%d:%d], 0" % (ACC+r, ACC+r+1))
    srd(k, SWS, pWs, WS_NREC)
    E = 212
    S4 = E; Mb, RSb, Sb = XS[0], XS[0]+4, XS[0]+8; K0 = XS[0]+12
    def postA():
        o = ["s_lshl_b32 s%d, s%d, 9\ns_add_u32 s%d, s%d, %d\nv_lshl_add_u32 v%d, v%d, 4, s%d" % (sT0, sNH, sT0, sT0, SFF, vT[1], vG, sT0),
             "s_mul_i32 s%d, s%d, 768\ns_add_u32 s%d, s%d, %d\nv_lshl_add_u32 v%d, v%d, 2, s%d" % (sT0, sMH, sT0, sT0, STAT_M, vT[2], vM, sT0)]
        for b in range(0, 4, 2):
            for a, off in ((Mb, 0), (RSb, 64), (Sb, 128)):
                o.append("ds_read2_b32 %s, v%d offset0:%d offset1:%d" % (vr(a+b, 2), vT[2], off+b*16, off+b*16+16))
        for j in range(8): o.append("ds_read_b128 %s, v%d offset:%d" % (vr(S4+4*j, 4), vT[1], j*64))
        o += ["v_lshlrev_b32 v%d, 4, v%d" % (vT[3], vL), "v_mov_b32 v%d, %s\nv_mov_b32 v%d, %s" % (K0, f32(c0*0.044715), K0+1, f32(c0))]
        return o
    fr = []
    for cb in range(4):
        for gu in range(2): fr.append(ffn_frag(ACC, gu*4+cb, aW[cb], gu))
    c_loop("A", fr, 8, opt("da", 5), WR, aX + aW, postA)
    stamp(k, 1)
    k("s_waitcnt lgkmcnt(0)")
    blk = [(b, p) for p in range(2) for b in range(4)]
    HF = opt("hf", 6)
    ffn_epilogue(ACC, 4, S4, Mb, RSb, Sb, E+32, XS[1], K0, vT[3], blk[:HF])
    a2_flag(0, HF-4, vT[0], vT[1])
    ffn_epilogue(ACC, 4, S4, Mb, RSb, Sb, E+32, XS[1], K0, vT[3], blk[HF:])
    stamp(k, 2)
    a2_flag(3, 0, vT[0], vT[1])
    stamp(k, 4)
    k("s_branch L_k1_base")

    k("L_k1_CB:")
    WRB = 52
    ACCF = 76
    ACCS = 140
    ca = Alloc(220)
    cLr = ca(5); cMu = ca(5); cKk = ca(5); c16r = ca(5); c16k = ca(5); cKr = ca(10, 2)
    assert ca.n <= (255 if TRACE else 256) + 1
    k("s_lshl_b32 s%d, s%d, 6" % (sT0, sNH))
    k("v_xor_b32 v%d, s%d, v%d\nv_xor_b32 v%d, 32, v%d" % (aW[0], sT0, vT[0], aW[1], aW[0]))
    k("s_mul_i32 s%d, s%d, 10240\ns_add_u32 s%d, s%d, 32768" % (sT0, sNH, sT0, sT0))
    k("v_add_u32 v%d, s%d, v%d\nv_xor_b32 v%d, 64, v%d" % (aW[2], sT0, vT[5], aW[3], aW[2]))
    P = XS[0]
    param_loads(P, sNH, vT[0])
    k("s_lshr_b32 s%d, s%d, 5\ns_add_u32 s%d, s%d, s%d\ns_mul_i32 s%d, s%d, 88\ns_add_u32 s%d, s%d, s%d\ns_lshl_b32 s%d, s%d, 12" % (sT0, sCol, sT0, sT0, sNH, sT1, sC, sT0, sT0, sT1, sKS, sT0))
    srd(k, SWS, pWs, WS_NREC)
    for r in range(0, 144, 2): k("v_mov_b64 v[%d:%d], 0" % (ACCF+r, ACCF+r+1))
    k("s_lshl_b32 s%d, s%d, 1\ns_add_u32 s%d, s%d, s%d\ns_lshl_b32 s%d, s%d, 14\ns_add_u32 s%d, s%d, 0x%x" % (sT2, sJJ, sT2, sT2, sNH, sT0, sT2, sT0, sT0, CAR_OFF))
    srd(k, SP0, pWs, 16384, "s%d" % sT0)
    k("s_mul_i32 s%d, s%d, %d\ns_add_u32 s58, s%d, 0x%x\ns_add_u32 s54, s%d, s58\ns_addc_u32 s55, s%d, 0" % (sT0, sT2, opt("hst", 4224), sT0, CH_OFF, pWs, pWs+1))
    k("s_lshl_b32 s%d, s%d, 2\ns_add_u32 s58, s58, s%d" % (sT0, sC, sT0))
    k("s_add_u32 s%d, s%d, 1\ns_lshr_b32 s%d, s%d, 1\ns_lshl_b32 s59, 1, s%d\ns_sub_u32 s59, s59, 1" % (sT0, sC, sT0, sT0, sT0))
    if not opt("hint", 1): k("s_mov_b32 s59, 0")
    sSS = [68, 69, 70, 71, 79]
    k("s_mul_i32 s%d, s%d, 88\ns_add_u32 s%d, s%d, 48\ns_lshl_b32 s%d, s%d, 12" % (sT3, sC, sT3, sT3, sT3, sT3))
    k("s_mul_i32 s%d, s%d, 10\ns_mul_i32 s%d, s%d, 5\ns_add_u32 s%d, s%d, s%d" % (sT2, sJJ, sT0, sNH, sT2, sT2, sT0))
    for q in range(5):
        k("s_add_u32 s%d, s%d, %d\ns_lshr_b32 s%d, s%d, 1\ns_lshl_b32 s%d, s%d, 12\ns_and_b32 s%d, s%d, 1\ns_lshl_b32 s%d, s%d, 9" % (sT0, sT2, q, sT1, sT0, sT1, sT1, sT0, sT0, sT0, sT0))
        k("s_add_u32 s%d, s%d, s%d\ns_add_u32 s%d, s%d, s%d" % (sT0, sT0, sT1, sSS[q], sT0, sT3))
    k("s_waitcnt vmcnt(0)")
    lre, lim, t0, t1, cA2, cBt = P, P+5, P+16, P+21, P+32, P+37
    KR = [cKr+2*q for q in range(5)]
    param_ab(P, cA2, cBt, vT[4])
    cpow5(r5(cLr), r5(cMu), "1.0", t0, t1, cA2, cBt)
    cpow5(r5(c16r), r5(c16k), f32(16.0), t0, t1, cA2, cBt)
    for q in range(5): k("v_add_f32 v%d, -1.0, v%d\nv_mul_f32 v%d, v%d, v%d" % (t0+q, cLr+q, t1+q, lre+q, lre+q))
    for q in range(5): k("v_fmac_f32 v%d, v%d, v%d" % (t1+q, lim+q, lim+q))
    for q in range(5): k("v_rcp_f32 v%d, v%d" % (t1+q, t1+q))
    for q in range(5): k("v_mul_f32 v%d, v%d, v%d\nv_mul_f32 v%d, v%d, v%d" % (KR[q], t0+q, lre+q, cKk+q, cMu+q, lre+q))
    for q in range(5): k("v_fmac_f32 v%d, v%d, v%d\nv_fma_f32 v%d, -v%d, v%d, v%d" % (KR[q], cMu+q, lim+q, cKk+q, t0+q, lim+q, cKk+q))
    for q in range(5): k("v_add_f32 v%d, v%d, v%d" % (t1+q, t1+q, t1+q))
    for q in range(5): k("v_mul_f32 v%d, v%d, v%d\nv_mul_f32 v%d, v%d, v%d" % (KR[q], KR[q], t1+q, cKk+q, cKk+q, t1+q))
    for s in range(1, 4): k("v_cmp_eq_u32 %s, %d, v%d" % (sp(16+2*s), s, vG))
    def ssm_frag(q):
        rd = lambda h, reg: ["ds_read_b128 %s, v%d offset:%d" % (vr(reg, 4), aW[2+h], q*2048)]
        mf = lambda b, x, w: "v_mfma_f32_16x16x32_bf16 %s, %s, %s, %s" % (vr(ACCS+(q*4+b)*4, 4), vr(x, 4), vr(w, 4), vr(ACCS+(q*4+b)*4, 4))
        return (rd, mf)
    fr = [ssm_frag(q) for q in range(5)]
    for cb in range(2):
        for gu in range(2): fr.append(ffn_frag(ACCF, gu*2+cb, aW[cb], gu))
    M4 = XS[0]
    SQ = [247, 249, 251, 253, 245]
    def postB():
        o = ["s_mul_i32 s%d, s%d, 768\ns_add_u32 s%d, s%d, %d\nv_lshl_add_u32 v%d, v%d, 4, s%d\nv_lshl_add_u32 v%d, v%d, 2, s%d" % (sT0, sMH, sT0, sT0, STAT_M, vT[3], vG, sT0, vT[2], vM, sT0),
             "s_mul_i32 s%d, s%d, 384\ns_add_u32 s%d, s%d, %d\nv_lshl_add_u32 v%d, v%d, 2, s%d" % (sT0, sNH, sT0, sT0, SSS, vT[1], vM, sT0)]
        for b in range(4): o.append("ds_read_b128 %s, v%d offset:%d" % (vr(M4+4*b, 4), vT[3], b*64))
        for q in range(5): o.append("ds_read_b32 v%d, v%d offset:%d" % (SQ[q], vT[1], q*64))
        return o
    c_loop("B", fr, 6, opt("db", 5), WRB, aX + aW, postB)
    stamp(k, 1)
    RS4 = XS[1]
    for b in range(4): k("ds_read_b128 %s, v%d offset:%d" % (vr(RS4+4*b, 4), vT[3], 256+b*64))
    Z = [[ACCS + (q*4 + (t >> 2))*4 + (t & 3) for t in range(16)] for q in range(5)]
    H = [[52+q, 57+q] for q in range(5)]
    k("s_waitcnt lgkmcnt(4)")
    for t in range(0, 16, 2):
        for q in range(5): k("v_pk_fma_f32 %s, %s, %s, %s op_sel:[0,1,0] op_sel_hi:[1,1,1] neg_lo:[1,0,0] neg_hi:[1,0,0]" % (vr(Z[q][t], 2), vr(M4+t, 2), vr(SQ[q]-1, 2), vr(Z[q][t], 2)))
    k("s_waitcnt lgkmcnt(0)")
    for t in range(16):
        if t % 2 == 0:
            for q in range(5): k("v_pk_mul_f32 %s, %s, %s" % (vr(Z[q][t], 2), vr(RS4+t, 2), vr(Z[q][t], 2)))
        if t >= 1:
            prev = [Z[q][0] if t == 1 else H[q][t & 1] for q in range(5)]
            cur = [H[q][(t+1) & 1] for q in range(5)]
            for q in range(5): k("v_fma_f32 v%d, v%d, v%d, v%d" % (cur[q], cLr+q, prev[q], Z[q][t]))
            for q in range(5): k("v_fmac_f32_dpp v%d, v%d, v%d%s" % (cur[q], prev[q], cMu+q, DPP))
    a_ = [H[q][0] for q in range(5)]; b_ = [H[q][1] for q in range(5)]
    c_ = r5(20)
    TOT = 28
    d_ = [TOT, TOT+1, TOT+2, TOT+4, TOT+5]
    MINE = [12, 13, 14, 15, 16]
    S4 = 36; Mb, RSb, Sb = 62, 66, 70; K0 = 74
    def ffn_inputs():
        k("s_lshl_b32 s%d, s%d, 9\ns_add_u32 s%d, s%d, %d\nv_lshl_add_u32 v%d, v%d, 4, s%d" % (sT0, sNH, sT0, sT0, SFF, vT[0], vG, sT0))
        for b in range(0, 4, 2):
            for a, off in ((Mb, 0), (RSb, 64), (Sb, 128)):
                k("ds_read2_b32 %s, v%d offset0:%d offset1:%d" % (vr(a+b, 2), vT[2], off+b*16, off+b*16+16))
        for j in range(4): k("ds_read_b128 %s, v%d offset:%d" % (vr(S4+4*j, 4), vT[0], j*64))
        k("v_mov_b32 v%d, %s\nv_mov_b32 v%d, %s" % (K0, f32(c0*0.044715), K0+1, f32(c0)))
    ffn_inputs()
    for q in range(5): k("v_mov_b32 v%d, v%d" % (b_[q], a_[q]))
    for q in range(5): k("v_permlane16_swap_b32 v%d, v%d" % (a_[q], b_[q]))
    for q in range(5): k("v_mov_b32 v%d, v%d\nv_mov_b32 v%d, v%d" % (c_[q], a_[q], d_[q], b_[q]))
    for q in range(5): k("v_permlane32_swap_b32 v%d, v%d\nv_permlane32_swap_b32 v%d, v%d" % (a_[q], c_[q], b_[q], d_[q]))
    seq = [a_, b_, c_, d_]
    k("v_mov_b32 v%d, s%d\nv_mov_b32 v%d, s%d" % (TOT+3, sNon, TOT+7, sNon))
    k("s_lshl_b32 s%d, s%d, 9" % (sT0, sC))
    k("v_lshlrev_b32 v%d, 4, v%d" % (vT[1], vM))
    for s in range(1, 4):
        for q in range(5): k("v_fmac_f32 v%d, v%d, v%d" % (seq[s][q], c16r+q, seq[s-1][q]))
        for q in range(5): k("v_fmac_f32_dpp v%d, v%d, v%d%s" % (seq[s][q], seq[s-1][q], c16k+q, DPP))
    k("s_mov_b64 exec, 0xffff")
    k("buffer_store_dwordx4 %s, v%d, %s, s%d offen%s" % (vr(TOT, 4), vT[1], sq(SP0), sT0, SC))
    k("buffer_store_dwordx4 %s, v%d, %s, s%d offen offset:256%s" % (vr(TOT+4, 4), vT[1], sq(SP0), sT0, SC))
    k("s_mov_b64 exec, 1")
    k("buffer_store_dword v%d, off, %s, s58%s" % (TOT+3, sq(SWS), SC))
    k("s_mov_b64 exec, -1")
    k("s_mov_b32 s56, s%d\ns_mov_b32 s57, s%d" % (sNon, sNon))
    stamp(k, 2)
    for q in range(5): k("v_cndmask_b32 v%d, 0, v%d, %s" % (MINE[q], a_[q], sp(18)))
    for q in range(5): k("v_cndmask_b32 v%d, v%d, v%d, %s" % (MINE[q], MINE[q], b_[q], sp(20)))
    for q in range(5): k("v_cndmask_b32 v%d, v%d, v%d, %s" % (MINE[q], MINE[q], c_[q], sp(22)))
    k("v_lshlrev_b32 v%d, 4, v%d" % (vT[3], vL))
    k("s_waitcnt lgkmcnt(0)")
    dst_ = []
    ffn_epilogue(ACCF, 2, S4, Mb, RSb, Sb, 20, 236, K0, vT[3], [(b, 0) for b in range(2)])
    ffn_epilogue(ACCF, 2, S4, Mb, RSb, Sb, 20, 236, K0, vT[3], [(2, 0)])
    k("s_load_dwordx16 s[16:31], s[54:55], 0 glc\ns_load_dwordx16 s[32:47], s[54:55], 64 glc")
    ffn_epilogue(ACCF, 2, S4, Mb, RSb, Sb, 20, 240, K0, vT[3], [(3, 0)])
    def hint_check():
        k("s_waitcnt lgkmcnt(0)\ns_mov_b32 s%d, 0" % sT0)
        for j in range(15, -1, -1): k("s_cmp_lg_u64 %s, s[56:57]\ns_addc_u32 s%d, s%d, s%d" % (sp(16+2*j), sT0, sT0, sT0))
        k("s_and_b32 s%d, s%d, s59" % (sT0, sT0))
    if not opt("clk", 0): stamp(k, 6)
    PRb = [ACCF + u*8 for u in range(8)]
    k("s_sub_u32 s%d, s%d, 1" % (sT0, sC))
    k("v_sub_u32 v%d, s%d, v%d\nv_lshlrev_b32 v%d, 9, v%d\nv_lshl_add_u32 v%d, v%d, 4, v%d" % (vT[1], sT0, vG, vT[1], vT[1], vT[1], vM, vT[1]))
    def pred_loads():
        for u in range(8):
            if u: k("v_subrev_u32 v%d, %d, v%d" % (vT[0], u*2048, vT[1]))
            a = vT[0] if u else vT[1]
            k("buffer_load_dwordx4 %s, v%d, %s, 0 offen%s" % (vr(PRb[u], 4), a, sq(SP0), PSC_))
            k("buffer_load_dwordx4 %s, v%d, %s, 0 offen offset:256%s" % (vr(PRb[u]+4, 4), a, sq(SP0), PSC_))
    hint_check()
    k("s_mov_b32 s%d, s%d\ns_cbranch_scc1 L_k1_npl" % (sDelta, sT0))
    pred_loads()
    k("L_k1_npl:")
    k("s_mul_i32 s%d, s%d, %d\ns_add_u32 s%d, s%d, %d" % (sKx, sW, 80*TRP, sKx, sKx, TRB))
    k("v_add_u32 v%d, s%d, v%d" % (vT[4], sKx, vT[3]))
    for qd in range(3): k("ds_read_b128 %s, v%d offset:%d" % (vr(32+4*qd, 4), vT[4], qd*1024))
    L256r, L256k = r5(32), r5(37)
    free = [20+2*q for q in range(5)]
    for t in range(0, 16, 2):
        nf = []
        for q in range(5): k("v_pk_mul_f32 %s, %s, %s op_sel_hi:[0,1]" % (vr(free[q], 2), vr(KR[q], 2), vr(Z[q][t], 2)))
        for e in range(2):
            for q in range(5): k("v_fmac_f32_dpp v%d, v%d, v%d%s" % (free[q]+e, Z[q][t]+e, cKk+q, DPP))
        for q in range(5):
            nf.append(Z[q][t]); Z[q][t] = free[q]; Z[q][t+1] = free[q]+1
        free = nf
    t0, t1 = 30, 31
    k("s_cmp_eq_u32 s%d, 0\ns_cbranch_scc1 L_k1_early" % sDelta)
    k("s_load_dwordx16 s[16:31], s[54:55], 0 glc\ns_load_dwordx16 s[32:47], s[54:55], 64 glc")
    a2_flag(1, 0, 30, 31)
    stamp(k, 7)
    k("s_mov_b32 s%d, 0\ns_branch L_k1_hc" % sT3)
    k("L_k1_hr:")
    k("s_sleep %d\ns_load_dwordx16 s[16:31], s[54:55], 0 glc\ns_load_dwordx16 s[32:47], s[54:55], 64 glc" % opt("hsl", 6))
    k("L_k1_hc:")
    hint_check()
    k("s_cbranch_scc0 L_k1_hd\ns_add_u32 s%d, s%d, 1\ns_cmp_lt_u32 s%d, 0x100000\ns_cbranch_scc1 L_k1_hr" % (sT3, sT3, sT3))
    k("L_k1_hd:")
    pred_loads()
    k("s_mov_b32 s%d, 0\ns_branch L_k1_poll" % sT3)
    k("L_k1_early:")
    a2_flag(1, 16, 30, 31)
    stamp(k, 7)
    k("s_mov_b32 s%d, 0\ns_waitcnt vmcnt(1)\ns_branch L_k1_poll2" % sT3)
    k("L_k1_poll:")
    k("s_waitcnt vmcnt(0)")
    k("L_k1_poll2:")
    k("s_mov_b32 s%d, 0" % sT2)
    for u in range(8):
        k("v_cmp_ne_u32 s[24:25], s%d, v%d\nv_cmp_ne_u32 s[26:27], s%d, v%d\nv_cmp_le_i32 vcc, %d, v%d" % (sNon, PRb[u]+3, sNon, PRb[u]+7, u*2048, vT[1]))
        k("s_or_b64 s[24:25], s[24:25], s[26:27]\ns_and_b64 s[24:25], s[24:25], vcc\ns_cbranch_scc0 L_k1_pu%d" % u)
        k("s_cmp_lg_u32 s%d, 0\ns_cbranch_scc1 L_k1_ps%d\ns_sleep %d\nL_k1_ps%d:" % (sT2, u, opt("csl", 8), u))
        k("s_mov_b32 s%d, 1" % sT2)
        k("v_subrev_u32 v%d, %d, v%d" % (vT[0], u*2048, vT[1]))
        k("s_mov_b64 exec, s[24:25]")
        k("buffer_load_dwordx4 %s, v%d, %s, 0 offen%s" % (vr(PRb[u], 4), vT[0], sq(SP0), PSC_))
        k("buffer_load_dwordx4 %s, v%d, %s, 0 offen offset:256%s" % (vr(PRb[u]+4, 4), vT[0], sq(SP0), PSC_))
        k("s_mov_b64 exec, -1")
        k("L_k1_pu%d:" % u)
    k("s_add_u32 s%d, s%d, 1\ns_cmp_eq_u32 s%d, 0\ns_cbranch_scc1 L_k1_polled" % (sT3, sT3, sT2))
    k("s_cmp_lt_u32 s%d, 0x40000\ns_cbranch_scc1 L_k1_poll" % sT3)
    k("L_k1_polled:")
    if not opt("clk", 0): stamp(k, 3)
    pr = lambda u, q: PRb[u]+(q if q < 3 else q+1)
    k("s_waitcnt lgkmcnt(0)")
    for u in range(6, -1, -1):
        for q in range(5): k("v_fmac_f32 v%d, v%d, v%d" % (pr(u, q), L256r[q], pr(u+1, q)))
        for q in range(5): k("v_fmac_f32_dpp v%d, v%d, v%d%s" % (pr(u, q), pr(u+1, q), L256k[q], DPP))
        if u == 4:
            for qd in range(5): k("ds_read_b128 %s, v%d offset:%d" % (vr(PRb[5]+4*qd, 4), vT[4], (3+qd)*1024))
    L64r, L64k, Psr, Psk = r5(PRb[5]), r5(PRb[5]+5), r5(PRb[5]+10), r5(PRb[5]+15)
    k("s_waitcnt lgkmcnt(0)")
    for q in range(5): k("v_mul_f32 v%d, v%d, v%d" % (pr(1, q), L64r[q], pr(0, q)))
    for q in range(5): k("v_fmac_f32_dpp v%d, v%d, v%d%s" % (pr(1, q), pr(0, q), L64k[q], DPP))
    for sw in ("v_permlane16_swap_b32", "v_permlane32_swap_b32"):
        for q in range(5): k("v_mov_b32 v%d, v%d" % (pr(2, q), pr(1, q)))
        for q in range(5): k("%s v%d, v%d" % (sw, pr(1, q), pr(2, q)))
        for q in range(5): k("v_add_f32 v%d, v%d, v%d" % (pr(1, q), pr(1, q), pr(2, q)))
    for q in range(5): k("v_fmac_f32 v%d, v%d, v%d" % (MINE[q], Psr[q], pr(1, q)))
    for q in range(5): k("v_fmac_f32_dpp v%d, v%d, v%d%s" % (MINE[q], pr(1, q), Psk[q], DPP))
    CIN = [f for f in free]
    for q in range(5): k("v_mul_f32 v%d, v%d, v%d" % (CIN[q], KR[q], MINE[q]))
    for q in range(5): k("v_fmac_f32_dpp v%d, v%d, v%d%s" % (CIN[q], MINE[q], cKk+q, DPP))
    PK = 32
    OUTQ = [ACCF + 4*j for j in range(10)]
    k("v_mul_u32_u24 v%d, %d, v%d\nv_lshl_add_u32 v%d, v%d, 5, v%d\nv_add_u32 v%d, s%d, v%d" % (vT[1], TRP, vM, vT[1], vG, vT[1], vT[1], sKx, vT[1]))
    k("v_and_b32 v%d, 1, v%d\nv_lshrrev_b32 v%d, 2, v%d\nv_lshl_add_u32 v%d, v%d, 3, v%d\nv_mul_u32_u24 v%d, %d, v%d" % (vT[0], vG, vT[4], vM, vT[0], vT[0], vT[4], vT[0], TRP, vT[0]))
    k("v_and_b32 v%d, 3, v%d\nv_lshl_add_u32 v%d, v%d, 5, v%d" % (vT[4], vM, vT[0], vT[4], vT[0]))
    k("v_lshrrev_b32 v%d, 1, v%d\nv_lshl_add_u32 v%d, v%d, 3, v%d\nv_add_u32 v%d, s%d, v%d" % (vT[5], vG, vT[0], vT[5], vT[0], vT[0], sKx, vT[0]))
    k("v_and_b32 v%d, 31, v%d\nv_lshlrev_b32 v%d, 4, v%d\nv_lshl_add_u32 v%d, v%d, 10, v%d" % (vT[4], vL, vT[4], vT[4], vT[4], vT[5], vT[4]))
    def tr_reads(bp):
        for q in range(5):
            o = OUTQ[bp*5+q]
            k("ds_read_b64_tr_b16 %s, v%d offset:%d\nds_read_b64_tr_b16 %s, v%d offset:%d" % (vr(o, 2), vT[0], q*16*TRP+bp*16, vr(o+2, 2), vT[0], q*16*TRP+bp*16+4*TRP))
    def tr_stores(bp, waits):
        for q in range(5):
            if waits: k("s_waitcnt lgkmcnt(%d)" % (8-2*q))
            k("buffer_store_dwordx4 %s, v%d, %s, s%d offen offset:%d%s" % (vr(OUTQ[bp*5+q], 4), vT[4], sq(SWS), sSS[q], bp*2048, S1))
    for t in range(16):
        prev = [CIN[q] if t == 0 else Z[q][t-1] for q in range(5)]
        for q in range(5): k("v_fmac_f32 v%d, v%d, v%d" % (Z[q][t], cLr+q, prev[q]))
        for q in range(5): k("v_fmac_f32_dpp v%d, v%d, v%d%s" % (Z[q][t], prev[q], cMu+q, DPP))
        if t & 1:
            for q in range(5): k("v_cvt_pk_bf16_f32 v%d, v%d, v%d" % (PK+8*q+(t >> 1), Z[q][t-1], Z[q][t]))
        if t == 8:
            for q in range(5): k("ds_write_b128 v%d, %s offset:%d" % (vT[1], vr(PK+8*q, 4), q*16*TRP))
        if t == 10: tr_reads(0)
        if t == 13:
            k("s_waitcnt lgkmcnt(0)")
            tr_stores(0, False)
    for q in range(5): k("ds_write_b128 v%d, %s offset:%d" % (vT[1], vr(PK+8*q+4, 4), q*16*TRP+16))
    tr_reads(1)
    tr_stores(1, True)
    a2_flag(2, 0, vT[0], vT[1])
    stamp(k, 4)
    k("L_k1_base:")
    base_loads(140)
    k("L_k1_base2:")
    base_compute(140)
    finish(100)
    k("L_k1_end:")
    k("s_endpgm")
    return k

if __name__ == "__main__":
    ref = open("parallel_sum__ssm_conv_s5__geglu_ffn__prompt.s.ref").read().split("\n")
    hdr = [l for l in ref if l.startswith(";") and "@launch" not in l and "Override" not in l and "grid=ceil" not in l]
    hdr += ["; @launch grid=(256,1,1) block=(512,1,1) lds=163840"]
    out = [a for a in sys.argv[1:] if not a.startswith("--")][0]
    gen2.TRACE = False
    open(out, "w").write(emit_file(hdr, [(gen_k1(), dict(vgpr=256, accum=256))]))
```

```python
import sys, struct, math
from asmgen import *
import gen2
from gen2 import (A2_OFF, B2_OFF, CAR_OFF, RST_OFF, SB_OFF, SG_OFF, STAMP_OFF, WS_NREC, SL, SPARE, TRP, f32, vr, sq, sp, ror, DPP, SC,
                  Alloc, interleave, srd, stamp, stamp_out, opt, ARG, STAMPS, LOG2E,
                  pX, pLre, pLim, pBre, pBim, pCre, pCim, pLdt, pD, pBx, pG, pU, pDn, pOut, pDbg, pWs)
STAT_M = SPARE
SFF = SPARE + 1536
SSS = SPARE + 2560
TRB = SL
FLG = SPARE + 3968
PF_OFF = 0x1130000
FL_OFF = 0x1131000
CH_OFF = 0x1140000
TRACE = "--trace" in ARG
S1 = [" sc1", " sc0 sc1", " sc1 nt", ""][opt("st2", 0)]
if opt("sc", 1): SC = " sc1"
FSP = 4
FGS = 16
FLS_ = 128
PSC_ = [" sc1", " sc0 sc1"][opt("psc", 0)]
KNAME = "parallel_sum__ssm_conv_s5__geglu_ffn__prompt_kernel"

def gen_k1():
    k = Kern(KNAME)
    sW, sMH, sNH, sI, sJJ, sTY = 3, 4, 5, 6, 7, 8
    sT0, sT1, sT2, sT3 = 9, 10, 11, 12
    sMASK = 13
    SX, SW0, SW1, SWS, SP0, SP1 = 48, 52, 56, 60, 64, 68
    sKx, sKw, sDst, sDelta, sIt, sRd, sA, sB, sKS, sC, sNon, sCol = range(72, 84)
    k("s_cmp_ge_u32 s2, 256\ns_cbranch_scc1 L_k1_end")
    k("s_load_dwordx16 s[16:31], s[0:1], 0\ns_load_dwordx16 s[32:47], s[0:1], 64")
    k("s_memrealtime s[100:101]")
    stamp(k, 0)
    vL, vM, vG, vII, vSL = 1, 2, 3, 4, 5
    vT = [6, 7, 8, 9, 10, 11]
    if TRACE: k("v_mov_b32 v255, 0")
    k("v_lshrrev_b32 v%d, 6, v0" % vT[0])
    k("v_and_b32 v%d, 63, v0" % vL)
    k("v_readfirstlane_b32 s%d, v%d" % (sW, vT[0]))
    k("v_and_b32 v%d, 15, v0\nv_lshrrev_b32 v%d, 4, v%d" % (vM, vG, vL))
    k("v_lshrrev_b32 v%d, 3, v%d\nv_and_b32 v%d, 7, v0" % (vII, vL, vSL))
    k("v_mov_b32 v%d, 0\nv_lshlrev_b32 v%d, 2, v%d\nv_add_u32 v%d, %d, v%d\nds_write2_b32 v%d, v%d, v%d offset1:16" % (vT[1], vT[2], vM, vT[2], FLG, vT[2], vT[2], vT[1], vT[1]))
    k("s_and_b32 s%d, s2, 7\ns_lshr_b32 s%d, s2, 3" % (sT0, sT1))
    k("s_lshr_b32 s%d, s%d, 2\ns_lshl_b32 s%d, s%d, 3\ns_and_b32 s%d, s%d, 7\ns_add_u32 s%d, s%d, s%d" % (sI, sT0, sI, sI, sT2, sT1, sI, sI, sT2))
    k("s_and_b32 s%d, s%d, 3\ns_lshl_b32 s%d, s%d, 2\ns_lshr_b32 s%d, s%d, 3\ns_add_u32 s%d, s%d, s%d" % (sJJ, sT0, sJJ, sJJ, sT2, sT1, sJJ, sJJ, sT2))
    k("s_and_b32 s%d, s%d, 1\ns_lshr_b32 s%d, s%d, 1" % (sTY, sJJ, sJJ, sJJ))
    k("s_mov_b32 s%d, 0xffff0000" % sMASK)
    k("s_and_b32 s%d, s%d, 1\ns_bfe_u32 s%d, s%d, 0x10001" % (sMH, sW, sNH, sW))
    k("s_lshl_b32 s%d, s%d, 7\ns_lshl_b32 s%d, s%d, 6\ns_add_u32 s%d, s%d, 1024\ns_cmp_eq_u32 s%d, 0\ns_cselect_b32 s%d, s%d, s%d" % (sT0, sJJ, sT1, sJJ, sT1, sT1, sTY, sCol, sT0, sT1))
    k("s_waitcnt lgkmcnt(0)\ns_barrier")
    k("s_cmp_lt_u32 s%d, 4\ns_cbranch_scc1 L_k1_C" % sW)
    k("s_cmp_ge_u32 s%d, 6\ns_cbranch_scc1 L_k1_D" % sW)

    def bf16r(d, s):
        k("v_cvt_pk_bf16_f32 v%d, v%d, v%d\nv_lshlrev_b32 v%d, 16, v%d" % (d, s, s, d, d))
    r5 = lambda b: [b+q for q in range(5)]
    def cpow5(dr, dk, n, t0, t1, cA2, cBt):
        R5 = range(5)
        for q in R5: k("v_mul_f32 v%d, %s, v%d\nv_mul_f32 v%d, %s, v%d" % (t0+q, n, cA2+q, t1+q, n, cBt+q))
        for q in R5: k("v_exp_f32 v%d, v%d\nv_rndne_f32 v%d, v%d" % (t0+q, t0+q, dr[q], t1+q))
        for q in R5: k("v_sub_f32 v%d, v%d, v%d" % (t1+q, t1+q, dr[q]))
        for q in R5: k("v_cos_f32 v%d, v%d\nv_sin_f32 v%d, v%d" % (dr[q], t1+q, dk[q], t1+q))
        for q in R5: k("v_mul_f32 v%d, v%d, v%d\nv_mul_f32 v%d, v%d, v%d" % (dr[q], dr[q], t0+q, dk[q], dk[q], t0+q))
    def param_loads(P, snh, va):
        k("s_mul_i32 s%d, s%d, 80\ns_mul_i32 s%d, s%d, 40\ns_add_u32 s%d, s%d, s%d" % (sT0, sJJ, sT1, snh, sT1, sT1, sT0))
        k("v_add_u32 v%d, s%d, v%d\nv_lshlrev_b32 v%d, 1, v%d" % (va, sT1, vSL, va, va))
        for q in range(5):
            for n, p in enumerate((pLre, pLim, pLdt)):
                k("global_load_ushort v%d, v%d, %s offset:%d" % (P+n*5+q, va, sp(p), q*16))
    def param_ab(P, cA2, cBt, vs):
        lre, lim, ldt = P, P+5, P+10
        k("v_lshrrev_b32 v%d, 3, v%d\nv_xor_b32 v%d, 1, v%d\nv_lshlrev_b32 v%d, 31, v%d" % (vs, vM, vs, vs, vs, vs))
        for q in range(15): k("v_lshlrev_b32 v%d, 16, v%d" % (P+q, P+q))
        for q in range(5): k("v_xor_b32 v%d, v%d, v%d\nv_mul_f32 v%d, %s, v%d" % (lim+q, lim+q, vs, ldt+q, f32(LOG2E), ldt+q))
        for q in range(5): k("v_exp_f32 v%d, v%d" % (ldt+q, ldt+q))
        for q in range(5): k("v_cvt_pk_bf16_f32 v%d, v%d, v%d" % (ldt+q, ldt+q, ldt+q))
        for q in range(5): k("v_lshlrev_b32 v%d, 16, v%d" % (ldt+q, ldt+q))
        for q in range(5): k("v_mul_f32 v%d, v%d, v%d\nv_mul_f32 v%d, v%d, v%d" % (cA2+q, ldt+q, lre+q, cBt+q, ldt+q, lim+q))
        for q in range(5): k("v_mul_f32 v%d, %s, v%d\nv_mul_f32 v%d, %s, v%d" % (cA2+q, f32(LOG2E), cA2+q, cBt+q, f32(1/(2*math.pi)), cBt+q))
    def trace(idx_sreg, mul, add):
        if TRACE:
            k("s_memrealtime s[100:101]\ns_mul_i32 m0, s%d, %d\ns_add_u32 m0, m0, %d\ns_waitcnt lgkmcnt(0)\nv_writelane_b32 v255, s100, m0" % (idx_sreg, mul, add))
    def ev(n):
        if TRACE: k("s_memrealtime s[100:101]\ns_waitcnt lgkmcnt(0)\nv_writelane_b32 v255, s100, %d" % n)
    def finish(vt):
        if TRACE:
            k("s_lshl_b32 s83, s2, 11\ns_add_u32 s83, s83, 0x%x\nv_lshl_add_u32 v%d, v0, 2, s83" % (STAMP_OFF + 0x40000, vt+9))
            k("global_store_dword v%d, v255, %s" % (vt+9, sp(52)))
        stamp_out(k, 0, 8, 52, vt)
        k("s_endpgm")

    vXo, vWo, vSo = 12, 13, 14
    vF = 18
    k("s_lshl_b32 s%d, s%d, 7\ns_lshl_b32 s%d, s%d, 5\ns_add_u32 s%d, s%d, s%d" % (sT2, sI, sT3, sMH, sT2, sT2, sT3))
    k("v_lshrrev_b32 v%d, 2, v%d\nv_lshlrev_b32 v%d, 4, v%d\nv_and_b32 v%d, 3, v%d" % (vT[0], vII, vT[0], vT[0], vT[1], vII))
    k("v_add3_u32 v%d, v%d, v%d, s%d" % (vT[0], vT[0], vT[1], sT2))
    k("v_mul_u32_u24 v%d, 1280, v%d" % (vT[0], vT[0]))
    k("s_lshl_b32 s%d, s%d, 2" % (sT3, sMH))
    k("v_lshrrev_b32 v%d, 1, v%d\nv_or_b32 v%d, s%d, v%d\nv_xor_b32 v%d, v%d, v%d" % (vT[1], vII, vT[1], sT3, vT[1], vT[1], vT[1], vSL))
    k("v_lshl_add_u32 v%d, v%d, 4, v%d" % (vXo, vT[1], vT[0]))
    k("s_mul_i32 s%d, s%d, 80" % (sT0, sJJ))
    k("v_add_u32 v%d, s%d, v%d\nv_mul_u32_u24 v%d, 1280, v%d\nv_lshl_add_u32 v%d, v%d, 4, v%d" % (vT[2], sT0, vII, vT[2], vT[2], vSo, vT[1], vT[2]))
    k("s_lshl_b32 s%d, s%d, 3" % (sT0, sMH))
    k("v_add_u32 v%d, s%d, v%d\nv_mul_u32_u24 v%d, 3072, v%d" % (vT[0], sT0, vII, vT[0], vT[0]))
    k("v_and_b32 v%d, 2, v%d\nv_or_b32 v%d, s%d, v%d\nv_xor_b32 v%d, v%d, v%d" % (vT[1], vII, vT[1], sT3, vT[1], vT[1], vT[1], vSL))
    k("v_lshl_add_u32 v%d, v%d, 4, v%d" % (vT[0], vT[1], vT[0]))
    k("s_lshl_b32 s%d, s%d, 1" % (sT0, sCol))
    k("v_add_u32 v%d, s%d, v%d" % (vWo, sT0, vT[0]))
    k("s_mov_b32 s%d, 0\ns_mov_b32 s%d, 0\ns_lshl_b32 s%d, s%d, 10\ns_mov_b32 s%d, 0\ns_mov_b32 s%d, 0" % (sKx, sKw, sDst, sMH, sIt, sRd))
    k("v_mov_b32 v%d, %d\nv_mov_b32 v24, 0" % (vF, FLG))
    k("s_lshl_b32 s%d, s%d, 2\ns_add_u32 s%d, s%d, %d\nv_mov_b32 v%d, s%d" % (sT0, sMH, sT0, sT0, FLG+16, vF+1, sT0))
    srd(k, SX, pX, 2048*1280)
    srd(k, SW0, pG, 640*3072)
    srd(k, SW1, pU, 640*3072)
    k("s_cmp_eq_u32 s%d, 0\ns_cselect_b32 s%d, s%d, s%d\ns_cselect_b32 s%d, s%d, s%d" % (sMH, SP0, pBre, pBim, SP0+1, pBre+1, pBim+1))
    k("s_mov_b32 s%d, %d\ns_mov_b32 s%d, 0x20000" % (SP0+2, 640*1280, SP0+3))
    def wait_word(lab, off, need, va, vt):
        k("v_mov_b32 v%d, %d" % (va, FLG+off))
        k("%s:" % lab)
        k("ds_read_b32 v%d, v%d\ns_waitcnt lgkmcnt(0)\nv_readfirstlane_b32 s%d, v%d" % (vt, va, sT0, vt))
        k("s_cmp_ge_i32 s%d, %s\ns_cbranch_scc1 %s_ok\ns_sleep 1\ns_branch %s\n%s_ok:" % (sT0, need, lab, lab, lab))
    def wait_done(lab, need, vaddr, vt):
        k("%s:" % lab)
        k("ds_read_b128 %s, v%d\ns_waitcnt lgkmcnt(0)" % (vr(vt, 4), vaddr))
        k("v_min_u32 v%d, v%d, v%d\nv_min3_u32 v%d, v%d, v%d, v%d" % (vt, vt, vt+1, vt, vt, vt+2, vt+3))
        k("v_readfirstlane_b32 s%d, v%d" % (sT0, vt))
        k("s_cmp_ge_i32 s%d, %s\ns_cbranch_scc1 %s_ok\ns_sleep 1\ns_branch %s\n%s_ok:" % (sT0, need, lab, lab, lab))
    k("s_cmp_eq_u32 s%d, 1\ns_cbranch_scc1 L_k1_LB_dma\ns_branch L_k1_LA_dma" % sTY)
    def dma(ldsoff, voff, S, sbase, add):
        k("s_add_u32 m0, s%d, %d\ns_add_u32 s%d, s%d, %d\nbuffer_load_dwordx4 v%d, %s, s%d offen lds" % (sDst, ldsoff, sT0, sbase, add, voff, sq(S), sT0))
    NSIG = opt("nsig", 6)
    def chk(lab, add, sig):
        k("s_lshl_b32 s%d, s%d, 1\ns_add_i32 s%d, s%d, %d\ns_waitcnt lgkmcnt(0)" % (sT1, sIt, sT1, sT1, add))
        k("v_min_u32 v20, v20, v21\nv_min3_u32 v20, v20, v22, v23\nv_readfirstlane_b32 s%d, v20" % sT0)
        k("s_cmp_ge_i32 s%d, s%d\ns_cbranch_scc1 %s_go" % (sT0, sT1, lab))
        if sig: k("s_waitcnt vmcnt(0)\nds_write_b32 v%d, v24" % (vF+1))
        wait_done(lab+"_wd", "s%d" % sT1, vF, 20)
        k("%s_go:" % lab)
    for ty in "BA":
        L = "L_k1_L" + ty
        k("%s:" % L)
        trace(sIt, 4, 0)
        chk(L+"_c1", -5, True)
        k("%s_dma:" % L)
        trace(sIt, 4, 1)
        xs = [(n*2048, vXo, SX, sKx, ((n & 3)*4 + (n >> 2)*64)*1280) for n in range(8)]
        ws = []
        for n in range(4):
            for un in range(2 if ty == "A" else 1):
                for gu in range(2):
                    ws.append((16384+un*16384+gu*8192+n*2048, vWo, SW1 if gu else SW0, sKw, n*16*3072+un*128))
        h = len(ws)//2
        p1 = []
        for i in range(8): p1 += xs[i:i+1] + ws[:h][i*h//8:(i+1)*h//8]
        p2 = ws[h:]
        if ty == "B": p2 += [(32768+b*2048, vSo, SP0, sKx, b*10240) for b in range(10)]
        for i, o in enumerate(p1):
            if i == NSIG:
                k("s_waitcnt vmcnt(%d)\nds_write_b32 v%d, v24\nv_add_u32 v24, 1, v24" % (NSIG, vF+1))
                trace(sIt, 4, 3)
            if i == len(p1)-2: k("ds_read_b128 v[20:23], v%d" % vF)
            dma(*o)
        chk(L+"_c2", -4, False)
        for i, o in enumerate(p2):
            if i == len(p2)-2: k("ds_read_b128 v[20:23], v%d" % vF)
            dma(*o)
        k("ds_write_b32 v%d, v24 offset:16" % (vF+1))
        k("s_add_u32 s%d, s%d, 128\ns_add_u32 s%d, s%d, 196608\ns_add_u32 s%d, s%d, %d\ns_add_u32 s%d, s%d, 1" % (sKx, sKx, sKw, sKw, sDst, sDst, SL, sRd, sRd))
        k("s_cmp_eq_u32 s%d, 3\ns_cselect_b32 s%d, 0, s%d\ns_cselect_b32 s%d, %d, 0\ns_sub_u32 s%d, s%d, s%d" % (sRd, sRd, sRd, sT0, 3*SL, sDst, sDst, sT0))
        trace(sIt, 4, 2)
        k("s_add_u32 s%d, s%d, 1\ns_cmp_lt_u32 s%d, 10\ns_cbranch_scc1 %s" % (sIt, sIt, sIt, L))
        if ty == "B": k("s_branch L_k1_Lend")
    k("L_k1_Lend:")
    srd(k, SWS, pWs, WS_NREC)
    k("v_mov_b32 v72, v%d\nv_mov_b32 v73, v24" % (vF+1))
    k("s_branch L_k1_P2")

    k("L_k1_D:")
    XR = 16
    YR = 36
    PK = 100
    T = 132
    vN = 12
    sPQ, sPR = [14, 78], [15, 79]
    k("v_mul_u32_u24 v%d, 1280, v%d\nv_lshl_add_u32 v%d, v%d, 4, v%d" % (vT[0], vG, vT[0], vM, vT[0]))
    XL = opt("xl", 1)
    sQ_, sG_ = sIt, sRd
    if XL:
        k("s_and_b32 s%d, s2, 7\ns_lshl_b32 s%d, s%d, 5\ns_lshr_b32 s%d, s2, 3\ns_add_u32 s%d, s%d, s%d\ns_lshl_b32 s%d, s%d, 1\ns_add_u32 s%d, s%d, s%d" % (sT0, sT0, sT0, sT1, sT0, sT0, sT1, sC, sT0, sC, sC, sMH))
        k("s_bfe_u32 s%d, s2, 0x10002\ns_lshl_b32 s%d, s%d, 5\ns_add_u32 s%d, s%d, s%d" % (sQ_, sQ_, sQ_, sQ_, sQ_, sT1))
    else:
        k("s_lshl_b32 s%d, s2, 1\ns_add_u32 s%d, s%d, s%d" % (sC, sC, sC, sMH))
    srd(k, SX, pX, 2048*1280)
    srd(k, SWS, pWs, WS_NREC)
    k("s_cmp_lg_u32 s%d, 0\ns_cbranch_scc1 L_k1_nn" % sC)
    k("s_or_b32 s%d, s100, 1" % sT0)
    k("v_mov_b32 v%d, s%d\nv_mov_b32 v%d, 0" % (vT[2], sT0, vT[1]))
    k("global_store_dword v%d, v%d, %s%s" % (vT[1], vT[2], sp(pDbg), SC))
    k("L_k1_nn:")
    B1 = opt("b1", 2); GATE = opt("gate", 3)
    SNT = " nt" if opt("snt", 0) else ""
    def gate(lab):
        if GATE: wait_word(lab, 36, "%d" % GATE, vT[3], vT[2])
    k("s_mul_i32 s%d, s%d, 5120" % (sKx, sC))
    xl = lambda c: k("buffer_load_dwordx4 %s, v%d, %s, s%d offen offset:%d%s" % (vr(XR+4*c, 4), vT[0], sq(SX), sKx, c*256, SNT))
    k("s_cmp_eq_u32 s%d, 1\ns_cbranch_scc1 L_k1_D1a" % sMH)
    if XL:
        k("s_mul_i32 s%d, s%d, 43\ns_lshr_b32 s%d, s%d, 9\ns_mul_i32 s%d, s%d, 12\ns_sub_u32 s%d, s%d, s%d" % (sT0, sQ_, sT0, sT0, sT1, sT0, sT1, sQ_, sT1))
        k("s_cmp_lt_u32 s%d, 6\ns_cselect_b32 s%d, s%d, s%d\ns_cselect_b32 s%d, s%d, s%d\ns_cselect_b32 s%d, 0, 6\ns_cselect_b32 s%d, 0, 24" % (sT1, SP1, pG, pU, SP1+1, pG+1, pU+1, sT2, sG_))
        k("s_sub_u32 s%d, s%d, s%d\ns_and_b32 s%d, s2, 3\ns_lshl_b32 s%d, s%d, 2\ns_lshl_b32 s%d, s%d, 1\ns_add_u32 s%d, s%d, 12" % (sT1, sT1, sT2, sT2, sT3, sT2, sT2, sT2, sT2, sT2))
        k("s_cmp_lt_u32 s%d, 4\ns_cselect_b32 s%d, s%d, s%d\ns_add_u32 s%d, s%d, s%d" % (sT1, sT2, sT3, sT2, sT1, sT1, sT2))
        k("s_add_u32 s%d, s%d, s%d\ns_mul_i32 s%d, s%d, 48\ns_add_u32 s%d, s%d, s%d" % (sG_, sG_, sT1, sT2, sT0, sG_, sG_, sT2))
        k("s_lshl_b32 s%d, s%d, 7\ns_mul_i32 s%d, s%d, %d\ns_add_u32 s%d, s%d, s%d" % (sT1, sT1, sT0, sT0, 8*3072, sKw, sT0, sT1))
        k("s_cmp_lt_u32 s%d, 60\ns_cselect_b32 s%d, %d, 0\ns_cselect_b32 s%d, s%d, 1000\ns_mov_b32 s%d, 0x20000" % (sQ_, SP1+2, 640*3072, sG_, sG_, SP1+3))
    else:
        k("s_mov_b32 s%d, s2" % sG_)
        k("s_mul_i32 s%d, s2, 1366\ns_lshr_b32 s%d, s%d, 16\ns_mul_i32 s%d, s%d, 48\ns_sub_u32 s%d, s2, s%d" % (sT0, sT0, sT0, sT1, sT0, sT1, sT1))
        k("s_cmp_lt_u32 s%d, 24\ns_cselect_b32 s%d, s%d, s%d\ns_cselect_b32 s%d, s%d, s%d\ns_cselect_b32 s%d, 0, 24" % (sT1, SP1, pG, pU, SP1+1, pG+1, pU+1, sT2))
        k("s_sub_u32 s%d, s%d, s%d\ns_lshl_b32 s%d, s%d, 7\ns_mul_i32 s%d, s%d, %d\ns_add_u32 s%d, s%d, s%d" % (sT1, sT1, sT2, sT1, sT1, sT0, sT0, 8*3072, sKw, sT0, sT1))
        k("s_cmp_lt_u32 s2, 240\ns_cselect_b32 s%d, %d, 0\ns_mov_b32 s%d, 0x20000" % (SP1+2, 640*3072, SP1+3))
    k("v_mul_u32_u24 v%d, 3072, v%d\nv_lshl_add_u32 v%d, v%d, 4, v%d" % (vT[1], vII, vT[1], vSL, vT[1]))
    a_ = 0
    for c in range(5):
        if c == B1: gate("L_k1_g0")
        xl(c)
        while a_ < 16 and a_*40 < 128*(c+1):
            k("buffer_load_dwordx4 %s, v%d, %s, s%d offen%s" % (vr(YR+4*a_, 4), vT[1], sq(SP1), sKw, SNT))
            k("s_add_u32 s%d, s%d, %d" % (sKw, sKw, 40*3072))
            a_ += 1
    if B1 >= 5: gate("L_k1_g0")
    k("s_branch L_k1_Db")
    k("L_k1_D1a:")
    if XL:
        k("s_cmp_lt_u32 s%d, 20\ns_cselect_b32 s%d, s%d, s%d\ns_cselect_b32 s%d, s%d, s%d\ns_cselect_b32 s%d, 0, 20\ns_cselect_b32 s%d, 0, 80" % (sQ_, SP1, pBre, pBim, SP1+1, pBre+1, pBim+1, sT1, sG_))
        k("s_sub_u32 s%d, s%d, s%d\ns_and_b32 s%d, s2, 3\ns_mul_i32 s%d, s%d, 20\ns_add_u32 s%d, s%d, s%d\ns_add_u32 s%d, s%d, s%d" % (sT0, sQ_, sT1, sT1, sT1, sT1, sT0, sT0, sT1, sG_, sG_, sT0))
        k("s_mul_i32 s%d, s%d, 10240\ns_add_u32 s%d, s%d, 5120" % (sKw, sT0, sDst, sKw))
        k("s_cmp_lt_u32 s%d, 40\ns_cselect_b32 s%d, %d, 0\ns_cselect_b32 s%d, s%d, 1000\ns_mov_b32 s%d, 0x20000" % (sQ_, SP1+2, 640*1280, sG_, sG_, SP1+3))
    else:
        k("s_mov_b32 s%d, s2" % sG_)
        k("s_cmp_lt_u32 s2, 80\ns_cselect_b32 s%d, s%d, s%d\ns_cselect_b32 s%d, s%d, s%d\ns_cselect_b32 s%d, 0, 80" % (SP1, pBre, pBim, SP1+1, pBre+1, pBim+1, sT1))
        k("s_sub_u32 s%d, s2, s%d\ns_mul_i32 s%d, s%d, 10240\ns_add_u32 s%d, s%d, 5120" % (sT0, sT1, sKw, sT0, sDst, sKw))
        k("s_cmp_lt_u32 s2, 160\ns_cselect_b32 s%d, %d, 0\ns_mov_b32 s%d, 0x20000" % (SP1+2, 640*1280, SP1+3))
    for c in range(5):
        if c == B1: gate("L_k1_g1")
        xl(c)
        for hh in range(2): k("buffer_load_dwordx4 %s, v%d, %s, s%d offen offset:%d%s" % (vr(YR+20*hh+4*c, 4), vT[0], sq(SP1), sDst if hh else sKw, c*256, SNT))
    if B1 >= 5: gate("L_k1_g1")
    k("L_k1_Db:")
    if opt("cpf", 1):
        k("s_getpc_b64 s[70:71]")
        k("L_k1_pc:")
        k("s_sub_u32 s70, s70, L_k1_pc-%s\ns_subb_u32 s71, s71, 0" % KNAME)
        k("s_lshr_b32 s%d, s2, 3\ns_lshl_b32 s%d, s%d, 1\ns_add_u32 s%d, s%d, s%d\ns_and_b32 s%d, s%d, 7\ns_lshl_b32 s%d, s%d, 13" % (sT0, sT0, sT0, sT0, sT0, sMH, sT0, sT0, sT0, sT0))
        k("v_lshl_add_u32 v14, v%d, 7, s%d\nv_min_u32 v14, L_k1_end-%s, v14" % (vL, sT0, KNAME))
        k("s_cmp_lt_u32 s%d, L_k1_end-%s\ns_cbranch_scc0 L_k1_ncp\ns_cmp_lt_u32 s2, 64\ns_cbranch_scc0 L_k1_ncp" % (sT0, KNAME))
        k("global_load_dword v15, v14, s[70:71]")
        k("L_k1_ncp:")
    ev(0)
    k("s_lshl_b32 s%d, s%d, 3\ns_add_u32 s%d, s%d, s%d\ns_lshl_b32 s%d, s%d, 1\ns_add_u32 s%d, s%d, s%d\ns_lshl_b32 s%d, s%d, 1" % (sT3, sI, sT3, sT3, sJJ, sT3, sT3, sT3, sT3, sMH, sT3, sT3))
    for n in range(2):
        k("s_add_u32 s%d, s%d, %d\ns_mul_i32 s%d, s%d, 6554\ns_lshr_b32 s%d, s%d, 16\ns_mul_i32 s%d, s%d, 10\ns_sub_u32 s%d, s%d, s%d" % (sT0, sT3, n, sPQ[n], sT0, sPQ[n], sPQ[n], sT1, sPQ[n], sPR[n], sT0, sT1))
    k("v_mov_b32 v%d, 0" % vT[1])
    k("global_load_dword v%d, v%d, %s%s" % (vN, vT[1], sp(pDbg), SC))
    if opt("packlate", 0): k("s_waitcnt vmcnt(1)")
    PNT = " nt" if opt("pnt", 1) else ""
    PA = opt("pa", 1)
    PK2 = 180 if PA else PK
    k("s_cmp_eq_u32 s%d, 1\ns_cbranch_scc1 L_k1_plC" % sTY)
    srd(k, SP0, pDn, 1536*1280)
    k("v_mul_u32_u24 v%d, 1280, v%d\nv_lshl_add_u32 v%d, v%d, 4, v%d" % (vT[1], vII, vT[1], vSL, vT[1]))
    k("s_cmp_lt_u32 s%d, 48\ns_cselect_b32 s%d, s%d, 0" % (sPQ[0], SP0+2, SP0+2))
    for n in range(2):
        k("s_mul_i32 s%d, s%d, 40960\ns_lshl_b32 s%d, s%d, 7\ns_add_u32 s%d, s%d, s%d" % (sT1, sPQ[n], sT2, sPR[n], sT1, sT1, sT2))
        for a in range(4):
            k("buffer_load_dwordx4 %s, v%d, %s, s%d offen%s" % (vr(PK+16*n+4*a, 4), vT[1], sq(SP0), sT1, PNT))
            if a < 3: k("s_add_u32 s%d, s%d, 10240" % (sT1, sT1))
    PP = 180
    if PA:
        k("s_branch L_k1_plC2")
        k("L_k1_plC:")
        param_loads(PP, sMH, vT[1])
        k("s_waitcnt vmcnt(15)\ns_branch L_k1_pld")
        k("L_k1_plC2:")
    else:
        k("s_branch L_k1_pld")
        k("L_k1_plC:")
        param_loads(PP, sMH, vT[1])
    srd(k, SP0, pCre, 640*1280)
    srd(k, SP1, pCim, 640*1280)
    cr_, cc_ = (vSL, vII) if opt("cs", 0) else (vII, vSL)
    k("v_mul_u32_u24 v%d, 1280, v%d\nv_lshl_add_u32 v%d, v%d, 4, v%d" % (vT[1], cr_, vT[1], cc_, vT[1]))
    k("s_cmp_lt_u32 s%d, 40\ns_cselect_b32 s%d, s%d, 0\ns_cselect_b32 s%d, s%d, 0" % (sPQ[0], SP0+2, SP0+2, SP1+2, SP1+2))
    for n in range(2):
        k("s_mul_i32 s%d, s%d, 20480\ns_lshl_b32 s%d, s%d, 7\ns_add_u32 s%d, s%d, s%d" % (sT1, sPQ[n], sT2, sPR[n], sT1, sT1, sT2))
        k("s_add_u32 s%d, s%d, 10240" % (sT2, sT1))
        for part in range(2):
            for hh in range(2):
                k("buffer_load_dwordx4 %s, v%d, %s, s%d offen%s" % (vr(PK2+16*n+(part*2+hh)*4, 4), vT[1], sq(SP0 if part == 0 else SP1), sT2 if hh else sT1, PNT))
    k("L_k1_pld:")
    k("v_mov_b32 v13, 0x3f803f80")
    ev(1)
    k("s_waitcnt vmcnt(%d)" % (16 if PA else 8))
    ev(2)
    stamp(k, 7)
    def unpack(dst, src, n):
        for d in range(n): k("v_lshlrev_b32 v%d, 16, v%d\nv_and_b32 v%d, s%d, v%d" % (dst+2*d, src+d, dst+2*d+1, sMASK, src+d))
    def row_sum(regs):
        for n in (8, 4, 2, 1):
            for r in regs: k("v_add_f32_dpp v%d, v%d, v%d%s" % (r, r, r, ror(n)))
    def tree(dst, src, n):
        k("v_add_f32 v%d, v%d, v%d\nv_add_f32 v%d, v%d, v%d" % (dst, src, src+1, dst+1, src+2, src+3))
        for d in range(4, n, 2): k("v_add_f32 v%d, v%d, v%d\nv_add_f32 v%d, v%d, v%d" % (dst, dst, src+d, dst+1, dst+1, src+d+1))
        k("v_add_f32 v%d, v%d, v%d" % (dst, dst, dst+1))
    A, B = T+40, T+42
    def dsum(dst, src, n, sq_):
        for d in range(n):
            k("v_dot2_f32_bf16 v%d, v%d, v%d, %s" % (dst+(d & 1), src+d, src+d if sq_ else 13, "v%d" % (dst+(d & 1)) if d > 1 else "0"))
    dsum(A, XR, 20, False)
    dsum(B, XR, 20, True)
    k("v_add_f32 v%d, v%d, v%d\nv_add_f32 v%d, v%d, v%d" % (A, A, A+1, B, B, B+1))
    row_sum([A, B])
    k("v_mul_f32 v%d, %s, v%d" % (A, f32(1/640.), A))
    k("v_mul_f32 v%d, %s, v%d" % (B, f32(1/640.), B))
    k("v_fma_f32 v%d, -v%d, v%d, v%d\nv_max_f32 v%d, 0, v%d" % (B, A, A, B, B, B))
    bf16r(B, B)
    k("v_add_f32 v%d, %s, v%d" % (B, f32(1e-5), B))
    bf16r(B, B)
    k("v_sqrt_f32 v%d, v%d" % (B, B))
    k("s_mov_b32 s%d, 0" % sT3)
    k("L_k1_gn:")
    k("v_readfirstlane_b32 s%d, v%d" % (sNon, vN))
    k("s_add_u32 s%d, s%d, 1\ns_cmp_lg_u32 s%d, 0\ns_cbranch_scc1 L_k1_gnd" % (sT3, sT3, sNon))
    k("s_cmp_gt_u32 s%d, 0x40000\ns_cbranch_scc1 L_k1_gnd" % sT3)
    k("v_mov_b32 v%d, 0" % vT[1])
    k("global_load_dword v%d, v%d, %s%s\ns_waitcnt vmcnt(0)\ns_branch L_k1_gn" % (vN, vT[1], sp(pDbg), SC))
    k("L_k1_gnd:")
    k("s_max_u32 s%d, s%d, 1" % (sNon, sNon))
    k("v_cvt_pk_bf16_f32 v%d, v%d, v%d\nv_mov_b32 v%d, s%d" % (T+44, A, B, T+45, sNon))
    k("s_lshl_b32 s%d, s%d, 5\ns_add_u32 s%d, s%d, 0x%x" % (sT0, sC, sT0, sT0, RST_OFF))
    k("v_lshlrev_b32 v%d, 3, v%d" % (vT[2], vG))
    k("s_mov_b32 exec_lo, 0x00010001\ns_mov_b32 exec_hi, 0x00010001")
    k("buffer_store_dwordx2 %s, v%d, %s, s%d offen%s" % (vr(T+44, 2), vT[2], sq(SWS), sT0, SC))
    k("s_mov_b64 exec, -1")
    k("s_cmp_eq_u32 s%d, 1\ns_cbranch_scc1 L_k1_D1b" % sMH)
    k("v_and_b32 v%d, 1, v%d\nv_lshlrev_b32 v%d, 4, v%d\nv_mov_b32 v%d, 0x3f80\nv_lshlrev_b32 v%d, v%d, v%d" % (T+8, vM, T+8, T+8, T+9, T+8, T+8, T+9))
    k("v_bfe_u32 v%d, v%d, 1, 2" % (T+9, vM))
    for d in range(4): k("v_cmp_eq_u32 vcc, %d, v%d\nv_cndmask_b32 v%d, 0, v%d, vcc" % (d, T+9, T+d, T+8))
    for a in range(16): k("v_mfma_f32_16x16x32_bf16 %s, %s, %s, %s" % (vr(T+4, 4), vr(T, 4), vr(YR+4*a, 4), vr(T+4, 4) if a else "0"))
    k("s_lshl_b32 s%d, s%d, 9\ns_add_u32 s%d, s%d, 0x%x\ns_cmp_lt_u32 s%d, 240\ns_cselect_b32 s%d, s%d, 0x%x" % (sT0, sG_, sT0, sT0, SG_OFF, sG_, sT0, sT0, WS_NREC))
    k("v_lshlrev_b32 v%d, 5, v%d\nv_lshl_add_u32 v%d, v%d, 6, v%d\nv_add_u32 v%d, s%d, v%d" % (T+8, vG, T+8, vSL, T+8, T+8, sT0, T+8))
    for r in range(4): k("v_mov_b32 v%d, s%d" % (T+13+2*r, sNon))
    for r in range(4): k("v_add_f32_dpp v%d, v%d, v%d%s" % (T+12+2*r, T+4+r, T+4+r, DPP))
    k("s_mov_b32 exec_lo, 0x00ff00ff\ns_mov_b32 exec_hi, 0")
    k("buffer_store_dwordx4 %s, v%d, %s, 0 offen%s" % (vr(T+12, 4), T+8, sq(SWS), SC))
    k("buffer_store_dwordx4 %s, v%d, %s, 0 offen offset:16%s" % (vr(T+16, 4), T+8, sq(SWS), SC))
    k("s_mov_b64 exec, -1")
    k("s_branch L_k1_Dc")
    k("L_k1_D1b:")
    for hh in range(2): dsum(A+2*hh, YR+20*hh, 20, False)
    k("v_add_f32 v%d, v%d, v%d\nv_add_f32 v%d, v%d, v%d" % (A, A, A+1, A+2, A+2, A+3))
    row_sum([A, A+2])
    k("v_mov_b32 v%d, s%d\nv_mov_b32 v%d, s%d" % (A+1, sNon, A+3, sNon))
    k("s_lshl_b32 s%d, s%d, 6\ns_add_u32 s%d, s%d, 0x%x\ns_cmp_lt_u32 s%d, 160\ns_cselect_b32 s%d, s%d, 0x%x" % (sT0, sG_, sT0, sT0, SB_OFF, sG_, sT0, sT0, WS_NREC))
    k("v_add_u32 v%d, s%d, v%d" % (vT[3], sT0, vT[2]))
    k("s_mov_b32 exec_lo, 0x00010001\ns_mov_b32 exec_hi, 0x00010001")
    k("buffer_store_dwordx2 %s, v%d, %s, 0 offen%s" % (vr(A, 2), vT[3], sq(SWS), SC))
    k("buffer_store_dwordx2 %s, v%d, %s, 0 offen offset:32%s" % (vr(A+2, 2), vT[3], sq(SWS), SC))
    k("s_mov_b64 exec, -1")
    k("L_k1_Dc:")
    ev(3)
    PSC = S1
    k("s_waitcnt vmcnt(3)")
    k("s_cmp_eq_u32 s%d, 1\ns_cbranch_scc1 %s" % (sTY, "L_k1_pdd" if PA else "L_k1_pdC"))
    k("s_cmp_ge_u32 s%d, 48\ns_cbranch_scc1 L_k1_pdd" % sPQ[0])
    k("s_mul_i32 s%d, s%d, %d\ns_add_u32 s%d, s%d, 49152" % (sT2, sMH, SL, sT2, sT2))
    k("v_lshlrev_b32 v%d, 4, v%d\nv_add_u32 v%d, s%d, v%d" % (T+1, vL, T, sT2, T+1))
    k("v_lshrrev_b32 v%d, 2, v%d\nv_lshl_add_u32 v%d, v%d, 2, v%d\nv_lshlrev_b32 v%d, 7, v%d" % (T+2, vM, T+2, vG, T+2, T+2, T+2))
    k("v_and_b32 v%d, 3, v%d\nv_lshl_add_u32 v%d, v%d, 3, v%d\nv_add_u32 v%d, s%d, v%d" % (T+3, vM, T+2, T+3, T+2, T+2, sT2, T+2))
    for n in range(2):
        for a in range(4): k("ds_write_b128 v%d, %s offset:%d" % (T, vr(PK+16*n+4*a, 4), a*1024))
        k("s_waitcnt lgkmcnt(0)")
        for c4 in range(4):
            k("ds_read_b64_tr_b16 %s, v%d offset:%d" % (vr(PK+16*n+c4*4, 2), T+2, c4*32))
            k("ds_read_b64_tr_b16 %s, v%d offset:%d" % (vr(PK+16*n+c4*4+2, 2), T+2, c4*32+2048))
        for c4 in range(4):
            k("s_lshl_b32 s%d, s%d, 2\ns_add_u32 s%d, s%d, %d\ns_mul_i32 s%d, s%d, 52\ns_lshr_b32 s%d, s%d, 8" % (sT0, sPR[n], sT0, sT0, c4, sT1, sT0, sT1, sT1))
            k("s_mul_i32 s%d, s%d, 435\ns_add_u32 s%d, s%d, s%d\ns_mul_i32 s%d, s%d, 5\ns_add_u32 s%d, s%d, s%d" % (sT1, sT1, sT1, sT1, sT0, sT0, sPQ[n], sT1, sT1, sT0))
            k("s_lshl_b32 s%d, s%d, 10\ns_add_u32 s%d, s%d, %d" % (sT1, sT1, sT1, sT1, B2_OFF))
            k("s_waitcnt lgkmcnt(%d)" % (6-2*c4))
            k("buffer_store_dwordx4 %s, v%d, %s, s%d offen%s" % (vr(PK+16*n+c4*4, 4), T+1, sq(SWS), sT1, PSC))
    if not PA: k("s_branch L_k1_pdd")
    k("L_k1_pdC:")
    k("s_cmp_ge_u32 s%d, 40\ns_cbranch_scc1 L_k1_pdd" % sPQ[0])
    k("v_lshrrev_b32 v%d, 1, v%d\nv_mul_u32_u24 v%d, 5120, v%d" % (T+1, cc_, T+1, T+1))
    k("v_and_b32 v%d, 1, v%d\nv_lshl_add_u32 v%d, v%d, 5, v%d\nv_lshl_add_u32 v%d, v%d, 4, v%d" % (T+2, cc_, T+2, T+2, cr_, T+1, T+2, T+1))
    for n in range(2):
        k("s_mul_i32 s%d, s%d, 52\ns_lshr_b32 s%d, s%d, 8\ns_mul_i32 s%d, s%d, 435\ns_add_u32 s%d, s%d, s%d" % (sT1, sPQ[n], sT1, sT1, sT1, sT1, sT1, sT1, sPQ[n]))
        k("s_mul_i32 s%d, s%d, 20\ns_add_u32 s%d, s%d, s%d\ns_add_u32 s%d, s%d, 240\ns_lshl_b32 s%d, s%d, 10\ns_add_u32 s%d, s%d, %d" % (sT0, sPR[n], sT1, sT1, sT0, sT1, sT1, sT1, sT1, sT1, sT1, B2_OFF))
        for r in range(8, 16): k("v_xor_b32 v%d, 0x80008000, v%d" % (PK2+16*n+r, PK2+16*n+r))
        for part in range(2):
            for hh in range(2):
                k("buffer_store_dwordx4 %s, v%d, %s, s%d offen offset:%d%s" % (vr(PK2+16*n+(part*2+hh)*4, 4), T+1, sq(SWS), sT1, part*256+hh*128, PSC))
    k("L_k1_pdd:")
    if opt("pw", 0):
        k("s_mul_i32 s%d, s%d, 22528\nv_lshlrev_b32 v%d, 4, v%d" % (sT0, sC, T+3, vL))
        for j in range(22):
            k("buffer_store_dwordx4 %s, v%d, %s, s%d offen offset:%d sc1" % (vr(XR, 4), T+3, sq(SWS), sT0, (j & 3)*1024))
            if j & 3 == 3: k("s_add_u32 s%d, s%d, 4096" % (sT0, sT0))
    ev(4)
    if PA: k("s_cmp_eq_u32 s%d, 1\ns_cbranch_scc1 L_k1_npf" % sTY)
    k("s_lshl_b32 s%d, s%d, 4\ns_add_u32 s%d, s%d, s%d\ns_lshl_b32 s%d, s%d, 3\ns_add_u32 s%d, s%d, s%d\ns_lshl_b32 s%d, s%d, 1\ns_add_u32 s%d, s%d, s%d" % (sT0, sTY, sT0, sT0, sI, sT0, sT0, sT0, sT0, sJJ, sT0, sT0, sT0, sT0, sMH))
    k("s_lshl_b32 s%d, s%d, 2\ns_add_u32 s%d, s%d, 0x%x\nv_mov_b32 v%d, s%d\nv_mov_b32 v%d, s%d" % (sT0, sT0, sT0, sT0, PF_OFF, T, sT0, T+1, sNon))
    k("s_waitcnt vmcnt(0)\ns_mov_b64 exec, 1")
    k("buffer_store_dword v%d, v%d, %s, 0 offen%s\ns_mov_b64 exec, -1" % (T+1, T, sq(SWS), SC))
    k("L_k1_npf:")
    stamp(k, 2)
    ev(5)
    TB = 48
    k("s_cmp_eq_u32 s%d, 0\ns_cbranch_scc1 L_k1_ntb" % sTY)
    param_ab(PP, 80, 85, vT[1])
    k("v_cvt_f32_u32 v%d, v%d\nv_mul_f32 v%d, %s, v%d\nv_mul_f32 v%d, %s, v%d" % (vT[1], vG, vT[2], f32(64.0), vT[1], vT[1], f32(16.0), vT[1]))
    cpow5(r5(TB), r5(TB+5), f32(256.0), 90, 95, 80, 85)
    cpow5(r5(TB+12), r5(TB+17), "v%d" % vT[2], 90, 95, 80, 85)
    cpow5(r5(TB+22), r5(TB+27), "v%d" % vT[1], 90, 95, 80, 85)
    k("L_k1_ntb:")
    EI = 16
    aSt, aS0, aS1 = 40, 41, 42
    k("s_lshl_b32 s%d, s%d, 1\ns_add_u32 s%d, s%d, s%d\ns_lshl_b32 s%d, s%d, 9\ns_add_u32 s%d, s%d, 0x%x" % (sT0, sI, sT0, sT0, sMH, sT0, sT0, sT0, sT0, RST_OFF))
    k("v_lshrrev_b32 v%d, 2, v%d\nv_lshlrev_b32 v%d, 4, v%d\nv_lshl_add_u32 v%d, v%d, 2, v%d" % (aSt, vM, aSt, aSt, aSt, vG, aSt))
    k("v_and_b32 v%d, 3, v%d\nv_add_u32 v%d, v%d, v%d\nv_lshl_add_u32 v%d, v%d, 3, s%d" % (aS0, vM, aSt, aSt, aS0, aSt, aSt, sT0))
    k("s_cmp_eq_u32 s%d, 1\ns_cbranch_scc1 L_k1_eaB" % sTY)
    k("s_lshl_b32 s%d, s%d, 6\ns_add_u32 s%d, s%d, s%d\ns_lshl_b32 s%d, s%d, 3\ns_add_u32 s%d, s%d, 0x%x" % (sT0, sMH, sT0, sT0, sCol, sT0, sT0, sT0, sT0, SG_OFF))
    k("v_lshl_add_u32 v%d, v%d, 3, s%d\nv_add_u32 v%d, %d, v%d" % (aS0, vL, sT0, aS1, 1536*8, aS0))
    k("s_mov_b32 s%d, %d" % (sKw, 3072*8))
    k("s_branch L_k1_ead")
    k("L_k1_eaB:")
    k("s_lshl_b32 s%d, s%d, 5\ns_add_u32 s%d, s%d, s%d\ns_lshl_b32 s%d, s%d, 3\ns_add_u32 s%d, s%d, 0x%x" % (sT0, sMH, sT0, sT0, sCol, sT0, sT0, sT0, sT0, SG_OFF))
    k("v_lshrrev_b32 v%d, 5, v%d\nv_mul_u32_u24 v%d, 1504, v%d\nv_add_u32 v%d, v%d, v%d\nv_lshl_add_u32 v%d, v%d, 3, s%d" % (aS0, vL, aS0, aS0, aS0, aS0, vL, aS0, aS0, sT0))
    k("s_mul_i32 s%d, s%d, 80\ns_mul_i32 s%d, s%d, 40\ns_add_u32 s%d, s%d, s%d\ns_lshl_b32 s%d, s%d, 3\ns_add_u32 s%d, s%d, 0x%x" % (sT0, sJJ, sT1, sMH, sT0, sT0, sT1, sT0, sT0, sT0, sT0, SB_OFF))
    k("v_lshrrev_b32 v%d, 3, v%d\nv_mul_u32_u24 v%d, 640, v%d\nv_add_u32 v%d, v%d, v%d\nv_lshl_add_u32 v%d, v%d, 3, s%d" % (aS1, vM, aS1, aS1, aS1, aS1, vSL, aS1, aS1, sT0))
    k("s_mov_b32 s%d, 64" % sKw)
    k("L_k1_ead:")
    ev(6)
    k("s_lshl_b32 s%d, s%d, 2\ns_add_u32 s%d, s%d, %d\nv_mov_b32 v%d, s%d\nv_mov_b32 v%d, s%d\nv_lshlrev_b32 v43, 4, v%d" % (sT0, sMH, sT0, sT0, FLG+24, T+6, sT0, T+7, sNon, vL))
    PFW = 2 if PA else 4
    def pf_load(): return "buffer_load_dwordx%d v[44:%d], v%d, %s, s%d offen%s" % (PFW, 43+PFW, T+12, sq(SWS), sKx, SC)
    def pf_eval(ok):
        k("v_xor_b32 v%d, s%d, v44" % (T, sNon))
        for r_ in range(45, 44+PFW): k("v_xor_b32 v%d, s%d, v%d\nv_or_b32 v%d, v%d, v%d" % (T+1, sNon, r_, T, T, T+1))
        k("v_cmp_ne_u32 vcc, 0, v%d" % T)
    k("s_mul_i32 s%d, s%d, %d\ns_add_u32 s%d, s%d, 0x%x\nv_mul_u32_u24 v%d, %d, v%d\ns_mov_b32 s70, 0" % (sKx, sMH, PFW*256, sKx, sKx, PF_OFF, T+12, PFW*4, vL))
    wait_word("L_k1_eg", 36, "%d" % opt("eigate", 10), T, T+1)
    k("s_mov_b32 s%d, 0" % sT3)
    k(pf_load())
    k("L_k1_eil:")
    k("buffer_load_dwordx2 %s, v%d, %s, 0 offen%s" % (vr(EI, 2), aSt, sq(SWS), SC))
    for p in range(5):
        k("s_mov_b32 s%d, %d\ns_mul_i32 s%d, s%d, %d" % (sT0, p*3072*8, sT1, sKw, p))
        k("buffer_load_dwordx2 %s, v%d, %s, s%d offen%s" % (vr(EI+2+2*p, 2), aS0, sq(SWS), sT0, SC))
        k("buffer_load_dwordx2 %s, v%d, %s, s%d offen%s" % (vr(EI+12+2*p, 2), aS1, sq(SWS), sT1, SC))
    k("s_cmp_lg_u32 s%d, 0\ns_cbranch_scc1 L_k1_ntw" % sT3)
    k("s_waitcnt vmcnt(11)")
    pf_eval(None)
    k("s_cbranch_vccnz L_k1_pno\ns_mov_b32 s70, 1\nds_write_b32 v%d, v%d offset:16\nL_k1_pno:" % (T+6, T+7))
    k("s_cmp_eq_u32 s%d, 0\ns_cbranch_scc1 L_k1_ntw" % sTY)
    k("v_mov_b32 v%d, %d" % (T+2, FLG))
    wait_done("L_k1_tbw", "16", T+2, T+8)
    k("s_mul_i32 s%d, s%d, %d\ns_add_u32 s%d, s%d, %d\nv_add_u32 v43, s%d, v43" % (sT0, sMH, 2*80*TRP, sT0, sT0, TRB, sT0))
    for w2 in range(2):
        for qd in range(8): k("ds_write_b128 v43, %s offset:%d" % (vr(TB+4*qd, 4), w2*80*TRP+qd*1024))
    k("L_k1_ntw:")
    k("s_waitcnt vmcnt(0)")
    k("v_xor_b32 v%d, s%d, v%d" % (T, sNon, EI+1))
    for r_ in [EI+3+2*p for p in range(10)]: k("v_xor_b32 v%d, s%d, v%d\nv_or_b32 v%d, v%d, v%d" % (T+1, sNon, r_, T, T, T+1))
    k("v_cmp_ne_u32 vcc, 0, v%d" % T)
    k("s_add_u32 s%d, s%d, 1" % (sT3, sT3))
    k("s_cbranch_vccz L_k1_eid")
    k("s_sleep 16\ns_cmp_lt_u32 s%d, 0x40000\ns_cbranch_scc1 L_k1_eil" % sT3)
    k("L_k1_eid:")
    ev(8)
    k("v_lshlrev_b32 v%d, 16, v%d\nv_and_b32 v%d, s%d, v%d\nv_rcp_f32 v%d, v%d" % (T, EI, T+1, sMASK, EI, T+2, T+1))
    k("s_mul_i32 s%d, s%d, 768\ns_add_u32 s%d, s%d, %d" % (sT0, sMH, sT0, sT0, STAT_M))
    k("v_lshl_add_u32 v%d, v%d, 2, s%d" % (T+3, vL, sT0))
    k("ds_write_b32 v%d, v%d\nds_write_b32 v%d, v%d offset:256\nds_write_b32 v%d, v%d offset:512" % (T+3, T, T+3, T+2, T+3, T+1))
    def sum5(b): k("v_add_f32 v%d, v%d, v%d\nv_add_f32 v%d, v%d, v%d\nv_add_f32 v%d, v%d, v%d\nv_add_f32 v%d, v%d, v%d" % (b, b, b+2, b+4, b+4, b+6, b, b, b+8, b, b, b+4))
    sum5(EI+2)
    k("s_lshl_b32 s%d, s%d, 9\ns_add_u32 s%d, s%d, %d" % (sT0, sMH, sT0, sT0, SFF))
    k("v_lshl_add_u32 v%d, v%d, 2, s%d" % (T+4, vL, sT0))
    k("ds_write_b32 v%d, v%d" % (T+4, EI+2))
    k("s_cmp_eq_u32 s%d, 1\ns_cbranch_scc1 L_k1_ewB" % sTY)
    sum5(EI+12)
    k("ds_write_b32 v%d, v%d offset:256" % (T+4, EI+12))
    k("s_branch L_k1_ewd")
    k("L_k1_ewB:")
    k("s_mul_i32 s%d, s%d, 384\ns_add_u32 s%d, s%d, %d" % (sT0, sMH, sT0, sT0, SSS))
    k("v_lshl_add_u32 v%d, v%d, 2, s%d" % (T+5, vM, sT0))
    for p in range(5): k("ds_write_b32 v%d, v%d offset:%d" % (T+5, EI+12+2*p, p*64))
    k("L_k1_ewd:")
    k("ds_write_b32 v%d, v%d" % (T+6, T+7))
    k("s_cmp_lg_u32 s70, 0\ns_cbranch_scc1 L_k1_pfd\ns_mov_b32 s%d, 0" % sT3)
    k("L_k1_pfl:")
    k(pf_load() + "\ns_waitcnt vmcnt(0)")
    pf_eval(None)
    k("s_add_u32 s%d, s%d, 1" % (sT3, sT3))
    k("s_cbranch_vccz L_k1_pfo")
    k("s_sleep 12\ns_cmp_lt_u32 s%d, 0x40000\ns_cbranch_scc1 L_k1_pfl" % sT3)
    k("L_k1_pfo:")
    k("ds_write_b32 v%d, v%d offset:16" % (T+6, T+7))
    k("L_k1_pfd:")
    k("v_mov_b32 v72, %d\nv_mov_b32 v73, 0" % (FLG+48))
    k("L_k1_P2:")
    if opt("p2prio", 0): k("s_setprio %d" % opt("p2prio", 0))
    stamp(k, 1)
    if TRACE:
        k("s_lshl_b32 s83, s2, 11\ns_add_u32 s83, s83, 0x%x\nv_lshl_add_u32 v12, v0, 2, s83" % (STAMP_OFF + 0x40000))
        k("global_store_dword v12, v255, %s" % sp(pWs))
    LD2 = ["", " sc1", " nt", " sc0 sc1", " sc1 nt"][opt("ld2", 1)]
    sP, sMI, sNI = 4, 5, 6
    sAb, sBb = [72, 73, 74], [75, 76, 77]
    sR, sSh = 78, 79
    SO = SX
    AR, BR, AC = 12, 76, 176
    vA = [2, 3, 4, 5]; vB0, vB1, vOut, vLd, vFl, vFa = 6, 7, 8, 9, 10, 11
    k("s_sub_u32 s%d, s%d, 4" % (sP, sW))
    k("s_and_b32 s%d, s2, 7\ns_lshr_b32 s%d, s2, 3" % (sT0, sT1))
    k("s_lshr_b32 s%d, s%d, 1\ns_lshl_b32 s%d, s%d, 3\ns_and_b32 s%d, s%d, 7\ns_add_u32 s%d, s%d, s%d" % (sMI, sT0, sMI, sMI, sT2, sT1, sMI, sMI, sT2))
    k("s_and_b32 s%d, s%d, 1\ns_lshl_b32 s%d, s%d, 2\ns_lshr_b32 s%d, s%d, 3\ns_add_u32 s%d, s%d, s%d" % (sNI, sT0, sNI, sNI, sT2, sT1, sNI, sNI, sT2))
    X_, D_, ST_, PFr, tA, tB, tC = AR, AR+10, AR+20, AR+24, AR+32, AR+33, AR+34
    k("v_bfe_u32 v%d, v%d, 1, 2\nv_xor_b32 v%d, v%d, v%d\nv_mul_u32_u24 v%d, 320, v%d\nv_lshl_add_u32 v%d, v%d, 4, v%d" % (tA, vM, tA, tA, vG, vOut, vM, vOut, tA, vOut))
    k("v_lshlrev_b32 v%d, 4, v%d\nv_add_u32 v%d, 4096, v%d" % (vB0, vL, vB1, vB0))
    for f in range(4): k("s_xor_b32 s%d, s%d, %d\ns_lshl_b32 s%d, s%d, 10\nv_add_u32 v%d, s%d, v%d" % (sT0, sP, f, sT0, sT0, vA[f], sT0, vB0))
    k("s_mul_i32 s%d, s%d, %d\ns_mul_i32 s%d, s%d, %d\ns_add_u32 s%d, s%d, 0x%x" % (sBb[0], sMI, 88*4096, sBb[1], sNI, 88*5120, sBb[1], sBb[1], B2_OFF))
    for g, (mul, add) in enumerate(((8, 0), (4, 32), (10, 48))):
        k("s_mul_i32 s%d, s%d, %d\ns_add_u32 s%d, s%d, %d" % (sAb[g], sP, mul, sAb[g], sAb[g], add))
    def region(dst, src):
        k("s_and_b32 s%d, s%d, 1\ns_mul_i32 s%d, s%d, 25600\ns_cmp_lt_u32 s%d, 2\ns_cselect_b32 s%d, %d, 0\ns_add_u32 s%d, s%d, s%d" % (dst, src, dst, dst, src, sT0, 2*SL, dst, dst, sT0))
    region(sR, sP)
    k("v_add_u32 v%d, s%d, v%d\nv_add_u32 v%d, s%d, v%d" % (vLd, sR, vB0, vOut, sR, vOut))
    k("s_lshl_b32 s%d, s%d, 2\ns_add_u32 s%d, s%d, s%d\ns_mul_i32 s%d, s%d, %d\ns_add_u32 s%d, s%d, 0x%x" % (sSh, sMI, sSh, sSh, sP, sSh, sSh, FLS_, sSh, sSh, FL_OFF))
    k("s_lshl_b32 s%d, s%d, 2\ns_add_u32 s%d, s%d, %d\nv_mov_b32 v%d, s%d\nv_mov_b32 v%d, %d" % (sT0, sP, sT0, sT0, FLG+64, vFa, sT0, PFr+2, FLG+32))
    k("s_waitcnt vmcnt(0)\nds_write_b32 v72, v73")
    steps = [(0, i) for i in (0, 2, 4, 6, 1, 3, 5, 7)] + [(1, i) for i in range(4)] + [(2, i) for i in range(10)]
    fgrp = {0: 0, 4: 3, 8: 1, 12: 2}
    NS = len(steps)
    sK = list(range(16, 32)) + list(range(34, 40))
    ROT = opt("rot", 0)
    k("s_lshr_b32 s%d, s2, 3\ns_and_b32 s%d, s%d, 7\ns_lshr_b32 s%d, s%d, 3" % (sT1, sT0, sT1, sT1, sT1))
    if ROT:
        k("s_add_u32 s%d, s%d, s%d\ns_and_b32 s%d, s%d, 3" % (sT2, sT0, sT1, sT2, sT2))
        k("s_mul_i32 s%d, s%d, 3\ns_add_u32 s%d, s%d, s%d\ns_cmp_ge_u32 s%d, 10\ns_cselect_b32 s%d, 10, 0\ns_sub_u32 s%d, s%d, s%d" % (sT3, sT1, sT3, sT3, sT0, sT3, sT0, sT3, sT3, sT0))
    else:
        k("s_mov_b32 s%d, 0\ns_mov_b32 s%d, 0" % (sT2, sT3))
    for j in range(4):
        k("s_add_u32 s%d, s%d, %d\ns_and_b32 s%d, s%d, 3\ns_add_u32 s%d, s%d, s%d\ns_lshl_b32 s%d, s%d, 1\ns_add_u32 s%d, s%d, s%d\ns_add_u32 s%d, s%d, 1" %
          (sT0, sT2, j, sT0, sT0, sK[8+j], sT0, sAb[1], sT0, sT0, sK[j], sT0, sAb[0], sK[4+j], sK[j]))
    for j in range(10):
        k("s_add_u32 s%d, s%d, %d\ns_cmp_ge_u32 s%d, 10\ns_cselect_b32 s%d, 10, 0\ns_sub_u32 s%d, s%d, s%d\ns_add_u32 s%d, s%d, s%d" % (sT0, sT3, j, sT0, sT1, sT0, sT0, sT1, sK[12+j], sT0, sAb[2]))
    LS = [[7, 10, 13, 16, 19], [17, 18, 19, 20, 21], [9, 12, 15, 18, 21], [13, 15, 17, 19, 21], [], [20, 21]][opt("lsl", 2)]
    NA, NB = 4, 5
    vm = []
    THR = opt("thr", 0)
    def ldB(s, buf):
        g, i = steps[s]
        o = (["s_waitcnt vmcnt(%d)" % THR] if THR else []) + ["s_mul_i32 s%d, s%d, 5120\ns_add_u32 s%d, s%d, s%d" % (sT1, sK[s], sT1, sT1, sBb[1])]
        for f in range(5):
            o.append("buffer_load_dwordx4 %s, v%d, %s, s%d offen offset:%d%s" % (vr(BR+buf*20+f*4, 4), vB1 if f == 4 else vB0, sq(SWS), sT1, (f & 3)*1024, LD2))
            vm.append(("B", s))
        return o
    def ldA(s):
        g, i = steps[s]
        o = (["s_waitcnt vmcnt(%d)" % THR] if THR else []) + ["s_lshl_b32 s%d, s%d, 12\ns_add_u32 s%d, s%d, s%d" % (sT0, sK[s], sT0, sT0, sBb[0])]
        for f in range(4):
            o.append("buffer_load_dwordx4 %s, v%d, %s, s%d offen%s" % (vr(AR+(s % NA)*16+f*4, 4), vA[f], sq(SWS), sT0, LD2))
            vm.append(("A", s))
        return o
    def vwait(tags):
        idx = max(i for i, x in enumerate(vm) if x in tags)
        return min(63, len(vm)-1-idx)
    bbuf = {}
    k("L_k1_p2e:")
    k("ds_read_b128 %s, v%d\ns_waitcnt lgkmcnt(0)\nv_min_u32 v%d, v%d, v%d\nv_readfirstlane_b32 s%d, v%d\nv_readfirstlane_b32 s%d, v%d" % (vr(PFr+4, 4), PFr+2, PFr+6, PFr+6, PFr+7, sNon, PFr+6, sT0, PFr+5))
    k("s_cmp_lt_u32 s%d, %d\ns_cselect_b32 s%d, 0, s%d\ns_cmp_lg_u32 s%d, 0\ns_cbranch_scc1 L_k1_p2eo\ns_sleep 1\ns_branch L_k1_p2e\nL_k1_p2eo:" % (sT0, opt("bgate", 10), sT0, sNon, sT0))
    streamed = [s for s in range(NS) if s not in LS]
    NPRE = opt("npre", NB)
    for j in range(NB):
        bbuf[streamed[j]] = j
        if j < NPRE:
            for x in ldB(streamed[j], j): k(x)
    nextB = NB
    srd(k, SO, pOut, 2048*640*4)
    k("v_mov_b32 v%d, %d" % (AR+40, FLG))
    k("s_and_b32 s%d, s%d, 2\ns_add_u32 s%d, s%d, 18" % (sT1, sP, sT1, sT1))
    stamp(k, 2)
    wait_done("L_k1_p2w", "s%d" % sT1, AR+40, AR+44)
    for j, s_ in enumerate(LS):
        g, i = steps[s_]
        if THR: k("s_waitcnt vmcnt(%d)" % THR)
        k("s_add_u32 m0, s%d, %d\ns_mul_i32 s%d, s%d, 5120\ns_add_u32 s%d, s%d, s%d" % (sR, j*5120, sT1, sK[s_], sT1, sT1, sBb[1]))
        for f in range(4):
            k("buffer_load_dwordx4 v%d, %s, s%d offen offset:%d%s lds" % (vB0, sq(SWS), sT1, f*1024, LD2)); vm.append(("L", s_))
        k("s_add_u32 m0, s%d, %d" % (sR, j*5120+4096))
        k("buffer_load_dwordx4 v%d, %s, s%d offen%s lds" % (vB1, sq(SWS), sT1, LD2)); vm.append(("L", s_))
    if opt("tb", 0):
        assert not ROT
        rest = streamed[NB:]
        tv, tj = AR+40, AR+41
        k("v_mul_u32_u24 v%d, 52, v%d\nv_lshrrev_b32 v%d, 8, v%d" % (tj, vL, tj, tj))
        k("v_mov_b32 v%d, s%d" % (tv, sK[rest[0]]))
        for j in range(1, len(rest)):
            k("v_cmp_le_u32 vcc, %d, v%d\nv_mov_b32 v%d, s%d\nv_cndmask_b32 v%d, v%d, v%d, vcc" % (j, tj, AR+42, sK[rest[j]], tv, tv, AR+42))
        k("v_mul_u32_u24 v%d, 5, v%d\nv_sub_u32 v%d, v%d, v%d" % (tj, tj, tj, vL, tj))
        k("s_lshr_b32 s%d, s2, 3\ns_and_b32 s%d, s%d, 7\ns_mul_i32 s%d, s%d, 640\ns_add_u32 s%d, s%d, s%d" % (sT0, sT0, sT0, sT0, sT0, sT0, sT0, sBb[1]))
        k("v_mul_u32_u24 v%d, 5120, v%d\nv_lshl_add_u32 v%d, v%d, 7, v%d" % (tv, tv, tv, tj, tv))
        k("buffer_load_dword v%d, v%d, %s, s%d offen%s" % (vFl, tv, sq(SWS), sT0, LD2)); vm.append(("T", 0))
    stamp(k, 3)
    k("s_add_u32 s40, s%d, s%d\ns_addc_u32 s41, s%d, 0" % (pWs, sSh, pWs+1))
    def flag_load(g):
        return "s_load_dwordx4 s[52:55], s[40:41], %d glc" % (g*16)
    def flag_check(g):
        lab = "L_k1_fc%d" % g
        k("s_mov_b32 s%d, 0\ns_branch %s_c" % (sT3, lab))
        k("%s_r:" % lab)
        k("s_sleep %d\n%s" % (opt("psl", 2), flag_load(g)))
        k("%s_c:" % lab)
        k("s_waitcnt lgkmcnt(0)")
        k("s_xor_b32 s52, s52, s%d\ns_xor_b32 s53, s53, s%d\ns_xor_b32 s54, s54, s%d\ns_xor_b32 s55, s55, s%d" % (sNon, sNon, sNon, sNon))
        k("s_add_u32 s%d, s%d, 1\ns_or_b64 s[52:53], s[52:53], s[54:55]\ns_cbranch_scc0 %s_d" % (sT3, sT3, lab))
        k("s_cmp_lt_u32 s%d, 0x100000\ns_cbranch_scc1 %s_r" % (sT3, lab))
        k("%s_d:" % lab)
        if opt("p2t", 0): k("s_memrealtime s[100:101]\ns_waitcnt lgkmcnt(0)\nv_writelane_b32 v1, s100, %d\nv_writelane_b32 v1, s%d, %d" % (32+g, sT3, 40+g))
    if opt("pd", 0): k("s_waitcnt vmcnt(0)\ns_sleep %d" % opt("pd", 0))
    k(flag_load(0))
    flag_check(0)
    stamp(k, 4)
    for s_ in range(NB):
        if s_ < NA:
            for x in ldA(s_): k(x)
        if s_ >= NPRE:
            for x in ldB(streamed[s_], s_): k(x)
    LEAD = {4: opt("ld3", 1), 8: opt("ld1", 2), 12: opt("ld2_", 2)}
    chkpos = {g: g - 1 - LEAD[g] for g in LEAD}
    nextA = NA
    if chkpos[4] == 0: k(flag_load(3))
    pend = []
    for s_ in range(NS):
        fill = pend; pend = []
        need = [("A", s_)] + ([("B", s_)] if s_ not in LS else [])
        CSM_ = opt("csm", 1)
        if (CSM_ & 1 and s_ == 0) or (CSM_ & 2 and 0 < s_ < opt("csn", 12)):
            lab = "L_k1_cs%d" % s_
            if s_ == 0: k("%s_r:\nds_read_b32 v%d, v%d" % (lab, vFl, vFa))
            else: k("s_branch %s_c\n%s_r:\ns_sleep 1\nds_read_b32 v%d, v%d\n%s_c:" % (lab, lab, vFl, vFa, lab))
            k("s_waitcnt lgkmcnt(0)\nv_readfirstlane_b32 s%d, v%d\ns_cmp_eq_u32 s%d, 0\ns_cbranch_scc1 %s_r" % (sT2, vFl, sT2, lab))
        if CSM_ & 2 and s_+1 < opt("csn", 12): fill = fill + ["ds_read_b32 v%d, v%d" % (vFl, vFa)]
        mf_ = []
        for f in range(4):
            for cb in range(5):
                c = AC + (f*5+cb)*4
                mf_.append("v_mfma_f32_16x16x32_bf16 %s, %s, %s, %s" % (vr(c, 4), vr(BR+bbuf[s_]*20+cb*4, 4), vr(AR+(s_ % NA)*16+f*4, 4), vr(c, 4) if s_ else "0"))
        if opt("ilv", 1):
            nf = sum(1 for x in fill if x.startswith("buffer_load"))
            k("s_waitcnt vmcnt(%d)%s" % (max(0, vwait(need)-nf), " lgkmcnt(0)" if s_ in LS else ""))
            if opt("p2t", 0): k("s_memrealtime s[100:101]")
            interleave(k, mf_, fill, per=1)
            if opt("p2t", 0): k("s_waitcnt lgkmcnt(0)\nv_writelane_b32 v1, s100, %d" % s_)
        else:
            for x in fill: k(x)
            k("s_waitcnt vmcnt(%d)%s" % (vwait(need), " lgkmcnt(0)" if s_ in LS else ""))
            if opt("p2t", 0): k("s_memrealtime s[100:101]")
            for x in mf_: k(x)
            if opt("p2t", 0): k("s_waitcnt lgkmcnt(0)\nv_writelane_b32 v1, s100, %d" % s_)
        for g_ in chkpos:
            if chkpos[g_] == s_:
                if fgrp[g_] == 2: stamp(k, 0)
                flag_check(fgrp[g_])
                if fgrp[g_] == 2: stamp(k, 7)
        while nextA < NS and nextA <= s_ + NA and all(not (g_ <= nextA and chkpos[g_] > s_) for g_ in chkpos):
            pend += ldA(nextA); nextA += 1
        fb = bbuf[s_]
        if s_+2 in LS:
            bbuf[s_+2] = fb
            j = LS.index(s_+2)
            pend.append("s_waitcnt vmcnt(%d)" % vwait([("L", s_+2)]))
            for f in range(5): pend.append("ds_read_b128 %s, v%d offset:%d" % (vr(BR+fb*20+f*4, 4), vLd, j*5120+f*1024))
        elif nextB < len(streamed):
            bbuf[streamed[nextB]] = fb
            pend += ldB(streamed[nextB], fb); nextB += 1
        for g_ in chkpos:
            if chkpos[g_] == s_+1: pend.insert(0, flag_load(fgrp[g_]))
    stamp(k, 5)
    OSC = ["", " sc1", " nt", " sc0 sc1"][opt("osc", 1)]
    for f in (1, 2, 3, 0):
        for cb in range(5): k("ds_write_b128 v%d, %s offset:%d" % (vOut, vr(AC+(f*5+cb)*4, 4), f*5120+cb*64))
    for f in range(1, 4):
        k("s_xor_b32 s%d, s%d, %d" % (sT2, sP, f))
        region(sT1, sT2)
        k("v_add_u32 v%d, s%d, v%d" % (vA[f], sT1, vB0))
    k("s_mul_i32 s%d, s%d, %d\ns_add_u32 s%d, s%d, %d\nv_add_u32 v%d, s%d, v%d" % (sT1, sP, 80*TRP, sT1, sT1, TRB, vA[0], sT1, vB0))
    GO = BR + 40
    k("v_lshrrev_b32 v%d, 4, v%d" % (vFl, vB0))
    k("s_lshl_b32 s%d, s%d, 6\ns_lshl_b32 s%d, s%d, 2\ns_add_u32 s%d, s%d, s%d\ns_mul_i32 s%d, s%d, 2560\ns_mul_i32 s%d, s%d, 320\ns_add_u32 s%d, s%d, s%d" % (sT0, sMI, sT1, sP, sT0, sT0, sT1, sT0, sT0, sT1, sNI, sT3, sT0, sT1))
    R5 = range(5)
    e_, r_, q_, t_ = GO+5, GO+10, GO+15, GO+20
    for it in R5: k("v_add_u32 v%d, %d, v%d" % (e_+it, it*64, vFl))
    for it in R5: k("v_mul_u32_u24 v%d, 205, v%d" % (r_+it, e_+it))
    for it in R5: k("v_lshrrev_b32 v%d, 12, v%d" % (r_+it, r_+it))
    for it in R5: k("v_mul_u32_u24 v%d, 20, v%d\nv_bfe_u32 v%d, v%d, 1, 2" % (q_+it, r_+it, t_+it, r_+it))
    for it in R5: k("v_sub_u32 v%d, v%d, v%d" % (q_+it, e_+it, q_+it))
    for it in R5: k("v_xor_b32 v%d, v%d, v%d\nv_lshrrev_b32 v%d, 2, v%d" % (q_+it, q_+it, t_+it, t_+it, r_+it))
    for it in R5: k("v_mad_u32_u24 v%d, v%d, 12, v%d" % (r_+it, t_+it, r_+it))
    for it in R5: k("v_mul_u32_u24 v%d, 2560, v%d" % (r_+it, r_+it))
    for it in R5: k("v_lshl_add_u32 v%d, v%d, 4, v%d" % (GO+it, q_+it, r_+it))
    k("s_waitcnt lgkmcnt(0)\ns_barrier")
    for it in R5:
        for f in range(5):
            a_, off = (vA[f], f*5120) if f < 4 else (vLd, 0)
            if f == 0: off = 0
            k("ds_read_b128 %s, v%d offset:%d" % (vr(AR+(it*5+f)*4, 4), a_, off+it*1024))
        if it == 2: k("s_waitcnt lgkmcnt(5)")
    for it in R5:
        k("s_waitcnt lgkmcnt(%d)" % min(15, 20-5*it))
        q = AR+it*20
        for h in range(0, 4, 2):
            k("v_pk_add_f32 %s, %s, %s\nv_pk_add_f32 %s, %s, %s" % (vr(q+h, 2), vr(q+h, 2), vr(q+4+h, 2), vr(q+8+h, 2), vr(q+8+h, 2), vr(q+12+h, 2)))
        for h in range(0, 4, 2): k("v_pk_add_f32 %s, %s, %s" % (vr(q+h, 2), vr(q+h, 2), vr(q+16+h, 2)))
        for h in range(0, 4, 2): k("v_pk_add_f32 %s, %s, %s" % (vr(q+h, 2), vr(q+h, 2), vr(q+8+h, 2)))
        k("buffer_store_dwordx4 %s, v%d, %s, s%d offen%s" % (vr(q, 4), GO+it, sq(SO), sT3, OSC))
    stamp(k, 6)
    if opt("p2t", 0):
        k("s_lshl_b32 s83, s2, 11\ns_add_u32 s83, s83, 0x%x\nv_lshl_add_u32 v12, v0, 2, s83" % (STAMP_OFF + 0x40000))
        k("global_store_dword v12, v1, %s" % sp(pWs))
    stamp_out(k, 0, 8, pWs, 76)
    k("s_endpgm")

    k("L_k1_C:")
    k("s_setprio 3")
    k("s_mov_b64 s[48:49], %s\ns_mov_b64 s[50:51], %s\ns_mov_b64 s[52:53], %s" % (sp(pX), sp(pD), sp(pWs)))
    aX = [12, 13]; aW = [14, 15, 16, 17]
    XS = [20, 36]
    WR = 52
    ACC = 84
    k("v_lshrrev_b32 v%d, 1, v%d\nv_xor_b32 v%d, v%d, v%d\nv_lshlrev_b32 v%d, 4, v%d" % (vT[0], vM, vT[0], vT[0], vG, vT[0], vT[0]))
    k("v_lshl_add_u32 v%d, v%d, 7, v%d" % (vT[5], vM, vT[0]))
    k("s_lshl_b32 s%d, s%d, 13" % (sT0, sMH))
    k("v_add_u32 v%d, s%d, v%d\nv_xor_b32 v%d, 64, v%d" % (aX[0], sT0, vT[5], aX[1], aX[0]))
    k("v_lshrrev_b32 v%d, 2, v%d\nv_lshl_add_u32 v%d, v%d, 3, v%d\nv_lshlrev_b32 v%d, 7, v%d" % (vT[0], vM, vT[0], vG, vT[0], vT[0], vT[0]))
    k("v_and_b32 v%d, 1, v%d\nv_lshlrev_b32 v%d, 1, v%d\nv_lshrrev_b32 v%d, 3, v%d\nv_or_b32 v%d, v%d, v%d" % (vT[1], vG, vT[1], vT[1], vT[2], vM, vT[1], vT[1], vT[2]))
    k("v_lshl_add_u32 v%d, v%d, 5, v%d" % (vT[0], vT[1], vT[0]))
    k("v_and_b32 v%d, 3, v%d\nv_lshl_add_u32 v%d, v%d, 3, v%d\nv_add_u32 v%d, 16384, v%d" % (vT[1], vM, vT[0], vT[1], vT[0], vT[0], vT[0]))
    k("s_lshl_b32 s%d, s%d, 1\ns_add_u32 s%d, s%d, s%d" % (sC, sI, sC, sC, sMH))
    k("s_mov_b32 s%d, 0\ns_mov_b32 s%d, 0" % (sIt, sRd))
    k("s_cmp_eq_u32 s%d, 1\ns_cbranch_scc1 L_k1_CB" % sTY)

    def c_loop(tag, frags, R, D, WR, addr_regs, post):
        n = len(frags); N = 2*n
        assert N % R == 0
        def wreg(p): return WR + (p % R)*4
        def rdW(p): return frags[p % n][0]((p % N)//n, wreg(p))
        def rdX(h): return ["ds_read_b128 %s, v%d offset:%d" % (vr(XS[h]+4*b, 4), aX[h], b*2048) for b in range(4)]
        def mf(p): return [frags[p % n][1](b, XS[(p % N)//n]+4*b, wreg(p)) for b in range(4)]
        adv = ["s_mov_b32 s%d, %d\ns_add_u32 s%d, s%d, 1\ns_cmp_eq_u32 s%d, 3\ns_cselect_b32 s%d, 0, s%d\ns_cselect_b32 s%d, %d, s%d" % (sDelta, SL, sRd, sRd, sRd, sRd, sRd, sDelta, (-2*SL) & 0xffffffff, sDelta)]
        adv += ["v_add_u32 v%d, s%d, v%d" % (r, sDelta, r) for r in addr_regs]
        vFl, vFa, vDa, vDv = 18, vT[1], vT[2], vT[3]
        sF = sA
        import re as _re
        FLS = N - opt("fl", 3)
        def build():
            mfs = []; gaps = [[] for _ in range(4*N)]
            for j in range(N):
                loads = [("ld", x, ("W", j)) for x in rdW(j)]
                if j == 0: loads = [("ld", x, ("X0", b)) for b, x in enumerate(rdX(0)[:2])] + loads
                if j == 1: loads = [("ld", x, ("X0", b+2)) for b, x in enumerate(rdX(0)[2:])] + loads
                if D <= j < D+4: loads += [("ld", rdX(1)[j-D], ("X1", j-D))]
                if j == FLS: loads += [("ld", "ds_read_b64 %s, v%d " % (vr(vFl, 2), vFa), ("F", 0))]
                if j == N-1 or j == max(n-1, D+3): loads += [("ld", "ds_write_b32 v%d, v%d" % (vDa, vDv), ("DW", j))]
                p = j - D
                ms = mf(p % N)
                for b in range(4):
                    need = [("W", p % N)] + [("X%d" % ((p % N)//n), bb) for bb in range(4)]
                    mfs.append(("mf", ms[b], (need, p < 0)))
                    if b < 3:
                        if loads: gaps[j*4+b].append(loads.pop(0))
                    else: gaps[j*4+b] += loads
            def place(e, lo, hi=4*N-1):
                for cap in (0, 1, 2, 3):
                    for g in range(lo, hi+1):
                        if len(gaps[g]) + (1 if g % 4 == 3 else 0) <= cap:
                            gaps[g].append(e); return g
                raise Exception
            g = 4*D
            def place_s(txt, lo):
                for g in range(lo, 4*N):
                    if len(gaps[g]) + (1 if g % 4 == 3 else 0) <= 1:
                        gaps[g].append(("x", txt, None)); return g
            for txt in ("s_add_u32 s%d, s%d, 1" % (sRd, sRd), "s_cmp_eq_u32 s%d, 3" % sRd, "s_cselect_b32 s%d, s14, s15" % sDelta, "s_cselect_b32 s%d, 0, s%d" % (sRd, sRd), "s_add_u32 s%d, s%d, 1" % (sIt, sIt)):
                g = place_s(txt, g) + 1
            gd = g
            mid = max(n-1, D+3)
            place_s("v_add_u32 v%d, 1, v%d" % (vDv, vDv), gd)
            place(("x", "v_add_u32 v%d, 1, v%d" % (vDv, vDv), None), 4*mid+4, 4*(N-1)-1)
            g1 = place(("use", "v_min_u32 v%d, v%d, v%d" % (vFl, vFl, vFl+1), ([("F", 0)], False)), 4*(N-2)+2, 4*N-4)
            gaps[g1+1].append(("x", "v_readfirstlane_b32 s%d, v%d" % (sF, vFl), None))
            gaps[4*N-2].append(("x", "s_cmp_gt_u32 s%d, s%d" % (sF, sIt), None))
            for r in addr_regs:
                last = max(g for g in range(4*N) for x in gaps[g] if x[0] == "ld" and _re.search(r", v%d " % r, x[1]+" "))
                place(("x", "v_add_u32 v%d, s%d, v%d" % (r, sDelta, r), None), min(max(last+1, gd), 4*N-1))
            seq = []
            for m_, gp in zip(mfs, gaps): seq += [m_] + gp
            return seq
        def emit(seq, prev):
            issued = [(t, True) for t in prev]
            cur = 99
            for kind, text, tg in seq:
                if kind == "ld": issued.append((tg, False)); cur += 1
                elif kind == "lab": cur = 99
                elif kind in ("mf", "use"):
                    w = 15
                    for t in tg[0]:
                        idx = max(i for i, x in enumerate(issued) if x == (t, tg[1]))
                        w = min(w, len(issued)-1-idx)
                    if w < cur:
                        k("s_waitcnt lgkmcnt(%d)" % w); cur = w
                k(text)
        L = "L_k1_cl" + tag
        k("v_mov_b32 v%d, %d\nv_mov_b32 v%d, 0\ns_mov_b32 s14, %d\ns_mov_b32 s15, %d" % (vFa, FLG+16, vDv, (-2*SL) & 0xffffffff, SL))
        k("s_lshl_b32 s%d, s%d, 2\ns_add_u32 s%d, s%d, %d\nv_mov_b32 v%d, s%d" % (sT0, sW, sT0, sT0, FLG, vDa, sT0))
        s2 = build()
        allld = [x[2] for x in s2 if x[0] == "ld"]
        idx2 = next(i for i, x in enumerate(s2) if x[0] == "mf" and not x[2][1])
        k("%s_sp:" % L)
        k("ds_read_b64 %s, v%d\ns_waitcnt lgkmcnt(0)\nv_min_u32 v%d, v%d, v%d\nv_readfirstlane_b32 s%d, v%d" % (vr(vFl, 2), vFa, vFl, vFl, vFl+1, sF, vFl))
        k("s_cmp_gt_u32 s%d, s%d\ns_cbranch_scc0 %s_sp" % (sF, sIt, L))
        k("s_cmp_lg_u32 s%d, 0\ns_cbranch_scc1 %s" % (sIt, L))
        stamp(k, 5)
        for x in s2[:idx2]:
            if x[0] == "ld": k(x[1])
        k("s_branch %s_mid" % L)
        k(".p2align 6")
        k("%s:" % L)
        trace(sIt, 4, 1)
        if opt("clk", 0):
            k("s_cmp_lg_u32 s%d, 5\ns_cbranch_scc1 %s_nc\ns_memrealtime s[84:85]\ns_memtime s[90:91]\n%s_nc:" % (sIt, L, L))
        s2 = s2[:idx2] + [("lab", "%s_mid:" % L, None)] + s2[idx2:]
        emit(s2, allld)
        if TRACE:
            trace(sIt, 4, 0)
            k("s_cmp_gt_u32 s%d, s%d" % (sF, sIt))
        k("s_cbranch_scc1 %s" % L)
        k("s_cmp_lt_u32 s%d, 10\ns_cbranch_scc1 %s_sp" % (sIt, L))
        if opt("cprio", 3) != 3: k("s_setprio %d" % opt("cprio", 3))
        if opt("clk", 0): k("s_memrealtime s[94:95]\ns_memtime s[96:97]")
        k("ds_read_b64 %s, v%d offset:8" % (vr(vFl, 2), vFa))
        k("s_waitcnt lgkmcnt(6)")
        for x in mf(N-D): k(x)
        k("s_branch %s_ec" % L)
        k("%s_es:" % L)
        k("ds_read_b64 %s, v%d offset:8" % (vr(vFl, 2), vFa))
        k("%s_ec:" % L)
        k("s_waitcnt lgkmcnt(0)")
        k("v_min_u32 v%d, v%d, v%d\nv_readfirstlane_b32 s%d, v%d" % (vFl, vFl, vFl+1, sNon, vFl))
        k("s_cmp_eq_u32 s%d, 0\ns_cbranch_scc1 %s_es" % (sNon, L))
        tail = []
        for p in range(N-D+1, N): tail += mf(p)
        interleave(k, tail, post(), lead=2, per=1)

    c0 = -2*math.sqrt(2/math.pi)*LOG2E
    def ffn_epilogue(ACCF, ncb, S4, Mb, RSb, Sb, T, O, K0, vSt, blocks, defer=None):
        for bi, (b, pr_) in enumerate(blocks):
            sel = b & 1
            bc = lambda base: vr(base + (b & ~1), 2)
            os0 = " op_sel:[%d,0,0] op_sel_hi:[%d,1,1]" % (sel, sel)
            items = [(cb, hh) for cb in (2*pr_, 2*pr_+1) for hh in range(2)]
            G = lambda cb, hh: ACCF + (cb*4+b)*4 + 2*hh
            U = lambda cb, hh: ACCF + ((ncb+cb)*4+b)*4 + 2*hh
            Tm = lambda cb, hh: T + (cb & 1)*4 + 2*hh
            for cb, hh in items: k("v_pk_fma_f32 %s, %s, %s, %s%s neg_lo:[1,0,0] neg_hi:[1,0,0]" % (vr(G(cb,hh),2), bc(Mb), vr(S4+cb*4+2*hh,2), vr(G(cb,hh),2), os0))
            for cb, hh in items: k("v_pk_mul_f32 %s, %s, %s op_sel:[%d,0] op_sel_hi:[%d,1]" % (vr(G(cb,hh),2), bc(RSb), vr(G(cb,hh),2), sel, sel))
            for cb, hh in items: k("v_pk_mul_f32 %s, %s, %s" % (vr(Tm(cb,hh),2), vr(G(cb,hh),2), vr(G(cb,hh),2)))
            for cb, hh in items: k("v_pk_fma_f32 %s, %s, %s, %s op_sel:[0,0,1] op_sel_hi:[1,0,1]" % (vr(Tm(cb,hh),2), vr(Tm(cb,hh),2), vr(K0,2), vr(K0,2)))
            for cb, hh in items: k("v_pk_mul_f32 %s, %s, %s" % (vr(Tm(cb,hh),2), vr(Tm(cb,hh),2), vr(G(cb,hh),2)))
            for cb, hh in items:
                k("v_exp_f32 v%d, v%d\nv_exp_f32 v%d, v%d" % (Tm(cb,hh), Tm(cb,hh), Tm(cb,hh)+1, Tm(cb,hh)+1))
                k("v_pk_fma_f32 %s, %s, %s, %s%s neg_lo:[1,0,0] neg_hi:[1,0,0]" % (vr(U(cb,hh),2), bc(Mb), vr(S4+(ncb+cb)*4+2*hh,2), vr(U(cb,hh),2), os0))
            for cb, hh in items: k("v_pk_fma_f32 %s, %s, %s, %s op_sel:[0,%d,%d] op_sel_hi:[1,%d,%d]" % (vr(Tm(cb,hh),2), vr(Tm(cb,hh),2), bc(Sb), bc(Sb), sel, sel, sel, sel))
            for cb, hh in items:
                k("v_rcp_f32 v%d, v%d\nv_rcp_f32 v%d, v%d" % (Tm(cb,hh), Tm(cb,hh), Tm(cb,hh)+1, Tm(cb,hh)+1))
                k("v_pk_mul_f32 %s, %s, %s" % (vr(G(cb,hh),2), vr(G(cb,hh),2), vr(U(cb,hh),2)))
            for cb, hh in items: k("v_pk_mul_f32 %s, %s, %s" % (vr(G(cb,hh),2), vr(G(cb,hh),2), vr(Tm(cb,hh),2)))
            Ob = O + (bi & 1)*4 if defer is None else O[bi]
            for j_, (cb, hh) in enumerate(items): k("v_cvt_pk_bf16_f32 v%d, v%d, v%d" % (Ob+j_, G(cb,hh), G(cb,hh)+1))
            if pr_: k("s_add_u32 s%d, s%d, 4096" % (sT0, sKS))
            st_ = "buffer_store_dwordx4 %s, v%d, %s, s%d offen offset:%d%s" % (vr(Ob, 4), vSt, sq(SWS), sT0 if pr_ else sKS, b*1024, S1)
            if defer is None: k(st_)
            else: defer.append(st_)

    def a2_flag(group, nwait, va, vv):
        k("s_lshl_b32 s%d, s%d, 2\ns_lshr_b32 s%d, s%d, 1\ns_add_u32 s%d, s%d, s%d\ns_mul_i32 s%d, s%d, %d" % (sT0, sC, sT1, sJJ, sT0, sT0, sT1, sT0, sT0, FLS_))
        k("s_and_b32 s%d, s%d, 1\ns_lshl_b32 s%d, s%d, 1\ns_add_u32 s%d, s%d, s%d\ns_mul_i32 s%d, s%d, %d\ns_add_u32 s%d, s%d, s%d\ns_add_u32 s%d, s%d, 0x%x" % (sT1, sJJ, sT1, sT1, sT1, sT1, sNH, sT1, sT1, FSP, sT0, sT0, sT1, sT0, sT0, FL_OFF + group*FGS))
        k("v_mov_b32 v%d, s%d\nv_mov_b32 v%d, s%d" % (va, sT0, vv, sNon))
        k("s_waitcnt vmcnt(%d)\ns_mov_b64 exec, 1" % nwait)
        k("buffer_store_dword v%d, v%d, %s, 0 offen%s\ns_mov_b64 exec, -1" % (vv, va, sq(SWS), SC))

    CSM = opt("csm", 1)
    def cs_set(val, va, vv):
        k("s_lshl_b32 s%d, s%d, 2\ns_add_u32 s%d, s%d, %d\nv_mov_b32 v%d, s%d\nv_mov_b32 v%d, %d\nds_write_b32 v%d, v%d" % (sT0, sW, sT0, sT0, FLG+64, va, sT0, vv, val, va, vv))
    def base_loads(R):
        k("s_and_b32 s%d, s2, 7\ns_lshr_b32 s%d, s2, 3" % (sT0, sT1))
        k("s_lshr_b32 s%d, s%d, 1\ns_lshl_b32 s%d, s%d, 3\ns_and_b32 s%d, s%d, 7\ns_add_u32 s%d, s%d, s%d" % (sT3, sT0, sT3, sT3, sT2, sT1, sT3, sT3, sT2))
        k("s_and_b32 s%d, s%d, 1\ns_lshl_b32 s%d, s%d, 2\ns_lshr_b32 s%d, s%d, 3\ns_add_u32 s%d, s%d, s%d\ns_mul_i32 s%d, s%d, 80" % (sT0, sT0, sT0, sT0, sT2, sT1, sT0, sT0, sT2, sT0, sT0))
        k("s_lshl_b32 s%d, s%d, 6\ns_lshl_b32 s%d, s%d, 2\ns_add_u32 s%d, s%d, s%d" % (sT3, sT3, sT1, sW, sT3, sT3, sT1))
        ra, rb, rc = R+22, R+23, R+24
        k("v_lshrrev_b32 v%d, 2, v%d\nv_lshlrev_b32 v%d, 4, v%d\nv_and_b32 v%d, 3, v%d\nv_add3_u32 v%d, v%d, v%d, s%d" % (ra, vM, ra, ra, rb, vM, ra, ra, rb, sT3))
        k("v_lshl_add_u32 v%d, v%d, 2, s%d" % (rb, vG, sT0))
        k("v_mul_u32_u24 v%d, 640, v%d\nv_add_u32 v%d, v%d, v%d\nv_lshlrev_b32 v%d, 1, v%d\nv_lshlrev_b32 v%d, 1, v%d" % (rc, ra, rc, rc, rb, rc, rc, rb, rb))
        k("v_lshlrev_b32 v%d, 3, v%d\nv_add_u32 v%d, 0x%x, v%d" % (ra, ra, ra, RST_OFF, ra))
        for cb in range(5):
            k("global_load_dwordx2 %s, v%d, %s offset:%d" % (vr(R+2*cb, 2), rc, sp(48), cb*32))
            k("global_load_dwordx2 %s, v%d, %s offset:%d" % (vr(R+10+2*cb, 2), rb, sp(50), cb*32))
        k("v_mov_b32 v%d, v%d" % (R+98, ra))
        k("buffer_load_dwordx2 %s, v%d, %s, 0 offen%s" % (vr(R+20, 2), ra, sq(SWS), SC))
    def base_compute(R):
        k("s_setprio 0")
        ST_ = R+20; X4, D4, T4 = R+28, R+48, R+68
        k("s_mul_i32 s%d, s%d, %d\ns_add_u32 s%d, s%d, %d" % (sT0, sW, 80*TRP, sT0, sT0, TRB))
        k("v_bfe_u32 v%d, v%d, 1, 2\nv_xor_b32 v%d, v%d, v%d\nv_mul_u32_u24 v%d, 320, v%d\nv_lshl_add_u32 v%d, v%d, 4, v%d\nv_add_u32 v%d, s%d, v%d" % (R+23, vM, R+23, R+23, vG, R+22, vM, R+22, R+23, R+22, R+22, sT0, R+22))
        k("v_mov_b32 v%d, %d" % (R+23, FLG))
        wait_done("L_k1_bw%d" % R, "16", R+23, R+24)
        k("s_mov_b32 s%d, 0\nL_k1_bt:\ns_waitcnt vmcnt(0)\nv_cmp_ne_u32 vcc, s%d, v%d\ns_add_u32 s%d, s%d, 1\ns_cbranch_vccz L_k1_bto" % (sT3, sNon, ST_+1, sT3, sT3))
        k("s_cmp_gt_u32 s%d, 0x40000\ns_cbranch_scc1 L_k1_bto\ns_sleep 8\nbuffer_load_dwordx2 %s, v%d, %s, 0 offen%s\ns_branch L_k1_bt\nL_k1_bto:" % (sT3, vr(R+20, 2), R+98, sq(SWS), SC))
        k("v_and_b32 v%d, s%d, v%d\nv_lshlrev_b32 v%d, 16, v%d\nv_rcp_f32 v%d, v%d" % (ST_+1, sMASK, ST_, ST_, ST_, ST_+1, ST_+1))
        for d in range(10): k("v_lshlrev_b32 v%d, 16, v%d\nv_and_b32 v%d, s%d, v%d\nv_lshlrev_b32 v%d, 16, v%d\nv_and_b32 v%d, s%d, v%d" % (X4+2*d, R+d, X4+2*d+1, sMASK, R+d, D4+2*d, R+10+d, D4+2*d+1, sMASK, R+10+d))
        def rnd():
            for h in range(10): k("v_cvt_pk_bf16_f32 v%d, v%d, v%d" % (T4+20+h, T4+2*h, T4+2*h+1))
            for h in range(10): k("v_lshlrev_b32 v%d, 16, v%d\nv_and_b32 v%d, s%d, v%d" % (T4+2*h, T4+20+h, T4+2*h+1, sMASK, T4+20+h))
        for r in range(20): k("v_sub_f32 v%d, v%d, v%d" % (T4+r, X4+r, ST_))
        rnd()
        for r in range(20): k("v_mul_f32 v%d, v%d, v%d" % (T4+r, T4+r, ST_+1))
        rnd()
        for r in range(20): k("v_mul_f32 v%d, v%d, v%d" % (T4+r, T4+r, D4+r))
        rnd()
        for r in range(20): k("v_add_f32 v%d, v%d, v%d" % (T4+r, T4+r, X4+r))
        if opt("perturb", 0):
            for r in range(20): k("v_add_f32 v%d, %s, v%d" % (T4+r, f32(opt("perturb", 0)/1000.), T4+r))
        for cb in range(5): k("ds_write_b128 v%d, %s offset:%d" % (R+22, vr(T4+4*cb, 4), cb*64))
        k("s_waitcnt lgkmcnt(0)")

    def ffn_frag(ACCF, idx, areg, gu):
        rd = lambda h, reg: ["ds_read_b64_tr_b16 %s, v%d offset:%d" % (vr(reg+2*jx, 2), areg, h*4096+jx*512+gu*8192) for jx in range(2)]
        mf = lambda b, x, w: "v_mfma_f32_16x16x32_bf16 %s, %s, %s, %s" % (vr(ACCF+(idx*4+b)*4, 4), vr(w, 4), vr(x, 4), vr(ACCF+(idx*4+b)*4, 4))
        return (rd, mf)

    k("s_lshl_b32 s%d, s%d, 14" % (sT0, sNH))
    k("v_add_u32 v%d, s%d, v%d" % (aW[0], sT0, vT[0]))
    for c in range(1, 4): k("v_xor_b32 v%d, %d, v%d" % (aW[c], 32*c, aW[0]))
    k("s_lshr_b32 s%d, s%d, 5\ns_lshl_b32 s%d, s%d, 1\ns_add_u32 s%d, s%d, s%d\ns_mul_i32 s%d, s%d, 88\ns_add_u32 s%d, s%d, s%d\ns_lshl_b32 s%d, s%d, 12" % (sT0, sCol, sT1, sNH, sT0, sT0, sT1, sT1, sC, sT0, sT0, sT1, sKS, sT0))
    for r in range(0, 128, 2): k("v_mov_b64 v[%d:%d], 0" % (ACC+r, ACC+r+1))
    srd(k, SWS, pWs, WS_NREC)
    E = 212
    S4 = E; Mb, RSb, Sb = XS[0], XS[0]+4, XS[0]+8; K0 = XS[0]+12
    def postA():
        o = ["s_lshl_b32 s%d, s%d, 9\ns_add_u32 s%d, s%d, %d\nv_lshl_add_u32 v%d, v%d, 4, s%d" % (sT0, sNH, sT0, sT0, SFF, vT[1], vG, sT0),
             "s_mul_i32 s%d, s%d, 768\ns_add_u32 s%d, s%d, %d\nv_lshl_add_u32 v%d, v%d, 2, s%d" % (sT0, sMH, sT0, sT0, STAT_M, vT[2], vM, sT0)]
        for b in range(0, 4, 2):
            for a, off in ((Mb, 0), (RSb, 64), (Sb, 128)):
                o.append("ds_read2_b32 %s, v%d offset0:%d offset1:%d" % (vr(a+b, 2), vT[2], off+b*16, off+b*16+16))
        for j in range(8): o.append("ds_read_b128 %s, v%d offset:%d" % (vr(S4+4*j, 4), vT[1], j*64))
        o += ["v_lshlrev_b32 v%d, 4, v%d" % (vT[3], vL), "v_mov_b32 v%d, %s\nv_mov_b32 v%d, %s" % (K0, f32(c0*0.044715), K0+1, f32(c0))]
        return o
    fr = []
    for cb in range(4):
        for gu in range(2): fr.append(ffn_frag(ACC, gu*4+cb, aW[cb], gu))
    c_loop("A", fr, 8, opt("da", 5), WR, aX + aW, postA)
    stamp(k, 1)
    k("s_waitcnt lgkmcnt(0)")
    blk = [(b, p) for p in range(2) for b in range(4)]
    HF = opt("hf", 6)
    ffn_epilogue(ACC, 4, S4, Mb, RSb, Sb, E+32, XS[1], K0, vT[3], blk[:HF])
    a2_flag(0, HF-4, vT[0], vT[1])
    ffn_epilogue(ACC, 4, S4, Mb, RSb, Sb, E+32, XS[1], K0, vT[3], blk[HF:])
    stamp(k, 2)
    cs_set(1, vT[0], vT[1])
    a2_flag(3, 0, vT[0], vT[1])
    stamp(k, 4)
    k("s_branch L_k1_base")

    k("L_k1_CB:")
    WRB = 52
    ACCF = 76
    ACCS = 140
    ca = Alloc(220)
    cLr = ca(5); cMu = ca(5); cKk = ca(5); c16r = ca(5); c16k = ca(5); cKr = ca(10, 2)
    assert ca.n <= (255 if TRACE else 256) + 1
    k("s_lshl_b32 s%d, s%d, 6" % (sT0, sNH))
    k("v_xor_b32 v%d, s%d, v%d\nv_xor_b32 v%d, 32, v%d" % (aW[0], sT0, vT[0], aW[1], aW[0]))
    k("s_mul_i32 s%d, s%d, 10240\ns_add_u32 s%d, s%d, 32768" % (sT0, sNH, sT0, sT0))
    k("v_add_u32 v%d, s%d, v%d\nv_xor_b32 v%d, 64, v%d" % (aW[2], sT0, vT[5], aW[3], aW[2]))
    P = XS[0]
    param_loads(P, sNH, vT[0])
    k("s_lshr_b32 s%d, s%d, 5\ns_add_u32 s%d, s%d, s%d\ns_mul_i32 s%d, s%d, 88\ns_add_u32 s%d, s%d, s%d\ns_lshl_b32 s%d, s%d, 12" % (sT0, sCol, sT0, sT0, sNH, sT1, sC, sT0, sT0, sT1, sKS, sT0))
    srd(k, SWS, pWs, WS_NREC)
    for r in range(0, 144, 2): k("v_mov_b64 v[%d:%d], 0" % (ACCF+r, ACCF+r+1))
    k("s_lshl_b32 s%d, s%d, 1\ns_add_u32 s%d, s%d, s%d\ns_lshl_b32 s%d, s%d, 14\ns_add_u32 s%d, s%d, 0x%x" % (sT2, sJJ, sT2, sT2, sNH, sT0, sT2, sT0, sT0, CAR_OFF))
    srd(k, SP0, pWs, 16384, "s%d" % sT0)
    k("s_mul_i32 s%d, s%d, %d\ns_add_u32 s58, s%d, 0x%x\ns_add_u32 s54, s%d, s58\ns_addc_u32 s55, s%d, 0" % (sT0, sT2, opt("hst", 4224), sT0, CH_OFF, pWs, pWs+1))
    k("s_lshl_b32 s%d, s%d, 2\ns_add_u32 s58, s58, s%d" % (sT0, sC, sT0))
    k("s_add_u32 s%d, s%d, 1\ns_lshr_b32 s%d, s%d, 1\ns_lshl_b32 s59, 1, s%d\ns_sub_u32 s59, s59, 1" % (sT0, sC, sT0, sT0, sT0))
    if not opt("hint", 1): k("s_mov_b32 s59, 0")
    sSS = [68, 69, 70, 71, 79]
    k("s_mul_i32 s%d, s%d, 88\ns_add_u32 s%d, s%d, 48\ns_lshl_b32 s%d, s%d, 12" % (sT3, sC, sT3, sT3, sT3, sT3))
    k("s_mul_i32 s%d, s%d, 10\ns_mul_i32 s%d, s%d, 5\ns_add_u32 s%d, s%d, s%d" % (sT2, sJJ, sT0, sNH, sT2, sT2, sT0))
    for q in range(5):
        k("s_add_u32 s%d, s%d, %d\ns_lshr_b32 s%d, s%d, 1\ns_lshl_b32 s%d, s%d, 12\ns_and_b32 s%d, s%d, 1\ns_lshl_b32 s%d, s%d, 9" % (sT0, sT2, q, sT1, sT0, sT1, sT1, sT0, sT0, sT0, sT0))
        k("s_add_u32 s%d, s%d, s%d\ns_add_u32 s%d, s%d, s%d" % (sT0, sT0, sT1, sSS[q], sT0, sT3))
    k("s_waitcnt vmcnt(0)")
    lre, lim, t0, t1, cA2, cBt = P, P+5, P+16, P+21, P+32, P+37
    KR = [cKr+2*q for q in range(5)]
    param_ab(P, cA2, cBt, vT[4])
    cpow5(r5(cLr), r5(cMu), "1.0", t0, t1, cA2, cBt)
    cpow5(r5(c16r), r5(c16k), f32(16.0), t0, t1, cA2, cBt)
    for q in range(5): k("v_add_f32 v%d, -1.0, v%d\nv_mul_f32 v%d, v%d, v%d" % (t0+q, cLr+q, t1+q, lre+q, lre+q))
    for q in range(5): k("v_fmac_f32 v%d, v%d, v%d" % (t1+q, lim+q, lim+q))
    for q in range(5): k("v_rcp_f32 v%d, v%d" % (t1+q, t1+q))
    for q in range(5): k("v_mul_f32 v%d, v%d, v%d\nv_mul_f32 v%d, v%d, v%d" % (KR[q], t0+q, lre+q, cKk+q, cMu+q, lre+q))
    for q in range(5): k("v_fmac_f32 v%d, v%d, v%d\nv_fma_f32 v%d, -v%d, v%d, v%d" % (KR[q], cMu+q, lim+q, cKk+q, t0+q, lim+q, cKk+q))
    for q in range(5): k("v_add_f32 v%d, v%d, v%d" % (t1+q, t1+q, t1+q))
    for q in range(5): k("v_mul_f32 v%d, v%d, v%d\nv_mul_f32 v%d, v%d, v%d" % (KR[q], KR[q], t1+q, cKk+q, cKk+q, t1+q))
    for s in range(1, 4): k("v_cmp_eq_u32 %s, %d, v%d" % (sp(16+2*s), s, vG))
    def ssm_frag(q):
        rd = lambda h, reg: ["ds_read_b128 %s, v%d offset:%d" % (vr(reg, 4), aW[2+h], q*2048)]
        mf = lambda b, x, w: "v_mfma_f32_16x16x32_bf16 %s, %s, %s, %s" % (vr(ACCS+(q*4+b)*4, 4), vr(x, 4), vr(w, 4), vr(ACCS+(q*4+b)*4, 4))
        return (rd, mf)
    fr = [ssm_frag(q) for q in range(5)]
    for cb in range(2):
        for gu in range(2): fr.append(ffn_frag(ACCF, gu*2+cb, aW[cb], gu))
    M4 = XS[0]
    SQ = [247, 249, 251, 253, 245]
    def postB():
        o = ["s_mul_i32 s%d, s%d, 768\ns_add_u32 s%d, s%d, %d\nv_lshl_add_u32 v%d, v%d, 4, s%d\nv_lshl_add_u32 v%d, v%d, 2, s%d" % (sT0, sMH, sT0, sT0, STAT_M, vT[3], vG, sT0, vT[2], vM, sT0),
             "s_mul_i32 s%d, s%d, 384\ns_add_u32 s%d, s%d, %d\nv_lshl_add_u32 v%d, v%d, 2, s%d" % (sT0, sNH, sT0, sT0, SSS, vT[1], vM, sT0)]
        for b in range(4): o.append("ds_read_b128 %s, v%d offset:%d" % (vr(M4+4*b, 4), vT[3], b*64))
        for q in range(5): o.append("ds_read_b32 v%d, v%d offset:%d" % (SQ[q], vT[1], q*64))
        return o
    c_loop("B", fr, 6, opt("db", 5), WRB, aX + aW, postB)
    stamp(k, 1)
    RS4 = XS[1]
    for b in range(4): k("ds_read_b128 %s, v%d offset:%d" % (vr(RS4+4*b, 4), vT[3], 256+b*64))
    Z = [[ACCS + (q*4 + (t >> 2))*4 + (t & 3) for t in range(16)] for q in range(5)]
    H = [[52+q, 57+q] for q in range(5)]
    k("s_waitcnt lgkmcnt(4)")
    for t in range(0, 16, 2):
        for q in range(5): k("v_pk_fma_f32 %s, %s, %s, %s op_sel:[0,1,0] op_sel_hi:[1,1,1] neg_lo:[1,0,0] neg_hi:[1,0,0]" % (vr(Z[q][t], 2), vr(M4+t, 2), vr(SQ[q]-1, 2), vr(Z[q][t], 2)))
    k("s_waitcnt lgkmcnt(0)")
    for t in range(16):
        if t % 2 == 0:
            for q in range(5): k("v_pk_mul_f32 %s, %s, %s" % (vr(Z[q][t], 2), vr(RS4+t, 2), vr(Z[q][t], 2)))
        if t >= 1:
            prev = [Z[q][0] if t == 1 else H[q][t & 1] for q in range(5)]
            cur = [H[q][(t+1) & 1] for q in range(5)]
            for q in range(5): k("v_fma_f32 v%d, v%d, v%d, v%d" % (cur[q], cLr+q, prev[q], Z[q][t]))
            for q in range(5): k("v_fmac_f32_dpp v%d, v%d, v%d%s" % (cur[q], prev[q], cMu+q, DPP))
    a_ = [H[q][0] for q in range(5)]; b_ = [H[q][1] for q in range(5)]
    c_ = r5(20)
    TOT = 28
    d_ = [TOT, TOT+1, TOT+2, TOT+4, TOT+5]
    MINE = [12, 13, 14, 15, 16]
    S4 = 36; Mb, RSb, Sb = 62, 66, 70; K0 = 74
    def ffn_inputs():
        k("s_lshl_b32 s%d, s%d, 9\ns_add_u32 s%d, s%d, %d\nv_lshl_add_u32 v%d, v%d, 4, s%d" % (sT0, sNH, sT0, sT0, SFF, vT[0], vG, sT0))
        for b in range(0, 4, 2):
            for a, off in ((Mb, 0), (RSb, 64), (Sb, 128)):
                k("ds_read2_b32 %s, v%d offset0:%d offset1:%d" % (vr(a+b, 2), vT[2], off+b*16, off+b*16+16))
        for j in range(4): k("ds_read_b128 %s, v%d offset:%d" % (vr(S4+4*j, 4), vT[0], j*64))
        k("v_mov_b32 v%d, %s\nv_mov_b32 v%d, %s" % (K0, f32(c0*0.044715), K0+1, f32(c0)))
    ffn_inputs()
    for q in range(5): k("v_mov_b32 v%d, v%d" % (b_[q], a_[q]))
    for q in range(5): k("v_permlane16_swap_b32 v%d, v%d" % (a_[q], b_[q]))
    for q in range(5): k("v_mov_b32 v%d, v%d\nv_mov_b32 v%d, v%d" % (c_[q], a_[q], d_[q], b_[q]))
    for q in range(5): k("v_permlane32_swap_b32 v%d, v%d\nv_permlane32_swap_b32 v%d, v%d" % (a_[q], c_[q], b_[q], d_[q]))
    seq = [a_, b_, c_, d_]
    k("v_mov_b32 v%d, s%d\nv_mov_b32 v%d, s%d" % (TOT+3, sNon, TOT+7, sNon))
    k("s_lshl_b32 s%d, s%d, 9" % (sT0, sC))
    k("v_lshlrev_b32 v%d, 4, v%d" % (vT[1], vM))
    for s in range(1, 4):
        for q in range(5): k("v_fmac_f32 v%d, v%d, v%d" % (seq[s][q], c16r+q, seq[s-1][q]))
        for q in range(5): k("v_fmac_f32_dpp v%d, v%d, v%d%s" % (seq[s][q], seq[s-1][q], c16k+q, DPP))
    k("s_mov_b64 exec, 0xffff")
    k("buffer_store_dwordx4 %s, v%d, %s, s%d offen%s" % (vr(TOT, 4), vT[1], sq(SP0), sT0, SC))
    k("buffer_store_dwordx4 %s, v%d, %s, s%d offen offset:256%s" % (vr(TOT+4, 4), vT[1], sq(SP0), sT0, SC))
    k("s_mov_b64 exec, 1")
    k("buffer_store_dword v%d, off, %s, s58%s" % (TOT+3, sq(SWS), SC))
    k("s_mov_b64 exec, -1")
    k("s_mov_b32 s56, s%d\ns_mov_b32 s57, s%d" % (sNon, sNon))
    cs_set(1, 17, 18)
    stamp(k, 2)
    for q in range(5): k("v_cndmask_b32 v%d, 0, v%d, %s" % (MINE[q], a_[q], sp(18)))
    for q in range(5): k("v_cndmask_b32 v%d, v%d, v%d, %s" % (MINE[q], MINE[q], b_[q], sp(20)))
    for q in range(5): k("v_cndmask_b32 v%d, v%d, v%d, %s" % (MINE[q], MINE[q], c_[q], sp(22)))
    k("v_lshlrev_b32 v%d, 4, v%d" % (vT[3], vL))
    k("s_waitcnt lgkmcnt(0)")
    dst_ = []
    DFR = opt("dfr", 1)
    for b in range(4):
        if b == 3: k("s_load_dwordx16 s[16:31], s[54:55], 0 glc\ns_load_dwordx16 s[32:47], s[54:55], 64 glc")
        ffn_epilogue(ACCF, 2, S4, Mb, RSb, Sb, 20, [[236, 240, 52, 56][b]], K0, vT[3], [(b, 0)], defer=dst_)
        if not DFR: k(dst_.pop())
    def hint_check():
        k("s_waitcnt lgkmcnt(0)\ns_mov_b32 s%d, 0" % sT0)
        for j in range(15, -1, -1): k("s_cmp_lg_u64 %s, s[56:57]\ns_addc_u32 s%d, s%d, s%d" % (sp(16+2*j), sT0, sT0, sT0))
        k("s_and_b32 s%d, s%d, s59" % (sT0, sT0))
    if not opt("clk", 0): stamp(k, 6)
    PRb = [ACCF + u*8 for u in range(8)]
    k("s_sub_u32 s%d, s%d, 1" % (sT0, sC))
    k("v_sub_u32 v%d, s%d, v%d\nv_lshlrev_b32 v%d, 9, v%d\nv_lshl_add_u32 v%d, v%d, 4, v%d" % (vT[1], sT0, vG, vT[1], vT[1], vT[1], vM, vT[1]))
    def pred_loads():
        for u in range(8):
            if u: k("v_subrev_u32 v%d, %d, v%d" % (vT[0], u*2048, vT[1]))
            a = vT[0] if u else vT[1]
            k("buffer_load_dwordx4 %s, v%d, %s, 0 offen%s" % (vr(PRb[u], 4), a, sq(SP0), PSC_))
            k("buffer_load_dwordx4 %s, v%d, %s, 0 offen offset:256%s" % (vr(PRb[u]+4, 4), a, sq(SP0), PSC_))
    hint_check()
    k("s_mov_b32 s%d, s%d\ns_cbranch_scc1 L_k1_npl" % (sDelta, sT0))
    pred_loads()
    k("L_k1_npl:")
    for x in dst_: k(x)
    k("s_mul_i32 s%d, s%d, %d\ns_add_u32 s%d, s%d, %d" % (sKx, sW, 80*TRP, sKx, sKx, TRB))
    k("v_add_u32 v%d, s%d, v%d" % (vT[4], sKx, vT[3]))
    for qd in range(3): k("ds_read_b128 %s, v%d offset:%d" % (vr(32+4*qd, 4), vT[4], qd*1024))
    L256r, L256k = r5(32), r5(37)
    free = [20+2*q for q in range(5)]
    for t in range(0, 16, 2):
        nf = []
        for q in range(5): k("v_pk_mul_f32 %s, %s, %s op_sel_hi:[0,1]" % (vr(free[q], 2), vr(KR[q], 2), vr(Z[q][t], 2)))
        for e in range(2):
            for q in range(5): k("v_fmac_f32_dpp v%d, v%d, v%d%s" % (free[q]+e, Z[q][t]+e, cKk+q, DPP))
        for q in range(5):
            nf.append(Z[q][t]); Z[q][t] = free[q]; Z[q][t+1] = free[q]+1
        free = nf
    t0, t1 = 30, 31
    k("s_mov_b32 s%d, 0\ns_cmp_eq_u32 s%d, 0\ns_cbranch_scc1 L_k1_early" % (sRd, sDelta))
    k("s_load_dwordx16 s[16:31], s[54:55], 0 glc\ns_load_dwordx16 s[32:47], s[54:55], 64 glc")
    hint_check()
    k("s_cbranch_scc0 L_k1_hd")
    a2_flag(1, 0, 30, 31)
    stamp(k, 7)
    k("s_mov_b32 s%d, 1\ns_mov_b32 s%d, 0" % (sRd, sT3))
    k("L_k1_hr:")
    k("s_load_dwordx16 s[16:31], s[54:55], 0 glc\ns_load_dwordx16 s[32:47], s[54:55], 64 glc")
    hint_check()
    k("s_cbranch_scc0 L_k1_hd\ns_sleep %d\ns_add_u32 s%d, s%d, 1\ns_cmp_lt_u32 s%d, 0x100000\ns_cbranch_scc1 L_k1_hr" % (opt("hsl", 6), sT3, sT3, sT3))
    k("L_k1_hd:")
    pred_loads()
    if DFR:
        k("s_mov_b32 s%d, 0\ns_branch L_k1_poll" % sT3)
        k("L_k1_early:")
        k("s_mov_b32 s%d, 0\ns_waitcnt vmcnt(4)\ns_branch L_k1_poll2" % sT3)
    else:
        k("s_mov_b32 s%d, 0\ns_cmp_lg_u32 s%d, 0\ns_cbranch_scc1 L_k1_poll" % (sT3, sRd))
        k("L_k1_early:")
        a2_flag(1, 16, 30, 31)
        stamp(k, 7)
        k("s_mov_b32 s%d, 0\ns_waitcnt vmcnt(1)\ns_branch L_k1_poll2" % sT3)
    k("L_k1_poll:")
    k("s_waitcnt vmcnt(0)")
    k("L_k1_poll2:")
    k("s_mov_b32 s%d, 0" % sT2)
    for u in range(8):
        k("v_cmp_ne_u32 s[24:25], s%d, v%d\nv_cmp_ne_u32 s[26:27], s%d, v%d\nv_cmp_le_i32 vcc, %d, v%d" % (sNon, PRb[u]+3, sNon, PRb[u]+7, u*2048, vT[1]))
        k("s_or_b64 s[24:25], s[24:25], s[26:27]\ns_and_b64 s[24:25], s[24:25], vcc\ns_cbranch_scc0 L_k1_pu%d" % u)
        k("s_cmp_lg_u32 s%d, 0\ns_cbranch_scc1 L_k1_ps%d\ns_sleep %d\nL_k1_ps%d:" % (sT2, u, opt("csl", 8), u))
        k("s_mov_b32 s%d, 1" % sT2)
        k("v_subrev_u32 v%d, %d, v%d" % (vT[0], u*2048, vT[1]))
        k("s_mov_b64 exec, s[24:25]")
        k("buffer_load_dwordx4 %s, v%d, %s, 0 offen%s" % (vr(PRb[u], 4), vT[0], sq(SP0), PSC_))
        k("buffer_load_dwordx4 %s, v%d, %s, 0 offen offset:256%s" % (vr(PRb[u]+4, 4), vT[0], sq(SP0), PSC_))
        k("s_mov_b64 exec, -1")
        k("L_k1_pu%d:" % u)
    k("s_add_u32 s%d, s%d, 1\ns_cmp_eq_u32 s%d, 0\ns_cbranch_scc1 L_k1_polled" % (sT3, sT3, sT2))
    k("s_cmp_lt_u32 s%d, 0x40000\ns_cbranch_scc1 L_k1_poll" % sT3)
    k("L_k1_polled:")
    if CSM & 2: cs_set(0, 17, 18)
    if not opt("clk", 0): stamp(k, 3)
    pr = lambda u, q: PRb[u]+(q if q < 3 else q+1)
    k("s_waitcnt lgkmcnt(0)")
    for u in range(6, -1, -1):
        for q in range(5): k("v_fmac_f32 v%d, v%d, v%d" % (pr(u, q), L256r[q], pr(u+1, q)))
        for q in range(5): k("v_fmac_f32_dpp v%d, v%d, v%d%s" % (pr(u, q), pr(u+1, q), L256k[q], DPP))
        if u == 4:
            for qd in range(5): k("ds_read_b128 %s, v%d offset:%d" % (vr(PRb[5]+4*qd, 4), vT[4], (3+qd)*1024))
    L64r, L64k, Psr, Psk = r5(PRb[5]), r5(PRb[5]+5), r5(PRb[5]+10), r5(PRb[5]+15)
    k("s_waitcnt lgkmcnt(0)")
    for q in range(5): k("v_mul_f32 v%d, v%d, v%d" % (pr(1, q), L64r[q], pr(0, q)))
    for q in range(5): k("v_fmac_f32_dpp v%d, v%d, v%d%s" % (pr(1, q), pr(0, q), L64k[q], DPP))
    for sw in ("v_permlane16_swap_b32", "v_permlane32_swap_b32"):
        for q in range(5): k("v_mov_b32 v%d, v%d" % (pr(2, q), pr(1, q)))
        for q in range(5): k("%s v%d, v%d" % (sw, pr(1, q), pr(2, q)))
        for q in range(5): k("v_add_f32 v%d, v%d, v%d" % (pr(1, q), pr(1, q), pr(2, q)))
    for q in range(5): k("v_fmac_f32 v%d, v%d, v%d" % (MINE[q], Psr[q], pr(1, q)))
    for q in range(5): k("v_fmac_f32_dpp v%d, v%d, v%d%s" % (MINE[q], pr(1, q), Psk[q], DPP))
    CIN = [f for f in free]
    for q in range(5): k("v_mul_f32 v%d, v%d, v%d" % (CIN[q], KR[q], MINE[q]))
    for q in range(5): k("v_fmac_f32_dpp v%d, v%d, v%d%s" % (CIN[q], MINE[q], cKk+q, DPP))
    PK = 32
    OUTQ = [ACCF + 4*j for j in range(10)]
    k("v_mul_u32_u24 v%d, %d, v%d\nv_lshl_add_u32 v%d, v%d, 5, v%d\nv_add_u32 v%d, s%d, v%d" % (vT[1], TRP, vM, vT[1], vG, vT[1], vT[1], sKx, vT[1]))
    k("v_and_b32 v%d, 1, v%d\nv_lshrrev_b32 v%d, 2, v%d\nv_lshl_add_u32 v%d, v%d, 3, v%d\nv_mul_u32_u24 v%d, %d, v%d" % (vT[0], vG, vT[4], vM, vT[0], vT[0], vT[4], vT[0], TRP, vT[0]))
    k("v_and_b32 v%d, 3, v%d\nv_lshl_add_u32 v%d, v%d, 5, v%d" % (vT[4], vM, vT[0], vT[4], vT[0]))
    k("v_lshrrev_b32 v%d, 1, v%d\nv_lshl_add_u32 v%d, v%d, 3, v%d\nv_add_u32 v%d, s%d, v%d" % (vT[5], vG, vT[0], vT[5], vT[0], vT[0], sKx, vT[0]))
    k("v_and_b32 v%d, 31, v%d\nv_lshlrev_b32 v%d, 4, v%d\nv_lshl_add_u32 v%d, v%d, 10, v%d" % (vT[4], vL, vT[4], vT[4], vT[4], vT[5], vT[4]))
    def tr_reads(bp):
        for q in range(5):
            o = OUTQ[bp*5+q]
            k("ds_read_b64_tr_b16 %s, v%d offset:%d\nds_read_b64_tr_b16 %s, v%d offset:%d" % (vr(o, 2), vT[0], q*16*TRP+bp*16, vr(o+2, 2), vT[0], q*16*TRP+bp*16+4*TRP))
    def tr_stores(bp, waits):
        for q in range(5):
            if waits: k("s_waitcnt lgkmcnt(%d)" % (8-2*q))
            k("buffer_store_dwordx4 %s, v%d, %s, s%d offen offset:%d%s" % (vr(OUTQ[bp*5+q], 4), vT[4], sq(SWS), sSS[q], bp*2048, S1))
    for t in range(16):
        if DFR and t == opt("fft", 2):
            k("s_cmp_lg_u32 s%d, 0\ns_cbranch_scc1 L_k1_ffd" % sRd)
            a2_flag(1, 0, 30, 31)
            stamp(k, 7)
            k("L_k1_ffd:")
        prev = [CIN[q] if t == 0 else Z[q][t-1] for q in range(5)]
        for q in range(5): k("v_fmac_f32 v%d, v%d, v%d" % (Z[q][t], cLr+q, prev[q]))
        for q in range(5): k("v_fmac_f32_dpp v%d, v%d, v%d%s" % (Z[q][t], prev[q], cMu+q, DPP))
        if t & 1:
            for q in range(5): k("v_cvt_pk_bf16_f32 v%d, v%d, v%d" % (PK+8*q+(t >> 1), Z[q][t-1], Z[q][t]))
        if t == 8:
            for q in range(5): k("ds_write_b128 v%d, %s offset:%d" % (vT[1], vr(PK+8*q, 4), q*16*TRP))
        if t == 10: tr_reads(0)
        if t == 13:
            k("s_waitcnt lgkmcnt(0)")
            tr_stores(0, False)
    for q in range(5): k("ds_write_b128 v%d, %s offset:%d" % (vT[1], vr(PK+8*q+4, 4), q*16*TRP+16))
    tr_reads(1)
    tr_stores(1, True)
    if CSM & 2: cs_set(1, 17, 18)
    a2_flag(2, 0, vT[0], vT[1])
    stamp(k, 4)
    k("L_k1_base:")
    base_loads(140)
    k("L_k1_base2:")
    base_compute(140)
    finish(100)
    k("L_k1_end:")
    k("s_endpgm")
    return k

if __name__ == "__main__":
    ref = open("parallel_sum__ssm_conv_s5__geglu_ffn__prompt.s.ref").read().split("\n")
    hdr = [l for l in ref if l.startswith(";") and "@launch" not in l and "Override" not in l and "grid=ceil" not in l]
    hdr += ["; @launch grid=(256,1,1) block=(512,1,1) lds=163840"]
    out = [a for a in sys.argv[1:] if not a.startswith("--")][0]
    gen2.TRACE = False
    open(out, "w").write(emit_file(hdr, [(gen_k1(), dict(vgpr=256, accum=256))]))
```

```python
import sys, struct, math
from asmgen import *
import gen2
from gen2 import (A2_OFF, B2_OFF, CAR_OFF, RST_OFF, SB_OFF, SG_OFF, STAMP_OFF, WS_NREC, SL, SPARE, TRP, f32, vr, sq, sp, ror, DPP, SC,
                  Alloc, interleave, srd, stamp, stamp_out, opt, ARG, STAMPS, LOG2E,
                  pX, pLre, pLim, pBre, pBim, pCre, pCim, pLdt, pD, pBx, pG, pU, pDn, pOut, pDbg, pWs)
STAT_M = SPARE
SFF = SPARE + 1536
SSS = SPARE + 2560
TRB = SL
FLG = SPARE + 3968
PF_OFF = 0x1130000
FL_OFF = 0x1160000
CH_OFF = 0x1040000
TRACE = "--trace" in ARG
S1 = [" sc1", " sc0 sc1", " sc1 nt", ""][opt("st2", 0)]
if opt("sc", 1): SC = " sc1"
FSP = 4
FGS = 16
FLS_ = opt("fls", 4224)
PSC_ = [" sc1", " sc0 sc1"][opt("psc", 0)]
KNAME = "parallel_sum__ssm_conv_s5__geglu_ffn__prompt_kernel"

def gen_k1():
    k = Kern(KNAME)
    sW, sMH, sNH, sI, sJJ, sTY = 3, 4, 5, 6, 7, 8
    sT0, sT1, sT2, sT3 = 9, 10, 11, 12
    sMASK = 13
    SX, SW0, SW1, SWS, SP0, SP1 = 48, 52, 56, 60, 64, 68
    sKx, sKw, sDst, sDelta, sIt, sRd, sA, sB, sKS, sC, sNon, sCol = range(72, 84)
    k("s_cmp_ge_u32 s2, 256\ns_cbranch_scc1 L_k1_end")
    k("s_load_dwordx16 s[16:31], s[0:1], 0\ns_load_dwordx16 s[32:47], s[0:1], 64")
    vL, vM, vG, vII, vSL = 1, 2, 3, 4, 5
    vT = [6, 7, 8, 9, 10, 11]
    k("v_lshrrev_b32 v%d, 6, v0" % vT[0])
    k("v_and_b32 v%d, 63, v0" % vL)
    k("v_readfirstlane_b32 s%d, v%d" % (sW, vT[0]))
    k("s_cmp_ge_u32 s%d, 6\ns_cbranch_scc1 L_k1_D" % sW)
    k("s_cmp_lt_u32 s%d, 4\ns_cbranch_scc1 L_k1_C" % sW)
    def decode():
        stamp(k, 0)
        if TRACE: k("v_mov_b32 v255, 0")
        k("v_and_b32 v%d, 15, v0\nv_lshrrev_b32 v%d, 4, v%d" % (vM, vG, vL))
        k("v_lshrrev_b32 v%d, 3, v%d\nv_and_b32 v%d, 7, v0" % (vII, vL, vSL))
        k("s_bfe_u32 s%d, s2, 0x10002\ns_lshl_b32 s%d, s%d, 3\ns_bfe_u32 s%d, s2, 0x30003\ns_add_u32 s%d, s%d, s%d" % (sI, sI, sI, sT2, sI, sI, sT2))
        k("s_and_b32 s%d, s2, 3\ns_lshl_b32 s%d, s%d, 1\ns_lshr_b32 s%d, s2, 7\ns_add_u32 s%d, s%d, s%d\ns_bfe_u32 s%d, s2, 0x10006" % (sJJ, sJJ, sJJ, sT2, sJJ, sJJ, sT2, sTY))
        k("s_mov_b32 s%d, 0xffff0000" % sMASK)
        k("s_and_b32 s%d, s%d, 1\ns_bfe_u32 s%d, s%d, 0x10001" % (sMH, sW, sNH, sW))
        k("s_lshl_b32 s%d, s%d, 7\ns_lshl_b32 s%d, s%d, 6\ns_add_u32 s%d, s%d, 1024\ns_cmp_eq_u32 s%d, 0\ns_cselect_b32 s%d, s%d, s%d" % (sT0, sJJ, sT1, sJJ, sT1, sT1, sTY, sCol, sT0, sT1))
    decode()

    def bf16r(d, s):
        k("v_cvt_pk_bf16_f32 v%d, v%d, v%d\nv_lshlrev_b32 v%d, 16, v%d" % (d, s, s, d, d))
    r5 = lambda b: [b+q for q in range(5)]
    def cpow5(dr, dk, n, t0, t1, cA2, cBt):
        R5 = range(5)
        for q in R5: k("v_mul_f32 v%d, %s, v%d\nv_mul_f32 v%d, %s, v%d" % (t0+q, n, cA2+q, t1+q, n, cBt+q))
        for q in R5: k("v_exp_f32 v%d, v%d\nv_rndne_f32 v%d, v%d" % (t0+q, t0+q, dr[q], t1+q))
        for q in R5: k("v_sub_f32 v%d, v%d, v%d" % (t1+q, t1+q, dr[q]))
        for q in R5: k("v_cos_f32 v%d, v%d\nv_sin_f32 v%d, v%d" % (dr[q], t1+q, dk[q], t1+q))
        for q in R5: k("v_mul_f32 v%d, v%d, v%d\nv_mul_f32 v%d, v%d, v%d" % (dr[q], dr[q], t0+q, dk[q], dk[q], t0+q))
    def param_loads(P, snh, va):
        k("s_mul_i32 s%d, s%d, 80\ns_mul_i32 s%d, s%d, 40\ns_add_u32 s%d, s%d, s%d" % (sT0, sJJ, sT1, snh, sT1, sT1, sT0))
        k("v_add_u32 v%d, s%d, v%d\nv_lshlrev_b32 v%d, 1, v%d" % (va, sT1, vSL, va, va))
        for q in range(5):
            for n, p in enumerate((pLre, pLim, pLdt)):
                k("global_load_ushort v%d, v%d, %s offset:%d" % (P+n*5+q, va, sp(p), q*16))
    def param_ab(P, cA2, cBt, vs):
        lre, lim, ldt = P, P+5, P+10
        k("v_lshrrev_b32 v%d, 3, v%d\nv_xor_b32 v%d, 1, v%d\nv_lshlrev_b32 v%d, 31, v%d" % (vs, vM, vs, vs, vs, vs))
        for q in range(15): k("v_lshlrev_b32 v%d, 16, v%d" % (P+q, P+q))
        for q in range(5): k("v_xor_b32 v%d, v%d, v%d\nv_mul_f32 v%d, %s, v%d" % (lim+q, lim+q, vs, ldt+q, f32(LOG2E), ldt+q))
        for q in range(5): k("v_exp_f32 v%d, v%d" % (ldt+q, ldt+q))
        for q in range(5): k("v_cvt_pk_bf16_f32 v%d, v%d, v%d" % (ldt+q, ldt+q, ldt+q))
        for q in range(5): k("v_lshlrev_b32 v%d, 16, v%d" % (ldt+q, ldt+q))
        for q in range(5): k("v_mul_f32 v%d, v%d, v%d\nv_mul_f32 v%d, v%d, v%d" % (cA2+q, ldt+q, lre+q, cBt+q, ldt+q, lim+q))
        for q in range(5): k("v_mul_f32 v%d, %s, v%d\nv_mul_f32 v%d, %s, v%d" % (cA2+q, f32(LOG2E), cA2+q, cBt+q, f32(1/(2*math.pi)), cBt+q))
    def trace(idx_sreg, mul, add):
        if TRACE:
            k("s_memrealtime s[100:101]\ns_mul_i32 m0, s%d, %d\ns_add_u32 m0, m0, %d\ns_waitcnt lgkmcnt(0)\nv_writelane_b32 v255, s100, m0" % (idx_sreg, mul, add))
    def ev(n):
        if TRACE: k("s_memrealtime s[100:101]\ns_waitcnt lgkmcnt(0)\nv_writelane_b32 v255, s100, %d" % n)
    def finish(vt):
        if TRACE:
            k("s_lshl_b32 s83, s2, 11\ns_add_u32 s83, s83, 0x%x\nv_lshl_add_u32 v%d, v0, 2, s83" % (STAMP_OFF + 0x40000, vt+9))
            k("global_store_dword v%d, v255, %s" % (vt+9, sp(52)))
        stamp_out(k, 0, 8, 52, vt)
        k("s_endpgm")

    vXo, vWo, vSo = 12, 13, 14
    vF = 18
    k("s_lshl_b32 s%d, s%d, 7\ns_lshl_b32 s%d, s%d, 5\ns_add_u32 s%d, s%d, s%d" % (sT2, sI, sT3, sMH, sT2, sT2, sT3))
    k("v_lshrrev_b32 v%d, 2, v%d\nv_lshlrev_b32 v%d, 4, v%d\nv_and_b32 v%d, 3, v%d" % (vT[0], vII, vT[0], vT[0], vT[1], vII))
    k("v_add3_u32 v%d, v%d, v%d, s%d" % (vT[0], vT[0], vT[1], sT2))
    k("v_mul_u32_u24 v%d, 1280, v%d" % (vT[0], vT[0]))
    k("s_lshl_b32 s%d, s%d, 2" % (sT3, sMH))
    k("v_lshrrev_b32 v%d, 1, v%d\nv_or_b32 v%d, s%d, v%d\nv_xor_b32 v%d, v%d, v%d" % (vT[1], vII, vT[1], sT3, vT[1], vT[1], vT[1], vSL))
    k("v_lshl_add_u32 v%d, v%d, 4, v%d" % (vXo, vT[1], vT[0]))
    k("s_mul_i32 s%d, s%d, 80" % (sT0, sJJ))
    k("v_add_u32 v%d, s%d, v%d\nv_mul_u32_u24 v%d, 1280, v%d\nv_lshl_add_u32 v%d, v%d, 4, v%d" % (vT[2], sT0, vII, vT[2], vT[2], vSo, vT[1], vT[2]))
    k("s_lshl_b32 s%d, s%d, 3" % (sT0, sMH))
    k("v_add_u32 v%d, s%d, v%d\nv_mul_u32_u24 v%d, 3072, v%d" % (vT[0], sT0, vII, vT[0], vT[0]))
    k("v_and_b32 v%d, 2, v%d\nv_or_b32 v%d, s%d, v%d\nv_xor_b32 v%d, v%d, v%d" % (vT[1], vII, vT[1], sT3, vT[1], vT[1], vT[1], vSL))
    k("v_lshl_add_u32 v%d, v%d, 4, v%d" % (vT[0], vT[1], vT[0]))
    k("s_lshl_b32 s%d, s%d, 1" % (sT0, sCol))
    k("v_add_u32 v%d, s%d, v%d" % (vWo, sT0, vT[0]))
    k("s_mov_b32 s%d, 0\ns_mov_b32 s%d, 0\ns_lshl_b32 s%d, s%d, 10\ns_mov_b32 s%d, 0\ns_mov_b32 s%d, 0" % (sKx, sKw, sDst, sMH, sIt, sRd))
    k("v_mov_b32 v%d, %d\nv_mov_b32 v24, 0" % (vF, FLG))
    k("s_lshl_b32 s%d, s%d, 2\ns_add_u32 s%d, s%d, %d\nv_mov_b32 v%d, s%d" % (sT0, sMH, sT0, sT0, FLG+16, vF+1, sT0))
    for S_, n_ in ((SX, 2048*1280), (SW0, 640*3072), (SW1, 640*3072), (SP0, 640*1280)): k("s_mov_b32 s%d, %d\ns_mov_b32 s%d, 0x20000" % (S_+2, n_, S_+3))
    k("s_cmp_eq_u32 s%d, 0\ns_waitcnt lgkmcnt(0)" % sMH)
    k("s_mov_b64 %s, %s\ns_mov_b64 %s, %s\ns_mov_b64 %s, %s\ns_cselect_b64 %s, %s, %s" % (sp(SX), sp(pX), sp(SW0), sp(pG), sp(SW1), sp(pU), sp(SP0), sp(pBre), sp(pBim)))
    def wait_word(lab, off, need, va, vt):
        k("v_mov_b32 v%d, %d" % (va, FLG+off))
        k("%s:" % lab)
        k("ds_read_b32 v%d, v%d\ns_waitcnt lgkmcnt(0)\nv_readfirstlane_b32 s%d, v%d" % (vt, va, sT0, vt))
        k("s_cmp_ge_i32 s%d, %s\ns_cbranch_scc1 %s_ok\ns_sleep 1\ns_branch %s\n%s_ok:" % (sT0, need, lab, lab, lab))
    def wait_done(lab, need, vaddr, vt):
        k("%s:" % lab)
        k("ds_read_b128 %s, v%d\ns_waitcnt lgkmcnt(0)" % (vr(vt, 4), vaddr))
        k("v_min_u32 v%d, v%d, v%d\nv_min3_u32 v%d, v%d, v%d, v%d" % (vt, vt, vt+1, vt, vt, vt+2, vt+3))
        k("v_readfirstlane_b32 s%d, v%d" % (sT0, vt))
        k("s_cmp_ge_i32 s%d, %s\ns_cbranch_scc1 %s_ok\ns_sleep 1\ns_branch %s\n%s_ok:" % (sT0, need, lab, lab, lab))
    def dma(ldsoff, voff, S, sbase, add):
        k("s_add_u32 m0, s%d, %d\ns_add_u32 s%d, s%d, %d\nbuffer_load_dwordx4 v%d, %s, s%d offen lds" % (sDst, ldsoff, sT0, sbase, add, voff, sq(S), sT0))
    NSIG = opt("nsig", 8)
    def chk(lab, add, sig):
        k("s_lshl_b32 s%d, s%d, 1\ns_add_i32 s%d, s%d, %d\ns_waitcnt lgkmcnt(0)" % (sT1, sIt, sT1, sT1, add))
        k("v_min_u32 v20, v20, v21\nv_min3_u32 v20, v20, v22, v23\nv_readfirstlane_b32 s%d, v20" % sT0)
        k("s_cmp_ge_i32 s%d, s%d\ns_cbranch_scc1 %s_go" % (sT0, sT1, lab))
        if sig: k("s_waitcnt vmcnt(0)\nds_write_b32 v%d, v24" % (vF+1))
        wait_done(lab+"_wd", "s%d" % sT1, vF, 20)
        k("%s_go:" % lab)
    L = "L_k1_L"
    xs = [(n*2048, vXo, SX, sKx, ((n & 3)*4 + (n >> 2)*64)*1280) for n in range(8)]
    wsu = lambda un, ns: [(16384+un*16384+gu*8192+n*2048, vWo, SW1 if gu else SW0, sKw, n*16*3072+un*128) for n in ns for gu in range(2)]
    p1 = []
    for i in range(4): p1 += xs[2*i:2*i+2] + wsu(0, (0, 1))[i:i+1]
    for o in p1[:NSIG]: dma(*o)
    k("s_barrier\ns_branch %s_sig" % L)
    k("%s:" % L)
    trace(sIt, 4, 0)
    chk(L+"_c1", -5, True)
    trace(sIt, 4, 1)
    for o in p1[:NSIG]: dma(*o)
    k("%s_sig:" % L)
    k("s_waitcnt vmcnt(%d)\nds_write_b32 v%d, v24\nv_add_u32 v24, 1, v24" % (NSIG, vF+1))
    trace(sIt, 4, 3)
    k("s_cmp_eq_u32 s%d, 1\ns_cbranch_scc1 %s_b1" % (sTY, L))
    for o in wsu(1, (0, 1)): dma(*o)
    k("%s_b1:" % L)
    for i, o in enumerate(p1[NSIG:]):
        if i == len(p1)-NSIG-2: k("ds_read_b128 v[20:23], v%d" % vF)
        dma(*o)
    chk(L+"_c2", -4, False)
    k("s_cmp_eq_u32 s%d, 1\ns_cbranch_scc1 %s_b2" % (sTY, L))
    for o in wsu(1, (2, 3)): dma(*o)
    k("s_branch %s_b3" % L)
    k("%s_b2:" % L)
    for b_ in range(10): dma(32768+b_*2048, vSo, SP0, sKx, b_*10240)
    k("%s_b3:" % L)
    for i, o in enumerate(wsu(0, (2, 3))):
        if i == 2: k("ds_read_b128 v[20:23], v%d" % vF)
        dma(*o)
    k("ds_write_b32 v%d, v24 offset:16" % (vF+1))
    k("s_add_u32 s%d, s%d, 128\ns_add_u32 s%d, s%d, 196608\ns_add_u32 s%d, s%d, %d\ns_add_u32 s%d, s%d, 1" % (sKx, sKx, sKw, sKw, sDst, sDst, SL, sRd, sRd))
    k("s_cmp_eq_u32 s%d, 3\ns_cselect_b32 s%d, 0, s%d\ns_cselect_b32 s%d, %d, 0\ns_sub_u32 s%d, s%d, s%d" % (sRd, sRd, sRd, sT0, 3*SL, sDst, sDst, sT0))
    trace(sIt, 4, 2)
    k("s_add_u32 s%d, s%d, 1\ns_cmp_lt_u32 s%d, 10\ns_cbranch_scc1 %s" % (sIt, sIt, sIt, L))
    k("L_k1_Lend:")
    srd(k, SWS, pWs, WS_NREC)
    k("v_mov_b32 v72, v%d\nv_mov_b32 v73, v24" % (vF+1))
    k("s_branch L_k1_P2")

    k("L_k1_D:")
    k("s_memrealtime s[100:101]")
    if not opt("dbar", 1): k("s_barrier")
    decode()
    XR = 16
    YR = 36
    PK = 100
    T = 132
    vN = 12
    sPQ, sPR = [14, 78], [15, 79]
    k("v_mul_u32_u24 v%d, 1280, v%d\nv_lshl_add_u32 v%d, v%d, 4, v%d" % (vT[0], vG, vT[0], vM, vT[0]))
    XL = opt("xl", 1)
    sQ_, sG_ = sIt, sRd
    if XL:
        k("s_and_b32 s%d, s2, 7\ns_lshl_b32 s%d, s%d, 5\ns_lshr_b32 s%d, s2, 3\ns_add_u32 s%d, s%d, s%d\ns_lshl_b32 s%d, s%d, 1\ns_add_u32 s%d, s%d, s%d" % (sT0, sT0, sT0, sT1, sT0, sT0, sT1, sC, sT0, sC, sC, sMH))
        k("s_bfe_u32 s%d, s2, 0x10002\ns_lshl_b32 s%d, s%d, 5\ns_add_u32 s%d, s%d, s%d" % (sQ_, sQ_, sQ_, sQ_, sQ_, sT1))
    else:
        k("s_lshl_b32 s%d, s2, 1\ns_add_u32 s%d, s%d, s%d" % (sC, sC, sC, sMH))
    k("s_waitcnt lgkmcnt(0)")
    srd(k, SX, pX, 2048*1280)
    srd(k, SWS, pWs, WS_NREC)
    k("s_cmp_lg_u32 s%d, 0\ns_cbranch_scc1 L_k1_nn" % sC)
    k("s_or_b32 s%d, s100, 1" % sT0)
    k("v_mov_b32 v%d, s%d\nv_mov_b32 v%d, 0" % (vT[2], sT0, vT[1]))
    k("global_store_dword v%d, v%d, %s%s" % (vT[1], vT[2], sp(pDbg), SC))
    k("L_k1_nn:")
    B1 = opt("b1", 2); GATE = opt("gate", 3)
    SNT = " nt" if opt("snt", 0) else ""
    def gate(lab):
        if opt("dbar", 1): k("s_barrier")
        if GATE: wait_word(lab, 36, "%d" % GATE, vT[3], vT[2])
    k("s_mul_i32 s%d, s%d, 5120" % (sKx, sC))
    xl = lambda c: k("buffer_load_dwordx4 %s, v%d, %s, s%d offen offset:%d%s" % (vr(XR+4*c, 4), vT[0], sq(SX), sKx, c*256, SNT))
    k("s_cmp_eq_u32 s%d, 1\ns_cbranch_scc1 L_k1_D1a" % sMH)
    if XL:
        k("s_mul_i32 s%d, s%d, 43\ns_lshr_b32 s%d, s%d, 9\ns_mul_i32 s%d, s%d, 12\ns_sub_u32 s%d, s%d, s%d" % (sT0, sQ_, sT0, sT0, sT1, sT0, sT1, sQ_, sT1))
        k("s_cmp_lt_u32 s%d, 6\ns_cselect_b32 s%d, s%d, s%d\ns_cselect_b32 s%d, s%d, s%d\ns_cselect_b32 s%d, 0, 6\ns_cselect_b32 s%d, 0, 24" % (sT1, SP1, pG, pU, SP1+1, pG+1, pU+1, sT2, sG_))
        k("s_sub_u32 s%d, s%d, s%d\ns_and_b32 s%d, s2, 3\ns_lshl_b32 s%d, s%d, 2\ns_lshl_b32 s%d, s%d, 1\ns_add_u32 s%d, s%d, 12" % (sT1, sT1, sT2, sT2, sT3, sT2, sT2, sT2, sT2, sT2))
        k("s_cmp_lt_u32 s%d, 4\ns_cselect_b32 s%d, s%d, s%d\ns_add_u32 s%d, s%d, s%d" % (sT1, sT2, sT3, sT2, sT1, sT1, sT2))
        k("s_add_u32 s%d, s%d, s%d\ns_mul_i32 s%d, s%d, 48\ns_add_u32 s%d, s%d, s%d" % (sG_, sG_, sT1, sT2, sT0, sG_, sG_, sT2))
        k("s_lshl_b32 s%d, s%d, 7\ns_mul_i32 s%d, s%d, %d\ns_add_u32 s%d, s%d, s%d" % (sT1, sT1, sT0, sT0, 8*3072, sKw, sT0, sT1))
        k("s_cmp_lt_u32 s%d, 60\ns_cselect_b32 s%d, %d, 0\ns_cselect_b32 s%d, s%d, 1000\ns_mov_b32 s%d, 0x20000" % (sQ_, SP1+2, 640*3072, sG_, sG_, SP1+3))
    else:
        k("s_mov_b32 s%d, s2" % sG_)
        k("s_mul_i32 s%d, s2, 1366\ns_lshr_b32 s%d, s%d, 16\ns_mul_i32 s%d, s%d, 48\ns_sub_u32 s%d, s2, s%d" % (sT0, sT0, sT0, sT1, sT0, sT1, sT1))
        k("s_cmp_lt_u32 s%d, 24\ns_cselect_b32 s%d, s%d, s%d\ns_cselect_b32 s%d, s%d, s%d\ns_cselect_b32 s%d, 0, 24" % (sT1, SP1, pG, pU, SP1+1, pG+1, pU+1, sT2))
        k("s_sub_u32 s%d, s%d, s%d\ns_lshl_b32 s%d, s%d, 7\ns_mul_i32 s%d, s%d, %d\ns_add_u32 s%d, s%d, s%d" % (sT1, sT1, sT2, sT1, sT1, sT0, sT0, 8*3072, sKw, sT0, sT1))
        k("s_cmp_lt_u32 s2, 240\ns_cselect_b32 s%d, %d, 0\ns_mov_b32 s%d, 0x20000" % (SP1+2, 640*3072, SP1+3))
    k("v_mul_u32_u24 v%d, 3072, v%d\nv_lshl_add_u32 v%d, v%d, 4, v%d" % (vT[1], vII, vT[1], vSL, vT[1]))
    a_ = 0
    for c in range(5):
        if c == B1: gate("L_k1_g0")
        xl(c)
        while a_ < 16 and a_*40 < 128*(c+1):
            k("buffer_load_dwordx4 %s, v%d, %s, s%d offen%s" % (vr(YR+4*a_, 4), vT[1], sq(SP1), sKw, SNT))
            k("s_add_u32 s%d, s%d, %d" % (sKw, sKw, 40*3072))
            a_ += 1
    if B1 >= 5: gate("L_k1_g0")
    k("s_branch L_k1_Db")
    k("L_k1_D1a:")
    if XL:
        k("s_cmp_lt_u32 s%d, 20\ns_cselect_b32 s%d, s%d, s%d\ns_cselect_b32 s%d, s%d, s%d\ns_cselect_b32 s%d, 0, 20\ns_cselect_b32 s%d, 0, 80" % (sQ_, SP1, pBre, pBim, SP1+1, pBre+1, pBim+1, sT1, sG_))
        k("s_sub_u32 s%d, s%d, s%d\ns_and_b32 s%d, s2, 3\ns_mul_i32 s%d, s%d, 20\ns_add_u32 s%d, s%d, s%d\ns_add_u32 s%d, s%d, s%d" % (sT0, sQ_, sT1, sT1, sT1, sT1, sT0, sT0, sT1, sG_, sG_, sT0))
        k("s_mul_i32 s%d, s%d, 10240\ns_add_u32 s%d, s%d, 5120" % (sKw, sT0, sDst, sKw))
        k("s_cmp_lt_u32 s%d, 40\ns_cselect_b32 s%d, %d, 0\ns_cselect_b32 s%d, s%d, 1000\ns_mov_b32 s%d, 0x20000" % (sQ_, SP1+2, 640*1280, sG_, sG_, SP1+3))
    else:
        k("s_mov_b32 s%d, s2" % sG_)
        k("s_cmp_lt_u32 s2, 80\ns_cselect_b32 s%d, s%d, s%d\ns_cselect_b32 s%d, s%d, s%d\ns_cselect_b32 s%d, 0, 80" % (SP1, pBre, pBim, SP1+1, pBre+1, pBim+1, sT1))
        k("s_sub_u32 s%d, s2, s%d\ns_mul_i32 s%d, s%d, 10240\ns_add_u32 s%d, s%d, 5120" % (sT0, sT1, sKw, sT0, sDst, sKw))
        k("s_cmp_lt_u32 s2, 160\ns_cselect_b32 s%d, %d, 0\ns_mov_b32 s%d, 0x20000" % (SP1+2, 640*1280, SP1+3))
    for c in range(5):
        if c == B1: gate("L_k1_g1")
        xl(c)
        for hh in range(2): k("buffer_load_dwordx4 %s, v%d, %s, s%d offen offset:%d%s" % (vr(YR+20*hh+4*c, 4), vT[0], sq(SP1), sDst if hh else sKw, c*256, SNT))
    if B1 >= 5: gate("L_k1_g1")
    k("L_k1_Db:")
    if opt("cpf", 1):
        k("s_getpc_b64 s[70:71]")
        k("L_k1_pc:")
        k("s_sub_u32 s70, s70, L_k1_pc-%s\ns_subb_u32 s71, s71, 0" % KNAME)
        k("s_lshr_b32 s%d, s2, 3\ns_lshl_b32 s%d, s%d, 1\ns_add_u32 s%d, s%d, s%d\ns_and_b32 s%d, s%d, 7\ns_lshl_b32 s%d, s%d, 13" % (sT0, sT0, sT0, sT0, sT0, sMH, sT0, sT0, sT0, sT0))
        k("v_lshl_add_u32 v14, v%d, 7, s%d\nv_min_u32 v14, L_k1_end-%s, v14" % (vL, sT0, KNAME))
        k("s_cmp_lt_u32 s%d, L_k1_end-%s\ns_cbranch_scc0 L_k1_ncp\ns_cmp_lt_u32 s2, 64\ns_cbranch_scc0 L_k1_ncp" % (sT0, KNAME))
        k("global_load_dword v15, v14, s[70:71]")
        k("L_k1_ncp:")
    ev(0)
    k("s_lshl_b32 s%d, s%d, 3\ns_add_u32 s%d, s%d, s%d\ns_lshl_b32 s%d, s%d, 1\ns_add_u32 s%d, s%d, s%d\ns_lshl_b32 s%d, s%d, 1" % (sT3, sI, sT3, sT3, sJJ, sT3, sT3, sT3, sT3, sMH, sT3, sT3))
    for n in range(2):
        k("s_add_u32 s%d, s%d, %d\ns_mul_i32 s%d, s%d, 6554\ns_lshr_b32 s%d, s%d, 16\ns_mul_i32 s%d, s%d, 10\ns_sub_u32 s%d, s%d, s%d" % (sT0, sT3, n, sPQ[n], sT0, sPQ[n], sPQ[n], sT1, sPQ[n], sPR[n], sT0, sT1))
    k("v_mov_b32 v%d, 0" % vT[1])
    k("global_load_dword v%d, v%d, %s%s" % (vN, vT[1], sp(pDbg), SC))
    if opt("packlate", 0): k("s_waitcnt vmcnt(1)")
    PNT = " nt" if opt("pnt", 1) else ""
    PA = opt("pa", 0)
    PK2 = 180 if PA else PK
    k("s_cmp_eq_u32 s%d, 1\ns_cbranch_scc1 L_k1_plC" % sTY)
    srd(k, SP0, pDn, 1536*1280)
    k("v_mul_u32_u24 v%d, 1280, v%d\nv_lshl_add_u32 v%d, v%d, 4, v%d" % (vT[1], vII, vT[1], vSL, vT[1]))
    k("s_cmp_lt_u32 s%d, 48\ns_cselect_b32 s%d, s%d, 0" % (sPQ[0], SP0+2, SP0+2))
    for n in range(2):
        k("s_mul_i32 s%d, s%d, 40960\ns_lshl_b32 s%d, s%d, 7\ns_add_u32 s%d, s%d, s%d" % (sT1, sPQ[n], sT2, sPR[n], sT1, sT1, sT2))
        for a in range(4):
            k("buffer_load_dwordx4 %s, v%d, %s, s%d offen%s" % (vr(PK+16*n+4*a, 4), vT[1], sq(SP0), sT1, PNT))
            if a < 3: k("s_add_u32 s%d, s%d, 10240" % (sT1, sT1))
    PP = 180
    if PA:
        k("s_branch L_k1_plC2")
        k("L_k1_plC:")
        param_loads(PP, sMH, vT[1])
        k("s_waitcnt vmcnt(15)\ns_branch L_k1_pld")
        k("L_k1_plC2:")
    else:
        k("s_branch L_k1_pld")
        k("L_k1_plC:")
        param_loads(PP, sMH, vT[1])
    srd(k, SP0, pCre, 640*1280)
    srd(k, SP1, pCim, 640*1280)
    cr_, cc_ = (vSL, vII) if opt("cs", 0) else (vII, vSL)
    k("v_mul_u32_u24 v%d, 1280, v%d\nv_lshl_add_u32 v%d, v%d, 4, v%d" % (vT[1], cr_, vT[1], cc_, vT[1]))
    k("s_cmp_lt_u32 s%d, 40\ns_cselect_b32 s%d, s%d, 0\ns_cselect_b32 s%d, s%d, 0" % (sPQ[0], SP0+2, SP0+2, SP1+2, SP1+2))
    for n in range(2):
        k("s_mul_i32 s%d, s%d, 20480\ns_lshl_b32 s%d, s%d, 7\ns_add_u32 s%d, s%d, s%d" % (sT1, sPQ[n], sT2, sPR[n], sT1, sT1, sT2))
        k("s_add_u32 s%d, s%d, 10240" % (sT2, sT1))
        for part in range(2):
            for hh in range(2):
                k("buffer_load_dwordx4 %s, v%d, %s, s%d offen%s" % (vr(PK2+16*n+(part*2+hh)*4, 4), vT[1], sq(SP0 if part == 0 else SP1), sT2 if hh else sT1, PNT))
    k("L_k1_pld:")
    k("v_mov_b32 v13, 0x3f803f80")
    ev(1)
    k("s_waitcnt vmcnt(%d)" % (16 if PA else 8))
    ev(2)
    stamp(k, 7)
    def unpack(dst, src, n):
        for d in range(n): k("v_lshlrev_b32 v%d, 16, v%d\nv_and_b32 v%d, s%d, v%d" % (dst+2*d, src+d, dst+2*d+1, sMASK, src+d))
    def row_sum(regs):
        for n in (8, 4, 2, 1):
            for r in regs: k("v_add_f32_dpp v%d, v%d, v%d%s" % (r, r, r, ror(n)))
    def tree(dst, src, n):
        k("v_add_f32 v%d, v%d, v%d\nv_add_f32 v%d, v%d, v%d" % (dst, src, src+1, dst+1, src+2, src+3))
        for d in range(4, n, 2): k("v_add_f32 v%d, v%d, v%d\nv_add_f32 v%d, v%d, v%d" % (dst, dst, src+d, dst+1, dst+1, src+d+1))
        k("v_add_f32 v%d, v%d, v%d" % (dst, dst, dst+1))
    A, B = T+40, T+42
    def dsum(dst, src, n, sq_):
        for d in range(n):
            k("v_dot2_f32_bf16 v%d, v%d, v%d, %s" % (dst+(d & 1), src+d, src+d if sq_ else 13, "v%d" % (dst+(d & 1)) if d > 1 else "0"))
    dsum(A, XR, 20, False)
    dsum(B, XR, 20, True)
    k("v_add_f32 v%d, v%d, v%d\nv_add_f32 v%d, v%d, v%d" % (A, A, A+1, B, B, B+1))
    row_sum([A, B])
    k("v_mul_f32 v%d, %s, v%d" % (A, f32(1/640.), A))
    k("v_mul_f32 v%d, %s, v%d" % (B, f32(1/640.), B))
    k("v_fma_f32 v%d, -v%d, v%d, v%d\nv_max_f32 v%d, 0, v%d" % (B, A, A, B, B, B))
    bf16r(B, B)
    k("v_add_f32 v%d, %s, v%d" % (B, f32(1e-5), B))
    bf16r(B, B)
    k("v_sqrt_f32 v%d, v%d" % (B, B))
    k("s_mov_b32 s%d, 0" % sT3)
    k("L_k1_gn:")
    k("v_readfirstlane_b32 s%d, v%d" % (sNon, vN))
    k("s_add_u32 s%d, s%d, 1\ns_cmp_lg_u32 s%d, 0\ns_cbranch_scc1 L_k1_gnd" % (sT3, sT3, sNon))
    k("s_cmp_gt_u32 s%d, 0x40000\ns_cbranch_scc1 L_k1_gnd" % sT3)
    k("v_mov_b32 v%d, 0" % vT[1])
    k("global_load_dword v%d, v%d, %s%s\ns_waitcnt vmcnt(0)\ns_branch L_k1_gn" % (vN, vT[1], sp(pDbg), SC))
    k("L_k1_gnd:")
    k("s_max_u32 s%d, s%d, 1" % (sNon, sNon))
    k("v_cvt_pk_bf16_f32 v%d, v%d, v%d\nv_mov_b32 v%d, s%d" % (T+44, A, B, T+45, sNon))
    k("s_lshl_b32 s%d, s%d, 5\ns_add_u32 s%d, s%d, 0x%x" % (sT0, sC, sT0, sT0, RST_OFF))
    k("v_lshlrev_b32 v%d, 3, v%d" % (vT[2], vG))
    k("s_mov_b32 exec_lo, 0x00010001\ns_mov_b32 exec_hi, 0x00010001")
    k("buffer_store_dwordx2 %s, v%d, %s, s%d offen%s" % (vr(T+44, 2), vT[2], sq(SWS), sT0, SC))
    k("s_mov_b64 exec, -1")
    k("s_cmp_eq_u32 s%d, 1\ns_cbranch_scc1 L_k1_D1b" % sMH)
    k("v_and_b32 v%d, 1, v%d\nv_lshlrev_b32 v%d, 4, v%d\nv_mov_b32 v%d, 0x3f80\nv_lshlrev_b32 v%d, v%d, v%d" % (T+8, vM, T+8, T+8, T+9, T+8, T+8, T+9))
    k("v_bfe_u32 v%d, v%d, 1, 2" % (T+9, vM))
    for d in range(4): k("v_cmp_eq_u32 vcc, %d, v%d\nv_cndmask_b32 v%d, 0, v%d, vcc" % (d, T+9, T+d, T+8))
    for a in range(16): k("v_mfma_f32_16x16x32_bf16 %s, %s, %s, %s" % (vr(T+4, 4), vr(T, 4), vr(YR+4*a, 4), vr(T+4, 4) if a else "0"))
    k("s_lshl_b32 s%d, s%d, 9\ns_add_u32 s%d, s%d, 0x%x\ns_cmp_lt_u32 s%d, 240\ns_cselect_b32 s%d, s%d, 0x%x" % (sT0, sG_, sT0, sT0, SG_OFF, sG_, sT0, sT0, WS_NREC))
    k("v_lshlrev_b32 v%d, 5, v%d\nv_lshl_add_u32 v%d, v%d, 6, v%d\nv_add_u32 v%d, s%d, v%d" % (T+8, vG, T+8, vSL, T+8, T+8, sT0, T+8))
    for r in range(4): k("v_mov_b32 v%d, s%d" % (T+13+2*r, sNon))
    for r in range(4): k("v_add_f32_dpp v%d, v%d, v%d%s" % (T+12+2*r, T+4+r, T+4+r, DPP))
    k("s_mov_b32 exec_lo, 0x00ff00ff\ns_mov_b32 exec_hi, 0")
    k("buffer_store_dwordx4 %s, v%d, %s, 0 offen%s" % (vr(T+12, 4), T+8, sq(SWS), SC))
    k("buffer_store_dwordx4 %s, v%d, %s, 0 offen offset:16%s" % (vr(T+16, 4), T+8, sq(SWS), SC))
    k("s_mov_b64 exec, -1")
    k("s_branch L_k1_Dc")
    k("L_k1_D1b:")
    for hh in range(2): dsum(A+2*hh, YR+20*hh, 20, False)
    k("v_add_f32 v%d, v%d, v%d\nv_add_f32 v%d, v%d, v%d" % (A, A, A+1, A+2, A+2, A+3))
    row_sum([A, A+2])
    k("v_mov_b32 v%d, s%d\nv_mov_b32 v%d, s%d" % (A+1, sNon, A+3, sNon))
    k("s_lshl_b32 s%d, s%d, 6\ns_add_u32 s%d, s%d, 0x%x\ns_cmp_lt_u32 s%d, 160\ns_cselect_b32 s%d, s%d, 0x%x" % (sT0, sG_, sT0, sT0, SB_OFF, sG_, sT0, sT0, WS_NREC))
    k("v_add_u32 v%d, s%d, v%d" % (vT[3], sT0, vT[2]))
    k("s_mov_b32 exec_lo, 0x00010001\ns_mov_b32 exec_hi, 0x00010001")
    k("buffer_store_dwordx2 %s, v%d, %s, 0 offen%s" % (vr(A, 2), vT[3], sq(SWS), SC))
    k("buffer_store_dwordx2 %s, v%d, %s, 0 offen offset:32%s" % (vr(A+2, 2), vT[3], sq(SWS), SC))
    k("s_mov_b64 exec, -1")
    k("L_k1_Dc:")
    ev(3)
    PSC = S1
    k("s_waitcnt vmcnt(3)")
    k("s_cmp_eq_u32 s%d, 1\ns_cbranch_scc1 %s" % (sTY, "L_k1_pdd" if PA else "L_k1_pdC"))
    k("s_cmp_ge_u32 s%d, 48\ns_cbranch_scc1 L_k1_pdd" % sPQ[0])
    k("s_mul_i32 s%d, s%d, %d\ns_add_u32 s%d, s%d, 49152" % (sT2, sMH, SL, sT2, sT2))
    k("v_lshlrev_b32 v%d, 4, v%d\nv_add_u32 v%d, s%d, v%d" % (T+1, vL, T, sT2, T+1))
    k("v_lshrrev_b32 v%d, 2, v%d\nv_lshl_add_u32 v%d, v%d, 2, v%d\nv_lshlrev_b32 v%d, 7, v%d" % (T+2, vM, T+2, vG, T+2, T+2, T+2))
    k("v_and_b32 v%d, 3, v%d\nv_lshl_add_u32 v%d, v%d, 3, v%d\nv_add_u32 v%d, s%d, v%d" % (T+3, vM, T+2, T+3, T+2, T+2, sT2, T+2))
    for n in range(2):
        for a in range(4): k("ds_write_b128 v%d, %s offset:%d" % (T, vr(PK+16*n+4*a, 4), a*1024))
        k("s_waitcnt lgkmcnt(0)")
        for c4 in range(4):
            k("ds_read_b64_tr_b16 %s, v%d offset:%d" % (vr(PK+16*n+c4*4, 2), T+2, c4*32))
            k("ds_read_b64_tr_b16 %s, v%d offset:%d" % (vr(PK+16*n+c4*4+2, 2), T+2, c4*32+2048))
        for c4 in range(4):
            k("s_lshl_b32 s%d, s%d, 2\ns_add_u32 s%d, s%d, %d\ns_mul_i32 s%d, s%d, 52\ns_lshr_b32 s%d, s%d, 8" % (sT0, sPR[n], sT0, sT0, c4, sT1, sT0, sT1, sT1))
            k("s_mul_i32 s%d, s%d, 435\ns_add_u32 s%d, s%d, s%d\ns_mul_i32 s%d, s%d, 5\ns_add_u32 s%d, s%d, s%d" % (sT1, sT1, sT1, sT1, sT0, sT0, sPQ[n], sT1, sT1, sT0))
            k("s_lshl_b32 s%d, s%d, 10\ns_add_u32 s%d, s%d, %d" % (sT1, sT1, sT1, sT1, B2_OFF))
            k("s_waitcnt lgkmcnt(%d)" % (6-2*c4))
            k("buffer_store_dwordx4 %s, v%d, %s, s%d offen%s" % (vr(PK+16*n+c4*4, 4), T+1, sq(SWS), sT1, PSC))
    if not PA: k("s_branch L_k1_pdd")
    k("L_k1_pdC:")
    k("s_cmp_ge_u32 s%d, 40\ns_cbranch_scc1 L_k1_pdd" % sPQ[0])
    k("v_lshrrev_b32 v%d, 1, v%d\nv_mul_u32_u24 v%d, 5120, v%d" % (T+1, cc_, T+1, T+1))
    k("v_and_b32 v%d, 1, v%d\nv_lshl_add_u32 v%d, v%d, 5, v%d\nv_lshl_add_u32 v%d, v%d, 4, v%d" % (T+2, cc_, T+2, T+2, cr_, T+1, T+2, T+1))
    for n in range(2):
        k("s_mul_i32 s%d, s%d, 52\ns_lshr_b32 s%d, s%d, 8\ns_mul_i32 s%d, s%d, 435\ns_add_u32 s%d, s%d, s%d" % (sT1, sPQ[n], sT1, sT1, sT1, sT1, sT1, sT1, sPQ[n]))
        k("s_mul_i32 s%d, s%d, 20\ns_add_u32 s%d, s%d, s%d\ns_add_u32 s%d, s%d, 240\ns_lshl_b32 s%d, s%d, 10\ns_add_u32 s%d, s%d, %d" % (sT0, sPR[n], sT1, sT1, sT0, sT1, sT1, sT1, sT1, sT1, sT1, B2_OFF))
        for r in range(8, 16): k("v_xor_b32 v%d, 0x80008000, v%d" % (PK2+16*n+r, PK2+16*n+r))
        for part in range(2):
            for hh in range(2):
                k("buffer_store_dwordx4 %s, v%d, %s, s%d offen offset:%d%s" % (vr(PK2+16*n+(part*2+hh)*4, 4), T+1, sq(SWS), sT1, part*256+hh*128, PSC))
    k("L_k1_pdd:")
    if opt("pw", 0):
        k("s_mul_i32 s%d, s%d, 22528\nv_lshlrev_b32 v%d, 4, v%d" % (sT0, sC, T+3, vL))
        for j in range(22):
            k("buffer_store_dwordx4 %s, v%d, %s, s%d offen offset:%d sc1" % (vr(XR, 4), T+3, sq(SWS), sT0, (j & 3)*1024))
            if j & 3 == 3: k("s_add_u32 s%d, s%d, 4096" % (sT0, sT0))
    ev(4)
    if PA: k("s_cmp_eq_u32 s%d, 1\ns_cbranch_scc1 L_k1_npf" % sTY)
    k("s_lshl_b32 s%d, s%d, 4\ns_add_u32 s%d, s%d, s%d\ns_lshl_b32 s%d, s%d, 3\ns_add_u32 s%d, s%d, s%d\ns_lshl_b32 s%d, s%d, 1\ns_add_u32 s%d, s%d, s%d" % (sT0, sTY, sT0, sT0, sI, sT0, sT0, sT0, sT0, sJJ, sT0, sT0, sT0, sT0, sMH))
    k("s_lshl_b32 s%d, s%d, 2\ns_add_u32 s%d, s%d, 0x%x\nv_mov_b32 v%d, s%d\nv_mov_b32 v%d, s%d" % (sT0, sT0, sT0, sT0, PF_OFF, T, sT0, T+1, sNon))
    k("s_waitcnt vmcnt(0)\ns_mov_b64 exec, 1")
    k("buffer_store_dword v%d, v%d, %s, 0 offen%s\ns_mov_b64 exec, -1" % (T+1, T, sq(SWS), SC))
    k("L_k1_npf:")
    stamp(k, 2)
    ev(5)
    TB = 48
    k("s_cmp_eq_u32 s%d, 0\ns_cbranch_scc1 L_k1_ntb" % sTY)
    param_ab(PP, 80, 85, vT[1])
    k("v_cvt_f32_u32 v%d, v%d\nv_mul_f32 v%d, %s, v%d\nv_mul_f32 v%d, %s, v%d" % (vT[1], vG, vT[2], f32(64.0), vT[1], vT[1], f32(16.0), vT[1]))
    cpow5(r5(TB), r5(TB+5), f32(256.0), 90, 95, 80, 85)
    cpow5(r5(TB+12), r5(TB+17), "v%d" % vT[2], 90, 95, 80, 85)
    cpow5(r5(TB+22), r5(TB+27), "v%d" % vT[1], 90, 95, 80, 85)
    k("L_k1_ntb:")
    EI = 16
    aSt, aS0, aS1 = 40, 41, 42
    k("s_lshl_b32 s%d, s%d, 1\ns_add_u32 s%d, s%d, s%d\ns_lshl_b32 s%d, s%d, 9\ns_add_u32 s%d, s%d, 0x%x" % (sT0, sI, sT0, sT0, sMH, sT0, sT0, sT0, sT0, RST_OFF))
    k("v_lshrrev_b32 v%d, 2, v%d\nv_lshlrev_b32 v%d, 4, v%d\nv_lshl_add_u32 v%d, v%d, 2, v%d" % (aSt, vM, aSt, aSt, aSt, vG, aSt))
    k("v_and_b32 v%d, 3, v%d\nv_add_u32 v%d, v%d, v%d\nv_lshl_add_u32 v%d, v%d, 3, s%d" % (aS0, vM, aSt, aSt, aS0, aSt, aSt, sT0))
    k("s_cmp_eq_u32 s%d, 1\ns_cbranch_scc1 L_k1_eaB" % sTY)
    k("s_lshl_b32 s%d, s%d, 6\ns_add_u32 s%d, s%d, s%d\ns_lshl_b32 s%d, s%d, 3\ns_add_u32 s%d, s%d, 0x%x" % (sT0, sMH, sT0, sT0, sCol, sT0, sT0, sT0, sT0, SG_OFF))
    k("v_lshl_add_u32 v%d, v%d, 3, s%d\nv_add_u32 v%d, %d, v%d" % (aS0, vL, sT0, aS1, 1536*8, aS0))
    k("s_mov_b32 s%d, %d" % (sKw, 3072*8))
    k("s_branch L_k1_ead")
    k("L_k1_eaB:")
    k("s_lshl_b32 s%d, s%d, 5\ns_add_u32 s%d, s%d, s%d\ns_lshl_b32 s%d, s%d, 3\ns_add_u32 s%d, s%d, 0x%x" % (sT0, sMH, sT0, sT0, sCol, sT0, sT0, sT0, sT0, SG_OFF))
    k("v_lshrrev_b32 v%d, 5, v%d\nv_mul_u32_u24 v%d, 1504, v%d\nv_add_u32 v%d, v%d, v%d\nv_lshl_add_u32 v%d, v%d, 3, s%d" % (aS0, vL, aS0, aS0, aS0, aS0, vL, aS0, aS0, sT0))
    k("s_mul_i32 s%d, s%d, 80\ns_mul_i32 s%d, s%d, 40\ns_add_u32 s%d, s%d, s%d\ns_lshl_b32 s%d, s%d, 3\ns_add_u32 s%d, s%d, 0x%x" % (sT0, sJJ, sT1, sMH, sT0, sT0, sT1, sT0, sT0, sT0, sT0, SB_OFF))
    k("v_lshrrev_b32 v%d, 3, v%d\nv_mul_u32_u24 v%d, 640, v%d\nv_add_u32 v%d, v%d, v%d\nv_lshl_add_u32 v%d, v%d, 3, s%d" % (aS1, vM, aS1, aS1, aS1, aS1, vSL, aS1, aS1, sT0))
    k("s_mov_b32 s%d, 64" % sKw)
    k("L_k1_ead:")
    ev(6)
    k("s_lshl_b32 s%d, s%d, 2\ns_add_u32 s%d, s%d, %d\nv_mov_b32 v%d, s%d\nv_mov_b32 v%d, s%d\nv_lshlrev_b32 v43, 4, v%d" % (sT0, sMH, sT0, sT0, FLG+24, T+6, sT0, T+7, sNon, vL))
    PFW = 2 if PA else 4
    def pf_load(): return "buffer_load_dwordx%d v[44:%d], v%d, %s, s%d offen%s" % (PFW, 43+PFW, T+12, sq(SWS), sKx, SC)
    def pf_eval(ok):
        k("v_xor_b32 v%d, s%d, v44" % (T, sNon))
        for r_ in range(45, 44+PFW): k("v_xor_b32 v%d, s%d, v%d\nv_or_b32 v%d, v%d, v%d" % (T+1, sNon, r_, T, T, T+1))
        k("v_cmp_ne_u32 vcc, 0, v%d" % T)
    k("s_mul_i32 s%d, s%d, %d\ns_add_u32 s%d, s%d, 0x%x\nv_mul_u32_u24 v%d, %d, v%d\ns_mov_b32 s70, 0" % (sKx, sMH, PFW*256, sKx, sKx, PF_OFF, T+12, PFW*4, vL))
    wait_word("L_k1_eg", 36, "%d" % opt("eigate", 10), T, T+1)
    k("s_mov_b32 s%d, 0" % sT3)
    k(pf_load())
    k("L_k1_eil:")
    k("buffer_load_dwordx2 %s, v%d, %s, 0 offen%s" % (vr(EI, 2), aSt, sq(SWS), SC))
    for p in range(5):
        k("s_mov_b32 s%d, %d\ns_mul_i32 s%d, s%d, %d" % (sT0, p*3072*8, sT1, sKw, p))
        k("buffer_load_dwordx2 %s, v%d, %s, s%d offen%s" % (vr(EI+2+2*p, 2), aS0, sq(SWS), sT0, SC))
        k("buffer_load_dwordx2 %s, v%d, %s, s%d offen%s" % (vr(EI+12+2*p, 2), aS1, sq(SWS), sT1, SC))
    k("s_cmp_lg_u32 s%d, 0\ns_cbranch_scc1 L_k1_ntw" % sT3)
    k("s_waitcnt vmcnt(11)")
    pf_eval(None)
    k("s_cbranch_vccnz L_k1_pno\ns_mov_b32 s70, 1\nds_write_b32 v%d, v%d offset:16\nL_k1_pno:" % (T+6, T+7))
    k("s_cmp_eq_u32 s%d, 0\ns_cbranch_scc1 L_k1_ntw" % sTY)
    k("v_mov_b32 v%d, %d" % (T+2, FLG))
    wait_done("L_k1_tbw", "16", T+2, T+8)
    k("s_mul_i32 s%d, s%d, %d\ns_add_u32 s%d, s%d, %d\nv_add_u32 v43, s%d, v43" % (sT0, sMH, 2*80*TRP, sT0, sT0, TRB, sT0))
    for w2 in range(2):
        for qd in range(8): k("ds_write_b128 v43, %s offset:%d" % (vr(TB+4*qd, 4), w2*80*TRP+qd*1024))
    k("L_k1_ntw:")
    k("s_waitcnt vmcnt(0)")
    k("v_xor_b32 v%d, s%d, v%d" % (T, sNon, EI+1))
    for r_ in [EI+3+2*p for p in range(10)]: k("v_xor_b32 v%d, s%d, v%d\nv_or_b32 v%d, v%d, v%d" % (T+1, sNon, r_, T, T, T+1))
    k("v_cmp_ne_u32 vcc, 0, v%d" % T)
    k("s_add_u32 s%d, s%d, 1" % (sT3, sT3))
    k("s_cbranch_vccz L_k1_eid")
    k("s_sleep 16\ns_cmp_lt_u32 s%d, 0x40000\ns_cbranch_scc1 L_k1_eil" % sT3)
    k("L_k1_eid:")
    ev(8)
    k("v_lshlrev_b32 v%d, 16, v%d\nv_and_b32 v%d, s%d, v%d\nv_rcp_f32 v%d, v%d" % (T, EI, T+1, sMASK, EI, T+2, T+1))
    k("s_mul_i32 s%d, s%d, 768\ns_add_u32 s%d, s%d, %d" % (sT0, sMH, sT0, sT0, STAT_M))
    k("v_lshl_add_u32 v%d, v%d, 2, s%d" % (T+3, vL, sT0))
    k("ds_write_b32 v%d, v%d\nds_write_b32 v%d, v%d offset:256\nds_write_b32 v%d, v%d offset:512" % (T+3, T, T+3, T+2, T+3, T+1))
    def sum5(b): k("v_add_f32 v%d, v%d, v%d\nv_add_f32 v%d, v%d, v%d\nv_add_f32 v%d, v%d, v%d\nv_add_f32 v%d, v%d, v%d" % (b, b, b+2, b+4, b+4, b+6, b, b, b+8, b, b, b+4))
    sum5(EI+2)
    k("s_lshl_b32 s%d, s%d, 9\ns_add_u32 s%d, s%d, %d" % (sT0, sMH, sT0, sT0, SFF))
    k("v_lshl_add_u32 v%d, v%d, 2, s%d" % (T+4, vL, sT0))
    k("ds_write_b32 v%d, v%d" % (T+4, EI+2))
    k("s_cmp_eq_u32 s%d, 1\ns_cbranch_scc1 L_k1_ewB" % sTY)
    sum5(EI+12)
    k("ds_write_b32 v%d, v%d offset:256" % (T+4, EI+12))
    k("s_branch L_k1_ewd")
    k("L_k1_ewB:")
    k("s_mul_i32 s%d, s%d, 384\ns_add_u32 s%d, s%d, %d" % (sT0, sMH, sT0, sT0, SSS))
    k("v_lshl_add_u32 v%d, v%d, 2, s%d" % (T+5, vM, sT0))
    for p in range(5): k("ds_write_b32 v%d, v%d offset:%d" % (T+5, EI+12+2*p, p*64))
    k("L_k1_ewd:")
    k("ds_write_b32 v%d, v%d" % (T+6, T+7))
    k("s_cmp_lg_u32 s70, 0\ns_cbranch_scc1 L_k1_pfd\ns_mov_b32 s%d, 0" % sT3)
    k("L_k1_pfl:")
    k(pf_load() + "\ns_waitcnt vmcnt(0)")
    pf_eval(None)
    k("s_add_u32 s%d, s%d, 1" % (sT3, sT3))
    k("s_cbranch_vccz L_k1_pfo")
    k("s_sleep 12\ns_cmp_lt_u32 s%d, 0x40000\ns_cbranch_scc1 L_k1_pfl" % sT3)
    k("L_k1_pfo:")
    k("ds_write_b32 v%d, v%d offset:16" % (T+6, T+7))
    k("L_k1_pfd:")
    k("v_mov_b32 v72, %d\nv_mov_b32 v73, 0" % (FLG+48))
    k("L_k1_P2:")
    if opt("p2prio", 0): k("s_setprio %d" % opt("p2prio", 0))
    stamp(k, 1)
    if TRACE:
        k("s_lshl_b32 s83, s2, 11\ns_add_u32 s83, s83, 0x%x\nv_lshl_add_u32 v12, v0, 2, s83" % (STAMP_OFF + 0x40000))
        k("global_store_dword v12, v255, %s" % sp(pWs))
    LD2 = ["", " sc1", " nt", " sc0 sc1", " sc1 nt"][opt("ld2", 1)]
    sP, sMI, sNI = 4, 5, 6
    sAb, sBb = [72, 73, 74], [75, 76, 77]
    sR, sSh = 78, 79
    SO = SX
    AR, BR, AC = 12, 76, 176
    vA = [2, 3, 4, 5]; vB0, vB1, vOut, vLd, vFl, vFa = 6, 7, 8, 9, 10, 11
    k("s_sub_u32 s%d, s%d, 4" % (sP, sW))
    k("s_and_b32 s%d, s2, 7\ns_lshr_b32 s%d, s2, 3" % (sT0, sT1))
    k("s_lshr_b32 s%d, s%d, 1\ns_lshl_b32 s%d, s%d, 3\ns_and_b32 s%d, s%d, 7\ns_add_u32 s%d, s%d, s%d" % (sMI, sT0, sMI, sMI, sT2, sT1, sMI, sMI, sT2))
    k("s_and_b32 s%d, s%d, 1\ns_lshl_b32 s%d, s%d, 2\ns_lshr_b32 s%d, s%d, 3\ns_add_u32 s%d, s%d, s%d" % (sNI, sT0, sNI, sNI, sT2, sT1, sNI, sNI, sT2))
    X_, D_, ST_, PFr, tA, tB, tC = AR, AR+10, AR+20, AR+24, AR+32, AR+33, AR+34
    k("v_bfe_u32 v%d, v%d, 1, 2\nv_xor_b32 v%d, v%d, v%d\nv_mul_u32_u24 v%d, 320, v%d\nv_lshl_add_u32 v%d, v%d, 4, v%d" % (tA, vM, tA, tA, vG, vOut, vM, vOut, tA, vOut))
    k("v_lshlrev_b32 v%d, 4, v%d\nv_add_u32 v%d, 4096, v%d" % (vB0, vL, vB1, vB0))
    for f in range(4): k("s_xor_b32 s%d, s%d, %d\ns_lshl_b32 s%d, s%d, 10\nv_add_u32 v%d, s%d, v%d" % (sT0, sP, f, sT0, sT0, vA[f], sT0, vB0))
    k("s_mul_i32 s%d, s%d, %d\ns_mul_i32 s%d, s%d, %d\ns_add_u32 s%d, s%d, 0x%x" % (sBb[0], sMI, 88*4096, sBb[1], sNI, 88*5120, sBb[1], sBb[1], B2_OFF))
    for g, (mul, add) in enumerate(((8, 0), (4, 32), (10, 48))):
        k("s_mul_i32 s%d, s%d, %d\ns_add_u32 s%d, s%d, %d" % (sAb[g], sP, mul, sAb[g], sAb[g], add))
    def region(dst, src):
        k("s_and_b32 s%d, s%d, 1\ns_mul_i32 s%d, s%d, 25600\ns_cmp_lt_u32 s%d, 2\ns_cselect_b32 s%d, %d, 0\ns_add_u32 s%d, s%d, s%d" % (dst, src, dst, dst, src, sT0, 2*SL, dst, dst, sT0))
    region(sR, sP)
    k("v_add_u32 v%d, s%d, v%d\nv_add_u32 v%d, s%d, v%d" % (vLd, sR, vB0, vOut, sR, vOut))
    k("s_lshl_b32 s%d, s%d, 2\ns_add_u32 s%d, s%d, s%d\ns_mul_i32 s%d, s%d, %d\ns_add_u32 s%d, s%d, 0x%x" % (sSh, sMI, sSh, sSh, sP, sSh, sSh, FLS_, sSh, sSh, FL_OFF))
    k("s_lshl_b32 s%d, s%d, 2\ns_add_u32 s%d, s%d, %d\nv_mov_b32 v%d, s%d\nv_mov_b32 v%d, %d" % (sT0, sP, sT0, sT0, FLG+64, vFa, sT0, PFr+2, FLG+32))
    k("s_waitcnt vmcnt(0)\nds_write_b32 v72, v73")
    steps = [(0, i) for i in (0, 2, 4, 6, 1, 3, 5, 7)] + [(1, i) for i in range(4)] + [(2, i) for i in range(10)]
    fgrp = {0: 0, 4: 3, 8: 1, 12: 2}
    NS = len(steps)
    sK = list(range(16, 32)) + list(range(34, 40))
    ROT = opt("rot", 0)
    k("s_lshr_b32 s%d, s2, 3\ns_and_b32 s%d, s%d, 7\ns_lshr_b32 s%d, s%d, 3" % (sT1, sT0, sT1, sT1, sT1))
    if ROT:
        k("s_add_u32 s%d, s%d, s%d\ns_and_b32 s%d, s%d, 3" % (sT2, sT0, sT1, sT2, sT2))
        k("s_mul_i32 s%d, s%d, 3\ns_add_u32 s%d, s%d, s%d\ns_cmp_ge_u32 s%d, 10\ns_cselect_b32 s%d, 10, 0\ns_sub_u32 s%d, s%d, s%d" % (sT3, sT1, sT3, sT3, sT0, sT3, sT0, sT3, sT3, sT0))
    else:
        k("s_mov_b32 s%d, 0\ns_mov_b32 s%d, 0" % (sT2, sT3))
    for j in range(4):
        k("s_add_u32 s%d, s%d, %d\ns_and_b32 s%d, s%d, 3\ns_add_u32 s%d, s%d, s%d\ns_lshl_b32 s%d, s%d, 1\ns_add_u32 s%d, s%d, s%d\ns_add_u32 s%d, s%d, 1" %
          (sT0, sT2, j, sT0, sT0, sK[8+j], sT0, sAb[1], sT0, sT0, sK[j], sT0, sAb[0], sK[4+j], sK[j]))
    for j in range(10):
        k("s_add_u32 s%d, s%d, %d\ns_cmp_ge_u32 s%d, 10\ns_cselect_b32 s%d, 10, 0\ns_sub_u32 s%d, s%d, s%d\ns_add_u32 s%d, s%d, s%d" % (sT0, sT3, j, sT0, sT1, sT0, sT0, sT1, sK[12+j], sT0, sAb[2]))
    LS = [[7, 10, 13, 16, 19], [17, 18, 19, 20, 21], [9, 12, 15, 18, 21], [13, 15, 17, 19, 21], [], [20, 21], [5, 7, 9, 11, 13], [6, 9, 12, 15, 18]][opt("lsl", 2)]
    NA, NB = 4, 5
    vm = []
    THR = opt("thr", 0)
    def ldB(s, buf):
        g, i = steps[s]
        o = (["s_waitcnt vmcnt(%d)" % THR] if THR else []) + ["s_mul_i32 s%d, s%d, 5120\ns_add_u32 s%d, s%d, s%d" % (sT1, sK[s], sT1, sT1, sBb[1])]
        for f in range(5):
            o.append("buffer_load_dwordx4 %s, v%d, %s, s%d offen offset:%d%s" % (vr(BR+buf*20+f*4, 4), vB1 if f == 4 else vB0, sq(SWS), sT1, (f & 3)*1024, LD2))
            vm.append(("B", s))
        return o
    def ldA(s):
        g, i = steps[s]
        o = (["s_waitcnt vmcnt(%d)" % THR] if THR else []) + ["s_lshl_b32 s%d, s%d, 12\ns_add_u32 s%d, s%d, s%d" % (sT0, sK[s], sT0, sT0, sBb[0])]
        for f in range(4):
            o.append("buffer_load_dwordx4 %s, v%d, %s, s%d offen%s" % (vr(AR+(s % NA)*16+f*4, 4), vA[f], sq(SWS), sT0, LD2))
            vm.append(("A", s))
        return o
    def vwait(tags):
        idx = max(i for i, x in enumerate(vm) if x in tags)
        return min(63, len(vm)-1-idx)
    bbuf = {}
    k("L_k1_p2e:")
    k("ds_read_b128 %s, v%d\ns_waitcnt lgkmcnt(0)\nv_min_u32 v%d, v%d, v%d\nv_readfirstlane_b32 s%d, v%d\nv_readfirstlane_b32 s%d, v%d" % (vr(PFr+4, 4), PFr+2, PFr+6, PFr+6, PFr+7, sNon, PFr+6, sT0, PFr+5))
    k("s_cmp_lt_u32 s%d, %d\ns_cselect_b32 s%d, 0, s%d\ns_cmp_lg_u32 s%d, 0\ns_cbranch_scc1 L_k1_p2eo\ns_sleep 1\ns_branch L_k1_p2e\nL_k1_p2eo:" % (sT0, opt("bgate", 10), sT0, sNon, sT0))
    streamed = [s for s in range(NS) if s not in LS]
    NPRE = opt("npre", NB)
    for j in range(NB):
        bbuf[streamed[j]] = j
        if j < NPRE:
            for x in ldB(streamed[j], j): k(x)
    nextB = NB
    srd(k, SO, pOut, 2048*640*4)
    k("v_mov_b32 v%d, %d" % (AR+40, FLG))
    k("s_and_b32 s%d, s%d, 2\ns_add_u32 s%d, s%d, 18" % (sT1, sP, sT1, sT1))
    stamp(k, 2)
    wait_done("L_k1_p2w", "s%d" % sT1, AR+40, AR+44)
    for j, s_ in enumerate(LS):
        g, i = steps[s_]
        if THR: k("s_waitcnt vmcnt(%d)" % THR)
        k("s_add_u32 m0, s%d, %d\ns_mul_i32 s%d, s%d, 5120\ns_add_u32 s%d, s%d, s%d" % (sR, j*5120, sT1, sK[s_], sT1, sT1, sBb[1]))
        for f in range(4):
            k("buffer_load_dwordx4 v%d, %s, s%d offen offset:%d%s lds" % (vB0, sq(SWS), sT1, f*1024, LD2)); vm.append(("L", s_))
        k("s_add_u32 m0, s%d, %d" % (sR, j*5120+4096))
        k("buffer_load_dwordx4 v%d, %s, s%d offen%s lds" % (vB1, sq(SWS), sT1, LD2)); vm.append(("L", s_))
    if opt("tb", 0):
        assert not ROT
        rest = streamed[NB:]
        tv, tj = AR+40, AR+41
        k("v_mul_u32_u24 v%d, 52, v%d\nv_lshrrev_b32 v%d, 8, v%d" % (tj, vL, tj, tj))
        k("v_mov_b32 v%d, s%d" % (tv, sK[rest[0]]))
        for j in range(1, len(rest)):
            k("v_cmp_le_u32 vcc, %d, v%d\nv_mov_b32 v%d, s%d\nv_cndmask_b32 v%d, v%d, v%d, vcc" % (j, tj, AR+42, sK[rest[j]], tv, tv, AR+42))
        k("v_mul_u32_u24 v%d, 5, v%d\nv_sub_u32 v%d, v%d, v%d" % (tj, tj, tj, vL, tj))
        k("s_lshr_b32 s%d, s2, 3\ns_and_b32 s%d, s%d, 7\ns_mul_i32 s%d, s%d, 640\ns_add_u32 s%d, s%d, s%d" % (sT0, sT0, sT0, sT0, sT0, sT0, sT0, sBb[1]))
        k("v_mul_u32_u24 v%d, 5120, v%d\nv_lshl_add_u32 v%d, v%d, 7, v%d" % (tv, tv, tv, tj, tv))
        k("buffer_load_dword v%d, v%d, %s, s%d offen%s" % (vFl, tv, sq(SWS), sT0, LD2)); vm.append(("T", 0))
    stamp(k, 3)
    k("s_add_u32 s40, s%d, s%d\ns_addc_u32 s41, s%d, 0" % (pWs, sSh, pWs+1))
    def flag_load(g):
        return "s_load_dwordx4 s[52:55], s[40:41], %d glc" % (g*16)
    def flag_check(g):
        lab = "L_k1_fc%d" % g
        k("s_mov_b32 s%d, 0\ns_branch %s_c" % (sT3, lab))
        k("%s_r:" % lab)
        k("s_sleep %d\n%s" % (opt("psl", 2), flag_load(g)))
        k("%s_c:" % lab)
        k("s_waitcnt lgkmcnt(0)")
        k("s_xor_b32 s52, s52, s%d\ns_xor_b32 s53, s53, s%d\ns_xor_b32 s54, s54, s%d\ns_xor_b32 s55, s55, s%d" % (sNon, sNon, sNon, sNon))
        k("s_add_u32 s%d, s%d, 1\ns_or_b64 s[52:53], s[52:53], s[54:55]\ns_cbranch_scc0 %s_d" % (sT3, sT3, lab))
        k("s_cmp_lt_u32 s%d, 0x100000\ns_cbranch_scc1 %s_r" % (sT3, lab))
        k("%s_d:" % lab)
        if opt("p2t", 0): k("s_memrealtime s[100:101]\ns_waitcnt lgkmcnt(0)\nv_writelane_b32 v1, s100, %d\nv_writelane_b32 v1, s%d, %d" % (32+g, sT3, 40+g))
    if opt("pd", 0): k("s_waitcnt vmcnt(0)\ns_sleep %d" % opt("pd", 0))
    k(flag_load(0))
    flag_check(0)
    stamp(k, 4)
    for s_ in range(NB):
        if s_ < NA:
            for x in ldA(s_): k(x)
        if s_ >= NPRE:
            for x in ldB(streamed[s_], s_): k(x)
    LEAD = {4: opt("ld3", 1), 8: opt("ld1", 2), 12: opt("ld2_", 2)}
    chkpos = {g: g - 1 - LEAD[g] for g in LEAD}
    nextA = NA
    if chkpos[4] == 0: k(flag_load(3))
    pend = []
    for s_ in range(NS):
        fill = pend; pend = []
        need = [("A", s_)] + ([("B", s_)] if s_ not in LS else [])
        CSM_ = opt("csm", 1)
        if (CSM_ & 1 and s_ == 0) or (CSM_ & 2 and 0 < s_ < opt("csn", 12)):
            lab = "L_k1_cs%d" % s_
            if s_ == 0: k("%s_r:\nds_read_b32 v%d, v%d" % (lab, vFl, vFa))
            else: k("s_branch %s_c\n%s_r:\ns_sleep 1\nds_read_b32 v%d, v%d\n%s_c:" % (lab, lab, vFl, vFa, lab))
            k("s_waitcnt lgkmcnt(0)\nv_readfirstlane_b32 s%d, v%d\ns_cmp_eq_u32 s%d, 0\ns_cbranch_scc1 %s_r" % (sT2, vFl, sT2, lab))
        if CSM_ & 2 and s_+1 < opt("csn", 12): fill = fill + ["ds_read_b32 v%d, v%d" % (vFl, vFa)]
        mf_ = []
        for f in range(4):
            for cb in range(5):
                c = AC + (f*5+cb)*4
                mf_.append("v_mfma_f32_16x16x32_bf16 %s, %s, %s, %s" % (vr(c, 4), vr(BR+bbuf[s_]*20+cb*4, 4), vr(AR+(s_ % NA)*16+f*4, 4), vr(c, 4) if s_ else "0"))
        if opt("ilv", 1):
            nf = sum(1 for x in fill if x.startswith("buffer_load"))
            k("s_waitcnt vmcnt(%d)%s" % (max(0, vwait(need)-nf), " lgkmcnt(0)" if s_ in LS else ""))
            if opt("p2t", 0): k("s_memrealtime s[100:101]")
            interleave(k, mf_, fill, per=1)
            if opt("p2t", 0): k("s_waitcnt lgkmcnt(0)\nv_writelane_b32 v1, s100, %d" % s_)
        else:
            for x in fill: k(x)
            k("s_waitcnt vmcnt(%d)%s" % (vwait(need), " lgkmcnt(0)" if s_ in LS else ""))
            if opt("p2t", 0): k("s_memrealtime s[100:101]")
            for x in mf_: k(x)
            if opt("p2t", 0): k("s_waitcnt lgkmcnt(0)\nv_writelane_b32 v1, s100, %d" % s_)
        for g_ in chkpos:
            if chkpos[g_] == s_:
                if fgrp[g_] == 2: stamp(k, 0)
                flag_check(fgrp[g_])
                if fgrp[g_] == 2: stamp(k, 7)
        while nextA < NS and nextA <= s_ + NA and all(not (g_ <= nextA and chkpos[g_] > s_) for g_ in chkpos):
            pend += ldA(nextA); nextA += 1
        fb = bbuf[s_]
        if s_+2 in LS:
            bbuf[s_+2] = fb
            j = LS.index(s_+2)
            pend.append("s_waitcnt vmcnt(%d)" % vwait([("L", s_+2)]))
            for f in range(5): pend.append("ds_read_b128 %s, v%d offset:%d" % (vr(BR+fb*20+f*4, 4), vLd, j*5120+f*1024))
        elif nextB < len(streamed):
            bbuf[streamed[nextB]] = fb
            pend += ldB(streamed[nextB], fb); nextB += 1
        for g_ in chkpos:
            if chkpos[g_] == s_+1: pend.insert(0, flag_load(fgrp[g_]))
    stamp(k, 5)
    OSC = ["", " sc1", " nt", " sc0 sc1"][opt("osc", 1)]
    for f in (1, 2, 3, 0):
        for cb in range(5): k("ds_write_b128 v%d, %s offset:%d" % (vOut, vr(AC+(f*5+cb)*4, 4), f*5120+cb*64))
    for f in range(1, 4):
        k("s_xor_b32 s%d, s%d, %d" % (sT2, sP, f))
        region(sT1, sT2)
        k("v_add_u32 v%d, s%d, v%d" % (vA[f], sT1, vB0))
    k("s_mul_i32 s%d, s%d, %d\ns_add_u32 s%d, s%d, %d\nv_add_u32 v%d, s%d, v%d" % (sT1, sP, 80*TRP, sT1, sT1, TRB, vA[0], sT1, vB0))
    GO = BR + 40
    k("v_lshrrev_b32 v%d, 4, v%d" % (vFl, vB0))
    k("s_lshl_b32 s%d, s%d, 6\ns_lshl_b32 s%d, s%d, 2\ns_add_u32 s%d, s%d, s%d\ns_mul_i32 s%d, s%d, 2560\ns_mul_i32 s%d, s%d, 320\ns_add_u32 s%d, s%d, s%d" % (sT0, sMI, sT1, sP, sT0, sT0, sT1, sT0, sT0, sT1, sNI, sT3, sT0, sT1))
    R5 = range(5)
    e_, r_, q_, t_ = GO+5, GO+10, GO+15, GO+20
    for it in R5: k("v_add_u32 v%d, %d, v%d" % (e_+it, it*64, vFl))
    for it in R5: k("v_mul_u32_u24 v%d, 205, v%d" % (r_+it, e_+it))
    for it in R5: k("v_lshrrev_b32 v%d, 12, v%d" % (r_+it, r_+it))
    for it in R5: k("v_mul_u32_u24 v%d, 20, v%d\nv_bfe_u32 v%d, v%d, 1, 2" % (q_+it, r_+it, t_+it, r_+it))
    for it in R5: k("v_sub_u32 v%d, v%d, v%d" % (q_+it, e_+it, q_+it))
    for it in R5: k("v_xor_b32 v%d, v%d, v%d\nv_lshrrev_b32 v%d, 2, v%d" % (q_+it, q_+it, t_+it, t_+it, r_+it))
    for it in R5: k("v_mad_u32_u24 v%d, v%d, 12, v%d" % (r_+it, t_+it, r_+it))
    for it in R5: k("v_mul_u32_u24 v%d, 2560, v%d" % (r_+it, r_+it))
    for it in R5: k("v_lshl_add_u32 v%d, v%d, 4, v%d" % (GO+it, q_+it, r_+it))
    k("s_waitcnt lgkmcnt(0)\ns_barrier")
    for it in R5:
        for f in range(5):
            a_, off = (vA[f], f*5120) if f < 4 else (vLd, 0)
            if f == 0: off = 0
            k("ds_read_b128 %s, v%d offset:%d" % (vr(AR+(it*5+f)*4, 4), a_, off+it*1024))
        if it == 2: k("s_waitcnt lgkmcnt(5)")
    for it in R5:
        k("s_waitcnt lgkmcnt(%d)" % min(15, 20-5*it))
        q = AR+it*20
        for h in range(0, 4, 2):
            k("v_pk_add_f32 %s, %s, %s\nv_pk_add_f32 %s, %s, %s" % (vr(q+h, 2), vr(q+h, 2), vr(q+4+h, 2), vr(q+8+h, 2), vr(q+8+h, 2), vr(q+12+h, 2)))
        for h in range(0, 4, 2): k("v_pk_add_f32 %s, %s, %s" % (vr(q+h, 2), vr(q+h, 2), vr(q+16+h, 2)))
        for h in range(0, 4, 2): k("v_pk_add_f32 %s, %s, %s" % (vr(q+h, 2), vr(q+h, 2), vr(q+8+h, 2)))
        k("buffer_store_dwordx4 %s, v%d, %s, s%d offen%s" % (vr(q, 4), GO+it, sq(SO), sT3, OSC))
    stamp(k, 6)
    if opt("p2t", 0):
        k("s_lshl_b32 s83, s2, 11\ns_add_u32 s83, s83, 0x%x\nv_lshl_add_u32 v12, v0, 2, s83" % (STAMP_OFF + 0x40000))
        k("global_store_dword v12, v1, %s" % sp(pWs))
    stamp_out(k, 0, 8, pWs, 76)
    k("s_endpgm")

    k("L_k1_C:")
    decode()
    k("v_mov_b32 v%d, 0\nv_lshlrev_b32 v%d, 2, v%d\nv_add_u32 v%d, %d, v%d\nds_write2_b32 v%d, v%d, v%d offset1:16" % (vT[1], vT[2], vM, vT[2], FLG, vT[2], vT[2], vT[1], vT[1]))
    k("s_waitcnt lgkmcnt(0)\ns_barrier")
    k("s_setprio 3")
    k("s_mov_b64 s[48:49], %s\ns_mov_b64 s[50:51], %s\ns_mov_b64 s[52:53], %s" % (sp(pX), sp(pD), sp(pWs)))
    aX = [12, 13]; aW = [14, 15, 16, 17]
    XS = [20, 36]
    WR = 52
    ACC = 84
    k("v_lshrrev_b32 v%d, 1, v%d\nv_xor_b32 v%d, v%d, v%d\nv_lshlrev_b32 v%d, 4, v%d" % (vT[0], vM, vT[0], vT[0], vG, vT[0], vT[0]))
    k("v_lshl_add_u32 v%d, v%d, 7, v%d" % (vT[5], vM, vT[0]))
    k("s_lshl_b32 s%d, s%d, 13" % (sT0, sMH))
    k("v_add_u32 v%d, s%d, v%d\nv_xor_b32 v%d, 64, v%d" % (aX[0], sT0, vT[5], aX[1], aX[0]))
    k("v_lshrrev_b32 v%d, 2, v%d\nv_lshl_add_u32 v%d, v%d, 3, v%d\nv_lshlrev_b32 v%d, 7, v%d" % (vT[0], vM, vT[0], vG, vT[0], vT[0], vT[0]))
    k("v_and_b32 v%d, 1, v%d\nv_lshlrev_b32 v%d, 1, v%d\nv_lshrrev_b32 v%d, 3, v%d\nv_or_b32 v%d, v%d, v%d" % (vT[1], vG, vT[1], vT[1], vT[2], vM, vT[1], vT[1], vT[2]))
    k("v_lshl_add_u32 v%d, v%d, 5, v%d" % (vT[0], vT[1], vT[0]))
    k("v_and_b32 v%d, 3, v%d\nv_lshl_add_u32 v%d, v%d, 3, v%d\nv_add_u32 v%d, 16384, v%d" % (vT[1], vM, vT[0], vT[1], vT[0], vT[0], vT[0]))
    k("s_lshl_b32 s%d, s%d, 1\ns_add_u32 s%d, s%d, s%d" % (sC, sI, sC, sC, sMH))
    k("s_mov_b32 s%d, 0\ns_mov_b32 s%d, 0" % (sIt, sRd))
    k("s_cmp_eq_u32 s%d, 1\ns_cbranch_scc1 L_k1_CB" % sTY)

    def c_loop(tag, frags, R, D, WR, addr_regs, post):
        n = len(frags); N = 2*n
        assert N % R == 0
        def wreg(p): return WR + (p % R)*4
        def rdW(p): return frags[p % n][0]((p % N)//n, wreg(p))
        def rdX(h): return ["ds_read_b128 %s, v%d offset:%d" % (vr(XS[h]+4*b, 4), aX[h], b*2048) for b in range(4)]
        def mf(p): return [frags[p % n][1](b, XS[(p % N)//n]+4*b, wreg(p)) for b in range(4)]
        adv = ["s_mov_b32 s%d, %d\ns_add_u32 s%d, s%d, 1\ns_cmp_eq_u32 s%d, 3\ns_cselect_b32 s%d, 0, s%d\ns_cselect_b32 s%d, %d, s%d" % (sDelta, SL, sRd, sRd, sRd, sRd, sRd, sDelta, (-2*SL) & 0xffffffff, sDelta)]
        adv += ["v_add_u32 v%d, s%d, v%d" % (r, sDelta, r) for r in addr_regs]
        vFl, vFa, vDa, vDv = 18, vT[1], vT[2], vT[3]
        sF = sA
        import re as _re
        FLS = N - opt("fl", 3)
        def build():
            mfs = []; gaps = [[] for _ in range(4*N)]
            for j in range(N):
                loads = [("ld", x, ("W", j)) for x in rdW(j)]
                if j == 0: loads = [("ld", x, ("X0", b)) for b, x in enumerate(rdX(0)[:2])] + loads
                if j == 1: loads = [("ld", x, ("X0", b+2)) for b, x in enumerate(rdX(0)[2:])] + loads
                if D <= j < D+4: loads += [("ld", rdX(1)[j-D], ("X1", j-D))]
                if j == FLS: loads += [("ld", "ds_read_b64 %s, v%d " % (vr(vFl, 2), vFa), ("F", 0))]
                if j == N-1 or j == max(n-1, D+3): loads += [("ld", "ds_write_b32 v%d, v%d" % (vDa, vDv), ("DW", j))]
                p = j - D
                ms = mf(p % N)
                for b in range(4):
                    need = [("W", p % N)] + [("X%d" % ((p % N)//n), bb) for bb in range(4)]
                    mfs.append(("mf", ms[b], (need, p < 0)))
                    if b < 3:
                        if loads: gaps[j*4+b].append(loads.pop(0))
                    else: gaps[j*4+b] += loads
            def place(e, lo, hi=4*N-1):
                for cap in (0, 1, 2, 3):
                    for g in range(lo, hi+1):
                        if len(gaps[g]) + (1 if g % 4 == 3 else 0) <= cap:
                            gaps[g].append(e); return g
                raise Exception
            g = 4*D
            def place_s(txt, lo):
                for g in range(lo, 4*N):
                    if len(gaps[g]) + (1 if g % 4 == 3 else 0) <= 1:
                        gaps[g].append(("x", txt, None)); return g
            for txt in ("s_add_u32 s%d, s%d, 1" % (sRd, sRd), "s_cmp_eq_u32 s%d, 3" % sRd, "s_cselect_b32 s%d, s14, s15" % sDelta, "s_cselect_b32 s%d, 0, s%d" % (sRd, sRd), "s_add_u32 s%d, s%d, 1" % (sIt, sIt)):
                g = place_s(txt, g) + 1
            gd = g
            mid = max(n-1, D+3)
            place_s("v_add_u32 v%d, 1, v%d" % (vDv, vDv), gd)
            place(("x", "v_add_u32 v%d, 1, v%d" % (vDv, vDv), None), 4*mid+4, 4*(N-1)-1)
            g1 = place(("use", "v_min_u32 v%d, v%d, v%d" % (vFl, vFl, vFl+1), ([("F", 0)], False)), 4*(N-2)+2, 4*N-4)
            gaps[g1+1].append(("x", "v_readfirstlane_b32 s%d, v%d" % (sF, vFl), None))
            gaps[4*N-2].append(("x", "s_cmp_gt_u32 s%d, s%d" % (sF, sIt), None))
            for r in addr_regs:
                last = max(g for g in range(4*N) for x in gaps[g] if x[0] == "ld" and _re.search(r", v%d " % r, x[1]+" "))
                place(("x", "v_add_u32 v%d, s%d, v%d" % (r, sDelta, r), None), min(max(last+1, gd), 4*N-1))
            seq = []
            for m_, gp in zip(mfs, gaps): seq += [m_] + gp
            return seq
        def emit(seq, prev):
            issued = [(t, True) for t in prev]
            cur = 99
            for kind, text, tg in seq:
                if kind == "ld": issued.append((tg, False)); cur += 1
                elif kind == "lab": cur = 99
                elif kind in ("mf", "use"):
                    w = 15
                    for t in tg[0]:
                        idx = max(i for i, x in enumerate(issued) if x == (t, tg[1]))
                        w = min(w, len(issued)-1-idx)
                    if w < cur:
                        k("s_waitcnt lgkmcnt(%d)" % w); cur = w
                k(text)
        L = "L_k1_cl" + tag
        k("v_mov_b32 v%d, %d\nv_mov_b32 v%d, 0\ns_mov_b32 s14, %d\ns_mov_b32 s15, %d" % (vFa, FLG+16, vDv, (-2*SL) & 0xffffffff, SL))
        k("s_lshl_b32 s%d, s%d, 2\ns_add_u32 s%d, s%d, %d\nv_mov_b32 v%d, s%d" % (sT0, sW, sT0, sT0, FLG, vDa, sT0))
        s2 = build()
        allld = [x[2] for x in s2 if x[0] == "ld"]
        idx2 = next(i for i, x in enumerate(s2) if x[0] == "mf" and not x[2][1])
        k("%s_sp:" % L)
        k("ds_read_b64 %s, v%d\ns_waitcnt lgkmcnt(0)\nv_min_u32 v%d, v%d, v%d\nv_readfirstlane_b32 s%d, v%d" % (vr(vFl, 2), vFa, vFl, vFl, vFl+1, sF, vFl))
        k("s_cmp_gt_u32 s%d, s%d\ns_cbranch_scc0 %s_sp" % (sF, sIt, L))
        k("s_cmp_lg_u32 s%d, 0\ns_cbranch_scc1 %s" % (sIt, L))
        stamp(k, 5)
        for x in s2[:idx2]:
            if x[0] == "ld": k(x[1])
        k("s_branch %s_mid" % L)
        k(".p2align 6")
        k("%s:" % L)
        trace(sIt, 4, 1)
        if opt("clk", 0):
            k("s_cmp_lg_u32 s%d, 5\ns_cbranch_scc1 %s_nc\ns_memrealtime s[84:85]\ns_memtime s[90:91]\n%s_nc:" % (sIt, L, L))
        s2 = s2[:idx2] + [("lab", "%s_mid:" % L, None)] + s2[idx2:]
        emit(s2, allld)
        if TRACE:
            trace(sIt, 4, 0)
            k("s_cmp_gt_u32 s%d, s%d" % (sF, sIt))
        k("s_cbranch_scc1 %s" % L)
        k("s_cmp_lt_u32 s%d, 10\ns_cbranch_scc1 %s_sp" % (sIt, L))
        if opt("cprio", 3) != 3: k("s_setprio %d" % opt("cprio", 3))
        if opt("clk", 0): k("s_memrealtime s[94:95]\ns_memtime s[96:97]")
        k("ds_read_b64 %s, v%d offset:8" % (vr(vFl, 2), vFa))
        k("s_waitcnt lgkmcnt(6)")
        for x in mf(N-D): k(x)
        k("s_branch %s_ec" % L)
        k("%s_es:" % L)
        k("ds_read_b64 %s, v%d offset:8" % (vr(vFl, 2), vFa))
        k("%s_ec:" % L)
        k("s_waitcnt lgkmcnt(0)")
        k("v_min_u32 v%d, v%d, v%d\nv_readfirstlane_b32 s%d, v%d" % (vFl, vFl, vFl+1, sNon, vFl))
        k("s_cmp_eq_u32 s%d, 0\ns_cbranch_scc1 %s_es" % (sNon, L))
        tail = []
        for p in range(N-D+1, N): tail += mf(p)
        interleave(k, tail, post(), lead=2, per=1)

    c0 = -2*math.sqrt(2/math.pi)*LOG2E
    def ffn_epilogue(ACCF, ncb, S4, Mb, RSb, Sb, T, O, K0, vSt, blocks, defer=None):
        for bi, (b, pr_) in enumerate(blocks):
            sel = b & 1
            bc = lambda base: vr(base + (b & ~1), 2)
            os0 = " op_sel:[%d,0,0] op_sel_hi:[%d,1,1]" % (sel, sel)
            items = [(cb, hh) for cb in (2*pr_, 2*pr_+1) for hh in range(2)]
            G = lambda cb, hh: ACCF + (cb*4+b)*4 + 2*hh
            U = lambda cb, hh: ACCF + ((ncb+cb)*4+b)*4 + 2*hh
            Tm = lambda cb, hh: T + (cb & 1)*4 + 2*hh
            for cb, hh in items: k("v_pk_fma_f32 %s, %s, %s, %s%s neg_lo:[1,0,0] neg_hi:[1,0,0]" % (vr(G(cb,hh),2), bc(Mb), vr(S4+cb*4+2*hh,2), vr(G(cb,hh),2), os0))
            for cb, hh in items: k("v_pk_mul_f32 %s, %s, %s op_sel:[%d,0] op_sel_hi:[%d,1]" % (vr(G(cb,hh),2), bc(RSb), vr(G(cb,hh),2), sel, sel))
            for cb, hh in items: k("v_pk_mul_f32 %s, %s, %s" % (vr(Tm(cb,hh),2), vr(G(cb,hh),2), vr(G(cb,hh),2)))
            for cb, hh in items: k("v_pk_fma_f32 %s, %s, %s, %s op_sel:[0,0,1] op_sel_hi:[1,0,1]" % (vr(Tm(cb,hh),2), vr(Tm(cb,hh),2), vr(K0,2), vr(K0,2)))
            for cb, hh in items: k("v_pk_mul_f32 %s, %s, %s" % (vr(Tm(cb,hh),2), vr(Tm(cb,hh),2), vr(G(cb,hh),2)))
            for cb, hh in items:
                k("v_exp_f32 v%d, v%d\nv_exp_f32 v%d, v%d" % (Tm(cb,hh), Tm(cb,hh), Tm(cb,hh)+1, Tm(cb,hh)+1))
                k("v_pk_fma_f32 %s, %s, %s, %s%s neg_lo:[1,0,0] neg_hi:[1,0,0]" % (vr(U(cb,hh),2), bc(Mb), vr(S4+(ncb+cb)*4+2*hh,2), vr(U(cb,hh),2), os0))
            for cb, hh in items: k("v_pk_fma_f32 %s, %s, %s, %s op_sel:[0,%d,%d] op_sel_hi:[1,%d,%d]" % (vr(Tm(cb,hh),2), vr(Tm(cb,hh),2), bc(Sb), bc(Sb), sel, sel, sel, sel))
            for cb, hh in items:
                k("v_rcp_f32 v%d, v%d\nv_rcp_f32 v%d, v%d" % (Tm(cb,hh), Tm(cb,hh), Tm(cb,hh)+1, Tm(cb,hh)+1))
                k("v_pk_mul_f32 %s, %s, %s" % (vr(G(cb,hh),2), vr(G(cb,hh),2), vr(U(cb,hh),2)))
            for cb, hh in items: k("v_pk_mul_f32 %s, %s, %s" % (vr(G(cb,hh),2), vr(G(cb,hh),2), vr(Tm(cb,hh),2)))
            Ob = O + (bi & 1)*4 if defer is None else O[bi]
            for j_, (cb, hh) in enumerate(items): k("v_cvt_pk_bf16_f32 v%d, v%d, v%d" % (Ob+j_, G(cb,hh), G(cb,hh)+1))
            if pr_: k("s_add_u32 s%d, s%d, 4096" % (sT0, sKS))
            st_ = "buffer_store_dwordx4 %s, v%d, %s, s%d offen offset:%d%s" % (vr(Ob, 4), vSt, sq(SWS), sT0 if pr_ else sKS, b*1024, S1)
            if defer is None: k(st_)
            else: defer.append(st_)

    def a2_flag(group, nwait, va, vv):
        k("s_lshl_b32 s%d, s%d, 2\ns_lshr_b32 s%d, s%d, 1\ns_add_u32 s%d, s%d, s%d\ns_mul_i32 s%d, s%d, %d" % (sT0, sC, sT1, sJJ, sT0, sT0, sT1, sT0, sT0, FLS_))
        k("s_and_b32 s%d, s%d, 1\ns_lshl_b32 s%d, s%d, 1\ns_add_u32 s%d, s%d, s%d\ns_mul_i32 s%d, s%d, %d\ns_add_u32 s%d, s%d, s%d\ns_add_u32 s%d, s%d, 0x%x" % (sT1, sJJ, sT1, sT1, sT1, sT1, sNH, sT1, sT1, FSP, sT0, sT0, sT1, sT0, sT0, FL_OFF + group*FGS))
        k("v_mov_b32 v%d, s%d\nv_mov_b32 v%d, s%d" % (va, sT0, vv, sNon))
        k("s_waitcnt vmcnt(%d)\ns_mov_b64 exec, 1" % nwait)
        k("buffer_store_dword v%d, v%d, %s, 0 offen%s\ns_mov_b64 exec, -1" % (vv, va, sq(SWS), SC))

    CSM = opt("csm", 1)
    def cs_set(val, va, vv):
        k("s_lshl_b32 s%d, s%d, 2\ns_add_u32 s%d, s%d, %d\nv_mov_b32 v%d, s%d\nv_mov_b32 v%d, %d\nds_write_b32 v%d, v%d" % (sT0, sW, sT0, sT0, FLG+64, va, sT0, vv, val, va, vv))
    def base_loads(R):
        k("s_and_b32 s%d, s2, 7\ns_lshr_b32 s%d, s2, 3" % (sT0, sT1))
        k("s_lshr_b32 s%d, s%d, 1\ns_lshl_b32 s%d, s%d, 3\ns_and_b32 s%d, s%d, 7\ns_add_u32 s%d, s%d, s%d" % (sT3, sT0, sT3, sT3, sT2, sT1, sT3, sT3, sT2))
        k("s_and_b32 s%d, s%d, 1\ns_lshl_b32 s%d, s%d, 2\ns_lshr_b32 s%d, s%d, 3\ns_add_u32 s%d, s%d, s%d\ns_mul_i32 s%d, s%d, 80" % (sT0, sT0, sT0, sT0, sT2, sT1, sT0, sT0, sT2, sT0, sT0))
        k("s_lshl_b32 s%d, s%d, 6\ns_lshl_b32 s%d, s%d, 2\ns_add_u32 s%d, s%d, s%d" % (sT3, sT3, sT1, sW, sT3, sT3, sT1))
        ra, rb, rc = R+22, R+23, R+24
        k("v_lshrrev_b32 v%d, 2, v%d\nv_lshlrev_b32 v%d, 4, v%d\nv_and_b32 v%d, 3, v%d\nv_add3_u32 v%d, v%d, v%d, s%d" % (ra, vM, ra, ra, rb, vM, ra, ra, rb, sT3))
        k("v_lshl_add_u32 v%d, v%d, 2, s%d" % (rb, vG, sT0))
        k("v_mul_u32_u24 v%d, 640, v%d\nv_add_u32 v%d, v%d, v%d\nv_lshlrev_b32 v%d, 1, v%d\nv_lshlrev_b32 v%d, 1, v%d" % (rc, ra, rc, rc, rb, rc, rc, rb, rb))
        k("v_lshlrev_b32 v%d, 3, v%d\nv_add_u32 v%d, 0x%x, v%d" % (ra, ra, ra, RST_OFF, ra))
        for cb in range(5):
            k("global_load_dwordx2 %s, v%d, %s offset:%d" % (vr(R+2*cb, 2), rc, sp(48), cb*32))
            k("global_load_dwordx2 %s, v%d, %s offset:%d" % (vr(R+10+2*cb, 2), rb, sp(50), cb*32))
        k("v_mov_b32 v%d, v%d" % (R+98, ra))
        k("buffer_load_dwordx2 %s, v%d, %s, 0 offen%s" % (vr(R+20, 2), ra, sq(SWS), SC))
    def base_compute(R):
        k("s_setprio 0")
        ST_ = R+20; X4, D4, T4 = R+28, R+48, R+68
        k("s_mul_i32 s%d, s%d, %d\ns_add_u32 s%d, s%d, %d" % (sT0, sW, 80*TRP, sT0, sT0, TRB))
        k("v_bfe_u32 v%d, v%d, 1, 2\nv_xor_b32 v%d, v%d, v%d\nv_mul_u32_u24 v%d, 320, v%d\nv_lshl_add_u32 v%d, v%d, 4, v%d\nv_add_u32 v%d, s%d, v%d" % (R+23, vM, R+23, R+23, vG, R+22, vM, R+22, R+23, R+22, R+22, sT0, R+22))
        k("v_mov_b32 v%d, %d" % (R+23, FLG))
        wait_done("L_k1_bw%d" % R, "16", R+23, R+24)
        k("s_mov_b32 s%d, 0\nL_k1_bt:\ns_waitcnt vmcnt(0)\nv_cmp_ne_u32 vcc, s%d, v%d\ns_add_u32 s%d, s%d, 1\ns_cbranch_vccz L_k1_bto" % (sT3, sNon, ST_+1, sT3, sT3))
        k("s_cmp_gt_u32 s%d, 0x40000\ns_cbranch_scc1 L_k1_bto\ns_sleep 8\nbuffer_load_dwordx2 %s, v%d, %s, 0 offen%s\ns_branch L_k1_bt\nL_k1_bto:" % (sT3, vr(R+20, 2), R+98, sq(SWS), SC))
        k("v_and_b32 v%d, s%d, v%d\nv_lshlrev_b32 v%d, 16, v%d\nv_rcp_f32 v%d, v%d" % (ST_+1, sMASK, ST_, ST_, ST_, ST_+1, ST_+1))
        for d in range(10): k("v_lshlrev_b32 v%d, 16, v%d\nv_and_b32 v%d, s%d, v%d\nv_lshlrev_b32 v%d, 16, v%d\nv_and_b32 v%d, s%d, v%d" % (X4+2*d, R+d, X4+2*d+1, sMASK, R+d, D4+2*d, R+10+d, D4+2*d+1, sMASK, R+10+d))
        def rnd():
            for h in range(10): k("v_cvt_pk_bf16_f32 v%d, v%d, v%d" % (T4+20+h, T4+2*h, T4+2*h+1))
            for h in range(10): k("v_lshlrev_b32 v%d, 16, v%d\nv_and_b32 v%d, s%d, v%d" % (T4+2*h, T4+20+h, T4+2*h+1, sMASK, T4+20+h))
        for r in range(20): k("v_sub_f32 v%d, v%d, v%d" % (T4+r, X4+r, ST_))
        rnd()
        for r in range(20): k("v_mul_f32 v%d, v%d, v%d" % (T4+r, T4+r, ST_+1))
        rnd()
        for r in range(20): k("v_mul_f32 v%d, v%d, v%d" % (T4+r, T4+r, D4+r))
        rnd()
        for r in range(20): k("v_add_f32 v%d, v%d, v%d" % (T4+r, T4+r, X4+r))
        if opt("perturb", 0):
            for r in range(20): k("v_add_f32 v%d, %s, v%d" % (T4+r, f32(opt("perturb", 0)/1000.), T4+r))
        for cb in range(5): k("ds_write_b128 v%d, %s offset:%d" % (R+22, vr(T4+4*cb, 4), cb*64))
        k("s_waitcnt lgkmcnt(0)")

    def ffn_frag(ACCF, idx, areg, gu):
        rd = lambda h, reg: ["ds_read_b64_tr_b16 %s, v%d offset:%d" % (vr(reg+2*jx, 2), areg, h*4096+jx*512+gu*8192) for jx in range(2)]
        mf = lambda b, x, w: "v_mfma_f32_16x16x32_bf16 %s, %s, %s, %s" % (vr(ACCF+(idx*4+b)*4, 4), vr(w, 4), vr(x, 4), vr(ACCF+(idx*4+b)*4, 4))
        return (rd, mf)

    k("s_lshl_b32 s%d, s%d, 14" % (sT0, sNH))
    k("v_add_u32 v%d, s%d, v%d" % (aW[0], sT0, vT[0]))
    for c in range(1, 4): k("v_xor_b32 v%d, %d, v%d" % (aW[c], 32*c, aW[0]))
    k("s_lshr_b32 s%d, s%d, 5\ns_lshl_b32 s%d, s%d, 1\ns_add_u32 s%d, s%d, s%d\ns_mul_i32 s%d, s%d, 88\ns_add_u32 s%d, s%d, s%d\ns_lshl_b32 s%d, s%d, 12" % (sT0, sCol, sT1, sNH, sT0, sT0, sT1, sT1, sC, sT0, sT0, sT1, sKS, sT0))
    for r in range(0, 128, 2): k("v_mov_b64 v[%d:%d], 0" % (ACC+r, ACC+r+1))
    srd(k, SWS, pWs, WS_NREC)
    E = 212
    S4 = E; Mb, RSb, Sb = XS[0], XS[0]+4, XS[0]+8; K0 = XS[0]+12
    def postA():
        o = ["s_lshl_b32 s%d, s%d, 9\ns_add_u32 s%d, s%d, %d\nv_lshl_add_u32 v%d, v%d, 4, s%d" % (sT0, sNH, sT0, sT0, SFF, vT[1], vG, sT0),
             "s_mul_i32 s%d, s%d, 768\ns_add_u32 s%d, s%d, %d\nv_lshl_add_u32 v%d, v%d, 2, s%d" % (sT0, sMH, sT0, sT0, STAT_M, vT[2], vM, sT0)]
        for b in range(0, 4, 2):
            for a, off in ((Mb, 0), (RSb, 64), (Sb, 128)):
                o.append("ds_read2_b32 %s, v%d offset0:%d offset1:%d" % (vr(a+b, 2), vT[2], off+b*16, off+b*16+16))
        for j in range(8): o.append("ds_read_b128 %s, v%d offset:%d" % (vr(S4+4*j, 4), vT[1], j*64))
        o += ["v_lshlrev_b32 v%d, 4, v%d" % (vT[3], vL), "v_mov_b32 v%d, %s\nv_mov_b32 v%d, %s" % (K0, f32(c0*0.044715), K0+1, f32(c0))]
        return o
    fr = []
    for cb in range(4):
        for gu in range(2): fr.append(ffn_frag(ACC, gu*4+cb, aW[cb], gu))
    c_loop("A", fr, 8, opt("da", 5), WR, aX + aW, postA)
    stamp(k, 1)
    k("s_waitcnt lgkmcnt(0)")
    blk = [(b, p) for p in range(2) for b in range(4)]
    HF = opt("hf", 6)
    ffn_epilogue(ACC, 4, S4, Mb, RSb, Sb, E+32, XS[1], K0, vT[3], blk[:HF])
    a2_flag(0, HF-4, vT[0], vT[1])
    ffn_epilogue(ACC, 4, S4, Mb, RSb, Sb, E+32, XS[1], K0, vT[3], blk[HF:])
    stamp(k, 2)
    cs_set(1, vT[0], vT[1])
    a2_flag(3, 0, vT[0], vT[1])
    stamp(k, 4)
    k("s_branch L_k1_base")

    k("L_k1_CB:")
    WRB = 52
    ACCF = 76
    ACCS = 140
    ca = Alloc(220)
    cLr = ca(5); cMu = ca(5); cKk = ca(5); c16r = ca(5); c16k = ca(5); cKr = ca(10, 2)
    assert ca.n <= (255 if TRACE else 256) + 1
    k("s_lshl_b32 s%d, s%d, 6" % (sT0, sNH))
    k("v_xor_b32 v%d, s%d, v%d\nv_xor_b32 v%d, 32, v%d" % (aW[0], sT0, vT[0], aW[1], aW[0]))
    k("s_mul_i32 s%d, s%d, 10240\ns_add_u32 s%d, s%d, 32768" % (sT0, sNH, sT0, sT0))
    k("v_add_u32 v%d, s%d, v%d\nv_xor_b32 v%d, 64, v%d" % (aW[2], sT0, vT[5], aW[3], aW[2]))
    P = XS[0]
    param_loads(P, sNH, vT[0])
    k("s_lshr_b32 s%d, s%d, 5\ns_add_u32 s%d, s%d, s%d\ns_mul_i32 s%d, s%d, 88\ns_add_u32 s%d, s%d, s%d\ns_lshl_b32 s%d, s%d, 12" % (sT0, sCol, sT0, sT0, sNH, sT1, sC, sT0, sT0, sT1, sKS, sT0))
    srd(k, SWS, pWs, WS_NREC)
    for r in range(0, 144, 2): k("v_mov_b64 v[%d:%d], 0" % (ACCF+r, ACCF+r+1))
    k("s_lshl_b32 s%d, s%d, 1\ns_add_u32 s%d, s%d, s%d\ns_lshl_b32 s%d, s%d, 14\ns_add_u32 s%d, s%d, 0x%x" % (sT2, sJJ, sT2, sT2, sNH, sT0, sT2, sT0, sT0, CAR_OFF))
    srd(k, SP0, pWs, 16384, "s%d" % sT0)
    HST = 4224
    k("s_mul_i32 s%d, s%d, %d\ns_add_u32 s58, s%d, 0x%x\ns_lshr_b32 s%d, s%d, 2\ns_mul_i32 s%d, s%d, %d\ns_add_u32 s%d, s%d, s58\ns_add_u32 s54, s%d, s%d\ns_addc_u32 s55, s%d, 0" % (sT0, sT2, 8*HST, sT0, CH_OFF, sT0, sC, sT0, sT0, HST, sT0, sT0, pWs, sT0, pWs+1))
    k("s_lshl_b32 s%d, s%d, 2\ns_add_u32 s58, s58, s%d" % (sT0, sC, sT0))
    k("s_add_u32 s%d, s%d, 1\ns_lshr_b32 s%d, s%d, 1\ns_lshl_b32 s59, 1, s%d\ns_sub_u32 s59, s59, 1" % (sT0, sC, sT0, sT0, sT0))
    if not opt("hint", 1): k("s_mov_b32 s59, 0")
    sSS = [68, 69, 70, 71, 79]
    k("s_mul_i32 s%d, s%d, 88\ns_add_u32 s%d, s%d, 48\ns_lshl_b32 s%d, s%d, 12" % (sT3, sC, sT3, sT3, sT3, sT3))
    k("s_mul_i32 s%d, s%d, 10\ns_mul_i32 s%d, s%d, 5\ns_add_u32 s%d, s%d, s%d" % (sT2, sJJ, sT0, sNH, sT2, sT2, sT0))
    for q in range(5):
        k("s_add_u32 s%d, s%d, %d\ns_lshr_b32 s%d, s%d, 1\ns_lshl_b32 s%d, s%d, 12\ns_and_b32 s%d, s%d, 1\ns_lshl_b32 s%d, s%d, 9" % (sT0, sT2, q, sT1, sT0, sT1, sT1, sT0, sT0, sT0, sT0))
        k("s_add_u32 s%d, s%d, s%d\ns_add_u32 s%d, s%d, s%d" % (sT0, sT0, sT1, sSS[q], sT0, sT3))
    k("s_waitcnt vmcnt(0)")
    lre, lim, t0, t1, cA2, cBt = P, P+5, P+16, P+21, P+32, P+37
    KR = [cKr+2*q for q in range(5)]
    param_ab(P, cA2, cBt, vT[4])
    cpow5(r5(cLr), r5(cMu), "1.0", t0, t1, cA2, cBt)
    cpow5(r5(c16r), r5(c16k), f32(16.0), t0, t1, cA2, cBt)
    for q in range(5): k("v_add_f32 v%d, -1.0, v%d\nv_mul_f32 v%d, v%d, v%d" % (t0+q, cLr+q, t1+q, lre+q, lre+q))
    for q in range(5): k("v_fmac_f32 v%d, v%d, v%d" % (t1+q, lim+q, lim+q))
    for q in range(5): k("v_rcp_f32 v%d, v%d" % (t1+q, t1+q))
    for q in range(5): k("v_mul_f32 v%d, v%d, v%d\nv_mul_f32 v%d, v%d, v%d" % (KR[q], t0+q, lre+q, cKk+q, cMu+q, lre+q))
    for q in range(5): k("v_fmac_f32 v%d, v%d, v%d\nv_fma_f32 v%d, -v%d, v%d, v%d" % (KR[q], cMu+q, lim+q, cKk+q, t0+q, lim+q, cKk+q))
    for q in range(5): k("v_add_f32 v%d, v%d, v%d" % (t1+q, t1+q, t1+q))
    for q in range(5): k("v_mul_f32 v%d, v%d, v%d\nv_mul_f32 v%d, v%d, v%d" % (KR[q], KR[q], t1+q, cKk+q, cKk+q, t1+q))
    for s in range(1, 4): k("v_cmp_eq_u32 %s, %d, v%d" % (sp(16+2*s), s, vG))
    def ssm_frag(q):
        rd = lambda h, reg: ["ds_read_b128 %s, v%d offset:%d" % (vr(reg, 4), aW[2+h], q*2048)]
        mf = lambda b, x, w: "v_mfma_f32_16x16x32_bf16 %s, %s, %s, %s" % (vr(ACCS+(q*4+b)*4, 4), vr(x, 4), vr(w, 4), vr(ACCS+(q*4+b)*4, 4))
        return (rd, mf)
    fr = [ssm_frag(q) for q in range(5)]
    for cb in range(2):
        for gu in range(2): fr.append(ffn_frag(ACCF, gu*2+cb, aW[cb], gu))
    M4 = XS[0]
    SQ = [247, 249, 251, 253, 245]
    def postB():
        o = ["s_mul_i32 s%d, s%d, 768\ns_add_u32 s%d, s%d, %d\nv_lshl_add_u32 v%d, v%d, 4, s%d\nv_lshl_add_u32 v%d, v%d, 2, s%d" % (sT0, sMH, sT0, sT0, STAT_M, vT[3], vG, sT0, vT[2], vM, sT0),
             "s_mul_i32 s%d, s%d, 384\ns_add_u32 s%d, s%d, %d\nv_lshl_add_u32 v%d, v%d, 2, s%d" % (sT0, sNH, sT0, sT0, SSS, vT[1], vM, sT0)]
        for b in range(4): o.append("ds_read_b128 %s, v%d offset:%d" % (vr(M4+4*b, 4), vT[3], b*64))
        for q in range(5): o.append("ds_read_b32 v%d, v%d offset:%d" % (SQ[q], vT[1], q*64))
        return o
    c_loop("B", fr, 6, opt("db", 5), WRB, aX + aW, postB)
    stamp(k, 1)
    RS4 = XS[1]
    for b in range(4): k("ds_read_b128 %s, v%d offset:%d" % (vr(RS4+4*b, 4), vT[3], 256+b*64))
    Z = [[ACCS + (q*4 + (t >> 2))*4 + (t & 3) for t in range(16)] for q in range(5)]
    H = [[52+q, 57+q] for q in range(5)]
    k("s_waitcnt lgkmcnt(4)")
    for t in range(0, 16, 2):
        for q in range(5): k("v_pk_fma_f32 %s, %s, %s, %s op_sel:[0,1,0] op_sel_hi:[1,1,1] neg_lo:[1,0,0] neg_hi:[1,0,0]" % (vr(Z[q][t], 2), vr(M4+t, 2), vr(SQ[q]-1, 2), vr(Z[q][t], 2)))
    k("s_waitcnt lgkmcnt(0)")
    for t in range(16):
        if t % 2 == 0:
            for q in range(5): k("v_pk_mul_f32 %s, %s, %s" % (vr(Z[q][t], 2), vr(RS4+t, 2), vr(Z[q][t], 2)))
        if t >= 1:
            prev = [Z[q][0] if t == 1 else H[q][t & 1] for q in range(5)]
            cur = [H[q][(t+1) & 1] for q in range(5)]
            for q in range(5): k("v_fma_f32 v%d, v%d, v%d, v%d" % (cur[q], cLr+q, prev[q], Z[q][t]))
            for q in range(5): k("v_fmac_f32_dpp v%d, v%d, v%d%s" % (cur[q], prev[q], cMu+q, DPP))
    a_ = [H[q][0] for q in range(5)]; b_ = [H[q][1] for q in range(5)]
    c_ = r5(20)
    TOT = 28
    d_ = [TOT, TOT+1, TOT+2, TOT+4, TOT+5]
    MINE = [12, 13, 14, 15, 16]
    S4 = 36; Mb, RSb, Sb = 62, 66, 70; K0 = 74
    def ffn_inputs():
        k("s_lshl_b32 s%d, s%d, 9\ns_add_u32 s%d, s%d, %d\nv_lshl_add_u32 v%d, v%d, 4, s%d" % (sT0, sNH, sT0, sT0, SFF, vT[0], vG, sT0))
        for b in range(0, 4, 2):
            for a, off in ((Mb, 0), (RSb, 64), (Sb, 128)):
                k("ds_read2_b32 %s, v%d offset0:%d offset1:%d" % (vr(a+b, 2), vT[2], off+b*16, off+b*16+16))
        for j in range(4): k("ds_read_b128 %s, v%d offset:%d" % (vr(S4+4*j, 4), vT[0], j*64))
        k("v_mov_b32 v%d, %s\nv_mov_b32 v%d, %s" % (K0, f32(c0*0.044715), K0+1, f32(c0)))
    ffn_inputs()
    for q in range(5): k("v_mov_b32 v%d, v%d" % (b_[q], a_[q]))
    for q in range(5): k("v_permlane16_swap_b32 v%d, v%d" % (a_[q], b_[q]))
    for q in range(5): k("v_mov_b32 v%d, v%d\nv_mov_b32 v%d, v%d" % (c_[q], a_[q], d_[q], b_[q]))
    for q in range(5): k("v_permlane32_swap_b32 v%d, v%d\nv_permlane32_swap_b32 v%d, v%d" % (a_[q], c_[q], b_[q], d_[q]))
    seq = [a_, b_, c_, d_]
    k("v_mov_b32 v%d, s%d\nv_mov_b32 v%d, s%d" % (TOT+3, sNon, TOT+7, sNon))
    k("s_lshl_b32 s%d, s%d, 9" % (sT0, sC))
    k("v_lshlrev_b32 v%d, 4, v%d\nv_mul_u32_u24 v19, %d, v%d" % (vT[1], vM, HST, vM))
    for s in range(1, 4):
        for q in range(5): k("v_fmac_f32 v%d, v%d, v%d" % (seq[s][q], c16r+q, seq[s-1][q]))
        for q in range(5): k("v_fmac_f32_dpp v%d, v%d, v%d%s" % (seq[s][q], seq[s-1][q], c16k+q, DPP))
    k("s_mov_b64 exec, 0xffff")
    k("buffer_store_dwordx4 %s, v%d, %s, s%d offen%s" % (vr(TOT, 4), vT[1], sq(SP0), sT0, SC))
    k("buffer_store_dwordx4 %s, v%d, %s, s%d offen offset:256%s" % (vr(TOT+4, 4), vT[1], sq(SP0), sT0, SC))
    k("s_mov_b64 exec, 0xff")
    k("buffer_store_dword v%d, v19, %s, s58 offen%s" % (TOT+3, sq(SWS), SC))
    k("s_mov_b64 exec, -1")
    k("s_mov_b32 s56, s%d\ns_mov_b32 s57, s%d" % (sNon, sNon))
    cs_set(1, 17, 18)
    stamp(k, 2)
    for q in range(5): k("v_cndmask_b32 v%d, 0, v%d, %s" % (MINE[q], a_[q], sp(18)))
    for q in range(5): k("v_cndmask_b32 v%d, v%d, v%d, %s" % (MINE[q], MINE[q], b_[q], sp(20)))
    for q in range(5): k("v_cndmask_b32 v%d, v%d, v%d, %s" % (MINE[q], MINE[q], c_[q], sp(22)))
    k("v_lshlrev_b32 v%d, 4, v%d" % (vT[3], vL))
    k("s_waitcnt lgkmcnt(0)")
    dst_ = []
    DFR = opt("dfr", 0)
    for b in range(4):
        if b == 3: k("s_load_dwordx16 s[16:31], s[54:55], 0 glc\ns_load_dwordx16 s[32:47], s[54:55], 64 glc")
        ffn_epilogue(ACCF, 2, S4, Mb, RSb, Sb, 20, [[236, 240, 52, 56][b]], K0, vT[3], [(b, 0)], defer=dst_)
        if not DFR: k(dst_.pop())
    def hint_check():
        k("s_waitcnt lgkmcnt(0)\ns_mov_b32 s%d, 0" % sT0)
        for j in range(15, -1, -1): k("s_cmp_lg_u64 %s, s[56:57]\ns_addc_u32 s%d, s%d, s%d" % (sp(16+2*j), sT0, sT0, sT0))
        k("s_and_b32 s%d, s%d, s59" % (sT0, sT0))
    if not opt("clk", 0): stamp(k, 6)
    PRb = [ACCF + u*8 for u in range(8)]
    k("s_sub_u32 s%d, s%d, 1" % (sT0, sC))
    k("v_sub_u32 v%d, s%d, v%d\nv_lshlrev_b32 v%d, 9, v%d\nv_lshl_add_u32 v%d, v%d, 4, v%d" % (vT[1], sT0, vG, vT[1], vT[1], vT[1], vM, vT[1]))
    def pred_loads():
        for u in range(8):
            if u: k("v_subrev_u32 v%d, %d, v%d" % (vT[0], u*2048, vT[1]))
            a = vT[0] if u else vT[1]
            k("buffer_load_dwordx4 %s, v%d, %s, 0 offen%s" % (vr(PRb[u], 4), a, sq(SP0), PSC_))
            k("buffer_load_dwordx4 %s, v%d, %s, 0 offen offset:256%s" % (vr(PRb[u]+4, 4), a, sq(SP0), PSC_))
    hint_check()
    k("s_mov_b32 s%d, s%d\ns_cbranch_scc1 L_k1_npl" % (sDelta, sT0))
    pred_loads()
    k("L_k1_npl:")
    for x in dst_: k(x)
    k("s_mul_i32 s%d, s%d, %d\ns_add_u32 s%d, s%d, %d" % (sKx, sW, 80*TRP, sKx, sKx, TRB))
    k("v_add_u32 v%d, s%d, v%d" % (vT[4], sKx, vT[3]))
    for qd in range(3): k("ds_read_b128 %s, v%d offset:%d" % (vr(32+4*qd, 4), vT[4], qd*1024))
    L256r, L256k = r5(32), r5(37)
    free = [20+2*q for q in range(5)]
    for t in range(0, 16, 2):
        nf = []
        for q in range(5): k("v_pk_mul_f32 %s, %s, %s op_sel_hi:[0,1]" % (vr(free[q], 2), vr(KR[q], 2), vr(Z[q][t], 2)))
        for e in range(2):
            for q in range(5): k("v_fmac_f32_dpp v%d, v%d, v%d%s" % (free[q]+e, Z[q][t]+e, cKk+q, DPP))
        for q in range(5):
            nf.append(Z[q][t]); Z[q][t] = free[q]; Z[q][t+1] = free[q]+1
        free = nf
    t0, t1 = 30, 31
    k("s_mov_b32 s%d, 0\ns_cmp_eq_u32 s%d, 0\ns_cbranch_scc1 L_k1_early" % (sRd, sDelta))
    k("s_load_dwordx16 s[16:31], s[54:55], 0 glc\ns_load_dwordx16 s[32:47], s[54:55], 64 glc")
    hint_check()
    k("s_cbranch_scc0 L_k1_hd")
    a2_flag(1, 0, 30, 31)
    stamp(k, 7)
    k("s_mov_b32 s%d, 1\ns_mov_b32 s%d, 0" % (sRd, sT3))
    k("L_k1_hr:")
    k("s_load_dwordx16 s[16:31], s[54:55], 0 glc\ns_load_dwordx16 s[32:47], s[54:55], 64 glc")
    hint_check()
    k("s_cbranch_scc0 L_k1_hd\ns_sleep %d\ns_add_u32 s%d, s%d, 1\ns_cmp_lt_u32 s%d, 0x100000\ns_cbranch_scc1 L_k1_hr" % (opt("hsl", 3), sT3, sT3, sT3))
    k("L_k1_hd:")
    pred_loads()
    if DFR:
        k("s_mov_b32 s%d, 0\ns_branch L_k1_poll" % sT3)
        k("L_k1_early:")
        k("s_mov_b32 s%d, 0\ns_waitcnt vmcnt(4)\ns_branch L_k1_poll2" % sT3)
    else:
        k("s_mov_b32 s%d, 0\ns_cmp_lg_u32 s%d, 0\ns_cbranch_scc1 L_k1_poll" % (sT3, sRd))
        k("L_k1_early:")
        a2_flag(1, 16, 30, 31)
        stamp(k, 7)
        k("s_mov_b32 s%d, 0\ns_waitcnt vmcnt(1)\ns_branch L_k1_poll2" % sT3)
    k("L_k1_poll:")
    k("s_waitcnt vmcnt(0)")
    k("L_k1_poll2:")
    k("s_mov_b32 s%d, 0" % sT2)
    for u in range(8):
        k("v_cmp_ne_u32 s[24:25], s%d, v%d\nv_cmp_ne_u32 s[26:27], s%d, v%d\nv_cmp_le_i32 vcc, %d, v%d" % (sNon, PRb[u]+3, sNon, PRb[u]+7, u*2048, vT[1]))
        k("s_or_b64 s[24:25], s[24:25], s[26:27]\ns_and_b64 s[24:25], s[24:25], vcc\ns_cbranch_scc0 L_k1_pu%d" % u)
        k("s_cmp_lg_u32 s%d, 0\ns_cbranch_scc1 L_k1_ps%d\ns_sleep %d\nL_k1_ps%d:" % (sT2, u, opt("csl", 8), u))
        k("s_mov_b32 s%d, 1" % sT2)
        k("v_subrev_u32 v%d, %d, v%d" % (vT[0], u*2048, vT[1]))
        k("s_mov_b64 exec, s[24:25]")
        k("buffer_load_dwordx4 %s, v%d, %s, 0 offen%s" % (vr(PRb[u], 4), vT[0], sq(SP0), PSC_))
        k("buffer_load_dwordx4 %s, v%d, %s, 0 offen offset:256%s" % (vr(PRb[u]+4, 4), vT[0], sq(SP0), PSC_))
        k("s_mov_b64 exec, -1")
        k("L_k1_pu%d:" % u)
    k("s_add_u32 s%d, s%d, 1\ns_cmp_eq_u32 s%d, 0\ns_cbranch_scc1 L_k1_polled" % (sT3, sT3, sT2))
    k("s_cmp_lt_u32 s%d, 0x40000\ns_cbranch_scc1 L_k1_poll" % sT3)
    k("L_k1_polled:")
    if CSM & 2: cs_set(0, 17, 18)
    if not opt("clk", 0): stamp(k, 3)
    pr = lambda u, q: PRb[u]+(q if q < 3 else q+1)
    k("s_waitcnt lgkmcnt(0)")
    for u in range(6, -1, -1):
        for q in range(5): k("v_fmac_f32 v%d, v%d, v%d" % (pr(u, q), L256r[q], pr(u+1, q)))
        for q in range(5): k("v_fmac_f32_dpp v%d, v%d, v%d%s" % (pr(u, q), pr(u+1, q), L256k[q], DPP))
        if u == 4:
            for qd in range(5): k("ds_read_b128 %s, v%d offset:%d" % (vr(PRb[5]+4*qd, 4), vT[4], (3+qd)*1024))
    L64r, L64k, Psr, Psk = r5(PRb[5]), r5(PRb[5]+5), r5(PRb[5]+10), r5(PRb[5]+15)
    k("s_waitcnt lgkmcnt(0)")
    for q in range(5): k("v_mul_f32 v%d, v%d, v%d" % (pr(1, q), L64r[q], pr(0, q)))
    for q in range(5): k("v_fmac_f32_dpp v%d, v%d, v%d%s" % (pr(1, q), pr(0, q), L64k[q], DPP))
    for sw in ("v_permlane16_swap_b32", "v_permlane32_swap_b32"):
        for q in range(5): k("v_mov_b32 v%d, v%d" % (pr(2, q), pr(1, q)))
        for q in range(5): k("%s v%d, v%d" % (sw, pr(1, q), pr(2, q)))
        for q in range(5): k("v_add_f32 v%d, v%d, v%d" % (pr(1, q), pr(1, q), pr(2, q)))
    for q in range(5): k("v_fmac_f32 v%d, v%d, v%d" % (MINE[q], Psr[q], pr(1, q)))
    for q in range(5): k("v_fmac_f32_dpp v%d, v%d, v%d%s" % (MINE[q], pr(1, q), Psk[q], DPP))
    CIN = [f for f in free]
    for q in range(5): k("v_mul_f32 v%d, v%d, v%d" % (CIN[q], KR[q], MINE[q]))
    for q in range(5): k("v_fmac_f32_dpp v%d, v%d, v%d%s" % (CIN[q], MINE[q], cKk+q, DPP))
    PK = 32
    OUTQ = [ACCF + 4*j for j in range(10)]
    k("v_mul_u32_u24 v%d, %d, v%d\nv_lshl_add_u32 v%d, v%d, 5, v%d\nv_add_u32 v%d, s%d, v%d" % (vT[1], TRP, vM, vT[1], vG, vT[1], vT[1], sKx, vT[1]))
    k("v_and_b32 v%d, 1, v%d\nv_lshrrev_b32 v%d, 2, v%d\nv_lshl_add_u32 v%d, v%d, 3, v%d\nv_mul_u32_u24 v%d, %d, v%d" % (vT[0], vG, vT[4], vM, vT[0], vT[0], vT[4], vT[0], TRP, vT[0]))
    k("v_and_b32 v%d, 3, v%d\nv_lshl_add_u32 v%d, v%d, 5, v%d" % (vT[4], vM, vT[0], vT[4], vT[0]))
    k("v_lshrrev_b32 v%d, 1, v%d\nv_lshl_add_u32 v%d, v%d, 3, v%d\nv_add_u32 v%d, s%d, v%d" % (vT[5], vG, vT[0], vT[5], vT[0], vT[0], sKx, vT[0]))
    k("v_and_b32 v%d, 31, v%d\nv_lshlrev_b32 v%d, 4, v%d\nv_lshl_add_u32 v%d, v%d, 10, v%d" % (vT[4], vL, vT[4], vT[4], vT[4], vT[5], vT[4]))
    def tr_reads(bp):
        for q in range(5):
            o = OUTQ[bp*5+q]
            k("ds_read_b64_tr_b16 %s, v%d offset:%d\nds_read_b64_tr_b16 %s, v%d offset:%d" % (vr(o, 2), vT[0], q*16*TRP+bp*16, vr(o+2, 2), vT[0], q*16*TRP+bp*16+4*TRP))
    def tr_stores(bp, waits):
        for q in range(5):
            if waits: k("s_waitcnt lgkmcnt(%d)" % (8-2*q))
            k("buffer_store_dwordx4 %s, v%d, %s, s%d offen offset:%d%s" % (vr(OUTQ[bp*5+q], 4), vT[4], sq(SWS), sSS[q], bp*2048, S1))
    for t in range(16):
        if DFR and t == opt("fft", 2):
            k("s_cmp_lg_u32 s%d, 0\ns_cbranch_scc1 L_k1_ffd" % sRd)
            a2_flag(1, 0, 30, 31)
            stamp(k, 7)
            k("L_k1_ffd:")
        prev = [CIN[q] if t == 0 else Z[q][t-1] for q in range(5)]
        for q in range(5): k("v_fmac_f32 v%d, v%d, v%d" % (Z[q][t], cLr+q, prev[q]))
        for q in range(5): k("v_fmac_f32_dpp v%d, v%d, v%d%s" % (Z[q][t], prev[q], cMu+q, DPP))
        if t & 1:
            for q in range(5): k("v_cvt_pk_bf16_f32 v%d, v%d, v%d" % (PK+8*q+(t >> 1), Z[q][t-1], Z[q][t]))
        if t == 8:
            for q in range(5): k("ds_write_b128 v%d, %s offset:%d" % (vT[1], vr(PK+8*q, 4), q*16*TRP))
        if t == 10: tr_reads(0)
        if t == 13:
            k("s_waitcnt lgkmcnt(0)")
            tr_stores(0, False)
    for q in range(5): k("ds_write_b128 v%d, %s offset:%d" % (vT[1], vr(PK+8*q+4, 4), q*16*TRP+16))
    tr_reads(1)
    tr_stores(1, True)
    if CSM & 2: cs_set(1, 17, 18)
    a2_flag(2, 0, vT[0], vT[1])
    stamp(k, 4)
    k("L_k1_base:")
    base_loads(140)
    k("L_k1_base2:")
    base_compute(140)
    finish(100)
    k("L_k1_end:")
    k("s_endpgm")
    return k

if __name__ == "__main__":
    ref = open("parallel_sum__ssm_conv_s5__geglu_ffn__prompt.s.ref").read().split("\n")
    hdr = [l for l in ref if l.startswith(";") and "@launch" not in l and "Override" not in l and "grid=ceil" not in l]
    hdr += ["; @launch grid=(256,1,1) block=(512,1,1) lds=163840"]
    out = [a for a in sys.argv[1:] if not a.startswith("--")][0]
    gen2.TRACE = False
    open(out, "w").write(emit_file(hdr, [(gen_k1(), dict(vgpr=256, accum=256))]))
```

```python
import sys, struct, math
from asmgen import *
import gen2
from gen2 import (A2_OFF, B2_OFF, CAR_OFF, RST_OFF, SB_OFF, SG_OFF, STAMP_OFF, WS_NREC, SL, SPARE, TRP, f32, vr, sq, sp, ror, DPP, SC,
                  Alloc, interleave, srd, stamp, stamp_out, opt, ARG, STAMPS, LOG2E,
                  pX, pLre, pLim, pBre, pBim, pCre, pCim, pLdt, pD, pBx, pG, pU, pDn, pOut, pDbg, pWs)
STAT_M = SPARE
SFF = SPARE + 1536
SSS = SPARE + 2560
TRB = SL
FLG = SPARE + 3968
PF_OFF = 0x1130000
FL_OFF = 0x1160000
CH_OFF = 0x1040000
TRACE = "--trace" in ARG
S1 = [" sc1", " sc0 sc1", " sc1 nt", ""][opt("st2", 0)]
if opt("sc", 1): SC = " sc1"
FSP = 4
FGS = 16
FLS_ = opt("fls", 4224)
PSC_ = [" sc1", " sc0 sc1"][opt("psc", 0)]
KNAME = "parallel_sum__ssm_conv_s5__geglu_ffn__prompt_kernel"

def gen_k1():
    k = Kern(KNAME)
    sW, sMH, sNH, sI, sJJ, sTY = 3, 4, 5, 6, 7, 8
    sT0, sT1, sT2, sT3 = 9, 10, 11, 12
    sMASK = 13
    SX, SW0, SW1, SWS, SP0, SP1 = 48, 52, 56, 60, 64, 68
    sKx, sKw, sDst, sDelta, sIt, sRd, sA, sB, sKS, sC, sNon, sCol = range(72, 84)
    k("s_cmp_ge_u32 s2, 256\ns_cbranch_scc1 L_k1_end")
    k("s_load_dwordx16 s[16:31], s[0:1], 0\ns_load_dwordx16 s[32:47], s[0:1], 64")
    vL, vM, vG, vII, vSL = 1, 2, 3, 4, 5
    vT = [6, 7, 8, 9, 10, 11]
    k("v_lshrrev_b32 v%d, 6, v0" % vT[0])
    k("v_and_b32 v%d, 63, v0" % vL)
    k("v_readfirstlane_b32 s%d, v%d" % (sW, vT[0]))
    k("s_cmp_ge_u32 s%d, 6\ns_cbranch_scc1 L_k1_D" % sW)
    k("s_cmp_lt_u32 s%d, 4\ns_cbranch_scc1 L_k1_C" % sW)
    def decode():
        stamp(k, 0)
        if TRACE: k("v_mov_b32 v255, 0")
        k("v_and_b32 v%d, 15, v0\nv_lshrrev_b32 v%d, 4, v%d" % (vM, vG, vL))
        k("v_lshrrev_b32 v%d, 3, v%d\nv_and_b32 v%d, 7, v0" % (vII, vL, vSL))
        k("s_bfe_u32 s%d, s2, 0x10002\ns_lshl_b32 s%d, s%d, 3\ns_bfe_u32 s%d, s2, 0x30003\ns_add_u32 s%d, s%d, s%d" % (sI, sI, sI, sT2, sI, sI, sT2))
        k("s_and_b32 s%d, s2, 3\ns_lshl_b32 s%d, s%d, 1\ns_lshr_b32 s%d, s2, 7\ns_add_u32 s%d, s%d, s%d\ns_bfe_u32 s%d, s2, 0x10006" % (sJJ, sJJ, sJJ, sT2, sJJ, sJJ, sT2, sTY))
        k("s_mov_b32 s%d, 0xffff0000" % sMASK)
        k("s_and_b32 s%d, s%d, 1\ns_bfe_u32 s%d, s%d, 0x10001" % (sMH, sW, sNH, sW))
        k("s_lshl_b32 s%d, s%d, 7\ns_lshl_b32 s%d, s%d, 6\ns_add_u32 s%d, s%d, 1024\ns_cmp_eq_u32 s%d, 0\ns_cselect_b32 s%d, s%d, s%d" % (sT0, sJJ, sT1, sJJ, sT1, sT1, sTY, sCol, sT0, sT1))
    decode()

    def bf16r(d, s):
        k("v_cvt_pk_bf16_f32 v%d, v%d, v%d\nv_lshlrev_b32 v%d, 16, v%d" % (d, s, s, d, d))
    r5 = lambda b: [b+q for q in range(5)]
    def cpow5(dr, dk, n, t0, t1, cA2, cBt):
        R5 = range(5)
        for q in R5: k("v_mul_f32 v%d, %s, v%d\nv_mul_f32 v%d, %s, v%d" % (t0+q, n, cA2+q, t1+q, n, cBt+q))
        for q in R5: k("v_exp_f32 v%d, v%d\nv_rndne_f32 v%d, v%d" % (t0+q, t0+q, dr[q], t1+q))
        for q in R5: k("v_sub_f32 v%d, v%d, v%d" % (t1+q, t1+q, dr[q]))
        for q in R5: k("v_cos_f32 v%d, v%d\nv_sin_f32 v%d, v%d" % (dr[q], t1+q, dk[q], t1+q))
        for q in R5: k("v_mul_f32 v%d, v%d, v%d\nv_mul_f32 v%d, v%d, v%d" % (dr[q], dr[q], t0+q, dk[q], dk[q], t0+q))
    def param_loads(P, snh, va):
        k("s_mul_i32 s%d, s%d, 80\ns_mul_i32 s%d, s%d, 40\ns_add_u32 s%d, s%d, s%d" % (sT0, sJJ, sT1, snh, sT1, sT1, sT0))
        k("v_add_u32 v%d, s%d, v%d\nv_lshlrev_b32 v%d, 1, v%d" % (va, sT1, vSL, va, va))
        for q in range(5):
            for n, p in enumerate((pLre, pLim, pLdt)):
                k("global_load_ushort v%d, v%d, %s offset:%d" % (P+n*5+q, va, sp(p), q*16))
    def param_ab(P, cA2, cBt, vs):
        lre, lim, ldt = P, P+5, P+10
        k("v_lshrrev_b32 v%d, 3, v%d\nv_xor_b32 v%d, 1, v%d\nv_lshlrev_b32 v%d, 31, v%d" % (vs, vM, vs, vs, vs, vs))
        for q in range(15): k("v_lshlrev_b32 v%d, 16, v%d" % (P+q, P+q))
        for q in range(5): k("v_xor_b32 v%d, v%d, v%d\nv_mul_f32 v%d, %s, v%d" % (lim+q, lim+q, vs, ldt+q, f32(LOG2E), ldt+q))
        for q in range(5): k("v_exp_f32 v%d, v%d" % (ldt+q, ldt+q))
        for q in range(5): k("v_cvt_pk_bf16_f32 v%d, v%d, v%d" % (ldt+q, ldt+q, ldt+q))
        for q in range(5): k("v_lshlrev_b32 v%d, 16, v%d" % (ldt+q, ldt+q))
        for q in range(5): k("v_mul_f32 v%d, v%d, v%d\nv_mul_f32 v%d, v%d, v%d" % (cA2+q, ldt+q, lre+q, cBt+q, ldt+q, lim+q))
        for q in range(5): k("v_mul_f32 v%d, %s, v%d\nv_mul_f32 v%d, %s, v%d" % (cA2+q, f32(LOG2E), cA2+q, cBt+q, f32(1/(2*math.pi)), cBt+q))
    def trace(idx_sreg, mul, add):
        if TRACE:
            k("s_memrealtime s[100:101]\ns_mul_i32 m0, s%d, %d\ns_add_u32 m0, m0, %d\ns_waitcnt lgkmcnt(0)\nv_writelane_b32 v255, s100, m0" % (idx_sreg, mul, add))
    def ev(n):
        if TRACE: k("s_memrealtime s[100:101]\ns_waitcnt lgkmcnt(0)\nv_writelane_b32 v255, s100, %d" % n)
    def finish(vt):
        if TRACE:
            k("s_lshl_b32 s83, s2, 11\ns_add_u32 s83, s83, 0x%x\nv_lshl_add_u32 v%d, v0, 2, s83" % (STAMP_OFF + 0x40000, vt+9))
            k("global_store_dword v%d, v255, %s" % (vt+9, sp(52)))
        stamp_out(k, 0, 8, 52, vt)
        k("s_endpgm")

    vXo, vWo, vSo = 12, 13, 14
    vF = 18
    k("s_lshl_b32 s%d, s%d, 7\ns_lshl_b32 s%d, s%d, 5\ns_add_u32 s%d, s%d, s%d" % (sT2, sI, sT3, sMH, sT2, sT2, sT3))
    k("v_lshrrev_b32 v%d, 2, v%d\nv_lshlrev_b32 v%d, 4, v%d\nv_and_b32 v%d, 3, v%d" % (vT[0], vII, vT[0], vT[0], vT[1], vII))
    k("v_add3_u32 v%d, v%d, v%d, s%d" % (vT[0], vT[0], vT[1], sT2))
    k("v_mul_u32_u24 v%d, 1280, v%d" % (vT[0], vT[0]))
    k("s_lshl_b32 s%d, s%d, 2" % (sT3, sMH))
    k("v_lshrrev_b32 v%d, 1, v%d\nv_or_b32 v%d, s%d, v%d\nv_xor_b32 v%d, v%d, v%d" % (vT[1], vII, vT[1], sT3, vT[1], vT[1], vT[1], vSL))
    k("v_lshl_add_u32 v%d, v%d, 4, v%d" % (vXo, vT[1], vT[0]))
    k("s_mul_i32 s%d, s%d, 80" % (sT0, sJJ))
    k("v_add_u32 v%d, s%d, v%d\nv_mul_u32_u24 v%d, 1280, v%d\nv_lshl_add_u32 v%d, v%d, 4, v%d" % (vT[2], sT0, vII, vT[2], vT[2], vSo, vT[1], vT[2]))
    k("s_lshl_b32 s%d, s%d, 3" % (sT0, sMH))
    k("v_add_u32 v%d, s%d, v%d\nv_mul_u32_u24 v%d, 3072, v%d" % (vT[0], sT0, vII, vT[0], vT[0]))
    k("v_and_b32 v%d, 2, v%d\nv_or_b32 v%d, s%d, v%d\nv_xor_b32 v%d, v%d, v%d" % (vT[1], vII, vT[1], sT3, vT[1], vT[1], vT[1], vSL))
    k("v_lshl_add_u32 v%d, v%d, 4, v%d" % (vT[0], vT[1], vT[0]))
    k("s_lshl_b32 s%d, s%d, 1" % (sT0, sCol))
    k("v_add_u32 v%d, s%d, v%d" % (vWo, sT0, vT[0]))
    k("s_mov_b32 s%d, 0\ns_mov_b32 s%d, 0\ns_lshl_b32 s%d, s%d, 10\ns_mov_b32 s%d, 0\ns_mov_b32 s%d, 0" % (sKx, sKw, sDst, sMH, sIt, sRd))
    k("v_mov_b32 v%d, %d\nv_mov_b32 v24, 0" % (vF, FLG))
    k("s_lshl_b32 s%d, s%d, 2\ns_add_u32 s%d, s%d, %d\nv_mov_b32 v%d, s%d" % (sT0, sMH, sT0, sT0, FLG+16, vF+1, sT0))
    for S_, n_ in ((SX, 2048*1280), (SW0, 640*3072), (SW1, 640*3072), (SP0, 640*1280)): k("s_mov_b32 s%d, %d\ns_mov_b32 s%d, 0x20000" % (S_+2, n_, S_+3))
    k("s_cmp_eq_u32 s%d, 0\ns_waitcnt lgkmcnt(0)" % sMH)
    k("s_mov_b64 %s, %s\ns_mov_b64 %s, %s\ns_mov_b64 %s, %s\ns_cselect_b64 %s, %s, %s" % (sp(SX), sp(pX), sp(SW0), sp(pG), sp(SW1), sp(pU), sp(SP0), sp(pBre), sp(pBim)))
    def wait_word(lab, off, need, va, vt):
        k("v_mov_b32 v%d, %d" % (va, FLG+off))
        k("%s:" % lab)
        k("ds_read_b32 v%d, v%d\ns_waitcnt lgkmcnt(0)\nv_readfirstlane_b32 s%d, v%d" % (vt, va, sT0, vt))
        k("s_cmp_ge_i32 s%d, %s\ns_cbranch_scc1 %s_ok\ns_sleep 1\ns_branch %s\n%s_ok:" % (sT0, need, lab, lab, lab))
    def wait_done(lab, need, vaddr, vt):
        k("%s:" % lab)
        k("ds_read_b128 %s, v%d\ns_waitcnt lgkmcnt(0)" % (vr(vt, 4), vaddr))
        k("v_min_u32 v%d, v%d, v%d\nv_min3_u32 v%d, v%d, v%d, v%d" % (vt, vt, vt+1, vt, vt, vt+2, vt+3))
        k("v_readfirstlane_b32 s%d, v%d" % (sT0, vt))
        k("s_cmp_ge_i32 s%d, %s\ns_cbranch_scc1 %s_ok\ns_sleep 1\ns_branch %s\n%s_ok:" % (sT0, need, lab, lab, lab))
    def dma(ldsoff, voff, S, sbase, add):
        k("s_add_u32 m0, s%d, %d\ns_add_u32 s%d, s%d, %d\nbuffer_load_dwordx4 v%d, %s, s%d offen lds" % (sDst, ldsoff, sT0, sbase, add, voff, sq(S), sT0))
    NSIG = opt("nsig", 8)
    def chk(lab, add, sig):
        k("s_lshl_b32 s%d, s%d, 1\ns_add_i32 s%d, s%d, %d\ns_waitcnt lgkmcnt(0)" % (sT1, sIt, sT1, sT1, add))
        k("v_min_u32 v20, v20, v21\nv_min3_u32 v20, v20, v22, v23\nv_readfirstlane_b32 s%d, v20" % sT0)
        k("s_cmp_ge_i32 s%d, s%d\ns_cbranch_scc1 %s_go" % (sT0, sT1, lab))
        if sig: k("s_waitcnt vmcnt(0)\nds_write_b32 v%d, v24" % (vF+1))
        wait_done(lab+"_wd", "s%d" % sT1, vF, 20)
        k("%s_go:" % lab)
    L = "L_k1_L"
    xs = [(n*2048, vXo, SX, sKx, ((n & 3)*4 + (n >> 2)*64)*1280) for n in range(8)]
    wsu = lambda un, ns: [(16384+un*16384+gu*8192+n*2048, vWo, SW1 if gu else SW0, sKw, n*16*3072+un*128) for n in ns for gu in range(2)]
    p1 = []
    for i in range(4): p1 += xs[2*i:2*i+2] + wsu(0, (0, 1))[i:i+1]
    for o in p1[:NSIG]: dma(*o)
    k("s_barrier\ns_branch %s_sig" % L)
    k("%s:" % L)
    trace(sIt, 4, 0)
    chk(L+"_c1", -5, True)
    trace(sIt, 4, 1)
    for o in p1[:NSIG]: dma(*o)
    k("%s_sig:" % L)
    k("s_waitcnt vmcnt(%d)\nds_write_b32 v%d, v24\nv_add_u32 v24, 1, v24" % (NSIG, vF+1))
    trace(sIt, 4, 3)
    k("s_cmp_eq_u32 s%d, 1\ns_cbranch_scc1 %s_b1" % (sTY, L))
    for o in wsu(1, (0, 1)): dma(*o)
    k("%s_b1:" % L)
    for i, o in enumerate(p1[NSIG:]):
        if i == len(p1)-NSIG-2: k("ds_read_b128 v[20:23], v%d" % vF)
        dma(*o)
    chk(L+"_c2", -4, False)
    k("s_cmp_eq_u32 s%d, 1\ns_cbranch_scc1 %s_b2" % (sTY, L))
    for o in wsu(1, (2, 3)): dma(*o)
    k("s_branch %s_b3" % L)
    k("%s_b2:" % L)
    for b_ in range(10): dma(32768+b_*2048, vSo, SP0, sKx, b_*10240)
    k("%s_b3:" % L)
    for i, o in enumerate(wsu(0, (2, 3))):
        if i == 2: k("ds_read_b128 v[20:23], v%d" % vF)
        dma(*o)
    k("ds_write_b32 v%d, v24 offset:16" % (vF+1))
    k("s_add_u32 s%d, s%d, 128\ns_add_u32 s%d, s%d, 196608\ns_add_u32 s%d, s%d, %d\ns_add_u32 s%d, s%d, 1" % (sKx, sKx, sKw, sKw, sDst, sDst, SL, sRd, sRd))
    k("s_cmp_eq_u32 s%d, 3\ns_cselect_b32 s%d, 0, s%d\ns_cselect_b32 s%d, %d, 0\ns_sub_u32 s%d, s%d, s%d" % (sRd, sRd, sRd, sT0, 3*SL, sDst, sDst, sT0))
    trace(sIt, 4, 2)
    k("s_add_u32 s%d, s%d, 1\ns_cmp_lt_u32 s%d, 10\ns_cbranch_scc1 %s" % (sIt, sIt, sIt, L))
    k("L_k1_Lend:")
    srd(k, SWS, pWs, WS_NREC)
    k("v_mov_b32 v72, v%d\nv_mov_b32 v73, v24" % (vF+1))
    k("s_branch L_k1_P2")

    k("L_k1_D:")
    k("s_memrealtime s[100:101]")
    if not opt("dbar", 1): k("s_barrier")
    decode()
    XR = 16
    YR = 36
    PK = 100
    T = 132
    vN = 12
    sPQ, sPR = [14, 78], [15, 79]
    k("v_mul_u32_u24 v%d, 1280, v%d\nv_lshl_add_u32 v%d, v%d, 4, v%d" % (vT[0], vG, vT[0], vM, vT[0]))
    XL = opt("xl", 1)
    sQ_, sG_ = sIt, sRd
    if XL:
        k("s_and_b32 s%d, s2, 7\ns_lshl_b32 s%d, s%d, 5\ns_lshr_b32 s%d, s2, 3\ns_add_u32 s%d, s%d, s%d\ns_lshl_b32 s%d, s%d, 1\ns_add_u32 s%d, s%d, s%d" % (sT0, sT0, sT0, sT1, sT0, sT0, sT1, sC, sT0, sC, sC, sMH))
        k("s_bfe_u32 s%d, s2, 0x10002\ns_lshl_b32 s%d, s%d, 5\ns_add_u32 s%d, s%d, s%d" % (sQ_, sQ_, sQ_, sQ_, sQ_, sT1))
    else:
        k("s_lshl_b32 s%d, s2, 1\ns_add_u32 s%d, s%d, s%d" % (sC, sC, sC, sMH))
    k("s_waitcnt lgkmcnt(0)")
    srd(k, SX, pX, 2048*1280)
    srd(k, SWS, pWs, WS_NREC)
    k("s_cmp_lg_u32 s%d, 0\ns_cbranch_scc1 L_k1_nn" % sC)
    k("s_or_b32 s%d, s100, 1" % sT0)
    k("v_mov_b32 v%d, s%d\nv_mov_b32 v%d, 0" % (vT[2], sT0, vT[1]))
    k("global_store_dword v%d, v%d, %s%s" % (vT[1], vT[2], sp(pDbg), SC))
    k("L_k1_nn:")
    B1 = opt("b1", 2); GATE = opt("gate", 3)
    SNT = " nt" if opt("snt", 0) else ""
    def gate(lab):
        if opt("dbar", 1): k("s_barrier")
        if GATE: wait_word(lab, 36, "%d" % GATE, vT[3], vT[2])
    k("s_mul_i32 s%d, s%d, 5120" % (sKx, sC))
    xl = lambda c: k("buffer_load_dwordx4 %s, v%d, %s, s%d offen offset:%d%s" % (vr(XR+4*c, 4), vT[0], sq(SX), sKx, c*256, SNT))
    k("s_cmp_eq_u32 s%d, 1\ns_cbranch_scc1 L_k1_D1a" % sMH)
    if XL:
        k("s_mul_i32 s%d, s%d, 43\ns_lshr_b32 s%d, s%d, 9\ns_mul_i32 s%d, s%d, 12\ns_sub_u32 s%d, s%d, s%d" % (sT0, sQ_, sT0, sT0, sT1, sT0, sT1, sQ_, sT1))
        k("s_cmp_lt_u32 s%d, 6\ns_cselect_b32 s%d, s%d, s%d\ns_cselect_b32 s%d, s%d, s%d\ns_cselect_b32 s%d, 0, 6\ns_cselect_b32 s%d, 0, 24" % (sT1, SP1, pG, pU, SP1+1, pG+1, pU+1, sT2, sG_))
        k("s_sub_u32 s%d, s%d, s%d\ns_and_b32 s%d, s2, 3\ns_lshl_b32 s%d, s%d, 2\ns_lshl_b32 s%d, s%d, 1\ns_add_u32 s%d, s%d, 12" % (sT1, sT1, sT2, sT2, sT3, sT2, sT2, sT2, sT2, sT2))
        k("s_cmp_lt_u32 s%d, 4\ns_cselect_b32 s%d, s%d, s%d\ns_add_u32 s%d, s%d, s%d" % (sT1, sT2, sT3, sT2, sT1, sT1, sT2))
        k("s_add_u32 s%d, s%d, s%d\ns_mul_i32 s%d, s%d, 48\ns_add_u32 s%d, s%d, s%d" % (sG_, sG_, sT1, sT2, sT0, sG_, sG_, sT2))
        k("s_lshl_b32 s%d, s%d, 7\ns_mul_i32 s%d, s%d, %d\ns_add_u32 s%d, s%d, s%d" % (sT1, sT1, sT0, sT0, 8*3072, sKw, sT0, sT1))
        k("s_cmp_lt_u32 s%d, 60\ns_cselect_b32 s%d, %d, 0\ns_cselect_b32 s%d, s%d, 1000\ns_mov_b32 s%d, 0x20000" % (sQ_, SP1+2, 640*3072, sG_, sG_, SP1+3))
    else:
        k("s_mov_b32 s%d, s2" % sG_)
        k("s_mul_i32 s%d, s2, 1366\ns_lshr_b32 s%d, s%d, 16\ns_mul_i32 s%d, s%d, 48\ns_sub_u32 s%d, s2, s%d" % (sT0, sT0, sT0, sT1, sT0, sT1, sT1))
        k("s_cmp_lt_u32 s%d, 24\ns_cselect_b32 s%d, s%d, s%d\ns_cselect_b32 s%d, s%d, s%d\ns_cselect_b32 s%d, 0, 24" % (sT1, SP1, pG, pU, SP1+1, pG+1, pU+1, sT2))
        k("s_sub_u32 s%d, s%d, s%d\ns_lshl_b32 s%d, s%d, 7\ns_mul_i32 s%d, s%d, %d\ns_add_u32 s%d, s%d, s%d" % (sT1, sT1, sT2, sT1, sT1, sT0, sT0, 8*3072, sKw, sT0, sT1))
        k("s_cmp_lt_u32 s2, 240\ns_cselect_b32 s%d, %d, 0\ns_mov_b32 s%d, 0x20000" % (SP1+2, 640*3072, SP1+3))
    k("v_mul_u32_u24 v%d, 3072, v%d\nv_lshl_add_u32 v%d, v%d, 4, v%d" % (vT[1], vII, vT[1], vSL, vT[1]))
    a_ = 0
    for c in range(5):
        if c == B1: gate("L_k1_g0")
        xl(c)
        while a_ < 16 and a_*40 < 128*(c+1):
            k("buffer_load_dwordx4 %s, v%d, %s, s%d offen%s" % (vr(YR+4*a_, 4), vT[1], sq(SP1), sKw, SNT))
            k("s_add_u32 s%d, s%d, %d" % (sKw, sKw, 40*3072))
            a_ += 1
    if B1 >= 5: gate("L_k1_g0")
    k("s_branch L_k1_Db")
    k("L_k1_D1a:")
    if XL:
        k("s_cmp_lt_u32 s%d, 20\ns_cselect_b32 s%d, s%d, s%d\ns_cselect_b32 s%d, s%d, s%d\ns_cselect_b32 s%d, 0, 20\ns_cselect_b32 s%d, 0, 80" % (sQ_, SP1, pBre, pBim, SP1+1, pBre+1, pBim+1, sT1, sG_))
        k("s_sub_u32 s%d, s%d, s%d\ns_and_b32 s%d, s2, 3\ns_mul_i32 s%d, s%d, 20\ns_add_u32 s%d, s%d, s%d\ns_add_u32 s%d, s%d, s%d" % (sT0, sQ_, sT1, sT1, sT1, sT1, sT0, sT0, sT1, sG_, sG_, sT0))
        k("s_mul_i32 s%d, s%d, 10240\ns_add_u32 s%d, s%d, 5120" % (sKw, sT0, sDst, sKw))
        k("s_cmp_lt_u32 s%d, 40\ns_cselect_b32 s%d, %d, 0\ns_cselect_b32 s%d, s%d, 1000\ns_mov_b32 s%d, 0x20000" % (sQ_, SP1+2, 640*1280, sG_, sG_, SP1+3))
    else:
        k("s_mov_b32 s%d, s2" % sG_)
        k("s_cmp_lt_u32 s2, 80\ns_cselect_b32 s%d, s%d, s%d\ns_cselect_b32 s%d, s%d, s%d\ns_cselect_b32 s%d, 0, 80" % (SP1, pBre, pBim, SP1+1, pBre+1, pBim+1, sT1))
        k("s_sub_u32 s%d, s2, s%d\ns_mul_i32 s%d, s%d, 10240\ns_add_u32 s%d, s%d, 5120" % (sT0, sT1, sKw, sT0, sDst, sKw))
        k("s_cmp_lt_u32 s2, 160\ns_cselect_b32 s%d, %d, 0\ns_mov_b32 s%d, 0x20000" % (SP1+2, 640*1280, SP1+3))
    for c in range(5):
        if c == B1: gate("L_k1_g1")
        xl(c)
        for hh in range(2): k("buffer_load_dwordx4 %s, v%d, %s, s%d offen offset:%d%s" % (vr(YR+20*hh+4*c, 4), vT[0], sq(SP1), sDst if hh else sKw, c*256, SNT))
    if B1 >= 5: gate("L_k1_g1")
    k("L_k1_Db:")
    if opt("cpf", 1):
        k("s_getpc_b64 s[70:71]")
        k("L_k1_pc:")
        k("s_sub_u32 s70, s70, L_k1_pc-%s\ns_subb_u32 s71, s71, 0" % KNAME)
        k("s_lshr_b32 s%d, s2, 3\ns_lshl_b32 s%d, s%d, 1\ns_add_u32 s%d, s%d, s%d\ns_and_b32 s%d, s%d, 7\ns_lshl_b32 s%d, s%d, 13" % (sT0, sT0, sT0, sT0, sT0, sMH, sT0, sT0, sT0, sT0))
        k("v_lshl_add_u32 v14, v%d, 7, s%d\nv_min_u32 v14, L_k1_end-%s, v14" % (vL, sT0, KNAME))
        k("s_cmp_lt_u32 s%d, L_k1_end-%s\ns_cbranch_scc0 L_k1_ncp\ns_cmp_lt_u32 s2, 64\ns_cbranch_scc0 L_k1_ncp" % (sT0, KNAME))
        k("global_load_dword v15, v14, s[70:71]")
        k("L_k1_ncp:")
    ev(0)
    k("s_lshl_b32 s%d, s%d, 3\ns_add_u32 s%d, s%d, s%d\ns_lshl_b32 s%d, s%d, 1\ns_add_u32 s%d, s%d, s%d\ns_lshl_b32 s%d, s%d, 1" % (sT3, sI, sT3, sT3, sJJ, sT3, sT3, sT3, sT3, sMH, sT3, sT3))
    for n in range(2):
        k("s_add_u32 s%d, s%d, %d\ns_mul_i32 s%d, s%d, 6554\ns_lshr_b32 s%d, s%d, 16\ns_mul_i32 s%d, s%d, 10\ns_sub_u32 s%d, s%d, s%d" % (sT0, sT3, n, sPQ[n], sT0, sPQ[n], sPQ[n], sT1, sPQ[n], sPR[n], sT0, sT1))
    k("v_mov_b32 v%d, 0" % vT[1])
    k("global_load_dword v%d, v%d, %s%s" % (vN, vT[1], sp(pDbg), SC))
    if opt("packlate", 0): k("s_waitcnt vmcnt(1)")
    PNT = " nt" if opt("pnt", 1) else ""
    PA = opt("pa", 1)
    PK2 = 180 if PA else PK
    k("s_cmp_eq_u32 s%d, 1\ns_cbranch_scc1 L_k1_plC" % sTY)
    srd(k, SP0, pDn, 1536*1280)
    k("v_mul_u32_u24 v%d, 1280, v%d\nv_lshl_add_u32 v%d, v%d, 4, v%d" % (vT[1], vII, vT[1], vSL, vT[1]))
    k("s_cmp_lt_u32 s%d, 48\ns_cselect_b32 s%d, s%d, 0" % (sPQ[0], SP0+2, SP0+2))
    for n in range(2):
        k("s_mul_i32 s%d, s%d, 40960\ns_lshl_b32 s%d, s%d, 7\ns_add_u32 s%d, s%d, s%d" % (sT1, sPQ[n], sT2, sPR[n], sT1, sT1, sT2))
        for a in range(4):
            k("buffer_load_dwordx4 %s, v%d, %s, s%d offen%s" % (vr(PK+16*n+4*a, 4), vT[1], sq(SP0), sT1, PNT))
            if a < 3: k("s_add_u32 s%d, s%d, 10240" % (sT1, sT1))
    PP = 180
    if PA:
        k("s_branch L_k1_plC2")
        k("L_k1_plC:")
        param_loads(PP, sMH, vT[1])
        k("s_waitcnt vmcnt(15)\ns_branch L_k1_pld")
        k("L_k1_plC2:")
    else:
        k("s_branch L_k1_pld")
        k("L_k1_plC:")
        param_loads(PP, sMH, vT[1])
    srd(k, SP0, pCre, 640*1280)
    srd(k, SP1, pCim, 640*1280)
    cr_, cc_ = (vSL, vII) if opt("cs", 0) else (vII, vSL)
    k("v_mul_u32_u24 v%d, 1280, v%d\nv_lshl_add_u32 v%d, v%d, 4, v%d" % (vT[1], cr_, vT[1], cc_, vT[1]))
    k("s_cmp_lt_u32 s%d, 40\ns_cselect_b32 s%d, s%d, 0\ns_cselect_b32 s%d, s%d, 0" % (sPQ[0], SP0+2, SP0+2, SP1+2, SP1+2))
    for n in range(2):
        k("s_mul_i32 s%d, s%d, 20480\ns_lshl_b32 s%d, s%d, 7\ns_add_u32 s%d, s%d, s%d" % (sT1, sPQ[n], sT2, sPR[n], sT1, sT1, sT2))
        k("s_add_u32 s%d, s%d, 10240" % (sT2, sT1))
        for part in range(2):
            for hh in range(2):
                k("buffer_load_dwordx4 %s, v%d, %s, s%d offen%s" % (vr(PK2+16*n+(part*2+hh)*4, 4), vT[1], sq(SP0 if part == 0 else SP1), sT2 if hh else sT1, PNT))
    k("L_k1_pld:")
    k("v_mov_b32 v13, 0x3f803f80")
    ev(1)
    k("s_waitcnt vmcnt(%d)" % (16 if PA else 8))
    ev(2)
    stamp(k, 7)
    def unpack(dst, src, n):
        for d in range(n): k("v_lshlrev_b32 v%d, 16, v%d\nv_and_b32 v%d, s%d, v%d" % (dst+2*d, src+d, dst+2*d+1, sMASK, src+d))
    def row_sum(regs):
        for n in (8, 4, 2, 1):
            for r in regs: k("v_add_f32_dpp v%d, v%d, v%d%s" % (r, r, r, ror(n)))
    def tree(dst, src, n):
        k("v_add_f32 v%d, v%d, v%d\nv_add_f32 v%d, v%d, v%d" % (dst, src, src+1, dst+1, src+2, src+3))
        for d in range(4, n, 2): k("v_add_f32 v%d, v%d, v%d\nv_add_f32 v%d, v%d, v%d" % (dst, dst, src+d, dst+1, dst+1, src+d+1))
        k("v_add_f32 v%d, v%d, v%d" % (dst, dst, dst+1))
    A, B = T+40, T+42
    def dsum(dst, src, n, sq_):
        for d in range(n):
            k("v_dot2_f32_bf16 v%d, v%d, v%d, %s" % (dst+(d & 1), src+d, src+d if sq_ else 13, "v%d" % (dst+(d & 1)) if d > 1 else "0"))
    dsum(A, XR, 20, False)
    dsum(B, XR, 20, True)
    k("v_add_f32 v%d, v%d, v%d\nv_add_f32 v%d, v%d, v%d" % (A, A, A+1, B, B, B+1))
    row_sum([A, B])
    k("v_mul_f32 v%d, %s, v%d" % (A, f32(1/640.), A))
    k("v_mul_f32 v%d, %s, v%d" % (B, f32(1/640.), B))
    k("v_fma_f32 v%d, -v%d, v%d, v%d\nv_max_f32 v%d, 0, v%d" % (B, A, A, B, B, B))
    bf16r(B, B)
    k("v_add_f32 v%d, %s, v%d" % (B, f32(1e-5), B))
    bf16r(B, B)
    k("v_sqrt_f32 v%d, v%d" % (B, B))
    k("s_mov_b32 s%d, 0" % sT3)
    k("L_k1_gn:")
    k("v_readfirstlane_b32 s%d, v%d" % (sNon, vN))
    k("s_add_u32 s%d, s%d, 1\ns_cmp_lg_u32 s%d, 0\ns_cbranch_scc1 L_k1_gnd" % (sT3, sT3, sNon))
    k("s_cmp_gt_u32 s%d, 0x40000\ns_cbranch_scc1 L_k1_gnd" % sT3)
    k("v_mov_b32 v%d, 0" % vT[1])
    k("global_load_dword v%d, v%d, %s%s\ns_waitcnt vmcnt(0)\ns_branch L_k1_gn" % (vN, vT[1], sp(pDbg), SC))
    k("L_k1_gnd:")
    k("s_max_u32 s%d, s%d, 1" % (sNon, sNon))
    k("v_cvt_pk_bf16_f32 v%d, v%d, v%d\nv_mov_b32 v%d, s%d" % (T+44, A, B, T+45, sNon))
    k("s_lshl_b32 s%d, s%d, 5\ns_add_u32 s%d, s%d, 0x%x" % (sT0, sC, sT0, sT0, RST_OFF))
    k("v_lshlrev_b32 v%d, 3, v%d" % (vT[2], vG))
    k("s_mov_b32 exec_lo, 0x00010001\ns_mov_b32 exec_hi, 0x00010001")
    k("buffer_store_dwordx2 %s, v%d, %s, s%d offen%s" % (vr(T+44, 2), vT[2], sq(SWS), sT0, SC))
    k("s_mov_b64 exec, -1")
    k("s_cmp_eq_u32 s%d, 1\ns_cbranch_scc1 L_k1_D1b" % sMH)
    k("v_and_b32 v%d, 1, v%d\nv_lshlrev_b32 v%d, 4, v%d\nv_mov_b32 v%d, 0x3f80\nv_lshlrev_b32 v%d, v%d, v%d" % (T+8, vM, T+8, T+8, T+9, T+8, T+8, T+9))
    k("v_bfe_u32 v%d, v%d, 1, 2" % (T+9, vM))
    for d in range(4): k("v_cmp_eq_u32 vcc, %d, v%d\nv_cndmask_b32 v%d, 0, v%d, vcc" % (d, T+9, T+d, T+8))
    for a in range(16): k("v_mfma_f32_16x16x32_bf16 %s, %s, %s, %s" % (vr(T+4, 4), vr(T, 4), vr(YR+4*a, 4), vr(T+4, 4) if a else "0"))
    k("s_lshl_b32 s%d, s%d, 9\ns_add_u32 s%d, s%d, 0x%x\ns_cmp_lt_u32 s%d, 240\ns_cselect_b32 s%d, s%d, 0x%x" % (sT0, sG_, sT0, sT0, SG_OFF, sG_, sT0, sT0, WS_NREC))
    k("v_lshlrev_b32 v%d, 5, v%d\nv_lshl_add_u32 v%d, v%d, 6, v%d\nv_add_u32 v%d, s%d, v%d" % (T+8, vG, T+8, vSL, T+8, T+8, sT0, T+8))
    for r in range(4): k("v_mov_b32 v%d, s%d" % (T+13+2*r, sNon))
    for r in range(4): k("v_add_f32_dpp v%d, v%d, v%d%s" % (T+12+2*r, T+4+r, T+4+r, DPP))
    k("s_mov_b32 exec_lo, 0x00ff00ff\ns_mov_b32 exec_hi, 0")
    k("buffer_store_dwordx4 %s, v%d, %s, 0 offen%s" % (vr(T+12, 4), T+8, sq(SWS), SC))
    k("buffer_store_dwordx4 %s, v%d, %s, 0 offen offset:16%s" % (vr(T+16, 4), T+8, sq(SWS), SC))
    k("s_mov_b64 exec, -1")
    k("s_branch L_k1_Dc")
    k("L_k1_D1b:")
    for hh in range(2): dsum(A+2*hh, YR+20*hh, 20, False)
    k("v_add_f32 v%d, v%d, v%d\nv_add_f32 v%d, v%d, v%d" % (A, A, A+1, A+2, A+2, A+3))
    row_sum([A, A+2])
    k("v_mov_b32 v%d, s%d\nv_mov_b32 v%d, s%d" % (A+1, sNon, A+3, sNon))
    k("s_lshl_b32 s%d, s%d, 6\ns_add_u32 s%d, s%d, 0x%x\ns_cmp_lt_u32 s%d, 160\ns_cselect_b32 s%d, s%d, 0x%x" % (sT0, sG_, sT0, sT0, SB_OFF, sG_, sT0, sT0, WS_NREC))
    k("v_add_u32 v%d, s%d, v%d" % (vT[3], sT0, vT[2]))
    k("s_mov_b32 exec_lo, 0x00010001\ns_mov_b32 exec_hi, 0x00010001")
    k("buffer_store_dwordx2 %s, v%d, %s, 0 offen%s" % (vr(A, 2), vT[3], sq(SWS), SC))
    k("buffer_store_dwordx2 %s, v%d, %s, 0 offen offset:32%s" % (vr(A+2, 2), vT[3], sq(SWS), SC))
    k("s_mov_b64 exec, -1")
    k("L_k1_Dc:")
    ev(3)
    PSC = S1
    k("s_waitcnt vmcnt(3)")
    k("s_cmp_eq_u32 s%d, 1\ns_cbranch_scc1 %s" % (sTY, "L_k1_pdd" if PA else "L_k1_pdC"))
    k("s_cmp_ge_u32 s%d, 48\ns_cbranch_scc1 L_k1_pdd" % sPQ[0])
    k("s_mul_i32 s%d, s%d, %d\ns_add_u32 s%d, s%d, 49152" % (sT2, sMH, SL, sT2, sT2))
    k("v_lshlrev_b32 v%d, 4, v%d\nv_add_u32 v%d, s%d, v%d" % (T+1, vL, T, sT2, T+1))
    k("v_lshrrev_b32 v%d, 2, v%d\nv_lshl_add_u32 v%d, v%d, 2, v%d\nv_lshlrev_b32 v%d, 7, v%d" % (T+2, vM, T+2, vG, T+2, T+2, T+2))
    k("v_and_b32 v%d, 3, v%d\nv_lshl_add_u32 v%d, v%d, 3, v%d\nv_add_u32 v%d, s%d, v%d" % (T+3, vM, T+2, T+3, T+2, T+2, sT2, T+2))
    for n in range(2):
        for a in range(4): k("ds_write_b128 v%d, %s offset:%d" % (T, vr(PK+16*n+4*a, 4), a*1024))
        k("s_waitcnt lgkmcnt(0)")
        for c4 in range(4):
            k("ds_read_b64_tr_b16 %s, v%d offset:%d" % (vr(PK+16*n+c4*4, 2), T+2, c4*32))
            k("ds_read_b64_tr_b16 %s, v%d offset:%d" % (vr(PK+16*n+c4*4+2, 2), T+2, c4*32+2048))
        for c4 in range(4):
            k("s_lshl_b32 s%d, s%d, 2\ns_add_u32 s%d, s%d, %d\ns_mul_i32 s%d, s%d, 52\ns_lshr_b32 s%d, s%d, 8" % (sT0, sPR[n], sT0, sT0, c4, sT1, sT0, sT1, sT1))
            k("s_mul_i32 s%d, s%d, 435\ns_add_u32 s%d, s%d, s%d\ns_mul_i32 s%d, s%d, 5\ns_add_u32 s%d, s%d, s%d" % (sT1, sT1, sT1, sT1, sT0, sT0, sPQ[n], sT1, sT1, sT0))
            k("s_lshl_b32 s%d, s%d, 10\ns_add_u32 s%d, s%d, %d" % (sT1, sT1, sT1, sT1, B2_OFF))
            k("s_waitcnt lgkmcnt(%d)" % (6-2*c4))
            k("buffer_store_dwordx4 %s, v%d, %s, s%d offen%s" % (vr(PK+16*n+c4*4, 4), T+1, sq(SWS), sT1, PSC))
    if not PA: k("s_branch L_k1_pdd")
    k("L_k1_pdC:")
    k("s_cmp_ge_u32 s%d, 40\ns_cbranch_scc1 L_k1_pdd" % sPQ[0])
    k("v_lshrrev_b32 v%d, 1, v%d\nv_mul_u32_u24 v%d, 5120, v%d" % (T+1, cc_, T+1, T+1))
    k("v_and_b32 v%d, 1, v%d\nv_lshl_add_u32 v%d, v%d, 5, v%d\nv_lshl_add_u32 v%d, v%d, 4, v%d" % (T+2, cc_, T+2, T+2, cr_, T+1, T+2, T+1))
    for n in range(2):
        k("s_mul_i32 s%d, s%d, 52\ns_lshr_b32 s%d, s%d, 8\ns_mul_i32 s%d, s%d, 435\ns_add_u32 s%d, s%d, s%d" % (sT1, sPQ[n], sT1, sT1, sT1, sT1, sT1, sT1, sPQ[n]))
        k("s_mul_i32 s%d, s%d, 20\ns_add_u32 s%d, s%d, s%d\ns_add_u32 s%d, s%d, 240\ns_lshl_b32 s%d, s%d, 10\ns_add_u32 s%d, s%d, %d" % (sT0, sPR[n], sT1, sT1, sT0, sT1, sT1, sT1, sT1, sT1, sT1, B2_OFF))
        for r in range(8, 16): k("v_xor_b32 v%d, 0x80008000, v%d" % (PK2+16*n+r, PK2+16*n+r))
        for part in range(2):
            for hh in range(2):
                k("buffer_store_dwordx4 %s, v%d, %s, s%d offen offset:%d%s" % (vr(PK2+16*n+(part*2+hh)*4, 4), T+1, sq(SWS), sT1, part*256+hh*128, PSC))
    k("L_k1_pdd:")
    if opt("pw", 0):
        k("s_mul_i32 s%d, s%d, 22528\nv_lshlrev_b32 v%d, 4, v%d" % (sT0, sC, T+3, vL))
        for j in range(22):
            k("buffer_store_dwordx4 %s, v%d, %s, s%d offen offset:%d sc1" % (vr(XR, 4), T+3, sq(SWS), sT0, (j & 3)*1024))
            if j & 3 == 3: k("s_add_u32 s%d, s%d, 4096" % (sT0, sT0))
    ev(4)
    if PA: k("s_cmp_eq_u32 s%d, 1\ns_cbranch_scc1 L_k1_npf" % sTY)
    k("s_lshl_b32 s%d, s%d, 4\ns_add_u32 s%d, s%d, s%d\ns_lshl_b32 s%d, s%d, 3\ns_add_u32 s%d, s%d, s%d\ns_lshl_b32 s%d, s%d, 1\ns_add_u32 s%d, s%d, s%d" % (sT0, sTY, sT0, sT0, sI, sT0, sT0, sT0, sT0, sJJ, sT0, sT0, sT0, sT0, sMH))
    k("s_lshl_b32 s%d, s%d, 2\ns_add_u32 s%d, s%d, 0x%x\nv_mov_b32 v%d, s%d\nv_mov_b32 v%d, s%d" % (sT0, sT0, sT0, sT0, PF_OFF, T, sT0, T+1, sNon))
    k("s_waitcnt vmcnt(0)\ns_mov_b64 exec, 1")
    k("buffer_store_dword v%d, v%d, %s, 0 offen%s\ns_mov_b64 exec, -1" % (T+1, T, sq(SWS), SC))
    k("L_k1_npf:")
    stamp(k, 2)
    ev(5)
    TB = 48
    TG = 196
    CT = TRB + 4*80*TRP
    k("s_cmp_eq_u32 s%d, 0\ns_cbranch_scc1 L_k1_ntb" % sTY)
    param_ab(PP, 80, 85, vT[1])
    k("v_cvt_f32_u32 v%d, v%d\nv_mul_f32 v%d, %s, v%d\nv_mul_f32 v%d, %s, v%d" % (vT[1], vG, vT[2], f32(64.0), vT[1], vT[1], f32(16.0), vT[1]))
    cpow5(r5(TG), r5(TG+5), "1.0", 90, 95, 80, 85)
    cpow5(r5(TG+15), r5(TG+20), f32(16.0), 90, 95, 80, 85)
    cpow5(r5(TG+36), r5(TG+41), f32(256.0), 90, 95, 80, 85)
    cpow5(r5(TB), r5(TB+5), "v%d" % vT[2], 90, 95, 80, 85)
    cpow5(r5(TB+10), r5(TB+15), "v%d" % vT[1], 90, 95, 80, 85)
    lre, lim, t0, t1 = PP, PP+5, 90, 95
    KRd = [TG+26+2*q for q in range(5)]
    for q in range(5): k("v_add_f32 v%d, -1.0, v%d\nv_mul_f32 v%d, v%d, v%d" % (t0+q, TG+q, t1+q, lre+q, lre+q))
    for q in range(5): k("v_fmac_f32 v%d, v%d, v%d" % (t1+q, lim+q, lim+q))
    for q in range(5): k("v_rcp_f32 v%d, v%d" % (t1+q, t1+q))
    for q in range(5): k("v_mul_f32 v%d, v%d, v%d\nv_mul_f32 v%d, v%d, v%d" % (KRd[q], t0+q, lre+q, TG+10+q, TG+5+q, lre+q))
    for q in range(5): k("v_fmac_f32 v%d, v%d, v%d\nv_fma_f32 v%d, -v%d, v%d, v%d" % (KRd[q], TG+5+q, lim+q, TG+10+q, t0+q, lim+q, TG+10+q))
    for q in range(5): k("v_add_f32 v%d, v%d, v%d" % (t1+q, t1+q, t1+q))
    for q in range(5): k("v_mul_f32 v%d, v%d, v%d\nv_mul_f32 v%d, v%d, v%d" % (KRd[q], KRd[q], t1+q, TG+10+q, TG+10+q, t1+q))
    k("L_k1_ntb:")
    EI = 16
    aSt, aS0, aS1 = 40, 41, 42
    k("s_lshl_b32 s%d, s%d, 1\ns_add_u32 s%d, s%d, s%d\ns_lshl_b32 s%d, s%d, 9\ns_add_u32 s%d, s%d, 0x%x" % (sT0, sI, sT0, sT0, sMH, sT0, sT0, sT0, sT0, RST_OFF))
    k("v_lshrrev_b32 v%d, 2, v%d\nv_lshlrev_b32 v%d, 4, v%d\nv_lshl_add_u32 v%d, v%d, 2, v%d" % (aSt, vM, aSt, aSt, aSt, vG, aSt))
    k("v_and_b32 v%d, 3, v%d\nv_add_u32 v%d, v%d, v%d\nv_lshl_add_u32 v%d, v%d, 3, s%d" % (aS0, vM, aSt, aSt, aS0, aSt, aSt, sT0))
    k("s_cmp_eq_u32 s%d, 1\ns_cbranch_scc1 L_k1_eaB" % sTY)
    k("s_lshl_b32 s%d, s%d, 6\ns_add_u32 s%d, s%d, s%d\ns_lshl_b32 s%d, s%d, 3\ns_add_u32 s%d, s%d, 0x%x" % (sT0, sMH, sT0, sT0, sCol, sT0, sT0, sT0, sT0, SG_OFF))
    k("v_lshl_add_u32 v%d, v%d, 3, s%d\nv_add_u32 v%d, %d, v%d" % (aS0, vL, sT0, aS1, 1536*8, aS0))
    k("s_mov_b32 s%d, %d" % (sKw, 3072*8))
    k("s_branch L_k1_ead")
    k("L_k1_eaB:")
    k("s_lshl_b32 s%d, s%d, 5\ns_add_u32 s%d, s%d, s%d\ns_lshl_b32 s%d, s%d, 3\ns_add_u32 s%d, s%d, 0x%x" % (sT0, sMH, sT0, sT0, sCol, sT0, sT0, sT0, sT0, SG_OFF))
    k("v_lshrrev_b32 v%d, 5, v%d\nv_mul_u32_u24 v%d, 1504, v%d\nv_add_u32 v%d, v%d, v%d\nv_lshl_add_u32 v%d, v%d, 3, s%d" % (aS0, vL, aS0, aS0, aS0, aS0, vL, aS0, aS0, sT0))
    k("s_mul_i32 s%d, s%d, 80\ns_mul_i32 s%d, s%d, 40\ns_add_u32 s%d, s%d, s%d\ns_lshl_b32 s%d, s%d, 3\ns_add_u32 s%d, s%d, 0x%x" % (sT0, sJJ, sT1, sMH, sT0, sT0, sT1, sT0, sT0, sT0, sT0, SB_OFF))
    k("v_lshrrev_b32 v%d, 3, v%d\nv_mul_u32_u24 v%d, 640, v%d\nv_add_u32 v%d, v%d, v%d\nv_lshl_add_u32 v%d, v%d, 3, s%d" % (aS1, vM, aS1, aS1, aS1, aS1, vSL, aS1, aS1, sT0))
    k("s_mov_b32 s%d, 64" % sKw)
    k("L_k1_ead:")
    ev(6)
    k("s_lshl_b32 s%d, s%d, 2\ns_add_u32 s%d, s%d, %d\nv_mov_b32 v%d, s%d\nv_mov_b32 v%d, s%d\nv_lshlrev_b32 v43, 4, v%d" % (sT0, sMH, sT0, sT0, FLG+24, T+6, sT0, T+7, sNon, vL))
    PFW = 2 if PA else 4
    def pf_load(): return "buffer_load_dwordx%d v[44:%d], v%d, %s, s%d offen%s" % (PFW, 43+PFW, T+12, sq(SWS), sKx, SC)
    def pf_eval(ok):
        k("v_xor_b32 v%d, s%d, v44" % (T, sNon))
        for r_ in range(45, 44+PFW): k("v_xor_b32 v%d, s%d, v%d\nv_or_b32 v%d, v%d, v%d" % (T+1, sNon, r_, T, T, T+1))
        k("v_cmp_ne_u32 vcc, 0, v%d" % T)
    k("s_mul_i32 s%d, s%d, %d\ns_add_u32 s%d, s%d, 0x%x\nv_mul_u32_u24 v%d, %d, v%d\ns_mov_b32 s70, 0" % (sKx, sMH, PFW*256, sKx, sKx, PF_OFF, T+12, PFW*4, vL))
    wait_word("L_k1_eg", 36, "%d" % opt("eigate", 8), T, T+1)
    k("s_mov_b32 s%d, 0" % sT3)
    k("L_k1_eil:")
    k("buffer_load_dwordx2 %s, v%d, %s, 0 offen%s" % (vr(EI, 2), aSt, sq(SWS), SC))
    for p in range(5):
        k("s_mov_b32 s%d, %d\ns_mul_i32 s%d, s%d, %d" % (sT0, p*3072*8, sT1, sKw, p))
        k("buffer_load_dwordx2 %s, v%d, %s, s%d offen%s" % (vr(EI+2+2*p, 2), aS0, sq(SWS), sT0, SC))
        k("buffer_load_dwordx2 %s, v%d, %s, s%d offen%s" % (vr(EI+12+2*p, 2), aS1, sq(SWS), sT1, SC))
    k("s_waitcnt vmcnt(0)")
    k("v_xor_b32 v%d, s%d, v%d" % (T, sNon, EI+1))
    for r_ in [EI+3+2*p for p in range(10)]: k("v_xor_b32 v%d, s%d, v%d\nv_or_b32 v%d, v%d, v%d" % (T+1, sNon, r_, T, T, T+1))
    k("v_cmp_ne_u32 vcc, 0, v%d" % T)
    k("s_add_u32 s%d, s%d, 1" % (sT3, sT3))
    k("s_cbranch_vccz L_k1_eid")
    k("s_sleep 16\ns_cmp_lt_u32 s%d, 0x40000\ns_cbranch_scc1 L_k1_eil" % sT3)
    k("L_k1_eid:")
    ev(8)
    k("v_lshlrev_b32 v%d, 16, v%d\nv_and_b32 v%d, s%d, v%d\nv_rcp_f32 v%d, v%d" % (T, EI, T+1, sMASK, EI, T+2, T+1))
    k("s_mul_i32 s%d, s%d, 768\ns_add_u32 s%d, s%d, %d" % (sT0, sMH, sT0, sT0, STAT_M))
    k("v_lshl_add_u32 v%d, v%d, 2, s%d" % (T+3, vL, sT0))
    k("ds_write_b32 v%d, v%d\nds_write_b32 v%d, v%d offset:256\nds_write_b32 v%d, v%d offset:512" % (T+3, T, T+3, T+2, T+3, T+1))
    def sum5(b): k("v_add_f32 v%d, v%d, v%d\nv_add_f32 v%d, v%d, v%d\nv_add_f32 v%d, v%d, v%d\nv_add_f32 v%d, v%d, v%d" % (b, b, b+2, b+4, b+4, b+6, b, b, b+8, b, b, b+4))
    sum5(EI+2)
    k("s_lshl_b32 s%d, s%d, 9\ns_add_u32 s%d, s%d, %d" % (sT0, sMH, sT0, sT0, SFF))
    k("v_lshl_add_u32 v%d, v%d, 2, s%d" % (T+4, vL, sT0))
    k("ds_write_b32 v%d, v%d" % (T+4, EI+2))
    k("s_cmp_eq_u32 s%d, 1\ns_cbranch_scc1 L_k1_ewB" % sTY)
    sum5(EI+12)
    k("ds_write_b32 v%d, v%d offset:256" % (T+4, EI+12))
    k("s_branch L_k1_ewd")
    k("L_k1_ewB:")
    for p in range(5): k("v_mov_b32 v%d, v%d" % ([TG+27, TG+29, TG+31, TG+33, TG+25][p], EI+12+2*p))
    k("s_mul_i32 s%d, s%d, %d\ns_add_u32 s%d, s%d, %d\nv_add_u32 v43, s%d, v43" % (sT0, sMH, 2*80*TRP, sT0, sT0, TRB, sT0))
    k("s_mul_i32 s%d, s%d, 3072\ns_add_u32 s%d, s%d, %d\nv_lshl_add_u32 v%d, v%d, 4, s%d" % (sT0, sMH, sT0, sT0, CT, T+5, vM, sT0))
    k("v_mov_b32 v%d, %d" % (T+2, FLG))
    wait_done("L_k1_tbw", "16", T+2, T+8)
    for qd in range(12): k("ds_write_b128 v%d, %s offset:%d" % (T+5, vr(TG+4*qd, 4), qd*256))
    for w2 in range(2):
        for qd in range(5): k("ds_write_b128 v43, %s offset:%d" % (vr(TB+4*qd, 4), w2*80*TRP+qd*1024))
    k("L_k1_ewd:")
    k("ds_write_b32 v%d, v%d" % (T+6, T+7))
    wait_word("L_k1_pg", 36, "%d" % opt("pfgate", 10), T, T+1)
    k("s_mov_b32 s%d, 0" % sT3)
    k("L_k1_pfl:")
    k(pf_load() + "\ns_waitcnt vmcnt(0)")
    pf_eval(None)
    k("s_add_u32 s%d, s%d, 1" % (sT3, sT3))
    k("s_cbranch_vccz L_k1_pfo")
    k("s_sleep 12\ns_cmp_lt_u32 s%d, 0x40000\ns_cbranch_scc1 L_k1_pfl" % sT3)
    k("L_k1_pfo:")
    k("ds_write_b32 v%d, v%d offset:16" % (T+6, T+7))
    k("v_mov_b32 v72, %d\nv_mov_b32 v73, 0" % (FLG+48))
    k("L_k1_P2:")
    if opt("p2prio", 0): k("s_setprio %d" % opt("p2prio", 0))
    stamp(k, 1)
    if TRACE:
        k("s_lshl_b32 s83, s2, 11\ns_add_u32 s83, s83, 0x%x\nv_lshl_add_u32 v12, v0, 2, s83" % (STAMP_OFF + 0x40000))
        k("global_store_dword v12, v255, %s" % sp(pWs))
    LD2 = ["", " sc1", " nt", " sc0 sc1", " sc1 nt"][opt("ld2", 1)]
    sP, sMI, sNI = 4, 5, 6
    sAb, sBb = [72, 73, 74], [75, 76, 77]
    sR, sSh = 78, 79
    SO = SX
    AR, BR, AC = 12, 76, 176
    vA = [2, 3, 4, 5]; vB0, vB1, vOut, vLd, vFl, vFa = 6, 7, 8, 9, 10, 11
    k("s_sub_u32 s%d, s%d, 4" % (sP, sW))
    k("s_and_b32 s%d, s2, 7\ns_lshr_b32 s%d, s2, 3" % (sT0, sT1))
    k("s_lshr_b32 s%d, s%d, 1\ns_lshl_b32 s%d, s%d, 3\ns_and_b32 s%d, s%d, 7\ns_add_u32 s%d, s%d, s%d" % (sMI, sT0, sMI, sMI, sT2, sT1, sMI, sMI, sT2))
    k("s_and_b32 s%d, s%d, 1\ns_lshl_b32 s%d, s%d, 2\ns_lshr_b32 s%d, s%d, 3\ns_add_u32 s%d, s%d, s%d" % (sNI, sT0, sNI, sNI, sT2, sT1, sNI, sNI, sT2))
    X_, D_, ST_, PFr, tA, tB, tC = AR, AR+10, AR+20, AR+24, AR+32, AR+33, AR+34
    k("v_bfe_u32 v%d, v%d, 1, 2\nv_xor_b32 v%d, v%d, v%d\nv_mul_u32_u24 v%d, 320, v%d\nv_lshl_add_u32 v%d, v%d, 4, v%d" % (tA, vM, tA, tA, vG, vOut, vM, vOut, tA, vOut))
    k("v_lshlrev_b32 v%d, 4, v%d\nv_add_u32 v%d, 4096, v%d" % (vB0, vL, vB1, vB0))
    for f in range(4): k("s_xor_b32 s%d, s%d, %d\ns_lshl_b32 s%d, s%d, 10\nv_add_u32 v%d, s%d, v%d" % (sT0, sP, f, sT0, sT0, vA[f], sT0, vB0))
    k("s_mul_i32 s%d, s%d, %d\ns_mul_i32 s%d, s%d, %d\ns_add_u32 s%d, s%d, 0x%x" % (sBb[0], sMI, 88*4096, sBb[1], sNI, 88*5120, sBb[1], sBb[1], B2_OFF))
    for g, (mul, add) in enumerate(((8, 0), (4, 32), (10, 48))):
        k("s_mul_i32 s%d, s%d, %d\ns_add_u32 s%d, s%d, %d" % (sAb[g], sP, mul, sAb[g], sAb[g], add))
    def region(dst, src):
        k("s_and_b32 s%d, s%d, 1\ns_mul_i32 s%d, s%d, 25600\ns_cmp_lt_u32 s%d, 2\ns_cselect_b32 s%d, %d, 0\ns_add_u32 s%d, s%d, s%d" % (dst, src, dst, dst, src, sT0, 2*SL, dst, dst, sT0))
    region(sR, sP)
    k("v_add_u32 v%d, s%d, v%d\nv_add_u32 v%d, s%d, v%d" % (vLd, sR, vB0, vOut, sR, vOut))
    k("s_lshl_b32 s%d, s%d, 2\ns_add_u32 s%d, s%d, s%d\ns_mul_i32 s%d, s%d, %d\ns_add_u32 s%d, s%d, 0x%x" % (sSh, sMI, sSh, sSh, sP, sSh, sSh, FLS_, sSh, sSh, FL_OFF))
    k("s_lshl_b32 s%d, s%d, 2\ns_add_u32 s%d, s%d, %d\nv_mov_b32 v%d, s%d\nv_mov_b32 v%d, %d" % (sT0, sP, sT0, sT0, FLG+64, vFa, sT0, PFr+2, FLG+32))
    k("s_waitcnt vmcnt(0)\nds_write_b32 v72, v73")
    steps = [(0, i) for i in (0, 2, 4, 6, 1, 3, 5, 7)] + [(1, i) for i in range(4)] + [(2, i) for i in range(10)]
    fgrp = {0: 0, 4: 3, 8: 1, 12: 2}
    ORD = opt("ord2", 0)
    pos = [0, 4, 8]
    if ORD == 1: fgrp = {0: 1, 4: 0, 8: 3, 12: 2}; pos = [4, 8, 0]
    if ORD == 2: fgrp = {0: 0, 4: 1, 8: 3, 12: 2}; pos = [0, 8, 4]
    NS = len(steps)
    sK = list(range(16, 32)) + list(range(34, 40))
    ROT = opt("rot", 0)
    k("s_lshr_b32 s%d, s2, 3\ns_and_b32 s%d, s%d, 7\ns_lshr_b32 s%d, s%d, 3" % (sT1, sT0, sT1, sT1, sT1))
    if ROT:
        k("s_add_u32 s%d, s%d, s%d\ns_and_b32 s%d, s%d, 3" % (sT2, sT0, sT1, sT2, sT2))
        k("s_mul_i32 s%d, s%d, 3\ns_add_u32 s%d, s%d, s%d\ns_cmp_ge_u32 s%d, 10\ns_cselect_b32 s%d, 10, 0\ns_sub_u32 s%d, s%d, s%d" % (sT3, sT1, sT3, sT3, sT0, sT3, sT0, sT3, sT3, sT0))
    else:
        k("s_mov_b32 s%d, 0\ns_mov_b32 s%d, 0" % (sT2, sT3))
    for j in range(4):
        k("s_add_u32 s%d, s%d, %d\ns_and_b32 s%d, s%d, 3\ns_add_u32 s%d, s%d, s%d\ns_lshl_b32 s%d, s%d, 1\ns_add_u32 s%d, s%d, s%d\ns_add_u32 s%d, s%d, 1" %
          (sT0, sT2, j, sT0, sT0, sK[pos[2]+j], sT0, sAb[1], sT0, sT0, sK[pos[0]+j], sT0, sAb[0], sK[pos[1]+j], sK[pos[0]+j]))
    for j in range(10):
        k("s_add_u32 s%d, s%d, %d\ns_cmp_ge_u32 s%d, 10\ns_cselect_b32 s%d, 10, 0\ns_sub_u32 s%d, s%d, s%d\ns_add_u32 s%d, s%d, s%d" % (sT0, sT3, j, sT0, sT1, sT0, sT0, sT1, sK[12+j], sT0, sAb[2]))
    LS = [[7, 10, 13, 16, 19], [17, 18, 19, 20, 21], [9, 12, 15, 18, 21], [13, 15, 17, 19, 21], [], [20, 21], [5, 7, 9, 11, 13], [6, 9, 12, 15, 18]][opt("lsl", 2)]
    NA, NB = 4, 5
    vm = []
    THR = opt("thr", 0)
    def ldB(s, buf):
        g, i = steps[s]
        o = (["s_waitcnt vmcnt(%d)" % THR] if THR else []) + ["s_mul_i32 s%d, s%d, 5120\ns_add_u32 s%d, s%d, s%d" % (sT1, sK[s], sT1, sT1, sBb[1])]
        for f in range(5):
            o.append("buffer_load_dwordx4 %s, v%d, %s, s%d offen offset:%d%s" % (vr(BR+buf*20+f*4, 4), vB1 if f == 4 else vB0, sq(SWS), sT1, (f & 3)*1024, LD2))
            vm.append(("B", s))
        return o
    def ldA(s):
        g, i = steps[s]
        o = (["s_waitcnt vmcnt(%d)" % THR] if THR else []) + ["s_lshl_b32 s%d, s%d, 12\ns_add_u32 s%d, s%d, s%d" % (sT0, sK[s], sT0, sT0, sBb[0])]
        for f in range(4):
            o.append("buffer_load_dwordx4 %s, v%d, %s, s%d offen%s" % (vr(AR+(s % NA)*16+f*4, 4), vA[f], sq(SWS), sT0, LD2))
            vm.append(("A", s))
        return o
    def vwait(tags):
        idx = max(i for i, x in enumerate(vm) if x in tags)
        return min(63, len(vm)-1-idx)
    bbuf = {}
    k("L_k1_p2e:")
    k("ds_read_b128 %s, v%d\ns_waitcnt lgkmcnt(0)\nv_min_u32 v%d, v%d, v%d\nv_readfirstlane_b32 s%d, v%d\nv_readfirstlane_b32 s%d, v%d" % (vr(PFr+4, 4), PFr+2, PFr+6, PFr+6, PFr+7, sNon, PFr+6, sT0, PFr+5))
    k("s_cmp_lt_u32 s%d, %d\ns_cselect_b32 s%d, 0, s%d\ns_cmp_lg_u32 s%d, 0\ns_cbranch_scc1 L_k1_p2eo\ns_sleep 1\ns_branch L_k1_p2e\nL_k1_p2eo:" % (sT0, opt("bgate", 10), sT0, sNon, sT0))
    streamed = [s for s in range(NS) if s not in LS]
    NPRE = opt("npre", NB)
    for j in range(NB):
        bbuf[streamed[j]] = j
        if j < NPRE:
            for x in ldB(streamed[j], j): k(x)
    nextB = NB
    srd(k, SO, pOut, 2048*640*4)
    k("v_mov_b32 v%d, %d" % (AR+40, FLG))
    k("s_and_b32 s%d, s%d, 2\ns_add_u32 s%d, s%d, 18" % (sT1, sP, sT1, sT1))
    stamp(k, 2)
    wait_done("L_k1_p2w", "s%d" % sT1, AR+40, AR+44)
    for j, s_ in enumerate(LS):
        g, i = steps[s_]
        if THR: k("s_waitcnt vmcnt(%d)" % THR)
        k("s_add_u32 m0, s%d, %d\ns_mul_i32 s%d, s%d, 5120\ns_add_u32 s%d, s%d, s%d" % (sR, j*5120, sT1, sK[s_], sT1, sT1, sBb[1]))
        for f in range(4):
            k("buffer_load_dwordx4 v%d, %s, s%d offen offset:%d%s lds" % (vB0, sq(SWS), sT1, f*1024, LD2)); vm.append(("L", s_))
        k("s_add_u32 m0, s%d, %d" % (sR, j*5120+4096))
        k("buffer_load_dwordx4 v%d, %s, s%d offen%s lds" % (vB1, sq(SWS), sT1, LD2)); vm.append(("L", s_))
    if opt("tb", 0):
        assert not ROT
        rest = streamed[NB:]
        tv, tj = AR+40, AR+41
        k("v_mul_u32_u24 v%d, 52, v%d\nv_lshrrev_b32 v%d, 8, v%d" % (tj, vL, tj, tj))
        k("v_mov_b32 v%d, s%d" % (tv, sK[rest[0]]))
        for j in range(1, len(rest)):
            k("v_cmp_le_u32 vcc, %d, v%d\nv_mov_b32 v%d, s%d\nv_cndmask_b32 v%d, v%d, v%d, vcc" % (j, tj, AR+42, sK[rest[j]], tv, tv, AR+42))
        k("v_mul_u32_u24 v%d, 5, v%d\nv_sub_u32 v%d, v%d, v%d" % (tj, tj, tj, vL, tj))
        k("s_lshr_b32 s%d, s2, 3\ns_and_b32 s%d, s%d, 7\ns_mul_i32 s%d, s%d, 640\ns_add_u32 s%d, s%d, s%d" % (sT0, sT0, sT0, sT0, sT0, sT0, sT0, sBb[1]))
        k("v_mul_u32_u24 v%d, 5120, v%d\nv_lshl_add_u32 v%d, v%d, 7, v%d" % (tv, tv, tv, tj, tv))
        k("buffer_load_dword v%d, v%d, %s, s%d offen%s" % (vFl, tv, sq(SWS), sT0, LD2)); vm.append(("T", 0))
    stamp(k, 3)
    k("s_add_u32 s40, s%d, s%d\ns_addc_u32 s41, s%d, 0" % (pWs, sSh, pWs+1))
    def flag_load(g):
        return "s_load_dwordx4 s[52:55], s[40:41], %d glc" % (g*16)
    def flag_check(g):
        lab = "L_k1_fc%d" % g
        k("s_mov_b32 s%d, 0\ns_branch %s_c" % (sT3, lab))
        k("%s_r:" % lab)
        k("s_sleep %d\n%s" % (opt("psl", 2), flag_load(g)))
        k("%s_c:" % lab)
        k("s_waitcnt lgkmcnt(0)")
        k("s_xor_b32 s52, s52, s%d\ns_xor_b32 s53, s53, s%d\ns_xor_b32 s54, s54, s%d\ns_xor_b32 s55, s55, s%d" % (sNon, sNon, sNon, sNon))
        k("s_add_u32 s%d, s%d, 1\ns_or_b64 s[52:53], s[52:53], s[54:55]\ns_cbranch_scc0 %s_d" % (sT3, sT3, lab))
        k("s_cmp_lt_u32 s%d, 0x100000\ns_cbranch_scc1 %s_r" % (sT3, lab))
        k("%s_d:" % lab)
        if opt("p2t", 0): k("s_memrealtime s[100:101]\ns_waitcnt lgkmcnt(0)\nv_writelane_b32 v1, s100, %d\nv_writelane_b32 v1, s%d, %d" % (32+g, sT3, 40+g))
    if opt("pd", 0): k("s_waitcnt vmcnt(0)\ns_sleep %d" % opt("pd", 0))
    k(flag_load(fgrp[0]))
    flag_check(fgrp[0])
    stamp(k, 4)
    for s_ in range(NB):
        if s_ < NA:
            for x in ldA(s_): k(x)
        if s_ >= NPRE:
            for x in ldB(streamed[s_], s_): k(x)
    LEAD = {4: opt("ld3", 1), 8: opt("ld1", 2), 12: opt("ld2_", 2)}
    chkpos = {g: g - 1 - LEAD[g] for g in LEAD}
    nextA = NA
    if chkpos[4] == 0: k(flag_load(fgrp[4]))
    EARLY = opt("early", 1)
    R5 = range(5)
    GOH = [BR + 40]
    def red_addr():
        GO = GOH[0]
        o = []
        for f in range(1, 4):
            o.append("s_xor_b32 s%d, s%d, %d\ns_and_b32 s%d, s%d, 1\ns_mul_i32 s%d, s%d, 25600" % (sT2, sP, f, sT1, sT2, sT1, sT1))
            o.append("s_cmp_lt_u32 s%d, 2\ns_cselect_b32 s%d, %d, 0\ns_add_u32 s%d, s%d, s%d" % (sT2, sT0, 2*SL, sT1, sT1, sT0))
            o.append("v_add_u32 v%d, s%d, v%d" % (vA[f], sT1, vB0))
        o.append("s_mul_i32 s%d, s%d, %d\ns_add_u32 s%d, s%d, %d\nv_add_u32 v%d, s%d, v%d" % (sT1, sP, 80*TRP, sT1, sT1, TRB, vA[0], sT1, vB0))
        o.append("v_lshrrev_b32 v%d, 4, v%d" % (vFl, vB0))
        o.append("s_lshl_b32 s%d, s%d, 6\ns_lshl_b32 s%d, s%d, 2\ns_add_u32 s%d, s%d, s%d" % (sT0, sMI, sT1, sP, sT0, sT0, sT1))
        o.append("s_mul_i32 s%d, s%d, 2560\ns_mul_i32 s%d, s%d, 320\ns_add_u32 s%d, s%d, s%d" % (sT0, sT0, sT1, sNI, sT3, sT0, sT1))
        e_, r_, q_, t_ = GO, GO+5, GO+10, GO+15
        for it in R5: o.append("v_add_u32 v%d, %d, v%d" % (e_+it, it*64, vFl))
        for it in R5: o.append("v_mul_u32_u24 v%d, 205, v%d" % (r_+it, e_+it))
        for it in R5: o.append("v_lshrrev_b32 v%d, 12, v%d" % (r_+it, r_+it))
        for it in R5: o += ["v_mul_u32_u24 v%d, 20, v%d" % (q_+it, r_+it), "v_bfe_u32 v%d, v%d, 1, 2" % (t_+it, r_+it)]
        for it in R5: o.append("v_sub_u32 v%d, v%d, v%d" % (q_+it, e_+it, q_+it))
        for it in R5: o += ["v_xor_b32 v%d, v%d, v%d" % (q_+it, q_+it, t_+it), "v_lshrrev_b32 v%d, 2, v%d" % (t_+it, r_+it)]
        for it in R5: o.append("v_mad_u32_u24 v%d, v%d, 12, v%d" % (r_+it, t_+it, r_+it))
        for it in R5: o.append("v_mul_u32_u24 v%d, 2560, v%d" % (r_+it, r_+it))
        for it in R5: o.append("v_lshl_add_u32 v%d, v%d, 4, v%d" % (GO+it, q_+it, r_+it))
        return o
    deadB = []
    pend = []
    for s_ in range(NS):
        fill = pend; pend = []
        need = [("A", s_)] + ([("B", s_)] if s_ not in LS else [])
        CSM_ = opt("csm", 1)
        if (CSM_ & 1 and s_ == 0) or (CSM_ & 2 and 0 < s_ < opt("csn", 12)):
            lab = "L_k1_cs%d" % s_
            if s_ == 0: k("%s_r:\nds_read_b32 v%d, v%d" % (lab, vFl, vFa))
            else: k("s_branch %s_c\n%s_r:\ns_sleep 1\nds_read_b32 v%d, v%d\n%s_c:" % (lab, lab, vFl, vFa, lab))
            k("s_waitcnt lgkmcnt(0)\nv_readfirstlane_b32 s%d, v%d\ns_cmp_eq_u32 s%d, 0\ns_cbranch_scc1 %s_r" % (sT2, vFl, sT2, lab))
        if CSM_ & 2 and s_+1 < opt("csn", 12): fill = fill + ["ds_read_b32 v%d, v%d" % (vFl, vFa)]
        mf_ = []
        for f in range(4):
            for cb in range(5):
                c = AC + (f*5+cb)*4
                mf_.append("v_mfma_f32_16x16x32_bf16 %s, %s, %s, %s" % (vr(c, 4), vr(BR+bbuf[s_]*20+cb*4, 4), vr(AR+(s_ % NA)*16+f*4, 4), vr(c, 4) if s_ else "0"))
        if opt("ilv", 1):
            nf = sum(1 for x in fill if x.startswith("buffer_load"))
            k("s_waitcnt vmcnt(%d)%s" % (max(0, vwait(need)-nf), " lgkmcnt(0)" if s_ in LS else ""))
            if opt("p2t", 0): k("s_memrealtime s[100:101]")
            if s_ == NS-1 and opt("ovl", 1):
                assert not fill
                fill = ["s_nop 0"]*5 + ["ds_write_b128 v%d, %s offset:%d" % (vOut, vr(AC+(f*5+cb)*4, 4), f*5120+cb*64) for f in range(3) for cb in range(5)]
            if EARLY and s_ in (NS-3, NS-2):
                if s_ == NS-3:
                    cand = [b_ for b_ in deadB if BR + b_*20 >= AR + 100]
                    GOH[0] = BR + cand[0]*20
                    ra_ = red_addr()
                half = ra_[:36] if s_ == NS-3 else ra_[36:]
                interleave(k, mf_, fill + half, per=2)
            else: interleave(k, mf_, fill, per=1)
            if opt("p2t", 0): k("s_waitcnt lgkmcnt(0)\nv_writelane_b32 v1, s100, %d" % s_)
        else:
            for x in fill: k(x)
            k("s_waitcnt vmcnt(%d)%s" % (vwait(need), " lgkmcnt(0)" if s_ in LS else ""))
            if opt("p2t", 0): k("s_memrealtime s[100:101]")
            for x in mf_: k(x)
            if opt("p2t", 0): k("s_waitcnt lgkmcnt(0)\nv_writelane_b32 v1, s100, %d" % s_)
        for g_ in chkpos:
            if chkpos[g_] == s_:
                if fgrp[g_] == 2: stamp(k, 0)
                flag_check(fgrp[g_])
                if fgrp[g_] == 2: stamp(k, 7)
        while nextA < NS and nextA <= s_ + NA and all(not (g_ <= nextA and chkpos[g_] > s_) for g_ in chkpos):
            pend += ldA(nextA); nextA += 1
        fb = bbuf[s_]
        if s_+2 in LS:
            bbuf[s_+2] = fb
            j = LS.index(s_+2)
            pend.append("s_waitcnt vmcnt(%d)" % vwait([("L", s_+2)]))
            for f in range(5): pend.append("ds_read_b128 %s, v%d offset:%d" % (vr(BR+fb*20+f*4, 4), vLd, j*5120+f*1024))
        elif nextB < len(streamed):
            bbuf[streamed[nextB]] = fb
            pend += ldB(streamed[nextB], fb); nextB += 1
        else: deadB.append(fb)
        for g_ in chkpos:
            if chkpos[g_] == s_+1: pend.insert(0, flag_load(fgrp[g_]))
    stamp(k, 5)
    OSC = ["", " sc1", " nt", " sc0 sc1"][opt("osc", 1)]
    wr_last = ["ds_write_b128 v%d, %s offset:%d" % (vOut, vr(AC+(f*5+cb)*4, 4), f*5120+cb*64) for f in ((3,) if opt("ovl", 1) else (1, 2, 3, 0)) for cb in range(5)]
    for x in wr_last: k(x)
    if not EARLY:
        for x in red_addr(): k(x)
    k("s_waitcnt lgkmcnt(0)\ns_barrier")
    for it in R5:
        for f in range(5):
            a_, off = (vA[f], f*5120) if f < 4 else (vLd, 0)
            if f == 0: off = 0
            k("ds_read_b128 %s, v%d offset:%d" % (vr(AR+(it*5+f)*4, 4), a_, off+it*1024))
        if it == 2: k("s_waitcnt lgkmcnt(5)")
    for it in R5:
        k("s_waitcnt lgkmcnt(%d)" % min(15, 20-5*it))
        q = AR+it*20
        for h in range(0, 4, 2):
            k("v_pk_add_f32 %s, %s, %s\nv_pk_add_f32 %s, %s, %s" % (vr(q+h, 2), vr(q+h, 2), vr(q+4+h, 2), vr(q+8+h, 2), vr(q+8+h, 2), vr(q+12+h, 2)))
        for h in range(0, 4, 2): k("v_pk_add_f32 %s, %s, %s" % (vr(q+h, 2), vr(q+h, 2), vr(q+16+h, 2)))
        for h in range(0, 4, 2): k("v_pk_add_f32 %s, %s, %s" % (vr(q+h, 2), vr(q+h, 2), vr(q+8+h, 2)))
        k("buffer_store_dwordx4 %s, v%d, %s, s%d offen%s" % (vr(q, 4), GOH[0]+it, sq(SO), sT3, OSC))
    stamp(k, 6)
    if opt("p2t", 0):
        k("s_lshl_b32 s83, s2, 11\ns_add_u32 s83, s83, 0x%x\nv_lshl_add_u32 v12, v0, 2, s83" % (STAMP_OFF + 0x40000))
        k("global_store_dword v12, v1, %s" % sp(pWs))
    stamp_out(k, 0, 8, pWs, 76)
    k("s_endpgm")

    k("L_k1_C:")
    decode()
    k("v_mov_b32 v%d, 0\nv_lshlrev_b32 v%d, 2, v%d\nv_add_u32 v%d, %d, v%d\nds_write2_b32 v%d, v%d, v%d offset1:16" % (vT[1], vT[2], vM, vT[2], FLG, vT[2], vT[2], vT[1], vT[1]))
    k("s_waitcnt lgkmcnt(0)\ns_barrier")
    k("s_setprio 3")
    k("s_mov_b64 s[48:49], %s\ns_mov_b64 s[50:51], %s\ns_mov_b64 s[52:53], %s" % (sp(pX), sp(pD), sp(pWs)))
    aX = [12, 13]; aW = [14, 15, 16, 17]
    XS = [20, 36]
    WR = 52
    ACC = 84
    k("v_lshrrev_b32 v%d, 1, v%d\nv_xor_b32 v%d, v%d, v%d\nv_lshlrev_b32 v%d, 4, v%d" % (vT[0], vM, vT[0], vT[0], vG, vT[0], vT[0]))
    k("v_lshl_add_u32 v%d, v%d, 7, v%d" % (vT[5], vM, vT[0]))
    k("s_lshl_b32 s%d, s%d, 13" % (sT0, sMH))
    k("v_add_u32 v%d, s%d, v%d\nv_xor_b32 v%d, 64, v%d" % (aX[0], sT0, vT[5], aX[1], aX[0]))
    k("v_lshrrev_b32 v%d, 2, v%d\nv_lshl_add_u32 v%d, v%d, 3, v%d\nv_lshlrev_b32 v%d, 7, v%d" % (vT[0], vM, vT[0], vG, vT[0], vT[0], vT[0]))
    k("v_and_b32 v%d, 1, v%d\nv_lshlrev_b32 v%d, 1, v%d\nv_lshrrev_b32 v%d, 3, v%d\nv_or_b32 v%d, v%d, v%d" % (vT[1], vG, vT[1], vT[1], vT[2], vM, vT[1], vT[1], vT[2]))
    k("v_lshl_add_u32 v%d, v%d, 5, v%d" % (vT[0], vT[1], vT[0]))
    k("v_and_b32 v%d, 3, v%d\nv_lshl_add_u32 v%d, v%d, 3, v%d\nv_add_u32 v%d, 16384, v%d" % (vT[1], vM, vT[0], vT[1], vT[0], vT[0], vT[0]))
    k("s_lshl_b32 s%d, s%d, 1\ns_add_u32 s%d, s%d, s%d" % (sC, sI, sC, sC, sMH))
    k("s_mov_b32 s%d, 0\ns_mov_b32 s%d, 0" % (sIt, sRd))
    k("s_cmp_eq_u32 s%d, 1\ns_cbranch_scc1 L_k1_CB" % sTY)

    def c_loop(tag, frags, R, D, WR, addr_regs, post):
        n = len(frags); N = 2*n
        assert N % R == 0
        def wreg(p): return WR + (p % R)*4
        def rdW(p): return frags[p % n][0]((p % N)//n, wreg(p))
        def rdX(h): return ["ds_read_b128 %s, v%d offset:%d" % (vr(XS[h]+4*b, 4), aX[h], b*2048) for b in range(4)]
        def mf(p): return [frags[p % n][1](b, XS[(p % N)//n]+4*b, wreg(p)) for b in range(4)]
        adv = ["s_mov_b32 s%d, %d\ns_add_u32 s%d, s%d, 1\ns_cmp_eq_u32 s%d, 3\ns_cselect_b32 s%d, 0, s%d\ns_cselect_b32 s%d, %d, s%d" % (sDelta, SL, sRd, sRd, sRd, sRd, sRd, sDelta, (-2*SL) & 0xffffffff, sDelta)]
        adv += ["v_add_u32 v%d, s%d, v%d" % (r, sDelta, r) for r in addr_regs]
        vFl, vFa, vDa, vDv = 18, vT[1], vT[2], vT[3]
        sF = sA
        import re as _re
        FLS = N - opt("fl", 3)
        def build():
            mfs = []; gaps = [[] for _ in range(4*N)]
            for j in range(N):
                loads = [("ld", x, ("W", j)) for x in rdW(j)]
                if j == 0: loads = [("ld", x, ("X0", b)) for b, x in enumerate(rdX(0)[:2])] + loads
                if j == 1: loads = [("ld", x, ("X0", b+2)) for b, x in enumerate(rdX(0)[2:])] + loads
                if D <= j < D+4: loads += [("ld", rdX(1)[j-D], ("X1", j-D))]
                if j == FLS: loads += [("ld", "ds_read_b64 %s, v%d " % (vr(vFl, 2), vFa), ("F", 0))]
                if j == N-1 or j == max(n-1, D+3): loads += [("ld", "ds_write_b32 v%d, v%d" % (vDa, vDv), ("DW", j))]
                p = j - D
                ms = mf(p % N)
                for b in range(4):
                    need = [("W", p % N)] + [("X%d" % ((p % N)//n), bb) for bb in range(4)]
                    mfs.append(("mf", ms[b], (need, p < 0)))
                    if b < 3:
                        if loads: gaps[j*4+b].append(loads.pop(0))
                    else: gaps[j*4+b] += loads
            def place(e, lo, hi=4*N-1):
                for cap in (0, 1, 2, 3):
                    for g in range(lo, hi+1):
                        if len(gaps[g]) + (1 if g % 4 == 3 else 0) <= cap:
                            gaps[g].append(e); return g
                raise Exception
            g = 4*D
            def place_s(txt, lo):
                for g in range(lo, 4*N):
                    if len(gaps[g]) + (1 if g % 4 == 3 else 0) <= 1:
                        gaps[g].append(("x", txt, None)); return g
            for txt in ("s_add_u32 s%d, s%d, 1" % (sRd, sRd), "s_cmp_eq_u32 s%d, 3" % sRd, "s_cselect_b32 s%d, s14, s15" % sDelta, "s_cselect_b32 s%d, 0, s%d" % (sRd, sRd), "s_add_u32 s%d, s%d, 1" % (sIt, sIt)):
                g = place_s(txt, g) + 1
            gd = g
            mid = max(n-1, D+3)
            place_s("v_add_u32 v%d, 1, v%d" % (vDv, vDv), gd)
            place(("x", "v_add_u32 v%d, 1, v%d" % (vDv, vDv), None), 4*mid+4, 4*(N-1)-1)
            g1 = place(("use", "v_min_u32 v%d, v%d, v%d" % (vFl, vFl, vFl+1), ([("F", 0)], False)), 4*(N-2)+2, 4*N-4)
            gaps[g1+1].append(("x", "v_readfirstlane_b32 s%d, v%d" % (sF, vFl), None))
            gaps[4*N-2].append(("x", "s_cmp_gt_u32 s%d, s%d" % (sF, sIt), None))
            for r in addr_regs:
                last = max(g for g in range(4*N) for x in gaps[g] if x[0] == "ld" and _re.search(r", v%d " % r, x[1]+" "))
                place(("x", "v_add_u32 v%d, s%d, v%d" % (r, sDelta, r), None), min(max(last+1, gd), 4*N-1))
            seq = []
            for m_, gp in zip(mfs, gaps): seq += [m_] + gp
            return seq
        def emit(seq, prev):
            issued = [(t, True) for t in prev]
            cur = 99
            for kind, text, tg in seq:
                if kind == "ld": issued.append((tg, False)); cur += 1
                elif kind == "lab": cur = 99
                elif kind in ("mf", "use"):
                    w = 15
                    for t in tg[0]:
                        idx = max(i for i, x in enumerate(issued) if x == (t, tg[1]))
                        w = min(w, len(issued)-1-idx)
                    if w < cur:
                        k("s_waitcnt lgkmcnt(%d)" % w); cur = w
                k(text)
        L = "L_k1_cl" + tag
        k("v_mov_b32 v%d, %d\nv_mov_b32 v%d, 0\ns_mov_b32 s14, %d\ns_mov_b32 s15, %d" % (vFa, FLG+16, vDv, (-2*SL) & 0xffffffff, SL))
        k("s_lshl_b32 s%d, s%d, 2\ns_add_u32 s%d, s%d, %d\nv_mov_b32 v%d, s%d" % (sT0, sW, sT0, sT0, FLG, vDa, sT0))
        s2 = build()
        allld = [x[2] for x in s2 if x[0] == "ld"]
        idx2 = next(i for i, x in enumerate(s2) if x[0] == "mf" and not x[2][1])
        k("%s_sp:" % L)
        k("ds_read_b64 %s, v%d\ns_waitcnt lgkmcnt(0)\nv_min_u32 v%d, v%d, v%d\nv_readfirstlane_b32 s%d, v%d" % (vr(vFl, 2), vFa, vFl, vFl, vFl+1, sF, vFl))
        k("s_cmp_gt_u32 s%d, s%d\ns_cbranch_scc0 %s_sp" % (sF, sIt, L))
        k("s_cmp_lg_u32 s%d, 0\ns_cbranch_scc1 %s" % (sIt, L))
        stamp(k, 5)
        for x in s2[:idx2]:
            if x[0] == "ld": k(x[1])
        k("s_branch %s_mid" % L)
        k(".p2align 6")
        k("%s:" % L)
        trace(sIt, 4, 1)
        if opt("clk", 0):
            k("s_cmp_lg_u32 s%d, 5\ns_cbranch_scc1 %s_nc\ns_memrealtime s[84:85]\ns_memtime s[90:91]\n%s_nc:" % (sIt, L, L))
        s2 = s2[:idx2] + [("lab", "%s_mid:" % L, None)] + s2[idx2:]
        emit(s2, allld)
        if TRACE:
            trace(sIt, 4, 0)
            k("s_cmp_gt_u32 s%d, s%d" % (sF, sIt))
        k("s_cbranch_scc1 %s" % L)
        k("s_cmp_lt_u32 s%d, 10\ns_cbranch_scc1 %s_sp" % (sIt, L))
        if opt("cprio", 3) != 3: k("s_setprio %d" % opt("cprio", 3))
        if opt("clk", 0): k("s_memrealtime s[94:95]\ns_memtime s[96:97]")
        k("ds_read_b64 %s, v%d offset:8" % (vr(vFl, 2), vFa))
        k("s_waitcnt lgkmcnt(6)")
        for x in mf(N-D): k(x)
        k("s_branch %s_ec" % L)
        k("%s_es:" % L)
        k("ds_read_b64 %s, v%d offset:8" % (vr(vFl, 2), vFa))
        k("%s_ec:" % L)
        k("s_waitcnt lgkmcnt(0)")
        k("v_min_u32 v%d, v%d, v%d\nv_readfirstlane_b32 s%d, v%d" % (vFl, vFl, vFl+1, sNon, vFl))
        k("s_cmp_eq_u32 s%d, 0\ns_cbranch_scc1 %s_es" % (sNon, L))
        tail = []
        for p in range(N-D+1, N): tail += mf(p)
        interleave(k, tail, post(), lead=2, per=1)

    c0 = -2*math.sqrt(2/math.pi)*LOG2E
    def ffn_epilogue(ACCF, ncb, S4, Mb, RSb, Sb, T, O, K0, vSt, blocks, defer=None):
        for bi, (b, pr_) in enumerate(blocks):
            sel = b & 1
            bc = lambda base: vr(base + (b & ~1), 2)
            os0 = " op_sel:[%d,0,0] op_sel_hi:[%d,1,1]" % (sel, sel)
            items = [(cb, hh) for cb in (2*pr_, 2*pr_+1) for hh in range(2)]
            G = lambda cb, hh: ACCF + (cb*4+b)*4 + 2*hh
            U = lambda cb, hh: ACCF + ((ncb+cb)*4+b)*4 + 2*hh
            Tm = lambda cb, hh: T + (cb & 1)*4 + 2*hh
            for cb, hh in items: k("v_pk_fma_f32 %s, %s, %s, %s%s neg_lo:[1,0,0] neg_hi:[1,0,0]" % (vr(G(cb,hh),2), bc(Mb), vr(S4+cb*4+2*hh,2), vr(G(cb,hh),2), os0))
            for cb, hh in items: k("v_pk_mul_f32 %s, %s, %s op_sel:[%d,0] op_sel_hi:[%d,1]" % (vr(G(cb,hh),2), bc(RSb), vr(G(cb,hh),2), sel, sel))
            for cb, hh in items: k("v_pk_mul_f32 %s, %s, %s" % (vr(Tm(cb,hh),2), vr(G(cb,hh),2), vr(G(cb,hh),2)))
            for cb, hh in items: k("v_pk_fma_f32 %s, %s, %s, %s op_sel:[0,0,1] op_sel_hi:[1,0,1]" % (vr(Tm(cb,hh),2), vr(Tm(cb,hh),2), vr(K0,2), vr(K0,2)))
            for cb, hh in items: k("v_pk_mul_f32 %s, %s, %s" % (vr(Tm(cb,hh),2), vr(Tm(cb,hh),2), vr(G(cb,hh),2)))
            for cb, hh in items:
                k("v_exp_f32 v%d, v%d\nv_exp_f32 v%d, v%d" % (Tm(cb,hh), Tm(cb,hh), Tm(cb,hh)+1, Tm(cb,hh)+1))
                k("v_pk_fma_f32 %s, %s, %s, %s%s neg_lo:[1,0,0] neg_hi:[1,0,0]" % (vr(U(cb,hh),2), bc(Mb), vr(S4+(ncb+cb)*4+2*hh,2), vr(U(cb,hh),2), os0))
            for cb, hh in items: k("v_pk_fma_f32 %s, %s, %s, %s op_sel:[0,%d,%d] op_sel_hi:[1,%d,%d]" % (vr(Tm(cb,hh),2), vr(Tm(cb,hh),2), bc(Sb), bc(Sb), sel, sel, sel, sel))
            for cb, hh in items:
                k("v_rcp_f32 v%d, v%d\nv_rcp_f32 v%d, v%d" % (Tm(cb,hh), Tm(cb,hh), Tm(cb,hh)+1, Tm(cb,hh)+1))
                k("v_pk_mul_f32 %s, %s, %s" % (vr(G(cb,hh),2), vr(G(cb,hh),2), vr(U(cb,hh),2)))
            for cb, hh in items: k("v_pk_mul_f32 %s, %s, %s" % (vr(G(cb,hh),2), vr(G(cb,hh),2), vr(Tm(cb,hh),2)))
            Ob = O + (bi & 1)*4 if defer is None else O[bi]
            for j_, (cb, hh) in enumerate(items): k("v_cvt_pk_bf16_f32 v%d, v%d, v%d" % (Ob+j_, G(cb,hh), G(cb,hh)+1))
            if pr_: k("s_add_u32 s%d, s%d, 4096" % (sT0, sKS))
            st_ = "buffer_store_dwordx4 %s, v%d, %s, s%d offen offset:%d%s" % (vr(Ob, 4), vSt, sq(SWS), sT0 if pr_ else sKS, b*1024, S1)
            if defer is None: k(st_)
            else: defer.append(st_)

    def a2_flag(group, nwait, va, vv):
        k("s_lshl_b32 s%d, s%d, 2\ns_lshr_b32 s%d, s%d, 1\ns_add_u32 s%d, s%d, s%d\ns_mul_i32 s%d, s%d, %d" % (sT0, sC, sT1, sJJ, sT0, sT0, sT1, sT0, sT0, FLS_))
        k("s_and_b32 s%d, s%d, 1\ns_lshl_b32 s%d, s%d, 1\ns_add_u32 s%d, s%d, s%d\ns_mul_i32 s%d, s%d, %d\ns_add_u32 s%d, s%d, s%d\ns_add_u32 s%d, s%d, 0x%x" % (sT1, sJJ, sT1, sT1, sT1, sT1, sNH, sT1, sT1, FSP, sT0, sT0, sT1, sT0, sT0, FL_OFF + group*FGS))
        k("v_mov_b32 v%d, s%d\nv_mov_b32 v%d, s%d" % (va, sT0, vv, sNon))
        k("s_waitcnt vmcnt(%d)\ns_mov_b64 exec, 1" % nwait)
        k("buffer_store_dword v%d, v%d, %s, 0 offen%s\ns_mov_b64 exec, -1" % (vv, va, sq(SWS), SC))

    CSM = opt("csm", 1)
    def cs_set(val, va, vv):
        k("s_lshl_b32 s%d, s%d, 2\ns_add_u32 s%d, s%d, %d\nv_mov_b32 v%d, s%d\nv_mov_b32 v%d, %d\nds_write_b32 v%d, v%d" % (sT0, sW, sT0, sT0, FLG+64, va, sT0, vv, val, va, vv))
    def base_loads(R):
        k("s_and_b32 s%d, s2, 7\ns_lshr_b32 s%d, s2, 3" % (sT0, sT1))
        k("s_lshr_b32 s%d, s%d, 1\ns_lshl_b32 s%d, s%d, 3\ns_and_b32 s%d, s%d, 7\ns_add_u32 s%d, s%d, s%d" % (sT3, sT0, sT3, sT3, sT2, sT1, sT3, sT3, sT2))
        k("s_and_b32 s%d, s%d, 1\ns_lshl_b32 s%d, s%d, 2\ns_lshr_b32 s%d, s%d, 3\ns_add_u32 s%d, s%d, s%d\ns_mul_i32 s%d, s%d, 80" % (sT0, sT0, sT0, sT0, sT2, sT1, sT0, sT0, sT2, sT0, sT0))
        k("s_lshl_b32 s%d, s%d, 6\ns_lshl_b32 s%d, s%d, 2\ns_add_u32 s%d, s%d, s%d" % (sT3, sT3, sT1, sW, sT3, sT3, sT1))
        ra, rb, rc = R+22, R+23, R+24
        k("v_lshrrev_b32 v%d, 2, v%d\nv_lshlrev_b32 v%d, 4, v%d\nv_and_b32 v%d, 3, v%d\nv_add3_u32 v%d, v%d, v%d, s%d" % (ra, vM, ra, ra, rb, vM, ra, ra, rb, sT3))
        k("v_lshl_add_u32 v%d, v%d, 2, s%d" % (rb, vG, sT0))
        k("v_mul_u32_u24 v%d, 640, v%d\nv_add_u32 v%d, v%d, v%d\nv_lshlrev_b32 v%d, 1, v%d\nv_lshlrev_b32 v%d, 1, v%d" % (rc, ra, rc, rc, rb, rc, rc, rb, rb))
        k("v_lshlrev_b32 v%d, 3, v%d\nv_add_u32 v%d, 0x%x, v%d" % (ra, ra, ra, RST_OFF, ra))
        for cb in range(5):
            k("global_load_dwordx2 %s, v%d, %s offset:%d" % (vr(R+2*cb, 2), rc, sp(48), cb*32))
            k("global_load_dwordx2 %s, v%d, %s offset:%d" % (vr(R+10+2*cb, 2), rb, sp(50), cb*32))
        k("v_mov_b32 v%d, v%d" % (R+98, ra))
        k("buffer_load_dwordx2 %s, v%d, %s, 0 offen%s" % (vr(R+20, 2), ra, sq(SWS), SC))
    def base_compute(R):
        k("s_setprio 0")
        ST_ = R+20; X4, D4, T4 = R+28, R+48, R+68
        k("s_mul_i32 s%d, s%d, %d\ns_add_u32 s%d, s%d, %d" % (sT0, sW, 80*TRP, sT0, sT0, TRB))
        k("v_bfe_u32 v%d, v%d, 1, 2\nv_xor_b32 v%d, v%d, v%d\nv_mul_u32_u24 v%d, 320, v%d\nv_lshl_add_u32 v%d, v%d, 4, v%d\nv_add_u32 v%d, s%d, v%d" % (R+23, vM, R+23, R+23, vG, R+22, vM, R+22, R+23, R+22, R+22, sT0, R+22))
        k("v_mov_b32 v%d, %d" % (R+23, FLG))
        wait_done("L_k1_bw%d" % R, "16", R+23, R+24)
        k("s_mov_b32 s%d, 0\nL_k1_bt:\ns_waitcnt vmcnt(0)\nv_cmp_ne_u32 vcc, s%d, v%d\ns_add_u32 s%d, s%d, 1\ns_cbranch_vccz L_k1_bto" % (sT3, sNon, ST_+1, sT3, sT3))
        k("s_cmp_gt_u32 s%d, 0x40000\ns_cbranch_scc1 L_k1_bto\ns_sleep 8\nbuffer_load_dwordx2 %s, v%d, %s, 0 offen%s\ns_branch L_k1_bt\nL_k1_bto:" % (sT3, vr(R+20, 2), R+98, sq(SWS), SC))
        k("v_and_b32 v%d, s%d, v%d\nv_lshlrev_b32 v%d, 16, v%d\nv_rcp_f32 v%d, v%d" % (ST_+1, sMASK, ST_, ST_, ST_, ST_+1, ST_+1))
        for d in range(10): k("v_lshlrev_b32 v%d, 16, v%d\nv_and_b32 v%d, s%d, v%d\nv_lshlrev_b32 v%d, 16, v%d\nv_and_b32 v%d, s%d, v%d" % (X4+2*d, R+d, X4+2*d+1, sMASK, R+d, D4+2*d, R+10+d, D4+2*d+1, sMASK, R+10+d))
        def rnd():
            for h in range(10): k("v_cvt_pk_bf16_f32 v%d, v%d, v%d" % (T4+20+h, T4+2*h, T4+2*h+1))
            for h in range(10): k("v_lshlrev_b32 v%d, 16, v%d\nv_and_b32 v%d, s%d, v%d" % (T4+2*h, T4+20+h, T4+2*h+1, sMASK, T4+20+h))
        for r in range(20): k("v_sub_f32 v%d, v%d, v%d" % (T4+r, X4+r, ST_))
        rnd()
        for r in range(20): k("v_mul_f32 v%d, v%d, v%d" % (T4+r, T4+r, ST_+1))
        rnd()
        for r in range(20): k("v_mul_f32 v%d, v%d, v%d" % (T4+r, T4+r, D4+r))
        rnd()
        for r in range(20): k("v_add_f32 v%d, v%d, v%d" % (T4+r, T4+r, X4+r))
        if opt("perturb", 0):
            for r in range(20): k("v_add_f32 v%d, %s, v%d" % (T4+r, f32(opt("perturb", 0)/1000.), T4+r))
        for cb in range(5): k("ds_write_b128 v%d, %s offset:%d" % (R+22, vr(T4+4*cb, 4), cb*64))
        k("s_waitcnt lgkmcnt(0)")

    def ffn_frag(ACCF, idx, areg, gu):
        rd = lambda h, reg: ["ds_read_b64_tr_b16 %s, v%d offset:%d" % (vr(reg+2*jx, 2), areg, h*4096+jx*512+gu*8192) for jx in range(2)]
        mf = lambda b, x, w: "v_mfma_f32_16x16x32_bf16 %s, %s, %s, %s" % (vr(ACCF+(idx*4+b)*4, 4), vr(w, 4), vr(x, 4), vr(ACCF+(idx*4+b)*4, 4))
        return (rd, mf)

    k("s_lshl_b32 s%d, s%d, 14" % (sT0, sNH))
    k("v_add_u32 v%d, s%d, v%d" % (aW[0], sT0, vT[0]))
    for c in range(1, 4): k("v_xor_b32 v%d, %d, v%d" % (aW[c], 32*c, aW[0]))
    k("s_lshr_b32 s%d, s%d, 5\ns_lshl_b32 s%d, s%d, 1\ns_add_u32 s%d, s%d, s%d\ns_mul_i32 s%d, s%d, 88\ns_add_u32 s%d, s%d, s%d\ns_lshl_b32 s%d, s%d, 12" % (sT0, sCol, sT1, sNH, sT0, sT0, sT1, sT1, sC, sT0, sT0, sT1, sKS, sT0))
    for r in range(0, 128, 2): k("v_mov_b64 v[%d:%d], 0" % (ACC+r, ACC+r+1))
    srd(k, SWS, pWs, WS_NREC)
    E = 212
    S4 = E; Mb, RSb, Sb = XS[0], XS[0]+4, XS[0]+8; K0 = XS[0]+12
    def postA():
        o = ["s_lshl_b32 s%d, s%d, 9\ns_add_u32 s%d, s%d, %d\nv_lshl_add_u32 v%d, v%d, 4, s%d" % (sT0, sNH, sT0, sT0, SFF, vT[1], vG, sT0),
             "s_mul_i32 s%d, s%d, 768\ns_add_u32 s%d, s%d, %d\nv_lshl_add_u32 v%d, v%d, 2, s%d" % (sT0, sMH, sT0, sT0, STAT_M, vT[2], vM, sT0)]
        for b in range(0, 4, 2):
            for a, off in ((Mb, 0), (RSb, 64), (Sb, 128)):
                o.append("ds_read2_b32 %s, v%d offset0:%d offset1:%d" % (vr(a+b, 2), vT[2], off+b*16, off+b*16+16))
        for j in range(8): o.append("ds_read_b128 %s, v%d offset:%d" % (vr(S4+4*j, 4), vT[1], j*64))
        o += ["v_lshlrev_b32 v%d, 4, v%d" % (vT[3], vL), "v_mov_b32 v%d, %s\nv_mov_b32 v%d, %s" % (K0, f32(c0*0.044715), K0+1, f32(c0))]
        return o
    fr = []
    for cb in range(4):
        for gu in range(2): fr.append(ffn_frag(ACC, gu*4+cb, aW[cb], gu))
    c_loop("A", fr, 8, opt("da", 5), WR, aX + aW, postA)
    stamp(k, 1)
    k("s_waitcnt lgkmcnt(0)")
    blk = [(b, p) for p in range(2) for b in range(4)]
    HF = opt("hf", 6)
    ffn_epilogue(ACC, 4, S4, Mb, RSb, Sb, E+32, XS[1], K0, vT[3], blk[:HF])
    a2_flag(0, HF-4, vT[0], vT[1])
    ffn_epilogue(ACC, 4, S4, Mb, RSb, Sb, E+32, XS[1], K0, vT[3], blk[HF:])
    stamp(k, 2)
    cs_set(1, vT[0], vT[1])
    a2_flag(3, 0, vT[0], vT[1])
    stamp(k, 4)
    k("s_branch L_k1_base")

    k("L_k1_CB:")
    WRB = 52
    ACCF = 76
    ACCS = 140
    ca = Alloc(220)
    cLr = ca(5); cMu = ca(5); cKk = ca(5); c16r = ca(5); c16k = ca(5); cKr = ca(10, 2)
    assert ca.n <= (255 if TRACE else 256) + 1
    k("s_lshl_b32 s%d, s%d, 6" % (sT0, sNH))
    k("v_xor_b32 v%d, s%d, v%d\nv_xor_b32 v%d, 32, v%d" % (aW[0], sT0, vT[0], aW[1], aW[0]))
    k("s_mul_i32 s%d, s%d, 10240\ns_add_u32 s%d, s%d, 32768" % (sT0, sNH, sT0, sT0))
    k("v_add_u32 v%d, s%d, v%d\nv_xor_b32 v%d, 64, v%d" % (aW[2], sT0, vT[5], aW[3], aW[2]))
    k("s_lshr_b32 s%d, s%d, 5\ns_add_u32 s%d, s%d, s%d\ns_mul_i32 s%d, s%d, 88\ns_add_u32 s%d, s%d, s%d\ns_lshl_b32 s%d, s%d, 12" % (sT0, sCol, sT0, sT0, sNH, sT1, sC, sT0, sT0, sT1, sKS, sT0))
    srd(k, SWS, pWs, WS_NREC)
    for r in range(0, 144, 2): k("v_mov_b64 v[%d:%d], 0" % (ACCF+r, ACCF+r+1))
    k("s_lshl_b32 s%d, s%d, 1\ns_add_u32 s%d, s%d, s%d\ns_lshl_b32 s%d, s%d, 14\ns_add_u32 s%d, s%d, 0x%x" % (sT2, sJJ, sT2, sT2, sNH, sT0, sT2, sT0, sT0, CAR_OFF))
    srd(k, SP0, pWs, 16384, "s%d" % sT0)
    HST = 4224
    k("s_mul_i32 s%d, s%d, %d\ns_add_u32 s58, s%d, 0x%x\ns_lshr_b32 s%d, s%d, 2\ns_mul_i32 s%d, s%d, %d\ns_add_u32 s%d, s%d, s58\ns_add_u32 s54, s%d, s%d\ns_addc_u32 s55, s%d, 0" % (sT0, sT2, 8*HST, sT0, CH_OFF, sT0, sC, sT0, sT0, HST, sT0, sT0, pWs, sT0, pWs+1))
    k("s_lshl_b32 s%d, s%d, 2\ns_add_u32 s58, s58, s%d" % (sT0, sC, sT0))
    k("s_add_u32 s%d, s%d, 1\ns_lshr_b32 s%d, s%d, 1\ns_lshl_b32 s59, 1, s%d\ns_sub_u32 s59, s59, 1" % (sT0, sC, sT0, sT0, sT0))
    if not opt("hint", 1): k("s_mov_b32 s59, 0")
    sSS = [68, 69, 70, 71, 79]
    k("s_mul_i32 s%d, s%d, 88\ns_add_u32 s%d, s%d, 48\ns_lshl_b32 s%d, s%d, 12" % (sT3, sC, sT3, sT3, sT3, sT3))
    k("s_mul_i32 s%d, s%d, 10\ns_mul_i32 s%d, s%d, 5\ns_add_u32 s%d, s%d, s%d" % (sT2, sJJ, sT0, sNH, sT2, sT2, sT0))
    for q in range(5):
        k("s_add_u32 s%d, s%d, %d\ns_lshr_b32 s%d, s%d, 1\ns_lshl_b32 s%d, s%d, 12\ns_and_b32 s%d, s%d, 1\ns_lshl_b32 s%d, s%d, 9" % (sT0, sT2, q, sT1, sT0, sT1, sT1, sT0, sT0, sT0, sT0))
        k("s_add_u32 s%d, s%d, s%d\ns_add_u32 s%d, s%d, s%d" % (sT0, sT0, sT1, sSS[q], sT0, sT3))
    KR = [cKr+2*q for q in range(5)]
    for s in range(1, 4): k("v_cmp_eq_u32 %s, %d, v%d" % (sp(16+2*s), s, vG))
    def ssm_frag(q):
        rd = lambda h, reg: ["ds_read_b128 %s, v%d offset:%d" % (vr(reg, 4), aW[2+h], q*2048)]
        mf = lambda b, x, w: "v_mfma_f32_16x16x32_bf16 %s, %s, %s, %s" % (vr(ACCS+(q*4+b)*4, 4), vr(x, 4), vr(w, 4), vr(ACCS+(q*4+b)*4, 4))
        return (rd, mf)
    fr = [ssm_frag(q) for q in range(5)]
    for cb in range(2):
        for gu in range(2): fr.append(ffn_frag(ACCF, gu*2+cb, aW[cb], gu))
    M4 = XS[0]
    SQ = [247, 249, 251, 253, 245]
    def postB():
        o = ["s_mul_i32 s%d, s%d, 768\ns_add_u32 s%d, s%d, %d\nv_lshl_add_u32 v%d, v%d, 4, s%d\nv_lshl_add_u32 v%d, v%d, 2, s%d" % (sT0, sMH, sT0, sT0, STAT_M, vT[3], vG, sT0, vT[2], vM, sT0),
             "s_mul_i32 s%d, s%d, 3072\ns_add_u32 s%d, s%d, %d\nv_lshl_add_u32 v%d, v%d, 4, s%d" % (sT0, sNH, sT0, sT0, CT, vT[5], vM, sT0)]
        for b in range(4): o.append("ds_read_b128 %s, v%d offset:%d" % (vr(M4+4*b, 4), vT[3], b*64))
        for qd in (6, 7, 8, 0, 1, 2, 3, 4, 5):
            if qd == 8 and TRACE: o.append("ds_read_b96 %s, v%d offset:%d" % (vr(220+4*qd, 3), vT[5], qd*256))
            else: o.append("ds_read_b128 %s, v%d offset:%d" % (vr(220+4*qd, 4), vT[5], qd*256))
        return o
    c_loop("B", fr, 6, opt("db", 5), WRB, aX + aW, postB)
    stamp(k, 1)
    RS4 = XS[1]
    for b in range(4): k("ds_read_b128 %s, v%d offset:%d" % (vr(RS4+4*b, 4), vT[3], 256+b*64))
    Z = [[ACCS + (q*4 + (t >> 2))*4 + (t & 3) for t in range(16)] for q in range(5)]
    H = [[52+q, 57+q] for q in range(5)]
    k("s_waitcnt lgkmcnt(4)")
    for t in range(0, 16, 2):
        for q in range(5): k("v_pk_fma_f32 %s, %s, %s, %s op_sel:[0,1,0] op_sel_hi:[1,1,1] neg_lo:[1,0,0] neg_hi:[1,0,0]" % (vr(Z[q][t], 2), vr(M4+t, 2), vr(SQ[q]-1, 2), vr(Z[q][t], 2)))
    k("s_waitcnt lgkmcnt(0)")
    for t in range(16):
        if t % 2 == 0:
            for q in range(5): k("v_pk_mul_f32 %s, %s, %s" % (vr(Z[q][t], 2), vr(RS4+t, 2), vr(Z[q][t], 2)))
        if t >= 1:
            prev = [Z[q][0] if t == 1 else H[q][t & 1] for q in range(5)]
            cur = [H[q][(t+1) & 1] for q in range(5)]
            for q in range(5): k("v_fma_f32 v%d, v%d, v%d, v%d" % (cur[q], cLr+q, prev[q], Z[q][t]))
            for q in range(5): k("v_fmac_f32_dpp v%d, v%d, v%d%s" % (cur[q], prev[q], cMu+q, DPP))
    a_ = [H[q][0] for q in range(5)]; b_ = [H[q][1] for q in range(5)]
    c_ = r5(20)
    TOT = 28
    d_ = [TOT, TOT+1, TOT+2, TOT+4, TOT+5]
    MINE = [12, 13, 14, 15, 16]
    S4 = 36; Mb, RSb, Sb = 62, 66, 70; K0 = 74
    def ffn_inputs():
        k("s_lshl_b32 s%d, s%d, 9\ns_add_u32 s%d, s%d, %d\nv_lshl_add_u32 v%d, v%d, 4, s%d" % (sT0, sNH, sT0, sT0, SFF, vT[0], vG, sT0))
        for b in range(0, 4, 2):
            for a, off in ((Mb, 0), (RSb, 64), (Sb, 128)):
                k("ds_read2_b32 %s, v%d offset0:%d offset1:%d" % (vr(a+b, 2), vT[2], off+b*16, off+b*16+16))
        for j in range(4): k("ds_read_b128 %s, v%d offset:%d" % (vr(S4+4*j, 4), vT[0], j*64))
        k("v_mov_b32 v%d, %s\nv_mov_b32 v%d, %s" % (K0, f32(c0*0.044715), K0+1, f32(c0)))
    ffn_inputs()
    for q in range(5): k("v_mov_b32 v%d, v%d" % (b_[q], a_[q]))
    for q in range(5): k("v_permlane16_swap_b32 v%d, v%d" % (a_[q], b_[q]))
    for q in range(5): k("v_mov_b32 v%d, v%d\nv_mov_b32 v%d, v%d" % (c_[q], a_[q], d_[q], b_[q]))
    for q in range(5): k("v_permlane32_swap_b32 v%d, v%d\nv_permlane32_swap_b32 v%d, v%d" % (a_[q], c_[q], b_[q], d_[q]))
    seq = [a_, b_, c_, d_]
    k("v_mov_b32 v%d, s%d\nv_mov_b32 v%d, s%d" % (TOT+3, sNon, TOT+7, sNon))
    k("s_lshl_b32 s%d, s%d, 9" % (sT0, sC))
    k("v_lshlrev_b32 v%d, 4, v%d\nv_mul_u32_u24 v19, %d, v%d" % (vT[1], vM, HST, vM))
    for s in range(1, 4):
        for q in range(5): k("v_fmac_f32 v%d, v%d, v%d" % (seq[s][q], c16r+q, seq[s-1][q]))
        for q in range(5): k("v_fmac_f32_dpp v%d, v%d, v%d%s" % (seq[s][q], seq[s-1][q], c16k+q, DPP))
    k("s_mov_b64 exec, 0xffff")
    k("buffer_store_dwordx4 %s, v%d, %s, s%d offen%s" % (vr(TOT, 4), vT[1], sq(SP0), sT0, SC))
    k("buffer_store_dwordx4 %s, v%d, %s, s%d offen offset:256%s" % (vr(TOT+4, 4), vT[1], sq(SP0), sT0, SC))
    k("s_mov_b64 exec, 0xff")
    k("buffer_store_dword v%d, v19, %s, s58 offen%s" % (TOT+3, sq(SWS), SC))
    k("s_mov_b64 exec, -1")
    k("s_mov_b32 s56, s%d\ns_mov_b32 s57, s%d" % (sNon, sNon))
    cs_set(1, 17, 18)
    stamp(k, 2)
    for q in range(5): k("v_cndmask_b32 v%d, 0, v%d, %s" % (MINE[q], a_[q], sp(18)))
    for q in range(5): k("v_cndmask_b32 v%d, v%d, v%d, %s" % (MINE[q], MINE[q], b_[q], sp(20)))
    for q in range(5): k("v_cndmask_b32 v%d, v%d, v%d, %s" % (MINE[q], MINE[q], c_[q], sp(22)))
    k("v_lshlrev_b32 v%d, 4, v%d" % (vT[3], vL))
    k("s_waitcnt lgkmcnt(0)")
    dst_ = []
    DFR = opt("dfr", 1)
    for b in range(4):
        if b == 3: k("s_load_dwordx16 s[16:31], s[54:55], 0 glc\ns_load_dwordx16 s[32:47], s[54:55], 64 glc")
        ffn_epilogue(ACCF, 2, S4, Mb, RSb, Sb, 20, [[236, 240, 52, 56][b]], K0, vT[3], [(b, 0)], defer=dst_)
        if not DFR: k(dst_.pop())
    def hint_check():
        k("s_waitcnt lgkmcnt(0)\ns_mov_b32 s%d, 0" % sT0)
        for j in range(15, -1, -1): k("s_cmp_lg_u64 %s, s[56:57]\ns_addc_u32 s%d, s%d, s%d" % (sp(16+2*j), sT0, sT0, sT0))
        k("s_and_b32 s%d, s%d, s59" % (sT0, sT0))
    if not opt("clk", 0): stamp(k, 6)
    PRb = [ACCF + u*8 for u in range(8)]
    k("s_sub_u32 s%d, s%d, 1" % (sT0, sC))
    k("v_sub_u32 v%d, s%d, v%d\nv_lshlrev_b32 v%d, 9, v%d\nv_lshl_add_u32 v%d, v%d, 4, v%d" % (vT[1], sT0, vG, vT[1], vT[1], vT[1], vM, vT[1]))
    def pred_loads():
        for u in range(8):
            if u: k("v_subrev_u32 v%d, %d, v%d" % (vT[0], u*2048, vT[1]))
            a = vT[0] if u else vT[1]
            k("buffer_load_dwordx4 %s, v%d, %s, 0 offen%s" % (vr(PRb[u], 4), a, sq(SP0), PSC_))
            k("buffer_load_dwordx4 %s, v%d, %s, 0 offen offset:256%s" % (vr(PRb[u]+4, 4), a, sq(SP0), PSC_))
    hint_check()
    k("s_mov_b32 s%d, s%d\ns_cbranch_scc1 L_k1_npl" % (sDelta, sT0))
    pred_loads()
    k("L_k1_npl:")
    for x in dst_: k(x)
    k("s_mul_i32 s%d, s%d, %d\ns_add_u32 s%d, s%d, %d" % (sKx, sW, 80*TRP, sKx, sKx, TRB))
    k("v_add_u32 v%d, s%d, v%d" % (vT[4], sKx, vT[3]))
    for qd in range(3): k("ds_read_b128 %s, v%d offset:%d" % (vr(32+4*qd, 4), vT[5], (9+qd)*256))
    L256r, L256k = r5(32), r5(37)
    free = [20+2*q for q in range(5)]
    for t in range(0, 16, 2):
        nf = []
        for q in range(5): k("v_pk_mul_f32 %s, %s, %s op_sel_hi:[0,1]" % (vr(free[q], 2), vr(KR[q], 2), vr(Z[q][t], 2)))
        for e in range(2):
            for q in range(5): k("v_fmac_f32_dpp v%d, v%d, v%d%s" % (free[q]+e, Z[q][t]+e, cKk+q, DPP))
        for q in range(5):
            nf.append(Z[q][t]); Z[q][t] = free[q]; Z[q][t+1] = free[q]+1
        free = nf
    t0, t1 = 30, 31
    k("s_mov_b32 s%d, 0\ns_cmp_eq_u32 s%d, 0\ns_cbranch_scc1 L_k1_early" % (sRd, sDelta))
    k("s_load_dwordx16 s[16:31], s[54:55], 0 glc\ns_load_dwordx16 s[32:47], s[54:55], 64 glc")
    hint_check()
    k("s_cbranch_scc0 L_k1_hd")
    a2_flag(1, 0, 30, 31)
    stamp(k, 7)
    k("s_mov_b32 s%d, 1\ns_mov_b32 s%d, 0" % (sRd, sT3))
    k("L_k1_hr:")
    k("s_load_dwordx16 s[16:31], s[54:55], 0 glc\ns_load_dwordx16 s[32:47], s[54:55], 64 glc")
    hint_check()
    k("s_cbranch_scc0 L_k1_hd\ns_sleep %d\ns_add_u32 s%d, s%d, 1\ns_cmp_lt_u32 s%d, 0x100000\ns_cbranch_scc1 L_k1_hr" % (opt("hsl", 3), sT3, sT3, sT3))
    k("L_k1_hd:")
    pred_loads()
    if DFR:
        k("s_mov_b32 s%d, 0\ns_branch L_k1_poll" % sT3)
        k("L_k1_early:")
        k("s_mov_b32 s%d, 0\ns_waitcnt vmcnt(4)\ns_branch L_k1_poll2" % sT3)
    else:
        k("s_mov_b32 s%d, 0\ns_cmp_lg_u32 s%d, 0\ns_cbranch_scc1 L_k1_poll" % (sT3, sRd))
        k("L_k1_early:")
        a2_flag(1, 16, 30, 31)
        stamp(k, 7)
        k("s_mov_b32 s%d, 0\ns_waitcnt vmcnt(1)\ns_branch L_k1_poll2" % sT3)
    k("L_k1_poll:")
    k("s_waitcnt vmcnt(0)")
    k("L_k1_poll2:")
    k("s_mov_b32 s%d, 0" % sT2)
    for u in range(8):
        k("v_cmp_ne_u32 s[24:25], s%d, v%d\nv_cmp_ne_u32 s[26:27], s%d, v%d\nv_cmp_le_i32 vcc, %d, v%d" % (sNon, PRb[u]+3, sNon, PRb[u]+7, u*2048, vT[1]))
        k("s_or_b64 s[24:25], s[24:25], s[26:27]\ns_and_b64 s[24:25], s[24:25], vcc\ns_cbranch_scc0 L_k1_pu%d" % u)
        k("s_cmp_lg_u32 s%d, 0\ns_cbranch_scc1 L_k1_ps%d\ns_sleep %d\nL_k1_ps%d:" % (sT2, u, opt("csl", 8), u))
        k("s_mov_b32 s%d, 1" % sT2)
        k("v_subrev_u32 v%d, %d, v%d" % (vT[0], u*2048, vT[1]))
        k("s_mov_b64 exec, s[24:25]")
        k("buffer_load_dwordx4 %s, v%d, %s, 0 offen%s" % (vr(PRb[u], 4), vT[0], sq(SP0), PSC_))
        k("buffer_load_dwordx4 %s, v%d, %s, 0 offen offset:256%s" % (vr(PRb[u]+4, 4), vT[0], sq(SP0), PSC_))
        k("s_mov_b64 exec, -1")
        k("L_k1_pu%d:" % u)
    k("s_add_u32 s%d, s%d, 1\ns_cmp_eq_u32 s%d, 0\ns_cbranch_scc1 L_k1_polled" % (sT3, sT3, sT2))
    k("s_cmp_lt_u32 s%d, 0x40000\ns_cbranch_scc1 L_k1_poll" % sT3)
    k("L_k1_polled:")
    if CSM & 2: cs_set(0, 17, 18)
    if not opt("clk", 0): stamp(k, 3)
    pr = lambda u, q: PRb[u]+(q if q < 3 else q+1)
    k("s_waitcnt lgkmcnt(0)")
    for u in range(6, -1, -1):
        for q in range(5): k("v_fmac_f32 v%d, v%d, v%d" % (pr(u, q), L256r[q], pr(u+1, q)))
        for q in range(5): k("v_fmac_f32_dpp v%d, v%d, v%d%s" % (pr(u, q), pr(u+1, q), L256k[q], DPP))
        if u == 4:
            for qd in range(5): k("ds_read_b128 %s, v%d offset:%d" % (vr(PRb[5]+4*qd, 4), vT[4], qd*1024))
    L64r, L64k, Psr, Psk = r5(PRb[5]), r5(PRb[5]+5), r5(PRb[5]+10), r5(PRb[5]+15)
    k("s_waitcnt lgkmcnt(0)")
    for q in range(5): k("v_mul_f32 v%d, v%d, v%d" % (pr(1, q), L64r[q], pr(0, q)))
    for q in range(5): k("v_fmac_f32_dpp v%d, v%d, v%d%s" % (pr(1, q), pr(0, q), L64k[q], DPP))
    for sw in ("v_permlane16_swap_b32", "v_permlane32_swap_b32"):
        for q in range(5): k("v_mov_b32 v%d, v%d" % (pr(2, q), pr(1, q)))
        for q in range(5): k("%s v%d, v%d" % (sw, pr(1, q), pr(2, q)))
        for q in range(5): k("v_add_f32 v%d, v%d, v%d" % (pr(1, q), pr(1, q), pr(2, q)))
    for q in range(5): k("v_fmac_f32 v%d, v%d, v%d" % (MINE[q], Psr[q], pr(1, q)))
    for q in range(5): k("v_fmac_f32_dpp v%d, v%d, v%d%s" % (MINE[q], pr(1, q), Psk[q], DPP))
    CIN = [f for f in free]
    for q in range(5): k("v_mul_f32 v%d, v%d, v%d" % (CIN[q], KR[q], MINE[q]))
    for q in range(5): k("v_fmac_f32_dpp v%d, v%d, v%d%s" % (CIN[q], MINE[q], cKk+q, DPP))
    PK = 32
    OUTQ = [ACCF + 4*j for j in range(10)]
    k("v_mul_u32_u24 v%d, %d, v%d\nv_lshl_add_u32 v%d, v%d, 5, v%d\nv_add_u32 v%d, s%d, v%d" % (vT[1], TRP, vM, vT[1], vG, vT[1], vT[1], sKx, vT[1]))
    k("v_and_b32 v%d, 1, v%d\nv_lshrrev_b32 v%d, 2, v%d\nv_lshl_add_u32 v%d, v%d, 3, v%d\nv_mul_u32_u24 v%d, %d, v%d" % (vT[0], vG, vT[4], vM, vT[0], vT[0], vT[4], vT[0], TRP, vT[0]))
    k("v_and_b32 v%d, 3, v%d\nv_lshl_add_u32 v%d, v%d, 5, v%d" % (vT[4], vM, vT[0], vT[4], vT[0]))
    k("v_lshrrev_b32 v%d, 1, v%d\nv_lshl_add_u32 v%d, v%d, 3, v%d\nv_add_u32 v%d, s%d, v%d" % (vT[5], vG, vT[0], vT[5], vT[0], vT[0], sKx, vT[0]))
    k("v_and_b32 v%d, 31, v%d\nv_lshlrev_b32 v%d, 4, v%d\nv_lshl_add_u32 v%d, v%d, 10, v%d" % (vT[4], vL, vT[4], vT[4], vT[4], vT[5], vT[4]))
    def tr_reads(bp):
        for q in range(5):
            o = OUTQ[bp*5+q]
            k("ds_read_b64_tr_b16 %s, v%d offset:%d\nds_read_b64_tr_b16 %s, v%d offset:%d" % (vr(o, 2), vT[0], q*16*TRP+bp*16, vr(o+2, 2), vT[0], q*16*TRP+bp*16+4*TRP))
    def tr_stores(bp, waits):
        for q in range(5):
            if waits: k("s_waitcnt lgkmcnt(%d)" % (8-2*q))
            k("buffer_store_dwordx4 %s, v%d, %s, s%d offen offset:%d%s" % (vr(OUTQ[bp*5+q], 4), vT[4], sq(SWS), sSS[q], bp*2048, S1))
    for t in range(16):
        if DFR and t == opt("fft", 2):
            k("s_cmp_lg_u32 s%d, 0\ns_cbranch_scc1 L_k1_ffd" % sRd)
            a2_flag(1, 0, 30, 31)
            stamp(k, 7)
            k("L_k1_ffd:")
        prev = [CIN[q] if t == 0 else Z[q][t-1] for q in range(5)]
        for q in range(5): k("v_fmac_f32 v%d, v%d, v%d" % (Z[q][t], cLr+q, prev[q]))
        for q in range(5): k("v_fmac_f32_dpp v%d, v%d, v%d%s" % (Z[q][t], prev[q], cMu+q, DPP))
        if t & 1:
            for q in range(5): k("v_cvt_pk_bf16_f32 v%d, v%d, v%d" % (PK+8*q+(t >> 1), Z[q][t-1], Z[q][t]))
        if t == 8:
            for q in range(5): k("ds_write_b128 v%d, %s offset:%d" % (vT[1], vr(PK+8*q, 4), q*16*TRP))
        if t == 10: tr_reads(0)
        if t == 13:
            k("s_waitcnt lgkmcnt(0)")
            tr_stores(0, False)
    for q in range(5): k("ds_write_b128 v%d, %s offset:%d" % (vT[1], vr(PK+8*q+4, 4), q*16*TRP+16))
    tr_reads(1)
    tr_stores(1, True)
    if CSM & 2: cs_set(1, 17, 18)
    a2_flag(2, 0, vT[0], vT[1])
    stamp(k, 4)
    k("L_k1_base:")
    base_loads(140)
    k("L_k1_base2:")
    base_compute(140)
    finish(100)
    k("L_k1_end:")
    k("s_endpgm")
    return k

if __name__ == "__main__":
    ref = open("parallel_sum__ssm_conv_s5__geglu_ffn__prompt.s.ref").read().split("\n")
    hdr = [l for l in ref if l.startswith(";") and "@launch" not in l and "Override" not in l and "grid=ceil" not in l]
    hdr += ["; @launch grid=(256,1,1) block=(512,1,1) lds=163840"]
    out = [a for a in sys.argv[1:] if not a.startswith("--")][0]
    gen2.TRACE = False
    open(out, "w").write(emit_file(hdr, [(gen_k1(), dict(vgpr=256, accum=256))]))
```

```python
import sys, struct, math
from asmgen import *
import gen2
from gen2 import (A2_OFF, B2_OFF, CAR_OFF, RST_OFF, SB_OFF, SG_OFF, STAMP_OFF, WS_NREC, SL, SPARE, TRP, f32, vr, sq, sp, ror, DPP, SC,
                  Alloc, interleave, srd, stamp, stamp_out, opt, ARG, STAMPS, LOG2E,
                  pX, pLre, pLim, pBre, pBim, pCre, pCim, pLdt, pD, pBx, pG, pU, pDn, pOut, pDbg, pWs)
STAT_M = SPARE
SFF = SPARE + 1536
SSS = SPARE + 2560
TRB = SL
FLG = SPARE + 3968
PF_OFF = 0x1130000
FL_OFF = 0x1160000
CH_OFF = 0x1040000
TRACE = "--trace" in ARG
S1 = [" sc1", " sc0 sc1", " sc1 nt", ""][opt("st2", 0)]
if opt("sc", 1): SC = " sc1"
FSP = 4
FGS = 16
FLS_ = opt("fls", 4224)
PSC_ = [" sc1", " sc0 sc1"][opt("psc", 0)]
KNAME = "parallel_sum__ssm_conv_s5__geglu_ffn__prompt_kernel"

def gen_k1():
    k = Kern(KNAME)
    sW, sMH, sNH, sI, sJJ, sTY = 3, 4, 5, 6, 7, 8
    sT0, sT1, sT2, sT3 = 9, 10, 11, 12
    sMASK = 13
    SX, SW0, SW1, SWS, SP0, SP1 = 48, 52, 56, 60, 64, 68
    sKx, sKw, sDst, sDelta, sIt, sRd, sA, sB, sKS, sC, sNon, sCol = range(72, 84)
    k("s_cmp_ge_u32 s2, 256\ns_cbranch_scc1 L_k1_end")
    k("s_load_dwordx16 s[16:31], s[0:1], 0\ns_load_dwordx16 s[32:47], s[0:1], 64")
    vL, vM, vG, vII, vSL = 1, 2, 3, 4, 5
    vT = [6, 7, 8, 9, 10, 11]
    k("v_lshrrev_b32 v%d, 6, v0" % vT[0])
    k("v_and_b32 v%d, 63, v0" % vL)
    k("v_readfirstlane_b32 s%d, v%d" % (sW, vT[0]))
    k("s_cmp_ge_u32 s%d, 6\ns_cbranch_scc1 L_k1_D" % sW)
    k("s_cmp_lt_u32 s%d, 4\ns_cbranch_scc1 L_k1_C" % sW)
    def decode():
        stamp(k, 0)
        if TRACE: k("v_mov_b32 v255, 0")
        k("v_and_b32 v%d, 15, v0\nv_lshrrev_b32 v%d, 4, v%d" % (vM, vG, vL))
        k("v_lshrrev_b32 v%d, 3, v%d\nv_and_b32 v%d, 7, v0" % (vII, vL, vSL))
        k("s_bfe_u32 s%d, s2, 0x10002\ns_lshl_b32 s%d, s%d, 3\ns_bfe_u32 s%d, s2, 0x30003\ns_add_u32 s%d, s%d, s%d" % (sI, sI, sI, sT2, sI, sI, sT2))
        k("s_and_b32 s%d, s2, 3\ns_lshl_b32 s%d, s%d, 1\ns_lshr_b32 s%d, s2, 7\ns_add_u32 s%d, s%d, s%d\ns_bfe_u32 s%d, s2, 0x10006" % (sJJ, sJJ, sJJ, sT2, sJJ, sJJ, sT2, sTY))
        k("s_mov_b32 s%d, 0xffff0000" % sMASK)
        k("s_and_b32 s%d, s%d, 1\ns_bfe_u32 s%d, s%d, 0x10001" % (sMH, sW, sNH, sW))
        k("s_lshl_b32 s%d, s%d, 7\ns_lshl_b32 s%d, s%d, 6\ns_add_u32 s%d, s%d, 1024\ns_cmp_eq_u32 s%d, 0\ns_cselect_b32 s%d, s%d, s%d" % (sT0, sJJ, sT1, sJJ, sT1, sT1, sTY, sCol, sT0, sT1))
    decode()

    def p2map(mi, ni):
        M = opt("p2m", 0)
        if M == 0:
            k("s_lshr_b32 s%d, s%d, 1\ns_lshl_b32 s%d, s%d, 3\ns_and_b32 s%d, s%d, 7\ns_add_u32 s%d, s%d, s%d" % (mi, sT0, mi, mi, sT2, sT1, mi, mi, sT2))
            k("s_and_b32 s%d, s%d, 1\ns_lshl_b32 s%d, s%d, 2\ns_lshr_b32 s%d, s%d, 3\ns_add_u32 s%d, s%d, s%d" % (ni, sT0, ni, ni, sT2, sT1, ni, ni, sT2))
        elif M == 1:
            k("s_lshl_b32 s%d, s%d, 2\ns_and_b32 s%d, s%d, 3\ns_add_u32 s%d, s%d, s%d\ns_lshr_b32 s%d, s%d, 2" % (mi, sT0, sT2, sT1, mi, mi, sT2, ni, sT1))
        else:
            k("s_lshr_b32 s%d, s%d, 2\ns_lshl_b32 s%d, s%d, 4\ns_and_b32 s%d, s%d, 15\ns_add_u32 s%d, s%d, s%d" % (mi, sT0, mi, mi, sT2, sT1, mi, mi, sT2))
            k("s_and_b32 s%d, s%d, 3\ns_lshl_b32 s%d, s%d, 1\ns_lshr_b32 s%d, s%d, 4\ns_add_u32 s%d, s%d, s%d" % (ni, sT0, ni, ni, sT2, sT1, ni, ni, sT2))
    def bf16r(d, s):
        k("v_cvt_pk_bf16_f32 v%d, v%d, v%d\nv_lshlrev_b32 v%d, 16, v%d" % (d, s, s, d, d))
    r5 = lambda b: [b+q for q in range(5)]
    def cpow5(dr, dk, n, t0, t1, cA2, cBt):
        R5 = range(5)
        for q in R5: k("v_mul_f32 v%d, %s, v%d\nv_mul_f32 v%d, %s, v%d" % (t0+q, n, cA2+q, t1+q, n, cBt+q))
        for q in R5: k("v_exp_f32 v%d, v%d\nv_rndne_f32 v%d, v%d" % (t0+q, t0+q, dr[q], t1+q))
        for q in R5: k("v_sub_f32 v%d, v%d, v%d" % (t1+q, t1+q, dr[q]))
        for q in R5: k("v_cos_f32 v%d, v%d\nv_sin_f32 v%d, v%d" % (dr[q], t1+q, dk[q], t1+q))
        for q in R5: k("v_mul_f32 v%d, v%d, v%d\nv_mul_f32 v%d, v%d, v%d" % (dr[q], dr[q], t0+q, dk[q], dk[q], t0+q))
    def param_loads(P, snh, va):
        k("s_mul_i32 s%d, s%d, 80\ns_mul_i32 s%d, s%d, 40\ns_add_u32 s%d, s%d, s%d" % (sT0, sJJ, sT1, snh, sT1, sT1, sT0))
        k("v_add_u32 v%d, s%d, v%d\nv_lshlrev_b32 v%d, 1, v%d" % (va, sT1, vSL, va, va))
        for q in range(5):
            for n, p in enumerate((pLre, pLim, pLdt)):
                k("global_load_ushort v%d, v%d, %s offset:%d" % (P+n*5+q, va, sp(p), q*16))
    def param_ab(P, cA2, cBt, vs):
        lre, lim, ldt = P, P+5, P+10
        k("v_lshrrev_b32 v%d, 3, v%d\nv_xor_b32 v%d, 1, v%d\nv_lshlrev_b32 v%d, 31, v%d" % (vs, vM, vs, vs, vs, vs))
        for q in range(15): k("v_lshlrev_b32 v%d, 16, v%d" % (P+q, P+q))
        for q in range(5): k("v_xor_b32 v%d, v%d, v%d\nv_mul_f32 v%d, %s, v%d" % (lim+q, lim+q, vs, ldt+q, f32(LOG2E), ldt+q))
        for q in range(5): k("v_exp_f32 v%d, v%d" % (ldt+q, ldt+q))
        for q in range(5): k("v_cvt_pk_bf16_f32 v%d, v%d, v%d" % (ldt+q, ldt+q, ldt+q))
        for q in range(5): k("v_lshlrev_b32 v%d, 16, v%d" % (ldt+q, ldt+q))
        for q in range(5): k("v_mul_f32 v%d, v%d, v%d\nv_mul_f32 v%d, v%d, v%d" % (cA2+q, ldt+q, lre+q, cBt+q, ldt+q, lim+q))
        for q in range(5): k("v_mul_f32 v%d, %s, v%d\nv_mul_f32 v%d, %s, v%d" % (cA2+q, f32(LOG2E), cA2+q, cBt+q, f32(1/(2*math.pi)), cBt+q))
    def trace(idx_sreg, mul, add):
        if TRACE:
            k("s_memrealtime s[100:101]\ns_mul_i32 m0, s%d, %d\ns_add_u32 m0, m0, %d\ns_waitcnt lgkmcnt(0)\nv_writelane_b32 v255, s100, m0" % (idx_sreg, mul, add))
    def ev(n):
        if TRACE: k("s_memrealtime s[100:101]\ns_waitcnt lgkmcnt(0)\nv_writelane_b32 v255, s100, %d" % n)
    def finish(vt):
        if TRACE:
            k("s_lshl_b32 s83, s2, 11\ns_add_u32 s83, s83, 0x%x\nv_lshl_add_u32 v%d, v0, 2, s83" % (STAMP_OFF + 0x40000, vt+9))
            k("global_store_dword v%d, v255, %s" % (vt+9, sp(52)))
        stamp_out(k, 0, 8, 52, vt)
        k("s_endpgm")

    vXo, vWo, vSo = 12, 13, 14
    vF = 18
    k("s_lshl_b32 s%d, s%d, 7\ns_lshl_b32 s%d, s%d, 5\ns_add_u32 s%d, s%d, s%d" % (sT2, sI, sT3, sMH, sT2, sT2, sT3))
    k("v_lshrrev_b32 v%d, 2, v%d\nv_lshlrev_b32 v%d, 4, v%d\nv_and_b32 v%d, 3, v%d" % (vT[0], vII, vT[0], vT[0], vT[1], vII))
    k("v_add3_u32 v%d, v%d, v%d, s%d" % (vT[0], vT[0], vT[1], sT2))
    k("v_mul_u32_u24 v%d, 1280, v%d" % (vT[0], vT[0]))
    k("s_lshl_b32 s%d, s%d, 2" % (sT3, sMH))
    k("v_lshrrev_b32 v%d, 1, v%d\nv_or_b32 v%d, s%d, v%d\nv_xor_b32 v%d, v%d, v%d" % (vT[1], vII, vT[1], sT3, vT[1], vT[1], vT[1], vSL))
    k("v_lshl_add_u32 v%d, v%d, 4, v%d" % (vXo, vT[1], vT[0]))
    k("s_mul_i32 s%d, s%d, 80" % (sT0, sJJ))
    k("v_add_u32 v%d, s%d, v%d\nv_mul_u32_u24 v%d, 1280, v%d\nv_lshl_add_u32 v%d, v%d, 4, v%d" % (vT[2], sT0, vII, vT[2], vT[2], vSo, vT[1], vT[2]))
    k("s_lshl_b32 s%d, s%d, 3" % (sT0, sMH))
    k("v_add_u32 v%d, s%d, v%d\nv_mul_u32_u24 v%d, 3072, v%d" % (vT[0], sT0, vII, vT[0], vT[0]))
    k("v_and_b32 v%d, 2, v%d\nv_or_b32 v%d, s%d, v%d\nv_xor_b32 v%d, v%d, v%d" % (vT[1], vII, vT[1], sT3, vT[1], vT[1], vT[1], vSL))
    k("v_lshl_add_u32 v%d, v%d, 4, v%d" % (vT[0], vT[1], vT[0]))
    k("s_lshl_b32 s%d, s%d, 1" % (sT0, sCol))
    k("v_add_u32 v%d, s%d, v%d" % (vWo, sT0, vT[0]))
    k("s_mov_b32 s%d, 0\ns_mov_b32 s%d, 0\ns_lshl_b32 s%d, s%d, 10\ns_mov_b32 s%d, 0\ns_mov_b32 s%d, 0" % (sKx, sKw, sDst, sMH, sIt, sRd))
    k("v_mov_b32 v%d, %d\nv_mov_b32 v24, 0" % (vF, FLG))
    k("s_lshl_b32 s%d, s%d, 2\ns_add_u32 s%d, s%d, %d\nv_mov_b32 v%d, s%d" % (sT0, sMH, sT0, sT0, FLG+16, vF+1, sT0))
    for S_, n_ in ((SX, 2048*1280), (SW0, 640*3072), (SW1, 640*3072), (SP0, 640*1280)): k("s_mov_b32 s%d, %d\ns_mov_b32 s%d, 0x20000" % (S_+2, n_, S_+3))
    k("s_cmp_eq_u32 s%d, 0\ns_waitcnt lgkmcnt(0)" % sMH)
    k("s_mov_b64 %s, %s\ns_mov_b64 %s, %s\ns_mov_b64 %s, %s\ns_cselect_b64 %s, %s, %s" % (sp(SX), sp(pX), sp(SW0), sp(pG), sp(SW1), sp(pU), sp(SP0), sp(pBre), sp(pBim)))
    def wait_word(lab, off, need, va, vt):
        k("v_mov_b32 v%d, %d" % (va, FLG+off))
        k("%s:" % lab)
        k("ds_read_b32 v%d, v%d\ns_waitcnt lgkmcnt(0)\nv_readfirstlane_b32 s%d, v%d" % (vt, va, sT0, vt))
        k("s_cmp_ge_i32 s%d, %s\ns_cbranch_scc1 %s_ok\ns_sleep 1\ns_branch %s\n%s_ok:" % (sT0, need, lab, lab, lab))
    def wait_done(lab, need, vaddr, vt):
        k("%s:" % lab)
        k("ds_read_b128 %s, v%d\ns_waitcnt lgkmcnt(0)" % (vr(vt, 4), vaddr))
        k("v_min_u32 v%d, v%d, v%d\nv_min3_u32 v%d, v%d, v%d, v%d" % (vt, vt, vt+1, vt, vt, vt+2, vt+3))
        k("v_readfirstlane_b32 s%d, v%d" % (sT0, vt))
        k("s_cmp_ge_i32 s%d, %s\ns_cbranch_scc1 %s_ok\ns_sleep 1\ns_branch %s\n%s_ok:" % (sT0, need, lab, lab, lab))
    def dma(ldsoff, voff, S, sbase, add):
        k("s_add_u32 m0, s%d, %d\ns_add_u32 s%d, s%d, %d\nbuffer_load_dwordx4 v%d, %s, s%d offen lds" % (sDst, ldsoff, sT0, sbase, add, voff, sq(S), sT0))
    NSIG = opt("nsig", 8)
    def chk(lab, add, sig):
        k("s_lshl_b32 s%d, s%d, 1\ns_add_i32 s%d, s%d, %d\ns_waitcnt lgkmcnt(0)" % (sT1, sIt, sT1, sT1, add))
        k("v_min_u32 v20, v20, v21\nv_min3_u32 v20, v20, v22, v23\nv_readfirstlane_b32 s%d, v20" % sT0)
        k("s_cmp_ge_i32 s%d, s%d\ns_cbranch_scc1 %s_go" % (sT0, sT1, lab))
        if sig: k("s_waitcnt vmcnt(0)\nds_write_b32 v%d, v24" % (vF+1))
        wait_done(lab+"_wd", "s%d" % sT1, vF, 20)
        k("%s_go:" % lab)
    L = "L_k1_L"
    xs = [(n*2048, vXo, SX, sKx, ((n & 3)*4 + (n >> 2)*64)*1280) for n in range(8)]
    wsu = lambda un, ns: [(16384+un*16384+gu*8192+n*2048, vWo, SW1 if gu else SW0, sKw, n*16*3072+un*128) for n in ns for gu in range(2)]
    p1 = []
    for i in range(4): p1 += xs[2*i:2*i+2] + wsu(0, (0, 1))[i:i+1]
    for o in p1[:NSIG]: dma(*o)
    k("s_barrier\ns_branch %s_sig" % L)
    k("%s:" % L)
    trace(sIt, 4, 0)
    chk(L+"_c1", -5, True)
    trace(sIt, 4, 1)
    for o in p1[:NSIG]: dma(*o)
    k("%s_sig:" % L)
    k("s_waitcnt vmcnt(%d)\nds_write_b32 v%d, v24\nv_add_u32 v24, 1, v24" % (NSIG, vF+1))
    trace(sIt, 4, 3)
    k("s_cmp_eq_u32 s%d, 1\ns_cbranch_scc1 %s_b1" % (sTY, L))
    for o in wsu(1, (0, 1)): dma(*o)
    k("%s_b1:" % L)
    for i, o in enumerate(p1[NSIG:]):
        if i == len(p1)-NSIG-2: k("ds_read_b128 v[20:23], v%d" % vF)
        dma(*o)
    chk(L+"_c2", -4, False)
    k("s_cmp_eq_u32 s%d, 1\ns_cbranch_scc1 %s_b2" % (sTY, L))
    for o in wsu(1, (2, 3)): dma(*o)
    k("s_branch %s_b3" % L)
    k("%s_b2:" % L)
    for b_ in range(10): dma(32768+b_*2048, vSo, SP0, sKx, b_*10240)
    k("%s_b3:" % L)
    for i, o in enumerate(wsu(0, (2, 3))):
        if i == 2: k("ds_read_b128 v[20:23], v%d" % vF)
        dma(*o)
    k("ds_write_b32 v%d, v24 offset:16" % (vF+1))
    k("s_add_u32 s%d, s%d, 128\ns_add_u32 s%d, s%d, 196608\ns_add_u32 s%d, s%d, %d\ns_add_u32 s%d, s%d, 1" % (sKx, sKx, sKw, sKw, sDst, sDst, SL, sRd, sRd))
    k("s_cmp_eq_u32 s%d, 3\ns_cselect_b32 s%d, 0, s%d\ns_cselect_b32 s%d, %d, 0\ns_sub_u32 s%d, s%d, s%d" % (sRd, sRd, sRd, sT0, 3*SL, sDst, sDst, sT0))
    trace(sIt, 4, 2)
    k("s_add_u32 s%d, s%d, 1\ns_cmp_lt_u32 s%d, 10\ns_cbranch_scc1 %s" % (sIt, sIt, sIt, L))
    k("L_k1_Lend:")
    srd(k, SWS, pWs, WS_NREC)
    k("v_mov_b32 v72, v%d\nv_mov_b32 v73, v24" % (vF+1))
    k("s_branch L_k1_P2")

    k("L_k1_D:")
    k("s_memrealtime s[100:101]")
    if not opt("dbar", 1): k("s_barrier")
    decode()
    XR = 16
    YR = 36
    PK = 100
    T = 132
    vN = 12
    sPQ, sPR = [14, 78], [15, 79]
    k("v_mul_u32_u24 v%d, 1280, v%d\nv_lshl_add_u32 v%d, v%d, 4, v%d" % (vT[0], vG, vT[0], vM, vT[0]))
    XL = opt("xl", 1)
    sQ_, sG_ = sIt, sRd
    if XL:
        k("s_and_b32 s%d, s2, 7\ns_lshl_b32 s%d, s%d, 5\ns_lshr_b32 s%d, s2, 3\ns_add_u32 s%d, s%d, s%d\ns_lshl_b32 s%d, s%d, 1\ns_add_u32 s%d, s%d, s%d" % (sT0, sT0, sT0, sT1, sT0, sT0, sT1, sC, sT0, sC, sC, sMH))
        k("s_bfe_u32 s%d, s2, 0x10002\ns_lshl_b32 s%d, s%d, 5\ns_add_u32 s%d, s%d, s%d" % (sQ_, sQ_, sQ_, sQ_, sQ_, sT1))
    else:
        k("s_lshl_b32 s%d, s2, 1\ns_add_u32 s%d, s%d, s%d" % (sC, sC, sC, sMH))
    k("s_waitcnt lgkmcnt(0)")
    srd(k, SX, pX, 2048*1280)
    srd(k, SWS, pWs, WS_NREC)
    k("s_cmp_lg_u32 s%d, 0\ns_cbranch_scc1 L_k1_nn" % sC)
    k("s_or_b32 s%d, s100, 1" % sT0)
    k("v_mov_b32 v%d, s%d\nv_mov_b32 v%d, 0" % (vT[2], sT0, vT[1]))
    k("global_store_dword v%d, v%d, %s%s" % (vT[1], vT[2], sp(pDbg), SC))
    k("L_k1_nn:")
    B1 = opt("b1", 2); GATE = opt("gate", 3)
    SNT = " nt" if opt("snt", 0) else ""
    def gate(lab):
        if opt("dbar", 1): k("s_barrier")
        if GATE: wait_word(lab, 36, "%d" % GATE, vT[3], vT[2])
    k("s_mul_i32 s%d, s%d, 5120" % (sKx, sC))
    xl = lambda c: k("buffer_load_dwordx4 %s, v%d, %s, s%d offen offset:%d%s" % (vr(XR+4*c, 4), vT[0], sq(SX), sKx, c*256, SNT))
    k("s_cmp_eq_u32 s%d, 1\ns_cbranch_scc1 L_k1_D1a" % sMH)
    if XL:
        k("s_mul_i32 s%d, s%d, 43\ns_lshr_b32 s%d, s%d, 9\ns_mul_i32 s%d, s%d, 12\ns_sub_u32 s%d, s%d, s%d" % (sT0, sQ_, sT0, sT0, sT1, sT0, sT1, sQ_, sT1))
        k("s_cmp_lt_u32 s%d, 6\ns_cselect_b32 s%d, s%d, s%d\ns_cselect_b32 s%d, s%d, s%d\ns_cselect_b32 s%d, 0, 6\ns_cselect_b32 s%d, 0, 24" % (sT1, SP1, pG, pU, SP1+1, pG+1, pU+1, sT2, sG_))
        k("s_sub_u32 s%d, s%d, s%d\ns_and_b32 s%d, s2, 3\ns_lshl_b32 s%d, s%d, 2\ns_lshl_b32 s%d, s%d, 1\ns_add_u32 s%d, s%d, 12" % (sT1, sT1, sT2, sT2, sT3, sT2, sT2, sT2, sT2, sT2))
        k("s_cmp_lt_u32 s%d, 4\ns_cselect_b32 s%d, s%d, s%d\ns_add_u32 s%d, s%d, s%d" % (sT1, sT2, sT3, sT2, sT1, sT1, sT2))
        k("s_add_u32 s%d, s%d, s%d\ns_mul_i32 s%d, s%d, 48\ns_add_u32 s%d, s%d, s%d" % (sG_, sG_, sT1, sT2, sT0, sG_, sG_, sT2))
        k("s_lshl_b32 s%d, s%d, 7\ns_mul_i32 s%d, s%d, %d\ns_add_u32 s%d, s%d, s%d" % (sT1, sT1, sT0, sT0, 8*3072, sKw, sT0, sT1))
        k("s_cmp_lt_u32 s%d, 60\ns_cselect_b32 s%d, %d, 0\ns_cselect_b32 s%d, s%d, 1000\ns_mov_b32 s%d, 0x20000" % (sQ_, SP1+2, 640*3072, sG_, sG_, SP1+3))
    else:
        k("s_mov_b32 s%d, s2" % sG_)
        k("s_mul_i32 s%d, s2, 1366\ns_lshr_b32 s%d, s%d, 16\ns_mul_i32 s%d, s%d, 48\ns_sub_u32 s%d, s2, s%d" % (sT0, sT0, sT0, sT1, sT0, sT1, sT1))
        k("s_cmp_lt_u32 s%d, 24\ns_cselect_b32 s%d, s%d, s%d\ns_cselect_b32 s%d, s%d, s%d\ns_cselect_b32 s%d, 0, 24" % (sT1, SP1, pG, pU, SP1+1, pG+1, pU+1, sT2))
        k("s_sub_u32 s%d, s%d, s%d\ns_lshl_b32 s%d, s%d, 7\ns_mul_i32 s%d, s%d, %d\ns_add_u32 s%d, s%d, s%d" % (sT1, sT1, sT2, sT1, sT1, sT0, sT0, 8*3072, sKw, sT0, sT1))
        k("s_cmp_lt_u32 s2, 240\ns_cselect_b32 s%d, %d, 0\ns_mov_b32 s%d, 0x20000" % (SP1+2, 640*3072, SP1+3))
    k("v_mul_u32_u24 v%d, 3072, v%d\nv_lshl_add_u32 v%d, v%d, 4, v%d" % (vT[1], vII, vT[1], vSL, vT[1]))
    a_ = 0
    for c in range(5):
        if c == B1: gate("L_k1_g0")
        xl(c)
        while a_ < 16 and a_*40 < 128*(c+1):
            k("buffer_load_dwordx4 %s, v%d, %s, s%d offen%s" % (vr(YR+4*a_, 4), vT[1], sq(SP1), sKw, SNT))
            k("s_add_u32 s%d, s%d, %d" % (sKw, sKw, 40*3072))
            a_ += 1
    if B1 >= 5: gate("L_k1_g0")
    k("s_branch L_k1_Db")
    k("L_k1_D1a:")
    if XL:
        k("s_cmp_lt_u32 s%d, 20\ns_cselect_b32 s%d, s%d, s%d\ns_cselect_b32 s%d, s%d, s%d\ns_cselect_b32 s%d, 0, 20\ns_cselect_b32 s%d, 0, 80" % (sQ_, SP1, pBre, pBim, SP1+1, pBre+1, pBim+1, sT1, sG_))
        k("s_sub_u32 s%d, s%d, s%d\ns_and_b32 s%d, s2, 3\ns_mul_i32 s%d, s%d, 20\ns_add_u32 s%d, s%d, s%d\ns_add_u32 s%d, s%d, s%d" % (sT0, sQ_, sT1, sT1, sT1, sT1, sT0, sT0, sT1, sG_, sG_, sT0))
        k("s_mul_i32 s%d, s%d, 10240\ns_add_u32 s%d, s%d, 5120" % (sKw, sT0, sDst, sKw))
        k("s_cmp_lt_u32 s%d, 40\ns_cselect_b32 s%d, %d, 0\ns_cselect_b32 s%d, s%d, 1000\ns_mov_b32 s%d, 0x20000" % (sQ_, SP1+2, 640*1280, sG_, sG_, SP1+3))
    else:
        k("s_mov_b32 s%d, s2" % sG_)
        k("s_cmp_lt_u32 s2, 80\ns_cselect_b32 s%d, s%d, s%d\ns_cselect_b32 s%d, s%d, s%d\ns_cselect_b32 s%d, 0, 80" % (SP1, pBre, pBim, SP1+1, pBre+1, pBim+1, sT1))
        k("s_sub_u32 s%d, s2, s%d\ns_mul_i32 s%d, s%d, 10240\ns_add_u32 s%d, s%d, 5120" % (sT0, sT1, sKw, sT0, sDst, sKw))
        k("s_cmp_lt_u32 s2, 160\ns_cselect_b32 s%d, %d, 0\ns_mov_b32 s%d, 0x20000" % (SP1+2, 640*1280, SP1+3))
    for c in range(5):
        if c == B1: gate("L_k1_g1")
        xl(c)
        for hh in range(2): k("buffer_load_dwordx4 %s, v%d, %s, s%d offen offset:%d%s" % (vr(YR+20*hh+4*c, 4), vT[0], sq(SP1), sDst if hh else sKw, c*256, SNT))
    if B1 >= 5: gate("L_k1_g1")
    k("L_k1_Db:")
    if opt("cpf", 1):
        k("s_getpc_b64 s[70:71]")
        k("L_k1_pc:")
        k("s_sub_u32 s70, s70, L_k1_pc-%s\ns_subb_u32 s71, s71, 0" % KNAME)
        k("s_lshr_b32 s%d, s2, 3\ns_lshl_b32 s%d, s%d, 1\ns_add_u32 s%d, s%d, s%d\ns_and_b32 s%d, s%d, 7\ns_lshl_b32 s%d, s%d, 13" % (sT0, sT0, sT0, sT0, sT0, sMH, sT0, sT0, sT0, sT0))
        k("v_lshl_add_u32 v14, v%d, 7, s%d\nv_min_u32 v14, L_k1_end-%s, v14" % (vL, sT0, KNAME))
        k("s_cmp_lt_u32 s%d, L_k1_end-%s\ns_cbranch_scc0 L_k1_ncp\ns_cmp_lt_u32 s2, 64\ns_cbranch_scc0 L_k1_ncp" % (sT0, KNAME))
        k("global_load_dword v15, v14, s[70:71]")
        k("L_k1_ncp:")
    ev(0)
    k("s_lshl_b32 s%d, s%d, 3\ns_add_u32 s%d, s%d, s%d\ns_lshl_b32 s%d, s%d, 1\ns_add_u32 s%d, s%d, s%d\ns_lshl_b32 s%d, s%d, 1" % (sT3, sI, sT3, sT3, sJJ, sT3, sT3, sT3, sT3, sMH, sT3, sT3))
    for n in range(2):
        k("s_add_u32 s%d, s%d, %d\ns_mul_i32 s%d, s%d, 6554\ns_lshr_b32 s%d, s%d, 16\ns_mul_i32 s%d, s%d, 10\ns_sub_u32 s%d, s%d, s%d" % (sT0, sT3, n, sPQ[n], sT0, sPQ[n], sPQ[n], sT1, sPQ[n], sPR[n], sT0, sT1))
    k("v_mov_b32 v%d, 0" % vT[1])
    k("global_load_dword v%d, v%d, %s%s" % (vN, vT[1], sp(pDbg), SC))
    if opt("packlate", 0): k("s_waitcnt vmcnt(1)")
    PNT = " nt" if opt("pnt", 1) else ""
    PA = opt("pa", 1)
    PK2 = 180 if PA else PK
    k("s_cmp_eq_u32 s%d, 1\ns_cbranch_scc1 L_k1_plC" % sTY)
    srd(k, SP0, pDn, 1536*1280)
    k("v_mul_u32_u24 v%d, 1280, v%d\nv_lshl_add_u32 v%d, v%d, 4, v%d" % (vT[1], vII, vT[1], vSL, vT[1]))
    k("s_cmp_lt_u32 s%d, 48\ns_cselect_b32 s%d, s%d, 0" % (sPQ[0], SP0+2, SP0+2))
    for n in range(2):
        k("s_mul_i32 s%d, s%d, 40960\ns_lshl_b32 s%d, s%d, 7\ns_add_u32 s%d, s%d, s%d" % (sT1, sPQ[n], sT2, sPR[n], sT1, sT1, sT2))
        for a in range(4):
            k("buffer_load_dwordx4 %s, v%d, %s, s%d offen%s" % (vr(PK+16*n+4*a, 4), vT[1], sq(SP0), sT1, PNT))
            if a < 3: k("s_add_u32 s%d, s%d, 10240" % (sT1, sT1))
    PP = 180
    if PA:
        k("s_branch L_k1_plC2")
        k("L_k1_plC:")
        param_loads(PP, sMH, vT[1])
        k("s_waitcnt vmcnt(15)\ns_branch L_k1_pld")
        k("L_k1_plC2:")
    else:
        k("s_branch L_k1_pld")
        k("L_k1_plC:")
        param_loads(PP, sMH, vT[1])
    srd(k, SP0, pCre, 640*1280)
    srd(k, SP1, pCim, 640*1280)
    cr_, cc_ = (vSL, vII) if opt("cs", 1) else (vII, vSL)
    k("v_mul_u32_u24 v%d, 1280, v%d\nv_lshl_add_u32 v%d, v%d, 4, v%d" % (vT[1], cr_, vT[1], cc_, vT[1]))
    k("s_cmp_lt_u32 s%d, 40\ns_cselect_b32 s%d, s%d, 0\ns_cselect_b32 s%d, s%d, 0" % (sPQ[0], SP0+2, SP0+2, SP1+2, SP1+2))
    for n in range(2):
        k("s_mul_i32 s%d, s%d, 20480\ns_lshl_b32 s%d, s%d, 7\ns_add_u32 s%d, s%d, s%d" % (sT1, sPQ[n], sT2, sPR[n], sT1, sT1, sT2))
        k("s_add_u32 s%d, s%d, 10240" % (sT2, sT1))
        for part in range(2):
            for hh in range(2):
                k("buffer_load_dwordx4 %s, v%d, %s, s%d offen%s" % (vr(PK2+16*n+(part*2+hh)*4, 4), vT[1], sq(SP0 if part == 0 else SP1), sT2 if hh else sT1, PNT))
    k("L_k1_pld:")
    k("v_mov_b32 v13, 0x3f803f80")
    ev(1)
    k("s_waitcnt vmcnt(%d)" % (16 if PA else 8))
    ev(2)
    stamp(k, 7)
    def unpack(dst, src, n):
        for d in range(n): k("v_lshlrev_b32 v%d, 16, v%d\nv_and_b32 v%d, s%d, v%d" % (dst+2*d, src+d, dst+2*d+1, sMASK, src+d))
    def row_sum(regs):
        for n in (8, 4, 2, 1):
            for r in regs: k("v_add_f32_dpp v%d, v%d, v%d%s" % (r, r, r, ror(n)))
    def tree(dst, src, n):
        k("v_add_f32 v%d, v%d, v%d\nv_add_f32 v%d, v%d, v%d" % (dst, src, src+1, dst+1, src+2, src+3))
        for d in range(4, n, 2): k("v_add_f32 v%d, v%d, v%d\nv_add_f32 v%d, v%d, v%d" % (dst, dst, src+d, dst+1, dst+1, src+d+1))
        k("v_add_f32 v%d, v%d, v%d" % (dst, dst, dst+1))
    A, B = T+40, T+42
    def dsum(dst, src, n, sq_):
        for d in range(n):
            k("v_dot2_f32_bf16 v%d, v%d, v%d, %s" % (dst+(d & 1), src+d, src+d if sq_ else 13, "v%d" % (dst+(d & 1)) if d > 1 else "0"))
    dsum(A, XR, 20, False)
    dsum(B, XR, 20, True)
    k("v_add_f32 v%d, v%d, v%d\nv_add_f32 v%d, v%d, v%d" % (A, A, A+1, B, B, B+1))
    row_sum([A, B])
    k("v_mul_f32 v%d, %s, v%d" % (A, f32(1/640.), A))
    k("v_mul_f32 v%d, %s, v%d" % (B, f32(1/640.), B))
    k("v_fma_f32 v%d, -v%d, v%d, v%d\nv_max_f32 v%d, 0, v%d" % (B, A, A, B, B, B))
    bf16r(B, B)
    k("v_add_f32 v%d, %s, v%d" % (B, f32(1e-5), B))
    bf16r(B, B)
    k("v_sqrt_f32 v%d, v%d" % (B, B))
    k("s_mov_b32 s%d, 0" % sT3)
    k("L_k1_gn:")
    k("v_readfirstlane_b32 s%d, v%d" % (sNon, vN))
    k("s_add_u32 s%d, s%d, 1\ns_cmp_lg_u32 s%d, 0\ns_cbranch_scc1 L_k1_gnd" % (sT3, sT3, sNon))
    k("s_cmp_gt_u32 s%d, 0x40000\ns_cbranch_scc1 L_k1_gnd" % sT3)
    k("v_mov_b32 v%d, 0" % vT[1])
    k("global_load_dword v%d, v%d, %s%s\ns_waitcnt vmcnt(0)\ns_branch L_k1_gn" % (vN, vT[1], sp(pDbg), SC))
    k("L_k1_gnd:")
    k("s_max_u32 s%d, s%d, 1" % (sNon, sNon))
    k("v_cvt_pk_bf16_f32 v%d, v%d, v%d\nv_mov_b32 v%d, s%d" % (T+44, A, B, T+45, sNon))
    k("s_lshl_b32 s%d, s%d, 5\ns_add_u32 s%d, s%d, 0x%x" % (sT0, sC, sT0, sT0, RST_OFF))
    k("v_lshlrev_b32 v%d, 3, v%d" % (vT[2], vG))
    k("s_mov_b32 exec_lo, 0x00010001\ns_mov_b32 exec_hi, 0x00010001")
    k("buffer_store_dwordx2 %s, v%d, %s, s%d offen%s" % (vr(T+44, 2), vT[2], sq(SWS), sT0, SC))
    k("s_mov_b64 exec, -1")
    k("s_cmp_eq_u32 s%d, 1\ns_cbranch_scc1 L_k1_D1b" % sMH)
    k("v_and_b32 v%d, 1, v%d\nv_lshlrev_b32 v%d, 4, v%d\nv_mov_b32 v%d, 0x3f80\nv_lshlrev_b32 v%d, v%d, v%d" % (T+8, vM, T+8, T+8, T+9, T+8, T+8, T+9))
    k("v_bfe_u32 v%d, v%d, 1, 2" % (T+9, vM))
    for d in range(4): k("v_cmp_eq_u32 vcc, %d, v%d\nv_cndmask_b32 v%d, 0, v%d, vcc" % (d, T+9, T+d, T+8))
    for a in range(16): k("v_mfma_f32_16x16x32_bf16 %s, %s, %s, %s" % (vr(T+4, 4), vr(T, 4), vr(YR+4*a, 4), vr(T+4, 4) if a else "0"))
    k("s_lshl_b32 s%d, s%d, 9\ns_add_u32 s%d, s%d, 0x%x\ns_cmp_lt_u32 s%d, 240\ns_cselect_b32 s%d, s%d, 0x%x" % (sT0, sG_, sT0, sT0, SG_OFF, sG_, sT0, sT0, WS_NREC))
    k("v_lshlrev_b32 v%d, 5, v%d\nv_lshl_add_u32 v%d, v%d, 6, v%d\nv_add_u32 v%d, s%d, v%d" % (T+8, vG, T+8, vSL, T+8, T+8, sT0, T+8))
    for r in range(4): k("v_mov_b32 v%d, s%d" % (T+13+2*r, sNon))
    for r in range(4): k("v_add_f32_dpp v%d, v%d, v%d%s" % (T+12+2*r, T+4+r, T+4+r, DPP))
    k("s_mov_b32 exec_lo, 0x00ff00ff\ns_mov_b32 exec_hi, 0")
    k("buffer_store_dwordx4 %s, v%d, %s, 0 offen%s" % (vr(T+12, 4), T+8, sq(SWS), SC))
    k("buffer_store_dwordx4 %s, v%d, %s, 0 offen offset:16%s" % (vr(T+16, 4), T+8, sq(SWS), SC))
    k("s_mov_b64 exec, -1")
    k("s_branch L_k1_Dc")
    k("L_k1_D1b:")
    for hh in range(2): dsum(A+2*hh, YR+20*hh, 20, False)
    k("v_add_f32 v%d, v%d, v%d\nv_add_f32 v%d, v%d, v%d" % (A, A, A+1, A+2, A+2, A+3))
    row_sum([A, A+2])
    k("v_mov_b32 v%d, s%d\nv_mov_b32 v%d, s%d" % (A+1, sNon, A+3, sNon))
    k("s_lshl_b32 s%d, s%d, 6\ns_add_u32 s%d, s%d, 0x%x\ns_cmp_lt_u32 s%d, 160\ns_cselect_b32 s%d, s%d, 0x%x" % (sT0, sG_, sT0, sT0, SB_OFF, sG_, sT0, sT0, WS_NREC))
    k("v_add_u32 v%d, s%d, v%d" % (vT[3], sT0, vT[2]))
    k("s_mov_b32 exec_lo, 0x00010001\ns_mov_b32 exec_hi, 0x00010001")
    k("buffer_store_dwordx2 %s, v%d, %s, 0 offen%s" % (vr(A, 2), vT[3], sq(SWS), SC))
    k("buffer_store_dwordx2 %s, v%d, %s, 0 offen offset:32%s" % (vr(A+2, 2), vT[3], sq(SWS), SC))
    k("s_mov_b64 exec, -1")
    k("L_k1_Dc:")
    ev(3)
    PSC = S1
    k("s_waitcnt vmcnt(3)")
    k("s_cmp_eq_u32 s%d, 1\ns_cbranch_scc1 %s" % (sTY, "L_k1_pdd" if PA else "L_k1_pdC"))
    k("s_cmp_ge_u32 s%d, 48\ns_cbranch_scc1 L_k1_pdd" % sPQ[0])
    k("s_mul_i32 s%d, s%d, %d\ns_add_u32 s%d, s%d, 49152" % (sT2, sMH, SL, sT2, sT2))
    k("v_lshlrev_b32 v%d, 4, v%d\nv_add_u32 v%d, s%d, v%d" % (T+1, vL, T, sT2, T+1))
    k("v_lshrrev_b32 v%d, 2, v%d\nv_lshl_add_u32 v%d, v%d, 2, v%d\nv_lshlrev_b32 v%d, 7, v%d" % (T+2, vM, T+2, vG, T+2, T+2, T+2))
    k("v_and_b32 v%d, 3, v%d\nv_lshl_add_u32 v%d, v%d, 3, v%d\nv_add_u32 v%d, s%d, v%d" % (T+3, vM, T+2, T+3, T+2, T+2, sT2, T+2))
    for n in range(2):
        for a in range(4): k("ds_write_b128 v%d, %s offset:%d" % (T, vr(PK+16*n+4*a, 4), a*1024))
        k("s_waitcnt lgkmcnt(0)")
        for c4 in range(4):
            k("ds_read_b64_tr_b16 %s, v%d offset:%d" % (vr(PK+16*n+c4*4, 2), T+2, c4*32))
            k("ds_read_b64_tr_b16 %s, v%d offset:%d" % (vr(PK+16*n+c4*4+2, 2), T+2, c4*32+2048))
        for c4 in range(4):
            k("s_lshl_b32 s%d, s%d, 2\ns_add_u32 s%d, s%d, %d\ns_mul_i32 s%d, s%d, 52\ns_lshr_b32 s%d, s%d, 8" % (sT0, sPR[n], sT0, sT0, c4, sT1, sT0, sT1, sT1))
            k("s_mul_i32 s%d, s%d, 435\ns_add_u32 s%d, s%d, s%d\ns_mul_i32 s%d, s%d, 5\ns_add_u32 s%d, s%d, s%d" % (sT1, sT1, sT1, sT1, sT0, sT0, sPQ[n], sT1, sT1, sT0))
            k("s_lshl_b32 s%d, s%d, 10\ns_add_u32 s%d, s%d, %d" % (sT1, sT1, sT1, sT1, B2_OFF))
            k("s_waitcnt lgkmcnt(%d)" % (6-2*c4))
            k("buffer_store_dwordx4 %s, v%d, %s, s%d offen%s" % (vr(PK+16*n+c4*4, 4), T+1, sq(SWS), sT1, PSC))
    if not PA: k("s_branch L_k1_pdd")
    k("L_k1_pdC:")
    k("s_cmp_ge_u32 s%d, 40\ns_cbranch_scc1 L_k1_pdd" % sPQ[0])
    k("v_lshrrev_b32 v%d, 1, v%d\nv_mul_u32_u24 v%d, 5120, v%d" % (T+1, cc_, T+1, T+1))
    k("v_and_b32 v%d, 1, v%d\nv_lshl_add_u32 v%d, v%d, 5, v%d\nv_lshl_add_u32 v%d, v%d, 4, v%d" % (T+2, cc_, T+2, T+2, cr_, T+1, T+2, T+1))
    for n in range(2):
        k("s_mul_i32 s%d, s%d, 52\ns_lshr_b32 s%d, s%d, 8\ns_mul_i32 s%d, s%d, 435\ns_add_u32 s%d, s%d, s%d" % (sT1, sPQ[n], sT1, sT1, sT1, sT1, sT1, sT1, sPQ[n]))
        k("s_mul_i32 s%d, s%d, 20\ns_add_u32 s%d, s%d, s%d\ns_add_u32 s%d, s%d, 240\ns_lshl_b32 s%d, s%d, 10\ns_add_u32 s%d, s%d, %d" % (sT0, sPR[n], sT1, sT1, sT0, sT1, sT1, sT1, sT1, sT1, sT1, B2_OFF))
        for r in range(8, 16): k("v_xor_b32 v%d, 0x80008000, v%d" % (PK2+16*n+r, PK2+16*n+r))
        for part in range(2):
            for hh in range(2):
                k("buffer_store_dwordx4 %s, v%d, %s, s%d offen offset:%d%s" % (vr(PK2+16*n+(part*2+hh)*4, 4), T+1, sq(SWS), sT1, part*256+hh*128, PSC))
    k("L_k1_pdd:")
    if opt("pw", 0):
        k("s_mul_i32 s%d, s%d, 22528\nv_lshlrev_b32 v%d, 4, v%d" % (sT0, sC, T+3, vL))
        for j in range(22):
            k("buffer_store_dwordx4 %s, v%d, %s, s%d offen offset:%d sc1" % (vr(XR, 4), T+3, sq(SWS), sT0, (j & 3)*1024))
            if j & 3 == 3: k("s_add_u32 s%d, s%d, 4096" % (sT0, sT0))
    ev(4)
    if PA: k("s_cmp_eq_u32 s%d, 1\ns_cbranch_scc1 L_k1_npf" % sTY)
    k("s_lshl_b32 s%d, s%d, 4\ns_add_u32 s%d, s%d, s%d\ns_lshl_b32 s%d, s%d, 3\ns_add_u32 s%d, s%d, s%d\ns_lshl_b32 s%d, s%d, 1\ns_add_u32 s%d, s%d, s%d" % (sT0, sTY, sT0, sT0, sI, sT0, sT0, sT0, sT0, sJJ, sT0, sT0, sT0, sT0, sMH))
    k("s_lshl_b32 s%d, s%d, 2\ns_add_u32 s%d, s%d, 0x%x\nv_mov_b32 v%d, s%d\nv_mov_b32 v%d, s%d" % (sT0, sT0, sT0, sT0, PF_OFF, T, sT0, T+1, sNon))
    k("s_waitcnt vmcnt(0)\ns_mov_b64 exec, 1")
    k("buffer_store_dword v%d, v%d, %s, 0 offen%s\ns_mov_b64 exec, -1" % (T+1, T, sq(SWS), SC))
    k("L_k1_npf:")
    stamp(k, 2)
    ev(5)
    TB = 48
    TG = 196
    CT = TRB + 4*80*TRP
    k("s_cmp_eq_u32 s%d, 0\ns_cbranch_scc1 L_k1_ntb" % sTY)
    param_ab(PP, 80, 85, vT[1])
    k("v_cvt_f32_u32 v%d, v%d\nv_mul_f32 v%d, %s, v%d\nv_mul_f32 v%d, %s, v%d" % (vT[1], vG, vT[2], f32(64.0), vT[1], vT[1], f32(16.0), vT[1]))
    cpow5(r5(TG), r5(TG+5), "1.0", 90, 95, 80, 85)
    cpow5(r5(TG+15), r5(TG+20), f32(16.0), 90, 95, 80, 85)
    cpow5(r5(TG+36), r5(TG+41), f32(256.0), 90, 95, 80, 85)
    cpow5(r5(TB), r5(TB+5), "v%d" % vT[2], 90, 95, 80, 85)
    cpow5(r5(TB+10), r5(TB+15), "v%d" % vT[1], 90, 95, 80, 85)
    lre, lim, t0, t1 = PP, PP+5, 90, 95
    KRd = [TG+26+2*q for q in range(5)]
    for q in range(5): k("v_add_f32 v%d, -1.0, v%d\nv_mul_f32 v%d, v%d, v%d" % (t0+q, TG+q, t1+q, lre+q, lre+q))
    for q in range(5): k("v_fmac_f32 v%d, v%d, v%d" % (t1+q, lim+q, lim+q))
    for q in range(5): k("v_rcp_f32 v%d, v%d" % (t1+q, t1+q))
    for q in range(5): k("v_mul_f32 v%d, v%d, v%d\nv_mul_f32 v%d, v%d, v%d" % (KRd[q], t0+q, lre+q, TG+10+q, TG+5+q, lre+q))
    for q in range(5): k("v_fmac_f32 v%d, v%d, v%d\nv_fma_f32 v%d, -v%d, v%d, v%d" % (KRd[q], TG+5+q, lim+q, TG+10+q, t0+q, lim+q, TG+10+q))
    for q in range(5): k("v_add_f32 v%d, v%d, v%d" % (t1+q, t1+q, t1+q))
    for q in range(5): k("v_mul_f32 v%d, v%d, v%d\nv_mul_f32 v%d, v%d, v%d" % (KRd[q], KRd[q], t1+q, TG+10+q, TG+10+q, t1+q))
    k("L_k1_ntb:")
    EI = 16
    aSt, aS0, aS1 = 40, 41, 42
    k("s_lshl_b32 s%d, s%d, 1\ns_add_u32 s%d, s%d, s%d\ns_lshl_b32 s%d, s%d, 9\ns_add_u32 s%d, s%d, 0x%x" % (sT0, sI, sT0, sT0, sMH, sT0, sT0, sT0, sT0, RST_OFF))
    k("v_lshrrev_b32 v%d, 2, v%d\nv_lshlrev_b32 v%d, 4, v%d\nv_lshl_add_u32 v%d, v%d, 2, v%d" % (aSt, vM, aSt, aSt, aSt, vG, aSt))
    k("v_and_b32 v%d, 3, v%d\nv_add_u32 v%d, v%d, v%d\nv_lshl_add_u32 v%d, v%d, 3, s%d" % (aS0, vM, aSt, aSt, aS0, aSt, aSt, sT0))
    k("s_cmp_eq_u32 s%d, 1\ns_cbranch_scc1 L_k1_eaB" % sTY)
    k("s_lshl_b32 s%d, s%d, 6\ns_add_u32 s%d, s%d, s%d\ns_lshl_b32 s%d, s%d, 3\ns_add_u32 s%d, s%d, 0x%x" % (sT0, sMH, sT0, sT0, sCol, sT0, sT0, sT0, sT0, SG_OFF))
    k("v_lshl_add_u32 v%d, v%d, 3, s%d\nv_add_u32 v%d, %d, v%d" % (aS0, vL, sT0, aS1, 1536*8, aS0))
    k("s_mov_b32 s%d, %d" % (sKw, 3072*8))
    k("s_branch L_k1_ead")
    k("L_k1_eaB:")
    k("s_lshl_b32 s%d, s%d, 5\ns_add_u32 s%d, s%d, s%d\ns_lshl_b32 s%d, s%d, 3\ns_add_u32 s%d, s%d, 0x%x" % (sT0, sMH, sT0, sT0, sCol, sT0, sT0, sT0, sT0, SG_OFF))
    k("v_lshrrev_b32 v%d, 5, v%d\nv_mul_u32_u24 v%d, 1504, v%d\nv_add_u32 v%d, v%d, v%d\nv_lshl_add_u32 v%d, v%d, 3, s%d" % (aS0, vL, aS0, aS0, aS0, aS0, vL, aS0, aS0, sT0))
    k("s_mul_i32 s%d, s%d, 80\ns_mul_i32 s%d, s%d, 40\ns_add_u32 s%d, s%d, s%d\ns_lshl_b32 s%d, s%d, 3\ns_add_u32 s%d, s%d, 0x%x" % (sT0, sJJ, sT1, sMH, sT0, sT0, sT1, sT0, sT0, sT0, sT0, SB_OFF))
    k("v_lshrrev_b32 v%d, 3, v%d\nv_mul_u32_u24 v%d, 640, v%d\nv_add_u32 v%d, v%d, v%d\nv_lshl_add_u32 v%d, v%d, 3, s%d" % (aS1, vM, aS1, aS1, aS1, aS1, vSL, aS1, aS1, sT0))
    k("s_mov_b32 s%d, 64" % sKw)
    k("L_k1_ead:")
    ev(6)
    k("s_lshl_b32 s%d, s%d, 2\ns_add_u32 s%d, s%d, %d\nv_mov_b32 v%d, s%d\nv_mov_b32 v%d, s%d\nv_lshlrev_b32 v43, 4, v%d" % (sT0, sMH, sT0, sT0, FLG+24, T+6, sT0, T+7, sNon, vL))
    PFW = 2 if PA else 4
    def pf_load(): return "buffer_load_dwordx%d v[44:%d], v%d, %s, s%d offen%s" % (PFW, 43+PFW, T+12, sq(SWS), sKx, SC)
    def pf_eval(ok):
        k("v_xor_b32 v%d, s%d, v44" % (T, sNon))
        for r_ in range(45, 44+PFW): k("v_xor_b32 v%d, s%d, v%d\nv_or_b32 v%d, v%d, v%d" % (T+1, sNon, r_, T, T, T+1))
        k("v_cmp_ne_u32 vcc, 0, v%d" % T)
    k("s_mul_i32 s%d, s%d, %d\ns_add_u32 s%d, s%d, 0x%x\nv_mul_u32_u24 v%d, %d, v%d\ns_mov_b32 s70, 0" % (sKx, sMH, PFW*256, sKx, sKx, PF_OFF, T+12, PFW*4, vL))
    wait_word("L_k1_eg", 36, "%d" % opt("eigate", 8), T, T+1)
    k("s_mov_b32 s%d, 0" % sT3)
    k("L_k1_eil:")
    k("buffer_load_dwordx2 %s, v%d, %s, 0 offen%s" % (vr(EI, 2), aSt, sq(SWS), SC))
    for p in range(5):
        k("s_mov_b32 s%d, %d\ns_mul_i32 s%d, s%d, %d" % (sT0, p*3072*8, sT1, sKw, p))
        k("buffer_load_dwordx2 %s, v%d, %s, s%d offen%s" % (vr(EI+2+2*p, 2), aS0, sq(SWS), sT0, SC))
        k("buffer_load_dwordx2 %s, v%d, %s, s%d offen%s" % (vr(EI+12+2*p, 2), aS1, sq(SWS), sT1, SC))
    k("s_waitcnt vmcnt(0)")
    k("v_xor_b32 v%d, s%d, v%d" % (T, sNon, EI+1))
    for r_ in [EI+3+2*p for p in range(10)]: k("v_xor_b32 v%d, s%d, v%d\nv_or_b32 v%d, v%d, v%d" % (T+1, sNon, r_, T, T, T+1))
    k("v_cmp_ne_u32 vcc, 0, v%d" % T)
    k("s_add_u32 s%d, s%d, 1" % (sT3, sT3))
    k("s_cbranch_vccz L_k1_eid")
    k("s_sleep 16\ns_cmp_lt_u32 s%d, 0x40000\ns_cbranch_scc1 L_k1_eil" % sT3)
    k("L_k1_eid:")
    ev(8)
    k("v_lshlrev_b32 v%d, 16, v%d\nv_and_b32 v%d, s%d, v%d\nv_rcp_f32 v%d, v%d" % (T, EI, T+1, sMASK, EI, T+2, T+1))
    k("s_mul_i32 s%d, s%d, 768\ns_add_u32 s%d, s%d, %d" % (sT0, sMH, sT0, sT0, STAT_M))
    k("v_lshl_add_u32 v%d, v%d, 2, s%d" % (T+3, vL, sT0))
    k("ds_write_b32 v%d, v%d\nds_write_b32 v%d, v%d offset:256\nds_write_b32 v%d, v%d offset:512" % (T+3, T, T+3, T+2, T+3, T+1))
    def sum5(b): k("v_add_f32 v%d, v%d, v%d\nv_add_f32 v%d, v%d, v%d\nv_add_f32 v%d, v%d, v%d\nv_add_f32 v%d, v%d, v%d" % (b, b, b+2, b+4, b+4, b+6, b, b, b+8, b, b, b+4))
    sum5(EI+2)
    k("s_lshl_b32 s%d, s%d, 9\ns_add_u32 s%d, s%d, %d" % (sT0, sMH, sT0, sT0, SFF))
    k("v_lshl_add_u32 v%d, v%d, 2, s%d" % (T+4, vL, sT0))
    k("ds_write_b32 v%d, v%d" % (T+4, EI+2))
    k("s_cmp_eq_u32 s%d, 1\ns_cbranch_scc1 L_k1_ewB" % sTY)
    sum5(EI+12)
    k("ds_write_b32 v%d, v%d offset:256" % (T+4, EI+12))
    k("s_branch L_k1_ewd")
    k("L_k1_ewB:")
    for p in range(5): k("v_mov_b32 v%d, v%d" % ([TG+27, TG+29, TG+31, TG+33, TG+25][p], EI+12+2*p))
    k("s_mul_i32 s%d, s%d, %d\ns_add_u32 s%d, s%d, %d\nv_add_u32 v43, s%d, v43" % (sT0, sMH, 2*80*TRP, sT0, sT0, TRB, sT0))
    k("s_mul_i32 s%d, s%d, 3072\ns_add_u32 s%d, s%d, %d\nv_lshl_add_u32 v%d, v%d, 4, s%d" % (sT0, sMH, sT0, sT0, CT, T+5, vM, sT0))
    k("v_mov_b32 v%d, %d" % (T+2, FLG))
    wait_done("L_k1_tbw", "16", T+2, T+8)
    for qd in range(12): k("ds_write_b128 v%d, %s offset:%d" % (T+5, vr(TG+4*qd, 4), qd*256))
    for w2 in range(2):
        for qd in range(5): k("ds_write_b128 v43, %s offset:%d" % (vr(TB+4*qd, 4), w2*80*TRP+qd*1024))
    k("L_k1_ewd:")
    k("ds_write_b32 v%d, v%d" % (T+6, T+7))
    wait_word("L_k1_pg", 36, "%d" % opt("pfgate", 10), T, T+1)
    k("s_mov_b32 s%d, 0" % sT3)
    k("L_k1_pfl:")
    k(pf_load() + "\ns_waitcnt vmcnt(0)")
    pf_eval(None)
    k("s_add_u32 s%d, s%d, 1" % (sT3, sT3))
    k("s_cbranch_vccz L_k1_pfo")
    k("s_sleep 12\ns_cmp_lt_u32 s%d, 0x40000\ns_cbranch_scc1 L_k1_pfl" % sT3)
    k("L_k1_pfo:")
    k("ds_write_b32 v%d, v%d offset:16" % (T+6, T+7))
    k("v_mov_b32 v72, %d\nv_mov_b32 v73, 0" % (FLG+48))
    k("L_k1_P2:")
    if opt("p2prio", 0): k("s_setprio %d" % opt("p2prio", 0))
    stamp(k, 1)
    if TRACE:
        k("s_lshl_b32 s83, s2, 11\ns_add_u32 s83, s83, 0x%x\nv_lshl_add_u32 v12, v0, 2, s83" % (STAMP_OFF + 0x40000))
        k("global_store_dword v12, v255, %s" % sp(pWs))
    LD2 = ["", " sc1", " nt", " sc0 sc1", " sc1 nt"][opt("ld2", 1)]
    sP, sMI, sNI = 4, 5, 6
    sAb, sBb = [72, 73, 74], [75, 76, 77]
    sR, sSh = 78, 79
    SO = SX
    AR, BR, AC = 12, 76, 176
    vA = [2, 3, 4, 5]; vB0, vB1, vOut, vLd, vFl, vFa = 6, 7, 8, 9, 10, 11
    k("s_sub_u32 s%d, s%d, 4" % (sP, sW))
    k("s_and_b32 s%d, s2, 7\ns_lshr_b32 s%d, s2, 3" % (sT0, sT1))
    p2map(sMI, sNI)
    X_, D_, ST_, PFr, tA, tB, tC = AR, AR+10, AR+20, AR+24, AR+32, AR+33, AR+34
    k("v_bfe_u32 v%d, v%d, 1, 2\nv_xor_b32 v%d, v%d, v%d\nv_mul_u32_u24 v%d, 320, v%d\nv_lshl_add_u32 v%d, v%d, 4, v%d" % (tA, vM, tA, tA, vG, vOut, vM, vOut, tA, vOut))
    k("v_lshlrev_b32 v%d, 4, v%d\nv_add_u32 v%d, 4096, v%d" % (vB0, vL, vB1, vB0))
    for f in range(4): k("s_xor_b32 s%d, s%d, %d\ns_lshl_b32 s%d, s%d, 10\nv_add_u32 v%d, s%d, v%d" % (sT0, sP, f, sT0, sT0, vA[f], sT0, vB0))
    k("s_mul_i32 s%d, s%d, %d\ns_mul_i32 s%d, s%d, %d\ns_add_u32 s%d, s%d, 0x%x" % (sBb[0], sMI, 88*4096, sBb[1], sNI, 88*5120, sBb[1], sBb[1], B2_OFF))
    for g, (mul, add) in enumerate(((8, 0), (4, 32), (10, 48))):
        k("s_mul_i32 s%d, s%d, %d\ns_add_u32 s%d, s%d, %d" % (sAb[g], sP, mul, sAb[g], sAb[g], add))
    def region(dst, src):
        k("s_and_b32 s%d, s%d, 1\ns_mul_i32 s%d, s%d, 25600\ns_cmp_lt_u32 s%d, 2\ns_cselect_b32 s%d, %d, 0\ns_add_u32 s%d, s%d, s%d" % (dst, src, dst, dst, src, sT0, 2*SL, dst, dst, sT0))
    region(sR, sP)
    k("v_add_u32 v%d, s%d, v%d\nv_add_u32 v%d, s%d, v%d" % (vLd, sR, vB0, vOut, sR, vOut))
    k("s_lshl_b32 s%d, s%d, 2\ns_add_u32 s%d, s%d, s%d\ns_mul_i32 s%d, s%d, %d\ns_add_u32 s%d, s%d, 0x%x" % (sSh, sMI, sSh, sSh, sP, sSh, sSh, FLS_, sSh, sSh, FL_OFF))
    k("s_lshl_b32 s%d, s%d, 2\ns_add_u32 s%d, s%d, %d\nv_mov_b32 v%d, s%d\nv_mov_b32 v%d, %d" % (sT0, sP, sT0, sT0, FLG+64, vFa, sT0, PFr+2, FLG+32))
    k("s_waitcnt vmcnt(0)\nds_write_b32 v72, v73")
    steps = [(0, i) for i in (0, 2, 4, 6, 1, 3, 5, 7)] + [(1, i) for i in range(4)] + [(2, i) for i in range(10)]
    fgrp = {0: 0, 4: 3, 8: 1, 12: 2}
    ORD = opt("ord2", 0)
    pos = [0, 4, 8]
    if ORD == 1: fgrp = {0: 1, 4: 0, 8: 3, 12: 2}; pos = [4, 8, 0]
    if ORD == 2: fgrp = {0: 0, 4: 1, 8: 3, 12: 2}; pos = [0, 8, 4]
    NS = len(steps)
    sK = list(range(16, 32)) + list(range(34, 40))
    ROT = opt("rot", 0)
    k("s_lshr_b32 s%d, s2, 3\ns_and_b32 s%d, s%d, 7\ns_lshr_b32 s%d, s%d, 3" % (sT1, sT0, sT1, sT1, sT1))
    if ROT:
        k("s_add_u32 s%d, s%d, s%d\ns_and_b32 s%d, s%d, 3" % (sT2, sT0, sT1, sT2, sT2))
        k("s_mul_i32 s%d, s%d, 3\ns_add_u32 s%d, s%d, s%d\ns_cmp_ge_u32 s%d, 10\ns_cselect_b32 s%d, 10, 0\ns_sub_u32 s%d, s%d, s%d" % (sT3, sT1, sT3, sT3, sT0, sT3, sT0, sT3, sT3, sT0))
    else:
        k("s_mov_b32 s%d, 0\ns_mov_b32 s%d, 0" % (sT2, sT3))
    for j in range(4):
        k("s_add_u32 s%d, s%d, %d\ns_and_b32 s%d, s%d, 3\ns_add_u32 s%d, s%d, s%d\ns_lshl_b32 s%d, s%d, 1\ns_add_u32 s%d, s%d, s%d\ns_add_u32 s%d, s%d, 1" %
          (sT0, sT2, j, sT0, sT0, sK[pos[2]+j], sT0, sAb[1], sT0, sT0, sK[pos[0]+j], sT0, sAb[0], sK[pos[1]+j], sK[pos[0]+j]))
    for j in range(10):
        k("s_add_u32 s%d, s%d, %d\ns_cmp_ge_u32 s%d, 10\ns_cselect_b32 s%d, 10, 0\ns_sub_u32 s%d, s%d, s%d\ns_add_u32 s%d, s%d, s%d" % (sT0, sT3, j, sT0, sT1, sT0, sT0, sT1, sK[12+j], sT0, sAb[2]))
    LS = [[7, 10, 13, 16, 19], [17, 18, 19, 20, 21], [9, 12, 15, 18, 21], [13, 15, 17, 19, 21], [], [20, 21], [5, 7, 9, 11, 13], [6, 9, 12, 15, 18]][opt("lsl", 2)]
    NA, NB = 4, 5
    vm = []
    THR = opt("thr", 0)
    def ldB(s, buf):
        g, i = steps[s]
        o = (["s_waitcnt vmcnt(%d)" % THR] if THR else []) + ["s_mul_i32 s%d, s%d, 5120\ns_add_u32 s%d, s%d, s%d" % (sT1, sK[s], sT1, sT1, sBb[1])]
        for f in range(5):
            o.append("buffer_load_dwordx4 %s, v%d, %s, s%d offen offset:%d%s" % (vr(BR+buf*20+f*4, 4), vB1 if f == 4 else vB0, sq(SWS), sT1, (f & 3)*1024, LD2))
            vm.append(("B", s))
        return o
    def ldA(s):
        g, i = steps[s]
        o = (["s_waitcnt vmcnt(%d)" % THR] if THR else []) + ["s_lshl_b32 s%d, s%d, 12\ns_add_u32 s%d, s%d, s%d" % (sT0, sK[s], sT0, sT0, sBb[0])]
        for f in range(4):
            o.append("buffer_load_dwordx4 %s, v%d, %s, s%d offen%s" % (vr(AR+(s % NA)*16+f*4, 4), vA[f], sq(SWS), sT0, LD2))
            vm.append(("A", s))
        return o
    def vwait(tags):
        idx = max(i for i, x in enumerate(vm) if x in tags)
        return min(63, len(vm)-1-idx)
    bbuf = {}
    k("L_k1_p2e:")
    k("ds_read_b128 %s, v%d\ns_waitcnt lgkmcnt(0)\nv_min_u32 v%d, v%d, v%d\nv_readfirstlane_b32 s%d, v%d\nv_readfirstlane_b32 s%d, v%d" % (vr(PFr+4, 4), PFr+2, PFr+6, PFr+6, PFr+7, sNon, PFr+6, sT0, PFr+5))
    k("s_cmp_lt_u32 s%d, %d\ns_cselect_b32 s%d, 0, s%d\ns_cmp_lg_u32 s%d, 0\ns_cbranch_scc1 L_k1_p2eo\ns_sleep 1\ns_branch L_k1_p2e\nL_k1_p2eo:" % (sT0, opt("bgate", 10), sT0, sNon, sT0))
    streamed = [s for s in range(NS) if s not in LS]
    NPRE = opt("npre", NB)
    for j in range(NB):
        bbuf[streamed[j]] = j
        if j < NPRE:
            for x in ldB(streamed[j], j): k(x)
    nextB = NB
    srd(k, SO, pOut, 2048*640*4)
    k("v_mov_b32 v%d, %d" % (AR+40, FLG))
    k("s_and_b32 s%d, s%d, 2\ns_add_u32 s%d, s%d, 18" % (sT1, sP, sT1, sT1))
    stamp(k, 2)
    wait_done("L_k1_p2w", "s%d" % sT1, AR+40, AR+44)
    for j, s_ in enumerate(LS):
        g, i = steps[s_]
        if THR: k("s_waitcnt vmcnt(%d)" % THR)
        k("s_add_u32 m0, s%d, %d\ns_mul_i32 s%d, s%d, 5120\ns_add_u32 s%d, s%d, s%d" % (sR, j*5120, sT1, sK[s_], sT1, sT1, sBb[1]))
        for f in range(4):
            k("buffer_load_dwordx4 v%d, %s, s%d offen offset:%d%s lds" % (vB0, sq(SWS), sT1, f*1024, LD2)); vm.append(("L", s_))
        k("s_add_u32 m0, s%d, %d" % (sR, j*5120+4096))
        k("buffer_load_dwordx4 v%d, %s, s%d offen%s lds" % (vB1, sq(SWS), sT1, LD2)); vm.append(("L", s_))
    if opt("tb", 0):
        assert not ROT
        rest = streamed[NB:]
        tv, tj = AR+40, AR+41
        k("v_mul_u32_u24 v%d, 52, v%d\nv_lshrrev_b32 v%d, 8, v%d" % (tj, vL, tj, tj))
        k("v_mov_b32 v%d, s%d" % (tv, sK[rest[0]]))
        for j in range(1, len(rest)):
            k("v_cmp_le_u32 vcc, %d, v%d\nv_mov_b32 v%d, s%d\nv_cndmask_b32 v%d, v%d, v%d, vcc" % (j, tj, AR+42, sK[rest[j]], tv, tv, AR+42))
        k("v_mul_u32_u24 v%d, 5, v%d\nv_sub_u32 v%d, v%d, v%d" % (tj, tj, tj, vL, tj))
        k("s_lshr_b32 s%d, s2, 3\ns_and_b32 s%d, s%d, 7\ns_mul_i32 s%d, s%d, 640\ns_add_u32 s%d, s%d, s%d" % (sT0, sT0, sT0, sT0, sT0, sT0, sT0, sBb[1]))
        k("v_mul_u32_u24 v%d, 5120, v%d\nv_lshl_add_u32 v%d, v%d, 7, v%d" % (tv, tv, tv, tj, tv))
        k("buffer_load_dword v%d, v%d, %s, s%d offen%s" % (vFl, tv, sq(SWS), sT0, LD2)); vm.append(("T", 0))
    stamp(k, 3)
    k("s_add_u32 s40, s%d, s%d\ns_addc_u32 s41, s%d, 0" % (pWs, sSh, pWs+1))
    def flag_load(g):
        return "s_load_dwordx4 s[52:55], s[40:41], %d glc" % (g*16)
    def flag_check(g):
        lab = "L_k1_fc%d" % g
        k("s_mov_b32 s%d, 0\ns_branch %s_c" % (sT3, lab))
        k("%s_r:" % lab)
        k("s_sleep %d\n%s" % (opt("psl", 2), flag_load(g)))
        k("%s_c:" % lab)
        k("s_waitcnt lgkmcnt(0)")
        k("s_xor_b32 s52, s52, s%d\ns_xor_b32 s53, s53, s%d\ns_xor_b32 s54, s54, s%d\ns_xor_b32 s55, s55, s%d" % (sNon, sNon, sNon, sNon))
        k("s_add_u32 s%d, s%d, 1\ns_or_b64 s[52:53], s[52:53], s[54:55]\ns_cbranch_scc0 %s_d" % (sT3, sT3, lab))
        k("s_cmp_lt_u32 s%d, 0x100000\ns_cbranch_scc1 %s_r" % (sT3, lab))
        k("%s_d:" % lab)
        if opt("p2t", 0): k("s_memrealtime s[100:101]\ns_waitcnt lgkmcnt(0)\nv_writelane_b32 v1, s100, %d\nv_writelane_b32 v1, s%d, %d" % (32+g, sT3, 40+g))
    if opt("pd", 0): k("s_waitcnt vmcnt(0)\ns_sleep %d" % opt("pd", 0))
    k(flag_load(fgrp[0]))
    flag_check(fgrp[0])
    stamp(k, 4)
    for s_ in range(NB):
        if s_ < NA:
            for x in ldA(s_): k(x)
        if s_ >= NPRE:
            for x in ldB(streamed[s_], s_): k(x)
    LEAD = {4: opt("ld3", 1), 8: opt("ld1", 2), 12: opt("ld2_", 2)}
    chkpos = {g: g - 1 - LEAD[g] for g in LEAD}
    nextA = NA
    if chkpos[4] == 0: k(flag_load(fgrp[4]))
    EARLY = opt("early", 1)
    R5 = range(5)
    GOH = [BR + 40]
    def red_addr():
        GO = GOH[0]
        o = []
        for f in range(1, 4):
            o.append("s_xor_b32 s%d, s%d, %d\ns_and_b32 s%d, s%d, 1\ns_mul_i32 s%d, s%d, 25600" % (sT2, sP, f, sT1, sT2, sT1, sT1))
            o.append("s_cmp_lt_u32 s%d, 2\ns_cselect_b32 s%d, %d, 0\ns_add_u32 s%d, s%d, s%d" % (sT2, sT0, 2*SL, sT1, sT1, sT0))
            o.append("v_add_u32 v%d, s%d, v%d" % (vA[f], sT1, vB0))
        o.append("s_mul_i32 s%d, s%d, %d\ns_add_u32 s%d, s%d, %d\nv_add_u32 v%d, s%d, v%d" % (sT1, sP, 80*TRP, sT1, sT1, TRB, vA[0], sT1, vB0))
        o.append("v_lshrrev_b32 v%d, 4, v%d" % (vFl, vB0))
        o.append("s_lshl_b32 s%d, s%d, 6\ns_lshl_b32 s%d, s%d, 2\ns_add_u32 s%d, s%d, s%d" % (sT0, sMI, sT1, sP, sT0, sT0, sT1))
        o.append("s_mul_i32 s%d, s%d, 2560\ns_mul_i32 s%d, s%d, 320\ns_add_u32 s%d, s%d, s%d" % (sT0, sT0, sT1, sNI, sT3, sT0, sT1))
        e_, r_, q_, t_ = GO, GO+5, GO+10, GO+15
        for it in R5: o.append("v_add_u32 v%d, %d, v%d" % (e_+it, it*64, vFl))
        for it in R5: o.append("v_mul_u32_u24 v%d, 205, v%d" % (r_+it, e_+it))
        for it in R5: o.append("v_lshrrev_b32 v%d, 12, v%d" % (r_+it, r_+it))
        for it in R5: o += ["v_mul_u32_u24 v%d, 20, v%d" % (q_+it, r_+it), "v_bfe_u32 v%d, v%d, 1, 2" % (t_+it, r_+it)]
        for it in R5: o.append("v_sub_u32 v%d, v%d, v%d" % (q_+it, e_+it, q_+it))
        for it in R5: o += ["v_xor_b32 v%d, v%d, v%d" % (q_+it, q_+it, t_+it), "v_lshrrev_b32 v%d, 2, v%d" % (t_+it, r_+it)]
        for it in R5: o.append("v_mad_u32_u24 v%d, v%d, 12, v%d" % (r_+it, t_+it, r_+it))
        for it in R5: o.append("v_mul_u32_u24 v%d, 2560, v%d" % (r_+it, r_+it))
        for it in R5: o.append("v_lshl_add_u32 v%d, v%d, 4, v%d" % (GO+it, q_+it, r_+it))
        return o
    deadB = []
    pend = []
    for s_ in range(NS):
        fill = pend; pend = []
        need = [("A", s_)] + ([("B", s_)] if s_ not in LS else [])
        CSM_ = opt("csm", 1)
        if (CSM_ & 1 and s_ == 0) or (CSM_ & 2 and 0 < s_ < opt("csn", 12)):
            lab = "L_k1_cs%d" % s_
            if s_ == 0: k("%s_r:\nds_read_b32 v%d, v%d" % (lab, vFl, vFa))
            else: k("s_branch %s_c\n%s_r:\ns_sleep 1\nds_read_b32 v%d, v%d\n%s_c:" % (lab, lab, vFl, vFa, lab))
            k("s_waitcnt lgkmcnt(0)\nv_readfirstlane_b32 s%d, v%d\ns_cmp_eq_u32 s%d, 0\ns_cbranch_scc1 %s_r" % (sT2, vFl, sT2, lab))
        if CSM_ & 2 and s_+1 < opt("csn", 12): fill = fill + ["ds_read_b32 v%d, v%d" % (vFl, vFa)]
        mf_ = []
        for f in range(4):
            for cb in range(5):
                c = AC + (f*5+cb)*4
                mf_.append("v_mfma_f32_16x16x32_bf16 %s, %s, %s, %s" % (vr(c, 4), vr(BR+bbuf[s_]*20+cb*4, 4), vr(AR+(s_ % NA)*16+f*4, 4), vr(c, 4) if s_ else "0"))
        if opt("ilv", 1):
            nf = sum(1 for x in fill if x.startswith("buffer_load"))
            k("s_waitcnt vmcnt(%d)%s" % (max(0, vwait(need)-nf), " lgkmcnt(0)" if s_ in LS else ""))
            if opt("p2t", 0): k("s_memrealtime s[100:101]")
            if s_ == NS-1 and opt("ovl", 1):
                assert not fill
                fill = ["s_nop 0"]*5 + ["ds_write_b128 v%d, %s offset:%d" % (vOut, vr(AC+(f*5+cb)*4, 4), f*5120+cb*64) for f in range(3) for cb in range(5)]
            if EARLY and s_ in (NS-3, NS-2):
                if s_ == NS-3:
                    cand = [b_ for b_ in deadB if BR + b_*20 >= AR + 100]
                    GOH[0] = BR + cand[0]*20
                    ra_ = red_addr()
                half = ra_[:36] if s_ == NS-3 else ra_[36:]
                interleave(k, mf_, fill + half, per=2)
            else: interleave(k, mf_, fill, per=1)
            if opt("p2t", 0): k("s_waitcnt lgkmcnt(0)\nv_writelane_b32 v1, s100, %d" % s_)
        else:
            for x in fill: k(x)
            k("s_waitcnt vmcnt(%d)%s" % (vwait(need), " lgkmcnt(0)" if s_ in LS else ""))
            if opt("p2t", 0): k("s_memrealtime s[100:101]")
            for x in mf_: k(x)
            if opt("p2t", 0): k("s_waitcnt lgkmcnt(0)\nv_writelane_b32 v1, s100, %d" % s_)
        for g_ in chkpos:
            if chkpos[g_] == s_:
                if fgrp[g_] == 2: stamp(k, 0)
                flag_check(fgrp[g_])
                if fgrp[g_] == 2: stamp(k, 7)
        while nextA < NS and nextA <= s_ + NA and all(not (g_ <= nextA and chkpos[g_] > s_) for g_ in chkpos):
            pend += ldA(nextA); nextA += 1
        fb = bbuf[s_]
        if s_+2 in LS:
            bbuf[s_+2] = fb
            j = LS.index(s_+2)
            pend.append("s_waitcnt vmcnt(%d)" % vwait([("L", s_+2)]))
            for f in range(5): pend.append("ds_read_b128 %s, v%d offset:%d" % (vr(BR+fb*20+f*4, 4), vLd, j*5120+f*1024))
        elif nextB < len(streamed):
            bbuf[streamed[nextB]] = fb
            pend += ldB(streamed[nextB], fb); nextB += 1
        else: deadB.append(fb)
        for g_ in chkpos:
            if chkpos[g_] == s_+1: pend.insert(0, flag_load(fgrp[g_]))
    stamp(k, 5)
    OSC = ["", " sc1", " nt", " sc0 sc1"][opt("osc", 1)]
    wr_last = ["ds_write_b128 v%d, %s offset:%d" % (vOut, vr(AC+(f*5+cb)*4, 4), f*5120+cb*64) for f in ((3,) if opt("ovl", 1) else (1, 2, 3, 0)) for cb in range(5)]
    for x in wr_last: k(x)
    if not EARLY:
        for x in red_addr(): k(x)
    k("s_waitcnt lgkmcnt(0)\ns_barrier")
    for it in R5:
        for f in range(5):
            a_, off = (vA[f], f*5120) if f < 4 else (vLd, 0)
            if f == 0: off = 0
            k("ds_read_b128 %s, v%d offset:%d" % (vr(AR+(it*5+f)*4, 4), a_, off+it*1024))
        if it == 2: k("s_waitcnt lgkmcnt(5)")
    for it in R5:
        k("s_waitcnt lgkmcnt(%d)" % min(15, 20-5*it))
        q = AR+it*20
        for h in range(0, 4, 2):
            k("v_pk_add_f32 %s, %s, %s\nv_pk_add_f32 %s, %s, %s" % (vr(q+h, 2), vr(q+h, 2), vr(q+4+h, 2), vr(q+8+h, 2), vr(q+8+h, 2), vr(q+12+h, 2)))
        for h in range(0, 4, 2): k("v_pk_add_f32 %s, %s, %s" % (vr(q+h, 2), vr(q+h, 2), vr(q+16+h, 2)))
        for h in range(0, 4, 2): k("v_pk_add_f32 %s, %s, %s" % (vr(q+h, 2), vr(q+h, 2), vr(q+8+h, 2)))
        k("buffer_store_dwordx4 %s, v%d, %s, s%d offen%s" % (vr(q, 4), GOH[0]+it, sq(SO), sT3, OSC))
    stamp(k, 6)
    if opt("p2t", 0):
        k("s_lshl_b32 s83, s2, 11\ns_add_u32 s83, s83, 0x%x\nv_lshl_add_u32 v12, v0, 2, s83" % (STAMP_OFF + 0x40000))
        k("global_store_dword v12, v1, %s" % sp(pWs))
    stamp_out(k, 0, 8, pWs, 76)
    k("s_endpgm")

    k("L_k1_C:")
    decode()
    k("v_mov_b32 v%d, 0\nv_lshlrev_b32 v%d, 2, v%d\nv_add_u32 v%d, %d, v%d\nds_write2_b32 v%d, v%d, v%d offset1:16" % (vT[1], vT[2], vM, vT[2], FLG, vT[2], vT[2], vT[1], vT[1]))
    k("s_waitcnt lgkmcnt(0)\ns_barrier")
    k("s_setprio 3")
    k("s_mov_b64 s[48:49], %s\ns_mov_b64 s[50:51], %s\ns_mov_b64 s[52:53], %s" % (sp(pX), sp(pD), sp(pWs)))
    aX = [12, 13]; aW = [14, 15, 16, 17]
    XS = [20, 36]
    WR = 52
    ACC = 84
    k("v_lshrrev_b32 v%d, 1, v%d\nv_xor_b32 v%d, v%d, v%d\nv_lshlrev_b32 v%d, 4, v%d" % (vT[0], vM, vT[0], vT[0], vG, vT[0], vT[0]))
    k("v_lshl_add_u32 v%d, v%d, 7, v%d" % (vT[5], vM, vT[0]))
    k("s_lshl_b32 s%d, s%d, 13" % (sT0, sMH))
    k("v_add_u32 v%d, s%d, v%d\nv_xor_b32 v%d, 64, v%d" % (aX[0], sT0, vT[5], aX[1], aX[0]))
    k("v_lshrrev_b32 v%d, 2, v%d\nv_lshl_add_u32 v%d, v%d, 3, v%d\nv_lshlrev_b32 v%d, 7, v%d" % (vT[0], vM, vT[0], vG, vT[0], vT[0], vT[0]))
    k("v_and_b32 v%d, 1, v%d\nv_lshlrev_b32 v%d, 1, v%d\nv_lshrrev_b32 v%d, 3, v%d\nv_or_b32 v%d, v%d, v%d" % (vT[1], vG, vT[1], vT[1], vT[2], vM, vT[1], vT[1], vT[2]))
    k("v_lshl_add_u32 v%d, v%d, 5, v%d" % (vT[0], vT[1], vT[0]))
    k("v_and_b32 v%d, 3, v%d\nv_lshl_add_u32 v%d, v%d, 3, v%d\nv_add_u32 v%d, 16384, v%d" % (vT[1], vM, vT[0], vT[1], vT[0], vT[0], vT[0]))
    k("s_lshl_b32 s%d, s%d, 1\ns_add_u32 s%d, s%d, s%d" % (sC, sI, sC, sC, sMH))
    k("s_mov_b32 s%d, 0\ns_mov_b32 s%d, 0" % (sIt, sRd))
    k("s_cmp_eq_u32 s%d, 1\ns_cbranch_scc1 L_k1_CB" % sTY)

    def c_loop(tag, frags, R, D, WR, addr_regs, post):
        n = len(frags); N = 2*n
        assert N % R == 0
        def wreg(p): return WR + (p % R)*4
        def rdW(p): return frags[p % n][0]((p % N)//n, wreg(p))
        def rdX(h): return ["ds_read_b128 %s, v%d offset:%d" % (vr(XS[h]+4*b, 4), aX[h], b*2048) for b in range(4)]
        def mf(p): return [frags[p % n][1](b, XS[(p % N)//n]+4*b, wreg(p)) for b in range(4)]
        adv = ["s_mov_b32 s%d, %d\ns_add_u32 s%d, s%d, 1\ns_cmp_eq_u32 s%d, 3\ns_cselect_b32 s%d, 0, s%d\ns_cselect_b32 s%d, %d, s%d" % (sDelta, SL, sRd, sRd, sRd, sRd, sRd, sDelta, (-2*SL) & 0xffffffff, sDelta)]
        adv += ["v_add_u32 v%d, s%d, v%d" % (r, sDelta, r) for r in addr_regs]
        vFl, vFa, vDa, vDv = 18, vT[1], vT[2], vT[3]
        sF = sA
        import re as _re
        FLS = N - opt("fl", 3)
        def build():
            mfs = []; gaps = [[] for _ in range(4*N)]
            for j in range(N):
                loads = [("ld", x, ("W", j)) for x in rdW(j)]
                if j == 0: loads = [("ld", x, ("X0", b)) for b, x in enumerate(rdX(0)[:2])] + loads
                if j == 1: loads = [("ld", x, ("X0", b+2)) for b, x in enumerate(rdX(0)[2:])] + loads
                if D <= j < D+4: loads += [("ld", rdX(1)[j-D], ("X1", j-D))]
                if j == FLS: loads += [("ld", "ds_read_b64 %s, v%d " % (vr(vFl, 2), vFa), ("F", 0))]
                if j == N-1 or j == max(n-1, D+3): loads += [("ld", "ds_write_b32 v%d, v%d" % (vDa, vDv), ("DW", j))]
                p = j - D
                ms = mf(p % N)
                for b in range(4):
                    need = [("W", p % N)] + [("X%d" % ((p % N)//n), bb) for bb in range(4)]
                    mfs.append(("mf", ms[b], (need, p < 0)))
                    if b < 3:
                        if loads: gaps[j*4+b].append(loads.pop(0))
                    else: gaps[j*4+b] += loads
            def place(e, lo, hi=4*N-1):
                for cap in (0, 1, 2, 3):
                    for g in range(lo, hi+1):
                        if len(gaps[g]) + (1 if g % 4 == 3 else 0) <= cap:
                            gaps[g].append(e); return g
                raise Exception
            g = 4*D
            def place_s(txt, lo):
                for g in range(lo, 4*N):
                    if len(gaps[g]) + (1 if g % 4 == 3 else 0) <= 1:
                        gaps[g].append(("x", txt, None)); return g
            for txt in ("s_add_u32 s%d, s%d, 1" % (sRd, sRd), "s_cmp_eq_u32 s%d, 3" % sRd, "s_cselect_b32 s%d, s14, s15" % sDelta, "s_cselect_b32 s%d, 0, s%d" % (sRd, sRd), "s_add_u32 s%d, s%d, 1" % (sIt, sIt)):
                g = place_s(txt, g) + 1
            gd = g
            mid = max(n-1, D+3)
            place_s("v_add_u32 v%d, 1, v%d" % (vDv, vDv), gd)
            place(("x", "v_add_u32 v%d, 1, v%d" % (vDv, vDv), None), 4*mid+4, 4*(N-1)-1)
            g1 = place(("use", "v_min_u32 v%d, v%d, v%d" % (vFl, vFl, vFl+1), ([("F", 0)], False)), 4*(N-2)+2, 4*N-4)
            gaps[g1+1].append(("x", "v_readfirstlane_b32 s%d, v%d" % (sF, vFl), None))
            gaps[4*N-2].append(("x", "s_cmp_gt_u32 s%d, s%d" % (sF, sIt), None))
            for r in addr_regs:
                last = max(g for g in range(4*N) for x in gaps[g] if x[0] == "ld" and _re.search(r", v%d " % r, x[1]+" "))
                place(("x", "v_add_u32 v%d, s%d, v%d" % (r, sDelta, r), None), min(max(last+1, gd), 4*N-1))
            seq = []
            for m_, gp in zip(mfs, gaps): seq += [m_] + gp
            return seq
        def emit(seq, prev):
            issued = [(t, True) for t in prev]
            cur = 99
            for kind, text, tg in seq:
                if kind == "ld": issued.append((tg, False)); cur += 1
                elif kind == "lab": cur = 99
                elif kind in ("mf", "use"):
                    w = 15
                    for t in tg[0]:
                        idx = max(i for i, x in enumerate(issued) if x == (t, tg[1]))
                        w = min(w, len(issued)-1-idx)
                    if w < cur:
                        k("s_waitcnt lgkmcnt(%d)" % w); cur = w
                k(text)
        L = "L_k1_cl" + tag
        k("v_mov_b32 v%d, %d\nv_mov_b32 v%d, 0\ns_mov_b32 s14, %d\ns_mov_b32 s15, %d" % (vFa, FLG+16, vDv, (-2*SL) & 0xffffffff, SL))
        k("s_lshl_b32 s%d, s%d, 2\ns_add_u32 s%d, s%d, %d\nv_mov_b32 v%d, s%d" % (sT0, sW, sT0, sT0, FLG, vDa, sT0))
        s2 = build()
        allld = [x[2] for x in s2 if x[0] == "ld"]
        idx2 = next(i for i, x in enumerate(s2) if x[0] == "mf" and not x[2][1])
        k("%s_sp:" % L)
        k("ds_read_b64 %s, v%d\ns_waitcnt lgkmcnt(0)\nv_min_u32 v%d, v%d, v%d\nv_readfirstlane_b32 s%d, v%d" % (vr(vFl, 2), vFa, vFl, vFl, vFl+1, sF, vFl))
        k("s_cmp_gt_u32 s%d, s%d\ns_cbranch_scc0 %s_sp" % (sF, sIt, L))
        k("s_cmp_lg_u32 s%d, 0\ns_cbranch_scc1 %s" % (sIt, L))
        stamp(k, 5)
        for x in s2[:idx2]:
            if x[0] == "ld": k(x[1])
        k("s_branch %s_mid" % L)
        k(".p2align 6")
        k("%s:" % L)
        trace(sIt, 4, 1)
        if opt("clk", 0):
            k("s_cmp_lg_u32 s%d, 5\ns_cbranch_scc1 %s_nc\ns_memrealtime s[84:85]\ns_memtime s[90:91]\n%s_nc:" % (sIt, L, L))
        s2 = s2[:idx2] + [("lab", "%s_mid:" % L, None)] + s2[idx2:]
        emit(s2, allld)
        if TRACE:
            trace(sIt, 4, 0)
            k("s_cmp_gt_u32 s%d, s%d" % (sF, sIt))
        k("s_cbranch_scc1 %s" % L)
        k("s_cmp_lt_u32 s%d, 10\ns_cbranch_scc1 %s_sp" % (sIt, L))
        if opt("cprio", 3) != 3: k("s_setprio %d" % opt("cprio", 3))
        if opt("clk", 0): k("s_memrealtime s[94:95]\ns_memtime s[96:97]")
        k("ds_read_b64 %s, v%d offset:8" % (vr(vFl, 2), vFa))
        k("s_waitcnt lgkmcnt(6)")
        for x in mf(N-D): k(x)
        k("s_branch %s_ec" % L)
        k("%s_es:" % L)
        k("ds_read_b64 %s, v%d offset:8" % (vr(vFl, 2), vFa))
        k("%s_ec:" % L)
        k("s_waitcnt lgkmcnt(0)")
        k("v_min_u32 v%d, v%d, v%d\nv_readfirstlane_b32 s%d, v%d" % (vFl, vFl, vFl+1, sNon, vFl))
        k("s_cmp_eq_u32 s%d, 0\ns_cbranch_scc1 %s_es" % (sNon, L))
        tail = []
        for p in range(N-D+1, N): tail += mf(p)
        interleave(k, tail, post(), lead=2, per=1)

    c0 = -2*math.sqrt(2/math.pi)*LOG2E
    def ffn_epilogue(ACCF, ncb, S4, Mb, RSb, Sb, T, O, K0, vSt, blocks, defer=None):
        for bi, (b, pr_) in enumerate(blocks):
            sel = b & 1
            bc = lambda base: vr(base + (b & ~1), 2)
            os0 = " op_sel:[%d,0,0] op_sel_hi:[%d,1,1]" % (sel, sel)
            items = [(cb, hh) for cb in (2*pr_, 2*pr_+1) for hh in range(2)]
            G = lambda cb, hh: ACCF + (cb*4+b)*4 + 2*hh
            U = lambda cb, hh: ACCF + ((ncb+cb)*4+b)*4 + 2*hh
            Tm = lambda cb, hh: T + (cb & 1)*4 + 2*hh
            for cb, hh in items: k("v_pk_fma_f32 %s, %s, %s, %s%s neg_lo:[1,0,0] neg_hi:[1,0,0]" % (vr(G(cb,hh),2), bc(Mb), vr(S4+cb*4+2*hh,2), vr(G(cb,hh),2), os0))
            for cb, hh in items: k("v_pk_mul_f32 %s, %s, %s op_sel:[%d,0] op_sel_hi:[%d,1]" % (vr(G(cb,hh),2), bc(RSb), vr(G(cb,hh),2), sel, sel))
            for cb, hh in items: k("v_pk_mul_f32 %s, %s, %s" % (vr(Tm(cb,hh),2), vr(G(cb,hh),2), vr(G(cb,hh),2)))
            for cb, hh in items: k("v_pk_fma_f32 %s, %s, %s, %s op_sel:[0,0,1] op_sel_hi:[1,0,1]" % (vr(Tm(cb,hh),2), vr(Tm(cb,hh),2), vr(K0,2), vr(K0,2)))
            for cb, hh in items: k("v_pk_mul_f32 %s, %s, %s" % (vr(Tm(cb,hh),2), vr(Tm(cb,hh),2), vr(G(cb,hh),2)))
            for cb, hh in items:
                k("v_exp_f32 v%d, v%d\nv_exp_f32 v%d, v%d" % (Tm(cb,hh), Tm(cb,hh), Tm(cb,hh)+1, Tm(cb,hh)+1))
                k("v_pk_fma_f32 %s, %s, %s, %s%s neg_lo:[1,0,0] neg_hi:[1,0,0]" % (vr(U(cb,hh),2), bc(Mb), vr(S4+(ncb+cb)*4+2*hh,2), vr(U(cb,hh),2), os0))
            for cb, hh in items: k("v_pk_fma_f32 %s, %s, %s, %s op_sel:[0,%d,%d] op_sel_hi:[1,%d,%d]" % (vr(Tm(cb,hh),2), vr(Tm(cb,hh),2), bc(Sb), bc(Sb), sel, sel, sel, sel))
            for cb, hh in items:
                k("v_rcp_f32 v%d, v%d\nv_rcp_f32 v%d, v%d" % (Tm(cb,hh), Tm(cb,hh), Tm(cb,hh)+1, Tm(cb,hh)+1))
                k("v_pk_mul_f32 %s, %s, %s" % (vr(G(cb,hh),2), vr(G(cb,hh),2), vr(U(cb,hh),2)))
            for cb, hh in items: k("v_pk_mul_f32 %s, %s, %s" % (vr(G(cb,hh),2), vr(G(cb,hh),2), vr(Tm(cb,hh),2)))
            Ob = O + (bi & 1)*4 if defer is None else O[bi]
            for j_, (cb, hh) in enumerate(items): k("v_cvt_pk_bf16_f32 v%d, v%d, v%d" % (Ob+j_, G(cb,hh), G(cb,hh)+1))
            if pr_: k("s_add_u32 s%d, s%d, 4096" % (sT0, sKS))
            st_ = "buffer_store_dwordx4 %s, v%d, %s, s%d offen offset:%d%s" % (vr(Ob, 4), vSt, sq(SWS), sT0 if pr_ else sKS, b*1024, S1)
            if defer is None: k(st_)
            else: defer.append(st_)

    def a2_flag(group, nwait, va, vv):
        k("s_lshl_b32 s%d, s%d, 2\ns_lshr_b32 s%d, s%d, 1\ns_add_u32 s%d, s%d, s%d\ns_mul_i32 s%d, s%d, %d" % (sT0, sC, sT1, sJJ, sT0, sT0, sT1, sT0, sT0, FLS_))
        k("s_and_b32 s%d, s%d, 1\ns_lshl_b32 s%d, s%d, 1\ns_add_u32 s%d, s%d, s%d\ns_mul_i32 s%d, s%d, %d\ns_add_u32 s%d, s%d, s%d\ns_add_u32 s%d, s%d, 0x%x" % (sT1, sJJ, sT1, sT1, sT1, sT1, sNH, sT1, sT1, FSP, sT0, sT0, sT1, sT0, sT0, FL_OFF + group*FGS))
        k("v_mov_b32 v%d, s%d\nv_mov_b32 v%d, s%d" % (va, sT0, vv, sNon))
        k("s_waitcnt vmcnt(%d)\ns_mov_b64 exec, 1" % nwait)
        k("buffer_store_dword v%d, v%d, %s, 0 offen%s\ns_mov_b64 exec, -1" % (vv, va, sq(SWS), SC))

    CSM = opt("csm", 1)
    def cs_set(val, va, vv):
        k("s_lshl_b32 s%d, s%d, 2\ns_add_u32 s%d, s%d, %d\nv_mov_b32 v%d, s%d\nv_mov_b32 v%d, %d\nds_write_b32 v%d, v%d" % (sT0, sW, sT0, sT0, FLG+64, va, sT0, vv, val, va, vv))
    def base_loads(R):
        k("s_and_b32 s%d, s2, 7\ns_lshr_b32 s%d, s2, 3" % (sT0, sT1))
        p2map(sT3, sT0)
        k("s_mul_i32 s%d, s%d, 160" % (sT0, sT0))
        k("s_lshl_b32 s%d, s%d, 6\ns_lshl_b32 s%d, s%d, 2\ns_add_u32 s%d, s%d, s%d" % (sT3, sT3, sT1, sW, sT3, sT3, sT1))
        R5 = range(5)
        e_, r_, q_, t_ = R+45, R+30, R+35, R+40
        for it in R5: k("v_add_u32 v%d, %d, v%d" % (e_+it, it*64, vL))
        for it in R5: k("v_mul_u32_u24 v%d, 205, v%d" % (r_+it, e_+it))
        for it in R5: k("v_lshrrev_b32 v%d, 12, v%d" % (r_+it, r_+it))
        for it in R5: k("v_mul_u32_u24 v%d, 20, v%d\nv_bfe_u32 v%d, v%d, 1, 2" % (q_+it, r_+it, t_+it, r_+it))
        for it in R5: k("v_sub_u32 v%d, v%d, v%d" % (q_+it, e_+it, q_+it))
        for it in R5: k("v_xor_b32 v%d, v%d, v%d\nv_lshrrev_b32 v%d, 2, v%d" % (q_+it, q_+it, t_+it, t_+it, r_+it))
        for it in R5: k("v_mad_u32_u24 v%d, v%d, 12, v%d\nv_lshl_add_u32 v%d, v%d, 3, s%d" % (r_+it, t_+it, r_+it, q_+it, q_+it, sT0))
        for it in R5: k("v_add_u32 v%d, s%d, v%d" % (r_+it, sT3, r_+it))
        for it in R5: k("v_mul_u32_u24 v%d, 1280, v%d\nv_lshlrev_b32 v%d, 3, v%d" % (t_+it, r_+it, r_+it, r_+it))
        for it in R5: k("v_add_u32 v%d, v%d, v%d" % (t_+it, t_+it, q_+it))
        k("s_mov_b32 s%d, 0x%x" % (sKx, RST_OFF))
        for it in R5:
            k("global_load_dwordx2 %s, v%d, %s" % (vr(R+2*it, 2), t_+it, sp(48)))
            k("global_load_dwordx2 %s, v%d, %s" % (vr(R+10+2*it, 2), q_+it, sp(50)))
        k("s_mov_b32 s%d, 0\nL_k1_bt:" % sT3)
        for it in R5: k("buffer_load_dwordx2 %s, v%d, %s, s%d offen%s" % (vr(R+20+2*it, 2), r_+it, sq(SWS), sKx, SC))
    def base_compute(R):
        k("s_setprio 0")
        X4, D4, T4 = R+52, R+72, R+92
        k("s_waitcnt vmcnt(0)\nv_xor_b32 v%d, s%d, v%d" % (T4, sNon, R+21))
        for it in range(1, 5): k("v_xor_b32 v%d, s%d, v%d\nv_or_b32 v%d, v%d, v%d" % (T4+1, sNon, R+21+2*it, T4, T4, T4+1))
        k("v_cmp_ne_u32 vcc, 0, v%d\ns_add_u32 s%d, s%d, 1\ns_cbranch_vccz L_k1_bto" % (T4, sT3, sT3))
        k("s_sleep 8\ns_cmp_lt_u32 s%d, 0x40000\ns_cbranch_scc1 L_k1_bt\nL_k1_bto:" % sT3)
        k("s_mul_i32 s%d, s%d, %d\ns_add_u32 s%d, s%d, %d\nv_lshl_add_u32 v%d, v%d, 4, s%d\nv_mov_b32 v%d, %d" % (sT0, sW, 80*TRP, sT0, sT0, TRB, R+50, vL, sT0, R+51, FLG))
        wait_done("L_k1_bw%d" % R, "16", R+51, R+44)
        for it in range(5): k("v_and_b32 v%d, s%d, v%d\nv_lshlrev_b32 v%d, 16, v%d" % (R+21+2*it, sMASK, R+20+2*it, R+20+2*it, R+20+2*it))
        for it in range(5): k("v_rcp_f32 v%d, v%d" % (R+21+2*it, R+21+2*it))
        for d in range(10): k("v_lshlrev_b32 v%d, 16, v%d\nv_and_b32 v%d, s%d, v%d\nv_lshlrev_b32 v%d, 16, v%d\nv_and_b32 v%d, s%d, v%d" % (X4+2*d, R+d, X4+2*d+1, sMASK, R+d, D4+2*d, R+10+d, D4+2*d+1, sMASK, R+10+d))
        def rnd():
            if not opt("bexact", 1): return
            for h in range(10): k("v_cvt_pk_bf16_f32 v%d, v%d, v%d" % (R+30+h, T4+2*h, T4+2*h+1))
            for h in range(10): k("v_lshlrev_b32 v%d, 16, v%d\nv_and_b32 v%d, s%d, v%d" % (T4+2*h, R+30+h, T4+2*h+1, sMASK, R+30+h))
        for r in range(20): k("v_sub_f32 v%d, v%d, v%d" % (T4+r, X4+r, R+20+2*(r >> 2)))
        rnd()
        for r in range(20): k("v_mul_f32 v%d, v%d, v%d" % (T4+r, T4+r, R+21+2*(r >> 2)))
        rnd()
        for r in range(20): k("v_mul_f32 v%d, v%d, v%d" % (T4+r, T4+r, D4+r))
        rnd()
        for r in range(20): k("v_add_f32 v%d, v%d, v%d" % (T4+r, T4+r, X4+r))
        for it in range(5): k("ds_write_b128 v%d, %s offset:%d" % (R+50, vr(T4+4*it, 4), it*1024))
        k("s_waitcnt lgkmcnt(0)")

    def ffn_frag(ACCF, idx, areg, gu):
        rd = lambda h, reg: ["ds_read_b64_tr_b16 %s, v%d offset:%d" % (vr(reg+2*jx, 2), areg, h*4096+jx*512+gu*8192) for jx in range(2)]
        mf = lambda b, x, w: "v_mfma_f32_16x16x32_bf16 %s, %s, %s, %s" % (vr(ACCF+(idx*4+b)*4, 4), vr(w, 4), vr(x, 4), vr(ACCF+(idx*4+b)*4, 4))
        return (rd, mf)

    k("s_lshl_b32 s%d, s%d, 14" % (sT0, sNH))
    k("v_add_u32 v%d, s%d, v%d" % (aW[0], sT0, vT[0]))
    for c in range(1, 4): k("v_xor_b32 v%d, %d, v%d" % (aW[c], 32*c, aW[0]))
    k("s_lshr_b32 s%d, s%d, 5\ns_lshl_b32 s%d, s%d, 1\ns_add_u32 s%d, s%d, s%d\ns_mul_i32 s%d, s%d, 88\ns_add_u32 s%d, s%d, s%d\ns_lshl_b32 s%d, s%d, 12" % (sT0, sCol, sT1, sNH, sT0, sT0, sT1, sT1, sC, sT0, sT0, sT1, sKS, sT0))
    for r in range(0, 128, 2): k("v_mov_b64 v[%d:%d], 0" % (ACC+r, ACC+r+1))
    srd(k, SWS, pWs, WS_NREC)
    E = 212
    S4 = E; Mb, RSb, Sb = XS[0], XS[0]+4, XS[0]+8; K0 = XS[0]+12
    def postA():
        o = ["s_lshl_b32 s%d, s%d, 9\ns_add_u32 s%d, s%d, %d\nv_lshl_add_u32 v%d, v%d, 4, s%d" % (sT0, sNH, sT0, sT0, SFF, vT[1], vG, sT0),
             "s_mul_i32 s%d, s%d, 768\ns_add_u32 s%d, s%d, %d\nv_lshl_add_u32 v%d, v%d, 2, s%d" % (sT0, sMH, sT0, sT0, STAT_M, vT[2], vM, sT0)]
        for b in range(0, 4, 2):
            for a, off in ((Mb, 0), (RSb, 64), (Sb, 128)):
                o.append("ds_read2_b32 %s, v%d offset0:%d offset1:%d" % (vr(a+b, 2), vT[2], off+b*16, off+b*16+16))
        for j in range(8): o.append("ds_read_b128 %s, v%d offset:%d" % (vr(S4+4*j, 4), vT[1], j*64))
        o += ["v_lshlrev_b32 v%d, 4, v%d" % (vT[3], vL), "v_mov_b32 v%d, %s\nv_mov_b32 v%d, %s" % (K0, f32(c0*0.044715), K0+1, f32(c0))]
        return o
    fr = []
    for cb in range(4):
        for gu in range(2): fr.append(ffn_frag(ACC, gu*4+cb, aW[cb], gu))
    c_loop("A", fr, 8, opt("da", 5), WR, aX + aW, postA)
    stamp(k, 1)
    k("s_waitcnt lgkmcnt(0)")
    blk = [(b, p) for p in range(2) for b in range(4)]
    HF = opt("hf", 6)
    ffn_epilogue(ACC, 4, S4, Mb, RSb, Sb, E+32, XS[1], K0, vT[3], blk[:HF])
    a2_flag(0, HF-4, vT[0], vT[1])
    ffn_epilogue(ACC, 4, S4, Mb, RSb, Sb, E+32, XS[1], K0, vT[3], blk[HF:])
    stamp(k, 2)
    cs_set(1, vT[0], vT[1])
    a2_flag(3, 0, vT[0], vT[1])
    stamp(k, 4)
    k("s_branch L_k1_base")

    k("L_k1_CB:")
    WRB = 52
    ACCF = 76
    ACCS = 140
    ca = Alloc(220)
    cLr = ca(5); cMu = ca(5); cKk = ca(5); c16r = ca(5); c16k = ca(5); cKr = ca(10, 2)
    assert ca.n <= (255 if TRACE else 256) + 1
    k("s_lshl_b32 s%d, s%d, 6" % (sT0, sNH))
    k("v_xor_b32 v%d, s%d, v%d\nv_xor_b32 v%d, 32, v%d" % (aW[0], sT0, vT[0], aW[1], aW[0]))
    k("s_mul_i32 s%d, s%d, 10240\ns_add_u32 s%d, s%d, 32768" % (sT0, sNH, sT0, sT0))
    k("v_add_u32 v%d, s%d, v%d\nv_xor_b32 v%d, 64, v%d" % (aW[2], sT0, vT[5], aW[3], aW[2]))
    k("s_lshr_b32 s%d, s%d, 5\ns_add_u32 s%d, s%d, s%d\ns_mul_i32 s%d, s%d, 88\ns_add_u32 s%d, s%d, s%d\ns_lshl_b32 s%d, s%d, 12" % (sT0, sCol, sT0, sT0, sNH, sT1, sC, sT0, sT0, sT1, sKS, sT0))
    srd(k, SWS, pWs, WS_NREC)
    for r in range(0, 144, 2): k("v_mov_b64 v[%d:%d], 0" % (ACCF+r, ACCF+r+1))
    k("s_lshl_b32 s%d, s%d, 1\ns_add_u32 s%d, s%d, s%d\ns_lshl_b32 s%d, s%d, 14\ns_add_u32 s%d, s%d, 0x%x" % (sT2, sJJ, sT2, sT2, sNH, sT0, sT2, sT0, sT0, CAR_OFF))
    srd(k, SP0, pWs, 16384, "s%d" % sT0)
    HST = 4224
    k("s_mul_i32 s%d, s%d, %d\ns_add_u32 s58, s%d, 0x%x\ns_lshr_b32 s%d, s%d, 2\ns_mul_i32 s%d, s%d, %d\ns_add_u32 s%d, s%d, s58\ns_add_u32 s54, s%d, s%d\ns_addc_u32 s55, s%d, 0" % (sT0, sT2, 8*HST, sT0, CH_OFF, sT0, sC, sT0, sT0, HST, sT0, sT0, pWs, sT0, pWs+1))
    k("s_lshl_b32 s%d, s%d, 2\ns_add_u32 s58, s58, s%d" % (sT0, sC, sT0))
    k("s_add_u32 s%d, s%d, 1\ns_lshr_b32 s%d, s%d, 1\ns_lshl_b32 s59, 1, s%d\ns_sub_u32 s59, s59, 1" % (sT0, sC, sT0, sT0, sT0))
    if not opt("hint", 1): k("s_mov_b32 s59, 0")
    sSS = [68, 69, 70, 71, 79]
    k("s_mul_i32 s%d, s%d, 88\ns_add_u32 s%d, s%d, 48\ns_lshl_b32 s%d, s%d, 12" % (sT3, sC, sT3, sT3, sT3, sT3))
    k("s_mul_i32 s%d, s%d, 10\ns_mul_i32 s%d, s%d, 5\ns_add_u32 s%d, s%d, s%d" % (sT2, sJJ, sT0, sNH, sT2, sT2, sT0))
    for q in range(5):
        k("s_add_u32 s%d, s%d, %d\ns_lshr_b32 s%d, s%d, 1\ns_lshl_b32 s%d, s%d, 12\ns_and_b32 s%d, s%d, 1\ns_lshl_b32 s%d, s%d, 9" % (sT0, sT2, q, sT1, sT0, sT1, sT1, sT0, sT0, sT0, sT0))
        k("s_add_u32 s%d, s%d, s%d\ns_add_u32 s%d, s%d, s%d" % (sT0, sT0, sT1, sSS[q], sT0, sT3))
    KR = [cKr+2*q for q in range(5)]
    for s in range(1, 4): k("v_cmp_eq_u32 %s, %d, v%d" % (sp(16+2*s), s, vG))
    def ssm_frag(q):
        rd = lambda h, reg: ["ds_read_b128 %s, v%d offset:%d" % (vr(reg, 4), aW[2+h], q*2048)]
        mf = lambda b, x, w: "v_mfma_f32_16x16x32_bf16 %s, %s, %s, %s" % (vr(ACCS+(q*4+b)*4, 4), vr(x, 4), vr(w, 4), vr(ACCS+(q*4+b)*4, 4))
        return (rd, mf)
    fr = [ssm_frag(q) for q in range(5)]
    for cb in range(2):
        for gu in range(2): fr.append(ffn_frag(ACCF, gu*2+cb, aW[cb], gu))
    M4 = XS[0]
    SQ = [247, 249, 251, 253, 245]
    def postB():
        o = ["s_mul_i32 s%d, s%d, 768\ns_add_u32 s%d, s%d, %d\nv_lshl_add_u32 v%d, v%d, 4, s%d\nv_lshl_add_u32 v%d, v%d, 2, s%d" % (sT0, sMH, sT0, sT0, STAT_M, vT[3], vG, sT0, vT[2], vM, sT0),
             "s_mul_i32 s%d, s%d, 3072\ns_add_u32 s%d, s%d, %d\nv_lshl_add_u32 v%d, v%d, 4, s%d" % (sT0, sNH, sT0, sT0, CT, vT[5], vM, sT0)]
        for b in range(4): o.append("ds_read_b128 %s, v%d offset:%d" % (vr(M4+4*b, 4), vT[3], b*64))
        for qd in (6, 7, 8, 0, 1, 2, 3, 4, 5):
            if qd == 8 and TRACE: o.append("ds_read_b96 %s, v%d offset:%d" % (vr(220+4*qd, 3), vT[5], qd*256))
            else: o.append("ds_read_b128 %s, v%d offset:%d" % (vr(220+4*qd, 4), vT[5], qd*256))
        return o
    c_loop("B", fr, 6, opt("db", 5), WRB, aX + aW, postB)
    stamp(k, 1)
    RS4 = XS[1]
    for b in range(4): k("ds_read_b128 %s, v%d offset:%d" % (vr(RS4+4*b, 4), vT[3], 256+b*64))
    Z = [[ACCS + (q*4 + (t >> 2))*4 + (t & 3) for t in range(16)] for q in range(5)]
    H = [[52+q, 57+q] for q in range(5)]
    k("s_waitcnt lgkmcnt(4)")
    for t in range(0, 16, 2):
        for q in range(5): k("v_pk_fma_f32 %s, %s, %s, %s op_sel:[0,1,0] op_sel_hi:[1,1,1] neg_lo:[1,0,0] neg_hi:[1,0,0]" % (vr(Z[q][t], 2), vr(M4+t, 2), vr(SQ[q]-1, 2), vr(Z[q][t], 2)))
    k("s_waitcnt lgkmcnt(0)")
    for t in range(16):
        if t % 2 == 0:
            for q in range(5): k("v_pk_mul_f32 %s, %s, %s" % (vr(Z[q][t], 2), vr(RS4+t, 2), vr(Z[q][t], 2)))
        if t >= 1:
            prev = [Z[q][0] if t == 1 else H[q][t & 1] for q in range(5)]
            cur = [H[q][(t+1) & 1] for q in range(5)]
            for q in range(5): k("v_fma_f32 v%d, v%d, v%d, v%d" % (cur[q], cLr+q, prev[q], Z[q][t]))
            for q in range(5): k("v_fmac_f32_dpp v%d, v%d, v%d%s" % (cur[q], prev[q], cMu+q, DPP))
    a_ = [H[q][0] for q in range(5)]; b_ = [H[q][1] for q in range(5)]
    c_ = r5(20)
    TOT = 28
    d_ = [TOT, TOT+1, TOT+2, TOT+4, TOT+5]
    MINE = [12, 13, 14, 15, 16]
    S4 = 36; Mb, RSb, Sb = 62, 66, 70; K0 = 74
    def ffn_inputs():
        k("s_lshl_b32 s%d, s%d, 9\ns_add_u32 s%d, s%d, %d\nv_lshl_add_u32 v%d, v%d, 4, s%d" % (sT0, sNH, sT0, sT0, SFF, vT[0], vG, sT0))
        for b in range(0, 4, 2):
            for a, off in ((Mb, 0), (RSb, 64), (Sb, 128)):
                k("ds_read2_b32 %s, v%d offset0:%d offset1:%d" % (vr(a+b, 2), vT[2], off+b*16, off+b*16+16))
        for j in range(4): k("ds_read_b128 %s, v%d offset:%d" % (vr(S4+4*j, 4), vT[0], j*64))
        k("v_mov_b32 v%d, %s\nv_mov_b32 v%d, %s" % (K0, f32(c0*0.044715), K0+1, f32(c0)))
    ffn_inputs()
    for q in range(5): k("v_mov_b32 v%d, v%d" % (b_[q], a_[q]))
    for q in range(5): k("v_permlane16_swap_b32 v%d, v%d" % (a_[q], b_[q]))
    for q in range(5): k("v_mov_b32 v%d, v%d\nv_mov_b32 v%d, v%d" % (c_[q], a_[q], d_[q], b_[q]))
    for q in range(5): k("v_permlane32_swap_b32 v%d, v%d\nv_permlane32_swap_b32 v%d, v%d" % (a_[q], c_[q], b_[q], d_[q]))
    seq = [a_, b_, c_, d_]
    k("v_mov_b32 v%d, s%d\nv_mov_b32 v%d, s%d" % (TOT+3, sNon, TOT+7, sNon))
    k("s_lshl_b32 s%d, s%d, 9" % (sT0, sC))
    k("v_lshlrev_b32 v%d, 4, v%d\nv_mul_u32_u24 v19, %d, v%d" % (vT[1], vM, HST, vM))
    for s in range(1, 4):
        for q in range(5): k("v_fmac_f32 v%d, v%d, v%d" % (seq[s][q], c16r+q, seq[s-1][q]))
        for q in range(5): k("v_fmac_f32_dpp v%d, v%d, v%d%s" % (seq[s][q], seq[s-1][q], c16k+q, DPP))
    k("s_mov_b64 exec, 0xffff")
    k("buffer_store_dwordx4 %s, v%d, %s, s%d offen%s" % (vr(TOT, 4), vT[1], sq(SP0), sT0, SC))
    k("buffer_store_dwordx4 %s, v%d, %s, s%d offen offset:256%s" % (vr(TOT+4, 4), vT[1], sq(SP0), sT0, SC))
    TH = opt("th", 0)
    if not TH and opt("hint", 1) == 1:
        k("s_mov_b64 exec, 0xff")
        k("buffer_store_dword v%d, v19, %s, s58 offen%s" % (TOT+3, sq(SWS), SC))
    k("s_mov_b64 exec, -1")
    k("s_mov_b32 s56, s%d\ns_mov_b32 s57, s%d" % (sNon, sNon))
    cs_set(1, 17, 18)
    k(";PRIO_ON")
    stamp(k, 2)
    for q in range(5): k("v_cndmask_b32 v%d, 0, v%d, %s" % (MINE[q], a_[q], sp(18)))
    for q in range(5): k("v_cndmask_b32 v%d, v%d, v%d, %s" % (MINE[q], MINE[q], b_[q], sp(20)))
    for q in range(5): k("v_cndmask_b32 v%d, v%d, v%d, %s" % (MINE[q], MINE[q], c_[q], sp(22)))
    k("v_lshlrev_b32 v%d, 4, v%d" % (vT[3], vL))
    k("s_waitcnt lgkmcnt(0)")
    dst_ = []
    DFR = opt("dfr", 1)
    HINT = opt("hint", 1)
    for b in range(4):
        if b == opt("hb", 3) and HINT == 1: k("s_load_dwordx16 s[16:31], s[54:55], 0 glc\ns_load_dwordx16 s[32:47], s[54:55], 64 glc")
        ffn_epilogue(ACCF, 2, S4, Mb, RSb, Sb, 20, [[236, 240, 52, 56][b]], K0, vT[3], [(b, 0)], defer=dst_)
        if not DFR: k(dst_.pop())
        if TH and b == TH-1:
            k("s_waitcnt vmcnt(0)\ns_mov_b64 exec, 0xff")
            k("buffer_store_dword v%d, v19, %s, s58 offen%s\ns_mov_b64 exec, -1" % (TOT+3, sq(SWS), SC))
    def hint_check():
        k("s_waitcnt lgkmcnt(0)\ns_mov_b32 s%d, 0" % sT0)
        for j in range(15, -1, -1): k("s_cmp_lg_u64 %s, s[56:57]\ns_addc_u32 s%d, s%d, s%d" % (sp(16+2*j), sT0, sT0, sT0))
        k("s_and_b32 s%d, s%d, s59" % (sT0, sT0))
    if not opt("clk", 0): stamp(k, 6)
    PRb = [ACCF + u*8 for u in range(8)]
    k("s_sub_u32 s%d, s%d, 1" % (sT0, sC))
    k("v_sub_u32 v%d, s%d, v%d\nv_lshlrev_b32 v%d, 9, v%d\nv_lshl_add_u32 v%d, v%d, 4, v%d" % (vT[1], sT0, vG, vT[1], vT[1], vT[1], vM, vT[1]))
    def pred_loads():
        for u in range(8):
            if u: k("v_subrev_u32 v%d, %d, v%d" % (vT[0], u*2048, vT[1]))
            a = vT[0] if u else vT[1]
            k("buffer_load_dwordx4 %s, v%d, %s, 0 offen%s" % (vr(PRb[u], 4), a, sq(SP0), PSC_))
            k("buffer_load_dwordx4 %s, v%d, %s, 0 offen offset:256%s" % (vr(PRb[u]+4, 4), a, sq(SP0), PSC_))
    if HINT == 1:
        hint_check()
        k("s_mov_b32 s%d, s%d\ns_cbranch_scc1 L_k1_npl" % (sDelta, sT0))
        pred_loads()
        k("s_branch L_k1_npl2")
        k("L_k1_npl:")
        k("s_load_dwordx16 s[16:31], s[54:55], 0 glc\ns_load_dwordx16 s[32:47], s[54:55], 64 glc")
        k("L_k1_npl2:")
    elif HINT == 0:
        k("s_mov_b32 s%d, 0" % sDelta)
        pred_loads()
    else: k("s_mov_b32 s%d, 1" % sDelta)
    for x in dst_: k(x)
    k("s_mul_i32 s%d, s%d, %d\ns_add_u32 s%d, s%d, %d" % (sKx, sW, 80*TRP, sKx, sKx, TRB))
    k("v_add_u32 v%d, s%d, v%d" % (vT[4], sKx, vT[3]))
    for qd in range(3): k("ds_read_b128 %s, v%d offset:%d" % (vr(32+4*qd, 4), vT[5], (9+qd)*256))
    L256r, L256k = r5(32), r5(37)
    free = [20+2*q for q in range(5)]
    for t in range(0, 16, 2):
        nf = []
        for q in range(5): k("v_pk_mul_f32 %s, %s, %s op_sel_hi:[0,1]" % (vr(free[q], 2), vr(KR[q], 2), vr(Z[q][t], 2)))
        for e in range(2):
            for q in range(5): k("v_fmac_f32_dpp v%d, v%d, v%d%s" % (free[q]+e, Z[q][t]+e, cKk+q, DPP))
        for q in range(5):
            nf.append(Z[q][t]); Z[q][t] = free[q]; Z[q][t+1] = free[q]+1
        free = nf
    t0, t1 = 30, 31
    k("s_mov_b32 s%d, 0\ns_cmp_eq_u32 s%d, 0\ns_cbranch_scc1 L_k1_early" % (sRd, sDelta))
    if HINT == 1:
        hint_check()
        k("s_cbranch_scc0 L_k1_hd")
    else: k("s_branch L_k1_hd")
    a2_flag(1, 0, 30, 31)
    stamp(k, 7)
    k("s_mov_b32 s%d, 1\ns_mov_b32 s%d, 0" % (sRd, sT3))
    k("L_k1_hr:")
    k("s_load_dwordx16 s[16:31], s[54:55], 0 glc\ns_load_dwordx16 s[32:47], s[54:55], 64 glc")
    hint_check()
    k("s_cbranch_scc0 L_k1_hd\ns_sleep %d\ns_add_u32 s%d, s%d, 1\ns_cmp_lt_u32 s%d, 0x100000\ns_cbranch_scc1 L_k1_hr" % (opt("hsl", 3), sT3, sT3, sT3))
    k("L_k1_hd:")
    if opt("dbgp", 0): stamp(k, 6)
    pred_loads()
    if DFR:
        k("s_mov_b32 s%d, 0\ns_branch L_k1_poll" % sT3)
        k("L_k1_early:")
        k("s_mov_b32 s%d, 0\ns_waitcnt vmcnt(4)\ns_branch L_k1_poll2" % sT3)
    else:
        k("s_mov_b32 s%d, 0\ns_cmp_lg_u32 s%d, 0\ns_cbranch_scc1 L_k1_poll" % (sT3, sRd))
        k("L_k1_early:")
        a2_flag(1, 16, 30, 31)
        stamp(k, 7)
        k("s_mov_b32 s%d, 0\ns_waitcnt vmcnt(1)\ns_branch L_k1_poll2" % sT3)
    k("L_k1_poll:")
    k("s_waitcnt vmcnt(0)")
    k("L_k1_poll2:")
    k("s_mov_b32 s%d, 0" % sT2)
    for u in range(8):
        k("v_cmp_ne_u32 s[24:25], s%d, v%d\nv_cmp_ne_u32 s[26:27], s%d, v%d\nv_cmp_le_i32 vcc, %d, v%d" % (sNon, PRb[u]+3, sNon, PRb[u]+7, u*2048, vT[1]))
        k("s_or_b64 s[24:25], s[24:25], s[26:27]\ns_and_b64 s[24:25], s[24:25], vcc\ns_cbranch_scc0 L_k1_pu%d" % u)
        k("s_cmp_lg_u32 s%d, 0\ns_cbranch_scc1 L_k1_ps%d\ns_sleep %d\nL_k1_ps%d:" % (sT2, u, opt("csl", 8), u))
        k("s_mov_b32 s%d, 1" % sT2)
        k("v_subrev_u32 v%d, %d, v%d" % (vT[0], u*2048, vT[1]))
        k("s_mov_b64 exec, s[24:25]")
        k("buffer_load_dwordx4 %s, v%d, %s, 0 offen%s" % (vr(PRb[u], 4), vT[0], sq(SP0), PSC_))
        k("buffer_load_dwordx4 %s, v%d, %s, 0 offen offset:256%s" % (vr(PRb[u]+4, 4), vT[0], sq(SP0), PSC_))
        k("s_mov_b64 exec, -1")
        k("L_k1_pu%d:" % u)
    k("s_add_u32 s%d, s%d, 1\ns_cmp_eq_u32 s%d, 0\ns_cbranch_scc1 L_k1_polled" % (sT3, sT3, sT2))
    k("s_cmp_lt_u32 s%d, 0x40000\ns_cbranch_scc1 L_k1_poll" % sT3)
    k("L_k1_polled:")
    if opt("dbgp", 0): k("s_waitcnt lgkmcnt(0)\ns_lshl_b32 s94, s%d, 8\ns_cmp_eq_u32 s%d, 0\ns_cselect_b32 s95, 1, 0\ns_or_b32 s94, s94, s95\ns_lshl_b32 s95, s%d, 1\ns_or_b32 s94, s94, s95" % (sT3, sDelta, sRd))
    if CSM & 2: cs_set(0, 17, 18)
    if not opt("clk", 0): stamp(k, 3)
    pr = lambda u, q: PRb[u]+(q if q < 3 else q+1)
    k("s_waitcnt lgkmcnt(0)")
    for u in range(6, -1, -1):
        for q in range(5): k("v_fmac_f32 v%d, v%d, v%d" % (pr(u, q), L256r[q], pr(u+1, q)))
        for q in range(5): k("v_fmac_f32_dpp v%d, v%d, v%d%s" % (pr(u, q), pr(u+1, q), L256k[q], DPP))
        if u == 4:
            for qd in range(5): k("ds_read_b128 %s, v%d offset:%d" % (vr(PRb[5]+4*qd, 4), vT[4], qd*1024))
    L64r, L64k, Psr, Psk = r5(PRb[5]), r5(PRb[5]+5), r5(PRb[5]+10), r5(PRb[5]+15)
    k("s_waitcnt lgkmcnt(0)")
    for q in range(5): k("v_mul_f32 v%d, v%d, v%d" % (pr(1, q), L64r[q], pr(0, q)))
    for q in range(5): k("v_fmac_f32_dpp v%d, v%d, v%d%s" % (pr(1, q), pr(0, q), L64k[q], DPP))
    for sw in ("v_permlane16_swap_b32", "v_permlane32_swap_b32"):
        for q in range(5): k("v_mov_b32 v%d, v%d" % (pr(2, q), pr(1, q)))
        for q in range(5): k("%s v%d, v%d" % (sw, pr(1, q), pr(2, q)))
        for q in range(5): k("v_add_f32 v%d, v%d, v%d" % (pr(1, q), pr(1, q), pr(2, q)))
    for q in range(5): k("v_fmac_f32 v%d, v%d, v%d" % (MINE[q], Psr[q], pr(1, q)))
    for q in range(5): k("v_fmac_f32_dpp v%d, v%d, v%d%s" % (MINE[q], pr(1, q), Psk[q], DPP))
    CIN = [f for f in free]
    for q in range(5): k("v_mul_f32 v%d, v%d, v%d" % (CIN[q], KR[q], MINE[q]))
    for q in range(5): k("v_fmac_f32_dpp v%d, v%d, v%d%s" % (CIN[q], MINE[q], cKk+q, DPP))
    PK = 32
    OUTQ = [ACCF + 4*j for j in range(10)]
    k("v_mul_u32_u24 v%d, %d, v%d\nv_lshl_add_u32 v%d, v%d, 5, v%d\nv_add_u32 v%d, s%d, v%d" % (vT[1], TRP, vM, vT[1], vG, vT[1], vT[1], sKx, vT[1]))
    k("v_and_b32 v%d, 1, v%d\nv_lshrrev_b32 v%d, 2, v%d\nv_lshl_add_u32 v%d, v%d, 3, v%d\nv_mul_u32_u24 v%d, %d, v%d" % (vT[0], vG, vT[4], vM, vT[0], vT[0], vT[4], vT[0], TRP, vT[0]))
    k("v_and_b32 v%d, 3, v%d\nv_lshl_add_u32 v%d, v%d, 5, v%d" % (vT[4], vM, vT[0], vT[4], vT[0]))
    k("v_lshrrev_b32 v%d, 1, v%d\nv_lshl_add_u32 v%d, v%d, 3, v%d\nv_add_u32 v%d, s%d, v%d" % (vT[5], vG, vT[0], vT[5], vT[0], vT[0], sKx, vT[0]))
    k("v_and_b32 v%d, 31, v%d\nv_lshlrev_b32 v%d, 4, v%d\nv_lshl_add_u32 v%d, v%d, 10, v%d" % (vT[4], vL, vT[4], vT[4], vT[4], vT[5], vT[4]))
    def tr_reads(bp):
        for q in range(5):
            o = OUTQ[bp*5+q]
            k("ds_read_b64_tr_b16 %s, v%d offset:%d\nds_read_b64_tr_b16 %s, v%d offset:%d" % (vr(o, 2), vT[0], q*16*TRP+bp*16, vr(o+2, 2), vT[0], q*16*TRP+bp*16+4*TRP))
    def tr_stores(bp, waits):
        for q in range(5):
            if waits: k("s_waitcnt lgkmcnt(%d)" % (8-2*q))
            k("buffer_store_dwordx4 %s, v%d, %s, s%d offen offset:%d%s" % (vr(OUTQ[bp*5+q], 4), vT[4], sq(SWS), sSS[q], bp*2048, S1))
    for t in range(16):
        if DFR and t == opt("fft", 2):
            k("s_cmp_lg_u32 s%d, 0\ns_cbranch_scc1 L_k1_ffd" % sRd)
            a2_flag(1, 0, 30, 31)
            stamp(k, 7)
            k("L_k1_ffd:")
        prev = [CIN[q] if t == 0 else Z[q][t-1] for q in range(5)]
        for q in range(5): k("v_fmac_f32 v%d, v%d, v%d" % (Z[q][t], cLr+q, prev[q]))
        for q in range(5): k("v_fmac_f32_dpp v%d, v%d, v%d%s" % (Z[q][t], prev[q], cMu+q, DPP))
        if t & 1:
            for q in range(5): k("v_cvt_pk_bf16_f32 v%d, v%d, v%d" % (PK+8*q+(t >> 1), Z[q][t-1], Z[q][t]))
        if t == 8:
            for q in range(5): k("ds_write_b128 v%d, %s offset:%d" % (vT[1], vr(PK+8*q, 4), q*16*TRP))
        if t == 10: tr_reads(0)
        if t == 13:
            k("s_waitcnt lgkmcnt(0)")
            tr_stores(0, False)
    for q in range(5): k("ds_write_b128 v%d, %s offset:%d" % (vT[1], vr(PK+8*q+4, 4), q*16*TRP+16))
    tr_reads(1)
    tr_stores(1, True)
    if CSM & 2: cs_set(1, 17, 18)
    a2_flag(2, 0, vT[0], vT[1])
    stamp(k, 4)
    k(";PRIO_OFF")
    k("L_k1_base:")
    base_loads(140)
    k("L_k1_base2:")
    base_compute(140)
    finish(100)
    k("L_k1_end:")
    k("s_endpgm")
    if opt("dp", 0):
        out = []; on = False; hi = False
        lo = opt("dplo", 0)
        for l in k.lines:
            t = l.strip()
            if t == ";PRIO_ON": on = True; hi = False; out.append("    s_setprio %d" % lo); continue
            if t == ";PRIO_OFF": on = False; continue
            if on:
                isv = t.startswith("buffer_") or t.startswith("global_")
                isalu = t.startswith("v_") and not t.startswith("v_subrev_u32") and not t.startswith("v_mov_b32") and not t.startswith("v_cmp")
                if t.endswith(":"): hi = None
                if isv and hi is not True: out.append("    s_setprio 3"); hi = True
                elif isalu and hi is not False: out.append("    s_setprio %d" % lo); hi = False
            out.append(l)
        k.lines = out
    else: k.lines = [l for l in k.lines if not l.strip().startswith(";PRIO")]
    return k

if __name__ == "__main__":
    ref = open("parallel_sum__ssm_conv_s5__geglu_ffn__prompt.s.ref").read().split("\n")
    hdr = [l for l in ref if l.startswith(";") and "@launch" not in l and "Override" not in l and "grid=ceil" not in l]
    hdr += ["; @launch grid=(256,1,1) block=(512,1,1) lds=163840"]
    out = [a for a in sys.argv[1:] if not a.startswith("--")][0]
    gen2.TRACE = False
    open(out, "w").write(emit_file(hdr, [(gen_k1(), dict(vgpr=256, accum=256))]))
```

```python
import sys, struct, math
from asmgen import *
import gen2
from gen2 import (A2_OFF, B2_OFF, CAR_OFF, RST_OFF, SB_OFF, SG_OFF, STAMP_OFF, WS_NREC, SL, SPARE, TRP, f32, vr, sq, sp, ror, DPP, SC,
                  Alloc, interleave, srd, stamp, stamp_out, opt, ARG, STAMPS, LOG2E,
                  pX, pLre, pLim, pBre, pBim, pCre, pCim, pLdt, pD, pBx, pG, pU, pDn, pOut, pDbg, pWs)
STAT_M = SPARE
SFF = SPARE + 1536
SSS = SPARE + 2560
TRB = SL
DNA = SPARE + 2560
FLG = SPARE + 3968
PF_OFF = 0x1130000
FL_OFF = 0x1160000
CH_OFF = 0x1040000
TRACE = "--trace" in ARG
S1 = [" sc1", " sc0 sc1", " sc1 nt", ""][opt("st2", 0)]
if opt("sc", 1): SC = " sc1"
FSP = 4
FGS = 16
FLS_ = opt("fls", 4224)
PSC_ = [" sc1", " sc0 sc1"][opt("psc", 0)]
KNAME = "parallel_sum__ssm_conv_s5__geglu_ffn__prompt_kernel"

def gen_k1():
    k = Kern(KNAME)
    sW, sMH, sNH, sI, sJJ, sTY = 3, 4, 5, 6, 7, 8
    sT0, sT1, sT2, sT3 = 9, 10, 11, 12
    sMASK = 13
    SX, SW0, SW1, SWS, SP0, SP1 = 48, 52, 56, 60, 64, 68
    sKx, sKw, sDst, sDelta, sIt, sRd, sA, sB, sKS, sC, sNon, sCol = range(72, 84)
    k("s_cmp_ge_u32 s2, 256\ns_cbranch_scc1 L_k1_end")
    k("s_load_dwordx16 s[16:31], s[0:1], 0\ns_load_dwordx16 s[32:47], s[0:1], 64")
    vL, vM, vG, vII, vSL = 1, 2, 3, 4, 5
    vT = [6, 7, 8, 9, 10, 11]
    k("v_lshrrev_b32 v%d, 6, v0" % vT[0])
    k("v_and_b32 v%d, 63, v0" % vL)
    k("v_readfirstlane_b32 s%d, v%d" % (sW, vT[0]))
    k("s_cmp_ge_u32 s%d, 6\ns_cbranch_scc1 L_k1_D" % sW)
    k("s_cmp_lt_u32 s%d, 4\ns_cbranch_scc1 L_k1_C" % sW)
    def decode():
        stamp(k, 0)
        if TRACE: k("v_mov_b32 v255, 0")
        k("v_and_b32 v%d, 15, v0\nv_lshrrev_b32 v%d, 4, v%d" % (vM, vG, vL))
        k("v_lshrrev_b32 v%d, 3, v%d\nv_and_b32 v%d, 7, v0" % (vII, vL, vSL))
        k("s_bfe_u32 s%d, s2, 0x10002\ns_lshl_b32 s%d, s%d, 3\ns_bfe_u32 s%d, s2, 0x30003\ns_add_u32 s%d, s%d, s%d" % (sI, sI, sI, sT2, sI, sI, sT2))
        k("s_and_b32 s%d, s2, 3\ns_lshl_b32 s%d, s%d, 1\ns_lshr_b32 s%d, s2, 7\ns_add_u32 s%d, s%d, s%d\ns_bfe_u32 s%d, s2, 0x10006" % (sJJ, sJJ, sJJ, sT2, sJJ, sJJ, sT2, sTY))
        k("s_mov_b32 s%d, 0xffff0000" % sMASK)
        k("s_and_b32 s%d, s%d, 1\ns_bfe_u32 s%d, s%d, 0x10001" % (sMH, sW, sNH, sW))
        k("s_lshl_b32 s%d, s%d, 7\ns_lshl_b32 s%d, s%d, 6\ns_add_u32 s%d, s%d, 1024\ns_cmp_eq_u32 s%d, 0\ns_cselect_b32 s%d, s%d, s%d" % (sT0, sJJ, sT1, sJJ, sT1, sT1, sTY, sCol, sT0, sT1))
    decode()

    def p2map(mi, ni):
        M = opt("p2m", 0)
        if M == 0:
            k("s_lshr_b32 s%d, s%d, 1\ns_lshl_b32 s%d, s%d, 3\ns_and_b32 s%d, s%d, 7\ns_add_u32 s%d, s%d, s%d" % (mi, sT0, mi, mi, sT2, sT1, mi, mi, sT2))
            k("s_and_b32 s%d, s%d, 1\ns_lshl_b32 s%d, s%d, 2\ns_lshr_b32 s%d, s%d, 3\ns_add_u32 s%d, s%d, s%d" % (ni, sT0, ni, ni, sT2, sT1, ni, ni, sT2))
        elif M == 1:
            k("s_lshl_b32 s%d, s%d, 2\ns_and_b32 s%d, s%d, 3\ns_add_u32 s%d, s%d, s%d\ns_lshr_b32 s%d, s%d, 2" % (mi, sT0, sT2, sT1, mi, mi, sT2, ni, sT1))
        else:
            k("s_lshr_b32 s%d, s%d, 2\ns_lshl_b32 s%d, s%d, 4\ns_and_b32 s%d, s%d, 15\ns_add_u32 s%d, s%d, s%d" % (mi, sT0, mi, mi, sT2, sT1, mi, mi, sT2))
            k("s_and_b32 s%d, s%d, 3\ns_lshl_b32 s%d, s%d, 1\ns_lshr_b32 s%d, s%d, 4\ns_add_u32 s%d, s%d, s%d" % (ni, sT0, ni, ni, sT2, sT1, ni, ni, sT2))
    def tab_base(tag, d):
        k("s_getpc_b64 %s" % sp(d))
        k("L_k1_tb%s:" % tag)
        k("s_add_u32 s%d, s%d, L_k1_tab-L_k1_tb%s\ns_addc_u32 s%d, s%d, 0" % (d, d, tag, d+1, d+1))
    def bf16r(d, s):
        k("v_cvt_pk_bf16_f32 v%d, v%d, v%d\nv_lshlrev_b32 v%d, 16, v%d" % (d, s, s, d, d))
    r5 = lambda b: [b+q for q in range(5)]
    def cpow5(dr, dk, n, t0, t1, cA2, cBt):
        R5 = range(5)
        for q in R5: k("v_mul_f32 v%d, %s, v%d\nv_mul_f32 v%d, %s, v%d" % (t0+q, n, cA2+q, t1+q, n, cBt+q))
        for q in R5: k("v_exp_f32 v%d, v%d\nv_rndne_f32 v%d, v%d" % (t0+q, t0+q, dr[q], t1+q))
        for q in R5: k("v_sub_f32 v%d, v%d, v%d" % (t1+q, t1+q, dr[q]))
        for q in R5: k("v_cos_f32 v%d, v%d\nv_sin_f32 v%d, v%d" % (dr[q], t1+q, dk[q], t1+q))
        for q in R5: k("v_mul_f32 v%d, v%d, v%d\nv_mul_f32 v%d, v%d, v%d" % (dr[q], dr[q], t0+q, dk[q], dk[q], t0+q))
    def param_loads(P, snh, va):
        k("s_mul_i32 s%d, s%d, 80\ns_mul_i32 s%d, s%d, 40\ns_add_u32 s%d, s%d, s%d" % (sT0, sJJ, sT1, snh, sT1, sT1, sT0))
        k("v_add_u32 v%d, s%d, v%d\nv_lshlrev_b32 v%d, 1, v%d" % (va, sT1, vSL, va, va))
        for q in range(5):
            for n, p in enumerate((pLre, pLim, pLdt)):
                k("global_load_ushort v%d, v%d, %s offset:%d" % (P+n*5+q, va, sp(p), q*16))
    def param_ab(P, cA2, cBt, vs):
        lre, lim, ldt = P, P+5, P+10
        k("v_lshrrev_b32 v%d, 3, v%d\nv_xor_b32 v%d, 1, v%d\nv_lshlrev_b32 v%d, 31, v%d" % (vs, vM, vs, vs, vs, vs))
        for q in range(15): k("v_lshlrev_b32 v%d, 16, v%d" % (P+q, P+q))
        for q in range(5): k("v_xor_b32 v%d, v%d, v%d\nv_mul_f32 v%d, %s, v%d" % (lim+q, lim+q, vs, ldt+q, f32(LOG2E), ldt+q))
        for q in range(5): k("v_exp_f32 v%d, v%d" % (ldt+q, ldt+q))
        for q in range(5): k("v_cvt_pk_bf16_f32 v%d, v%d, v%d" % (ldt+q, ldt+q, ldt+q))
        for q in range(5): k("v_lshlrev_b32 v%d, 16, v%d" % (ldt+q, ldt+q))
        for q in range(5): k("v_mul_f32 v%d, v%d, v%d\nv_mul_f32 v%d, v%d, v%d" % (cA2+q, ldt+q, lre+q, cBt+q, ldt+q, lim+q))
        for q in range(5): k("v_mul_f32 v%d, %s, v%d\nv_mul_f32 v%d, %s, v%d" % (cA2+q, f32(LOG2E), cA2+q, cBt+q, f32(1/(2*math.pi)), cBt+q))
    def trace(idx_sreg, mul, add):
        if TRACE and not opt("evonly", 1):
            k("s_memrealtime s[100:101]\ns_mul_i32 m0, s%d, %d\ns_add_u32 m0, m0, %d\ns_waitcnt lgkmcnt(0)\nv_writelane_b32 v255, s100, m0" % (idx_sreg, mul, add))
    def ev(n):
        if TRACE: k("s_memrealtime s[100:101]\ns_waitcnt lgkmcnt(0)\nv_writelane_b32 v255, s100, %d" % n)
    def finish(vt):
        if TRACE:
            k("s_lshl_b32 s83, s2, 11\ns_add_u32 s83, s83, 0x%x\nv_lshl_add_u32 v%d, v0, 2, s83" % (STAMP_OFF + 0x40000, vt+9))
            k("global_store_dword v%d, v255, %s" % (vt+9, sp(52)))
        stamp_out(k, 0, 8, 52, vt)
        k("s_endpgm")

    vXo, vWo, vSo = 12, 13, 14
    vF = 18
    k("s_lshl_b32 s%d, s%d, 7\ns_lshl_b32 s%d, s%d, 5\ns_add_u32 s%d, s%d, s%d" % (sT2, sI, sT3, sMH, sT2, sT2, sT3))
    k("v_lshrrev_b32 v%d, 2, v%d\nv_lshlrev_b32 v%d, 4, v%d\nv_and_b32 v%d, 3, v%d" % (vT[0], vII, vT[0], vT[0], vT[1], vII))
    k("v_add3_u32 v%d, v%d, v%d, s%d" % (vT[0], vT[0], vT[1], sT2))
    k("v_mul_u32_u24 v%d, 1280, v%d" % (vT[0], vT[0]))
    k("s_lshl_b32 s%d, s%d, 2" % (sT3, sMH))
    k("v_lshrrev_b32 v%d, 1, v%d\nv_or_b32 v%d, s%d, v%d\nv_xor_b32 v%d, v%d, v%d" % (vT[1], vII, vT[1], sT3, vT[1], vT[1], vT[1], vSL))
    k("v_lshl_add_u32 v%d, v%d, 4, v%d" % (vXo, vT[1], vT[0]))
    k("s_mul_i32 s%d, s%d, 80" % (sT0, sJJ))
    k("v_add_u32 v%d, s%d, v%d\nv_mul_u32_u24 v%d, 1280, v%d\nv_lshl_add_u32 v%d, v%d, 4, v%d" % (vT[2], sT0, vII, vT[2], vT[2], vSo, vT[1], vT[2]))
    k("s_lshl_b32 s%d, s%d, 3" % (sT0, sMH))
    k("v_add_u32 v%d, s%d, v%d\nv_mul_u32_u24 v%d, 3072, v%d" % (vT[0], sT0, vII, vT[0], vT[0]))
    k("v_and_b32 v%d, 2, v%d\nv_or_b32 v%d, s%d, v%d\nv_xor_b32 v%d, v%d, v%d" % (vT[1], vII, vT[1], sT3, vT[1], vT[1], vT[1], vSL))
    k("v_lshl_add_u32 v%d, v%d, 4, v%d" % (vT[0], vT[1], vT[0]))
    k("s_lshl_b32 s%d, s%d, 1" % (sT0, sCol))
    k("v_add_u32 v%d, s%d, v%d" % (vWo, sT0, vT[0]))
    k("s_mov_b32 s%d, 0\ns_mov_b32 s%d, 0\ns_lshl_b32 s%d, s%d, 10\ns_mov_b32 s%d, 0\ns_mov_b32 s%d, 0" % (sKx, sKw, sDst, sMH, sIt, sRd))
    k("v_mov_b32 v%d, %d\nv_mov_b32 v24, 4" % (vF, DNA))
    tab_base("L", 68)
    k("s_lshl_b32 s70, s%d, 2\ns_add_u32 s70, s70, %d" % (sMH, FLG+16))
    k("s_lshl_b32 s%d, s%d, 2\ns_add_u32 s%d, s%d, %d\nv_mov_b32 v%d, s%d" % (sT0, sMH, sT0, sT0, FLG+16, vF+1, sT0))
    for S_, n_ in ((SX, 2048*1280), (SW0, 640*3072), (SW1, 640*3072), (SP0, 640*1280)): k("s_mov_b32 s%d, %d\ns_mov_b32 s%d, 0x20000" % (S_+2, n_, S_+3))
    k("s_cmp_eq_u32 s%d, 0\ns_waitcnt lgkmcnt(0)" % sMH)
    k("s_mov_b64 %s, %s\ns_mov_b64 %s, %s\ns_mov_b64 %s, %s\ns_cselect_b64 %s, %s, %s" % (sp(SX), sp(pX), sp(SW0), sp(pG), sp(SW1), sp(pU), sp(SP0), sp(pBre), sp(pBim)))
    def wait_word(lab, off, need, va, vt):
        k("v_mov_b32 v%d, %d" % (va, FLG+off))
        k("%s:" % lab)
        k("ds_read_b32 v%d, v%d\ns_waitcnt lgkmcnt(0)\nv_readfirstlane_b32 s%d, v%d" % (vt, va, sT0, vt))
        k("s_cmp_ge_i32 s%d, %s\ns_cbranch_scc1 %s_ok\ns_sleep %d\ns_branch %s\n%s_ok:" % (sT0, need, lab, opt("wsl", 1), lab, lab))
    def done_read(vt, vaddr):
        return "ds_read2st64_b32 %s, v%d offset0:0 offset1:1\nds_read2st64_b32 %s, v%d offset0:2 offset1:3" % (vr(vt, 2), vaddr, vr(vt+2, 2), vaddr)
    def wait_done(lab, need, vaddr, vt):
        k("%s:" % lab)
        k(done_read(vt, vaddr) + "\ns_waitcnt lgkmcnt(0)")
        k("v_min_u32 v%d, v%d, v%d\nv_min3_u32 v%d, v%d, v%d, v%d" % (vt, vt, vt+1, vt, vt, vt+2, vt+3))
        k("v_readfirstlane_b32 s%d, v%d" % (sT0, vt))
        k("s_cmp_ge_i32 s%d, %s\ns_cbranch_scc1 %s_ok\ns_sleep 1\ns_branch %s\n%s_ok:" % (sT0, need, lab, lab, lab))
    def dma(ldsoff, voff, S, sbase, add):
        k("s_add_u32 m0, s%d, %d\ns_add_u32 s%d, s%d, %d\nbuffer_load_dwordx4 v%d, %s, s%d offen lds" % (sDst, ldsoff, sT0, sbase, add, voff, sq(S), sT0))
    NSIG = opt("nsig", 8)
    def chk(lab, add, sig):
        k("s_cmp_lt_u32 s%d, 3\ns_cbranch_scc1 %s_go" % (sIt, lab))
        k("s_lshl_b32 s%d, s%d, 1\ns_add_i32 s%d, s%d, %d\ns_waitcnt lgkmcnt(0)" % (sT1, sIt, sT1, sT1, add))
        k("v_min_u32 v20, v20, v21\nv_min3_u32 v20, v20, v22, v23\nv_readfirstlane_b32 s%d, v20" % sT0)
        k("s_cmp_ge_i32 s%d, s%d\ns_cbranch_scc1 %s_go" % (sT0, sT1, lab))
        wait_done(lab+"_wd", "s%d" % sT1, vF, 20)
        k("%s_go:" % lab)
    L = "L_k1_L"
    xs = [(n*2048, vXo, SX, sKx, ((n & 3)*4 + (n >> 2)*64)*1280) for n in range(8)]
    wsu = lambda un, ns: [(16384+un*16384+gu*8192+n*2048, vWo, SW1 if gu else SW0, sKw, n*16*3072+un*128) for n in ns for gu in range(2)]
    p1 = []
    for i in range(4): p1 += xs[2*i:2*i+2] + wsu(0, (0, 1))[i:i+1]
    LB = opt("lbar", 1)
    if not LB:
        for o in p1[:NSIG]: dma(*o)
        k("s_barrier\ns_branch %s_sig" % L)
    k("%s:" % L)
    trace(sIt, 4, 0)
    chk(L+"_c1", -5, True)
    trace(sIt, 4, 1)
    for o in p1[:NSIG]: dma(*o)
    k("%s_sig:" % L)
    k("s_waitcnt vmcnt(40)")
    trace(sIt, 4, 3)
    k("s_cmp_eq_u32 s%d, 1\ns_cbranch_scc1 %s_b1" % (sTY, L))
    for o in wsu(1, (0, 1)): dma(*o)
    k("%s_b1:" % L)
    for i, o in enumerate(p1[NSIG:]):
        if i == len(p1)-NSIG-2: k(done_read(20, vF))
        dma(*o)
    chk(L+"_c2", -4, False)
    k("s_cmp_eq_u32 s%d, 1\ns_cbranch_scc1 %s_b2" % (sTY, L))
    for o in wsu(1, (2, 3)): dma(*o)
    k("s_branch %s_b3" % L)
    k("%s_b2:" % L)
    for b_ in range(10): dma(32768+b_*2048, vSo, SP0, sKx, b_*10240)
    k("%s_b3:" % L)
    for i, o in enumerate(wsu(0, (2, 3))):
        if i == 2: k(done_read(20, vF))
        dma(*o)
    if LB: k("s_cmp_lg_u32 s%d, 0\ns_cbranch_scc1 %s_nb\ns_barrier\n%s_nb:" % (sIt, L, L))
    k("s_mov_b32 m0, s70\ns_mov_b64 exec, 1\nglobal_load_lds_dword v24, s[68:69]\ns_mov_b64 exec, -1")
    k("s_bitcmp1_b32 %d, s%d\ns_cbranch_scc0 %s_ni" % ((1 << 9) | (1 << (opt("gate", 3)-1)) | ((1 << opt("pgate", 1)) >> 1), sIt, L))
    k("v_lshrrev_b32 v25, 2, v24\nds_write_b32 v%d, v25 offset:16\n%s_ni:" % (vF+1, L))
    k("v_add_u32 v24, 4, v24")
    k("s_add_u32 s%d, s%d, 128\ns_add_u32 s%d, s%d, 196608\ns_add_u32 s%d, s%d, %d\ns_add_u32 s%d, s%d, 1" % (sKx, sKx, sKw, sKw, sDst, sDst, SL, sRd, sRd))
    k("s_cmp_eq_u32 s%d, 3\ns_cselect_b32 s%d, 0, s%d\ns_cselect_b32 s%d, %d, 0\ns_sub_u32 s%d, s%d, s%d" % (sRd, sRd, sRd, sT0, 3*SL, sDst, sDst, sT0))
    trace(sIt, 4, 2)
    k("s_add_u32 s%d, s%d, 1\ns_cmp_lt_u32 s%d, 10\ns_cbranch_scc1 %s" % (sIt, sIt, sIt, L))
    k("L_k1_Lend:")
    srd(k, SWS, pWs, WS_NREC)
    k("s_branch L_k1_P2")

    k("L_k1_D:")
    k("s_memrealtime s[100:101]")
    decode()
    XR = 16
    YR = 36
    PK = 100
    T = 132
    vN = 12
    sPQ, sPR = [14, 78], [15, 79]
    k("v_mul_u32_u24 v%d, 1280, v%d\nv_lshl_add_u32 v%d, v%d, 4, v%d" % (vT[0], vG, vT[0], vM, vT[0]))
    XL = opt("xl", 1)
    sQ_, sG_ = sIt, sRd
    if XL:
        k("s_and_b32 s%d, s2, 7\ns_lshl_b32 s%d, s%d, 5\ns_lshr_b32 s%d, s2, 3\ns_add_u32 s%d, s%d, s%d\ns_lshl_b32 s%d, s%d, 1\ns_add_u32 s%d, s%d, s%d" % (sT0, sT0, sT0, sT1, sT0, sT0, sT1, sC, sT0, sC, sC, sMH))
        k("s_bfe_u32 s%d, s2, 0x10002\ns_lshl_b32 s%d, s%d, 5\ns_add_u32 s%d, s%d, s%d" % (sQ_, sQ_, sQ_, sQ_, sQ_, sT1))
    else:
        k("s_lshl_b32 s%d, s2, 1\ns_add_u32 s%d, s%d, s%d" % (sC, sC, sC, sMH))
    def code_touch(tag):
        k("s_getpc_b64 s[70:71]")
        k("L_k1_pc%s:" % tag)
        k("s_sub_u32 s70, s70, L_k1_pc%s-%s\ns_subb_u32 s71, s71, 0" % (tag, KNAME))
        k("s_lshr_b32 s%d, s2, 3\ns_lshl_b32 s%d, s%d, 1\ns_add_u32 s%d, s%d, s%d\ns_mul_i32 s%d, s%d, 640" % (sT0, sT0, sT0, sT0, sT0, sMH, sT0, sT0))
        k("v_min_u32 v14, 4, v%d\nv_lshl_add_u32 v14, v14, 7, s%d\nv_min_u32 v14, L_k1_tab-%s, v14" % (vL, sT0, KNAME))
        k("global_load_dword v15, v14, s[70:71]")
    if opt("cpf", 6) & 4: code_touch("c")
    k("s_waitcnt lgkmcnt(0)")
    srd(k, SX, pX, 2048*1280)
    srd(k, SWS, pWs, WS_NREC)
    k("s_cmp_lg_u32 s%d, 0\ns_cbranch_scc1 L_k1_nn" % sC)
    k("s_or_b32 s%d, s100, 1" % sT0)
    k("v_mov_b32 v%d, s%d\nv_mov_b32 v%d, 0" % (vT[2], sT0, vT[1]))
    k("global_store_dword v%d, v%d, %s%s" % (vT[1], vT[2], sp(pDbg), SC))
    k("L_k1_nn:")
    B1 = opt("b1", 2); GATE = opt("gate", 3)
    SNT = " nt" if opt("snt", 0) else ""
    PNT = " nt" if opt("pnt", 1) else ""
    PA = 1
    PK2 = 180; PP = 180
    PK1 = opt("pk1", 0); PGATE = opt("pgate", 1)
    cr_, cc_ = (vSL, vII) if opt("cs", 2) else (vII, vSL)
    CL = opt("cs", 2) == 2
    def pack_loads(tag):
        k("s_cmp_eq_u32 s%d, 1\ns_cbranch_scc1 L_k1_pld%s" % (sTY, tag))
        k("s_lshl_b32 s%d, s%d, 3\ns_add_u32 s%d, s%d, s%d\ns_lshl_b32 s%d, s%d, 1\ns_add_u32 s%d, s%d, s%d\ns_lshl_b32 s%d, s%d, 1" % (sT3, sI, sT3, sT3, sJJ, sT3, sT3, sT3, sT3, sMH, sT3, sT3))
        for n in range(2):
            k("s_add_u32 s%d, s%d, %d\ns_mul_i32 s%d, s%d, 6554\ns_lshr_b32 s%d, s%d, 16\ns_mul_i32 s%d, s%d, 10\ns_sub_u32 s%d, s%d, s%d" % (sT0, sT3, n, sPQ[n], sT0, sPQ[n], sPQ[n], sT1, sPQ[n], sPR[n], sT0, sT1))
        srd(k, SP0, pDn, 1536*1280)
        srd(k, SW0, pCre, 640*1280)
        srd(k, SW1, pCim, 640*1280)
        k("v_mul_u32_u24 v%d, 1280, v%d\nv_lshl_add_u32 v%d, v%d, 4, v%d" % (vT[4], vII, vT[4], vSL, vT[4]))
        k("s_cmp_lt_u32 s%d, 48\ns_cselect_b32 s%d, s%d, 0" % (sPQ[0], SP0+2, SP0+2))
        k("s_cmp_lt_u32 s%d, 40\ns_cselect_b32 s%d, s%d, 0\ns_cselect_b32 s%d, s%d, 0" % (sPQ[0], SW0+2, SW0+2, SW1+2, SW1+2))
        if PK1 and PGATE: wait_word("L_k1_pgw"+tag, 36, "%d" % PGATE, vT[3], vT[2])
        for n in range(2):
            k("s_mul_i32 s%d, s%d, 40960\ns_lshl_b32 s%d, s%d, 7\ns_add_u32 s%d, s%d, s%d" % (sT1, sPQ[n], sT2, sPR[n], sT1, sT1, sT2))
            for a in range(4):
                k("buffer_load_dwordx4 %s, v%d, %s, s%d offen%s" % (vr(PK+16*n+4*a, 4), vT[4], sq(SP0), sT1, PNT))
                if a < 3: k("s_add_u32 s%d, s%d, 10240" % (sT1, sT1))
        if not CL: k("v_mul_u32_u24 v%d, 1280, v%d\nv_lshl_add_u32 v%d, v%d, 4, v%d" % (vT[4], cr_, vT[4], cc_, vT[4]))
        for n in range(2):
            k("s_mul_i32 s%d, s%d, 20480\ns_lshl_b32 s%d, s%d, 7\ns_add_u32 s%d, s%d, s%d" % (sT1, sPQ[n], sT2, sPR[n], sT1, sT1, sT2))
            k("s_add_u32 s%d, s%d, 10240" % (sT2, sT1))
            for part in range(2):
                for hh in range(2):
                    k("buffer_load_dwordx4 %s, v%d, %s, s%d offen%s" % (vr(PK2+16*n+(part*2+hh)*4, 4), vT[4], sq(SW1 if part else SW0), sT2 if hh else sT1, PNT))
        k("L_k1_pld%s:" % tag)
    def gate(lab):
        k("s_barrier")
        if PK1: pack_loads(lab[-2:])
        if GATE: wait_word(lab, 36, "%d" % GATE, vT[3], vT[2])
    k("s_mul_i32 s%d, s%d, 5120" % (sKx, sC))
    xl = lambda c: k("buffer_load_dwordx4 %s, v%d, %s, s%d offen offset:%d%s" % (vr(XR+4*c, 4), vT[0], sq(SX), sKx, c*256, SNT))
    k("s_cmp_eq_u32 s%d, 1\ns_cbranch_scc1 L_k1_D1a" % sMH)
    if XL:
        k("s_mul_i32 s%d, s%d, 43\ns_lshr_b32 s%d, s%d, 9\ns_mul_i32 s%d, s%d, 12\ns_sub_u32 s%d, s%d, s%d" % (sT0, sQ_, sT0, sT0, sT1, sT0, sT1, sQ_, sT1))
        k("s_cmp_lt_u32 s%d, 6\ns_cselect_b32 s%d, s%d, s%d\ns_cselect_b32 s%d, s%d, s%d\ns_cselect_b32 s%d, 0, 6\ns_cselect_b32 s%d, 0, 24" % (sT1, SP1, pG, pU, SP1+1, pG+1, pU+1, sT2, sG_))
        k("s_sub_u32 s%d, s%d, s%d\ns_and_b32 s%d, s2, 3\ns_lshl_b32 s%d, s%d, 2\ns_lshl_b32 s%d, s%d, 1\ns_add_u32 s%d, s%d, 12" % (sT1, sT1, sT2, sT2, sT3, sT2, sT2, sT2, sT2, sT2))
        k("s_cmp_lt_u32 s%d, 4\ns_cselect_b32 s%d, s%d, s%d\ns_add_u32 s%d, s%d, s%d" % (sT1, sT2, sT3, sT2, sT1, sT1, sT2))
        k("s_add_u32 s%d, s%d, s%d\ns_mul_i32 s%d, s%d, 48\ns_add_u32 s%d, s%d, s%d" % (sG_, sG_, sT1, sT2, sT0, sG_, sG_, sT2))
        k("s_lshl_b32 s%d, s%d, 7\ns_mul_i32 s%d, s%d, %d\ns_add_u32 s%d, s%d, s%d" % (sT1, sT1, sT0, sT0, 8*3072, sKw, sT0, sT1))
        k("s_cmp_lt_u32 s%d, 60\ns_cselect_b32 s%d, %d, 0\ns_cselect_b32 s%d, s%d, 1000\ns_mov_b32 s%d, 0x20000" % (sQ_, SP1+2, 640*3072, sG_, sG_, SP1+3))
    else:
        k("s_mov_b32 s%d, s2" % sG_)
        k("s_mul_i32 s%d, s2, 1366\ns_lshr_b32 s%d, s%d, 16\ns_mul_i32 s%d, s%d, 48\ns_sub_u32 s%d, s2, s%d" % (sT0, sT0, sT0, sT1, sT0, sT1, sT1))
        k("s_cmp_lt_u32 s%d, 24\ns_cselect_b32 s%d, s%d, s%d\ns_cselect_b32 s%d, s%d, s%d\ns_cselect_b32 s%d, 0, 24" % (sT1, SP1, pG, pU, SP1+1, pG+1, pU+1, sT2))
        k("s_sub_u32 s%d, s%d, s%d\ns_lshl_b32 s%d, s%d, 7\ns_mul_i32 s%d, s%d, %d\ns_add_u32 s%d, s%d, s%d" % (sT1, sT1, sT2, sT1, sT1, sT0, sT0, 8*3072, sKw, sT0, sT1))
        k("s_cmp_lt_u32 s2, 240\ns_cselect_b32 s%d, %d, 0\ns_mov_b32 s%d, 0x20000" % (SP1+2, 640*3072, SP1+3))
    k("v_mul_u32_u24 v%d, 3072, v%d\nv_lshl_add_u32 v%d, v%d, 4, v%d" % (vT[1], vII, vT[1], vSL, vT[1]))
    a_ = 0
    for c in range(5):
        if c == B1: gate("L_k1_g0")
        xl(c)
        while a_ < 16 and a_*40 < 128*(c+1):
            k("buffer_load_dwordx4 %s, v%d, %s, s%d offen%s" % (vr(YR+4*a_, 4), vT[1], sq(SP1), sKw, SNT))
            k("s_add_u32 s%d, s%d, %d" % (sKw, sKw, 40*3072))
            a_ += 1
    if B1 >= 5: gate("L_k1_g0")
    k("s_branch L_k1_Db")
    k("L_k1_D1a:")
    if XL:
        k("s_cmp_lt_u32 s%d, 20\ns_cselect_b32 s%d, s%d, s%d\ns_cselect_b32 s%d, s%d, s%d\ns_cselect_b32 s%d, 0, 20\ns_cselect_b32 s%d, 0, 80" % (sQ_, SP1, pBre, pBim, SP1+1, pBre+1, pBim+1, sT1, sG_))
        k("s_sub_u32 s%d, s%d, s%d\ns_and_b32 s%d, s2, 3\ns_mul_i32 s%d, s%d, 20\ns_add_u32 s%d, s%d, s%d\ns_add_u32 s%d, s%d, s%d" % (sT0, sQ_, sT1, sT1, sT1, sT1, sT0, sT0, sT1, sG_, sG_, sT0))
        k("s_mul_i32 s%d, s%d, 10240\ns_add_u32 s%d, s%d, 5120" % (sKw, sT0, sDst, sKw))
        k("s_cmp_lt_u32 s%d, 40\ns_cselect_b32 s%d, %d, 0\ns_cselect_b32 s%d, s%d, 1000\ns_mov_b32 s%d, 0x20000" % (sQ_, SP1+2, 640*1280, sG_, sG_, SP1+3))
    else:
        k("s_mov_b32 s%d, s2" % sG_)
        k("s_cmp_lt_u32 s2, 80\ns_cselect_b32 s%d, s%d, s%d\ns_cselect_b32 s%d, s%d, s%d\ns_cselect_b32 s%d, 0, 80" % (SP1, pBre, pBim, SP1+1, pBre+1, pBim+1, sT1))
        k("s_sub_u32 s%d, s2, s%d\ns_mul_i32 s%d, s%d, 10240\ns_add_u32 s%d, s%d, 5120" % (sT0, sT1, sKw, sT0, sDst, sKw))
        k("s_cmp_lt_u32 s2, 160\ns_cselect_b32 s%d, %d, 0\ns_mov_b32 s%d, 0x20000" % (SP1+2, 640*1280, SP1+3))
    for c in range(5):
        if c == B1: gate("L_k1_g1")
        xl(c)
        for hh in range(2): k("buffer_load_dwordx4 %s, v%d, %s, s%d offen offset:%d%s" % (vr(YR+20*hh+4*c, 4), vT[0], sq(SP1), sDst if hh else sKw, c*256, SNT))
    if B1 >= 5: gate("L_k1_g1")
    k("L_k1_Db:")
    if opt("cpf", 6) & 1: code_touch("a")
    ev(0)
    k("v_mov_b32 v%d, 0" % vT[4])
    k("global_load_dword v%d, v%d, %s%s" % (vN, vT[4], sp(pDbg), SC))
    if not PK1: pack_loads("")
    k("s_cmp_eq_u32 s%d, 0\ns_cbranch_scc1 L_k1_npar" % sTY)
    param_loads(PP, sMH, vT[4])
    k("s_waitcnt vmcnt(15)")
    k("L_k1_npar:")
    k("v_mov_b32 v13, 0x3f803f80")
    ev(1)
    if not PK1: k("s_waitcnt vmcnt(16)")
    ev(2)
    stamp(k, 7)
    def unpack(dst, src, n):
        for d in range(n): k("v_lshlrev_b32 v%d, 16, v%d\nv_and_b32 v%d, s%d, v%d" % (dst+2*d, src+d, dst+2*d+1, sMASK, src+d))
    def row_sum(regs):
        for n in (8, 4, 2, 1):
            for r in regs: k("v_add_f32_dpp v%d, v%d, v%d%s" % (r, r, r, ror(n)))
    def tree(dst, src, n):
        k("v_add_f32 v%d, v%d, v%d\nv_add_f32 v%d, v%d, v%d" % (dst, src, src+1, dst+1, src+2, src+3))
        for d in range(4, n, 2): k("v_add_f32 v%d, v%d, v%d\nv_add_f32 v%d, v%d, v%d" % (dst, dst, src+d, dst+1, dst+1, src+d+1))
        k("v_add_f32 v%d, v%d, v%d" % (dst, dst, dst+1))
    PFIRST = 0
    def do_nonce():
        k("s_mov_b32 s%d, 0" % sT3)
        k("L_k1_gn:")
        k("v_readfirstlane_b32 s%d, v%d" % (sNon, vN))
        k("s_add_u32 s%d, s%d, 1\ns_cmp_lg_u32 s%d, 0\ns_cbranch_scc1 L_k1_gnd" % (sT3, sT3, sNon))
        k("s_cmp_gt_u32 s%d, 0x40000\ns_cbranch_scc1 L_k1_gnd" % sT3)
        k("v_mov_b32 v%d, 0" % vT[1])
        k("global_load_dword v%d, v%d, %s%s\ns_waitcnt vmcnt(0)\ns_branch L_k1_gn" % (vN, vT[1], sp(pDbg), SC))
        k("L_k1_gnd:")
        k("s_max_u32 s%d, s%d, 1" % (sNon, sNon))
    def do_stats():
        A, B = T+40, T+42
        def dsum(dst, src, n, sq_):
            for d in range(n):
                k("v_dot2_f32_bf16 v%d, v%d, v%d, %s" % (dst+(d & 1), src+d, src+d if sq_ else 13, "v%d" % (dst+(d & 1)) if d > 1 else "0"))
        dsum(A, XR, 20, False)
        dsum(B, XR, 20, True)
        k("v_add_f32 v%d, v%d, v%d\nv_add_f32 v%d, v%d, v%d" % (A, A, A+1, B, B, B+1))
        row_sum([A, B])
        k("v_mul_f32 v%d, %s, v%d" % (A, f32(1/640.), A))
        k("v_mul_f32 v%d, %s, v%d" % (B, f32(1/640.), B))
        k("v_fma_f32 v%d, -v%d, v%d, v%d\nv_max_f32 v%d, 0, v%d" % (B, A, A, B, B, B))
        bf16r(B, B)
        k("v_add_f32 v%d, %s, v%d" % (B, f32(1e-5), B))
        bf16r(B, B)
        k("v_sqrt_f32 v%d, v%d" % (B, B))
        k("v_cvt_pk_bf16_f32 v%d, v%d, v%d\nv_mov_b32 v%d, s%d" % (T+44, A, B, T+45, sNon))
        k("s_lshl_b32 s%d, s%d, 5\ns_add_u32 s%d, s%d, 0x%x" % (sT0, sC, sT0, sT0, RST_OFF))
        k("v_lshlrev_b32 v%d, 3, v%d" % (vT[2], vG))
        k("s_mov_b32 exec_lo, 0x00010001\ns_mov_b32 exec_hi, 0x00010001")
        k("buffer_store_dwordx2 %s, v%d, %s, s%d offen%s" % (vr(T+44, 2), vT[2], sq(SWS), sT0, SC))
        k("s_mov_b64 exec, -1")
        k("s_cmp_eq_u32 s%d, 1\ns_cbranch_scc1 L_k1_D1b" % sMH)
        k("v_and_b32 v%d, 1, v%d\nv_lshlrev_b32 v%d, 4, v%d\nv_mov_b32 v%d, 0x3f80\nv_lshlrev_b32 v%d, v%d, v%d" % (T+8, vM, T+8, T+8, T+9, T+8, T+8, T+9))
        k("v_bfe_u32 v%d, v%d, 1, 2" % (T+9, vM))
        for d in range(4): k("v_cmp_eq_u32 vcc, %d, v%d\nv_cndmask_b32 v%d, 0, v%d, vcc" % (d, T+9, T+d, T+8))
        for a in range(16): k("v_mfma_f32_16x16x32_bf16 %s, %s, %s, %s" % (vr(T+4, 4), vr(T, 4), vr(YR+4*a, 4), vr(T+4, 4) if a else "0"))
        k("s_lshl_b32 s%d, s%d, 9\ns_add_u32 s%d, s%d, 0x%x\ns_cmp_lt_u32 s%d, 240\ns_cselect_b32 s%d, s%d, 0x%x" % (sT0, sG_, sT0, sT0, SG_OFF, sG_, sT0, sT0, WS_NREC))
        k("v_lshlrev_b32 v%d, 5, v%d\nv_lshl_add_u32 v%d, v%d, 6, v%d\nv_add_u32 v%d, s%d, v%d" % (T+8, vG, T+8, vSL, T+8, T+8, sT0, T+8))
        for r in range(4): k("v_mov_b32 v%d, s%d" % (T+13+2*r, sNon))
        for r in range(4): k("v_add_f32_dpp v%d, v%d, v%d%s" % (T+12+2*r, T+4+r, T+4+r, DPP))
        k("s_mov_b32 exec_lo, 0x00ff00ff\ns_mov_b32 exec_hi, 0")
        k("buffer_store_dwordx4 %s, v%d, %s, 0 offen%s" % (vr(T+12, 4), T+8, sq(SWS), SC))
        k("buffer_store_dwordx4 %s, v%d, %s, 0 offen offset:16%s" % (vr(T+16, 4), T+8, sq(SWS), SC))
        k("s_mov_b64 exec, -1")
        k("s_branch L_k1_Dc")
        k("L_k1_D1b:")
        for hh in range(2): dsum(A+2*hh, YR+20*hh, 20, False)
        k("v_add_f32 v%d, v%d, v%d\nv_add_f32 v%d, v%d, v%d" % (A, A, A+1, A+2, A+2, A+3))
        row_sum([A, A+2])
        k("v_mov_b32 v%d, s%d\nv_mov_b32 v%d, s%d" % (A+1, sNon, A+3, sNon))
        k("s_lshl_b32 s%d, s%d, 6\ns_add_u32 s%d, s%d, 0x%x\ns_cmp_lt_u32 s%d, 160\ns_cselect_b32 s%d, s%d, 0x%x" % (sT0, sG_, sT0, sT0, SB_OFF, sG_, sT0, sT0, WS_NREC))
        k("v_add_u32 v%d, s%d, v%d" % (vT[3], sT0, vT[2]))
        k("s_mov_b32 exec_lo, 0x00010001\ns_mov_b32 exec_hi, 0x00010001")
        k("buffer_store_dwordx2 %s, v%d, %s, 0 offen%s" % (vr(A, 2), vT[3], sq(SWS), SC))
        k("buffer_store_dwordx2 %s, v%d, %s, 0 offen offset:32%s" % (vr(A+2, 2), vT[3], sq(SWS), SC))
        k("s_mov_b64 exec, -1")
        k("L_k1_Dc:")
    def do_pack():
        ev(3)
        PSC = S1
        k("s_waitcnt vmcnt(%d)" % (1 + 3*(5-B1) if PK1 else 3))
        k("s_cmp_eq_u32 s%d, 1\ns_cbranch_scc1 %s" % (sTY, "L_k1_pdd" if PA else "L_k1_pdC"))
        k("s_cmp_ge_u32 s%d, 48\ns_cbranch_scc1 L_k1_pdd" % sPQ[0])
        k("s_mul_i32 s%d, s%d, %d\ns_add_u32 s%d, s%d, 49152" % (sT2, sMH, SL, sT2, sT2))
        k("v_lshlrev_b32 v%d, 4, v%d\nv_add_u32 v%d, s%d, v%d" % (T+1, vL, T, sT2, T+1))
        k("v_lshrrev_b32 v%d, 2, v%d\nv_lshl_add_u32 v%d, v%d, 2, v%d\nv_lshlrev_b32 v%d, 7, v%d" % (T+2, vM, T+2, vG, T+2, T+2, T+2))
        k("v_and_b32 v%d, 3, v%d\nv_lshl_add_u32 v%d, v%d, 3, v%d\nv_add_u32 v%d, s%d, v%d" % (T+3, vM, T+2, T+3, T+2, T+2, sT2, T+2))
        k("v_lshl_add_u32 v%d, v%d, 3, v%d\nv_lshl_add_u32 v%d, v%d, 4, s%d" % (T+3, vSL, vII, T+3, T+3, sT2))
        k("v_lshrrev_b32 v%d, 1, v%d\nv_mul_u32_u24 v%d, 5120, v%d" % (T+4, cc_, T+4, T+4))
        k("v_and_b32 v%d, 1, v%d\nv_lshl_add_u32 v%d, v%d, 5, v%d\nv_lshl_add_u32 v%d, v%d, 4, v%d" % (T+5, cc_, T+5, T+5, cr_, T+4, T+5, T+4))
        def lds_w(n):
            for a in range(4): k("ds_write_b128 v%d, %s offset:%d" % (T, vr(PK+16*n+4*a, 4), a*1024))
            for c4 in range(4):
                k("ds_read_b64_tr_b16 %s, v%d offset:%d" % (vr(PK+16*n+c4*4, 2), T+2, c4*32))
                k("ds_read_b64_tr_b16 %s, v%d offset:%d" % (vr(PK+16*n+c4*4+2, 2), T+2, c4*32+2048))
        def lds_c(n):
            for a in range(4): k("ds_write_b128 v%d, %s offset:%d" % (T, vr(PK2+16*n+4*a, 4), a*1024))
            for a in range(4): k("ds_read_b128 %s, v%d offset:%d" % (vr(PK2+16*n+4*a, 4), T+3, a*1024))
        def st_w(n):
            for c4 in range(4):
                k("s_lshl_b32 s%d, s%d, 2\ns_add_u32 s%d, s%d, %d\ns_mul_i32 s%d, s%d, 52\ns_lshr_b32 s%d, s%d, 8" % (sT0, sPR[n], sT0, sT0, c4, sT1, sT0, sT1, sT1))
                k("s_mul_i32 s%d, s%d, 435\ns_add_u32 s%d, s%d, s%d\ns_mul_i32 s%d, s%d, 5\ns_add_u32 s%d, s%d, s%d" % (sT1, sT1, sT1, sT1, sT0, sT0, sPQ[n], sT1, sT1, sT0))
                k("s_lshl_b32 s%d, s%d, 10\ns_add_u32 s%d, s%d, %d" % (sT1, sT1, sT1, sT1, B2_OFF))
                k("buffer_store_dwordx4 %s, v%d, %s, s%d offen%s" % (vr(PK+16*n+c4*4, 4), T+1, sq(SWS), sT1, PSC))
        def st_c(n):
            k("s_mul_i32 s%d, s%d, 52\ns_lshr_b32 s%d, s%d, 8\ns_mul_i32 s%d, s%d, 435\ns_add_u32 s%d, s%d, s%d" % (sT1, sPQ[n], sT1, sT1, sT1, sT1, sT1, sT1, sPQ[n]))
            k("s_mul_i32 s%d, s%d, 20\ns_add_u32 s%d, s%d, s%d\ns_add_u32 s%d, s%d, 240\ns_lshl_b32 s%d, s%d, 10\ns_add_u32 s%d, s%d, %d" % (sT0, sPR[n], sT1, sT1, sT0, sT1, sT1, sT1, sT1, sT1, sT1, B2_OFF))
            for r in range(8, 16): k("v_xor_b32 v%d, 0x80008000, v%d" % (PK2+16*n+r, PK2+16*n+r))
            for part in range(2):
                for hh in range(2):
                    k("buffer_store_dwordx4 %s, v%d, %s, s%d offen offset:%d%s" % (vr(PK2+16*n+(part*2+hh)*4, 4), T+4, sq(SWS), sT1, part*256+hh*128, PSC))
        assert CL
        lds_w(0)
        k("s_waitcnt lgkmcnt(3)")
        lds_w(1)
        k("s_waitcnt lgkmcnt(7)")
        lds_c(0)
        k("s_waitcnt lgkmcnt(7)")
        lds_c(1)
        st_w(0); st_w(1)
        k("s_cmp_ge_u32 s%d, 40\ns_cbranch_scc1 L_k1_pdd\ns_waitcnt lgkmcnt(0)" % sPQ[0])
        st_c(0); st_c(1)
        k("L_k1_pdd:")
        if opt("pw", 0):
            k("s_mul_i32 s%d, s%d, 22528\nv_lshlrev_b32 v%d, 4, v%d" % (sT0, sC, T+3, vL))
            for j in range(22):
                k("buffer_store_dwordx4 %s, v%d, %s, s%d offen offset:%d sc1" % (vr(XR, 4), T+3, sq(SWS), sT0, (j & 3)*1024))
                if j & 3 == 3: k("s_add_u32 s%d, s%d, 4096" % (sT0, sT0))
        ev(4)
    def do_flag():
        if PA: k("s_cmp_eq_u32 s%d, 1\ns_cbranch_scc1 L_k1_npf" % sTY)
        k("s_lshl_b32 s%d, s%d, 4\ns_add_u32 s%d, s%d, s%d\ns_lshl_b32 s%d, s%d, 3\ns_add_u32 s%d, s%d, s%d\ns_lshl_b32 s%d, s%d, 1\ns_add_u32 s%d, s%d, s%d" % (sT0, sTY, sT0, sT0, sI, sT0, sT0, sT0, sT0, sJJ, sT0, sT0, sT0, sT0, sMH))
        k("s_lshl_b32 s%d, s%d, 2\ns_add_u32 s%d, s%d, 0x%x\nv_mov_b32 v%d, s%d\nv_mov_b32 v%d, s%d" % (sT0, sT0, sT0, sT0, PF_OFF, T, sT0, T+1, sNon))
        k("s_waitcnt vmcnt(0)\ns_mov_b64 exec, 1")
        k("buffer_store_dword v%d, v%d, %s, 0 offen%s\ns_mov_b64 exec, -1" % (T+1, T, sq(SWS), SC))
        k("L_k1_npf:")
    if opt("dprio", 1): k("s_setprio 3")
    if PK1:
        do_pack()
        k("s_cmp_eq_u32 s%d, 1\ns_cbranch_scc1 L_k1_nw\ns_cmp_lt_u32 s%d, 40\ns_cbranch_scc1 L_k1_w16\ns_waitcnt vmcnt(0)\nL_k1_w16:\ns_waitcnt vmcnt(16)\nL_k1_nw:" % (sTY, sPQ[0]))
        ev(9)
        do_nonce(); ev(10); do_stats(); ev(11); do_flag()
        k("s_waitcnt vmcnt(3)")
    else:
        do_nonce(); do_stats(); do_pack(); do_flag()
    stamp(k, 2)
    if opt("dprio", 1) == 1: k("s_setprio 0")
    ev(5)
    TB = 48
    TG = 196
    CT = TRB + 4*80*TRP
    k("s_cmp_eq_u32 s%d, 0\ns_cbranch_scc1 L_k1_ntb" % sTY)
    param_ab(PP, 80, 85, vT[1])
    k("v_cvt_f32_u32 v%d, v%d\nv_mul_f32 v%d, %s, v%d\nv_mul_f32 v%d, %s, v%d" % (vT[1], vG, vT[2], f32(64.0), vT[1], vT[1], f32(16.0), vT[1]))
    cpow5(r5(TG), r5(TG+5), "1.0", 90, 95, 80, 85)
    cpow5(r5(TG+15), r5(TG+20), f32(16.0), 90, 95, 80, 85)
    cpow5(r5(TG+36), r5(TG+41), f32(256.0), 90, 95, 80, 85)
    cpow5(r5(TB), r5(TB+5), "v%d" % vT[2], 90, 95, 80, 85)
    cpow5(r5(TB+10), r5(TB+15), "v%d" % vT[1], 90, 95, 80, 85)
    lre, lim, t0, t1 = PP, PP+5, 90, 95
    KRd = [TG+26+2*q for q in range(5)]
    for q in range(5): k("v_add_f32 v%d, -1.0, v%d\nv_mul_f32 v%d, v%d, v%d" % (t0+q, TG+q, t1+q, lre+q, lre+q))
    for q in range(5): k("v_fmac_f32 v%d, v%d, v%d" % (t1+q, lim+q, lim+q))
    for q in range(5): k("v_rcp_f32 v%d, v%d" % (t1+q, t1+q))
    for q in range(5): k("v_mul_f32 v%d, v%d, v%d\nv_mul_f32 v%d, v%d, v%d" % (KRd[q], t0+q, lre+q, TG+10+q, TG+5+q, lre+q))
    for q in range(5): k("v_fmac_f32 v%d, v%d, v%d\nv_fma_f32 v%d, -v%d, v%d, v%d" % (KRd[q], TG+5+q, lim+q, TG+10+q, t0+q, lim+q, TG+10+q))
    for q in range(5): k("v_add_f32 v%d, v%d, v%d" % (t1+q, t1+q, t1+q))
    for q in range(5): k("v_mul_f32 v%d, v%d, v%d\nv_mul_f32 v%d, v%d, v%d" % (KRd[q], KRd[q], t1+q, TG+10+q, TG+10+q, t1+q))
    k("L_k1_ntb:")
    EI = 16
    aSt, aS0, aS1 = 40, 41, 42
    k("s_lshl_b32 s%d, s%d, 1\ns_add_u32 s%d, s%d, s%d\ns_lshl_b32 s%d, s%d, 9\ns_add_u32 s%d, s%d, 0x%x" % (sT0, sI, sT0, sT0, sMH, sT0, sT0, sT0, sT0, RST_OFF))
    k("v_lshrrev_b32 v%d, 2, v%d\nv_lshlrev_b32 v%d, 4, v%d\nv_lshl_add_u32 v%d, v%d, 2, v%d" % (aSt, vM, aSt, aSt, aSt, vG, aSt))
    k("v_and_b32 v%d, 3, v%d\nv_add_u32 v%d, v%d, v%d\nv_lshl_add_u32 v%d, v%d, 3, s%d" % (aS0, vM, aSt, aSt, aS0, aSt, aSt, sT0))
    k("s_cmp_eq_u32 s%d, 1\ns_cbranch_scc1 L_k1_eaB" % sTY)
    k("s_lshl_b32 s%d, s%d, 6\ns_add_u32 s%d, s%d, s%d\ns_lshl_b32 s%d, s%d, 3\ns_add_u32 s%d, s%d, 0x%x" % (sT0, sMH, sT0, sT0, sCol, sT0, sT0, sT0, sT0, SG_OFF))
    k("v_lshl_add_u32 v%d, v%d, 3, s%d\nv_add_u32 v%d, %d, v%d" % (aS0, vL, sT0, aS1, 1536*8, aS0))
    k("s_mov_b32 s%d, %d" % (sKw, 3072*8))
    k("s_branch L_k1_ead")
    k("L_k1_eaB:")
    k("s_lshl_b32 s%d, s%d, 5\ns_add_u32 s%d, s%d, s%d\ns_lshl_b32 s%d, s%d, 3\ns_add_u32 s%d, s%d, 0x%x" % (sT0, sMH, sT0, sT0, sCol, sT0, sT0, sT0, sT0, SG_OFF))
    k("v_lshrrev_b32 v%d, 5, v%d\nv_mul_u32_u24 v%d, 1504, v%d\nv_add_u32 v%d, v%d, v%d\nv_lshl_add_u32 v%d, v%d, 3, s%d" % (aS0, vL, aS0, aS0, aS0, aS0, vL, aS0, aS0, sT0))
    k("s_mul_i32 s%d, s%d, 80\ns_mul_i32 s%d, s%d, 40\ns_add_u32 s%d, s%d, s%d\ns_lshl_b32 s%d, s%d, 3\ns_add_u32 s%d, s%d, 0x%x" % (sT0, sJJ, sT1, sMH, sT0, sT0, sT1, sT0, sT0, sT0, sT0, SB_OFF))
    k("v_lshrrev_b32 v%d, 3, v%d\nv_mul_u32_u24 v%d, 640, v%d\nv_add_u32 v%d, v%d, v%d\nv_lshl_add_u32 v%d, v%d, 3, s%d" % (aS1, vM, aS1, aS1, aS1, aS1, vSL, aS1, aS1, sT0))
    k("s_mov_b32 s%d, 64" % sKw)
    k("L_k1_ead:")
    if opt("dprio", 1) == 2: k("s_setprio 0")
    ev(6)
    k("s_lshl_b32 s%d, s%d, 2\ns_add_u32 s%d, s%d, %d\nv_mov_b32 v%d, s%d\nv_mov_b32 v%d, s%d\nv_lshlrev_b32 v43, 4, v%d" % (sT0, sMH, sT0, sT0, FLG+24, T+6, sT0, T+7, sNon, vL))
    PFW = 2 if PA else 4
    def pf_load(): return "buffer_load_dwordx%d v[44:%d], v%d, %s, s%d offen%s" % (PFW, 43+PFW, T+12, sq(SWS), sKx, SC)
    def pf_eval(ok):
        k("v_xor_b32 v%d, s%d, v44" % (T, sNon))
        for r_ in range(45, 44+PFW): k("v_xor_b32 v%d, s%d, v%d\nv_or_b32 v%d, v%d, v%d" % (T+1, sNon, r_, T, T, T+1))
        k("v_cmp_ne_u32 vcc, 0, v%d" % T)
    k("s_mul_i32 s%d, s%d, %d\ns_add_u32 s%d, s%d, 0x%x\nv_mul_u32_u24 v%d, %d, v%d\ns_mov_b32 s70, 0" % (sKx, sMH, PFW*256, sKx, sKx, PF_OFF, T+12, PFW*4, vL))
    wait_word("L_k1_eg", 20, "%d" % opt("eigate", 7), T, T+1)
    if opt("cpf", 6) & 2: code_touch("b")
    ev(7)
    k("s_mov_b32 s%d, 0" % sT3)
    k("L_k1_eil:")
    k("buffer_load_dwordx2 %s, v%d, %s, 0 offen%s" % (vr(EI, 2), aSt, sq(SWS), SC))
    for p in range(5):
        k("s_mov_b32 s%d, %d\ns_mul_i32 s%d, s%d, %d" % (sT0, p*3072*8, sT1, sKw, p))
        k("buffer_load_dwordx2 %s, v%d, %s, s%d offen%s" % (vr(EI+2+2*p, 2), aS0, sq(SWS), sT0, SC))
        k("buffer_load_dwordx2 %s, v%d, %s, s%d offen%s" % (vr(EI+12+2*p, 2), aS1, sq(SWS), sT1, SC))
    k("s_waitcnt vmcnt(0)")
    k("v_xor_b32 v%d, s%d, v%d" % (T, sNon, EI+1))
    for r_ in [EI+3+2*p for p in range(10)]: k("v_xor_b32 v%d, s%d, v%d\nv_or_b32 v%d, v%d, v%d" % (T+1, sNon, r_, T, T, T+1))
    k("v_cmp_ne_u32 vcc, 0, v%d" % T)
    k("s_add_u32 s%d, s%d, 1" % (sT3, sT3))
    k("s_cbranch_vccz L_k1_eid")
    k("s_sleep 16\ns_cmp_lt_u32 s%d, 0x40000\ns_cbranch_scc1 L_k1_eil" % sT3)
    k("L_k1_eid:")
    ev(8)
    U = T+16
    k("v_lshlrev_b32 v%d, 16, v%d\nv_and_b32 v%d, s%d, v%d\nv_rcp_f32 v%d, v%d" % (U, EI, U+1, sMASK, EI, U+2, U+1))
    k("s_mul_i32 s%d, s%d, 768\ns_add_u32 s%d, s%d, %d" % (sT0, sMH, sT0, sT0, STAT_M))
    k("v_lshl_add_u32 v%d, v%d, 2, s%d" % (U+3, vL, sT0))
    def sum5(b): k("v_add_f32 v%d, v%d, v%d\nv_add_f32 v%d, v%d, v%d\nv_add_f32 v%d, v%d, v%d\nv_add_f32 v%d, v%d, v%d" % (b, b, b+2, b+4, b+4, b+6, b, b, b+8, b, b, b+4))
    sum5(EI+2)
    k("s_lshl_b32 s%d, s%d, 9\ns_add_u32 s%d, s%d, %d" % (sT0, sMH, sT0, sT0, SFF))
    k("v_lshl_add_u32 v%d, v%d, 2, s%d" % (U+4, vL, sT0))
    for p in range(5): k("v_mov_b32 v%d, v%d" % ([TG+27, TG+29, TG+31, TG+33, TG+25][p], EI+12+2*p))
    sum5(EI+12)
    k("s_mul_i32 s%d, s%d, %d\ns_add_u32 s%d, s%d, %d\nv_add_u32 v43, s%d, v43" % (sT0, sMH, 2*80*TRP, sT0, sT0, TRB, sT0))
    k("s_mul_i32 s%d, s%d, 3072\ns_add_u32 s%d, s%d, %d\nv_lshl_add_u32 v%d, v%d, 4, s%d" % (sT0, sMH, sT0, sT0, CT, U+5, vM, sT0))
    tab_base("D", 68)
    def ei_writes():
        k("ds_write_b32 v%d, v%d\nds_write_b32 v%d, v%d offset:256\nds_write_b32 v%d, v%d offset:512" % (U+3, U, U+3, U+2, U+3, U+1))
        k("ds_write_b32 v%d, v%d" % (U+4, EI+2))
        k("s_cmp_eq_u32 s%d, 1\ns_cbranch_scc1 L_k1_ewB" % sTY)
        k("ds_write_b32 v%d, v%d offset:256" % (U+4, EI+12))
        k("s_branch L_k1_ewd")
        k("L_k1_ewB:")
        k("v_mov_b32 v%d, %d" % (T+2, DNA))
        wait_done("L_k1_tbw", "16", T+2, T+8)
        for qd in range(12): k("ds_write_b128 v%d, %s offset:%d" % (U+5, vr(TG+4*qd, 4), qd*256))
        for w2 in range(2):
            for qd in range(5): k("ds_write_b128 v43, %s offset:%d" % (vr(TB+4*qd, 4), w2*80*TRP+qd*1024))
        k("L_k1_ewd:")
        k("ds_write_b32 v%d, v%d" % (T+6, T+7))
    def pf_ok():
        k("s_lshl_b32 s%d, s%d, 2\ns_add_u32 m0, s%d, %d\nv_mov_b32 v%d, 4\ns_mov_b64 exec, 1\nglobal_load_lds_dword v%d, s[68:69]\ns_mov_b64 exec, -1" % (sT0, sMH, sT0, FLG+40, T, T))
    WM = opt("wm", 2)
    PFE = opt("pfe", 0)
    if PFE:
        wait_word("L_k1_pg2", 20, "%d" % PFE, T, T+1)
        k(pf_load() + "\ns_waitcnt vmcnt(0)")
        pf_eval(None)
        k("s_mov_b32 s70, 1\ns_cbranch_vccnz L_k1_pno\ns_mov_b32 s70, 0")
        pf_ok()
        k("L_k1_pno:")
    if WM == 0: ei_writes()
    wait_word("L_k1_pg", 36, "10", T, T+1)
    if not PFE: k(pf_load())
    if WM == 1:
        wait_word("L_k1_rg0", 16, "10", T, T+1)
        wait_word("L_k1_rg1", 20, "10", T, T+1)
    if WM: ei_writes()
    if PFE: k("s_cmp_eq_u32 s70, 0\ns_cbranch_scc1 L_k1_P2\n" + pf_load())
    k("s_mov_b32 s%d, 0\ns_branch L_k1_pfc" % sT3)
    k("L_k1_pfl:")
    k("s_sleep 12\n" + pf_load())
    k("L_k1_pfc:")
    k("s_waitcnt vmcnt(0)")
    pf_eval(None)
    k("s_add_u32 s%d, s%d, 1" % (sT3, sT3))
    k("s_cbranch_vccz L_k1_pfo")
    k("s_cmp_lt_u32 s%d, 0x40000\ns_cbranch_scc1 L_k1_pfl" % sT3)
    k("L_k1_pfo:")
    k("ds_write_b32 v%d, v%d offset:16" % (T+6, T+7))
    k("L_k1_P2:")
    if opt("p2prio", 0): k("s_setprio %d" % opt("p2prio", 0))
    stamp(k, 1)
    if TRACE:
        k("s_lshl_b32 s83, s2, 11\ns_add_u32 s83, s83, 0x%x\nv_lshl_add_u32 v12, v0, 2, s83" % (STAMP_OFF + 0x40000))
        k("global_store_dword v12, v255, %s" % sp(pWs))
    LD2 = ["", " sc1", " nt", " sc0 sc1", " sc1 nt"][opt("ld2", 1)]
    sP, sMI, sNI = 4, 5, 6
    sAb, sBb = [72, 73, 74], [75, 76, 77]
    sR, sSh = 78, 79
    SO = SX
    AR, BR, AC = 12, 76, 176
    vA = [2, 3, 4, 5]; vB0, vB1, vOut, vLd, vFl, vFa = 6, 7, 8, 9, 10, 11
    k("s_sub_u32 s%d, s%d, 4" % (sP, sW))
    k("s_and_b32 s%d, s2, 7\ns_lshr_b32 s%d, s2, 3" % (sT0, sT1))
    p2map(sMI, sNI)
    X_, D_, ST_, PFr, tA, tB, tC = AR, AR+10, AR+20, AR+24, AR+32, AR+33, AR+34
    k("v_bfe_u32 v%d, v%d, 1, 2\nv_xor_b32 v%d, v%d, v%d\nv_mul_u32_u24 v%d, 320, v%d\nv_lshl_add_u32 v%d, v%d, 4, v%d" % (tA, vM, tA, tA, vG, vOut, vM, vOut, tA, vOut))
    k("v_lshlrev_b32 v%d, 4, v%d\nv_add_u32 v%d, 4096, v%d" % (vB0, vL, vB1, vB0))
    for f in range(4): k("s_xor_b32 s%d, s%d, %d\ns_lshl_b32 s%d, s%d, 10\nv_add_u32 v%d, s%d, v%d" % (sT0, sP, f, sT0, sT0, vA[f], sT0, vB0))
    k("s_mul_i32 s%d, s%d, %d\ns_mul_i32 s%d, s%d, %d\ns_add_u32 s%d, s%d, 0x%x" % (sBb[0], sMI, 88*4096, sBb[1], sNI, 88*5120, sBb[1], sBb[1], B2_OFF))
    for g, (mul, add) in enumerate(((8, 0), (4, 32), (10, 48))):
        k("s_mul_i32 s%d, s%d, %d\ns_add_u32 s%d, s%d, %d" % (sAb[g], sP, mul, sAb[g], sAb[g], add))
    def region(dst, src):
        k("s_and_b32 s%d, s%d, 1\ns_mul_i32 s%d, s%d, 25600\ns_cmp_lt_u32 s%d, 2\ns_cselect_b32 s%d, %d, 0\ns_add_u32 s%d, s%d, s%d" % (dst, src, dst, dst, src, sT0, 2*SL, dst, dst, sT0))
    region(sR, sP)
    k("v_add_u32 v%d, s%d, v%d\nv_add_u32 v%d, s%d, v%d" % (vLd, sR, vB0, vOut, sR, vOut))
    k("s_lshl_b32 s%d, s%d, 2\ns_add_u32 s%d, s%d, s%d\ns_mul_i32 s%d, s%d, %d\ns_add_u32 s%d, s%d, 0x%x" % (sSh, sMI, sSh, sSh, sP, sSh, sSh, FLS_, sSh, sSh, FL_OFF))
    k("s_lshl_b32 s%d, s%d, 2\ns_add_u32 s%d, s%d, %d\nv_mov_b32 v%d, s%d\nv_mov_b32 v%d, %d" % (sT0, sP, sT0, sT0, FLG+64, vFa, sT0, PFr+2, FLG+32))
    steps = [(0, i) for i in (0, 2, 4, 6, 1, 3, 5, 7)] + [(1, i) for i in range(4)] + [(2, i) for i in range(10)]
    fgrp = {0: 0, 4: 3, 8: 1, 12: 2}
    ORD = opt("ord2", 0)
    pos = [0, 4, 8]
    if ORD == 1: fgrp = {0: 1, 4: 0, 8: 3, 12: 2}; pos = [4, 8, 0]
    if ORD == 2: fgrp = {0: 0, 4: 1, 8: 3, 12: 2}; pos = [0, 8, 4]
    NS = len(steps)
    sK = list(range(16, 32)) + list(range(34, 40))
    ROT = opt("rot", 0)
    k("s_lshr_b32 s%d, s2, 3\ns_and_b32 s%d, s%d, 7\ns_lshr_b32 s%d, s%d, 3" % (sT1, sT0, sT1, sT1, sT1))
    if ROT:
        k("s_add_u32 s%d, s%d, s%d\ns_and_b32 s%d, s%d, 3" % (sT2, sT0, sT1, sT2, sT2))
        k("s_mul_i32 s%d, s%d, 3\ns_add_u32 s%d, s%d, s%d\ns_cmp_ge_u32 s%d, 10\ns_cselect_b32 s%d, 10, 0\ns_sub_u32 s%d, s%d, s%d" % (sT3, sT1, sT3, sT3, sT0, sT3, sT0, sT3, sT3, sT0))
    else:
        k("s_mov_b32 s%d, 0\ns_mov_b32 s%d, 0" % (sT2, sT3))
    for j in range(4):
        k("s_add_u32 s%d, s%d, %d\ns_and_b32 s%d, s%d, 3\ns_add_u32 s%d, s%d, s%d\ns_lshl_b32 s%d, s%d, 1\ns_add_u32 s%d, s%d, s%d\ns_add_u32 s%d, s%d, 1" %
          (sT0, sT2, j, sT0, sT0, sK[pos[2]+j], sT0, sAb[1], sT0, sT0, sK[pos[0]+j], sT0, sAb[0], sK[pos[1]+j], sK[pos[0]+j]))
    for j in range(10):
        k("s_add_u32 s%d, s%d, %d\ns_cmp_ge_u32 s%d, 10\ns_cselect_b32 s%d, 10, 0\ns_sub_u32 s%d, s%d, s%d\ns_add_u32 s%d, s%d, s%d" % (sT0, sT3, j, sT0, sT1, sT0, sT0, sT1, sK[12+j], sT0, sAb[2]))
    LS = [[7, 10, 13, 16, 19], [17, 18, 19, 20, 21], [9, 12, 15, 18, 21], [13, 15, 17, 19, 21], [], [20, 21], [5, 7, 9, 11, 13], [6, 9, 12, 15, 18]][opt("lsl", 2)]
    NA, NB = 4, 5
    vm = []
    THR = opt("thr", 0)
    def ldB(s, buf):
        g, i = steps[s]
        o = (["s_waitcnt vmcnt(%d)" % THR] if THR else []) + ["s_mul_i32 s%d, s%d, 5120\ns_add_u32 s%d, s%d, s%d" % (sT1, sK[s], sT1, sT1, sBb[1])]
        for f in range(5):
            o.append("buffer_load_dwordx4 %s, v%d, %s, s%d offen offset:%d%s" % (vr(BR+buf*20+f*4, 4), vB1 if f == 4 else vB0, sq(SWS), sT1, (f & 3)*1024, LD2))
            vm.append(("B", s))
        return o
    def ldA(s):
        g, i = steps[s]
        o = (["s_waitcnt vmcnt(%d)" % THR] if THR else []) + ["s_lshl_b32 s%d, s%d, 12\ns_add_u32 s%d, s%d, s%d" % (sT0, sK[s], sT0, sT0, sBb[0])]
        for f in range(4):
            o.append("buffer_load_dwordx4 %s, v%d, %s, s%d offen%s" % (vr(AR+(s % NA)*16+f*4, 4), vA[f], sq(SWS), sT0, LD2))
            vm.append(("A", s))
        return o
    def vwait(tags):
        idx = max(i for i, x in enumerate(vm) if x in tags)
        return min(63, len(vm)-1-idx)
    bbuf = {}
    k("L_k1_p2e:")
    k("ds_read_b64 %s, v%d offset:8\ns_waitcnt lgkmcnt(0)\nv_min_u32 v%d, v%d, v%d\nv_readfirstlane_b32 s%d, v%d" % (vr(PFr+4, 2), PFr+2, PFr+4, PFr+4, PFr+5, sT0, PFr+4))
    k("s_cmp_lg_u32 s%d, 0\ns_cbranch_scc1 L_k1_p2eo\ns_sleep 1\ns_branch L_k1_p2e\nL_k1_p2eo:" % sT0)
    streamed = [s for s in range(NS) if s not in LS]
    NPRE = opt("npre", NB)
    XB = opt("xb", 0)
    if XB:
        bbuf[0] = -1
        for x in ldB(0, -1): k(x)
        streamed = streamed[1:]
    for j in range(NB):
        bbuf[streamed[j]] = j
        if j < NPRE:
            for x in ldB(streamed[j], j): k(x)
    nextB = NB
    srd(k, SO, pOut, 2048*640*4)
    k("v_mov_b32 v%d, %d" % (AR+8, DNA))
    k("s_and_b32 s%d, s%d, 2\ns_add_u32 s%d, s%d, 18" % (sT1, sP, sT1, sT1))
    stamp(k, 2)
    k("v_mov_b32 v%d, %d\nL_k1_p2n:" % (AR+9, FLG+24))
    k("ds_read_b64 %s, v%d\ns_waitcnt lgkmcnt(0)\nv_min_u32 v%d, v%d, v%d\nv_readfirstlane_b32 s%d, v%d" % (vr(AR+12, 2), AR+9, AR+12, AR+12, AR+13, sNon, AR+12))
    k("s_cmp_lg_u32 s%d, 0\ns_cbranch_scc1 L_k1_p2no\ns_sleep 1\ns_branch L_k1_p2n\nL_k1_p2no:" % sNon)
    wait_done("L_k1_p2w", "s%d" % sT1, AR+8, AR+12)
    for j, s_ in enumerate(LS):
        g, i = steps[s_]
        if THR: k("s_waitcnt vmcnt(%d)" % THR)
        k("s_add_u32 m0, s%d, %d\ns_mul_i32 s%d, s%d, 5120\ns_add_u32 s%d, s%d, s%d" % (sR, j*5120, sT1, sK[s_], sT1, sT1, sBb[1]))
        for f in range(4):
            k("buffer_load_dwordx4 v%d, %s, s%d offen offset:%d%s lds" % (vB0, sq(SWS), sT1, f*1024, LD2)); vm.append(("L", s_))
        k("s_add_u32 m0, s%d, %d" % (sR, j*5120+4096))
        k("buffer_load_dwordx4 v%d, %s, s%d offen%s lds" % (vB1, sq(SWS), sT1, LD2)); vm.append(("L", s_))
    if opt("tb", 0):
        assert not ROT
        rest = streamed[NB:]
        tv, tj = AR+40, AR+41
        k("v_mul_u32_u24 v%d, 52, v%d\nv_lshrrev_b32 v%d, 8, v%d" % (tj, vL, tj, tj))
        k("v_mov_b32 v%d, s%d" % (tv, sK[rest[0]]))
        for j in range(1, len(rest)):
            k("v_cmp_le_u32 vcc, %d, v%d\nv_mov_b32 v%d, s%d\nv_cndmask_b32 v%d, v%d, v%d, vcc" % (j, tj, AR+42, sK[rest[j]], tv, tv, AR+42))
        k("v_mul_u32_u24 v%d, 5, v%d\nv_sub_u32 v%d, v%d, v%d" % (tj, tj, tj, vL, tj))
        k("s_lshr_b32 s%d, s2, 3\ns_and_b32 s%d, s%d, 7\ns_mul_i32 s%d, s%d, 640\ns_add_u32 s%d, s%d, s%d" % (sT0, sT0, sT0, sT0, sT0, sT0, sT0, sBb[1]))
        k("v_mul_u32_u24 v%d, 5120, v%d\nv_lshl_add_u32 v%d, v%d, 7, v%d" % (tv, tv, tv, tj, tv))
        k("buffer_load_dword v%d, v%d, %s, s%d offen%s" % (vFl, tv, sq(SWS), sT0, LD2)); vm.append(("T", 0))
    stamp(k, 3)
    k("s_add_u32 s40, s%d, s%d\ns_addc_u32 s41, s%d, 0" % (pWs, sSh, pWs+1))
    def flag_load(g):
        return "s_load_dwordx4 s[52:55], s[40:41], %d glc" % (g*16)
    def flag_check(g):
        lab = "L_k1_fc%d" % g
        k("s_mov_b32 s%d, 0\ns_branch %s_c" % (sT3, lab))
        k("%s_r:" % lab)
        k("s_sleep %d\n%s" % (opt("psl", 2), flag_load(g)))
        k("%s_c:" % lab)
        k("s_waitcnt lgkmcnt(0)")
        k("s_xor_b32 s52, s52, s%d\ns_xor_b32 s53, s53, s%d\ns_xor_b32 s54, s54, s%d\ns_xor_b32 s55, s55, s%d" % (sNon, sNon, sNon, sNon))
        k("s_add_u32 s%d, s%d, 1\ns_or_b64 s[52:53], s[52:53], s[54:55]\ns_cbranch_scc0 %s_d" % (sT3, sT3, lab))
        k("s_cmp_lt_u32 s%d, 0x100000\ns_cbranch_scc1 %s_r" % (sT3, lab))
        k("%s_d:" % lab)
        if opt("p2t", 0): k("s_memrealtime s[100:101]\ns_waitcnt lgkmcnt(0)\nv_writelane_b32 v1, s100, %d\nv_writelane_b32 v1, s%d, %d" % (32+g, sT3, 40+g))
    if opt("pd", 0): k("s_waitcnt vmcnt(0)\ns_sleep %d" % opt("pd", 0))
    k(flag_load(fgrp[0]))
    flag_check(fgrp[0])
    stamp(k, 4)
    for s_ in range(NB):
        if s_ < (2 if XB else NA):
            for x in ldA(s_): k(x)
        if s_ >= NPRE:
            for x in ldB(streamed[s_], s_): k(x)
    LEAD = {4: opt("ld3", 1), 8: opt("ld1", 2), 12: opt("ld2_", 2)}
    chkpos = {g: g - 1 - LEAD[g] for g in LEAD}
    nextA = 2 if XB else NA
    if chkpos[4] == 0: k(flag_load(fgrp[4]))
    EARLY = opt("early", 1)
    R5 = range(5)
    GOH = [BR + 40]
    def red_addr():
        GO = GOH[0]
        o = []
        for f in range(1, 4):
            o.append("s_xor_b32 s%d, s%d, %d\ns_and_b32 s%d, s%d, 1\ns_mul_i32 s%d, s%d, 25600" % (sT2, sP, f, sT1, sT2, sT1, sT1))
            o.append("s_cmp_lt_u32 s%d, 2\ns_cselect_b32 s%d, %d, 0\ns_add_u32 s%d, s%d, s%d" % (sT2, sT0, 2*SL, sT1, sT1, sT0))
            o.append("v_add_u32 v%d, s%d, v%d" % (vA[f], sT1, vB0))
        o.append("s_mul_i32 s%d, s%d, %d\ns_add_u32 s%d, s%d, %d\nv_add_u32 v%d, s%d, v%d" % (sT1, sP, 80*TRP, sT1, sT1, TRB, vA[0], sT1, vB0))
        o.append("v_lshrrev_b32 v%d, 4, v%d" % (vFl, vB0))
        o.append("s_lshl_b32 s%d, s%d, 6\ns_lshl_b32 s%d, s%d, 2\ns_add_u32 s%d, s%d, s%d" % (sT0, sMI, sT1, sP, sT0, sT0, sT1))
        o.append("s_mul_i32 s%d, s%d, 2560\ns_mul_i32 s%d, s%d, 320\ns_add_u32 s%d, s%d, s%d" % (sT0, sT0, sT1, sNI, sT3, sT0, sT1))
        e_, r_, q_, t_ = GO, GO+5, GO+10, GO+15
        for it in R5: o.append("v_add_u32 v%d, %d, v%d" % (e_+it, it*64, vFl))
        for it in R5: o.append("v_mul_u32_u24 v%d, 205, v%d" % (r_+it, e_+it))
        for it in R5: o.append("v_lshrrev_b32 v%d, 12, v%d" % (r_+it, r_+it))
        for it in R5: o += ["v_mul_u32_u24 v%d, 20, v%d" % (q_+it, r_+it), "v_bfe_u32 v%d, v%d, 1, 2" % (t_+it, r_+it)]
        for it in R5: o.append("v_sub_u32 v%d, v%d, v%d" % (q_+it, e_+it, q_+it))
        for it in R5: o += ["v_xor_b32 v%d, v%d, v%d" % (q_+it, q_+it, t_+it), "v_lshrrev_b32 v%d, 2, v%d" % (t_+it, r_+it)]
        for it in R5: o.append("v_mad_u32_u24 v%d, v%d, 12, v%d" % (r_+it, t_+it, r_+it))
        for it in R5: o.append("v_mul_u32_u24 v%d, 2560, v%d" % (r_+it, r_+it))
        for it in R5: o.append("v_lshl_add_u32 v%d, v%d, 4, v%d" % (GO+it, q_+it, r_+it))
        return o
    deadB = []
    pend = []
    for s_ in range(NS):
        fill = pend; pend = []
        need = [("A", s_)] + ([("B", s_)] if s_ not in LS else [])
        CSM_ = opt("csm", 1)
        if (CSM_ & 1 and s_ == 0) or (CSM_ & 2 and 0 < s_ < opt("csn", 12)):
            lab = "L_k1_cs%d" % s_
            if s_ == 0: k("%s_r:\nds_read_b32 v%d, v%d" % (lab, vFl, vFa))
            else: k("s_branch %s_c\n%s_r:\ns_sleep 1\nds_read_b32 v%d, v%d\n%s_c:" % (lab, lab, vFl, vFa, lab))
            k("s_waitcnt lgkmcnt(0)\nv_readfirstlane_b32 s%d, v%d\ns_cmp_eq_u32 s%d, 0\ns_cbranch_scc1 %s_r" % (sT2, vFl, sT2, lab))
        if CSM_ & 2 and s_+1 < opt("csn", 12): fill = fill + ["ds_read_b32 v%d, v%d" % (vFl, vFa)]
        mf_ = []
        for f in range(4):
            for cb in range(5):
                c = AC + (f*5+cb)*4
                mf_.append("v_mfma_f32_16x16x32_bf16 %s, %s, %s, %s" % (vr(c, 4), vr(BR+bbuf[s_]*20+cb*4, 4), vr(AR+(s_ % NA)*16+f*4, 4), vr(c, 4) if s_ else "0"))
        if opt("ilv", 1):
            nf = sum(1 for x in fill if x.startswith("buffer_load"))
            k("s_waitcnt vmcnt(%d)%s" % (max(0, vwait(need)-nf), " lgkmcnt(0)" if s_ in LS else ""))
            if opt("p2t", 0): k("s_memrealtime s[100:101]")
            if s_ == NS-1 and opt("ovl", 1):
                assert not fill
                fill = ["s_nop 0"]*5 + ["ds_write_b128 v%d, %s offset:%d" % (vOut, vr(AC+(f*5+cb)*4, 4), f*5120+cb*64) for f in range(3) for cb in range(5)]
            if EARLY and s_ in (NS-3, NS-2):
                if s_ == NS-3:
                    cand = [b_ for b_ in deadB if BR + b_*20 >= AR + 100]
                    GOH[0] = BR + cand[0]*20
                    ra_ = red_addr()
                half = ra_[:36] if s_ == NS-3 else ra_[36:]
                interleave(k, mf_, fill + half, per=2)
            else: interleave(k, mf_, fill, per=1)
            if opt("p2t", 0): k("s_waitcnt lgkmcnt(0)\nv_writelane_b32 v1, s100, %d" % s_)
        else:
            for x in fill: k(x)
            k("s_waitcnt vmcnt(%d)%s" % (vwait(need), " lgkmcnt(0)" if s_ in LS else ""))
            if opt("p2t", 0): k("s_memrealtime s[100:101]")
            for x in mf_: k(x)
            if opt("p2t", 0): k("s_waitcnt lgkmcnt(0)\nv_writelane_b32 v1, s100, %d" % s_)
        for g_ in chkpos:
            if chkpos[g_] == s_:
                if fgrp[g_] == 2: stamp(k, 0)
                flag_check(fgrp[g_])
                if fgrp[g_] == 2: stamp(k, 7)
        while nextA < NS and nextA <= s_ + NA and all(not (g_ <= nextA and chkpos[g_] > s_) for g_ in chkpos):
            pend += ldA(nextA); nextA += 1
        fb = bbuf[s_]
        if fb == -1: pass
        elif s_+2 in LS:
            bbuf[s_+2] = fb
            j = LS.index(s_+2)
            pend.append("s_waitcnt vmcnt(%d)" % vwait([("L", s_+2)]))
            for f in range(5): pend.append("ds_read_b128 %s, v%d offset:%d" % (vr(BR+fb*20+f*4, 4), vLd, j*5120+f*1024))
        elif nextB < len(streamed):
            bbuf[streamed[nextB]] = fb
            pend += ldB(streamed[nextB], fb); nextB += 1
        else: deadB.append(fb)
        for g_ in chkpos:
            if chkpos[g_] == s_+1: pend.insert(0, flag_load(fgrp[g_]))
    stamp(k, 5)
    OSC = ["", " sc1", " nt", " sc0 sc1"][opt("osc", 1)]
    wr_last = ["ds_write_b128 v%d, %s offset:%d" % (vOut, vr(AC+(f*5+cb)*4, 4), f*5120+cb*64) for f in ((3,) if opt("ovl", 1) else (1, 2, 3, 0)) for cb in range(5)]
    for x in wr_last: k(x)
    if not EARLY:
        for x in red_addr(): k(x)
    k("s_waitcnt lgkmcnt(0)\ns_barrier")
    for it in R5:
        for f in range(5):
            a_, off = (vA[f], f*5120) if f < 4 else (vLd, 0)
            if f == 0: off = 0
            k("ds_read_b128 %s, v%d offset:%d" % (vr(AR+(it*5+f)*4, 4), a_, off+it*1024))
        if it == 2: k("s_waitcnt lgkmcnt(5)")
    for it in R5:
        k("s_waitcnt lgkmcnt(%d)" % min(15, 20-5*it))
        q = AR+it*20
        for h in range(0, 4, 2):
            k("v_pk_add_f32 %s, %s, %s\nv_pk_add_f32 %s, %s, %s" % (vr(q+h, 2), vr(q+h, 2), vr(q+4+h, 2), vr(q+8+h, 2), vr(q+8+h, 2), vr(q+12+h, 2)))
        for h in range(0, 4, 2): k("v_pk_add_f32 %s, %s, %s" % (vr(q+h, 2), vr(q+h, 2), vr(q+16+h, 2)))
        for h in range(0, 4, 2): k("v_pk_add_f32 %s, %s, %s" % (vr(q+h, 2), vr(q+h, 2), vr(q+8+h, 2)))
        k("buffer_store_dwordx4 %s, v%d, %s, s%d offen%s" % (vr(q, 4), GOH[0]+it, sq(SO), sT3, OSC))
    stamp(k, 6)
    if opt("p2t", 0):
        k("s_lshl_b32 s83, s2, 11\ns_add_u32 s83, s83, 0x%x\nv_lshl_add_u32 v12, v0, 2, s83" % (STAMP_OFF + 0x40000))
        k("global_store_dword v12, v1, %s" % sp(pWs))
    stamp_out(k, 0, 8, pWs, 76)
    k("s_endpgm")

    k("L_k1_C:")
    decode()
    k("v_mov_b32 v%d, 0\nv_lshlrev_b32 v%d, 2, v%d\nv_add_u32 v%d, %d, v%d\nds_write2_b32 v%d, v%d, v%d offset1:16" % (vT[1], vT[2], vM, vT[2], FLG, vT[2], vT[2], vT[1], vT[1]))
    k("s_lshl_b32 s%d, s%d, 8\ns_add_u32 s%d, s%d, %d\nv_mov_b32 v%d, s%d\nds_write_b32 v%d, v%d\ns_mov_b32 m0, s%d" % (sT0, sW, sT0, sT0, DNA, vT[2], sT0, vT[2], vT[1], sT0))
    tab_base("C", 56)
    k("s_waitcnt lgkmcnt(0)\ns_barrier")
    k("s_setprio %d" % (2 if opt("dprio", 1) else 3))
    k("s_mov_b64 s[48:49], %s\ns_mov_b64 s[50:51], %s\ns_mov_b64 s[52:53], %s" % (sp(pX), sp(pD), sp(pWs)))
    aX = [12, 13]; aW = [14, 15, 16, 17]
    XS = [20, 36]
    WR = 52
    ACC = 84
    k("v_lshrrev_b32 v%d, 1, v%d\nv_xor_b32 v%d, v%d, v%d\nv_lshlrev_b32 v%d, 4, v%d" % (vT[0], vM, vT[0], vT[0], vG, vT[0], vT[0]))
    k("v_lshl_add_u32 v%d, v%d, 7, v%d" % (vT[5], vM, vT[0]))
    k("s_lshl_b32 s%d, s%d, 13" % (sT0, sMH))
    k("v_add_u32 v%d, s%d, v%d\nv_xor_b32 v%d, 64, v%d" % (aX[0], sT0, vT[5], aX[1], aX[0]))
    k("v_lshrrev_b32 v%d, 2, v%d\nv_lshl_add_u32 v%d, v%d, 3, v%d\nv_lshlrev_b32 v%d, 7, v%d" % (vT[0], vM, vT[0], vG, vT[0], vT[0], vT[0]))
    k("v_and_b32 v%d, 1, v%d\nv_lshlrev_b32 v%d, 1, v%d\nv_lshrrev_b32 v%d, 3, v%d\nv_or_b32 v%d, v%d, v%d" % (vT[1], vG, vT[1], vT[1], vT[2], vM, vT[1], vT[1], vT[2]))
    k("v_lshl_add_u32 v%d, v%d, 5, v%d" % (vT[0], vT[1], vT[0]))
    k("v_and_b32 v%d, 3, v%d\nv_lshl_add_u32 v%d, v%d, 3, v%d\nv_add_u32 v%d, 16384, v%d" % (vT[1], vM, vT[0], vT[1], vT[0], vT[0], vT[0]))
    k("s_lshl_b32 s%d, s%d, 1\ns_add_u32 s%d, s%d, s%d" % (sC, sI, sC, sC, sMH))
    k("s_mov_b32 s%d, 0\ns_mov_b32 s%d, 0" % (sIt, sRd))
    k("s_cmp_eq_u32 s%d, 1\ns_cbranch_scc1 L_k1_CB" % sTY)

    def c_loop(tag, frags, R, D, WR, addr_regs, post):
        n = len(frags); N = 2*n
        assert N % R == 0
        def wreg(p): return WR + (p % R)*4
        def rdW(p): return frags[p % n][0]((p % N)//n, wreg(p))
        def rdX(h): return ["ds_read_b128 %s, v%d offset:%d" % (vr(XS[h]+4*b, 4), aX[h], b*2048) for b in range(4)]
        def mf(p): return [frags[p % n][1](b, XS[(p % N)//n]+4*b, wreg(p)) for b in range(4)]
        adv = ["s_mov_b32 s%d, %d\ns_add_u32 s%d, s%d, 1\ns_cmp_eq_u32 s%d, 3\ns_cselect_b32 s%d, 0, s%d\ns_cselect_b32 s%d, %d, s%d" % (sDelta, SL, sRd, sRd, sRd, sRd, sRd, sDelta, (-2*SL) & 0xffffffff, sDelta)]
        adv += ["v_add_u32 v%d, s%d, v%d" % (r, sDelta, r) for r in addr_regs]
        vFl, vFa, vDa, vDv = 18, vT[1], vT[2], vT[3]
        sF = sA
        import re as _re
        FLS = N - opt("fl", 3)
        def build():
            mfs = []; gaps = [[] for _ in range(4*N)]
            for j in range(N):
                loads = [("ld", x, ("W", j)) for x in rdW(j)]
                if j == 0: loads = [("ld", x, ("X0", b)) for b, x in enumerate(rdX(0)[:2])] + loads
                if j == 1: loads = [("ld", x, ("X0", b+2)) for b, x in enumerate(rdX(0)[2:])] + loads
                if D <= j < D+4: loads += [("ld", rdX(1)[j-D], ("X1", j-D))]
                if j == FLS: loads += [("ld", "ds_read_b64 %s, v%d " % (vr(vFl, 2), vFa), ("F", 0))]
                p = j - D
                ms = mf(p % N)
                for b in range(4):
                    need = [("W", p % N)] + [("X%d" % ((p % N)//n), bb) for bb in range(4)]
                    mfs.append(("mf", ms[b], (need, p < 0)))
                    if b < 3:
                        if loads: gaps[j*4+b].append(loads.pop(0))
                    else: gaps[j*4+b] += loads
            def place(e, lo, hi=4*N-1):
                for cap in (0, 1, 2, 3):
                    for g in range(lo, hi+1):
                        if len(gaps[g]) + (1 if g % 4 == 3 else 0) <= cap:
                            gaps[g].append(e); return g
                raise Exception
            g = 4*D
            def place_s(txt, lo):
                for g in range(lo, 4*N):
                    if len(gaps[g]) + (1 if g % 4 == 3 else 0) <= 1:
                        gaps[g].append(("x", txt, None)); return g
            for txt in ("s_add_u32 s%d, s%d, 1" % (sRd, sRd), "s_cmp_eq_u32 s%d, 3" % sRd, "s_cselect_b32 s%d, s14, s15" % sDelta, "s_cselect_b32 s%d, 0, s%d" % (sRd, sRd), "s_add_u32 s%d, s%d, 1" % (sIt, sIt)):
                g = place_s(txt, g) + 1
            gd = g
            mid = max(n-1, D+3)
            DL = opt("dl", 2)
            fl_ = "global_load_lds_dword v%d, s[56:57]" % vDv
            place_s("v_add_u32 v%d, 4, v%d" % (vDv, vDv), gd)
            gm = place(("use", fl_, ([("W", n-1), ("X1", 3)], False)), 4*(mid+DL)+2)
            place(("x", "v_add_u32 v%d, 4, v%d" % (vDv, vDv), None), gm+1, 4*N-5)
            place(("use", fl_, ([("W", N-1)], True)), 4*(DL-1)+2, 4*D-1)
            g1 = place(("use", "v_min_u32 v%d, v%d, v%d" % (vFl, vFl, vFl+1), ([("F", 0)], False)), 4*(N-2)+2, 4*N-4)
            gaps[g1+1].append(("x", "v_readfirstlane_b32 s%d, v%d" % (sF, vFl), None))
            gaps[4*N-2].append(("x", "s_cmp_gt_u32 s%d, s%d" % (sF, sIt), None))
            for r in addr_regs:
                last = max(g for g in range(4*N) for x in gaps[g] if x[0] == "ld" and _re.search(r", v%d " % r, x[1]+" "))
                place(("x", "v_add_u32 v%d, s%d, v%d" % (r, sDelta, r), None), min(max(last+1, gd), 4*N-1))
            seq = []
            for m_, gp in zip(mfs, gaps): seq += [m_] + gp
            return seq
        def emit(seq, prev):
            issued = [(t, True) for t in prev]
            cur = 99
            for kind, text, tg in seq:
                if kind == "ld": issued.append((tg, False)); cur += 1
                elif kind == "lab": cur = 99
                elif kind in ("mf", "use"):
                    w = 15
                    for t in tg[0]:
                        idx = max(i for i, x in enumerate(issued) if x == (t, tg[1]))
                        w = min(w, len(issued)-1-idx)
                    if w < cur:
                        k("s_waitcnt lgkmcnt(%d)" % w); cur = w
                k(text)
        L = "L_k1_cl" + tag
        k("v_mov_b32 v%d, %d\nv_mov_b32 v%d, 0\ns_mov_b32 s14, %d\ns_mov_b32 s15, %d" % (vFa, FLG+16, vDv, (-2*SL) & 0xffffffff, SL))
        s2 = build()
        allld = [x[2] for x in s2 if x[0] == "ld"]
        idx2 = next(i for i, x in enumerate(s2) if x[0] == "mf" and not x[2][1])
        if opt("clk", 0): k("s_mov_b32 s98, 0")
        k("%s_sp:" % L)
        if opt("clk", 0): k("s_cmp_ge_u32 s%d, 6\ns_addc_u32 s98, s98, 0" % sIt)
        k("ds_read_b64 %s, v%d\ns_waitcnt lgkmcnt(0)\nv_min_u32 v%d, v%d, v%d\nv_readfirstlane_b32 s%d, v%d" % (vr(vFl, 2), vFa, vFl, vFl, vFl+1, sF, vFl))
        k("s_cmp_gt_u32 s%d, s%d\ns_cbranch_scc0 %s_sp" % (sF, sIt, L))
        k("s_cmp_lg_u32 s%d, 0\ns_cbranch_scc1 %s" % (sIt, L))
        stamp(k, 5)
        for x in s2[:idx2]:
            if x[0] == "ld": k(x[1])
        k("s_branch %s_mid" % L)
        k(".p2align 6")
        k("%s:" % L)
        trace(sIt, 4, 1)
        if opt("clk", 0):
            k("s_cmp_lg_u32 s%d, 5\ns_cbranch_scc1 %s_nc\ns_memrealtime s[84:85]\ns_memtime s[90:91]\n%s_nc:" % (sIt, L, L))
        s2 = s2[:idx2] + [("lab", "%s_mid:" % L, None)] + s2[idx2:]
        emit(s2, allld)
        if TRACE:
            trace(sIt, 4, 0)
            k("s_cmp_gt_u32 s%d, s%d" % (sF, sIt))
        k("s_cbranch_scc1 %s" % L)
        k("s_cmp_lt_u32 s%d, 10\ns_cbranch_scc1 %s_sp" % (sIt, L))
        if opt("cprio", 3) != 3: k("s_setprio %d" % opt("cprio", 3))
        if opt("clk", 0): k("s_memrealtime s[94:95]\ns_memtime s[96:97]")
        k("ds_read_b64 %s, v%d offset:8" % (vr(vFl, 2), vFa))
        k("s_waitcnt lgkmcnt(6)")
        for x in mf(N-D): k(x)
        k("s_waitcnt lgkmcnt(0)\nglobal_load_lds_dword v%d, s[56:57]" % vDv)
        k("s_branch %s_ec" % L)
        k("%s_es:" % L)
        k("ds_read_b64 %s, v%d offset:8" % (vr(vFl, 2), vFa))
        k("%s_ec:" % L)
        k("s_waitcnt lgkmcnt(0)")
        k("v_min_u32 v%d, v%d, v%d\nv_readfirstlane_b32 s%d, v%d" % (vFl, vFl, vFl+1, sNon, vFl))
        k("s_cmp_eq_u32 s%d, 0\ns_cbranch_scc1 %s_es" % (sNon, L))
        tail = []
        for p in range(N-D+1, N): tail += mf(p)
        interleave(k, tail, post(), lead=2, per=1)

    c0 = -2*math.sqrt(2/math.pi)*LOG2E
    def ffn_epilogue(ACCF, ncb, S4, Mb, RSb, Sb, T, O, K0, vSt, blocks, defer=None):
        for bi, (b, pr_) in enumerate(blocks):
            sel = b & 1
            bc = lambda base: vr(base + (b & ~1), 2)
            os0 = " op_sel:[%d,0,0] op_sel_hi:[%d,1,1]" % (sel, sel)
            items = [(cb, hh) for cb in (2*pr_, 2*pr_+1) for hh in range(2)]
            G = lambda cb, hh: ACCF + (cb*4+b)*4 + 2*hh
            U = lambda cb, hh: ACCF + ((ncb+cb)*4+b)*4 + 2*hh
            Tm = lambda cb, hh: T + (cb & 1)*4 + 2*hh
            for cb, hh in items: k("v_pk_fma_f32 %s, %s, %s, %s%s neg_lo:[1,0,0] neg_hi:[1,0,0]" % (vr(G(cb,hh),2), bc(Mb), vr(S4+cb*4+2*hh,2), vr(G(cb,hh),2), os0))
            for cb, hh in items: k("v_pk_mul_f32 %s, %s, %s op_sel:[%d,0] op_sel_hi:[%d,1]" % (vr(G(cb,hh),2), bc(RSb), vr(G(cb,hh),2), sel, sel))
            for cb, hh in items: k("v_pk_mul_f32 %s, %s, %s" % (vr(Tm(cb,hh),2), vr(G(cb,hh),2), vr(G(cb,hh),2)))
            for cb, hh in items: k("v_pk_fma_f32 %s, %s, %s, %s op_sel:[0,0,1] op_sel_hi:[1,0,1]" % (vr(Tm(cb,hh),2), vr(Tm(cb,hh),2), vr(K0,2), vr(K0,2)))
            for cb, hh in items: k("v_pk_mul_f32 %s, %s, %s" % (vr(Tm(cb,hh),2), vr(Tm(cb,hh),2), vr(G(cb,hh),2)))
            for cb, hh in items:
                k("v_exp_f32 v%d, v%d\nv_exp_f32 v%d, v%d" % (Tm(cb,hh), Tm(cb,hh), Tm(cb,hh)+1, Tm(cb,hh)+1))
                k("v_pk_fma_f32 %s, %s, %s, %s%s neg_lo:[1,0,0] neg_hi:[1,0,0]" % (vr(U(cb,hh),2), bc(Mb), vr(S4+(ncb+cb)*4+2*hh,2), vr(U(cb,hh),2), os0))
            for cb, hh in items: k("v_pk_fma_f32 %s, %s, %s, %s op_sel:[0,%d,%d] op_sel_hi:[1,%d,%d]" % (vr(Tm(cb,hh),2), vr(Tm(cb,hh),2), bc(Sb), bc(Sb), sel, sel, sel, sel))
            for cb, hh in items:
                k("v_rcp_f32 v%d, v%d\nv_rcp_f32 v%d, v%d" % (Tm(cb,hh), Tm(cb,hh), Tm(cb,hh)+1, Tm(cb,hh)+1))
                k("v_pk_mul_f32 %s, %s, %s" % (vr(G(cb,hh),2), vr(G(cb,hh),2), vr(U(cb,hh),2)))
            for cb, hh in items: k("v_pk_mul_f32 %s, %s, %s" % (vr(G(cb,hh),2), vr(G(cb,hh),2), vr(Tm(cb,hh),2)))
            Ob = O + (bi & 1)*4 if defer is None else O[bi]
            for j_, (cb, hh) in enumerate(items): k("v_cvt_pk_bf16_f32 v%d, v%d, v%d" % (Ob+j_, G(cb,hh), G(cb,hh)+1))
            if pr_: k("s_add_u32 s%d, s%d, 4096" % (sT0, sKS))
            st_ = "buffer_store_dwordx4 %s, v%d, %s, s%d offen offset:%d%s" % (vr(Ob, 4), vSt, sq(SWS), sT0 if pr_ else sKS, b*1024, S1)
            if defer is None: k(st_)
            else: defer.append(st_)

    def a2_flag(group, nwait, va, vv):
        k("s_lshl_b32 s%d, s%d, 2\ns_lshr_b32 s%d, s%d, 1\ns_add_u32 s%d, s%d, s%d\ns_mul_i32 s%d, s%d, %d" % (sT0, sC, sT1, sJJ, sT0, sT0, sT1, sT0, sT0, FLS_))
        k("s_and_b32 s%d, s%d, 1\ns_lshl_b32 s%d, s%d, 1\ns_add_u32 s%d, s%d, s%d\ns_mul_i32 s%d, s%d, %d\ns_add_u32 s%d, s%d, s%d\ns_add_u32 s%d, s%d, 0x%x" % (sT1, sJJ, sT1, sT1, sT1, sT1, sNH, sT1, sT1, FSP, sT0, sT0, sT1, sT0, sT0, FL_OFF + group*FGS))
        k("v_mov_b32 v%d, s%d\nv_mov_b32 v%d, s%d" % (va, sT0, vv, sNon))
        k("s_waitcnt vmcnt(%d)\ns_mov_b64 exec, 1" % nwait)
        k("buffer_store_dword v%d, v%d, %s, 0 offen%s\ns_mov_b64 exec, -1" % (vv, va, sq(SWS), SC))

    CSM = opt("csm", 1)
    def cs_set(val, va, vv):
        k("s_lshl_b32 s%d, s%d, 2\ns_add_u32 s%d, s%d, %d\nv_mov_b32 v%d, s%d\nv_mov_b32 v%d, %d\nds_write_b32 v%d, v%d" % (sT0, sW, sT0, sT0, FLG+64, va, sT0, vv, val, va, vv))
    def base_loads(R):
        k("s_and_b32 s%d, s2, 7\ns_lshr_b32 s%d, s2, 3" % (sT0, sT1))
        p2map(sT3, sT0)
        k("s_mul_i32 s%d, s%d, 160" % (sT0, sT0))
        k("s_lshl_b32 s%d, s%d, 6\ns_lshl_b32 s%d, s%d, 2\ns_add_u32 s%d, s%d, s%d" % (sT3, sT3, sT1, sW, sT3, sT3, sT1))
        R5 = range(5)
        e_, r_, q_, t_ = R+45, R+30, R+35, R+40
        for it in R5: k("v_add_u32 v%d, %d, v%d" % (e_+it, it*64, vL))
        for it in R5: k("v_mul_u32_u24 v%d, 205, v%d" % (r_+it, e_+it))
        for it in R5: k("v_lshrrev_b32 v%d, 12, v%d" % (r_+it, r_+it))
        for it in R5: k("v_mul_u32_u24 v%d, 20, v%d\nv_bfe_u32 v%d, v%d, 1, 2" % (q_+it, r_+it, t_+it, r_+it))
        for it in R5: k("v_sub_u32 v%d, v%d, v%d" % (q_+it, e_+it, q_+it))
        for it in R5: k("v_xor_b32 v%d, v%d, v%d\nv_lshrrev_b32 v%d, 2, v%d" % (q_+it, q_+it, t_+it, t_+it, r_+it))
        for it in R5: k("v_mad_u32_u24 v%d, v%d, 12, v%d\nv_lshl_add_u32 v%d, v%d, 3, s%d" % (r_+it, t_+it, r_+it, q_+it, q_+it, sT0))
        for it in R5: k("v_add_u32 v%d, s%d, v%d" % (r_+it, sT3, r_+it))
        for it in R5: k("v_mul_u32_u24 v%d, 1280, v%d\nv_lshlrev_b32 v%d, 3, v%d" % (t_+it, r_+it, r_+it, r_+it))
        for it in R5: k("v_add_u32 v%d, v%d, v%d" % (t_+it, t_+it, q_+it))
        k("s_mov_b32 s%d, 0x%x" % (sKx, RST_OFF))
        for it in R5:
            k("global_load_dwordx2 %s, v%d, %s" % (vr(R+2*it, 2), t_+it, sp(48)))
            k("global_load_dwordx2 %s, v%d, %s" % (vr(R+10+2*it, 2), q_+it, sp(50)))
        k("s_mov_b32 s%d, 0\nL_k1_bt:" % sT3)
        for it in R5: k("buffer_load_dwordx2 %s, v%d, %s, s%d offen%s" % (vr(R+20+2*it, 2), r_+it, sq(SWS), sKx, SC))
    def base_compute(R):
        k("s_setprio 0")
        X4, D4, T4 = R+52, R+72, R+92
        k("s_waitcnt vmcnt(0)\nv_xor_b32 v%d, s%d, v%d" % (T4, sNon, R+21))
        for it in range(1, 5): k("v_xor_b32 v%d, s%d, v%d\nv_or_b32 v%d, v%d, v%d" % (T4+1, sNon, R+21+2*it, T4, T4, T4+1))
        k("v_cmp_ne_u32 vcc, 0, v%d\ns_add_u32 s%d, s%d, 1\ns_cbranch_vccz L_k1_bto" % (T4, sT3, sT3))
        k("s_sleep 8\ns_cmp_lt_u32 s%d, 0x40000\ns_cbranch_scc1 L_k1_bt\nL_k1_bto:" % sT3)
        k("s_mul_i32 s%d, s%d, %d\ns_add_u32 s%d, s%d, %d\nv_lshl_add_u32 v%d, v%d, 4, s%d\nv_mov_b32 v%d, %d" % (sT0, sW, 80*TRP, sT0, sT0, TRB, R+50, vL, sT0, R+51, DNA))
        wait_done("L_k1_bw%d" % R, "16", R+51, R+44)
        for it in range(5): k("v_and_b32 v%d, s%d, v%d\nv_lshlrev_b32 v%d, 16, v%d" % (R+21+2*it, sMASK, R+20+2*it, R+20+2*it, R+20+2*it))
        for it in range(5): k("v_rcp_f32 v%d, v%d" % (R+21+2*it, R+21+2*it))
        for d in range(10): k("v_lshlrev_b32 v%d, 16, v%d\nv_and_b32 v%d, s%d, v%d\nv_lshlrev_b32 v%d, 16, v%d\nv_and_b32 v%d, s%d, v%d" % (X4+2*d, R+d, X4+2*d+1, sMASK, R+d, D4+2*d, R+10+d, D4+2*d+1, sMASK, R+10+d))
        def rnd():
            if not opt("bexact", 1): return
            for h in range(10): k("v_cvt_pk_bf16_f32 v%d, v%d, v%d" % (R+30+h, T4+2*h, T4+2*h+1))
            for h in range(10): k("v_lshlrev_b32 v%d, 16, v%d\nv_and_b32 v%d, s%d, v%d" % (T4+2*h, R+30+h, T4+2*h+1, sMASK, R+30+h))
        for r in range(20): k("v_sub_f32 v%d, v%d, v%d" % (T4+r, X4+r, R+20+2*(r >> 2)))
        rnd()
        for r in range(20): k("v_mul_f32 v%d, v%d, v%d" % (T4+r, T4+r, R+21+2*(r >> 2)))
        rnd()
        for r in range(20): k("v_mul_f32 v%d, v%d, v%d" % (T4+r, T4+r, D4+r))
        rnd()
        for r in range(20): k("v_add_f32 v%d, v%d, v%d" % (T4+r, T4+r, X4+r))
        for it in range(5): k("ds_write_b128 v%d, %s offset:%d" % (R+50, vr(T4+4*it, 4), it*1024))
        k("s_waitcnt lgkmcnt(0)")

    def ffn_frag(ACCF, idx, areg, gu):
        rd = lambda h, reg: ["ds_read_b64_tr_b16 %s, v%d offset:%d" % (vr(reg+2*jx, 2), areg, h*4096+jx*512+gu*8192) for jx in range(2)]
        mf = lambda b, x, w: "v_mfma_f32_16x16x32_bf16 %s, %s, %s, %s" % (vr(ACCF+(idx*4+b)*4, 4), vr(w, 4), vr(x, 4), vr(ACCF+(idx*4+b)*4, 4))
        return (rd, mf)

    k("s_lshl_b32 s%d, s%d, 14" % (sT0, sNH))
    k("v_add_u32 v%d, s%d, v%d" % (aW[0], sT0, vT[0]))
    for c in range(1, 4): k("v_xor_b32 v%d, %d, v%d" % (aW[c], 32*c, aW[0]))
    k("s_lshr_b32 s%d, s%d, 5\ns_lshl_b32 s%d, s%d, 1\ns_add_u32 s%d, s%d, s%d\ns_mul_i32 s%d, s%d, 88\ns_add_u32 s%d, s%d, s%d\ns_lshl_b32 s%d, s%d, 12" % (sT0, sCol, sT1, sNH, sT0, sT0, sT1, sT1, sC, sT0, sT0, sT1, sKS, sT0))
    for r in range(0, 128, 2): k("v_mov_b64 v[%d:%d], 0" % (ACC+r, ACC+r+1))
    srd(k, SWS, pWs, WS_NREC)
    E = 212
    S4 = E; Mb, RSb, Sb = XS[0], XS[0]+4, XS[0]+8; K0 = XS[0]+12
    def postA():
        o = ["s_lshl_b32 s%d, s%d, 9\ns_add_u32 s%d, s%d, %d\nv_lshl_add_u32 v%d, v%d, 4, s%d" % (sT0, sNH, sT0, sT0, SFF, vT[1], vG, sT0),
             "s_mul_i32 s%d, s%d, 768\ns_add_u32 s%d, s%d, %d\nv_lshl_add_u32 v%d, v%d, 2, s%d" % (sT0, sMH, sT0, sT0, STAT_M, vT[2], vM, sT0)]
        for b in range(0, 4, 2):
            for a, off in ((Mb, 0), (RSb, 64), (Sb, 128)):
                o.append("ds_read2_b32 %s, v%d offset0:%d offset1:%d" % (vr(a+b, 2), vT[2], off+b*16, off+b*16+16))
        for j in range(8): o.append("ds_read_b128 %s, v%d offset:%d" % (vr(S4+4*j, 4), vT[1], j*64))
        o += ["v_lshlrev_b32 v%d, 4, v%d" % (vT[3], vL), "v_mov_b32 v%d, %s\nv_mov_b32 v%d, %s" % (K0, f32(c0*0.044715), K0+1, f32(c0))]
        return o
    fr = []
    for cb in range(4):
        for gu in range(2): fr.append(ffn_frag(ACC, gu*4+cb, aW[cb], gu))
    c_loop("A", fr, 8, opt("da", 5), WR, aX + aW, postA)
    stamp(k, 1)
    k("s_waitcnt lgkmcnt(0)")
    blk = [(b, p) for p in range(2) for b in range(4)]
    HF = opt("hf", 6)
    ffn_epilogue(ACC, 4, S4, Mb, RSb, Sb, E+32, XS[1], K0, vT[3], blk[:HF])
    a2_flag(0, HF-4, vT[0], vT[1])
    ffn_epilogue(ACC, 4, S4, Mb, RSb, Sb, E+32, XS[1], K0, vT[3], blk[HF:])
    stamp(k, 2)
    cs_set(1, vT[0], vT[1])
    a2_flag(3, 0, vT[0], vT[1])
    stamp(k, 4)
    k("s_branch L_k1_base")

    k("L_k1_CB:")
    WRB = 52
    ACCF = 76
    ACCS = 140
    ca = Alloc(220)
    cLr = ca(5); cMu = ca(5); cKk = ca(5); c16r = ca(5); c16k = ca(5); cKr = ca(10, 2)
    assert ca.n <= (255 if TRACE else 256) + 1
    k("s_lshl_b32 s%d, s%d, 6" % (sT0, sNH))
    k("v_xor_b32 v%d, s%d, v%d\nv_xor_b32 v%d, 32, v%d" % (aW[0], sT0, vT[0], aW[1], aW[0]))
    k("s_mul_i32 s%d, s%d, 10240\ns_add_u32 s%d, s%d, 32768" % (sT0, sNH, sT0, sT0))
    k("v_add_u32 v%d, s%d, v%d\nv_xor_b32 v%d, 64, v%d" % (aW[2], sT0, vT[5], aW[3], aW[2]))
    k("s_lshr_b32 s%d, s%d, 5\ns_add_u32 s%d, s%d, s%d\ns_mul_i32 s%d, s%d, 88\ns_add_u32 s%d, s%d, s%d\ns_lshl_b32 s%d, s%d, 12" % (sT0, sCol, sT0, sT0, sNH, sT1, sC, sT0, sT0, sT1, sKS, sT0))
    srd(k, SWS, pWs, WS_NREC)
    for r in range(0, 144, 2): k("v_mov_b64 v[%d:%d], 0" % (ACCF+r, ACCF+r+1))
    k("s_lshl_b32 s%d, s%d, 1\ns_add_u32 s%d, s%d, s%d\ns_lshl_b32 s%d, s%d, 14\ns_add_u32 s%d, s%d, 0x%x" % (sT2, sJJ, sT2, sT2, sNH, sT0, sT2, sT0, sT0, CAR_OFF))
    srd(k, SP0, pWs, 16384, "s%d" % sT0)
    HST = 4224
    k("s_mul_i32 s%d, s%d, %d\ns_add_u32 s58, s%d, 0x%x\ns_lshr_b32 s%d, s%d, 2\ns_mul_i32 s%d, s%d, %d\ns_add_u32 s%d, s%d, s58\ns_add_u32 s54, s%d, s%d\ns_addc_u32 s55, s%d, 0" % (sT0, sT2, 8*HST, sT0, CH_OFF, sT0, sC, sT0, sT0, HST, sT0, sT0, pWs, sT0, pWs+1))
    k("s_lshl_b32 s%d, s%d, 2\ns_add_u32 s58, s58, s%d" % (sT0, sC, sT0))
    k("s_add_u32 s%d, s%d, 1\ns_lshr_b32 s%d, s%d, 1\ns_lshl_b32 s59, 1, s%d\ns_sub_u32 s59, s59, 1" % (sT0, sC, sT0, sT0, sT0))
    if not opt("hint", 1): k("s_mov_b32 s59, 0")
    sSS = [68, 69, 70, 71, 79]
    k("s_mul_i32 s%d, s%d, 88\ns_add_u32 s%d, s%d, 48\ns_lshl_b32 s%d, s%d, 12" % (sT3, sC, sT3, sT3, sT3, sT3))
    k("s_mul_i32 s%d, s%d, 10\ns_mul_i32 s%d, s%d, 5\ns_add_u32 s%d, s%d, s%d" % (sT2, sJJ, sT0, sNH, sT2, sT2, sT0))
    for q in range(5):
        k("s_add_u32 s%d, s%d, %d\ns_lshr_b32 s%d, s%d, 1\ns_lshl_b32 s%d, s%d, 12\ns_and_b32 s%d, s%d, 1\ns_lshl_b32 s%d, s%d, 9" % (sT0, sT2, q, sT1, sT0, sT1, sT1, sT0, sT0, sT0, sT0))
        k("s_add_u32 s%d, s%d, s%d\ns_add_u32 s%d, s%d, s%d" % (sT0, sT0, sT1, sSS[q], sT0, sT3))
    KR = [cKr+2*q for q in range(5)]
    for s in range(1, 4): k("v_cmp_eq_u32 %s, %d, v%d" % (sp(16+2*s), s, vG))
    def ssm_frag(q):
        rd = lambda h, reg: ["ds_read_b128 %s, v%d offset:%d" % (vr(reg, 4), aW[2+h], q*2048)]
        mf = lambda b, x, w: "v_mfma_f32_16x16x32_bf16 %s, %s, %s, %s" % (vr(ACCS+(q*4+b)*4, 4), vr(x, 4), vr(w, 4), vr(ACCS+(q*4+b)*4, 4))
        return (rd, mf)
    fr = [ssm_frag(q) for q in range(5)]
    for cb in range(2):
        for gu in range(2): fr.append(ffn_frag(ACCF, gu*2+cb, aW[cb], gu))
    M4 = XS[0]
    SQ = [247, 249, 251, 253, 245]
    def postB():
        o = ["s_mul_i32 s%d, s%d, 768\ns_add_u32 s%d, s%d, %d\nv_lshl_add_u32 v%d, v%d, 4, s%d\nv_lshl_add_u32 v%d, v%d, 2, s%d" % (sT0, sMH, sT0, sT0, STAT_M, vT[3], vG, sT0, vT[2], vM, sT0),
             "s_mul_i32 s%d, s%d, 3072\ns_add_u32 s%d, s%d, %d\nv_lshl_add_u32 v%d, v%d, 4, s%d" % (sT0, sNH, sT0, sT0, CT, vT[5], vM, sT0)]
        for b in range(4): o.append("ds_read_b128 %s, v%d offset:%d" % (vr(M4+4*b, 4), vT[3], b*64))
        for qd in (6, 7, 8, 0, 1, 2, 3, 4, 5):
            if qd == 8 and TRACE: o.append("ds_read_b96 %s, v%d offset:%d" % (vr(220+4*qd, 3), vT[5], qd*256))
            else: o.append("ds_read_b128 %s, v%d offset:%d" % (vr(220+4*qd, 4), vT[5], qd*256))
        return o
    c_loop("B", fr, 6, opt("db", 5), WRB, aX + aW, postB)
    stamp(k, 1)
    RS4 = XS[1]
    for b in range(4): k("ds_read_b128 %s, v%d offset:%d" % (vr(RS4+4*b, 4), vT[3], 256+b*64))
    Z = [[ACCS + (q*4 + (t >> 2))*4 + (t & 3) for t in range(16)] for q in range(5)]
    H = [[52+q, 57+q] for q in range(5)]
    k("s_waitcnt lgkmcnt(4)")
    for t in range(0, 16, 2):
        for q in range(5): k("v_pk_fma_f32 %s, %s, %s, %s op_sel:[0,1,0] op_sel_hi:[1,1,1] neg_lo:[1,0,0] neg_hi:[1,0,0]" % (vr(Z[q][t], 2), vr(M4+t, 2), vr(SQ[q]-1, 2), vr(Z[q][t], 2)))
    k("s_waitcnt lgkmcnt(0)")
    for t in range(16):
        if t % 2 == 0:
            for q in range(5): k("v_pk_mul_f32 %s, %s, %s" % (vr(Z[q][t], 2), vr(RS4+t, 2), vr(Z[q][t], 2)))
        if t >= 1:
            prev = [Z[q][0] if t == 1 else H[q][t & 1] for q in range(5)]
            cur = [H[q][(t+1) & 1] for q in range(5)]
            for q in range(5): k("v_fma_f32 v%d, v%d, v%d, v%d" % (cur[q], cLr+q, prev[q], Z[q][t]))
            for q in range(5): k("v_fmac_f32_dpp v%d, v%d, v%d%s" % (cur[q], prev[q], cMu+q, DPP))
    a_ = [H[q][0] for q in range(5)]; b_ = [H[q][1] for q in range(5)]
    c_ = r5(20)
    TOT = 28
    d_ = [TOT, TOT+1, TOT+2, TOT+4, TOT+5]
    MINE = [12, 13, 14, 15, 16]
    S4 = 36; Mb, RSb, Sb = 62, 66, 70; K0 = 74
    def ffn_inputs():
        k("s_lshl_b32 s%d, s%d, 9\ns_add_u32 s%d, s%d, %d\nv_lshl_add_u32 v%d, v%d, 4, s%d" % (sT0, sNH, sT0, sT0, SFF, vT[0], vG, sT0))
        for b in range(0, 4, 2):
            for a, off in ((Mb, 0), (RSb, 64), (Sb, 128)):
                k("ds_read2_b32 %s, v%d offset0:%d offset1:%d" % (vr(a+b, 2), vT[2], off+b*16, off+b*16+16))
        for j in range(4): k("ds_read_b128 %s, v%d offset:%d" % (vr(S4+4*j, 4), vT[0], j*64))
        k("v_mov_b32 v%d, %s\nv_mov_b32 v%d, %s" % (K0, f32(c0*0.044715), K0+1, f32(c0)))
    ffn_inputs()
    for q in range(5): k("v_mov_b32 v%d, v%d" % (b_[q], a_[q]))
    for q in range(5): k("v_permlane16_swap_b32 v%d, v%d" % (a_[q], b_[q]))
    for q in range(5): k("v_mov_b32 v%d, v%d\nv_mov_b32 v%d, v%d" % (c_[q], a_[q], d_[q], b_[q]))
    for q in range(5): k("v_permlane32_swap_b32 v%d, v%d\nv_permlane32_swap_b32 v%d, v%d" % (a_[q], c_[q], b_[q], d_[q]))
    seq = [a_, b_, c_, d_]
    k("v_mov_b32 v%d, s%d\nv_mov_b32 v%d, s%d" % (TOT+3, sNon, TOT+7, sNon))
    k("s_lshl_b32 s%d, s%d, 9" % (sT0, sC))
    k("v_lshlrev_b32 v%d, 4, v%d\nv_mul_u32_u24 v19, %d, v%d" % (vT[1], vM, HST, vM))
    for s in range(1, 4):
        for q in range(5): k("v_fmac_f32 v%d, v%d, v%d" % (seq[s][q], c16r+q, seq[s-1][q]))
        for q in range(5): k("v_fmac_f32_dpp v%d, v%d, v%d%s" % (seq[s][q], seq[s-1][q], c16k+q, DPP))
    k("s_mov_b64 exec, 0xffff")
    k("buffer_store_dwordx4 %s, v%d, %s, s%d offen%s" % (vr(TOT, 4), vT[1], sq(SP0), sT0, SC))
    k("buffer_store_dwordx4 %s, v%d, %s, s%d offen offset:256%s" % (vr(TOT+4, 4), vT[1], sq(SP0), sT0, SC))
    TH = opt("th", 0)
    if not TH and opt("hint", 1) == 1:
        k("s_mov_b64 exec, 0xff")
        k("buffer_store_dword v%d, v19, %s, s58 offen%s" % (TOT+3, sq(SWS), SC))
    k("s_mov_b64 exec, -1")
    k("s_mov_b32 s56, s%d\ns_mov_b32 s57, s%d" % (sNon, sNon))
    cs_set(1, 17, 18)
    k(";PRIO_ON")
    stamp(k, 2)
    for q in range(5): k("v_cndmask_b32 v%d, 0, v%d, %s" % (MINE[q], a_[q], sp(18)))
    for q in range(5): k("v_cndmask_b32 v%d, v%d, v%d, %s" % (MINE[q], MINE[q], b_[q], sp(20)))
    for q in range(5): k("v_cndmask_b32 v%d, v%d, v%d, %s" % (MINE[q], MINE[q], c_[q], sp(22)))
    k("v_lshlrev_b32 v%d, 4, v%d" % (vT[3], vL))
    k("s_waitcnt lgkmcnt(0)")
    dst_ = []
    DFR = opt("dfr", 1)
    HINT = opt("hint", 1)
    for b in range(4):
        if b == opt("hb", 3) and HINT == 1: k("s_load_dwordx16 s[16:31], s[54:55], 0 glc\ns_load_dwordx16 s[32:47], s[54:55], 64 glc")
        ffn_epilogue(ACCF, 2, S4, Mb, RSb, Sb, 20, [[236, 240, 52, 56][b]], K0, vT[3], [(b, 0)], defer=dst_)
        if not DFR: k(dst_.pop())
        if TH and b == TH-1:
            k("s_waitcnt vmcnt(0)\ns_mov_b64 exec, 0xff")
            k("buffer_store_dword v%d, v19, %s, s58 offen%s\ns_mov_b64 exec, -1" % (TOT+3, sq(SWS), SC))
    def hint_check():
        k("s_waitcnt lgkmcnt(0)\ns_mov_b32 s%d, 0" % sT0)
        for j in range(15, -1, -1): k("s_cmp_lg_u64 %s, s[56:57]\ns_addc_u32 s%d, s%d, s%d" % (sp(16+2*j), sT0, sT0, sT0))
        k("s_and_b32 s%d, s%d, s59" % (sT0, sT0))
    if not opt("clk", 0): stamp(k, 6)
    PRb = [ACCF + u*8 for u in range(8)]
    k("s_sub_u32 s%d, s%d, 1" % (sT0, sC))
    k("v_sub_u32 v%d, s%d, v%d\nv_lshlrev_b32 v%d, 9, v%d\nv_lshl_add_u32 v%d, v%d, 4, v%d" % (vT[1], sT0, vG, vT[1], vT[1], vT[1], vM, vT[1]))
    def pred_loads():
        for u in range(8):
            if u: k("v_subrev_u32 v%d, %d, v%d" % (vT[0], u*2048, vT[1]))
            a = vT[0] if u else vT[1]
            k("buffer_load_dwordx4 %s, v%d, %s, 0 offen%s" % (vr(PRb[u], 4), a, sq(SP0), PSC_))
            k("buffer_load_dwordx4 %s, v%d, %s, 0 offen offset:256%s" % (vr(PRb[u]+4, 4), a, sq(SP0), PSC_))
    if HINT == 1:
        hint_check()
        k("s_mov_b32 s%d, s%d\ns_cbranch_scc1 L_k1_npl" % (sDelta, sT0))
        pred_loads()
        k("s_branch L_k1_npl2")
        k("L_k1_npl:")
        k("s_load_dwordx16 s[16:31], s[54:55], 0 glc\ns_load_dwordx16 s[32:47], s[54:55], 64 glc")
        k("L_k1_npl2:")
    elif HINT == 0:
        k("s_mov_b32 s%d, 0" % sDelta)
        pred_loads()
    else: k("s_mov_b32 s%d, 1" % sDelta)
    for x in dst_: k(x)
    k("s_mul_i32 s%d, s%d, %d\ns_add_u32 s%d, s%d, %d" % (sKx, sW, 80*TRP, sKx, sKx, TRB))
    k("v_add_u32 v%d, s%d, v%d" % (vT[4], sKx, vT[3]))
    for qd in range(3): k("ds_read_b128 %s, v%d offset:%d" % (vr(32+4*qd, 4), vT[5], (9+qd)*256))
    L256r, L256k = r5(32), r5(37)
    free = [20+2*q for q in range(5)]
    for t in range(0, 16, 2):
        nf = []
        for q in range(5): k("v_pk_mul_f32 %s, %s, %s op_sel_hi:[0,1]" % (vr(free[q], 2), vr(KR[q], 2), vr(Z[q][t], 2)))
        for e in range(2):
            for q in range(5): k("v_fmac_f32_dpp v%d, v%d, v%d%s" % (free[q]+e, Z[q][t]+e, cKk+q, DPP))
        for q in range(5):
            nf.append(Z[q][t]); Z[q][t] = free[q]; Z[q][t+1] = free[q]+1
        free = nf
    t0, t1 = 30, 31
    k("s_mov_b32 s%d, 0\ns_cmp_eq_u32 s%d, 0\ns_cbranch_scc1 L_k1_early" % (sRd, sDelta))
    if HINT == 1:
        hint_check()
        k("s_cbranch_scc0 L_k1_hd")
    else: k("s_branch L_k1_hd")
    a2_flag(1, 0, 30, 31)
    if not opt("clk", 0): stamp(k, 7)
    k("s_mov_b32 s%d, 1\ns_mov_b32 s%d, 0" % (sRd, sT3))
    k("L_k1_hr:")
    k("s_load_dwordx16 s[16:31], s[54:55], 0 glc\ns_load_dwordx16 s[32:47], s[54:55], 64 glc")
    hint_check()
    k("s_cbranch_scc0 L_k1_hd\ns_sleep %d\ns_add_u32 s%d, s%d, 1\ns_cmp_lt_u32 s%d, 0x100000\ns_cbranch_scc1 L_k1_hr" % (opt("hsl", 3), sT3, sT3, sT3))
    k("L_k1_hd:")
    if opt("dbgp", 0): stamp(k, 6)
    pred_loads()
    if DFR:
        k("s_mov_b32 s%d, 0\ns_branch L_k1_poll" % sT3)
        k("L_k1_early:")
        k("s_mov_b32 s%d, 0\ns_waitcnt vmcnt(4)\ns_branch L_k1_poll2" % sT3)
    else:
        k("s_mov_b32 s%d, 0\ns_cmp_lg_u32 s%d, 0\ns_cbranch_scc1 L_k1_poll" % (sT3, sRd))
        k("L_k1_early:")
        a2_flag(1, 16, 30, 31)
        stamp(k, 7)
        k("s_mov_b32 s%d, 0\ns_waitcnt vmcnt(1)\ns_branch L_k1_poll2" % sT3)
    k("L_k1_poll:")
    k("s_waitcnt vmcnt(0)")
    k("L_k1_poll2:")
    k("s_mov_b32 s%d, 0" % sT2)
    for u in range(8):
        k("v_cmp_ne_u32 s[24:25], s%d, v%d\nv_cmp_ne_u32 s[26:27], s%d, v%d\nv_cmp_le_i32 vcc, %d, v%d" % (sNon, PRb[u]+3, sNon, PRb[u]+7, u*2048, vT[1]))
        k("s_or_b64 s[24:25], s[24:25], s[26:27]\ns_and_b64 s[24:25], s[24:25], vcc\ns_cbranch_scc0 L_k1_pu%d" % u)
        k("s_cmp_lg_u32 s%d, 0\ns_cbranch_scc1 L_k1_ps%d\ns_sleep %d\nL_k1_ps%d:" % (sT2, u, opt("csl", 8), u))
        k("s_mov_b32 s%d, 1" % sT2)
        k("v_subrev_u32 v%d, %d, v%d" % (vT[0], u*2048, vT[1]))
        k("s_mov_b64 exec, s[24:25]")
        k("buffer_load_dwordx4 %s, v%d, %s, 0 offen%s" % (vr(PRb[u], 4), vT[0], sq(SP0), PSC_))
        k("buffer_load_dwordx4 %s, v%d, %s, 0 offen offset:256%s" % (vr(PRb[u]+4, 4), vT[0], sq(SP0), PSC_))
        k("s_mov_b64 exec, -1")
        k("L_k1_pu%d:" % u)
    k("s_add_u32 s%d, s%d, 1\ns_cmp_eq_u32 s%d, 0\ns_cbranch_scc1 L_k1_polled" % (sT3, sT3, sT2))
    k("s_cmp_lt_u32 s%d, 0x40000\ns_cbranch_scc1 L_k1_poll" % sT3)
    k("L_k1_polled:")
    if opt("dbgp", 0): k("s_waitcnt lgkmcnt(0)\ns_lshl_b32 s94, s%d, 8\ns_cmp_eq_u32 s%d, 0\ns_cselect_b32 s95, 1, 0\ns_or_b32 s94, s94, s95\ns_lshl_b32 s95, s%d, 1\ns_or_b32 s94, s94, s95" % (sT3, sDelta, sRd))
    if CSM & 2: cs_set(0, 17, 18)
    if not opt("clk", 0): stamp(k, 3)
    pr = lambda u, q: PRb[u]+(q if q < 3 else q+1)
    k("s_waitcnt lgkmcnt(0)")
    for u in range(6, -1, -1):
        for q in range(5): k("v_fmac_f32 v%d, v%d, v%d" % (pr(u, q), L256r[q], pr(u+1, q)))
        for q in range(5): k("v_fmac_f32_dpp v%d, v%d, v%d%s" % (pr(u, q), pr(u+1, q), L256k[q], DPP))
        if u == 4:
            for qd in range(5): k("ds_read_b128 %s, v%d offset:%d" % (vr(PRb[5]+4*qd, 4), vT[4], qd*1024))
    L64r, L64k, Psr, Psk = r5(PRb[5]), r5(PRb[5]+5), r5(PRb[5]+10), r5(PRb[5]+15)
    k("s_waitcnt lgkmcnt(0)")
    for q in range(5): k("v_mul_f32 v%d, v%d, v%d" % (pr(1, q), L64r[q], pr(0, q)))
    for q in range(5): k("v_fmac_f32_dpp v%d, v%d, v%d%s" % (pr(1, q), pr(0, q), L64k[q], DPP))
    for sw in ("v_permlane16_swap_b32", "v_permlane32_swap_b32"):
        for q in range(5): k("v_mov_b32 v%d, v%d" % (pr(2, q), pr(1, q)))
        for q in range(5): k("%s v%d, v%d" % (sw, pr(1, q), pr(2, q)))
        for q in range(5): k("v_add_f32 v%d, v%d, v%d" % (pr(1, q), pr(1, q), pr(2, q)))
    for q in range(5): k("v_fmac_f32 v%d, v%d, v%d" % (MINE[q], Psr[q], pr(1, q)))
    for q in range(5): k("v_fmac_f32_dpp v%d, v%d, v%d%s" % (MINE[q], pr(1, q), Psk[q], DPP))
    CIN = [f for f in free]
    for q in range(5): k("v_mul_f32 v%d, v%d, v%d" % (CIN[q], KR[q], MINE[q]))
    for q in range(5): k("v_fmac_f32_dpp v%d, v%d, v%d%s" % (CIN[q], MINE[q], cKk+q, DPP))
    PK = 32
    OUTQ = [ACCF + 4*j for j in range(10)]
    k("v_mul_u32_u24 v%d, %d, v%d\nv_lshl_add_u32 v%d, v%d, 5, v%d\nv_add_u32 v%d, s%d, v%d" % (vT[1], TRP, vM, vT[1], vG, vT[1], vT[1], sKx, vT[1]))
    k("v_and_b32 v%d, 1, v%d\nv_lshrrev_b32 v%d, 2, v%d\nv_lshl_add_u32 v%d, v%d, 3, v%d\nv_mul_u32_u24 v%d, %d, v%d" % (vT[0], vG, vT[4], vM, vT[0], vT[0], vT[4], vT[0], TRP, vT[0]))
    k("v_and_b32 v%d, 3, v%d\nv_lshl_add_u32 v%d, v%d, 5, v%d" % (vT[4], vM, vT[0], vT[4], vT[0]))
    k("v_lshrrev_b32 v%d, 1, v%d\nv_lshl_add_u32 v%d, v%d, 3, v%d\nv_add_u32 v%d, s%d, v%d" % (vT[5], vG, vT[0], vT[5], vT[0], vT[0], sKx, vT[0]))
    k("v_and_b32 v%d, 31, v%d\nv_lshlrev_b32 v%d, 4, v%d\nv_lshl_add_u32 v%d, v%d, 10, v%d" % (vT[4], vL, vT[4], vT[4], vT[4], vT[5], vT[4]))
    def tr_reads(bp):
        for q in range(5):
            o = OUTQ[bp*5+q]
            k("ds_read_b64_tr_b16 %s, v%d offset:%d\nds_read_b64_tr_b16 %s, v%d offset:%d" % (vr(o, 2), vT[0], q*16*TRP+bp*16, vr(o+2, 2), vT[0], q*16*TRP+bp*16+4*TRP))
    def tr_stores(bp, waits):
        for q in range(5):
            if waits: k("s_waitcnt lgkmcnt(%d)" % (8-2*q))
            k("buffer_store_dwordx4 %s, v%d, %s, s%d offen offset:%d%s" % (vr(OUTQ[bp*5+q], 4), vT[4], sq(SWS), sSS[q], bp*2048, S1))
    for t in range(16):
        if DFR and t == opt("fft", 2):
            k("s_cmp_lg_u32 s%d, 0\ns_cbranch_scc1 L_k1_ffd" % sRd)
            a2_flag(1, 0, 30, 31)
            if not opt("clk", 0): stamp(k, 7)
            k("L_k1_ffd:")
        prev = [CIN[q] if t == 0 else Z[q][t-1] for q in range(5)]
        for q in range(5): k("v_fmac_f32 v%d, v%d, v%d" % (Z[q][t], cLr+q, prev[q]))
        for q in range(5): k("v_fmac_f32_dpp v%d, v%d, v%d%s" % (Z[q][t], prev[q], cMu+q, DPP))
        if t & 1:
            for q in range(5): k("v_cvt_pk_bf16_f32 v%d, v%d, v%d" % (PK+8*q+(t >> 1), Z[q][t-1], Z[q][t]))
        if t == 8:
            for q in range(5): k("ds_write_b128 v%d, %s offset:%d" % (vT[1], vr(PK+8*q, 4), q*16*TRP))
        if t == 10: tr_reads(0)
        if t == 13:
            k("s_waitcnt lgkmcnt(0)")
            tr_stores(0, False)
    for q in range(5): k("ds_write_b128 v%d, %s offset:%d" % (vT[1], vr(PK+8*q+4, 4), q*16*TRP+16))
    tr_reads(1)
    tr_stores(1, True)
    if CSM & 2: cs_set(1, 17, 18)
    a2_flag(2, 0, vT[0], vT[1])
    stamp(k, 4)
    k(";PRIO_OFF")
    k("L_k1_base:")
    base_loads(140)
    k("L_k1_base2:")
    base_compute(140)
    finish(100)
    k("L_k1_end:")
    k("s_endpgm")
    k(".p2align 7")
    k(".type L_k1_tab,@object")
    k("L_k1_tab:")
    k(".long " + ", ".join(str(i) for i in range(32)))
    k(".size L_k1_tab, 128")
    if opt("dp", 0):
        out = []; on = False; hi = False
        lo = opt("dplo", 0)
        for l in k.lines:
            t = l.strip()
            if t == ";PRIO_ON": on = True; hi = False; out.append("    s_setprio %d" % lo); continue
            if t == ";PRIO_OFF": on = False; continue
            if on:
                isv = t.startswith("buffer_") or t.startswith("global_")
                isalu = t.startswith("v_") and not t.startswith("v_subrev_u32") and not t.startswith("v_mov_b32") and not t.startswith("v_cmp")
                if t.endswith(":"): hi = None
                if isv and hi is not True: out.append("    s_setprio 3"); hi = True
                elif isalu and hi is not False: out.append("    s_setprio %d" % lo); hi = False
            out.append(l)
        k.lines = out
    else: k.lines = [l for l in k.lines if not l.strip().startswith(";PRIO")]
    return k

if __name__ == "__main__":
    ref = open("parallel_sum__ssm_conv_s5__geglu_ffn__prompt.s.ref").read().split("\n")
    hdr = [l for l in ref if l.startswith(";") and "@launch" not in l and "Override" not in l and "grid=ceil" not in l]
    hdr += ["; @launch grid=(256,1,1) block=(512,1,1) lds=163840"]
    out = [a for a in sys.argv[1:] if not a.startswith("--")][0]
    gen2.TRACE = False
    open(out, "w").write(emit_file(hdr, [(gen_k1(), dict(vgpr=256, accum=256))]))
```

```python
import sys, struct, math
from asmgen import *
import gen2
from gen2 import (A2_OFF, B2_OFF, CAR_OFF, RST_OFF, SB_OFF, SG_OFF, STAMP_OFF, WS_NREC, SL, SPARE, TRP, f32, vr, sq, sp, ror, DPP, SC,
                  Alloc, interleave, srd, stamp, stamp_out, opt, ARG, STAMPS, LOG2E,
                  pX, pLre, pLim, pBre, pBim, pCre, pCim, pLdt, pD, pBx, pG, pU, pDn, pOut, pDbg, pWs)
STAT_M = SPARE
SFF = SPARE + 1536
SSS = SPARE + 2560
TRB = SL
DNA = SPARE + 2560
FLG = SPARE + 3968
PF_OFF = 0x1130000
FL_OFF = 0x1160000
CH_OFF = 0x1040000
TRACE = "--trace" in ARG
S1 = [" sc1", " sc0 sc1", " sc1 nt", ""][opt("st2", 0)]
if opt("sc", 1): SC = " sc1"
FSP = 4
FGS = 16
FLS_ = opt("fls", 4224)
PSC_ = [" sc1", " sc0 sc1"][opt("psc", 0)]
KNAME = "parallel_sum__ssm_conv_s5__geglu_ffn__prompt_kernel"

def gen_k1():
    k = Kern(KNAME)
    sW, sMH, sNH, sI, sJJ, sTY = 3, 4, 5, 6, 7, 8
    sT0, sT1, sT2, sT3 = 9, 10, 11, 12
    sMASK = 13
    SX, SW0, SW1, SWS, SP0, SP1 = 48, 52, 56, 60, 64, 68
    sKx, sKw, sDst, sDelta, sIt, sRd, sA, sB, sKS, sC, sNon, sCol = range(72, 84)
    k("s_cmp_ge_u32 s2, 256\ns_cbranch_scc1 L_k1_end")
    k("s_load_dwordx16 s[16:31], s[0:1], 0\ns_load_dwordx16 s[32:47], s[0:1], 64")
    vL, vM, vG, vII, vSL = 1, 2, 3, 4, 5
    vT = [6, 7, 8, 9, 10, 11]
    k("v_lshrrev_b32 v%d, 6, v0" % vT[0])
    k("v_and_b32 v%d, 63, v0" % vL)
    k("v_readfirstlane_b32 s%d, v%d" % (sW, vT[0]))
    k("s_cmp_ge_u32 s%d, 6\ns_cbranch_scc1 L_k1_D" % sW)
    k("s_cmp_lt_u32 s%d, 4\ns_cbranch_scc1 L_k1_C" % sW)
    def decode():
        stamp(k, 0)
        if TRACE: k("v_mov_b32 v255, 0")
        k("v_and_b32 v%d, 15, v0\nv_lshrrev_b32 v%d, 4, v%d" % (vM, vG, vL))
        k("v_lshrrev_b32 v%d, 3, v%d\nv_and_b32 v%d, 7, v0" % (vII, vL, vSL))
        k("s_bfe_u32 s%d, s2, 0x10002\ns_lshl_b32 s%d, s%d, 3\ns_bfe_u32 s%d, s2, 0x30003\ns_add_u32 s%d, s%d, s%d" % (sI, sI, sI, sT2, sI, sI, sT2))
        k("s_and_b32 s%d, s2, 3\ns_lshl_b32 s%d, s%d, 1\ns_lshr_b32 s%d, s2, 7\ns_add_u32 s%d, s%d, s%d\ns_bfe_u32 s%d, s2, 0x10006" % (sJJ, sJJ, sJJ, sT2, sJJ, sJJ, sT2, sTY))
        k("s_mov_b32 s%d, 0xffff0000" % sMASK)
        k("s_and_b32 s%d, s%d, 1\ns_bfe_u32 s%d, s%d, 0x10001" % (sMH, sW, sNH, sW))
        k("s_lshl_b32 s%d, s%d, 7\ns_lshl_b32 s%d, s%d, 6\ns_add_u32 s%d, s%d, 1024\ns_cmp_eq_u32 s%d, 0\ns_cselect_b32 s%d, s%d, s%d" % (sT0, sJJ, sT1, sJJ, sT1, sT1, sTY, sCol, sT0, sT1))
    decode()

    def p2map(mi, ni):
        M = opt("p2m", 0)
        if M == 0:
            k("s_lshr_b32 s%d, s%d, 1\ns_lshl_b32 s%d, s%d, 3\ns_and_b32 s%d, s%d, 7\ns_add_u32 s%d, s%d, s%d" % (mi, sT0, mi, mi, sT2, sT1, mi, mi, sT2))
            k("s_and_b32 s%d, s%d, 1\ns_lshl_b32 s%d, s%d, 2\ns_lshr_b32 s%d, s%d, 3\ns_add_u32 s%d, s%d, s%d" % (ni, sT0, ni, ni, sT2, sT1, ni, ni, sT2))
        elif M == 1:
            k("s_lshl_b32 s%d, s%d, 2\ns_and_b32 s%d, s%d, 3\ns_add_u32 s%d, s%d, s%d\ns_lshr_b32 s%d, s%d, 2" % (mi, sT0, sT2, sT1, mi, mi, sT2, ni, sT1))
        else:
            k("s_lshr_b32 s%d, s%d, 2\ns_lshl_b32 s%d, s%d, 4\ns_and_b32 s%d, s%d, 15\ns_add_u32 s%d, s%d, s%d" % (mi, sT0, mi, mi, sT2, sT1, mi, mi, sT2))
            k("s_and_b32 s%d, s%d, 3\ns_lshl_b32 s%d, s%d, 1\ns_lshr_b32 s%d, s%d, 4\ns_add_u32 s%d, s%d, s%d" % (ni, sT0, ni, ni, sT2, sT1, ni, ni, sT2))
    def tab_base(tag, d):
        k("s_getpc_b64 %s" % sp(d))
        k("L_k1_tb%s:" % tag)
        k("s_add_u32 s%d, s%d, L_k1_tab-L_k1_tb%s\ns_addc_u32 s%d, s%d, 0" % (d, d, tag, d+1, d+1))
    def bf16r(d, s):
        k("v_cvt_pk_bf16_f32 v%d, v%d, v%d\nv_lshlrev_b32 v%d, 16, v%d" % (d, s, s, d, d))
    r5 = lambda b: [b+q for q in range(5)]
    def cpow5(dr, dk, n, t0, t1, cA2, cBt):
        R5 = range(5)
        for q in R5: k("v_mul_f32 v%d, %s, v%d\nv_mul_f32 v%d, %s, v%d" % (t0+q, n, cA2+q, t1+q, n, cBt+q))
        for q in R5: k("v_exp_f32 v%d, v%d\nv_rndne_f32 v%d, v%d" % (t0+q, t0+q, dr[q], t1+q))
        for q in R5: k("v_sub_f32 v%d, v%d, v%d" % (t1+q, t1+q, dr[q]))
        for q in R5: k("v_cos_f32 v%d, v%d\nv_sin_f32 v%d, v%d" % (dr[q], t1+q, dk[q], t1+q))
        for q in R5: k("v_mul_f32 v%d, v%d, v%d\nv_mul_f32 v%d, v%d, v%d" % (dr[q], dr[q], t0+q, dk[q], dk[q], t0+q))
    def param_loads(P, snh, va):
        k("s_mul_i32 s%d, s%d, 80\ns_mul_i32 s%d, s%d, 40\ns_add_u32 s%d, s%d, s%d" % (sT0, sJJ, sT1, snh, sT1, sT1, sT0))
        k("v_add_u32 v%d, s%d, v%d\nv_lshlrev_b32 v%d, 1, v%d" % (va, sT1, vSL, va, va))
        for q in range(5):
            for n, p in enumerate((pLre, pLim, pLdt)):
                k("global_load_ushort v%d, v%d, %s offset:%d" % (P+n*5+q, va, sp(p), q*16))
    def param_ab(P, cA2, cBt, vs):
        lre, lim, ldt = P, P+5, P+10
        k("v_lshrrev_b32 v%d, 3, v%d\nv_xor_b32 v%d, 1, v%d\nv_lshlrev_b32 v%d, 31, v%d" % (vs, vM, vs, vs, vs, vs))
        for q in range(15): k("v_lshlrev_b32 v%d, 16, v%d" % (P+q, P+q))
        for q in range(5): k("v_xor_b32 v%d, v%d, v%d\nv_mul_f32 v%d, %s, v%d" % (lim+q, lim+q, vs, ldt+q, f32(LOG2E), ldt+q))
        for q in range(5): k("v_exp_f32 v%d, v%d" % (ldt+q, ldt+q))
        for q in range(5): k("v_cvt_pk_bf16_f32 v%d, v%d, v%d" % (ldt+q, ldt+q, ldt+q))
        for q in range(5): k("v_lshlrev_b32 v%d, 16, v%d" % (ldt+q, ldt+q))
        for q in range(5): k("v_mul_f32 v%d, v%d, v%d\nv_mul_f32 v%d, v%d, v%d" % (cA2+q, ldt+q, lre+q, cBt+q, ldt+q, lim+q))
        for q in range(5): k("v_mul_f32 v%d, %s, v%d\nv_mul_f32 v%d, %s, v%d" % (cA2+q, f32(LOG2E), cA2+q, cBt+q, f32(1/(2*math.pi)), cBt+q))
    def trace(idx_sreg, mul, add):
        if TRACE and not opt("evonly", 1):
            k("s_memrealtime s[100:101]\ns_mul_i32 m0, s%d, %d\ns_add_u32 m0, m0, %d\ns_waitcnt lgkmcnt(0)\nv_writelane_b32 v255, s100, m0" % (idx_sreg, mul, add))
    def ev(n):
        if TRACE: k("s_memrealtime s[100:101]\ns_waitcnt lgkmcnt(0)\nv_writelane_b32 v255, s100, %d" % n)
    def finish(vt):
        if TRACE:
            k("s_lshl_b32 s83, s2, 11\ns_add_u32 s83, s83, 0x%x\nv_lshl_add_u32 v%d, v0, 2, s83" % (STAMP_OFF + 0x40000, vt+9))
            k("global_store_dword v%d, v255, %s" % (vt+9, sp(52)))
        stamp_out(k, 0, 8, 52, vt)
        k("s_endpgm")

    vXo, vWo, vSo = 12, 13, 14
    vF = 18
    k("s_lshl_b32 s%d, s%d, 7\ns_lshl_b32 s%d, s%d, 5\ns_add_u32 s%d, s%d, s%d" % (sT2, sI, sT3, sMH, sT2, sT2, sT3))
    k("v_lshrrev_b32 v%d, 2, v%d\nv_lshlrev_b32 v%d, 4, v%d\nv_and_b32 v%d, 3, v%d" % (vT[0], vII, vT[0], vT[0], vT[1], vII))
    k("v_add3_u32 v%d, v%d, v%d, s%d" % (vT[0], vT[0], vT[1], sT2))
    k("v_mul_u32_u24 v%d, 1280, v%d" % (vT[0], vT[0]))
    k("s_lshl_b32 s%d, s%d, 2" % (sT3, sMH))
    k("v_lshrrev_b32 v%d, 1, v%d\nv_or_b32 v%d, s%d, v%d\nv_xor_b32 v%d, v%d, v%d" % (vT[1], vII, vT[1], sT3, vT[1], vT[1], vT[1], vSL))
    k("v_lshl_add_u32 v%d, v%d, 4, v%d" % (vXo, vT[1], vT[0]))
    k("s_mul_i32 s%d, s%d, 80" % (sT0, sJJ))
    k("v_add_u32 v%d, s%d, v%d\nv_mul_u32_u24 v%d, 1280, v%d\nv_lshl_add_u32 v%d, v%d, 4, v%d" % (vT[2], sT0, vII, vT[2], vT[2], vSo, vT[1], vT[2]))
    k("s_lshl_b32 s%d, s%d, 3" % (sT0, sMH))
    k("v_add_u32 v%d, s%d, v%d\nv_mul_u32_u24 v%d, 3072, v%d" % (vT[0], sT0, vII, vT[0], vT[0]))
    k("v_and_b32 v%d, 2, v%d\nv_or_b32 v%d, s%d, v%d\nv_xor_b32 v%d, v%d, v%d" % (vT[1], vII, vT[1], sT3, vT[1], vT[1], vT[1], vSL))
    k("v_lshl_add_u32 v%d, v%d, 4, v%d" % (vT[0], vT[1], vT[0]))
    k("s_lshl_b32 s%d, s%d, 1" % (sT0, sCol))
    k("v_add_u32 v%d, s%d, v%d" % (vWo, sT0, vT[0]))
    k("s_mov_b32 s%d, 0\ns_mov_b32 s%d, 0\ns_lshl_b32 s%d, s%d, 10\ns_mov_b32 s%d, 0\ns_mov_b32 s%d, 0" % (sKx, sKw, sDst, sMH, sIt, sRd))
    k("v_mov_b32 v%d, %d\nv_mov_b32 v24, 4" % (vF, DNA))
    tab_base("L", 68)
    k("s_lshl_b32 s70, s%d, 2\ns_add_u32 s70, s70, %d" % (sMH, FLG+16))
    k("s_lshl_b32 s%d, s%d, 2\ns_add_u32 s%d, s%d, %d\nv_mov_b32 v%d, s%d" % (sT0, sMH, sT0, sT0, FLG+16, vF+1, sT0))
    for S_, n_ in ((SX, 2048*1280), (SW0, 640*3072), (SW1, 640*3072), (SP0, 640*1280)): k("s_mov_b32 s%d, %d\ns_mov_b32 s%d, 0x20000" % (S_+2, n_, S_+3))
    k("s_cmp_eq_u32 s%d, 0\ns_waitcnt lgkmcnt(0)" % sMH)
    k("s_mov_b64 %s, %s\ns_mov_b64 %s, %s\ns_mov_b64 %s, %s\ns_cselect_b64 %s, %s, %s" % (sp(SX), sp(pX), sp(SW0), sp(pG), sp(SW1), sp(pU), sp(SP0), sp(pBre), sp(pBim)))
    def wait_word(lab, off, need, va, vt):
        k("v_mov_b32 v%d, %d" % (va, FLG+off))
        k("%s:" % lab)
        k("ds_read_b32 v%d, v%d\ns_waitcnt lgkmcnt(0)\nv_readfirstlane_b32 s%d, v%d" % (vt, va, sT0, vt))
        k("s_cmp_ge_i32 s%d, %s\ns_cbranch_scc1 %s_ok\ns_sleep %d\ns_branch %s\n%s_ok:" % (sT0, need, lab, opt("wsl", 1), lab, lab))
    def done_read(vt, vaddr):
        return "ds_read2st64_b32 %s, v%d offset0:0 offset1:1\nds_read2st64_b32 %s, v%d offset0:2 offset1:3" % (vr(vt, 2), vaddr, vr(vt+2, 2), vaddr)
    def wait_done(lab, need, vaddr, vt):
        k("%s:" % lab)
        k(done_read(vt, vaddr) + "\ns_waitcnt lgkmcnt(0)")
        k("v_min_u32 v%d, v%d, v%d\nv_min3_u32 v%d, v%d, v%d, v%d" % (vt, vt, vt+1, vt, vt, vt+2, vt+3))
        k("v_readfirstlane_b32 s%d, v%d" % (sT0, vt))
        k("s_cmp_ge_i32 s%d, %s\ns_cbranch_scc1 %s_ok\ns_sleep 1\ns_branch %s\n%s_ok:" % (sT0, need, lab, lab, lab))
    def dma(ldsoff, voff, S, sbase, add):
        k("s_add_u32 m0, s%d, %d\ns_add_u32 s%d, s%d, %d\nbuffer_load_dwordx4 v%d, %s, s%d offen lds" % (sDst, ldsoff, sT0, sbase, add, voff, sq(S), sT0))
    NSIG = opt("nsig", 8)
    def chk(lab, add, sig):
        k("s_cmp_lt_u32 s%d, 3\ns_cbranch_scc1 %s_go" % (sIt, lab))
        k("s_lshl_b32 s%d, s%d, 1\ns_add_i32 s%d, s%d, %d\ns_waitcnt lgkmcnt(0)" % (sT1, sIt, sT1, sT1, add))
        k("v_min_u32 v20, v20, v21\nv_min3_u32 v20, v20, v22, v23\nv_readfirstlane_b32 s%d, v20" % sT0)
        k("s_cmp_ge_i32 s%d, s%d\ns_cbranch_scc1 %s_go" % (sT0, sT1, lab))
        wait_done(lab+"_wd", "s%d" % sT1, vF, 20)
        k("%s_go:" % lab)
    L = "L_k1_L"
    xs = [(n*2048, vXo, SX, sKx, ((n & 3)*4 + (n >> 2)*64)*1280) for n in range(8)]
    wsu = lambda un, ns: [(16384+un*16384+gu*8192+n*2048, vWo, SW1 if gu else SW0, sKw, n*16*3072+un*128) for n in ns for gu in range(2)]
    p1 = []
    for i in range(4): p1 += xs[2*i:2*i+2] + wsu(0, (0, 1))[i:i+1]
    LB = opt("lbar", 1)
    if not LB:
        for o in p1[:NSIG]: dma(*o)
        k("s_barrier\ns_branch %s_sig" % L)
    k("%s:" % L)
    trace(sIt, 4, 0)
    chk(L+"_c1", -5, True)
    trace(sIt, 4, 1)
    for o in p1[:NSIG]: dma(*o)
    k("%s_sig:" % L)
    k("s_waitcnt vmcnt(40)")
    trace(sIt, 4, 3)
    k("s_cmp_eq_u32 s%d, 1\ns_cbranch_scc1 %s_b1" % (sTY, L))
    for o in wsu(1, (0, 1)): dma(*o)
    k("%s_b1:" % L)
    for i, o in enumerate(p1[NSIG:]):
        if i == len(p1)-NSIG-2: k(done_read(20, vF))
        dma(*o)
    chk(L+"_c2", -4, False)
    k("s_cmp_eq_u32 s%d, 1\ns_cbranch_scc1 %s_b2" % (sTY, L))
    for o in wsu(1, (2, 3)): dma(*o)
    k("s_branch %s_b3" % L)
    k("%s_b2:" % L)
    for b_ in range(10): dma(32768+b_*2048, vSo, SP0, sKx, b_*10240)
    k("%s_b3:" % L)
    for i, o in enumerate(wsu(0, (2, 3))):
        if i == 2: k(done_read(20, vF))
        dma(*o)
    if LB: k("s_cmp_lg_u32 s%d, 0\ns_cbranch_scc1 %s_nb\ns_barrier\n%s_nb:" % (sIt, L, L))
    k("s_mov_b32 m0, s70\ns_mov_b64 exec, 1\nglobal_load_lds_dword v24, s[68:69]\ns_mov_b64 exec, -1")
    k("s_bitcmp1_b32 %d, s%d\ns_cbranch_scc0 %s_ni" % ((1 << 9) | (1 << (opt("gate", 3)-1)) | ((1 << opt("pgate", 1)) >> 1), sIt, L))
    k("v_lshrrev_b32 v25, 2, v24\nds_write_b32 v%d, v25 offset:16\n%s_ni:" % (vF+1, L))
    k("v_add_u32 v24, 4, v24")
    k("s_add_u32 s%d, s%d, 128\ns_add_u32 s%d, s%d, 196608\ns_add_u32 s%d, s%d, %d\ns_add_u32 s%d, s%d, 1" % (sKx, sKx, sKw, sKw, sDst, sDst, SL, sRd, sRd))
    k("s_cmp_eq_u32 s%d, 3\ns_cselect_b32 s%d, 0, s%d\ns_cselect_b32 s%d, %d, 0\ns_sub_u32 s%d, s%d, s%d" % (sRd, sRd, sRd, sT0, 3*SL, sDst, sDst, sT0))
    trace(sIt, 4, 2)
    k("s_add_u32 s%d, s%d, 1\ns_cmp_lt_u32 s%d, 10\ns_cbranch_scc1 %s" % (sIt, sIt, sIt, L))
    k("L_k1_Lend:")
    srd(k, SWS, pWs, WS_NREC)
    k("s_branch L_k1_P2")

    k("L_k1_D:")
    k("s_memrealtime s[100:101]")
    decode()
    XR = 16
    YR = 36
    PK = 100
    T = 132
    vN = 12
    sPQ, sPR = [14, 78], [15, 79]
    k("v_mul_u32_u24 v%d, 1280, v%d\nv_lshl_add_u32 v%d, v%d, 4, v%d" % (vT[0], vG, vT[0], vM, vT[0]))
    XL = opt("xl", 1)
    sQ_, sG_ = sIt, sRd
    if XL:
        k("s_and_b32 s%d, s2, 7\ns_lshl_b32 s%d, s%d, 5\ns_lshr_b32 s%d, s2, 3\ns_add_u32 s%d, s%d, s%d\ns_lshl_b32 s%d, s%d, 1\ns_add_u32 s%d, s%d, s%d" % (sT0, sT0, sT0, sT1, sT0, sT0, sT1, sC, sT0, sC, sC, sMH))
        k("s_bfe_u32 s%d, s2, 0x10002\ns_lshl_b32 s%d, s%d, 5\ns_add_u32 s%d, s%d, s%d" % (sQ_, sQ_, sQ_, sQ_, sQ_, sT1))
    else:
        k("s_lshl_b32 s%d, s2, 1\ns_add_u32 s%d, s%d, s%d" % (sC, sC, sC, sMH))
    def code_touch(tag):
        k("s_getpc_b64 s[70:71]")
        k("L_k1_pc%s:" % tag)
        k("s_sub_u32 s70, s70, L_k1_pc%s-%s\ns_subb_u32 s71, s71, 0" % (tag, KNAME))
        k("s_lshr_b32 s%d, s2, 3\ns_lshl_b32 s%d, s%d, 1\ns_add_u32 s%d, s%d, s%d\ns_mul_i32 s%d, s%d, 640" % (sT0, sT0, sT0, sT0, sT0, sMH, sT0, sT0))
        k("v_min_u32 v14, 4, v%d\nv_lshl_add_u32 v14, v14, 7, s%d\nv_min_u32 v14, L_k1_tab-%s, v14" % (vL, sT0, KNAME))
        k("global_load_dword v15, v14, s[70:71]")
    if opt("cpf", 6) & 4: code_touch("c")
    k("s_waitcnt lgkmcnt(0)")
    srd(k, SX, pX, 2048*1280)
    srd(k, SWS, pWs, WS_NREC)
    k("s_cmp_lg_u32 s%d, 0\ns_cbranch_scc1 L_k1_nn" % sC)
    k("s_or_b32 s%d, s100, 1" % sT0)
    k("v_mov_b32 v%d, s%d\nv_mov_b32 v%d, 0" % (vT[2], sT0, vT[1]))
    k("global_store_dword v%d, v%d, %s%s" % (vT[1], vT[2], sp(pDbg), SC))
    k("L_k1_nn:")
    B1 = opt("b1", 2); GATE = opt("gate", 3)
    SNT = " nt" if opt("snt", 0) else ""
    PNT = " nt" if opt("pnt", 1) else ""
    PA = 1
    PK2 = 180; PP = 180
    PK1 = opt("pk1", 0); PGATE = opt("pgate", 1)
    cr_, cc_ = (vSL, vII) if opt("cs", 2) else (vII, vSL)
    CL = opt("cs", 2) == 2
    def pack_loads(tag):
        k("s_cmp_eq_u32 s%d, 1\ns_cbranch_scc1 L_k1_pld%s" % (sTY, tag))
        k("s_lshl_b32 s%d, s%d, 3\ns_add_u32 s%d, s%d, s%d\ns_lshl_b32 s%d, s%d, 1\ns_add_u32 s%d, s%d, s%d\ns_lshl_b32 s%d, s%d, 1" % (sT3, sI, sT3, sT3, sJJ, sT3, sT3, sT3, sT3, sMH, sT3, sT3))
        for n in range(2):
            k("s_add_u32 s%d, s%d, %d\ns_mul_i32 s%d, s%d, 6554\ns_lshr_b32 s%d, s%d, 16\ns_mul_i32 s%d, s%d, 10\ns_sub_u32 s%d, s%d, s%d" % (sT0, sT3, n, sPQ[n], sT0, sPQ[n], sPQ[n], sT1, sPQ[n], sPR[n], sT0, sT1))
        srd(k, SP0, pDn, 1536*1280)
        srd(k, SW0, pCre, 640*1280)
        srd(k, SW1, pCim, 640*1280)
        k("v_mul_u32_u24 v%d, 1280, v%d\nv_lshl_add_u32 v%d, v%d, 4, v%d" % (vT[4], vII, vT[4], vSL, vT[4]))
        k("s_cmp_lt_u32 s%d, 48\ns_cselect_b32 s%d, s%d, 0" % (sPQ[0], SP0+2, SP0+2))
        k("s_cmp_lt_u32 s%d, 40\ns_cselect_b32 s%d, s%d, 0\ns_cselect_b32 s%d, s%d, 0" % (sPQ[0], SW0+2, SW0+2, SW1+2, SW1+2))
        if PK1 and PGATE: wait_word("L_k1_pgw"+tag, 36, "%d" % PGATE, vT[3], vT[2])
        for n in range(2):
            k("s_mul_i32 s%d, s%d, 40960\ns_lshl_b32 s%d, s%d, 7\ns_add_u32 s%d, s%d, s%d" % (sT1, sPQ[n], sT2, sPR[n], sT1, sT1, sT2))
            for a in range(4):
                k("buffer_load_dwordx4 %s, v%d, %s, s%d offen%s" % (vr(PK+16*n+4*a, 4), vT[4], sq(SP0), sT1, PNT))
                if a < 3: k("s_add_u32 s%d, s%d, 10240" % (sT1, sT1))
        if not CL: k("v_mul_u32_u24 v%d, 1280, v%d\nv_lshl_add_u32 v%d, v%d, 4, v%d" % (vT[4], cr_, vT[4], cc_, vT[4]))
        for n in range(2):
            k("s_mul_i32 s%d, s%d, 20480\ns_lshl_b32 s%d, s%d, 7\ns_add_u32 s%d, s%d, s%d" % (sT1, sPQ[n], sT2, sPR[n], sT1, sT1, sT2))
            k("s_add_u32 s%d, s%d, 10240" % (sT2, sT1))
            for part in range(2):
                for hh in range(2):
                    k("buffer_load_dwordx4 %s, v%d, %s, s%d offen%s" % (vr(PK2+16*n+(part*2+hh)*4, 4), vT[4], sq(SW1 if part else SW0), sT2 if hh else sT1, PNT))
        k("L_k1_pld%s:" % tag)
    def gate(lab):
        k("s_barrier")
        if PK1: pack_loads(lab[-2:])
        if GATE: wait_word(lab, 36, "%d" % GATE, vT[3], vT[2])
    k("s_mul_i32 s%d, s%d, 5120" % (sKx, sC))
    xl = lambda c: k("buffer_load_dwordx4 %s, v%d, %s, s%d offen offset:%d%s" % (vr(XR+4*c, 4), vT[0], sq(SX), sKx, c*256, SNT))
    k("s_cmp_eq_u32 s%d, 1\ns_cbranch_scc1 L_k1_D1a" % sMH)
    if XL:
        k("s_mul_i32 s%d, s%d, 43\ns_lshr_b32 s%d, s%d, 9\ns_mul_i32 s%d, s%d, 12\ns_sub_u32 s%d, s%d, s%d" % (sT0, sQ_, sT0, sT0, sT1, sT0, sT1, sQ_, sT1))
        k("s_cmp_lt_u32 s%d, 6\ns_cselect_b32 s%d, s%d, s%d\ns_cselect_b32 s%d, s%d, s%d\ns_cselect_b32 s%d, 0, 6\ns_cselect_b32 s%d, 0, 24" % (sT1, SP1, pG, pU, SP1+1, pG+1, pU+1, sT2, sG_))
        k("s_sub_u32 s%d, s%d, s%d\ns_and_b32 s%d, s2, 3\ns_lshl_b32 s%d, s%d, 2\ns_lshl_b32 s%d, s%d, 1\ns_add_u32 s%d, s%d, 12" % (sT1, sT1, sT2, sT2, sT3, sT2, sT2, sT2, sT2, sT2))
        k("s_cmp_lt_u32 s%d, 4\ns_cselect_b32 s%d, s%d, s%d\ns_add_u32 s%d, s%d, s%d" % (sT1, sT2, sT3, sT2, sT1, sT1, sT2))
        k("s_add_u32 s%d, s%d, s%d\ns_mul_i32 s%d, s%d, 48\ns_add_u32 s%d, s%d, s%d" % (sG_, sG_, sT1, sT2, sT0, sG_, sG_, sT2))
        k("s_lshl_b32 s%d, s%d, 7\ns_mul_i32 s%d, s%d, %d\ns_add_u32 s%d, s%d, s%d" % (sT1, sT1, sT0, sT0, 8*3072, sKw, sT0, sT1))
        k("s_cmp_lt_u32 s%d, 60\ns_cselect_b32 s%d, %d, 0\ns_cselect_b32 s%d, s%d, 1000\ns_mov_b32 s%d, 0x20000" % (sQ_, SP1+2, 640*3072, sG_, sG_, SP1+3))
    else:
        k("s_mov_b32 s%d, s2" % sG_)
        k("s_mul_i32 s%d, s2, 1366\ns_lshr_b32 s%d, s%d, 16\ns_mul_i32 s%d, s%d, 48\ns_sub_u32 s%d, s2, s%d" % (sT0, sT0, sT0, sT1, sT0, sT1, sT1))
        k("s_cmp_lt_u32 s%d, 24\ns_cselect_b32 s%d, s%d, s%d\ns_cselect_b32 s%d, s%d, s%d\ns_cselect_b32 s%d, 0, 24" % (sT1, SP1, pG, pU, SP1+1, pG+1, pU+1, sT2))
        k("s_sub_u32 s%d, s%d, s%d\ns_lshl_b32 s%d, s%d, 7\ns_mul_i32 s%d, s%d, %d\ns_add_u32 s%d, s%d, s%d" % (sT1, sT1, sT2, sT1, sT1, sT0, sT0, 8*3072, sKw, sT0, sT1))
        k("s_cmp_lt_u32 s2, 240\ns_cselect_b32 s%d, %d, 0\ns_mov_b32 s%d, 0x20000" % (SP1+2, 640*3072, SP1+3))
    k("v_mul_u32_u24 v%d, 3072, v%d\nv_lshl_add_u32 v%d, v%d, 4, v%d" % (vT[1], vII, vT[1], vSL, vT[1]))
    a_ = 0
    for c in range(5):
        if c == B1: gate("L_k1_g0")
        xl(c)
        while a_ < 16 and a_*40 < 128*(c+1):
            k("buffer_load_dwordx4 %s, v%d, %s, s%d offen%s" % (vr(YR+4*a_, 4), vT[1], sq(SP1), sKw, SNT))
            k("s_add_u32 s%d, s%d, %d" % (sKw, sKw, 40*3072))
            a_ += 1
    if B1 >= 5: gate("L_k1_g0")
    k("s_branch L_k1_Db")
    k("L_k1_D1a:")
    if XL:
        k("s_cmp_lt_u32 s%d, 20\ns_cselect_b32 s%d, s%d, s%d\ns_cselect_b32 s%d, s%d, s%d\ns_cselect_b32 s%d, 0, 20\ns_cselect_b32 s%d, 0, 80" % (sQ_, SP1, pBre, pBim, SP1+1, pBre+1, pBim+1, sT1, sG_))
        k("s_sub_u32 s%d, s%d, s%d\ns_and_b32 s%d, s2, 3\ns_mul_i32 s%d, s%d, 20\ns_add_u32 s%d, s%d, s%d\ns_add_u32 s%d, s%d, s%d" % (sT0, sQ_, sT1, sT1, sT1, sT1, sT0, sT0, sT1, sG_, sG_, sT0))
        k("s_mul_i32 s%d, s%d, 10240\ns_add_u32 s%d, s%d, 5120" % (sKw, sT0, sDst, sKw))
        k("s_cmp_lt_u32 s%d, 40\ns_cselect_b32 s%d, %d, 0\ns_cselect_b32 s%d, s%d, 1000\ns_mov_b32 s%d, 0x20000" % (sQ_, SP1+2, 640*1280, sG_, sG_, SP1+3))
    else:
        k("s_mov_b32 s%d, s2" % sG_)
        k("s_cmp_lt_u32 s2, 80\ns_cselect_b32 s%d, s%d, s%d\ns_cselect_b32 s%d, s%d, s%d\ns_cselect_b32 s%d, 0, 80" % (SP1, pBre, pBim, SP1+1, pBre+1, pBim+1, sT1))
        k("s_sub_u32 s%d, s2, s%d\ns_mul_i32 s%d, s%d, 10240\ns_add_u32 s%d, s%d, 5120" % (sT0, sT1, sKw, sT0, sDst, sKw))
        k("s_cmp_lt_u32 s2, 160\ns_cselect_b32 s%d, %d, 0\ns_mov_b32 s%d, 0x20000" % (SP1+2, 640*1280, SP1+3))
    for c in range(5):
        if c == B1: gate("L_k1_g1")
        xl(c)
        for hh in range(2): k("buffer_load_dwordx4 %s, v%d, %s, s%d offen offset:%d%s" % (vr(YR+20*hh+4*c, 4), vT[0], sq(SP1), sDst if hh else sKw, c*256, SNT))
    if B1 >= 5: gate("L_k1_g1")
    k("L_k1_Db:")
    if opt("cpf", 6) & 1: code_touch("a")
    ev(0)
    k("v_mov_b32 v%d, 0" % vT[4])
    k("global_load_dword v%d, v%d, %s%s" % (vN, vT[4], sp(pDbg), SC))
    if not PK1: pack_loads("")
    k("s_cmp_eq_u32 s%d, 0\ns_cbranch_scc1 L_k1_npar" % sTY)
    param_loads(PP, sMH, vT[4])
    k("s_waitcnt vmcnt(15)")
    k("L_k1_npar:")
    k("v_mov_b32 v13, 0x3f803f80")
    ev(1)
    if not PK1: k("s_waitcnt vmcnt(16)")
    ev(2)
    stamp(k, 7)
    def unpack(dst, src, n):
        for d in range(n): k("v_lshlrev_b32 v%d, 16, v%d\nv_and_b32 v%d, s%d, v%d" % (dst+2*d, src+d, dst+2*d+1, sMASK, src+d))
    def row_sum(regs):
        for n in (8, 4, 2, 1):
            for r in regs: k("v_add_f32_dpp v%d, v%d, v%d%s" % (r, r, r, ror(n)))
    def tree(dst, src, n):
        k("v_add_f32 v%d, v%d, v%d\nv_add_f32 v%d, v%d, v%d" % (dst, src, src+1, dst+1, src+2, src+3))
        for d in range(4, n, 2): k("v_add_f32 v%d, v%d, v%d\nv_add_f32 v%d, v%d, v%d" % (dst, dst, src+d, dst+1, dst+1, src+d+1))
        k("v_add_f32 v%d, v%d, v%d" % (dst, dst, dst+1))
    PFIRST = 0
    def do_nonce():
        k("s_mov_b32 s%d, 0" % sT3)
        k("L_k1_gn:")
        k("v_readfirstlane_b32 s%d, v%d" % (sNon, vN))
        k("s_add_u32 s%d, s%d, 1\ns_cmp_lg_u32 s%d, 0\ns_cbranch_scc1 L_k1_gnd" % (sT3, sT3, sNon))
        k("s_cmp_gt_u32 s%d, 0x40000\ns_cbranch_scc1 L_k1_gnd" % sT3)
        k("v_mov_b32 v%d, 0" % vT[1])
        k("global_load_dword v%d, v%d, %s%s\ns_waitcnt vmcnt(0)\ns_branch L_k1_gn" % (vN, vT[1], sp(pDbg), SC))
        k("L_k1_gnd:")
        k("s_max_u32 s%d, s%d, 1" % (sNon, sNon))
    def do_stats():
        A, B = T+40, T+42
        def dsum(dst, src, n, sq_):
            for d in range(n):
                k("v_dot2_f32_bf16 v%d, v%d, v%d, %s" % (dst+(d & 1), src+d, src+d if sq_ else 13, "v%d" % (dst+(d & 1)) if d > 1 else "0"))
        dsum(A, XR, 20, False)
        dsum(B, XR, 20, True)
        k("v_add_f32 v%d, v%d, v%d\nv_add_f32 v%d, v%d, v%d" % (A, A, A+1, B, B, B+1))
        row_sum([A, B])
        k("v_mul_f32 v%d, %s, v%d" % (A, f32(1/640.), A))
        k("v_mul_f32 v%d, %s, v%d" % (B, f32(1/640.), B))
        k("v_fma_f32 v%d, -v%d, v%d, v%d\nv_max_f32 v%d, 0, v%d" % (B, A, A, B, B, B))
        bf16r(B, B)
        k("v_add_f32 v%d, %s, v%d" % (B, f32(1e-5), B))
        bf16r(B, B)
        k("v_sqrt_f32 v%d, v%d" % (B, B))
        k("v_cvt_pk_bf16_f32 v%d, v%d, v%d\nv_mov_b32 v%d, s%d" % (T+44, A, B, T+45, sNon))
        k("s_lshl_b32 s%d, s%d, 5\ns_add_u32 s%d, s%d, 0x%x" % (sT0, sC, sT0, sT0, RST_OFF))
        k("v_lshlrev_b32 v%d, 3, v%d" % (vT[2], vG))
        k("s_mov_b32 exec_lo, 0x00010001\ns_mov_b32 exec_hi, 0x00010001")
        k("buffer_store_dwordx2 %s, v%d, %s, s%d offen%s" % (vr(T+44, 2), vT[2], sq(SWS), sT0, SC))
        k("s_mov_b64 exec, -1")
        k("s_cmp_eq_u32 s%d, 1\ns_cbranch_scc1 L_k1_D1b" % sMH)
        k("v_and_b32 v%d, 1, v%d\nv_lshlrev_b32 v%d, 4, v%d\nv_mov_b32 v%d, 0x3f80\nv_lshlrev_b32 v%d, v%d, v%d" % (T+8, vM, T+8, T+8, T+9, T+8, T+8, T+9))
        k("v_bfe_u32 v%d, v%d, 1, 2" % (T+9, vM))
        for d in range(4): k("v_cmp_eq_u32 vcc, %d, v%d\nv_cndmask_b32 v%d, 0, v%d, vcc" % (d, T+9, T+d, T+8))
        for a in range(16): k("v_mfma_f32_16x16x32_bf16 %s, %s, %s, %s" % (vr(T+4, 4), vr(T, 4), vr(YR+4*a, 4), vr(T+4, 4) if a else "0"))
        k("s_lshl_b32 s%d, s%d, 9\ns_add_u32 s%d, s%d, 0x%x\ns_cmp_lt_u32 s%d, 240\ns_cselect_b32 s%d, s%d, 0x%x" % (sT0, sG_, sT0, sT0, SG_OFF, sG_, sT0, sT0, WS_NREC))
        k("v_lshlrev_b32 v%d, 5, v%d\nv_lshl_add_u32 v%d, v%d, 6, v%d\nv_add_u32 v%d, s%d, v%d" % (T+8, vG, T+8, vSL, T+8, T+8, sT0, T+8))
        for r in range(4): k("v_mov_b32 v%d, s%d" % (T+13+2*r, sNon))
        for r in range(4): k("v_add_f32_dpp v%d, v%d, v%d%s" % (T+12+2*r, T+4+r, T+4+r, DPP))
        k("s_mov_b32 exec_lo, 0x00ff00ff\ns_mov_b32 exec_hi, 0")
        k("buffer_store_dwordx4 %s, v%d, %s, 0 offen%s" % (vr(T+12, 4), T+8, sq(SWS), SC))
        k("buffer_store_dwordx4 %s, v%d, %s, 0 offen offset:16%s" % (vr(T+16, 4), T+8, sq(SWS), SC))
        k("s_mov_b64 exec, -1")
        k("s_branch L_k1_Dc")
        k("L_k1_D1b:")
        for hh in range(2): dsum(A+2*hh, YR+20*hh, 20, False)
        k("v_add_f32 v%d, v%d, v%d\nv_add_f32 v%d, v%d, v%d" % (A, A, A+1, A+2, A+2, A+3))
        row_sum([A, A+2])
        k("v_mov_b32 v%d, s%d\nv_mov_b32 v%d, s%d" % (A+1, sNon, A+3, sNon))
        k("s_lshl_b32 s%d, s%d, 6\ns_add_u32 s%d, s%d, 0x%x\ns_cmp_lt_u32 s%d, 160\ns_cselect_b32 s%d, s%d, 0x%x" % (sT0, sG_, sT0, sT0, SB_OFF, sG_, sT0, sT0, WS_NREC))
        k("v_add_u32 v%d, s%d, v%d" % (vT[3], sT0, vT[2]))
        k("s_mov_b32 exec_lo, 0x00010001\ns_mov_b32 exec_hi, 0x00010001")
        k("buffer_store_dwordx2 %s, v%d, %s, 0 offen%s" % (vr(A, 2), vT[3], sq(SWS), SC))
        k("buffer_store_dwordx2 %s, v%d, %s, 0 offen offset:32%s" % (vr(A+2, 2), vT[3], sq(SWS), SC))
        k("s_mov_b64 exec, -1")
        k("L_k1_Dc:")
    def do_pack():
        ev(3)
        PSC = S1
        k("s_waitcnt vmcnt(%d)" % (1 + 3*(5-B1) if PK1 else 3))
        k("s_cmp_eq_u32 s%d, 1\ns_cbranch_scc1 %s" % (sTY, "L_k1_pdd" if PA else "L_k1_pdC"))
        k("s_cmp_ge_u32 s%d, 48\ns_cbranch_scc1 L_k1_pdd" % sPQ[0])
        k("s_mul_i32 s%d, s%d, %d\ns_add_u32 s%d, s%d, 49152" % (sT2, sMH, SL, sT2, sT2))
        k("v_lshlrev_b32 v%d, 4, v%d\nv_add_u32 v%d, s%d, v%d" % (T+1, vL, T, sT2, T+1))
        k("v_lshrrev_b32 v%d, 2, v%d\nv_lshl_add_u32 v%d, v%d, 2, v%d\nv_lshlrev_b32 v%d, 7, v%d" % (T+2, vM, T+2, vG, T+2, T+2, T+2))
        k("v_and_b32 v%d, 3, v%d\nv_lshl_add_u32 v%d, v%d, 3, v%d\nv_add_u32 v%d, s%d, v%d" % (T+3, vM, T+2, T+3, T+2, T+2, sT2, T+2))
        k("v_lshl_add_u32 v%d, v%d, 3, v%d\nv_lshl_add_u32 v%d, v%d, 4, s%d" % (T+3, vSL, vII, T+3, T+3, sT2))
        k("v_lshrrev_b32 v%d, 1, v%d\nv_mul_u32_u24 v%d, 5120, v%d" % (T+4, cc_, T+4, T+4))
        k("v_and_b32 v%d, 1, v%d\nv_lshl_add_u32 v%d, v%d, 5, v%d\nv_lshl_add_u32 v%d, v%d, 4, v%d" % (T+5, cc_, T+5, T+5, cr_, T+4, T+5, T+4))
        def lds_w(n):
            for a in range(4): k("ds_write_b128 v%d, %s offset:%d" % (T, vr(PK+16*n+4*a, 4), a*1024))
            for c4 in range(4):
                k("ds_read_b64_tr_b16 %s, v%d offset:%d" % (vr(PK+16*n+c4*4, 2), T+2, c4*32))
                k("ds_read_b64_tr_b16 %s, v%d offset:%d" % (vr(PK+16*n+c4*4+2, 2), T+2, c4*32+2048))
        def lds_c(n):
            for a in range(4): k("ds_write_b128 v%d, %s offset:%d" % (T, vr(PK2+16*n+4*a, 4), a*1024))
            for a in range(4): k("ds_read_b128 %s, v%d offset:%d" % (vr(PK2+16*n+4*a, 4), T+3, a*1024))
        def st_w(n):
            for c4 in range(4):
                k("s_lshl_b32 s%d, s%d, 2\ns_add_u32 s%d, s%d, %d\ns_mul_i32 s%d, s%d, 52\ns_lshr_b32 s%d, s%d, 8" % (sT0, sPR[n], sT0, sT0, c4, sT1, sT0, sT1, sT1))
                k("s_mul_i32 s%d, s%d, 435\ns_add_u32 s%d, s%d, s%d\ns_mul_i32 s%d, s%d, 5\ns_add_u32 s%d, s%d, s%d" % (sT1, sT1, sT1, sT1, sT0, sT0, sPQ[n], sT1, sT1, sT0))
                k("s_lshl_b32 s%d, s%d, 10\ns_add_u32 s%d, s%d, %d" % (sT1, sT1, sT1, sT1, B2_OFF))
                k("buffer_store_dwordx4 %s, v%d, %s, s%d offen%s" % (vr(PK+16*n+c4*4, 4), T+1, sq(SWS), sT1, PSC))
        def st_c(n):
            k("s_mul_i32 s%d, s%d, 52\ns_lshr_b32 s%d, s%d, 8\ns_mul_i32 s%d, s%d, 435\ns_add_u32 s%d, s%d, s%d" % (sT1, sPQ[n], sT1, sT1, sT1, sT1, sT1, sT1, sPQ[n]))
            k("s_mul_i32 s%d, s%d, 20\ns_add_u32 s%d, s%d, s%d\ns_add_u32 s%d, s%d, 240\ns_lshl_b32 s%d, s%d, 10\ns_add_u32 s%d, s%d, %d" % (sT0, sPR[n], sT1, sT1, sT0, sT1, sT1, sT1, sT1, sT1, sT1, B2_OFF))
            for r in range(8, 16): k("v_xor_b32 v%d, 0x80008000, v%d" % (PK2+16*n+r, PK2+16*n+r))
            for part in range(2):
                for hh in range(2):
                    k("buffer_store_dwordx4 %s, v%d, %s, s%d offen offset:%d%s" % (vr(PK2+16*n+(part*2+hh)*4, 4), T+4, sq(SWS), sT1, part*256+hh*128, PSC))
        assert CL
        lds_w(0)
        k("s_waitcnt lgkmcnt(3)")
        lds_w(1)
        k("s_waitcnt lgkmcnt(7)")
        lds_c(0)
        k("s_waitcnt lgkmcnt(7)")
        lds_c(1)
        st_w(0); st_w(1)
        k("s_cmp_ge_u32 s%d, 40\ns_cbranch_scc1 L_k1_pdd\ns_waitcnt lgkmcnt(0)" % sPQ[0])
        st_c(0); st_c(1)
        k("L_k1_pdd:")
        if opt("pw", 0):
            k("s_mul_i32 s%d, s%d, 22528\nv_lshlrev_b32 v%d, 4, v%d" % (sT0, sC, T+3, vL))
            for j in range(22):
                k("buffer_store_dwordx4 %s, v%d, %s, s%d offen offset:%d sc1" % (vr(XR, 4), T+3, sq(SWS), sT0, (j & 3)*1024))
                if j & 3 == 3: k("s_add_u32 s%d, s%d, 4096" % (sT0, sT0))
        ev(4)
    def do_flag():
        if PA: k("s_cmp_eq_u32 s%d, 1\ns_cbranch_scc1 L_k1_npf" % sTY)
        k("s_lshl_b32 s%d, s%d, 4\ns_add_u32 s%d, s%d, s%d\ns_lshl_b32 s%d, s%d, 3\ns_add_u32 s%d, s%d, s%d\ns_lshl_b32 s%d, s%d, 1\ns_add_u32 s%d, s%d, s%d" % (sT0, sTY, sT0, sT0, sI, sT0, sT0, sT0, sT0, sJJ, sT0, sT0, sT0, sT0, sMH))
        k("s_lshl_b32 s%d, s%d, 2\ns_add_u32 s%d, s%d, 0x%x\nv_mov_b32 v%d, s%d\nv_mov_b32 v%d, s%d" % (sT0, sT0, sT0, sT0, PF_OFF, T, sT0, T+1, sNon))
        k("s_waitcnt vmcnt(0)\ns_mov_b64 exec, 1")
        k("buffer_store_dword v%d, v%d, %s, 0 offen%s\ns_mov_b64 exec, -1" % (T+1, T, sq(SWS), SC))
        k("L_k1_npf:")
    if opt("dprio", 1): k("s_setprio 3")
    if PK1:
        do_pack()
        k("s_cmp_eq_u32 s%d, 1\ns_cbranch_scc1 L_k1_nw\ns_cmp_lt_u32 s%d, 40\ns_cbranch_scc1 L_k1_w16\ns_waitcnt vmcnt(0)\nL_k1_w16:\ns_waitcnt vmcnt(16)\nL_k1_nw:" % (sTY, sPQ[0]))
        ev(9)
        do_nonce(); ev(10); do_stats(); ev(11); do_flag()
        k("s_waitcnt vmcnt(3)")
    else:
        do_nonce(); do_stats(); do_pack(); do_flag()
    stamp(k, 2)
    if opt("dprio", 1) == 1: k("s_setprio 0")
    ev(5)
    TB = 48
    TG = 196
    CT = TRB + 4*80*TRP
    k("s_cmp_eq_u32 s%d, 0\ns_cbranch_scc1 L_k1_ntb" % sTY)
    param_ab(PP, 80, 85, vT[1])
    k("v_cvt_f32_u32 v%d, v%d\nv_mul_f32 v%d, %s, v%d\nv_mul_f32 v%d, %s, v%d" % (vT[1], vG, vT[2], f32(64.0), vT[1], vT[1], f32(16.0), vT[1]))
    cpow5(r5(TG), r5(TG+5), "1.0", 90, 95, 80, 85)
    cpow5(r5(TG+15), r5(TG+20), f32(16.0), 90, 95, 80, 85)
    cpow5(r5(TG+36), r5(TG+41), f32(256.0), 90, 95, 80, 85)
    cpow5(r5(TB), r5(TB+5), "v%d" % vT[2], 90, 95, 80, 85)
    cpow5(r5(TB+10), r5(TB+15), "v%d" % vT[1], 90, 95, 80, 85)
    lre, lim, t0, t1 = PP, PP+5, 90, 95
    KRd = [TG+26+2*q for q in range(5)]
    for q in range(5): k("v_add_f32 v%d, -1.0, v%d\nv_mul_f32 v%d, v%d, v%d" % (t0+q, TG+q, t1+q, lre+q, lre+q))
    for q in range(5): k("v_fmac_f32 v%d, v%d, v%d" % (t1+q, lim+q, lim+q))
    for q in range(5): k("v_rcp_f32 v%d, v%d" % (t1+q, t1+q))
    for q in range(5): k("v_mul_f32 v%d, v%d, v%d\nv_mul_f32 v%d, v%d, v%d" % (KRd[q], t0+q, lre+q, TG+10+q, TG+5+q, lre+q))
    for q in range(5): k("v_fmac_f32 v%d, v%d, v%d\nv_fma_f32 v%d, -v%d, v%d, v%d" % (KRd[q], TG+5+q, lim+q, TG+10+q, t0+q, lim+q, TG+10+q))
    for q in range(5): k("v_add_f32 v%d, v%d, v%d" % (t1+q, t1+q, t1+q))
    for q in range(5): k("v_mul_f32 v%d, v%d, v%d\nv_mul_f32 v%d, v%d, v%d" % (KRd[q], KRd[q], t1+q, TG+10+q, TG+10+q, t1+q))
    k("L_k1_ntb:")
    EI = 16
    aSt, aS0, aS1 = 40, 41, 42
    k("s_lshl_b32 s%d, s%d, 1\ns_add_u32 s%d, s%d, s%d\ns_lshl_b32 s%d, s%d, 9\ns_add_u32 s%d, s%d, 0x%x" % (sT0, sI, sT0, sT0, sMH, sT0, sT0, sT0, sT0, RST_OFF))
    k("v_lshrrev_b32 v%d, 2, v%d\nv_lshlrev_b32 v%d, 4, v%d\nv_lshl_add_u32 v%d, v%d, 2, v%d" % (aSt, vM, aSt, aSt, aSt, vG, aSt))
    k("v_and_b32 v%d, 3, v%d\nv_add_u32 v%d, v%d, v%d\nv_lshl_add_u32 v%d, v%d, 3, s%d" % (aS0, vM, aSt, aSt, aS0, aSt, aSt, sT0))
    k("s_cmp_eq_u32 s%d, 1\ns_cbranch_scc1 L_k1_eaB" % sTY)
    k("s_lshl_b32 s%d, s%d, 6\ns_add_u32 s%d, s%d, s%d\ns_lshl_b32 s%d, s%d, 3\ns_add_u32 s%d, s%d, 0x%x" % (sT0, sMH, sT0, sT0, sCol, sT0, sT0, sT0, sT0, SG_OFF))
    k("v_lshl_add_u32 v%d, v%d, 3, s%d\nv_add_u32 v%d, %d, v%d" % (aS0, vL, sT0, aS1, 1536*8, aS0))
    k("s_mov_b32 s%d, %d" % (sKw, 3072*8))
    k("s_branch L_k1_ead")
    k("L_k1_eaB:")
    k("s_lshl_b32 s%d, s%d, 5\ns_add_u32 s%d, s%d, s%d\ns_lshl_b32 s%d, s%d, 3\ns_add_u32 s%d, s%d, 0x%x" % (sT0, sMH, sT0, sT0, sCol, sT0, sT0, sT0, sT0, SG_OFF))
    k("v_lshrrev_b32 v%d, 5, v%d\nv_mul_u32_u24 v%d, 1504, v%d\nv_add_u32 v%d, v%d, v%d\nv_lshl_add_u32 v%d, v%d, 3, s%d" % (aS0, vL, aS0, aS0, aS0, aS0, vL, aS0, aS0, sT0))
    k("s_mul_i32 s%d, s%d, 80\ns_mul_i32 s%d, s%d, 40\ns_add_u32 s%d, s%d, s%d\ns_lshl_b32 s%d, s%d, 3\ns_add_u32 s%d, s%d, 0x%x" % (sT0, sJJ, sT1, sMH, sT0, sT0, sT1, sT0, sT0, sT0, sT0, SB_OFF))
    k("v_lshrrev_b32 v%d, 3, v%d\nv_mul_u32_u24 v%d, 640, v%d\nv_add_u32 v%d, v%d, v%d\nv_lshl_add_u32 v%d, v%d, 3, s%d" % (aS1, vM, aS1, aS1, aS1, aS1, vSL, aS1, aS1, sT0))
    k("s_mov_b32 s%d, 64" % sKw)
    k("L_k1_ead:")
    if opt("dprio", 1) == 2: k("s_setprio 0")
    ev(6)
    k("s_lshl_b32 s%d, s%d, 2\ns_add_u32 s%d, s%d, %d\nv_mov_b32 v%d, s%d\nv_mov_b32 v%d, s%d\nv_lshlrev_b32 v43, 4, v%d" % (sT0, sMH, sT0, sT0, FLG+24, T+6, sT0, T+7, sNon, vL))
    PFW = 2 if PA else 4
    def pf_load(): return "buffer_load_dwordx%d v[44:%d], v%d, %s, s%d offen%s" % (PFW, 43+PFW, T+12, sq(SWS), sKx, SC)
    def pf_eval(ok):
        k("v_xor_b32 v%d, s%d, v44" % (T, sNon))
        for r_ in range(45, 44+PFW): k("v_xor_b32 v%d, s%d, v%d\nv_or_b32 v%d, v%d, v%d" % (T+1, sNon, r_, T, T, T+1))
        k("v_cmp_ne_u32 vcc, 0, v%d" % T)
    k("s_mul_i32 s%d, s%d, %d\ns_add_u32 s%d, s%d, 0x%x\nv_mul_u32_u24 v%d, %d, v%d\ns_mov_b32 s70, 0" % (sKx, sMH, PFW*256, sKx, sKx, PF_OFF, T+12, PFW*4, vL))
    wait_word("L_k1_eg", 20, "%d" % opt("eigate", 7), T, T+1)
    if opt("cpf", 6) & 2: code_touch("b")
    ev(7)
    k("s_mov_b32 s%d, 0" % sT3)
    k("L_k1_eil:")
    k("buffer_load_dwordx2 %s, v%d, %s, 0 offen%s" % (vr(EI, 2), aSt, sq(SWS), SC))
    for p in range(5):
        k("s_mov_b32 s%d, %d\ns_mul_i32 s%d, s%d, %d" % (sT0, p*3072*8, sT1, sKw, p))
        k("buffer_load_dwordx2 %s, v%d, %s, s%d offen%s" % (vr(EI+2+2*p, 2), aS0, sq(SWS), sT0, SC))
        k("buffer_load_dwordx2 %s, v%d, %s, s%d offen%s" % (vr(EI+12+2*p, 2), aS1, sq(SWS), sT1, SC))
    k("s_waitcnt vmcnt(0)")
    k("v_xor_b32 v%d, s%d, v%d" % (T, sNon, EI+1))
    for r_ in [EI+3+2*p for p in range(10)]: k("v_xor_b32 v%d, s%d, v%d\nv_or_b32 v%d, v%d, v%d" % (T+1, sNon, r_, T, T, T+1))
    k("v_cmp_ne_u32 vcc, 0, v%d" % T)
    k("s_add_u32 s%d, s%d, 1" % (sT3, sT3))
    k("s_cbranch_vccz L_k1_eid")
    k("s_sleep 16\ns_cmp_lt_u32 s%d, 0x40000\ns_cbranch_scc1 L_k1_eil" % sT3)
    k("L_k1_eid:")
    ev(8)
    U = T+16
    k("v_lshlrev_b32 v%d, 16, v%d\nv_and_b32 v%d, s%d, v%d\nv_rcp_f32 v%d, v%d" % (U, EI, U+1, sMASK, EI, U+2, U+1))
    k("s_mul_i32 s%d, s%d, 768\ns_add_u32 s%d, s%d, %d" % (sT0, sMH, sT0, sT0, STAT_M))
    k("v_lshl_add_u32 v%d, v%d, 2, s%d" % (U+3, vL, sT0))
    def sum5(b): k("v_add_f32 v%d, v%d, v%d\nv_add_f32 v%d, v%d, v%d\nv_add_f32 v%d, v%d, v%d\nv_add_f32 v%d, v%d, v%d" % (b, b, b+2, b+4, b+4, b+6, b, b, b+8, b, b, b+4))
    sum5(EI+2)
    k("s_lshl_b32 s%d, s%d, 9\ns_add_u32 s%d, s%d, %d" % (sT0, sMH, sT0, sT0, SFF))
    k("v_lshl_add_u32 v%d, v%d, 2, s%d" % (U+4, vL, sT0))
    for p in range(5): k("v_mov_b32 v%d, v%d" % ([TG+27, TG+29, TG+31, TG+33, TG+25][p], EI+12+2*p))
    sum5(EI+12)
    k("s_mul_i32 s%d, s%d, %d\ns_add_u32 s%d, s%d, %d\nv_add_u32 v43, s%d, v43" % (sT0, sMH, 2*80*TRP, sT0, sT0, TRB, sT0))
    k("s_mul_i32 s%d, s%d, 3072\ns_add_u32 s%d, s%d, %d\nv_lshl_add_u32 v%d, v%d, 4, s%d" % (sT0, sMH, sT0, sT0, CT, U+5, vM, sT0))
    tab_base("D", 68)
    def ei_writes():
        k("ds_write_b32 v%d, v%d\nds_write_b32 v%d, v%d offset:256\nds_write_b32 v%d, v%d offset:512" % (U+3, U, U+3, U+2, U+3, U+1))
        k("ds_write_b32 v%d, v%d" % (U+4, EI+2))
        k("s_cmp_eq_u32 s%d, 1\ns_cbranch_scc1 L_k1_ewB" % sTY)
        k("ds_write_b32 v%d, v%d offset:256" % (U+4, EI+12))
        k("s_branch L_k1_ewd")
        k("L_k1_ewB:")
        k("v_mov_b32 v%d, %d" % (T+2, DNA))
        wait_done("L_k1_tbw", "16", T+2, T+8)
        for qd in range(12): k("ds_write_b128 v%d, %s offset:%d" % (U+5, vr(TG+4*qd, 4), qd*256))
        for w2 in range(2):
            for qd in range(5): k("ds_write_b128 v43, %s offset:%d" % (vr(TB+4*qd, 4), w2*80*TRP+qd*1024))
        k("L_k1_ewd:")
        k("ds_write_b32 v%d, v%d" % (T+6, T+7))
    def pf_ok():
        k("s_lshl_b32 s%d, s%d, 2\ns_add_u32 m0, s%d, %d\nv_mov_b32 v%d, 4\ns_mov_b64 exec, 1\nglobal_load_lds_dword v%d, s[68:69]\ns_mov_b64 exec, -1" % (sT0, sMH, sT0, FLG+40, T, T))
    WM = opt("wm", 2)
    PFE = opt("pfe", 0)
    if PFE:
        wait_word("L_k1_pg2", 20, "%d" % PFE, T, T+1)
        k(pf_load() + "\ns_waitcnt vmcnt(0)")
        pf_eval(None)
        k("s_mov_b32 s70, 1\ns_cbranch_vccnz L_k1_pno\ns_mov_b32 s70, 0")
        pf_ok()
        k("L_k1_pno:")
    if WM == 0: ei_writes()
    wait_word("L_k1_pg", 36, "10", T, T+1)
    if not PFE: k(pf_load())
    if WM == 1:
        wait_word("L_k1_rg0", 16, "10", T, T+1)
        wait_word("L_k1_rg1", 20, "10", T, T+1)
    if WM: ei_writes()
    if PFE: k("s_cmp_eq_u32 s70, 0\ns_cbranch_scc1 L_k1_P2\n" + pf_load())
    k("s_mov_b32 s%d, 0\ns_branch L_k1_pfc" % sT3)
    k("L_k1_pfl:")
    k("s_sleep 12\n" + pf_load())
    k("L_k1_pfc:")
    k("s_waitcnt vmcnt(0)")
    pf_eval(None)
    k("s_add_u32 s%d, s%d, 1" % (sT3, sT3))
    k("s_cbranch_vccz L_k1_pfo")
    k("s_cmp_lt_u32 s%d, 0x40000\ns_cbranch_scc1 L_k1_pfl" % sT3)
    k("L_k1_pfo:")
    k("ds_write_b32 v%d, v%d offset:16" % (T+6, T+7))
    k("L_k1_P2:")
    if opt("p2prio", 0): k("s_setprio %d" % opt("p2prio", 0))
    stamp(k, 1)
    if TRACE:
        k("s_lshl_b32 s83, s2, 11\ns_add_u32 s83, s83, 0x%x\nv_lshl_add_u32 v12, v0, 2, s83" % (STAMP_OFF + 0x40000))
        k("global_store_dword v12, v255, %s" % sp(pWs))
    LD2 = ["", " sc1", " nt", " sc0 sc1", " sc1 nt"][opt("ld2", 1)]
    sP, sMI, sNI = 4, 5, 6
    sAb, sBb = [72, 73, 74], [75, 76, 77]
    sR, sSh = 78, 79
    SO = SX
    AR, BR, AC = 12, 76, 176
    vA = [2, 3, 4, 5]; vB0, vB1, vOut, vLd, vFl, vFa = 6, 7, 8, 9, 10, 11
    k("s_sub_u32 s%d, s%d, 4" % (sP, sW))
    k("s_and_b32 s%d, s2, 7\ns_lshr_b32 s%d, s2, 3" % (sT0, sT1))
    p2map(sMI, sNI)
    X_, D_, ST_, PFr, tA, tB, tC = AR, AR+10, AR+20, AR+24, AR+32, AR+33, AR+34
    k("v_bfe_u32 v%d, v%d, 1, 2\nv_xor_b32 v%d, v%d, v%d\nv_mul_u32_u24 v%d, 320, v%d\nv_lshl_add_u32 v%d, v%d, 4, v%d" % (tA, vM, tA, tA, vG, vOut, vM, vOut, tA, vOut))
    k("v_lshlrev_b32 v%d, 4, v%d\nv_add_u32 v%d, 4096, v%d" % (vB0, vL, vB1, vB0))
    for f in range(4): k("s_xor_b32 s%d, s%d, %d\ns_lshl_b32 s%d, s%d, 10\nv_add_u32 v%d, s%d, v%d" % (sT0, sP, f, sT0, sT0, vA[f], sT0, vB0))
    k("s_mul_i32 s%d, s%d, %d\ns_mul_i32 s%d, s%d, %d\ns_add_u32 s%d, s%d, 0x%x" % (sBb[0], sMI, 88*4096, sBb[1], sNI, 88*5120, sBb[1], sBb[1], B2_OFF))
    for g, (mul, add) in enumerate(((8, 0), (4, 32), (10, 48))):
        k("s_mul_i32 s%d, s%d, %d\ns_add_u32 s%d, s%d, %d" % (sAb[g], sP, mul, sAb[g], sAb[g], add))
    def region(dst, src):
        k("s_and_b32 s%d, s%d, 1\ns_mul_i32 s%d, s%d, 25600\ns_cmp_lt_u32 s%d, 2\ns_cselect_b32 s%d, %d, 0\ns_add_u32 s%d, s%d, s%d" % (dst, src, dst, dst, src, sT0, 2*SL, dst, dst, sT0))
    region(sR, sP)
    k("v_add_u32 v%d, s%d, v%d\nv_add_u32 v%d, s%d, v%d" % (vLd, sR, vB0, vOut, sR, vOut))
    k("s_lshl_b32 s%d, s%d, 2\ns_add_u32 s%d, s%d, s%d\ns_mul_i32 s%d, s%d, %d\ns_add_u32 s%d, s%d, 0x%x" % (sSh, sMI, sSh, sSh, sP, sSh, sSh, FLS_, sSh, sSh, FL_OFF))
    k("s_lshl_b32 s%d, s%d, 2\ns_add_u32 s%d, s%d, %d\nv_mov_b32 v%d, s%d\nv_mov_b32 v%d, %d" % (sT0, sP, sT0, sT0, FLG+64, vFa, sT0, PFr+2, FLG+32))
    steps = [(0, i) for i in (0, 2, 4, 6, 1, 3, 5, 7)] + [(1, i) for i in range(4)] + [(2, i) for i in range(10)]
    fgrp = {0: 0, 4: 3, 8: 1, 12: 2}
    ORD = opt("ord2", 0)
    pos = [0, 4, 8]
    if ORD == 1: fgrp = {0: 1, 4: 0, 8: 3, 12: 2}; pos = [4, 8, 0]
    if ORD == 2: fgrp = {0: 0, 4: 1, 8: 3, 12: 2}; pos = [0, 8, 4]
    NS = len(steps)
    sK = list(range(16, 32)) + list(range(34, 40))
    ROT = opt("rot", 0)
    k("s_lshr_b32 s%d, s2, 3\ns_and_b32 s%d, s%d, 7\ns_lshr_b32 s%d, s%d, 3" % (sT1, sT0, sT1, sT1, sT1))
    if ROT:
        k("s_add_u32 s%d, s%d, s%d\ns_and_b32 s%d, s%d, 3" % (sT2, sT0, sT1, sT2, sT2))
        k("s_mul_i32 s%d, s%d, 3\ns_add_u32 s%d, s%d, s%d\ns_cmp_ge_u32 s%d, 10\ns_cselect_b32 s%d, 10, 0\ns_sub_u32 s%d, s%d, s%d" % (sT3, sT1, sT3, sT3, sT0, sT3, sT0, sT3, sT3, sT0))
    else:
        k("s_mov_b32 s%d, 0\ns_mov_b32 s%d, 0" % (sT2, sT3))
    for j in range(4):
        k("s_add_u32 s%d, s%d, %d\ns_and_b32 s%d, s%d, 3\ns_add_u32 s%d, s%d, s%d\ns_lshl_b32 s%d, s%d, 1\ns_add_u32 s%d, s%d, s%d\ns_add_u32 s%d, s%d, 1" %
          (sT0, sT2, j, sT0, sT0, sK[pos[2]+j], sT0, sAb[1], sT0, sT0, sK[pos[0]+j], sT0, sAb[0], sK[pos[1]+j], sK[pos[0]+j]))
    for j in range(10):
        k("s_add_u32 s%d, s%d, %d\ns_cmp_ge_u32 s%d, 10\ns_cselect_b32 s%d, 10, 0\ns_sub_u32 s%d, s%d, s%d\ns_add_u32 s%d, s%d, s%d" % (sT0, sT3, j, sT0, sT1, sT0, sT0, sT1, sK[12+j], sT0, sAb[2]))
    LS = [[7, 10, 13, 16, 19], [17, 18, 19, 20, 21], [9, 12, 15, 18, 21], [13, 15, 17, 19, 21], [], [20, 21], [5, 7, 9, 11, 13], [6, 9, 12, 15, 18], [2, 4, 6, 8, 10], [3, 6, 9, 12, 15], [4, 8, 12, 16, 20]][opt("lsl", 2)]
    NA, NB = 4, 5
    vm = []
    THR = opt("thr", 0)
    def ldB(s, buf):
        g, i = steps[s]
        o = (["s_waitcnt vmcnt(%d)" % THR] if THR else []) + ["s_mul_i32 s%d, s%d, 5120\ns_add_u32 s%d, s%d, s%d" % (sT1, sK[s], sT1, sT1, sBb[1])]
        for f in range(5):
            o.append("buffer_load_dwordx4 %s, v%d, %s, s%d offen offset:%d%s" % (vr(BR+buf*20+f*4, 4), vB1 if f == 4 else vB0, sq(SWS), sT1, (f & 3)*1024, LD2))
            vm.append(("B", s))
        return o
    def ldA(s):
        g, i = steps[s]
        o = (["s_waitcnt vmcnt(%d)" % THR] if THR else []) + ["s_lshl_b32 s%d, s%d, 12\ns_add_u32 s%d, s%d, s%d" % (sT0, sK[s], sT0, sT0, sBb[0])]
        for f in range(4):
            o.append("buffer_load_dwordx4 %s, v%d, %s, s%d offen%s" % (vr(AR+(s % NA)*16+f*4, 4), vA[f], sq(SWS), sT0, LD2))
            vm.append(("A", s))
        return o
    def vwait(tags):
        idx = max(i for i, x in enumerate(vm) if x in tags)
        return min(63, len(vm)-1-idx)
    bbuf = {}
    k("L_k1_p2e:")
    k("ds_read_b64 %s, v%d offset:8\ns_waitcnt lgkmcnt(0)\nv_min_u32 v%d, v%d, v%d\nv_readfirstlane_b32 s%d, v%d" % (vr(PFr+4, 2), PFr+2, PFr+4, PFr+4, PFr+5, sT0, PFr+4))
    k("s_cmp_lg_u32 s%d, 0\ns_cbranch_scc1 L_k1_p2eo\ns_sleep 1\ns_branch L_k1_p2e\nL_k1_p2eo:" % sT0)
    streamed = [s for s in range(NS) if s not in LS]
    NPRE = opt("npre", NB)
    XB = opt("xb", 0)
    if XB:
        bbuf[0] = -1
        for x in ldB(0, -1): k(x)
        streamed = streamed[1:]
    for j in range(NB):
        bbuf[streamed[j]] = j
        if j < NPRE:
            for x in ldB(streamed[j], j): k(x)
    nextB = NB
    srd(k, SO, pOut, 2048*640*4)
    k("v_mov_b32 v%d, %d" % (AR+8, DNA))
    k("s_and_b32 s%d, s%d, 2\ns_add_u32 s%d, s%d, 18" % (sT1, sP, sT1, sT1))
    stamp(k, 2)
    k("v_mov_b32 v%d, %d\nL_k1_p2n:" % (AR+9, FLG+24))
    k("ds_read_b64 %s, v%d\ns_waitcnt lgkmcnt(0)\nv_min_u32 v%d, v%d, v%d\nv_readfirstlane_b32 s%d, v%d" % (vr(AR+12, 2), AR+9, AR+12, AR+12, AR+13, sNon, AR+12))
    k("s_cmp_lg_u32 s%d, 0\ns_cbranch_scc1 L_k1_p2no\ns_sleep 1\ns_branch L_k1_p2n\nL_k1_p2no:" % sNon)
    wait_done("L_k1_p2w", "s%d" % sT1, AR+8, AR+12)
    for j, s_ in enumerate(LS):
        g, i = steps[s_]
        if THR: k("s_waitcnt vmcnt(%d)" % THR)
        k("s_add_u32 m0, s%d, %d\ns_mul_i32 s%d, s%d, 5120\ns_add_u32 s%d, s%d, s%d" % (sR, j*5120, sT1, sK[s_], sT1, sT1, sBb[1]))
        for f in range(4):
            k("buffer_load_dwordx4 v%d, %s, s%d offen offset:%d%s lds" % (vB0, sq(SWS), sT1, f*1024, LD2)); vm.append(("L", s_))
        k("s_add_u32 m0, s%d, %d" % (sR, j*5120+4096))
        k("buffer_load_dwordx4 v%d, %s, s%d offen%s lds" % (vB1, sq(SWS), sT1, LD2)); vm.append(("L", s_))
    if opt("tb", 0):
        assert not ROT
        rest = streamed[NB:]
        tv, tj = AR+40, AR+41
        k("v_mul_u32_u24 v%d, 52, v%d\nv_lshrrev_b32 v%d, 8, v%d" % (tj, vL, tj, tj))
        k("v_mov_b32 v%d, s%d" % (tv, sK[rest[0]]))
        for j in range(1, len(rest)):
            k("v_cmp_le_u32 vcc, %d, v%d\nv_mov_b32 v%d, s%d\nv_cndmask_b32 v%d, v%d, v%d, vcc" % (j, tj, AR+42, sK[rest[j]], tv, tv, AR+42))
        k("v_mul_u32_u24 v%d, 5, v%d\nv_sub_u32 v%d, v%d, v%d" % (tj, tj, tj, vL, tj))
        k("s_lshr_b32 s%d, s2, 3\ns_and_b32 s%d, s%d, 7\ns_mul_i32 s%d, s%d, 640\ns_add_u32 s%d, s%d, s%d" % (sT0, sT0, sT0, sT0, sT0, sT0, sT0, sBb[1]))
        k("v_mul_u32_u24 v%d, 5120, v%d\nv_lshl_add_u32 v%d, v%d, 7, v%d" % (tv, tv, tv, tj, tv))
        k("buffer_load_dword v%d, v%d, %s, s%d offen%s" % (vFl, tv, sq(SWS), sT0, LD2)); vm.append(("T", 0))
    stamp(k, 3)
    k("s_add_u32 s40, s%d, s%d\ns_addc_u32 s41, s%d, 0" % (pWs, sSh, pWs+1))
    def flag_load(g):
        return "s_load_dwordx4 s[52:55], s[40:41], %d glc" % (g*16)
    def flag_check(g):
        lab = "L_k1_fc%d" % g
        k("s_mov_b32 s%d, 0\ns_branch %s_c" % (sT3, lab))
        k("%s_r:" % lab)
        k("s_sleep %d\n%s" % (opt("psl", 6), flag_load(g)))
        k("%s_c:" % lab)
        k("s_waitcnt lgkmcnt(0)")
        k("s_xor_b32 s52, s52, s%d\ns_xor_b32 s53, s53, s%d\ns_xor_b32 s54, s54, s%d\ns_xor_b32 s55, s55, s%d" % (sNon, sNon, sNon, sNon))
        k("s_add_u32 s%d, s%d, 1\ns_or_b64 s[52:53], s[52:53], s[54:55]\ns_cbranch_scc0 %s_d" % (sT3, sT3, lab))
        k("s_cmp_lt_u32 s%d, 0x100000\ns_cbranch_scc1 %s_r" % (sT3, lab))
        k("%s_d:" % lab)
        if opt("p2t", 0): k("s_memrealtime s[100:101]\ns_waitcnt lgkmcnt(0)\nv_writelane_b32 v1, s100, %d\nv_writelane_b32 v1, s%d, %d" % (32+g, sT3, 40+g))
    if opt("pd", 0): k("s_waitcnt vmcnt(0)\ns_sleep %d" % opt("pd", 0))
    k(flag_load(fgrp[0]))
    flag_check(fgrp[0])
    stamp(k, 4)
    if opt("p2clk", 0): k("s_memtime s[88:89]")
    for s_ in range(NB):
        if s_ < (2 if XB else NA):
            for x in ldA(s_): k(x)
        if s_ >= NPRE:
            for x in ldB(streamed[s_], s_): k(x)
    LEAD = {4: opt("ld3", 1), 8: opt("ld1", 2), 12: opt("ld2_", 2)}
    chkpos = {g: g - 1 - LEAD[g] for g in LEAD}
    nextA = 2 if XB else NA
    if chkpos[4] == 0: k(flag_load(fgrp[4]))
    EARLY = opt("early", 1)
    R5 = range(5)
    GOH = [BR + 40]
    def red_addr():
        GO = GOH[0]
        o = []
        for f in range(1, 4):
            o.append("s_xor_b32 s%d, s%d, %d\ns_and_b32 s%d, s%d, 1\ns_mul_i32 s%d, s%d, 25600" % (sT2, sP, f, sT1, sT2, sT1, sT1))
            o.append("s_cmp_lt_u32 s%d, 2\ns_cselect_b32 s%d, %d, 0\ns_add_u32 s%d, s%d, s%d" % (sT2, sT0, 2*SL, sT1, sT1, sT0))
            o.append("v_add_u32 v%d, s%d, v%d" % (vA[f], sT1, vB0))
        o.append("s_mul_i32 s%d, s%d, %d\ns_add_u32 s%d, s%d, %d\nv_add_u32 v%d, s%d, v%d" % (sT1, sP, 80*TRP, sT1, sT1, TRB, vA[0], sT1, vB0))
        o.append("v_lshrrev_b32 v%d, 4, v%d" % (vFl, vB0))
        o.append("s_lshl_b32 s%d, s%d, 6\ns_lshl_b32 s%d, s%d, 2\ns_add_u32 s%d, s%d, s%d" % (sT0, sMI, sT1, sP, sT0, sT0, sT1))
        o.append("s_mul_i32 s%d, s%d, 2560\ns_mul_i32 s%d, s%d, 320\ns_add_u32 s%d, s%d, s%d" % (sT0, sT0, sT1, sNI, sT3, sT0, sT1))
        e_, r_, q_, t_ = GO, GO+5, GO+10, GO+15
        for it in R5: o.append("v_add_u32 v%d, %d, v%d" % (e_+it, it*64, vFl))
        for it in R5: o.append("v_mul_u32_u24 v%d, 205, v%d" % (r_+it, e_+it))
        for it in R5: o.append("v_lshrrev_b32 v%d, 12, v%d" % (r_+it, r_+it))
        for it in R5: o += ["v_mul_u32_u24 v%d, 20, v%d" % (q_+it, r_+it), "v_bfe_u32 v%d, v%d, 1, 2" % (t_+it, r_+it)]
        for it in R5: o.append("v_sub_u32 v%d, v%d, v%d" % (q_+it, e_+it, q_+it))
        for it in R5: o += ["v_xor_b32 v%d, v%d, v%d" % (q_+it, q_+it, t_+it), "v_lshrrev_b32 v%d, 2, v%d" % (t_+it, r_+it)]
        for it in R5: o.append("v_mad_u32_u24 v%d, v%d, 12, v%d" % (r_+it, t_+it, r_+it))
        for it in R5: o.append("v_mul_u32_u24 v%d, 2560, v%d" % (r_+it, r_+it))
        for it in R5: o.append("v_lshl_add_u32 v%d, v%d, 4, v%d" % (GO+it, q_+it, r_+it))
        return o
    deadB = []
    pend = []
    for s_ in range(NS):
        fill = pend; pend = []
        need = [("A", s_)] + ([("B", s_)] if s_ not in LS else [])
        CSM_ = opt("csm", 1)
        if (CSM_ & 1 and s_ == 0) or (CSM_ & 2 and 0 < s_ < opt("csn", 12)):
            lab = "L_k1_cs%d" % s_
            if s_ == 0: k("%s_r:\nds_read_b32 v%d, v%d" % (lab, vFl, vFa))
            else: k("s_branch %s_c\n%s_r:\ns_sleep 1\nds_read_b32 v%d, v%d\n%s_c:" % (lab, lab, vFl, vFa, lab))
            k("s_waitcnt lgkmcnt(0)\nv_readfirstlane_b32 s%d, v%d\ns_cmp_eq_u32 s%d, 0\ns_cbranch_scc1 %s_r" % (sT2, vFl, sT2, lab))
        if CSM_ & 2 and s_+1 < opt("csn", 12): fill = fill + ["ds_read_b32 v%d, v%d" % (vFl, vFa)]
        mf_ = []
        for f in range(4):
            for cb in range(5):
                c = AC + (f*5+cb)*4
                mf_.append("v_mfma_f32_16x16x32_bf16 %s, %s, %s, %s" % (vr(c, 4), vr(BR+bbuf[s_]*20+cb*4, 4), vr(AR+(s_ % NA)*16+f*4, 4), vr(c, 4) if s_ else "0"))
        if opt("ilv", 1):
            nf = sum(1 for x in fill if x.startswith("buffer_load"))
            k("s_waitcnt vmcnt(%d)%s" % (max(0, vwait(need)-nf), " lgkmcnt(0)" if s_ in LS else ""))
            if opt("p2t", 0): k("s_memrealtime s[100:101]")
            if s_ == NS-1 and opt("ovl", 1):
                assert not fill
                fill = ["s_nop 0"]*5 + ["ds_write_b128 v%d, %s offset:%d" % (vOut, vr(AC+(f*5+cb)*4, 4), f*5120+cb*64) for f in range(3) for cb in range(5)]
            if EARLY and s_ in (NS-3, NS-2):
                if s_ == NS-3:
                    cand = list(deadB)
                    GOH[0] = BR + cand[0]*20
                    ra_ = red_addr()
                half = ra_[:36] if s_ == NS-3 else ra_[36:]
                interleave(k, mf_, fill + half, per=2)
            else: interleave(k, mf_, fill, per=1)
            if opt("p2t", 0): k("s_waitcnt lgkmcnt(0)\nv_writelane_b32 v1, s100, %d" % s_)
        else:
            for x in fill: k(x)
            k("s_waitcnt vmcnt(%d)%s" % (vwait(need), " lgkmcnt(0)" if s_ in LS else ""))
            if opt("p2t", 0): k("s_memrealtime s[100:101]")
            for x in mf_: k(x)
            if opt("p2t", 0): k("s_waitcnt lgkmcnt(0)\nv_writelane_b32 v1, s100, %d" % s_)
        for g_ in chkpos:
            if chkpos[g_] == s_:
                if fgrp[g_] == 2: stamp(k, 0)
                if fgrp[g_] == 2 and opt("p2clk", 0): k("s_memtime s[90:91]")
                flag_check(fgrp[g_])
                if fgrp[g_] == 2: stamp(k, 7)
        while nextA < NS and nextA <= s_ + NA and all(not (g_ <= nextA and chkpos[g_] > s_) for g_ in chkpos):
            pend += ldA(nextA); nextA += 1
        fb = bbuf[s_]
        if fb == -1: pass
        elif s_+2 in LS:
            bbuf[s_+2] = fb
            j = LS.index(s_+2)
            pend.append("s_waitcnt vmcnt(%d)" % vwait([("L", s_+2)]))
            for f in range(5): pend.append("ds_read_b128 %s, v%d offset:%d" % (vr(BR+fb*20+f*4, 4), vLd, j*5120+f*1024))
        elif nextB < len(streamed):
            bbuf[streamed[nextB]] = fb
            pend += ldB(streamed[nextB], fb); nextB += 1
        else: deadB.append(fb)
        for g_ in chkpos:
            if chkpos[g_] == s_+1: pend.insert(0, flag_load(fgrp[g_]))
    stamp(k, 5)
    OSC = ["", " sc1", " nt", " sc0 sc1"][opt("osc", 1)]
    wr_last = ["ds_write_b128 v%d, %s offset:%d" % (vOut, vr(AC+(f*5+cb)*4, 4), f*5120+cb*64) for f in ((3,) if opt("ovl", 1) else (1, 2, 3, 0)) for cb in range(5)]
    for x in wr_last: k(x)
    if not EARLY:
        for x in red_addr(): k(x)
    k("s_waitcnt lgkmcnt(0)\ns_barrier")
    RB = [r for r in range(AR, 236, 20) if not (r < GOH[0]+20 and GOH[0] < r+20)][:5]
    for it in R5:
        for f in range(5):
            a_, off = (vA[f], f*5120) if f < 4 else (vLd, 0)
            if f == 0: off = 0
            k("ds_read_b128 %s, v%d offset:%d" % (vr(RB[it]+f*4, 4), a_, off+it*1024))
        if it == 2: k("s_waitcnt lgkmcnt(5)")
    for it in R5:
        k("s_waitcnt lgkmcnt(%d)" % min(15, 20-5*it))
        q = RB[it]
        for h in range(0, 4, 2):
            k("v_pk_add_f32 %s, %s, %s\nv_pk_add_f32 %s, %s, %s" % (vr(q+h, 2), vr(q+h, 2), vr(q+4+h, 2), vr(q+8+h, 2), vr(q+8+h, 2), vr(q+12+h, 2)))
        for h in range(0, 4, 2): k("v_pk_add_f32 %s, %s, %s" % (vr(q+h, 2), vr(q+h, 2), vr(q+16+h, 2)))
        for h in range(0, 4, 2): k("v_pk_add_f32 %s, %s, %s" % (vr(q+h, 2), vr(q+h, 2), vr(q+8+h, 2)))
        k("buffer_store_dwordx4 %s, v%d, %s, s%d offen%s" % (vr(q, 4), GOH[0]+it, sq(SO), sT3, OSC))
    stamp(k, 6)
    if opt("p2t", 0):
        k("s_lshl_b32 s83, s2, 11\ns_add_u32 s83, s83, 0x%x\nv_lshl_add_u32 v12, v0, 2, s83" % (STAMP_OFF + 0x40000))
        k("global_store_dword v12, v1, %s" % sp(pWs))
    stamp_out(k, 0, 8, pWs, 76)
    k("s_endpgm")

    k("L_k1_C:")
    decode()
    k("v_mov_b32 v%d, 0\nv_lshlrev_b32 v%d, 2, v%d\nv_add_u32 v%d, %d, v%d\nds_write2_b32 v%d, v%d, v%d offset1:16" % (vT[1], vT[2], vM, vT[2], FLG, vT[2], vT[2], vT[1], vT[1]))
    k("s_lshl_b32 s%d, s%d, 8\ns_add_u32 s%d, s%d, %d\nv_mov_b32 v%d, s%d\nds_write_b32 v%d, v%d\ns_mov_b32 m0, s%d" % (sT0, sW, sT0, sT0, DNA, vT[2], sT0, vT[2], vT[1], sT0))
    tab_base("C", 56)
    k("s_waitcnt lgkmcnt(0)\ns_barrier")
    k("s_setprio %d" % (2 if opt("dprio", 1) else 3))
    k("s_mov_b64 s[48:49], %s\ns_mov_b64 s[50:51], %s\ns_mov_b64 s[52:53], %s" % (sp(pX), sp(pD), sp(pWs)))
    aX = [12, 13]; aW = [14, 15, 16, 17]
    XS = [20, 36]
    WR = 52
    ACC = 84
    k("v_lshrrev_b32 v%d, 1, v%d\nv_xor_b32 v%d, v%d, v%d\nv_lshlrev_b32 v%d, 4, v%d" % (vT[0], vM, vT[0], vT[0], vG, vT[0], vT[0]))
    k("v_lshl_add_u32 v%d, v%d, 7, v%d" % (vT[5], vM, vT[0]))
    k("s_lshl_b32 s%d, s%d, 13" % (sT0, sMH))
    k("v_add_u32 v%d, s%d, v%d\nv_xor_b32 v%d, 64, v%d" % (aX[0], sT0, vT[5], aX[1], aX[0]))
    k("v_lshrrev_b32 v%d, 2, v%d\nv_lshl_add_u32 v%d, v%d, 3, v%d\nv_lshlrev_b32 v%d, 7, v%d" % (vT[0], vM, vT[0], vG, vT[0], vT[0], vT[0]))
    k("v_and_b32 v%d, 1, v%d\nv_lshlrev_b32 v%d, 1, v%d\nv_lshrrev_b32 v%d, 3, v%d\nv_or_b32 v%d, v%d, v%d" % (vT[1], vG, vT[1], vT[1], vT[2], vM, vT[1], vT[1], vT[2]))
    k("v_lshl_add_u32 v%d, v%d, 5, v%d" % (vT[0], vT[1], vT[0]))
    k("v_and_b32 v%d, 3, v%d\nv_lshl_add_u32 v%d, v%d, 3, v%d\nv_add_u32 v%d, 16384, v%d" % (vT[1], vM, vT[0], vT[1], vT[0], vT[0], vT[0]))
    k("s_lshl_b32 s%d, s%d, 1\ns_add_u32 s%d, s%d, s%d" % (sC, sI, sC, sC, sMH))
    k("s_mov_b32 s%d, 0\ns_mov_b32 s%d, 0" % (sIt, sRd))
    k("s_cmp_eq_u32 s%d, 1\ns_cbranch_scc1 L_k1_CB" % sTY)

    def c_loop(tag, frags, R, D, WR, addr_regs, post):
        n = len(frags); N = 2*n
        assert N % R == 0
        def wreg(p): return WR + (p % R)*4
        def rdW(p): return frags[p % n][0]((p % N)//n, wreg(p))
        def rdX(h): return ["ds_read_b128 %s, v%d offset:%d" % (vr(XS[h]+4*b, 4), aX[h], b*2048) for b in range(4)]
        def mf(p): return [frags[p % n][1](b, XS[(p % N)//n]+4*b, wreg(p)) for b in range(4)]
        adv = ["s_mov_b32 s%d, %d\ns_add_u32 s%d, s%d, 1\ns_cmp_eq_u32 s%d, 3\ns_cselect_b32 s%d, 0, s%d\ns_cselect_b32 s%d, %d, s%d" % (sDelta, SL, sRd, sRd, sRd, sRd, sRd, sDelta, (-2*SL) & 0xffffffff, sDelta)]
        adv += ["v_add_u32 v%d, s%d, v%d" % (r, sDelta, r) for r in addr_regs]
        vFl, vFa, vDa, vDv = 18, vT[1], vT[2], vT[3]
        sF = sA
        import re as _re
        FLS = N - opt("fl", 3)
        def build():
            mfs = []; gaps = [[] for _ in range(4*N)]
            for j in range(N):
                loads = [("ld", x, ("W", j)) for x in rdW(j)]
                if j == 0: loads = [("ld", x, ("X0", b)) for b, x in enumerate(rdX(0)[:2])] + loads
                if j == 1: loads = [("ld", x, ("X0", b+2)) for b, x in enumerate(rdX(0)[2:])] + loads
                if D <= j < D+4: loads += [("ld", rdX(1)[j-D], ("X1", j-D))]
                if j == FLS: loads += [("ld", "ds_read_b64 %s, v%d " % (vr(vFl, 2), vFa), ("F", 0))]
                p = j - D
                ms = mf(p % N)
                for b in range(4):
                    need = [("W", p % N)] + [("X%d" % ((p % N)//n), bb) for bb in range(4)]
                    mfs.append(("mf", ms[b], (need, p < 0)))
                    if b < 3:
                        if loads: gaps[j*4+b].append(loads.pop(0))
                    else: gaps[j*4+b] += loads
            def place(e, lo, hi=4*N-1):
                for cap in (0, 1, 2, 3):
                    for g in range(lo, hi+1):
                        if len(gaps[g]) + (1 if g % 4 == 3 else 0) <= cap:
                            gaps[g].append(e); return g
                raise Exception
            g = 4*D
            def place_s(txt, lo):
                for g in range(lo, 4*N):
                    if len(gaps[g]) + (1 if g % 4 == 3 else 0) <= 1:
                        gaps[g].append(("x", txt, None)); return g
            for txt in ("s_add_u32 s%d, s%d, 1" % (sRd, sRd), "s_cmp_eq_u32 s%d, 3" % sRd, "s_cselect_b32 s%d, s14, s15" % sDelta, "s_cselect_b32 s%d, 0, s%d" % (sRd, sRd), "s_add_u32 s%d, s%d, 1" % (sIt, sIt)):
                g = place_s(txt, g) + 1
            gd = g
            mid = max(n-1, D+3)
            DL = opt("dl", 2)
            fl_ = "global_load_lds_dword v%d, s[56:57]" % vDv
            place_s("v_add_u32 v%d, 4, v%d" % (vDv, vDv), gd)
            gm = place(("use", fl_, ([("W", n-1), ("X1", 3)], False)), 4*(mid+DL)+2)
            place(("x", "v_add_u32 v%d, 4, v%d" % (vDv, vDv), None), gm+1, 4*N-5)
            place(("use", fl_, ([("W", N-1)], True)), 4*(DL-1)+2, 4*D-1)
            g1 = place(("use", "v_min_u32 v%d, v%d, v%d" % (vFl, vFl, vFl+1), ([("F", 0)], False)), 4*(N-2)+2, 4*N-4)
            gaps[g1+1].append(("x", "v_readfirstlane_b32 s%d, v%d" % (sF, vFl), None))
            gaps[4*N-2].append(("x", "s_cmp_gt_u32 s%d, s%d" % (sF, sIt), None))
            for r in addr_regs:
                last = max(g for g in range(4*N) for x in gaps[g] if x[0] == "ld" and _re.search(r", v%d " % r, x[1]+" "))
                place(("x", "v_add_u32 v%d, s%d, v%d" % (r, sDelta, r), None), min(max(last+1, gd), 4*N-1))
            seq = []
            for m_, gp in zip(mfs, gaps): seq += [m_] + gp
            return seq
        def emit(seq, prev):
            issued = [(t, True) for t in prev]
            cur = 99
            for kind, text, tg in seq:
                if kind == "ld": issued.append((tg, False)); cur += 1
                elif kind == "lab": cur = 99
                elif kind in ("mf", "use"):
                    w = 15
                    for t in tg[0]:
                        idx = max(i for i, x in enumerate(issued) if x == (t, tg[1]))
                        w = min(w, len(issued)-1-idx)
                    if w < cur:
                        k("s_waitcnt lgkmcnt(%d)" % w); cur = w
                k(text)
        L = "L_k1_cl" + tag
        k("v_mov_b32 v%d, %d\nv_mov_b32 v%d, 0\ns_mov_b32 s14, %d\ns_mov_b32 s15, %d" % (vFa, FLG+16, vDv, (-2*SL) & 0xffffffff, SL))
        s2 = build()
        allld = [x[2] for x in s2 if x[0] == "ld"]
        idx2 = next(i for i, x in enumerate(s2) if x[0] == "mf" and not x[2][1])
        if opt("clk", 0): k("s_mov_b32 s98, 0")
        k("%s_sp:" % L)
        if opt("clk", 0): k("s_cmp_ge_u32 s%d, 6\ns_addc_u32 s98, s98, 0" % sIt)
        k("ds_read_b64 %s, v%d\ns_waitcnt lgkmcnt(0)\nv_min_u32 v%d, v%d, v%d\nv_readfirstlane_b32 s%d, v%d" % (vr(vFl, 2), vFa, vFl, vFl, vFl+1, sF, vFl))
        k("s_cmp_gt_u32 s%d, s%d\ns_cbranch_scc0 %s_sp" % (sF, sIt, L))
        k("s_cmp_lg_u32 s%d, 0\ns_cbranch_scc1 %s" % (sIt, L))
        stamp(k, 5)
        for x in s2[:idx2]:
            if x[0] == "ld": k(x[1])
        k("s_branch %s_mid" % L)
        k(".p2align 6")
        k("%s:" % L)
        trace(sIt, 4, 1)
        if opt("clk", 0):
            k("s_cmp_lg_u32 s%d, 5\ns_cbranch_scc1 %s_nc\ns_memrealtime s[84:85]\ns_memtime s[90:91]\n%s_nc:" % (sIt, L, L))
        s2 = s2[:idx2] + [("lab", "%s_mid:" % L, None)] + s2[idx2:]
        emit(s2, allld)
        if TRACE:
            trace(sIt, 4, 0)
            k("s_cmp_gt_u32 s%d, s%d" % (sF, sIt))
        k("s_cbranch_scc1 %s" % L)
        k("s_cmp_lt_u32 s%d, 10\ns_cbranch_scc1 %s_sp" % (sIt, L))
        if opt("cprio", 3) != 3: k("s_setprio %d" % opt("cprio", 3))
        if opt("clk", 0): k("s_memrealtime s[94:95]\ns_memtime s[96:97]")
        k("ds_read_b64 %s, v%d offset:8" % (vr(vFl, 2), vFa))
        k("s_waitcnt lgkmcnt(6)")
        for x in mf(N-D): k(x)
        k("s_waitcnt lgkmcnt(0)\nglobal_load_lds_dword v%d, s[56:57]" % vDv)
        k("s_branch %s_ec" % L)
        k("%s_es:" % L)
        k("ds_read_b64 %s, v%d offset:8" % (vr(vFl, 2), vFa))
        k("%s_ec:" % L)
        k("s_waitcnt lgkmcnt(0)")
        k("v_min_u32 v%d, v%d, v%d\nv_readfirstlane_b32 s%d, v%d" % (vFl, vFl, vFl+1, sNon, vFl))
        k("s_cmp_eq_u32 s%d, 0\ns_cbranch_scc1 %s_es" % (sNon, L))
        tail = []
        for p in range(N-D+1, N): tail += mf(p)
        interleave(k, tail, post(), lead=2, per=1)

    c0 = -2*math.sqrt(2/math.pi)*LOG2E
    def ffn_epilogue(ACCF, ncb, S4, Mb, RSb, Sb, T, O, K0, vSt, blocks, defer=None):
        for bi, (b, pr_) in enumerate(blocks):
            sel = b & 1
            bc = lambda base: vr(base + (b & ~1), 2)
            os0 = " op_sel:[%d,0,0] op_sel_hi:[%d,1,1]" % (sel, sel)
            items = [(cb, hh) for cb in (2*pr_, 2*pr_+1) for hh in range(2)]
            G = lambda cb, hh: ACCF + (cb*4+b)*4 + 2*hh
            U = lambda cb, hh: ACCF + ((ncb+cb)*4+b)*4 + 2*hh
            Tm = lambda cb, hh: T + (cb & 1)*4 + 2*hh
            for cb, hh in items: k("v_pk_fma_f32 %s, %s, %s, %s%s neg_lo:[1,0,0] neg_hi:[1,0,0]" % (vr(G(cb,hh),2), bc(Mb), vr(S4+cb*4+2*hh,2), vr(G(cb,hh),2), os0))
            for cb, hh in items: k("v_pk_mul_f32 %s, %s, %s op_sel:[%d,0] op_sel_hi:[%d,1]" % (vr(G(cb,hh),2), bc(RSb), vr(G(cb,hh),2), sel, sel))
            for cb, hh in items: k("v_pk_mul_f32 %s, %s, %s" % (vr(Tm(cb,hh),2), vr(G(cb,hh),2), vr(G(cb,hh),2)))
            for cb, hh in items: k("v_pk_fma_f32 %s, %s, %s, %s op_sel:[0,0,1] op_sel_hi:[1,0,1]" % (vr(Tm(cb,hh),2), vr(Tm(cb,hh),2), vr(K0,2), vr(K0,2)))
            for cb, hh in items: k("v_pk_mul_f32 %s, %s, %s" % (vr(Tm(cb,hh),2), vr(Tm(cb,hh),2), vr(G(cb,hh),2)))
            for cb, hh in items:
                k("v_exp_f32 v%d, v%d\nv_exp_f32 v%d, v%d" % (Tm(cb,hh), Tm(cb,hh), Tm(cb,hh)+1, Tm(cb,hh)+1))
                k("v_pk_fma_f32 %s, %s, %s, %s%s neg_lo:[1,0,0] neg_hi:[1,0,0]" % (vr(U(cb,hh),2), bc(Mb), vr(S4+(ncb+cb)*4+2*hh,2), vr(U(cb,hh),2), os0))
            for cb, hh in items: k("v_pk_fma_f32 %s, %s, %s, %s op_sel:[0,%d,%d] op_sel_hi:[1,%d,%d]" % (vr(Tm(cb,hh),2), vr(Tm(cb,hh),2), bc(Sb), bc(Sb), sel, sel, sel, sel))
            for cb, hh in items:
                k("v_rcp_f32 v%d, v%d\nv_rcp_f32 v%d, v%d" % (Tm(cb,hh), Tm(cb,hh), Tm(cb,hh)+1, Tm(cb,hh)+1))
                k("v_pk_mul_f32 %s, %s, %s" % (vr(G(cb,hh),2), vr(G(cb,hh),2), vr(U(cb,hh),2)))
            for cb, hh in items: k("v_pk_mul_f32 %s, %s, %s" % (vr(G(cb,hh),2), vr(G(cb,hh),2), vr(Tm(cb,hh),2)))
            Ob = O + (bi & 1)*4 if defer is None else O[bi]
            for j_, (cb, hh) in enumerate(items): k("v_cvt_pk_bf16_f32 v%d, v%d, v%d" % (Ob+j_, G(cb,hh), G(cb,hh)+1))
            if pr_: k("s_add_u32 s%d, s%d, 4096" % (sT0, sKS))
            st_ = "buffer_store_dwordx4 %s, v%d, %s, s%d offen offset:%d%s" % (vr(Ob, 4), vSt, sq(SWS), sT0 if pr_ else sKS, b*1024, S1)
            if defer is None: k(st_)
            else: defer.append(st_)

    def a2_flag(group, nwait, va, vv):
        k("s_lshl_b32 s%d, s%d, 2\ns_lshr_b32 s%d, s%d, 1\ns_add_u32 s%d, s%d, s%d\ns_mul_i32 s%d, s%d, %d" % (sT0, sC, sT1, sJJ, sT0, sT0, sT1, sT0, sT0, FLS_))
        k("s_and_b32 s%d, s%d, 1\ns_lshl_b32 s%d, s%d, 1\ns_add_u32 s%d, s%d, s%d\ns_mul_i32 s%d, s%d, %d\ns_add_u32 s%d, s%d, s%d\ns_add_u32 s%d, s%d, 0x%x" % (sT1, sJJ, sT1, sT1, sT1, sT1, sNH, sT1, sT1, FSP, sT0, sT0, sT1, sT0, sT0, FL_OFF + group*FGS))
        k("v_mov_b32 v%d, s%d\nv_mov_b32 v%d, s%d" % (va, sT0, vv, sNon))
        k("s_waitcnt vmcnt(%d)\ns_mov_b64 exec, 1" % nwait)
        k("buffer_store_dword v%d, v%d, %s, 0 offen%s\ns_mov_b64 exec, -1" % (vv, va, sq(SWS), SC))

    CSM = opt("csm", 1)
    def cs_set(val, va, vv):
        k("s_lshl_b32 s%d, s%d, 2\ns_add_u32 s%d, s%d, %d\nv_mov_b32 v%d, s%d\nv_mov_b32 v%d, %d\nds_write_b32 v%d, v%d" % (sT0, sW, sT0, sT0, FLG+64, va, sT0, vv, val, va, vv))
    def base_loads(R):
        k("s_and_b32 s%d, s2, 7\ns_lshr_b32 s%d, s2, 3" % (sT0, sT1))
        p2map(sT3, sT0)
        k("s_mul_i32 s%d, s%d, 160" % (sT0, sT0))
        k("s_lshl_b32 s%d, s%d, 6\ns_lshl_b32 s%d, s%d, 2\ns_add_u32 s%d, s%d, s%d" % (sT3, sT3, sT1, sW, sT3, sT3, sT1))
        R5 = range(5)
        e_, r_, q_, t_ = R+45, R+30, R+35, R+40
        for it in R5: k("v_add_u32 v%d, %d, v%d" % (e_+it, it*64, vL))
        for it in R5: k("v_mul_u32_u24 v%d, 205, v%d" % (r_+it, e_+it))
        for it in R5: k("v_lshrrev_b32 v%d, 12, v%d" % (r_+it, r_+it))
        for it in R5: k("v_mul_u32_u24 v%d, 20, v%d\nv_bfe_u32 v%d, v%d, 1, 2" % (q_+it, r_+it, t_+it, r_+it))
        for it in R5: k("v_sub_u32 v%d, v%d, v%d" % (q_+it, e_+it, q_+it))
        for it in R5: k("v_xor_b32 v%d, v%d, v%d\nv_lshrrev_b32 v%d, 2, v%d" % (q_+it, q_+it, t_+it, t_+it, r_+it))
        for it in R5: k("v_mad_u32_u24 v%d, v%d, 12, v%d\nv_lshl_add_u32 v%d, v%d, 3, s%d" % (r_+it, t_+it, r_+it, q_+it, q_+it, sT0))
        for it in R5: k("v_add_u32 v%d, s%d, v%d" % (r_+it, sT3, r_+it))
        for it in R5: k("v_mul_u32_u24 v%d, 1280, v%d\nv_lshlrev_b32 v%d, 3, v%d" % (t_+it, r_+it, r_+it, r_+it))
        for it in R5: k("v_add_u32 v%d, v%d, v%d" % (t_+it, t_+it, q_+it))
        k("s_mov_b32 s%d, 0x%x" % (sKx, RST_OFF))
        for it in R5:
            k("global_load_dwordx2 %s, v%d, %s" % (vr(R+2*it, 2), t_+it, sp(48)))
            k("global_load_dwordx2 %s, v%d, %s" % (vr(R+10+2*it, 2), q_+it, sp(50)))
        k("s_mov_b32 s%d, 0\nL_k1_bt:" % sT3)
        for it in R5: k("buffer_load_dwordx2 %s, v%d, %s, s%d offen%s" % (vr(R+20+2*it, 2), r_+it, sq(SWS), sKx, SC))
    def base_compute(R):
        k("s_setprio 0")
        X4, D4, T4 = R+52, R+72, R+92
        k("s_waitcnt vmcnt(0)\nv_xor_b32 v%d, s%d, v%d" % (T4, sNon, R+21))
        for it in range(1, 5): k("v_xor_b32 v%d, s%d, v%d\nv_or_b32 v%d, v%d, v%d" % (T4+1, sNon, R+21+2*it, T4, T4, T4+1))
        k("v_cmp_ne_u32 vcc, 0, v%d\ns_add_u32 s%d, s%d, 1\ns_cbranch_vccz L_k1_bto" % (T4, sT3, sT3))
        k("s_sleep 8\ns_cmp_lt_u32 s%d, 0x40000\ns_cbranch_scc1 L_k1_bt\nL_k1_bto:" % sT3)
        k("s_mul_i32 s%d, s%d, %d\ns_add_u32 s%d, s%d, %d\nv_lshl_add_u32 v%d, v%d, 4, s%d\nv_mov_b32 v%d, %d" % (sT0, sW, 80*TRP, sT0, sT0, TRB, R+50, vL, sT0, R+51, DNA))
        wait_done("L_k1_bw%d" % R, "16", R+51, R+44)
        for it in range(5): k("v_and_b32 v%d, s%d, v%d\nv_lshlrev_b32 v%d, 16, v%d" % (R+21+2*it, sMASK, R+20+2*it, R+20+2*it, R+20+2*it))
        for it in range(5): k("v_rcp_f32 v%d, v%d" % (R+21+2*it, R+21+2*it))
        for d in range(10): k("v_lshlrev_b32 v%d, 16, v%d\nv_and_b32 v%d, s%d, v%d\nv_lshlrev_b32 v%d, 16, v%d\nv_and_b32 v%d, s%d, v%d" % (X4+2*d, R+d, X4+2*d+1, sMASK, R+d, D4+2*d, R+10+d, D4+2*d+1, sMASK, R+10+d))
        def rnd():
            if not opt("bexact", 1): return
            for h in range(10): k("v_cvt_pk_bf16_f32 v%d, v%d, v%d" % (R+30+h, T4+2*h, T4+2*h+1))
            for h in range(10): k("v_lshlrev_b32 v%d, 16, v%d\nv_and_b32 v%d, s%d, v%d" % (T4+2*h, R+30+h, T4+2*h+1, sMASK, R+30+h))
        for r in range(20): k("v_sub_f32 v%d, v%d, v%d" % (T4+r, X4+r, R+20+2*(r >> 2)))
        rnd()
        for r in range(20): k("v_mul_f32 v%d, v%d, v%d" % (T4+r, T4+r, R+21+2*(r >> 2)))
        rnd()
        for r in range(20): k("v_mul_f32 v%d, v%d, v%d" % (T4+r, T4+r, D4+r))
        rnd()
        for r in range(20): k("v_add_f32 v%d, v%d, v%d" % (T4+r, T4+r, X4+r))
        for it in range(5): k("ds_write_b128 v%d, %s offset:%d" % (R+50, vr(T4+4*it, 4), it*1024))
        k("s_waitcnt lgkmcnt(0)")

    def ffn_frag(ACCF, idx, areg, gu):
        rd = lambda h, reg: ["ds_read_b64_tr_b16 %s, v%d offset:%d" % (vr(reg+2*jx, 2), areg, h*4096+jx*512+gu*8192) for jx in range(2)]
        mf = lambda b, x, w: "v_mfma_f32_16x16x32_bf16 %s, %s, %s, %s" % (vr(ACCF+(idx*4+b)*4, 4), vr(w, 4), vr(x, 4), vr(ACCF+(idx*4+b)*4, 4))
        return (rd, mf)

    k("s_lshl_b32 s%d, s%d, 14" % (sT0, sNH))
    k("v_add_u32 v%d, s%d, v%d" % (aW[0], sT0, vT[0]))
    for c in range(1, 4): k("v_xor_b32 v%d, %d, v%d" % (aW[c], 32*c, aW[0]))
    k("s_lshr_b32 s%d, s%d, 5\ns_lshl_b32 s%d, s%d, 1\ns_add_u32 s%d, s%d, s%d\ns_mul_i32 s%d, s%d, 88\ns_add_u32 s%d, s%d, s%d\ns_lshl_b32 s%d, s%d, 12" % (sT0, sCol, sT1, sNH, sT0, sT0, sT1, sT1, sC, sT0, sT0, sT1, sKS, sT0))
    for r in range(0, 128, 2): k("v_mov_b64 v[%d:%d], 0" % (ACC+r, ACC+r+1))
    srd(k, SWS, pWs, WS_NREC)
    E = 212
    S4 = E; Mb, RSb, Sb = XS[0], XS[0]+4, XS[0]+8; K0 = XS[0]+12
    def postA():
        o = ["s_lshl_b32 s%d, s%d, 9\ns_add_u32 s%d, s%d, %d\nv_lshl_add_u32 v%d, v%d, 4, s%d" % (sT0, sNH, sT0, sT0, SFF, vT[1], vG, sT0),
             "s_mul_i32 s%d, s%d, 768\ns_add_u32 s%d, s%d, %d\nv_lshl_add_u32 v%d, v%d, 2, s%d" % (sT0, sMH, sT0, sT0, STAT_M, vT[2], vM, sT0)]
        for b in range(0, 4, 2):
            for a, off in ((Mb, 0), (RSb, 64), (Sb, 128)):
                o.append("ds_read2_b32 %s, v%d offset0:%d offset1:%d" % (vr(a+b, 2), vT[2], off+b*16, off+b*16+16))
        for j in range(8): o.append("ds_read_b128 %s, v%d offset:%d" % (vr(S4+4*j, 4), vT[1], j*64))
        o += ["v_lshlrev_b32 v%d, 4, v%d" % (vT[3], vL), "v_mov_b32 v%d, %s\nv_mov_b32 v%d, %s" % (K0, f32(c0*0.044715), K0+1, f32(c0))]
        return o
    fr = []
    for cb in range(4):
        for gu in range(2): fr.append(ffn_frag(ACC, gu*4+cb, aW[cb], gu))
    c_loop("A", fr, 8, opt("da", 5), WR, aX + aW, postA)
    stamp(k, 1)
    k("s_waitcnt lgkmcnt(0)")
    blk = [(b, p) for p in range(2) for b in range(4)]
    HF = opt("hf", 6)
    ffn_epilogue(ACC, 4, S4, Mb, RSb, Sb, E+32, XS[1], K0, vT[3], blk[:HF])
    a2_flag(0, HF-4, vT[0], vT[1])
    TW = opt("tw", 0)
    if TW & 1:
        k("v_lshlrev_b32 v%d, 7, v%d\ns_mov_b32 exec_hi, 0\nbuffer_load_dword v%d, v%d, %s, s%d offen sc1\ns_mov_b32 exec_hi, -1" % (vT[4], vL, vT[5], vT[4], sq(SWS), sKS))
    ffn_epilogue(ACC, 4, S4, Mb, RSb, Sb, E+32, XS[1], K0, vT[3], blk[HF:])
    stamp(k, 2)
    cs_set(1, vT[0], vT[1])
    a2_flag(3, 0, vT[0], vT[1])
    if TW & 2:
        k("v_lshlrev_b32 v%d, 7, v%d\ns_mov_b32 exec_lo, 0\nbuffer_load_dword v%d, v%d, %s, s%d offen sc1\ns_mov_b32 exec_lo, -1" % (vT[4], vL, vT[5], vT[4], sq(SWS), sKS))
    stamp(k, 4)
    k("s_branch L_k1_base")

    k("L_k1_CB:")
    WRB = 52
    ACCF = 76
    ACCS = 140
    ca = Alloc(220)
    cLr = ca(5); cMu = ca(5); cKk = ca(5); c16r = ca(5); c16k = ca(5); cKr = ca(10, 2)
    assert ca.n <= (255 if TRACE else 256) + 1
    k("s_lshl_b32 s%d, s%d, 6" % (sT0, sNH))
    k("v_xor_b32 v%d, s%d, v%d\nv_xor_b32 v%d, 32, v%d" % (aW[0], sT0, vT[0], aW[1], aW[0]))
    k("s_mul_i32 s%d, s%d, 10240\ns_add_u32 s%d, s%d, 32768" % (sT0, sNH, sT0, sT0))
    k("v_add_u32 v%d, s%d, v%d\nv_xor_b32 v%d, 64, v%d" % (aW[2], sT0, vT[5], aW[3], aW[2]))
    k("s_lshr_b32 s%d, s%d, 5\ns_add_u32 s%d, s%d, s%d\ns_mul_i32 s%d, s%d, 88\ns_add_u32 s%d, s%d, s%d\ns_lshl_b32 s%d, s%d, 12" % (sT0, sCol, sT0, sT0, sNH, sT1, sC, sT0, sT0, sT1, sKS, sT0))
    srd(k, SWS, pWs, WS_NREC)
    for r in range(0, 144, 2): k("v_mov_b64 v[%d:%d], 0" % (ACCF+r, ACCF+r+1))
    k("s_lshl_b32 s%d, s%d, 1\ns_add_u32 s%d, s%d, s%d\ns_lshl_b32 s%d, s%d, 14\ns_add_u32 s%d, s%d, 0x%x" % (sT2, sJJ, sT2, sT2, sNH, sT0, sT2, sT0, sT0, CAR_OFF))
    srd(k, SP0, pWs, 16384, "s%d" % sT0)
    HST = 4224
    k("s_mul_i32 s%d, s%d, %d\ns_add_u32 s58, s%d, 0x%x\ns_lshr_b32 s%d, s%d, 2\ns_mul_i32 s%d, s%d, %d\ns_add_u32 s%d, s%d, s58\ns_add_u32 s54, s%d, s%d\ns_addc_u32 s55, s%d, 0" % (sT0, sT2, 8*HST, sT0, CH_OFF, sT0, sC, sT0, sT0, HST, sT0, sT0, pWs, sT0, pWs+1))
    k("s_lshl_b32 s%d, s%d, 2\ns_add_u32 s58, s58, s%d" % (sT0, sC, sT0))
    k("s_add_u32 s%d, s%d, 1\ns_lshr_b32 s%d, s%d, 1\ns_lshl_b32 s59, 1, s%d\ns_sub_u32 s59, s59, 1" % (sT0, sC, sT0, sT0, sT0))
    if not opt("hint", 2): k("s_mov_b32 s59, 0")
    sSS = [68, 69, 70, 71, 79]
    k("s_mul_i32 s%d, s%d, 88\ns_add_u32 s%d, s%d, 48\ns_lshl_b32 s%d, s%d, 12" % (sT3, sC, sT3, sT3, sT3, sT3))
    k("s_mul_i32 s%d, s%d, 10\ns_mul_i32 s%d, s%d, 5\ns_add_u32 s%d, s%d, s%d" % (sT2, sJJ, sT0, sNH, sT2, sT2, sT0))
    for q in range(5):
        k("s_add_u32 s%d, s%d, %d\ns_lshr_b32 s%d, s%d, 1\ns_lshl_b32 s%d, s%d, 12\ns_and_b32 s%d, s%d, 1\ns_lshl_b32 s%d, s%d, 9" % (sT0, sT2, q, sT1, sT0, sT1, sT1, sT0, sT0, sT0, sT0))
        k("s_add_u32 s%d, s%d, s%d\ns_add_u32 s%d, s%d, s%d" % (sT0, sT0, sT1, sSS[q], sT0, sT3))
    KR = [cKr+2*q for q in range(5)]
    for s in range(1, 4): k("v_cmp_eq_u32 %s, %d, v%d" % (sp(16+2*s), s, vG))
    def ssm_frag(q):
        rd = lambda h, reg: ["ds_read_b128 %s, v%d offset:%d" % (vr(reg, 4), aW[2+h], q*2048)]
        mf = lambda b, x, w: "v_mfma_f32_16x16x32_bf16 %s, %s, %s, %s" % (vr(ACCS+(q*4+b)*4, 4), vr(x, 4), vr(w, 4), vr(ACCS+(q*4+b)*4, 4))
        return (rd, mf)
    fr = [ssm_frag(q) for q in range(5)]
    for cb in range(2):
        for gu in range(2): fr.append(ffn_frag(ACCF, gu*2+cb, aW[cb], gu))
    M4 = XS[0]
    SQ = [247, 249, 251, 253, 245]
    def postB():
        o = ["s_mul_i32 s%d, s%d, 768\ns_add_u32 s%d, s%d, %d\nv_lshl_add_u32 v%d, v%d, 4, s%d\nv_lshl_add_u32 v%d, v%d, 2, s%d" % (sT0, sMH, sT0, sT0, STAT_M, vT[3], vG, sT0, vT[2], vM, sT0),
             "s_mul_i32 s%d, s%d, 3072\ns_add_u32 s%d, s%d, %d\nv_lshl_add_u32 v%d, v%d, 4, s%d" % (sT0, sNH, sT0, sT0, CT, vT[5], vM, sT0)]
        for b in range(4): o.append("ds_read_b128 %s, v%d offset:%d" % (vr(M4+4*b, 4), vT[3], b*64))
        for qd in (6, 7, 8, 0, 1, 2, 3, 4, 5):
            if qd == 8 and TRACE: o.append("ds_read_b96 %s, v%d offset:%d" % (vr(220+4*qd, 3), vT[5], qd*256))
            else: o.append("ds_read_b128 %s, v%d offset:%d" % (vr(220+4*qd, 4), vT[5], qd*256))
        return o
    c_loop("B", fr, 6, opt("db", 5), WRB, aX + aW, postB)
    stamp(k, 1)
    RS4 = XS[1]
    for b in range(4): k("ds_read_b128 %s, v%d offset:%d" % (vr(RS4+4*b, 4), vT[3], 256+b*64))
    Z = [[ACCS + (q*4 + (t >> 2))*4 + (t & 3) for t in range(16)] for q in range(5)]
    H = [[52+q, 57+q] for q in range(5)]
    k("s_waitcnt lgkmcnt(4)")
    for t in range(0, 16, 2):
        for q in range(5): k("v_pk_fma_f32 %s, %s, %s, %s op_sel:[0,1,0] op_sel_hi:[1,1,1] neg_lo:[1,0,0] neg_hi:[1,0,0]" % (vr(Z[q][t], 2), vr(M4+t, 2), vr(SQ[q]-1, 2), vr(Z[q][t], 2)))
    k("s_waitcnt lgkmcnt(0)")
    for t in range(16):
        if t % 2 == 0:
            for q in range(5): k("v_pk_mul_f32 %s, %s, %s" % (vr(Z[q][t], 2), vr(RS4+t, 2), vr(Z[q][t], 2)))
        if t >= 1:
            prev = [Z[q][0] if t == 1 else H[q][t & 1] for q in range(5)]
            cur = [H[q][(t+1) & 1] for q in range(5)]
            for q in range(5): k("v_fma_f32 v%d, v%d, v%d, v%d" % (cur[q], cLr+q, prev[q], Z[q][t]))
            for q in range(5): k("v_fmac_f32_dpp v%d, v%d, v%d%s" % (cur[q], prev[q], cMu+q, DPP))
    a_ = [H[q][0] for q in range(5)]; b_ = [H[q][1] for q in range(5)]
    c_ = r5(20)
    TOT = 28
    d_ = [TOT, TOT+1, TOT+2, TOT+4, TOT+5]
    MINE = [12, 13, 14, 15, 16]
    S4 = 36; Mb, RSb, Sb = 62, 66, 70; K0 = 74
    def ffn_inputs():
        k("s_lshl_b32 s%d, s%d, 9\ns_add_u32 s%d, s%d, %d\nv_lshl_add_u32 v%d, v%d, 4, s%d" % (sT0, sNH, sT0, sT0, SFF, vT[0], vG, sT0))
        for b in range(0, 4, 2):
            for a, off in ((Mb, 0), (RSb, 64), (Sb, 128)):
                k("ds_read2_b32 %s, v%d offset0:%d offset1:%d" % (vr(a+b, 2), vT[2], off+b*16, off+b*16+16))
        for j in range(4): k("ds_read_b128 %s, v%d offset:%d" % (vr(S4+4*j, 4), vT[0], j*64))
        k("v_mov_b32 v%d, %s\nv_mov_b32 v%d, %s" % (K0, f32(c0*0.044715), K0+1, f32(c0)))
    ffn_inputs()
    for q in range(5): k("v_mov_b32 v%d, v%d" % (b_[q], a_[q]))
    for q in range(5): k("v_permlane16_swap_b32 v%d, v%d" % (a_[q], b_[q]))
    for q in range(5): k("v_mov_b32 v%d, v%d\nv_mov_b32 v%d, v%d" % (c_[q], a_[q], d_[q], b_[q]))
    for q in range(5): k("v_permlane32_swap_b32 v%d, v%d\nv_permlane32_swap_b32 v%d, v%d" % (a_[q], c_[q], b_[q], d_[q]))
    seq = [a_, b_, c_, d_]
    k("v_mov_b32 v%d, s%d\nv_mov_b32 v%d, s%d" % (TOT+3, sNon, TOT+7, sNon))
    k("s_lshl_b32 s%d, s%d, 9" % (sT0, sC))
    k("v_lshlrev_b32 v%d, 4, v%d\nv_mul_u32_u24 v19, %d, v%d" % (vT[1], vM, HST, vM))
    for s in range(1, 4):
        for q in range(5): k("v_fmac_f32 v%d, v%d, v%d" % (seq[s][q], c16r+q, seq[s-1][q]))
        for q in range(5): k("v_fmac_f32_dpp v%d, v%d, v%d%s" % (seq[s][q], seq[s-1][q], c16k+q, DPP))
    k("s_mov_b64 exec, 0xffff")
    k("buffer_store_dwordx4 %s, v%d, %s, s%d offen%s" % (vr(TOT, 4), vT[1], sq(SP0), sT0, SC))
    k("buffer_store_dwordx4 %s, v%d, %s, s%d offen offset:256%s" % (vr(TOT+4, 4), vT[1], sq(SP0), sT0, SC))
    TH = opt("th", 0)
    if not TH and opt("hint", 2) == 1:
        k("s_mov_b64 exec, 0xff")
        k("buffer_store_dword v%d, v19, %s, s58 offen%s" % (TOT+3, sq(SWS), SC))
    k("s_mov_b64 exec, -1")
    k("s_mov_b32 s56, s%d\ns_mov_b32 s57, s%d" % (sNon, sNon))
    cs_set(1, 17, 18)
    k(";PRIO_ON")
    stamp(k, 2)
    for q in range(5): k("v_cndmask_b32 v%d, 0, v%d, %s" % (MINE[q], a_[q], sp(18)))
    for q in range(5): k("v_cndmask_b32 v%d, v%d, v%d, %s" % (MINE[q], MINE[q], b_[q], sp(20)))
    for q in range(5): k("v_cndmask_b32 v%d, v%d, v%d, %s" % (MINE[q], MINE[q], c_[q], sp(22)))
    k("v_lshlrev_b32 v%d, 4, v%d" % (vT[3], vL))
    k("s_waitcnt lgkmcnt(0)")
    dst_ = []
    DFR = opt("dfr", 1)
    HINT = opt("hint", 2)
    for b in range(4):
        if b == opt("hb", 3) and HINT == 1: k("s_load_dwordx16 s[16:31], s[54:55], 0 glc\ns_load_dwordx16 s[32:47], s[54:55], 64 glc")
        ffn_epilogue(ACCF, 2, S4, Mb, RSb, Sb, 20, [[236, 240, 52, 56][b]], K0, vT[3], [(b, 0)], defer=dst_)
        if not DFR: k(dst_.pop())
        if TH and b == TH-1:
            k("s_waitcnt vmcnt(0)\ns_mov_b64 exec, 0xff")
            k("buffer_store_dword v%d, v19, %s, s58 offen%s\ns_mov_b64 exec, -1" % (TOT+3, sq(SWS), SC))
    def hint_check():
        k("s_waitcnt lgkmcnt(0)\ns_mov_b32 s%d, 0" % sT0)
        for j in range(15, -1, -1): k("s_cmp_lg_u64 %s, s[56:57]\ns_addc_u32 s%d, s%d, s%d" % (sp(16+2*j), sT0, sT0, sT0))
        k("s_and_b32 s%d, s%d, s59" % (sT0, sT0))
    if not opt("clk", 0): stamp(k, 6)
    PRb = [ACCF + u*8 for u in range(8)]
    k("s_sub_u32 s%d, s%d, 1" % (sT0, sC))
    k("v_sub_u32 v%d, s%d, v%d\nv_lshlrev_b32 v%d, 9, v%d\nv_lshl_add_u32 v%d, v%d, 4, v%d" % (vT[1], sT0, vG, vT[1], vT[1], vT[1], vM, vT[1]))
    def pred_loads():
        for u in range(8):
            if u: k("v_subrev_u32 v%d, %d, v%d" % (vT[0], u*2048, vT[1]))
            a = vT[0] if u else vT[1]
            k("buffer_load_dwordx4 %s, v%d, %s, 0 offen%s" % (vr(PRb[u], 4), a, sq(SP0), PSC_))
            k("buffer_load_dwordx4 %s, v%d, %s, 0 offen offset:256%s" % (vr(PRb[u]+4, 4), a, sq(SP0), PSC_))
    if HINT == 1:
        hint_check()
        k("s_mov_b32 s%d, s%d\ns_cbranch_scc1 L_k1_npl" % (sDelta, sT0))
        pred_loads()
        k("s_branch L_k1_npl2")
        k("L_k1_npl:")
        k("s_load_dwordx16 s[16:31], s[54:55], 0 glc\ns_load_dwordx16 s[32:47], s[54:55], 64 glc")
        k("L_k1_npl2:")
    elif HINT == 0:
        k("s_mov_b32 s%d, 0" % sDelta)
        pred_loads()
    else: k("s_mov_b32 s%d, 1" % sDelta)
    for x in dst_: k(x)
    k("s_mul_i32 s%d, s%d, %d\ns_add_u32 s%d, s%d, %d" % (sKx, sW, 80*TRP, sKx, sKx, TRB))
    k("v_add_u32 v%d, s%d, v%d" % (vT[4], sKx, vT[3]))
    for qd in range(3): k("ds_read_b128 %s, v%d offset:%d" % (vr(32+4*qd, 4), vT[5], (9+qd)*256))
    L256r, L256k = r5(32), r5(37)
    free = [20+2*q for q in range(5)]
    for t in range(0, 16, 2):
        nf = []
        for q in range(5): k("v_pk_mul_f32 %s, %s, %s op_sel_hi:[0,1]" % (vr(free[q], 2), vr(KR[q], 2), vr(Z[q][t], 2)))
        for e in range(2):
            for q in range(5): k("v_fmac_f32_dpp v%d, v%d, v%d%s" % (free[q]+e, Z[q][t]+e, cKk+q, DPP))
        for q in range(5):
            nf.append(Z[q][t]); Z[q][t] = free[q]; Z[q][t+1] = free[q]+1
        free = nf
    t0, t1 = 30, 31
    k("s_mov_b32 s%d, 0\ns_cmp_eq_u32 s%d, 0\ns_cbranch_scc1 L_k1_early" % (sRd, sDelta))
    if HINT == 1:
        hint_check()
        k("s_cbranch_scc0 L_k1_hd")
    else: k("s_branch L_k1_hd")
    a2_flag(1, 0, 30, 31)
    if not opt("clk", 0): stamp(k, 7)
    k("s_mov_b32 s%d, 1\ns_mov_b32 s%d, 0" % (sRd, sT3))
    k("L_k1_hr:")
    k("s_load_dwordx16 s[16:31], s[54:55], 0 glc\ns_load_dwordx16 s[32:47], s[54:55], 64 glc")
    hint_check()
    k("s_cbranch_scc0 L_k1_hd\ns_sleep %d\ns_add_u32 s%d, s%d, 1\ns_cmp_lt_u32 s%d, 0x100000\ns_cbranch_scc1 L_k1_hr" % (opt("hsl", 3), sT3, sT3, sT3))
    k("L_k1_hd:")
    if opt("dbgp", 0): stamp(k, 6)
    pred_loads()
    if DFR:
        k("s_mov_b32 s%d, 0\ns_branch L_k1_poll" % sT3)
        k("L_k1_early:")
        k("s_mov_b32 s%d, 0\ns_waitcnt vmcnt(4)\ns_branch L_k1_poll2" % sT3)
    else:
        k("s_mov_b32 s%d, 0\ns_cmp_lg_u32 s%d, 0\ns_cbranch_scc1 L_k1_poll" % (sT3, sRd))
        k("L_k1_early:")
        a2_flag(1, 16, 30, 31)
        stamp(k, 7)
        k("s_mov_b32 s%d, 0\ns_waitcnt vmcnt(1)\ns_branch L_k1_poll2" % sT3)
    k("L_k1_poll:")
    k("s_waitcnt vmcnt(0)")
    k("L_k1_poll2:")
    k("s_mov_b32 s%d, 0" % sT2)
    for u in range(8):
        k("v_cmp_ne_u32 s[24:25], s%d, v%d\nv_cmp_ne_u32 s[26:27], s%d, v%d\nv_cmp_le_i32 vcc, %d, v%d" % (sNon, PRb[u]+3, sNon, PRb[u]+7, u*2048, vT[1]))
        k("s_or_b64 s[24:25], s[24:25], s[26:27]\ns_and_b64 s[24:25], s[24:25], vcc\ns_cbranch_scc0 L_k1_pu%d" % u)
        k("s_cmp_lg_u32 s%d, 0\ns_cbranch_scc1 L_k1_ps%d\ns_sleep %d\nL_k1_ps%d:" % (sT2, u, opt("csl", 8), u))
        k("s_mov_b32 s%d, 1" % sT2)
        k("v_subrev_u32 v%d, %d, v%d" % (vT[0], u*2048, vT[1]))
        k("s_mov_b64 exec, s[24:25]")
        k("buffer_load_dwordx4 %s, v%d, %s, 0 offen%s" % (vr(PRb[u], 4), vT[0], sq(SP0), PSC_))
        k("buffer_load_dwordx4 %s, v%d, %s, 0 offen offset:256%s" % (vr(PRb[u]+4, 4), vT[0], sq(SP0), PSC_))
        k("s_mov_b64 exec, -1")
        k("L_k1_pu%d:" % u)
    k("s_add_u32 s%d, s%d, 1\ns_cmp_eq_u32 s%d, 0\ns_cbranch_scc1 L_k1_polled" % (sT3, sT3, sT2))
    k("s_cmp_lt_u32 s%d, 0x40000\ns_cbranch_scc1 L_k1_poll" % sT3)
    k("L_k1_polled:")
    if opt("dbgp", 0): k("s_waitcnt lgkmcnt(0)\ns_lshl_b32 s94, s%d, 8\ns_cmp_eq_u32 s%d, 0\ns_cselect_b32 s95, 1, 0\ns_or_b32 s94, s94, s95\ns_lshl_b32 s95, s%d, 1\ns_or_b32 s94, s94, s95" % (sT3, sDelta, sRd))
    if CSM & 2: cs_set(0, 17, 18)
    if not opt("clk", 0): stamp(k, 3)
    pr = lambda u, q: PRb[u]+(q if q < 3 else q+1)
    k("s_waitcnt lgkmcnt(0)")
    for u in range(6, -1, -1):
        for q in range(5): k("v_fmac_f32 v%d, v%d, v%d" % (pr(u, q), L256r[q], pr(u+1, q)))
        for q in range(5): k("v_fmac_f32_dpp v%d, v%d, v%d%s" % (pr(u, q), pr(u+1, q), L256k[q], DPP))
        if u == 4:
            for qd in range(5): k("ds_read_b128 %s, v%d offset:%d" % (vr(PRb[5]+4*qd, 4), vT[4], qd*1024))
    L64r, L64k, Psr, Psk = r5(PRb[5]), r5(PRb[5]+5), r5(PRb[5]+10), r5(PRb[5]+15)
    k("s_waitcnt lgkmcnt(0)")
    for q in range(5): k("v_mul_f32 v%d, v%d, v%d" % (pr(1, q), L64r[q], pr(0, q)))
    for q in range(5): k("v_fmac_f32_dpp v%d, v%d, v%d%s" % (pr(1, q), pr(0, q), L64k[q], DPP))
    for sw in ("v_permlane16_swap_b32", "v_permlane32_swap_b32"):
        for q in range(5): k("v_mov_b32 v%d, v%d" % (pr(2, q), pr(1, q)))
        for q in range(5): k("%s v%d, v%d" % (sw, pr(1, q), pr(2, q)))
        for q in range(5): k("v_add_f32 v%d, v%d, v%d" % (pr(1, q), pr(1, q), pr(2, q)))
    for q in range(5): k("v_fmac_f32 v%d, v%d, v%d" % (MINE[q], Psr[q], pr(1, q)))
    for q in range(5): k("v_fmac_f32_dpp v%d, v%d, v%d%s" % (MINE[q], pr(1, q), Psk[q], DPP))
    CIN = [f for f in free]
    for q in range(5): k("v_mul_f32 v%d, v%d, v%d" % (CIN[q], KR[q], MINE[q]))
    for q in range(5): k("v_fmac_f32_dpp v%d, v%d, v%d%s" % (CIN[q], MINE[q], cKk+q, DPP))
    PK = 32
    OUTQ = [ACCF + 4*j for j in range(10)]
    k("v_mul_u32_u24 v%d, %d, v%d\nv_lshl_add_u32 v%d, v%d, 5, v%d\nv_add_u32 v%d, s%d, v%d" % (vT[1], TRP, vM, vT[1], vG, vT[1], vT[1], sKx, vT[1]))
    k("v_and_b32 v%d, 1, v%d\nv_lshrrev_b32 v%d, 2, v%d\nv_lshl_add_u32 v%d, v%d, 3, v%d\nv_mul_u32_u24 v%d, %d, v%d" % (vT[0], vG, vT[4], vM, vT[0], vT[0], vT[4], vT[0], TRP, vT[0]))
    k("v_and_b32 v%d, 3, v%d\nv_lshl_add_u32 v%d, v%d, 5, v%d" % (vT[4], vM, vT[0], vT[4], vT[0]))
    k("v_lshrrev_b32 v%d, 1, v%d\nv_lshl_add_u32 v%d, v%d, 3, v%d\nv_add_u32 v%d, s%d, v%d" % (vT[5], vG, vT[0], vT[5], vT[0], vT[0], sKx, vT[0]))
    k("v_and_b32 v%d, 31, v%d\nv_lshlrev_b32 v%d, 4, v%d\nv_lshl_add_u32 v%d, v%d, 10, v%d" % (vT[4], vL, vT[4], vT[4], vT[4], vT[5], vT[4]))
    def tr_reads(bp):
        for q in range(5):
            o = OUTQ[bp*5+q]
            k("ds_read_b64_tr_b16 %s, v%d offset:%d\nds_read_b64_tr_b16 %s, v%d offset:%d" % (vr(o, 2), vT[0], q*16*TRP+bp*16, vr(o+2, 2), vT[0], q*16*TRP+bp*16+4*TRP))
    def tr_stores(bp, waits):
        for q in range(5):
            if waits: k("s_waitcnt lgkmcnt(%d)" % (8-2*q))
            k("buffer_store_dwordx4 %s, v%d, %s, s%d offen offset:%d%s" % (vr(OUTQ[bp*5+q], 4), vT[4], sq(SWS), sSS[q], bp*2048, S1))
    for t in range(16):
        if DFR and t == opt("fft", 2):
            k("s_cmp_lg_u32 s%d, 0\ns_cbranch_scc1 L_k1_ffd" % sRd)
            a2_flag(1, 0, 30, 31)
            if not opt("clk", 0): stamp(k, 7)
            k("L_k1_ffd:")
            if TW & 2: k("v_lshlrev_b32 v30, 7, v%d\ns_mov_b32 exec_hi, 0\nbuffer_load_dword v31, v30, %s, s%d offen sc1\ns_mov_b32 exec_hi, -1" % (vL, sq(SWS), sKS))
        prev = [CIN[q] if t == 0 else Z[q][t-1] for q in range(5)]
        for q in range(5): k("v_fmac_f32 v%d, v%d, v%d" % (Z[q][t], cLr+q, prev[q]))
        for q in range(5): k("v_fmac_f32_dpp v%d, v%d, v%d%s" % (Z[q][t], prev[q], cMu+q, DPP))
        if t & 1:
            for q in range(5): k("v_cvt_pk_bf16_f32 v%d, v%d, v%d" % (PK+8*q+(t >> 1), Z[q][t-1], Z[q][t]))
        if t == 8:
            for q in range(5): k("ds_write_b128 v%d, %s offset:%d" % (vT[1], vr(PK+8*q, 4), q*16*TRP))
        if t == 10: tr_reads(0)
        if t == 13:
            k("s_waitcnt lgkmcnt(0)")
            tr_stores(0, False)
    for q in range(5): k("ds_write_b128 v%d, %s offset:%d" % (vT[1], vr(PK+8*q+4, 4), q*16*TRP+16))
    tr_reads(1)
    tr_stores(1, True)
    if CSM & 2: cs_set(1, 17, 18)
    a2_flag(2, 0, vT[0], vT[1])
    if TW & 4:
        k("v_lshrrev_b32 v30, 2, v%d\nv_lshlrev_b32 v30, 10, v30\nv_and_b32 v31, 3, v%d\nv_lshl_add_u32 v30, v31, 7, v30\ns_mov_b64 exec, 0xffff" % (vL, vL))
        for q in range(5): k("buffer_load_dword v%d, v30, %s, s%d offen sc1" % (32+q, sq(SWS), sSS[q]))
        k("s_mov_b64 exec, -1")
    stamp(k, 4)
    k(";PRIO_OFF")
    k("L_k1_base:")
    base_loads(140)
    k("L_k1_base2:")
    base_compute(140)
    finish(100)
    k("L_k1_end:")
    k("s_endpgm")
    k(".p2align 7")
    k(".type L_k1_tab,@object")
    k("L_k1_tab:")
    k(".long " + ", ".join(str(i) for i in range(32)))
    k(".size L_k1_tab, 128")
    if opt("dp", 0):
        out = []; on = False; hi = False
        lo = opt("dplo", 0)
        for l in k.lines:
            t = l.strip()
            if t == ";PRIO_ON": on = True; hi = False; out.append("    s_setprio %d" % lo); continue
            if t == ";PRIO_OFF": on = False; continue
            if on:
                isv = t.startswith("buffer_") or t.startswith("global_")
                isalu = t.startswith("v_") and not t.startswith("v_subrev_u32") and not t.startswith("v_mov_b32") and not t.startswith("v_cmp")
                if t.endswith(":"): hi = None
                if isv and hi is not True: out.append("    s_setprio 3"); hi = True
                elif isalu and hi is not False: out.append("    s_setprio %d" % lo); hi = False
            out.append(l)
        k.lines = out
    else: k.lines = [l for l in k.lines if not l.strip().startswith(";PRIO")]
    return k

if __name__ == "__main__":
    ref = open("parallel_sum__ssm_conv_s5__geglu_ffn__prompt.s.ref").read().split("\n")
    hdr = [l for l in ref if l.startswith(";") and "@launch" not in l and "Override" not in l and "grid=ceil" not in l]
    hdr += ["; @launch grid=(256,1,1) block=(512,1,1) lds=163840"]
    out = [a for a in sys.argv[1:] if not a.startswith("--")][0]
    gen2.TRACE = False
    open(out, "w").write(emit_file(hdr, [(gen_k1(), dict(vgpr=256, accum=256))]))
```

```python
import sys, struct, math
from asmgen import *
import gen2
from gen2 import (A2_OFF, B2_OFF, CAR_OFF, RST_OFF, SB_OFF, SG_OFF, STAMP_OFF, WS_NREC, SL, SPARE, TRP, f32, vr, sq, sp, ror, DPP, SC,
                  Alloc, interleave, srd, stamp, stamp_out, opt, ARG, STAMPS, LOG2E,
                  pX, pLre, pLim, pBre, pBim, pCre, pCim, pLdt, pD, pBx, pG, pU, pDn, pOut, pDbg, pWs)
STAT_M = SPARE
SFF = SPARE + 1536
SSS = SPARE + 2560
TRB = SL
DNA = SPARE + 2560
FLG = SPARE + 3968
PF_OFF = 0x1130000
FL_OFF = 0x1160000
CH_OFF = 0x1040000
TRACE = "--trace" in ARG
S1 = [" sc1", " sc0 sc1", " sc1 nt", ""][opt("st2", 0)]
if opt("sc", 1): SC = " sc1"
FSP = 4
FGS = 16
FLS_ = opt("fls", 4224)
PSC_ = [" sc1", " sc0 sc1"][opt("psc", 0)]
KNAME = "parallel_sum__ssm_conv_s5__geglu_ffn__prompt_kernel"

def gen_k1():
    k = Kern(KNAME)
    sW, sMH, sNH, sI, sJJ, sTY = 3, 4, 5, 6, 7, 8
    sT0, sT1, sT2, sT3 = 9, 10, 11, 12
    sMASK = 13
    SX, SW0, SW1, SWS, SP0, SP1 = 48, 52, 56, 60, 64, 68
    sKx, sKw, sDst, sDelta, sIt, sRd, sA, sB, sKS, sC, sNon, sCol = range(72, 84)
    k("s_cmp_ge_u32 s2, 256\ns_cbranch_scc1 L_k1_end")
    k("s_load_dwordx16 s[16:31], s[0:1], 0\ns_load_dwordx16 s[32:47], s[0:1], 64")
    vL, vM, vG, vII, vSL = 1, 2, 3, 4, 5
    vT = [6, 7, 8, 9, 10, 11]
    k("v_lshrrev_b32 v%d, 6, v0" % vT[0])
    k("v_and_b32 v%d, 63, v0" % vL)
    k("v_readfirstlane_b32 s%d, v%d" % (sW, vT[0]))
    k("s_cmp_ge_u32 s%d, 6\ns_cbranch_scc1 L_k1_D" % sW)
    k("s_cmp_lt_u32 s%d, 4\ns_cbranch_scc1 L_k1_C" % sW)
    def decode():
        stamp(k, 0)
        if TRACE: k("v_mov_b32 v255, 0")
        k("v_and_b32 v%d, 15, v0\nv_lshrrev_b32 v%d, 4, v%d" % (vM, vG, vL))
        k("v_lshrrev_b32 v%d, 3, v%d\nv_and_b32 v%d, 7, v0" % (vII, vL, vSL))
        k("s_bfe_u32 s%d, s2, 0x10002\ns_lshl_b32 s%d, s%d, 3\ns_bfe_u32 s%d, s2, 0x30003\ns_add_u32 s%d, s%d, s%d" % (sI, sI, sI, sT2, sI, sI, sT2))
        k("s_and_b32 s%d, s2, 3\ns_lshl_b32 s%d, s%d, 1\ns_lshr_b32 s%d, s2, 7\ns_add_u32 s%d, s%d, s%d\ns_bfe_u32 s%d, s2, 0x10006" % (sJJ, sJJ, sJJ, sT2, sJJ, sJJ, sT2, sTY))
        k("s_mov_b32 s%d, 0xffff0000" % sMASK)
        k("s_and_b32 s%d, s%d, 1\ns_bfe_u32 s%d, s%d, 0x10001" % (sMH, sW, sNH, sW))
        k("s_lshl_b32 s%d, s%d, 7\ns_lshl_b32 s%d, s%d, 6\ns_add_u32 s%d, s%d, 1024\ns_cmp_eq_u32 s%d, 0\ns_cselect_b32 s%d, s%d, s%d" % (sT0, sJJ, sT1, sJJ, sT1, sT1, sTY, sCol, sT0, sT1))
    decode()

    def p2map(mi, ni):
        M = opt("p2m", 0)
        if M == 0:
            k("s_lshr_b32 s%d, s%d, 1\ns_lshl_b32 s%d, s%d, 3\ns_and_b32 s%d, s%d, 7\ns_add_u32 s%d, s%d, s%d" % (mi, sT0, mi, mi, sT2, sT1, mi, mi, sT2))
            k("s_and_b32 s%d, s%d, 1\ns_lshl_b32 s%d, s%d, 2\ns_lshr_b32 s%d, s%d, 3\ns_add_u32 s%d, s%d, s%d" % (ni, sT0, ni, ni, sT2, sT1, ni, ni, sT2))
        elif M == 1:
            k("s_lshl_b32 s%d, s%d, 2\ns_and_b32 s%d, s%d, 3\ns_add_u32 s%d, s%d, s%d\ns_lshr_b32 s%d, s%d, 2" % (mi, sT0, sT2, sT1, mi, mi, sT2, ni, sT1))
        else:
            k("s_lshr_b32 s%d, s%d, 2\ns_lshl_b32 s%d, s%d, 4\ns_and_b32 s%d, s%d, 15\ns_add_u32 s%d, s%d, s%d" % (mi, sT0, mi, mi, sT2, sT1, mi, mi, sT2))
            k("s_and_b32 s%d, s%d, 3\ns_lshl_b32 s%d, s%d, 1\ns_lshr_b32 s%d, s%d, 4\ns_add_u32 s%d, s%d, s%d" % (ni, sT0, ni, ni, sT2, sT1, ni, ni, sT2))
    def tab_base(tag, d):
        k("s_getpc_b64 %s" % sp(d))
        k("L_k1_tb%s:" % tag)
        k("s_add_u32 s%d, s%d, L_k1_tab-L_k1_tb%s\ns_addc_u32 s%d, s%d, 0" % (d, d, tag, d+1, d+1))
    def bf16r(d, s):
        k("v_cvt_pk_bf16_f32 v%d, v%d, v%d\nv_lshlrev_b32 v%d, 16, v%d" % (d, s, s, d, d))
    r5 = lambda b: [b+q for q in range(5)]
    def cpow5(dr, dk, n, t0, t1, cA2, cBt):
        R5 = range(5)
        for q in R5: k("v_mul_f32 v%d, %s, v%d\nv_mul_f32 v%d, %s, v%d" % (t0+q, n, cA2+q, t1+q, n, cBt+q))
        for q in R5: k("v_exp_f32 v%d, v%d\nv_rndne_f32 v%d, v%d" % (t0+q, t0+q, dr[q], t1+q))
        for q in R5: k("v_sub_f32 v%d, v%d, v%d" % (t1+q, t1+q, dr[q]))
        for q in R5: k("v_cos_f32 v%d, v%d\nv_sin_f32 v%d, v%d" % (dr[q], t1+q, dk[q], t1+q))
        for q in R5: k("v_mul_f32 v%d, v%d, v%d\nv_mul_f32 v%d, v%d, v%d" % (dr[q], dr[q], t0+q, dk[q], dk[q], t0+q))
    def param_loads(P, snh, va):
        k("s_mul_i32 s%d, s%d, 80\ns_mul_i32 s%d, s%d, 40\ns_add_u32 s%d, s%d, s%d" % (sT0, sJJ, sT1, snh, sT1, sT1, sT0))
        k("v_add_u32 v%d, s%d, v%d\nv_lshlrev_b32 v%d, 1, v%d" % (va, sT1, vSL, va, va))
        for q in range(5):
            for n, p in enumerate((pLre, pLim, pLdt)):
                k("global_load_ushort v%d, v%d, %s offset:%d" % (P+n*5+q, va, sp(p), q*16))
    def param_ab(P, cA2, cBt, vs):
        lre, lim, ldt = P, P+5, P+10
        k("v_lshrrev_b32 v%d, 3, v%d\nv_xor_b32 v%d, 1, v%d\nv_lshlrev_b32 v%d, 31, v%d" % (vs, vM, vs, vs, vs, vs))
        for q in range(15): k("v_lshlrev_b32 v%d, 16, v%d" % (P+q, P+q))
        for q in range(5): k("v_xor_b32 v%d, v%d, v%d\nv_mul_f32 v%d, %s, v%d" % (lim+q, lim+q, vs, ldt+q, f32(LOG2E), ldt+q))
        for q in range(5): k("v_exp_f32 v%d, v%d" % (ldt+q, ldt+q))
        for q in range(5): k("v_cvt_pk_bf16_f32 v%d, v%d, v%d" % (ldt+q, ldt+q, ldt+q))
        for q in range(5): k("v_lshlrev_b32 v%d, 16, v%d" % (ldt+q, ldt+q))
        for q in range(5): k("v_mul_f32 v%d, v%d, v%d\nv_mul_f32 v%d, v%d, v%d" % (cA2+q, ldt+q, lre+q, cBt+q, ldt+q, lim+q))
        for q in range(5): k("v_mul_f32 v%d, %s, v%d\nv_mul_f32 v%d, %s, v%d" % (cA2+q, f32(LOG2E), cA2+q, cBt+q, f32(1/(2*math.pi)), cBt+q))
    def trace(idx_sreg, mul, add):
        if TRACE and not opt("evonly", 1):
            k("s_memrealtime s[100:101]\ns_mul_i32 m0, s%d, %d\ns_add_u32 m0, m0, %d\ns_waitcnt lgkmcnt(0)\nv_writelane_b32 v255, s100, m0" % (idx_sreg, mul, add))
    def ev(n):
        if TRACE: k("s_memrealtime s[100:101]\ns_waitcnt lgkmcnt(0)\nv_writelane_b32 v255, s100, %d" % n)
    def finish(vt):
        if TRACE:
            k("s_lshl_b32 s83, s2, 11\ns_add_u32 s83, s83, 0x%x\nv_lshl_add_u32 v%d, v0, 2, s83" % (STAMP_OFF + 0x40000, vt+9))
            k("global_store_dword v%d, v255, %s" % (vt+9, sp(52)))
        stamp_out(k, 0, 8, 52, vt)
        k("s_endpgm")

    vXo, vWo, vSo = 12, 13, 14
    vF = 18
    k("s_lshl_b32 s%d, s%d, 7\ns_lshl_b32 s%d, s%d, 5\ns_add_u32 s%d, s%d, s%d" % (sT2, sI, sT3, sMH, sT2, sT2, sT3))
    k("v_lshrrev_b32 v%d, 2, v%d\nv_lshlrev_b32 v%d, 4, v%d\nv_and_b32 v%d, 3, v%d" % (vT[0], vII, vT[0], vT[0], vT[1], vII))
    k("v_add3_u32 v%d, v%d, v%d, s%d" % (vT[0], vT[0], vT[1], sT2))
    k("v_mul_u32_u24 v%d, 1280, v%d" % (vT[0], vT[0]))
    k("s_lshl_b32 s%d, s%d, 2" % (sT3, sMH))
    k("v_lshrrev_b32 v%d, 1, v%d\nv_or_b32 v%d, s%d, v%d\nv_xor_b32 v%d, v%d, v%d" % (vT[1], vII, vT[1], sT3, vT[1], vT[1], vT[1], vSL))
    k("v_lshl_add_u32 v%d, v%d, 4, v%d" % (vXo, vT[1], vT[0]))
    k("s_mul_i32 s%d, s%d, 80" % (sT0, sJJ))
    k("v_add_u32 v%d, s%d, v%d\nv_mul_u32_u24 v%d, 1280, v%d\nv_lshl_add_u32 v%d, v%d, 4, v%d" % (vT[2], sT0, vII, vT[2], vT[2], vSo, vT[1], vT[2]))
    k("s_lshl_b32 s%d, s%d, 3" % (sT0, sMH))
    k("v_add_u32 v%d, s%d, v%d\nv_mul_u32_u24 v%d, 3072, v%d" % (vT[0], sT0, vII, vT[0], vT[0]))
    k("v_and_b32 v%d, 2, v%d\nv_or_b32 v%d, s%d, v%d\nv_xor_b32 v%d, v%d, v%d" % (vT[1], vII, vT[1], sT3, vT[1], vT[1], vT[1], vSL))
    k("v_lshl_add_u32 v%d, v%d, 4, v%d" % (vT[0], vT[1], vT[0]))
    k("s_lshl_b32 s%d, s%d, 1" % (sT0, sCol))
    k("v_add_u32 v%d, s%d, v%d" % (vWo, sT0, vT[0]))
    k("s_mov_b32 s%d, 0\ns_mov_b32 s%d, 0\ns_lshl_b32 s%d, s%d, 10\ns_mov_b32 s%d, 0\ns_mov_b32 s%d, 0" % (sKx, sKw, sDst, sMH, sIt, sRd))
    k("v_mov_b32 v%d, %d\nv_mov_b32 v24, 4" % (vF, DNA))
    tab_base("L", 68)
    k("s_lshl_b32 s70, s%d, 2\ns_add_u32 s70, s70, %d" % (sMH, FLG+16))
    k("s_lshl_b32 s%d, s%d, 2\ns_add_u32 s%d, s%d, %d\nv_mov_b32 v%d, s%d" % (sT0, sMH, sT0, sT0, FLG+16, vF+1, sT0))
    for S_, n_ in ((SX, 2048*1280), (SW0, 640*3072), (SW1, 640*3072), (SP0, 640*1280)): k("s_mov_b32 s%d, %d\ns_mov_b32 s%d, 0x20000" % (S_+2, n_, S_+3))
    k("s_cmp_eq_u32 s%d, 0\ns_waitcnt lgkmcnt(0)" % sMH)
    k("s_mov_b64 %s, %s\ns_mov_b64 %s, %s\ns_mov_b64 %s, %s\ns_cselect_b64 %s, %s, %s" % (sp(SX), sp(pX), sp(SW0), sp(pG), sp(SW1), sp(pU), sp(SP0), sp(pBre), sp(pBim)))
    def wait_word(lab, off, need, va, vt):
        k("v_mov_b32 v%d, %d" % (va, FLG+off))
        k("%s:" % lab)
        k("ds_read_b32 v%d, v%d\ns_waitcnt lgkmcnt(0)\nv_readfirstlane_b32 s%d, v%d" % (vt, va, sT0, vt))
        k("s_cmp_ge_i32 s%d, %s\ns_cbranch_scc1 %s_ok\ns_sleep %d\ns_branch %s\n%s_ok:" % (sT0, need, lab, opt("wsl", 1), lab, lab))
    def done_read(vt, vaddr):
        return "ds_read2st64_b32 %s, v%d offset0:0 offset1:1\nds_read2st64_b32 %s, v%d offset0:2 offset1:3" % (vr(vt, 2), vaddr, vr(vt+2, 2), vaddr)
    def wait_done(lab, need, vaddr, vt):
        k("%s:" % lab)
        k(done_read(vt, vaddr) + "\ns_waitcnt lgkmcnt(0)")
        k("v_min_u32 v%d, v%d, v%d\nv_min3_u32 v%d, v%d, v%d, v%d" % (vt, vt, vt+1, vt, vt, vt+2, vt+3))
        k("v_readfirstlane_b32 s%d, v%d" % (sT0, vt))
        k("s_cmp_ge_i32 s%d, %s\ns_cbranch_scc1 %s_ok\ns_sleep %d\ns_branch %s\n%s_ok:" % (sT0, need, lab, opt("dsl", 1), lab, lab))
    def dma(ldsoff, voff, S, sbase, add):
        k("s_add_u32 m0, s%d, %d\ns_add_u32 s%d, s%d, %d\nbuffer_load_dwordx4 v%d, %s, s%d offen lds" % (sDst, ldsoff, sT0, sbase, add, voff, sq(S), sT0))
    NSIG = opt("nsig", 8)
    def chk(lab, add, sig):
        k("s_cmp_lt_u32 s%d, 3\ns_cbranch_scc1 %s_go" % (sIt, lab))
        k("s_lshl_b32 s%d, s%d, 1\ns_add_i32 s%d, s%d, %d\ns_waitcnt lgkmcnt(0)" % (sT1, sIt, sT1, sT1, add))
        k("v_min_u32 v20, v20, v21\nv_min3_u32 v20, v20, v22, v23\nv_readfirstlane_b32 s%d, v20" % sT0)
        k("s_cmp_ge_i32 s%d, s%d\ns_cbranch_scc1 %s_go" % (sT0, sT1, lab))
        wait_done(lab+"_wd", "s%d" % sT1, vF, 20)
        k("%s_go:" % lab)
    L = "L_k1_L"
    xs = [(n*2048, vXo, SX, sKx, ((n & 3)*4 + (n >> 2)*64)*1280) for n in range(8)]
    wsu = lambda un, ns: [(16384+un*16384+gu*8192+n*2048, vWo, SW1 if gu else SW0, sKw, n*16*3072+un*128) for n in ns for gu in range(2)]
    p1 = []
    for i in range(4): p1 += xs[2*i:2*i+2] + wsu(0, (0, 1))[i:i+1]
    LB = opt("lbar", 1)
    if not LB:
        for o in p1[:NSIG]: dma(*o)
        k("s_barrier\ns_branch %s_sig" % L)
    k("%s:" % L)
    trace(sIt, 4, 0)
    chk(L+"_c1", -5, True)
    trace(sIt, 4, 1)
    for o in p1[:NSIG]: dma(*o)
    k("%s_sig:" % L)
    k("s_waitcnt vmcnt(40)")
    trace(sIt, 4, 3)
    k("s_cmp_eq_u32 s%d, 1\ns_cbranch_scc1 %s_b1" % (sTY, L))
    for o in wsu(1, (0, 1)): dma(*o)
    k("%s_b1:" % L)
    for i, o in enumerate(p1[NSIG:]):
        if i == len(p1)-NSIG-2: k(done_read(20, vF))
        dma(*o)
    chk(L+"_c2", -4, False)
    k("s_cmp_eq_u32 s%d, 1\ns_cbranch_scc1 %s_b2" % (sTY, L))
    for o in wsu(1, (2, 3)): dma(*o)
    k("s_branch %s_b3" % L)
    k("%s_b2:" % L)
    for b_ in range(10): dma(32768+b_*2048, vSo, SP0, sKx, b_*10240)
    k("%s_b3:" % L)
    for i, o in enumerate(wsu(0, (2, 3))):
        if i == 2: k(done_read(20, vF))
        dma(*o)
    if LB: k("s_cmp_lg_u32 s%d, 0\ns_cbranch_scc1 %s_nb\ns_barrier\n%s_nb:" % (sIt, L, L))
    k("s_mov_b32 m0, s70\ns_mov_b64 exec, 1\nglobal_load_lds_dword v24, s[68:69]\ns_mov_b64 exec, -1")
    k("s_bitcmp1_b32 %d, s%d\ns_cbranch_scc0 %s_ni" % ((1 << 9) | (1 << (opt("gate", 3)-1)) | ((1 << opt("pgate", 1)) >> 1), sIt, L))
    k("v_lshrrev_b32 v25, 2, v24\nds_write_b32 v%d, v25 offset:16\n%s_ni:" % (vF+1, L))
    k("v_add_u32 v24, 4, v24")
    k("s_add_u32 s%d, s%d, 128\ns_add_u32 s%d, s%d, 196608\ns_add_u32 s%d, s%d, %d\ns_add_u32 s%d, s%d, 1" % (sKx, sKx, sKw, sKw, sDst, sDst, SL, sRd, sRd))
    k("s_cmp_eq_u32 s%d, 3\ns_cselect_b32 s%d, 0, s%d\ns_cselect_b32 s%d, %d, 0\ns_sub_u32 s%d, s%d, s%d" % (sRd, sRd, sRd, sT0, 3*SL, sDst, sDst, sT0))
    trace(sIt, 4, 2)
    k("s_add_u32 s%d, s%d, 1\ns_cmp_lt_u32 s%d, 10\ns_cbranch_scc1 %s" % (sIt, sIt, sIt, L))
    k("L_k1_Lend:")
    srd(k, SWS, pWs, WS_NREC)
    k("s_branch L_k1_P2")

    k("L_k1_D:")
    k("s_memrealtime s[100:101]")
    decode()
    XR = 16
    YR = 36
    PK = 100
    T = 132
    vN = 12
    sPQ, sPR = [14, 78], [15, 79]
    k("v_mul_u32_u24 v%d, 1280, v%d\nv_lshl_add_u32 v%d, v%d, 4, v%d" % (vT[0], vG, vT[0], vM, vT[0]))
    XL = opt("xl", 1)
    sQ_, sG_ = sIt, sRd
    if XL:
        k("s_and_b32 s%d, s2, 7\ns_lshl_b32 s%d, s%d, 5\ns_lshr_b32 s%d, s2, 3\ns_add_u32 s%d, s%d, s%d\ns_lshl_b32 s%d, s%d, 1\ns_add_u32 s%d, s%d, s%d" % (sT0, sT0, sT0, sT1, sT0, sT0, sT1, sC, sT0, sC, sC, sMH))
        k("s_bfe_u32 s%d, s2, 0x10002\ns_lshl_b32 s%d, s%d, 5\ns_add_u32 s%d, s%d, s%d" % (sQ_, sQ_, sQ_, sQ_, sQ_, sT1))
    else:
        k("s_lshl_b32 s%d, s2, 1\ns_add_u32 s%d, s%d, s%d" % (sC, sC, sC, sMH))
    def code_touch(tag):
        k("s_getpc_b64 s[70:71]")
        k("L_k1_pc%s:" % tag)
        k("s_sub_u32 s70, s70, L_k1_pc%s-%s\ns_subb_u32 s71, s71, 0" % (tag, KNAME))
        k("s_lshr_b32 s%d, s2, 3\ns_lshl_b32 s%d, s%d, 1\ns_add_u32 s%d, s%d, s%d\ns_mul_i32 s%d, s%d, 640" % (sT0, sT0, sT0, sT0, sT0, sMH, sT0, sT0))
        k("v_min_u32 v14, 4, v%d\nv_lshl_add_u32 v14, v14, 7, s%d\nv_min_u32 v14, L_k1_tab-%s, v14" % (vL, sT0, KNAME))
        k("global_load_dword v15, v14, s[70:71]")
    if opt("cpf", 6) & 4: code_touch("c")
    k("s_waitcnt lgkmcnt(0)")
    srd(k, SX, pX, 2048*1280)
    srd(k, SWS, pWs, WS_NREC)
    k("s_cmp_lg_u32 s%d, 0\ns_cbranch_scc1 L_k1_nn" % sC)
    k("s_or_b32 s%d, s100, 1" % sT0)
    k("v_mov_b32 v%d, s%d\nv_mov_b32 v%d, 0" % (vT[2], sT0, vT[1]))
    k("global_store_dword v%d, v%d, %s%s" % (vT[1], vT[2], sp(pDbg), SC))
    k("L_k1_nn:")
    B1 = opt("b1", 2); GATE = opt("gate", 3)
    SNT = " nt" if opt("snt", 0) else ""
    PNT = " nt" if opt("pnt", 1) else ""
    PA = 1
    PK2 = 180; PP = 180
    PK1 = opt("pk1", 0); PGATE = opt("pgate", 1)
    cr_, cc_ = (vSL, vII) if opt("cs", 2) else (vII, vSL)
    CL = opt("cs", 2) == 2
    def pack_loads(tag):
        k("s_cmp_eq_u32 s%d, 1\ns_cbranch_scc1 L_k1_pld%s" % (sTY, tag))
        k("s_lshl_b32 s%d, s%d, 3\ns_add_u32 s%d, s%d, s%d\ns_lshl_b32 s%d, s%d, 1\ns_add_u32 s%d, s%d, s%d\ns_lshl_b32 s%d, s%d, 1" % (sT3, sI, sT3, sT3, sJJ, sT3, sT3, sT3, sT3, sMH, sT3, sT3))
        for n in range(2):
            k("s_add_u32 s%d, s%d, %d\ns_mul_i32 s%d, s%d, 6554\ns_lshr_b32 s%d, s%d, 16\ns_mul_i32 s%d, s%d, 10\ns_sub_u32 s%d, s%d, s%d" % (sT0, sT3, n, sPQ[n], sT0, sPQ[n], sPQ[n], sT1, sPQ[n], sPR[n], sT0, sT1))
        srd(k, SP0, pDn, 1536*1280)
        srd(k, SW0, pCre, 640*1280)
        srd(k, SW1, pCim, 640*1280)
        k("v_mul_u32_u24 v%d, 1280, v%d\nv_lshl_add_u32 v%d, v%d, 4, v%d" % (vT[4], vII, vT[4], vSL, vT[4]))
        k("s_cmp_lt_u32 s%d, 48\ns_cselect_b32 s%d, s%d, 0" % (sPQ[0], SP0+2, SP0+2))
        k("s_cmp_lt_u32 s%d, 40\ns_cselect_b32 s%d, s%d, 0\ns_cselect_b32 s%d, s%d, 0" % (sPQ[0], SW0+2, SW0+2, SW1+2, SW1+2))
        if PK1 and PGATE: wait_word("L_k1_pgw"+tag, 36, "%d" % PGATE, vT[3], vT[2])
        for n in range(2):
            k("s_mul_i32 s%d, s%d, 40960\ns_lshl_b32 s%d, s%d, 7\ns_add_u32 s%d, s%d, s%d" % (sT1, sPQ[n], sT2, sPR[n], sT1, sT1, sT2))
            for a in range(4):
                k("buffer_load_dwordx4 %s, v%d, %s, s%d offen%s" % (vr(PK+16*n+4*a, 4), vT[4], sq(SP0), sT1, PNT))
                if a < 3: k("s_add_u32 s%d, s%d, 10240" % (sT1, sT1))
        if not CL: k("v_mul_u32_u24 v%d, 1280, v%d\nv_lshl_add_u32 v%d, v%d, 4, v%d" % (vT[4], cr_, vT[4], cc_, vT[4]))
        for n in range(2):
            k("s_mul_i32 s%d, s%d, 20480\ns_lshl_b32 s%d, s%d, 7\ns_add_u32 s%d, s%d, s%d" % (sT1, sPQ[n], sT2, sPR[n], sT1, sT1, sT2))
            k("s_add_u32 s%d, s%d, 10240" % (sT2, sT1))
            for part in range(2):
                for hh in range(2):
                    k("buffer_load_dwordx4 %s, v%d, %s, s%d offen%s" % (vr(PK2+16*n+(part*2+hh)*4, 4), vT[4], sq(SW1 if part else SW0), sT2 if hh else sT1, PNT))
        k("L_k1_pld%s:" % tag)
    def gate(lab):
        k("s_barrier")
        if PK1: pack_loads(lab[-2:])
        if GATE: wait_word(lab, 36, "%d" % GATE, vT[3], vT[2])
    k("s_mul_i32 s%d, s%d, 5120" % (sKx, sC))
    xl = lambda c: k("buffer_load_dwordx4 %s, v%d, %s, s%d offen offset:%d%s" % (vr(XR+4*c, 4), vT[0], sq(SX), sKx, c*256, SNT))
    k("s_cmp_eq_u32 s%d, 1\ns_cbranch_scc1 L_k1_D1a" % sMH)
    if XL:
        k("s_mul_i32 s%d, s%d, 43\ns_lshr_b32 s%d, s%d, 9\ns_mul_i32 s%d, s%d, 12\ns_sub_u32 s%d, s%d, s%d" % (sT0, sQ_, sT0, sT0, sT1, sT0, sT1, sQ_, sT1))
        k("s_cmp_lt_u32 s%d, 6\ns_cselect_b32 s%d, s%d, s%d\ns_cselect_b32 s%d, s%d, s%d\ns_cselect_b32 s%d, 0, 6\ns_cselect_b32 s%d, 0, 24" % (sT1, SP1, pG, pU, SP1+1, pG+1, pU+1, sT2, sG_))
        k("s_sub_u32 s%d, s%d, s%d\ns_and_b32 s%d, s2, 3\ns_lshl_b32 s%d, s%d, 2\ns_lshl_b32 s%d, s%d, 1\ns_add_u32 s%d, s%d, 12" % (sT1, sT1, sT2, sT2, sT3, sT2, sT2, sT2, sT2, sT2))
        k("s_cmp_lt_u32 s%d, 4\ns_cselect_b32 s%d, s%d, s%d\ns_add_u32 s%d, s%d, s%d" % (sT1, sT2, sT3, sT2, sT1, sT1, sT2))
        k("s_add_u32 s%d, s%d, s%d\ns_mul_i32 s%d, s%d, 48\ns_add_u32 s%d, s%d, s%d" % (sG_, sG_, sT1, sT2, sT0, sG_, sG_, sT2))
        k("s_lshl_b32 s%d, s%d, 7\ns_mul_i32 s%d, s%d, %d\ns_add_u32 s%d, s%d, s%d" % (sT1, sT1, sT0, sT0, 8*3072, sKw, sT0, sT1))
        k("s_cmp_lt_u32 s%d, 60\ns_cselect_b32 s%d, %d, 0\ns_cselect_b32 s%d, s%d, 1000\ns_mov_b32 s%d, 0x20000" % (sQ_, SP1+2, 640*3072, sG_, sG_, SP1+3))
    else:
        k("s_mov_b32 s%d, s2" % sG_)
        k("s_mul_i32 s%d, s2, 1366\ns_lshr_b32 s%d, s%d, 16\ns_mul_i32 s%d, s%d, 48\ns_sub_u32 s%d, s2, s%d" % (sT0, sT0, sT0, sT1, sT0, sT1, sT1))
        k("s_cmp_lt_u32 s%d, 24\ns_cselect_b32 s%d, s%d, s%d\ns_cselect_b32 s%d, s%d, s%d\ns_cselect_b32 s%d, 0, 24" % (sT1, SP1, pG, pU, SP1+1, pG+1, pU+1, sT2))
        k("s_sub_u32 s%d, s%d, s%d\ns_lshl_b32 s%d, s%d, 7\ns_mul_i32 s%d, s%d, %d\ns_add_u32 s%d, s%d, s%d" % (sT1, sT1, sT2, sT1, sT1, sT0, sT0, 8*3072, sKw, sT0, sT1))
        k("s_cmp_lt_u32 s2, 240\ns_cselect_b32 s%d, %d, 0\ns_mov_b32 s%d, 0x20000" % (SP1+2, 640*3072, SP1+3))
    k("v_mul_u32_u24 v%d, 3072, v%d\nv_lshl_add_u32 v%d, v%d, 4, v%d" % (vT[1], vII, vT[1], vSL, vT[1]))
    a_ = 0
    for c in range(5):
        if c == B1: gate("L_k1_g0")
        xl(c)
        while a_ < 16 and a_*40 < 128*(c+1):
            k("buffer_load_dwordx4 %s, v%d, %s, s%d offen%s" % (vr(YR+4*a_, 4), vT[1], sq(SP1), sKw, SNT))
            k("s_add_u32 s%d, s%d, %d" % (sKw, sKw, 40*3072))
            a_ += 1
    if B1 >= 5: gate("L_k1_g0")
    k("s_branch L_k1_Db")
    k("L_k1_D1a:")
    if XL:
        k("s_cmp_lt_u32 s%d, 20\ns_cselect_b32 s%d, s%d, s%d\ns_cselect_b32 s%d, s%d, s%d\ns_cselect_b32 s%d, 0, 20\ns_cselect_b32 s%d, 0, 80" % (sQ_, SP1, pBre, pBim, SP1+1, pBre+1, pBim+1, sT1, sG_))
        k("s_sub_u32 s%d, s%d, s%d\ns_and_b32 s%d, s2, 3\ns_mul_i32 s%d, s%d, 20\ns_add_u32 s%d, s%d, s%d\ns_add_u32 s%d, s%d, s%d" % (sT0, sQ_, sT1, sT1, sT1, sT1, sT0, sT0, sT1, sG_, sG_, sT0))
        k("s_mul_i32 s%d, s%d, 10240\ns_add_u32 s%d, s%d, 5120" % (sKw, sT0, sDst, sKw))
        k("s_cmp_lt_u32 s%d, 40\ns_cselect_b32 s%d, %d, 0\ns_cselect_b32 s%d, s%d, 1000\ns_mov_b32 s%d, 0x20000" % (sQ_, SP1+2, 640*1280, sG_, sG_, SP1+3))
    else:
        k("s_mov_b32 s%d, s2" % sG_)
        k("s_cmp_lt_u32 s2, 80\ns_cselect_b32 s%d, s%d, s%d\ns_cselect_b32 s%d, s%d, s%d\ns_cselect_b32 s%d, 0, 80" % (SP1, pBre, pBim, SP1+1, pBre+1, pBim+1, sT1))
        k("s_sub_u32 s%d, s2, s%d\ns_mul_i32 s%d, s%d, 10240\ns_add_u32 s%d, s%d, 5120" % (sT0, sT1, sKw, sT0, sDst, sKw))
        k("s_cmp_lt_u32 s2, 160\ns_cselect_b32 s%d, %d, 0\ns_mov_b32 s%d, 0x20000" % (SP1+2, 640*1280, SP1+3))
    for c in range(5):
        if c == B1: gate("L_k1_g1")
        xl(c)
        for hh in range(2): k("buffer_load_dwordx4 %s, v%d, %s, s%d offen offset:%d%s" % (vr(YR+20*hh+4*c, 4), vT[0], sq(SP1), sDst if hh else sKw, c*256, SNT))
    if B1 >= 5: gate("L_k1_g1")
    k("L_k1_Db:")
    if opt("cpf", 6) & 1: code_touch("a")
    ev(0)
    k("v_mov_b32 v%d, 0" % vT[4])
    k("global_load_dword v%d, v%d, %s%s" % (vN, vT[4], sp(pDbg), SC))
    if not PK1: pack_loads("")
    k("s_cmp_eq_u32 s%d, 0\ns_cbranch_scc1 L_k1_npar" % sTY)
    param_loads(PP, sMH, vT[4])
    k("s_waitcnt vmcnt(15)")
    k("L_k1_npar:")
    k("v_mov_b32 v13, 0x3f803f80")
    ev(1)
    if not PK1: k("s_waitcnt vmcnt(16)")
    ev(2)
    stamp(k, 7)
    def unpack(dst, src, n):
        for d in range(n): k("v_lshlrev_b32 v%d, 16, v%d\nv_and_b32 v%d, s%d, v%d" % (dst+2*d, src+d, dst+2*d+1, sMASK, src+d))
    def row_sum(regs):
        for n in (8, 4, 2, 1):
            for r in regs: k("v_add_f32_dpp v%d, v%d, v%d%s" % (r, r, r, ror(n)))
    def tree(dst, src, n):
        k("v_add_f32 v%d, v%d, v%d\nv_add_f32 v%d, v%d, v%d" % (dst, src, src+1, dst+1, src+2, src+3))
        for d in range(4, n, 2): k("v_add_f32 v%d, v%d, v%d\nv_add_f32 v%d, v%d, v%d" % (dst, dst, src+d, dst+1, dst+1, src+d+1))
        k("v_add_f32 v%d, v%d, v%d" % (dst, dst, dst+1))
    PFIRST = 0
    def do_nonce():
        k("s_mov_b32 s%d, 0" % sT3)
        k("L_k1_gn:")
        k("v_readfirstlane_b32 s%d, v%d" % (sNon, vN))
        k("s_add_u32 s%d, s%d, 1\ns_cmp_lg_u32 s%d, 0\ns_cbranch_scc1 L_k1_gnd" % (sT3, sT3, sNon))
        k("s_cmp_gt_u32 s%d, 0x40000\ns_cbranch_scc1 L_k1_gnd" % sT3)
        k("v_mov_b32 v%d, 0" % vT[1])
        k("global_load_dword v%d, v%d, %s%s\ns_waitcnt vmcnt(0)\ns_branch L_k1_gn" % (vN, vT[1], sp(pDbg), SC))
        k("L_k1_gnd:")
        k("s_max_u32 s%d, s%d, 1" % (sNon, sNon))
    def do_stats():
        A, B = T+40, T+42
        def dsum(dst, src, n, sq_):
            for d in range(n):
                k("v_dot2_f32_bf16 v%d, v%d, v%d, %s" % (dst+(d & 1), src+d, src+d if sq_ else 13, "v%d" % (dst+(d & 1)) if d > 1 else "0"))
        dsum(A, XR, 20, False)
        dsum(B, XR, 20, True)
        k("v_add_f32 v%d, v%d, v%d\nv_add_f32 v%d, v%d, v%d" % (A, A, A+1, B, B, B+1))
        row_sum([A, B])
        k("v_mul_f32 v%d, %s, v%d" % (A, f32(1/640.), A))
        k("v_mul_f32 v%d, %s, v%d" % (B, f32(1/640.), B))
        k("v_fma_f32 v%d, -v%d, v%d, v%d\nv_max_f32 v%d, 0, v%d" % (B, A, A, B, B, B))
        bf16r(B, B)
        k("v_add_f32 v%d, %s, v%d" % (B, f32(1e-5), B))
        bf16r(B, B)
        k("v_sqrt_f32 v%d, v%d" % (B, B))
        k("v_cvt_pk_bf16_f32 v%d, v%d, v%d\nv_mov_b32 v%d, s%d" % (T+44, A, B, T+45, sNon))
        k("s_lshl_b32 s%d, s%d, 5\ns_add_u32 s%d, s%d, 0x%x" % (sT0, sC, sT0, sT0, RST_OFF))
        k("v_lshlrev_b32 v%d, 3, v%d" % (vT[2], vG))
        k("s_mov_b32 exec_lo, 0x00010001\ns_mov_b32 exec_hi, 0x00010001")
        k("buffer_store_dwordx2 %s, v%d, %s, s%d offen%s" % (vr(T+44, 2), vT[2], sq(SWS), sT0, SC))
        k("s_mov_b64 exec, -1")
        k("s_cmp_eq_u32 s%d, 1\ns_cbranch_scc1 L_k1_D1b" % sMH)
        k("v_and_b32 v%d, 1, v%d\nv_lshlrev_b32 v%d, 4, v%d\nv_mov_b32 v%d, 0x3f80\nv_lshlrev_b32 v%d, v%d, v%d" % (T+8, vM, T+8, T+8, T+9, T+8, T+8, T+9))
        k("v_bfe_u32 v%d, v%d, 1, 2" % (T+9, vM))
        for d in range(4): k("v_cmp_eq_u32 vcc, %d, v%d\nv_cndmask_b32 v%d, 0, v%d, vcc" % (d, T+9, T+d, T+8))
        for a in range(16): k("v_mfma_f32_16x16x32_bf16 %s, %s, %s, %s" % (vr(T+4, 4), vr(T, 4), vr(YR+4*a, 4), vr(T+4, 4) if a else "0"))
        k("s_lshl_b32 s%d, s%d, 9\ns_add_u32 s%d, s%d, 0x%x\ns_cmp_lt_u32 s%d, 240\ns_cselect_b32 s%d, s%d, 0x%x" % (sT0, sG_, sT0, sT0, SG_OFF, sG_, sT0, sT0, WS_NREC))
        k("v_lshlrev_b32 v%d, 5, v%d\nv_lshl_add_u32 v%d, v%d, 6, v%d\nv_add_u32 v%d, s%d, v%d" % (T+8, vG, T+8, vSL, T+8, T+8, sT0, T+8))
        for r in range(4): k("v_mov_b32 v%d, s%d" % (T+13+2*r, sNon))
        for r in range(4): k("v_add_f32_dpp v%d, v%d, v%d%s" % (T+12+2*r, T+4+r, T+4+r, DPP))
        k("s_mov_b32 exec_lo, 0x00ff00ff\ns_mov_b32 exec_hi, 0")
        k("buffer_store_dwordx4 %s, v%d, %s, 0 offen%s" % (vr(T+12, 4), T+8, sq(SWS), SC))
        k("buffer_store_dwordx4 %s, v%d, %s, 0 offen offset:16%s" % (vr(T+16, 4), T+8, sq(SWS), SC))
        k("s_mov_b64 exec, -1")
        k("s_branch L_k1_Dc")
        k("L_k1_D1b:")
        for hh in range(2): dsum(A+2*hh, YR+20*hh, 20, False)
        k("v_add_f32 v%d, v%d, v%d\nv_add_f32 v%d, v%d, v%d" % (A, A, A+1, A+2, A+2, A+3))
        row_sum([A, A+2])
        k("v_mov_b32 v%d, s%d\nv_mov_b32 v%d, s%d" % (A+1, sNon, A+3, sNon))
        k("s_lshl_b32 s%d, s%d, 6\ns_add_u32 s%d, s%d, 0x%x\ns_cmp_lt_u32 s%d, 160\ns_cselect_b32 s%d, s%d, 0x%x" % (sT0, sG_, sT0, sT0, SB_OFF, sG_, sT0, sT0, WS_NREC))
        k("v_add_u32 v%d, s%d, v%d" % (vT[3], sT0, vT[2]))
        k("s_mov_b32 exec_lo, 0x00010001\ns_mov_b32 exec_hi, 0x00010001")
        k("buffer_store_dwordx2 %s, v%d, %s, 0 offen%s" % (vr(A, 2), vT[3], sq(SWS), SC))
        k("buffer_store_dwordx2 %s, v%d, %s, 0 offen offset:32%s" % (vr(A+2, 2), vT[3], sq(SWS), SC))
        k("s_mov_b64 exec, -1")
        k("L_k1_Dc:")
    def do_pack():
        ev(3)
        PSC = S1
        k("s_waitcnt vmcnt(%d)" % (1 + 3*(5-B1) if PK1 else 3))
        k("s_cmp_eq_u32 s%d, 1\ns_cbranch_scc1 %s" % (sTY, "L_k1_pdd" if PA else "L_k1_pdC"))
        k("s_cmp_ge_u32 s%d, 48\ns_cbranch_scc1 L_k1_pdd" % sPQ[0])
        k("s_mul_i32 s%d, s%d, %d\ns_add_u32 s%d, s%d, 49152" % (sT2, sMH, SL, sT2, sT2))
        k("v_lshlrev_b32 v%d, 4, v%d\nv_add_u32 v%d, s%d, v%d" % (T+1, vL, T, sT2, T+1))
        k("v_lshrrev_b32 v%d, 2, v%d\nv_lshl_add_u32 v%d, v%d, 2, v%d\nv_lshlrev_b32 v%d, 7, v%d" % (T+2, vM, T+2, vG, T+2, T+2, T+2))
        k("v_and_b32 v%d, 3, v%d\nv_lshl_add_u32 v%d, v%d, 3, v%d\nv_add_u32 v%d, s%d, v%d" % (T+3, vM, T+2, T+3, T+2, T+2, sT2, T+2))
        k("v_lshl_add_u32 v%d, v%d, 3, v%d\nv_lshl_add_u32 v%d, v%d, 4, s%d" % (T+3, vSL, vII, T+3, T+3, sT2))
        k("v_lshrrev_b32 v%d, 1, v%d\nv_mul_u32_u24 v%d, 5120, v%d" % (T+4, cc_, T+4, T+4))
        k("v_and_b32 v%d, 1, v%d\nv_lshl_add_u32 v%d, v%d, 5, v%d\nv_lshl_add_u32 v%d, v%d, 4, v%d" % (T+5, cc_, T+5, T+5, cr_, T+4, T+5, T+4))
        def lds_w(n):
            for a in range(4): k("ds_write_b128 v%d, %s offset:%d" % (T, vr(PK+16*n+4*a, 4), a*1024))
            for c4 in range(4):
                k("ds_read_b64_tr_b16 %s, v%d offset:%d" % (vr(PK+16*n+c4*4, 2), T+2, c4*32))
                k("ds_read_b64_tr_b16 %s, v%d offset:%d" % (vr(PK+16*n+c4*4+2, 2), T+2, c4*32+2048))
        def lds_c(n):
            for a in range(4): k("ds_write_b128 v%d, %s offset:%d" % (T, vr(PK2+16*n+4*a, 4), a*1024))
            for a in range(4): k("ds_read_b128 %s, v%d offset:%d" % (vr(PK2+16*n+4*a, 4), T+3, a*1024))
        def st_w(n):
            for c4 in range(4):
                k("s_lshl_b32 s%d, s%d, 2\ns_add_u32 s%d, s%d, %d\ns_mul_i32 s%d, s%d, 52\ns_lshr_b32 s%d, s%d, 8" % (sT0, sPR[n], sT0, sT0, c4, sT1, sT0, sT1, sT1))
                k("s_mul_i32 s%d, s%d, 435\ns_add_u32 s%d, s%d, s%d\ns_mul_i32 s%d, s%d, 5\ns_add_u32 s%d, s%d, s%d" % (sT1, sT1, sT1, sT1, sT0, sT0, sPQ[n], sT1, sT1, sT0))
                k("s_lshl_b32 s%d, s%d, 10\ns_add_u32 s%d, s%d, %d" % (sT1, sT1, sT1, sT1, B2_OFF))
                k("buffer_store_dwordx4 %s, v%d, %s, s%d offen%s" % (vr(PK+16*n+c4*4, 4), T+1, sq(SWS), sT1, PSC))
        def st_c(n):
            k("s_mul_i32 s%d, s%d, 52\ns_lshr_b32 s%d, s%d, 8\ns_mul_i32 s%d, s%d, 435\ns_add_u32 s%d, s%d, s%d" % (sT1, sPQ[n], sT1, sT1, sT1, sT1, sT1, sT1, sPQ[n]))
            k("s_mul_i32 s%d, s%d, 20\ns_add_u32 s%d, s%d, s%d\ns_add_u32 s%d, s%d, 240\ns_lshl_b32 s%d, s%d, 10\ns_add_u32 s%d, s%d, %d" % (sT0, sPR[n], sT1, sT1, sT0, sT1, sT1, sT1, sT1, sT1, sT1, B2_OFF))
            for r in range(8, 16): k("v_xor_b32 v%d, 0x80008000, v%d" % (PK2+16*n+r, PK2+16*n+r))
            for part in range(2):
                for hh in range(2):
                    k("buffer_store_dwordx4 %s, v%d, %s, s%d offen offset:%d%s" % (vr(PK2+16*n+(part*2+hh)*4, 4), T+4, sq(SWS), sT1, part*256+hh*128, PSC))
        assert CL
        lds_w(0)
        k("s_waitcnt lgkmcnt(3)")
        lds_w(1)
        k("s_waitcnt lgkmcnt(7)")
        lds_c(0)
        k("s_waitcnt lgkmcnt(7)")
        lds_c(1)
        st_w(0); st_w(1)
        k("s_cmp_ge_u32 s%d, 40\ns_cbranch_scc1 L_k1_pdd\ns_waitcnt lgkmcnt(0)" % sPQ[0])
        st_c(0); st_c(1)
        k("L_k1_pdd:")
        if opt("pw", 0):
            k("s_mul_i32 s%d, s%d, 22528\nv_lshlrev_b32 v%d, 4, v%d" % (sT0, sC, T+3, vL))
            for j in range(22):
                k("buffer_store_dwordx4 %s, v%d, %s, s%d offen offset:%d sc1" % (vr(XR, 4), T+3, sq(SWS), sT0, (j & 3)*1024))
                if j & 3 == 3: k("s_add_u32 s%d, s%d, 4096" % (sT0, sT0))
        ev(4)
    def do_flag():
        if PA: k("s_cmp_eq_u32 s%d, 1\ns_cbranch_scc1 L_k1_npf" % sTY)
        k("s_lshl_b32 s%d, s%d, 4\ns_add_u32 s%d, s%d, s%d\ns_lshl_b32 s%d, s%d, 3\ns_add_u32 s%d, s%d, s%d\ns_lshl_b32 s%d, s%d, 1\ns_add_u32 s%d, s%d, s%d" % (sT0, sTY, sT0, sT0, sI, sT0, sT0, sT0, sT0, sJJ, sT0, sT0, sT0, sT0, sMH))
        k("s_lshl_b32 s%d, s%d, 2\ns_add_u32 s%d, s%d, 0x%x\nv_mov_b32 v%d, s%d\nv_mov_b32 v%d, s%d" % (sT0, sT0, sT0, sT0, PF_OFF, T, sT0, T+1, sNon))
        k("s_waitcnt vmcnt(0)\ns_mov_b64 exec, 1")
        k("buffer_store_dword v%d, v%d, %s, 0 offen%s\ns_mov_b64 exec, -1" % (T+1, T, sq(SWS), SC))
        k("L_k1_npf:")
    if opt("dprio", 1): k("s_setprio 3")
    if PK1:
        do_pack()
        k("s_cmp_eq_u32 s%d, 1\ns_cbranch_scc1 L_k1_nw\ns_cmp_lt_u32 s%d, 40\ns_cbranch_scc1 L_k1_w16\ns_waitcnt vmcnt(0)\nL_k1_w16:\ns_waitcnt vmcnt(16)\nL_k1_nw:" % (sTY, sPQ[0]))
        ev(9)
        do_nonce(); ev(10); do_stats(); ev(11); do_flag()
        k("s_waitcnt vmcnt(3)")
    else:
        do_nonce(); do_stats(); do_pack(); do_flag()
    stamp(k, 2)
    if opt("dprio", 1) == 1: k("s_setprio 0")
    ev(5)
    TB = 48
    TG = 196
    CT = TRB + 4*80*TRP
    k("s_cmp_eq_u32 s%d, 0\ns_cbranch_scc1 L_k1_ntb" % sTY)
    param_ab(PP, 80, 85, vT[1])
    k("v_cvt_f32_u32 v%d, v%d\nv_mul_f32 v%d, %s, v%d\nv_mul_f32 v%d, %s, v%d" % (vT[1], vG, vT[2], f32(64.0), vT[1], vT[1], f32(16.0), vT[1]))
    cpow5(r5(TG), r5(TG+5), "1.0", 90, 95, 80, 85)
    cpow5(r5(TG+15), r5(TG+20), f32(16.0), 90, 95, 80, 85)
    cpow5(r5(TG+36), r5(TG+41), f32(256.0), 90, 95, 80, 85)
    cpow5(r5(TB), r5(TB+5), "v%d" % vT[2], 90, 95, 80, 85)
    cpow5(r5(TB+10), r5(TB+15), "v%d" % vT[1], 90, 95, 80, 85)
    lre, lim, t0, t1 = PP, PP+5, 90, 95
    KRd = [TG+26+2*q for q in range(5)]
    for q in range(5): k("v_add_f32 v%d, -1.0, v%d\nv_mul_f32 v%d, v%d, v%d" % (t0+q, TG+q, t1+q, lre+q, lre+q))
    for q in range(5): k("v_fmac_f32 v%d, v%d, v%d" % (t1+q, lim+q, lim+q))
    for q in range(5): k("v_rcp_f32 v%d, v%d" % (t1+q, t1+q))
    for q in range(5): k("v_mul_f32 v%d, v%d, v%d\nv_mul_f32 v%d, v%d, v%d" % (KRd[q], t0+q, lre+q, TG+10+q, TG+5+q, lre+q))
    for q in range(5): k("v_fmac_f32 v%d, v%d, v%d\nv_fma_f32 v%d, -v%d, v%d, v%d" % (KRd[q], TG+5+q, lim+q, TG+10+q, t0+q, lim+q, TG+10+q))
    for q in range(5): k("v_add_f32 v%d, v%d, v%d" % (t1+q, t1+q, t1+q))
    for q in range(5): k("v_mul_f32 v%d, v%d, v%d\nv_mul_f32 v%d, v%d, v%d" % (KRd[q], KRd[q], t1+q, TG+10+q, TG+10+q, t1+q))
    k("L_k1_ntb:")
    PW = opt("pw2", 0)
    if PW:
        k("s_lshl_b32 s%d, s%d, 1\ns_add_u32 s%d, s%d, s%d\ns_mul_i32 s%d, s%d, 88" % (sT0, sI, sT0, sT0, sMH, sT0, sT0))
        k("s_lshr_b32 s%d, s%d, 5\ns_add_u32 s%d, s%d, s%d\ns_lshl_b32 s%d, s%d, 12" % (sT1, sCol, sT1, sT1, sT0, sT1, sT1))
        k("s_mul_i32 s%d, s%d, 5\ns_add_u32 s%d, s%d, s%d\ns_add_u32 s%d, s%d, 48\ns_lshl_b32 s%d, s%d, 12" % (sT2, sJJ, sT2, sT2, sT0, sT2, sT2, sT2, sT2))
        k("v_lshlrev_b32 v%d, 4, v%d\ns_cmp_eq_u32 s%d, 0\ns_cselect_b32 s%d, 16, 8" % (T+3, vL, sTY, sT3))
        k("L_k1_pw1:")
        k("buffer_store_dwordx4 %s, v%d, %s, s%d offen sc1\ns_sleep %d\ns_add_u32 s%d, s%d, 1024\ns_sub_u32 s%d, s%d, 1\ns_cmp_lg_u32 s%d, 0\ns_cbranch_scc1 L_k1_pw1" % (vr(XR, 4), T+3, sq(SWS), sT1, PW, sT1, sT1, sT3, sT3, sT3))
        if opt("pws", 1):
            k("s_cmp_eq_u32 s%d, 0\ns_cbranch_scc1 L_k1_pw3\ns_mov_b32 s%d, 20" % (sTY, sT3))
            k("L_k1_pw2:")
            k("buffer_store_dwordx4 %s, v%d, %s, s%d offen sc1\ns_sleep %d\ns_add_u32 s%d, s%d, 1024\ns_sub_u32 s%d, s%d, 1\ns_cmp_lg_u32 s%d, 0\ns_cbranch_scc1 L_k1_pw2" % (vr(XR, 4), T+3, sq(SWS), sT2, PW, sT2, sT2, sT3, sT3, sT3))
            k("L_k1_pw3:")
    EI = 16
    aSt, aS0, aS1 = 40, 41, 42
    k("s_lshl_b32 s%d, s%d, 1\ns_add_u32 s%d, s%d, s%d\ns_lshl_b32 s%d, s%d, 9\ns_add_u32 s%d, s%d, 0x%x" % (sT0, sI, sT0, sT0, sMH, sT0, sT0, sT0, sT0, RST_OFF))
    k("v_lshrrev_b32 v%d, 2, v%d\nv_lshlrev_b32 v%d, 4, v%d\nv_lshl_add_u32 v%d, v%d, 2, v%d" % (aSt, vM, aSt, aSt, aSt, vG, aSt))
    k("v_and_b32 v%d, 3, v%d\nv_add_u32 v%d, v%d, v%d\nv_lshl_add_u32 v%d, v%d, 3, s%d" % (aS0, vM, aSt, aSt, aS0, aSt, aSt, sT0))
    k("s_cmp_eq_u32 s%d, 1\ns_cbranch_scc1 L_k1_eaB" % sTY)
    k("s_lshl_b32 s%d, s%d, 6\ns_add_u32 s%d, s%d, s%d\ns_lshl_b32 s%d, s%d, 3\ns_add_u32 s%d, s%d, 0x%x" % (sT0, sMH, sT0, sT0, sCol, sT0, sT0, sT0, sT0, SG_OFF))
    k("v_lshl_add_u32 v%d, v%d, 3, s%d\nv_add_u32 v%d, %d, v%d" % (aS0, vL, sT0, aS1, 1536*8, aS0))
    k("s_mov_b32 s%d, %d" % (sKw, 3072*8))
    k("s_branch L_k1_ead")
    k("L_k1_eaB:")
    k("s_lshl_b32 s%d, s%d, 5\ns_add_u32 s%d, s%d, s%d\ns_lshl_b32 s%d, s%d, 3\ns_add_u32 s%d, s%d, 0x%x" % (sT0, sMH, sT0, sT0, sCol, sT0, sT0, sT0, sT0, SG_OFF))
    k("v_lshrrev_b32 v%d, 5, v%d\nv_mul_u32_u24 v%d, 1504, v%d\nv_add_u32 v%d, v%d, v%d\nv_lshl_add_u32 v%d, v%d, 3, s%d" % (aS0, vL, aS0, aS0, aS0, aS0, vL, aS0, aS0, sT0))
    k("s_mul_i32 s%d, s%d, 80\ns_mul_i32 s%d, s%d, 40\ns_add_u32 s%d, s%d, s%d\ns_lshl_b32 s%d, s%d, 3\ns_add_u32 s%d, s%d, 0x%x" % (sT0, sJJ, sT1, sMH, sT0, sT0, sT1, sT0, sT0, sT0, sT0, SB_OFF))
    k("v_lshrrev_b32 v%d, 3, v%d\nv_mul_u32_u24 v%d, 640, v%d\nv_add_u32 v%d, v%d, v%d\nv_lshl_add_u32 v%d, v%d, 3, s%d" % (aS1, vM, aS1, aS1, aS1, aS1, vSL, aS1, aS1, sT0))
    k("s_mov_b32 s%d, 64" % sKw)
    k("L_k1_ead:")
    if opt("dprio", 1) == 2: k("s_setprio 0")
    ev(6)
    k("s_lshl_b32 s%d, s%d, 2\ns_add_u32 s%d, s%d, %d\nv_mov_b32 v%d, s%d\nv_mov_b32 v%d, s%d\nv_lshlrev_b32 v43, 4, v%d" % (sT0, sMH, sT0, sT0, FLG+24, T+6, sT0, T+7, sNon, vL))
    PFW = 2 if PA else 4
    def pf_load(): return "buffer_load_dwordx%d v[44:%d], v%d, %s, s%d offen%s" % (PFW, 43+PFW, T+12, sq(SWS), sKx, SC)
    def pf_eval(ok):
        k("v_xor_b32 v%d, s%d, v44" % (T, sNon))
        for r_ in range(45, 44+PFW): k("v_xor_b32 v%d, s%d, v%d\nv_or_b32 v%d, v%d, v%d" % (T+1, sNon, r_, T, T, T+1))
        k("v_cmp_ne_u32 vcc, 0, v%d" % T)
    k("s_mul_i32 s%d, s%d, %d\ns_add_u32 s%d, s%d, 0x%x\nv_mul_u32_u24 v%d, %d, v%d\ns_mov_b32 s70, 0" % (sKx, sMH, PFW*256, sKx, sKx, PF_OFF, T+12, PFW*4, vL))
    wait_word("L_k1_eg", 20, "%d" % opt("eigate", 7), T, T+1)
    if opt("cpf", 6) & 2: code_touch("b")
    ev(7)
    k("s_mov_b32 s%d, 0" % sT3)
    k("L_k1_eil:")
    k("buffer_load_dwordx2 %s, v%d, %s, 0 offen%s" % (vr(EI, 2), aSt, sq(SWS), SC))
    for p in range(5):
        k("s_mov_b32 s%d, %d\ns_mul_i32 s%d, s%d, %d" % (sT0, p*3072*8, sT1, sKw, p))
        k("buffer_load_dwordx2 %s, v%d, %s, s%d offen%s" % (vr(EI+2+2*p, 2), aS0, sq(SWS), sT0, SC))
        k("buffer_load_dwordx2 %s, v%d, %s, s%d offen%s" % (vr(EI+12+2*p, 2), aS1, sq(SWS), sT1, SC))
    k("s_waitcnt vmcnt(0)")
    k("v_xor_b32 v%d, s%d, v%d" % (T, sNon, EI+1))
    for r_ in [EI+3+2*p for p in range(10)]: k("v_xor_b32 v%d, s%d, v%d\nv_or_b32 v%d, v%d, v%d" % (T+1, sNon, r_, T, T, T+1))
    k("v_cmp_ne_u32 vcc, 0, v%d" % T)
    k("s_add_u32 s%d, s%d, 1" % (sT3, sT3))
    k("s_cbranch_vccz L_k1_eid")
    k("s_sleep 16\ns_cmp_lt_u32 s%d, 0x40000\ns_cbranch_scc1 L_k1_eil" % sT3)
    k("L_k1_eid:")
    ev(8)
    U = T+16
    k("v_lshlrev_b32 v%d, 16, v%d\nv_and_b32 v%d, s%d, v%d\nv_rcp_f32 v%d, v%d" % (U, EI, U+1, sMASK, EI, U+2, U+1))
    k("s_mul_i32 s%d, s%d, 768\ns_add_u32 s%d, s%d, %d" % (sT0, sMH, sT0, sT0, STAT_M))
    k("v_lshl_add_u32 v%d, v%d, 2, s%d" % (U+3, vL, sT0))
    def sum5(b): k("v_add_f32 v%d, v%d, v%d\nv_add_f32 v%d, v%d, v%d\nv_add_f32 v%d, v%d, v%d\nv_add_f32 v%d, v%d, v%d" % (b, b, b+2, b+4, b+4, b+6, b, b, b+8, b, b, b+4))
    sum5(EI+2)
    k("s_lshl_b32 s%d, s%d, 9\ns_add_u32 s%d, s%d, %d" % (sT0, sMH, sT0, sT0, SFF))
    k("v_lshl_add_u32 v%d, v%d, 2, s%d" % (U+4, vL, sT0))
    for p in range(5): k("v_mov_b32 v%d, v%d" % ([TG+27, TG+29, TG+31, TG+33, TG+25][p], EI+12+2*p))
    sum5(EI+12)
    k("s_mul_i32 s%d, s%d, %d\ns_add_u32 s%d, s%d, %d\nv_add_u32 v43, s%d, v43" % (sT0, sMH, 2*80*TRP, sT0, sT0, TRB, sT0))
    k("s_mul_i32 s%d, s%d, 3072\ns_add_u32 s%d, s%d, %d\nv_lshl_add_u32 v%d, v%d, 4, s%d" % (sT0, sMH, sT0, sT0, CT, U+5, vM, sT0))
    tab_base("D", 68)
    def ei_writes():
        k("ds_write_b32 v%d, v%d\nds_write_b32 v%d, v%d offset:256\nds_write_b32 v%d, v%d offset:512" % (U+3, U, U+3, U+2, U+3, U+1))
        k("ds_write_b32 v%d, v%d" % (U+4, EI+2))
        k("s_cmp_eq_u32 s%d, 1\ns_cbranch_scc1 L_k1_ewB" % sTY)
        k("ds_write_b32 v%d, v%d offset:256" % (U+4, EI+12))
        k("s_branch L_k1_ewd")
        k("L_k1_ewB:")
        k("v_mov_b32 v%d, %d" % (T+2, DNA))
        wait_done("L_k1_tbw", "16", T+2, T+8)
        for qd in range(12): k("ds_write_b128 v%d, %s offset:%d" % (U+5, vr(TG+4*qd, 4), qd*256))
        for w2 in range(2):
            for qd in range(5): k("ds_write_b128 v43, %s offset:%d" % (vr(TB+4*qd, 4), w2*80*TRP+qd*1024))
        k("L_k1_ewd:")
        k("ds_write_b32 v%d, v%d" % (T+6, T+7))
    def pf_ok():
        k("s_lshl_b32 s%d, s%d, 2\ns_add_u32 m0, s%d, %d\nv_mov_b32 v%d, 4\ns_mov_b64 exec, 1\nglobal_load_lds_dword v%d, s[68:69]\ns_mov_b64 exec, -1" % (sT0, sMH, sT0, FLG+40, T, T))
    WM = opt("wm", 2)
    PFE = opt("pfe", 0)
    if PFE:
        wait_word("L_k1_pg2", 20, "%d" % PFE, T, T+1)
        k(pf_load() + "\ns_waitcnt vmcnt(0)")
        pf_eval(None)
        k("s_mov_b32 s70, 1\ns_cbranch_vccnz L_k1_pno\ns_mov_b32 s70, 0")
        pf_ok()
        k("L_k1_pno:")
    if WM == 0: ei_writes()
    wait_word("L_k1_pg", 36, "10", T, T+1)
    if not PFE: k(pf_load())
    if WM == 1:
        wait_word("L_k1_rg0", 16, "10", T, T+1)
        wait_word("L_k1_rg1", 20, "10", T, T+1)
    if WM: ei_writes()
    if PFE: k("s_cmp_eq_u32 s70, 0\ns_cbranch_scc1 L_k1_P2\n" + pf_load())
    k("s_mov_b32 s%d, 0\ns_branch L_k1_pfc" % sT3)
    k("L_k1_pfl:")
    k("s_sleep 12\n" + pf_load())
    k("L_k1_pfc:")
    k("s_waitcnt vmcnt(0)")
    pf_eval(None)
    k("s_add_u32 s%d, s%d, 1" % (sT3, sT3))
    k("s_cbranch_vccz L_k1_pfo")
    k("s_cmp_lt_u32 s%d, 0x40000\ns_cbranch_scc1 L_k1_pfl" % sT3)
    k("L_k1_pfo:")
    k("ds_write_b32 v%d, v%d offset:16" % (T+6, T+7))
    k("L_k1_P2:")
    if opt("p2prio", 0): k("s_setprio %d" % opt("p2prio", 0))
    stamp(k, 1)
    if TRACE:
        k("s_lshl_b32 s83, s2, 11\ns_add_u32 s83, s83, 0x%x\nv_lshl_add_u32 v12, v0, 2, s83" % (STAMP_OFF + 0x40000))
        k("global_store_dword v12, v255, %s" % sp(pWs))
    LD2 = ["", " sc1", " nt", " sc0 sc1", " sc1 nt"][opt("ld2", 1)]
    sP, sMI, sNI = 4, 5, 6
    sAb, sBb = [72, 73, 74], [75, 76, 77]
    sR, sSh = 78, 79
    SO = SX
    AR, BR, AC = 12, 76, 176
    vA = [2, 3, 4, 5]; vB0, vB1, vOut, vLd, vFl, vFa = 6, 7, 8, 9, 10, 11
    k("s_sub_u32 s%d, s%d, 4" % (sP, sW))
    k("s_and_b32 s%d, s2, 7\ns_lshr_b32 s%d, s2, 3" % (sT0, sT1))
    p2map(sMI, sNI)
    X_, D_, ST_, PFr, tA, tB, tC = AR, AR+10, AR+20, AR+24, AR+32, AR+33, AR+34
    k("v_bfe_u32 v%d, v%d, 1, 2\nv_xor_b32 v%d, v%d, v%d\nv_mul_u32_u24 v%d, 320, v%d\nv_lshl_add_u32 v%d, v%d, 4, v%d" % (tA, vM, tA, tA, vG, vOut, vM, vOut, tA, vOut))
    k("v_lshlrev_b32 v%d, 4, v%d\nv_add_u32 v%d, 4096, v%d" % (vB0, vL, vB1, vB0))
    for f in range(4): k("s_xor_b32 s%d, s%d, %d\ns_lshl_b32 s%d, s%d, 10\nv_add_u32 v%d, s%d, v%d" % (sT0, sP, f, sT0, sT0, vA[f], sT0, vB0))
    k("s_mul_i32 s%d, s%d, %d\ns_mul_i32 s%d, s%d, %d\ns_add_u32 s%d, s%d, 0x%x" % (sBb[0], sMI, 88*4096, sBb[1], sNI, 88*5120, sBb[1], sBb[1], B2_OFF))
    for g, (mul, add) in enumerate(((8, 0), (4, 32), (10, 48))):
        k("s_mul_i32 s%d, s%d, %d\ns_add_u32 s%d, s%d, %d" % (sAb[g], sP, mul, sAb[g], sAb[g], add))
    def region(dst, src):
        k("s_and_b32 s%d, s%d, 1\ns_mul_i32 s%d, s%d, 25600\ns_cmp_lt_u32 s%d, 2\ns_cselect_b32 s%d, %d, 0\ns_add_u32 s%d, s%d, s%d" % (dst, src, dst, dst, src, sT0, 2*SL, dst, dst, sT0))
    region(sR, sP)
    k("v_add_u32 v%d, s%d, v%d\nv_add_u32 v%d, s%d, v%d" % (vLd, sR, vB0, vOut, sR, vOut))
    k("s_lshl_b32 s%d, s%d, 2\ns_add_u32 s%d, s%d, s%d\ns_mul_i32 s%d, s%d, %d\ns_add_u32 s%d, s%d, 0x%x" % (sSh, sMI, sSh, sSh, sP, sSh, sSh, FLS_, sSh, sSh, FL_OFF))
    k("s_lshl_b32 s%d, s%d, 2\ns_add_u32 s%d, s%d, %d\nv_mov_b32 v%d, s%d\nv_mov_b32 v%d, %d" % (sT0, sP, sT0, sT0, FLG+64, vFa, sT0, PFr+2, FLG+32))
    steps = [(0, i) for i in (0, 2, 4, 6, 1, 3, 5, 7)] + [(1, i) for i in range(4)] + [(2, i) for i in range(10)]
    fgrp = {0: 0, 4: 3, 8: 1, 12: 2}
    ORD = opt("ord2", 0)
    pos = [0, 4, 8]
    if ORD == 1: fgrp = {0: 1, 4: 0, 8: 3, 12: 2}; pos = [4, 8, 0]
    if ORD == 2: fgrp = {0: 0, 4: 1, 8: 3, 12: 2}; pos = [0, 8, 4]
    NS = len(steps)
    sK = list(range(16, 32)) + list(range(34, 40))
    ROT = opt("rot", 0)
    k("s_lshr_b32 s%d, s2, 3\ns_and_b32 s%d, s%d, 7\ns_lshr_b32 s%d, s%d, 3" % (sT1, sT0, sT1, sT1, sT1))
    if ROT:
        k("s_add_u32 s%d, s%d, s%d\ns_and_b32 s%d, s%d, 3" % (sT2, sT0, sT1, sT2, sT2))
        k("s_mul_i32 s%d, s%d, 3\ns_add_u32 s%d, s%d, s%d\ns_cmp_ge_u32 s%d, 10\ns_cselect_b32 s%d, 10, 0\ns_sub_u32 s%d, s%d, s%d" % (sT3, sT1, sT3, sT3, sT0, sT3, sT0, sT3, sT3, sT0))
    else:
        k("s_mov_b32 s%d, 0\ns_mov_b32 s%d, 0" % (sT2, sT3))
    for j in range(4):
        k("s_add_u32 s%d, s%d, %d\ns_and_b32 s%d, s%d, 3\ns_add_u32 s%d, s%d, s%d\ns_lshl_b32 s%d, s%d, 1\ns_add_u32 s%d, s%d, s%d\ns_add_u32 s%d, s%d, 1" %
          (sT0, sT2, j, sT0, sT0, sK[pos[2]+j], sT0, sAb[1], sT0, sT0, sK[pos[0]+j], sT0, sAb[0], sK[pos[1]+j], sK[pos[0]+j]))
    for j in range(10):
        k("s_add_u32 s%d, s%d, %d\ns_cmp_ge_u32 s%d, 10\ns_cselect_b32 s%d, 10, 0\ns_sub_u32 s%d, s%d, s%d\ns_add_u32 s%d, s%d, s%d" % (sT0, sT3, j, sT0, sT1, sT0, sT0, sT1, sK[12+j], sT0, sAb[2]))
    LS = [[7, 10, 13, 16, 19], [17, 18, 19, 20, 21], [9, 12, 15, 18, 21], [13, 15, 17, 19, 21], [], [20, 21], [5, 7, 9, 11, 13], [6, 9, 12, 15, 18], [2, 4, 6, 8, 10], [3, 6, 9, 12, 15], [4, 8, 12, 16, 20]][opt("lsl", 2)]
    NA, NB = 4, 5
    vm = []
    THR = opt("thr", 0)
    def ldB(s, buf):
        g, i = steps[s]
        o = (["s_waitcnt vmcnt(%d)" % THR] if THR else []) + ["s_mul_i32 s%d, s%d, 5120\ns_add_u32 s%d, s%d, s%d" % (sT1, sK[s], sT1, sT1, sBb[1])]
        for f in range(5):
            o.append("buffer_load_dwordx4 %s, v%d, %s, s%d offen offset:%d%s" % (vr(BR+buf*20+f*4, 4), vB1 if f == 4 else vB0, sq(SWS), sT1, (f & 3)*1024, LD2))
            vm.append(("B", s))
        return o
    def ldA(s):
        g, i = steps[s]
        o = (["s_waitcnt vmcnt(%d)" % THR] if THR else []) + ["s_lshl_b32 s%d, s%d, 12\ns_add_u32 s%d, s%d, s%d" % (sT0, sK[s], sT0, sT0, sBb[0])]
        for f in range(4):
            o.append("buffer_load_dwordx4 %s, v%d, %s, s%d offen%s" % (vr(AR+(s % NA)*16+f*4, 4), vA[f], sq(SWS), sT0, LD2))
            vm.append(("A", s))
        return o
    def vwait(tags):
        idx = max(i for i, x in enumerate(vm) if x in tags)
        return min(63, len(vm)-1-idx)
    bbuf = {}
    k("L_k1_p2e:")
    k("ds_read_b64 %s, v%d offset:8\ns_waitcnt lgkmcnt(0)\nv_min_u32 v%d, v%d, v%d\nv_readfirstlane_b32 s%d, v%d" % (vr(PFr+4, 2), PFr+2, PFr+4, PFr+4, PFr+5, sT0, PFr+4))
    k("s_cmp_lg_u32 s%d, 0\ns_cbranch_scc1 L_k1_p2eo\ns_sleep 1\ns_branch L_k1_p2e\nL_k1_p2eo:" % sT0)
    streamed = [s for s in range(NS) if s not in LS]
    if opt("pfd", 0):
        k("v_mov_b32 v%d, %d" % (AR+8, DNA))
        wait_done("L_k1_p2d", "%d" % opt("pfd", 0), AR+8, AR+12)
    NPRE = opt("npre", NB)
    XB = opt("xb", 0)
    if XB:
        bbuf[0] = -1
        for x in ldB(0, -1): k(x)
        streamed = streamed[1:]
    for j in range(NB):
        bbuf[streamed[j]] = j
        if j < NPRE:
            for x in ldB(streamed[j], j): k(x)
    nextB = NB
    srd(k, SO, pOut, 2048*640*4)
    k("v_mov_b32 v%d, %d" % (AR+8, DNA))
    k("s_and_b32 s%d, s%d, 2\ns_add_u32 s%d, s%d, 18" % (sT1, sP, sT1, sT1))
    stamp(k, 2)
    k("v_mov_b32 v%d, %d\nL_k1_p2n:" % (AR+9, FLG+24))
    k("ds_read_b64 %s, v%d\ns_waitcnt lgkmcnt(0)\nv_min_u32 v%d, v%d, v%d\nv_readfirstlane_b32 s%d, v%d" % (vr(AR+12, 2), AR+9, AR+12, AR+12, AR+13, sNon, AR+12))
    k("s_cmp_lg_u32 s%d, 0\ns_cbranch_scc1 L_k1_p2no\ns_sleep 1\ns_branch L_k1_p2n\nL_k1_p2no:" % sNon)
    wait_done("L_k1_p2w", "s%d" % sT1, AR+8, AR+12)
    for j, s_ in enumerate(LS):
        g, i = steps[s_]
        if THR: k("s_waitcnt vmcnt(%d)" % THR)
        k("s_add_u32 m0, s%d, %d\ns_mul_i32 s%d, s%d, 5120\ns_add_u32 s%d, s%d, s%d" % (sR, j*5120, sT1, sK[s_], sT1, sT1, sBb[1]))
        for f in range(4):
            k("buffer_load_dwordx4 v%d, %s, s%d offen offset:%d%s lds" % (vB0, sq(SWS), sT1, f*1024, LD2)); vm.append(("L", s_))
        k("s_add_u32 m0, s%d, %d" % (sR, j*5120+4096))
        k("buffer_load_dwordx4 v%d, %s, s%d offen%s lds" % (vB1, sq(SWS), sT1, LD2)); vm.append(("L", s_))
    if opt("tb", 0):
        assert not ROT
        rest = streamed[NB:]
        tv, tj = AR+40, AR+41
        k("v_mul_u32_u24 v%d, 52, v%d\nv_lshrrev_b32 v%d, 8, v%d" % (tj, vL, tj, tj))
        k("v_mov_b32 v%d, s%d" % (tv, sK[rest[0]]))
        for j in range(1, len(rest)):
            k("v_cmp_le_u32 vcc, %d, v%d\nv_mov_b32 v%d, s%d\nv_cndmask_b32 v%d, v%d, v%d, vcc" % (j, tj, AR+42, sK[rest[j]], tv, tv, AR+42))
        k("v_mul_u32_u24 v%d, 5, v%d\nv_sub_u32 v%d, v%d, v%d" % (tj, tj, tj, vL, tj))
        k("s_lshr_b32 s%d, s2, 3\ns_and_b32 s%d, s%d, 7\ns_mul_i32 s%d, s%d, 640\ns_add_u32 s%d, s%d, s%d" % (sT0, sT0, sT0, sT0, sT0, sT0, sT0, sBb[1]))
        k("v_mul_u32_u24 v%d, 5120, v%d\nv_lshl_add_u32 v%d, v%d, 7, v%d" % (tv, tv, tv, tj, tv))
        k("buffer_load_dword v%d, v%d, %s, s%d offen%s" % (vFl, tv, sq(SWS), sT0, LD2)); vm.append(("T", 0))
    stamp(k, 3)
    k("s_add_u32 s40, s%d, s%d\ns_addc_u32 s41, s%d, 0" % (pWs, sSh, pWs+1))
    def flag_load(g):
        return "s_load_dwordx4 s[52:55], s[40:41], %d glc" % (g*16)
    def flag_check(g):
        lab = "L_k1_fc%d" % g
        k("s_mov_b32 s%d, 0\ns_branch %s_c" % (sT3, lab))
        k("%s_r:" % lab)
        k("s_sleep %d\n%s" % (opt("psl", 6), flag_load(g)))
        k("%s_c:" % lab)
        k("s_waitcnt lgkmcnt(0)")
        k("s_xor_b32 s52, s52, s%d\ns_xor_b32 s53, s53, s%d\ns_xor_b32 s54, s54, s%d\ns_xor_b32 s55, s55, s%d" % (sNon, sNon, sNon, sNon))
        k("s_add_u32 s%d, s%d, 1\ns_or_b64 s[52:53], s[52:53], s[54:55]\ns_cbranch_scc0 %s_d" % (sT3, sT3, lab))
        k("s_cmp_lt_u32 s%d, 0x100000\ns_cbranch_scc1 %s_r" % (sT3, lab))
        k("%s_d:" % lab)
        if opt("p2t", 0): k("s_memrealtime s[100:101]\ns_waitcnt lgkmcnt(0)\nv_writelane_b32 v1, s100, %d\nv_writelane_b32 v1, s%d, %d" % (32+g, sT3, 40+g))
    if opt("pd", 0): k("s_waitcnt vmcnt(0)\ns_sleep %d" % opt("pd", 0))
    k(flag_load(fgrp[0]))
    flag_check(fgrp[0])
    stamp(k, 4)
    if opt("p2clk", 0): k("s_memtime s[88:89]")
    for s_ in range(NB):
        if s_ < (2 if XB else NA):
            for x in ldA(s_): k(x)
        if s_ >= NPRE:
            for x in ldB(streamed[s_], s_): k(x)
    LEAD = {4: opt("ld3", 1), 8: opt("ld1", 2), 12: opt("ld2_", 2)}
    chkpos = {g: g - 1 - LEAD[g] for g in LEAD}
    nextA = 2 if XB else NA
    if chkpos[4] == 0: k(flag_load(fgrp[4]))
    EARLY = opt("early", 1)
    R5 = range(5)
    GOH = [BR + 40]
    def red_addr():
        GO = GOH[0]
        o = []
        for f in range(1, 4):
            o.append("s_xor_b32 s%d, s%d, %d\ns_and_b32 s%d, s%d, 1\ns_mul_i32 s%d, s%d, 25600" % (sT2, sP, f, sT1, sT2, sT1, sT1))
            o.append("s_cmp_lt_u32 s%d, 2\ns_cselect_b32 s%d, %d, 0\ns_add_u32 s%d, s%d, s%d" % (sT2, sT0, 2*SL, sT1, sT1, sT0))
            o.append("v_add_u32 v%d, s%d, v%d" % (vA[f], sT1, vB0))
        o.append("s_mul_i32 s%d, s%d, %d\ns_add_u32 s%d, s%d, %d\nv_add_u32 v%d, s%d, v%d" % (sT1, sP, 80*TRP, sT1, sT1, TRB, vA[0], sT1, vB0))
        o.append("v_lshrrev_b32 v%d, 4, v%d" % (vFl, vB0))
        o.append("s_lshl_b32 s%d, s%d, 6\ns_lshl_b32 s%d, s%d, 2\ns_add_u32 s%d, s%d, s%d" % (sT0, sMI, sT1, sP, sT0, sT0, sT1))
        o.append("s_mul_i32 s%d, s%d, 2560\ns_mul_i32 s%d, s%d, 320\ns_add_u32 s%d, s%d, s%d" % (sT0, sT0, sT1, sNI, sT3, sT0, sT1))
        e_, r_, q_, t_ = GO, GO+5, GO+10, GO+15
        for it in R5: o.append("v_add_u32 v%d, %d, v%d" % (e_+it, it*64, vFl))
        for it in R5: o.append("v_mul_u32_u24 v%d, 205, v%d" % (r_+it, e_+it))
        for it in R5: o.append("v_lshrrev_b32 v%d, 12, v%d" % (r_+it, r_+it))
        for it in R5: o += ["v_mul_u32_u24 v%d, 20, v%d" % (q_+it, r_+it), "v_bfe_u32 v%d, v%d, 1, 2" % (t_+it, r_+it)]
        for it in R5: o.append("v_sub_u32 v%d, v%d, v%d" % (q_+it, e_+it, q_+it))
        for it in R5: o += ["v_xor_b32 v%d, v%d, v%d" % (q_+it, q_+it, t_+it), "v_lshrrev_b32 v%d, 2, v%d" % (t_+it, r_+it)]
        for it in R5: o.append("v_mad_u32_u24 v%d, v%d, 12, v%d" % (r_+it, t_+it, r_+it))
        for it in R5: o.append("v_mul_u32_u24 v%d, 2560, v%d" % (r_+it, r_+it))
        for it in R5: o.append("v_lshl_add_u32 v%d, v%d, 4, v%d" % (GO+it, q_+it, r_+it))
        return o
    deadB = []
    pend = []
    for s_ in range(NS):
        fill = pend; pend = []
        need = [("A", s_)] + ([("B", s_)] if s_ not in LS else [])
        CSM_ = opt("csm", 1)
        if (CSM_ & 1 and s_ == 0) or (CSM_ & 2 and 0 < s_ < opt("csn", 12)):
            lab = "L_k1_cs%d" % s_
            if s_ == 0: k("%s_r:\nds_read_b32 v%d, v%d" % (lab, vFl, vFa))
            else: k("s_branch %s_c\n%s_r:\ns_sleep 1\nds_read_b32 v%d, v%d\n%s_c:" % (lab, lab, vFl, vFa, lab))
            k("s_waitcnt lgkmcnt(0)\nv_readfirstlane_b32 s%d, v%d\ns_cmp_eq_u32 s%d, 0\ns_cbranch_scc1 %s_r" % (sT2, vFl, sT2, lab))
        if CSM_ & 2 and s_+1 < opt("csn", 12): fill = fill + ["ds_read_b32 v%d, v%d" % (vFl, vFa)]
        mf_ = []
        for f in range(4):
            for cb in range(5):
                c = AC + (f*5+cb)*4
                mf_.append("v_mfma_f32_16x16x32_bf16 %s, %s, %s, %s" % (vr(c, 4), vr(BR+bbuf[s_]*20+cb*4, 4), vr(AR+(s_ % NA)*16+f*4, 4), vr(c, 4) if s_ else "0"))
        if opt("ilv", 1):
            nf = sum(1 for x in fill if x.startswith("buffer_load"))
            k("s_waitcnt vmcnt(%d)%s" % (max(0, vwait(need)-nf), " lgkmcnt(0)" if s_ in LS else ""))
            if opt("p2t", 0): k("s_memrealtime s[100:101]")
            if s_ == NS-1 and opt("ovl", 1):
                assert not fill
                fill = ["s_nop 0"]*5 + ["ds_write_b128 v%d, %s offset:%d" % (vOut, vr(AC+(f*5+cb)*4, 4), f*5120+cb*64) for f in range(3) for cb in range(5)]
            if EARLY and s_ in (NS-3, NS-2):
                if s_ == NS-3:
                    cand = list(deadB)
                    GOH[0] = BR + cand[0]*20
                    ra_ = red_addr()
                half = ra_[:36] if s_ == NS-3 else ra_[36:]
                interleave(k, mf_, fill + half, per=2)
            else: interleave(k, mf_, fill, per=1)
            if opt("p2t", 0): k("s_waitcnt lgkmcnt(0)\nv_writelane_b32 v1, s100, %d" % s_)
        else:
            for x in fill: k(x)
            k("s_waitcnt vmcnt(%d)%s" % (vwait(need), " lgkmcnt(0)" if s_ in LS else ""))
            if opt("p2t", 0): k("s_memrealtime s[100:101]")
            for x in mf_: k(x)
            if opt("p2t", 0): k("s_waitcnt lgkmcnt(0)\nv_writelane_b32 v1, s100, %d" % s_)
        for g_ in chkpos:
            if chkpos[g_] == s_:
                if fgrp[g_] == 2: stamp(k, 0)
                if fgrp[g_] == 2 and opt("p2clk", 0): k("s_memtime s[90:91]")
                flag_check(fgrp[g_])
                if fgrp[g_] == 2: stamp(k, 7)
        while nextA < NS and nextA <= s_ + NA and all(not (g_ <= nextA and chkpos[g_] > s_) for g_ in chkpos):
            pend += ldA(nextA); nextA += 1
        fb = bbuf[s_]
        if fb == -1: pass
        elif s_+2 in LS:
            bbuf[s_+2] = fb
            j = LS.index(s_+2)
            pend.append("s_waitcnt vmcnt(%d)" % vwait([("L", s_+2)]))
            for f in range(5): pend.append("ds_read_b128 %s, v%d offset:%d" % (vr(BR+fb*20+f*4, 4), vLd, j*5120+f*1024))
        elif nextB < len(streamed):
            bbuf[streamed[nextB]] = fb
            pend += ldB(streamed[nextB], fb); nextB += 1
        else: deadB.append(fb)
        for g_ in chkpos:
            if chkpos[g_] == s_+1: pend.insert(0, flag_load(fgrp[g_]))
    stamp(k, 5)
    OSC = ["", " sc1", " nt", " sc0 sc1"][opt("osc", 1)]
    wr_last = ["ds_write_b128 v%d, %s offset:%d" % (vOut, vr(AC+(f*5+cb)*4, 4), f*5120+cb*64) for f in ((3,) if opt("ovl", 1) else (1, 2, 3, 0)) for cb in range(5)]
    for x in wr_last: k(x)
    if not EARLY:
        for x in red_addr(): k(x)
    k("s_waitcnt lgkmcnt(0)\ns_barrier")
    RB = [r for r in range(AR, 236, 20) if not (r < GOH[0]+20 and GOH[0] < r+20)][:5]
    for it in R5:
        for f in range(5):
            a_, off = (vA[f], f*5120) if f < 4 else (vLd, 0)
            if f == 0: off = 0
            k("ds_read_b128 %s, v%d offset:%d" % (vr(RB[it]+f*4, 4), a_, off+it*1024))
        if it == 2: k("s_waitcnt lgkmcnt(5)")
    for it in R5:
        k("s_waitcnt lgkmcnt(%d)" % min(15, 20-5*it))
        q = RB[it]
        for h in range(0, 4, 2):
            k("v_pk_add_f32 %s, %s, %s\nv_pk_add_f32 %s, %s, %s" % (vr(q+h, 2), vr(q+h, 2), vr(q+4+h, 2), vr(q+8+h, 2), vr(q+8+h, 2), vr(q+12+h, 2)))
        for h in range(0, 4, 2): k("v_pk_add_f32 %s, %s, %s" % (vr(q+h, 2), vr(q+h, 2), vr(q+16+h, 2)))
        for h in range(0, 4, 2): k("v_pk_add_f32 %s, %s, %s" % (vr(q+h, 2), vr(q+h, 2), vr(q+8+h, 2)))
        k("buffer_store_dwordx4 %s, v%d, %s, s%d offen%s" % (vr(q, 4), GOH[0]+it, sq(SO), sT3, OSC))
    stamp(k, 6)
    if opt("p2t", 0):
        k("s_lshl_b32 s83, s2, 11\ns_add_u32 s83, s83, 0x%x\nv_lshl_add_u32 v12, v0, 2, s83" % (STAMP_OFF + 0x40000))
        k("global_store_dword v12, v1, %s" % sp(pWs))
    stamp_out(k, 0, 8, pWs, 76)
    k("s_endpgm")

    k("L_k1_C:")
    decode()
    k("v_mov_b32 v%d, 0\nv_lshlrev_b32 v%d, 2, v%d\nv_add_u32 v%d, %d, v%d\nds_write2_b32 v%d, v%d, v%d offset1:16" % (vT[1], vT[2], vM, vT[2], FLG, vT[2], vT[2], vT[1], vT[1]))
    k("s_lshl_b32 s%d, s%d, 8\ns_add_u32 s%d, s%d, %d\nv_mov_b32 v%d, s%d\nds_write_b32 v%d, v%d\ns_mov_b32 m0, s%d" % (sT0, sW, sT0, sT0, DNA, vT[2], sT0, vT[2], vT[1], sT0))
    tab_base("C", 56)
    k("s_waitcnt lgkmcnt(0)\ns_barrier")
    k("s_setprio %d" % (2 if opt("dprio", 1) else 3))
    k("s_mov_b64 s[48:49], %s\ns_mov_b64 s[50:51], %s\ns_mov_b64 s[52:53], %s" % (sp(pX), sp(pD), sp(pWs)))
    aX = [12, 13]; aW = [14, 15, 16, 17]
    XS = [20, 36]
    WR = 52
    ACC = 84
    k("v_lshrrev_b32 v%d, 1, v%d\nv_xor_b32 v%d, v%d, v%d\nv_lshlrev_b32 v%d, 4, v%d" % (vT[0], vM, vT[0], vT[0], vG, vT[0], vT[0]))
    k("v_lshl_add_u32 v%d, v%d, 7, v%d" % (vT[5], vM, vT[0]))
    k("s_lshl_b32 s%d, s%d, 13" % (sT0, sMH))
    k("v_add_u32 v%d, s%d, v%d\nv_xor_b32 v%d, 64, v%d" % (aX[0], sT0, vT[5], aX[1], aX[0]))
    k("v_lshrrev_b32 v%d, 2, v%d\nv_lshl_add_u32 v%d, v%d, 3, v%d\nv_lshlrev_b32 v%d, 7, v%d" % (vT[0], vM, vT[0], vG, vT[0], vT[0], vT[0]))
    k("v_and_b32 v%d, 1, v%d\nv_lshlrev_b32 v%d, 1, v%d\nv_lshrrev_b32 v%d, 3, v%d\nv_or_b32 v%d, v%d, v%d" % (vT[1], vG, vT[1], vT[1], vT[2], vM, vT[1], vT[1], vT[2]))
    k("v_lshl_add_u32 v%d, v%d, 5, v%d" % (vT[0], vT[1], vT[0]))
    k("v_and_b32 v%d, 3, v%d\nv_lshl_add_u32 v%d, v%d, 3, v%d\nv_add_u32 v%d, 16384, v%d" % (vT[1], vM, vT[0], vT[1], vT[0], vT[0], vT[0]))
    k("s_lshl_b32 s%d, s%d, 1\ns_add_u32 s%d, s%d, s%d" % (sC, sI, sC, sC, sMH))
    k("s_mov_b32 s%d, 0\ns_mov_b32 s%d, 0" % (sIt, sRd))
    k("s_cmp_eq_u32 s%d, 1\ns_cbranch_scc1 L_k1_CB" % sTY)

    def c_loop(tag, frags, R, D, WR, addr_regs, post):
        n = len(frags); N = 2*n
        assert N % R == 0
        def wreg(p): return WR + (p % R)*4
        def rdW(p): return frags[p % n][0]((p % N)//n, wreg(p))
        def rdX(h): return ["ds_read_b128 %s, v%d offset:%d" % (vr(XS[h]+4*b, 4), aX[h], b*2048) for b in range(4)]
        def mf(p): return [frags[p % n][1](b, XS[(p % N)//n]+4*b, wreg(p)) for b in range(4)]
        adv = ["s_mov_b32 s%d, %d\ns_add_u32 s%d, s%d, 1\ns_cmp_eq_u32 s%d, 3\ns_cselect_b32 s%d, 0, s%d\ns_cselect_b32 s%d, %d, s%d" % (sDelta, SL, sRd, sRd, sRd, sRd, sRd, sDelta, (-2*SL) & 0xffffffff, sDelta)]
        adv += ["v_add_u32 v%d, s%d, v%d" % (r, sDelta, r) for r in addr_regs]
        vFl, vFa, vDa, vDv = 18, vT[1], vT[2], vT[3]
        sF = sA
        import re as _re
        FLS = N - opt("fl", 3)
        def build():
            mfs = []; gaps = [[] for _ in range(4*N)]
            for j in range(N):
                loads = [("ld", x, ("W", j)) for x in rdW(j)]
                if j == 0: loads = [("ld", x, ("X0", b)) for b, x in enumerate(rdX(0)[:2])] + loads
                if j == 1: loads = [("ld", x, ("X0", b+2)) for b, x in enumerate(rdX(0)[2:])] + loads
                if D <= j < D+4: loads += [("ld", rdX(1)[j-D], ("X1", j-D))]
                if j == FLS: loads += [("ld", "ds_read_b64 %s, v%d " % (vr(vFl, 2), vFa), ("F", 0))]
                p = j - D
                ms = mf(p % N)
                for b in range(4):
                    need = [("W", p % N)] + [("X%d" % ((p % N)//n), bb) for bb in range(4)]
                    mfs.append(("mf", ms[b], (need, p < 0)))
                    if b < 3:
                        if loads: gaps[j*4+b].append(loads.pop(0))
                    else: gaps[j*4+b] += loads
            def place(e, lo, hi=4*N-1):
                for cap in (0, 1, 2, 3):
                    for g in range(lo, hi+1):
                        if len(gaps[g]) + (1 if g % 4 == 3 else 0) <= cap:
                            gaps[g].append(e); return g
                raise Exception
            g = 4*D
            def place_s(txt, lo):
                for g in range(lo, 4*N):
                    if len(gaps[g]) + (1 if g % 4 == 3 else 0) <= 1:
                        gaps[g].append(("x", txt, None)); return g
            for txt in ("s_add_u32 s%d, s%d, 1" % (sRd, sRd), "s_cmp_eq_u32 s%d, 3" % sRd, "s_cselect_b32 s%d, s14, s15" % sDelta, "s_cselect_b32 s%d, 0, s%d" % (sRd, sRd), "s_add_u32 s%d, s%d, 1" % (sIt, sIt)):
                g = place_s(txt, g) + 1
            gd = g
            mid = max(n-1, D+3)
            DL = opt("dl", 2)
            fl_ = "global_load_lds_dword v%d, s[56:57]" % vDv
            place_s("v_add_u32 v%d, 4, v%d" % (vDv, vDv), gd)
            gm = place(("use", fl_, ([("W", n-1), ("X1", 3)], False)), 4*(mid+DL)+2)
            place(("x", "v_add_u32 v%d, 4, v%d" % (vDv, vDv), None), gm+1, 4*N-5)
            place(("use", fl_, ([("W", N-1)], True)), 4*(DL-1)+2, 4*D-1)
            g1 = place(("use", "v_min_u32 v%d, v%d, v%d" % (vFl, vFl, vFl+1), ([("F", 0)], False)), 4*(N-2)+2, 4*N-4)
            gaps[g1+1].append(("x", "v_readfirstlane_b32 s%d, v%d" % (sF, vFl), None))
            gaps[4*N-2].append(("x", "s_cmp_gt_u32 s%d, s%d" % (sF, sIt), None))
            for r in addr_regs:
                last = max(g for g in range(4*N) for x in gaps[g] if x[0] == "ld" and _re.search(r", v%d " % r, x[1]+" "))
                place(("x", "v_add_u32 v%d, s%d, v%d" % (r, sDelta, r), None), min(max(last+1, gd), 4*N-1))
            seq = []
            for m_, gp in zip(mfs, gaps): seq += [m_] + gp
            return seq
        def emit(seq, prev):
            issued = [(t, True) for t in prev]
            cur = 99
            for kind, text, tg in seq:
                if kind == "ld": issued.append((tg, False)); cur += 1
                elif kind == "lab": cur = 99
                elif kind in ("mf", "use"):
                    w = 15
                    for t in tg[0]:
                        idx = max(i for i, x in enumerate(issued) if x == (t, tg[1]))
                        w = min(w, len(issued)-1-idx)
                    if w < cur:
                        k("s_waitcnt lgkmcnt(%d)" % w); cur = w
                k(text)
        L = "L_k1_cl" + tag
        k("v_mov_b32 v%d, %d\nv_mov_b32 v%d, 0\ns_mov_b32 s14, %d\ns_mov_b32 s15, %d" % (vFa, FLG+16, vDv, (-2*SL) & 0xffffffff, SL))
        s2 = build()
        allld = [x[2] for x in s2 if x[0] == "ld"]
        idx2 = next(i for i, x in enumerate(s2) if x[0] == "mf" and not x[2][1])
        if opt("clk", 0): k("s_mov_b32 s98, 0")
        k("%s_sp:" % L)
        if opt("clk", 0): k("s_cmp_ge_u32 s%d, 6\ns_addc_u32 s98, s98, 0" % sIt)
        k("ds_read_b64 %s, v%d\ns_waitcnt lgkmcnt(0)\nv_min_u32 v%d, v%d, v%d\nv_readfirstlane_b32 s%d, v%d" % (vr(vFl, 2), vFa, vFl, vFl, vFl+1, sF, vFl))
        if opt("spsl", 0): k("s_cmp_gt_u32 s%d, s%d\ns_cbranch_scc1 %s_spo\ns_sleep %d\ns_branch %s_sp\n%s_spo:" % (sF, sIt, L, opt("spsl", 0), L, L))
        else: k("s_cmp_gt_u32 s%d, s%d\ns_cbranch_scc0 %s_sp" % (sF, sIt, L))
        k("s_cmp_lg_u32 s%d, 0\ns_cbranch_scc1 %s" % (sIt, L))
        stamp(k, 5)
        for x in s2[:idx2]:
            if x[0] == "ld": k(x[1])
        k("s_branch %s_mid" % L)
        k(".p2align 6")
        k("%s:" % L)
        trace(sIt, 4, 1)
        if opt("clk", 0):
            k("s_cmp_lg_u32 s%d, 5\ns_cbranch_scc1 %s_nc\ns_memrealtime s[84:85]\ns_memtime s[90:91]\n%s_nc:" % (sIt, L, L))
        s2 = s2[:idx2] + [("lab", "%s_mid:" % L, None)] + s2[idx2:]
        emit(s2, allld)
        if TRACE:
            trace(sIt, 4, 0)
            k("s_cmp_gt_u32 s%d, s%d" % (sF, sIt))
        k("s_cbranch_scc1 %s" % L)
        k("s_cmp_lt_u32 s%d, 10\ns_cbranch_scc1 %s_sp" % (sIt, L))
        if opt("cprio", 3) != 3: k("s_setprio %d" % opt("cprio", 3))
        if opt("clk", 0): k("s_memrealtime s[94:95]\ns_memtime s[96:97]")
        k("ds_read_b64 %s, v%d offset:8" % (vr(vFl, 2), vFa))
        k("s_waitcnt lgkmcnt(6)")
        for x in mf(N-D): k(x)
        k("s_waitcnt lgkmcnt(0)\nglobal_load_lds_dword v%d, s[56:57]" % vDv)
        k("s_branch %s_ec" % L)
        k("%s_es:" % L)
        k("ds_read_b64 %s, v%d offset:8" % (vr(vFl, 2), vFa))
        k("%s_ec:" % L)
        k("s_waitcnt lgkmcnt(0)")
        k("v_min_u32 v%d, v%d, v%d\nv_readfirstlane_b32 s%d, v%d" % (vFl, vFl, vFl+1, sNon, vFl))
        k("s_cmp_eq_u32 s%d, 0\ns_cbranch_scc1 %s_es" % (sNon, L))
        tail = []
        for p in range(N-D+1, N): tail += mf(p)
        interleave(k, tail, post(), lead=2, per=1)

    c0 = -2*math.sqrt(2/math.pi)*LOG2E
    def ffn_epilogue(ACCF, ncb, S4, Mb, RSb, Sb, T, O, K0, vSt, blocks, defer=None):
        for bi, (b, pr_) in enumerate(blocks):
            sel = b & 1
            bc = lambda base: vr(base + (b & ~1), 2)
            os0 = " op_sel:[%d,0,0] op_sel_hi:[%d,1,1]" % (sel, sel)
            items = [(cb, hh) for cb in (2*pr_, 2*pr_+1) for hh in range(2)]
            G = lambda cb, hh: ACCF + (cb*4+b)*4 + 2*hh
            U = lambda cb, hh: ACCF + ((ncb+cb)*4+b)*4 + 2*hh
            Tm = lambda cb, hh: T + (cb & 1)*4 + 2*hh
            for cb, hh in items: k("v_pk_fma_f32 %s, %s, %s, %s%s neg_lo:[1,0,0] neg_hi:[1,0,0]" % (vr(G(cb,hh),2), bc(Mb), vr(S4+cb*4+2*hh,2), vr(G(cb,hh),2), os0))
            for cb, hh in items: k("v_pk_mul_f32 %s, %s, %s op_sel:[%d,0] op_sel_hi:[%d,1]" % (vr(G(cb,hh),2), bc(RSb), vr(G(cb,hh),2), sel, sel))
            for cb, hh in items: k("v_pk_mul_f32 %s, %s, %s" % (vr(Tm(cb,hh),2), vr(G(cb,hh),2), vr(G(cb,hh),2)))
            for cb, hh in items: k("v_pk_fma_f32 %s, %s, %s, %s op_sel:[0,0,1] op_sel_hi:[1,0,1]" % (vr(Tm(cb,hh),2), vr(Tm(cb,hh),2), vr(K0,2), vr(K0,2)))
            for cb, hh in items: k("v_pk_mul_f32 %s, %s, %s" % (vr(Tm(cb,hh),2), vr(Tm(cb,hh),2), vr(G(cb,hh),2)))
            for cb, hh in items:
                k("v_exp_f32 v%d, v%d\nv_exp_f32 v%d, v%d" % (Tm(cb,hh), Tm(cb,hh), Tm(cb,hh)+1, Tm(cb,hh)+1))
                k("v_pk_fma_f32 %s, %s, %s, %s%s neg_lo:[1,0,0] neg_hi:[1,0,0]" % (vr(U(cb,hh),2), bc(Mb), vr(S4+(ncb+cb)*4+2*hh,2), vr(U(cb,hh),2), os0))
            for cb, hh in items: k("v_pk_fma_f32 %s, %s, %s, %s op_sel:[0,%d,%d] op_sel_hi:[1,%d,%d]" % (vr(Tm(cb,hh),2), vr(Tm(cb,hh),2), bc(Sb), bc(Sb), sel, sel, sel, sel))
            for cb, hh in items:
                k("v_rcp_f32 v%d, v%d\nv_rcp_f32 v%d, v%d" % (Tm(cb,hh), Tm(cb,hh), Tm(cb,hh)+1, Tm(cb,hh)+1))
                k("v_pk_mul_f32 %s, %s, %s" % (vr(G(cb,hh),2), vr(G(cb,hh),2), vr(U(cb,hh),2)))
            for cb, hh in items: k("v_pk_mul_f32 %s, %s, %s" % (vr(G(cb,hh),2), vr(G(cb,hh),2), vr(Tm(cb,hh),2)))
            Ob = O + (bi & 1)*4 if defer is None else O[bi]
            for j_, (cb, hh) in enumerate(items): k("v_cvt_pk_bf16_f32 v%d, v%d, v%d" % (Ob+j_, G(cb,hh), G(cb,hh)+1))
            if pr_: k("s_add_u32 s%d, s%d, 4096" % (sT0, sKS))
            st_ = "buffer_store_dwordx4 %s, v%d, %s, s%d offen offset:%d%s" % (vr(Ob, 4), vSt, sq(SWS), sT0 if pr_ else sKS, b*1024, S1)
            if defer is None: k(st_)
            else: defer.append(st_)

    def a2_flag(group, nwait, va, vv):
        k("s_lshl_b32 s%d, s%d, 2\ns_lshr_b32 s%d, s%d, 1\ns_add_u32 s%d, s%d, s%d\ns_mul_i32 s%d, s%d, %d" % (sT0, sC, sT1, sJJ, sT0, sT0, sT1, sT0, sT0, FLS_))
        k("s_and_b32 s%d, s%d, 1\ns_lshl_b32 s%d, s%d, 1\ns_add_u32 s%d, s%d, s%d\ns_mul_i32 s%d, s%d, %d\ns_add_u32 s%d, s%d, s%d\ns_add_u32 s%d, s%d, 0x%x" % (sT1, sJJ, sT1, sT1, sT1, sT1, sNH, sT1, sT1, FSP, sT0, sT0, sT1, sT0, sT0, FL_OFF + group*FGS))
        k("v_mov_b32 v%d, s%d\nv_mov_b32 v%d, s%d" % (va, sT0, vv, sNon))
        k("s_waitcnt vmcnt(%d)\ns_mov_b64 exec, 1" % nwait)
        k("buffer_store_dword v%d, v%d, %s, 0 offen%s\ns_mov_b64 exec, -1" % (vv, va, sq(SWS), SC))

    CSM = opt("csm", 1)
    def cs_set(val, va, vv):
        k("s_lshl_b32 s%d, s%d, 2\ns_add_u32 s%d, s%d, %d\nv_mov_b32 v%d, s%d\nv_mov_b32 v%d, %d\nds_write_b32 v%d, v%d" % (sT0, sW, sT0, sT0, FLG+64, va, sT0, vv, val, va, vv))
    def base_loads(R):
        k("s_and_b32 s%d, s2, 7\ns_lshr_b32 s%d, s2, 3" % (sT0, sT1))
        p2map(sT3, sT0)
        k("s_mul_i32 s%d, s%d, 160" % (sT0, sT0))
        k("s_lshl_b32 s%d, s%d, 6\ns_lshl_b32 s%d, s%d, 2\ns_add_u32 s%d, s%d, s%d" % (sT3, sT3, sT1, sW, sT3, sT3, sT1))
        R5 = range(5)
        e_, r_, q_, t_ = R+45, R+30, R+35, R+40
        for it in R5: k("v_add_u32 v%d, %d, v%d" % (e_+it, it*64, vL))
        for it in R5: k("v_mul_u32_u24 v%d, 205, v%d" % (r_+it, e_+it))
        for it in R5: k("v_lshrrev_b32 v%d, 12, v%d" % (r_+it, r_+it))
        for it in R5: k("v_mul_u32_u24 v%d, 20, v%d\nv_bfe_u32 v%d, v%d, 1, 2" % (q_+it, r_+it, t_+it, r_+it))
        for it in R5: k("v_sub_u32 v%d, v%d, v%d" % (q_+it, e_+it, q_+it))
        for it in R5: k("v_xor_b32 v%d, v%d, v%d\nv_lshrrev_b32 v%d, 2, v%d" % (q_+it, q_+it, t_+it, t_+it, r_+it))
        for it in R5: k("v_mad_u32_u24 v%d, v%d, 12, v%d\nv_lshl_add_u32 v%d, v%d, 3, s%d" % (r_+it, t_+it, r_+it, q_+it, q_+it, sT0))
        for it in R5: k("v_add_u32 v%d, s%d, v%d" % (r_+it, sT3, r_+it))
        for it in R5: k("v_mul_u32_u24 v%d, 1280, v%d\nv_lshlrev_b32 v%d, 3, v%d" % (t_+it, r_+it, r_+it, r_+it))
        for it in R5: k("v_add_u32 v%d, v%d, v%d" % (t_+it, t_+it, q_+it))
        k("s_mov_b32 s%d, 0x%x" % (sKx, RST_OFF))
        for it in R5:
            k("global_load_dwordx2 %s, v%d, %s" % (vr(R+2*it, 2), t_+it, sp(48)))
            k("global_load_dwordx2 %s, v%d, %s" % (vr(R+10+2*it, 2), q_+it, sp(50)))
        k("s_mov_b32 s%d, 0\nL_k1_bt:" % sT3)
        for it in R5: k("buffer_load_dwordx2 %s, v%d, %s, s%d offen%s" % (vr(R+20+2*it, 2), r_+it, sq(SWS), sKx, SC))
    def base_compute(R):
        k("s_setprio 0")
        X4, D4, T4 = R+52, R+72, R+92
        k("s_waitcnt vmcnt(0)\nv_xor_b32 v%d, s%d, v%d" % (T4, sNon, R+21))
        for it in range(1, 5): k("v_xor_b32 v%d, s%d, v%d\nv_or_b32 v%d, v%d, v%d" % (T4+1, sNon, R+21+2*it, T4, T4, T4+1))
        k("v_cmp_ne_u32 vcc, 0, v%d\ns_add_u32 s%d, s%d, 1\ns_cbranch_vccz L_k1_bto" % (T4, sT3, sT3))
        k("s_sleep 8\ns_cmp_lt_u32 s%d, 0x40000\ns_cbranch_scc1 L_k1_bt\nL_k1_bto:" % sT3)
        k("s_mul_i32 s%d, s%d, %d\ns_add_u32 s%d, s%d, %d\nv_lshl_add_u32 v%d, v%d, 4, s%d\nv_mov_b32 v%d, %d" % (sT0, sW, 80*TRP, sT0, sT0, TRB, R+50, vL, sT0, R+51, DNA))
        wait_done("L_k1_bw%d" % R, "16", R+51, R+44)
        for it in range(5): k("v_and_b32 v%d, s%d, v%d\nv_lshlrev_b32 v%d, 16, v%d" % (R+21+2*it, sMASK, R+20+2*it, R+20+2*it, R+20+2*it))
        for it in range(5): k("v_rcp_f32 v%d, v%d" % (R+21+2*it, R+21+2*it))
        for d in range(10): k("v_lshlrev_b32 v%d, 16, v%d\nv_and_b32 v%d, s%d, v%d\nv_lshlrev_b32 v%d, 16, v%d\nv_and_b32 v%d, s%d, v%d" % (X4+2*d, R+d, X4+2*d+1, sMASK, R+d, D4+2*d, R+10+d, D4+2*d+1, sMASK, R+10+d))
        def rnd():
            if not opt("bexact", 1): return
            for h in range(10): k("v_cvt_pk_bf16_f32 v%d, v%d, v%d" % (R+30+h, T4+2*h, T4+2*h+1))
            for h in range(10): k("v_lshlrev_b32 v%d, 16, v%d\nv_and_b32 v%d, s%d, v%d" % (T4+2*h, R+30+h, T4+2*h+1, sMASK, R+30+h))
        for r in range(20): k("v_sub_f32 v%d, v%d, v%d" % (T4+r, X4+r, R+20+2*(r >> 2)))
        rnd()
        for r in range(20): k("v_mul_f32 v%d, v%d, v%d" % (T4+r, T4+r, R+21+2*(r >> 2)))
        rnd()
        for r in range(20): k("v_mul_f32 v%d, v%d, v%d" % (T4+r, T4+r, D4+r))
        rnd()
        for r in range(20): k("v_add_f32 v%d, v%d, v%d" % (T4+r, T4+r, X4+r))
        for it in range(5): k("ds_write_b128 v%d, %s offset:%d" % (R+50, vr(T4+4*it, 4), it*1024))
        k("s_waitcnt lgkmcnt(0)")

    def ffn_frag(ACCF, idx, areg, gu):
        rd = lambda h, reg: ["ds_read_b64_tr_b16 %s, v%d offset:%d" % (vr(reg+2*jx, 2), areg, h*4096+jx*512+gu*8192) for jx in range(2)]
        mf = lambda b, x, w: "v_mfma_f32_16x16x32_bf16 %s, %s, %s, %s" % (vr(ACCF+(idx*4+b)*4, 4), vr(w, 4), vr(x, 4), vr(ACCF+(idx*4+b)*4, 4))
        return (rd, mf)

    k("s_lshl_b32 s%d, s%d, 14" % (sT0, sNH))
    k("v_add_u32 v%d, s%d, v%d" % (aW[0], sT0, vT[0]))
    for c in range(1, 4): k("v_xor_b32 v%d, %d, v%d" % (aW[c], 32*c, aW[0]))
    k("s_lshr_b32 s%d, s%d, 5\ns_lshl_b32 s%d, s%d, 1\ns_add_u32 s%d, s%d, s%d\ns_mul_i32 s%d, s%d, 88\ns_add_u32 s%d, s%d, s%d\ns_lshl_b32 s%d, s%d, 12" % (sT0, sCol, sT1, sNH, sT0, sT0, sT1, sT1, sC, sT0, sT0, sT1, sKS, sT0))
    for r in range(0, 128, 2): k("v_mov_b64 v[%d:%d], 0" % (ACC+r, ACC+r+1))
    srd(k, SWS, pWs, WS_NREC)
    E = 212
    S4 = E; Mb, RSb, Sb = XS[0], XS[0]+4, XS[0]+8; K0 = XS[0]+12
    def postA():
        o = ["s_lshl_b32 s%d, s%d, 9\ns_add_u32 s%d, s%d, %d\nv_lshl_add_u32 v%d, v%d, 4, s%d" % (sT0, sNH, sT0, sT0, SFF, vT[1], vG, sT0),
             "s_mul_i32 s%d, s%d, 768\ns_add_u32 s%d, s%d, %d\nv_lshl_add_u32 v%d, v%d, 2, s%d" % (sT0, sMH, sT0, sT0, STAT_M, vT[2], vM, sT0)]
        for b in range(0, 4, 2):
            for a, off in ((Mb, 0), (RSb, 64), (Sb, 128)):
                o.append("ds_read2_b32 %s, v%d offset0:%d offset1:%d" % (vr(a+b, 2), vT[2], off+b*16, off+b*16+16))
        for j in range(8): o.append("ds_read_b128 %s, v%d offset:%d" % (vr(S4+4*j, 4), vT[1], j*64))
        o += ["v_lshlrev_b32 v%d, 4, v%d" % (vT[3], vL), "v_mov_b32 v%d, %s\nv_mov_b32 v%d, %s" % (K0, f32(c0*0.044715), K0+1, f32(c0))]
        return o
    fr = []
    for cb in range(4):
        for gu in range(2): fr.append(ffn_frag(ACC, gu*4+cb, aW[cb], gu))
    c_loop("A", fr, 8, opt("da", 5), WR, aX + aW, postA)
    stamp(k, 1)
    k("s_waitcnt lgkmcnt(0)")
    blk = [(b, p) for p in range(2) for b in range(4)]
    HF = opt("hf", 6)
    ffn_epilogue(ACC, 4, S4, Mb, RSb, Sb, E+32, XS[1], K0, vT[3], blk[:HF])
    a2_flag(0, HF-4, vT[0], vT[1])
    TW = opt("tw", 0)
    if TW & 1:
        k("v_lshlrev_b32 v%d, 7, v%d\ns_mov_b32 exec_hi, 0\nbuffer_load_dword v%d, v%d, %s, s%d offen sc1\ns_mov_b32 exec_hi, -1" % (vT[4], vL, vT[5], vT[4], sq(SWS), sKS))
    ffn_epilogue(ACC, 4, S4, Mb, RSb, Sb, E+32, XS[1], K0, vT[3], blk[HF:])
    stamp(k, 2)
    cs_set(1, vT[0], vT[1])
    a2_flag(3, 0, vT[0], vT[1])
    if TW & 2:
        k("v_lshlrev_b32 v%d, 7, v%d\ns_mov_b32 exec_lo, 0\nbuffer_load_dword v%d, v%d, %s, s%d offen sc1\ns_mov_b32 exec_lo, -1" % (vT[4], vL, vT[5], vT[4], sq(SWS), sKS))
    stamp(k, 4)
    k("s_branch L_k1_base")

    k("L_k1_CB:")
    WRB = 52
    ACCF = 76
    ACCS = 140
    ca = Alloc(220)
    cLr = ca(5); cMu = ca(5); cKk = ca(5); c16r = ca(5); c16k = ca(5); cKr = ca(10, 2)
    assert ca.n <= (255 if TRACE else 256) + 1
    k("s_lshl_b32 s%d, s%d, 6" % (sT0, sNH))
    k("v_xor_b32 v%d, s%d, v%d\nv_xor_b32 v%d, 32, v%d" % (aW[0], sT0, vT[0], aW[1], aW[0]))
    k("s_mul_i32 s%d, s%d, 10240\ns_add_u32 s%d, s%d, 32768" % (sT0, sNH, sT0, sT0))
    k("v_add_u32 v%d, s%d, v%d\nv_xor_b32 v%d, 64, v%d" % (aW[2], sT0, vT[5], aW[3], aW[2]))
    k("s_lshr_b32 s%d, s%d, 5\ns_add_u32 s%d, s%d, s%d\ns_mul_i32 s%d, s%d, 88\ns_add_u32 s%d, s%d, s%d\ns_lshl_b32 s%d, s%d, 12" % (sT0, sCol, sT0, sT0, sNH, sT1, sC, sT0, sT0, sT1, sKS, sT0))
    srd(k, SWS, pWs, WS_NREC)
    for r in range(0, 144, 2): k("v_mov_b64 v[%d:%d], 0" % (ACCF+r, ACCF+r+1))
    k("s_lshl_b32 s%d, s%d, 1\ns_add_u32 s%d, s%d, s%d\ns_lshl_b32 s%d, s%d, 14\ns_add_u32 s%d, s%d, 0x%x" % (sT2, sJJ, sT2, sT2, sNH, sT0, sT2, sT0, sT0, CAR_OFF))
    srd(k, SP0, pWs, 16384, "s%d" % sT0)
    HST = 4224
    k("s_mul_i32 s%d, s%d, %d\ns_add_u32 s58, s%d, 0x%x\ns_lshr_b32 s%d, s%d, 2\ns_mul_i32 s%d, s%d, %d\ns_add_u32 s%d, s%d, s58\ns_add_u32 s54, s%d, s%d\ns_addc_u32 s55, s%d, 0" % (sT0, sT2, 8*HST, sT0, CH_OFF, sT0, sC, sT0, sT0, HST, sT0, sT0, pWs, sT0, pWs+1))
    k("s_lshl_b32 s%d, s%d, 2\ns_add_u32 s58, s58, s%d" % (sT0, sC, sT0))
    k("s_add_u32 s%d, s%d, 1\ns_lshr_b32 s%d, s%d, 1\ns_lshl_b32 s59, 1, s%d\ns_sub_u32 s59, s59, 1" % (sT0, sC, sT0, sT0, sT0))
    if not opt("hint", 2): k("s_mov_b32 s59, 0")
    sSS = [68, 69, 70, 71, 79]
    k("s_mul_i32 s%d, s%d, 88\ns_add_u32 s%d, s%d, 48\ns_lshl_b32 s%d, s%d, 12" % (sT3, sC, sT3, sT3, sT3, sT3))
    k("s_mul_i32 s%d, s%d, 10\ns_mul_i32 s%d, s%d, 5\ns_add_u32 s%d, s%d, s%d" % (sT2, sJJ, sT0, sNH, sT2, sT2, sT0))
    for q in range(5):
        k("s_add_u32 s%d, s%d, %d\ns_lshr_b32 s%d, s%d, 1\ns_lshl_b32 s%d, s%d, 12\ns_and_b32 s%d, s%d, 1\ns_lshl_b32 s%d, s%d, 9" % (sT0, sT2, q, sT1, sT0, sT1, sT1, sT0, sT0, sT0, sT0))
        k("s_add_u32 s%d, s%d, s%d\ns_add_u32 s%d, s%d, s%d" % (sT0, sT0, sT1, sSS[q], sT0, sT3))
    KR = [cKr+2*q for q in range(5)]
    for s in range(1, 4): k("v_cmp_eq_u32 %s, %d, v%d" % (sp(16+2*s), s, vG))
    def ssm_frag(q):
        rd = lambda h, reg: ["ds_read_b128 %s, v%d offset:%d" % (vr(reg, 4), aW[2+h], q*2048)]
        mf = lambda b, x, w: "v_mfma_f32_16x16x32_bf16 %s, %s, %s, %s" % (vr(ACCS+(q*4+b)*4, 4), vr(x, 4), vr(w, 4), vr(ACCS+(q*4+b)*4, 4))
        return (rd, mf)
    fr = [ssm_frag(q) for q in range(5)]
    for cb in range(2):
        for gu in range(2): fr.append(ffn_frag(ACCF, gu*2+cb, aW[cb], gu))
    M4 = XS[0]
    SQ = [247, 249, 251, 253, 245]
    def postB():
        o = ["s_mul_i32 s%d, s%d, 768\ns_add_u32 s%d, s%d, %d\nv_lshl_add_u32 v%d, v%d, 4, s%d\nv_lshl_add_u32 v%d, v%d, 2, s%d" % (sT0, sMH, sT0, sT0, STAT_M, vT[3], vG, sT0, vT[2], vM, sT0),
             "s_mul_i32 s%d, s%d, 3072\ns_add_u32 s%d, s%d, %d\nv_lshl_add_u32 v%d, v%d, 4, s%d" % (sT0, sNH, sT0, sT0, CT, vT[5], vM, sT0)]
        for b in range(4): o.append("ds_read_b128 %s, v%d offset:%d" % (vr(M4+4*b, 4), vT[3], b*64))
        for qd in (6, 7, 8, 0, 1, 2, 3, 4, 5):
            if qd == 8 and TRACE: o.append("ds_read_b96 %s, v%d offset:%d" % (vr(220+4*qd, 3), vT[5], qd*256))
            else: o.append("ds_read_b128 %s, v%d offset:%d" % (vr(220+4*qd, 4), vT[5], qd*256))
        return o
    c_loop("B", fr, 6, opt("db", 5), WRB, aX + aW, postB)
    stamp(k, 1)
    RS4 = XS[1]
    for b in range(4): k("ds_read_b128 %s, v%d offset:%d" % (vr(RS4+4*b, 4), vT[3], 256+b*64))
    Z = [[ACCS + (q*4 + (t >> 2))*4 + (t & 3) for t in range(16)] for q in range(5)]
    H = [[52+q, 57+q] for q in range(5)]
    k("s_waitcnt lgkmcnt(4)")
    for t in range(0, 16, 2):
        for q in range(5): k("v_pk_fma_f32 %s, %s, %s, %s op_sel:[0,1,0] op_sel_hi:[1,1,1] neg_lo:[1,0,0] neg_hi:[1,0,0]" % (vr(Z[q][t], 2), vr(M4+t, 2), vr(SQ[q]-1, 2), vr(Z[q][t], 2)))
    k("s_waitcnt lgkmcnt(0)")
    for t in range(16):
        if t % 2 == 0:
            for q in range(5): k("v_pk_mul_f32 %s, %s, %s" % (vr(Z[q][t], 2), vr(RS4+t, 2), vr(Z[q][t], 2)))
        if t >= 1:
            prev = [Z[q][0] if t == 1 else H[q][t & 1] for q in range(5)]
            cur = [H[q][(t+1) & 1] for q in range(5)]
            for q in range(5): k("v_fma_f32 v%d, v%d, v%d, v%d" % (cur[q], cLr+q, prev[q], Z[q][t]))
            for q in range(5): k("v_fmac_f32_dpp v%d, v%d, v%d%s" % (cur[q], prev[q], cMu+q, DPP))
    a_ = [H[q][0] for q in range(5)]; b_ = [H[q][1] for q in range(5)]
    c_ = r5(20)
    TOT = 28
    d_ = [TOT, TOT+1, TOT+2, TOT+4, TOT+5]
    MINE = [12, 13, 14, 15, 16]
    S4 = 36; Mb, RSb, Sb = 62, 66, 70; K0 = 74
    def ffn_inputs():
        k("s_lshl_b32 s%d, s%d, 9\ns_add_u32 s%d, s%d, %d\nv_lshl_add_u32 v%d, v%d, 4, s%d" % (sT0, sNH, sT0, sT0, SFF, vT[0], vG, sT0))
        for b in range(0, 4, 2):
            for a, off in ((Mb, 0), (RSb, 64), (Sb, 128)):
                k("ds_read2_b32 %s, v%d offset0:%d offset1:%d" % (vr(a+b, 2), vT[2], off+b*16, off+b*16+16))
        for j in range(4): k("ds_read_b128 %s, v%d offset:%d" % (vr(S4+4*j, 4), vT[0], j*64))
        k("v_mov_b32 v%d, %s\nv_mov_b32 v%d, %s" % (K0, f32(c0*0.044715), K0+1, f32(c0)))
    ffn_inputs()
    for q in range(5): k("v_mov_b32 v%d, v%d" % (b_[q], a_[q]))
    for q in range(5): k("v_permlane16_swap_b32 v%d, v%d" % (a_[q], b_[q]))
    for q in range(5): k("v_mov_b32 v%d, v%d\nv_mov_b32 v%d, v%d" % (c_[q], a_[q], d_[q], b_[q]))
    for q in range(5): k("v_permlane32_swap_b32 v%d, v%d\nv_permlane32_swap_b32 v%d, v%d" % (a_[q], c_[q], b_[q], d_[q]))
    seq = [a_, b_, c_, d_]
    k("v_mov_b32 v%d, s%d\nv_mov_b32 v%d, s%d" % (TOT+3, sNon, TOT+7, sNon))
    k("s_lshl_b32 s%d, s%d, 9" % (sT0, sC))
    k("v_lshlrev_b32 v%d, 4, v%d\nv_mul_u32_u24 v19, %d, v%d" % (vT[1], vM, HST, vM))
    for s in range(1, 4):
        for q in range(5): k("v_fmac_f32 v%d, v%d, v%d" % (seq[s][q], c16r+q, seq[s-1][q]))
        for q in range(5): k("v_fmac_f32_dpp v%d, v%d, v%d%s" % (seq[s][q], seq[s-1][q], c16k+q, DPP))
    k("s_mov_b64 exec, 0xffff")
    k("buffer_store_dwordx4 %s, v%d, %s, s%d offen%s" % (vr(TOT, 4), vT[1], sq(SP0), sT0, SC))
    k("buffer_store_dwordx4 %s, v%d, %s, s%d offen offset:256%s" % (vr(TOT+4, 4), vT[1], sq(SP0), sT0, SC))
    TH = opt("th", 0)
    if not TH and opt("hint", 2) == 1:
        k("s_mov_b64 exec, 0xff")
        k("buffer_store_dword v%d, v19, %s, s58 offen%s" % (TOT+3, sq(SWS), SC))
    k("s_mov_b64 exec, -1")
    k("s_mov_b32 s56, s%d\ns_mov_b32 s57, s%d" % (sNon, sNon))
    cs_set(1, 17, 18)
    k(";PRIO_ON")
    stamp(k, 2)
    for q in range(5): k("v_cndmask_b32 v%d, 0, v%d, %s" % (MINE[q], a_[q], sp(18)))
    for q in range(5): k("v_cndmask_b32 v%d, v%d, v%d, %s" % (MINE[q], MINE[q], b_[q], sp(20)))
    for q in range(5): k("v_cndmask_b32 v%d, v%d, v%d, %s" % (MINE[q], MINE[q], c_[q], sp(22)))
    k("v_lshlrev_b32 v%d, 4, v%d" % (vT[3], vL))
    k("s_waitcnt lgkmcnt(0)")
    dst_ = []
    DFR = opt("dfr", 1)
    HINT = opt("hint", 2)
    for b in range(4):
        if b == opt("hb", 3) and HINT == 1: k("s_load_dwordx16 s[16:31], s[54:55], 0 glc\ns_load_dwordx16 s[32:47], s[54:55], 64 glc")
        ffn_epilogue(ACCF, 2, S4, Mb, RSb, Sb, 20, [[236, 240, 52, 56][b]], K0, vT[3], [(b, 0)], defer=dst_)
        if not DFR: k(dst_.pop())
        if TH and b == TH-1:
            k("s_waitcnt vmcnt(0)\ns_mov_b64 exec, 0xff")
            k("buffer_store_dword v%d, v19, %s, s58 offen%s\ns_mov_b64 exec, -1" % (TOT+3, sq(SWS), SC))
    def hint_check():
        k("s_waitcnt lgkmcnt(0)\ns_mov_b32 s%d, 0" % sT0)
        for j in range(15, -1, -1): k("s_cmp_lg_u64 %s, s[56:57]\ns_addc_u32 s%d, s%d, s%d" % (sp(16+2*j), sT0, sT0, sT0))
        k("s_and_b32 s%d, s%d, s59" % (sT0, sT0))
    if not opt("clk", 0): stamp(k, 6)
    PRb = [ACCF + u*8 for u in range(8)]
    k("s_sub_u32 s%d, s%d, 1" % (sT0, sC))
    k("v_sub_u32 v%d, s%d, v%d\nv_lshlrev_b32 v%d, 9, v%d\nv_lshl_add_u32 v%d, v%d, 4, v%d" % (vT[1], sT0, vG, vT[1], vT[1], vT[1], vM, vT[1]))
    def pred_loads():
        for u in range(8):
            if u: k("v_subrev_u32 v%d, %d, v%d" % (vT[0], u*2048, vT[1]))
            a = vT[0] if u else vT[1]
            k("buffer_load_dwordx4 %s, v%d, %s, 0 offen%s" % (vr(PRb[u], 4), a, sq(SP0), PSC_))
            k("buffer_load_dwordx4 %s, v%d, %s, 0 offen offset:256%s" % (vr(PRb[u]+4, 4), a, sq(SP0), PSC_))
    if HINT == 1:
        hint_check()
        k("s_mov_b32 s%d, s%d\ns_cbranch_scc1 L_k1_npl" % (sDelta, sT0))
        pred_loads()
        k("s_branch L_k1_npl2")
        k("L_k1_npl:")
        k("s_load_dwordx16 s[16:31], s[54:55], 0 glc\ns_load_dwordx16 s[32:47], s[54:55], 64 glc")
        k("L_k1_npl2:")
    elif HINT == 0:
        k("s_mov_b32 s%d, 0" % sDelta)
        pred_loads()
    else: k("s_mov_b32 s%d, 1" % sDelta)
    for x in dst_: k(x)
    k("s_mul_i32 s%d, s%d, %d\ns_add_u32 s%d, s%d, %d" % (sKx, sW, 80*TRP, sKx, sKx, TRB))
    k("v_add_u32 v%d, s%d, v%d" % (vT[4], sKx, vT[3]))
    for qd in range(3): k("ds_read_b128 %s, v%d offset:%d" % (vr(32+4*qd, 4), vT[5], (9+qd)*256))
    L256r, L256k = r5(32), r5(37)
    free = [20+2*q for q in range(5)]
    for t in range(0, 16, 2):
        nf = []
        for q in range(5): k("v_pk_mul_f32 %s, %s, %s op_sel_hi:[0,1]" % (vr(free[q], 2), vr(KR[q], 2), vr(Z[q][t], 2)))
        for e in range(2):
            for q in range(5): k("v_fmac_f32_dpp v%d, v%d, v%d%s" % (free[q]+e, Z[q][t]+e, cKk+q, DPP))
        for q in range(5):
            nf.append(Z[q][t]); Z[q][t] = free[q]; Z[q][t+1] = free[q]+1
        free = nf
    t0, t1 = 30, 31
    k("s_mov_b32 s%d, 0\ns_cmp_eq_u32 s%d, 0\ns_cbranch_scc1 L_k1_early" % (sRd, sDelta))
    if HINT == 1:
        hint_check()
        k("s_cbranch_scc0 L_k1_hd")
    else: k("s_branch L_k1_hd")
    a2_flag(1, 0, 30, 31)
    if not opt("clk", 0): stamp(k, 7)
    k("s_mov_b32 s%d, 1\ns_mov_b32 s%d, 0" % (sRd, sT3))
    k("L_k1_hr:")
    k("s_load_dwordx16 s[16:31], s[54:55], 0 glc\ns_load_dwordx16 s[32:47], s[54:55], 64 glc")
    hint_check()
    k("s_cbranch_scc0 L_k1_hd\ns_sleep %d\ns_add_u32 s%d, s%d, 1\ns_cmp_lt_u32 s%d, 0x100000\ns_cbranch_scc1 L_k1_hr" % (opt("hsl", 3), sT3, sT3, sT3))
    k("L_k1_hd:")
    if opt("dbgp", 0): stamp(k, 6)
    pred_loads()
    if DFR:
        k("s_mov_b32 s%d, 0\ns_branch L_k1_poll" % sT3)
        k("L_k1_early:")
        k("s_mov_b32 s%d, 0\ns_waitcnt vmcnt(4)\ns_branch L_k1_poll2" % sT3)
    else:
        k("s_mov_b32 s%d, 0\ns_cmp_lg_u32 s%d, 0\ns_cbranch_scc1 L_k1_poll" % (sT3, sRd))
        k("L_k1_early:")
        a2_flag(1, 16, 30, 31)
        stamp(k, 7)
        k("s_mov_b32 s%d, 0\ns_waitcnt vmcnt(1)\ns_branch L_k1_poll2" % sT3)
    k("L_k1_poll:")
    k("s_waitcnt vmcnt(0)")
    k("L_k1_poll2:")
    k("s_mov_b32 s%d, 0" % sT2)
    for u in range(8):
        k("v_cmp_ne_u32 s[24:25], s%d, v%d\nv_cmp_ne_u32 s[26:27], s%d, v%d\nv_cmp_le_i32 vcc, %d, v%d" % (sNon, PRb[u]+3, sNon, PRb[u]+7, u*2048, vT[1]))
        k("s_or_b64 s[24:25], s[24:25], s[26:27]\ns_and_b64 s[24:25], s[24:25], vcc\ns_cbranch_scc0 L_k1_pu%d" % u)
        k("s_cmp_lg_u32 s%d, 0\ns_cbranch_scc1 L_k1_ps%d\ns_sleep %d\nL_k1_ps%d:" % (sT2, u, opt("csl", 8), u))
        k("s_mov_b32 s%d, 1" % sT2)
        k("v_subrev_u32 v%d, %d, v%d" % (vT[0], u*2048, vT[1]))
        k("s_mov_b64 exec, s[24:25]")
        k("buffer_load_dwordx4 %s, v%d, %s, 0 offen%s" % (vr(PRb[u], 4), vT[0], sq(SP0), PSC_))
        k("buffer_load_dwordx4 %s, v%d, %s, 0 offen offset:256%s" % (vr(PRb[u]+4, 4), vT[0], sq(SP0), PSC_))
        k("s_mov_b64 exec, -1")
        k("L_k1_pu%d:" % u)
    k("s_add_u32 s%d, s%d, 1\ns_cmp_eq_u32 s%d, 0\ns_cbranch_scc1 L_k1_polled" % (sT3, sT3, sT2))
    k("s_cmp_lt_u32 s%d, 0x40000\ns_cbranch_scc1 L_k1_poll" % sT3)
    k("L_k1_polled:")
    if opt("dbgp", 0): k("s_waitcnt lgkmcnt(0)\ns_lshl_b32 s94, s%d, 8\ns_cmp_eq_u32 s%d, 0\ns_cselect_b32 s95, 1, 0\ns_or_b32 s94, s94, s95\ns_lshl_b32 s95, s%d, 1\ns_or_b32 s94, s94, s95" % (sT3, sDelta, sRd))
    if CSM & 2: cs_set(0, 17, 18)
    if not opt("clk", 0): stamp(k, 3)
    pr = lambda u, q: PRb[u]+(q if q < 3 else q+1)
    k("s_waitcnt lgkmcnt(0)")
    for u in range(6, -1, -1):
        for q in range(5): k("v_fmac_f32 v%d, v%d, v%d" % (pr(u, q), L256r[q], pr(u+1, q)))
        for q in range(5): k("v_fmac_f32_dpp v%d, v%d, v%d%s" % (pr(u, q), pr(u+1, q), L256k[q], DPP))
        if u == 4:
            for qd in range(5): k("ds_read_b128 %s, v%d offset:%d" % (vr(PRb[5]+4*qd, 4), vT[4], qd*1024))
    L64r, L64k, Psr, Psk = r5(PRb[5]), r5(PRb[5]+5), r5(PRb[5]+10), r5(PRb[5]+15)
    k("s_waitcnt lgkmcnt(0)")
    for q in range(5): k("v_mul_f32 v%d, v%d, v%d" % (pr(1, q), L64r[q], pr(0, q)))
    for q in range(5): k("v_fmac_f32_dpp v%d, v%d, v%d%s" % (pr(1, q), pr(0, q), L64k[q], DPP))
    for sw in ("v_permlane16_swap_b32", "v_permlane32_swap_b32"):
        for q in range(5): k("v_mov_b32 v%d, v%d" % (pr(2, q), pr(1, q)))
        for q in range(5): k("%s v%d, v%d" % (sw, pr(1, q), pr(2, q)))
        for q in range(5): k("v_add_f32 v%d, v%d, v%d" % (pr(1, q), pr(1, q), pr(2, q)))
    for q in range(5): k("v_fmac_f32 v%d, v%d, v%d" % (MINE[q], Psr[q], pr(1, q)))
    for q in range(5): k("v_fmac_f32_dpp v%d, v%d, v%d%s" % (MINE[q], pr(1, q), Psk[q], DPP))
    CIN = [f for f in free]
    for q in range(5): k("v_mul_f32 v%d, v%d, v%d" % (CIN[q], KR[q], MINE[q]))
    for q in range(5): k("v_fmac_f32_dpp v%d, v%d, v%d%s" % (CIN[q], MINE[q], cKk+q, DPP))
    PK = 32
    OUTQ = [ACCF + 4*j for j in range(10)]
    k("v_mul_u32_u24 v%d, %d, v%d\nv_lshl_add_u32 v%d, v%d, 5, v%d\nv_add_u32 v%d, s%d, v%d" % (vT[1], TRP, vM, vT[1], vG, vT[1], vT[1], sKx, vT[1]))
    k("v_and_b32 v%d, 1, v%d\nv_lshrrev_b32 v%d, 2, v%d\nv_lshl_add_u32 v%d, v%d, 3, v%d\nv_mul_u32_u24 v%d, %d, v%d" % (vT[0], vG, vT[4], vM, vT[0], vT[0], vT[4], vT[0], TRP, vT[0]))
    k("v_and_b32 v%d, 3, v%d\nv_lshl_add_u32 v%d, v%d, 5, v%d" % (vT[4], vM, vT[0], vT[4], vT[0]))
    k("v_lshrrev_b32 v%d, 1, v%d\nv_lshl_add_u32 v%d, v%d, 3, v%d\nv_add_u32 v%d, s%d, v%d" % (vT[5], vG, vT[0], vT[5], vT[0], vT[0], sKx, vT[0]))
    k("v_and_b32 v%d, 31, v%d\nv_lshlrev_b32 v%d, 4, v%d\nv_lshl_add_u32 v%d, v%d, 10, v%d" % (vT[4], vL, vT[4], vT[4], vT[4], vT[5], vT[4]))
    def tr_reads(bp):
        for q in range(5):
            o = OUTQ[bp*5+q]
            k("ds_read_b64_tr_b16 %s, v%d offset:%d\nds_read_b64_tr_b16 %s, v%d offset:%d" % (vr(o, 2), vT[0], q*16*TRP+bp*16, vr(o+2, 2), vT[0], q*16*TRP+bp*16+4*TRP))
    def tr_stores(bp, waits):
        for q in range(5):
            if waits: k("s_waitcnt lgkmcnt(%d)" % (8-2*q))
            k("buffer_store_dwordx4 %s, v%d, %s, s%d offen offset:%d%s" % (vr(OUTQ[bp*5+q], 4), vT[4], sq(SWS), sSS[q], bp*2048, S1))
    for t in range(16):
        if DFR and t == opt("fft", 2):
            k("s_cmp_lg_u32 s%d, 0\ns_cbranch_scc1 L_k1_ffd" % sRd)
            a2_flag(1, 0, 30, 31)
            if not opt("clk", 0): stamp(k, 7)
            k("L_k1_ffd:")
            if TW & 2: k("v_lshlrev_b32 v30, 7, v%d\ns_mov_b32 exec_hi, 0\nbuffer_load_dword v31, v30, %s, s%d offen sc1\ns_mov_b32 exec_hi, -1" % (vL, sq(SWS), sKS))
        prev = [CIN[q] if t == 0 else Z[q][t-1] for q in range(5)]
        for q in range(5): k("v_fmac_f32 v%d, v%d, v%d" % (Z[q][t], cLr+q, prev[q]))
        for q in range(5): k("v_fmac_f32_dpp v%d, v%d, v%d%s" % (Z[q][t], prev[q], cMu+q, DPP))
        if t & 1:
            for q in range(5): k("v_cvt_pk_bf16_f32 v%d, v%d, v%d" % (PK+8*q+(t >> 1), Z[q][t-1], Z[q][t]))
        if t == 8:
            for q in range(5): k("ds_write_b128 v%d, %s offset:%d" % (vT[1], vr(PK+8*q, 4), q*16*TRP))
        if t == 10: tr_reads(0)
        if t == 13:
            k("s_waitcnt lgkmcnt(0)")
            tr_stores(0, False)
    for q in range(5): k("ds_write_b128 v%d, %s offset:%d" % (vT[1], vr(PK+8*q+4, 4), q*16*TRP+16))
    tr_reads(1)
    tr_stores(1, True)
    if CSM & 2: cs_set(1, 17, 18)
    a2_flag(2, 0, vT[0], vT[1])
    if TW & 4:
        k("v_lshrrev_b32 v30, 2, v%d\nv_lshlrev_b32 v30, 10, v30\nv_and_b32 v31, 3, v%d\nv_lshl_add_u32 v30, v31, 7, v30\ns_mov_b64 exec, 0xffff" % (vL, vL))
        for q in range(5): k("buffer_load_dword v%d, v30, %s, s%d offen sc1" % (32+q, sq(SWS), sSS[q]))
        k("s_mov_b64 exec, -1")
    stamp(k, 4)
    k(";PRIO_OFF")
    k("L_k1_base:")
    base_loads(140)
    k("L_k1_base2:")
    base_compute(140)
    finish(100)
    k("L_k1_end:")
    k("s_endpgm")
    k(".p2align 7")
    k(".type L_k1_tab,@object")
    k("L_k1_tab:")
    k(".long " + ", ".join(str(i) for i in range(32)))
    k(".size L_k1_tab, 128")
    if opt("dp", 0):
        out = []; on = False; hi = False
        lo = opt("dplo", 0)
        for l in k.lines:
            t = l.strip()
            if t == ";PRIO_ON": on = True; hi = False; out.append("    s_setprio %d" % lo); continue
            if t == ";PRIO_OFF": on = False; continue
            if on:
                isv = t.startswith("buffer_") or t.startswith("global_")
                isalu = t.startswith("v_") and not t.startswith("v_subrev_u32") and not t.startswith("v_mov_b32") and not t.startswith("v_cmp")
                if t.endswith(":"): hi = None
                if isv and hi is not True: out.append("    s_setprio 3"); hi = True
                elif isalu and hi is not False: out.append("    s_setprio %d" % lo); hi = False
            out.append(l)
        k.lines = out
    else: k.lines = [l for l in k.lines if not l.strip().startswith(";PRIO")]
    return k

if __name__ == "__main__":
    ref = open("parallel_sum__ssm_conv_s5__geglu_ffn__prompt.s.ref").read().split("\n")
    hdr = [l for l in ref if l.startswith(";") and "@launch" not in l and "Override" not in l and "grid=ceil" not in l]
    hdr += ["; @launch grid=(256,1,1) block=(512,1,1) lds=163840"]
    out = [a for a in sys.argv[1:] if not a.startswith("--")][0]
    gen2.TRACE = False
    open(out, "w").write(emit_file(hdr, [(gen_k1(), dict(vgpr=256, accum=256))]))
```

```python
import sys, struct, math
from asmgen import *
import gen2
from gen2 import (A2_OFF, B2_OFF, CAR_OFF, RST_OFF, SB_OFF, SG_OFF, STAMP_OFF, WS_NREC, SL, SPARE, TRP, f32, vr, sq, sp, ror, DPP, SC,
                  Alloc, interleave, srd, stamp, stamp_out, opt, ARG, STAMPS, LOG2E,
                  pX, pLre, pLim, pBre, pBim, pCre, pCim, pLdt, pD, pBx, pG, pU, pDn, pOut, pDbg, pWs)
STAT_M = SPARE
SFF = SPARE + 1536
SSS = SPARE + 2560
TRB = SL
DNA = SPARE + 2560
FLG = SPARE + 3968
PF_OFF = 0x1130000
FL_OFF = 0x1160000
CH_OFF = 0x1040000
TRACE = "--trace" in ARG
S1 = [" sc1", " sc0 sc1", " sc1 nt", ""][opt("st2", 0)]
if opt("sc", 1): SC = " sc1"
FSP = 4
FGS = 16
FLS_ = opt("fls", 4224)
PSC_ = [" sc1", " sc0 sc1"][opt("psc", 0)]
KNAME = "parallel_sum__ssm_conv_s5__geglu_ffn__prompt_kernel"

def gen_k1():
    k = Kern(KNAME)
    sW, sMH, sNH, sI, sJJ, sTY = 3, 4, 5, 6, 7, 8
    sT0, sT1, sT2, sT3 = 9, 10, 11, 12
    sMASK = 13
    SX, SW0, SW1, SWS, SP0, SP1 = 48, 52, 56, 60, 64, 68
    sKx, sKw, sDst, sDelta, sIt, sRd, sA, sB, sKS, sC, sNon, sCol = range(72, 84)
    k("s_cmp_ge_u32 s2, 256\ns_cbranch_scc1 L_k1_end")
    k("s_load_dwordx16 s[16:31], s[0:1], 0\ns_load_dwordx16 s[32:47], s[0:1], 64")
    vL, vM, vG, vII, vSL = 1, 2, 3, 4, 5
    vT = [6, 7, 8, 9, 10, 11]
    k("v_lshrrev_b32 v%d, 6, v0" % vT[0])
    k("v_and_b32 v%d, 63, v0" % vL)
    k("v_readfirstlane_b32 s%d, v%d" % (sW, vT[0]))
    k("s_cmp_ge_u32 s%d, 6\ns_cbranch_scc1 L_k1_D" % sW)
    k("s_cmp_lt_u32 s%d, 4\ns_cbranch_scc1 L_k1_C" % sW)
    def decode():
        stamp(k, 0)
        if TRACE: k("v_mov_b32 v255, 0")
        k("v_and_b32 v%d, 15, v0\nv_lshrrev_b32 v%d, 4, v%d" % (vM, vG, vL))
        k("v_lshrrev_b32 v%d, 3, v%d\nv_and_b32 v%d, 7, v0" % (vII, vL, vSL))
        k("s_bfe_u32 s%d, s2, 0x10002\ns_lshl_b32 s%d, s%d, 3\ns_bfe_u32 s%d, s2, 0x30003\ns_add_u32 s%d, s%d, s%d" % (sI, sI, sI, sT2, sI, sI, sT2))
        k("s_and_b32 s%d, s2, 3\ns_lshl_b32 s%d, s%d, 1\ns_lshr_b32 s%d, s2, 7\ns_add_u32 s%d, s%d, s%d\ns_bfe_u32 s%d, s2, 0x10006" % (sJJ, sJJ, sJJ, sT2, sJJ, sJJ, sT2, sTY))
        k("s_mov_b32 s%d, 0xffff0000" % sMASK)
        k("s_and_b32 s%d, s%d, 1\ns_bfe_u32 s%d, s%d, 0x10001" % (sMH, sW, sNH, sW))
        k("s_lshl_b32 s%d, s%d, 7\ns_lshl_b32 s%d, s%d, 6\ns_add_u32 s%d, s%d, 1024\ns_cmp_eq_u32 s%d, 0\ns_cselect_b32 s%d, s%d, s%d" % (sT0, sJJ, sT1, sJJ, sT1, sT1, sTY, sCol, sT0, sT1))
    decode()

    def p2map(mi, ni):
        M = opt("p2m", 0)
        if M == 0:
            k("s_lshr_b32 s%d, s%d, 1\ns_lshl_b32 s%d, s%d, 3\ns_and_b32 s%d, s%d, 7\ns_add_u32 s%d, s%d, s%d" % (mi, sT0, mi, mi, sT2, sT1, mi, mi, sT2))
            k("s_and_b32 s%d, s%d, 1\ns_lshl_b32 s%d, s%d, 2\ns_lshr_b32 s%d, s%d, 3\ns_add_u32 s%d, s%d, s%d" % (ni, sT0, ni, ni, sT2, sT1, ni, ni, sT2))
        elif M == 1:
            k("s_lshl_b32 s%d, s%d, 2\ns_and_b32 s%d, s%d, 3\ns_add_u32 s%d, s%d, s%d\ns_lshr_b32 s%d, s%d, 2" % (mi, sT0, sT2, sT1, mi, mi, sT2, ni, sT1))
        else:
            k("s_lshr_b32 s%d, s%d, 2\ns_lshl_b32 s%d, s%d, 4\ns_and_b32 s%d, s%d, 15\ns_add_u32 s%d, s%d, s%d" % (mi, sT0, mi, mi, sT2, sT1, mi, mi, sT2))
            k("s_and_b32 s%d, s%d, 3\ns_lshl_b32 s%d, s%d, 1\ns_lshr_b32 s%d, s%d, 4\ns_add_u32 s%d, s%d, s%d" % (ni, sT0, ni, ni, sT2, sT1, ni, ni, sT2))
    def tab_base(tag, d):
        k("s_getpc_b64 %s" % sp(d))
        k("L_k1_tb%s:" % tag)
        k("s_add_u32 s%d, s%d, L_k1_tab-L_k1_tb%s\ns_addc_u32 s%d, s%d, 0" % (d, d, tag, d+1, d+1))
    def bf16r(d, s):
        k("v_cvt_pk_bf16_f32 v%d, v%d, v%d\nv_lshlrev_b32 v%d, 16, v%d" % (d, s, s, d, d))
    r5 = lambda b: [b+q for q in range(5)]
    def cpow5(dr, dk, n, t0, t1, cA2, cBt):
        R5 = range(5)
        for q in R5: k("v_mul_f32 v%d, %s, v%d\nv_mul_f32 v%d, %s, v%d" % (t0+q, n, cA2+q, t1+q, n, cBt+q))
        for q in R5: k("v_exp_f32 v%d, v%d\nv_rndne_f32 v%d, v%d" % (t0+q, t0+q, dr[q], t1+q))
        for q in R5: k("v_sub_f32 v%d, v%d, v%d" % (t1+q, t1+q, dr[q]))
        for q in R5: k("v_cos_f32 v%d, v%d\nv_sin_f32 v%d, v%d" % (dr[q], t1+q, dk[q], t1+q))
        for q in R5: k("v_mul_f32 v%d, v%d, v%d\nv_mul_f32 v%d, v%d, v%d" % (dr[q], dr[q], t0+q, dk[q], dk[q], t0+q))
    def param_loads(P, snh, va):
        k("s_mul_i32 s%d, s%d, 80\ns_mul_i32 s%d, s%d, 40\ns_add_u32 s%d, s%d, s%d" % (sT0, sJJ, sT1, snh, sT1, sT1, sT0))
        k("v_add_u32 v%d, s%d, v%d\nv_lshlrev_b32 v%d, 1, v%d" % (va, sT1, vSL, va, va))
        for q in range(5):
            for n, p in enumerate((pLre, pLim, pLdt)):
                k("global_load_ushort v%d, v%d, %s offset:%d" % (P+n*5+q, va, sp(p), q*16))
    def param_ab(P, cA2, cBt, vs):
        lre, lim, ldt = P, P+5, P+10
        k("v_lshrrev_b32 v%d, 3, v%d\nv_xor_b32 v%d, 1, v%d\nv_lshlrev_b32 v%d, 31, v%d" % (vs, vM, vs, vs, vs, vs))
        for q in range(15): k("v_lshlrev_b32 v%d, 16, v%d" % (P+q, P+q))
        for q in range(5): k("v_xor_b32 v%d, v%d, v%d\nv_mul_f32 v%d, %s, v%d" % (lim+q, lim+q, vs, ldt+q, f32(LOG2E), ldt+q))
        for q in range(5): k("v_exp_f32 v%d, v%d" % (ldt+q, ldt+q))
        for q in range(5): k("v_cvt_pk_bf16_f32 v%d, v%d, v%d" % (ldt+q, ldt+q, ldt+q))
        for q in range(5): k("v_lshlrev_b32 v%d, 16, v%d" % (ldt+q, ldt+q))
        for q in range(5): k("v_mul_f32 v%d, v%d, v%d\nv_mul_f32 v%d, v%d, v%d" % (cA2+q, ldt+q, lre+q, cBt+q, ldt+q, lim+q))
        for q in range(5): k("v_mul_f32 v%d, %s, v%d\nv_mul_f32 v%d, %s, v%d" % (cA2+q, f32(LOG2E), cA2+q, cBt+q, f32(1/(2*math.pi)), cBt+q))
    def trace(idx_sreg, mul, add):
        if TRACE and not opt("evonly", 1):
            k("s_memrealtime s[100:101]\ns_mul_i32 m0, s%d, %d\ns_add_u32 m0, m0, %d\ns_waitcnt lgkmcnt(0)\nv_writelane_b32 v255, s100, m0" % (idx_sreg, mul, add))
    def ev(n):
        if TRACE: k("s_memrealtime s[100:101]\ns_waitcnt lgkmcnt(0)\nv_writelane_b32 v255, s100, %d" % n)
    def finish(vt):
        if TRACE:
            k("s_lshl_b32 s83, s2, 11\ns_add_u32 s83, s83, 0x%x\nv_lshl_add_u32 v%d, v0, 2, s83" % (STAMP_OFF + 0x40000, vt+9))
            k("global_store_dword v%d, v255, %s" % (vt+9, sp(52)))
        stamp_out(k, 0, 8, 52, vt)
        k("s_endpgm")

    vXo, vWo, vSo = 12, 13, 14
    vF = 18
    k("s_lshl_b32 s%d, s%d, 7\ns_lshl_b32 s%d, s%d, 5\ns_add_u32 s%d, s%d, s%d" % (sT2, sI, sT3, sMH, sT2, sT2, sT3))
    k("v_lshrrev_b32 v%d, 2, v%d\nv_lshlrev_b32 v%d, 4, v%d\nv_and_b32 v%d, 3, v%d" % (vT[0], vII, vT[0], vT[0], vT[1], vII))
    k("v_add3_u32 v%d, v%d, v%d, s%d" % (vT[0], vT[0], vT[1], sT2))
    k("v_mul_u32_u24 v%d, 1280, v%d" % (vT[0], vT[0]))
    k("s_lshl_b32 s%d, s%d, 2" % (sT3, sMH))
    k("v_lshrrev_b32 v%d, 1, v%d\nv_or_b32 v%d, s%d, v%d\nv_xor_b32 v%d, v%d, v%d" % (vT[1], vII, vT[1], sT3, vT[1], vT[1], vT[1], vSL))
    k("v_lshl_add_u32 v%d, v%d, 4, v%d" % (vXo, vT[1], vT[0]))
    k("s_mul_i32 s%d, s%d, 80" % (sT0, sJJ))
    k("v_add_u32 v%d, s%d, v%d\nv_mul_u32_u24 v%d, 1280, v%d\nv_lshl_add_u32 v%d, v%d, 4, v%d" % (vT[2], sT0, vII, vT[2], vT[2], vSo, vT[1], vT[2]))
    k("s_lshl_b32 s%d, s%d, 3" % (sT0, sMH))
    k("v_add_u32 v%d, s%d, v%d\nv_mul_u32_u24 v%d, 3072, v%d" % (vT[0], sT0, vII, vT[0], vT[0]))
    k("v_and_b32 v%d, 2, v%d\nv_or_b32 v%d, s%d, v%d\nv_xor_b32 v%d, v%d, v%d" % (vT[1], vII, vT[1], sT3, vT[1], vT[1], vT[1], vSL))
    k("v_lshl_add_u32 v%d, v%d, 4, v%d" % (vT[0], vT[1], vT[0]))
    k("s_lshl_b32 s%d, s%d, 1" % (sT0, sCol))
    k("v_add_u32 v%d, s%d, v%d" % (vWo, sT0, vT[0]))
    k("s_mov_b32 s%d, 0\ns_mov_b32 s%d, 0\ns_lshl_b32 s%d, s%d, 10\ns_mov_b32 s%d, 0\ns_mov_b32 s%d, 0" % (sKx, sKw, sDst, sMH, sIt, sRd))
    k("v_mov_b32 v%d, %d\nv_mov_b32 v24, 4" % (vF, DNA))
    tab_base("L", 68)
    k("s_lshl_b32 s70, s%d, 2\ns_add_u32 s70, s70, %d" % (sMH, FLG+16))
    k("s_lshl_b32 s%d, s%d, 2\ns_add_u32 s%d, s%d, %d\nv_mov_b32 v%d, s%d" % (sT0, sMH, sT0, sT0, FLG+16, vF+1, sT0))
    for S_, n_ in ((SX, 2048*1280), (SW0, 640*3072), (SW1, 640*3072), (SP0, 640*1280)): k("s_mov_b32 s%d, %d\ns_mov_b32 s%d, 0x20000" % (S_+2, n_, S_+3))
    k("s_cmp_eq_u32 s%d, 0\ns_waitcnt lgkmcnt(0)" % sMH)
    k("s_mov_b64 %s, %s\ns_mov_b64 %s, %s\ns_mov_b64 %s, %s\ns_cselect_b64 %s, %s, %s" % (sp(SX), sp(pX), sp(SW0), sp(pG), sp(SW1), sp(pU), sp(SP0), sp(pBre), sp(pBim)))
    def wait_word(lab, off, need, va, vt):
        k("v_mov_b32 v%d, %d" % (va, FLG+off))
        k("%s:" % lab)
        k("ds_read_b32 v%d, v%d\ns_waitcnt lgkmcnt(0)\nv_readfirstlane_b32 s%d, v%d" % (vt, va, sT0, vt))
        k("s_cmp_ge_i32 s%d, %s\ns_cbranch_scc1 %s_ok\ns_sleep %d\ns_branch %s\n%s_ok:" % (sT0, need, lab, opt("wsl", 1), lab, lab))
    def done_read(vt, vaddr):
        return "ds_read2st64_b32 %s, v%d offset0:0 offset1:1\nds_read2st64_b32 %s, v%d offset0:2 offset1:3" % (vr(vt, 2), vaddr, vr(vt+2, 2), vaddr)
    def wait_done(lab, need, vaddr, vt):
        k("%s:" % lab)
        k(done_read(vt, vaddr) + "\ns_waitcnt lgkmcnt(0)")
        k("v_min_u32 v%d, v%d, v%d\nv_min3_u32 v%d, v%d, v%d, v%d" % (vt, vt, vt+1, vt, vt, vt+2, vt+3))
        k("v_readfirstlane_b32 s%d, v%d" % (sT0, vt))
        k("s_cmp_ge_i32 s%d, %s\ns_cbranch_scc1 %s_ok\ns_sleep %d\ns_branch %s\n%s_ok:" % (sT0, need, lab, opt("dsl", 1), lab, lab))
    def dma(ldsoff, voff, S, sbase, add):
        k("s_add_u32 m0, s%d, %d\ns_add_u32 s%d, s%d, %d\nbuffer_load_dwordx4 v%d, %s, s%d offen lds" % (sDst, ldsoff, sT0, sbase, add, voff, sq(S), sT0))
    NSIG = opt("nsig", 8)
    def chk(lab, add, sig):
        k("s_cmp_lt_u32 s%d, 3\ns_cbranch_scc1 %s_go" % (sIt, lab))
        k("s_lshl_b32 s%d, s%d, 1\ns_add_i32 s%d, s%d, %d\ns_waitcnt lgkmcnt(0)" % (sT1, sIt, sT1, sT1, add))
        k("v_min_u32 v20, v20, v21\nv_min3_u32 v20, v20, v22, v23\nv_readfirstlane_b32 s%d, v20" % sT0)
        k("s_cmp_ge_i32 s%d, s%d\ns_cbranch_scc1 %s_go" % (sT0, sT1, lab))
        wait_done(lab+"_wd", "s%d" % sT1, vF, 20)
        k("%s_go:" % lab)
    L = "L_k1_L"
    xs = [(n*2048, vXo, SX, sKx, ((n & 3)*4 + (n >> 2)*64)*1280) for n in range(8)]
    wsu = lambda un, ns: [(16384+un*16384+gu*8192+n*2048, vWo, SW1 if gu else SW0, sKw, n*16*3072+un*128) for n in ns for gu in range(2)]
    p1 = []
    for i in range(4): p1 += xs[2*i:2*i+2] + wsu(0, (0, 1))[i:i+1]
    LB = opt("lbar", 1)
    if not LB:
        for o in p1[:NSIG]: dma(*o)
        k("s_barrier\ns_branch %s_sig" % L)
    k("%s:" % L)
    trace(sIt, 4, 0)
    chk(L+"_c1", -5, True)
    trace(sIt, 4, 1)
    for o in p1[:NSIG]: dma(*o)
    k("%s_sig:" % L)
    k("s_waitcnt vmcnt(40)")
    trace(sIt, 4, 3)
    k("s_cmp_eq_u32 s%d, 1\ns_cbranch_scc1 %s_b1" % (sTY, L))
    for o in wsu(1, (0, 1)): dma(*o)
    k("%s_b1:" % L)
    for i, o in enumerate(p1[NSIG:]):
        if i == len(p1)-NSIG-2: k(done_read(20, vF))
        dma(*o)
    chk(L+"_c2", -4, False)
    k("s_cmp_eq_u32 s%d, 1\ns_cbranch_scc1 %s_b2" % (sTY, L))
    for o in wsu(1, (2, 3)): dma(*o)
    k("s_branch %s_b3" % L)
    k("%s_b2:" % L)
    for b_ in range(10): dma(32768+b_*2048, vSo, SP0, sKx, b_*10240)
    k("%s_b3:" % L)
    for i, o in enumerate(wsu(0, (2, 3))):
        if i == 2: k(done_read(20, vF))
        dma(*o)
    if LB: k("s_cmp_lg_u32 s%d, 0\ns_cbranch_scc1 %s_nb\ns_barrier\n%s_nb:" % (sIt, L, L))
    k("s_mov_b32 m0, s70\ns_mov_b64 exec, 1\nglobal_load_lds_dword v24, s[68:69]\ns_mov_b64 exec, -1")
    k("s_bitcmp1_b32 %d, s%d\ns_cbranch_scc0 %s_ni" % ((1 << 9) | (1 << (opt("gate", 2)-1)) | ((1 << opt("pgate", 1)) >> 1), sIt, L))
    k("v_lshrrev_b32 v25, 2, v24\nds_write_b32 v%d, v25 offset:16\n%s_ni:" % (vF+1, L))
    k("v_add_u32 v24, 4, v24")
    k("s_add_u32 s%d, s%d, 128\ns_add_u32 s%d, s%d, 196608\ns_add_u32 s%d, s%d, %d\ns_add_u32 s%d, s%d, 1" % (sKx, sKx, sKw, sKw, sDst, sDst, SL, sRd, sRd))
    k("s_cmp_eq_u32 s%d, 3\ns_cselect_b32 s%d, 0, s%d\ns_cselect_b32 s%d, %d, 0\ns_sub_u32 s%d, s%d, s%d" % (sRd, sRd, sRd, sT0, 3*SL, sDst, sDst, sT0))
    trace(sIt, 4, 2)
    k("s_add_u32 s%d, s%d, 1\ns_cmp_lt_u32 s%d, 10\ns_cbranch_scc1 %s" % (sIt, sIt, sIt, L))
    k("L_k1_Lend:")
    srd(k, SWS, pWs, WS_NREC)
    k("s_branch L_k1_P2")

    k("L_k1_D:")
    k("s_memrealtime s[100:101]")
    decode()
    XR = 16
    YR = 36
    PK = 100
    T = 132
    vN = 12
    sPQ, sPR = [14, 78], [15, 79]
    k("v_mul_u32_u24 v%d, 1280, v%d\nv_lshl_add_u32 v%d, v%d, 4, v%d" % (vT[0], vG, vT[0], vM, vT[0]))
    XL = opt("xl", 1)
    sQ_, sG_ = sIt, sRd
    if XL:
        k("s_and_b32 s%d, s2, 7\ns_lshl_b32 s%d, s%d, 5\ns_lshr_b32 s%d, s2, 3\ns_add_u32 s%d, s%d, s%d\ns_lshl_b32 s%d, s%d, 1\ns_add_u32 s%d, s%d, s%d" % (sT0, sT0, sT0, sT1, sT0, sT0, sT1, sC, sT0, sC, sC, sMH))
        k("s_bfe_u32 s%d, s2, 0x10002\ns_lshl_b32 s%d, s%d, 5\ns_add_u32 s%d, s%d, s%d" % (sQ_, sQ_, sQ_, sQ_, sQ_, sT1))
    else:
        k("s_lshl_b32 s%d, s2, 1\ns_add_u32 s%d, s%d, s%d" % (sC, sC, sC, sMH))
    def code_touch(tag):
        k("s_getpc_b64 s[70:71]")
        k("L_k1_pc%s:" % tag)
        k("s_sub_u32 s70, s70, L_k1_pc%s-%s\ns_subb_u32 s71, s71, 0" % (tag, KNAME))
        k("s_lshr_b32 s%d, s2, 3\ns_lshl_b32 s%d, s%d, 1\ns_add_u32 s%d, s%d, s%d\ns_mul_i32 s%d, s%d, 640" % (sT0, sT0, sT0, sT0, sT0, sMH, sT0, sT0))
        k("v_min_u32 v14, 4, v%d\nv_lshl_add_u32 v14, v14, 7, s%d\nv_min_u32 v14, L_k1_tab-%s, v14" % (vL, sT0, KNAME))
        k("global_load_dword v15, v14, s[70:71]")
    if opt("cpf", 6) & 4: code_touch("c")
    k("s_waitcnt lgkmcnt(0)")
    srd(k, SX, pX, 2048*1280)
    srd(k, SWS, pWs, WS_NREC)
    k("s_cmp_lg_u32 s%d, 0\ns_cbranch_scc1 L_k1_nn" % sC)
    k("s_or_b32 s%d, s100, 1" % sT0)
    k("v_mov_b32 v%d, s%d\nv_mov_b32 v%d, 0" % (vT[2], sT0, vT[1]))
    k("global_store_dword v%d, v%d, %s%s" % (vT[1], vT[2], sp(pDbg), SC))
    k("L_k1_nn:")
    B1 = opt("b1", 1); GATE = opt("gate", 2)
    SNT = " nt" if opt("snt", 0) else ""
    PNT = " nt" if opt("pnt", 1) else ""
    PA = opt("pa", 0)
    PK2 = 180 if PA else PK; PP = 180
    PK1 = opt("pk1", 0); PGATE = opt("pgate", 1)
    cr_, cc_ = (vSL, vII) if opt("cs", 2) else (vII, vSL)
    CL = opt("cs", 2) == 2
    def pack_loads(tag):
        if PA: k("s_cmp_eq_u32 s%d, 1\ns_cbranch_scc1 L_k1_pld%s" % (sTY, tag))
        k("s_lshl_b32 s%d, s%d, 3\ns_add_u32 s%d, s%d, s%d\ns_lshl_b32 s%d, s%d, 1\ns_add_u32 s%d, s%d, s%d\ns_lshl_b32 s%d, s%d, 1" % (sT3, sI, sT3, sT3, sJJ, sT3, sT3, sT3, sT3, sMH, sT3, sT3))
        for n in range(2):
            k("s_add_u32 s%d, s%d, %d\ns_mul_i32 s%d, s%d, 6554\ns_lshr_b32 s%d, s%d, 16\ns_mul_i32 s%d, s%d, 10\ns_sub_u32 s%d, s%d, s%d" % (sT0, sT3, n, sPQ[n], sT0, sPQ[n], sPQ[n], sT1, sPQ[n], sPR[n], sT0, sT1))
        srd(k, SP0, pDn, 1536*1280)
        srd(k, SW0, pCre, 640*1280)
        srd(k, SW1, pCim, 640*1280)
        k("v_mul_u32_u24 v%d, 1280, v%d\nv_lshl_add_u32 v%d, v%d, 4, v%d" % (vT[4], vII, vT[4], vSL, vT[4]))
        k("s_cmp_lt_u32 s%d, 48\ns_cselect_b32 s%d, s%d, 0" % (sPQ[0], SP0+2, SP0+2))
        k("s_cmp_lt_u32 s%d, 40\ns_cselect_b32 s%d, s%d, 0\ns_cselect_b32 s%d, s%d, 0" % (sPQ[0], SW0+2, SW0+2, SW1+2, SW1+2))
        if not PA: k("s_cmp_eq_u32 s%d, 1\ns_cbranch_scc1 L_k1_plC%s" % (sTY, tag))
        for n in range(2):
            k("s_mul_i32 s%d, s%d, 40960\ns_lshl_b32 s%d, s%d, 7\ns_add_u32 s%d, s%d, s%d" % (sT1, sPQ[n], sT2, sPR[n], sT1, sT1, sT2))
            for a in range(4):
                k("buffer_load_dwordx4 %s, v%d, %s, s%d offen%s" % (vr(PK+16*n+4*a, 4), vT[4], sq(SP0), sT1, PNT))
                if a < 3: k("s_add_u32 s%d, s%d, 10240" % (sT1, sT1))
        if not PA: k("s_branch L_k1_pld%s\nL_k1_plC%s:" % (tag, tag))
        for n in range(2):
            k("s_mul_i32 s%d, s%d, 20480\ns_lshl_b32 s%d, s%d, 7\ns_add_u32 s%d, s%d, s%d" % (sT1, sPQ[n], sT2, sPR[n], sT1, sT1, sT2))
            k("s_add_u32 s%d, s%d, 10240" % (sT2, sT1))
            for part in range(2):
                for hh in range(2):
                    k("buffer_load_dwordx4 %s, v%d, %s, s%d offen%s" % (vr(PK2+16*n+(part*2+hh)*4, 4), vT[4], sq(SW1 if part else SW0), sT2 if hh else sT1, PNT))
        k("L_k1_pld%s:" % tag)
    def gate(lab):
        k("s_barrier")
        if PK1: pack_loads(lab[-2:])
        if GATE: wait_word(lab, 36, "%d" % GATE, vT[3], vT[2])
    k("s_mul_i32 s%d, s%d, 5120" % (sKx, sC))
    xl = lambda c: k("buffer_load_dwordx4 %s, v%d, %s, s%d offen offset:%d%s" % (vr(XR+4*c, 4), vT[0], sq(SX), sKx, c*256, SNT))
    k("s_cmp_eq_u32 s%d, 1\ns_cbranch_scc1 L_k1_D1a" % sMH)
    if XL:
        k("s_mul_i32 s%d, s%d, 43\ns_lshr_b32 s%d, s%d, 9\ns_mul_i32 s%d, s%d, 12\ns_sub_u32 s%d, s%d, s%d" % (sT0, sQ_, sT0, sT0, sT1, sT0, sT1, sQ_, sT1))
        k("s_cmp_lt_u32 s%d, 6\ns_cselect_b32 s%d, s%d, s%d\ns_cselect_b32 s%d, s%d, s%d\ns_cselect_b32 s%d, 0, 6\ns_cselect_b32 s%d, 0, 24" % (sT1, SP1, pG, pU, SP1+1, pG+1, pU+1, sT2, sG_))
        k("s_sub_u32 s%d, s%d, s%d\ns_and_b32 s%d, s2, 3\ns_lshl_b32 s%d, s%d, 2\ns_lshl_b32 s%d, s%d, 1\ns_add_u32 s%d, s%d, 12" % (sT1, sT1, sT2, sT2, sT3, sT2, sT2, sT2, sT2, sT2))
        k("s_cmp_lt_u32 s%d, 4\ns_cselect_b32 s%d, s%d, s%d\ns_add_u32 s%d, s%d, s%d" % (sT1, sT2, sT3, sT2, sT1, sT1, sT2))
        k("s_add_u32 s%d, s%d, s%d\ns_mul_i32 s%d, s%d, 48\ns_add_u32 s%d, s%d, s%d" % (sG_, sG_, sT1, sT2, sT0, sG_, sG_, sT2))
        k("s_lshl_b32 s%d, s%d, 7\ns_mul_i32 s%d, s%d, %d\ns_add_u32 s%d, s%d, s%d" % (sT1, sT1, sT0, sT0, 8*3072, sKw, sT0, sT1))
        k("s_cmp_lt_u32 s%d, 60\ns_cselect_b32 s%d, %d, 0\ns_cselect_b32 s%d, s%d, 1000\ns_mov_b32 s%d, 0x20000" % (sQ_, SP1+2, 640*3072, sG_, sG_, SP1+3))
    else:
        k("s_mov_b32 s%d, s2" % sG_)
        k("s_mul_i32 s%d, s2, 1366\ns_lshr_b32 s%d, s%d, 16\ns_mul_i32 s%d, s%d, 48\ns_sub_u32 s%d, s2, s%d" % (sT0, sT0, sT0, sT1, sT0, sT1, sT1))
        k("s_cmp_lt_u32 s%d, 24\ns_cselect_b32 s%d, s%d, s%d\ns_cselect_b32 s%d, s%d, s%d\ns_cselect_b32 s%d, 0, 24" % (sT1, SP1, pG, pU, SP1+1, pG+1, pU+1, sT2))
        k("s_sub_u32 s%d, s%d, s%d\ns_lshl_b32 s%d, s%d, 7\ns_mul_i32 s%d, s%d, %d\ns_add_u32 s%d, s%d, s%d" % (sT1, sT1, sT2, sT1, sT1, sT0, sT0, 8*3072, sKw, sT0, sT1))
        k("s_cmp_lt_u32 s2, 240\ns_cselect_b32 s%d, %d, 0\ns_mov_b32 s%d, 0x20000" % (SP1+2, 640*3072, SP1+3))
    k("v_mul_u32_u24 v%d, 3072, v%d\nv_lshl_add_u32 v%d, v%d, 4, v%d" % (vT[1], vII, vT[1], vSL, vT[1]))
    a_ = 0
    for c in range(5):
        if c == B1: gate("L_k1_g0")
        xl(c)
        while a_ < 16 and a_*40 < 128*(c+1):
            k("buffer_load_dwordx4 %s, v%d, %s, s%d offen%s" % (vr(YR+4*a_, 4), vT[1], sq(SP1), sKw, SNT))
            k("s_add_u32 s%d, s%d, %d" % (sKw, sKw, 40*3072))
            a_ += 1
    if B1 >= 5: gate("L_k1_g0")
    k("s_branch L_k1_Db")
    k("L_k1_D1a:")
    if XL:
        k("s_cmp_lt_u32 s%d, 20\ns_cselect_b32 s%d, s%d, s%d\ns_cselect_b32 s%d, s%d, s%d\ns_cselect_b32 s%d, 0, 20\ns_cselect_b32 s%d, 0, 80" % (sQ_, SP1, pBre, pBim, SP1+1, pBre+1, pBim+1, sT1, sG_))
        k("s_sub_u32 s%d, s%d, s%d\ns_and_b32 s%d, s2, 3\ns_mul_i32 s%d, s%d, 20\ns_add_u32 s%d, s%d, s%d\ns_add_u32 s%d, s%d, s%d" % (sT0, sQ_, sT1, sT1, sT1, sT1, sT0, sT0, sT1, sG_, sG_, sT0))
        k("s_mul_i32 s%d, s%d, 10240\ns_add_u32 s%d, s%d, 5120" % (sKw, sT0, sDst, sKw))
        k("s_cmp_lt_u32 s%d, 40\ns_cselect_b32 s%d, %d, 0\ns_cselect_b32 s%d, s%d, 1000\ns_mov_b32 s%d, 0x20000" % (sQ_, SP1+2, 640*1280, sG_, sG_, SP1+3))
    else:
        k("s_mov_b32 s%d, s2" % sG_)
        k("s_cmp_lt_u32 s2, 80\ns_cselect_b32 s%d, s%d, s%d\ns_cselect_b32 s%d, s%d, s%d\ns_cselect_b32 s%d, 0, 80" % (SP1, pBre, pBim, SP1+1, pBre+1, pBim+1, sT1))
        k("s_sub_u32 s%d, s2, s%d\ns_mul_i32 s%d, s%d, 10240\ns_add_u32 s%d, s%d, 5120" % (sT0, sT1, sKw, sT0, sDst, sKw))
        k("s_cmp_lt_u32 s2, 160\ns_cselect_b32 s%d, %d, 0\ns_mov_b32 s%d, 0x20000" % (SP1+2, 640*1280, SP1+3))
    for c in range(5):
        if c == B1: gate("L_k1_g1")
        xl(c)
        for hh in range(2): k("buffer_load_dwordx4 %s, v%d, %s, s%d offen offset:%d%s" % (vr(YR+20*hh+4*c, 4), vT[0], sq(SP1), sDst if hh else sKw, c*256, SNT))
    if B1 >= 5: gate("L_k1_g1")
    k("L_k1_Db:")
    if opt("cpf", 6) & 1: code_touch("a")
    ev(0)
    k("v_mov_b32 v%d, 0" % vT[4])
    k("global_load_dword v%d, v%d, %s%s" % (vN, vT[4], sp(pDbg), SC))
    if not PK1: pack_loads("")
    k("s_cmp_eq_u32 s%d, 0\ns_cbranch_scc1 L_k1_npar" % sTY)
    param_loads(PP, sMH, vT[4])
    k("s_waitcnt vmcnt(%d)\ns_branch L_k1_npar2" % (15 if PA else 23))
    k("L_k1_npar:")
    k("s_waitcnt vmcnt(%d)" % (16 if PA else 8))
    k("L_k1_npar2:")
    k("v_mov_b32 v13, 0x3f803f80")
    ev(1)
    ev(2)
    stamp(k, 7)
    def unpack(dst, src, n):
        for d in range(n): k("v_lshlrev_b32 v%d, 16, v%d\nv_and_b32 v%d, s%d, v%d" % (dst+2*d, src+d, dst+2*d+1, sMASK, src+d))
    def row_sum(regs):
        for n in (8, 4, 2, 1):
            for r in regs: k("v_add_f32_dpp v%d, v%d, v%d%s" % (r, r, r, ror(n)))
    def tree(dst, src, n):
        k("v_add_f32 v%d, v%d, v%d\nv_add_f32 v%d, v%d, v%d" % (dst, src, src+1, dst+1, src+2, src+3))
        for d in range(4, n, 2): k("v_add_f32 v%d, v%d, v%d\nv_add_f32 v%d, v%d, v%d" % (dst, dst, src+d, dst+1, dst+1, src+d+1))
        k("v_add_f32 v%d, v%d, v%d" % (dst, dst, dst+1))
    PFIRST = 0
    def do_nonce():
        k("s_mov_b32 s%d, 0" % sT3)
        k("L_k1_gn:")
        k("v_readfirstlane_b32 s%d, v%d" % (sNon, vN))
        k("s_add_u32 s%d, s%d, 1\ns_cmp_lg_u32 s%d, 0\ns_cbranch_scc1 L_k1_gnd" % (sT3, sT3, sNon))
        k("s_cmp_gt_u32 s%d, 0x40000\ns_cbranch_scc1 L_k1_gnd" % sT3)
        k("v_mov_b32 v%d, 0" % vT[1])
        k("global_load_dword v%d, v%d, %s%s\ns_waitcnt vmcnt(0)\ns_branch L_k1_gn" % (vN, vT[1], sp(pDbg), SC))
        k("L_k1_gnd:")
        k("s_max_u32 s%d, s%d, 1" % (sNon, sNon))
    def do_stats():
        A, B = T+40, T+42
        def dsum(dst, src, n, sq_):
            for d in range(n):
                k("v_dot2_f32_bf16 v%d, v%d, v%d, %s" % (dst+(d & 1), src+d, src+d if sq_ else 13, "v%d" % (dst+(d & 1)) if d > 1 else "0"))
        dsum(A, XR, 20, False)
        dsum(B, XR, 20, True)
        k("v_add_f32 v%d, v%d, v%d\nv_add_f32 v%d, v%d, v%d" % (A, A, A+1, B, B, B+1))
        row_sum([A, B])
        k("v_mul_f32 v%d, %s, v%d" % (A, f32(1/640.), A))
        k("v_mul_f32 v%d, %s, v%d" % (B, f32(1/640.), B))
        k("v_fma_f32 v%d, -v%d, v%d, v%d\nv_max_f32 v%d, 0, v%d" % (B, A, A, B, B, B))
        bf16r(B, B)
        k("v_add_f32 v%d, %s, v%d" % (B, f32(1e-5), B))
        bf16r(B, B)
        k("v_sqrt_f32 v%d, v%d" % (B, B))
        k("v_cvt_pk_bf16_f32 v%d, v%d, v%d\nv_mov_b32 v%d, s%d" % (T+44, A, B, T+45, sNon))
        k("s_lshl_b32 s%d, s%d, 5\ns_add_u32 s%d, s%d, 0x%x" % (sT0, sC, sT0, sT0, RST_OFF))
        k("v_lshlrev_b32 v%d, 3, v%d" % (vT[2], vG))
        k("s_mov_b32 exec_lo, 0x00010001\ns_mov_b32 exec_hi, 0x00010001")
        k("buffer_store_dwordx2 %s, v%d, %s, s%d offen%s" % (vr(T+44, 2), vT[2], sq(SWS), sT0, SC))
        k("s_mov_b64 exec, -1")
        k("s_cmp_eq_u32 s%d, 1\ns_cbranch_scc1 L_k1_D1b" % sMH)
        k("v_and_b32 v%d, 1, v%d\nv_lshlrev_b32 v%d, 4, v%d\nv_mov_b32 v%d, 0x3f80\nv_lshlrev_b32 v%d, v%d, v%d" % (T+8, vM, T+8, T+8, T+9, T+8, T+8, T+9))
        k("v_bfe_u32 v%d, v%d, 1, 2" % (T+9, vM))
        for d in range(4): k("v_cmp_eq_u32 vcc, %d, v%d\nv_cndmask_b32 v%d, 0, v%d, vcc" % (d, T+9, T+d, T+8))
        for a in range(16): k("v_mfma_f32_16x16x32_bf16 %s, %s, %s, %s" % (vr(T+4, 4), vr(T, 4), vr(YR+4*a, 4), vr(T+4, 4) if a else "0"))
        k("s_lshl_b32 s%d, s%d, 9\ns_add_u32 s%d, s%d, 0x%x\ns_cmp_lt_u32 s%d, 240\ns_cselect_b32 s%d, s%d, 0x%x" % (sT0, sG_, sT0, sT0, SG_OFF, sG_, sT0, sT0, WS_NREC))
        k("v_lshlrev_b32 v%d, 5, v%d\nv_lshl_add_u32 v%d, v%d, 6, v%d\nv_add_u32 v%d, s%d, v%d" % (T+8, vG, T+8, vSL, T+8, T+8, sT0, T+8))
        for r in range(4): k("v_mov_b32 v%d, s%d" % (T+13+2*r, sNon))
        for r in range(4): k("v_add_f32_dpp v%d, v%d, v%d%s" % (T+12+2*r, T+4+r, T+4+r, DPP))
        k("s_mov_b32 exec_lo, 0x00ff00ff\ns_mov_b32 exec_hi, 0")
        k("buffer_store_dwordx4 %s, v%d, %s, 0 offen%s" % (vr(T+12, 4), T+8, sq(SWS), SC))
        k("buffer_store_dwordx4 %s, v%d, %s, 0 offen offset:16%s" % (vr(T+16, 4), T+8, sq(SWS), SC))
        k("s_mov_b64 exec, -1")
        k("s_branch L_k1_Dc")
        k("L_k1_D1b:")
        for hh in range(2): dsum(A+2*hh, YR+20*hh, 20, False)
        k("v_add_f32 v%d, v%d, v%d\nv_add_f32 v%d, v%d, v%d" % (A, A, A+1, A+2, A+2, A+3))
        row_sum([A, A+2])
        k("v_mov_b32 v%d, s%d\nv_mov_b32 v%d, s%d" % (A+1, sNon, A+3, sNon))
        k("s_lshl_b32 s%d, s%d, 6\ns_add_u32 s%d, s%d, 0x%x\ns_cmp_lt_u32 s%d, 160\ns_cselect_b32 s%d, s%d, 0x%x" % (sT0, sG_, sT0, sT0, SB_OFF, sG_, sT0, sT0, WS_NREC))
        k("v_add_u32 v%d, s%d, v%d" % (vT[3], sT0, vT[2]))
        k("s_mov_b32 exec_lo, 0x00010001\ns_mov_b32 exec_hi, 0x00010001")
        k("buffer_store_dwordx2 %s, v%d, %s, 0 offen%s" % (vr(A, 2), vT[3], sq(SWS), SC))
        k("buffer_store_dwordx2 %s, v%d, %s, 0 offen offset:32%s" % (vr(A+2, 2), vT[3], sq(SWS), SC))
        k("s_mov_b64 exec, -1")
        k("L_k1_Dc:")
    def do_pack():
        ev(3)
        PSC = S1
        k("s_waitcnt vmcnt(%d)" % (1 + 3*(5-B1) if PK1 else 3))
        if PA: k("s_cmp_eq_u32 s%d, 1\ns_cbranch_scc1 L_k1_pdd" % sTY)
        k("s_cmp_ge_u32 s%d, 48\ns_cbranch_scc1 L_k1_pdd" % sPQ[0])
        k("s_mul_i32 s%d, s%d, %d\ns_add_u32 s%d, s%d, 49152" % (sT2, sMH, SL, sT2, sT2))
        if not PA: k("s_lshl_b32 s%d, s%d, 10\ns_add_u32 s%d, s%d, %d\ns_cmp_eq_u32 s%d, 1\ns_cselect_b32 s%d, s%d, s%d" % (sT0, sMH, sT0, sT0, SPARE, sTY, sT2, sT0, sT2))
        k("v_lshlrev_b32 v%d, 4, v%d\nv_add_u32 v%d, s%d, v%d" % (T+1, vL, T, sT2, T+1))
        k("v_lshrrev_b32 v%d, 2, v%d\nv_lshl_add_u32 v%d, v%d, 2, v%d\nv_lshlrev_b32 v%d, 7, v%d" % (T+2, vM, T+2, vG, T+2, T+2, T+2))
        k("v_and_b32 v%d, 3, v%d\nv_lshl_add_u32 v%d, v%d, 3, v%d\nv_add_u32 v%d, s%d, v%d" % (T+3, vM, T+2, T+3, T+2, T+2, sT2, T+2))
        k("v_lshl_add_u32 v%d, v%d, 3, v%d\nv_lshl_add_u32 v%d, v%d, 4, s%d" % (T+3, vSL, vII, T+3, T+3, sT2))
        k("v_lshrrev_b32 v%d, 1, v%d\nv_mul_u32_u24 v%d, 5120, v%d" % (T+4, cc_, T+4, T+4))
        k("v_and_b32 v%d, 1, v%d\nv_lshl_add_u32 v%d, v%d, 5, v%d\nv_lshl_add_u32 v%d, v%d, 4, v%d" % (T+5, cc_, T+5, T+5, cr_, T+4, T+5, T+4))
        def lds_w(n):
            for a in range(4): k("ds_write_b128 v%d, %s offset:%d" % (T, vr(PK+16*n+4*a, 4), a*1024))
            for c4 in range(4):
                k("ds_read_b64_tr_b16 %s, v%d offset:%d" % (vr(PK+16*n+c4*4, 2), T+2, c4*32))
                k("ds_read_b64_tr_b16 %s, v%d offset:%d" % (vr(PK+16*n+c4*4+2, 2), T+2, c4*32+2048))
        def lds_c(n):
            for a in range(4): k("ds_write_b128 v%d, %s offset:%d" % (T, vr(PK2+16*n+4*a, 4), a*1024))
            for a in range(4): k("ds_read_b128 %s, v%d offset:%d" % (vr(PK2+16*n+4*a, 4), T+3, a*1024))
        def st_w(n):
            for c4 in range(4):
                k("s_lshl_b32 s%d, s%d, 2\ns_add_u32 s%d, s%d, %d\ns_mul_i32 s%d, s%d, 52\ns_lshr_b32 s%d, s%d, 8" % (sT0, sPR[n], sT0, sT0, c4, sT1, sT0, sT1, sT1))
                k("s_mul_i32 s%d, s%d, 435\ns_add_u32 s%d, s%d, s%d\ns_mul_i32 s%d, s%d, 5\ns_add_u32 s%d, s%d, s%d" % (sT1, sT1, sT1, sT1, sT0, sT0, sPQ[n], sT1, sT1, sT0))
                k("s_lshl_b32 s%d, s%d, 10\ns_add_u32 s%d, s%d, %d" % (sT1, sT1, sT1, sT1, B2_OFF))
                k("buffer_store_dwordx4 %s, v%d, %s, s%d offen%s" % (vr(PK+16*n+c4*4, 4), T+1, sq(SWS), sT1, PSC))
        def st_c(n):
            k("s_mul_i32 s%d, s%d, 52\ns_lshr_b32 s%d, s%d, 8\ns_mul_i32 s%d, s%d, 435\ns_add_u32 s%d, s%d, s%d" % (sT1, sPQ[n], sT1, sT1, sT1, sT1, sT1, sT1, sPQ[n]))
            k("s_mul_i32 s%d, s%d, 20\ns_add_u32 s%d, s%d, s%d\ns_add_u32 s%d, s%d, 240\ns_lshl_b32 s%d, s%d, 10\ns_add_u32 s%d, s%d, %d" % (sT0, sPR[n], sT1, sT1, sT0, sT1, sT1, sT1, sT1, sT1, sT1, B2_OFF))
            for r in range(8, 16): k("v_xor_b32 v%d, 0x80008000, v%d" % (PK2+16*n+r, PK2+16*n+r))
            for part in range(2):
                for hh in range(2):
                    k("buffer_store_dwordx4 %s, v%d, %s, s%d offen offset:%d%s" % (vr(PK2+16*n+(part*2+hh)*4, 4), T+4, sq(SWS), sT1, part*256+hh*128, PSC))
        if PA:
            lds_w(0)
            k("s_waitcnt lgkmcnt(3)")
            lds_w(1)
            k("s_waitcnt lgkmcnt(7)")
            lds_c(0)
            k("s_waitcnt lgkmcnt(7)")
            lds_c(1)
            st_w(0); st_w(1)
            k("s_cmp_ge_u32 s%d, 40\ns_cbranch_scc1 L_k1_pdd\ns_waitcnt lgkmcnt(0)" % sPQ[0])
            st_c(0); st_c(1)
        else:
            k("s_cmp_eq_u32 s%d, 1\ns_cbranch_scc1 L_k1_pdC" % sTY)
            lds_w(0)
            k("s_waitcnt lgkmcnt(3)")
            lds_w(1)
            k("s_waitcnt lgkmcnt(12)")
            st_w(0)
            k("s_waitcnt lgkmcnt(0)")
            st_w(1)
            k("s_branch L_k1_pdd\nL_k1_pdC:")
            k("s_cmp_ge_u32 s%d, 40\ns_cbranch_scc1 L_k1_pdd" % sPQ[0])
            for j in range(8):
                k("ds_write_b128 v%d, %s\nds_read_b128 %s, v%d" % (T, vr(PK2+4*j, 4), vr(PK2+4*j, 4), T+3))
                if j == 6: k("s_waitcnt lgkmcnt(6)")
            st_c(0)
            k("s_waitcnt lgkmcnt(0)")
            st_c(1)
        k("L_k1_pdd:")
        if opt("pw", 0):
            k("s_mul_i32 s%d, s%d, 22528\nv_lshlrev_b32 v%d, 4, v%d" % (sT0, sC, T+3, vL))
            for j in range(22):
                k("buffer_store_dwordx4 %s, v%d, %s, s%d offen offset:%d sc1" % (vr(XR, 4), T+3, sq(SWS), sT0, (j & 3)*1024))
                if j & 3 == 3: k("s_add_u32 s%d, s%d, 4096" % (sT0, sT0))
        ev(4)
    def do_flag():
        if PA: k("s_cmp_eq_u32 s%d, 1\ns_cbranch_scc1 L_k1_npf" % sTY)
        k("s_lshl_b32 s%d, s%d, 4\ns_add_u32 s%d, s%d, s%d\ns_lshl_b32 s%d, s%d, 3\ns_add_u32 s%d, s%d, s%d\ns_lshl_b32 s%d, s%d, 1\ns_add_u32 s%d, s%d, s%d" % (sT0, sTY, sT0, sT0, sI, sT0, sT0, sT0, sT0, sJJ, sT0, sT0, sT0, sT0, sMH))
        k("s_lshl_b32 s%d, s%d, 2\ns_add_u32 s%d, s%d, 0x%x\nv_mov_b32 v%d, s%d\nv_mov_b32 v%d, s%d" % (sT0, sT0, sT0, sT0, PF_OFF, T, sT0, T+1, sNon))
        k("s_waitcnt vmcnt(0)\ns_mov_b64 exec, 1")
        k("buffer_store_dword v%d, v%d, %s, 0 offen%s\ns_mov_b64 exec, -1" % (T+1, T, sq(SWS), SC))
        k("L_k1_npf:")
    if opt("dprio", 1): k("s_setprio 3")
    if PK1:
        do_pack()
        k("s_cmp_eq_u32 s%d, 1\ns_cbranch_scc1 L_k1_nw\ns_cmp_lt_u32 s%d, 40\ns_cbranch_scc1 L_k1_w16\ns_waitcnt vmcnt(0)\nL_k1_w16:\ns_waitcnt vmcnt(16)\nL_k1_nw:" % (sTY, sPQ[0]))
        ev(9)
        do_nonce(); ev(10); do_stats(); ev(11); do_flag()
        k("s_waitcnt vmcnt(3)")
    else:
        do_nonce(); do_stats(); do_pack(); do_flag()
    stamp(k, 2)
    if opt("dprio", 1) == 1: k("s_setprio 0")
    ev(5)
    TB = 48
    TG = 196
    CT = TRB + 4*80*TRP
    k("s_cmp_eq_u32 s%d, 0\ns_cbranch_scc1 L_k1_ntb" % sTY)
    param_ab(PP, 80, 85, vT[1])
    k("v_cvt_f32_u32 v%d, v%d\nv_mul_f32 v%d, %s, v%d\nv_mul_f32 v%d, %s, v%d" % (vT[1], vG, vT[2], f32(64.0), vT[1], vT[1], f32(16.0), vT[1]))
    cpow5(r5(TG), r5(TG+5), "1.0", 90, 95, 80, 85)
    cpow5(r5(TG+15), r5(TG+20), f32(16.0), 90, 95, 80, 85)
    cpow5(r5(TG+36), r5(TG+41), f32(256.0), 90, 95, 80, 85)
    cpow5(r5(TB), r5(TB+5), "v%d" % vT[2], 90, 95, 80, 85)
    cpow5(r5(TB+10), r5(TB+15), "v%d" % vT[1], 90, 95, 80, 85)
    lre, lim, t0, t1 = PP, PP+5, 90, 95
    KRd = [TG+26+2*q for q in range(5)]
    for q in range(5): k("v_add_f32 v%d, -1.0, v%d\nv_mul_f32 v%d, v%d, v%d" % (t0+q, TG+q, t1+q, lre+q, lre+q))
    for q in range(5): k("v_fmac_f32 v%d, v%d, v%d" % (t1+q, lim+q, lim+q))
    for q in range(5): k("v_rcp_f32 v%d, v%d" % (t1+q, t1+q))
    for q in range(5): k("v_mul_f32 v%d, v%d, v%d\nv_mul_f32 v%d, v%d, v%d" % (KRd[q], t0+q, lre+q, TG+10+q, TG+5+q, lre+q))
    for q in range(5): k("v_fmac_f32 v%d, v%d, v%d\nv_fma_f32 v%d, -v%d, v%d, v%d" % (KRd[q], TG+5+q, lim+q, TG+10+q, t0+q, lim+q, TG+10+q))
    for q in range(5): k("v_add_f32 v%d, v%d, v%d" % (t1+q, t1+q, t1+q))
    for q in range(5): k("v_mul_f32 v%d, v%d, v%d\nv_mul_f32 v%d, v%d, v%d" % (KRd[q], KRd[q], t1+q, TG+10+q, TG+10+q, t1+q))
    k("L_k1_ntb:")
    PW = opt("pw2", 0)
    if PW:
        k("s_lshl_b32 s%d, s%d, 1\ns_add_u32 s%d, s%d, s%d\ns_mul_i32 s%d, s%d, 88" % (sT0, sI, sT0, sT0, sMH, sT0, sT0))
        k("s_lshr_b32 s%d, s%d, 5\ns_add_u32 s%d, s%d, s%d\ns_lshl_b32 s%d, s%d, 12" % (sT1, sCol, sT1, sT1, sT0, sT1, sT1))
        k("s_mul_i32 s%d, s%d, 5\ns_add_u32 s%d, s%d, s%d\ns_add_u32 s%d, s%d, 48\ns_lshl_b32 s%d, s%d, 12" % (sT2, sJJ, sT2, sT2, sT0, sT2, sT2, sT2, sT2))
        k("v_lshlrev_b32 v%d, 4, v%d\ns_cmp_eq_u32 s%d, 0\ns_cselect_b32 s%d, 16, 8" % (T+3, vL, sTY, sT3))
        k("L_k1_pw1:")
        k("buffer_store_dwordx4 %s, v%d, %s, s%d offen sc1\ns_sleep %d\ns_add_u32 s%d, s%d, 1024\ns_sub_u32 s%d, s%d, 1\ns_cmp_lg_u32 s%d, 0\ns_cbranch_scc1 L_k1_pw1" % (vr(XR, 4), T+3, sq(SWS), sT1, PW, sT1, sT1, sT3, sT3, sT3))
        if opt("pws", 1):
            k("s_cmp_eq_u32 s%d, 0\ns_cbranch_scc1 L_k1_pw3\ns_mov_b32 s%d, 20" % (sTY, sT3))
            k("L_k1_pw2:")
            k("buffer_store_dwordx4 %s, v%d, %s, s%d offen sc1\ns_sleep %d\ns_add_u32 s%d, s%d, 1024\ns_sub_u32 s%d, s%d, 1\ns_cmp_lg_u32 s%d, 0\ns_cbranch_scc1 L_k1_pw2" % (vr(XR, 4), T+3, sq(SWS), sT2, PW, sT2, sT2, sT3, sT3, sT3))
            k("L_k1_pw3:")
    EI = 16
    aSt, aS0, aS1 = 40, 41, 42
    k("s_lshl_b32 s%d, s%d, 1\ns_add_u32 s%d, s%d, s%d\ns_lshl_b32 s%d, s%d, 9\ns_add_u32 s%d, s%d, 0x%x" % (sT0, sI, sT0, sT0, sMH, sT0, sT0, sT0, sT0, RST_OFF))
    k("v_lshrrev_b32 v%d, 2, v%d\nv_lshlrev_b32 v%d, 4, v%d\nv_lshl_add_u32 v%d, v%d, 2, v%d" % (aSt, vM, aSt, aSt, aSt, vG, aSt))
    k("v_and_b32 v%d, 3, v%d\nv_add_u32 v%d, v%d, v%d\nv_lshl_add_u32 v%d, v%d, 3, s%d" % (aS0, vM, aSt, aSt, aS0, aSt, aSt, sT0))
    k("s_cmp_eq_u32 s%d, 1\ns_cbranch_scc1 L_k1_eaB" % sTY)
    k("s_lshl_b32 s%d, s%d, 6\ns_add_u32 s%d, s%d, s%d\ns_lshl_b32 s%d, s%d, 3\ns_add_u32 s%d, s%d, 0x%x" % (sT0, sMH, sT0, sT0, sCol, sT0, sT0, sT0, sT0, SG_OFF))
    k("v_lshl_add_u32 v%d, v%d, 3, s%d\nv_add_u32 v%d, %d, v%d" % (aS0, vL, sT0, aS1, 1536*8, aS0))
    k("s_mov_b32 s%d, %d" % (sKw, 3072*8))
    k("s_branch L_k1_ead")
    k("L_k1_eaB:")
    k("s_lshl_b32 s%d, s%d, 5\ns_add_u32 s%d, s%d, s%d\ns_lshl_b32 s%d, s%d, 3\ns_add_u32 s%d, s%d, 0x%x" % (sT0, sMH, sT0, sT0, sCol, sT0, sT0, sT0, sT0, SG_OFF))
    k("v_lshrrev_b32 v%d, 5, v%d\nv_mul_u32_u24 v%d, 1504, v%d\nv_add_u32 v%d, v%d, v%d\nv_lshl_add_u32 v%d, v%d, 3, s%d" % (aS0, vL, aS0, aS0, aS0, aS0, vL, aS0, aS0, sT0))
    k("s_mul_i32 s%d, s%d, 80\ns_mul_i32 s%d, s%d, 40\ns_add_u32 s%d, s%d, s%d\ns_lshl_b32 s%d, s%d, 3\ns_add_u32 s%d, s%d, 0x%x" % (sT0, sJJ, sT1, sMH, sT0, sT0, sT1, sT0, sT0, sT0, sT0, SB_OFF))
    k("v_lshrrev_b32 v%d, 3, v%d\nv_mul_u32_u24 v%d, 640, v%d\nv_add_u32 v%d, v%d, v%d\nv_lshl_add_u32 v%d, v%d, 3, s%d" % (aS1, vM, aS1, aS1, aS1, aS1, vSL, aS1, aS1, sT0))
    k("s_mov_b32 s%d, 64" % sKw)
    k("L_k1_ead:")
    if opt("dprio", 1) == 2: k("s_setprio 0")
    ev(6)
    k("s_lshl_b32 s%d, s%d, 2\ns_add_u32 s%d, s%d, %d\nv_mov_b32 v%d, s%d\nv_mov_b32 v%d, s%d\nv_lshlrev_b32 v43, 4, v%d" % (sT0, sMH, sT0, sT0, FLG+24, T+6, sT0, T+7, sNon, vL))
    PFW = 2 if PA else 4
    def pf_load(): return "buffer_load_dwordx%d v[44:%d], v%d, %s, s%d offen%s" % (PFW, 43+PFW, T+12, sq(SWS), sKx, SC)
    def pf_eval(ok):
        k("v_xor_b32 v%d, s%d, v44" % (T, sNon))
        for r_ in range(45, 44+PFW): k("v_xor_b32 v%d, s%d, v%d\nv_or_b32 v%d, v%d, v%d" % (T+1, sNon, r_, T, T, T+1))
        k("v_cmp_ne_u32 vcc, 0, v%d" % T)
    k("s_mul_i32 s%d, s%d, %d\ns_add_u32 s%d, s%d, 0x%x\nv_mul_u32_u24 v%d, %d, v%d\ns_mov_b32 s70, 0" % (sKx, sMH, PFW*256, sKx, sKx, PF_OFF, T+12, PFW*4, vL))
    wait_word("L_k1_eg", 20, "%d" % opt("eigate", 7), T, T+1)
    if opt("cpf", 6) & 2: code_touch("b")
    ev(7)
    k("s_mov_b32 s%d, 0" % sT3)
    k("L_k1_eil:")
    k("buffer_load_dwordx2 %s, v%d, %s, 0 offen%s" % (vr(EI, 2), aSt, sq(SWS), SC))
    for p in range(5):
        k("s_mov_b32 s%d, %d\ns_mul_i32 s%d, s%d, %d" % (sT0, p*3072*8, sT1, sKw, p))
        k("buffer_load_dwordx2 %s, v%d, %s, s%d offen%s" % (vr(EI+2+2*p, 2), aS0, sq(SWS), sT0, SC))
        k("buffer_load_dwordx2 %s, v%d, %s, s%d offen%s" % (vr(EI+12+2*p, 2), aS1, sq(SWS), sT1, SC))
    k("s_waitcnt vmcnt(0)")
    k("v_xor_b32 v%d, s%d, v%d" % (T, sNon, EI+1))
    for r_ in [EI+3+2*p for p in range(10)]: k("v_xor_b32 v%d, s%d, v%d\nv_or_b32 v%d, v%d, v%d" % (T+1, sNon, r_, T, T, T+1))
    k("v_cmp_ne_u32 vcc, 0, v%d" % T)
    k("s_add_u32 s%d, s%d, 1" % (sT3, sT3))
    k("s_cbranch_vccz L_k1_eid")
    k("s_sleep 16\ns_cmp_lt_u32 s%d, 0x40000\ns_cbranch_scc1 L_k1_eil" % sT3)
    k("L_k1_eid:")
    ev(8)
    U = T+16
    k("v_lshlrev_b32 v%d, 16, v%d\nv_and_b32 v%d, s%d, v%d\nv_rcp_f32 v%d, v%d" % (U, EI, U+1, sMASK, EI, U+2, U+1))
    k("s_mul_i32 s%d, s%d, 768\ns_add_u32 s%d, s%d, %d" % (sT0, sMH, sT0, sT0, STAT_M))
    k("v_lshl_add_u32 v%d, v%d, 2, s%d" % (U+3, vL, sT0))
    def sum5(b): k("v_add_f32 v%d, v%d, v%d\nv_add_f32 v%d, v%d, v%d\nv_add_f32 v%d, v%d, v%d\nv_add_f32 v%d, v%d, v%d" % (b, b, b+2, b+4, b+4, b+6, b, b, b+8, b, b, b+4))
    sum5(EI+2)
    k("s_lshl_b32 s%d, s%d, 9\ns_add_u32 s%d, s%d, %d" % (sT0, sMH, sT0, sT0, SFF))
    k("v_lshl_add_u32 v%d, v%d, 2, s%d" % (U+4, vL, sT0))
    for p in range(5): k("v_mov_b32 v%d, v%d" % ([TG+27, TG+29, TG+31, TG+33, TG+25][p], EI+12+2*p))
    sum5(EI+12)
    k("s_mul_i32 s%d, s%d, %d\ns_add_u32 s%d, s%d, %d\nv_add_u32 v43, s%d, v43" % (sT0, sMH, 2*80*TRP, sT0, sT0, TRB, sT0))
    k("s_mul_i32 s%d, s%d, 3072\ns_add_u32 s%d, s%d, %d\nv_lshl_add_u32 v%d, v%d, 4, s%d" % (sT0, sMH, sT0, sT0, CT, U+5, vM, sT0))
    tab_base("D", 68)
    def ei_writes():
        k("ds_write_b32 v%d, v%d\nds_write_b32 v%d, v%d offset:256\nds_write_b32 v%d, v%d offset:512" % (U+3, U, U+3, U+2, U+3, U+1))
        k("ds_write_b32 v%d, v%d" % (U+4, EI+2))
        k("s_cmp_eq_u32 s%d, 1\ns_cbranch_scc1 L_k1_ewB" % sTY)
        k("ds_write_b32 v%d, v%d offset:256" % (U+4, EI+12))
        k("s_branch L_k1_ewd")
        k("L_k1_ewB:")
        k("v_mov_b32 v%d, %d" % (T+2, DNA))
        wait_done("L_k1_tbw", "16", T+2, T+8)
        for qd in range(12): k("ds_write_b128 v%d, %s offset:%d" % (U+5, vr(TG+4*qd, 4), qd*256))
        for w2 in range(2):
            for qd in range(5): k("ds_write_b128 v43, %s offset:%d" % (vr(TB+4*qd, 4), w2*80*TRP+qd*1024))
        k("L_k1_ewd:")
        k("ds_write_b32 v%d, v%d" % (T+6, T+7))
    def pf_ok():
        k("s_lshl_b32 s%d, s%d, 2\ns_add_u32 m0, s%d, %d\nv_mov_b32 v%d, 4\ns_mov_b64 exec, 1\nglobal_load_lds_dword v%d, s[68:69]\ns_mov_b64 exec, -1" % (sT0, sMH, sT0, FLG+40, T, T))
    WM = opt("wm", 2)
    PFE = opt("pfe", 0)
    if PFE:
        wait_word("L_k1_pg2", 20, "%d" % PFE, T, T+1)
        k(pf_load() + "\ns_waitcnt vmcnt(0)")
        pf_eval(None)
        k("s_mov_b32 s70, 1\ns_cbranch_vccnz L_k1_pno\ns_mov_b32 s70, 0")
        pf_ok()
        k("L_k1_pno:")
    if WM == 0: ei_writes()
    wait_word("L_k1_pg", 36, "10", T, T+1)
    if not PFE: k(pf_load())
    if WM == 1:
        wait_word("L_k1_rg0", 16, "10", T, T+1)
        wait_word("L_k1_rg1", 20, "10", T, T+1)
    if WM: ei_writes()
    if PFE: k("s_cmp_eq_u32 s70, 0\ns_cbranch_scc1 L_k1_P2\n" + pf_load())
    k("s_mov_b32 s%d, 0\ns_branch L_k1_pfc" % sT3)
    k("L_k1_pfl:")
    k("s_sleep 12\n" + pf_load())
    k("L_k1_pfc:")
    k("s_waitcnt vmcnt(0)")
    pf_eval(None)
    k("s_add_u32 s%d, s%d, 1" % (sT3, sT3))
    k("s_cbranch_vccz L_k1_pfo")
    k("s_cmp_lt_u32 s%d, 0x40000\ns_cbranch_scc1 L_k1_pfl" % sT3)
    k("L_k1_pfo:")
    k("ds_write_b32 v%d, v%d offset:16" % (T+6, T+7))
    k("L_k1_P2:")
    if opt("p2prio", 0): k("s_setprio %d" % opt("p2prio", 0))
    stamp(k, 1)
    if TRACE:
        k("s_lshl_b32 s83, s2, 11\ns_add_u32 s83, s83, 0x%x\nv_lshl_add_u32 v12, v0, 2, s83" % (STAMP_OFF + 0x40000))
        k("global_store_dword v12, v255, %s" % sp(pWs))
    LD2 = ["", " sc1", " nt", " sc0 sc1", " sc1 nt"][opt("ld2", 1)]
    sP, sMI, sNI = 4, 5, 6
    sAb, sBb = [72, 73, 74], [75, 76, 77]
    sR, sSh = 78, 79
    SO = SX
    AR, BR, AC = 12, 76, 176
    vA = [2, 3, 4, 5]; vB0, vB1, vOut, vLd, vFl, vFa = 6, 7, 8, 9, 10, 11
    k("s_sub_u32 s%d, s%d, 4" % (sP, sW))
    k("s_and_b32 s%d, s2, 7\ns_lshr_b32 s%d, s2, 3" % (sT0, sT1))
    p2map(sMI, sNI)
    X_, D_, ST_, PFr, tA, tB, tC = AR, AR+10, AR+20, AR+24, AR+32, AR+33, AR+34
    k("v_bfe_u32 v%d, v%d, 1, 2\nv_xor_b32 v%d, v%d, v%d\nv_mul_u32_u24 v%d, 320, v%d\nv_lshl_add_u32 v%d, v%d, 4, v%d" % (tA, vM, tA, tA, vG, vOut, vM, vOut, tA, vOut))
    k("v_lshlrev_b32 v%d, 4, v%d\nv_add_u32 v%d, 4096, v%d" % (vB0, vL, vB1, vB0))
    for f in range(4): k("s_xor_b32 s%d, s%d, %d\ns_lshl_b32 s%d, s%d, 10\nv_add_u32 v%d, s%d, v%d" % (sT0, sP, f, sT0, sT0, vA[f], sT0, vB0))
    k("s_mul_i32 s%d, s%d, %d\ns_mul_i32 s%d, s%d, %d\ns_add_u32 s%d, s%d, 0x%x" % (sBb[0], sMI, 88*4096, sBb[1], sNI, 88*5120, sBb[1], sBb[1], B2_OFF))
    for g, (mul, add) in enumerate(((8, 0), (4, 32), (10, 48))):
        k("s_mul_i32 s%d, s%d, %d\ns_add_u32 s%d, s%d, %d" % (sAb[g], sP, mul, sAb[g], sAb[g], add))
    def region(dst, src):
        k("s_and_b32 s%d, s%d, 1\ns_mul_i32 s%d, s%d, 25600\ns_cmp_lt_u32 s%d, 2\ns_cselect_b32 s%d, %d, 0\ns_add_u32 s%d, s%d, s%d" % (dst, src, dst, dst, src, sT0, 2*SL, dst, dst, sT0))
    region(sR, sP)
    k("v_add_u32 v%d, s%d, v%d\nv_add_u32 v%d, s%d, v%d" % (vLd, sR, vB0, vOut, sR, vOut))
    k("s_lshl_b32 s%d, s%d, 2\ns_add_u32 s%d, s%d, s%d\ns_mul_i32 s%d, s%d, %d\ns_add_u32 s%d, s%d, 0x%x" % (sSh, sMI, sSh, sSh, sP, sSh, sSh, FLS_, sSh, sSh, FL_OFF))
    k("s_lshl_b32 s%d, s%d, 2\ns_add_u32 s%d, s%d, %d\nv_mov_b32 v%d, s%d\nv_mov_b32 v%d, %d" % (sT0, sP, sT0, sT0, FLG+64, vFa, sT0, PFr+2, FLG+32))
    steps = [(0, i) for i in (0, 2, 4, 6, 1, 3, 5, 7)] + [(1, i) for i in range(4)] + [(2, i) for i in range(10)]
    fgrp = {0: 0, 4: 3, 8: 1, 12: 2}
    ORD = opt("ord2", 0)
    pos = [0, 4, 8]
    if ORD == 1: fgrp = {0: 1, 4: 0, 8: 3, 12: 2}; pos = [4, 8, 0]
    if ORD == 2: fgrp = {0: 0, 4: 1, 8: 3, 12: 2}; pos = [0, 8, 4]
    NS = len(steps)
    sK = list(range(16, 32)) + list(range(34, 40))
    ROT = opt("rot", 0)
    k("s_lshr_b32 s%d, s2, 3\ns_and_b32 s%d, s%d, 7\ns_lshr_b32 s%d, s%d, 3" % (sT1, sT0, sT1, sT1, sT1))
    if ROT:
        k("s_add_u32 s%d, s%d, s%d\ns_and_b32 s%d, s%d, 3" % (sT2, sT0, sT1, sT2, sT2))
        k("s_mul_i32 s%d, s%d, 3\ns_add_u32 s%d, s%d, s%d\ns_cmp_ge_u32 s%d, 10\ns_cselect_b32 s%d, 10, 0\ns_sub_u32 s%d, s%d, s%d" % (sT3, sT1, sT3, sT3, sT0, sT3, sT0, sT3, sT3, sT0))
    else:
        k("s_mov_b32 s%d, 0\ns_mov_b32 s%d, 0" % (sT2, sT3))
    for j in range(4):
        k("s_add_u32 s%d, s%d, %d\ns_and_b32 s%d, s%d, 3\ns_add_u32 s%d, s%d, s%d\ns_lshl_b32 s%d, s%d, 1\ns_add_u32 s%d, s%d, s%d\ns_add_u32 s%d, s%d, 1" %
          (sT0, sT2, j, sT0, sT0, sK[pos[2]+j], sT0, sAb[1], sT0, sT0, sK[pos[0]+j], sT0, sAb[0], sK[pos[1]+j], sK[pos[0]+j]))
    for j in range(10):
        k("s_add_u32 s%d, s%d, %d\ns_cmp_ge_u32 s%d, 10\ns_cselect_b32 s%d, 10, 0\ns_sub_u32 s%d, s%d, s%d\ns_add_u32 s%d, s%d, s%d" % (sT0, sT3, j, sT0, sT1, sT0, sT0, sT1, sK[12+j], sT0, sAb[2]))
    LS = [[7, 10, 13, 16, 19], [17, 18, 19, 20, 21], [9, 12, 15, 18, 21], [13, 15, 17, 19, 21], [], [20, 21], [5, 7, 9, 11, 13], [6, 9, 12, 15, 18], [2, 4, 6, 8, 10], [3, 6, 9, 12, 15], [4, 8, 12, 16, 20]][opt("lsl", 2)]
    NA, NB = 4, 5
    vm = []
    THR = opt("thr", 0)
    def ldB(s, buf):
        g, i = steps[s]
        o = (["s_waitcnt vmcnt(%d)" % THR] if THR else []) + ["s_mul_i32 s%d, s%d, 5120\ns_add_u32 s%d, s%d, s%d" % (sT1, sK[s], sT1, sT1, sBb[1])]
        for f in range(5):
            o.append("buffer_load_dwordx4 %s, v%d, %s, s%d offen offset:%d%s" % (vr(BR+buf*20+f*4, 4), vB1 if f == 4 else vB0, sq(SWS), sT1, (f & 3)*1024, LD2))
            vm.append(("B", s))
        return o
    def ldA(s):
        g, i = steps[s]
        o = (["s_waitcnt vmcnt(%d)" % THR] if THR else []) + ["s_lshl_b32 s%d, s%d, 12\ns_add_u32 s%d, s%d, s%d" % (sT0, sK[s], sT0, sT0, sBb[0])]
        for f in range(4):
            o.append("buffer_load_dwordx4 %s, v%d, %s, s%d offen%s" % (vr(AR+(s % NA)*16+f*4, 4), vA[f], sq(SWS), sT0, LD2))
            vm.append(("A", s))
        return o
    def vwait(tags):
        idx = max(i for i, x in enumerate(vm) if x in tags)
        return min(63, len(vm)-1-idx)
    bbuf = {}
    k("L_k1_p2e:")
    k("ds_read_b64 %s, v%d offset:8\ns_waitcnt lgkmcnt(0)\nv_min_u32 v%d, v%d, v%d\nv_readfirstlane_b32 s%d, v%d" % (vr(PFr+4, 2), PFr+2, PFr+4, PFr+4, PFr+5, sT0, PFr+4))
    k("s_cmp_lg_u32 s%d, 0\ns_cbranch_scc1 L_k1_p2eo\ns_sleep 1\ns_branch L_k1_p2e\nL_k1_p2eo:" % sT0)
    streamed = [s for s in range(NS) if s not in LS]
    if opt("pfd", 0):
        k("v_mov_b32 v%d, %d" % (AR+8, DNA))
        wait_done("L_k1_p2d", "%d" % opt("pfd", 0), AR+8, AR+12)
    NPRE = opt("npre", NB)
    XB = opt("xb", 0)
    if XB:
        bbuf[0] = -1
        for x in ldB(0, -1): k(x)
        streamed = streamed[1:]
    for j in range(NB):
        bbuf[streamed[j]] = j
        if j < NPRE:
            for x in ldB(streamed[j], j): k(x)
    nextB = NB
    srd(k, SO, pOut, 2048*640*4)
    k("v_mov_b32 v%d, %d" % (AR+8, DNA))
    k("s_and_b32 s%d, s%d, 2\ns_add_u32 s%d, s%d, 18" % (sT1, sP, sT1, sT1))
    stamp(k, 2)
    k("v_mov_b32 v%d, %d\nL_k1_p2n:" % (AR+9, FLG+24))
    k("ds_read_b64 %s, v%d\ns_waitcnt lgkmcnt(0)\nv_min_u32 v%d, v%d, v%d\nv_readfirstlane_b32 s%d, v%d" % (vr(AR+12, 2), AR+9, AR+12, AR+12, AR+13, sNon, AR+12))
    k("s_cmp_lg_u32 s%d, 0\ns_cbranch_scc1 L_k1_p2no\ns_sleep 1\ns_branch L_k1_p2n\nL_k1_p2no:" % sNon)
    wait_done("L_k1_p2w", "s%d" % sT1, AR+8, AR+12)
    for j, s_ in enumerate(LS):
        g, i = steps[s_]
        if THR: k("s_waitcnt vmcnt(%d)" % THR)
        k("s_add_u32 m0, s%d, %d\ns_mul_i32 s%d, s%d, 5120\ns_add_u32 s%d, s%d, s%d" % (sR, j*5120, sT1, sK[s_], sT1, sT1, sBb[1]))
        for f in range(4):
            k("buffer_load_dwordx4 v%d, %s, s%d offen offset:%d%s lds" % (vB0, sq(SWS), sT1, f*1024, LD2)); vm.append(("L", s_))
        k("s_add_u32 m0, s%d, %d" % (sR, j*5120+4096))
        k("buffer_load_dwordx4 v%d, %s, s%d offen%s lds" % (vB1, sq(SWS), sT1, LD2)); vm.append(("L", s_))
    if opt("tb", 0):
        assert not ROT
        rest = streamed[NB:]
        tv, tj = AR+40, AR+41
        k("v_mul_u32_u24 v%d, 52, v%d\nv_lshrrev_b32 v%d, 8, v%d" % (tj, vL, tj, tj))
        k("v_mov_b32 v%d, s%d" % (tv, sK[rest[0]]))
        for j in range(1, len(rest)):
            k("v_cmp_le_u32 vcc, %d, v%d\nv_mov_b32 v%d, s%d\nv_cndmask_b32 v%d, v%d, v%d, vcc" % (j, tj, AR+42, sK[rest[j]], tv, tv, AR+42))
        k("v_mul_u32_u24 v%d, 5, v%d\nv_sub_u32 v%d, v%d, v%d" % (tj, tj, tj, vL, tj))
        k("s_lshr_b32 s%d, s2, 3\ns_and_b32 s%d, s%d, 7\ns_mul_i32 s%d, s%d, 640\ns_add_u32 s%d, s%d, s%d" % (sT0, sT0, sT0, sT0, sT0, sT0, sT0, sBb[1]))
        k("v_mul_u32_u24 v%d, 5120, v%d\nv_lshl_add_u32 v%d, v%d, 7, v%d" % (tv, tv, tv, tj, tv))
        k("buffer_load_dword v%d, v%d, %s, s%d offen%s" % (vFl, tv, sq(SWS), sT0, LD2)); vm.append(("T", 0))
    stamp(k, 3)
    k("s_add_u32 s40, s%d, s%d\ns_addc_u32 s41, s%d, 0" % (pWs, sSh, pWs+1))
    def flag_load(g):
        return "s_load_dwordx4 s[52:55], s[40:41], %d glc" % (g*16)
    def flag_check(g):
        lab = "L_k1_fc%d" % g
        k("s_mov_b32 s%d, 0\ns_branch %s_c" % (sT3, lab))
        k("%s_r:" % lab)
        k("s_sleep %d\n%s" % (opt("psl", 6), flag_load(g)))
        k("%s_c:" % lab)
        k("s_waitcnt lgkmcnt(0)")
        k("s_xor_b32 s52, s52, s%d\ns_xor_b32 s53, s53, s%d\ns_xor_b32 s54, s54, s%d\ns_xor_b32 s55, s55, s%d" % (sNon, sNon, sNon, sNon))
        k("s_add_u32 s%d, s%d, 1\ns_or_b64 s[52:53], s[52:53], s[54:55]\ns_cbranch_scc0 %s_d" % (sT3, sT3, lab))
        k("s_cmp_lt_u32 s%d, 0x100000\ns_cbranch_scc1 %s_r" % (sT3, lab))
        k("%s_d:" % lab)
        if opt("p2t", 0): k("s_memrealtime s[100:101]\ns_waitcnt lgkmcnt(0)\nv_writelane_b32 v1, s100, %d\nv_writelane_b32 v1, s%d, %d" % (32+g, sT3, 40+g))
    if opt("pd", 0): k("s_waitcnt vmcnt(0)\ns_sleep %d" % opt("pd", 0))
    k(flag_load(fgrp[0]))
    flag_check(fgrp[0])
    stamp(k, 4)
    if opt("p2clk", 0): k("s_memtime s[88:89]")
    for s_ in range(NB):
        if s_ < (2 if XB else NA):
            for x in ldA(s_): k(x)
        if s_ >= NPRE:
            for x in ldB(streamed[s_], s_): k(x)
    LEAD = {4: opt("ld3", 1), 8: opt("ld1", 2), 12: opt("ld2_", 2)}
    chkpos = {g: g - 1 - LEAD[g] for g in LEAD}
    nextA = 2 if XB else NA
    if chkpos[4] == 0: k(flag_load(fgrp[4]))
    EARLY = opt("early", 1)
    R5 = range(5)
    GOH = [BR + 40]
    def red_addr():
        GO = GOH[0]
        o = []
        for f in range(1, 4):
            o.append("s_xor_b32 s%d, s%d, %d\ns_and_b32 s%d, s%d, 1\ns_mul_i32 s%d, s%d, 25600" % (sT2, sP, f, sT1, sT2, sT1, sT1))
            o.append("s_cmp_lt_u32 s%d, 2\ns_cselect_b32 s%d, %d, 0\ns_add_u32 s%d, s%d, s%d" % (sT2, sT0, 2*SL, sT1, sT1, sT0))
            o.append("v_add_u32 v%d, s%d, v%d" % (vA[f], sT1, vB0))
        o.append("s_mul_i32 s%d, s%d, %d\ns_add_u32 s%d, s%d, %d\nv_add_u32 v%d, s%d, v%d" % (sT1, sP, 80*TRP, sT1, sT1, TRB, vA[0], sT1, vB0))
        o.append("v_lshrrev_b32 v%d, 4, v%d" % (vFl, vB0))
        o.append("s_lshl_b32 s%d, s%d, 6\ns_lshl_b32 s%d, s%d, 2\ns_add_u32 s%d, s%d, s%d" % (sT0, sMI, sT1, sP, sT0, sT0, sT1))
        o.append("s_mul_i32 s%d, s%d, 2560\ns_mul_i32 s%d, s%d, 320\ns_add_u32 s%d, s%d, s%d" % (sT0, sT0, sT1, sNI, sT3, sT0, sT1))
        e_, r_, q_, t_ = GO, GO+5, GO+10, GO+15
        for it in R5: o.append("v_add_u32 v%d, %d, v%d" % (e_+it, it*64, vFl))
        for it in R5: o.append("v_mul_u32_u24 v%d, 205, v%d" % (r_+it, e_+it))
        for it in R5: o.append("v_lshrrev_b32 v%d, 12, v%d" % (r_+it, r_+it))
        for it in R5: o += ["v_mul_u32_u24 v%d, 20, v%d" % (q_+it, r_+it), "v_bfe_u32 v%d, v%d, 1, 2" % (t_+it, r_+it)]
        for it in R5: o.append("v_sub_u32 v%d, v%d, v%d" % (q_+it, e_+it, q_+it))
        for it in R5: o += ["v_xor_b32 v%d, v%d, v%d" % (q_+it, q_+it, t_+it), "v_lshrrev_b32 v%d, 2, v%d" % (t_+it, r_+it)]
        for it in R5: o.append("v_mad_u32_u24 v%d, v%d, 12, v%d" % (r_+it, t_+it, r_+it))
        for it in R5: o.append("v_mul_u32_u24 v%d, 2560, v%d" % (r_+it, r_+it))
        for it in R5: o.append("v_lshl_add_u32 v%d, v%d, 4, v%d" % (GO+it, q_+it, r_+it))
        return o
    deadB = []
    pend = []
    for s_ in range(NS):
        fill = pend; pend = []
        need = [("A", s_)] + ([("B", s_)] if s_ not in LS else [])
        CSM_ = opt("csm", 1)
        if (CSM_ & 1 and s_ == 0) or (CSM_ & 2 and 0 < s_ < opt("csn", 12)):
            lab = "L_k1_cs%d" % s_
            if s_ == 0: k("%s_r:\nds_read_b32 v%d, v%d" % (lab, vFl, vFa))
            else: k("s_branch %s_c\n%s_r:\ns_sleep 1\nds_read_b32 v%d, v%d\n%s_c:" % (lab, lab, vFl, vFa, lab))
            k("s_waitcnt lgkmcnt(0)\nv_readfirstlane_b32 s%d, v%d\ns_cmp_eq_u32 s%d, 0\ns_cbranch_scc1 %s_r" % (sT2, vFl, sT2, lab))
        if CSM_ & 2 and s_+1 < opt("csn", 12): fill = fill + ["ds_read_b32 v%d, v%d" % (vFl, vFa)]
        mf_ = []
        for f in range(4):
            for cb in range(5):
                c = AC + (f*5+cb)*4
                mf_.append("v_mfma_f32_16x16x32_bf16 %s, %s, %s, %s" % (vr(c, 4), vr(BR+bbuf[s_]*20+cb*4, 4), vr(AR+(s_ % NA)*16+f*4, 4), vr(c, 4) if s_ else "0"))
        if opt("ilv", 1):
            nf = sum(1 for x in fill if x.startswith("buffer_load"))
            k("s_waitcnt vmcnt(%d)%s" % (max(0, vwait(need)-nf), " lgkmcnt(0)" if s_ in LS else ""))
            if opt("p2t", 0): k("s_memrealtime s[100:101]")
            if s_ == NS-1 and opt("ovl", 1):
                assert not fill
                fill = ["s_nop 0"]*5 + ["ds_write_b128 v%d, %s offset:%d" % (vOut, vr(AC+(f*5+cb)*4, 4), f*5120+cb*64) for f in range(3) for cb in range(5)]
            if EARLY and s_ in (NS-3, NS-2):
                if s_ == NS-3:
                    cand = list(deadB)
                    GOH[0] = BR + cand[0]*20
                    ra_ = red_addr()
                half = ra_[:36] if s_ == NS-3 else ra_[36:]
                interleave(k, mf_, fill + half, per=2)
            else: interleave(k, mf_, fill, per=1)
            if opt("p2t", 0): k("s_waitcnt lgkmcnt(0)\nv_writelane_b32 v1, s100, %d" % s_)
        else:
            for x in fill: k(x)
            k("s_waitcnt vmcnt(%d)%s" % (vwait(need), " lgkmcnt(0)" if s_ in LS else ""))
            if opt("p2t", 0): k("s_memrealtime s[100:101]")
            for x in mf_: k(x)
            if opt("p2t", 0): k("s_waitcnt lgkmcnt(0)\nv_writelane_b32 v1, s100, %d" % s_)
        for g_ in chkpos:
            if chkpos[g_] == s_:
                if fgrp[g_] == 2: stamp(k, 0)
                if fgrp[g_] == 2 and opt("p2clk", 0): k("s_memtime s[90:91]")
                flag_check(fgrp[g_])
                if fgrp[g_] == 2: stamp(k, 7)
        while nextA < NS and nextA <= s_ + NA and all(not (g_ <= nextA and chkpos[g_] > s_) for g_ in chkpos):
            pend += ldA(nextA); nextA += 1
        fb = bbuf[s_]
        if fb == -1: pass
        elif s_+2 in LS:
            bbuf[s_+2] = fb
            j = LS.index(s_+2)
            pend.append("s_waitcnt vmcnt(%d)" % vwait([("L", s_+2)]))
            for f in range(5): pend.append("ds_read_b128 %s, v%d offset:%d" % (vr(BR+fb*20+f*4, 4), vLd, j*5120+f*1024))
        elif nextB < len(streamed):
            bbuf[streamed[nextB]] = fb
            pend += ldB(streamed[nextB], fb); nextB += 1
        else: deadB.append(fb)
        for g_ in chkpos:
            if chkpos[g_] == s_+1: pend.insert(0, flag_load(fgrp[g_]))
    stamp(k, 5)
    OSC = ["", " sc1", " nt", " sc0 sc1"][opt("osc", 1)]
    wr_last = ["ds_write_b128 v%d, %s offset:%d" % (vOut, vr(AC+(f*5+cb)*4, 4), f*5120+cb*64) for f in ((3,) if opt("ovl", 1) else (1, 2, 3, 0)) for cb in range(5)]
    for x in wr_last: k(x)
    if not EARLY:
        for x in red_addr(): k(x)
    k("s_waitcnt lgkmcnt(0)\ns_barrier")
    RB = [r for r in range(AR, 236, 20) if not (r < GOH[0]+20 and GOH[0] < r+20)][:5]
    for it in R5:
        for f in range(5):
            a_, off = (vA[f], f*5120) if f < 4 else (vLd, 0)
            if f == 0: off = 0
            k("ds_read_b128 %s, v%d offset:%d" % (vr(RB[it]+f*4, 4), a_, off+it*1024))
        if it == 2: k("s_waitcnt lgkmcnt(5)")
    for it in R5:
        k("s_waitcnt lgkmcnt(%d)" % min(15, 20-5*it))
        q = RB[it]
        for h in range(0, 4, 2):
            k("v_pk_add_f32 %s, %s, %s\nv_pk_add_f32 %s, %s, %s" % (vr(q+h, 2), vr(q+h, 2), vr(q+4+h, 2), vr(q+8+h, 2), vr(q+8+h, 2), vr(q+12+h, 2)))
        for h in range(0, 4, 2): k("v_pk_add_f32 %s, %s, %s" % (vr(q+h, 2), vr(q+h, 2), vr(q+16+h, 2)))
        for h in range(0, 4, 2): k("v_pk_add_f32 %s, %s, %s" % (vr(q+h, 2), vr(q+h, 2), vr(q+8+h, 2)))
        k("buffer_store_dwordx4 %s, v%d, %s, s%d offen%s" % (vr(q, 4), GOH[0]+it, sq(SO), sT3, OSC))
    stamp(k, 6)
    if opt("p2t", 0):
        k("s_lshl_b32 s83, s2, 11\ns_add_u32 s83, s83, 0x%x\nv_lshl_add_u32 v12, v0, 2, s83" % (STAMP_OFF + 0x40000))
        k("global_store_dword v12, v1, %s" % sp(pWs))
    stamp_out(k, 0, 8, pWs, 76)
    k("s_endpgm")

    k("L_k1_C:")
    decode()
    k("v_mov_b32 v%d, 0\nv_lshlrev_b32 v%d, 2, v%d\nv_add_u32 v%d, %d, v%d\nds_write2_b32 v%d, v%d, v%d offset1:16" % (vT[1], vT[2], vM, vT[2], FLG, vT[2], vT[2], vT[1], vT[1]))
    k("s_lshl_b32 s%d, s%d, 8\ns_add_u32 s%d, s%d, %d\nv_mov_b32 v%d, s%d\nds_write_b32 v%d, v%d\ns_mov_b32 m0, s%d" % (sT0, sW, sT0, sT0, DNA, vT[2], sT0, vT[2], vT[1], sT0))
    tab_base("C", 56)
    k("s_waitcnt lgkmcnt(0)\ns_barrier")
    k("s_setprio %d" % (2 if opt("dprio", 1) else 3))
    k("s_mov_b64 s[48:49], %s\ns_mov_b64 s[50:51], %s\ns_mov_b64 s[52:53], %s" % (sp(pX), sp(pD), sp(pWs)))
    aX = [12, 13]; aW = [14, 15, 16, 17]
    XS = [20, 36]
    WR = 52
    ACC = 84
    k("v_lshrrev_b32 v%d, 1, v%d\nv_xor_b32 v%d, v%d, v%d\nv_lshlrev_b32 v%d, 4, v%d" % (vT[0], vM, vT[0], vT[0], vG, vT[0], vT[0]))
    k("v_lshl_add_u32 v%d, v%d, 7, v%d" % (vT[5], vM, vT[0]))
    k("s_lshl_b32 s%d, s%d, 13" % (sT0, sMH))
    k("v_add_u32 v%d, s%d, v%d\nv_xor_b32 v%d, 64, v%d" % (aX[0], sT0, vT[5], aX[1], aX[0]))
    k("v_lshrrev_b32 v%d, 2, v%d\nv_lshl_add_u32 v%d, v%d, 3, v%d\nv_lshlrev_b32 v%d, 7, v%d" % (vT[0], vM, vT[0], vG, vT[0], vT[0], vT[0]))
    k("v_and_b32 v%d, 1, v%d\nv_lshlrev_b32 v%d, 1, v%d\nv_lshrrev_b32 v%d, 3, v%d\nv_or_b32 v%d, v%d, v%d" % (vT[1], vG, vT[1], vT[1], vT[2], vM, vT[1], vT[1], vT[2]))
    k("v_lshl_add_u32 v%d, v%d, 5, v%d" % (vT[0], vT[1], vT[0]))
    k("v_and_b32 v%d, 3, v%d\nv_lshl_add_u32 v%d, v%d, 3, v%d\nv_add_u32 v%d, 16384, v%d" % (vT[1], vM, vT[0], vT[1], vT[0], vT[0], vT[0]))
    k("s_lshl_b32 s%d, s%d, 1\ns_add_u32 s%d, s%d, s%d" % (sC, sI, sC, sC, sMH))
    k("s_mov_b32 s%d, 0\ns_mov_b32 s%d, 0" % (sIt, sRd))
    k("s_cmp_eq_u32 s%d, 1\ns_cbranch_scc1 L_k1_CB" % sTY)

    def c_loop(tag, frags, R, D, WR, addr_regs, post):
        n = len(frags); N = 2*n
        assert N % R == 0
        def wreg(p): return WR + (p % R)*4
        def rdW(p): return frags[p % n][0]((p % N)//n, wreg(p))
        def rdX(h): return ["ds_read_b128 %s, v%d offset:%d" % (vr(XS[h]+4*b, 4), aX[h], b*2048) for b in range(4)]
        def mf(p): return [frags[p % n][1](b, XS[(p % N)//n]+4*b, wreg(p)) for b in range(4)]
        adv = ["s_mov_b32 s%d, %d\ns_add_u32 s%d, s%d, 1\ns_cmp_eq_u32 s%d, 3\ns_cselect_b32 s%d, 0, s%d\ns_cselect_b32 s%d, %d, s%d" % (sDelta, SL, sRd, sRd, sRd, sRd, sRd, sDelta, (-2*SL) & 0xffffffff, sDelta)]
        adv += ["v_add_u32 v%d, s%d, v%d" % (r, sDelta, r) for r in addr_regs]
        vFl, vFa, vDa, vDv = 18, vT[1], vT[2], vT[3]
        sF = sA
        import re as _re
        FLS = N - opt("fl", 3)
        def build():
            mfs = []; gaps = [[] for _ in range(4*N)]
            for j in range(N):
                loads = [("ld", x, ("W", j)) for x in rdW(j)]
                if j == 0: loads = [("ld", x, ("X0", b)) for b, x in enumerate(rdX(0)[:2])] + loads
                if j == 1: loads = [("ld", x, ("X0", b+2)) for b, x in enumerate(rdX(0)[2:])] + loads
                if D <= j < D+4: loads += [("ld", rdX(1)[j-D], ("X1", j-D))]
                if j == FLS: loads += [("ld", "ds_read_b64 %s, v%d " % (vr(vFl, 2), vFa), ("F", 0))]
                p = j - D
                ms = mf(p % N)
                for b in range(4):
                    need = [("W", p % N)] + [("X%d" % ((p % N)//n), bb) for bb in range(4)]
                    mfs.append(("mf", ms[b], (need, p < 0)))
                    if b < 3:
                        if loads: gaps[j*4+b].append(loads.pop(0))
                    else: gaps[j*4+b] += loads
            def place(e, lo, hi=4*N-1):
                for cap in (0, 1, 2, 3):
                    for g in range(lo, hi+1):
                        if len(gaps[g]) + (1 if g % 4 == 3 else 0) <= cap:
                            gaps[g].append(e); return g
                raise Exception
            g = 4*D
            def place_s(txt, lo):
                for g in range(lo, 4*N):
                    if len(gaps[g]) + (1 if g % 4 == 3 else 0) <= 1:
                        gaps[g].append(("x", txt, None)); return g
            for txt in ("s_add_u32 s%d, s%d, 1" % (sRd, sRd), "s_cmp_eq_u32 s%d, 3" % sRd, "s_cselect_b32 s%d, s14, s15" % sDelta, "s_cselect_b32 s%d, 0, s%d" % (sRd, sRd), "s_add_u32 s%d, s%d, 1" % (sIt, sIt)):
                g = place_s(txt, g) + 1
            gd = g
            mid = max(n-1, D+3)
            DL = opt("dl", 2)
            fl_ = "global_load_lds_dword v%d, s[56:57]" % vDv
            place_s("v_add_u32 v%d, 4, v%d" % (vDv, vDv), gd)
            gm = place(("use", fl_, ([("W", n-1), ("X1", 3)], False)), 4*(mid+DL)+2)
            place(("x", "v_add_u32 v%d, 4, v%d" % (vDv, vDv), None), gm+1, 4*N-5)
            place(("use", fl_, ([("W", N-1)], True)), 4*(DL-1)+2, 4*D-1)
            g1 = place(("use", "v_min_u32 v%d, v%d, v%d" % (vFl, vFl, vFl+1), ([("F", 0)], False)), 4*(N-2)+2, 4*N-4)
            gaps[g1+1].append(("x", "v_readfirstlane_b32 s%d, v%d" % (sF, vFl), None))
            gaps[4*N-2].append(("x", "s_cmp_gt_u32 s%d, s%d" % (sF, sIt), None))
            for r in addr_regs:
                last = max(g for g in range(4*N) for x in gaps[g] if x[0] == "ld" and _re.search(r", v%d " % r, x[1]+" "))
                place(("x", "v_add_u32 v%d, s%d, v%d" % (r, sDelta, r), None), min(max(last+1, gd), 4*N-1))
            seq = []
            for m_, gp in zip(mfs, gaps): seq += [m_] + gp
            return seq
        def emit(seq, prev):
            issued = [(t, True) for t in prev]
            cur = 99
            for kind, text, tg in seq:
                if kind == "ld": issued.append((tg, False)); cur += 1
                elif kind == "lab": cur = 99
                elif kind in ("mf", "use"):
                    w = 15
                    for t in tg[0]:
                        idx = max(i for i, x in enumerate(issued) if x == (t, tg[1]))
                        w = min(w, len(issued)-1-idx)
                    if w < cur:
                        k("s_waitcnt lgkmcnt(%d)" % w); cur = w
                k(text)
        L = "L_k1_cl" + tag
        k("v_mov_b32 v%d, %d\nv_mov_b32 v%d, 0\ns_mov_b32 s14, %d\ns_mov_b32 s15, %d" % (vFa, FLG+16, vDv, (-2*SL) & 0xffffffff, SL))
        s2 = build()
        allld = [x[2] for x in s2 if x[0] == "ld"]
        idx2 = next(i for i, x in enumerate(s2) if x[0] == "mf" and not x[2][1])
        if opt("clk", 0): k("s_mov_b32 s98, 0")
        k("%s_sp:" % L)
        if opt("clk", 0): k("s_cmp_ge_u32 s%d, 6\ns_addc_u32 s98, s98, 0" % sIt)
        k("ds_read_b64 %s, v%d\ns_waitcnt lgkmcnt(0)\nv_min_u32 v%d, v%d, v%d\nv_readfirstlane_b32 s%d, v%d" % (vr(vFl, 2), vFa, vFl, vFl, vFl+1, sF, vFl))
        if opt("spsl", 0): k("s_cmp_gt_u32 s%d, s%d\ns_cbranch_scc1 %s_spo\ns_sleep %d\ns_branch %s_sp\n%s_spo:" % (sF, sIt, L, opt("spsl", 0), L, L))
        else: k("s_cmp_gt_u32 s%d, s%d\ns_cbranch_scc0 %s_sp" % (sF, sIt, L))
        k("s_cmp_lg_u32 s%d, 0\ns_cbranch_scc1 %s" % (sIt, L))
        stamp(k, 5)
        for x in s2[:idx2]:
            if x[0] == "ld": k(x[1])
        k("s_branch %s_mid" % L)
        k(".p2align 6")
        k("%s:" % L)
        trace(sIt, 4, 1)
        if opt("clk", 0):
            k("s_cmp_lg_u32 s%d, 5\ns_cbranch_scc1 %s_nc\ns_memrealtime s[84:85]\ns_memtime s[90:91]\n%s_nc:" % (sIt, L, L))
        s2 = s2[:idx2] + [("lab", "%s_mid:" % L, None)] + s2[idx2:]
        emit(s2, allld)
        if TRACE:
            trace(sIt, 4, 0)
            k("s_cmp_gt_u32 s%d, s%d" % (sF, sIt))
        k("s_cbranch_scc1 %s" % L)
        k("s_cmp_lt_u32 s%d, 10\ns_cbranch_scc1 %s_sp" % (sIt, L))
        if opt("cprio", 3) != 3: k("s_setprio %d" % opt("cprio", 3))
        if opt("clk", 0): k("s_memrealtime s[94:95]\ns_memtime s[96:97]")
        k("ds_read_b64 %s, v%d offset:8" % (vr(vFl, 2), vFa))
        k("s_waitcnt lgkmcnt(6)")
        for x in mf(N-D): k(x)
        k("s_waitcnt lgkmcnt(0)\nglobal_load_lds_dword v%d, s[56:57]" % vDv)
        k("s_branch %s_ec" % L)
        k("%s_es:" % L)
        k("ds_read_b64 %s, v%d offset:8" % (vr(vFl, 2), vFa))
        k("%s_ec:" % L)
        k("s_waitcnt lgkmcnt(0)")
        k("v_min_u32 v%d, v%d, v%d\nv_readfirstlane_b32 s%d, v%d" % (vFl, vFl, vFl+1, sNon, vFl))
        k("s_cmp_eq_u32 s%d, 0\ns_cbranch_scc1 %s_es" % (sNon, L))
        tail = []
        for p in range(N-D+1, N): tail += mf(p)
        interleave(k, tail, post(), lead=2, per=1)

    c0 = -2*math.sqrt(2/math.pi)*LOG2E
    def ffn_epilogue(ACCF, ncb, S4, Mb, RSb, Sb, T, O, K0, vSt, blocks, defer=None):
        for bi, (b, pr_) in enumerate(blocks):
            sel = b & 1
            bc = lambda base: vr(base + (b & ~1), 2)
            os0 = " op_sel:[%d,0,0] op_sel_hi:[%d,1,1]" % (sel, sel)
            items = [(cb, hh) for cb in (2*pr_, 2*pr_+1) for hh in range(2)]
            G = lambda cb, hh: ACCF + (cb*4+b)*4 + 2*hh
            U = lambda cb, hh: ACCF + ((ncb+cb)*4+b)*4 + 2*hh
            Tm = lambda cb, hh: T + (cb & 1)*4 + 2*hh
            for cb, hh in items: k("v_pk_fma_f32 %s, %s, %s, %s%s neg_lo:[1,0,0] neg_hi:[1,0,0]" % (vr(G(cb,hh),2), bc(Mb), vr(S4+cb*4+2*hh,2), vr(G(cb,hh),2), os0))
            for cb, hh in items: k("v_pk_mul_f32 %s, %s, %s op_sel:[%d,0] op_sel_hi:[%d,1]" % (vr(G(cb,hh),2), bc(RSb), vr(G(cb,hh),2), sel, sel))
            for cb, hh in items: k("v_pk_mul_f32 %s, %s, %s" % (vr(Tm(cb,hh),2), vr(G(cb,hh),2), vr(G(cb,hh),2)))
            for cb, hh in items: k("v_pk_fma_f32 %s, %s, %s, %s op_sel:[0,0,1] op_sel_hi:[1,0,1]" % (vr(Tm(cb,hh),2), vr(Tm(cb,hh),2), vr(K0,2), vr(K0,2)))
            for cb, hh in items: k("v_pk_mul_f32 %s, %s, %s" % (vr(Tm(cb,hh),2), vr(Tm(cb,hh),2), vr(G(cb,hh),2)))
            for cb, hh in items:
                k("v_exp_f32 v%d, v%d\nv_exp_f32 v%d, v%d" % (Tm(cb,hh), Tm(cb,hh), Tm(cb,hh)+1, Tm(cb,hh)+1))
                k("v_pk_fma_f32 %s, %s, %s, %s%s neg_lo:[1,0,0] neg_hi:[1,0,0]" % (vr(U(cb,hh),2), bc(Mb), vr(S4+(ncb+cb)*4+2*hh,2), vr(U(cb,hh),2), os0))
            for cb, hh in items: k("v_pk_fma_f32 %s, %s, %s, %s op_sel:[0,%d,%d] op_sel_hi:[1,%d,%d]" % (vr(Tm(cb,hh),2), vr(Tm(cb,hh),2), bc(Sb), bc(Sb), sel, sel, sel, sel))
            for cb, hh in items:
                k("v_rcp_f32 v%d, v%d\nv_rcp_f32 v%d, v%d" % (Tm(cb,hh), Tm(cb,hh), Tm(cb,hh)+1, Tm(cb,hh)+1))
                k("v_pk_mul_f32 %s, %s, %s" % (vr(G(cb,hh),2), vr(G(cb,hh),2), vr(U(cb,hh),2)))
            for cb, hh in items: k("v_pk_mul_f32 %s, %s, %s" % (vr(G(cb,hh),2), vr(G(cb,hh),2), vr(Tm(cb,hh),2)))
            Ob = O + (bi & 1)*4 if defer is None else O[bi]
            for j_, (cb, hh) in enumerate(items): k("v_cvt_pk_bf16_f32 v%d, v%d, v%d" % (Ob+j_, G(cb,hh), G(cb,hh)+1))
            if pr_: k("s_add_u32 s%d, s%d, 4096" % (sT0, sKS))
            st_ = "buffer_store_dwordx4 %s, v%d, %s, s%d offen offset:%d%s" % (vr(Ob, 4), vSt, sq(SWS), sT0 if pr_ else sKS, b*1024, S1)
            if defer is None: k(st_)
            else: defer.append(st_)

    def a2_flag(group, nwait, va, vv):
        k("s_lshl_b32 s%d, s%d, 2\ns_lshr_b32 s%d, s%d, 1\ns_add_u32 s%d, s%d, s%d\ns_mul_i32 s%d, s%d, %d" % (sT0, sC, sT1, sJJ, sT0, sT0, sT1, sT0, sT0, FLS_))
        k("s_and_b32 s%d, s%d, 1\ns_lshl_b32 s%d, s%d, 1\ns_add_u32 s%d, s%d, s%d\ns_mul_i32 s%d, s%d, %d\ns_add_u32 s%d, s%d, s%d\ns_add_u32 s%d, s%d, 0x%x" % (sT1, sJJ, sT1, sT1, sT1, sT1, sNH, sT1, sT1, FSP, sT0, sT0, sT1, sT0, sT0, FL_OFF + group*FGS))
        k("v_mov_b32 v%d, s%d\nv_mov_b32 v%d, s%d" % (va, sT0, vv, sNon))
        k("s_waitcnt vmcnt(%d)\ns_mov_b64 exec, 1" % nwait)
        k("buffer_store_dword v%d, v%d, %s, 0 offen%s\ns_mov_b64 exec, -1" % (vv, va, sq(SWS), SC))

    CSM = opt("csm", 1)
    def cs_set(val, va, vv):
        k("s_lshl_b32 s%d, s%d, 2\ns_add_u32 s%d, s%d, %d\nv_mov_b32 v%d, s%d\nv_mov_b32 v%d, %d\nds_write_b32 v%d, v%d" % (sT0, sW, sT0, sT0, FLG+64, va, sT0, vv, val, va, vv))
    def base_loads(R):
        k("s_and_b32 s%d, s2, 7\ns_lshr_b32 s%d, s2, 3" % (sT0, sT1))
        p2map(sT3, sT0)
        k("s_mul_i32 s%d, s%d, 160" % (sT0, sT0))
        k("s_lshl_b32 s%d, s%d, 6\ns_lshl_b32 s%d, s%d, 2\ns_add_u32 s%d, s%d, s%d" % (sT3, sT3, sT1, sW, sT3, sT3, sT1))
        R5 = range(5)
        e_, r_, q_, t_ = R+45, R+30, R+35, R+40
        for it in R5: k("v_add_u32 v%d, %d, v%d" % (e_+it, it*64, vL))
        for it in R5: k("v_mul_u32_u24 v%d, 205, v%d" % (r_+it, e_+it))
        for it in R5: k("v_lshrrev_b32 v%d, 12, v%d" % (r_+it, r_+it))
        for it in R5: k("v_mul_u32_u24 v%d, 20, v%d\nv_bfe_u32 v%d, v%d, 1, 2" % (q_+it, r_+it, t_+it, r_+it))
        for it in R5: k("v_sub_u32 v%d, v%d, v%d" % (q_+it, e_+it, q_+it))
        for it in R5: k("v_xor_b32 v%d, v%d, v%d\nv_lshrrev_b32 v%d, 2, v%d" % (q_+it, q_+it, t_+it, t_+it, r_+it))
        for it in R5: k("v_mad_u32_u24 v%d, v%d, 12, v%d\nv_lshl_add_u32 v%d, v%d, 3, s%d" % (r_+it, t_+it, r_+it, q_+it, q_+it, sT0))
        for it in R5: k("v_add_u32 v%d, s%d, v%d" % (r_+it, sT3, r_+it))
        for it in R5: k("v_mul_u32_u24 v%d, 1280, v%d\nv_lshlrev_b32 v%d, 3, v%d" % (t_+it, r_+it, r_+it, r_+it))
        for it in R5: k("v_add_u32 v%d, v%d, v%d" % (t_+it, t_+it, q_+it))
        k("s_mov_b32 s%d, 0x%x" % (sKx, RST_OFF))
        for it in R5:
            k("global_load_dwordx2 %s, v%d, %s" % (vr(R+2*it, 2), t_+it, sp(48)))
            k("global_load_dwordx2 %s, v%d, %s" % (vr(R+10+2*it, 2), q_+it, sp(50)))
        k("s_mov_b32 s%d, 0\nL_k1_bt:" % sT3)
        for it in R5: k("buffer_load_dwordx2 %s, v%d, %s, s%d offen%s" % (vr(R+20+2*it, 2), r_+it, sq(SWS), sKx, SC))
    def base_compute(R):
        k("s_setprio 0")
        X4, D4, T4 = R+52, R+72, R+92
        k("s_waitcnt vmcnt(0)\nv_xor_b32 v%d, s%d, v%d" % (T4, sNon, R+21))
        for it in range(1, 5): k("v_xor_b32 v%d, s%d, v%d\nv_or_b32 v%d, v%d, v%d" % (T4+1, sNon, R+21+2*it, T4, T4, T4+1))
        k("v_cmp_ne_u32 vcc, 0, v%d\ns_add_u32 s%d, s%d, 1\ns_cbranch_vccz L_k1_bto" % (T4, sT3, sT3))
        k("s_sleep 8\ns_cmp_lt_u32 s%d, 0x40000\ns_cbranch_scc1 L_k1_bt\nL_k1_bto:" % sT3)
        k("s_mul_i32 s%d, s%d, %d\ns_add_u32 s%d, s%d, %d\nv_lshl_add_u32 v%d, v%d, 4, s%d\nv_mov_b32 v%d, %d" % (sT0, sW, 80*TRP, sT0, sT0, TRB, R+50, vL, sT0, R+51, DNA))
        wait_done("L_k1_bw%d" % R, "16", R+51, R+44)
        for it in range(5): k("v_and_b32 v%d, s%d, v%d\nv_lshlrev_b32 v%d, 16, v%d" % (R+21+2*it, sMASK, R+20+2*it, R+20+2*it, R+20+2*it))
        for it in range(5): k("v_rcp_f32 v%d, v%d" % (R+21+2*it, R+21+2*it))
        for d in range(10): k("v_lshlrev_b32 v%d, 16, v%d\nv_and_b32 v%d, s%d, v%d\nv_lshlrev_b32 v%d, 16, v%d\nv_and_b32 v%d, s%d, v%d" % (X4+2*d, R+d, X4+2*d+1, sMASK, R+d, D4+2*d, R+10+d, D4+2*d+1, sMASK, R+10+d))
        def rnd():
            if not opt("bexact", 1): return
            for h in range(10): k("v_cvt_pk_bf16_f32 v%d, v%d, v%d" % (R+30+h, T4+2*h, T4+2*h+1))
            for h in range(10): k("v_lshlrev_b32 v%d, 16, v%d\nv_and_b32 v%d, s%d, v%d" % (T4+2*h, R+30+h, T4+2*h+1, sMASK, R+30+h))
        for r in range(20): k("v_sub_f32 v%d, v%d, v%d" % (T4+r, X4+r, R+20+2*(r >> 2)))
        rnd()
        for r in range(20): k("v_mul_f32 v%d, v%d, v%d" % (T4+r, T4+r, R+21+2*(r >> 2)))
        rnd()
        for r in range(20): k("v_mul_f32 v%d, v%d, v%d" % (T4+r, T4+r, D4+r))
        rnd()
        for r in range(20): k("v_add_f32 v%d, v%d, v%d" % (T4+r, T4+r, X4+r))
        for it in range(5): k("ds_write_b128 v%d, %s offset:%d" % (R+50, vr(T4+4*it, 4), it*1024))
        k("s_waitcnt lgkmcnt(0)")

    def ffn_frag(ACCF, idx, areg, gu):
        rd = lambda h, reg: ["ds_read_b64_tr_b16 %s, v%d offset:%d" % (vr(reg+2*jx, 2), areg, h*4096+jx*512+gu*8192) for jx in range(2)]
        mf = lambda b, x, w: "v_mfma_f32_16x16x32_bf16 %s, %s, %s, %s" % (vr(ACCF+(idx*4+b)*4, 4), vr(w, 4), vr(x, 4), vr(ACCF+(idx*4+b)*4, 4))
        return (rd, mf)

    k("s_lshl_b32 s%d, s%d, 14" % (sT0, sNH))
    k("v_add_u32 v%d, s%d, v%d" % (aW[0], sT0, vT[0]))
    for c in range(1, 4): k("v_xor_b32 v%d, %d, v%d" % (aW[c], 32*c, aW[0]))
    k("s_lshr_b32 s%d, s%d, 5\ns_lshl_b32 s%d, s%d, 1\ns_add_u32 s%d, s%d, s%d\ns_mul_i32 s%d, s%d, 88\ns_add_u32 s%d, s%d, s%d\ns_lshl_b32 s%d, s%d, 12" % (sT0, sCol, sT1, sNH, sT0, sT0, sT1, sT1, sC, sT0, sT0, sT1, sKS, sT0))
    for r in range(0, 128, 2): k("v_mov_b64 v[%d:%d], 0" % (ACC+r, ACC+r+1))
    srd(k, SWS, pWs, WS_NREC)
    E = 212
    S4 = E; Mb, RSb, Sb = XS[0], XS[0]+4, XS[0]+8; K0 = XS[0]+12
    def postA():
        o = ["s_lshl_b32 s%d, s%d, 9\ns_add_u32 s%d, s%d, %d\nv_lshl_add_u32 v%d, v%d, 4, s%d" % (sT0, sNH, sT0, sT0, SFF, vT[1], vG, sT0),
             "s_mul_i32 s%d, s%d, 768\ns_add_u32 s%d, s%d, %d\nv_lshl_add_u32 v%d, v%d, 2, s%d" % (sT0, sMH, sT0, sT0, STAT_M, vT[2], vM, sT0)]
        for b in range(0, 4, 2):
            for a, off in ((Mb, 0), (RSb, 64), (Sb, 128)):
                o.append("ds_read2_b32 %s, v%d offset0:%d offset1:%d" % (vr(a+b, 2), vT[2], off+b*16, off+b*16+16))
        for j in range(8): o.append("ds_read_b128 %s, v%d offset:%d" % (vr(S4+4*j, 4), vT[1], j*64))
        o += ["v_lshlrev_b32 v%d, 4, v%d" % (vT[3], vL), "v_mov_b32 v%d, %s\nv_mov_b32 v%d, %s" % (K0, f32(c0*0.044715), K0+1, f32(c0))]
        return o
    fr = []
    for cb in range(4):
        for gu in range(2): fr.append(ffn_frag(ACC, gu*4+cb, aW[cb], gu))
    c_loop("A", fr, 8, opt("da", 5), WR, aX + aW, postA)
    stamp(k, 1)
    k("s_waitcnt lgkmcnt(0)")
    blk = [(b, p) for p in range(2) for b in range(4)]
    HF = opt("hf", 6)
    ffn_epilogue(ACC, 4, S4, Mb, RSb, Sb, E+32, XS[1], K0, vT[3], blk[:4])
    stamp(k, 3)
    ffn_epilogue(ACC, 4, S4, Mb, RSb, Sb, E+32, XS[1], K0, vT[3], blk[4:HF])
    stamp(k, 6)
    a2_flag(0, HF-4, vT[0], vT[1])
    stamp(k, 7)
    TW = opt("tw", 0)
    if TW & 1:
        k("v_lshlrev_b32 v%d, 7, v%d\ns_mov_b32 exec_hi, 0\nbuffer_load_dword v%d, v%d, %s, s%d offen sc1\ns_mov_b32 exec_hi, -1" % (vT[4], vL, vT[5], vT[4], sq(SWS), sKS))
    ffn_epilogue(ACC, 4, S4, Mb, RSb, Sb, E+32, XS[1], K0, vT[3], blk[HF:])
    stamp(k, 2)
    cs_set(1, vT[0], vT[1])
    a2_flag(3, 0, vT[0], vT[1])
    if TW & 2:
        k("v_lshlrev_b32 v%d, 7, v%d\ns_mov_b32 exec_lo, 0\nbuffer_load_dword v%d, v%d, %s, s%d offen sc1\ns_mov_b32 exec_lo, -1" % (vT[4], vL, vT[5], vT[4], sq(SWS), sKS))
    stamp(k, 4)
    k("s_branch L_k1_base")

    k("L_k1_CB:")
    WRB = 52
    ACCF = 76
    ACCS = 140
    ca = Alloc(220)
    cLr = ca(5); cMu = ca(5); cKk = ca(5); c16r = ca(5); c16k = ca(5); cKr = ca(10, 2)
    assert ca.n <= (255 if TRACE else 256) + 1
    k("s_lshl_b32 s%d, s%d, 6" % (sT0, sNH))
    k("v_xor_b32 v%d, s%d, v%d\nv_xor_b32 v%d, 32, v%d" % (aW[0], sT0, vT[0], aW[1], aW[0]))
    k("s_mul_i32 s%d, s%d, 10240\ns_add_u32 s%d, s%d, 32768" % (sT0, sNH, sT0, sT0))
    k("v_add_u32 v%d, s%d, v%d\nv_xor_b32 v%d, 64, v%d" % (aW[2], sT0, vT[5], aW[3], aW[2]))
    k("s_lshr_b32 s%d, s%d, 5\ns_add_u32 s%d, s%d, s%d\ns_mul_i32 s%d, s%d, 88\ns_add_u32 s%d, s%d, s%d\ns_lshl_b32 s%d, s%d, 12" % (sT0, sCol, sT0, sT0, sNH, sT1, sC, sT0, sT0, sT1, sKS, sT0))
    srd(k, SWS, pWs, WS_NREC)
    for r in range(0, 144, 2): k("v_mov_b64 v[%d:%d], 0" % (ACCF+r, ACCF+r+1))
    k("s_lshl_b32 s%d, s%d, 1\ns_add_u32 s%d, s%d, s%d\ns_lshl_b32 s%d, s%d, 14\ns_add_u32 s%d, s%d, 0x%x" % (sT2, sJJ, sT2, sT2, sNH, sT0, sT2, sT0, sT0, CAR_OFF))
    srd(k, SP0, pWs, 16384, "s%d" % sT0)
    HST = 4224
    k("s_mul_i32 s%d, s%d, %d\ns_add_u32 s58, s%d, 0x%x\ns_lshr_b32 s%d, s%d, 2\ns_mul_i32 s%d, s%d, %d\ns_add_u32 s%d, s%d, s58\ns_add_u32 s54, s%d, s%d\ns_addc_u32 s55, s%d, 0" % (sT0, sT2, 8*HST, sT0, CH_OFF, sT0, sC, sT0, sT0, HST, sT0, sT0, pWs, sT0, pWs+1))
    k("s_lshl_b32 s%d, s%d, 2\ns_add_u32 s58, s58, s%d" % (sT0, sC, sT0))
    k("s_add_u32 s%d, s%d, 1\ns_lshr_b32 s%d, s%d, 1\ns_lshl_b32 s59, 1, s%d\ns_sub_u32 s59, s59, 1" % (sT0, sC, sT0, sT0, sT0))
    if not opt("hint", 2): k("s_mov_b32 s59, 0")
    sSS = [68, 69, 70, 71, 79]
    k("s_mul_i32 s%d, s%d, 88\ns_add_u32 s%d, s%d, 48\ns_lshl_b32 s%d, s%d, 12" % (sT3, sC, sT3, sT3, sT3, sT3))
    k("s_mul_i32 s%d, s%d, 10\ns_mul_i32 s%d, s%d, 5\ns_add_u32 s%d, s%d, s%d" % (sT2, sJJ, sT0, sNH, sT2, sT2, sT0))
    for q in range(5):
        k("s_add_u32 s%d, s%d, %d\ns_lshr_b32 s%d, s%d, 1\ns_lshl_b32 s%d, s%d, 12\ns_and_b32 s%d, s%d, 1\ns_lshl_b32 s%d, s%d, 9" % (sT0, sT2, q, sT1, sT0, sT1, sT1, sT0, sT0, sT0, sT0))
        k("s_add_u32 s%d, s%d, s%d\ns_add_u32 s%d, s%d, s%d" % (sT0, sT0, sT1, sSS[q], sT0, sT3))
    KR = [cKr+2*q for q in range(5)]
    for s in range(1, 4): k("v_cmp_eq_u32 %s, %d, v%d" % (sp(16+2*s), s, vG))
    def ssm_frag(q):
        rd = lambda h, reg: ["ds_read_b128 %s, v%d offset:%d" % (vr(reg, 4), aW[2+h], q*2048)]
        mf = lambda b, x, w: "v_mfma_f32_16x16x32_bf16 %s, %s, %s, %s" % (vr(ACCS+(q*4+b)*4, 4), vr(x, 4), vr(w, 4), vr(ACCS+(q*4+b)*4, 4))
        return (rd, mf)
    fr = [ssm_frag(q) for q in range(5)]
    for cb in range(2):
        for gu in range(2): fr.append(ffn_frag(ACCF, gu*2+cb, aW[cb], gu))
    M4 = XS[0]
    SQ = [247, 249, 251, 253, 245]
    def postB():
        o = ["s_mul_i32 s%d, s%d, 768\ns_add_u32 s%d, s%d, %d\nv_lshl_add_u32 v%d, v%d, 4, s%d\nv_lshl_add_u32 v%d, v%d, 2, s%d" % (sT0, sMH, sT0, sT0, STAT_M, vT[3], vG, sT0, vT[2], vM, sT0),
             "s_mul_i32 s%d, s%d, 3072\ns_add_u32 s%d, s%d, %d\nv_lshl_add_u32 v%d, v%d, 4, s%d" % (sT0, sNH, sT0, sT0, CT, vT[5], vM, sT0)]
        for b in range(4): o.append("ds_read_b128 %s, v%d offset:%d" % (vr(M4+4*b, 4), vT[3], b*64))
        for qd in (6, 7, 8, 0, 1, 2, 3, 4, 5):
            if qd == 8 and TRACE: o.append("ds_read_b96 %s, v%d offset:%d" % (vr(220+4*qd, 3), vT[5], qd*256))
            else: o.append("ds_read_b128 %s, v%d offset:%d" % (vr(220+4*qd, 4), vT[5], qd*256))
        return o
    c_loop("B", fr, 6, opt("db", 5), WRB, aX + aW, postB)
    stamp(k, 1)
    RS4 = XS[1]
    for b in range(4): k("ds_read_b128 %s, v%d offset:%d" % (vr(RS4+4*b, 4), vT[3], 256+b*64))
    Z = [[ACCS + (q*4 + (t >> 2))*4 + (t & 3) for t in range(16)] for q in range(5)]
    H = [[52+q, 57+q] for q in range(5)]
    k("s_waitcnt lgkmcnt(4)")
    for t in range(0, 16, 2):
        for q in range(5): k("v_pk_fma_f32 %s, %s, %s, %s op_sel:[0,1,0] op_sel_hi:[1,1,1] neg_lo:[1,0,0] neg_hi:[1,0,0]" % (vr(Z[q][t], 2), vr(M4+t, 2), vr(SQ[q]-1, 2), vr(Z[q][t], 2)))
    k("s_waitcnt lgkmcnt(0)")
    for t in range(16):
        if t % 2 == 0:
            for q in range(5): k("v_pk_mul_f32 %s, %s, %s" % (vr(Z[q][t], 2), vr(RS4+t, 2), vr(Z[q][t], 2)))
        if t >= 1:
            prev = [Z[q][0] if t == 1 else H[q][t & 1] for q in range(5)]
            cur = [H[q][(t+1) & 1] for q in range(5)]
            for q in range(5): k("v_fma_f32 v%d, v%d, v%d, v%d" % (cur[q], cLr+q, prev[q], Z[q][t]))
            for q in range(5): k("v_fmac_f32_dpp v%d, v%d, v%d%s" % (cur[q], prev[q], cMu+q, DPP))
    a_ = [H[q][0] for q in range(5)]; b_ = [H[q][1] for q in range(5)]
    c_ = r5(20)
    TOT = 28
    d_ = [TOT, TOT+1, TOT+2, TOT+4, TOT+5]
    MINE = [12, 13, 14, 15, 16]
    S4 = 36; Mb, RSb, Sb = 62, 66, 70; K0 = 74
    def ffn_inputs():
        k("s_lshl_b32 s%d, s%d, 9\ns_add_u32 s%d, s%d, %d\nv_lshl_add_u32 v%d, v%d, 4, s%d" % (sT0, sNH, sT0, sT0, SFF, vT[0], vG, sT0))
        for b in range(0, 4, 2):
            for a, off in ((Mb, 0), (RSb, 64), (Sb, 128)):
                k("ds_read2_b32 %s, v%d offset0:%d offset1:%d" % (vr(a+b, 2), vT[2], off+b*16, off+b*16+16))
        for j in range(4): k("ds_read_b128 %s, v%d offset:%d" % (vr(S4+4*j, 4), vT[0], j*64))
        k("v_mov_b32 v%d, %s\nv_mov_b32 v%d, %s" % (K0, f32(c0*0.044715), K0+1, f32(c0)))
    ffn_inputs()
    for q in range(5): k("v_mov_b32 v%d, v%d" % (b_[q], a_[q]))
    for q in range(5): k("v_permlane16_swap_b32 v%d, v%d" % (a_[q], b_[q]))
    for q in range(5): k("v_mov_b32 v%d, v%d\nv_mov_b32 v%d, v%d" % (c_[q], a_[q], d_[q], b_[q]))
    for q in range(5): k("v_permlane32_swap_b32 v%d, v%d\nv_permlane32_swap_b32 v%d, v%d" % (a_[q], c_[q], b_[q], d_[q]))
    seq = [a_, b_, c_, d_]
    k("v_mov_b32 v%d, s%d\nv_mov_b32 v%d, s%d" % (TOT+3, sNon, TOT+7, sNon))
    k("s_lshl_b32 s%d, s%d, 9" % (sT0, sC))
    k("v_lshlrev_b32 v%d, 4, v%d\nv_mul_u32_u24 v19, %d, v%d" % (vT[1], vM, HST, vM))
    for s in range(1, 4):
        for q in range(5): k("v_fmac_f32 v%d, v%d, v%d" % (seq[s][q], c16r+q, seq[s-1][q]))
        for q in range(5): k("v_fmac_f32_dpp v%d, v%d, v%d%s" % (seq[s][q], seq[s-1][q], c16k+q, DPP))
    k("s_mov_b64 exec, 0xffff")
    k("buffer_store_dwordx4 %s, v%d, %s, s%d offen%s" % (vr(TOT, 4), vT[1], sq(SP0), sT0, SC))
    k("buffer_store_dwordx4 %s, v%d, %s, s%d offen offset:256%s" % (vr(TOT+4, 4), vT[1], sq(SP0), sT0, SC))
    TH = opt("th", 0)
    if not TH and opt("hint", 2) == 1:
        k("s_mov_b64 exec, 0xff")
        k("buffer_store_dword v%d, v19, %s, s58 offen%s" % (TOT+3, sq(SWS), SC))
    k("s_mov_b64 exec, -1")
    k("s_mov_b32 s56, s%d\ns_mov_b32 s57, s%d" % (sNon, sNon))
    cs_set(1, 17, 18)
    k(";PRIO_ON")
    stamp(k, 2)
    for q in range(5): k("v_cndmask_b32 v%d, 0, v%d, %s" % (MINE[q], a_[q], sp(18)))
    for q in range(5): k("v_cndmask_b32 v%d, v%d, v%d, %s" % (MINE[q], MINE[q], b_[q], sp(20)))
    for q in range(5): k("v_cndmask_b32 v%d, v%d, v%d, %s" % (MINE[q], MINE[q], c_[q], sp(22)))
    k("v_lshlrev_b32 v%d, 4, v%d" % (vT[3], vL))
    k("s_waitcnt lgkmcnt(0)")
    dst_ = []
    DFR = opt("dfr", 1)
    HINT = opt("hint", 2)
    for b in range(4):
        if b == opt("hb", 3) and HINT == 1: k("s_load_dwordx16 s[16:31], s[54:55], 0 glc\ns_load_dwordx16 s[32:47], s[54:55], 64 glc")
        ffn_epilogue(ACCF, 2, S4, Mb, RSb, Sb, 20, [[236, 240, 52, 56][b]], K0, vT[3], [(b, 0)], defer=dst_)
        if not DFR: k(dst_.pop())
        if TH and b == TH-1:
            k("s_waitcnt vmcnt(0)\ns_mov_b64 exec, 0xff")
            k("buffer_store_dword v%d, v19, %s, s58 offen%s\ns_mov_b64 exec, -1" % (TOT+3, sq(SWS), SC))
    def hint_check():
        k("s_waitcnt lgkmcnt(0)\ns_mov_b32 s%d, 0" % sT0)
        for j in range(15, -1, -1): k("s_cmp_lg_u64 %s, s[56:57]\ns_addc_u32 s%d, s%d, s%d" % (sp(16+2*j), sT0, sT0, sT0))
        k("s_and_b32 s%d, s%d, s59" % (sT0, sT0))
    if not opt("clk", 0): stamp(k, 6)
    PRb = [ACCF + u*8 for u in range(8)]
    k("s_sub_u32 s%d, s%d, 1" % (sT0, sC))
    k("v_sub_u32 v%d, s%d, v%d\nv_lshlrev_b32 v%d, 9, v%d\nv_lshl_add_u32 v%d, v%d, 4, v%d" % (vT[1], sT0, vG, vT[1], vT[1], vT[1], vM, vT[1]))
    def pred_loads():
        for u in range(8):
            if u: k("v_subrev_u32 v%d, %d, v%d" % (vT[0], u*2048, vT[1]))
            a = vT[0] if u else vT[1]
            k("buffer_load_dwordx4 %s, v%d, %s, 0 offen%s" % (vr(PRb[u], 4), a, sq(SP0), PSC_))
            k("buffer_load_dwordx4 %s, v%d, %s, 0 offen offset:256%s" % (vr(PRb[u]+4, 4), a, sq(SP0), PSC_))
    if HINT == 1:
        hint_check()
        k("s_mov_b32 s%d, s%d\ns_cbranch_scc1 L_k1_npl" % (sDelta, sT0))
        pred_loads()
        k("s_branch L_k1_npl2")
        k("L_k1_npl:")
        k("s_load_dwordx16 s[16:31], s[54:55], 0 glc\ns_load_dwordx16 s[32:47], s[54:55], 64 glc")
        k("L_k1_npl2:")
    elif HINT == 0:
        k("s_mov_b32 s%d, 0" % sDelta)
        pred_loads()
    else: k("s_mov_b32 s%d, 1" % sDelta)
    for x in dst_: k(x)
    k("s_mul_i32 s%d, s%d, %d\ns_add_u32 s%d, s%d, %d" % (sKx, sW, 80*TRP, sKx, sKx, TRB))
    k("v_add_u32 v%d, s%d, v%d" % (vT[4], sKx, vT[3]))
    for qd in range(3): k("ds_read_b128 %s, v%d offset:%d" % (vr(32+4*qd, 4), vT[5], (9+qd)*256))
    L256r, L256k = r5(32), r5(37)
    free = [20+2*q for q in range(5)]
    for t in range(0, 16, 2):
        nf = []
        for q in range(5): k("v_pk_mul_f32 %s, %s, %s op_sel_hi:[0,1]" % (vr(free[q], 2), vr(KR[q], 2), vr(Z[q][t], 2)))
        for e in range(2):
            for q in range(5): k("v_fmac_f32_dpp v%d, v%d, v%d%s" % (free[q]+e, Z[q][t]+e, cKk+q, DPP))
        for q in range(5):
            nf.append(Z[q][t]); Z[q][t] = free[q]; Z[q][t+1] = free[q]+1
        free = nf
    t0, t1 = 30, 31
    k("s_mov_b32 s%d, 0\ns_cmp_eq_u32 s%d, 0\ns_cbranch_scc1 L_k1_early" % (sRd, sDelta))
    if HINT == 1:
        hint_check()
        k("s_cbranch_scc0 L_k1_hd")
    else: k("s_branch L_k1_hd")
    a2_flag(1, 0, 30, 31)
    if not opt("clk", 0): stamp(k, 7)
    k("s_mov_b32 s%d, 1\ns_mov_b32 s%d, 0" % (sRd, sT3))
    k("L_k1_hr:")
    k("s_load_dwordx16 s[16:31], s[54:55], 0 glc\ns_load_dwordx16 s[32:47], s[54:55], 64 glc")
    hint_check()
    k("s_cbranch_scc0 L_k1_hd\ns_sleep %d\ns_add_u32 s%d, s%d, 1\ns_cmp_lt_u32 s%d, 0x100000\ns_cbranch_scc1 L_k1_hr" % (opt("hsl", 3), sT3, sT3, sT3))
    k("L_k1_hd:")
    if opt("dbgp", 0): stamp(k, 6)
    pred_loads()
    if DFR:
        k("s_mov_b32 s%d, 0\ns_branch L_k1_poll" % sT3)
        k("L_k1_early:")
        k("s_mov_b32 s%d, 0\ns_waitcnt vmcnt(4)\ns_branch L_k1_poll2" % sT3)
    else:
        k("s_mov_b32 s%d, 0\ns_cmp_lg_u32 s%d, 0\ns_cbranch_scc1 L_k1_poll" % (sT3, sRd))
        k("L_k1_early:")
        a2_flag(1, 16, 30, 31)
        stamp(k, 7)
        k("s_mov_b32 s%d, 0\ns_waitcnt vmcnt(1)\ns_branch L_k1_poll2" % sT3)
    k("L_k1_poll:")
    k("s_waitcnt vmcnt(0)")
    k("L_k1_poll2:")
    k("s_mov_b32 s%d, 0" % sT2)
    for u in range(8):
        k("v_cmp_ne_u32 s[24:25], s%d, v%d\nv_cmp_ne_u32 s[26:27], s%d, v%d\nv_cmp_le_i32 vcc, %d, v%d" % (sNon, PRb[u]+3, sNon, PRb[u]+7, u*2048, vT[1]))
        k("s_or_b64 s[24:25], s[24:25], s[26:27]\ns_and_b64 s[24:25], s[24:25], vcc\ns_cbranch_scc0 L_k1_pu%d" % u)
        k("s_cmp_lg_u32 s%d, 0\ns_cbranch_scc1 L_k1_ps%d\ns_sleep %d\nL_k1_ps%d:" % (sT2, u, opt("csl", 8), u))
        k("s_mov_b32 s%d, 1" % sT2)
        k("v_subrev_u32 v%d, %d, v%d" % (vT[0], u*2048, vT[1]))
        k("s_mov_b64 exec, s[24:25]")
        k("buffer_load_dwordx4 %s, v%d, %s, 0 offen%s" % (vr(PRb[u], 4), vT[0], sq(SP0), PSC_))
        k("buffer_load_dwordx4 %s, v%d, %s, 0 offen offset:256%s" % (vr(PRb[u]+4, 4), vT[0], sq(SP0), PSC_))
        k("s_mov_b64 exec, -1")
        k("L_k1_pu%d:" % u)
    k("s_add_u32 s%d, s%d, 1\ns_cmp_eq_u32 s%d, 0\ns_cbranch_scc1 L_k1_polled" % (sT3, sT3, sT2))
    k("s_cmp_lt_u32 s%d, 0x40000\ns_cbranch_scc1 L_k1_poll" % sT3)
    k("L_k1_polled:")
    if opt("dbgp", 0): k("s_waitcnt lgkmcnt(0)\ns_lshl_b32 s94, s%d, 8\ns_cmp_eq_u32 s%d, 0\ns_cselect_b32 s95, 1, 0\ns_or_b32 s94, s94, s95\ns_lshl_b32 s95, s%d, 1\ns_or_b32 s94, s94, s95" % (sT3, sDelta, sRd))
    if CSM & 2: cs_set(0, 17, 18)
    if not opt("clk", 0): stamp(k, 3)
    pr = lambda u, q: PRb[u]+(q if q < 3 else q+1)
    k("s_waitcnt lgkmcnt(0)")
    for u in range(6, -1, -1):
        for q in range(5): k("v_fmac_f32 v%d, v%d, v%d" % (pr(u, q), L256r[q], pr(u+1, q)))
        for q in range(5): k("v_fmac_f32_dpp v%d, v%d, v%d%s" % (pr(u, q), pr(u+1, q), L256k[q], DPP))
        if u == 4:
            for qd in range(5): k("ds_read_b128 %s, v%d offset:%d" % (vr(PRb[5]+4*qd, 4), vT[4], qd*1024))
    L64r, L64k, Psr, Psk = r5(PRb[5]), r5(PRb[5]+5), r5(PRb[5]+10), r5(PRb[5]+15)
    k("s_waitcnt lgkmcnt(0)")
    for q in range(5): k("v_mul_f32 v%d, v%d, v%d" % (pr(1, q), L64r[q], pr(0, q)))
    for q in range(5): k("v_fmac_f32_dpp v%d, v%d, v%d%s" % (pr(1, q), pr(0, q), L64k[q], DPP))
    for sw in ("v_permlane16_swap_b32", "v_permlane32_swap_b32"):
        for q in range(5): k("v_mov_b32 v%d, v%d" % (pr(2, q), pr(1, q)))
        for q in range(5): k("%s v%d, v%d" % (sw, pr(1, q), pr(2, q)))
        for q in range(5): k("v_add_f32 v%d, v%d, v%d" % (pr(1, q), pr(1, q), pr(2, q)))
    for q in range(5): k("v_fmac_f32 v%d, v%d, v%d" % (MINE[q], Psr[q], pr(1, q)))
    for q in range(5): k("v_fmac_f32_dpp v%d, v%d, v%d%s" % (MINE[q], pr(1, q), Psk[q], DPP))
    CIN = [f for f in free]
    for q in range(5): k("v_mul_f32 v%d, v%d, v%d" % (CIN[q], KR[q], MINE[q]))
    for q in range(5): k("v_fmac_f32_dpp v%d, v%d, v%d%s" % (CIN[q], MINE[q], cKk+q, DPP))
    PK = 32
    OUTQ = [ACCF + 4*j for j in range(10)]
    k("v_mul_u32_u24 v%d, %d, v%d\nv_lshl_add_u32 v%d, v%d, 5, v%d\nv_add_u32 v%d, s%d, v%d" % (vT[1], TRP, vM, vT[1], vG, vT[1], vT[1], sKx, vT[1]))
    k("v_and_b32 v%d, 1, v%d\nv_lshrrev_b32 v%d, 2, v%d\nv_lshl_add_u32 v%d, v%d, 3, v%d\nv_mul_u32_u24 v%d, %d, v%d" % (vT[0], vG, vT[4], vM, vT[0], vT[0], vT[4], vT[0], TRP, vT[0]))
    k("v_and_b32 v%d, 3, v%d\nv_lshl_add_u32 v%d, v%d, 5, v%d" % (vT[4], vM, vT[0], vT[4], vT[0]))
    k("v_lshrrev_b32 v%d, 1, v%d\nv_lshl_add_u32 v%d, v%d, 3, v%d\nv_add_u32 v%d, s%d, v%d" % (vT[5], vG, vT[0], vT[5], vT[0], vT[0], sKx, vT[0]))
    k("v_and_b32 v%d, 31, v%d\nv_lshlrev_b32 v%d, 4, v%d\nv_lshl_add_u32 v%d, v%d, 10, v%d" % (vT[4], vL, vT[4], vT[4], vT[4], vT[5], vT[4]))
    def tr_reads(bp):
        for q in range(5):
            o = OUTQ[bp*5+q]
            k("ds_read_b64_tr_b16 %s, v%d offset:%d\nds_read_b64_tr_b16 %s, v%d offset:%d" % (vr(o, 2), vT[0], q*16*TRP+bp*16, vr(o+2, 2), vT[0], q*16*TRP+bp*16+4*TRP))
    def tr_stores(bp, waits):
        for q in range(5):
            if waits: k("s_waitcnt lgkmcnt(%d)" % (8-2*q))
            k("buffer_store_dwordx4 %s, v%d, %s, s%d offen offset:%d%s" % (vr(OUTQ[bp*5+q], 4), vT[4], sq(SWS), sSS[q], bp*2048, S1))
    for t in range(16):
        if DFR and t == opt("fft", 2):
            k("s_cmp_lg_u32 s%d, 0\ns_cbranch_scc1 L_k1_ffd" % sRd)
            a2_flag(1, 0, 30, 31)
            if not opt("clk", 0): stamp(k, 7)
            k("L_k1_ffd:")
            if TW & 2: k("v_lshlrev_b32 v30, 7, v%d\ns_mov_b32 exec_hi, 0\nbuffer_load_dword v31, v30, %s, s%d offen sc1\ns_mov_b32 exec_hi, -1" % (vL, sq(SWS), sKS))
        prev = [CIN[q] if t == 0 else Z[q][t-1] for q in range(5)]
        for q in range(5): k("v_fmac_f32 v%d, v%d, v%d" % (Z[q][t], cLr+q, prev[q]))
        for q in range(5): k("v_fmac_f32_dpp v%d, v%d, v%d%s" % (Z[q][t], prev[q], cMu+q, DPP))
        if t & 1:
            for q in range(5): k("v_cvt_pk_bf16_f32 v%d, v%d, v%d" % (PK+8*q+(t >> 1), Z[q][t-1], Z[q][t]))
        if t == 8:
            for q in range(5): k("ds_write_b128 v%d, %s offset:%d" % (vT[1], vr(PK+8*q, 4), q*16*TRP))
        if t == 10: tr_reads(0)
        if t == 13:
            k("s_waitcnt lgkmcnt(0)")
            tr_stores(0, False)
    for q in range(5): k("ds_write_b128 v%d, %s offset:%d" % (vT[1], vr(PK+8*q+4, 4), q*16*TRP+16))
    tr_reads(1)
    tr_stores(1, True)
    if CSM & 2: cs_set(1, 17, 18)
    a2_flag(2, 0, vT[0], vT[1])
    if TW & 4:
        k("v_lshrrev_b32 v30, 2, v%d\nv_lshlrev_b32 v30, 10, v30\nv_and_b32 v31, 3, v%d\nv_lshl_add_u32 v30, v31, 7, v30\ns_mov_b64 exec, 0xffff" % (vL, vL))
        for q in range(5): k("buffer_load_dword v%d, v30, %s, s%d offen sc1" % (32+q, sq(SWS), sSS[q]))
        k("s_mov_b64 exec, -1")
    stamp(k, 4)
    k(";PRIO_OFF")
    k("L_k1_base:")
    base_loads(140)
    k("L_k1_base2:")
    base_compute(140)
    finish(100)
    k("L_k1_end:")
    k("s_endpgm")
    k(".p2align 7")
    k(".type L_k1_tab,@object")
    k("L_k1_tab:")
    k(".long " + ", ".join(str(i) for i in range(32)))
    k(".size L_k1_tab, 128")
    if opt("dp", 0):
        out = []; on = False; hi = False
        lo = opt("dplo", 0)
        for l in k.lines:
            t = l.strip()
            if t == ";PRIO_ON": on = True; hi = False; out.append("    s_setprio %d" % lo); continue
            if t == ";PRIO_OFF": on = False; continue
            if on:
                isv = t.startswith("buffer_") or t.startswith("global_")
                isalu = t.startswith("v_") and not t.startswith("v_subrev_u32") and not t.startswith("v_mov_b32") and not t.startswith("v_cmp")
                if t.endswith(":"): hi = None
                if isv and hi is not True: out.append("    s_setprio 3"); hi = True
                elif isalu and hi is not False: out.append("    s_setprio %d" % lo); hi = False
            out.append(l)
        k.lines = out
    else: k.lines = [l for l in k.lines if not l.strip().startswith(";PRIO")]
    return k

if __name__ == "__main__":
    ref = open("parallel_sum__ssm_conv_s5__geglu_ffn__prompt.s.ref").read().split("\n")
    hdr = [l for l in ref if l.startswith(";") and "@launch" not in l and "Override" not in l and "grid=ceil" not in l]
    hdr += ["; @launch grid=(256,1,1) block=(512,1,1) lds=163840"]
    out = [a for a in sys.argv[1:] if not a.startswith("--")][0]
    gen2.TRACE = False
    open(out, "w").write(emit_file(hdr, [(gen_k1(), dict(vgpr=256, accum=256))]))
```
